```python
import torch

def _softmax(x, axis=-1):
    return torch.softmax(x, dim=axis)

def _gelu(x):
    return torch.nn.functional.gelu(x, approximate='tanh')

def _silu(x):
    return torch.nn.functional.silu(x)

def _sigmoid(x):
    return torch.sigmoid(x)

def _layernorm(x, axis=-1, eps=1e-05):
    m = x.mean(dim=axis, keepdim=True)
    v = x.var(dim=axis, keepdim=True, unbiased=False)
    return (x - m) / torch.sqrt(v + eps)

def _scatter_add(tgt, idx, src, axis=0):
    return tgt.clone().index_add_(axis, idx, src)

def _segment_sum(src, seg, n):
    out = torch.zeros((n,) + src.shape[1:], dtype=src.dtype)
    return out.index_add_(0, seg, src)

def _pad(x, pw):
    flat = tuple((v for pair in reversed(pw) for v in pair))
    return torch.nn.functional.pad(x, flat)
kernel_name = 'sequential_preLN__sliding_block__mixer_gmlp__prompt'

def setup_inputs():

    _w = lambda a: (lambda t: t.to(torch.bfloat16) if t.is_floating_point() else t)(torch.as_tensor(a))

    def _A_setup():
        B, S, D = (1, 2048, 448)
        return {'x': _w((lambda *s: torch.randn(*s, dtype=torch.bfloat16) * 0.05)(B, S, D)), 'wqkv': _w((lambda *s: torch.randn(*s, dtype=torch.bfloat16) * 0.05)(D, 3 * D)), 'wo': _w((lambda *s: torch.randn(*s, dtype=torch.bfloat16) * 0.05)(D, D))}
    _A_in = _A_setup()

    def _B_setup():
        B, S, D, F = (1, 2048, 448, 1792)
        Fh = F // 2
        return {'x': _w((lambda *s: torch.randn(*s, dtype=torch.bfloat16) * 0.05)(B, S, D)), 'w_in': _w((lambda *s: torch.randn(*s, dtype=torch.bfloat16) * 0.4)(D, 2 * Fh)), 'w_sp': _w(0.01 * (lambda *s: torch.randn(*s, dtype=torch.bfloat16) * 0.4)(S, S)), 'b_sp': _w(1.0 + 0.01 * (lambda *s: torch.randn(*s, dtype=torch.bfloat16) * 0.05)(S)), 'w_out': _w((lambda *s: torch.randn(*s, dtype=torch.bfloat16) * 0.05)(Fh, D))}
    _B_in = _B_setup()
    return {'A_x': _A_in['x'], 'A_wqkv': _A_in['wqkv'], 'A_wo': _A_in['wo'], 'B_x': _B_in['x'], 'B_w_in': _B_in['w_in'], 'B_w_sp': _B_in['w_sp'], 'B_b_sp': _B_in['b_sp'], 'B_w_out': _B_in['w_out']}

def reference(A_x, A_wqkv, A_wo, B_x, B_w_in, B_w_sp, B_b_sp, B_w_out):

    def _A_ref(x, wqkv, wo):
        B, S, D = x.shape
        H = 16
        Dh = D // H
        W = 256
        qkv = (lambda x, *d: x.permute(*d))((x @ wqkv).reshape(B, S, 3, H, Dh), 2, 0, 3, 1, 4)
        q, k, v = (qkv[0], qkv[1], qkv[2])
        scores = torch.einsum('bhqd,bhkd->bhqk', q, k) * Dh ** (-0.5)
        idx = torch.arange(S)
        mask = (idx[:, None] - idx[None, :] >= 0) & (idx[:, None] - idx[None, :] < W)
        scores = torch.where(mask[None, None], scores, -1000000000.0)
        p = _softmax(scores, axis=-1)
        o = torch.einsum('bhqk,bhkd->bhqd', p, v)
        return (lambda x, *d: x.permute(*d))(o, 0, 2, 1, 3).reshape(B, S, D) @ wo

    def _B_ref(x, w_in, w_sp, b_sp, w_out):
        B, S, D = x.shape
        F = w_in.shape[-1]
        Fh = F // 2
        z = _gelu(torch.einsum('bsd,df->bsf', x, w_in))
        z1 = z[..., :Fh].clone()
        z2 = _layernorm(z[..., Fh:], axis=-1)
        g = torch.einsum('ts,bsf->btf', w_sp, z2) + b_sp[None, :, None]
        return torch.einsum('bsf,fd->bsd', z1 * g, w_out)
    x = A_x
    h = x + _A_ref(_layernorm(x, axis=-1), A_wqkv, A_wo)
    h2 = h + _B_ref(_layernorm(h, axis=-1), B_w_in, B_w_sp, B_b_sp, B_w_out)
    return h2
```

```python
import re, os

def v(i): return f"v{i}"
def s(i): return f"s{i}"
def a(i): return f"a{i}"
def vr(i, n): return f"v[{i}:{i+n-1}]" if n > 1 else f"v{i}"
def sr(i, n): return f"s[{i}:{i+n-1}]" if n > 1 else f"s{i}"
def ar(i, n): return f"a[{i}:{i+n-1}]" if n > 1 else f"a{i}"

REG_RE = re.compile(r"^(-|abs\()?([vsa])(?:(\d+)|\[(\d+):(\d+)\])\)?$")

def parse_reg(tok):
    tok = tok.strip()
    if tok.startswith("|") and tok.endswith("|"): tok = tok[1:-1]
    if tok.startswith("-|") and tok.endswith("|"): tok = tok[2:-1]
    m = REG_RE.match(tok)
    if m:
        k = m.group(2)
        if m.group(3) is not None:
            lo = hi = int(m.group(3))
        else:
            lo, hi = int(m.group(4)), int(m.group(5))
        return {(k, i) for i in range(lo, hi + 1)}
    if tok == "vcc": return {("s", "vcc")}
    if tok == "vcc_lo": return {("s", "vcc")}
    if tok in ("exec", "exec_lo", "exec_hi"): return {("s", "exec")}
    if tok == "m0": return {("s", "m0")}
    return set()

TRANS = ("v_exp_f32", "v_log_f32", "v_rcp_f32", "v_rsq_f32", "v_sqrt_f32", "v_sin_f32", "v_cos_f32")

class Ins:
    __slots__ = ("op", "args", "mods", "text", "label", "reads", "writes", "kind", "passes", "states", "target", "comment", "srcC", "srcAB", "dreg")
    def __init__(self, op=None, args=(), mods="", label=None, comment=""):
        self.op, self.args, self.mods, self.label, self.comment = op, list(args), mods, label, comment
        self.reads, self.writes = set(), set()
        self.kind, self.passes, self.states, self.target = "other", 0, 1, None
        self.srcC, self.srcAB, self.dreg = set(), set(), set()
        if op is not None: self.classify()

    def render(self):
        if self.label is not None: return f"{self.label}:"
        t = "  " + self.op
        if self.args: t += " " + ", ".join(str(x) for x in self.args)
        if self.mods: t += " " + self.mods
        if self.comment: t += "    ; " + self.comment
        return t

    def classify(self):
        op = self.op
        A = [str(x) for x in self.args]
        R = [parse_reg(x) for x in A]
        def rd(idx):
            for i in idx:
                if i < len(R): self.reads |= R[i]
        def wr(idx):
            for i in idx:
                if i < len(R): self.writes |= R[i]
        n = len(A)
        if op.startswith("v_mfma"):
            self.kind = "mfma"
            self.passes = 8 if "32x32" in op else 4
            wr([0]); rd([1, 2, 3])
            self.dreg = set(R[0]); self.srcAB = R[1] | R[2]; self.srcC = set(R[3])
        elif op.startswith("v_"):
            self.kind = "valu"
            if op.startswith("v_cmp"):
                wr([0]); rd(range(1, n))
            elif op.startswith("v_permlane") and "swap" in op:
                wr([0, 1]); rd([0, 1])
            elif op.startswith("v_readfirstlane") or op.startswith("v_readlane"):
                wr([0]); rd(range(1, n))
            elif op.startswith(("v_add_co", "v_sub_co", "v_addc_co", "v_subb_co", "v_subrev_co")):
                wr([0, 1]); rd(range(2, n))
            elif op.startswith(("v_fmac", "v_mac", "v_dot2c", "v_pk_fmac", "v_writelane")):
                wr([0]); rd(range(0, n))
            else:
                wr([0]); rd(range(1, n))
            if op.startswith("v_cndmask") and n == 3:
                self.reads.add(("s", "vcc"))
            if "dpp" in op or "row_" in self.mods or "quad_perm" in self.mods:
                self.kind = "valu"
                if "bound_ctrl" not in self.mods: self.reads |= R[0]
            self.reads.add(("s", "exec"))
        elif op.startswith("s_"):
            self.kind = "salu"
            if op.startswith(("s_waitcnt", "s_barrier", "s_endpgm", "s_sleep", "s_setprio", "s_sethalt")):
                pass
            elif op == "s_nop":
                self.states = int(A[0]) + 1
            elif op.startswith("s_cmp") or op.startswith("s_bitcmp"):
                rd(range(n)); self.writes.add(("s", "scc"))
            elif op.startswith("s_cbranch") or op == "s_branch":
                self.kind = "branch"; self.target = A[0]
                if "scc" in op: self.reads.add(("s", "scc"))
                if "vcc" in op: self.reads.add(("s", "vcc"))
                if "exec" in op: self.reads.add(("s", "exec"))
            elif op.startswith("s_load") or op.startswith("s_buffer_load") or op.startswith("s_mem"):
                self.kind = "smem"; wr([0]); rd(range(1, n))
            elif "saveexec" in op:
                wr([0]); rd(range(1, n)); self.writes.add(("s", "exec")); self.reads.add(("s", "exec"))
            else:
                wr([0]); rd(range(1, n))
                if op.startswith(("s_addc", "s_subb", "s_cselect")): self.reads.add(("s", "scc"))
        elif op.startswith("ds_"):
            self.kind = "ds"
            if op.startswith(("ds_read", "ds_bpermute", "ds_permute", "ds_swizzle")):
                wr([0]); rd(range(1, n))
            else:
                rd(range(n))
        elif op.startswith(("buffer_", "global_")):
            self.kind = "vmem"
            lds = (" lds" in " " + self.mods) or ("_lds_" in op)
            if op.startswith(("buffer_wbl2", "buffer_inv")):
                pass
            elif "store" in op or ("atomic" in op and "sc0" not in self.mods):
                rd(range(n))
                if "store" in op or "atomic" in op: self.kind = "vmem_store"
            elif lds:
                rd(range(n)); self.reads.add(("s", "m0")); self.kind = "vmem_lds"
            else:
                wr([0]); rd(range(1, n))
        else:
            raise ValueError("unknown op " + op)

    @property
    def is_trans(self): return self.op is not None and self.op.startswith(TRANS)
    @property
    def is_dpp(self): return self.op is not None and ("dpp" in self.op or "row_" in self.mods or "quad_perm" in self.mods)


def isv(regs): return {r for r in regs if r[0] in "va"}
def iss(regs): return {r for r in regs if r[0] == "s" and r[1] not in ("exec", "scc", "m0")}

def hazard_need(p, c):
    need = 0
    if p.op is None or c.op is None: return 0
    pw, cr, cw = p.writes, c.reads, c.writes
    if p.kind == "valu":
        vw = isv(pw)
        if c.kind == "mfma" and (vw & c.reads): need = max(need, 2)
        if c.kind == "valu":
            if p.is_trans and not c.is_trans and (vw & cr): need = max(need, 1)
            if p.is_trans and c.is_trans and (vw & cr): need = max(need, 1)
            if c.op.startswith(("v_readfirstlane", "v_readlane")) and (vw & cr): need = max(need, 1)
            if c.op.startswith("v_permlane") and (vw & cr): need = max(need, 2)
            if c.is_dpp and (vw & cr): need = max(need, 2)
        sw = iss(pw)
        if sw:
            if c.kind == "valu" and (sw & cr):
                need = max(need, 4 if c.op.startswith(("v_readlane", "v_writelane")) else 2)
            if c.kind in ("vmem", "vmem_store", "vmem_lds") and (sw & cr): need = max(need, 5)
            if c.kind in ("salu", "branch", "smem") and (sw & cr): need = max(need, 2)
        if ("s", "exec") in pw: need = max(need, 5)
    if p.kind == "salu":
        if ("s", "m0") in pw and c.kind == "vmem_lds": need = max(need, 1)
        if ("s", "exec") in pw and c.kind == "valu" and c.is_dpp: need = max(need, 0)
    if p.kind == "mfma":
        D = p.dreg
        big = p.passes == 8
        if c.kind == "mfma":
            if D & c.srcAB: need = max(need, 12 if big else 8)
            if D & c.srcC:
                if c.srcC == D and c.passes == p.passes: pass
                else: need = max(need, 10 if big else 6)
            if (D & c.dreg) and not (c.srcC == D): need = max(need, 10 if big else 6)
        elif c.kind in ("valu", "vmem", "vmem_store", "vmem_lds", "ds"):
            if (D & cr) or (D & cw): need = max(need, 12 if big else 8)
        if c.kind == "valu" and (p.srcC & cw): need = max(need, 7 if big else 3)
        if c.kind in ("vmem", "ds") and (p.srcC & cw): need = max(need, 7 if big else 3)
    if p.kind == "vmem_store" and ("x4" in p.op or "x3" in p.op):
        data = set()
        data = parse_reg(str(p.args[0])) if p.op.startswith("buffer") else parse_reg(str(p.args[1]))
        if data & cw: need = max(need, 2 if c.kind == "valu" else 1)
    if p.kind == "ds" and p.op.startswith(("ds_write_b128", "ds_write_b96")):
        data = parse_reg(str(p.args[1]))
        if data & cw and c.kind == "valu": need = max(need, 1)
    return need

MAXD = 14

class Kernel:
    def __init__(self, name):
        self.name = name
        self.ins = []
        self.vnext = 0; self.snext = 0; self.anext = 0
        self.vmax = 0; self.smax = 0; self.amax = 0
        self.names = {}
        self.vmq = []
        self.lgq = []
        self.uid = 0

    def valloc(self, n=1, align=None, name=None):
        if align is None: align = 1 if n == 1 else (2 if n < 4 else 4)
        if n >= 2 and align < 2: align = 2
        self.vnext = (self.vnext + align - 1) // align * align
        r = self.vnext; self.vnext += n; self.vmax = max(self.vmax, self.vnext)
        assert self.vnext <= 256, f"{self.name}: out of VGPRs"
        return r
    def aalloc(self, n=1, align=4):
        self.anext = (self.anext + align - 1) // align * align
        r = self.anext; self.anext += n; self.amax = max(self.amax, self.anext)
        assert self.anext <= 256
        return r
    def salloc(self, n=1, align=None):
        if align is None: align = 1 if n == 1 else (2 if n == 2 else 4)
        self.snext = (self.snext + align - 1) // align * align
        r = self.snext; self.snext += n; self.smax = max(self.smax, self.snext)
        assert self.snext <= 100, f"{self.name}: out of SGPRs"
        return r

    def I(self, op, *args, mods="", c=""):
        if op.startswith("buffer_store") and "sc1" not in mods and os.environ.get("STORE_SC1", "1") == "1" and self.name[:2] not in os.environ.get("SC1_OFF", "k6").split(","):
            mods = mods + " sc1"
        i = Ins(op, args, mods, comment=c)
        self.ins.append(i)
        return i
    def L(self, name):
        self.ins.append(Ins(label=name))
    def newlabel(self, base):
        self.uid += 1
        return f"{self.name}_{base}_{self.uid}"
    def comment(self, t):
        pass

    def vm(self, tag, op, *args, mods=""):
        self.I(op, *args, mods=mods)
        self.vmq.append(tag)
    def wait_vm(self, tags, extra=""):
        if isinstance(tags, (str, tuple)): tags = [tags]
        last = -1
        for i, t in enumerate(self.vmq):
            if t in tags: last = i
        if last < 0: return
        n = len(self.vmq) - 1 - last
        assert n <= 63
        self.I("s_waitcnt", f"vmcnt({n})")
        self.vmq = self.vmq[last + 1:]
    def lg(self, tag, op, *args, mods=""):
        self.I(op, *args, mods=mods)
        self.lgq.append(tag)
    def wait_lg(self, tags):
        if isinstance(tags, (str, tuple)): tags = [tags]
        last = -1
        for i, t in enumerate(self.lgq):
            if t in tags: last = i
        if last < 0: return
        n = len(self.lgq) - 1 - last
        if n > 15: n = 15;
        self.I("s_waitcnt", f"lgkmcnt({n})")
        self.lgq = self.lgq[last + 1:]
    def wait_all(self):
        self.I("s_waitcnt", "vmcnt(0) lgkmcnt(0)")
        self.vmq = []; self.lgq = []

    def fix_hazards(self):
        ins = self.ins
        labels = {x.label: i for i, x in enumerate(ins) if x.label is not None}
        preds = [[] for _ in ins]
        for i, x in enumerate(ins):
            if x.op == "s_branch":
                preds[labels[x.target]].append(i)
            elif x.op == "s_endpgm":
                pass
            else:
                if x.kind == "branch": preds[labels[x.target]].append(i)
                if i + 1 < len(ins): preds[i + 1].append(i)
        pad = [0] * len(ins)
        changed = True
        while changed:
            changed = False
            for i, c in enumerate(ins):
                if c.op is None or c.op == "s_nop": continue
                if c.kind == "salu" and not c.reads: continue
                worst = 0
                stack = [(p, pad[i]) for p in preds[i]]
                seen = {}
                while stack:
                    j, d = stack.pop()
                    if d >= MAXD: continue
                    if seen.get(j, 99) <= d: continue
                    seen[j] = d
                    p = ins[j]
                    if p.op is not None:
                        if p.kind in ("valu", "salu", "mfma", "vmem_store", "ds"):
                            need = hazard_need(p, c)
                            if need > d: worst = max(worst, need - d)
                        nd = d + p.states + pad[j]
                    else:
                        nd = d + pad[j]
                    for q in preds[j]: stack.append((q, nd))
                if worst > 0:
                    pad[i] += worst
                    changed = True
        out = []
        total = 0
        for i, x in enumerate(ins):
            if pad[i] > 0:
                n = pad[i]; total += n
                while n > 0:
                    k = min(n, 16)
                    out.append(Ins("s_nop", [k - 1], comment="hz"))
                    n -= k
            out.append(x)
        self.ins = out
        return total

    def render(self):
        out = []
        for x in self.ins: out.append(x.render())
        return "\n".join(out)

    def descriptor(self, wgy=False):
        nv = max(self.vmax, 4)
        acc = (nv + 3) // 4 * 4
        nfv = acc + self.amax if self.amax else nv
        return f""".amdhsa_kernel {self.name}
  .amdhsa_next_free_vgpr {nfv}
  .amdhsa_next_free_sgpr {max(self.smax, 16)}
  .amdhsa_accum_offset {acc}
  .amdhsa_group_segment_fixed_size 0
  .amdhsa_kernarg_size 88
  .amdhsa_user_sgpr_count 2
  .amdhsa_user_sgpr_kernarg_segment_ptr 1
  .amdhsa_system_sgpr_workgroup_id_x 1
  .amdhsa_float_denorm_mode_32 3
  .amdhsa_float_denorm_mode_16_64 3
.end_amdhsa_kernel
"""
```

```python
import os, struct, math
from asmlib import *
from layout import *
WS_SIZE = 0x10000000
def f32(x): return struct.unpack("<I", struct.pack("<f", x))[0]

def srd(k, dst, base, size):
    k.I("s_mov_b32", s(dst), s(base))
    k.I("s_and_b32", s(dst + 1), s(base + 1), "0xffff")
    k.I("s_mov_b32", s(dst + 2), hex(size))
    k.I("s_mov_b32", s(dst + 3), "0x20000")

def gen_k2(Stamper):
    k = Kernel("k2_attn_kernel")
    k.snext = 4; k.vnext = 1
    KREG = 0; VREG = 24576
    lds = 49152
    done = k.newlabel("done")
    k.I("s_cmp_ge_u32", "s2", 256)
    k.I("s_cbranch_scc1", done)
    pWS = k.salloc(2)
    k.I("s_load_dwordx2", sr(pWS, 2), "s[0:1]", 80)
    sWS = k.salloc(4)
    swave = k.salloc(); srb = k.salloc(); shd = k.salloc(); st0 = k.salloc(); st1 = k.salloc(); soff = k.salloc()
    lane = k.valloc(); t0 = k.valloc(); t1 = k.valloc(); l15 = k.valloc(); gg = k.valloc()
    k.I("v_lshrrev_b32", v(t0), 6, "v0")
    k.I("v_and_b32", v(lane), 63, "v0")
    k.I("v_readfirstlane_b32", s(swave), v(t0))
    k.I("s_and_b32", s(st0), "s2", 7)
    k.I("s_lshr_b32", s(st1), "s2", 3)
    k.I("s_and_b32", s(shd), s(st1), 15)
    k.I("s_lshr_b32", s(st1), s(st1), 4)
    k.I("s_lshl_b32", s(srb), s(st0), 1)
    k.I("s_add_u32", s(srb), s(srb), s(st1))
    stp = Stamper(k, 1, sWS, swave)
    v16 = k.valloc()
    k.I("v_lshlrev_b32", v(v16), 4, v(lane))
    sb = k.salloc(); sm = k.salloc(); s16q = k.salloc()
    k.I("s_lshl_b32", s(sb), s(shd), 17)
    k.I("s_lshl_b32", s(st0), s(srb), 13)
    k.I("s_add_u32", s(sb), s(sb), s(st0))
    k.I("s_mul_i32", s(sm), s(swave), 3072)
    k.I("s_lshl_b32", s(s16q), s(srb), 3)
    k.I("s_add_u32", s(s16q), s(s16q), s(swave))
    k.I("s_waitcnt", "lgkmcnt(0)")
    srd(k, sWS, pWS, WS_SIZE)
    qf = k.valloc(4)
    k.I("s_lshl_b32", s(st0), s(swave), 10)
    k.I("s_add_u32", s(st0), s(st0), s(sb))
    k.I("s_add_u32", s(soff), s(st0), hex(Q_OFF))
    k.vm("q", "buffer_load_dwordx4", vr(qf, 4), v(v16), sr(sWS, 4), s(soff), mods="offen")
    k.I("s_add_u32", s(st1), s(sb), s(sm))
    for (reg, off) in ((KREG, K_OFF), (VREG, V_OFF)):
        for i in range(3):
            k.I("s_add_u32", s(soff), s(st1), hex(off - 16384 + i * 1024))
            k.I("s_add_u32", "m0", s(sm), hex(reg + i * 1024))
            k.vm("kv", "buffer_load_dwordx4", v(v16), sr(sWS, 4), s(soff), mods="offen lds")
    stp.stamp(0)
    k.I("v_and_b32", v(l15), 15, v(lane))
    k.I("v_lshrrev_b32", v(gg), 4, v(lane))
    M = [k.salloc(2) for _ in range(4)]
    k.I("v_lshlrev_b32", v(t0), 2, v(gg))
    for i in range(4):
        k.I("v_add_u32", v(t1), i, v(t0))
        k.I("v_cmp_gt_u32", sr(M[i], 2), v(t1), v(l15))
    aK = k.valloc(); aV = k.valloc()
    k.I("s_lshl_b32", s(st0), s(swave), 10)
    k.I("v_add_u32", v(aK), s(st0), v(v16))
    k.I("v_lshlrev_b32", v(aV), 3, v(lane))
    k.I("s_add_u32", s(st0), s(st0), VREG)
    k.I("v_add_u32", v(aV), s(st0), v(aV))
    S = k.valloc(68, 4)
    kf = [k.valloc(4) for _ in range(6)]
    neg = k.valloc()
    k.I("v_mov_b32", v(neg), hex(f32(-1e30)))
    k.wait_vm(["q", "kv"])
    k.I("s_barrier")
    stp.stamp(1)
    NKF = 6
    for j in range(min(NKF, 17)):
        k.lg(("k", j), "ds_read_b128", vr(kf[j % NKF], 4), v(aK), mods=f"offset:{j * 1024}")
    for j in range(17):
        k.wait_lg(("k", j))
        k.I("v_mfma_f32_16x16x32_bf16", vr(S + 4 * j, 4), vr(kf[j % NKF], 4), vr(qf, 4), 0)
        if j + NKF < 17:
            k.lg(("k", j + NKF), "ds_read_b128", vr(kf[j % NKF], 4), v(aK), mods=f"offset:{(j + NKF) * 1024}")
    vf = k.valloc(9 * 2 * 4, 4)
    def vread(kp):
        for dt in range(2):
            for beta in range(2):
                tile = min(2 * kp + beta, 16)
                k.lg(("v", kp), "ds_read_b64", vr(vf + (kp * 2 + dt) * 4 + 2 * beta, 2), v(aV), mods=f"offset:{tile * 1024 + dt * 512}")
    for kp in range(3): vread(kp)
    for i in range(4):
        k.I("v_cndmask_b32", v(S + i), v(neg), v(S + i), sr(M[i], 2))
        k.I("v_cndmask_b32", v(S + 64 + i), v(S + 64 + i), v(neg), sr(M[i], 2))
    nofix = k.newlabel("nofix")
    k.I("s_cmp_ge_u32", s(s16q), 16)
    k.I("s_cbranch_scc1", nofix)
    k.I("s_sub_u32", s(st0), 16, s(s16q))
    for j in range(16):
        lab = k.newlabel("sk")
        k.I("s_cmp_le_u32", s(st0), j)
        k.I("s_cbranch_scc1", lab)
        for i in range(4): k.I("v_mov_b32", v(S + 4 * j + i), v(neg))
        k.L(lab)
    k.L(nofix)
    mx = k.valloc(4)
    for c in range(4):
        k.I("v_max3_f32", v(mx + c), v(S + c * 17), v(S + c * 17 + 1), v(S + c * 17 + 2))
    for r in range(7):
        for c in range(4):
            b = c * 17 + 3 + 2 * r
            k.I("v_max3_f32", v(mx + c), v(mx + c), v(S + b), v(S + b + 1))
    k.I("v_max3_f32", v(mx), v(mx), v(mx + 1), v(mx + 2))
    k.I("v_max_f32", v(mx), v(mx), v(mx + 3))
    for sw in ("v_permlane16_swap_b32", "v_permlane32_swap_b32"):
        k.I("v_mov_b32", v(mx + 1), v(mx))
        k.I(sw, v(mx), v(mx + 1))
        k.I("v_max_f32", v(mx), v(mx), v(mx + 1))
    cs = 28 ** -0.5 * math.log2(math.e)
    sc = k.salloc()
    k.I("s_mov_b32", s(sc), hex(f32(cs)))
    k.I("v_mul_f32", v(mx), hex(f32(-cs)), v(mx))
    for kp in range(3, 6): vread(kp)
    P = k.valloc(36, 4)
    k.I("v_mov_b32", v(P + 34), 0); k.I("v_mov_b32", v(P + 35), 0)
    O = [k.valloc(4), k.valloc(4)]
    def softmax_tile(j):
        for i in range(4): k.I("v_fma_f32", v(S + 4 * j + i), v(S + 4 * j + i), s(sc), v(mx))
        for i in range(4): k.I("v_exp_f32", v(S + 4 * j + i), v(S + 4 * j + i))
    def pack_tile(j):
        k.I("v_cvt_pk_bf16_f32", v(P + 2 * j), v(S + 4 * j), v(S + 4 * j + 1))
        k.I("v_cvt_pk_bf16_f32", v(P + 2 * j + 1), v(S + 4 * j + 2), v(S + 4 * j + 3))
    for kp in range(9):
        tiles = [2 * kp, 2 * kp + 1] if kp < 8 else [16]
        for j in tiles: softmax_tile(j)
        for j in tiles: pack_tile(j)
        if kp == 2:
            for q in range(6, 9): vread(q)
        if kp >= 1:
            q = kp - 1
            k.wait_lg(("v", q))
            for dt in range(2):
                k.I("v_mfma_f32_16x16x32_bf16", vr(O[dt], 4), vr(vf + (q * 2 + dt) * 4, 4), vr(P + 4 * q, 4), 0 if q == 0 else vr(O[dt], 4))
    k.wait_lg(("v", 8))
    for dt in range(2):
        k.I("v_mfma_f32_16x16x32_bf16", vr(O[dt], 4), vr(vf + (8 * 2 + dt) * 4, 4), vr(P + 32, 4), vr(O[dt], 4))
    la = k.valloc(); lb = k.valloc()
    k.I("v_mov_b32", v(la), v(O[1])); k.I("v_mov_b32", v(lb), v(O[1]))
    k.I("v_permlane32_swap_b32", v(la), v(lb))
    k.I("v_mov_b32", v(la), v(lb))
    k.I("v_permlane16_swap_b32", v(la), v(lb))
    k.I("v_rcp_f32", v(lb), v(lb))
    for dt in range(2):
        for i in range(4): k.I("v_mul_f32", v(O[dt] + i), v(O[dt] + i), v(lb))
    pk = k.valloc(4)
    for dt in range(2):
        k.I("v_cvt_pk_bf16_f32", v(pk + 2 * dt), v(O[dt]), v(O[dt] + 1))
        k.I("v_cvt_pk_bf16_f32", v(pk + 2 * dt + 1), v(O[dt] + 2), v(O[dt] + 3))
    k.I("v_cmp_gt_u32", "vcc", 3, v(gg))
    k.I("v_cndmask_b32", v(pk + 2), 0, v(pk + 2), "vcc")
    k.I("v_cndmask_b32", v(pk + 3), 0, v(pk + 3), "vcc")
    vo = k.valloc()
    k.I("s_and_b32", s(st0), s(swave), 1)
    k.I("s_lshl_b32", s(st0), s(st0), 8)
    k.I("v_lshlrev_b32", v(vo), 4, v(l15))
    k.I("v_add_u32", v(vo), s(st0), v(vo))
    k.I("v_lshrrev_b32", v(t0), 1, v(gg))
    k.I("v_lshl_add_u32", v(vo), v(t0), 9, v(vo))
    k.I("v_and_b32", v(t0), 1, v(gg))
    k.I("v_lshl_add_u32", v(vo), v(t0), 3, v(vo))
    k.I("s_lshl_b32", s(st0), s(srb), 2)
    k.I("s_lshr_b32", s(st1), s(swave), 1)
    k.I("s_add_u32", s(st0), s(st0), s(st1))
    k.I("s_lshl_b32", s(st0), s(st0), 15)
    k.I("s_lshl_b32", s(st1), s(shd), 11)
    k.I("s_add_u32", s(st0), s(st0), s(st1))
    k.I("s_add_u32", s(soff), s(st0), hex(O_OFF))
    for dt in range(2):
        k.I("buffer_store_dwordx2", vr(pk + 2 * dt, 2), v(vo), sr(sWS, 4), s(soff), mods=f"offen offset:{dt * 1024}")
    stp.stamp(2)
    k.L(done)
    k.I("s_endpgm")
    k.lds = lds; k.threads = 512; k.grid = 256
    return k


def common_start(k, nwg):
    k.snext = 4; k.vnext = 1
    done = k.newlabel("done")
    k.I("s_cmp_ge_u32", "s2", nwg)
    k.I("s_cbranch_scc1", done)
    R = dict(done=done)
    R["swave"] = k.salloc(); R["st0"] = k.salloc(); R["st1"] = k.salloc(); R["soff"] = k.salloc()
    R["lane"] = k.valloc(); R["t0"] = k.valloc(); R["t1"] = k.valloc(); R["t2"] = k.valloc()
    k.I("v_lshrrev_b32", v(R["t0"]), 6, "v0")
    k.I("v_and_b32", v(R["lane"]), 63, "v0")
    k.I("v_readfirstlane_b32", s(R["swave"]), v(R["t0"]))
    return R

def interleave(k, mf, fl):
    n = len(fl); m = len(mf)
    cuts = [(i * n + m - 1) // m for i in range(m + 1)]
    cuts[-1] = n
    for i in range(m):
        mf[i]()
        for f in fl[cuts[i]:cuts[i + 1]]: f()

def stats_from_packed(k, P, n, accs, accq, tmp):
    for j in range(n):
        t = tmp[j % len(tmp)]
        k.I("v_lshlrev_b32", v(t), 16, v(P + j))
        k.I("v_and_b32", v(t + 1), "0xffff0000", v(P + j))
        if j == 0:
            k.I("v_pk_mul_f32", vr(accq, 2), vr(t, 2), vr(t, 2))
            k.I("v_mov_b32", v(accs), v(t)); k.I("v_mov_b32", v(accs + 1), v(t + 1))
        else:
            k.I("v_pk_add_f32", vr(accs, 2), vr(accs, 2), vr(t, 2))
            k.I("v_pk_fma_f32", vr(accq, 2), vr(t, 2), vr(t, 2), vr(accq, 2))
    k.I("v_add_f32", v(accs), v(accs), v(accs + 1))
    k.I("v_add_f32", v(accq), v(accq), v(accq + 1))
    for r_ in (accs, accq):
        k.I("v_mov_b32", v(r_ + 1), v(r_))
        k.I("v_permlane32_swap_b32", v(r_), v(r_ + 1))
        k.I("v_add_f32", v(r_), v(r_), v(r_ + 1))

def gen_k3(Stamper):
    k = Kernel("k3_wo_kernel")
    WREG = 0; OREG = 58368
    lds = OREG + 65536
    R = common_start(k, 256)
    swave, st0, st1, soff, lane, t0, t1, t2 = (R[x] for x in ("swave", "st0", "st1", "soff", "lane", "t0", "t1", "t2"))
    pX = k.salloc(2); pWo = k.salloc(2); pWin = k.salloc(2); pWS = k.salloc(2)
    k.I("s_load_dwordx2", sr(pX, 2), "s[0:1]", 0)
    k.I("s_load_dwordx2", sr(pWo, 2), "s[0:1]", 16)
    k.I("s_load_dwordx2", sr(pWin, 2), "s[0:1]", 32)
    k.I("s_load_dwordx2", sr(pWS, 2), "s[0:1]", 80)
    sWS = k.salloc(4); sWo = k.salloc(4); sX = k.salloc(4)
    sj = k.salloc(); sidx = k.salloc(); srt = k.salloc(); snt = k.salloc(); sw3 = k.salloc()
    k.I("s_and_b32", s(sj), "s2", 7)
    k.I("s_lshr_b32", s(sidx), "s2", 3)
    k.I("s_and_b32", s(sw3), s(swave), 3)
    stp = Stamper(k, 2, sWS, swave)
    aux = k.newlabel("aux")
    k.I("s_cmp_ge_u32", s(sidx), 28)
    k.I("s_cbranch_scc1", aux)
    k.I("s_mul_i32", s(st0), s(sidx), 37)
    k.I("s_lshr_b32", s(st0), s(st0), 8)
    k.I("s_mul_i32", s(st1), s(st0), 7)
    k.I("s_sub_u32", s(snt), s(sidx), s(st1))
    k.I("s_lshl_b32", s(srt), s(sj), 2)
    k.I("s_add_u32", s(srt), s(srt), s(st0))
    k.I("s_waitcnt", "lgkmcnt(0)")
    srd(k, sWS, pWS, WS_SIZE)
    comp = k.newlabel("compute")
    k.I("s_cmp_lt_u32", s(swave), 4)
    k.I("s_cbranch_scc1", comp)
    vsave = k.vnext
    srd(k, sWo, pWo, 448 * 896)
    v16 = k.valloc(); vWo = k.valloc()
    k.I("v_lshlrev_b32", v(v16), 4, v(lane))
    k.I("v_lshrrev_b32", v(t0), 3, v(lane))
    k.I("v_mul_u32_u24", v(t0), 896, v(t0))
    k.I("v_bfe_u32", v(t1), v(lane), 4, 1)
    k.I("v_lshlrev_b32", v(t1), 2, v(t1))
    k.I("v_and_b32", v(t2), 7, v(lane))
    k.I("v_xor_b32", v(t1), v(t1), v(t2))
    k.I("v_lshl_add_u32", v(vWo), v(t1), 4, v(t0))
    sOb = k.salloc(); sWb = k.salloc(); smO = k.salloc(); smW = k.salloc()
    k.I("s_lshl_b32", s(sOb), s(srt), 16)
    k.I("s_lshl_b32", s(st0), s(sw3), 10)
    k.I("s_add_u32", s(sOb), s(sOb), s(st0))
    k.I("s_add_u32", s(sOb), s(sOb), hex(O_OFF))
    k.I("s_add_u32", s(smO), s(st0), OREG)
    k.I("s_mul_i32", s(sWb), s(sw3), 8 * 896)
    k.I("s_lshl_b32", s(st1), s(snt), 7)
    k.I("s_add_u32", s(sWb), s(sWb), s(st1))
    k.I("s_add_u32", s(smW), s(st0), WREG)
    def issue(c):
        for r2 in range(2):
            k.I("s_add_u32", s(soff), s(sOb), hex(r2 * 32768 + c * 4096))
            k.I("s_add_u32", "m0", s(smO), hex(r2 * 32768 + c * 4096))
            k.vm(("S", c), "buffer_load_dwordx4", v(v16), sr(sWS, 4), s(soff), mods="offen lds")
        for i in range(2):
            k.I("s_add_u32", s(soff), s(sWb), hex((56 * c + 32 * i) * 896))
            k.I("s_add_u32", "m0", s(smW), hex((56 * c + 32 * i) * 128))
            k.vm(("S", c), "buffer_load_dwordx4", v(vWo), sr(sWo, 4), s(soff), mods="offen lds")
    LA = 3
    for c in range(LA): issue(c)
    for c in range(8):
        k.wait_vm(("S", c))
        k.I("s_barrier")
        if c + LA < 8: issue(c + LA)
    k.I("s_endpgm")
    k.L(comp)
    k.vnext = vsave; k.vmq = []; k.lgq = []
    srd(k, sX, pX, 2048 * 896)
    l31 = k.valloc(); hh = k.valloc()
    k.I("v_and_b32", v(l31), 31, v(lane))
    k.I("v_lshrrev_b32", v(hh), 5, v(lane))
    srh = k.salloc(); snh = k.salloc(); sst = k.salloc(); sntile = k.salloc()
    k.I("s_and_b32", s(srh), s(swave), 1)
    k.I("s_lshr_b32", s(snh), s(swave), 1)
    k.I("s_lshl_b32", s(sst), s(srt), 1)
    k.I("s_add_u32", s(sst), s(sst), s(srh))
    k.I("s_lshl_b32", s(sntile), s(snt), 1)
    k.I("s_add_u32", s(sntile), s(sntile), s(snh))
    xr = k.valloc(8, 4); vx = k.valloc()
    k.I("v_mul_u32_u24", v(vx), 896, v(l31))
    k.I("v_lshl_add_u32", v(vx), v(hh), 3, v(vx))
    k.I("s_mul_i32", s(soff), s(sst), 32 * 896)
    k.I("s_lshl_b32", s(st0), s(sntile), 6)
    k.I("s_add_u32", s(soff), s(soff), s(st0))
    for q in range(4):
        k.vm("x", "buffer_load_dwordx2", vr(xr + 2 * q, 2), v(vx), sr(sX, 4), s(soff), mods=f"offen offset:{16 * q}")
    stp.stamp(0)
    aO = k.valloc(); vW = k.valloc()
    k.I("v_lshlrev_b32", v(aO), 4, v(lane))
    k.I("s_lshl_b32", s(st0), s(srh), 15)
    k.I("s_add_u32", s(st0), s(st0), OREG)
    k.I("v_add_u32", v(aO), s(st0), v(aO))
    k.I("v_bfe_u32", v(t0), v(lane), 2, 2)
    k.I("v_lshl_add_u32", v(t0), v(hh), 3, v(t0))
    k.I("v_lshlrev_b32", v(vW), 7, v(t0))
    k.I("v_bfe_u32", v(t0), v(lane), 4, 1)
    k.I("v_lshlrev_b32", v(t0), 1, v(t0))
    k.I("v_bfe_u32", v(t1), v(lane), 1, 1)
    k.I("v_add_u32", v(t0), v(t0), v(t1))
    k.I("s_lshl_b32", s(st0), s(snh), 2)
    k.I("v_add_u32", v(t0), s(st0), v(t0))
    k.I("v_bfe_u32", v(t1), v(lane), 3, 1)
    k.I("v_lshlrev_b32", v(t1), 2, v(t1))
    k.I("v_xor_b32", v(t0), v(t0), v(t1))
    k.I("v_lshl_add_u32", v(vW), v(t0), 4, v(vW))
    k.I("v_and_b32", v(t0), 1, v(lane))
    k.I("v_lshl_add_u32", v(vW), v(t0), 3, v(vW))
    acc = k.valloc(16, 4)
    NB = 3
    of = [k.valloc(4) for _ in range(NB)]; wf = [k.valloc(4) for _ in range(NB)]
    def rl(ks):
        b = ks % NB
        out = [lambda: k.lg(("f", ks), "ds_read_b128", vr(of[b], 4), v(aO), mods=f"offset:{ks * 1024}")]
        for beta in range(2):
            o = (28 * (ks >> 1) + 16 * (ks & 1) + 4 * beta) * 128
            out.append(lambda o=o, beta=beta: k.lg(("f", ks), "ds_read_b64_tr_b16", vr(wf[b] + 2 * beta, 2), v(vW), mods=f"offset:{o}"))
        return out
    k.I("s_barrier")
    stp.stamp(1)
    for f in rl(0) + rl(1): f()
    for ks in range(32):
        c, j = ks // 4, ks % 4
        b = ks % NB
        k.wait_lg(("f", ks))
        k.I("v_mfma_f32_32x32x16_bf16", vr(acc, 16), vr(wf[b], 4), vr(of[b], 4), 0 if ks == 0 else vr(acc, 16))
        if j == 1 and c < 7: k.I("s_barrier")
        if ks + 2 < 32 and not (j == 1 and False):
            pass
        nxt = ks + 2
        if nxt < 32:
            for f in rl(nxt): f()
    EOF_MARK = None
    stp.stamp(2)
    k.wait_vm("x")
    tmp = [k.valloc(2) for _ in range(4)]
    for q in range(4):
        for d in range(2):
            t = tmp[(2 * q + d) % 4]
            k.I("v_lshlrev_b32", v(t), 16, v(xr + 2 * q + d))
            k.I("v_and_b32", v(t + 1), "0xffff0000", v(xr + 2 * q + d))
            k.I("v_pk_add_f32", vr(acc + 4 * q + 2 * d, 2), vr(acc + 4 * q + 2 * d, 2), vr(t, 2))
    P = k.valloc(8, 4)
    for j in range(8): k.I("v_cvt_pk_bf16_f32", v(P + j), v(acc + 2 * j), v(acc + 2 * j + 1))
    v16 = k.valloc()
    k.I("v_lshlrev_b32", v(v16), 4, v(lane))
    k.I("s_mul_i32", s(soff), s(sst), 28 * 1024)
    k.I("s_lshl_b32", s(st0), s(sntile), 11)
    k.I("s_add_u32", s(soff), s(soff), s(st0))
    k.I("s_add_u32", s(soff), s(soff), hex(H_OFF))
    k.I("buffer_store_dwordx4", vr(P, 4), v(v16), sr(sWS, 4), s(soff), mods="offen")
    k.I("buffer_store_dwordx4", vr(P + 4, 4), v(v16), sr(sWS, 4), s(soff), mods="offen offset:1024")
    accs = k.valloc(2); accq = k.valloc(2)
    stats_from_packed(k, P, 8, accs, accq, tmp)
    k.I("v_mov_b32", v(accs + 1), v(accq))
    vh = k.valloc()
    k.I("v_mul_u32_u24", v(vh), 112, v(l31))
    k.I("s_mul_i32", s(soff), s(sst), 32 * 112)
    k.I("s_lshl_b32", s(st0), s(sntile), 3)
    k.I("s_add_u32", s(soff), s(soff), s(st0))
    k.I("s_add_u32", s(soff), s(soff), hex(HS_OFF))
    k.I("s_mov_b32", "exec_hi", 0)
    k.I("buffer_store_dwordx2", vr(accs, 2), v(vh), sr(sWS, 4), s(soff), mods="offen")
    stp.stamp(3)
    k.I("s_endpgm")
    k.L(aux)
    k.vnext = vsave; k.vmq = []; k.lgq = []
    sa = k.salloc(); sWin = k.salloc(4)
    k.I("s_sub_u32", s(sa), s(sidx), 28)
    k.I("s_lshl_b32", s(sa), s(sa), 3)
    k.I("s_add_u32", s(sa), s(sa), s(sj))
    k.I("s_waitcnt", "lgkmcnt(0)")
    srd(k, sWS, pWS, WS_SIZE)
    ff = k.valloc(4)
    for i in range(4): k.I("v_mov_b32", v(ff + i), -1)
    k.I("v_lshlrev_b32", v(t1), 4, "v0")
    k.I("v_mov_b32", v(t2), "0x7fffff00")
    k.I("v_cmp_gt_u32", "vcc", 448, "v0")
    k.I("v_cndmask_b32", v(t1), v(t2), v(t1), "vcc")
    k.I("s_mul_i32", s(st0), s(sa), 7168)
    k.I("s_add_u32", s(st0), s(st0), hex(EX_OFF))
    k.I("buffer_store_dwordx4", vr(ff, 4), v(t1), sr(sWS, 4), s(st0), mods="offen")
    k.I("s_cmp_ge_u32", s(sa), 28)
    k.I("s_cbranch_scc1", R["done"])
    srd(k, sWin, pWin, 448 * 3584)
    vg = k.valloc()
    k.I("v_lshrrev_b32", v(t0), 3, v(lane))
    k.I("v_mul_u32_u24", v(t0), 3584, v(t0))
    k.I("v_bfe_u32", v(t1), v(lane), 4, 1)
    k.I("v_lshlrev_b32", v(t1), 2, v(t1))
    k.I("v_and_b32", v(t2), 7, v(lane))
    k.I("v_xor_b32", v(t1), v(t1), v(t2))
    k.I("v_lshl_add_u32", v(vg), v(t1), 4, v(t0))
    sb = k.salloc(); sm = k.salloc()
    k.I("s_mul_i32", s(sb), s(swave), 56 * 3584)
    k.I("s_lshl_b32", s(st0), s(sa), 7)
    k.I("s_add_u32", s(sb), s(sb), s(st0))
    k.I("s_mul_i32", s(sm), s(swave), 56 * 128)
    for i in range(7):
        k.I("s_add_u32", s(soff), s(sb), hex(i * 8 * 3584))
        k.I("s_add_u32", "m0", s(sm), hex(i * 1024))
        k.I("buffer_load_dwordx4", v(vg), sr(sWin, 4), s(soff), mods="offen lds")
    z = k.valloc(); TB = 57344
    k.I("v_mov_b32", v(z), 0)
    k.I("v_lshlrev_b32", v(t0), 2, v(lane))
    k.I("v_add_u32", v(t0), TB, v(t0))
    k.I("ds_write_b32", v(t0), v(z))
    gg = k.valloc(); vB = k.valloc(); ones = k.valloc(4)
    k.I("v_lshrrev_b32", v(gg), 4, v(lane))
    k.I("v_bfe_u32", v(t0), v(lane), 2, 2)
    k.I("v_lshl_add_u32", v(t0), v(gg), 3, v(t0))
    k.I("v_lshlrev_b32", v(vB), 7, v(t0))
    k.I("v_bfe_u32", v(t0), v(lane), 1, 1)
    k.I("s_lshl_b32", s(st0), s(sw3), 1)
    k.I("v_add_u32", v(t0), s(st0), v(t0))
    k.I("v_bfe_u32", v(t1), v(lane), 3, 1)
    k.I("v_lshlrev_b32", v(t1), 2, v(t1))
    k.I("v_xor_b32", v(t0), v(t0), v(t1))
    k.I("v_lshl_add_u32", v(vB), v(t0), 4, v(vB))
    k.I("v_and_b32", v(t0), 1, v(lane))
    k.I("v_lshl_add_u32", v(vB), v(t0), 3, v(vB))
    k.I("s_lshr_b32", s(st0), s(swave), 2)
    k.I("s_mul_i32", s(st0), s(st0), 224 * 128)
    k.I("v_add_u32", v(vB), s(st0), v(vB))
    for i in range(4): k.I("v_mov_b32", v(ones + i), "0x3f803f80")
    k.I("s_waitcnt", "vmcnt(0) lgkmcnt(0)")
    k.I("s_barrier")
    bf = [k.valloc(4) for _ in range(7)]
    for kk in range(7):
        for beta in range(2):
            k.I("ds_read_b64_tr_b16", vr(bf[kk] + 2 * beta, 2), v(vB), mods=f"offset:{(32 * kk + 4 * beta) * 128}")
    ca = k.valloc(4)
    k.I("s_waitcnt", "lgkmcnt(0)")
    for kk in range(7):
        k.I("v_mfma_f32_16x16x32_bf16", vr(ca, 4), vr(ones, 4), vr(bf[kk], 4), 0 if kk == 0 else vr(ca, 4))
    k.I("v_and_b32", v(t0), 15, v(lane))
    k.I("s_lshl_b32", s(st0), s(sw3), 6)
    k.I("s_add_u32", s(st0), s(st0), TB)
    k.I("v_lshlrev_b32", v(t0), 2, v(t0))
    k.I("v_add_u32", v(t0), s(st0), v(t0))
    k.I("s_mov_b32", "exec_lo", "0xffff")
    k.I("s_mov_b32", "exec_hi", 0)
    k.I("ds_add_f32", v(t0), v(ca))
    k.I("s_mov_b64", "exec", -1)
    k.I("s_waitcnt", "lgkmcnt(0)")
    k.I("s_barrier")
    k.I("s_cmp_lg_u32", s(swave), 0)
    k.I("s_cbranch_scc1", R["done"])
    k.I("v_lshlrev_b32", v(t0), 2, v(lane))
    k.I("v_add_u32", v(t1), TB, v(t0))
    k.I("ds_read_b32", v(z), v(t1))
    k.I("s_lshl_b32", s(st0), s(sa), 8)
    k.I("s_add_u32", s(st0), s(st0), hex(CW_OFF))
    k.I("s_waitcnt", "lgkmcnt(0)")
    k.I("buffer_store_dword", v(z), v(t0), sr(sWS, 4), s(st0), mods="offen")
    k.L(R["done"])
    k.I("s_endpgm")
    k.lds = lds; k.threads = 512; k.grid = 256
    return k


GELU_C0 = -2.0 * math.sqrt(2.0 / math.pi) * math.log2(math.e)
GELU_C1 = GELU_C0 * 0.044715

def gen_k4(Stamper):
    k = Kernel("k4_win_kernel")
    NS = 4; SLOT = 32768; TRB = NS * SLOT
    STB = TRB
    lds = TRB + 4096
    R = common_start(k, 224)
    swave, st0, st1, soff, lane, t0, t1, t2 = (R[x] for x in ("swave", "st0", "st1", "soff", "lane", "t0", "t1", "t2"))
    pWin = k.salloc(2); pWS = k.salloc(2)
    k.I("s_load_dwordx2", sr(pWin, 2), "s[0:1]", 32)
    k.I("s_load_dwordx2", sr(pWS, 2), "s[0:1]", 80)
    sWS = k.salloc(4); sWin = k.salloc(4)
    sj = k.salloc(); sidx = k.salloc(); srb = k.salloc(); sct = k.salloc(); sw3 = k.salloc()
    k.I("s_and_b32", s(sj), "s2", 7)
    k.I("s_lshr_b32", s(sidx), "s2", 3)
    k.I("s_and_b32", s(sw3), s(swave), 3)
    k.I("s_cmp_ge_u32", s(sidx), 14)
    k.I("s_cselect_b32", s(st0), 1, 0)
    k.I("s_mul_i32", s(st1), s(st0), 14)
    k.I("s_sub_u32", s(sct), s(sidx), s(st1))
    k.I("s_lshl_b32", s(srb), s(sj), 1)
    k.I("s_add_u32", s(srb), s(srb), s(st0))
    stp = Stamper(k, 3, sWS, swave)
    k.I("s_waitcnt", "lgkmcnt(0)")
    srd(k, sWS, pWS, WS_SIZE)
    comp = k.newlabel("compute")
    k.I("s_cmp_lt_u32", s(swave), 4)
    k.I("s_cbranch_scc1", comp)
    vsave = k.vnext
    srd(k, sWin, pWin, 448 * 3584)
    v16 = k.valloc(); vWo = k.valloc()
    k.I("v_lshlrev_b32", v(v16), 4, v(lane))
    k.I("v_lshrrev_b32", v(t0), 4, v(lane))
    k.I("v_lshlrev_b32", v(t1), 2, v(t0))
    k.I("v_and_b32", v(t2), 15, v(lane))
    k.I("v_xor_b32", v(t1), v(t1), v(t2))
    k.I("v_mul_u32_u24", v(vWo), 3584, v(t0))
    k.I("v_and_b32", v(t2), 7, v(t1))
    k.I("v_lshl_add_u32", v(vWo), v(t2), 4, v(vWo))
    k.I("v_add_u32", v(t2), 1792, v(vWo))
    k.I("v_cmp_gt_u32", "vcc", 8, v(t1))
    k.I("v_cndmask_b32", v(vWo), v(vWo), v(t2), "vcc")
    sHb = k.salloc(); sWb = k.salloc(); smH = k.salloc(); smW = k.salloc()
    k.I("s_lshl_b32", s(st0), s(srb), 2)
    k.I("s_add_u32", s(st0), s(st0), s(sw3))
    k.I("s_mul_i32", s(sHb), s(st0), 28 * 1024)
    k.I("s_add_u32", s(sHb), s(sHb), hex(H_OFF))
    k.I("s_lshl_b32", s(smH), s(sw3), 12)
    k.I("s_mul_i32", s(sWb), s(sw3), 16 * 3584)
    k.I("s_lshl_b32", s(st1), s(sct), 7)
    k.I("s_add_u32", s(sWb), s(sWb), s(st1))
    k.I("s_add_u32", s(smW), s(smH), 16384)
    def issue(c):
        sl = (c % NS) * SLOT
        for i in range(4):
            k.I("s_add_u32", s(soff), s(sHb), hex((4 * c + i) * 1024))
            k.I("s_add_u32", "m0", s(smH), hex(sl + i * 1024))
            k.vm(("S", c), "buffer_load_dwordx4", v(v16), sr(sWS, 4), s(soff), mods="offen lds")
        for i in range(4):
            k.I("s_add_u32", s(soff), s(sWb), hex((64 * c + 4 * i) * 3584))
            k.I("s_add_u32", "m0", s(smW), hex(sl + i * 1024))
            k.vm(("S", c), "buffer_load_dwordx4", v(vWo), sr(sWin, 4), s(soff), mods="offen lds")
    issue(0); issue(1)
    for c in range(7):
        k.wait_vm(("S", c))
        k.I("s_barrier")
        if c == 0: issue(2); issue(3)
        elif c + 2 < 7 and c >= 2: issue(c + 2)
    k.I("s_barrier")
    k.I("s_endpgm")
    k.L(comp)
    k.vnext = vsave; k.vmq = []; k.lgq = []
    l31 = k.valloc(); hh = k.valloc()
    k.I("v_and_b32", v(l31), 31, v(lane))
    k.I("v_lshrrev_b32", v(hh), 5, v(lane))
    srh = k.salloc(); sch = k.salloc(); sst = k.salloc()
    k.I("s_and_b32", s(srh), s(swave), 1)
    k.I("s_lshr_b32", s(sch), s(swave), 1)
    k.I("s_lshl_b32", s(sst), s(srb), 2)
    k.I("s_lshl_b32", s(st0), s(srh), 1)
    k.I("s_add_u32", s(sst), s(sst), s(st0))
    hs = [k.valloc(16, 4) for _ in range(2)]
    vh = k.valloc()
    k.I("v_mul_u32_u24", v(vh), 112, v(l31))
    k.I("v_lshl_add_u32", v(vh), v(hh), 6, v(vh))
    for t in range(2):
        k.I("s_add_u32", s(st0), s(sst), t)
        k.I("s_mul_i32", s(soff), s(st0), 32 * 112)
        k.I("s_add_u32", s(soff), s(soff), hex(HS_OFF))
        for i in range(4):
            k.vm("hs", "buffer_load_dwordx4", vr(hs[t] + 4 * i, 4), v(vh), sr(sWS, 4), s(soff), mods=f"offen offset:{16 * i}")
    cw = [k.valloc(16, 4) for _ in range(2)]
    vc = k.valloc()
    k.I("v_lshlrev_b32", v(vc), 4, v(hh))
    k.I("s_lshl_b32", s(st0), s(sct), 8)
    k.I("s_lshl_b32", s(st1), s(sch), 7)
    k.I("s_add_u32", s(st0), s(st0), s(st1))
    for z in range(2):
        k.I("s_add_u32", s(soff), s(st0), hex(CW_OFF + (896 * 4 if z == 0 else 0)))
        for q in range(4):
            k.vm("cw", "buffer_load_dwordx4", vr(cw[z] + 4 * q, 4), v(vc), sr(sWS, 4), s(soff), mods=f"offen offset:{32 * q}")
    stp.stamp(0)
    aH = k.valloc(); vW = [k.valloc(), k.valloc()]
    k.I("v_lshlrev_b32", v(aH), 4, v(lane))
    k.I("s_lshl_b32", s(st0), s(srh), 13)
    k.I("v_add_u32", v(aH), s(st0), v(aH))
    k.I("v_bfe_u32", v(t0), v(lane), 2, 2)
    k.I("v_lshl_add_u32", v(t1), v(hh), 2, v(t0))
    k.I("v_lshlrev_b32", v(t1), 8, v(t1))
    k.I("v_add_u32", v(t1), 16384, v(t1))
    k.I("v_bfe_u32", v(t2), v(lane), 4, 1)
    k.I("v_lshlrev_b32", v(t2), 1, v(t2))
    k.I("v_bfe_u32", v(vW[0]), v(lane), 1, 1)
    k.I("v_add_u32", v(t2), v(t2), v(vW[0]))
    k.I("s_lshl_b32", s(st0), s(sch), 2)
    k.I("v_add_u32", v(t2), s(st0), v(t2))
    k.I("v_lshlrev_b32", v(t0), 2, v(t0))
    k.I("v_xor_b32", v(vW[0]), v(t2), v(t0))
    k.I("v_add_u32", v(t2), 8, v(t2))
    k.I("v_xor_b32", v(vW[1]), v(t2), v(t0))
    k.I("v_and_b32", v(t2), 1, v(lane))
    for z in range(2):
        k.I("v_lshl_add_u32", v(vW[z]), v(vW[z]), 4, v(t1))
        k.I("v_lshl_add_u32", v(vW[z]), v(t2), 3, v(vW[z]))
    aH2 = k.valloc(); vW2 = [k.valloc(), k.valloc()]
    k.I("v_add_u32", v(aH2), 65536, v(aH))
    for z in range(2): k.I("v_add_u32", v(vW2[z]), 65536, v(vW[z]))
    acc = [[k.valloc(16, 4) for _ in range(2)] for _ in range(2)]
    vmark = k.vnext
    NB = 3
    hf = [[k.valloc(4) for _ in range(2)] for _ in range(NB)]
    wf = [[k.valloc(4) for _ in range(2)] for _ in range(NB)]
    def rl(ks):
        c, j = ks // 4, ks % 4
        b = ks % NB
        sl = (c % NS) * SLOT
        hi = sl >= 65536
        so = sl - (65536 if hi else 0)
        out = []
        for t in range(2):
            out.append(lambda t=t: k.lg(("f", ks), "ds_read_b128", vr(hf[b][t], 4), v(aH2 if hi else aH), mods=f"offset:{so + t * 4096 + j * 1024}"))
        for z in range(2):
            for beta in range(2):
                o = so + (16 * j + 8 * beta) * 256
                out.append(lambda o=o, z=z, beta=beta: k.lg(("f", ks), "ds_read_b64_tr_b16", vr(wf[b][z] + 2 * beta, 2), v((vW2 if hi else vW)[z]), mods=f"offset:{o}"))
        return out
    k.I("s_barrier")
    stp.stamp(1)
    for f in rl(0) + rl(1): f()
    for ks in range(28):
        c, j = ks // 4, ks % 4
        b = ks % NB
        k.wait_lg(("f", ks))
        mf = []
        for z in range(2):
            for t in range(2):
                mf.append(lambda z=z, t=t: k.I("v_mfma_f32_32x32x16_bf16", vr(acc[z][t], 16), vr(wf[b][z], 4), vr(hf[b][t], 4), 0 if ks == 0 else vr(acc[z][t], 16)))
        if j == 2 and c < 6:
            pass
        fl = rl(ks + 2) if ks + 2 < 28 else []
        if j == 2 and ks + 2 < 28:
            k.I("s_barrier")
        interleave(k, mf, fl)
    stp.stamp(2)
    k.vnext = vmark
    k.wait_vm(["hs", "cw"])
    rr = [k.valloc(2) for _ in range(2)]; nm = [k.valloc(2) for _ in range(2)]
    c0r = [k.valloc(2) for _ in range(2)]; c1r = [k.valloc(2) for _ in range(2)]
    k.I("v_cmp_eq_u32", "vcc", 0, v(hh))
    for t in range(2):
        H = hs[t]
        for i in range(12, 16): k.I("v_cndmask_b32", v(H + i), 0, v(H + i), "vcc")
        for i in range(4): k.I("v_pk_add_f32", vr(H + 2 * i, 2), vr(H + 2 * i, 2), vr(H + 8 + 2 * i, 2))
        for i in range(2): k.I("v_pk_add_f32", vr(H + 2 * i, 2), vr(H + 2 * i, 2), vr(H + 4 + 2 * i, 2))
        k.I("v_pk_add_f32", vr(H, 2), vr(H, 2), vr(H + 2, 2))
        for e in range(2):
            k.I("v_mov_b32", v(H + 2), v(H + e))
            k.I("v_permlane32_swap_b32", v(H + e), v(H + 2))
            k.I("v_add_f32", v(H + e), v(H + e), v(H + 2))
        k.I("v_mul_f32", v(nm[t]), hex(f32(-1.0 / 448)), v(H))
        k.I("v_mul_f32", v(H + 1), hex(f32(1.0 / 448)), v(H + 1))
        k.I("v_fma_f32", v(H + 1), f"-{v(nm[t])}", v(nm[t]), v(H + 1))
        k.I("v_max_f32", v(H + 1), 0, v(H + 1))
        k.I("v_add_f32", v(H + 1), hex(f32(1e-5)), v(H + 1))
        k.I("v_rsq_f32", v(rr[t]), v(H + 1))
        k.I("v_mul_f32", v(c0r[t]), hex(f32(GELU_C0)), v(rr[t]))
        k.I("v_mul_f32", v(c1r[t]), v(rr[t]), v(rr[t]))
        k.I("v_mul_f32", v(c1r[t]), v(c1r[t]), v(rr[t]))
        k.I("v_mul_f32", v(c1r[t]), hex(f32(GELU_C1)), v(c1r[t]))
    norh = k.newlabel("norh")
    k.I("s_or_b32", s(st0), s(sct), s(sch))
    k.I("s_cmp_lg_u32", s(st0), 0)
    k.I("s_cbranch_scc1", norh)
    k.I("v_lshlrev_b32", v(t0), 2, v(l31))
    for t in range(2):
        k.I("s_add_u32", s(st0), s(sst), t)
        k.I("s_lshl_b32", s(st0), s(st0), 7)
        k.I("s_add_u32", s(st0), s(st0), hex(RH_OFF))
        k.I("buffer_store_dword", v(rr[t]), v(t0), sr(sWS, 4), s(st0), mods="offen")
    k.L(norh)
    tp = [k.valloc(2) for _ in range(4)]
    def gelu_tile(A, z, t):
        for j in range(8):
            k.I("v_pk_fma_f32", vr(A + 2 * j, 2), vr(cw[z] + 2 * j, 2), vr(nm[t], 2), vr(A + 2 * j, 2), mods="op_sel_hi:[1,0,1]")
        for j0 in range(0, 8, 4):
            for j in range(j0, j0 + 4):
                T = tp[j - j0]
                k.I("v_pk_mul_f32", vr(T, 2), vr(A + 2 * j, 2), vr(A + 2 * j, 2))
            for j in range(j0, j0 + 4):
                T = tp[j - j0]
                k.I("v_pk_fma_f32", vr(T, 2), vr(T, 2), vr(c1r[t], 2), vr(c0r[t], 2), mods="op_sel_hi:[1,0,0]")
            for j in range(j0, j0 + 4):
                T = tp[j - j0]
                k.I("v_pk_mul_f32", vr(T, 2), vr(T, 2), vr(A + 2 * j, 2))
            for j in range(j0, j0 + 4):
                T = tp[j - j0]
                k.I("v_exp_f32", v(T), v(T)); k.I("v_exp_f32", v(T + 1), v(T + 1))
            for j in range(j0, j0 + 4):
                T = tp[j - j0]
                k.I("v_pk_add_f32", vr(T, 2), vr(T, 2), "1.0", mods="op_sel_hi:[1,0]")
            for j in range(j0, j0 + 4):
                T = tp[j - j0]
                k.I("v_rcp_f32", v(T), v(T)); k.I("v_rcp_f32", v(T + 1), v(T + 1))
            for j in range(j0, j0 + 4):
                T = tp[j - j0]
                k.I("v_pk_mul_f32", vr(A + 2 * j, 2), vr(A + 2 * j, 2), vr(T, 2))
    accs = [k.valloc(2) for _ in range(2)]; accq = [k.valloc(2) for _ in range(2)]
    for t in range(2):
        A = acc[0][t]
        gelu_tile(A, 0, t)
        for j in range(8):
            k.I("v_pk_mul_f32", vr(A + 2 * j, 2), vr(A + 2 * j, 2), vr(rr[t], 2), mods="op_sel_hi:[1,0]")
        k.I("v_pk_add_f32", vr(accs[t], 2), vr(A, 2), vr(A + 2, 2))
        k.I("v_pk_mul_f32", vr(accq[t], 2), vr(A, 2), vr(A, 2))
        k.I("v_pk_fma_f32", vr(accq[t], 2), vr(A + 2, 2), vr(A + 2, 2), vr(accq[t], 2))
        for j in range(2, 8):
            k.I("v_pk_add_f32", vr(accs[t], 2), vr(accs[t], 2), vr(A + 2 * j, 2))
            k.I("v_pk_fma_f32", vr(accq[t], 2), vr(A + 2 * j, 2), vr(A + 2 * j, 2), vr(accq[t], 2))
        k.I("v_add_f32", v(accs[t]), v(accs[t]), v(accs[t] + 1))
        k.I("v_add_f32", v(accs[t] + 1), v(accq[t]), v(accq[t] + 1))
        for e in range(2):
            k.I("v_mov_b32", v(accq[t]), v(accs[t] + e))
            k.I("v_permlane32_swap_b32", v(accs[t] + e), v(accq[t]))
            k.I("v_add_f32", v(accs[t] + e), v(accs[t] + e), v(accq[t]))
    vs = k.valloc()
    k.I("v_lshlrev_b32", v(vs), 3, v(l31))
    k.I("s_lshl_b32", s(st0), s(srh), 9)
    k.I("s_add_u32", s(st0), s(st0), STB)
    k.I("v_add_u32", v(vs), s(st0), v(vs))
    k.I("s_lshl_b32", s(st0), s(sch), 10)
    k.I("v_add_u32", v(t0), s(st0), v(vs))
    for t in range(2):
        k.I("ds_write_b64", v(t0), vr(accs[t], 2), mods=f"offset:{t * 256}")
    k.I("s_waitcnt", "lgkmcnt(0)")
    k.I("s_barrier")
    pub = k.newlabel("nopub")
    k.I("s_cmp_lg_u32", s(sch), 0)
    k.I("s_cbranch_scc1", pub)
    oth = k.valloc(4)
    for t in range(2):
        k.I("ds_read_b64", vr(oth + 2 * t, 2), v(vs), mods=f"offset:{1024 + t * 256}")
    k.I("s_waitcnt", "lgkmcnt(0)")
    for t in range(2):
        k.I("v_pk_add_f32", vr(oth + 2 * t, 2), vr(oth + 2 * t, 2), vr(accs[t], 2))
        k.I("v_mov_b32", v(t1), "0x7fc00000")
        k.I("v_cmp_eq_u32", "vcc", -1, v(oth + 2 * t + 1))
        k.I("v_cndmask_b32", v(oth + 2 * t + 1), v(oth + 2 * t + 1), v(t1), "vcc")
    ve = k.valloc()
    k.I("v_mul_u32_u24", v(ve), 112, v(l31))
    k.I("s_mul_i32", s(soff), s(sst), 32 * 112)
    k.I("s_lshl_b32", s(st0), s(sct), 3)
    k.I("s_add_u32", s(soff), s(soff), s(st0))
    k.I("s_add_u32", s(soff), s(soff), hex(EX_OFF))
    k.I("s_mov_b32", "exec_hi", 0)
    for t in range(2):
        k.I("buffer_store_dwordx2", vr(oth + 2 * t, 2), v(ve), sr(sWS, 4), s(soff), mods=f"offen offset:{t * 32 * 112} sc0 sc1")
    k.I("s_mov_b64", "exec", -1)
    k.L(pub)
    stp.stamp(3)
    v16 = k.valloc()
    k.I("v_lshlrev_b32", v(v16), 4, v(lane))
    P = [k.valloc(8, 4) for _ in range(2)]
    sft = k.salloc()
    k.I("s_lshl_b32", s(sft), s(sct), 1)
    k.I("s_add_u32", s(sft), s(sft), s(sch))
    for t in range(2):
        A = acc[1][t]
        gelu_tile(A, 1, t)
        for j in range(8): k.I("v_cvt_pk_bf16_f32", v(P[t] + j), v(A + 2 * j), v(A + 2 * j + 1))
        k.I("s_add_u32", s(st0), s(sst), t)
        k.I("s_mul_i32", s(soff), s(st0), 56 * 1024)
        k.I("s_lshl_b32", s(st0), s(sft), 11)
        k.I("s_add_u32", s(soff), s(soff), s(st0))
        k.I("s_add_u32", s(soff), s(soff), hex(Z1_OFF))
        k.I("buffer_store_dwordx4", vr(P[t], 4), v(v16), sr(sWS, 4), s(soff), mods="offen")
        k.I("buffer_store_dwordx4", vr(P[t] + 4, 4), v(v16), sr(sWS, 4), s(soff), mods="offen offset:1024")
    stp.stamp(4)
    ex = hs
    k.I("v_mul_u32_u24", v(vh), 112, v(l31))
    k.I("v_lshl_add_u32", v(vh), v(hh), 6, v(vh))
    k.I("s_mul_i32", s(soff), s(sst), 32 * 112)
    k.I("s_add_u32", s(soff), s(soff), hex(EX_OFF))
    scount = k.salloc(); sbad = k.salloc(2)
    k.I("s_mov_b32", s(scount), 0)
    poll = k.newlabel("poll"); pdone = k.newlabel("pdone")
    k.L(poll)
    for t in range(2):
        for i in range(4):
            k.I("buffer_load_dwordx4", vr(ex[t] + 4 * i, 4), v(vh), sr(sWS, 4), s(soff), mods=f"offen offset:{t * 32 * 112 + 16 * i} sc0 sc1")
    k.I("s_waitcnt", "vmcnt(0)")
    k.I("v_cmp_eq_u32", "vcc", 0, v(hh))
    for t in range(2):
        for i in range(12, 16): k.I("v_cndmask_b32", v(ex[t] + i), 0, v(ex[t] + i), "vcc")
    k.I("v_max_u32", v(t0), v(ex[0] + 1), v(ex[0] + 3))
    for t in range(2):
        for i in range(8):
            if t == 0 and i < 2: continue
            k.I("v_max_u32", v(t0), v(t0), v(ex[t] + 2 * i + 1))
    k.I("v_cmp_eq_u32", "vcc", -1, v(t0))
    k.I("s_add_u32", s(scount), s(scount), 1)
    k.I("s_cmp_eq_u64", "vcc", 0)
    k.I("s_cbranch_scc1", pdone)
    k.I("s_cmp_lt_u32", s(scount), 0x40000)
    k.I("s_cbranch_scc0", pdone)
    k.I("s_sleep", 1)
    k.I("s_branch", poll)
    k.L(pdone)
    sc_ = [k.valloc(2) for _ in range(2)]; zm = [k.valloc(2) for _ in range(2)]
    for t in range(2):
        H = ex[t]
        for i in range(4): k.I("v_pk_add_f32", vr(H + 2 * i, 2), vr(H + 2 * i, 2), vr(H + 8 + 2 * i, 2))
        for i in range(2): k.I("v_pk_add_f32", vr(H + 2 * i, 2), vr(H + 2 * i, 2), vr(H + 4 + 2 * i, 2))
        k.I("v_pk_add_f32", vr(H, 2), vr(H, 2), vr(H + 2, 2))
        for e in range(2):
            k.I("v_mov_b32", v(H + 2), v(H + e))
            k.I("v_permlane32_swap_b32", v(H + e), v(H + 2))
            k.I("v_add_f32", v(H + e), v(H + e), v(H + 2))
        k.I("v_mul_f32", v(zm[t]), hex(f32(-1.0 / 896)), v(H))
        k.I("v_mul_f32", v(H + 1), hex(f32(1.0 / 896)), v(H + 1))
        k.I("v_fma_f32", v(H + 1), f"-{v(zm[t])}", v(zm[t]), v(H + 1))
        k.I("v_max_f32", v(H + 1), 0, v(H + 1))
        k.I("v_add_f32", v(H + 1), hex(f32(1e-5)), v(H + 1))
        k.I("v_rsq_f32", v(sc_[t]), v(H + 1))
        k.I("v_mul_f32", v(zm[t]), v(zm[t]), v(sc_[t]))
    TW = 0
    vt = k.valloc(); vtr = k.valloc()
    k.I("v_lshlrev_b32", v(vt), 6, v(l31))
    k.I("v_lshl_add_u32", v(vt), v(hh), 3, v(vt))
    k.I("s_lshl_b32", s(st0), s(swave), 12)
    k.I("v_add_u32", v(vt), s(st0), v(vt))
    for t in range(2):
        A = acc[0][t]
        for j in range(8):
            k.I("v_pk_fma_f32", vr(A + 2 * j, 2), vr(A + 2 * j, 2), vr(sc_[t], 2), vr(zm[t], 2), mods="op_sel_hi:[1,0,0]")
        for j in range(8): k.I("v_cvt_pk_bf16_f32", v(P[t] + j), v(A + 2 * j), v(A + 2 * j + 1))
        for q in range(4):
            k.I("ds_write_b64", v(vt), vr(P[t] + 2 * q, 2), mods=f"offset:{t * 2048 + 16 * q}")
    k.I("v_bfe_u32", v(t0), v(lane), 2, 2)
    k.I("v_lshl_add_u32", v(t0), v(hh), 3, v(t0))
    k.I("v_lshlrev_b32", v(vtr), 6, v(t0))
    k.I("v_bfe_u32", v(t0), v(lane), 4, 1)
    k.I("v_lshl_add_u32", v(vtr), v(t0), 5, v(vtr))
    k.I("v_and_b32", v(t0), 3, v(lane))
    k.I("v_lshl_add_u32", v(vtr), v(t0), 3, v(vtr))
    k.I("s_lshl_b32", s(st0), s(swave), 12)
    k.I("v_add_u32", v(vtr), s(st0), v(vtr))
    k.I("s_waitcnt", "lgkmcnt(0)")
    Z = cw[0]
    for ks in range(4):
        for beta in range(2):
            k.I("ds_read_b64_tr_b16", vr(Z + 4 * ks + 2 * beta, 2), v(vtr), mods=f"offset:{(16 * ks + 4 * beta) * 64}")
    k.I("s_lshl_b32", s(soff), s(sft), 17)
    k.I("s_lshl_b32", s(st0), s(sst), 11)
    k.I("s_add_u32", s(soff), s(soff), s(st0))
    k.I("s_add_u32", s(soff), s(soff), hex(Z2_OFF))
    for ks in range(4):
        k.I("s_waitcnt", f"lgkmcnt({6 - 2 * ks})")
        k.I("buffer_store_dwordx4", vr(Z + 4 * ks, 4), v(v16), sr(sWS, 4), s(soff), mods=f"offen offset:{ks * 1024}")
    stp.stamp(5)
    k.L(R["done"])
    k.I("s_endpgm")
    k.lds = lds; k.threads = 512; k.grid = 224
    return k


def gen_k5(Stamper):
    k = Kernel("k5_sp_kernel")
    NS = 4; SLOT = 32768
    lds = NS * SLOT
    R = common_start(k, 224)
    swave, st0, st1, soff, lane, t0, t1, t2 = (R[x] for x in ("swave", "st0", "st1", "soff", "lane", "t0", "t1", "t2"))
    pSp = k.salloc(2); pB = k.salloc(2); pWS = k.salloc(2)
    k.I("s_load_dwordx2", sr(pSp, 2), "s[0:1]", 40)
    k.I("s_load_dwordx2", sr(pB, 2), "s[0:1]", 48)
    k.I("s_load_dwordx2", sr(pWS, 2), "s[0:1]", 80)
    sWS = k.salloc(4); sSp = k.salloc(4); sB = k.salloc(4)
    sj = k.salloc(); sidx = k.salloc(); stt = k.salloc(); sft = k.salloc(); skap = k.salloc(); sw3 = k.salloc()
    k.I("s_and_b32", s(sj), "s2", 7)
    k.I("s_lshr_b32", s(sidx), "s2", 3)
    k.I("s_and_b32", s(sw3), s(swave), 3)
    k.I("s_and_b32", s(skap), s(sj), 1)
    k.I("s_mul_i32", s(st0), s(sidx), 37)
    k.I("s_lshr_b32", s(st0), s(st0), 8)
    k.I("s_mul_i32", s(st1), s(st0), 7)
    k.I("s_sub_u32", s(sft), s(sidx), s(st1))
    k.I("s_lshr_b32", s(stt), s(sj), 1)
    k.I("s_lshl_b32", s(stt), s(stt), 2)
    k.I("s_add_u32", s(stt), s(stt), s(st0))
    stp = Stamper(k, 4, sWS, swave)
    k.I("s_waitcnt", "lgkmcnt(0)")
    srd(k, sWS, pWS, WS_SIZE)
    comp = k.newlabel("compute")
    k.I("s_cmp_lt_u32", s(swave), 4)
    k.I("s_cbranch_scc1", comp)
    vsave = k.vnext
    srd(k, sSp, pSp, 2048 * 4096)
    v16 = k.valloc(); vWo = k.valloc(2)
    k.I("v_lshlrev_b32", v(v16), 4, v(lane))
    k.I("v_lshrrev_b32", v(t0), 3, v(lane))
    k.I("v_lshlrev_b32", v(t0), 12, v(t0))
    k.I("v_lshrrev_b32", v(t1), 4, v(lane))
    k.I("v_and_b32", v(t2), 7, v(lane))
    k.I("v_xor_b32", v(t1), v(t1), v(t2))
    k.I("v_lshl_add_u32", v(vWo), v(t1), 4, v(t0))
    k.I("v_xor_b32", v(t1), 4, v(t1))
    k.I("v_lshl_add_u32", v(vWo + 1), v(t1), 4, v(t0))
    sZb = k.salloc(); sWb = k.salloc(); smZ = k.salloc(); smW = k.salloc()
    k.I("s_lshl_b32", s(st0), s(sft), 2)
    k.I("s_add_u32", s(st0), s(st0), s(sw3))
    k.I("s_lshl_b32", s(sZb), s(st0), 17)
    k.I("s_lshl_b32", s(st1), s(skap), 16)
    k.I("s_add_u32", s(sZb), s(sZb), s(st1))
    k.I("s_add_u32", s(sZb), s(sZb), hex(Z2_OFF))
    k.I("s_lshl_b32", s(smZ), s(sw3), 12)
    k.I("s_lshl_b32", s(st0), s(stt), 7)
    k.I("s_lshl_b32", s(st1), s(sw3), 5)
    k.I("s_add_u32", s(st0), s(st0), s(st1))
    k.I("s_lshl_b32", s(sWb), s(st0), 12)
    k.I("s_lshl_b32", s(st1), s(skap), 11)
    k.I("s_add_u32", s(sWb), s(sWb), s(st1))
    k.I("s_add_u32", s(smW), s(smZ), 16384)
    def issue(c):
        sl = (c % NS) * SLOT
        for i in range(4):
            k.I("s_add_u32", s(soff), s(sZb), hex((4 * c + i) * 1024))
            k.I("s_add_u32", "m0", s(smZ), hex(sl + i * 1024))
            k.vm(("S", c), "buffer_load_dwordx4", v(v16), sr(sWS, 4), s(soff), mods="offen lds")
        for i in range(4):
            k.I("s_add_u32", s(soff), s(sWb), hex(i * 8 * 4096 + c * 128))
            k.I("s_add_u32", "m0", s(smW), hex(sl + i * 1024))
            k.vm(("S", c), "buffer_load_dwordx4", v(vWo + (i & 1)), sr(sSp, 4), s(soff), mods="offen lds")
    NST = 16
    issue(0); issue(1)
    for c in range(NST):
        k.wait_vm(("S", c))
        k.I("s_barrier")
        if c == 0: issue(2); issue(3)
        elif c + 2 < NST and c >= 2: issue(c + 2)
    k.I("s_endpgm")
    k.L(comp)
    k.vnext = vsave; k.vmq = []; k.lgq = []
    srd(k, sB, pB, 4096)
    l31 = k.valloc(); hh = k.valloc()
    k.I("v_and_b32", v(l31), 31, v(lane))
    k.I("v_lshrrev_b32", v(hh), 5, v(lane))
    sfh = k.salloc(); sth = k.salloc(); sst = k.salloc(); sf32 = k.salloc()
    k.I("s_and_b32", s(sfh), s(swave), 1)
    k.I("s_lshr_b32", s(sth), s(swave), 1)
    k.I("s_lshl_b32", s(sst), s(stt), 2)
    k.I("s_lshl_b32", s(st0), s(sth), 1)
    k.I("s_add_u32", s(sst), s(sst), s(st0))
    k.I("s_lshl_b32", s(sf32), s(sft), 2)
    k.I("s_lshl_b32", s(st0), s(sfh), 1)
    k.I("s_add_u32", s(sf32), s(sf32), s(st0))
    v16 = k.valloc()
    k.I("v_lshlrev_b32", v(v16), 4, v(lane))
    z1 = [[k.valloc(8, 4) for _ in range(2)] for _ in range(2)]
    for ti in range(2):
        for fi in range(2):
            k.I("s_add_u32", s(st0), s(sst), ti)
            k.I("s_mul_i32", s(soff), s(st0), 56 * 1024)
            k.I("s_add_u32", s(st0), s(sf32), fi)
            k.I("s_lshl_b32", s(st0), s(st0), 11)
            k.I("s_add_u32", s(soff), s(soff), s(st0))
            k.I("s_add_u32", s(soff), s(soff), hex(Z1_OFF))
            k.vm("z1", "buffer_load_dwordx4", vr(z1[fi][ti], 4), v(v16), sr(sWS, 4), s(soff), mods="offen")
            k.vm("z1", "buffer_load_dwordx4", vr(z1[fi][ti] + 4, 4), v(v16), sr(sWS, 4), s(soff), mods="offen offset:1024")
    rr = [k.valloc(2) for _ in range(2)]; bb = [k.valloc(2) for _ in range(2)]
    k.I("v_lshlrev_b32", v(t0), 2, v(l31))
    k.I("v_lshlrev_b32", v(t1), 1, v(l31))
    for ti in range(2):
        k.I("s_add_u32", s(st0), s(sst), ti)
        k.I("s_lshl_b32", s(soff), s(st0), 7)
        k.I("s_add_u32", s(soff), s(soff), hex(RH_OFF))
        k.vm("z1", "buffer_load_dword", v(rr[ti]), v(t0), sr(sWS, 4), s(soff), mods="offen")
        k.I("s_lshl_b32", s(soff), s(st0), 6)
        k.vm("z1", "buffer_load_ushort", v(bb[ti]), v(t1), sr(sB, 4), s(soff), mods="offen")
    stp.stamp(0)
    aZ = k.valloc(); aW = k.valloc(4)
    k.I("s_lshl_b32", s(st0), s(sfh), 13)
    k.I("v_add_u32", v(aZ), s(st0), v(v16))
    k.I("v_bfe_u32", v(t0), v(l31), 1, 3)
    for j in range(4):
        k.I("v_add_u32", v(t1), 2 * j, v(hh))
        k.I("v_xor_b32", v(t1), v(t1), v(t0))
        k.I("v_lshlrev_b32", v(t1), 4, v(t1))
        k.I("v_lshl_add_u32", v(aW + j), v(l31), 7, v(t1))
        k.I("s_lshl_b32", s(st0), s(sth), 13)
        k.I("s_add_u32", s(st0), s(st0), 16384)
        k.I("v_add_u32", v(aW + j), s(st0), v(aW + j))
    aZ2 = k.valloc(); aW2 = k.valloc(4)
    k.I("v_add_u32", v(aZ2), 65536, v(aZ))
    for j in range(4): k.I("v_add_u32", v(aW2 + j), 65536, v(aW + j))
    acc = [[k.valloc(16, 4) for _ in range(2)] for _ in range(2)]
    NB = 3
    zf = [[k.valloc(4) for _ in range(2)] for _ in range(NB)]
    wf = [[k.valloc(4) for _ in range(2)] for _ in range(NB)]
    def rl(ks):
        c, j = ks // 4, ks % 4
        b = ks % NB
        sl = (c % NS) * SLOT
        hi = sl >= 65536
        so = sl - (65536 if hi else 0)
        out = []
        for fi in range(2):
            out.append(lambda fi=fi: k.lg(("f", ks), "ds_read_b128", vr(zf[b][fi], 4), v(aZ2 if hi else aZ), mods=f"offset:{so + fi * 4096 + j * 1024}"))
        for ti in range(2):
            out.append(lambda ti=ti: k.lg(("f", ks), "ds_read_b128", vr(wf[b][ti], 4), v((aW2 if hi else aW) + j), mods=f"offset:{so + ti * 4096}"))
        return out
    k.I("s_barrier")
    stp.stamp(1)
    for f in rl(0) + rl(1): f()
    NKS = NST * 4
    for ks in range(NKS):
        c, j = ks // 4, ks % 4
        b = ks % NB
        k.wait_lg(("f", ks))
        mf = []
        for fi in range(2):
            for ti in range(2):
                mf.append(lambda fi=fi, ti=ti: k.I("v_mfma_f32_32x32x16_bf16", vr(acc[fi][ti], 16), vr(zf[b][fi], 4), vr(wf[b][ti], 4), 0 if ks == 0 else vr(acc[fi][ti], 16)))
        fl = rl(ks + 2) if ks + 2 < NKS else []
        if j == 2 and ks + 2 < NKS: k.I("s_barrier")
        interleave(k, mf, fl)
    stp.stamp(2)
    k.wait_vm("z1")
    for ti in range(2):
        k.I("v_lshlrev_b32", v(bb[ti]), 16, v(bb[ti]))
        k.I("v_mul_f32", v(bb[ti]), v(bb[ti]), v(rr[ti]))
    k.I("s_cmp_eq_u32", s(skap), 0)
    k.I("s_cselect_b32", s(st0), "1.0", 0)
    for ti in range(2): k.I("v_mul_f32", v(bb[ti]), s(st0), v(bb[ti]))
    tp = [k.valloc(2) for _ in range(4)]
    P = [k.valloc(8, 4) for _ in range(2)]
    sU = k.salloc()
    k.I("s_mul_i32", s(sU), s(skap), U1_OFF - U0_OFF)
    k.I("s_add_u32", s(sU), s(sU), hex(U0_OFF))
    n = 0
    for ti in range(2):
        for fi in range(2):
            A = acc[fi][ti]; Zp = z1[fi][ti]; PP = P[n & 1]; n += 1
            for j in range(8):
                k.I("v_pk_fma_f32", vr(A + 2 * j, 2), vr(A + 2 * j, 2), vr(rr[ti], 2), vr(bb[ti], 2), mods="op_sel_hi:[1,0,0]")
            for j in range(8):
                T = tp[j % 4]
                k.I("v_lshlrev_b32", v(T), 16, v(Zp + j))
                k.I("v_and_b32", v(T + 1), "0xffff0000", v(Zp + j))
                k.I("v_pk_mul_f32", vr(A + 2 * j, 2), vr(A + 2 * j, 2), vr(T, 2))
            for j in range(8): k.I("v_cvt_pk_bf16_f32", v(PP + j), v(A + 2 * j), v(A + 2 * j + 1))
            k.I("s_add_u32", s(st0), s(sst), ti)
            k.I("s_mul_i32", s(soff), s(st0), 56 * 1024)
            k.I("s_add_u32", s(st0), s(sf32), fi)
            k.I("s_lshl_b32", s(st0), s(st0), 11)
            k.I("s_add_u32", s(soff), s(soff), s(st0))
            k.I("s_add_u32", s(soff), s(soff), s(sU))
            k.I("buffer_store_dwordx4", vr(PP, 4), v(v16), sr(sWS, 4), s(soff), mods="offen")
            k.I("buffer_store_dwordx4", vr(PP + 4, 4), v(v16), sr(sWS, 4), s(soff), mods="offen offset:1024")
    stp.stamp(3)
    k.L(R["done"])
    k.I("s_endpgm")
    k.lds = lds; k.threads = 512; k.grid = 224
    return k

def gen_k6(Stamper):
    k = Kernel("k6_wout_kernel")
    NS = 5; SLOT = 24576
    RED = 0
    lds = NS * SLOT
    R = common_start(k, 224)
    swave, st0, st1, soff, lane, t0, t1, t2 = (R[x] for x in ("swave", "st0", "st1", "soff", "lane", "t0", "t1", "t2"))
    pWo = k.salloc(2); pOut = k.salloc(2); pWS = k.salloc(2)
    k.I("s_load_dwordx2", sr(pWo, 2), "s[0:1]", 56)
    k.I("s_load_dwordx2", sr(pOut, 2), "s[0:1]", 64)
    k.I("s_load_dwordx2", sr(pWS, 2), "s[0:1]", 80)
    sWS = k.salloc(4); sWo = k.salloc(4); sOut = k.salloc(4)
    sj = k.salloc(); sidx = k.salloc(); srt = k.salloc(); snt = k.salloc(); sw3 = k.salloc()
    k.I("s_and_b32", s(sj), "s2", 7)
    k.I("s_lshr_b32", s(sidx), "s2", 3)
    k.I("s_and_b32", s(sw3), s(swave), 3)
    k.I("s_mul_i32", s(st0), s(sidx), 37)
    k.I("s_lshr_b32", s(st0), s(st0), 8)
    k.I("s_mul_i32", s(st1), s(st0), 7)
    k.I("s_sub_u32", s(snt), s(sidx), s(st1))
    k.I("s_lshl_b32", s(srt), s(sj), 2)
    k.I("s_add_u32", s(srt), s(srt), s(st0))
    stp = Stamper(k, 5, sWS, swave)
    k.I("s_waitcnt", "lgkmcnt(0)")
    srd(k, sWS, pWS, WS_SIZE)
    comp = k.newlabel("compute")
    k.I("s_cmp_lt_u32", s(swave), 4)
    k.I("s_cbranch_scc1", comp)
    vsave = k.vnext
    srd(k, sWo, pWo, 896 * 896)
    v16 = k.valloc(); vWo = k.valloc()
    k.I("v_lshlrev_b32", v(v16), 4, v(lane))
    k.I("v_lshrrev_b32", v(t0), 3, v(lane))
    k.I("v_mul_u32_u24", v(t0), 896, v(t0))
    k.I("v_bfe_u32", v(t1), v(lane), 4, 1)
    k.I("v_lshlrev_b32", v(t1), 2, v(t1))
    k.I("v_and_b32", v(t2), 7, v(lane))
    k.I("v_xor_b32", v(t1), v(t1), v(t2))
    k.I("v_lshl_add_u32", v(vWo), v(t1), 4, v(t0))
    sUb = k.salloc(); sWb = k.salloc(); smU = k.salloc(); smW = k.salloc()
    k.I("s_lshr_b32", s(st0), s(sw3), 1)
    k.I("s_lshl_b32", s(st1), s(srt), 1)
    k.I("s_add_u32", s(st1), s(st1), s(st0))
    k.I("s_mul_i32", s(sUb), s(st1), 56 * 1024)
    k.I("s_and_b32", s(st1), s(sw3), 1)
    k.I("s_mul_i32", s(smU), s(st1), U1_OFF - U0_OFF)
    k.I("s_add_u32", s(sUb), s(sUb), s(smU))
    k.I("s_add_u32", s(sUb), s(sUb), hex(U0_OFF))
    k.I("s_lshl_b32", s(smU), s(st1), 13)
    k.I("s_lshl_b32", s(st0), s(st0), 12)
    k.I("s_add_u32", s(smU), s(smU), s(st0))
    k.I("s_mul_i32", s(sWb), s(sw3), 16 * 896)
    k.I("s_lshl_b32", s(st1), s(snt), 7)
    k.I("s_add_u32", s(sWb), s(sWb), s(st1))
    k.I("s_lshl_b32", s(smW), s(sw3), 11)
    k.I("s_add_u32", s(smW), s(smW), 16384)
    def issue(c):
        sl = (c % NS) * SLOT
        for i in range(4):
            k.I("s_add_u32", s(soff), s(sUb), hex((4 * c + i) * 1024))
            k.I("s_add_u32", "m0", s(smU), hex(sl + i * 1024))
            k.vm(("S", c), "buffer_load_dwordx4", v(v16), sr(sWS, 4), s(soff), mods="offen lds")
        for i in range(2):
            k.I("s_add_u32", s(soff), s(sWb), hex((64 * c + 8 * i) * 896))
            k.I("s_add_u32", "m0", s(smW), hex(sl + i * 1024))
            k.vm(("S", c), "buffer_load_dwordx4", v(vWo), sr(sWo, 4), s(soff), mods="offen lds")
    NST = 14
    for c in range(3): issue(c)
    for c in range(NST):
        k.wait_vm(("S", c))
        k.I("s_barrier")
        if c == 0: issue(3); issue(4)
        elif c + 3 < NST and c >= 2: issue(c + 3)
    k.I("s_endpgm")
    k.L(comp)
    k.vnext = vsave; k.vmq = []; k.lgq = []
    srd(k, sOut, pOut, 2048 * 896)
    l31 = k.valloc(); hh = k.valloc()
    k.I("v_and_b32", v(l31), 31, v(lane))
    k.I("v_lshrrev_b32", v(hh), 5, v(lane))
    srh = k.salloc(); snh = k.salloc(); sst = k.salloc(); sntile = k.salloc()
    k.I("s_and_b32", s(srh), s(swave), 1)
    k.I("s_lshr_b32", s(snh), s(swave), 1)
    k.I("s_lshl_b32", s(sst), s(srt), 1)
    k.I("s_add_u32", s(sst), s(sst), s(srh))
    k.I("s_lshl_b32", s(sntile), s(snt), 1)
    k.I("s_add_u32", s(sntile), s(sntile), s(snh))
    v16 = k.valloc()
    k.I("v_lshlrev_b32", v(v16), 4, v(lane))
    hr = k.valloc(8, 4)
    k.I("s_mul_i32", s(soff), s(sst), 28 * 1024)
    k.I("s_lshl_b32", s(st0), s(sntile), 11)
    k.I("s_add_u32", s(soff), s(soff), s(st0))
    k.I("s_add_u32", s(soff), s(soff), hex(H_OFF))
    k.vm("h", "buffer_load_dwordx4", vr(hr, 4), v(v16), sr(sWS, 4), s(soff), mods="offen")
    k.vm("h", "buffer_load_dwordx4", vr(hr + 4, 4), v(v16), sr(sWS, 4), s(soff), mods="offen offset:1024")
    stp.stamp(0)
    aU = k.valloc(); vW = k.valloc()
    k.I("s_lshl_b32", s(st0), s(srh), 12)
    k.I("v_add_u32", v(aU), s(st0), v(v16))
    k.I("v_bfe_u32", v(t0), v(lane), 2, 2)
    k.I("v_lshl_add_u32", v(t0), v(hh), 2, v(t0))
    k.I("v_lshlrev_b32", v(vW), 7, v(t0))
    k.I("v_add_u32", v(vW), 16384, v(vW))
    k.I("v_bfe_u32", v(t0), v(lane), 4, 1)
    k.I("v_lshlrev_b32", v(t0), 1, v(t0))
    k.I("v_bfe_u32", v(t1), v(lane), 1, 1)
    k.I("v_add_u32", v(t0), v(t0), v(t1))
    k.I("s_lshl_b32", s(st0), s(snh), 2)
    k.I("v_add_u32", v(t0), s(st0), v(t0))
    k.I("v_bfe_u32", v(t1), v(lane), 3, 1)
    k.I("v_lshlrev_b32", v(t1), 2, v(t1))
    k.I("v_xor_b32", v(t0), v(t0), v(t1))
    k.I("v_lshl_add_u32", v(vW), v(t0), 4, v(vW))
    k.I("v_and_b32", v(t0), 1, v(lane))
    k.I("v_lshl_add_u32", v(vW), v(t0), 3, v(vW))
    aU2 = k.valloc(); vW2 = k.valloc()
    k.I("v_add_u32", v(aU2), 3 * SLOT, v(aU))
    k.I("v_add_u32", v(vW2), 3 * SLOT, v(vW))
    acc = k.valloc(16, 4)
    NB = 3
    uf = [[k.valloc(4) for _ in range(2)] for _ in range(NB)]; wf = [k.valloc(4) for _ in range(NB)]
    def rl(ks):
        c, j = ks // 4, ks % 4
        b = ks % NB
        sl = (c % NS)
        hi = sl >= 3
        so = (sl - (3 if hi else 0)) * SLOT
        out = []
        for ar_ in range(2):
            out.append(lambda ar_=ar_: k.lg(("f", ks), "ds_read_b128", vr(uf[b][ar_], 4), v(aU2 if hi else aU), mods=f"offset:{so + ar_ * 8192 + j * 1024}"))
        for beta in range(2):
            o = so + (16 * j + 8 * beta) * 128
            out.append(lambda o=o, beta=beta: k.lg(("f", ks), "ds_read_b64_tr_b16", vr(wf[b] + 2 * beta, 2), v(vW2 if hi else vW), mods=f"offset:{o}"))
        return out
    k.I("s_barrier")
    stp.stamp(1)
    for f in rl(0) + rl(1): f()
    NKS = NST * 4
    for ks in range(NKS):
        c, j = ks // 4, ks % 4
        b = ks % NB
        k.wait_lg(("f", ks))
        mf = [lambda ar_=ar_: k.I("v_mfma_f32_32x32x16_bf16", vr(acc, 16), vr(wf[b], 4), vr(uf[b][ar_], 4), 0 if (ks == 0 and ar_ == 0) else vr(acc, 16)) for ar_ in range(2)]
        fl = rl(ks + 2) if ks + 2 < NKS else []
        if j == 2 and ks + 2 < NKS: k.I("s_barrier")
        interleave(k, mf, fl)
    stp.stamp(2)
    k.wait_vm("h")
    tp = [k.valloc(2) for _ in range(4)]
    for j in range(8):
        T = tp[j % 4]
        k.I("v_lshlrev_b32", v(T), 16, v(hr + j))
        k.I("v_and_b32", v(T + 1), "0xffff0000", v(hr + j))
        k.I("v_pk_add_f32", vr(acc + 2 * j, 2), vr(acc + 2 * j, 2), vr(T, 2))
    P = k.valloc(8, 4)
    for j in range(8): k.I("v_cvt_pk_bf16_f32", v(P + j), v(acc + 2 * j), v(acc + 2 * j + 1))
    for kp in range(2):
        k.I("v_permlane32_swap_b32", v(P + 4 * kp), v(P + 4 * kp + 2))
        k.I("v_permlane32_swap_b32", v(P + 4 * kp + 1), v(P + 4 * kp + 3))
    vo = k.valloc()
    k.I("v_mul_u32_u24", v(vo), 896, v(l31))
    k.I("v_lshl_add_u32", v(vo), v(hh), 4, v(vo))
    k.I("s_mul_i32", s(soff), s(sst), 32 * 896)
    k.I("s_lshl_b32", s(st0), s(sntile), 6)
    k.I("s_add_u32", s(soff), s(soff), s(st0))
    for kp in range(2):
        k.I("buffer_store_dwordx4", vr(P + 4 * kp, 4), v(vo), sr(sOut, 4), s(soff), mods=f"offen offset:{32 * kp}")
    stp.stamp(3)
    k.L(R["done"])
    k.I("s_endpgm")
    k.lds = lds; k.threads = 512; k.grid = 224
    return k

def rest(Stamper):
    return [gen_k2(Stamper), gen_k3(Stamper), gen_k4(Stamper), gen_k5(Stamper), gen_k6(Stamper)]
```

```python
Q_OFF = 0x000000
K_OFF = 0x200000
V_OFF = 0x400000
O_OFF = 0x600000
H_OFF = 0x800000
HS_OFF = 0xA00000
CW_OFF = 0xA40000
EX_OFF = 0xA50000
RH_OFF = 0xAC0000
Z1_OFF = 0xB00000
Z2_OFF = 0xF00000
U0_OFF = 0x1300000
U1_OFF = 0x1700000
STAMP_OFF = 0x1B00000
STAMP_BYTES = 8 * 256 * 8 * 8
TICK_OFF = 0x1B40000
TICK_BYTES = 8 * 256 * 128
WS_USED = 0x1C00000
```

```python
import sys, os
sys.path.insert(0, os.path.dirname(__file__))
from asmlib import *
from layout import *

NAME = "sequential_preLN__sliding_block__mixer_gmlp__prompt"
STAMPS = os.environ.get("GEN_STAMPS", "0") == "1"
WS_SIZE = 0x10000000

def srd(k, dst, base, size):
    k.I("s_mov_b32", s(dst), s(base))
    k.I("s_and_b32", s(dst + 1), s(base + 1), "0xffff")
    k.I("s_mov_b32", s(dst + 2), hex(size))
    k.I("s_mov_b32", s(dst + 3), "0x20000")

class Stamper:
    def __init__(self, k, kidx, sWS, swave):
        self.k, self.kidx, self.sWS, self.swave = k, kidx, sWS, swave
        if STAMPS:
            self.st = k.salloc(2); self.vt = k.valloc(2); self.vo = k.valloc(1); self.ex = k.salloc(2)
    def tick(self, i):
        if not STAMPS: return
        if not hasattr(self, "tk"): self.tk = self.k.salloc(32, 4)
        self.k.I("s_memtime", sr(self.tk + 2 * i, 2))
        self.nt = max(getattr(self, "nt", 0), i + 1)
    def dump_ticks(self):
        if not STAMPS or not hasattr(self, "tk"): return
        k = self.k
        k.I("s_waitcnt", "lgkmcnt(0)")
        k.lgq = []
        k.I("s_lshl_b32", s(self.ex), "s2", 7)
        k.I("s_add_u32", s(self.ex), s(self.ex), hex(TICK_OFF + self.kidx * 256 * 128))
        k.I("s_cmp_lg_u32", s(self.swave), int(os.environ.get("TICKWAVE", "0")))
        k.I("s_cselect_b32", s(self.ex), "0x7ffffff0", s(self.ex))
        k.I("s_mov_b64", sr(self.st, 2), "exec")
        k.I("s_mov_b64", "exec", 1)
        k.I("v_mov_b32", v(self.vo), 0)
        for i in range(16):
            k.I("v_mov_b32", v(self.vt), s(self.tk + 2 * i))
            k.I("v_mov_b32", v(self.vt + 1), s(self.tk + 2 * i + 1))
            k.I("buffer_store_dwordx2", vr(self.vt, 2), v(self.vo), sr(self.sWS, 4), s(self.ex), mods=f"offen offset:{8 * i}")
            k.I("s_nop", 1)
        k.I("s_mov_b64", "exec", sr(self.st, 2))
    def stamp(self, j):
        if not STAMPS: return
        k = self.k
        k.I("s_memrealtime", sr(self.st, 2))
        k.I("s_lshl_b32", s(self.ex), "s2", 6)
        k.I("s_add_u32", s(self.ex), s(self.ex), hex(STAMP_OFF + self.kidx * 256 * 64 + j * 8))
        k.I("s_cmp_lg_u32", s(self.swave), 0)
        k.I("s_cselect_b32", s(self.ex), "0x7ffffff0", s(self.ex))
        k.I("s_waitcnt", "lgkmcnt(0)")
        k.lgq = []
        k.I("v_mov_b32", v(self.vt), s(self.st))
        k.I("v_mov_b32", v(self.vt + 1), s(self.st + 1))
        k.I("v_mov_b32", v(self.vo), 0)
        k.I("s_mov_b64", sr(self.st, 2), "exec")
        k.I("s_mov_b64", "exec", 1)
        k.I("buffer_store_dwordx2", vr(self.vt, 2), v(self.vo), sr(self.sWS, 4), s(self.ex), mods="offen")
        k.I("s_mov_b64", "exec", sr(self.st, 2))
        k.vmq.append("stamp")

def gen_k1():
    k = Kernel("k1_qkv_kernel")
    k.snext = 4; k.vnext = 1
    WREG = 0; WCH = 12288; XRING = 7 * WCH; XSL = 4096; NXS = 4
    TBL = XRING + 4 * NXS * XSL
    CWT = TBL; RT = TBL + 512; NMT = TBL + 1024; SQT = TBL + 1536
    ONES = TBL + 2048
    lds = ONES + 1024
    done = k.newlabel("done")
    k.I("s_cmp_ge_u32", "s2", 256)
    k.I("s_cbranch_scc1", done)
    pX = k.salloc(4); pWS = k.salloc(2)
    k.I("s_load_dwordx4", sr(pX, 4), "s[0:1]", 0)
    k.I("s_load_dwordx2", sr(pWS, 2), "s[0:1]", 80)
    sX = k.salloc(4); sW = k.salloc(4); sWS = k.salloc(4)
    swave = k.salloc(); srb = k.salloc(); shd = k.salloc(); st0 = k.salloc(); st1 = k.salloc(); soff = k.salloc()
    lane = k.valloc(); l31 = k.valloc(); hh = k.valloc(); t0 = k.valloc(); t1 = k.valloc(); t2 = k.valloc()
    k.I("v_lshrrev_b32", v(t0), 6, "v0")
    k.I("v_and_b32", v(lane), 63, "v0")
    k.I("v_readfirstlane_b32", s(swave), v(t0))
    k.I("s_and_b32", s(st0), "s2", 7)
    k.I("s_lshr_b32", s(st1), "s2", 3)
    k.I("s_and_b32", s(shd), s(st1), 15)
    k.I("s_lshr_b32", s(st1), s(st1), 4)
    k.I("s_lshl_b32", s(srb), s(st0), 1)
    k.I("s_add_u32", s(srb), s(srb), s(st1))
    stp = Stamper(k, 0, sWS, swave)
    sw3 = k.salloc()
    k.I("s_and_b32", s(sw3), s(swave), 3)
    l15 = k.valloc()
    k.I("v_and_b32", v(l15), 15, v(lane))
    k.I("s_waitcnt", "lgkmcnt(0)")
    srd(k, sW, pX + 2, 448 * 2688)
    srd(k, sX, pX, 2048 * 896)
    comp = k.newlabel("compute")
    k.I("s_cmp_lt_u32", s(swave), 4)
    k.I("s_cbranch_scc1", comp)
    vsave = k.vnext
    vXo = k.valloc(4)
    k.I("v_lshrrev_b32", v(t0), 3, v(lane))
    k.I("v_mul_u32_u24", v(t0), 896, v(t0))
    k.I("v_lshrrev_b32", v(t1), 4, v(lane))
    k.I("v_and_b32", v(t2), 7, v(lane))
    k.I("v_xor_b32", v(t1), v(t1), v(t2))
    k.I("v_lshl_add_u32", v(vXo), v(t1), 4, v(t0))
    k.I("v_xor_b32", v(t1), 4, v(t1))
    k.I("v_lshl_add_u32", v(vXo + 1), v(t1), 4, v(t0))
    k.I("v_add_u32", v(vXo + 1), 8 * 896, v(vXo + 1))
    k.I("v_add_u32", v(vXo + 2), 16 * 896, v(vXo))
    k.I("v_add_u32", v(vXo + 3), 16 * 896, v(vXo + 1))
    vWo = k.valloc(3)
    for b in range(3):
        k.I("v_add_u32", v(t0), 64 * b, v(lane))
        k.I("v_mul_u32_u24", v(t1), 171, v(t0))
        k.I("v_lshrrev_b32", v(t1), 11, v(t1))
        k.I("v_mul_u32_u24", v(t2), 12, v(t1))
        k.I("v_sub_u32", v(t0), v(t0), v(t2))
        k.I("v_mul_u32_u24", v(vWo + b), 2688, v(t1))
        k.I("v_lshrrev_b32", v(t2), 2, v(t0))
        k.I("v_mul_u32_u24", v(t2), 896, v(t2))
        k.I("v_and_b32", v(t0), 3, v(t0))
        k.I("v_lshl_add_u32", v(t2), v(t0), 4, v(t2))
        k.I("v_add_u32", v(vWo + b), v(vWo + b), v(t2))
        if os.environ.get("EXP_WCONT"):
            k.I("v_lshlrev_b32", v(vWo + b), 4, v(lane))
            k.I("v_add_u32", v(vWo + b), 1024 * b, v(vWo + b))
    sWb = k.salloc(); sm0 = k.salloc(); sXb = k.salloc(); sm0x = k.salloc()
    k.I("s_mul_i32", s(sWb), s(shd), 56)
    k.I("s_mul_i32", s(st0), s(sw3), 16 * 2688)
    k.I("s_add_u32", s(sWb), s(sWb), s(st0))
    k.I("s_mul_i32", s(sm0), s(sw3), 3 * 1024)
    k.I("s_lshl_b32", s(st0), s(srb), 7)
    k.I("s_lshl_b32", s(st1), s(sw3), 5)
    k.I("s_add_u32", s(st0), s(st0), s(st1))
    k.I("s_mul_i32", s(sXb), s(st0), 896)
    k.I("s_mul_i32", s(sm0x), s(sw3), NXS * XSL)
    k.I("s_add_u32", s(sm0x), s(sm0x), XRING)
    def wdma(c, b):
        if os.environ.get("EXP_NODMA") and c >= 3: return
        k.I("s_add_u32", s(soff), s(sWb), hex(c * 64 * 2688))
        k.I("s_add_u32", "m0", s(sm0), hex(WREG + c * WCH + b * 1024))
        k.vm(("W", c), "buffer_load_dwordx4", v(vWo + b), sr(sW, 4), s(soff), mods="offen lds")
    def xdma(c, j):
        if os.environ.get("EXP_NODMA") and c >= 2: return
        k.I("s_add_u32", s(soff), s(sXb), hex(c * 128))
        k.I("s_add_u32", "m0", s(sm0x), hex((c % NXS) * XSL + j * 1024))
        k.vm(("X", c), "buffer_load_dwordx4", v(vXo + j), sr(sX, 4), s(soff), mods="offen lds")
    for c in range(2):
        for b in range(3): wdma(c, b)
        for j in range(4): xdma(c, j)
    for b in range(3): wdma(2, b)
    LT = os.environ.get("TICKWAVE", "0") != "0"
    if LT: stp.tick(0)
    for c in range(7):
        k.wait_vm([("W", c), ("X", c)])
        if LT and c < 5: stp.tick(1 + 3 * c)
        k.I("s_barrier")
        if LT and c < 5: stp.tick(2 + 3 * c)
        if c + 2 <= 6:
            for j in range(4): xdma(c + 2, j)
        if c + 3 <= 6:
            for b in range(3): wdma(c + 3, b)
        if LT and c < 5: stp.tick(3 + 3 * c)
    k.I("s_barrier")
    if LT:
        srd(k, sWS, pWS, WS_SIZE)
        stp.dump_ticks()
    k.I("s_endpgm")
    k.L(comp)
    k.vnext = vsave; k.vmq = []; k.lgq = []
    vpf = k.valloc(); vpd = k.valloc(4)
    k.I("s_lshr_b32", s(st0), "s2", 3)
    k.I("s_lshl_b32", s(st0), s(st0), 8)
    k.I("v_add_u32", v(vpf), s(st0), "v0")
    k.I("v_lshlrev_b32", v(vpf), 7, v(vpf))
    if not os.environ.get("EXP_NOPF"):
        k.I("buffer_load_dword", v(vpd), v(vpf), sr(sW, 4), 0, mods="offen")
        k.I("v_add_u32", v(vpf), 8192 * 128, v(vpf))
        k.I("buffer_load_dword", v(vpd + 1), v(vpf), sr(sW, 4), 0, mods="offen")
        k.I("s_and_b32", s(st0), "s2", 7)
        k.I("s_mul_i32", s(st0), s(st0), 256 * 896)
        k.I("v_subrev_u32", v(vpf), 9408 * 128, v(vpf))
        k.I("v_mov_b32", v(t0), hex(256 * 896))
        k.I("v_cmp_lt_u32", "vcc", v(vpf), v(t0))
        k.I("v_mov_b32", v(t1), "0x7fffff00")
        k.I("v_cndmask_b32", v(vpf), v(t1), v(vpf), "vcc")
        k.I("buffer_load_dword", v(vpd + 2), v(vpf), sr(sX, 4), s(st0), mods="offen")
    sm0x = k.salloc()
    k.I("s_mul_i32", s(sm0x), s(swave), NXS * XSL)
    k.I("s_add_u32", s(sm0x), s(sm0x), XRING)
    aX = k.valloc(4); vW = k.valloc(); aG = k.valloc(4); vWj = k.valloc()
    gg = k.valloc()
    k.I("v_and_b32", v(l31), 31, "v0")
    k.I("v_bfe_u32", v(hh), "v0", 5, 1)
    k.I("v_lshrrev_b32", v(gg), 4, v(lane))
    k.I("v_bfe_u32", v(t0), v(l31), 1, 3)
    for j in range(4):
        k.I("v_add_u32", v(t1), 2 * j, v(hh))
        k.I("v_xor_b32", v(t1), v(t1), v(t0))
        k.I("v_lshlrev_b32", v(t1), 4, v(t1))
        k.I("v_lshl_add_u32", v(aX + j), v(l31), 7, v(t1))
        k.I("v_add_u32", v(aX + j), s(sm0x), v(aX + j))
    for rg in range(2):
        k.I("v_add_u32", v(t0), 16 * rg, v(l15))
        k.I("v_bfe_u32", v(t1), v(t0), 1, 3)
        for kk in range(2):
            k.I("v_add_u32", v(t2), 4 * kk, v(gg))
            k.I("v_xor_b32", v(t2), v(t2), v(t1))
            k.I("v_lshlrev_b32", v(t2), 4, v(t2))
            k.I("v_lshl_add_u32", v(aG + 2 * rg + kk), v(t0), 7, v(t2))
            k.I("v_add_u32", v(aG + 2 * rg + kk), s(sm0x), v(aG + 2 * rg + kk))
    k.I("v_bfe_u32", v(t0), "v0", 2, 2)
    k.I("v_lshl_add_u32", v(t1), v(hh), 3, v(t0))
    k.I("v_mul_u32_u24", v(t1), 192, v(t1))
    k.I("v_bfe_u32", v(t2), "v0", 4, 1)
    k.I("v_lshl_add_u32", v(t1), v(t2), 5, v(t1))
    k.I("v_and_b32", v(t2), 3, "v0")
    k.I("v_lshl_add_u32", v(vW), v(t2), 3, v(t1))
    k.I("v_lshl_add_u32", v(t0), v(gg), 3, v(t0))
    k.I("v_mul_u32_u24", v(t0), 192, v(t0))
    k.I("v_lshl_add_u32", v(vWj), v(t2), 3, v(t0))
    k.I("s_lshr_b32", s(st0), s(swave), 1)
    k.I("s_mul_i32", s(st0), s(st0), 32 * 192)
    k.I("s_and_b32", s(st1), s(swave), 1)
    k.I("s_mul_i32", s(st1), s(st1), 96)
    k.I("s_add_u32", s(st0), s(st0), s(st1))
    k.I("v_add_u32", v(vWj), s(st0), v(vWj))
    vW2 = k.valloc(); vWj2 = k.valloc()
    k.I("v_add_u32", v(vW2), 4 * WCH, v(vW))
    k.I("v_add_u32", v(vWj2), 4 * WCH, v(vWj))
    ones = k.valloc(4)
    vWq = k.valloc(); vInc = k.valloc()
    k.I("v_and_b32", v(t0), 19, v(lane))
    k.I("v_cmp_eq_u32", "vcc", 19, v(t0))
    k.I("v_mov_b32", v(t1), ONES)
    k.I("v_cndmask_b32", v(vWq), v(vW), v(t1), "vcc")
    k.I("v_mov_b32", v(t1), 16 * 192)
    k.I("v_cndmask_b32", v(vInc), v(t1), 0, "vcc")
    k.I("v_lshlrev_b32", v(t0), 4, v(lane))
    k.I("v_add_u32", v(t0), ONES, v(t0))
    for i in range(4): k.I("v_mov_b32", v(ones + i), "0x3f803f80")
    k.lg("z", "ds_write_b128", v(t0), vr(ones, 4))
    zz = k.valloc(2); vtb = k.valloc()
    k.I("v_mov_b32", v(zz), 0); k.I("v_mov_b32", v(zz + 1), 0)
    k.I("v_lshlrev_b32", v(vtb), 3, v(lane))
    k.I("v_add_u32", v(vtb), CWT, v(vtb))
    k.lg("z", "ds_write_b64", v(vtb), vr(zz, 2))
    accq = k.valloc(16, 4); acck = k.valloc(16, 4); accv = k.valloc(16, 4)
    NB = 3
    cacc = [k.valloc(4) for _ in range(3)]
    gacc = [k.valloc(4) for _ in range(2)]
    vmark = k.vnext
    xf = [k.valloc(4) for _ in range(NB)]
    wf = [[k.valloc(4) for _ in range(3)] for _ in range(NB)]
    xs = [k.valloc(4) for _ in range(4)]
    wf2 = [k.valloc(4) for _ in range(3)]
    def read_list(ks):
        c, j = ks // 4, ks % 4
        b = ks % NB
        out = [lambda: k.lg(("f", ks), "ds_read_b128", vr(xf[b], 4), v(aX + j), mods=f"offset:{(c % NXS) * XSL}")]
        for beta in range(2):
            out.append(lambda beta=beta: k.lg(("f", ks), "ds_read_b64_tr_b16", vr(wf[b][0] + 2 * beta, 2), v(vWq), mods=f"offset:{beta * 4 * 192}"))
        out.append(lambda: k.I("v_add_u32", v(vWq), v(vInc), v(vWq)))
        for sg in range(1, 3):
            for beta in range(2):
                o = (c % 4) * WCH + (16 * j + 4 * beta) * 192 + 64 * sg
                base = vW if c < 4 else vW2
                out.append(lambda o=o, sg=sg, beta=beta, base=base: k.lg(("f", ks), "ds_read_b64_tr_b16", vr(wf[b][sg] + 2 * beta, 2), v(base), mods=f"offset:{o}"))
        return out
    def aux_reads(c):
        out = []
        for j in range(4):
            out.append(lambda j=j: k.lg(("g", c), "ds_read_b128", vr(xs[j], 4), v(aG + j), mods=f"offset:{(c % NXS) * XSL}"))
        for nt in range(3):
            for beta in range(2):
                o = (c % 4) * WCH + (4 * beta) * 192 + 32 * nt
                base = vWj if c < 4 else vWj2
                out.append(lambda o=o, nt=nt, beta=beta, base=base: k.lg(("cw", c), "ds_read_b64_tr_b16", vr(wf2[nt] + 2 * beta, 2), v(base), mods=f"offset:{o}"))
        return out
    k.I("s_waitcnt", "lgkmcnt(0)")
    srd(k, sWS, pWS, WS_SIZE)
    stp.stamp(0)
    k.wait_lg("z")
    k.I("s_barrier")
    stp.stamp(1)
    if os.environ.get("TICKWAVE", "0") != "0": stp.tick = lambda i: None
    stp.tick(0)
    for f in read_list(0): f()
    for f in read_list(1): f()
    for ks in range(28):
        c, j = ks // 4, ks % 4
        b = ks % NB
        fill = []
        if ks + 2 < 28:
            fill += read_list(ks + 2)
        vm = []
        aux = []
        if j == 0: aux = aux_reads(c)[:4]
        if j == 1: aux = aux_reads(c)[4:]
        if os.environ.get("EXP_NOCOMP"):
            k.lgq = []
            if j == 1 and c < 6:
                k.I("s_barrier"); stp.tick(1 + c)
            continue
        k.wait_lg(("f", ks))
        mf = [
            lambda: k.I("v_mfma_f32_32x32x16_bf16", vr(accq, 16), vr(wf[b][0], 4), vr(xf[b], 4), 0 if ks == 0 else vr(accq, 16)),
            lambda: k.I("v_mfma_f32_32x32x16_bf16", vr(acck, 16), vr(wf[b][1], 4), vr(xf[b], 4), 0 if ks == 0 else vr(acck, 16)),
            lambda: k.I("v_mfma_f32_32x32x16_bf16", vr(accv, 16), vr(xf[b], 4), vr(wf[b][2], 4), 0 if ks == 0 else vr(accv, 16)),
        ]
        fl = fill + aux + vm
        n = len(fl)
        cuts = [0, (n + 2) // 3, (2 * n + 2) // 3, n]
        for i in range(3):
            mf[i]()
            for f in fl[cuts[i]:cuts[i + 1]]: f()
        if j == 2:
            k.wait_lg(("g", c))
            for jj in range(4):
                k.I("v_mfma_f32_16x16x32_bf16", vr(gacc[jj >> 1], 4), vr(xs[jj], 4), vr(xs[jj], 4), 0 if (c == 0 and (jj & 1) == 0) else vr(gacc[jj >> 1], 4))
        if j == 3:
            k.wait_lg(("cw", c))
            for nt in range(3):
                k.I("v_mfma_f32_16x16x32_bf16", vr(cacc[nt], 4), vr(ones, 4), vr(wf2[nt], 4), 0 if c == 0 else vr(cacc[nt], 4))
        if j == 1 and c < 6:
            k.I("s_barrier")
            stp.tick(1 + c)
    stp.tick(13)
    stp.stamp(2)
    k.vnext = vmark
    m1 = k.salloc(2); m2 = k.salloc(2); m3 = k.salloc(2)
    k.I("v_and_b32", v(t0), 3, v(lane))
    k.I("v_cmp_eq_u32", sr(m1, 2), 1, v(t0))
    k.I("v_cmp_eq_u32", sr(m2, 2), 2, v(t0))
    k.I("v_cmp_eq_u32", sr(m3, 2), 3, v(t0))
    vtl = k.valloc()
    k.I("v_lshlrev_b32", v(vtl), 2, v(l15))
    k.I("v_add_u32", v(vtl), TBL, v(vtl))
    k.I("s_and_b32", s(st1), s(swave), 1)
    k.I("s_mul_i32", s(st1), s(st1), 192)
    k.I("v_add_u32", v(t1), s(st1), v(vtl))
    k.I("s_mov_b32", "exec_lo", "0xffff")
    k.I("s_mov_b32", "exec_hi", 0)
    for nt in range(3):
        k.I("ds_add_f32", v(t1), v(cacc[nt]), mods=f"offset:{64 * nt}")
    k.I("s_mov_b64", "exec", -1)
    for rg in range(2):
        g_ = gacc[rg]
        k.I("v_cndmask_b32", v(g_), v(g_), v(g_ + 1), sr(m1, 2))
        k.I("v_cndmask_b32", v(g_), v(g_), v(g_ + 2), sr(m2, 2))
        k.I("v_cndmask_b32", v(g_), v(g_), v(g_ + 3), sr(m3, 2))
    k.I("s_lshl_b32", s(st0), s(swave), 7)
    k.I("v_add_u32", v(t0), s(st0), v(vtl))
    k.I("s_mov_b32", "exec_lo", "0x00f0000f")
    k.I("s_mov_b32", "exec_hi", "0xf0000f00")
    for rg in range(2):
        k.I("ds_write_b32", v(t0), v(gacc[rg]), mods=f"offset:{SQT - TBL + 64 * rg}")
    k.I("s_mov_b64", "exec", -1)
    sq = k.valloc(2); rl = k.valloc(2); nml = k.valloc(2); cwv = k.valloc(2)
    cwq = k.valloc(16, 4); cwk = k.valloc(16, 4); rv = k.valloc(16, 4); nv = k.valloc(16, 4)
    ta = k.valloc(); tb = k.valloc(); tc = k.valloc()
    k.I("v_lshlrev_b32", v(ta), 2, v(l31))
    k.I("s_add_u32", s(st0), s(st0), TBL)
    k.I("v_add_u32", v(ta), s(st0), v(ta))
    k.I("v_mov_b32", v(nml), v(accq + 12))
    k.I("v_mov_b32", v(nml + 1), v(accq + 12))
    k.I("v_permlane32_swap_b32", v(nml), v(nml + 1))
    k.I("v_mul_f32", v(nml), hex(f32(-1.0 / 448)), v(nml + 1))
    k.I("s_waitcnt", "lgkmcnt(0)")
    k.I("ds_read_b32", v(sq), v(ta), mods=f"offset:{SQT - TBL}")
    k.I("ds_write_b32", v(ta), v(nml), mods=f"offset:{NMT - TBL}")
    k.I("s_barrier")
    k.I("v_lshlrev_b32", v(tb), 4, v(hh))
    k.I("v_add_u32", v(tb), TBL, v(tb))
    for q in range(4):
        k.I("ds_read_b128", vr(cwq + 4 * q, 4), v(tb), mods=f"offset:{CWT - TBL + 32 * q}")
        k.I("ds_read_b128", vr(cwk + 4 * q, 4), v(tb), mods=f"offset:{CWT - TBL + 128 + 32 * q}")
    k.I("v_lshlrev_b32", v(tc), 2, v(l31))
    k.I("v_add_u32", v(tc), TBL, v(tc))
    k.I("ds_read_b32", v(cwv), v(tc), mods=f"offset:{CWT - TBL + 256}")
    k.I("s_waitcnt", "lgkmcnt(9)")
    k.I("v_mul_f32", v(sq), hex(f32(1.0 / 448)), v(sq))
    k.I("v_fma_f32", v(sq), f"-{v(nml)}", v(nml), v(sq))
    k.I("v_max_f32", v(sq), 0, v(sq))
    k.I("v_add_f32", v(sq), hex(f32(1e-5)), v(sq))
    k.I("v_rsq_f32", v(rl), v(sq))
    k.I("s_lshl_b32", s(st0), s(swave), 7)
    k.I("v_add_u32", v(tb), s(st0), v(tb))
    k.I("ds_write_b32", v(ta), v(rl), mods=f"offset:{RT - TBL}")
    k.I("s_waitcnt", "lgkmcnt(0)")
    for q in range(4):
        k.I("ds_read_b128", vr(rv + 4 * q, 4), v(tb), mods=f"offset:{RT - TBL + 32 * q}")
        k.I("ds_read_b128", vr(nv + 4 * q, 4), v(tb), mods=f"offset:{NMT - TBL + 32 * q}")
    k.lgq = []
    vq = k.valloc(); vv_ = k.valloc()
    k.I("v_lshrrev_b32", v(t0), 4, v(l31))
    k.I("v_lshlrev_b32", v(vq), 10, v(t0))
    k.I("v_lshl_add_u32", v(vq), v(l15), 4, v(vq))
    k.I("v_lshl_add_u32", v(vq), v(hh), 9, v(vq))
    k.I("v_lshlrev_b32", v(vv_), 9, v(t0))
    k.I("v_lshl_add_u32", v(vv_), v(l15), 3, v(vv_))
    k.I("v_lshl_add_u32", v(vv_), v(hh), 7, v(vv_))
    sb = k.salloc()
    k.I("s_lshl_b32", s(sb), s(shd), 17)
    k.I("s_lshl_b32", s(st0), s(srb), 13)
    k.I("s_add_u32", s(sb), s(sb), s(st0))
    k.I("s_lshl_b32", s(st0), s(swave), 11)
    k.I("s_add_u32", s(sb), s(sb), s(st0))
    k.I("v_cmp_eq_u32", "vcc", 0, v(hh))
    pk = k.valloc(8, 4)
    for (acc, cw, off) in ((accq, cwq, Q_OFF), (acck, cwk, K_OFF)):
        for j in range(8):
            k.I("v_pk_fma_f32", vr(acc + 2 * j, 2), vr(cw + 2 * j, 2), vr(nml, 2), vr(acc + 2 * j, 2), mods="op_sel_hi:[1,0,1]")
        for j in range(8):
            k.I("v_pk_mul_f32", vr(acc + 2 * j, 2), vr(acc + 2 * j, 2), vr(rl, 2), mods="op_sel_hi:[1,0]")
        for j in range(8):
            k.I("v_cvt_pk_bf16_f32", v(pk + j), v(acc + 2 * j), v(acc + 2 * j + 1))
        k.I("v_cndmask_b32", v(pk + 6), 0, v(pk + 6), "vcc")
        k.I("v_cndmask_b32", v(pk + 7), 0, v(pk + 7), "vcc")
        k.I("s_add_u32", s(soff), s(sb), hex(off))
        k.I("buffer_store_dwordx4", vr(pk, 4), v(vq), sr(sWS, 4), s(soff), mods="offen")
        k.I("buffer_store_dwordx4", vr(pk + 4, 4), v(vq), sr(sWS, 4), s(soff), mods="offen offset:256")
        pk = k.valloc(8, 4)
    k.I("s_waitcnt", "lgkmcnt(0)")
    for j in range(8):
        k.I("v_pk_fma_f32", vr(accv + 2 * j, 2), vr(nv + 2 * j, 2), vr(cwv, 2), vr(accv + 2 * j, 2), mods="op_sel_hi:[1,0,1]")
    for j in range(8):
        k.I("v_pk_mul_f32", vr(accv + 2 * j, 2), vr(accv + 2 * j, 2), vr(rv + 2 * j, 2))
    for j in range(8):
        k.I("v_cvt_pk_bf16_f32", v(pk + j), v(accv + 2 * j), v(accv + 2 * j + 1))
    k.I("v_mov_b32", v(t0), "0x3f803f80")
    k.I("v_cmp_eq_u32", "vcc", 28, v(l31))
    k.I("v_cndmask_b32", v(t0), 0, v(t0), "vcc")
    k.I("v_cmp_gt_u32", "vcc", 28, v(l31))
    for j in range(8):
        k.I("v_cndmask_b32", v(pk + j), v(t0), v(pk + j), "vcc")
    k.I("s_add_u32", s(soff), s(sb), hex(V_OFF))
    for q in range(4):
        k.I("buffer_store_dwordx2", vr(pk + 2 * q, 2), v(vv_), sr(sWS, 4), s(soff), mods=f"offen offset:{(q >> 1) * 1024 + (q & 1) * 256}")
    stp.tick(15)
    stp.stamp(3)
    stp.dump_ticks()
    k.L(done)
    k.I("s_endpgm")
    k.lds = lds; k.threads = 512; k.grid = 256
    return k

import struct
def f32(x): return struct.unpack("<I", struct.pack("<f", x))[0]

def assemble(kernels):
    out = []
    hdr = open("cdna_kernels/" + NAME + ".s.ref").read().split("\n")
    for line in hdr:
        if line.startswith("; Override") or line.startswith("; grid=") or line.startswith("; @launch"): continue
        if not line.startswith(";"): break
        out.append(line)
    for k in kernels:
        out.append(f"; @launch kernel={k.name} grid=({k.grid},1,1) block=({k.threads},1,1) lds={k.lds}")
    out.append('.amdgcn_target "amdgcn-amd-amdhsa--gfx950"')
    out.append(".text")
    for k in kernels:
        n = k.fix_hazards()
        out.append(f".globl {k.name}")
        out.append(".p2align 8")
        out.append(f".type {k.name},@function")
        out.append(f"{k.name}:")
        out.append(k.render())
        print(f"{k.name}: {len(k.ins)} instrs, hazard pads {n}, vgpr {k.vmax} agpr {k.amax} sgpr {k.smax} lds {k.lds}", file=sys.stderr)
    out.append('.section .rodata,"a"')
    for k in kernels:
        out.append(".p2align 6")
        out.append(k.descriptor())
    return "\n".join(out) + "\n"

if __name__ == "__main__":
    import kernels2 as k2
    ks = [gen_k1()] + k2.rest(Stamper)
    path = sys.argv[1] if len(sys.argv) > 1 else "cdna_kernels/" + NAME + ".s"
    open(path, "w").write(assemble(ks))
```

```python
import sys, os
sys.path.insert(0, os.path.dirname(__file__))
from asmlib import *
from layout import *

NAME = "sequential_preLN__sliding_block__mixer_gmlp__prompt"
STAMPS = os.environ.get("GEN_STAMPS", "0") == "1"
WS_SIZE = 0x10000000

def srd(k, dst, base, size):
    k.I("s_mov_b32", s(dst), s(base))
    k.I("s_and_b32", s(dst + 1), s(base + 1), "0xffff")
    k.I("s_mov_b32", s(dst + 2), hex(size))
    k.I("s_mov_b32", s(dst + 3), "0x20000")

class Stamper:
    def __init__(self, k, kidx, sWS, swave):
        self.k, self.kidx, self.sWS, self.swave = k, kidx, sWS, swave
        if STAMPS:
            self.st = k.salloc(2); self.vt = k.valloc(2); self.vo = k.valloc(1); self.ex = k.salloc(2)
    def tick(self, i):
        if not STAMPS: return
        if not hasattr(self, "tk"): self.tk = self.k.salloc(32, 4)
        self.k.I("s_memtime", sr(self.tk + 2 * i, 2))
        self.nt = max(getattr(self, "nt", 0), i + 1)
    def dump_ticks(self):
        if not STAMPS or not hasattr(self, "tk"): return
        k = self.k
        k.I("s_waitcnt", "lgkmcnt(0)")
        k.lgq = []
        k.I("s_lshl_b32", s(self.ex), "s2", 7)
        k.I("s_add_u32", s(self.ex), s(self.ex), hex(TICK_OFF + self.kidx * 256 * 128))
        k.I("s_cmp_lg_u32", s(self.swave), int(os.environ.get("TICKWAVE", "0")))
        k.I("s_cselect_b32", s(self.ex), "0x7ffffff0", s(self.ex))
        k.I("s_mov_b64", sr(self.st, 2), "exec")
        k.I("s_mov_b64", "exec", 1)
        k.I("v_mov_b32", v(self.vo), 0)
        for i in range(16):
            k.I("v_mov_b32", v(self.vt), s(self.tk + 2 * i))
            k.I("v_mov_b32", v(self.vt + 1), s(self.tk + 2 * i + 1))
            k.I("buffer_store_dwordx2", vr(self.vt, 2), v(self.vo), sr(self.sWS, 4), s(self.ex), mods=f"offen offset:{8 * i}")
            k.I("s_nop", 1)
        k.I("s_mov_b64", "exec", sr(self.st, 2))
    def stamp(self, j):
        if not STAMPS: return
        k = self.k
        k.I("s_memrealtime", sr(self.st, 2))
        k.I("s_lshl_b32", s(self.ex), "s2", 6)
        k.I("s_add_u32", s(self.ex), s(self.ex), hex(STAMP_OFF + self.kidx * 256 * 64 + j * 8))
        k.I("s_cmp_lg_u32", s(self.swave), 0)
        k.I("s_cselect_b32", s(self.ex), "0x7ffffff0", s(self.ex))
        k.I("s_waitcnt", "lgkmcnt(0)")
        k.lgq = []
        k.I("v_mov_b32", v(self.vt), s(self.st))
        k.I("v_mov_b32", v(self.vt + 1), s(self.st + 1))
        k.I("v_mov_b32", v(self.vo), 0)
        k.I("s_mov_b64", sr(self.st, 2), "exec")
        k.I("s_mov_b64", "exec", 1)
        k.I("buffer_store_dwordx2", vr(self.vt, 2), v(self.vo), sr(self.sWS, 4), s(self.ex), mods="offen")
        k.I("s_mov_b64", "exec", sr(self.st, 2))
        k.vmq.append("stamp")

class DbgStamper:
    LAST = {0: 3, 1: 2, 2: 3, 3: 5, 4: 3, 5: 3}
    def __init__(self, k, kidx, sWS, swave):
        self.k, self.kidx, self.swave = k, kidx, swave
        self.st = k.salloc(2); self.vt = k.valloc(2); self.vo = k.valloc(1); self.ex = k.salloc(2)
        self.pd = k.salloc(2); self.sD = k.salloc(4)
        k.I("s_memrealtime", sr(self.st, 2))
        k.I("s_load_dwordx2", sr(self.pd, 2), "s[0:1]", 72)
        self.t0 = k.salloc(2)
        k.I("s_waitcnt", "lgkmcnt(0)")
        k.I("s_mov_b32", s(self.t0), s(self.st))
        k.I("s_sub_u32", s(self.pd), s(self.pd), 512 * kidx)
        k.I("s_subb_u32", s(self.pd + 1), s(self.pd + 1), 0)
        srd(k, self.sD, self.pd, 256)
    def tick(self, i): pass
    def dump_ticks(self): pass
    def stamp(self, j):
        if j != self.LAST[self.kidx]: return
        k = self.k
        k.I("s_memrealtime", sr(self.st, 2))
        k.I("s_or_b32", s(self.ex), "s2", s(self.swave))
        k.I("s_cmp_lg_u32", s(self.ex), 0)
        k.I("s_cselect_b32", s(self.ex), "0x7ffffff0", 8 * self.kidx)
        k.I("s_waitcnt", "lgkmcnt(0)")
        k.lgq = []
        k.I("v_mov_b32", v(self.vt), s(self.t0))
        k.I("v_mov_b32", v(self.vt + 1), s(self.st))
        k.I("v_mov_b32", v(self.vo), 0)
        k.I("s_mov_b64", sr(self.st, 2), "exec")
        k.I("s_mov_b64", "exec", 1)
        k.I("buffer_store_dwordx2", vr(self.vt, 2), v(self.vo), sr(self.sD, 4), s(self.ex), mods="offen")
        k.I("s_mov_b64", "exec", sr(self.st, 2))
        k.vmq.append("stamp")

if os.environ.get("GEN_DBG"): Stamper = DbgStamper

def gen_k1():
    k = Kernel("k1_qkv_kernel")
    k.snext = 4; k.vnext = 1
    WREG = 0; WCH = 12288; XRING = 7 * WCH; XSL = 4096; NXS = 4
    TBL = XRING + 4 * NXS * XSL
    CWT = TBL; RT = TBL + 512; NMT = TBL + 1024; SQT = TBL + 1536
    ONES = TBL + 2048
    lds = ONES + 1024
    done = k.newlabel("done")
    k.I("s_cmp_ge_u32", "s2", 256)
    k.I("s_cbranch_scc1", done)
    pX = k.salloc(4); pWS = k.salloc(2)
    k.I("s_load_dwordx4", sr(pX, 4), "s[0:1]", 0)
    k.I("s_load_dwordx2", sr(pWS, 2), "s[0:1]", 80)
    sX = k.salloc(4); sW = k.salloc(4); sWS = k.salloc(4)
    swave = k.salloc(); srb = k.salloc(); shd = k.salloc(); st0 = k.salloc(); st1 = k.salloc(); soff = k.salloc()
    lane = k.valloc(); l31 = k.valloc(); hh = k.valloc(); t0 = k.valloc(); t1 = k.valloc(); t2 = k.valloc()
    k.I("v_lshrrev_b32", v(t0), 6, "v0")
    k.I("v_and_b32", v(lane), 63, "v0")
    k.I("v_readfirstlane_b32", s(swave), v(t0))
    k.I("s_and_b32", s(st0), "s2", 7)
    k.I("s_lshr_b32", s(st1), "s2", 3)
    k.I("s_and_b32", s(shd), s(st1), 15)
    k.I("s_lshr_b32", s(st1), s(st1), 4)
    k.I("s_lshl_b32", s(srb), s(st0), 1)
    k.I("s_add_u32", s(srb), s(srb), s(st1))
    stp = Stamper(k, 0, sWS, swave)
    sw3 = k.salloc()
    k.I("s_and_b32", s(sw3), s(swave), 3)
    l15 = k.valloc()
    k.I("v_and_b32", v(l15), 15, v(lane))
    k.I("s_waitcnt", "lgkmcnt(0)")
    srd(k, sW, pX + 2, 448 * 2688)
    srd(k, sX, pX, 2048 * 896)
    comp = k.newlabel("compute")
    k.I("s_cmp_lt_u32", s(swave), 4)
    k.I("s_cbranch_scc1", comp)
    vsave = k.vnext
    vXo = k.valloc(4)
    k.I("v_lshrrev_b32", v(t0), 3, v(lane))
    k.I("v_mul_u32_u24", v(t0), 896, v(t0))
    k.I("v_lshrrev_b32", v(t1), 4, v(lane))
    k.I("v_and_b32", v(t2), 7, v(lane))
    k.I("v_xor_b32", v(t1), v(t1), v(t2))
    k.I("v_lshl_add_u32", v(vXo), v(t1), 4, v(t0))
    k.I("v_xor_b32", v(t1), 4, v(t1))
    k.I("v_lshl_add_u32", v(vXo + 1), v(t1), 4, v(t0))
    k.I("v_add_u32", v(vXo + 1), 8 * 896, v(vXo + 1))
    k.I("v_add_u32", v(vXo + 2), 16 * 896, v(vXo))
    k.I("v_add_u32", v(vXo + 3), 16 * 896, v(vXo + 1))
    vWo = k.valloc(3)
    for b in range(3):
        k.I("v_add_u32", v(t0), 64 * b, v(lane))
        k.I("v_mul_u32_u24", v(t1), 171, v(t0))
        k.I("v_lshrrev_b32", v(t1), 11, v(t1))
        k.I("v_mul_u32_u24", v(t2), 12, v(t1))
        k.I("v_sub_u32", v(t0), v(t0), v(t2))
        k.I("v_mul_u32_u24", v(vWo + b), 2688, v(t1))
        k.I("v_lshrrev_b32", v(t2), 2, v(t0))
        k.I("v_mul_u32_u24", v(t2), 896, v(t2))
        k.I("v_and_b32", v(t0), 3, v(t0))
        k.I("v_lshl_add_u32", v(t2), v(t0), 4, v(t2))
        k.I("v_add_u32", v(vWo + b), v(vWo + b), v(t2))
        if os.environ.get("EXP_WCONT"):
            k.I("v_lshlrev_b32", v(vWo + b), 4, v(lane))
            k.I("v_add_u32", v(vWo + b), 1024 * b, v(vWo + b))
    sWb = k.salloc(); sm0 = k.salloc(); sXb = k.salloc(); sm0x = k.salloc()
    k.I("s_mul_i32", s(sWb), s(shd), 56)
    k.I("s_mul_i32", s(st0), s(sw3), 16 * 2688)
    k.I("s_add_u32", s(sWb), s(sWb), s(st0))
    k.I("s_mul_i32", s(sm0), s(sw3), 3 * 1024)
    k.I("s_lshl_b32", s(st0), s(srb), 7)
    k.I("s_lshl_b32", s(st1), s(sw3), 5)
    k.I("s_add_u32", s(st0), s(st0), s(st1))
    k.I("s_mul_i32", s(sXb), s(st0), 896)
    k.I("s_mul_i32", s(sm0x), s(sw3), NXS * XSL)
    k.I("s_add_u32", s(sm0x), s(sm0x), XRING)
    def wdma(c, b):
        if os.environ.get("EXP_NODMA") and c >= 3: return
        k.I("s_add_u32", s(soff), s(sWb), hex(c * 64 * 2688))
        k.I("s_add_u32", "m0", s(sm0), hex(WREG + c * WCH + b * 1024))
        k.vm(("W", c), "buffer_load_dwordx4", v(vWo + b), sr(sW, 4), s(soff), mods="offen lds")
    def xdma(c, j):
        if os.environ.get("EXP_NODMA") and c >= 2: return
        k.I("s_add_u32", s(soff), s(sXb), hex(c * 128))
        k.I("s_add_u32", "m0", s(sm0x), hex((c % NXS) * XSL + j * 1024))
        k.vm(("X", c), "buffer_load_dwordx4", v(vXo + j), sr(sX, 4), s(soff), mods="offen lds")
    for c in range(2):
        for b in range(3): wdma(c, b)
        for j in range(4): xdma(c, j)
    for b in range(3): wdma(2, b)
    LT = os.environ.get("TICKWAVE", "0") != "0"
    if LT: stp.tick(0)
    for c in range(7):
        k.wait_vm([("W", c), ("X", c)])
        if LT and c < 5: stp.tick(1 + 3 * c)
        k.I("s_barrier")
        if LT and c < 5: stp.tick(2 + 3 * c)
        if c + 2 <= 6:
            for j in range(4): xdma(c + 2, j)
        if c + 3 <= 6:
            for b in range(3): wdma(c + 3, b)
        if LT and c < 5: stp.tick(3 + 3 * c)
    k.I("s_barrier")
    if LT:
        srd(k, sWS, pWS, WS_SIZE)
        stp.dump_ticks()
    k.I("s_endpgm")
    k.L(comp)
    k.vnext = vsave; k.vmq = []; k.lgq = []
    vpf = k.valloc(); vpd = k.valloc(4)
    k.I("s_lshr_b32", s(st0), "s2", 3)
    k.I("s_lshl_b32", s(st0), s(st0), 8)
    k.I("v_add_u32", v(vpf), s(st0), "v0")
    k.I("v_lshlrev_b32", v(vpf), 7, v(vpf))
    if not os.environ.get("EXP_NOPF"):
        k.I("buffer_load_dword", v(vpd), v(vpf), sr(sW, 4), 0, mods="offen")
        k.I("v_add_u32", v(vpf), 8192 * 128, v(vpf))
        k.I("buffer_load_dword", v(vpd + 1), v(vpf), sr(sW, 4), 0, mods="offen")
        k.I("s_and_b32", s(st0), "s2", 7)
        k.I("s_mul_i32", s(st0), s(st0), 256 * 896)
        k.I("v_subrev_u32", v(vpf), 9408 * 128, v(vpf))
        k.I("v_mov_b32", v(t0), hex(256 * 896))
        k.I("v_cmp_lt_u32", "vcc", v(vpf), v(t0))
        k.I("v_mov_b32", v(t1), "0x7fffff00")
        k.I("v_cndmask_b32", v(vpf), v(t1), v(vpf), "vcc")
        k.I("buffer_load_dword", v(vpd + 2), v(vpf), sr(sX, 4), s(st0), mods="offen")
    sm0x = k.salloc()
    k.I("s_mul_i32", s(sm0x), s(swave), NXS * XSL)
    k.I("s_add_u32", s(sm0x), s(sm0x), XRING)
    aX = k.valloc(4); vW = k.valloc(); aG = k.valloc(4); vWj = k.valloc()
    gg = k.valloc()
    k.I("v_and_b32", v(l31), 31, "v0")
    k.I("v_bfe_u32", v(hh), "v0", 5, 1)
    k.I("v_lshrrev_b32", v(gg), 4, v(lane))
    k.I("v_bfe_u32", v(t0), v(l31), 1, 3)
    for j in range(4):
        k.I("v_add_u32", v(t1), 2 * j, v(hh))
        k.I("v_xor_b32", v(t1), v(t1), v(t0))
        k.I("v_lshlrev_b32", v(t1), 4, v(t1))
        k.I("v_lshl_add_u32", v(aX + j), v(l31), 7, v(t1))
        k.I("v_add_u32", v(aX + j), s(sm0x), v(aX + j))
    for rg in range(2):
        k.I("v_add_u32", v(t0), 16 * rg, v(l15))
        k.I("v_bfe_u32", v(t1), v(t0), 1, 3)
        for kk in range(2):
            k.I("v_add_u32", v(t2), 4 * kk, v(gg))
            k.I("v_xor_b32", v(t2), v(t2), v(t1))
            k.I("v_lshlrev_b32", v(t2), 4, v(t2))
            k.I("v_lshl_add_u32", v(aG + 2 * rg + kk), v(t0), 7, v(t2))
            k.I("v_add_u32", v(aG + 2 * rg + kk), s(sm0x), v(aG + 2 * rg + kk))
    k.I("v_bfe_u32", v(t0), "v0", 2, 2)
    k.I("v_lshl_add_u32", v(t1), v(hh), 3, v(t0))
    k.I("v_mul_u32_u24", v(t1), 192, v(t1))
    k.I("v_bfe_u32", v(t2), "v0", 4, 1)
    k.I("v_lshl_add_u32", v(t1), v(t2), 5, v(t1))
    k.I("v_and_b32", v(t2), 3, "v0")
    k.I("v_lshl_add_u32", v(vW), v(t2), 3, v(t1))
    k.I("v_lshl_add_u32", v(t0), v(gg), 3, v(t0))
    k.I("v_mul_u32_u24", v(t0), 192, v(t0))
    k.I("v_lshl_add_u32", v(vWj), v(t2), 3, v(t0))
    k.I("s_lshr_b32", s(st0), s(swave), 1)
    k.I("s_mul_i32", s(st0), s(st0), 32 * 192)
    k.I("s_and_b32", s(st1), s(swave), 1)
    k.I("s_mul_i32", s(st1), s(st1), 96)
    k.I("s_add_u32", s(st0), s(st0), s(st1))
    k.I("v_add_u32", v(vWj), s(st0), v(vWj))
    vW2 = k.valloc(); vWj2 = k.valloc()
    k.I("v_add_u32", v(vW2), 4 * WCH, v(vW))
    k.I("v_add_u32", v(vWj2), 4 * WCH, v(vWj))
    ones = k.valloc(4)
    vWq = k.valloc(); vInc = k.valloc()
    k.I("v_and_b32", v(t0), 19, v(lane))
    k.I("v_cmp_eq_u32", "vcc", 19, v(t0))
    k.I("v_mov_b32", v(t1), ONES)
    k.I("v_cndmask_b32", v(vWq), v(vW), v(t1), "vcc")
    k.I("v_mov_b32", v(t1), 16 * 192)
    k.I("v_cndmask_b32", v(vInc), v(t1), 0, "vcc")
    k.I("v_lshlrev_b32", v(t0), 4, v(lane))
    k.I("v_add_u32", v(t0), ONES, v(t0))
    for i in range(4): k.I("v_mov_b32", v(ones + i), "0x3f803f80")
    k.lg("z", "ds_write_b128", v(t0), vr(ones, 4))
    zz = k.valloc(2); vtb = k.valloc()
    k.I("v_mov_b32", v(zz), 0); k.I("v_mov_b32", v(zz + 1), 0)
    k.I("v_lshlrev_b32", v(vtb), 3, v(lane))
    k.I("v_add_u32", v(vtb), CWT, v(vtb))
    k.lg("z", "ds_write_b64", v(vtb), vr(zz, 2))
    accq = k.valloc(16, 4); acck = k.valloc(16, 4); accv = k.valloc(16, 4)
    NB = 3
    cacc = [k.valloc(4) for _ in range(3)]
    gacc = [k.valloc(4) for _ in range(2)]
    vmark = k.vnext
    xf = [k.valloc(4) for _ in range(NB)]
    wf = [[k.valloc(4) for _ in range(3)] for _ in range(NB)]
    xs = [k.valloc(4) for _ in range(4)]
    wf2 = [k.valloc(4) for _ in range(3)]
    def read_list(ks):
        c, j = ks // 4, ks % 4
        b = ks % NB
        out = [lambda: k.lg(("f", ks), "ds_read_b128", vr(xf[b], 4), v(aX + j), mods=f"offset:{(c % NXS) * XSL}")]
        for beta in range(2):
            out.append(lambda beta=beta: k.lg(("f", ks), "ds_read_b64_tr_b16", vr(wf[b][0] + 2 * beta, 2), v(vWq), mods=f"offset:{beta * 4 * 192}"))
        out.append(lambda: k.I("v_add_u32", v(vWq), v(vInc), v(vWq)))
        for sg in range(1, 3):
            for beta in range(2):
                o = (c % 4) * WCH + (16 * j + 4 * beta) * 192 + 64 * sg
                base = vW if c < 4 else vW2
                out.append(lambda o=o, sg=sg, beta=beta, base=base: k.lg(("f", ks), "ds_read_b64_tr_b16", vr(wf[b][sg] + 2 * beta, 2), v(base), mods=f"offset:{o}"))
        return out
    def aux_reads(c):
        out = []
        for j in range(4):
            out.append(lambda j=j: k.lg(("g", c), "ds_read_b128", vr(xs[j], 4), v(aG + j), mods=f"offset:{(c % NXS) * XSL}"))
        for nt in range(3):
            for beta in range(2):
                o = (c % 4) * WCH + (4 * beta) * 192 + 32 * nt
                base = vWj if c < 4 else vWj2
                out.append(lambda o=o, nt=nt, beta=beta, base=base: k.lg(("cw", c), "ds_read_b64_tr_b16", vr(wf2[nt] + 2 * beta, 2), v(base), mods=f"offset:{o}"))
        return out
    k.I("s_waitcnt", "lgkmcnt(0)")
    srd(k, sWS, pWS, WS_SIZE)
    stp.stamp(0)
    k.wait_lg("z")
    k.I("s_barrier")
    stp.stamp(1)
    if os.environ.get("TICKWAVE", "0") != "0": stp.tick = lambda i: None
    stp.tick(0)
    for f in read_list(0): f()
    for f in read_list(1): f()
    for ks in range(28):
        c, j = ks // 4, ks % 4
        b = ks % NB
        fill = []
        if ks + 2 < 28:
            fill += read_list(ks + 2)
        vm = []
        aux = []
        if j == 0: aux = aux_reads(c)[:4]
        if j == 1: aux = aux_reads(c)[4:]
        if os.environ.get("EXP_NOCOMP"):
            k.lgq = []
            if j == 1 and c < 6:
                k.I("s_barrier"); stp.tick(1 + c)
            continue
        k.wait_lg(("f", ks))
        mf = [
            lambda: k.I("v_mfma_f32_32x32x16_bf16", vr(accq, 16), vr(wf[b][0], 4), vr(xf[b], 4), 0 if ks == 0 else vr(accq, 16)),
            lambda: k.I("v_mfma_f32_32x32x16_bf16", vr(acck, 16), vr(wf[b][1], 4), vr(xf[b], 4), 0 if ks == 0 else vr(acck, 16)),
            lambda: k.I("v_mfma_f32_32x32x16_bf16", vr(accv, 16), vr(xf[b], 4), vr(wf[b][2], 4), 0 if ks == 0 else vr(accv, 16)),
        ]
        fl = fill + aux + vm
        n = len(fl)
        cuts = [0, (n + 2) // 3, (2 * n + 2) // 3, n]
        for i in range(3):
            mf[i]()
            for f in fl[cuts[i]:cuts[i + 1]]: f()
        if j == 2:
            k.wait_lg(("g", c))
            for jj in range(4):
                k.I("v_mfma_f32_16x16x32_bf16", vr(gacc[jj >> 1], 4), vr(xs[jj], 4), vr(xs[jj], 4), 0 if (c == 0 and (jj & 1) == 0) else vr(gacc[jj >> 1], 4))
        if j == 3:
            k.wait_lg(("cw", c))
            for nt in range(3):
                k.I("v_mfma_f32_16x16x32_bf16", vr(cacc[nt], 4), vr(ones, 4), vr(wf2[nt], 4), 0 if c == 0 else vr(cacc[nt], 4))
        if j == 1 and c < 6:
            k.I("s_barrier")
            stp.tick(1 + c)
    stp.tick(13)
    stp.stamp(2)
    k.vnext = vmark
    m1 = k.salloc(2); m2 = k.salloc(2); m3 = k.salloc(2)
    k.I("v_and_b32", v(t0), 3, v(lane))
    k.I("v_cmp_eq_u32", sr(m1, 2), 1, v(t0))
    k.I("v_cmp_eq_u32", sr(m2, 2), 2, v(t0))
    k.I("v_cmp_eq_u32", sr(m3, 2), 3, v(t0))
    vtl = k.valloc()
    k.I("v_lshlrev_b32", v(vtl), 2, v(l15))
    k.I("v_add_u32", v(vtl), TBL, v(vtl))
    k.I("s_and_b32", s(st1), s(swave), 1)
    k.I("s_mul_i32", s(st1), s(st1), 192)
    k.I("v_add_u32", v(t1), s(st1), v(vtl))
    k.I("s_mov_b32", "exec_lo", "0xffff")
    k.I("s_mov_b32", "exec_hi", 0)
    for nt in range(3):
        k.I("ds_add_f32", v(t1), v(cacc[nt]), mods=f"offset:{64 * nt}")
    k.I("s_mov_b64", "exec", -1)
    for rg in range(2):
        g_ = gacc[rg]
        k.I("v_cndmask_b32", v(g_), v(g_), v(g_ + 1), sr(m1, 2))
        k.I("v_cndmask_b32", v(g_), v(g_), v(g_ + 2), sr(m2, 2))
        k.I("v_cndmask_b32", v(g_), v(g_), v(g_ + 3), sr(m3, 2))
    k.I("s_lshl_b32", s(st0), s(swave), 7)
    k.I("v_add_u32", v(t0), s(st0), v(vtl))
    k.I("s_mov_b32", "exec_lo", "0x00f0000f")
    k.I("s_mov_b32", "exec_hi", "0xf0000f00")
    for rg in range(2):
        k.I("ds_write_b32", v(t0), v(gacc[rg]), mods=f"offset:{SQT - TBL + 64 * rg}")
    k.I("s_mov_b64", "exec", -1)
    sq = k.valloc(2); rl = k.valloc(2); nml = k.valloc(2); cwv = k.valloc(2)
    cwq = k.valloc(16, 4); cwk = k.valloc(16, 4); rv = k.valloc(16, 4); nv = k.valloc(16, 4)
    ta = k.valloc(); tb = k.valloc(); tc = k.valloc()
    k.I("v_lshlrev_b32", v(ta), 2, v(l31))
    k.I("s_add_u32", s(st0), s(st0), TBL)
    k.I("v_add_u32", v(ta), s(st0), v(ta))
    k.I("v_mov_b32", v(nml), v(accq + 12))
    k.I("v_mov_b32", v(nml + 1), v(accq + 12))
    k.I("v_permlane32_swap_b32", v(nml), v(nml + 1))
    k.I("v_mul_f32", v(nml), hex(f32(-1.0 / 448)), v(nml + 1))
    k.I("s_waitcnt", "lgkmcnt(0)")
    k.I("ds_read_b32", v(sq), v(ta), mods=f"offset:{SQT - TBL}")
    k.I("ds_write_b32", v(ta), v(nml), mods=f"offset:{NMT - TBL}")
    k.I("s_barrier")
    k.I("v_lshlrev_b32", v(tb), 4, v(hh))
    k.I("v_add_u32", v(tb), TBL, v(tb))
    for q in range(4):
        k.I("ds_read_b128", vr(cwq + 4 * q, 4), v(tb), mods=f"offset:{CWT - TBL + 32 * q}")
        k.I("ds_read_b128", vr(cwk + 4 * q, 4), v(tb), mods=f"offset:{CWT - TBL + 128 + 32 * q}")
    k.I("v_lshlrev_b32", v(tc), 2, v(l31))
    k.I("v_add_u32", v(tc), TBL, v(tc))
    k.I("ds_read_b32", v(cwv), v(tc), mods=f"offset:{CWT - TBL + 256}")
    k.I("s_waitcnt", "lgkmcnt(9)")
    k.I("v_mul_f32", v(sq), hex(f32(1.0 / 448)), v(sq))
    k.I("v_fma_f32", v(sq), f"-{v(nml)}", v(nml), v(sq))
    k.I("v_max_f32", v(sq), 0, v(sq))
    k.I("v_add_f32", v(sq), hex(f32(1e-5)), v(sq))
    k.I("v_rsq_f32", v(rl), v(sq))
    k.I("s_lshl_b32", s(st0), s(swave), 7)
    k.I("v_add_u32", v(tb), s(st0), v(tb))
    k.I("ds_write_b32", v(ta), v(rl), mods=f"offset:{RT - TBL}")
    k.I("s_waitcnt", "lgkmcnt(0)")
    for q in range(4):
        k.I("ds_read_b128", vr(rv + 4 * q, 4), v(tb), mods=f"offset:{RT - TBL + 32 * q}")
        k.I("ds_read_b128", vr(nv + 4 * q, 4), v(tb), mods=f"offset:{NMT - TBL + 32 * q}")
    k.lgq = []
    vq = k.valloc(); vv_ = k.valloc()
    k.I("v_lshrrev_b32", v(t0), 4, v(l31))
    k.I("v_lshlrev_b32", v(vq), 10, v(t0))
    k.I("v_lshl_add_u32", v(vq), v(l15), 4, v(vq))
    k.I("v_lshl_add_u32", v(vq), v(hh), 9, v(vq))
    k.I("v_lshlrev_b32", v(vv_), 9, v(t0))
    k.I("v_lshl_add_u32", v(vv_), v(l15), 3, v(vv_))
    k.I("v_lshl_add_u32", v(vv_), v(hh), 7, v(vv_))
    sb = k.salloc()
    k.I("s_lshl_b32", s(sb), s(shd), 17)
    k.I("s_lshl_b32", s(st0), s(srb), 13)
    k.I("s_add_u32", s(sb), s(sb), s(st0))
    k.I("s_lshl_b32", s(st0), s(swave), 11)
    k.I("s_add_u32", s(sb), s(sb), s(st0))
    k.I("v_cmp_eq_u32", "vcc", 0, v(hh))
    pk = k.valloc(8, 4)
    for (acc, cw, off) in ((accq, cwq, Q_OFF), (acck, cwk, K_OFF)):
        for j in range(8):
            k.I("v_pk_fma_f32", vr(acc + 2 * j, 2), vr(cw + 2 * j, 2), vr(nml, 2), vr(acc + 2 * j, 2), mods="op_sel_hi:[1,0,1]")
        for j in range(8):
            k.I("v_pk_mul_f32", vr(acc + 2 * j, 2), vr(acc + 2 * j, 2), vr(rl, 2), mods="op_sel_hi:[1,0]")
        for j in range(8):
            k.I("v_cvt_pk_bf16_f32", v(pk + j), v(acc + 2 * j), v(acc + 2 * j + 1))
        k.I("v_cndmask_b32", v(pk + 6), 0, v(pk + 6), "vcc")
        k.I("v_cndmask_b32", v(pk + 7), 0, v(pk + 7), "vcc")
        k.I("s_add_u32", s(soff), s(sb), hex(off))
        k.I("buffer_store_dwordx4", vr(pk, 4), v(vq), sr(sWS, 4), s(soff), mods="offen")
        k.I("buffer_store_dwordx4", vr(pk + 4, 4), v(vq), sr(sWS, 4), s(soff), mods="offen offset:256")
        pk = k.valloc(8, 4)
    k.I("s_waitcnt", "lgkmcnt(0)")
    for j in range(8):
        k.I("v_pk_fma_f32", vr(accv + 2 * j, 2), vr(nv + 2 * j, 2), vr(cwv, 2), vr(accv + 2 * j, 2), mods="op_sel_hi:[1,0,1]")
    for j in range(8):
        k.I("v_pk_mul_f32", vr(accv + 2 * j, 2), vr(accv + 2 * j, 2), vr(rv + 2 * j, 2))
    for j in range(8):
        k.I("v_cvt_pk_bf16_f32", v(pk + j), v(accv + 2 * j), v(accv + 2 * j + 1))
    k.I("v_mov_b32", v(t0), "0x3f803f80")
    k.I("v_cmp_eq_u32", "vcc", 28, v(l31))
    k.I("v_cndmask_b32", v(t0), 0, v(t0), "vcc")
    k.I("v_cmp_gt_u32", "vcc", 28, v(l31))
    for j in range(8):
        k.I("v_cndmask_b32", v(pk + j), v(t0), v(pk + j), "vcc")
    k.I("s_add_u32", s(soff), s(sb), hex(V_OFF))
    for q in range(4):
        k.I("buffer_store_dwordx2", vr(pk + 2 * q, 2), v(vv_), sr(sWS, 4), s(soff), mods=f"offen offset:{(q >> 1) * 1024 + (q & 1) * 256}")
    stp.tick(15)
    stp.stamp(3)
    stp.dump_ticks()
    k.L(done)
    k.I("s_endpgm")
    k.lds = lds; k.threads = 512; k.grid = 256
    return k

import struct
def f32(x): return struct.unpack("<I", struct.pack("<f", x))[0]

def assemble(kernels):
    out = []
    hdr = open("cdna_kernels/" + NAME + ".s.ref").read().split("\n")
    for line in hdr:
        if line.startswith("; Override") or line.startswith("; grid=") or line.startswith("; @launch"): continue
        if not line.startswith(";"): break
        out.append(line)
    for k in kernels:
        out.append(f"; @launch kernel={k.name} grid=({k.grid},1,1) block=({k.threads},1,1) lds={k.lds}")
    out.append('.amdgcn_target "amdgcn-amd-amdhsa--gfx950"')
    out.append(".text")
    for k in kernels:
        n = k.fix_hazards()
        out.append(f".globl {k.name}")
        out.append(".p2align 8")
        out.append(f".type {k.name},@function")
        out.append(f"{k.name}:")
        out.append(k.render())
        print(f"{k.name}: {len(k.ins)} instrs, hazard pads {n}, vgpr {k.vmax} agpr {k.amax} sgpr {k.smax} lds {k.lds}", file=sys.stderr)
    out.append('.section .rodata,"a"')
    for k in kernels:
        out.append(".p2align 6")
        out.append(k.descriptor())
    return "\n".join(out) + "\n"

if __name__ == "__main__":
    import kernels2 as k2
    ks = [gen_k1()] + k2.rest(Stamper)
    path = sys.argv[1] if len(sys.argv) > 1 else "cdna_kernels/" + NAME + ".s"
    open(path, "w").write(assemble(ks))
```

```python
import sys, os
sys.path.insert(0, os.path.dirname(__file__))
from asmlib import *
from layout import *

NAME = "sequential_preLN__sliding_block__mixer_gmlp__prompt"
STAMPS = os.environ.get("GEN_STAMPS", "0") == "1"
WS_SIZE = 0x10000000

def srd(k, dst, base, size):
    k.I("s_mov_b32", s(dst), s(base))
    k.I("s_and_b32", s(dst + 1), s(base + 1), "0xffff")
    k.I("s_mov_b32", s(dst + 2), hex(size))
    k.I("s_mov_b32", s(dst + 3), "0x20000")

class Stamper:
    def __init__(self, k, kidx, sWS, swave):
        self.k, self.kidx, self.sWS, self.swave = k, kidx, sWS, swave
        if STAMPS:
            self.st = k.salloc(2); self.vt = k.valloc(2); self.vo = k.valloc(1); self.ex = k.salloc(2)
    def tick(self, i):
        if not STAMPS: return
        if not hasattr(self, "tk"): self.tk = self.k.salloc(32, 4)
        self.k.I("s_memtime", sr(self.tk + 2 * i, 2))
        self.nt = max(getattr(self, "nt", 0), i + 1)
    def dump_ticks(self):
        if not STAMPS or not hasattr(self, "tk"): return
        k = self.k
        k.I("s_waitcnt", "lgkmcnt(0)")
        k.lgq = []
        k.I("s_lshl_b32", s(self.ex), "s2", 7)
        k.I("s_add_u32", s(self.ex), s(self.ex), hex(TICK_OFF + self.kidx * 256 * 128))
        k.I("s_cmp_lg_u32", s(self.swave), int(os.environ.get("TICKWAVE", "0")))
        k.I("s_cselect_b32", s(self.ex), "0x7ffffff0", s(self.ex))
        k.I("s_mov_b64", sr(self.st, 2), "exec")
        k.I("s_mov_b64", "exec", 1)
        k.I("v_mov_b32", v(self.vo), 0)
        for i in range(16):
            k.I("v_mov_b32", v(self.vt), s(self.tk + 2 * i))
            k.I("v_mov_b32", v(self.vt + 1), s(self.tk + 2 * i + 1))
            k.I("buffer_store_dwordx2", vr(self.vt, 2), v(self.vo), sr(self.sWS, 4), s(self.ex), mods=f"offen offset:{8 * i}")
            k.I("s_nop", 1)
        k.I("s_mov_b64", "exec", sr(self.st, 2))
    def stamp(self, j):
        if not STAMPS: return
        k = self.k
        k.I("s_memrealtime", sr(self.st, 2))
        k.I("s_lshl_b32", s(self.ex), "s2", 6)
        k.I("s_add_u32", s(self.ex), s(self.ex), hex(STAMP_OFF + self.kidx * 256 * 64 + j * 8))
        k.I("s_cmp_lg_u32", s(self.swave), 0)
        k.I("s_cselect_b32", s(self.ex), "0x7ffffff0", s(self.ex))
        k.I("s_waitcnt", "lgkmcnt(0)")
        k.lgq = []
        k.I("v_mov_b32", v(self.vt), s(self.st))
        k.I("v_mov_b32", v(self.vt + 1), s(self.st + 1))
        k.I("v_mov_b32", v(self.vo), 0)
        k.I("s_mov_b64", sr(self.st, 2), "exec")
        k.I("s_mov_b64", "exec", 1)
        k.I("buffer_store_dwordx2", vr(self.vt, 2), v(self.vo), sr(self.sWS, 4), s(self.ex), mods="offen")
        k.I("s_mov_b64", "exec", sr(self.st, 2))
        k.vmq.append("stamp")

class DbgStamper:
    LAST = {0: 3, 1: 2, 2: 3, 3: 5, 4: 3, 5: 3}
    def __init__(self, k, kidx, sWS, swave):
        self.k, self.kidx, self.swave = k, kidx, swave
        self.st = k.salloc(2); self.vt = k.valloc(2); self.vo = k.valloc(1); self.ex = k.salloc(2)
        self.pd = k.salloc(2); self.sD = k.salloc(4)
        k.I("s_memrealtime", sr(self.st, 2))
        k.I("s_load_dwordx2", sr(self.pd, 2), "s[0:1]", 72)
        self.t0 = k.salloc(2)
        k.I("s_waitcnt", "lgkmcnt(0)")
        k.I("s_mov_b32", s(self.t0), s(self.st))
        k.I("s_sub_u32", s(self.pd), s(self.pd), 512 * kidx)
        k.I("s_subb_u32", s(self.pd + 1), s(self.pd + 1), 0)
        srd(k, self.sD, self.pd, 512 * 5 + 256)
    def tick(self, i): pass
    def dump_ticks(self): pass
    def stamp(self, j):
        if j != self.LAST[self.kidx]: return
        k = self.k
        k.I("s_memrealtime", sr(self.st, 2))
        k.I("s_or_b32", s(self.ex), "s2", s(self.swave))
        k.I("s_cmp_lg_u32", s(self.ex), 0)
        k.I("s_cselect_b32", s(self.ex), "0x7ffffff0", 8 * self.kidx)
        k.I("s_waitcnt", "lgkmcnt(0)")
        k.lgq = []
        k.I("v_mov_b32", v(self.vt), s(self.t0))
        k.I("v_mov_b32", v(self.vt + 1), s(self.st))
        k.I("v_mov_b32", v(self.vo), 0)
        k.I("s_mov_b64", sr(self.st, 2), "exec")
        k.I("s_mov_b64", "exec", 1)
        for tg in range(6):
            k.I("buffer_store_dwordx2", vr(self.vt, 2), v(self.vo), sr(self.sD, 4), s(self.ex), mods=f"offen offset:{512 * tg}")
            k.vmq.append("stamp")
        k.I("s_mov_b64", "exec", sr(self.st, 2))

if os.environ.get("GEN_DBG"): Stamper = DbgStamper

def gen_k1():
    k = Kernel("k1_qkv_kernel")
    k.snext = 4; k.vnext = 1
    WREG = 0; WCH = 12288; XRING = 7 * WCH; XSL = 4096; NXS = 4
    TBL = XRING + 4 * NXS * XSL
    CWT = TBL; RT = TBL + 512; NMT = TBL + 1024; SQT = TBL + 1536
    ONES = TBL + 2048
    lds = ONES + 1024
    done = k.newlabel("done")
    k.I("s_cmp_ge_u32", "s2", 256)
    k.I("s_cbranch_scc1", done)
    pX = k.salloc(4); pWS = k.salloc(2)
    k.I("s_load_dwordx4", sr(pX, 4), "s[0:1]", 0)
    k.I("s_load_dwordx2", sr(pWS, 2), "s[0:1]", 80)
    sX = k.salloc(4); sW = k.salloc(4); sWS = k.salloc(4)
    swave = k.salloc(); srb = k.salloc(); shd = k.salloc(); st0 = k.salloc(); st1 = k.salloc(); soff = k.salloc()
    lane = k.valloc(); l31 = k.valloc(); hh = k.valloc(); t0 = k.valloc(); t1 = k.valloc(); t2 = k.valloc()
    k.I("v_lshrrev_b32", v(t0), 6, "v0")
    k.I("v_and_b32", v(lane), 63, "v0")
    k.I("v_readfirstlane_b32", s(swave), v(t0))
    k.I("s_and_b32", s(st0), "s2", 7)
    k.I("s_lshr_b32", s(st1), "s2", 3)
    k.I("s_and_b32", s(shd), s(st1), 15)
    k.I("s_lshr_b32", s(st1), s(st1), 4)
    k.I("s_lshl_b32", s(srb), s(st0), 1)
    k.I("s_add_u32", s(srb), s(srb), s(st1))
    stp = Stamper(k, 0, sWS, swave)
    sw3 = k.salloc()
    k.I("s_and_b32", s(sw3), s(swave), 3)
    l15 = k.valloc()
    k.I("v_and_b32", v(l15), 15, v(lane))
    k.I("s_waitcnt", "lgkmcnt(0)")
    srd(k, sW, pX + 2, 448 * 2688)
    srd(k, sX, pX, 2048 * 896)
    comp = k.newlabel("compute")
    k.I("s_cmp_lt_u32", s(swave), 4)
    k.I("s_cbranch_scc1", comp)
    vsave = k.vnext
    vXo = k.valloc(4)
    k.I("v_lshrrev_b32", v(t0), 3, v(lane))
    k.I("v_mul_u32_u24", v(t0), 896, v(t0))
    k.I("v_lshrrev_b32", v(t1), 4, v(lane))
    k.I("v_and_b32", v(t2), 7, v(lane))
    k.I("v_xor_b32", v(t1), v(t1), v(t2))
    k.I("v_lshl_add_u32", v(vXo), v(t1), 4, v(t0))
    k.I("v_xor_b32", v(t1), 4, v(t1))
    k.I("v_lshl_add_u32", v(vXo + 1), v(t1), 4, v(t0))
    k.I("v_add_u32", v(vXo + 1), 8 * 896, v(vXo + 1))
    k.I("v_add_u32", v(vXo + 2), 16 * 896, v(vXo))
    k.I("v_add_u32", v(vXo + 3), 16 * 896, v(vXo + 1))
    vWo = k.valloc(3)
    for b in range(3):
        k.I("v_add_u32", v(t0), 64 * b, v(lane))
        k.I("v_mul_u32_u24", v(t1), 171, v(t0))
        k.I("v_lshrrev_b32", v(t1), 11, v(t1))
        k.I("v_mul_u32_u24", v(t2), 12, v(t1))
        k.I("v_sub_u32", v(t0), v(t0), v(t2))
        k.I("v_mul_u32_u24", v(vWo + b), 2688, v(t1))
        k.I("v_lshrrev_b32", v(t2), 2, v(t0))
        k.I("v_mul_u32_u24", v(t2), 896, v(t2))
        k.I("v_and_b32", v(t0), 3, v(t0))
        k.I("v_lshl_add_u32", v(t2), v(t0), 4, v(t2))
        k.I("v_add_u32", v(vWo + b), v(vWo + b), v(t2))
        if os.environ.get("EXP_WCONT"):
            k.I("v_lshlrev_b32", v(vWo + b), 4, v(lane))
            k.I("v_add_u32", v(vWo + b), 1024 * b, v(vWo + b))
    sWb = k.salloc(); sm0 = k.salloc(); sXb = k.salloc(); sm0x = k.salloc()
    k.I("s_mul_i32", s(sWb), s(shd), 56)
    k.I("s_mul_i32", s(st0), s(sw3), 16 * 2688)
    k.I("s_add_u32", s(sWb), s(sWb), s(st0))
    k.I("s_mul_i32", s(sm0), s(sw3), 3 * 1024)
    k.I("s_lshl_b32", s(st0), s(srb), 7)
    k.I("s_lshl_b32", s(st1), s(sw3), 5)
    k.I("s_add_u32", s(st0), s(st0), s(st1))
    k.I("s_mul_i32", s(sXb), s(st0), 896)
    k.I("s_mul_i32", s(sm0x), s(sw3), NXS * XSL)
    k.I("s_add_u32", s(sm0x), s(sm0x), XRING)
    def wdma(c, b):
        if os.environ.get("EXP_NODMA") and c >= 3: return
        k.I("s_add_u32", s(soff), s(sWb), hex(c * 64 * 2688))
        k.I("s_add_u32", "m0", s(sm0), hex(WREG + c * WCH + b * 1024))
        k.vm(("W", c), "buffer_load_dwordx4", v(vWo + b), sr(sW, 4), s(soff), mods="offen lds")
    def xdma(c, j):
        if os.environ.get("EXP_NODMA") and c >= 2: return
        k.I("s_add_u32", s(soff), s(sXb), hex(c * 128))
        k.I("s_add_u32", "m0", s(sm0x), hex((c % NXS) * XSL + j * 1024))
        k.vm(("X", c), "buffer_load_dwordx4", v(vXo + j), sr(sX, 4), s(soff), mods="offen lds")
    for c in range(2):
        for b in range(3): wdma(c, b)
        for j in range(4): xdma(c, j)
    for b in range(3): wdma(2, b)
    LT = os.environ.get("TICKWAVE", "0") != "0"
    if LT: stp.tick(0)
    for c in range(7):
        k.wait_vm([("W", c), ("X", c)])
        if LT and c < 5: stp.tick(1 + 3 * c)
        k.I("s_barrier")
        if LT and c < 5: stp.tick(2 + 3 * c)
        if c + 2 <= 6:
            for j in range(4): xdma(c + 2, j)
        if c + 3 <= 6:
            for b in range(3): wdma(c + 3, b)
        if LT and c < 5: stp.tick(3 + 3 * c)
    k.I("s_barrier")
    if LT:
        srd(k, sWS, pWS, WS_SIZE)
        stp.dump_ticks()
    k.I("s_endpgm")
    k.L(comp)
    k.vnext = vsave; k.vmq = []; k.lgq = []
    vpf = k.valloc(); vpd = k.valloc(4)
    k.I("s_lshr_b32", s(st0), "s2", 3)
    k.I("s_lshl_b32", s(st0), s(st0), 8)
    k.I("v_add_u32", v(vpf), s(st0), "v0")
    k.I("v_lshlrev_b32", v(vpf), 7, v(vpf))
    if not os.environ.get("EXP_NOPF"):
        k.I("buffer_load_dword", v(vpd), v(vpf), sr(sW, 4), 0, mods="offen")
        k.I("v_add_u32", v(vpf), 8192 * 128, v(vpf))
        k.I("buffer_load_dword", v(vpd + 1), v(vpf), sr(sW, 4), 0, mods="offen")
        k.I("s_and_b32", s(st0), "s2", 7)
        k.I("s_mul_i32", s(st0), s(st0), 256 * 896)
        k.I("v_subrev_u32", v(vpf), 9408 * 128, v(vpf))
        k.I("v_mov_b32", v(t0), hex(256 * 896))
        k.I("v_cmp_lt_u32", "vcc", v(vpf), v(t0))
        k.I("v_mov_b32", v(t1), "0x7fffff00")
        k.I("v_cndmask_b32", v(vpf), v(t1), v(vpf), "vcc")
        k.I("buffer_load_dword", v(vpd + 2), v(vpf), sr(sX, 4), s(st0), mods="offen")
    sm0x = k.salloc()
    k.I("s_mul_i32", s(sm0x), s(swave), NXS * XSL)
    k.I("s_add_u32", s(sm0x), s(sm0x), XRING)
    aX = k.valloc(4); vW = k.valloc(); aG = k.valloc(4); vWj = k.valloc()
    gg = k.valloc()
    k.I("v_and_b32", v(l31), 31, "v0")
    k.I("v_bfe_u32", v(hh), "v0", 5, 1)
    k.I("v_lshrrev_b32", v(gg), 4, v(lane))
    k.I("v_bfe_u32", v(t0), v(l31), 1, 3)
    for j in range(4):
        k.I("v_add_u32", v(t1), 2 * j, v(hh))
        k.I("v_xor_b32", v(t1), v(t1), v(t0))
        k.I("v_lshlrev_b32", v(t1), 4, v(t1))
        k.I("v_lshl_add_u32", v(aX + j), v(l31), 7, v(t1))
        k.I("v_add_u32", v(aX + j), s(sm0x), v(aX + j))
    for rg in range(2):
        k.I("v_add_u32", v(t0), 16 * rg, v(l15))
        k.I("v_bfe_u32", v(t1), v(t0), 1, 3)
        for kk in range(2):
            k.I("v_add_u32", v(t2), 4 * kk, v(gg))
            k.I("v_xor_b32", v(t2), v(t2), v(t1))
            k.I("v_lshlrev_b32", v(t2), 4, v(t2))
            k.I("v_lshl_add_u32", v(aG + 2 * rg + kk), v(t0), 7, v(t2))
            k.I("v_add_u32", v(aG + 2 * rg + kk), s(sm0x), v(aG + 2 * rg + kk))
    k.I("v_bfe_u32", v(t0), "v0", 2, 2)
    k.I("v_lshl_add_u32", v(t1), v(hh), 3, v(t0))
    k.I("v_mul_u32_u24", v(t1), 192, v(t1))
    k.I("v_bfe_u32", v(t2), "v0", 4, 1)
    k.I("v_lshl_add_u32", v(t1), v(t2), 5, v(t1))
    k.I("v_and_b32", v(t2), 3, "v0")
    k.I("v_lshl_add_u32", v(vW), v(t2), 3, v(t1))
    k.I("v_lshl_add_u32", v(t0), v(gg), 3, v(t0))
    k.I("v_mul_u32_u24", v(t0), 192, v(t0))
    k.I("v_lshl_add_u32", v(vWj), v(t2), 3, v(t0))
    k.I("s_lshr_b32", s(st0), s(swave), 1)
    k.I("s_mul_i32", s(st0), s(st0), 32 * 192)
    k.I("s_and_b32", s(st1), s(swave), 1)
    k.I("s_mul_i32", s(st1), s(st1), 96)
    k.I("s_add_u32", s(st0), s(st0), s(st1))
    k.I("v_add_u32", v(vWj), s(st0), v(vWj))
    vW2 = k.valloc(); vWj2 = k.valloc()
    k.I("v_add_u32", v(vW2), 4 * WCH, v(vW))
    k.I("v_add_u32", v(vWj2), 4 * WCH, v(vWj))
    ones = k.valloc(4)
    vWq = k.valloc(); vInc = k.valloc()
    k.I("v_and_b32", v(t0), 19, v(lane))
    k.I("v_cmp_eq_u32", "vcc", 19, v(t0))
    k.I("v_mov_b32", v(t1), ONES)
    k.I("v_cndmask_b32", v(vWq), v(vW), v(t1), "vcc")
    k.I("v_mov_b32", v(t1), 16 * 192)
    k.I("v_cndmask_b32", v(vInc), v(t1), 0, "vcc")
    k.I("v_lshlrev_b32", v(t0), 4, v(lane))
    k.I("v_add_u32", v(t0), ONES, v(t0))
    for i in range(4): k.I("v_mov_b32", v(ones + i), "0x3f803f80")
    k.lg("z", "ds_write_b128", v(t0), vr(ones, 4))
    zz = k.valloc(2); vtb = k.valloc()
    k.I("v_mov_b32", v(zz), 0); k.I("v_mov_b32", v(zz + 1), 0)
    k.I("v_lshlrev_b32", v(vtb), 3, v(lane))
    k.I("v_add_u32", v(vtb), CWT, v(vtb))
    k.lg("z", "ds_write_b64", v(vtb), vr(zz, 2))
    accq = k.valloc(16, 4); acck = k.valloc(16, 4); accv = k.valloc(16, 4)
    NB = 3
    cacc = [k.valloc(4) for _ in range(3)]
    gacc = [k.valloc(4) for _ in range(2)]
    vmark = k.vnext
    xf = [k.valloc(4) for _ in range(NB)]
    wf = [[k.valloc(4) for _ in range(3)] for _ in range(NB)]
    xs = [k.valloc(4) for _ in range(4)]
    wf2 = [k.valloc(4) for _ in range(3)]
    def read_list(ks):
        c, j = ks // 4, ks % 4
        b = ks % NB
        out = [lambda: k.lg(("f", ks), "ds_read_b128", vr(xf[b], 4), v(aX + j), mods=f"offset:{(c % NXS) * XSL}")]
        for beta in range(2):
            out.append(lambda beta=beta: k.lg(("f", ks), "ds_read_b64_tr_b16", vr(wf[b][0] + 2 * beta, 2), v(vWq), mods=f"offset:{beta * 4 * 192}"))
        out.append(lambda: k.I("v_add_u32", v(vWq), v(vInc), v(vWq)))
        for sg in range(1, 3):
            for beta in range(2):
                o = (c % 4) * WCH + (16 * j + 4 * beta) * 192 + 64 * sg
                base = vW if c < 4 else vW2
                out.append(lambda o=o, sg=sg, beta=beta, base=base: k.lg(("f", ks), "ds_read_b64_tr_b16", vr(wf[b][sg] + 2 * beta, 2), v(base), mods=f"offset:{o}"))
        return out
    def aux_reads(c):
        out = []
        for j in range(4):
            out.append(lambda j=j: k.lg(("g", c), "ds_read_b128", vr(xs[j], 4), v(aG + j), mods=f"offset:{(c % NXS) * XSL}"))
        for nt in range(3):
            for beta in range(2):
                o = (c % 4) * WCH + (4 * beta) * 192 + 32 * nt
                base = vWj if c < 4 else vWj2
                out.append(lambda o=o, nt=nt, beta=beta, base=base: k.lg(("cw", c), "ds_read_b64_tr_b16", vr(wf2[nt] + 2 * beta, 2), v(base), mods=f"offset:{o}"))
        return out
    k.I("s_waitcnt", "lgkmcnt(0)")
    srd(k, sWS, pWS, WS_SIZE)
    stp.stamp(0)
    k.wait_lg("z")
    k.I("s_barrier")
    stp.stamp(1)
    if os.environ.get("TICKWAVE", "0") != "0": stp.tick = lambda i: None
    stp.tick(0)
    for f in read_list(0): f()
    for f in read_list(1): f()
    for ks in range(28):
        c, j = ks // 4, ks % 4
        b = ks % NB
        fill = []
        if ks + 2 < 28:
            fill += read_list(ks + 2)
        vm = []
        aux = []
        if j == 0: aux = aux_reads(c)[:4]
        if j == 1: aux = aux_reads(c)[4:]
        if os.environ.get("EXP_NOCOMP"):
            k.lgq = []
            if j == 1 and c < 6:
                k.I("s_barrier"); stp.tick(1 + c)
            continue
        k.wait_lg(("f", ks))
        mf = [
            lambda: k.I("v_mfma_f32_32x32x16_bf16", vr(accq, 16), vr(wf[b][0], 4), vr(xf[b], 4), 0 if ks == 0 else vr(accq, 16)),
            lambda: k.I("v_mfma_f32_32x32x16_bf16", vr(acck, 16), vr(wf[b][1], 4), vr(xf[b], 4), 0 if ks == 0 else vr(acck, 16)),
            lambda: k.I("v_mfma_f32_32x32x16_bf16", vr(accv, 16), vr(xf[b], 4), vr(wf[b][2], 4), 0 if ks == 0 else vr(accv, 16)),
        ]
        fl = fill + aux + vm
        n = len(fl)
        cuts = [0, (n + 2) // 3, (2 * n + 2) // 3, n]
        for i in range(3):
            mf[i]()
            for f in fl[cuts[i]:cuts[i + 1]]: f()
        if j == 2:
            k.wait_lg(("g", c))
            for jj in range(4):
                k.I("v_mfma_f32_16x16x32_bf16", vr(gacc[jj >> 1], 4), vr(xs[jj], 4), vr(xs[jj], 4), 0 if (c == 0 and (jj & 1) == 0) else vr(gacc[jj >> 1], 4))
        if j == 3:
            k.wait_lg(("cw", c))
            for nt in range(3):
                k.I("v_mfma_f32_16x16x32_bf16", vr(cacc[nt], 4), vr(ones, 4), vr(wf2[nt], 4), 0 if c == 0 else vr(cacc[nt], 4))
        if j == 1 and c < 6:
            k.I("s_barrier")
            stp.tick(1 + c)
    stp.tick(13)
    stp.stamp(2)
    k.vnext = vmark
    m1 = k.salloc(2); m2 = k.salloc(2); m3 = k.salloc(2)
    k.I("v_and_b32", v(t0), 3, v(lane))
    k.I("v_cmp_eq_u32", sr(m1, 2), 1, v(t0))
    k.I("v_cmp_eq_u32", sr(m2, 2), 2, v(t0))
    k.I("v_cmp_eq_u32", sr(m3, 2), 3, v(t0))
    vtl = k.valloc()
    k.I("v_lshlrev_b32", v(vtl), 2, v(l15))
    k.I("v_add_u32", v(vtl), TBL, v(vtl))
    k.I("s_and_b32", s(st1), s(swave), 1)
    k.I("s_mul_i32", s(st1), s(st1), 192)
    k.I("v_add_u32", v(t1), s(st1), v(vtl))
    k.I("s_mov_b32", "exec_lo", "0xffff")
    k.I("s_mov_b32", "exec_hi", 0)
    for nt in range(3):
        k.I("ds_add_f32", v(t1), v(cacc[nt]), mods=f"offset:{64 * nt}")
    k.I("s_mov_b64", "exec", -1)
    for rg in range(2):
        g_ = gacc[rg]
        k.I("v_cndmask_b32", v(g_), v(g_), v(g_ + 1), sr(m1, 2))
        k.I("v_cndmask_b32", v(g_), v(g_), v(g_ + 2), sr(m2, 2))
        k.I("v_cndmask_b32", v(g_), v(g_), v(g_ + 3), sr(m3, 2))
    k.I("s_lshl_b32", s(st0), s(swave), 7)
    k.I("v_add_u32", v(t0), s(st0), v(vtl))
    k.I("s_mov_b32", "exec_lo", "0x00f0000f")
    k.I("s_mov_b32", "exec_hi", "0xf0000f00")
    for rg in range(2):
        k.I("ds_write_b32", v(t0), v(gacc[rg]), mods=f"offset:{SQT - TBL + 64 * rg}")
    k.I("s_mov_b64", "exec", -1)
    sq = k.valloc(2); rl = k.valloc(2); nml = k.valloc(2); cwv = k.valloc(2)
    cwq = k.valloc(16, 4); cwk = k.valloc(16, 4); rv = k.valloc(16, 4); nv = k.valloc(16, 4)
    ta = k.valloc(); tb = k.valloc(); tc = k.valloc()
    k.I("v_lshlrev_b32", v(ta), 2, v(l31))
    k.I("s_add_u32", s(st0), s(st0), TBL)
    k.I("v_add_u32", v(ta), s(st0), v(ta))
    k.I("v_mov_b32", v(nml), v(accq + 12))
    k.I("v_mov_b32", v(nml + 1), v(accq + 12))
    k.I("v_permlane32_swap_b32", v(nml), v(nml + 1))
    k.I("v_mul_f32", v(nml), hex(f32(-1.0 / 448)), v(nml + 1))
    k.I("s_waitcnt", "lgkmcnt(0)")
    k.I("ds_read_b32", v(sq), v(ta), mods=f"offset:{SQT - TBL}")
    k.I("ds_write_b32", v(ta), v(nml), mods=f"offset:{NMT - TBL}")
    k.I("s_barrier")
    k.I("v_lshlrev_b32", v(tb), 4, v(hh))
    k.I("v_add_u32", v(tb), TBL, v(tb))
    for q in range(4):
        k.I("ds_read_b128", vr(cwq + 4 * q, 4), v(tb), mods=f"offset:{CWT - TBL + 32 * q}")
        k.I("ds_read_b128", vr(cwk + 4 * q, 4), v(tb), mods=f"offset:{CWT - TBL + 128 + 32 * q}")
    k.I("v_lshlrev_b32", v(tc), 2, v(l31))
    k.I("v_add_u32", v(tc), TBL, v(tc))
    k.I("ds_read_b32", v(cwv), v(tc), mods=f"offset:{CWT - TBL + 256}")
    k.I("s_waitcnt", "lgkmcnt(9)")
    k.I("v_mul_f32", v(sq), hex(f32(1.0 / 448)), v(sq))
    k.I("v_fma_f32", v(sq), f"-{v(nml)}", v(nml), v(sq))
    k.I("v_max_f32", v(sq), 0, v(sq))
    k.I("v_add_f32", v(sq), hex(f32(1e-5)), v(sq))
    k.I("v_rsq_f32", v(rl), v(sq))
    k.I("s_lshl_b32", s(st0), s(swave), 7)
    k.I("v_add_u32", v(tb), s(st0), v(tb))
    k.I("ds_write_b32", v(ta), v(rl), mods=f"offset:{RT - TBL}")
    k.I("s_waitcnt", "lgkmcnt(0)")
    for q in range(4):
        k.I("ds_read_b128", vr(rv + 4 * q, 4), v(tb), mods=f"offset:{RT - TBL + 32 * q}")
        k.I("ds_read_b128", vr(nv + 4 * q, 4), v(tb), mods=f"offset:{NMT - TBL + 32 * q}")
    k.lgq = []
    vq = k.valloc(); vv_ = k.valloc()
    k.I("v_lshrrev_b32", v(t0), 4, v(l31))
    k.I("v_lshlrev_b32", v(vq), 10, v(t0))
    k.I("v_lshl_add_u32", v(vq), v(l15), 4, v(vq))
    k.I("v_lshl_add_u32", v(vq), v(hh), 9, v(vq))
    k.I("v_lshlrev_b32", v(vv_), 9, v(t0))
    k.I("v_lshl_add_u32", v(vv_), v(l15), 3, v(vv_))
    k.I("v_lshl_add_u32", v(vv_), v(hh), 7, v(vv_))
    sb = k.salloc()
    k.I("s_lshl_b32", s(sb), s(shd), 17)
    k.I("s_lshl_b32", s(st0), s(srb), 13)
    k.I("s_add_u32", s(sb), s(sb), s(st0))
    k.I("s_lshl_b32", s(st0), s(swave), 11)
    k.I("s_add_u32", s(sb), s(sb), s(st0))
    k.I("v_cmp_eq_u32", "vcc", 0, v(hh))
    pk = k.valloc(8, 4)
    for (acc, cw, off) in ((accq, cwq, Q_OFF), (acck, cwk, K_OFF)):
        for j in range(8):
            k.I("v_pk_fma_f32", vr(acc + 2 * j, 2), vr(cw + 2 * j, 2), vr(nml, 2), vr(acc + 2 * j, 2), mods="op_sel_hi:[1,0,1]")
        for j in range(8):
            k.I("v_pk_mul_f32", vr(acc + 2 * j, 2), vr(acc + 2 * j, 2), vr(rl, 2), mods="op_sel_hi:[1,0]")
        for j in range(8):
            k.I("v_cvt_pk_bf16_f32", v(pk + j), v(acc + 2 * j), v(acc + 2 * j + 1))
        k.I("v_cndmask_b32", v(pk + 6), 0, v(pk + 6), "vcc")
        k.I("v_cndmask_b32", v(pk + 7), 0, v(pk + 7), "vcc")
        k.I("s_add_u32", s(soff), s(sb), hex(off))
        k.I("buffer_store_dwordx4", vr(pk, 4), v(vq), sr(sWS, 4), s(soff), mods="offen")
        k.I("buffer_store_dwordx4", vr(pk + 4, 4), v(vq), sr(sWS, 4), s(soff), mods="offen offset:256")
        pk = k.valloc(8, 4)
    k.I("s_waitcnt", "lgkmcnt(0)")
    for j in range(8):
        k.I("v_pk_fma_f32", vr(accv + 2 * j, 2), vr(nv + 2 * j, 2), vr(cwv, 2), vr(accv + 2 * j, 2), mods="op_sel_hi:[1,0,1]")
    for j in range(8):
        k.I("v_pk_mul_f32", vr(accv + 2 * j, 2), vr(accv + 2 * j, 2), vr(rv + 2 * j, 2))
    for j in range(8):
        k.I("v_cvt_pk_bf16_f32", v(pk + j), v(accv + 2 * j), v(accv + 2 * j + 1))
    k.I("v_mov_b32", v(t0), "0x3f803f80")
    k.I("v_cmp_eq_u32", "vcc", 28, v(l31))
    k.I("v_cndmask_b32", v(t0), 0, v(t0), "vcc")
    k.I("v_cmp_gt_u32", "vcc", 28, v(l31))
    for j in range(8):
        k.I("v_cndmask_b32", v(pk + j), v(t0), v(pk + j), "vcc")
    k.I("s_add_u32", s(soff), s(sb), hex(V_OFF))
    for q in range(4):
        k.I("buffer_store_dwordx2", vr(pk + 2 * q, 2), v(vv_), sr(sWS, 4), s(soff), mods=f"offen offset:{(q >> 1) * 1024 + (q & 1) * 256}")
    stp.tick(15)
    stp.stamp(3)
    stp.dump_ticks()
    k.L(done)
    k.I("s_endpgm")
    k.lds = lds; k.threads = 512; k.grid = 256
    return k

import struct
def f32(x): return struct.unpack("<I", struct.pack("<f", x))[0]

def assemble(kernels):
    out = []
    hdr = open("cdna_kernels/" + NAME + ".s.ref").read().split("\n")
    for line in hdr:
        if line.startswith("; Override") or line.startswith("; grid=") or line.startswith("; @launch"): continue
        if not line.startswith(";"): break
        out.append(line)
    for k in kernels:
        out.append(f"; @launch kernel={k.name} grid=({k.grid},1,1) block=({k.threads},1,1) lds={k.lds}")
    out.append('.amdgcn_target "amdgcn-amd-amdhsa--gfx950"')
    out.append(".text")
    for k in kernels:
        n = k.fix_hazards()
        out.append(f".globl {k.name}")
        out.append(".p2align 8")
        out.append(f".type {k.name},@function")
        out.append(f"{k.name}:")
        out.append(k.render())
        print(f"{k.name}: {len(k.ins)} instrs, hazard pads {n}, vgpr {k.vmax} agpr {k.amax} sgpr {k.smax} lds {k.lds}", file=sys.stderr)
    out.append('.section .rodata,"a"')
    for k in kernels:
        out.append(".p2align 6")
        out.append(k.descriptor())
    return "\n".join(out) + "\n"

if __name__ == "__main__":
    import kernels2 as k2
    ks = [gen_k1()] + k2.rest(Stamper)
    path = sys.argv[1] if len(sys.argv) > 1 else "cdna_kernels/" + NAME + ".s"
    open(path, "w").write(assemble(ks))
```

```python
import os, struct, math
from asmlib import *
from layout import *
WS_SIZE = 0x10000000
def f32(x): return struct.unpack("<I", struct.pack("<f", x))[0]

def srd(k, dst, base, size):
    k.I("s_mov_b32", s(dst), s(base))
    k.I("s_and_b32", s(dst + 1), s(base + 1), "0xffff")
    k.I("s_mov_b32", s(dst + 2), hex(size))
    k.I("s_mov_b32", s(dst + 3), "0x20000")

def gen_k2(Stamper):
    k = Kernel("k2_attn_kernel")
    k.snext = 4; k.vnext = 1
    KREG = 0; VREG = 24576
    lds = 49152
    done = k.newlabel("done")
    k.I("s_cmp_ge_u32", "s2", 256)
    k.I("s_cbranch_scc1", done)
    pWS = k.salloc(2)
    k.I("s_load_dwordx2", sr(pWS, 2), "s[0:1]", 80)
    sWS = k.salloc(4)
    swave = k.salloc(); srb = k.salloc(); shd = k.salloc(); st0 = k.salloc(); st1 = k.salloc(); soff = k.salloc()
    lane = k.valloc(); t0 = k.valloc(); t1 = k.valloc(); l15 = k.valloc(); gg = k.valloc()
    k.I("v_lshrrev_b32", v(t0), 6, "v0")
    k.I("v_and_b32", v(lane), 63, "v0")
    k.I("v_readfirstlane_b32", s(swave), v(t0))
    k.I("s_and_b32", s(st0), "s2", 7)
    k.I("s_lshr_b32", s(st1), "s2", 3)
    k.I("s_and_b32", s(shd), s(st1), 15)
    k.I("s_lshr_b32", s(st1), s(st1), 4)
    k.I("s_lshl_b32", s(srb), s(st0), 1)
    k.I("s_add_u32", s(srb), s(srb), s(st1))
    stp = Stamper(k, 1, sWS, swave)
    v16 = k.valloc()
    k.I("v_lshlrev_b32", v(v16), 4, v(lane))
    sb = k.salloc(); sm = k.salloc(); s16q = k.salloc()
    k.I("s_lshl_b32", s(sb), s(shd), 17)
    k.I("s_lshl_b32", s(st0), s(srb), 13)
    k.I("s_add_u32", s(sb), s(sb), s(st0))
    k.I("s_mul_i32", s(sm), s(swave), 3072)
    k.I("s_lshl_b32", s(s16q), s(srb), 3)
    k.I("s_add_u32", s(s16q), s(s16q), s(swave))
    k.I("s_waitcnt", "lgkmcnt(0)")
    srd(k, sWS, pWS, WS_SIZE)
    qf = k.valloc(4)
    k.I("s_lshl_b32", s(st0), s(swave), 10)
    k.I("s_add_u32", s(st0), s(st0), s(sb))
    k.I("s_add_u32", s(soff), s(st0), hex(Q_OFF))
    k.vm("q", "buffer_load_dwordx4", vr(qf, 4), v(v16), sr(sWS, 4), s(soff), mods="offen")
    k.I("s_add_u32", s(st1), s(sb), s(sm))
    for (reg, off) in ((KREG, K_OFF), (VREG, V_OFF)):
        for i in range(3):
            k.I("s_add_u32", s(soff), s(st1), hex(off - 16384 + i * 1024))
            k.I("s_add_u32", "m0", s(sm), hex(reg + i * 1024))
            k.vm("kv", "buffer_load_dwordx4", v(v16), sr(sWS, 4), s(soff), mods="offen lds")
    stp.stamp(0)
    k.I("v_and_b32", v(l15), 15, v(lane))
    k.I("v_lshrrev_b32", v(gg), 4, v(lane))
    M = [k.salloc(2) for _ in range(4)]
    k.I("v_lshlrev_b32", v(t0), 2, v(gg))
    for i in range(4):
        k.I("v_add_u32", v(t1), i, v(t0))
        k.I("v_cmp_gt_u32", sr(M[i], 2), v(t1), v(l15))
    aK = k.valloc(); aV = k.valloc()
    k.I("s_lshl_b32", s(st0), s(swave), 10)
    k.I("v_add_u32", v(aK), s(st0), v(v16))
    k.I("v_lshlrev_b32", v(aV), 3, v(lane))
    k.I("s_add_u32", s(st0), s(st0), VREG)
    k.I("v_add_u32", v(aV), s(st0), v(aV))
    S = k.valloc(68, 4)
    kf = [k.valloc(4) for _ in range(6)]
    neg = k.valloc()
    k.I("v_mov_b32", v(neg), hex(f32(-1e30)))
    k.wait_vm(["q", "kv"])
    k.I("s_barrier")
    stp.stamp(1)
    NKF = 6
    for j in range(min(NKF, 17)):
        k.lg(("k", j), "ds_read_b128", vr(kf[j % NKF], 4), v(aK), mods=f"offset:{j * 1024}")
    for j in range(17):
        k.wait_lg(("k", j))
        k.I("v_mfma_f32_16x16x32_bf16", vr(S + 4 * j, 4), vr(kf[j % NKF], 4), vr(qf, 4), 0)
        if j + NKF < 17:
            k.lg(("k", j + NKF), "ds_read_b128", vr(kf[j % NKF], 4), v(aK), mods=f"offset:{(j + NKF) * 1024}")
    vf = k.valloc(9 * 2 * 4, 4)
    def vread(kp):
        for dt in range(2):
            for beta in range(2):
                tile = min(2 * kp + beta, 16)
                k.lg(("v", kp), "ds_read_b64", vr(vf + (kp * 2 + dt) * 4 + 2 * beta, 2), v(aV), mods=f"offset:{tile * 1024 + dt * 512}")
    for kp in range(3): vread(kp)
    for i in range(4):
        k.I("v_cndmask_b32", v(S + i), v(neg), v(S + i), sr(M[i], 2))
        k.I("v_cndmask_b32", v(S + 64 + i), v(S + 64 + i), v(neg), sr(M[i], 2))
    nofix = k.newlabel("nofix")
    k.I("s_cmp_ge_u32", s(s16q), 16)
    k.I("s_cbranch_scc1", nofix)
    k.I("s_sub_u32", s(st0), 16, s(s16q))
    for j in range(16):
        lab = k.newlabel("sk")
        k.I("s_cmp_le_u32", s(st0), j)
        k.I("s_cbranch_scc1", lab)
        for i in range(4): k.I("v_mov_b32", v(S + 4 * j + i), v(neg))
        k.L(lab)
    k.L(nofix)
    mx = k.valloc(4)
    for c in range(4):
        k.I("v_max3_f32", v(mx + c), v(S + c * 17), v(S + c * 17 + 1), v(S + c * 17 + 2))
    for r in range(7):
        for c in range(4):
            b = c * 17 + 3 + 2 * r
            k.I("v_max3_f32", v(mx + c), v(mx + c), v(S + b), v(S + b + 1))
    k.I("v_max3_f32", v(mx), v(mx), v(mx + 1), v(mx + 2))
    k.I("v_max_f32", v(mx), v(mx), v(mx + 3))
    for sw in ("v_permlane16_swap_b32", "v_permlane32_swap_b32"):
        k.I("v_mov_b32", v(mx + 1), v(mx))
        k.I(sw, v(mx), v(mx + 1))
        k.I("v_max_f32", v(mx), v(mx), v(mx + 1))
    cs = 28 ** -0.5 * math.log2(math.e)
    sc = k.salloc()
    k.I("s_mov_b32", s(sc), hex(f32(cs)))
    k.I("v_mul_f32", v(mx), hex(f32(-cs)), v(mx))
    for kp in range(3, 6): vread(kp)
    P = k.valloc(36, 4)
    k.I("v_mov_b32", v(P + 34), 0); k.I("v_mov_b32", v(P + 35), 0)
    O = [k.valloc(4), k.valloc(4)]
    def softmax_tile(j):
        for i in range(4): k.I("v_fma_f32", v(S + 4 * j + i), v(S + 4 * j + i), s(sc), v(mx))
        for i in range(4): k.I("v_exp_f32", v(S + 4 * j + i), v(S + 4 * j + i))
    def pack_tile(j):
        k.I("v_cvt_pk_bf16_f32", v(P + 2 * j), v(S + 4 * j), v(S + 4 * j + 1))
        k.I("v_cvt_pk_bf16_f32", v(P + 2 * j + 1), v(S + 4 * j + 2), v(S + 4 * j + 3))
    for kp in range(9):
        tiles = [2 * kp, 2 * kp + 1] if kp < 8 else [16]
        for j in tiles: softmax_tile(j)
        for j in tiles: pack_tile(j)
        if kp == 2:
            for q in range(6, 9): vread(q)
        if kp >= 1:
            q = kp - 1
            k.wait_lg(("v", q))
            for dt in range(2):
                k.I("v_mfma_f32_16x16x32_bf16", vr(O[dt], 4), vr(vf + (q * 2 + dt) * 4, 4), vr(P + 4 * q, 4), 0 if q == 0 else vr(O[dt], 4))
    k.wait_lg(("v", 8))
    for dt in range(2):
        k.I("v_mfma_f32_16x16x32_bf16", vr(O[dt], 4), vr(vf + (8 * 2 + dt) * 4, 4), vr(P + 32, 4), vr(O[dt], 4))
    la = k.valloc(); lb = k.valloc()
    k.I("v_mov_b32", v(la), v(O[1])); k.I("v_mov_b32", v(lb), v(O[1]))
    k.I("v_permlane32_swap_b32", v(la), v(lb))
    k.I("v_mov_b32", v(la), v(lb))
    k.I("v_permlane16_swap_b32", v(la), v(lb))
    k.I("v_rcp_f32", v(lb), v(lb))
    for dt in range(2):
        for i in range(4): k.I("v_mul_f32", v(O[dt] + i), v(O[dt] + i), v(lb))
    pk = k.valloc(4)
    for dt in range(2):
        k.I("v_cvt_pk_bf16_f32", v(pk + 2 * dt), v(O[dt]), v(O[dt] + 1))
        k.I("v_cvt_pk_bf16_f32", v(pk + 2 * dt + 1), v(O[dt] + 2), v(O[dt] + 3))
    k.I("v_cmp_gt_u32", "vcc", 3, v(gg))
    k.I("v_cndmask_b32", v(pk + 2), 0, v(pk + 2), "vcc")
    k.I("v_cndmask_b32", v(pk + 3), 0, v(pk + 3), "vcc")
    vo = k.valloc()
    k.I("s_and_b32", s(st0), s(swave), 1)
    k.I("s_lshl_b32", s(st0), s(st0), 8)
    k.I("v_lshlrev_b32", v(vo), 4, v(l15))
    k.I("v_add_u32", v(vo), s(st0), v(vo))
    k.I("v_lshrrev_b32", v(t0), 1, v(gg))
    k.I("v_lshl_add_u32", v(vo), v(t0), 9, v(vo))
    k.I("v_and_b32", v(t0), 1, v(gg))
    k.I("v_lshl_add_u32", v(vo), v(t0), 3, v(vo))
    k.I("s_lshl_b32", s(st0), s(srb), 2)
    k.I("s_lshr_b32", s(st1), s(swave), 1)
    k.I("s_add_u32", s(st0), s(st0), s(st1))
    k.I("s_lshl_b32", s(st0), s(st0), 15)
    k.I("s_lshl_b32", s(st1), s(shd), 11)
    k.I("s_add_u32", s(st0), s(st0), s(st1))
    k.I("s_add_u32", s(soff), s(st0), hex(O_OFF))
    for dt in range(2):
        k.I("buffer_store_dwordx2", vr(pk + 2 * dt, 2), v(vo), sr(sWS, 4), s(soff), mods=f"offen offset:{dt * 1024}")
    stp.stamp(2)
    k.L(done)
    k.I("s_endpgm")
    k.lds = lds; k.threads = 512; k.grid = 256
    return k


def common_start(k, nwg):
    k.snext = 4; k.vnext = 1
    done = k.newlabel("done")
    k.I("s_cmp_ge_u32", "s2", nwg)
    k.I("s_cbranch_scc1", done)
    R = dict(done=done)
    R["swave"] = k.salloc(); R["st0"] = k.salloc(); R["st1"] = k.salloc(); R["soff"] = k.salloc()
    R["lane"] = k.valloc(); R["t0"] = k.valloc(); R["t1"] = k.valloc(); R["t2"] = k.valloc()
    k.I("v_lshrrev_b32", v(R["t0"]), 6, "v0")
    k.I("v_and_b32", v(R["lane"]), 63, "v0")
    k.I("v_readfirstlane_b32", s(R["swave"]), v(R["t0"]))
    return R

def interleave(k, mf, fl):
    n = len(fl); m = len(mf)
    cuts = [(i * n + m - 1) // m for i in range(m + 1)]
    cuts[-1] = n
    for i in range(m):
        mf[i]()
        for f in fl[cuts[i]:cuts[i + 1]]: f()

def stats_from_packed(k, P, n, accs, accq, tmp):
    for j in range(n):
        t = tmp[j % len(tmp)]
        k.I("v_lshlrev_b32", v(t), 16, v(P + j))
        k.I("v_and_b32", v(t + 1), "0xffff0000", v(P + j))
        if j == 0:
            k.I("v_pk_mul_f32", vr(accq, 2), vr(t, 2), vr(t, 2))
            k.I("v_mov_b32", v(accs), v(t)); k.I("v_mov_b32", v(accs + 1), v(t + 1))
        else:
            k.I("v_pk_add_f32", vr(accs, 2), vr(accs, 2), vr(t, 2))
            k.I("v_pk_fma_f32", vr(accq, 2), vr(t, 2), vr(t, 2), vr(accq, 2))
    k.I("v_add_f32", v(accs), v(accs), v(accs + 1))
    k.I("v_add_f32", v(accq), v(accq), v(accq + 1))
    for r_ in (accs, accq):
        k.I("v_mov_b32", v(r_ + 1), v(r_))
        k.I("v_permlane32_swap_b32", v(r_), v(r_ + 1))
        k.I("v_add_f32", v(r_), v(r_), v(r_ + 1))

def gen_k3(Stamper):
    k = Kernel("k3_wo_kernel")
    WREG = 0; OREG = 58368
    lds = OREG + 65536
    R = common_start(k, 256)
    swave, st0, st1, soff, lane, t0, t1, t2 = (R[x] for x in ("swave", "st0", "st1", "soff", "lane", "t0", "t1", "t2"))
    pX = k.salloc(2); pWo = k.salloc(2); pWin = k.salloc(2); pWS = k.salloc(2)
    k.I("s_load_dwordx2", sr(pX, 2), "s[0:1]", 0)
    k.I("s_load_dwordx2", sr(pWo, 2), "s[0:1]", 16)
    k.I("s_load_dwordx2", sr(pWin, 2), "s[0:1]", 32)
    k.I("s_load_dwordx2", sr(pWS, 2), "s[0:1]", 80)
    sWS = k.salloc(4); sWo = k.salloc(4); sX = k.salloc(4)
    sj = k.salloc(); sidx = k.salloc(); srt = k.salloc(); snt = k.salloc(); sw3 = k.salloc()
    k.I("s_and_b32", s(sj), "s2", 7)
    k.I("s_lshr_b32", s(sidx), "s2", 3)
    k.I("s_and_b32", s(sw3), s(swave), 3)
    stp = Stamper(k, 2, sWS, swave)
    aux = k.newlabel("aux")
    k.I("s_cmp_ge_u32", s(sidx), 28)
    k.I("s_cbranch_scc1", aux)
    k.I("s_mul_i32", s(st0), s(sidx), 37)
    k.I("s_lshr_b32", s(st0), s(st0), 8)
    k.I("s_mul_i32", s(st1), s(st0), 7)
    k.I("s_sub_u32", s(snt), s(sidx), s(st1))
    k.I("s_lshl_b32", s(srt), s(sj), 2)
    k.I("s_add_u32", s(srt), s(srt), s(st0))
    k.I("s_waitcnt", "lgkmcnt(0)")
    srd(k, sWS, pWS, WS_SIZE)
    comp = k.newlabel("compute")
    k.I("s_cmp_lt_u32", s(swave), 4)
    k.I("s_cbranch_scc1", comp)
    vsave = k.vnext
    srd(k, sWo, pWo, 448 * 896)
    v16 = k.valloc(); vWo = k.valloc()
    k.I("v_lshlrev_b32", v(v16), 4, v(lane))
    k.I("v_lshrrev_b32", v(t0), 3, v(lane))
    k.I("v_mul_u32_u24", v(t0), 896, v(t0))
    k.I("v_bfe_u32", v(t1), v(lane), 4, 1)
    k.I("v_lshlrev_b32", v(t1), 2, v(t1))
    k.I("v_and_b32", v(t2), 7, v(lane))
    k.I("v_xor_b32", v(t1), v(t1), v(t2))
    k.I("v_lshl_add_u32", v(vWo), v(t1), 4, v(t0))
    sOb = k.salloc(); sWb = k.salloc(); smO = k.salloc(); smW = k.salloc()
    k.I("s_lshl_b32", s(sOb), s(srt), 16)
    k.I("s_lshl_b32", s(st0), s(sw3), 10)
    k.I("s_add_u32", s(sOb), s(sOb), s(st0))
    k.I("s_add_u32", s(sOb), s(sOb), hex(O_OFF))
    k.I("s_add_u32", s(smO), s(st0), OREG)
    k.I("s_mul_i32", s(sWb), s(sw3), 8 * 896)
    k.I("s_lshl_b32", s(st1), s(snt), 7)
    k.I("s_add_u32", s(sWb), s(sWb), s(st1))
    k.I("s_add_u32", s(smW), s(st0), WREG)
    def issue(c):
        for r2 in range(2):
            k.I("s_add_u32", s(soff), s(sOb), hex(r2 * 32768 + c * 4096))
            k.I("s_add_u32", "m0", s(smO), hex(r2 * 32768 + c * 4096))
            k.vm(("S", c), "buffer_load_dwordx4", v(v16), sr(sWS, 4), s(soff), mods="offen lds")
        for i in range(2):
            k.I("s_add_u32", s(soff), s(sWb), hex((56 * c + 32 * i) * 896))
            k.I("s_add_u32", "m0", s(smW), hex((56 * c + 32 * i) * 128))
            k.vm(("S", c), "buffer_load_dwordx4", v(vWo), sr(sWo, 4), s(soff), mods="offen lds")
    LA = 3
    for c in range(LA): issue(c)
    for c in range(8):
        k.wait_vm(("S", c))
        k.I("s_barrier")
        if c + LA < 8: issue(c + LA)
    k.I("s_endpgm")
    k.L(comp)
    k.vnext = vsave; k.vmq = []; k.lgq = []
    srd(k, sX, pX, 2048 * 896)
    l31 = k.valloc(); hh = k.valloc()
    k.I("v_and_b32", v(l31), 31, v(lane))
    k.I("v_lshrrev_b32", v(hh), 5, v(lane))
    srh = k.salloc(); snh = k.salloc(); sst = k.salloc(); sntile = k.salloc()
    k.I("s_and_b32", s(srh), s(swave), 1)
    k.I("s_lshr_b32", s(snh), s(swave), 1)
    k.I("s_lshl_b32", s(sst), s(srt), 1)
    k.I("s_add_u32", s(sst), s(sst), s(srh))
    k.I("s_lshl_b32", s(sntile), s(snt), 1)
    k.I("s_add_u32", s(sntile), s(sntile), s(snh))
    xr = k.valloc(8, 4); vx = k.valloc()
    k.I("v_mul_u32_u24", v(vx), 896, v(l31))
    k.I("v_lshl_add_u32", v(vx), v(hh), 3, v(vx))
    k.I("s_mul_i32", s(soff), s(sst), 32 * 896)
    k.I("s_lshl_b32", s(st0), s(sntile), 6)
    k.I("s_add_u32", s(soff), s(soff), s(st0))
    for q in range(4):
        k.vm("x", "buffer_load_dwordx2", vr(xr + 2 * q, 2), v(vx), sr(sX, 4), s(soff), mods=f"offen offset:{16 * q}")
    stp.stamp(0)
    aO = k.valloc(); vW = k.valloc()
    k.I("v_lshlrev_b32", v(aO), 4, v(lane))
    k.I("s_lshl_b32", s(st0), s(srh), 15)
    k.I("s_add_u32", s(st0), s(st0), OREG)
    k.I("v_add_u32", v(aO), s(st0), v(aO))
    k.I("v_bfe_u32", v(t0), v(lane), 2, 2)
    k.I("v_lshl_add_u32", v(t0), v(hh), 3, v(t0))
    k.I("v_lshlrev_b32", v(vW), 7, v(t0))
    k.I("v_bfe_u32", v(t0), v(lane), 4, 1)
    k.I("v_lshlrev_b32", v(t0), 1, v(t0))
    k.I("v_bfe_u32", v(t1), v(lane), 1, 1)
    k.I("v_add_u32", v(t0), v(t0), v(t1))
    k.I("s_lshl_b32", s(st0), s(snh), 2)
    k.I("v_add_u32", v(t0), s(st0), v(t0))
    k.I("v_bfe_u32", v(t1), v(lane), 3, 1)
    k.I("v_lshlrev_b32", v(t1), 2, v(t1))
    k.I("v_xor_b32", v(t0), v(t0), v(t1))
    k.I("v_lshl_add_u32", v(vW), v(t0), 4, v(vW))
    k.I("v_and_b32", v(t0), 1, v(lane))
    k.I("v_lshl_add_u32", v(vW), v(t0), 3, v(vW))
    acc = k.valloc(16, 4)
    NB = 3
    of = [k.valloc(4) for _ in range(NB)]; wf = [k.valloc(4) for _ in range(NB)]
    def rl(ks):
        b = ks % NB
        out = [lambda: k.lg(("f", ks), "ds_read_b128", vr(of[b], 4), v(aO), mods=f"offset:{ks * 1024}")]
        for beta in range(2):
            o = (28 * (ks >> 1) + 16 * (ks & 1) + 4 * beta) * 128
            out.append(lambda o=o, beta=beta: k.lg(("f", ks), "ds_read_b64_tr_b16", vr(wf[b] + 2 * beta, 2), v(vW), mods=f"offset:{o}"))
        return out
    k.I("s_barrier")
    stp.stamp(1)
    for f in rl(0) + rl(1): f()
    for ks in range(32):
        c, j = ks // 4, ks % 4
        b = ks % NB
        k.wait_lg(("f", ks))
        k.I("v_mfma_f32_32x32x16_bf16", vr(acc, 16), vr(wf[b], 4), vr(of[b], 4), 0 if ks == 0 else vr(acc, 16))
        if j == 1 and c < 7: k.I("s_barrier")
        if ks + 2 < 32 and not (j == 1 and False):
            pass
        nxt = ks + 2
        if nxt < 32:
            for f in rl(nxt): f()
    EOF_MARK = None
    stp.stamp(2)
    k.wait_vm("x")
    tmp = [k.valloc(2) for _ in range(4)]
    for q in range(4):
        for d in range(2):
            t = tmp[(2 * q + d) % 4]
            k.I("v_lshlrev_b32", v(t), 16, v(xr + 2 * q + d))
            k.I("v_and_b32", v(t + 1), "0xffff0000", v(xr + 2 * q + d))
            k.I("v_pk_add_f32", vr(acc + 4 * q + 2 * d, 2), vr(acc + 4 * q + 2 * d, 2), vr(t, 2))
    P = k.valloc(8, 4)
    for j in range(8): k.I("v_cvt_pk_bf16_f32", v(P + j), v(acc + 2 * j), v(acc + 2 * j + 1))
    v16 = k.valloc()
    k.I("v_lshlrev_b32", v(v16), 4, v(lane))
    k.I("s_mul_i32", s(soff), s(sst), 28 * 1024)
    k.I("s_lshl_b32", s(st0), s(sntile), 11)
    k.I("s_add_u32", s(soff), s(soff), s(st0))
    k.I("s_add_u32", s(soff), s(soff), hex(H_OFF))
    k.I("buffer_store_dwordx4", vr(P, 4), v(v16), sr(sWS, 4), s(soff), mods="offen")
    k.I("buffer_store_dwordx4", vr(P + 4, 4), v(v16), sr(sWS, 4), s(soff), mods="offen offset:1024")
    accs = k.valloc(2); accq = k.valloc(2)
    stats_from_packed(k, P, 8, accs, accq, tmp)
    k.I("v_mov_b32", v(accs + 1), v(accq))
    vh = k.valloc()
    k.I("v_mul_u32_u24", v(vh), 112, v(l31))
    k.I("s_mul_i32", s(soff), s(sst), 32 * 112)
    k.I("s_lshl_b32", s(st0), s(sntile), 3)
    k.I("s_add_u32", s(soff), s(soff), s(st0))
    k.I("s_add_u32", s(soff), s(soff), hex(HS_OFF))
    k.I("s_mov_b32", "exec_hi", 0)
    k.I("buffer_store_dwordx2", vr(accs, 2), v(vh), sr(sWS, 4), s(soff), mods="offen")
    stp.stamp(3)
    k.I("s_endpgm")
    k.L(aux)
    k.vnext = vsave; k.vmq = []; k.lgq = []
    sa = k.salloc(); sWin = k.salloc(4)
    k.I("s_sub_u32", s(sa), s(sidx), 28)
    k.I("s_lshl_b32", s(sa), s(sa), 3)
    k.I("s_add_u32", s(sa), s(sa), s(sj))
    k.I("s_waitcnt", "lgkmcnt(0)")
    srd(k, sWS, pWS, WS_SIZE)
    ff = k.valloc(4)
    for i in range(4): k.I("v_mov_b32", v(ff + i), -1)
    k.I("v_lshlrev_b32", v(t1), 4, "v0")
    k.I("v_mov_b32", v(t2), "0x7fffff00")
    k.I("v_cmp_gt_u32", "vcc", 448, "v0")
    k.I("v_cndmask_b32", v(t1), v(t2), v(t1), "vcc")
    k.I("s_mul_i32", s(st0), s(sa), 7168)
    k.I("s_add_u32", s(st0), s(st0), hex(EX_OFF))
    k.I("buffer_store_dwordx4", vr(ff, 4), v(t1), sr(sWS, 4), s(st0), mods="offen")
    k.I("s_cmp_ge_u32", s(sa), 28)
    k.I("s_cbranch_scc1", R["done"])
    srd(k, sWin, pWin, 448 * 3584)
    vg = k.valloc()
    k.I("v_lshrrev_b32", v(t0), 3, v(lane))
    k.I("v_mul_u32_u24", v(t0), 3584, v(t0))
    k.I("v_bfe_u32", v(t1), v(lane), 4, 1)
    k.I("v_lshlrev_b32", v(t1), 2, v(t1))
    k.I("v_and_b32", v(t2), 7, v(lane))
    k.I("v_xor_b32", v(t1), v(t1), v(t2))
    k.I("v_lshl_add_u32", v(vg), v(t1), 4, v(t0))
    sb = k.salloc(); sm = k.salloc()
    k.I("s_mul_i32", s(sb), s(swave), 56 * 3584)
    k.I("s_lshl_b32", s(st0), s(sa), 7)
    k.I("s_add_u32", s(sb), s(sb), s(st0))
    k.I("s_mul_i32", s(sm), s(swave), 56 * 128)
    for i in range(7):
        k.I("s_add_u32", s(soff), s(sb), hex(i * 8 * 3584))
        k.I("s_add_u32", "m0", s(sm), hex(i * 1024))
        k.I("buffer_load_dwordx4", v(vg), sr(sWin, 4), s(soff), mods="offen lds")
    z = k.valloc(); TB = 57344
    k.I("v_mov_b32", v(z), 0)
    k.I("v_lshlrev_b32", v(t0), 2, v(lane))
    k.I("v_add_u32", v(t0), TB, v(t0))
    k.I("ds_write_b32", v(t0), v(z))
    gg = k.valloc(); vB = k.valloc(); ones = k.valloc(4)
    k.I("v_lshrrev_b32", v(gg), 4, v(lane))
    k.I("v_bfe_u32", v(t0), v(lane), 2, 2)
    k.I("v_lshl_add_u32", v(t0), v(gg), 3, v(t0))
    k.I("v_lshlrev_b32", v(vB), 7, v(t0))
    k.I("v_bfe_u32", v(t0), v(lane), 1, 1)
    k.I("s_lshl_b32", s(st0), s(sw3), 1)
    k.I("v_add_u32", v(t0), s(st0), v(t0))
    k.I("v_bfe_u32", v(t1), v(lane), 3, 1)
    k.I("v_lshlrev_b32", v(t1), 2, v(t1))
    k.I("v_xor_b32", v(t0), v(t0), v(t1))
    k.I("v_lshl_add_u32", v(vB), v(t0), 4, v(vB))
    k.I("v_and_b32", v(t0), 1, v(lane))
    k.I("v_lshl_add_u32", v(vB), v(t0), 3, v(vB))
    k.I("s_lshr_b32", s(st0), s(swave), 2)
    k.I("s_mul_i32", s(st0), s(st0), 224 * 128)
    k.I("v_add_u32", v(vB), s(st0), v(vB))
    for i in range(4): k.I("v_mov_b32", v(ones + i), "0x3f803f80")
    k.I("s_waitcnt", "vmcnt(0) lgkmcnt(0)")
    k.I("s_barrier")
    bf = [k.valloc(4) for _ in range(7)]
    for kk in range(7):
        for beta in range(2):
            k.I("ds_read_b64_tr_b16", vr(bf[kk] + 2 * beta, 2), v(vB), mods=f"offset:{(32 * kk + 4 * beta) * 128}")
    ca = k.valloc(4)
    k.I("s_waitcnt", "lgkmcnt(0)")
    for kk in range(7):
        k.I("v_mfma_f32_16x16x32_bf16", vr(ca, 4), vr(ones, 4), vr(bf[kk], 4), 0 if kk == 0 else vr(ca, 4))
    k.I("v_and_b32", v(t0), 15, v(lane))
    k.I("s_lshl_b32", s(st0), s(sw3), 6)
    k.I("s_add_u32", s(st0), s(st0), TB)
    k.I("v_lshlrev_b32", v(t0), 2, v(t0))
    k.I("v_add_u32", v(t0), s(st0), v(t0))
    k.I("s_mov_b32", "exec_lo", "0xffff")
    k.I("s_mov_b32", "exec_hi", 0)
    k.I("ds_add_f32", v(t0), v(ca))
    k.I("s_mov_b64", "exec", -1)
    k.I("s_waitcnt", "lgkmcnt(0)")
    k.I("s_barrier")
    k.I("s_cmp_lg_u32", s(swave), 0)
    k.I("s_cbranch_scc1", R["done"])
    k.I("v_lshlrev_b32", v(t0), 2, v(lane))
    k.I("v_add_u32", v(t1), TB, v(t0))
    k.I("ds_read_b32", v(z), v(t1))
    k.I("s_lshl_b32", s(st0), s(sa), 8)
    k.I("s_add_u32", s(st0), s(st0), hex(CW_OFF))
    k.I("s_waitcnt", "lgkmcnt(0)")
    k.I("buffer_store_dword", v(z), v(t0), sr(sWS, 4), s(st0), mods="offen")
    k.L(R["done"])
    k.I("s_endpgm")
    k.lds = lds; k.threads = 512; k.grid = 256
    return k


GELU_C0 = -2.0 * math.sqrt(2.0 / math.pi) * math.log2(math.e)
GELU_C1 = GELU_C0 * 0.044715

def gen_k4(Stamper):
    k = Kernel("k4_win_kernel")
    NS = 4; SLOT = 32768; TRB = NS * SLOT
    STB = TRB
    lds = TRB + 4096
    R = common_start(k, 224)
    swave, st0, st1, soff, lane, t0, t1, t2 = (R[x] for x in ("swave", "st0", "st1", "soff", "lane", "t0", "t1", "t2"))
    pWin = k.salloc(2); pWS = k.salloc(2)
    k.I("s_load_dwordx2", sr(pWin, 2), "s[0:1]", 32)
    k.I("s_load_dwordx2", sr(pWS, 2), "s[0:1]", 80)
    sWS = k.salloc(4); sWin = k.salloc(4)
    sj = k.salloc(); sidx = k.salloc(); srb = k.salloc(); sct = k.salloc(); sw3 = k.salloc()
    k.I("s_and_b32", s(sj), "s2", 7)
    k.I("s_lshr_b32", s(sidx), "s2", 3)
    k.I("s_and_b32", s(sw3), s(swave), 3)
    k.I("s_cmp_ge_u32", s(sidx), 14)
    k.I("s_cselect_b32", s(st0), 1, 0)
    k.I("s_mul_i32", s(st1), s(st0), 14)
    k.I("s_sub_u32", s(sct), s(sidx), s(st1))
    k.I("s_lshl_b32", s(srb), s(sj), 1)
    k.I("s_add_u32", s(srb), s(srb), s(st0))
    stp = Stamper(k, 3, sWS, swave)
    k.I("s_waitcnt", "lgkmcnt(0)")
    srd(k, sWS, pWS, WS_SIZE)
    comp = k.newlabel("compute")
    k.I("s_cmp_lt_u32", s(swave), 4)
    k.I("s_cbranch_scc1", comp)
    vsave = k.vnext
    srd(k, sWin, pWin, 448 * 3584)
    v16 = k.valloc(); vWo = k.valloc()
    k.I("v_lshlrev_b32", v(v16), 4, v(lane))
    k.I("v_lshrrev_b32", v(t0), 4, v(lane))
    k.I("v_lshlrev_b32", v(t1), 2, v(t0))
    k.I("v_and_b32", v(t2), 15, v(lane))
    k.I("v_xor_b32", v(t1), v(t1), v(t2))
    k.I("v_mul_u32_u24", v(vWo), 3584, v(t0))
    k.I("v_and_b32", v(t2), 7, v(t1))
    k.I("v_lshl_add_u32", v(vWo), v(t2), 4, v(vWo))
    k.I("v_add_u32", v(t2), 1792, v(vWo))
    k.I("v_cmp_gt_u32", "vcc", 8, v(t1))
    k.I("v_cndmask_b32", v(vWo), v(vWo), v(t2), "vcc")
    sHb = k.salloc(); sWb = k.salloc(); smH = k.salloc(); smW = k.salloc()
    k.I("s_lshl_b32", s(st0), s(srb), 2)
    k.I("s_add_u32", s(st0), s(st0), s(sw3))
    k.I("s_mul_i32", s(sHb), s(st0), 28 * 1024)
    k.I("s_add_u32", s(sHb), s(sHb), hex(H_OFF))
    k.I("s_lshl_b32", s(smH), s(sw3), 12)
    k.I("s_mul_i32", s(sWb), s(sw3), 16 * 3584)
    k.I("s_lshl_b32", s(st1), s(sct), 7)
    k.I("s_add_u32", s(sWb), s(sWb), s(st1))
    k.I("s_add_u32", s(smW), s(smH), 16384)
    def issue(c):
        sl = (c % NS) * SLOT
        for i in range(4):
            k.I("s_add_u32", s(soff), s(sHb), hex((4 * c + i) * 1024))
            k.I("s_add_u32", "m0", s(smH), hex(sl + i * 1024))
            k.vm(("S", c), "buffer_load_dwordx4", v(v16), sr(sWS, 4), s(soff), mods="offen lds")
        for i in range(4):
            k.I("s_add_u32", s(soff), s(sWb), hex((64 * c + 4 * i) * 3584))
            k.I("s_add_u32", "m0", s(smW), hex(sl + i * 1024))
            k.vm(("S", c), "buffer_load_dwordx4", v(vWo), sr(sWin, 4), s(soff), mods="offen lds")
    issue(0); issue(1)
    for c in range(7):
        k.wait_vm(("S", c))
        k.I("s_barrier")
        if c == 0: issue(2); issue(3)
        elif c + 2 < 7 and c >= 2: issue(c + 2)
    k.I("s_barrier")
    k.I("s_endpgm")
    k.L(comp)
    k.vnext = vsave; k.vmq = []; k.lgq = []
    l31 = k.valloc(); hh = k.valloc()
    k.I("v_and_b32", v(l31), 31, v(lane))
    k.I("v_lshrrev_b32", v(hh), 5, v(lane))
    srh = k.salloc(); sch = k.salloc(); sst = k.salloc()
    k.I("s_and_b32", s(srh), s(swave), 1)
    k.I("s_lshr_b32", s(sch), s(swave), 1)
    k.I("s_lshl_b32", s(sst), s(srb), 2)
    k.I("s_lshl_b32", s(st0), s(srh), 1)
    k.I("s_add_u32", s(sst), s(sst), s(st0))
    hs = [k.valloc(16, 4) for _ in range(2)]
    vh = k.valloc()
    k.I("v_mul_u32_u24", v(vh), 112, v(l31))
    k.I("v_lshl_add_u32", v(vh), v(hh), 6, v(vh))
    for t in range(2):
        k.I("s_add_u32", s(st0), s(sst), t)
        k.I("s_mul_i32", s(soff), s(st0), 32 * 112)
        k.I("s_add_u32", s(soff), s(soff), hex(HS_OFF))
        for i in range(4):
            k.vm("hs", "buffer_load_dwordx4", vr(hs[t] + 4 * i, 4), v(vh), sr(sWS, 4), s(soff), mods=f"offen offset:{16 * i}")
    cw = [k.valloc(16, 4) for _ in range(2)]
    vc = k.valloc()
    k.I("v_lshlrev_b32", v(vc), 4, v(hh))
    k.I("s_lshl_b32", s(st0), s(sct), 8)
    k.I("s_lshl_b32", s(st1), s(sch), 7)
    k.I("s_add_u32", s(st0), s(st0), s(st1))
    for z in range(2):
        k.I("s_add_u32", s(soff), s(st0), hex(CW_OFF + (896 * 4 if z == 0 else 0)))
        for q in range(4):
            k.vm("cw", "buffer_load_dwordx4", vr(cw[z] + 4 * q, 4), v(vc), sr(sWS, 4), s(soff), mods=f"offen offset:{32 * q}")
    if os.environ.get("PF2", "1") == "1":
        pp = k.salloc(2); sP = k.salloc(4); vT = k.valloc(); vd = k.valloc(2)
        k.I("s_load_dwordx2", sr(pp, 2), "s[0:1]", 40)
        k.I("s_lshl_b32", s(st0), s(sidx), 8)
        k.I("v_add_u32", v(vT), s(st0), "v0")
        k.I("s_waitcnt", "lgkmcnt(0)")
        srd(k, sP, pp, 2048 * 4096)
        k.I("s_lshr_b32", s(st0), s(sj), 1)
        k.I("s_lshl_b32", s(st0), s(st0), 21)
        k.I("s_and_b32", s(st1), s(sj), 1)
        k.I("s_lshl_b32", s(st1), s(st1), 11)
        k.I("s_add_u32", s(st0), s(st0), s(st1))
        for i in range(2):
            k.I("v_add_u32", v(t0), 7168 * i, v(vT))
            k.I("v_lshrrev_b32", v(t1), 4, v(t0))
            k.I("v_lshlrev_b32", v(t1), 12, v(t1))
            k.I("v_and_b32", v(t2), 15, v(t0))
            k.I("v_lshl_add_u32", v(t1), v(t2), 7, v(t1))
            if i == 1:
                k.I("v_mov_b32", v(t2), "0x7fffff00")
                k.I("v_cmp_gt_u32", "vcc", 8192, v(t0))
                k.I("v_cndmask_b32", v(t1), v(t2), v(t1), "vcc")
            k.vm("pf", "buffer_load_dword", v(vd + i), v(t1), sr(sP, 4), s(st0), mods="offen")
    stp.stamp(0)
    aH = k.valloc(); vW = [k.valloc(), k.valloc()]
    k.I("v_lshlrev_b32", v(aH), 4, v(lane))
    k.I("s_lshl_b32", s(st0), s(srh), 13)
    k.I("v_add_u32", v(aH), s(st0), v(aH))
    k.I("v_bfe_u32", v(t0), v(lane), 2, 2)
    k.I("v_lshl_add_u32", v(t1), v(hh), 2, v(t0))
    k.I("v_lshlrev_b32", v(t1), 8, v(t1))
    k.I("v_add_u32", v(t1), 16384, v(t1))
    k.I("v_bfe_u32", v(t2), v(lane), 4, 1)
    k.I("v_lshlrev_b32", v(t2), 1, v(t2))
    k.I("v_bfe_u32", v(vW[0]), v(lane), 1, 1)
    k.I("v_add_u32", v(t2), v(t2), v(vW[0]))
    k.I("s_lshl_b32", s(st0), s(sch), 2)
    k.I("v_add_u32", v(t2), s(st0), v(t2))
    k.I("v_lshlrev_b32", v(t0), 2, v(t0))
    k.I("v_xor_b32", v(vW[0]), v(t2), v(t0))
    k.I("v_add_u32", v(t2), 8, v(t2))
    k.I("v_xor_b32", v(vW[1]), v(t2), v(t0))
    k.I("v_and_b32", v(t2), 1, v(lane))
    for z in range(2):
        k.I("v_lshl_add_u32", v(vW[z]), v(vW[z]), 4, v(t1))
        k.I("v_lshl_add_u32", v(vW[z]), v(t2), 3, v(vW[z]))
    aH2 = k.valloc(); vW2 = [k.valloc(), k.valloc()]
    k.I("v_add_u32", v(aH2), 65536, v(aH))
    for z in range(2): k.I("v_add_u32", v(vW2[z]), 65536, v(vW[z]))
    acc = [[k.valloc(16, 4) for _ in range(2)] for _ in range(2)]
    vmark = k.vnext
    NB = 3
    hf = [[k.valloc(4) for _ in range(2)] for _ in range(NB)]
    wf = [[k.valloc(4) for _ in range(2)] for _ in range(NB)]
    def rl(ks):
        c, j = ks // 4, ks % 4
        b = ks % NB
        sl = (c % NS) * SLOT
        hi = sl >= 65536
        so = sl - (65536 if hi else 0)
        out = []
        for t in range(2):
            out.append(lambda t=t: k.lg(("f", ks), "ds_read_b128", vr(hf[b][t], 4), v(aH2 if hi else aH), mods=f"offset:{so + t * 4096 + j * 1024}"))
        for z in range(2):
            for beta in range(2):
                o = so + (16 * j + 8 * beta) * 256
                out.append(lambda o=o, z=z, beta=beta: k.lg(("f", ks), "ds_read_b64_tr_b16", vr(wf[b][z] + 2 * beta, 2), v((vW2 if hi else vW)[z]), mods=f"offset:{o}"))
        return out
    k.I("s_barrier")
    stp.stamp(1)
    for f in rl(0) + rl(1): f()
    for ks in range(28):
        c, j = ks // 4, ks % 4
        b = ks % NB
        k.wait_lg(("f", ks))
        mf = []
        for z in range(2):
            for t in range(2):
                mf.append(lambda z=z, t=t: k.I("v_mfma_f32_32x32x16_bf16", vr(acc[z][t], 16), vr(wf[b][z], 4), vr(hf[b][t], 4), 0 if ks == 0 else vr(acc[z][t], 16)))
        if j == 2 and c < 6:
            pass
        fl = rl(ks + 2) if ks + 2 < 28 else []
        if j == 2 and ks + 2 < 28:
            k.I("s_barrier")
        interleave(k, mf, fl)
    stp.stamp(2)
    k.vnext = vmark
    k.wait_vm(["hs", "cw"])
    rr = [k.valloc(2) for _ in range(2)]; nm = [k.valloc(2) for _ in range(2)]
    c0r = [k.valloc(2) for _ in range(2)]; c1r = [k.valloc(2) for _ in range(2)]
    k.I("v_cmp_eq_u32", "vcc", 0, v(hh))
    for t in range(2):
        H = hs[t]
        for i in range(12, 16): k.I("v_cndmask_b32", v(H + i), 0, v(H + i), "vcc")
        for i in range(4): k.I("v_pk_add_f32", vr(H + 2 * i, 2), vr(H + 2 * i, 2), vr(H + 8 + 2 * i, 2))
        for i in range(2): k.I("v_pk_add_f32", vr(H + 2 * i, 2), vr(H + 2 * i, 2), vr(H + 4 + 2 * i, 2))
        k.I("v_pk_add_f32", vr(H, 2), vr(H, 2), vr(H + 2, 2))
        for e in range(2):
            k.I("v_mov_b32", v(H + 2), v(H + e))
            k.I("v_permlane32_swap_b32", v(H + e), v(H + 2))
            k.I("v_add_f32", v(H + e), v(H + e), v(H + 2))
        k.I("v_mul_f32", v(nm[t]), hex(f32(-1.0 / 448)), v(H))
        k.I("v_mul_f32", v(H + 1), hex(f32(1.0 / 448)), v(H + 1))
        k.I("v_fma_f32", v(H + 1), f"-{v(nm[t])}", v(nm[t]), v(H + 1))
        k.I("v_max_f32", v(H + 1), 0, v(H + 1))
        k.I("v_add_f32", v(H + 1), hex(f32(1e-5)), v(H + 1))
        k.I("v_rsq_f32", v(rr[t]), v(H + 1))
        k.I("v_mul_f32", v(c0r[t]), hex(f32(GELU_C0)), v(rr[t]))
        k.I("v_mul_f32", v(c1r[t]), v(rr[t]), v(rr[t]))
        k.I("v_mul_f32", v(c1r[t]), v(c1r[t]), v(rr[t]))
        k.I("v_mul_f32", v(c1r[t]), hex(f32(GELU_C1)), v(c1r[t]))
    norh = k.newlabel("norh")
    k.I("s_or_b32", s(st0), s(sct), s(sch))
    k.I("s_cmp_lg_u32", s(st0), 0)
    k.I("s_cbranch_scc1", norh)
    k.I("v_lshlrev_b32", v(t0), 2, v(l31))
    for t in range(2):
        k.I("s_add_u32", s(st0), s(sst), t)
        k.I("s_lshl_b32", s(st0), s(st0), 7)
        k.I("s_add_u32", s(st0), s(st0), hex(RH_OFF))
        k.I("buffer_store_dword", v(rr[t]), v(t0), sr(sWS, 4), s(st0), mods="offen")
    k.L(norh)
    tp = [k.valloc(2) for _ in range(4)]
    def gelu_tile(A, z, t):
        for j in range(8):
            k.I("v_pk_fma_f32", vr(A + 2 * j, 2), vr(cw[z] + 2 * j, 2), vr(nm[t], 2), vr(A + 2 * j, 2), mods="op_sel_hi:[1,0,1]")
        for j0 in range(0, 8, 4):
            for j in range(j0, j0 + 4):
                T = tp[j - j0]
                k.I("v_pk_mul_f32", vr(T, 2), vr(A + 2 * j, 2), vr(A + 2 * j, 2))
            for j in range(j0, j0 + 4):
                T = tp[j - j0]
                k.I("v_pk_fma_f32", vr(T, 2), vr(T, 2), vr(c1r[t], 2), vr(c0r[t], 2), mods="op_sel_hi:[1,0,0]")
            for j in range(j0, j0 + 4):
                T = tp[j - j0]
                k.I("v_pk_mul_f32", vr(T, 2), vr(T, 2), vr(A + 2 * j, 2))
            for j in range(j0, j0 + 4):
                T = tp[j - j0]
                k.I("v_exp_f32", v(T), v(T)); k.I("v_exp_f32", v(T + 1), v(T + 1))
            for j in range(j0, j0 + 4):
                T = tp[j - j0]
                k.I("v_pk_add_f32", vr(T, 2), vr(T, 2), "1.0", mods="op_sel_hi:[1,0]")
            for j in range(j0, j0 + 4):
                T = tp[j - j0]
                k.I("v_rcp_f32", v(T), v(T)); k.I("v_rcp_f32", v(T + 1), v(T + 1))
            for j in range(j0, j0 + 4):
                T = tp[j - j0]
                k.I("v_pk_mul_f32", vr(A + 2 * j, 2), vr(A + 2 * j, 2), vr(T, 2))
    accs = [k.valloc(2) for _ in range(2)]; accq = [k.valloc(2) for _ in range(2)]
    for t in range(2):
        A = acc[0][t]
        gelu_tile(A, 0, t)
        for j in range(8):
            k.I("v_pk_mul_f32", vr(A + 2 * j, 2), vr(A + 2 * j, 2), vr(rr[t], 2), mods="op_sel_hi:[1,0]")
        k.I("v_pk_add_f32", vr(accs[t], 2), vr(A, 2), vr(A + 2, 2))
        k.I("v_pk_mul_f32", vr(accq[t], 2), vr(A, 2), vr(A, 2))
        k.I("v_pk_fma_f32", vr(accq[t], 2), vr(A + 2, 2), vr(A + 2, 2), vr(accq[t], 2))
        for j in range(2, 8):
            k.I("v_pk_add_f32", vr(accs[t], 2), vr(accs[t], 2), vr(A + 2 * j, 2))
            k.I("v_pk_fma_f32", vr(accq[t], 2), vr(A + 2 * j, 2), vr(A + 2 * j, 2), vr(accq[t], 2))
        k.I("v_add_f32", v(accs[t]), v(accs[t]), v(accs[t] + 1))
        k.I("v_add_f32", v(accs[t] + 1), v(accq[t]), v(accq[t] + 1))
        for e in range(2):
            k.I("v_mov_b32", v(accq[t]), v(accs[t] + e))
            k.I("v_permlane32_swap_b32", v(accs[t] + e), v(accq[t]))
            k.I("v_add_f32", v(accs[t] + e), v(accs[t] + e), v(accq[t]))
    vs = k.valloc()
    k.I("v_lshlrev_b32", v(vs), 3, v(l31))
    k.I("s_lshl_b32", s(st0), s(srh), 9)
    k.I("s_add_u32", s(st0), s(st0), STB)
    k.I("v_add_u32", v(vs), s(st0), v(vs))
    k.I("s_lshl_b32", s(st0), s(sch), 10)
    k.I("v_add_u32", v(t0), s(st0), v(vs))
    for t in range(2):
        k.I("ds_write_b64", v(t0), vr(accs[t], 2), mods=f"offset:{t * 256}")
    k.I("s_waitcnt", "lgkmcnt(0)")
    k.I("s_barrier")
    pub = k.newlabel("nopub")
    k.I("s_cmp_lg_u32", s(sch), 0)
    k.I("s_cbranch_scc1", pub)
    oth = k.valloc(4)
    for t in range(2):
        k.I("ds_read_b64", vr(oth + 2 * t, 2), v(vs), mods=f"offset:{1024 + t * 256}")
    k.I("s_waitcnt", "lgkmcnt(0)")
    for t in range(2):
        k.I("v_pk_add_f32", vr(oth + 2 * t, 2), vr(oth + 2 * t, 2), vr(accs[t], 2))
        k.I("v_mov_b32", v(t1), "0x7fc00000")
        k.I("v_cmp_eq_u32", "vcc", -1, v(oth + 2 * t + 1))
        k.I("v_cndmask_b32", v(oth + 2 * t + 1), v(oth + 2 * t + 1), v(t1), "vcc")
    ve = k.valloc()
    k.I("v_mul_u32_u24", v(ve), 112, v(l31))
    k.I("s_mul_i32", s(soff), s(sst), 32 * 112)
    k.I("s_lshl_b32", s(st0), s(sct), 3)
    k.I("s_add_u32", s(soff), s(soff), s(st0))
    k.I("s_add_u32", s(soff), s(soff), hex(EX_OFF))
    k.I("s_mov_b32", "exec_hi", 0)
    for t in range(2):
        k.I("buffer_store_dwordx2", vr(oth + 2 * t, 2), v(ve), sr(sWS, 4), s(soff), mods=f"offen offset:{t * 32 * 112} sc0 sc1")
    k.I("s_mov_b64", "exec", -1)
    k.L(pub)
    stp.stamp(3)
    v16 = k.valloc()
    k.I("v_lshlrev_b32", v(v16), 4, v(lane))
    P = [k.valloc(8, 4) for _ in range(2)]
    sft = k.salloc()
    k.I("s_lshl_b32", s(sft), s(sct), 1)
    k.I("s_add_u32", s(sft), s(sft), s(sch))
    for t in range(2):
        A = acc[1][t]
        gelu_tile(A, 1, t)
        for j in range(8): k.I("v_cvt_pk_bf16_f32", v(P[t] + j), v(A + 2 * j), v(A + 2 * j + 1))
        k.I("s_add_u32", s(st0), s(sst), t)
        k.I("s_mul_i32", s(soff), s(st0), 56 * 1024)
        k.I("s_lshl_b32", s(st0), s(sft), 11)
        k.I("s_add_u32", s(soff), s(soff), s(st0))
        k.I("s_add_u32", s(soff), s(soff), hex(Z1_OFF))
        k.I("buffer_store_dwordx4", vr(P[t], 4), v(v16), sr(sWS, 4), s(soff), mods="offen")
        k.I("buffer_store_dwordx4", vr(P[t] + 4, 4), v(v16), sr(sWS, 4), s(soff), mods="offen offset:1024")
    stp.stamp(4)
    ex = hs
    k.I("v_mul_u32_u24", v(vh), 112, v(l31))
    k.I("v_lshl_add_u32", v(vh), v(hh), 6, v(vh))
    k.I("s_mul_i32", s(soff), s(sst), 32 * 112)
    k.I("s_add_u32", s(soff), s(soff), hex(EX_OFF))
    scount = k.salloc(); sbad = k.salloc(2)
    k.I("s_mov_b32", s(scount), 0)
    poll = k.newlabel("poll"); pdone = k.newlabel("pdone")
    k.L(poll)
    for t in range(2):
        for i in range(4):
            k.I("buffer_load_dwordx4", vr(ex[t] + 4 * i, 4), v(vh), sr(sWS, 4), s(soff), mods=f"offen offset:{t * 32 * 112 + 16 * i} sc0 sc1")
    k.I("s_waitcnt", "vmcnt(0)")
    k.I("v_cmp_eq_u32", "vcc", 0, v(hh))
    for t in range(2):
        for i in range(12, 16): k.I("v_cndmask_b32", v(ex[t] + i), 0, v(ex[t] + i), "vcc")
    k.I("v_max_u32", v(t0), v(ex[0] + 1), v(ex[0] + 3))
    for t in range(2):
        for i in range(8):
            if t == 0 and i < 2: continue
            k.I("v_max_u32", v(t0), v(t0), v(ex[t] + 2 * i + 1))
    k.I("v_cmp_eq_u32", "vcc", -1, v(t0))
    k.I("s_add_u32", s(scount), s(scount), 1)
    k.I("s_cmp_eq_u64", "vcc", 0)
    k.I("s_cbranch_scc1", pdone)
    k.I("s_cmp_lt_u32", s(scount), 0x40000)
    k.I("s_cbranch_scc0", pdone)
    k.I("s_sleep", 1)
    k.I("s_branch", poll)
    k.L(pdone)
    sc_ = [k.valloc(2) for _ in range(2)]; zm = [k.valloc(2) for _ in range(2)]
    for t in range(2):
        H = ex[t]
        for i in range(4): k.I("v_pk_add_f32", vr(H + 2 * i, 2), vr(H + 2 * i, 2), vr(H + 8 + 2 * i, 2))
        for i in range(2): k.I("v_pk_add_f32", vr(H + 2 * i, 2), vr(H + 2 * i, 2), vr(H + 4 + 2 * i, 2))
        k.I("v_pk_add_f32", vr(H, 2), vr(H, 2), vr(H + 2, 2))
        for e in range(2):
            k.I("v_mov_b32", v(H + 2), v(H + e))
            k.I("v_permlane32_swap_b32", v(H + e), v(H + 2))
            k.I("v_add_f32", v(H + e), v(H + e), v(H + 2))
        k.I("v_mul_f32", v(zm[t]), hex(f32(-1.0 / 896)), v(H))
        k.I("v_mul_f32", v(H + 1), hex(f32(1.0 / 896)), v(H + 1))
        k.I("v_fma_f32", v(H + 1), f"-{v(zm[t])}", v(zm[t]), v(H + 1))
        k.I("v_max_f32", v(H + 1), 0, v(H + 1))
        k.I("v_add_f32", v(H + 1), hex(f32(1e-5)), v(H + 1))
        k.I("v_rsq_f32", v(sc_[t]), v(H + 1))
        k.I("v_mul_f32", v(zm[t]), v(zm[t]), v(sc_[t]))
    TW = 0
    vt = k.valloc(); vtr = k.valloc()
    k.I("v_lshlrev_b32", v(vt), 6, v(l31))
    k.I("v_lshl_add_u32", v(vt), v(hh), 3, v(vt))
    k.I("s_lshl_b32", s(st0), s(swave), 12)
    k.I("v_add_u32", v(vt), s(st0), v(vt))
    for t in range(2):
        A = acc[0][t]
        for j in range(8):
            k.I("v_pk_fma_f32", vr(A + 2 * j, 2), vr(A + 2 * j, 2), vr(sc_[t], 2), vr(zm[t], 2), mods="op_sel_hi:[1,0,0]")
        for j in range(8): k.I("v_cvt_pk_bf16_f32", v(P[t] + j), v(A + 2 * j), v(A + 2 * j + 1))
        for q in range(4):
            k.I("ds_write_b64", v(vt), vr(P[t] + 2 * q, 2), mods=f"offset:{t * 2048 + 16 * q}")
    k.I("v_bfe_u32", v(t0), v(lane), 2, 2)
    k.I("v_lshl_add_u32", v(t0), v(hh), 3, v(t0))
    k.I("v_lshlrev_b32", v(vtr), 6, v(t0))
    k.I("v_bfe_u32", v(t0), v(lane), 4, 1)
    k.I("v_lshl_add_u32", v(vtr), v(t0), 5, v(vtr))
    k.I("v_and_b32", v(t0), 3, v(lane))
    k.I("v_lshl_add_u32", v(vtr), v(t0), 3, v(vtr))
    k.I("s_lshl_b32", s(st0), s(swave), 12)
    k.I("v_add_u32", v(vtr), s(st0), v(vtr))
    k.I("s_waitcnt", "lgkmcnt(0)")
    Z = cw[0]
    for ks in range(4):
        for beta in range(2):
            k.I("ds_read_b64_tr_b16", vr(Z + 4 * ks + 2 * beta, 2), v(vtr), mods=f"offset:{(16 * ks + 4 * beta) * 64}")
    k.I("s_lshl_b32", s(soff), s(sft), 17)
    k.I("s_lshl_b32", s(st0), s(sst), 11)
    k.I("s_add_u32", s(soff), s(soff), s(st0))
    k.I("s_add_u32", s(soff), s(soff), hex(Z2_OFF))
    for ks in range(4):
        k.I("s_waitcnt", f"lgkmcnt({6 - 2 * ks})")
        k.I("buffer_store_dwordx4", vr(Z + 4 * ks, 4), v(v16), sr(sWS, 4), s(soff), mods=f"offen offset:{ks * 1024}")
    stp.stamp(5)
    k.L(R["done"])
    k.I("s_endpgm")
    k.lds = lds; k.threads = 512; k.grid = 224
    return k


def gen_k5(Stamper):
    k = Kernel("k5_sp_kernel")
    NS = 4; SLOT = 32768
    lds = NS * SLOT
    R = common_start(k, 224)
    swave, st0, st1, soff, lane, t0, t1, t2 = (R[x] for x in ("swave", "st0", "st1", "soff", "lane", "t0", "t1", "t2"))
    pSp = k.salloc(2); pB = k.salloc(2); pWS = k.salloc(2)
    k.I("s_load_dwordx2", sr(pSp, 2), "s[0:1]", 40)
    k.I("s_load_dwordx2", sr(pB, 2), "s[0:1]", 48)
    k.I("s_load_dwordx2", sr(pWS, 2), "s[0:1]", 80)
    sWS = k.salloc(4); sSp = k.salloc(4); sB = k.salloc(4)
    sj = k.salloc(); sidx = k.salloc(); stt = k.salloc(); sft = k.salloc(); skap = k.salloc(); sw3 = k.salloc()
    k.I("s_and_b32", s(sj), "s2", 7)
    k.I("s_lshr_b32", s(sidx), "s2", 3)
    k.I("s_and_b32", s(sw3), s(swave), 3)
    k.I("s_and_b32", s(skap), s(sj), 1)
    k.I("s_mul_i32", s(st0), s(sidx), 37)
    k.I("s_lshr_b32", s(st0), s(st0), 8)
    k.I("s_mul_i32", s(st1), s(st0), 7)
    k.I("s_sub_u32", s(sft), s(sidx), s(st1))
    k.I("s_lshr_b32", s(stt), s(sj), 1)
    k.I("s_lshl_b32", s(stt), s(stt), 2)
    k.I("s_add_u32", s(stt), s(stt), s(st0))
    stp = Stamper(k, 4, sWS, swave)
    k.I("s_waitcnt", "lgkmcnt(0)")
    srd(k, sWS, pWS, WS_SIZE)
    comp = k.newlabel("compute")
    k.I("s_cmp_lt_u32", s(swave), 4)
    k.I("s_cbranch_scc1", comp)
    vsave = k.vnext
    srd(k, sSp, pSp, 2048 * 4096)
    v16 = k.valloc(); vWo = k.valloc(2)
    k.I("v_lshlrev_b32", v(v16), 4, v(lane))
    k.I("v_lshrrev_b32", v(t0), 3, v(lane))
    k.I("v_lshlrev_b32", v(t0), 12, v(t0))
    k.I("v_lshrrev_b32", v(t1), 4, v(lane))
    k.I("v_and_b32", v(t2), 7, v(lane))
    k.I("v_xor_b32", v(t1), v(t1), v(t2))
    k.I("v_lshl_add_u32", v(vWo), v(t1), 4, v(t0))
    k.I("v_xor_b32", v(t1), 4, v(t1))
    k.I("v_lshl_add_u32", v(vWo + 1), v(t1), 4, v(t0))
    sZb = k.salloc(); sWb = k.salloc(); smZ = k.salloc(); smW = k.salloc()
    k.I("s_lshl_b32", s(st0), s(sft), 2)
    k.I("s_add_u32", s(st0), s(st0), s(sw3))
    k.I("s_lshl_b32", s(sZb), s(st0), 17)
    k.I("s_lshl_b32", s(st1), s(skap), 16)
    k.I("s_add_u32", s(sZb), s(sZb), s(st1))
    k.I("s_add_u32", s(sZb), s(sZb), hex(Z2_OFF))
    k.I("s_lshl_b32", s(smZ), s(sw3), 12)
    k.I("s_lshl_b32", s(st0), s(stt), 7)
    k.I("s_lshl_b32", s(st1), s(sw3), 5)
    k.I("s_add_u32", s(st0), s(st0), s(st1))
    k.I("s_lshl_b32", s(sWb), s(st0), 12)
    k.I("s_lshl_b32", s(st1), s(skap), 11)
    k.I("s_add_u32", s(sWb), s(sWb), s(st1))
    k.I("s_add_u32", s(smW), s(smZ), 16384)
    def issue(c):
        sl = (c % NS) * SLOT
        for i in range(4):
            k.I("s_add_u32", s(soff), s(sZb), hex((4 * c + i) * 1024))
            k.I("s_add_u32", "m0", s(smZ), hex(sl + i * 1024))
            k.vm(("S", c), "buffer_load_dwordx4", v(v16), sr(sWS, 4), s(soff), mods="offen lds")
        for i in range(4):
            k.I("s_add_u32", s(soff), s(sWb), hex(i * 8 * 4096 + c * 128))
            k.I("s_add_u32", "m0", s(smW), hex(sl + i * 1024))
            k.vm(("S", c), "buffer_load_dwordx4", v(vWo + (i & 1)), sr(sSp, 4), s(soff), mods="offen lds")
    NST = 16
    issue(0); issue(1)
    for c in range(NST):
        k.wait_vm(("S", c))
        k.I("s_barrier")
        if c == 0: issue(2); issue(3)
        elif c + 2 < NST and c >= 2: issue(c + 2)
    k.I("s_endpgm")
    k.L(comp)
    k.vnext = vsave; k.vmq = []; k.lgq = []
    srd(k, sB, pB, 4096)
    l31 = k.valloc(); hh = k.valloc()
    k.I("v_and_b32", v(l31), 31, v(lane))
    k.I("v_lshrrev_b32", v(hh), 5, v(lane))
    sfh = k.salloc(); sth = k.salloc(); sst = k.salloc(); sf32 = k.salloc()
    k.I("s_and_b32", s(sfh), s(swave), 1)
    k.I("s_lshr_b32", s(sth), s(swave), 1)
    k.I("s_lshl_b32", s(sst), s(stt), 2)
    k.I("s_lshl_b32", s(st0), s(sth), 1)
    k.I("s_add_u32", s(sst), s(sst), s(st0))
    k.I("s_lshl_b32", s(sf32), s(sft), 2)
    k.I("s_lshl_b32", s(st0), s(sfh), 1)
    k.I("s_add_u32", s(sf32), s(sf32), s(st0))
    if os.environ.get("PF3", "1") == "1":
        vT0 = k.valloc(); vd0 = k.valloc(2)
        k.I("s_lshl_b32", s(st0), s(sidx), 8)
        k.I("v_add_u32", v(vT0), s(st0), "v0")
        k.I("s_lshl_b32", s(st1), s(skap), 16)
        k.I("s_add_u32", s(st1), s(st1), hex(Z2_OFF))
        for i in range(2):
            k.I("v_add_u32", v(t0), 7168 * i, v(vT0))
            k.I("v_lshrrev_b32", v(t1), 9, v(t0))
            k.I("v_lshlrev_b32", v(t1), 17, v(t1))
            k.I("v_and_b32", v(t2), 511, v(t0))
            k.I("v_lshl_add_u32", v(t1), v(t2), 7, v(t1))
            k.vm("pf", "buffer_load_dword", v(vd0 + i), v(t1), sr(sWS, 4), s(st1), mods="offen")
    v16 = k.valloc()
    k.I("v_lshlrev_b32", v(v16), 4, v(lane))
    z1 = [[k.valloc(8, 4) for _ in range(2)] for _ in range(2)]
    for ti in range(2):
        for fi in range(2):
            k.I("s_add_u32", s(st0), s(sst), ti)
            k.I("s_mul_i32", s(soff), s(st0), 56 * 1024)
            k.I("s_add_u32", s(st0), s(sf32), fi)
            k.I("s_lshl_b32", s(st0), s(st0), 11)
            k.I("s_add_u32", s(soff), s(soff), s(st0))
            k.I("s_add_u32", s(soff), s(soff), hex(Z1_OFF))
            k.vm("z1", "buffer_load_dwordx4", vr(z1[fi][ti], 4), v(v16), sr(sWS, 4), s(soff), mods="offen")
            k.vm("z1", "buffer_load_dwordx4", vr(z1[fi][ti] + 4, 4), v(v16), sr(sWS, 4), s(soff), mods="offen offset:1024")
    rr = [k.valloc(2) for _ in range(2)]; bb = [k.valloc(2) for _ in range(2)]
    k.I("v_lshlrev_b32", v(t0), 2, v(l31))
    k.I("v_lshlrev_b32", v(t1), 1, v(l31))
    for ti in range(2):
        k.I("s_add_u32", s(st0), s(sst), ti)
        k.I("s_lshl_b32", s(soff), s(st0), 7)
        k.I("s_add_u32", s(soff), s(soff), hex(RH_OFF))
        k.vm("z1", "buffer_load_dword", v(rr[ti]), v(t0), sr(sWS, 4), s(soff), mods="offen")
        k.I("s_lshl_b32", s(soff), s(st0), 6)
        k.vm("z1", "buffer_load_ushort", v(bb[ti]), v(t1), sr(sB, 4), s(soff), mods="offen")
    if os.environ.get("PF2", "1") == "1":
        pp = k.salloc(2); sP = k.salloc(4); vT = k.valloc(); vd = k.valloc(2)
        k.I("s_load_dwordx2", sr(pp, 2), "s[0:1]", 56)
        k.I("s_lshl_b32", s(st0), s(sidx), 8)
        k.I("v_add_u32", v(vT), s(st0), "v0")
        k.I("v_lshlrev_b32", v(vT), 7, v(vT))
        k.I("s_waitcnt", "lgkmcnt(0)")
        srd(k, sP, pp, 896 * 896)
        k.vm("pf", "buffer_load_dword", v(vd), v(vT), sr(sP, 4), 0, mods="offen")
    stp.stamp(0)
    aZ = k.valloc(); aW = k.valloc(4)
    k.I("s_lshl_b32", s(st0), s(sfh), 13)
    k.I("v_add_u32", v(aZ), s(st0), v(v16))
    k.I("v_bfe_u32", v(t0), v(l31), 1, 3)
    for j in range(4):
        k.I("v_add_u32", v(t1), 2 * j, v(hh))
        k.I("v_xor_b32", v(t1), v(t1), v(t0))
        k.I("v_lshlrev_b32", v(t1), 4, v(t1))
        k.I("v_lshl_add_u32", v(aW + j), v(l31), 7, v(t1))
        k.I("s_lshl_b32", s(st0), s(sth), 13)
        k.I("s_add_u32", s(st0), s(st0), 16384)
        k.I("v_add_u32", v(aW + j), s(st0), v(aW + j))
    aZ2 = k.valloc(); aW2 = k.valloc(4)
    k.I("v_add_u32", v(aZ2), 65536, v(aZ))
    for j in range(4): k.I("v_add_u32", v(aW2 + j), 65536, v(aW + j))
    acc = [[k.valloc(16, 4) for _ in range(2)] for _ in range(2)]
    NB = 3
    zf = [[k.valloc(4) for _ in range(2)] for _ in range(NB)]
    wf = [[k.valloc(4) for _ in range(2)] for _ in range(NB)]
    def rl(ks):
        c, j = ks // 4, ks % 4
        b = ks % NB
        sl = (c % NS) * SLOT
        hi = sl >= 65536
        so = sl - (65536 if hi else 0)
        out = []
        for fi in range(2):
            out.append(lambda fi=fi: k.lg(("f", ks), "ds_read_b128", vr(zf[b][fi], 4), v(aZ2 if hi else aZ), mods=f"offset:{so + fi * 4096 + j * 1024}"))
        for ti in range(2):
            out.append(lambda ti=ti: k.lg(("f", ks), "ds_read_b128", vr(wf[b][ti], 4), v((aW2 if hi else aW) + j), mods=f"offset:{so + ti * 4096}"))
        return out
    k.I("s_barrier")
    stp.stamp(1)
    for f in rl(0) + rl(1): f()
    NKS = NST * 4
    for ks in range(NKS):
        c, j = ks // 4, ks % 4
        b = ks % NB
        k.wait_lg(("f", ks))
        mf = []
        for fi in range(2):
            for ti in range(2):
                mf.append(lambda fi=fi, ti=ti: k.I("v_mfma_f32_32x32x16_bf16", vr(acc[fi][ti], 16), vr(zf[b][fi], 4), vr(wf[b][ti], 4), 0 if ks == 0 else vr(acc[fi][ti], 16)))
        fl = rl(ks + 2) if ks + 2 < NKS else []
        if j == 2 and ks + 2 < NKS: k.I("s_barrier")
        interleave(k, mf, fl)
    stp.stamp(2)
    k.wait_vm("z1")
    for ti in range(2):
        k.I("v_lshlrev_b32", v(bb[ti]), 16, v(bb[ti]))
        k.I("v_mul_f32", v(bb[ti]), v(bb[ti]), v(rr[ti]))
    k.I("s_cmp_eq_u32", s(skap), 0)
    k.I("s_cselect_b32", s(st0), "1.0", 0)
    for ti in range(2): k.I("v_mul_f32", v(bb[ti]), s(st0), v(bb[ti]))
    tp = [k.valloc(2) for _ in range(4)]
    P = [k.valloc(8, 4) for _ in range(2)]
    sU = k.salloc()
    k.I("s_mul_i32", s(sU), s(skap), U1_OFF - U0_OFF)
    k.I("s_add_u32", s(sU), s(sU), hex(U0_OFF))
    n = 0
    for ti in range(2):
        for fi in range(2):
            A = acc[fi][ti]; Zp = z1[fi][ti]; PP = P[n & 1]; n += 1
            for j in range(8):
                k.I("v_pk_fma_f32", vr(A + 2 * j, 2), vr(A + 2 * j, 2), vr(rr[ti], 2), vr(bb[ti], 2), mods="op_sel_hi:[1,0,0]")
            for j in range(8):
                T = tp[j % 4]
                k.I("v_lshlrev_b32", v(T), 16, v(Zp + j))
                k.I("v_and_b32", v(T + 1), "0xffff0000", v(Zp + j))
                k.I("v_pk_mul_f32", vr(A + 2 * j, 2), vr(A + 2 * j, 2), vr(T, 2))
            for j in range(8): k.I("v_cvt_pk_bf16_f32", v(PP + j), v(A + 2 * j), v(A + 2 * j + 1))
            k.I("s_add_u32", s(st0), s(sst), ti)
            k.I("s_mul_i32", s(soff), s(st0), 56 * 1024)
            k.I("s_add_u32", s(st0), s(sf32), fi)
            k.I("s_lshl_b32", s(st0), s(st0), 11)
            k.I("s_add_u32", s(soff), s(soff), s(st0))
            k.I("s_add_u32", s(soff), s(soff), s(sU))
            k.I("buffer_store_dwordx4", vr(PP, 4), v(v16), sr(sWS, 4), s(soff), mods="offen")
            k.I("buffer_store_dwordx4", vr(PP + 4, 4), v(v16), sr(sWS, 4), s(soff), mods="offen offset:1024")
    stp.stamp(3)
    k.L(R["done"])
    k.I("s_endpgm")
    k.lds = lds; k.threads = 512; k.grid = 224
    return k

def gen_k6(Stamper):
    k = Kernel("k6_wout_kernel")
    NS = 5; SLOT = 24576
    RED = 0
    lds = NS * SLOT
    R = common_start(k, 224)
    swave, st0, st1, soff, lane, t0, t1, t2 = (R[x] for x in ("swave", "st0", "st1", "soff", "lane", "t0", "t1", "t2"))
    pWo = k.salloc(2); pOut = k.salloc(2); pWS = k.salloc(2)
    k.I("s_load_dwordx2", sr(pWo, 2), "s[0:1]", 56)
    k.I("s_load_dwordx2", sr(pOut, 2), "s[0:1]", 64)
    k.I("s_load_dwordx2", sr(pWS, 2), "s[0:1]", 80)
    sWS = k.salloc(4); sWo = k.salloc(4); sOut = k.salloc(4)
    sj = k.salloc(); sidx = k.salloc(); srt = k.salloc(); snt = k.salloc(); sw3 = k.salloc()
    k.I("s_and_b32", s(sj), "s2", 7)
    k.I("s_lshr_b32", s(sidx), "s2", 3)
    k.I("s_and_b32", s(sw3), s(swave), 3)
    k.I("s_mul_i32", s(st0), s(sidx), 37)
    k.I("s_lshr_b32", s(st0), s(st0), 8)
    k.I("s_mul_i32", s(st1), s(st0), 7)
    k.I("s_sub_u32", s(snt), s(sidx), s(st1))
    k.I("s_lshl_b32", s(srt), s(sj), 2)
    k.I("s_add_u32", s(srt), s(srt), s(st0))
    stp = Stamper(k, 5, sWS, swave)
    k.I("s_waitcnt", "lgkmcnt(0)")
    srd(k, sWS, pWS, WS_SIZE)
    comp = k.newlabel("compute")
    k.I("s_cmp_lt_u32", s(swave), 4)
    k.I("s_cbranch_scc1", comp)
    vsave = k.vnext
    srd(k, sWo, pWo, 896 * 896)
    v16 = k.valloc(); vWo = k.valloc()
    k.I("v_lshlrev_b32", v(v16), 4, v(lane))
    k.I("v_lshrrev_b32", v(t0), 3, v(lane))
    k.I("v_mul_u32_u24", v(t0), 896, v(t0))
    k.I("v_bfe_u32", v(t1), v(lane), 4, 1)
    k.I("v_lshlrev_b32", v(t1), 2, v(t1))
    k.I("v_and_b32", v(t2), 7, v(lane))
    k.I("v_xor_b32", v(t1), v(t1), v(t2))
    k.I("v_lshl_add_u32", v(vWo), v(t1), 4, v(t0))
    sUb = k.salloc(); sWb = k.salloc(); smU = k.salloc(); smW = k.salloc()
    k.I("s_lshr_b32", s(st0), s(sw3), 1)
    k.I("s_lshl_b32", s(st1), s(srt), 1)
    k.I("s_add_u32", s(st1), s(st1), s(st0))
    k.I("s_mul_i32", s(sUb), s(st1), 56 * 1024)
    k.I("s_and_b32", s(st1), s(sw3), 1)
    k.I("s_mul_i32", s(smU), s(st1), U1_OFF - U0_OFF)
    k.I("s_add_u32", s(sUb), s(sUb), s(smU))
    k.I("s_add_u32", s(sUb), s(sUb), hex(U0_OFF))
    k.I("s_lshl_b32", s(smU), s(st1), 13)
    k.I("s_lshl_b32", s(st0), s(st0), 12)
    k.I("s_add_u32", s(smU), s(smU), s(st0))
    k.I("s_mul_i32", s(sWb), s(sw3), 16 * 896)
    k.I("s_lshl_b32", s(st1), s(snt), 7)
    k.I("s_add_u32", s(sWb), s(sWb), s(st1))
    k.I("s_lshl_b32", s(smW), s(sw3), 11)
    k.I("s_add_u32", s(smW), s(smW), 16384)
    def issue(c):
        sl = (c % NS) * SLOT
        for i in range(4):
            k.I("s_add_u32", s(soff), s(sUb), hex((4 * c + i) * 1024))
            k.I("s_add_u32", "m0", s(smU), hex(sl + i * 1024))
            k.vm(("S", c), "buffer_load_dwordx4", v(v16), sr(sWS, 4), s(soff), mods="offen lds")
        for i in range(2):
            k.I("s_add_u32", s(soff), s(sWb), hex((64 * c + 8 * i) * 896))
            k.I("s_add_u32", "m0", s(smW), hex(sl + i * 1024))
            k.vm(("S", c), "buffer_load_dwordx4", v(vWo), sr(sWo, 4), s(soff), mods="offen lds")
    NST = 14
    for c in range(3): issue(c)
    for c in range(NST):
        k.wait_vm(("S", c))
        k.I("s_barrier")
        if c == 0: issue(3); issue(4)
        elif c + 3 < NST and c >= 2: issue(c + 3)
    k.I("s_endpgm")
    k.L(comp)
    k.vnext = vsave; k.vmq = []; k.lgq = []
    srd(k, sOut, pOut, 2048 * 896)
    l31 = k.valloc(); hh = k.valloc()
    k.I("v_and_b32", v(l31), 31, v(lane))
    k.I("v_lshrrev_b32", v(hh), 5, v(lane))
    srh = k.salloc(); snh = k.salloc(); sst = k.salloc(); sntile = k.salloc()
    k.I("s_and_b32", s(srh), s(swave), 1)
    k.I("s_lshr_b32", s(snh), s(swave), 1)
    k.I("s_lshl_b32", s(sst), s(srt), 1)
    k.I("s_add_u32", s(sst), s(sst), s(srh))
    k.I("s_lshl_b32", s(sntile), s(snt), 1)
    k.I("s_add_u32", s(sntile), s(sntile), s(snh))
    if os.environ.get("PF3", "1") == "1":
        vT0 = k.valloc(); vd0 = k.valloc(2)
        k.I("s_lshl_b32", s(st0), s(sidx), 8)
        k.I("v_add_u32", v(vT0), s(st0), "v0")
        k.I("v_mov_b32", v(t0), hex(U1_OFF - U0_OFF - 3584 * 128))
        k.I("v_cmp_le_u32", "vcc", 3584, v(vT0))
        k.I("v_cndmask_b32", v(t0), 0, v(t0), "vcc")
        k.I("v_lshl_add_u32", v(t0), v(vT0), 7, v(t0))
        k.I("s_mul_i32", s(st1), s(sj), 8 * 56 * 1024)
        k.I("s_add_u32", s(st1), s(st1), hex(U0_OFF))
        k.vm("pf", "buffer_load_dword", v(vd0), v(t0), sr(sWS, 4), s(st1), mods="offen")
    v16 = k.valloc()
    k.I("v_lshlrev_b32", v(v16), 4, v(lane))
    hr = k.valloc(8, 4)
    k.I("s_mul_i32", s(soff), s(sst), 28 * 1024)
    k.I("s_lshl_b32", s(st0), s(sntile), 11)
    k.I("s_add_u32", s(soff), s(soff), s(st0))
    k.I("s_add_u32", s(soff), s(soff), hex(H_OFF))
    k.vm("h", "buffer_load_dwordx4", vr(hr, 4), v(v16), sr(sWS, 4), s(soff), mods="offen")
    k.vm("h", "buffer_load_dwordx4", vr(hr + 4, 4), v(v16), sr(sWS, 4), s(soff), mods="offen offset:1024")
    stp.stamp(0)
    aU = k.valloc(); vW = k.valloc()
    k.I("s_lshl_b32", s(st0), s(srh), 12)
    k.I("v_add_u32", v(aU), s(st0), v(v16))
    k.I("v_bfe_u32", v(t0), v(lane), 2, 2)
    k.I("v_lshl_add_u32", v(t0), v(hh), 2, v(t0))
    k.I("v_lshlrev_b32", v(vW), 7, v(t0))
    k.I("v_add_u32", v(vW), 16384, v(vW))
    k.I("v_bfe_u32", v(t0), v(lane), 4, 1)
    k.I("v_lshlrev_b32", v(t0), 1, v(t0))
    k.I("v_bfe_u32", v(t1), v(lane), 1, 1)
    k.I("v_add_u32", v(t0), v(t0), v(t1))
    k.I("s_lshl_b32", s(st0), s(snh), 2)
    k.I("v_add_u32", v(t0), s(st0), v(t0))
    k.I("v_bfe_u32", v(t1), v(lane), 3, 1)
    k.I("v_lshlrev_b32", v(t1), 2, v(t1))
    k.I("v_xor_b32", v(t0), v(t0), v(t1))
    k.I("v_lshl_add_u32", v(vW), v(t0), 4, v(vW))
    k.I("v_and_b32", v(t0), 1, v(lane))
    k.I("v_lshl_add_u32", v(vW), v(t0), 3, v(vW))
    aU2 = k.valloc(); vW2 = k.valloc()
    k.I("v_add_u32", v(aU2), 3 * SLOT, v(aU))
    k.I("v_add_u32", v(vW2), 3 * SLOT, v(vW))
    acc = k.valloc(16, 4)
    NB = 3
    uf = [[k.valloc(4) for _ in range(2)] for _ in range(NB)]; wf = [k.valloc(4) for _ in range(NB)]
    def rl(ks):
        c, j = ks // 4, ks % 4
        b = ks % NB
        sl = (c % NS)
        hi = sl >= 3
        so = (sl - (3 if hi else 0)) * SLOT
        out = []
        for ar_ in range(2):
            out.append(lambda ar_=ar_: k.lg(("f", ks), "ds_read_b128", vr(uf[b][ar_], 4), v(aU2 if hi else aU), mods=f"offset:{so + ar_ * 8192 + j * 1024}"))
        for beta in range(2):
            o = so + (16 * j + 8 * beta) * 128
            out.append(lambda o=o, beta=beta: k.lg(("f", ks), "ds_read_b64_tr_b16", vr(wf[b] + 2 * beta, 2), v(vW2 if hi else vW), mods=f"offset:{o}"))
        return out
    k.I("s_barrier")
    stp.stamp(1)
    for f in rl(0) + rl(1): f()
    NKS = NST * 4
    for ks in range(NKS):
        c, j = ks // 4, ks % 4
        b = ks % NB
        k.wait_lg(("f", ks))
        mf = [lambda ar_=ar_: k.I("v_mfma_f32_32x32x16_bf16", vr(acc, 16), vr(wf[b], 4), vr(uf[b][ar_], 4), 0 if (ks == 0 and ar_ == 0) else vr(acc, 16)) for ar_ in range(2)]
        fl = rl(ks + 2) if ks + 2 < NKS else []
        if j == 2 and ks + 2 < NKS: k.I("s_barrier")
        interleave(k, mf, fl)
    stp.stamp(2)
    k.wait_vm("h")
    tp = [k.valloc(2) for _ in range(4)]
    for j in range(8):
        T = tp[j % 4]
        k.I("v_lshlrev_b32", v(T), 16, v(hr + j))
        k.I("v_and_b32", v(T + 1), "0xffff0000", v(hr + j))
        k.I("v_pk_add_f32", vr(acc + 2 * j, 2), vr(acc + 2 * j, 2), vr(T, 2))
    P = k.valloc(8, 4)
    for j in range(8): k.I("v_cvt_pk_bf16_f32", v(P + j), v(acc + 2 * j), v(acc + 2 * j + 1))
    for kp in range(2):
        k.I("v_permlane32_swap_b32", v(P + 4 * kp), v(P + 4 * kp + 2))
        k.I("v_permlane32_swap_b32", v(P + 4 * kp + 1), v(P + 4 * kp + 3))
    vo = k.valloc()
    k.I("v_mul_u32_u24", v(vo), 896, v(l31))
    k.I("v_lshl_add_u32", v(vo), v(hh), 4, v(vo))
    k.I("s_mul_i32", s(soff), s(sst), 32 * 896)
    k.I("s_lshl_b32", s(st0), s(sntile), 6)
    k.I("s_add_u32", s(soff), s(soff), s(st0))
    for kp in range(2):
        k.I("buffer_store_dwordx4", vr(P + 4 * kp, 4), v(vo), sr(sOut, 4), s(soff), mods=f"offen offset:{32 * kp}")
    stp.stamp(3)
    k.L(R["done"])
    k.I("s_endpgm")
    k.lds = lds; k.threads = 512; k.grid = 224
    return k

def rest(Stamper):
    return [gen_k2(Stamper), gen_k3(Stamper), gen_k4(Stamper), gen_k5(Stamper), gen_k6(Stamper)]
```

```python
import sys, os
sys.path.insert(0, os.path.dirname(__file__))
from asmlib import *
from layout import *

NAME = "sequential_preLN__sliding_block__mixer_gmlp__prompt"
STAMPS = os.environ.get("GEN_STAMPS", "0") == "1"
WS_SIZE = 0x10000000

def srd(k, dst, base, size):
    k.I("s_mov_b32", s(dst), s(base))
    k.I("s_and_b32", s(dst + 1), s(base + 1), "0xffff")
    k.I("s_mov_b32", s(dst + 2), hex(size) if isinstance(size, int) else size)
    k.I("s_mov_b32", s(dst + 3), "0x20000")

class Stamper:
    def __init__(self, k, kidx, sWS, swave):
        self.k, self.kidx, self.sWS, self.swave = k, kidx, sWS, swave
        if STAMPS:
            self.st = k.salloc(2); self.vt = k.valloc(2); self.vo = k.valloc(1); self.ex = k.salloc(2)
    def tick(self, i):
        if not STAMPS: return
        if not hasattr(self, "tk"): self.tk = self.k.salloc(32, 4)
        self.k.I("s_memtime", sr(self.tk + 2 * i, 2))
        self.nt = max(getattr(self, "nt", 0), i + 1)
    def dump_ticks(self):
        if not STAMPS or not hasattr(self, "tk"): return
        k = self.k
        k.I("s_waitcnt", "lgkmcnt(0)")
        k.lgq = []
        k.I("s_lshl_b32", s(self.ex), "s2", 7)
        k.I("s_add_u32", s(self.ex), s(self.ex), hex(TICK_OFF + self.kidx * 256 * 128))
        k.I("s_cmp_lg_u32", s(self.swave), int(os.environ.get("TICKWAVE", "0")))
        k.I("s_cselect_b32", s(self.ex), "0x7ffffff0", s(self.ex))
        k.I("s_mov_b64", sr(self.st, 2), "exec")
        k.I("s_mov_b64", "exec", 1)
        k.I("v_mov_b32", v(self.vo), 0)
        for i in range(16):
            k.I("v_mov_b32", v(self.vt), s(self.tk + 2 * i))
            k.I("v_mov_b32", v(self.vt + 1), s(self.tk + 2 * i + 1))
            k.I("buffer_store_dwordx2", vr(self.vt, 2), v(self.vo), sr(self.sWS, 4), s(self.ex), mods=f"offen offset:{8 * i}")
            k.I("s_nop", 1)
        k.I("s_mov_b64", "exec", sr(self.st, 2))
    def stamp(self, j):
        if not STAMPS: return
        k = self.k
        k.I("s_memrealtime", sr(self.st, 2))
        k.I("s_lshl_b32", s(self.ex), "s2", 6)
        k.I("s_add_u32", s(self.ex), s(self.ex), hex(STAMP_OFF + self.kidx * 256 * 64 + j * 8))
        k.I("s_cmp_lg_u32", s(self.swave), 0)
        k.I("s_cselect_b32", s(self.ex), "0x7ffffff0", s(self.ex))
        k.I("s_waitcnt", "lgkmcnt(0)")
        k.lgq = []
        k.I("v_mov_b32", v(self.vt), s(self.st))
        k.I("v_mov_b32", v(self.vt + 1), s(self.st + 1))
        k.I("v_mov_b32", v(self.vo), 0)
        k.I("s_mov_b64", sr(self.st, 2), "exec")
        k.I("s_mov_b64", "exec", 1)
        k.I("buffer_store_dwordx2", vr(self.vt, 2), v(self.vo), sr(self.sWS, 4), s(self.ex), mods="offen")
        k.I("s_mov_b64", "exec", sr(self.st, 2))
        k.vmq.append("stamp")

class DbgStamper:
    LAST = {0: 3, 1: 2, 2: 3, 3: 5, 4: 3, 5: 3}
    def __init__(self, k, kidx, sWS, swave):
        self.k, self.kidx, self.swave = k, kidx, swave
        self.st = k.salloc(2); self.vt = k.valloc(2); self.vo = k.valloc(1); self.ex = k.salloc(2)
        self.pd = k.salloc(2); self.sD = k.salloc(4)
        k.I("s_memrealtime", sr(self.st, 2))
        k.I("s_load_dwordx2", sr(self.pd, 2), "s[0:1]", 72)
        self.t0 = k.salloc(2)
        k.I("s_waitcnt", "lgkmcnt(0)")
        k.I("s_mov_b32", s(self.t0), s(self.st))
        k.I("s_sub_u32", s(self.pd), s(self.pd), 512 * kidx)
        k.I("s_subb_u32", s(self.pd + 1), s(self.pd + 1), 0)
        srd(k, self.sD, self.pd, 512 * 5 + 256)
    def tick(self, i): pass
    def dump_ticks(self): pass
    def stamp(self, j):
        if j != self.LAST[self.kidx]: return
        k = self.k
        k.I("s_memrealtime", sr(self.st, 2))
        k.I("s_or_b32", s(self.ex), "s2", s(self.swave))
        k.I("s_cmp_lg_u32", s(self.ex), 0)
        k.I("s_cselect_b32", s(self.ex), "0x7ffffff0", 8 * self.kidx)
        k.I("s_waitcnt", "lgkmcnt(0)")
        k.lgq = []
        k.I("v_mov_b32", v(self.vt), s(self.t0))
        k.I("v_mov_b32", v(self.vt + 1), s(self.st))
        k.I("v_mov_b32", v(self.vo), 0)
        k.I("s_mov_b64", sr(self.st, 2), "exec")
        k.I("s_mov_b64", "exec", 1)
        for tg in range(6):
            k.I("buffer_store_dwordx2", vr(self.vt, 2), v(self.vo), sr(self.sD, 4), s(self.ex), mods=f"offen offset:{512 * tg}")
            k.vmq.append("stamp")
        k.I("s_mov_b64", "exec", sr(self.st, 2))

if os.environ.get("GEN_DBG"): Stamper = DbgStamper

def gen_k1():
    k = Kernel("k1_qkv_kernel")
    k.snext = 4; k.vnext = 1
    WREG = 0; WCH = 12288; XRING = 7 * WCH; XSL = 4096; NXS = 4
    TBL = XRING + 4 * NXS * XSL
    CWT = TBL; RT = TBL + 512; NMT = TBL + 1024; SQT = TBL + 1536
    ONES = TBL + 2048
    lds = ONES + 1024
    done = k.newlabel("done")
    k.I("s_cmp_ge_u32", "s2", 256)
    k.I("s_cbranch_scc1", done)
    pX = k.salloc(4); pWS = k.salloc(2)
    k.I("s_load_dwordx4", sr(pX, 4), "s[0:1]", 0)
    k.I("s_load_dwordx2", sr(pWS, 2), "s[0:1]", 80)
    sX = k.salloc(4); sW = k.salloc(4); sWS = k.salloc(4)
    swave = k.salloc(); srb = k.salloc(); shd = k.salloc(); st0 = k.salloc(); st1 = k.salloc(); soff = k.salloc()
    lane = k.valloc(); l31 = k.valloc(); hh = k.valloc(); t0 = k.valloc(); t1 = k.valloc(); t2 = k.valloc()
    k.I("v_lshrrev_b32", v(t0), 6, "v0")
    k.I("v_and_b32", v(lane), 63, "v0")
    k.I("v_readfirstlane_b32", s(swave), v(t0))
    k.I("s_and_b32", s(st0), "s2", 7)
    k.I("s_lshr_b32", s(st1), "s2", 3)
    k.I("s_and_b32", s(shd), s(st1), 15)
    k.I("s_lshr_b32", s(st1), s(st1), 4)
    k.I("s_lshl_b32", s(srb), s(st0), 1)
    k.I("s_add_u32", s(srb), s(srb), s(st1))
    stp = Stamper(k, 0, sWS, swave)
    sw3 = k.salloc()
    k.I("s_and_b32", s(sw3), s(swave), 3)
    l15 = k.valloc()
    k.I("v_and_b32", v(l15), 15, v(lane))
    k.I("s_waitcnt", "lgkmcnt(0)")
    srd(k, sW, pX + 2, 448 * 2688)
    srd(k, sX, pX, 2048 * 896)
    comp = k.newlabel("compute")
    k.I("s_cmp_lt_u32", s(swave), 4)
    k.I("s_cbranch_scc1", comp)
    vsave = k.vnext
    vXo = k.valloc(4)
    k.I("v_lshrrev_b32", v(t0), 3, v(lane))
    k.I("v_mul_u32_u24", v(t0), 896, v(t0))
    k.I("v_lshrrev_b32", v(t1), 4, v(lane))
    k.I("v_and_b32", v(t2), 7, v(lane))
    k.I("v_xor_b32", v(t1), v(t1), v(t2))
    k.I("v_lshl_add_u32", v(vXo), v(t1), 4, v(t0))
    k.I("v_xor_b32", v(t1), 4, v(t1))
    k.I("v_lshl_add_u32", v(vXo + 1), v(t1), 4, v(t0))
    k.I("v_add_u32", v(vXo + 1), 8 * 896, v(vXo + 1))
    k.I("v_add_u32", v(vXo + 2), 16 * 896, v(vXo))
    k.I("v_add_u32", v(vXo + 3), 16 * 896, v(vXo + 1))
    vWo = k.valloc(3)
    for b in range(3):
        k.I("v_add_u32", v(t0), 64 * b, v(lane))
        k.I("v_mul_u32_u24", v(t1), 171, v(t0))
        k.I("v_lshrrev_b32", v(t1), 11, v(t1))
        k.I("v_mul_u32_u24", v(t2), 12, v(t1))
        k.I("v_sub_u32", v(t0), v(t0), v(t2))
        k.I("v_mul_u32_u24", v(vWo + b), 2688, v(t1))
        k.I("v_lshrrev_b32", v(t2), 2, v(t0))
        k.I("v_mul_u32_u24", v(t2), 896, v(t2))
        k.I("v_and_b32", v(t0), 3, v(t0))
        k.I("v_lshl_add_u32", v(t2), v(t0), 4, v(t2))
        k.I("v_add_u32", v(vWo + b), v(vWo + b), v(t2))
        if os.environ.get("EXP_WCONT"):
            k.I("v_lshlrev_b32", v(vWo + b), 4, v(lane))
            k.I("v_add_u32", v(vWo + b), 1024 * b, v(vWo + b))
    sWb = k.salloc(); sm0 = k.salloc(); sXb = k.salloc(); sm0x = k.salloc()
    k.I("s_mul_i32", s(sWb), s(shd), 56)
    k.I("s_mul_i32", s(st0), s(sw3), 16 * 2688)
    k.I("s_add_u32", s(sWb), s(sWb), s(st0))
    k.I("s_mul_i32", s(sm0), s(sw3), 3 * 1024)
    k.I("s_lshl_b32", s(st0), s(srb), 7)
    k.I("s_lshl_b32", s(st1), s(sw3), 5)
    k.I("s_add_u32", s(st0), s(st0), s(st1))
    k.I("s_mul_i32", s(sXb), s(st0), 896)
    k.I("s_mul_i32", s(sm0x), s(sw3), NXS * XSL)
    k.I("s_add_u32", s(sm0x), s(sm0x), XRING)
    def wdma(c, b):
        if os.environ.get("EXP_NODMA") and c >= 3: return
        k.I("s_add_u32", s(soff), s(sWb), hex(c * 64 * 2688))
        k.I("s_add_u32", "m0", s(sm0), hex(WREG + c * WCH + b * 1024))
        k.vm(("W", c), "buffer_load_dwordx4", v(vWo + b), sr(sW, 4), s(soff), mods="offen lds")
    def xdma(c, j):
        if os.environ.get("EXP_NODMA") and c >= 2: return
        k.I("s_add_u32", s(soff), s(sXb), hex(c * 128))
        k.I("s_add_u32", "m0", s(sm0x), hex((c % NXS) * XSL + j * 1024))
        k.vm(("X", c), "buffer_load_dwordx4", v(vXo + j), sr(sX, 4), s(soff), mods="offen lds")
    for c in range(2):
        for b in range(3): wdma(c, b)
        for j in range(4): xdma(c, j)
    for b in range(3): wdma(2, b)
    LT = os.environ.get("TICKWAVE", "0") != "0"
    if LT: stp.tick(0)
    for c in range(7):
        k.wait_vm([("W", c), ("X", c)])
        if LT and c < 5: stp.tick(1 + 3 * c)
        k.I("s_barrier")
        if LT and c < 5: stp.tick(2 + 3 * c)
        if c + 2 <= 6:
            for j in range(4): xdma(c + 2, j)
        if c + 3 <= 6:
            for b in range(3): wdma(c + 3, b)
        if LT and c < 5: stp.tick(3 + 3 * c)
    k.I("s_barrier")
    if LT:
        srd(k, sWS, pWS, WS_SIZE)
        stp.dump_ticks()
    k.I("s_endpgm")
    k.L(comp)
    k.vnext = vsave; k.vmq = []; k.lgq = []
    vpf = k.valloc(); vpd = k.valloc(4)
    k.I("s_lshr_b32", s(st0), "s2", 3)
    k.I("s_lshl_b32", s(st0), s(st0), 8)
    k.I("v_add_u32", v(vpf), s(st0), "v0")
    k.I("v_lshlrev_b32", v(vpf), 7, v(vpf))
    if not os.environ.get("EXP_NOPF"):
        k.I("buffer_load_dword", v(vpd), v(vpf), sr(sW, 4), 0, mods="offen")
        k.I("v_add_u32", v(vpf), 8192 * 128, v(vpf))
        k.I("buffer_load_dword", v(vpd + 1), v(vpf), sr(sW, 4), 0, mods="offen")
        k.I("s_and_b32", s(st0), "s2", 7)
        k.I("s_mul_i32", s(st0), s(st0), 256 * 896)
        k.I("v_subrev_u32", v(vpf), 9408 * 128, v(vpf))
        k.I("v_mov_b32", v(t0), hex(256 * 896))
        k.I("v_cmp_lt_u32", "vcc", v(vpf), v(t0))
        k.I("v_mov_b32", v(t1), "0x7fffff00")
        k.I("v_cndmask_b32", v(vpf), v(t1), v(vpf), "vcc")
        k.I("buffer_load_dword", v(vpd + 2), v(vpf), sr(sX, 4), s(st0), mods="offen")
    if os.environ.get("PF2", "1") == "1":
        pp = k.salloc(2); sP = k.salloc(4); vT = k.valloc(); vd = k.valloc(8)
        k.I("s_lshr_b32", s(st0), "s2", 3)
        k.I("s_lshl_b32", s(st0), s(st0), 8)
        k.I("v_add_u32", v(vT), s(st0), "v0")
        k.I("v_lshlrev_b32", v(vT), 7, v(vT))
        k.I("s_getpc_b64", sr(pp, 2))
        k.I("s_and_b32", s(pp), s(pp), "0xffffff00")
        srd(k, sP, pp, "CODE_BYTES-4096")
        k.I("buffer_load_dword", v(vd), v(vT), sr(sP, 4), 0, mods="offen")
        for (ko, nbytes, n) in ((16, 448 * 896, 1), (32, 448 * 3584, 2)):
            k.I("s_load_dwordx2", sr(pp, 2), "s[0:1]", ko)
            k.I("s_waitcnt", "lgkmcnt(0)")
            srd(k, sP, pp, nbytes)
            for i in range(n):
                k.I("s_mov_b32", s(st0), hex(i * 8192 * 128))
                k.I("buffer_load_dword", v(vd + 1 + i + (0 if ko == 16 else 1)), v(vT), sr(sP, 4), s(st0), mods="offen")
        vG = k.valloc()
        k.I("s_lshl_b32", s(st0), "s2", 8)
        k.I("v_add_u32", v(vG), s(st0), "v0")
        k.I("v_lshlrev_b32", v(vG), 7, v(vG))
        for n_, (ko, nbytes) in enumerate(((40, 2048 * 4096), (56, 896 * 896))):
            k.I("s_load_dwordx2", sr(pp, 2), "s[0:1]", ko)
            k.I("s_waitcnt", "lgkmcnt(0)")
            srd(k, sP, pp, nbytes)
            k.I("buffer_load_dword", v(vd + 5 + n_), v(vG), sr(sP, 4), 0, mods="offen")
        srd(k, sP, pWS, 0x1C00000)
        k.I("v_lshlrev_b32", v(t0), 9, v(vT))
        k.I("buffer_load_dword", v(vd + 4), v(t0), sr(sP, 4), 0, mods="offen")
    sm0x = k.salloc()
    k.I("s_mul_i32", s(sm0x), s(swave), NXS * XSL)
    k.I("s_add_u32", s(sm0x), s(sm0x), XRING)
    aX = k.valloc(4); vW = k.valloc(); aG = k.valloc(4); vWj = k.valloc()
    gg = k.valloc()
    k.I("v_and_b32", v(l31), 31, "v0")
    k.I("v_bfe_u32", v(hh), "v0", 5, 1)
    k.I("v_lshrrev_b32", v(gg), 4, v(lane))
    k.I("v_bfe_u32", v(t0), v(l31), 1, 3)
    for j in range(4):
        k.I("v_add_u32", v(t1), 2 * j, v(hh))
        k.I("v_xor_b32", v(t1), v(t1), v(t0))
        k.I("v_lshlrev_b32", v(t1), 4, v(t1))
        k.I("v_lshl_add_u32", v(aX + j), v(l31), 7, v(t1))
        k.I("v_add_u32", v(aX + j), s(sm0x), v(aX + j))
    for rg in range(2):
        k.I("v_add_u32", v(t0), 16 * rg, v(l15))
        k.I("v_bfe_u32", v(t1), v(t0), 1, 3)
        for kk in range(2):
            k.I("v_add_u32", v(t2), 4 * kk, v(gg))
            k.I("v_xor_b32", v(t2), v(t2), v(t1))
            k.I("v_lshlrev_b32", v(t2), 4, v(t2))
            k.I("v_lshl_add_u32", v(aG + 2 * rg + kk), v(t0), 7, v(t2))
            k.I("v_add_u32", v(aG + 2 * rg + kk), s(sm0x), v(aG + 2 * rg + kk))
    k.I("v_bfe_u32", v(t0), "v0", 2, 2)
    k.I("v_lshl_add_u32", v(t1), v(hh), 3, v(t0))
    k.I("v_mul_u32_u24", v(t1), 192, v(t1))
    k.I("v_bfe_u32", v(t2), "v0", 4, 1)
    k.I("v_lshl_add_u32", v(t1), v(t2), 5, v(t1))
    k.I("v_and_b32", v(t2), 3, "v0")
    k.I("v_lshl_add_u32", v(vW), v(t2), 3, v(t1))
    k.I("v_lshl_add_u32", v(t0), v(gg), 3, v(t0))
    k.I("v_mul_u32_u24", v(t0), 192, v(t0))
    k.I("v_lshl_add_u32", v(vWj), v(t2), 3, v(t0))
    k.I("s_lshr_b32", s(st0), s(swave), 1)
    k.I("s_mul_i32", s(st0), s(st0), 32 * 192)
    k.I("s_and_b32", s(st1), s(swave), 1)
    k.I("s_mul_i32", s(st1), s(st1), 96)
    k.I("s_add_u32", s(st0), s(st0), s(st1))
    k.I("v_add_u32", v(vWj), s(st0), v(vWj))
    vW2 = k.valloc(); vWj2 = k.valloc()
    k.I("v_add_u32", v(vW2), 4 * WCH, v(vW))
    k.I("v_add_u32", v(vWj2), 4 * WCH, v(vWj))
    ones = k.valloc(4)
    vWq = k.valloc(); vInc = k.valloc()
    k.I("v_and_b32", v(t0), 19, v(lane))
    k.I("v_cmp_eq_u32", "vcc", 19, v(t0))
    k.I("v_mov_b32", v(t1), ONES)
    k.I("v_cndmask_b32", v(vWq), v(vW), v(t1), "vcc")
    k.I("v_mov_b32", v(t1), 16 * 192)
    k.I("v_cndmask_b32", v(vInc), v(t1), 0, "vcc")
    k.I("v_lshlrev_b32", v(t0), 4, v(lane))
    k.I("v_add_u32", v(t0), ONES, v(t0))
    for i in range(4): k.I("v_mov_b32", v(ones + i), "0x3f803f80")
    k.lg("z", "ds_write_b128", v(t0), vr(ones, 4))
    zz = k.valloc(2); vtb = k.valloc()
    k.I("v_mov_b32", v(zz), 0); k.I("v_mov_b32", v(zz + 1), 0)
    k.I("v_lshlrev_b32", v(vtb), 3, v(lane))
    k.I("v_add_u32", v(vtb), CWT, v(vtb))
    k.lg("z", "ds_write_b64", v(vtb), vr(zz, 2))
    accq = k.valloc(16, 4); acck = k.valloc(16, 4); accv = k.valloc(16, 4)
    NB = 3
    cacc = [k.valloc(4) for _ in range(3)]
    gacc = [k.valloc(4) for _ in range(2)]
    vmark = k.vnext
    xf = [k.valloc(4) for _ in range(NB)]
    wf = [[k.valloc(4) for _ in range(3)] for _ in range(NB)]
    xs = [k.valloc(4) for _ in range(4)]
    wf2 = [k.valloc(4) for _ in range(3)]
    def read_list(ks):
        c, j = ks // 4, ks % 4
        b = ks % NB
        out = [lambda: k.lg(("f", ks), "ds_read_b128", vr(xf[b], 4), v(aX + j), mods=f"offset:{(c % NXS) * XSL}")]
        for beta in range(2):
            out.append(lambda beta=beta: k.lg(("f", ks), "ds_read_b64_tr_b16", vr(wf[b][0] + 2 * beta, 2), v(vWq), mods=f"offset:{beta * 4 * 192}"))
        out.append(lambda: k.I("v_add_u32", v(vWq), v(vInc), v(vWq)))
        for sg in range(1, 3):
            for beta in range(2):
                o = (c % 4) * WCH + (16 * j + 4 * beta) * 192 + 64 * sg
                base = vW if c < 4 else vW2
                out.append(lambda o=o, sg=sg, beta=beta, base=base: k.lg(("f", ks), "ds_read_b64_tr_b16", vr(wf[b][sg] + 2 * beta, 2), v(base), mods=f"offset:{o}"))
        return out
    def aux_reads(c):
        out = []
        for j in range(4):
            out.append(lambda j=j: k.lg(("g", c), "ds_read_b128", vr(xs[j], 4), v(aG + j), mods=f"offset:{(c % NXS) * XSL}"))
        for nt in range(3):
            for beta in range(2):
                o = (c % 4) * WCH + (4 * beta) * 192 + 32 * nt
                base = vWj if c < 4 else vWj2
                out.append(lambda o=o, nt=nt, beta=beta, base=base: k.lg(("cw", c), "ds_read_b64_tr_b16", vr(wf2[nt] + 2 * beta, 2), v(base), mods=f"offset:{o}"))
        return out
    k.I("s_waitcnt", "lgkmcnt(0)")
    srd(k, sWS, pWS, WS_SIZE)
    stp.stamp(0)
    k.wait_lg("z")
    k.I("s_barrier")
    stp.stamp(1)
    if os.environ.get("TICKWAVE", "0") != "0": stp.tick = lambda i: None
    stp.tick(0)
    for f in read_list(0): f()
    for f in read_list(1): f()
    for ks in range(28):
        c, j = ks // 4, ks % 4
        b = ks % NB
        fill = []
        if ks + 2 < 28:
            fill += read_list(ks + 2)
        vm = []
        aux = []
        if j == 0: aux = aux_reads(c)[:4]
        if j == 1: aux = aux_reads(c)[4:]
        if os.environ.get("EXP_NOCOMP"):
            k.lgq = []
            if j == 1 and c < 6:
                k.I("s_barrier"); stp.tick(1 + c)
            continue
        k.wait_lg(("f", ks))
        mf = [
            lambda: k.I("v_mfma_f32_32x32x16_bf16", vr(accq, 16), vr(wf[b][0], 4), vr(xf[b], 4), 0 if ks == 0 else vr(accq, 16)),
            lambda: k.I("v_mfma_f32_32x32x16_bf16", vr(acck, 16), vr(wf[b][1], 4), vr(xf[b], 4), 0 if ks == 0 else vr(acck, 16)),
            lambda: k.I("v_mfma_f32_32x32x16_bf16", vr(accv, 16), vr(xf[b], 4), vr(wf[b][2], 4), 0 if ks == 0 else vr(accv, 16)),
        ]
        fl = fill + aux + vm
        n = len(fl)
        cuts = [0, (n + 2) // 3, (2 * n + 2) // 3, n]
        for i in range(3):
            mf[i]()
            for f in fl[cuts[i]:cuts[i + 1]]: f()
        if j == 2:
            k.wait_lg(("g", c))
            for jj in range(4):
                k.I("v_mfma_f32_16x16x32_bf16", vr(gacc[jj >> 1], 4), vr(xs[jj], 4), vr(xs[jj], 4), 0 if (c == 0 and (jj & 1) == 0) else vr(gacc[jj >> 1], 4))
        if j == 3:
            k.wait_lg(("cw", c))
            for nt in range(3):
                k.I("v_mfma_f32_16x16x32_bf16", vr(cacc[nt], 4), vr(ones, 4), vr(wf2[nt], 4), 0 if c == 0 else vr(cacc[nt], 4))
        if j == 1 and c < 6:
            k.I("s_barrier")
            stp.tick(1 + c)
    stp.tick(13)
    stp.stamp(2)
    k.vnext = vmark
    m1 = k.salloc(2); m2 = k.salloc(2); m3 = k.salloc(2)
    k.I("v_and_b32", v(t0), 3, v(lane))
    k.I("v_cmp_eq_u32", sr(m1, 2), 1, v(t0))
    k.I("v_cmp_eq_u32", sr(m2, 2), 2, v(t0))
    k.I("v_cmp_eq_u32", sr(m3, 2), 3, v(t0))
    vtl = k.valloc()
    k.I("v_lshlrev_b32", v(vtl), 2, v(l15))
    k.I("v_add_u32", v(vtl), TBL, v(vtl))
    k.I("s_and_b32", s(st1), s(swave), 1)
    k.I("s_mul_i32", s(st1), s(st1), 192)
    k.I("v_add_u32", v(t1), s(st1), v(vtl))
    k.I("s_mov_b32", "exec_lo", "0xffff")
    k.I("s_mov_b32", "exec_hi", 0)
    for nt in range(3):
        k.I("ds_add_f32", v(t1), v(cacc[nt]), mods=f"offset:{64 * nt}")
    k.I("s_mov_b64", "exec", -1)
    for rg in range(2):
        g_ = gacc[rg]
        k.I("v_cndmask_b32", v(g_), v(g_), v(g_ + 1), sr(m1, 2))
        k.I("v_cndmask_b32", v(g_), v(g_), v(g_ + 2), sr(m2, 2))
        k.I("v_cndmask_b32", v(g_), v(g_), v(g_ + 3), sr(m3, 2))
    k.I("s_lshl_b32", s(st0), s(swave), 7)
    k.I("v_add_u32", v(t0), s(st0), v(vtl))
    k.I("s_mov_b32", "exec_lo", "0x00f0000f")
    k.I("s_mov_b32", "exec_hi", "0xf0000f00")
    for rg in range(2):
        k.I("ds_write_b32", v(t0), v(gacc[rg]), mods=f"offset:{SQT - TBL + 64 * rg}")
    k.I("s_mov_b64", "exec", -1)
    sq = k.valloc(2); rl = k.valloc(2); nml = k.valloc(2); cwv = k.valloc(2)
    cwq = k.valloc(16, 4); cwk = k.valloc(16, 4); rv = k.valloc(16, 4); nv = k.valloc(16, 4)
    ta = k.valloc(); tb = k.valloc(); tc = k.valloc()
    k.I("v_lshlrev_b32", v(ta), 2, v(l31))
    k.I("s_add_u32", s(st0), s(st0), TBL)
    k.I("v_add_u32", v(ta), s(st0), v(ta))
    k.I("v_mov_b32", v(nml), v(accq + 12))
    k.I("v_mov_b32", v(nml + 1), v(accq + 12))
    k.I("v_permlane32_swap_b32", v(nml), v(nml + 1))
    k.I("v_mul_f32", v(nml), hex(f32(-1.0 / 448)), v(nml + 1))
    k.I("s_waitcnt", "lgkmcnt(0)")
    k.I("ds_read_b32", v(sq), v(ta), mods=f"offset:{SQT - TBL}")
    k.I("ds_write_b32", v(ta), v(nml), mods=f"offset:{NMT - TBL}")
    k.I("s_barrier")
    k.I("v_lshlrev_b32", v(tb), 4, v(hh))
    k.I("v_add_u32", v(tb), TBL, v(tb))
    for q in range(4):
        k.I("ds_read_b128", vr(cwq + 4 * q, 4), v(tb), mods=f"offset:{CWT - TBL + 32 * q}")
        k.I("ds_read_b128", vr(cwk + 4 * q, 4), v(tb), mods=f"offset:{CWT - TBL + 128 + 32 * q}")
    k.I("v_lshlrev_b32", v(tc), 2, v(l31))
    k.I("v_add_u32", v(tc), TBL, v(tc))
    k.I("ds_read_b32", v(cwv), v(tc), mods=f"offset:{CWT - TBL + 256}")
    k.I("s_waitcnt", "lgkmcnt(9)")
    k.I("v_mul_f32", v(sq), hex(f32(1.0 / 448)), v(sq))
    k.I("v_fma_f32", v(sq), f"-{v(nml)}", v(nml), v(sq))
    k.I("v_max_f32", v(sq), 0, v(sq))
    k.I("v_add_f32", v(sq), hex(f32(1e-5)), v(sq))
    k.I("v_rsq_f32", v(rl), v(sq))
    k.I("s_lshl_b32", s(st0), s(swave), 7)
    k.I("v_add_u32", v(tb), s(st0), v(tb))
    k.I("ds_write_b32", v(ta), v(rl), mods=f"offset:{RT - TBL}")
    k.I("s_waitcnt", "lgkmcnt(0)")
    for q in range(4):
        k.I("ds_read_b128", vr(rv + 4 * q, 4), v(tb), mods=f"offset:{RT - TBL + 32 * q}")
        k.I("ds_read_b128", vr(nv + 4 * q, 4), v(tb), mods=f"offset:{NMT - TBL + 32 * q}")
    k.lgq = []
    vq = k.valloc(); vv_ = k.valloc()
    k.I("v_lshrrev_b32", v(t0), 4, v(l31))
    k.I("v_lshlrev_b32", v(vq), 10, v(t0))
    k.I("v_lshl_add_u32", v(vq), v(l15), 4, v(vq))
    k.I("v_lshl_add_u32", v(vq), v(hh), 9, v(vq))
    k.I("v_lshlrev_b32", v(vv_), 9, v(t0))
    k.I("v_lshl_add_u32", v(vv_), v(l15), 3, v(vv_))
    k.I("v_lshl_add_u32", v(vv_), v(hh), 7, v(vv_))
    sb = k.salloc()
    k.I("s_lshl_b32", s(sb), s(shd), 17)
    k.I("s_lshl_b32", s(st0), s(srb), 13)
    k.I("s_add_u32", s(sb), s(sb), s(st0))
    k.I("s_lshl_b32", s(st0), s(swave), 11)
    k.I("s_add_u32", s(sb), s(sb), s(st0))
    k.I("v_cmp_eq_u32", "vcc", 0, v(hh))
    pk = k.valloc(8, 4)
    for (acc, cw, off) in ((accq, cwq, Q_OFF), (acck, cwk, K_OFF)):
        for j in range(8):
            k.I("v_pk_fma_f32", vr(acc + 2 * j, 2), vr(cw + 2 * j, 2), vr(nml, 2), vr(acc + 2 * j, 2), mods="op_sel_hi:[1,0,1]")
        for j in range(8):
            k.I("v_pk_mul_f32", vr(acc + 2 * j, 2), vr(acc + 2 * j, 2), vr(rl, 2), mods="op_sel_hi:[1,0]")
        for j in range(8):
            k.I("v_cvt_pk_bf16_f32", v(pk + j), v(acc + 2 * j), v(acc + 2 * j + 1))
        k.I("v_cndmask_b32", v(pk + 6), 0, v(pk + 6), "vcc")
        k.I("v_cndmask_b32", v(pk + 7), 0, v(pk + 7), "vcc")
        k.I("s_add_u32", s(soff), s(sb), hex(off))
        k.I("buffer_store_dwordx4", vr(pk, 4), v(vq), sr(sWS, 4), s(soff), mods="offen")
        k.I("buffer_store_dwordx4", vr(pk + 4, 4), v(vq), sr(sWS, 4), s(soff), mods="offen offset:256")
        pk = k.valloc(8, 4)
    k.I("s_waitcnt", "lgkmcnt(0)")
    for j in range(8):
        k.I("v_pk_fma_f32", vr(accv + 2 * j, 2), vr(nv + 2 * j, 2), vr(cwv, 2), vr(accv + 2 * j, 2), mods="op_sel_hi:[1,0,1]")
    for j in range(8):
        k.I("v_pk_mul_f32", vr(accv + 2 * j, 2), vr(accv + 2 * j, 2), vr(rv + 2 * j, 2))
    for j in range(8):
        k.I("v_cvt_pk_bf16_f32", v(pk + j), v(accv + 2 * j), v(accv + 2 * j + 1))
    k.I("v_mov_b32", v(t0), "0x3f803f80")
    k.I("v_cmp_eq_u32", "vcc", 28, v(l31))
    k.I("v_cndmask_b32", v(t0), 0, v(t0), "vcc")
    k.I("v_cmp_gt_u32", "vcc", 28, v(l31))
    for j in range(8):
        k.I("v_cndmask_b32", v(pk + j), v(t0), v(pk + j), "vcc")
    k.I("s_add_u32", s(soff), s(sb), hex(V_OFF))
    for q in range(4):
        k.I("buffer_store_dwordx2", vr(pk + 2 * q, 2), v(vv_), sr(sWS, 4), s(soff), mods=f"offen offset:{(q >> 1) * 1024 + (q & 1) * 256}")
    stp.tick(15)
    stp.stamp(3)
    stp.dump_ticks()
    k.L(done)
    k.I("s_endpgm")
    k.lds = lds; k.threads = 512; k.grid = 256
    return k

import struct
def f32(x): return struct.unpack("<I", struct.pack("<f", x))[0]

def assemble(kernels):
    out = []
    hdr = open("cdna_kernels/" + NAME + ".s.ref").read().split("\n")
    for line in hdr:
        if line.startswith("; Override") or line.startswith("; grid=") or line.startswith("; @launch"): continue
        if not line.startswith(";"): break
        out.append(line)
    for k in kernels:
        out.append(f"; @launch kernel={k.name} grid=({k.grid},1,1) block=({k.threads},1,1) lds={k.lds}")
    out.append('.amdgcn_target "amdgcn-amd-amdhsa--gfx950"')
    out.append(".text")
    for k in kernels:
        n = k.fix_hazards()
        out.append(f".globl {k.name}")
        out.append(".p2align 8")
        out.append(f".type {k.name},@function")
        out.append(f"{k.name}:")
        out.append(k.render())
        print(f"{k.name}: {len(k.ins)} instrs, hazard pads {n}, vgpr {k.vmax} agpr {k.amax} sgpr {k.smax} lds {k.lds}", file=sys.stderr)
    out.append("code_end:")
    out.append(f".set CODE_BYTES, code_end - {kernels[0].name}")
    out.append('.section .rodata,"a"')
    for k in kernels:
        out.append(".p2align 6")
        out.append(k.descriptor())
    return "\n".join(out) + "\n"

if __name__ == "__main__":
    import kernels2 as k2
    ks = [gen_k1()] + k2.rest(Stamper)
    path = sys.argv[1] if len(sys.argv) > 1 else "cdna_kernels/" + NAME + ".s"
    open(path, "w").write(assemble(ks))
```

```python
import os, struct, math
from asmlib import *
from layout import *
WS_SIZE = 0x10000000
def f32(x): return struct.unpack("<I", struct.pack("<f", x))[0]

def srd(k, dst, base, size):
    k.I("s_mov_b32", s(dst), s(base))
    k.I("s_and_b32", s(dst + 1), s(base + 1), "0xffff")
    k.I("s_mov_b32", s(dst + 2), hex(size) if isinstance(size, int) else size)
    k.I("s_mov_b32", s(dst + 3), "0x20000")

def gen_k2(Stamper):
    k = Kernel("k2_attn_kernel")
    k.snext = 4; k.vnext = 1
    KREG = 0; VREG = 24576
    lds = 49152
    done = k.newlabel("done")
    k.I("s_cmp_ge_u32", "s2", 256)
    k.I("s_cbranch_scc1", done)
    pWS = k.salloc(2)
    k.I("s_load_dwordx2", sr(pWS, 2), "s[0:1]", 80)
    sWS = k.salloc(4)
    swave = k.salloc(); srb = k.salloc(); shd = k.salloc(); st0 = k.salloc(); st1 = k.salloc(); soff = k.salloc()
    lane = k.valloc(); t0 = k.valloc(); t1 = k.valloc(); l15 = k.valloc(); gg = k.valloc()
    k.I("v_lshrrev_b32", v(t0), 6, "v0")
    k.I("v_and_b32", v(lane), 63, "v0")
    k.I("v_readfirstlane_b32", s(swave), v(t0))
    k.I("s_and_b32", s(st0), "s2", 7)
    k.I("s_lshr_b32", s(st1), "s2", 3)
    k.I("s_and_b32", s(shd), s(st1), 15)
    k.I("s_lshr_b32", s(st1), s(st1), 4)
    k.I("s_lshl_b32", s(srb), s(st0), 1)
    k.I("s_add_u32", s(srb), s(srb), s(st1))
    stp = Stamper(k, 1, sWS, swave)
    v16 = k.valloc()
    k.I("v_lshlrev_b32", v(v16), 4, v(lane))
    sb = k.salloc(); sm = k.salloc(); s16q = k.salloc()
    k.I("s_lshl_b32", s(sb), s(shd), 17)
    k.I("s_lshl_b32", s(st0), s(srb), 13)
    k.I("s_add_u32", s(sb), s(sb), s(st0))
    k.I("s_mul_i32", s(sm), s(swave), 3072)
    k.I("s_lshl_b32", s(s16q), s(srb), 3)
    k.I("s_add_u32", s(s16q), s(s16q), s(swave))
    k.I("s_waitcnt", "lgkmcnt(0)")
    srd(k, sWS, pWS, WS_SIZE)
    qf = k.valloc(4)
    k.I("s_lshl_b32", s(st0), s(swave), 10)
    k.I("s_add_u32", s(st0), s(st0), s(sb))
    k.I("s_add_u32", s(soff), s(st0), hex(Q_OFF))
    k.vm("q", "buffer_load_dwordx4", vr(qf, 4), v(v16), sr(sWS, 4), s(soff), mods="offen")
    k.I("s_add_u32", s(st1), s(sb), s(sm))
    for (reg, off) in ((KREG, K_OFF), (VREG, V_OFF)):
        for i in range(3):
            k.I("s_add_u32", s(soff), s(st1), hex(off - 16384 + i * 1024))
            k.I("s_add_u32", "m0", s(sm), hex(reg + i * 1024))
            k.vm("kv", "buffer_load_dwordx4", v(v16), sr(sWS, 4), s(soff), mods="offen lds")
    sidx2 = k.salloc()
    k.I("s_lshr_b32", s(sidx2), "s2", 3)
    code_prefetch(k, "k3_wo_kernel", sidx2, st0)
    stp.stamp(0)
    k.I("v_and_b32", v(l15), 15, v(lane))
    k.I("v_lshrrev_b32", v(gg), 4, v(lane))
    M = [k.salloc(2) for _ in range(4)]
    k.I("v_lshlrev_b32", v(t0), 2, v(gg))
    for i in range(4):
        k.I("v_add_u32", v(t1), i, v(t0))
        k.I("v_cmp_gt_u32", sr(M[i], 2), v(t1), v(l15))
    aK = k.valloc(); aV = k.valloc()
    k.I("s_lshl_b32", s(st0), s(swave), 10)
    k.I("v_add_u32", v(aK), s(st0), v(v16))
    k.I("v_lshlrev_b32", v(aV), 3, v(lane))
    k.I("s_add_u32", s(st0), s(st0), VREG)
    k.I("v_add_u32", v(aV), s(st0), v(aV))
    S = k.valloc(68, 4)
    kf = [k.valloc(4) for _ in range(6)]
    neg = k.valloc()
    k.I("v_mov_b32", v(neg), hex(f32(-1e30)))
    k.wait_vm(["q", "kv"])
    k.I("s_barrier")
    stp.stamp(1)
    NKF = 6
    for j in range(min(NKF, 17)):
        k.lg(("k", j), "ds_read_b128", vr(kf[j % NKF], 4), v(aK), mods=f"offset:{j * 1024}")
    for j in range(17):
        k.wait_lg(("k", j))
        k.I("v_mfma_f32_16x16x32_bf16", vr(S + 4 * j, 4), vr(kf[j % NKF], 4), vr(qf, 4), 0)
        if j + NKF < 17:
            k.lg(("k", j + NKF), "ds_read_b128", vr(kf[j % NKF], 4), v(aK), mods=f"offset:{(j + NKF) * 1024}")
    vf = k.valloc(9 * 2 * 4, 4)
    def vread(kp):
        for dt in range(2):
            for beta in range(2):
                tile = min(2 * kp + beta, 16)
                k.lg(("v", kp), "ds_read_b64", vr(vf + (kp * 2 + dt) * 4 + 2 * beta, 2), v(aV), mods=f"offset:{tile * 1024 + dt * 512}")
    for kp in range(3): vread(kp)
    for i in range(4):
        k.I("v_cndmask_b32", v(S + i), v(neg), v(S + i), sr(M[i], 2))
        k.I("v_cndmask_b32", v(S + 64 + i), v(S + 64 + i), v(neg), sr(M[i], 2))
    nofix = k.newlabel("nofix")
    k.I("s_cmp_ge_u32", s(s16q), 16)
    k.I("s_cbranch_scc1", nofix)
    k.I("s_sub_u32", s(st0), 16, s(s16q))
    for j in range(16):
        lab = k.newlabel("sk")
        k.I("s_cmp_le_u32", s(st0), j)
        k.I("s_cbranch_scc1", lab)
        for i in range(4): k.I("v_mov_b32", v(S + 4 * j + i), v(neg))
        k.L(lab)
    k.L(nofix)
    mx = k.valloc(4)
    for c in range(4):
        k.I("v_max3_f32", v(mx + c), v(S + c * 17), v(S + c * 17 + 1), v(S + c * 17 + 2))
    for r in range(7):
        for c in range(4):
            b = c * 17 + 3 + 2 * r
            k.I("v_max3_f32", v(mx + c), v(mx + c), v(S + b), v(S + b + 1))
    k.I("v_max3_f32", v(mx), v(mx), v(mx + 1), v(mx + 2))
    k.I("v_max_f32", v(mx), v(mx), v(mx + 3))
    for sw in ("v_permlane16_swap_b32", "v_permlane32_swap_b32"):
        k.I("v_mov_b32", v(mx + 1), v(mx))
        k.I(sw, v(mx), v(mx + 1))
        k.I("v_max_f32", v(mx), v(mx), v(mx + 1))
    cs = 28 ** -0.5 * math.log2(math.e)
    sc = k.salloc()
    k.I("s_mov_b32", s(sc), hex(f32(cs)))
    k.I("v_mul_f32", v(mx), hex(f32(-cs)), v(mx))
    for kp in range(3, 6): vread(kp)
    P = k.valloc(36, 4)
    k.I("v_mov_b32", v(P + 34), 0); k.I("v_mov_b32", v(P + 35), 0)
    O = [k.valloc(4), k.valloc(4)]
    def softmax_tile(j):
        for i in range(4): k.I("v_fma_f32", v(S + 4 * j + i), v(S + 4 * j + i), s(sc), v(mx))
        for i in range(4): k.I("v_exp_f32", v(S + 4 * j + i), v(S + 4 * j + i))
    def pack_tile(j):
        k.I("v_cvt_pk_bf16_f32", v(P + 2 * j), v(S + 4 * j), v(S + 4 * j + 1))
        k.I("v_cvt_pk_bf16_f32", v(P + 2 * j + 1), v(S + 4 * j + 2), v(S + 4 * j + 3))
    for kp in range(9):
        tiles = [2 * kp, 2 * kp + 1] if kp < 8 else [16]
        for j in tiles: softmax_tile(j)
        for j in tiles: pack_tile(j)
        if kp == 2:
            for q in range(6, 9): vread(q)
        if kp >= 1:
            q = kp - 1
            k.wait_lg(("v", q))
            for dt in range(2):
                k.I("v_mfma_f32_16x16x32_bf16", vr(O[dt], 4), vr(vf + (q * 2 + dt) * 4, 4), vr(P + 4 * q, 4), 0 if q == 0 else vr(O[dt], 4))
    k.wait_lg(("v", 8))
    for dt in range(2):
        k.I("v_mfma_f32_16x16x32_bf16", vr(O[dt], 4), vr(vf + (8 * 2 + dt) * 4, 4), vr(P + 32, 4), vr(O[dt], 4))
    la = k.valloc(); lb = k.valloc()
    k.I("v_mov_b32", v(la), v(O[1])); k.I("v_mov_b32", v(lb), v(O[1]))
    k.I("v_permlane32_swap_b32", v(la), v(lb))
    k.I("v_mov_b32", v(la), v(lb))
    k.I("v_permlane16_swap_b32", v(la), v(lb))
    k.I("v_rcp_f32", v(lb), v(lb))
    for dt in range(2):
        for i in range(4): k.I("v_mul_f32", v(O[dt] + i), v(O[dt] + i), v(lb))
    pk = k.valloc(4)
    for dt in range(2):
        k.I("v_cvt_pk_bf16_f32", v(pk + 2 * dt), v(O[dt]), v(O[dt] + 1))
        k.I("v_cvt_pk_bf16_f32", v(pk + 2 * dt + 1), v(O[dt] + 2), v(O[dt] + 3))
    k.I("v_cmp_gt_u32", "vcc", 3, v(gg))
    k.I("v_cndmask_b32", v(pk + 2), 0, v(pk + 2), "vcc")
    k.I("v_cndmask_b32", v(pk + 3), 0, v(pk + 3), "vcc")
    vo = k.valloc()
    k.I("s_and_b32", s(st0), s(swave), 1)
    k.I("s_lshl_b32", s(st0), s(st0), 8)
    k.I("v_lshlrev_b32", v(vo), 4, v(l15))
    k.I("v_add_u32", v(vo), s(st0), v(vo))
    k.I("v_lshrrev_b32", v(t0), 1, v(gg))
    k.I("v_lshl_add_u32", v(vo), v(t0), 9, v(vo))
    k.I("v_and_b32", v(t0), 1, v(gg))
    k.I("v_lshl_add_u32", v(vo), v(t0), 3, v(vo))
    k.I("s_lshl_b32", s(st0), s(srb), 2)
    k.I("s_lshr_b32", s(st1), s(swave), 1)
    k.I("s_add_u32", s(st0), s(st0), s(st1))
    k.I("s_lshl_b32", s(st0), s(st0), 15)
    k.I("s_lshl_b32", s(st1), s(shd), 11)
    k.I("s_add_u32", s(st0), s(st0), s(st1))
    k.I("s_add_u32", s(soff), s(st0), hex(O_OFF))
    for dt in range(2):
        k.I("buffer_store_dwordx2", vr(pk + 2 * dt, 2), v(vo), sr(sWS, 4), s(soff), mods=f"offen offset:{dt * 1024}")
    stp.stamp(2)
    k.L(done)
    k.I("s_endpgm")
    k.lds = lds; k.threads = 512; k.grid = 256
    return k


def code_prefetch(k, nxt, sidx, tmp_s, tid="v0"):
    if os.environ.get("PFC", "1") != "1": return
    pp = k.salloc(2); sP = k.salloc(4); vT = k.valloc(); vd = k.valloc()
    lab = k.newlabel("pc")
    k.I("s_getpc_b64", sr(pp, 2))
    k.L(lab)
    k.I("s_add_u32", s(pp), s(pp), f"{nxt}-{lab}")
    k.I("s_addc_u32", s(pp + 1), s(pp + 1), 0)
    srd(k, sP, pp, f"{nxt}_end-{nxt}")
    k.I("s_lshl_b32", s(tmp_s), s(sidx), 8)
    k.I("v_add_u32", v(vT), s(tmp_s), tid)
    k.I("v_lshlrev_b32", v(vT), 7, v(vT))
    k.vm("pfc", "buffer_load_dword", v(vd), v(vT), sr(sP, 4), 0, mods="offen")

def common_start(k, nwg):
    k.snext = 4; k.vnext = 1
    done = k.newlabel("done")
    k.I("s_cmp_ge_u32", "s2", nwg)
    k.I("s_cbranch_scc1", done)
    R = dict(done=done)
    R["swave"] = k.salloc(); R["st0"] = k.salloc(); R["st1"] = k.salloc(); R["soff"] = k.salloc()
    R["lane"] = k.valloc(); R["t0"] = k.valloc(); R["t1"] = k.valloc(); R["t2"] = k.valloc()
    k.I("v_lshrrev_b32", v(R["t0"]), 6, "v0")
    k.I("v_and_b32", v(R["lane"]), 63, "v0")
    k.I("v_readfirstlane_b32", s(R["swave"]), v(R["t0"]))
    return R

def interleave(k, mf, fl):
    n = len(fl); m = len(mf)
    cuts = [(i * n + m - 1) // m for i in range(m + 1)]
    cuts[-1] = n
    for i in range(m):
        mf[i]()
        for f in fl[cuts[i]:cuts[i + 1]]: f()

def stats_from_packed(k, P, n, accs, accq, tmp):
    for j in range(n):
        t = tmp[j % len(tmp)]
        k.I("v_lshlrev_b32", v(t), 16, v(P + j))
        k.I("v_and_b32", v(t + 1), "0xffff0000", v(P + j))
        if j == 0:
            k.I("v_pk_mul_f32", vr(accq, 2), vr(t, 2), vr(t, 2))
            k.I("v_mov_b32", v(accs), v(t)); k.I("v_mov_b32", v(accs + 1), v(t + 1))
        else:
            k.I("v_pk_add_f32", vr(accs, 2), vr(accs, 2), vr(t, 2))
            k.I("v_pk_fma_f32", vr(accq, 2), vr(t, 2), vr(t, 2), vr(accq, 2))
    k.I("v_add_f32", v(accs), v(accs), v(accs + 1))
    k.I("v_add_f32", v(accq), v(accq), v(accq + 1))
    for r_ in (accs, accq):
        k.I("v_mov_b32", v(r_ + 1), v(r_))
        k.I("v_permlane32_swap_b32", v(r_), v(r_ + 1))
        k.I("v_add_f32", v(r_), v(r_), v(r_ + 1))

def gen_k3(Stamper):
    k = Kernel("k3_wo_kernel")
    WREG = 0; OREG = 58368
    lds = OREG + 65536
    R = common_start(k, 256)
    swave, st0, st1, soff, lane, t0, t1, t2 = (R[x] for x in ("swave", "st0", "st1", "soff", "lane", "t0", "t1", "t2"))
    pX = k.salloc(2); pWo = k.salloc(2); pWin = k.salloc(2); pWS = k.salloc(2)
    k.I("s_load_dwordx2", sr(pX, 2), "s[0:1]", 0)
    k.I("s_load_dwordx2", sr(pWo, 2), "s[0:1]", 16)
    k.I("s_load_dwordx2", sr(pWin, 2), "s[0:1]", 32)
    k.I("s_load_dwordx2", sr(pWS, 2), "s[0:1]", 80)
    sWS = k.salloc(4); sWo = k.salloc(4); sX = k.salloc(4)
    sj = k.salloc(); sidx = k.salloc(); srt = k.salloc(); snt = k.salloc(); sw3 = k.salloc()
    k.I("s_and_b32", s(sj), "s2", 7)
    k.I("s_lshr_b32", s(sidx), "s2", 3)
    k.I("s_and_b32", s(sw3), s(swave), 3)
    stp = Stamper(k, 2, sWS, swave)
    aux = k.newlabel("aux")
    k.I("s_cmp_ge_u32", s(sidx), 28)
    k.I("s_cbranch_scc1", aux)
    k.I("s_mul_i32", s(st0), s(sidx), 37)
    k.I("s_lshr_b32", s(st0), s(st0), 8)
    k.I("s_mul_i32", s(st1), s(st0), 7)
    k.I("s_sub_u32", s(snt), s(sidx), s(st1))
    k.I("s_lshl_b32", s(srt), s(sj), 2)
    k.I("s_add_u32", s(srt), s(srt), s(st0))
    k.I("s_waitcnt", "lgkmcnt(0)")
    srd(k, sWS, pWS, WS_SIZE)
    comp = k.newlabel("compute")
    k.I("s_cmp_lt_u32", s(swave), 4)
    k.I("s_cbranch_scc1", comp)
    vsave = k.vnext
    srd(k, sWo, pWo, 448 * 896)
    v16 = k.valloc(); vWo = k.valloc()
    k.I("v_lshlrev_b32", v(v16), 4, v(lane))
    k.I("v_lshrrev_b32", v(t0), 3, v(lane))
    k.I("v_mul_u32_u24", v(t0), 896, v(t0))
    k.I("v_bfe_u32", v(t1), v(lane), 4, 1)
    k.I("v_lshlrev_b32", v(t1), 2, v(t1))
    k.I("v_and_b32", v(t2), 7, v(lane))
    k.I("v_xor_b32", v(t1), v(t1), v(t2))
    k.I("v_lshl_add_u32", v(vWo), v(t1), 4, v(t0))
    sOb = k.salloc(); sWb = k.salloc(); smO = k.salloc(); smW = k.salloc()
    k.I("s_lshl_b32", s(sOb), s(srt), 16)
    k.I("s_lshl_b32", s(st0), s(sw3), 10)
    k.I("s_add_u32", s(sOb), s(sOb), s(st0))
    k.I("s_add_u32", s(sOb), s(sOb), hex(O_OFF))
    k.I("s_add_u32", s(smO), s(st0), OREG)
    k.I("s_mul_i32", s(sWb), s(sw3), 8 * 896)
    k.I("s_lshl_b32", s(st1), s(snt), 7)
    k.I("s_add_u32", s(sWb), s(sWb), s(st1))
    k.I("s_add_u32", s(smW), s(st0), WREG)
    def issue(c):
        for r2 in range(2):
            k.I("s_add_u32", s(soff), s(sOb), hex(r2 * 32768 + c * 4096))
            k.I("s_add_u32", "m0", s(smO), hex(r2 * 32768 + c * 4096))
            k.vm(("S", c), "buffer_load_dwordx4", v(v16), sr(sWS, 4), s(soff), mods="offen lds")
        for i in range(2):
            k.I("s_add_u32", s(soff), s(sWb), hex((56 * c + 32 * i) * 896))
            k.I("s_add_u32", "m0", s(smW), hex((56 * c + 32 * i) * 128))
            k.vm(("S", c), "buffer_load_dwordx4", v(vWo), sr(sWo, 4), s(soff), mods="offen lds")
    LA = 3
    for c in range(LA): issue(c)
    for c in range(8):
        k.wait_vm(("S", c))
        k.I("s_barrier")
        if c + LA < 8: issue(c + LA)
    k.I("s_endpgm")
    k.L(comp)
    k.vnext = vsave; k.vmq = []; k.lgq = []
    srd(k, sX, pX, 2048 * 896)
    l31 = k.valloc(); hh = k.valloc()
    k.I("v_and_b32", v(l31), 31, v(lane))
    k.I("v_lshrrev_b32", v(hh), 5, v(lane))
    srh = k.salloc(); snh = k.salloc(); sst = k.salloc(); sntile = k.salloc()
    k.I("s_and_b32", s(srh), s(swave), 1)
    k.I("s_lshr_b32", s(snh), s(swave), 1)
    k.I("s_lshl_b32", s(sst), s(srt), 1)
    k.I("s_add_u32", s(sst), s(sst), s(srh))
    k.I("s_lshl_b32", s(sntile), s(snt), 1)
    k.I("s_add_u32", s(sntile), s(sntile), s(snh))
    xr = k.valloc(8, 4); vx = k.valloc()
    k.I("v_mul_u32_u24", v(vx), 896, v(l31))
    k.I("v_lshl_add_u32", v(vx), v(hh), 3, v(vx))
    k.I("s_mul_i32", s(soff), s(sst), 32 * 896)
    k.I("s_lshl_b32", s(st0), s(sntile), 6)
    k.I("s_add_u32", s(soff), s(soff), s(st0))
    for q in range(4):
        k.vm("x", "buffer_load_dwordx2", vr(xr + 2 * q, 2), v(vx), sr(sX, 4), s(soff), mods=f"offen offset:{16 * q}")
    code_prefetch(k, "k4_win_kernel", sidx, st0)
    stp.stamp(0)
    aO = k.valloc(); vW = k.valloc()
    k.I("v_lshlrev_b32", v(aO), 4, v(lane))
    k.I("s_lshl_b32", s(st0), s(srh), 15)
    k.I("s_add_u32", s(st0), s(st0), OREG)
    k.I("v_add_u32", v(aO), s(st0), v(aO))
    k.I("v_bfe_u32", v(t0), v(lane), 2, 2)
    k.I("v_lshl_add_u32", v(t0), v(hh), 3, v(t0))
    k.I("v_lshlrev_b32", v(vW), 7, v(t0))
    k.I("v_bfe_u32", v(t0), v(lane), 4, 1)
    k.I("v_lshlrev_b32", v(t0), 1, v(t0))
    k.I("v_bfe_u32", v(t1), v(lane), 1, 1)
    k.I("v_add_u32", v(t0), v(t0), v(t1))
    k.I("s_lshl_b32", s(st0), s(snh), 2)
    k.I("v_add_u32", v(t0), s(st0), v(t0))
    k.I("v_bfe_u32", v(t1), v(lane), 3, 1)
    k.I("v_lshlrev_b32", v(t1), 2, v(t1))
    k.I("v_xor_b32", v(t0), v(t0), v(t1))
    k.I("v_lshl_add_u32", v(vW), v(t0), 4, v(vW))
    k.I("v_and_b32", v(t0), 1, v(lane))
    k.I("v_lshl_add_u32", v(vW), v(t0), 3, v(vW))
    acc = k.valloc(16, 4)
    NB = 3
    of = [k.valloc(4) for _ in range(NB)]; wf = [k.valloc(4) for _ in range(NB)]
    def rl(ks):
        b = ks % NB
        out = [lambda: k.lg(("f", ks), "ds_read_b128", vr(of[b], 4), v(aO), mods=f"offset:{ks * 1024}")]
        for beta in range(2):
            o = (28 * (ks >> 1) + 16 * (ks & 1) + 4 * beta) * 128
            out.append(lambda o=o, beta=beta: k.lg(("f", ks), "ds_read_b64_tr_b16", vr(wf[b] + 2 * beta, 2), v(vW), mods=f"offset:{o}"))
        return out
    k.I("s_barrier")
    stp.stamp(1)
    for f in rl(0) + rl(1): f()
    for ks in range(32):
        c, j = ks // 4, ks % 4
        b = ks % NB
        k.wait_lg(("f", ks))
        k.I("v_mfma_f32_32x32x16_bf16", vr(acc, 16), vr(wf[b], 4), vr(of[b], 4), 0 if ks == 0 else vr(acc, 16))
        if j == 1 and c < 7: k.I("s_barrier")
        if ks + 2 < 32 and not (j == 1 and False):
            pass
        nxt = ks + 2
        if nxt < 32:
            for f in rl(nxt): f()
    EOF_MARK = None
    stp.stamp(2)
    k.wait_vm("x")
    tmp = [k.valloc(2) for _ in range(4)]
    for q in range(4):
        for d in range(2):
            t = tmp[(2 * q + d) % 4]
            k.I("v_lshlrev_b32", v(t), 16, v(xr + 2 * q + d))
            k.I("v_and_b32", v(t + 1), "0xffff0000", v(xr + 2 * q + d))
            k.I("v_pk_add_f32", vr(acc + 4 * q + 2 * d, 2), vr(acc + 4 * q + 2 * d, 2), vr(t, 2))
    P = k.valloc(8, 4)
    for j in range(8): k.I("v_cvt_pk_bf16_f32", v(P + j), v(acc + 2 * j), v(acc + 2 * j + 1))
    v16 = k.valloc()
    k.I("v_lshlrev_b32", v(v16), 4, v(lane))
    k.I("s_mul_i32", s(soff), s(sst), 28 * 1024)
    k.I("s_lshl_b32", s(st0), s(sntile), 11)
    k.I("s_add_u32", s(soff), s(soff), s(st0))
    k.I("s_add_u32", s(soff), s(soff), hex(H_OFF))
    k.I("buffer_store_dwordx4", vr(P, 4), v(v16), sr(sWS, 4), s(soff), mods="offen")
    k.I("buffer_store_dwordx4", vr(P + 4, 4), v(v16), sr(sWS, 4), s(soff), mods="offen offset:1024")
    accs = k.valloc(2); accq = k.valloc(2)
    stats_from_packed(k, P, 8, accs, accq, tmp)
    k.I("v_mov_b32", v(accs + 1), v(accq))
    vh = k.valloc()
    k.I("v_mul_u32_u24", v(vh), 112, v(l31))
    k.I("s_mul_i32", s(soff), s(sst), 32 * 112)
    k.I("s_lshl_b32", s(st0), s(sntile), 3)
    k.I("s_add_u32", s(soff), s(soff), s(st0))
    k.I("s_add_u32", s(soff), s(soff), hex(HS_OFF))
    k.I("s_mov_b32", "exec_hi", 0)
    k.I("buffer_store_dwordx2", vr(accs, 2), v(vh), sr(sWS, 4), s(soff), mods="offen")
    stp.stamp(3)
    k.I("s_endpgm")
    k.L(aux)
    k.vnext = vsave; k.vmq = []; k.lgq = []
    sa = k.salloc(); sWin = k.salloc(4)
    k.I("s_sub_u32", s(sa), s(sidx), 28)
    k.I("s_lshl_b32", s(sa), s(sa), 3)
    k.I("s_add_u32", s(sa), s(sa), s(sj))
    k.I("s_waitcnt", "lgkmcnt(0)")
    srd(k, sWS, pWS, WS_SIZE)
    ff = k.valloc(4)
    for i in range(4): k.I("v_mov_b32", v(ff + i), -1)
    k.I("v_lshlrev_b32", v(t1), 4, "v0")
    k.I("v_mov_b32", v(t2), "0x7fffff00")
    k.I("v_cmp_gt_u32", "vcc", 448, "v0")
    k.I("v_cndmask_b32", v(t1), v(t2), v(t1), "vcc")
    k.I("s_mul_i32", s(st0), s(sa), 7168)
    k.I("s_add_u32", s(st0), s(st0), hex(EX_OFF))
    k.I("buffer_store_dwordx4", vr(ff, 4), v(t1), sr(sWS, 4), s(st0), mods="offen")
    k.I("s_cmp_ge_u32", s(sa), 28)
    k.I("s_cbranch_scc1", R["done"])
    srd(k, sWin, pWin, 448 * 3584)
    vg = k.valloc()
    k.I("v_lshrrev_b32", v(t0), 3, v(lane))
    k.I("v_mul_u32_u24", v(t0), 3584, v(t0))
    k.I("v_bfe_u32", v(t1), v(lane), 4, 1)
    k.I("v_lshlrev_b32", v(t1), 2, v(t1))
    k.I("v_and_b32", v(t2), 7, v(lane))
    k.I("v_xor_b32", v(t1), v(t1), v(t2))
    k.I("v_lshl_add_u32", v(vg), v(t1), 4, v(t0))
    sb = k.salloc(); sm = k.salloc()
    k.I("s_mul_i32", s(sb), s(swave), 56 * 3584)
    k.I("s_lshl_b32", s(st0), s(sa), 7)
    k.I("s_add_u32", s(sb), s(sb), s(st0))
    k.I("s_mul_i32", s(sm), s(swave), 56 * 128)
    for i in range(7):
        k.I("s_add_u32", s(soff), s(sb), hex(i * 8 * 3584))
        k.I("s_add_u32", "m0", s(sm), hex(i * 1024))
        k.I("buffer_load_dwordx4", v(vg), sr(sWin, 4), s(soff), mods="offen lds")
    z = k.valloc(); TB = 57344
    k.I("v_mov_b32", v(z), 0)
    k.I("v_lshlrev_b32", v(t0), 2, v(lane))
    k.I("v_add_u32", v(t0), TB, v(t0))
    k.I("ds_write_b32", v(t0), v(z))
    gg = k.valloc(); vB = k.valloc(); ones = k.valloc(4)
    k.I("v_lshrrev_b32", v(gg), 4, v(lane))
    k.I("v_bfe_u32", v(t0), v(lane), 2, 2)
    k.I("v_lshl_add_u32", v(t0), v(gg), 3, v(t0))
    k.I("v_lshlrev_b32", v(vB), 7, v(t0))
    k.I("v_bfe_u32", v(t0), v(lane), 1, 1)
    k.I("s_lshl_b32", s(st0), s(sw3), 1)
    k.I("v_add_u32", v(t0), s(st0), v(t0))
    k.I("v_bfe_u32", v(t1), v(lane), 3, 1)
    k.I("v_lshlrev_b32", v(t1), 2, v(t1))
    k.I("v_xor_b32", v(t0), v(t0), v(t1))
    k.I("v_lshl_add_u32", v(vB), v(t0), 4, v(vB))
    k.I("v_and_b32", v(t0), 1, v(lane))
    k.I("v_lshl_add_u32", v(vB), v(t0), 3, v(vB))
    k.I("s_lshr_b32", s(st0), s(swave), 2)
    k.I("s_mul_i32", s(st0), s(st0), 224 * 128)
    k.I("v_add_u32", v(vB), s(st0), v(vB))
    for i in range(4): k.I("v_mov_b32", v(ones + i), "0x3f803f80")
    k.I("s_waitcnt", "vmcnt(0) lgkmcnt(0)")
    k.I("s_barrier")
    bf = [k.valloc(4) for _ in range(7)]
    for kk in range(7):
        for beta in range(2):
            k.I("ds_read_b64_tr_b16", vr(bf[kk] + 2 * beta, 2), v(vB), mods=f"offset:{(32 * kk + 4 * beta) * 128}")
    ca = k.valloc(4)
    k.I("s_waitcnt", "lgkmcnt(0)")
    for kk in range(7):
        k.I("v_mfma_f32_16x16x32_bf16", vr(ca, 4), vr(ones, 4), vr(bf[kk], 4), 0 if kk == 0 else vr(ca, 4))
    k.I("v_and_b32", v(t0), 15, v(lane))
    k.I("s_lshl_b32", s(st0), s(sw3), 6)
    k.I("s_add_u32", s(st0), s(st0), TB)
    k.I("v_lshlrev_b32", v(t0), 2, v(t0))
    k.I("v_add_u32", v(t0), s(st0), v(t0))
    k.I("s_mov_b32", "exec_lo", "0xffff")
    k.I("s_mov_b32", "exec_hi", 0)
    k.I("ds_add_f32", v(t0), v(ca))
    k.I("s_mov_b64", "exec", -1)
    k.I("s_waitcnt", "lgkmcnt(0)")
    k.I("s_barrier")
    k.I("s_cmp_lg_u32", s(swave), 0)
    k.I("s_cbranch_scc1", R["done"])
    k.I("v_lshlrev_b32", v(t0), 2, v(lane))
    k.I("v_add_u32", v(t1), TB, v(t0))
    k.I("ds_read_b32", v(z), v(t1))
    k.I("s_lshl_b32", s(st0), s(sa), 8)
    k.I("s_add_u32", s(st0), s(st0), hex(CW_OFF))
    k.I("s_waitcnt", "lgkmcnt(0)")
    k.I("buffer_store_dword", v(z), v(t0), sr(sWS, 4), s(st0), mods="offen")
    k.L(R["done"])
    k.I("s_endpgm")
    k.lds = lds; k.threads = 512; k.grid = 256
    return k


GELU_C0 = -2.0 * math.sqrt(2.0 / math.pi) * math.log2(math.e)
GELU_C1 = GELU_C0 * 0.044715

def gen_k4(Stamper):
    k = Kernel("k4_win_kernel")
    NS = 4; SLOT = 32768; TRB = NS * SLOT
    STB = TRB
    lds = TRB + 4096
    R = common_start(k, 224)
    swave, st0, st1, soff, lane, t0, t1, t2 = (R[x] for x in ("swave", "st0", "st1", "soff", "lane", "t0", "t1", "t2"))
    pWin = k.salloc(2); pWS = k.salloc(2)
    k.I("s_load_dwordx2", sr(pWin, 2), "s[0:1]", 32)
    k.I("s_load_dwordx2", sr(pWS, 2), "s[0:1]", 80)
    sWS = k.salloc(4); sWin = k.salloc(4)
    sj = k.salloc(); sidx = k.salloc(); srb = k.salloc(); sct = k.salloc(); sw3 = k.salloc()
    k.I("s_and_b32", s(sj), "s2", 7)
    k.I("s_lshr_b32", s(sidx), "s2", 3)
    k.I("s_and_b32", s(sw3), s(swave), 3)
    k.I("s_cmp_ge_u32", s(sidx), 14)
    k.I("s_cselect_b32", s(st0), 1, 0)
    k.I("s_mul_i32", s(st1), s(st0), 14)
    k.I("s_sub_u32", s(sct), s(sidx), s(st1))
    k.I("s_lshl_b32", s(srb), s(sj), 1)
    k.I("s_add_u32", s(srb), s(srb), s(st0))
    stp = Stamper(k, 3, sWS, swave)
    k.I("s_waitcnt", "lgkmcnt(0)")
    srd(k, sWS, pWS, WS_SIZE)
    comp = k.newlabel("compute")
    k.I("s_cmp_lt_u32", s(swave), 4)
    k.I("s_cbranch_scc1", comp)
    vsave = k.vnext
    srd(k, sWin, pWin, 448 * 3584)
    v16 = k.valloc(); vWo = k.valloc()
    k.I("v_lshlrev_b32", v(v16), 4, v(lane))
    k.I("v_lshrrev_b32", v(t0), 4, v(lane))
    k.I("v_lshlrev_b32", v(t1), 2, v(t0))
    k.I("v_and_b32", v(t2), 15, v(lane))
    k.I("v_xor_b32", v(t1), v(t1), v(t2))
    k.I("v_mul_u32_u24", v(vWo), 3584, v(t0))
    k.I("v_and_b32", v(t2), 7, v(t1))
    k.I("v_lshl_add_u32", v(vWo), v(t2), 4, v(vWo))
    k.I("v_add_u32", v(t2), 1792, v(vWo))
    k.I("v_cmp_gt_u32", "vcc", 8, v(t1))
    k.I("v_cndmask_b32", v(vWo), v(vWo), v(t2), "vcc")
    sHb = k.salloc(); sWb = k.salloc(); smH = k.salloc(); smW = k.salloc()
    k.I("s_lshl_b32", s(st0), s(srb), 2)
    k.I("s_add_u32", s(st0), s(st0), s(sw3))
    k.I("s_mul_i32", s(sHb), s(st0), 28 * 1024)
    k.I("s_add_u32", s(sHb), s(sHb), hex(H_OFF))
    k.I("s_lshl_b32", s(smH), s(sw3), 12)
    k.I("s_mul_i32", s(sWb), s(sw3), 16 * 3584)
    k.I("s_lshl_b32", s(st1), s(sct), 7)
    k.I("s_add_u32", s(sWb), s(sWb), s(st1))
    k.I("s_add_u32", s(smW), s(smH), 16384)
    def issue(c):
        sl = (c % NS) * SLOT
        for i in range(4):
            k.I("s_add_u32", s(soff), s(sHb), hex((4 * c + i) * 1024))
            k.I("s_add_u32", "m0", s(smH), hex(sl + i * 1024))
            k.vm(("S", c), "buffer_load_dwordx4", v(v16), sr(sWS, 4), s(soff), mods="offen lds")
        for i in range(4):
            k.I("s_add_u32", s(soff), s(sWb), hex((64 * c + 4 * i) * 3584))
            k.I("s_add_u32", "m0", s(smW), hex(sl + i * 1024))
            k.vm(("S", c), "buffer_load_dwordx4", v(vWo), sr(sWin, 4), s(soff), mods="offen lds")
    issue(0); issue(1)
    for c in range(7):
        k.wait_vm(("S", c))
        k.I("s_barrier")
        if c == 0: issue(2); issue(3)
        elif c + 2 < 7 and c >= 2: issue(c + 2)
    k.I("s_barrier")
    k.I("s_endpgm")
    k.L(comp)
    k.vnext = vsave; k.vmq = []; k.lgq = []
    l31 = k.valloc(); hh = k.valloc()
    k.I("v_and_b32", v(l31), 31, v(lane))
    k.I("v_lshrrev_b32", v(hh), 5, v(lane))
    srh = k.salloc(); sch = k.salloc(); sst = k.salloc()
    k.I("s_and_b32", s(srh), s(swave), 1)
    k.I("s_lshr_b32", s(sch), s(swave), 1)
    k.I("s_lshl_b32", s(sst), s(srb), 2)
    k.I("s_lshl_b32", s(st0), s(srh), 1)
    k.I("s_add_u32", s(sst), s(sst), s(st0))
    hs = [k.valloc(16, 4) for _ in range(2)]
    vh = k.valloc()
    k.I("v_mul_u32_u24", v(vh), 112, v(l31))
    k.I("v_lshl_add_u32", v(vh), v(hh), 6, v(vh))
    for t in range(2):
        k.I("s_add_u32", s(st0), s(sst), t)
        k.I("s_mul_i32", s(soff), s(st0), 32 * 112)
        k.I("s_add_u32", s(soff), s(soff), hex(HS_OFF))
        for i in range(4):
            k.vm("hs", "buffer_load_dwordx4", vr(hs[t] + 4 * i, 4), v(vh), sr(sWS, 4), s(soff), mods=f"offen offset:{16 * i}")
    cw = [k.valloc(16, 4) for _ in range(2)]
    vc = k.valloc()
    k.I("v_lshlrev_b32", v(vc), 4, v(hh))
    k.I("s_lshl_b32", s(st0), s(sct), 8)
    k.I("s_lshl_b32", s(st1), s(sch), 7)
    k.I("s_add_u32", s(st0), s(st0), s(st1))
    for z in range(2):
        k.I("s_add_u32", s(soff), s(st0), hex(CW_OFF + (896 * 4 if z == 0 else 0)))
        for q in range(4):
            k.vm("cw", "buffer_load_dwordx4", vr(cw[z] + 4 * q, 4), v(vc), sr(sWS, 4), s(soff), mods=f"offen offset:{32 * q}")
    if os.environ.get("PF2", "0") == "1":
        pp = k.salloc(2); sP = k.salloc(4); vT = k.valloc(); vd = k.valloc(2)
        k.I("s_load_dwordx2", sr(pp, 2), "s[0:1]", 40)
        k.I("s_lshl_b32", s(st0), s(sidx), 8)
        k.I("v_add_u32", v(vT), s(st0), "v0")
        k.I("s_waitcnt", "lgkmcnt(0)")
        srd(k, sP, pp, 2048 * 4096)
        k.I("s_lshr_b32", s(st0), s(sj), 1)
        k.I("s_lshl_b32", s(st0), s(st0), 21)
        k.I("s_and_b32", s(st1), s(sj), 1)
        k.I("s_lshl_b32", s(st1), s(st1), 11)
        k.I("s_add_u32", s(st0), s(st0), s(st1))
        for i in range(2):
            k.I("v_add_u32", v(t0), 7168 * i, v(vT))
            k.I("v_lshrrev_b32", v(t1), 4, v(t0))
            k.I("v_lshlrev_b32", v(t1), 12, v(t1))
            k.I("v_and_b32", v(t2), 15, v(t0))
            k.I("v_lshl_add_u32", v(t1), v(t2), 7, v(t1))
            if i == 1:
                k.I("v_mov_b32", v(t2), "0x7fffff00")
                k.I("v_cmp_gt_u32", "vcc", 8192, v(t0))
                k.I("v_cndmask_b32", v(t1), v(t2), v(t1), "vcc")
            k.vm("pf", "buffer_load_dword", v(vd + i), v(t1), sr(sP, 4), s(st0), mods="offen")
    code_prefetch(k, "k5_sp_kernel", sidx, st0)
    stp.stamp(0)
    aH = k.valloc(); vW = [k.valloc(), k.valloc()]
    k.I("v_lshlrev_b32", v(aH), 4, v(lane))
    k.I("s_lshl_b32", s(st0), s(srh), 13)
    k.I("v_add_u32", v(aH), s(st0), v(aH))
    k.I("v_bfe_u32", v(t0), v(lane), 2, 2)
    k.I("v_lshl_add_u32", v(t1), v(hh), 2, v(t0))
    k.I("v_lshlrev_b32", v(t1), 8, v(t1))
    k.I("v_add_u32", v(t1), 16384, v(t1))
    k.I("v_bfe_u32", v(t2), v(lane), 4, 1)
    k.I("v_lshlrev_b32", v(t2), 1, v(t2))
    k.I("v_bfe_u32", v(vW[0]), v(lane), 1, 1)
    k.I("v_add_u32", v(t2), v(t2), v(vW[0]))
    k.I("s_lshl_b32", s(st0), s(sch), 2)
    k.I("v_add_u32", v(t2), s(st0), v(t2))
    k.I("v_lshlrev_b32", v(t0), 2, v(t0))
    k.I("v_xor_b32", v(vW[0]), v(t2), v(t0))
    k.I("v_add_u32", v(t2), 8, v(t2))
    k.I("v_xor_b32", v(vW[1]), v(t2), v(t0))
    k.I("v_and_b32", v(t2), 1, v(lane))
    for z in range(2):
        k.I("v_lshl_add_u32", v(vW[z]), v(vW[z]), 4, v(t1))
        k.I("v_lshl_add_u32", v(vW[z]), v(t2), 3, v(vW[z]))
    aH2 = k.valloc(); vW2 = [k.valloc(), k.valloc()]
    k.I("v_add_u32", v(aH2), 65536, v(aH))
    for z in range(2): k.I("v_add_u32", v(vW2[z]), 65536, v(vW[z]))
    acc = [[k.valloc(16, 4) for _ in range(2)] for _ in range(2)]
    vmark = k.vnext
    NB = 3
    hf = [[k.valloc(4) for _ in range(2)] for _ in range(NB)]
    wf = [[k.valloc(4) for _ in range(2)] for _ in range(NB)]
    def rl(ks):
        c, j = ks // 4, ks % 4
        b = ks % NB
        sl = (c % NS) * SLOT
        hi = sl >= 65536
        so = sl - (65536 if hi else 0)
        out = []
        for t in range(2):
            out.append(lambda t=t: k.lg(("f", ks), "ds_read_b128", vr(hf[b][t], 4), v(aH2 if hi else aH), mods=f"offset:{so + t * 4096 + j * 1024}"))
        for z in range(2):
            for beta in range(2):
                o = so + (16 * j + 8 * beta) * 256
                out.append(lambda o=o, z=z, beta=beta: k.lg(("f", ks), "ds_read_b64_tr_b16", vr(wf[b][z] + 2 * beta, 2), v((vW2 if hi else vW)[z]), mods=f"offset:{o}"))
        return out
    k.I("s_barrier")
    stp.stamp(1)
    for f in rl(0) + rl(1): f()
    for ks in range(28):
        c, j = ks // 4, ks % 4
        b = ks % NB
        k.wait_lg(("f", ks))
        mf = []
        for z in range(2):
            for t in range(2):
                mf.append(lambda z=z, t=t: k.I("v_mfma_f32_32x32x16_bf16", vr(acc[z][t], 16), vr(wf[b][z], 4), vr(hf[b][t], 4), 0 if ks == 0 else vr(acc[z][t], 16)))
        if j == 2 and c < 6:
            pass
        fl = rl(ks + 2) if ks + 2 < 28 else []
        if j == 2 and ks + 2 < 28:
            k.I("s_barrier")
        interleave(k, mf, fl)
    stp.stamp(2)
    k.vnext = vmark
    k.wait_vm(["hs", "cw"])
    rr = [k.valloc(2) for _ in range(2)]; nm = [k.valloc(2) for _ in range(2)]
    c0r = [k.valloc(2) for _ in range(2)]; c1r = [k.valloc(2) for _ in range(2)]
    k.I("v_cmp_eq_u32", "vcc", 0, v(hh))
    for t in range(2):
        H = hs[t]
        for i in range(12, 16): k.I("v_cndmask_b32", v(H + i), 0, v(H + i), "vcc")
        for i in range(4): k.I("v_pk_add_f32", vr(H + 2 * i, 2), vr(H + 2 * i, 2), vr(H + 8 + 2 * i, 2))
        for i in range(2): k.I("v_pk_add_f32", vr(H + 2 * i, 2), vr(H + 2 * i, 2), vr(H + 4 + 2 * i, 2))
        k.I("v_pk_add_f32", vr(H, 2), vr(H, 2), vr(H + 2, 2))
        for e in range(2):
            k.I("v_mov_b32", v(H + 2), v(H + e))
            k.I("v_permlane32_swap_b32", v(H + e), v(H + 2))
            k.I("v_add_f32", v(H + e), v(H + e), v(H + 2))
        k.I("v_mul_f32", v(nm[t]), hex(f32(-1.0 / 448)), v(H))
        k.I("v_mul_f32", v(H + 1), hex(f32(1.0 / 448)), v(H + 1))
        k.I("v_fma_f32", v(H + 1), f"-{v(nm[t])}", v(nm[t]), v(H + 1))
        k.I("v_max_f32", v(H + 1), 0, v(H + 1))
        k.I("v_add_f32", v(H + 1), hex(f32(1e-5)), v(H + 1))
        k.I("v_rsq_f32", v(rr[t]), v(H + 1))
        k.I("v_mul_f32", v(c0r[t]), hex(f32(GELU_C0)), v(rr[t]))
        k.I("v_mul_f32", v(c1r[t]), v(rr[t]), v(rr[t]))
        k.I("v_mul_f32", v(c1r[t]), v(c1r[t]), v(rr[t]))
        k.I("v_mul_f32", v(c1r[t]), hex(f32(GELU_C1)), v(c1r[t]))
    norh = k.newlabel("norh")
    k.I("s_or_b32", s(st0), s(sct), s(sch))
    k.I("s_cmp_lg_u32", s(st0), 0)
    k.I("s_cbranch_scc1", norh)
    k.I("v_lshlrev_b32", v(t0), 2, v(l31))
    for t in range(2):
        k.I("s_add_u32", s(st0), s(sst), t)
        k.I("s_lshl_b32", s(st0), s(st0), 7)
        k.I("s_add_u32", s(st0), s(st0), hex(RH_OFF))
        k.I("buffer_store_dword", v(rr[t]), v(t0), sr(sWS, 4), s(st0), mods="offen")
    k.L(norh)
    tp = [k.valloc(2) for _ in range(4)]
    def gelu_tile(A, z, t):
        for j in range(8):
            k.I("v_pk_fma_f32", vr(A + 2 * j, 2), vr(cw[z] + 2 * j, 2), vr(nm[t], 2), vr(A + 2 * j, 2), mods="op_sel_hi:[1,0,1]")
        for j0 in range(0, 8, 4):
            for j in range(j0, j0 + 4):
                T = tp[j - j0]
                k.I("v_pk_mul_f32", vr(T, 2), vr(A + 2 * j, 2), vr(A + 2 * j, 2))
            for j in range(j0, j0 + 4):
                T = tp[j - j0]
                k.I("v_pk_fma_f32", vr(T, 2), vr(T, 2), vr(c1r[t], 2), vr(c0r[t], 2), mods="op_sel_hi:[1,0,0]")
            for j in range(j0, j0 + 4):
                T = tp[j - j0]
                k.I("v_pk_mul_f32", vr(T, 2), vr(T, 2), vr(A + 2 * j, 2))
            for j in range(j0, j0 + 4):
                T = tp[j - j0]
                k.I("v_exp_f32", v(T), v(T)); k.I("v_exp_f32", v(T + 1), v(T + 1))
            for j in range(j0, j0 + 4):
                T = tp[j - j0]
                k.I("v_pk_add_f32", vr(T, 2), vr(T, 2), "1.0", mods="op_sel_hi:[1,0]")
            for j in range(j0, j0 + 4):
                T = tp[j - j0]
                k.I("v_rcp_f32", v(T), v(T)); k.I("v_rcp_f32", v(T + 1), v(T + 1))
            for j in range(j0, j0 + 4):
                T = tp[j - j0]
                k.I("v_pk_mul_f32", vr(A + 2 * j, 2), vr(A + 2 * j, 2), vr(T, 2))
    accs = [k.valloc(2) for _ in range(2)]; accq = [k.valloc(2) for _ in range(2)]
    for t in range(2):
        A = acc[0][t]
        gelu_tile(A, 0, t)
        for j in range(8):
            k.I("v_pk_mul_f32", vr(A + 2 * j, 2), vr(A + 2 * j, 2), vr(rr[t], 2), mods="op_sel_hi:[1,0]")
        k.I("v_pk_add_f32", vr(accs[t], 2), vr(A, 2), vr(A + 2, 2))
        k.I("v_pk_mul_f32", vr(accq[t], 2), vr(A, 2), vr(A, 2))
        k.I("v_pk_fma_f32", vr(accq[t], 2), vr(A + 2, 2), vr(A + 2, 2), vr(accq[t], 2))
        for j in range(2, 8):
            k.I("v_pk_add_f32", vr(accs[t], 2), vr(accs[t], 2), vr(A + 2 * j, 2))
            k.I("v_pk_fma_f32", vr(accq[t], 2), vr(A + 2 * j, 2), vr(A + 2 * j, 2), vr(accq[t], 2))
        k.I("v_add_f32", v(accs[t]), v(accs[t]), v(accs[t] + 1))
        k.I("v_add_f32", v(accs[t] + 1), v(accq[t]), v(accq[t] + 1))
        for e in range(2):
            k.I("v_mov_b32", v(accq[t]), v(accs[t] + e))
            k.I("v_permlane32_swap_b32", v(accs[t] + e), v(accq[t]))
            k.I("v_add_f32", v(accs[t] + e), v(accs[t] + e), v(accq[t]))
    vs = k.valloc()
    k.I("v_lshlrev_b32", v(vs), 3, v(l31))
    k.I("s_lshl_b32", s(st0), s(srh), 9)
    k.I("s_add_u32", s(st0), s(st0), STB)
    k.I("v_add_u32", v(vs), s(st0), v(vs))
    k.I("s_lshl_b32", s(st0), s(sch), 10)
    k.I("v_add_u32", v(t0), s(st0), v(vs))
    for t in range(2):
        k.I("ds_write_b64", v(t0), vr(accs[t], 2), mods=f"offset:{t * 256}")
    k.I("s_waitcnt", "lgkmcnt(0)")
    k.I("s_barrier")
    pub = k.newlabel("nopub")
    k.I("s_cmp_lg_u32", s(sch), 0)
    k.I("s_cbranch_scc1", pub)
    oth = k.valloc(4)
    for t in range(2):
        k.I("ds_read_b64", vr(oth + 2 * t, 2), v(vs), mods=f"offset:{1024 + t * 256}")
    k.I("s_waitcnt", "lgkmcnt(0)")
    for t in range(2):
        k.I("v_pk_add_f32", vr(oth + 2 * t, 2), vr(oth + 2 * t, 2), vr(accs[t], 2))
        k.I("v_mov_b32", v(t1), "0x7fc00000")
        k.I("v_cmp_eq_u32", "vcc", -1, v(oth + 2 * t + 1))
        k.I("v_cndmask_b32", v(oth + 2 * t + 1), v(oth + 2 * t + 1), v(t1), "vcc")
    ve = k.valloc()
    k.I("v_mul_u32_u24", v(ve), 112, v(l31))
    k.I("s_mul_i32", s(soff), s(sst), 32 * 112)
    k.I("s_lshl_b32", s(st0), s(sct), 3)
    k.I("s_add_u32", s(soff), s(soff), s(st0))
    k.I("s_add_u32", s(soff), s(soff), hex(EX_OFF))
    k.I("s_mov_b32", "exec_hi", 0)
    for t in range(2):
        k.I("buffer_store_dwordx2", vr(oth + 2 * t, 2), v(ve), sr(sWS, 4), s(soff), mods=f"offen offset:{t * 32 * 112} sc0 sc1")
    k.I("s_mov_b64", "exec", -1)
    k.L(pub)
    stp.stamp(3)
    v16 = k.valloc()
    k.I("v_lshlrev_b32", v(v16), 4, v(lane))
    P = [k.valloc(8, 4) for _ in range(2)]
    sft = k.salloc()
    k.I("s_lshl_b32", s(sft), s(sct), 1)
    k.I("s_add_u32", s(sft), s(sft), s(sch))
    for t in range(2):
        A = acc[1][t]
        gelu_tile(A, 1, t)
        for j in range(8): k.I("v_cvt_pk_bf16_f32", v(P[t] + j), v(A + 2 * j), v(A + 2 * j + 1))
        k.I("s_add_u32", s(st0), s(sst), t)
        k.I("s_mul_i32", s(soff), s(st0), 56 * 1024)
        k.I("s_lshl_b32", s(st0), s(sft), 11)
        k.I("s_add_u32", s(soff), s(soff), s(st0))
        k.I("s_add_u32", s(soff), s(soff), hex(Z1_OFF))
        k.I("buffer_store_dwordx4", vr(P[t], 4), v(v16), sr(sWS, 4), s(soff), mods="offen")
        k.I("buffer_store_dwordx4", vr(P[t] + 4, 4), v(v16), sr(sWS, 4), s(soff), mods="offen offset:1024")
    stp.stamp(4)
    ex = hs
    k.I("v_mul_u32_u24", v(vh), 112, v(l31))
    k.I("v_lshl_add_u32", v(vh), v(hh), 6, v(vh))
    k.I("s_mul_i32", s(soff), s(sst), 32 * 112)
    k.I("s_add_u32", s(soff), s(soff), hex(EX_OFF))
    scount = k.salloc(); sbad = k.salloc(2)
    k.I("s_mov_b32", s(scount), 0)
    poll = k.newlabel("poll"); pdone = k.newlabel("pdone")
    k.L(poll)
    for t in range(2):
        for i in range(4):
            k.I("buffer_load_dwordx4", vr(ex[t] + 4 * i, 4), v(vh), sr(sWS, 4), s(soff), mods=f"offen offset:{t * 32 * 112 + 16 * i} sc0 sc1")
    k.I("s_waitcnt", "vmcnt(0)")
    k.I("v_cmp_eq_u32", "vcc", 0, v(hh))
    for t in range(2):
        for i in range(12, 16): k.I("v_cndmask_b32", v(ex[t] + i), 0, v(ex[t] + i), "vcc")
    k.I("v_max_u32", v(t0), v(ex[0] + 1), v(ex[0] + 3))
    for t in range(2):
        for i in range(8):
            if t == 0 and i < 2: continue
            k.I("v_max_u32", v(t0), v(t0), v(ex[t] + 2 * i + 1))
    k.I("v_cmp_eq_u32", "vcc", -1, v(t0))
    k.I("s_add_u32", s(scount), s(scount), 1)
    k.I("s_cmp_eq_u64", "vcc", 0)
    k.I("s_cbranch_scc1", pdone)
    k.I("s_cmp_lt_u32", s(scount), 0x40000)
    k.I("s_cbranch_scc0", pdone)
    k.I("s_sleep", 1)
    k.I("s_branch", poll)
    k.L(pdone)
    sc_ = [k.valloc(2) for _ in range(2)]; zm = [k.valloc(2) for _ in range(2)]
    for t in range(2):
        H = ex[t]
        for i in range(4): k.I("v_pk_add_f32", vr(H + 2 * i, 2), vr(H + 2 * i, 2), vr(H + 8 + 2 * i, 2))
        for i in range(2): k.I("v_pk_add_f32", vr(H + 2 * i, 2), vr(H + 2 * i, 2), vr(H + 4 + 2 * i, 2))
        k.I("v_pk_add_f32", vr(H, 2), vr(H, 2), vr(H + 2, 2))
        for e in range(2):
            k.I("v_mov_b32", v(H + 2), v(H + e))
            k.I("v_permlane32_swap_b32", v(H + e), v(H + 2))
            k.I("v_add_f32", v(H + e), v(H + e), v(H + 2))
        k.I("v_mul_f32", v(zm[t]), hex(f32(-1.0 / 896)), v(H))
        k.I("v_mul_f32", v(H + 1), hex(f32(1.0 / 896)), v(H + 1))
        k.I("v_fma_f32", v(H + 1), f"-{v(zm[t])}", v(zm[t]), v(H + 1))
        k.I("v_max_f32", v(H + 1), 0, v(H + 1))
        k.I("v_add_f32", v(H + 1), hex(f32(1e-5)), v(H + 1))
        k.I("v_rsq_f32", v(sc_[t]), v(H + 1))
        k.I("v_mul_f32", v(zm[t]), v(zm[t]), v(sc_[t]))
    TW = 0
    vt = k.valloc(); vtr = k.valloc()
    k.I("v_lshlrev_b32", v(vt), 6, v(l31))
    k.I("v_lshl_add_u32", v(vt), v(hh), 3, v(vt))
    k.I("s_lshl_b32", s(st0), s(swave), 12)
    k.I("v_add_u32", v(vt), s(st0), v(vt))
    for t in range(2):
        A = acc[0][t]
        for j in range(8):
            k.I("v_pk_fma_f32", vr(A + 2 * j, 2), vr(A + 2 * j, 2), vr(sc_[t], 2), vr(zm[t], 2), mods="op_sel_hi:[1,0,0]")
        for j in range(8): k.I("v_cvt_pk_bf16_f32", v(P[t] + j), v(A + 2 * j), v(A + 2 * j + 1))
        for q in range(4):
            k.I("ds_write_b64", v(vt), vr(P[t] + 2 * q, 2), mods=f"offset:{t * 2048 + 16 * q}")
    k.I("v_bfe_u32", v(t0), v(lane), 2, 2)
    k.I("v_lshl_add_u32", v(t0), v(hh), 3, v(t0))
    k.I("v_lshlrev_b32", v(vtr), 6, v(t0))
    k.I("v_bfe_u32", v(t0), v(lane), 4, 1)
    k.I("v_lshl_add_u32", v(vtr), v(t0), 5, v(vtr))
    k.I("v_and_b32", v(t0), 3, v(lane))
    k.I("v_lshl_add_u32", v(vtr), v(t0), 3, v(vtr))
    k.I("s_lshl_b32", s(st0), s(swave), 12)
    k.I("v_add_u32", v(vtr), s(st0), v(vtr))
    k.I("s_waitcnt", "lgkmcnt(0)")
    Z = cw[0]
    for ks in range(4):
        for beta in range(2):
            k.I("ds_read_b64_tr_b16", vr(Z + 4 * ks + 2 * beta, 2), v(vtr), mods=f"offset:{(16 * ks + 4 * beta) * 64}")
    k.I("s_mul_i32", s(soff), s(sft), ZS)
    k.I("s_lshr_b32", s(st0), s(sst), 5)
    k.I("s_mul_i32", s(st0), s(st0), ZK)
    k.I("s_add_u32", s(soff), s(soff), s(st0))
    k.I("s_and_b32", s(st0), s(sst), 31)
    k.I("s_lshl_b32", s(st0), s(st0), 11)
    k.I("s_add_u32", s(soff), s(soff), s(st0))
    k.I("s_add_u32", s(soff), s(soff), hex(Z2_OFF))
    for ks in range(4):
        k.I("s_waitcnt", f"lgkmcnt({6 - 2 * ks})")
        k.I("buffer_store_dwordx4", vr(Z + 4 * ks, 4), v(v16), sr(sWS, 4), s(soff), mods=f"offen offset:{ks * 1024}")
    stp.stamp(5)
    k.L(R["done"])
    k.I("s_endpgm")
    k.lds = lds; k.threads = 512; k.grid = 224
    return k


def gen_k5(Stamper):
    k = Kernel("k5_sp_kernel")
    NS = 4; SLOT = 32768
    lds = NS * SLOT
    R = common_start(k, 224)
    swave, st0, st1, soff, lane, t0, t1, t2 = (R[x] for x in ("swave", "st0", "st1", "soff", "lane", "t0", "t1", "t2"))
    pSp = k.salloc(2); pB = k.salloc(2); pWS = k.salloc(2)
    k.I("s_load_dwordx2", sr(pSp, 2), "s[0:1]", 40)
    k.I("s_load_dwordx2", sr(pB, 2), "s[0:1]", 48)
    k.I("s_load_dwordx2", sr(pWS, 2), "s[0:1]", 80)
    sWS = k.salloc(4); sSp = k.salloc(4); sB = k.salloc(4)
    sj = k.salloc(); sidx = k.salloc(); stt = k.salloc(); sft = k.salloc(); skap = k.salloc(); sw3 = k.salloc()
    if os.environ.get("K5MAP") == "linear":
        k.I("s_mul_i32", s(sj), "s2", 2341)
        k.I("s_lshr_b32", s(sj), s(sj), 16)
        k.I("s_mul_i32", s(sidx), s(sj), 28)
        k.I("s_sub_u32", s(sidx), "s2", s(sidx))
    else:
        k.I("s_and_b32", s(sj), "s2", 7)
        k.I("s_lshr_b32", s(sidx), "s2", 3)
    k.I("s_and_b32", s(sw3), s(swave), 3)
    k.I("s_and_b32", s(skap), s(sj), 1)
    k.I("s_mul_i32", s(st0), s(sidx), 37)
    k.I("s_lshr_b32", s(st0), s(st0), 8)
    k.I("s_mul_i32", s(st1), s(st0), 7)
    k.I("s_sub_u32", s(sft), s(sidx), s(st1))
    k.I("s_lshr_b32", s(stt), s(sj), 1)
    k.I("s_lshl_b32", s(stt), s(stt), 2)
    k.I("s_add_u32", s(stt), s(stt), s(st0))
    stp = Stamper(k, 4, sWS, swave)
    if os.environ.get("TICKWAVE", "0") != "0": stp.tick(0)
    k.I("s_waitcnt", "lgkmcnt(0)")
    srd(k, sWS, pWS, WS_SIZE)
    comp = k.newlabel("compute")
    k.I("s_cmp_lt_u32", s(swave), 4)
    k.I("s_cbranch_scc1", comp)
    vsave = k.vnext
    srd(k, sSp, pSp, 2048 * 4096)
    v16 = k.valloc(); vWo = k.valloc(2)
    k.I("v_lshlrev_b32", v(v16), 4, v(lane))
    k.I("v_lshrrev_b32", v(t0), 3, v(lane))
    k.I("v_lshlrev_b32", v(t0), 12, v(t0))
    k.I("v_lshrrev_b32", v(t1), 4, v(lane))
    k.I("v_and_b32", v(t2), 7, v(lane))
    k.I("v_xor_b32", v(t1), v(t1), v(t2))
    k.I("v_lshl_add_u32", v(vWo), v(t1), 4, v(t0))
    k.I("v_xor_b32", v(t1), 4, v(t1))
    k.I("v_lshl_add_u32", v(vWo + 1), v(t1), 4, v(t0))
    sZb = k.salloc(); sWb = k.salloc(); smZ = k.salloc(); smW = k.salloc()
    k.I("s_lshl_b32", s(st0), s(sft), 2)
    k.I("s_add_u32", s(st0), s(st0), s(sw3))
    k.I("s_mul_i32", s(sZb), s(st0), ZS)
    k.I("s_mul_i32", s(st1), s(skap), ZK)
    k.I("s_add_u32", s(sZb), s(sZb), s(st1))
    k.I("s_add_u32", s(sZb), s(sZb), hex(Z2_OFF))
    k.I("s_lshl_b32", s(smZ), s(sw3), 12)
    k.I("s_lshl_b32", s(st0), s(stt), 7)
    k.I("s_lshl_b32", s(st1), s(sw3), 5)
    k.I("s_add_u32", s(st0), s(st0), s(st1))
    k.I("s_lshl_b32", s(sWb), s(st0), 12)
    k.I("s_lshl_b32", s(st1), s(skap), 11)
    k.I("s_add_u32", s(sWb), s(sWb), s(st1))
    k.I("s_add_u32", s(smW), s(smZ), 16384)
    def issue(c):
        sl = (c % NS) * SLOT
        def zpart():
            for i in range(4):
                k.I("s_add_u32", s(soff), s(sZb), hex((4 * c + i) * 1024))
                k.I("s_add_u32", "m0", s(smZ), hex(sl + i * 1024))
                k.vm(("S", c), "buffer_load_dwordx4", v(v16), sr(sWS, 4), s(soff), mods="offen lds")
                if os.environ.get("DIAG5") and c == 0 and i in (0, 3):
                    k.I("s_waitcnt", "vmcnt(0)"); stp.tick(10 + (i > 0))
        def wpart():
            for i in range(4):
                k.I("s_add_u32", s(soff), s(sWb), hex(i * 8 * 4096 + c * 128))
                k.I("s_add_u32", "m0", s(smW), hex(sl + i * 1024))
                k.vm(("S", c), "buffer_load_dwordx4", v(vWo + (i & 1)), sr(sSp, 4), s(soff), mods="offen lds")
                if os.environ.get("DIAG5") and c == 0 and i in (0, 3):
                    k.I("s_waitcnt", "vmcnt(0)"); stp.tick(12 + (i > 0))
        if os.environ.get("DIAG5") == "2": wpart(); zpart()
        else: zpart(); wpart()
    NST = 16
    LT = os.environ.get("TICKWAVE", "0") != "0"
    if LT: stp.tick(1)
    issue(0)
    if LT: stp.tick(2)
    issue(1)
    if LT: stp.tick(3)
    for c in range(NST):
        k.wait_vm(("S", c))
        if LT and c < 3: stp.tick(4 + 2 * c)
        k.I("s_barrier")
        if LT and c < 3: stp.tick(5 + 2 * c)
        if c == 0: issue(2); issue(3)
        elif c + 2 < NST and c >= 2: issue(c + 2)
    if LT: stp.dump_ticks()
    k.I("s_endpgm")
    k.L(comp)
    k.vnext = vsave; k.vmq = []; k.lgq = []
    srd(k, sB, pB, 4096)
    l31 = k.valloc(); hh = k.valloc()
    k.I("v_and_b32", v(l31), 31, v(lane))
    k.I("v_lshrrev_b32", v(hh), 5, v(lane))
    sfh = k.salloc(); sth = k.salloc(); sst = k.salloc(); sf32 = k.salloc()
    k.I("s_and_b32", s(sfh), s(swave), 1)
    k.I("s_lshr_b32", s(sth), s(swave), 1)
    k.I("s_lshl_b32", s(sst), s(stt), 2)
    k.I("s_lshl_b32", s(st0), s(sth), 1)
    k.I("s_add_u32", s(sst), s(sst), s(st0))
    k.I("s_lshl_b32", s(sf32), s(sft), 2)
    k.I("s_lshl_b32", s(st0), s(sfh), 1)
    k.I("s_add_u32", s(sf32), s(sf32), s(st0))
    if os.environ.get("PF3", "0") == "1":
        vT0 = k.valloc(); vd0 = k.valloc(2)
        k.I("s_lshl_b32", s(st0), s(sidx), 8)
        k.I("v_add_u32", v(vT0), s(st0), "v0")
        k.I("s_lshl_b32", s(st1), s(skap), 16)
        k.I("s_add_u32", s(st1), s(st1), hex(Z2_OFF))
        for i in range(2):
            k.I("v_add_u32", v(t0), 7168 * i, v(vT0))
            k.I("v_lshrrev_b32", v(t1), 9, v(t0))
            k.I("v_lshlrev_b32", v(t1), 17, v(t1))
            k.I("v_and_b32", v(t2), 511, v(t0))
            k.I("v_lshl_add_u32", v(t1), v(t2), 7, v(t1))
            k.vm("pf", "buffer_load_dword", v(vd0 + i), v(t1), sr(sWS, 4), s(st1), mods="offen")
    v16 = k.valloc()
    k.I("v_lshlrev_b32", v(v16), 4, v(lane))
    z1 = [[k.valloc(8, 4) for _ in range(2)] for _ in range(2)]
    for ti in range(2):
        for fi in range(2):
            k.I("s_add_u32", s(st0), s(sst), ti)
            k.I("s_mul_i32", s(soff), s(st0), 56 * 1024)
            k.I("s_add_u32", s(st0), s(sf32), fi)
            k.I("s_lshl_b32", s(st0), s(st0), 11)
            k.I("s_add_u32", s(soff), s(soff), s(st0))
            k.I("s_add_u32", s(soff), s(soff), hex(Z1_OFF))
            k.vm("z1", "buffer_load_dwordx4", vr(z1[fi][ti], 4), v(v16), sr(sWS, 4), s(soff), mods="offen")
            k.vm("z1", "buffer_load_dwordx4", vr(z1[fi][ti] + 4, 4), v(v16), sr(sWS, 4), s(soff), mods="offen offset:1024")
    rr = [k.valloc(2) for _ in range(2)]; bb = [k.valloc(2) for _ in range(2)]
    k.I("v_lshlrev_b32", v(t0), 2, v(l31))
    k.I("v_lshlrev_b32", v(t1), 1, v(l31))
    for ti in range(2):
        k.I("s_add_u32", s(st0), s(sst), ti)
        k.I("s_lshl_b32", s(soff), s(st0), 7)
        k.I("s_add_u32", s(soff), s(soff), hex(RH_OFF))
        k.vm("z1", "buffer_load_dword", v(rr[ti]), v(t0), sr(sWS, 4), s(soff), mods="offen")
        k.I("s_lshl_b32", s(soff), s(st0), 6)
        k.vm("z1", "buffer_load_ushort", v(bb[ti]), v(t1), sr(sB, 4), s(soff), mods="offen")
    if os.environ.get("PF2", "0") == "1":
        pp = k.salloc(2); sP = k.salloc(4); vT = k.valloc(); vd = k.valloc(2)
        k.I("s_load_dwordx2", sr(pp, 2), "s[0:1]", 56)
        k.I("s_lshl_b32", s(st0), s(sidx), 8)
        k.I("v_add_u32", v(vT), s(st0), "v0")
        k.I("v_lshlrev_b32", v(vT), 7, v(vT))
        k.I("s_waitcnt", "lgkmcnt(0)")
        srd(k, sP, pp, 896 * 896)
        k.vm("pf", "buffer_load_dword", v(vd), v(vT), sr(sP, 4), 0, mods="offen")
    code_prefetch(k, "k6_wout_kernel", sidx, st0)
    stp.stamp(0)
    aZ = k.valloc(); aW = k.valloc(4)
    k.I("s_lshl_b32", s(st0), s(sfh), 13)
    k.I("v_add_u32", v(aZ), s(st0), v(v16))
    k.I("v_bfe_u32", v(t0), v(l31), 1, 3)
    for j in range(4):
        k.I("v_add_u32", v(t1), 2 * j, v(hh))
        k.I("v_xor_b32", v(t1), v(t1), v(t0))
        k.I("v_lshlrev_b32", v(t1), 4, v(t1))
        k.I("v_lshl_add_u32", v(aW + j), v(l31), 7, v(t1))
        k.I("s_lshl_b32", s(st0), s(sth), 13)
        k.I("s_add_u32", s(st0), s(st0), 16384)
        k.I("v_add_u32", v(aW + j), s(st0), v(aW + j))
    aZ2 = k.valloc(); aW2 = k.valloc(4)
    k.I("v_add_u32", v(aZ2), 65536, v(aZ))
    for j in range(4): k.I("v_add_u32", v(aW2 + j), 65536, v(aW + j))
    acc = [[k.valloc(16, 4) for _ in range(2)] for _ in range(2)]
    NB = 3
    zf = [[k.valloc(4) for _ in range(2)] for _ in range(NB)]
    wf = [[k.valloc(4) for _ in range(2)] for _ in range(NB)]
    def rl(ks):
        c, j = ks // 4, ks % 4
        b = ks % NB
        sl = (c % NS) * SLOT
        hi = sl >= 65536
        so = sl - (65536 if hi else 0)
        out = []
        for fi in range(2):
            out.append(lambda fi=fi: k.lg(("f", ks), "ds_read_b128", vr(zf[b][fi], 4), v(aZ2 if hi else aZ), mods=f"offset:{so + fi * 4096 + j * 1024}"))
        for ti in range(2):
            out.append(lambda ti=ti: k.lg(("f", ks), "ds_read_b128", vr(wf[b][ti], 4), v((aW2 if hi else aW) + j), mods=f"offset:{so + ti * 4096}"))
        return out
    k.I("s_barrier")
    stp.stamp(1)
    for f in rl(0) + rl(1): f()
    NKS = NST * 4
    for ks in range(NKS):
        c, j = ks // 4, ks % 4
        b = ks % NB
        k.wait_lg(("f", ks))
        mf = []
        for fi in range(2):
            for ti in range(2):
                mf.append(lambda fi=fi, ti=ti: k.I("v_mfma_f32_32x32x16_bf16", vr(acc[fi][ti], 16), vr(zf[b][fi], 4), vr(wf[b][ti], 4), 0 if ks == 0 else vr(acc[fi][ti], 16)))
        fl = rl(ks + 2) if ks + 2 < NKS else []
        if j == 2 and ks + 2 < NKS:
            if not LT and 4 <= c < 11: stp.tick(2 * (c - 4))
            k.I("s_barrier")
            if not LT and 4 <= c < 11: stp.tick(2 * (c - 4) + 1)
        interleave(k, mf, fl)
    stp.stamp(2)
    if not LT: stp.dump_ticks()
    k.wait_vm("z1")
    for ti in range(2):
        k.I("v_lshlrev_b32", v(bb[ti]), 16, v(bb[ti]))
        k.I("v_mul_f32", v(bb[ti]), v(bb[ti]), v(rr[ti]))
    k.I("s_cmp_eq_u32", s(skap), 0)
    k.I("s_cselect_b32", s(st0), "1.0", 0)
    for ti in range(2): k.I("v_mul_f32", v(bb[ti]), s(st0), v(bb[ti]))
    tp = [k.valloc(2) for _ in range(4)]
    P = [k.valloc(8, 4) for _ in range(2)]
    sU = k.salloc()
    k.I("s_mul_i32", s(sU), s(skap), U1_OFF - U0_OFF)
    k.I("s_add_u32", s(sU), s(sU), hex(U0_OFF))
    n = 0
    for ti in range(2):
        for fi in range(2):
            A = acc[fi][ti]; Zp = z1[fi][ti]; PP = P[n & 1]; n += 1
            for j in range(8):
                k.I("v_pk_fma_f32", vr(A + 2 * j, 2), vr(A + 2 * j, 2), vr(rr[ti], 2), vr(bb[ti], 2), mods="op_sel_hi:[1,0,0]")
            for j in range(8):
                T = tp[j % 4]
                k.I("v_lshlrev_b32", v(T), 16, v(Zp + j))
                k.I("v_and_b32", v(T + 1), "0xffff0000", v(Zp + j))
                k.I("v_pk_mul_f32", vr(A + 2 * j, 2), vr(A + 2 * j, 2), vr(T, 2))
            for j in range(8): k.I("v_cvt_pk_bf16_f32", v(PP + j), v(A + 2 * j), v(A + 2 * j + 1))
            k.I("s_add_u32", s(st0), s(sst), ti)
            k.I("s_mul_i32", s(soff), s(st0), 56 * 1024)
            k.I("s_add_u32", s(st0), s(sf32), fi)
            k.I("s_lshl_b32", s(st0), s(st0), 11)
            k.I("s_add_u32", s(soff), s(soff), s(st0))
            k.I("s_add_u32", s(soff), s(soff), s(sU))
            k.I("buffer_store_dwordx4", vr(PP, 4), v(v16), sr(sWS, 4), s(soff), mods="offen")
            k.I("buffer_store_dwordx4", vr(PP + 4, 4), v(v16), sr(sWS, 4), s(soff), mods="offen offset:1024")
    stp.stamp(3)
    k.L(R["done"])
    k.I("s_endpgm")
    k.lds = lds; k.threads = 512; k.grid = 224
    return k

def gen_k6(Stamper):
    k = Kernel("k6_wout_kernel")
    NS = 5; SLOT = 24576
    RED = 0
    lds = NS * SLOT
    R = common_start(k, 224)
    swave, st0, st1, soff, lane, t0, t1, t2 = (R[x] for x in ("swave", "st0", "st1", "soff", "lane", "t0", "t1", "t2"))
    pWo = k.salloc(2); pOut = k.salloc(2); pWS = k.salloc(2)
    k.I("s_load_dwordx2", sr(pWo, 2), "s[0:1]", 56)
    k.I("s_load_dwordx2", sr(pOut, 2), "s[0:1]", 64)
    k.I("s_load_dwordx2", sr(pWS, 2), "s[0:1]", 80)
    sWS = k.salloc(4); sWo = k.salloc(4); sOut = k.salloc(4)
    sj = k.salloc(); sidx = k.salloc(); srt = k.salloc(); snt = k.salloc(); sw3 = k.salloc()
    k.I("s_and_b32", s(sj), "s2", 7)
    k.I("s_lshr_b32", s(sidx), "s2", 3)
    k.I("s_and_b32", s(sw3), s(swave), 3)
    k.I("s_mul_i32", s(st0), s(sidx), 37)
    k.I("s_lshr_b32", s(st0), s(st0), 8)
    k.I("s_mul_i32", s(st1), s(st0), 7)
    k.I("s_sub_u32", s(snt), s(sidx), s(st1))
    k.I("s_lshl_b32", s(srt), s(sj), 2)
    k.I("s_add_u32", s(srt), s(srt), s(st0))
    stp = Stamper(k, 5, sWS, swave)
    k.I("s_waitcnt", "lgkmcnt(0)")
    srd(k, sWS, pWS, WS_SIZE)
    comp = k.newlabel("compute")
    k.I("s_cmp_lt_u32", s(swave), 4)
    k.I("s_cbranch_scc1", comp)
    vsave = k.vnext
    srd(k, sWo, pWo, 896 * 896)
    v16 = k.valloc(); vWo = k.valloc()
    k.I("v_lshlrev_b32", v(v16), 4, v(lane))
    k.I("v_lshrrev_b32", v(t0), 3, v(lane))
    k.I("v_mul_u32_u24", v(t0), 896, v(t0))
    k.I("v_bfe_u32", v(t1), v(lane), 4, 1)
    k.I("v_lshlrev_b32", v(t1), 2, v(t1))
    k.I("v_and_b32", v(t2), 7, v(lane))
    k.I("v_xor_b32", v(t1), v(t1), v(t2))
    k.I("v_lshl_add_u32", v(vWo), v(t1), 4, v(t0))
    sUb = k.salloc(); sWb = k.salloc(); smU = k.salloc(); smW = k.salloc()
    k.I("s_lshr_b32", s(st0), s(sw3), 1)
    k.I("s_lshl_b32", s(st1), s(srt), 1)
    k.I("s_add_u32", s(st1), s(st1), s(st0))
    k.I("s_mul_i32", s(sUb), s(st1), 56 * 1024)
    k.I("s_and_b32", s(st1), s(sw3), 1)
    k.I("s_mul_i32", s(smU), s(st1), U1_OFF - U0_OFF)
    k.I("s_add_u32", s(sUb), s(sUb), s(smU))
    k.I("s_add_u32", s(sUb), s(sUb), hex(U0_OFF))
    k.I("s_lshl_b32", s(smU), s(st1), 13)
    k.I("s_lshl_b32", s(st0), s(st0), 12)
    k.I("s_add_u32", s(smU), s(smU), s(st0))
    k.I("s_mul_i32", s(sWb), s(sw3), 16 * 896)
    k.I("s_lshl_b32", s(st1), s(snt), 7)
    k.I("s_add_u32", s(sWb), s(sWb), s(st1))
    k.I("s_lshl_b32", s(smW), s(sw3), 11)
    k.I("s_add_u32", s(smW), s(smW), 16384)
    def issue(c):
        sl = (c % NS) * SLOT
        for i in range(4):
            k.I("s_add_u32", s(soff), s(sUb), hex((4 * c + i) * 1024))
            k.I("s_add_u32", "m0", s(smU), hex(sl + i * 1024))
            k.vm(("S", c), "buffer_load_dwordx4", v(v16), sr(sWS, 4), s(soff), mods="offen lds")
        for i in range(2):
            k.I("s_add_u32", s(soff), s(sWb), hex((64 * c + 8 * i) * 896))
            k.I("s_add_u32", "m0", s(smW), hex(sl + i * 1024))
            k.vm(("S", c), "buffer_load_dwordx4", v(vWo), sr(sWo, 4), s(soff), mods="offen lds")
    NST = 14
    for c in range(3): issue(c)
    for c in range(NST):
        k.wait_vm(("S", c))
        k.I("s_barrier")
        if c == 0: issue(3); issue(4)
        elif c + 3 < NST and c >= 2: issue(c + 3)
    k.I("s_endpgm")
    k.L(comp)
    k.vnext = vsave; k.vmq = []; k.lgq = []
    srd(k, sOut, pOut, 2048 * 896)
    l31 = k.valloc(); hh = k.valloc()
    k.I("v_and_b32", v(l31), 31, v(lane))
    k.I("v_lshrrev_b32", v(hh), 5, v(lane))
    srh = k.salloc(); snh = k.salloc(); sst = k.salloc(); sntile = k.salloc()
    k.I("s_and_b32", s(srh), s(swave), 1)
    k.I("s_lshr_b32", s(snh), s(swave), 1)
    k.I("s_lshl_b32", s(sst), s(srt), 1)
    k.I("s_add_u32", s(sst), s(sst), s(srh))
    k.I("s_lshl_b32", s(sntile), s(snt), 1)
    k.I("s_add_u32", s(sntile), s(sntile), s(snh))
    if os.environ.get("PF3", "0") == "1":
        vT0 = k.valloc(); vd0 = k.valloc(2)
        k.I("s_lshl_b32", s(st0), s(sidx), 8)
        k.I("v_add_u32", v(vT0), s(st0), "v0")
        k.I("v_mov_b32", v(t0), hex(U1_OFF - U0_OFF - 3584 * 128))
        k.I("v_cmp_le_u32", "vcc", 3584, v(vT0))
        k.I("v_cndmask_b32", v(t0), 0, v(t0), "vcc")
        k.I("v_lshl_add_u32", v(t0), v(vT0), 7, v(t0))
        k.I("s_mul_i32", s(st1), s(sj), 8 * 56 * 1024)
        k.I("s_add_u32", s(st1), s(st1), hex(U0_OFF))
        k.vm("pf", "buffer_load_dword", v(vd0), v(t0), sr(sWS, 4), s(st1), mods="offen")
    v16 = k.valloc()
    k.I("v_lshlrev_b32", v(v16), 4, v(lane))
    hr = k.valloc(8, 4)
    k.I("s_mul_i32", s(soff), s(sst), 28 * 1024)
    k.I("s_lshl_b32", s(st0), s(sntile), 11)
    k.I("s_add_u32", s(soff), s(soff), s(st0))
    k.I("s_add_u32", s(soff), s(soff), hex(H_OFF))
    k.vm("h", "buffer_load_dwordx4", vr(hr, 4), v(v16), sr(sWS, 4), s(soff), mods="offen")
    k.vm("h", "buffer_load_dwordx4", vr(hr + 4, 4), v(v16), sr(sWS, 4), s(soff), mods="offen offset:1024")
    stp.stamp(0)
    aU = k.valloc(); vW = k.valloc()
    k.I("s_lshl_b32", s(st0), s(srh), 12)
    k.I("v_add_u32", v(aU), s(st0), v(v16))
    k.I("v_bfe_u32", v(t0), v(lane), 2, 2)
    k.I("v_lshl_add_u32", v(t0), v(hh), 2, v(t0))
    k.I("v_lshlrev_b32", v(vW), 7, v(t0))
    k.I("v_add_u32", v(vW), 16384, v(vW))
    k.I("v_bfe_u32", v(t0), v(lane), 4, 1)
    k.I("v_lshlrev_b32", v(t0), 1, v(t0))
    k.I("v_bfe_u32", v(t1), v(lane), 1, 1)
    k.I("v_add_u32", v(t0), v(t0), v(t1))
    k.I("s_lshl_b32", s(st0), s(snh), 2)
    k.I("v_add_u32", v(t0), s(st0), v(t0))
    k.I("v_bfe_u32", v(t1), v(lane), 3, 1)
    k.I("v_lshlrev_b32", v(t1), 2, v(t1))
    k.I("v_xor_b32", v(t0), v(t0), v(t1))
    k.I("v_lshl_add_u32", v(vW), v(t0), 4, v(vW))
    k.I("v_and_b32", v(t0), 1, v(lane))
    k.I("v_lshl_add_u32", v(vW), v(t0), 3, v(vW))
    aU2 = k.valloc(); vW2 = k.valloc()
    k.I("v_add_u32", v(aU2), 3 * SLOT, v(aU))
    k.I("v_add_u32", v(vW2), 3 * SLOT, v(vW))
    acc = k.valloc(16, 4)
    NB = 3
    uf = [[k.valloc(4) for _ in range(2)] for _ in range(NB)]; wf = [k.valloc(4) for _ in range(NB)]
    def rl(ks):
        c, j = ks // 4, ks % 4
        b = ks % NB
        sl = (c % NS)
        hi = sl >= 3
        so = (sl - (3 if hi else 0)) * SLOT
        out = []
        for ar_ in range(2):
            out.append(lambda ar_=ar_: k.lg(("f", ks), "ds_read_b128", vr(uf[b][ar_], 4), v(aU2 if hi else aU), mods=f"offset:{so + ar_ * 8192 + j * 1024}"))
        for beta in range(2):
            o = so + (16 * j + 8 * beta) * 128
            out.append(lambda o=o, beta=beta: k.lg(("f", ks), "ds_read_b64_tr_b16", vr(wf[b] + 2 * beta, 2), v(vW2 if hi else vW), mods=f"offset:{o}"))
        return out
    k.I("s_barrier")
    stp.stamp(1)
    for f in rl(0) + rl(1): f()
    NKS = NST * 4
    for ks in range(NKS):
        c, j = ks // 4, ks % 4
        b = ks % NB
        k.wait_lg(("f", ks))
        mf = [lambda ar_=ar_: k.I("v_mfma_f32_32x32x16_bf16", vr(acc, 16), vr(wf[b], 4), vr(uf[b][ar_], 4), 0 if (ks == 0 and ar_ == 0) else vr(acc, 16)) for ar_ in range(2)]
        fl = rl(ks + 2) if ks + 2 < NKS else []
        if j == 2 and ks + 2 < NKS: k.I("s_barrier")
        interleave(k, mf, fl)
    stp.stamp(2)
    k.wait_vm("h")
    tp = [k.valloc(2) for _ in range(4)]
    for j in range(8):
        T = tp[j % 4]
        k.I("v_lshlrev_b32", v(T), 16, v(hr + j))
        k.I("v_and_b32", v(T + 1), "0xffff0000", v(hr + j))
        k.I("v_pk_add_f32", vr(acc + 2 * j, 2), vr(acc + 2 * j, 2), vr(T, 2))
    P = k.valloc(8, 4)
    for j in range(8): k.I("v_cvt_pk_bf16_f32", v(P + j), v(acc + 2 * j), v(acc + 2 * j + 1))
    for kp in range(2):
        k.I("v_permlane32_swap_b32", v(P + 4 * kp), v(P + 4 * kp + 2))
        k.I("v_permlane32_swap_b32", v(P + 4 * kp + 1), v(P + 4 * kp + 3))
    vo = k.valloc()
    k.I("v_mul_u32_u24", v(vo), 896, v(l31))
    k.I("v_lshl_add_u32", v(vo), v(hh), 4, v(vo))
    k.I("s_mul_i32", s(soff), s(sst), 32 * 896)
    k.I("s_lshl_b32", s(st0), s(sntile), 6)
    k.I("s_add_u32", s(soff), s(soff), s(st0))
    for kp in range(2):
        k.I("buffer_store_dwordx4", vr(P + 4 * kp, 4), v(vo), sr(sOut, 4), s(soff), mods=f"offen offset:{32 * kp}")
    stp.stamp(3)
    k.L(R["done"])
    k.I("s_endpgm")
    k.lds = lds; k.threads = 512; k.grid = 224
    return k

def rest(Stamper):
    return [gen_k2(Stamper), gen_k3(Stamper), gen_k4(Stamper), gen_k5(Stamper), gen_k6(Stamper)]
```

```python
Q_OFF = 0x000000
K_OFF = 0x200000
V_OFF = 0x400000
O_OFF = 0x600000
H_OFF = 0x800000
HS_OFF = 0xA00000
CW_OFF = 0xA40000
EX_OFF = 0xA50000
FL_OFF = 0xA90000
RH_OFF = 0xAC0000
Z1_OFF = 0xB00000
Z2_OFF = 0xF00000
U0_OFF = 0x1300000
U1_OFF = 0x1700000
EX2_OFF = 0x1B80000
STAMP_OFF = 0x1B00000
STAMP_BYTES = 8 * 256 * 8 * 8
TICK_OFF = 0x1B40000
TICK_BYTES = 8 * 256 * 128
WS_USED = 0x1C00000

import os
Z2_PAD = int(os.environ.get("Z2PAD", "1"))
ZK = 65536 + (1280 if Z2_PAD else 0)
ZS = 2 * ZK + (768 if Z2_PAD else 0)
```

```python
import sys, os
sys.path.insert(0, os.path.dirname(__file__))
from asmlib import *
from layout import *

NAME = "sequential_preLN__sliding_block__mixer_gmlp__prompt"
STAMPS = os.environ.get("GEN_STAMPS", "0") == "1"
WS_SIZE = 0x10000000

def srd(k, dst, base, size):
    k.I("s_mov_b32", s(dst), s(base))
    k.I("s_and_b32", s(dst + 1), s(base + 1), "0xffff")
    k.I("s_mov_b32", s(dst + 2), hex(size) if isinstance(size, int) else size)
    k.I("s_mov_b32", s(dst + 3), "0x20000")

class Stamper:
    def __init__(self, k, kidx, sWS, swave):
        self.k, self.kidx, self.sWS, self.swave = k, kidx, sWS, swave
        if STAMPS:
            self.st = k.salloc(2); self.vt = k.valloc(2); self.vo = k.valloc(1); self.ex = k.salloc(2)
    def tick(self, i):
        if not STAMPS: return
        if not hasattr(self, "tk"): self.tk = self.k.salloc(32, 4)
        self.k.I("s_memtime", sr(self.tk + 2 * i, 2))
        self.nt = max(getattr(self, "nt", 0), i + 1)
    def dump_ticks(self):
        if not STAMPS or not hasattr(self, "tk"): return
        k = self.k
        k.I("s_waitcnt", "lgkmcnt(0)")
        k.lgq = []
        k.I("s_lshl_b32", s(self.ex), "s2", 7)
        k.I("s_add_u32", s(self.ex), s(self.ex), hex(TICK_OFF + self.kidx * 256 * 128))
        k.I("s_cmp_lg_u32", s(self.swave), int(os.environ.get("TICKWAVE", "0")))
        k.I("s_cselect_b32", s(self.ex), "0x7ffffff0", s(self.ex))
        k.I("s_mov_b64", sr(self.st, 2), "exec")
        k.I("s_mov_b64", "exec", 1)
        k.I("v_mov_b32", v(self.vo), 0)
        for i in range(16):
            k.I("v_mov_b32", v(self.vt), s(self.tk + 2 * i))
            k.I("v_mov_b32", v(self.vt + 1), s(self.tk + 2 * i + 1))
            k.I("buffer_store_dwordx2", vr(self.vt, 2), v(self.vo), sr(self.sWS, 4), s(self.ex), mods=f"offen offset:{8 * i}")
            k.I("s_nop", 1)
        k.I("s_mov_b64", "exec", sr(self.st, 2))
    def stamp(self, j):
        if not STAMPS: return
        k = self.k
        k.I("s_memrealtime", sr(self.st, 2))
        k.I("s_lshl_b32", s(self.ex), "s2", 6)
        k.I("s_add_u32", s(self.ex), s(self.ex), hex(STAMP_OFF + self.kidx * 256 * 64 + j * 8))
        k.I("s_cmp_lg_u32", s(self.swave), 0)
        k.I("s_cselect_b32", s(self.ex), "0x7ffffff0", s(self.ex))
        k.I("s_waitcnt", "lgkmcnt(0)")
        k.lgq = []
        k.I("v_mov_b32", v(self.vt), s(self.st))
        k.I("v_mov_b32", v(self.vt + 1), s(self.st + 1))
        k.I("v_mov_b32", v(self.vo), 0)
        k.I("s_mov_b64", sr(self.st, 2), "exec")
        k.I("s_mov_b64", "exec", 1)
        k.I("buffer_store_dwordx2", vr(self.vt, 2), v(self.vo), sr(self.sWS, 4), s(self.ex), mods="offen")
        k.I("s_mov_b64", "exec", sr(self.st, 2))
        k.vmq.append("stamp")

class DbgStamper:
    LAST = {0: 3, 1: 2, 2: 3, 3: 5, 4: 3, 5: 3}
    def __init__(self, k, kidx, sWS, swave):
        self.k, self.kidx, self.swave = k, kidx, swave
        self.st = k.salloc(2); self.vt = k.valloc(2); self.vo = k.valloc(1); self.ex = k.salloc(2)
        self.pd = k.salloc(2); self.sD = k.salloc(4)
        k.I("s_memrealtime", sr(self.st, 2))
        k.I("s_load_dwordx2", sr(self.pd, 2), "s[0:1]", 72)
        self.t0 = k.salloc(2)
        k.I("s_waitcnt", "lgkmcnt(0)")
        k.I("s_mov_b32", s(self.t0), s(self.st))
        k.I("s_sub_u32", s(self.pd), s(self.pd), 512 * kidx)
        k.I("s_subb_u32", s(self.pd + 1), s(self.pd + 1), 0)
        srd(k, self.sD, self.pd, 512 * 5 + 256)
    def tick(self, i): pass
    def dump_ticks(self): pass
    def stamp(self, j):
        if j != self.LAST[self.kidx]: return
        k = self.k
        k.I("s_memrealtime", sr(self.st, 2))
        k.I("s_or_b32", s(self.ex), "s2", s(self.swave))
        k.I("s_cmp_lg_u32", s(self.ex), 0)
        k.I("s_cselect_b32", s(self.ex), "0x7ffffff0", 8 * self.kidx)
        k.I("s_waitcnt", "lgkmcnt(0)")
        k.lgq = []
        k.I("v_mov_b32", v(self.vt), s(self.t0))
        k.I("v_mov_b32", v(self.vt + 1), s(self.st))
        k.I("v_mov_b32", v(self.vo), 0)
        k.I("s_mov_b64", sr(self.st, 2), "exec")
        k.I("s_mov_b64", "exec", 1)
        for tg in range(6):
            k.I("buffer_store_dwordx2", vr(self.vt, 2), v(self.vo), sr(self.sD, 4), s(self.ex), mods=f"offen offset:{512 * tg}")
            k.vmq.append("stamp")
        k.I("s_mov_b64", "exec", sr(self.st, 2))

if os.environ.get("GEN_DBG"): Stamper = DbgStamper

def gen_k1():
    k = Kernel("k1_qkv_kernel")
    k.snext = 4; k.vnext = 1
    WREG = 0; WCH = 12288; XRING = 7 * WCH; XSL = 4096; NXS = 4
    TBL = XRING + 4 * NXS * XSL
    CWT = TBL; RT = TBL + 512; NMT = TBL + 1024; SQT = TBL + 1536
    ONES = TBL + 2048
    lds = ONES + 1024
    done = k.newlabel("done")
    k.I("s_cmp_ge_u32", "s2", 256)
    k.I("s_cbranch_scc1", done)
    pX = k.salloc(4); pWS = k.salloc(2)
    k.I("s_load_dwordx4", sr(pX, 4), "s[0:1]", 0)
    k.I("s_load_dwordx2", sr(pWS, 2), "s[0:1]", 80)
    sX = k.salloc(4); sW = k.salloc(4); sWS = k.salloc(4)
    swave = k.salloc(); srb = k.salloc(); shd = k.salloc(); st0 = k.salloc(); st1 = k.salloc(); soff = k.salloc()
    lane = k.valloc(); l31 = k.valloc(); hh = k.valloc(); t0 = k.valloc(); t1 = k.valloc(); t2 = k.valloc()
    k.I("v_lshrrev_b32", v(t0), 6, "v0")
    k.I("v_and_b32", v(lane), 63, "v0")
    k.I("v_readfirstlane_b32", s(swave), v(t0))
    k.I("s_and_b32", s(st0), "s2", 7)
    k.I("s_lshr_b32", s(st1), "s2", 3)
    k.I("s_and_b32", s(shd), s(st1), 15)
    k.I("s_lshr_b32", s(st1), s(st1), 4)
    k.I("s_lshl_b32", s(srb), s(st0), 1)
    k.I("s_add_u32", s(srb), s(srb), s(st1))
    stp = Stamper(k, 0, sWS, swave)
    sw3 = k.salloc()
    k.I("s_and_b32", s(sw3), s(swave), 3)
    l15 = k.valloc()
    k.I("v_and_b32", v(l15), 15, v(lane))
    k.I("s_waitcnt", "lgkmcnt(0)")
    srd(k, sW, pX + 2, 448 * 2688)
    srd(k, sX, pX, 2048 * 896)
    comp = k.newlabel("compute")
    k.I("s_cmp_lt_u32", s(swave), 4)
    k.I("s_cbranch_scc1", comp)
    vsave = k.vnext
    vXo = k.valloc(4)
    k.I("v_lshrrev_b32", v(t0), 3, v(lane))
    k.I("v_mul_u32_u24", v(t0), 896, v(t0))
    k.I("v_lshrrev_b32", v(t1), 4, v(lane))
    k.I("v_and_b32", v(t2), 7, v(lane))
    k.I("v_xor_b32", v(t1), v(t1), v(t2))
    k.I("v_lshl_add_u32", v(vXo), v(t1), 4, v(t0))
    k.I("v_xor_b32", v(t1), 4, v(t1))
    k.I("v_lshl_add_u32", v(vXo + 1), v(t1), 4, v(t0))
    k.I("v_add_u32", v(vXo + 1), 8 * 896, v(vXo + 1))
    k.I("v_add_u32", v(vXo + 2), 16 * 896, v(vXo))
    k.I("v_add_u32", v(vXo + 3), 16 * 896, v(vXo + 1))
    vWo = k.valloc(3)
    for b in range(3):
        k.I("v_add_u32", v(t0), 64 * b, v(lane))
        k.I("v_mul_u32_u24", v(t1), 171, v(t0))
        k.I("v_lshrrev_b32", v(t1), 11, v(t1))
        k.I("v_mul_u32_u24", v(t2), 12, v(t1))
        k.I("v_sub_u32", v(t0), v(t0), v(t2))
        k.I("v_mul_u32_u24", v(vWo + b), 2688, v(t1))
        k.I("v_lshrrev_b32", v(t2), 2, v(t0))
        k.I("v_mul_u32_u24", v(t2), 896, v(t2))
        k.I("v_and_b32", v(t0), 3, v(t0))
        k.I("v_lshl_add_u32", v(t2), v(t0), 4, v(t2))
        k.I("v_add_u32", v(vWo + b), v(vWo + b), v(t2))
        if os.environ.get("EXP_WCONT"):
            k.I("v_lshlrev_b32", v(vWo + b), 4, v(lane))
            k.I("v_add_u32", v(vWo + b), 1024 * b, v(vWo + b))
    sWb = k.salloc(); sm0 = k.salloc(); sXb = k.salloc(); sm0x = k.salloc()
    k.I("s_mul_i32", s(sWb), s(shd), 56)
    k.I("s_mul_i32", s(st0), s(sw3), 16 * 2688)
    k.I("s_add_u32", s(sWb), s(sWb), s(st0))
    k.I("s_mul_i32", s(sm0), s(sw3), 3 * 1024)
    k.I("s_lshl_b32", s(st0), s(srb), 7)
    k.I("s_lshl_b32", s(st1), s(sw3), 5)
    k.I("s_add_u32", s(st0), s(st0), s(st1))
    k.I("s_mul_i32", s(sXb), s(st0), 896)
    k.I("s_mul_i32", s(sm0x), s(sw3), NXS * XSL)
    k.I("s_add_u32", s(sm0x), s(sm0x), XRING)
    def wdma(c, b):
        if os.environ.get("EXP_NODMA") and c >= 3: return
        k.I("s_add_u32", s(soff), s(sWb), hex(c * 64 * 2688))
        k.I("s_add_u32", "m0", s(sm0), hex(WREG + c * WCH + b * 1024))
        k.vm(("W", c), "buffer_load_dwordx4", v(vWo + b), sr(sW, 4), s(soff), mods="offen lds")
    def xdma(c, j):
        if os.environ.get("EXP_NODMA") and c >= 2: return
        k.I("s_add_u32", s(soff), s(sXb), hex(c * 128))
        k.I("s_add_u32", "m0", s(sm0x), hex((c % NXS) * XSL + j * 1024))
        k.vm(("X", c), "buffer_load_dwordx4", v(vXo + j), sr(sX, 4), s(soff), mods="offen lds")
    for c in range(2):
        for b in range(3): wdma(c, b)
        for j in range(4): xdma(c, j)
    for b in range(3): wdma(2, b)
    LT = os.environ.get("TICKWAVE", "0") != "0"
    if LT: stp.tick(0)
    for c in range(7):
        k.wait_vm([("W", c), ("X", c)])
        if LT and c < 5: stp.tick(1 + 3 * c)
        k.I("s_barrier")
        if LT and c < 5: stp.tick(2 + 3 * c)
        if c + 2 <= 6:
            for j in range(4): xdma(c + 2, j)
        if c + 3 <= 6:
            for b in range(3): wdma(c + 3, b)
        if LT and c < 5: stp.tick(3 + 3 * c)
    k.I("s_barrier")
    if LT:
        srd(k, sWS, pWS, WS_SIZE)
        stp.dump_ticks()
    k.I("s_endpgm")
    k.L(comp)
    k.vnext = vsave; k.vmq = []; k.lgq = []
    vpf = k.valloc(); vpd = k.valloc(4)
    k.I("s_lshr_b32", s(st0), "s2", 3)
    k.I("s_lshl_b32", s(st0), s(st0), 8)
    k.I("v_add_u32", v(vpf), s(st0), "v0")
    k.I("v_lshlrev_b32", v(vpf), 7, v(vpf))
    if not os.environ.get("EXP_NOPF"):
        k.I("buffer_load_dword", v(vpd), v(vpf), sr(sW, 4), 0, mods="offen")
        k.I("v_add_u32", v(vpf), 8192 * 128, v(vpf))
        k.I("buffer_load_dword", v(vpd + 1), v(vpf), sr(sW, 4), 0, mods="offen")
        k.I("s_and_b32", s(st0), "s2", 7)
        k.I("s_mul_i32", s(st0), s(st0), 256 * 896)
        k.I("v_subrev_u32", v(vpf), 9408 * 128, v(vpf))
        k.I("v_mov_b32", v(t0), hex(256 * 896))
        k.I("v_cmp_lt_u32", "vcc", v(vpf), v(t0))
        k.I("v_mov_b32", v(t1), "0x7fffff00")
        k.I("v_cndmask_b32", v(vpf), v(t1), v(vpf), "vcc")
        k.I("buffer_load_dword", v(vpd + 2), v(vpf), sr(sX, 4), s(st0), mods="offen")
    sidx1 = k.salloc()
    k.I("s_lshr_b32", s(sidx1), "s2", 3)
    import kernels2
    kernels2.code_prefetch(k, "k2_attn_kernel", sidx1, st0)
    if os.environ.get("PF2", "0") == "1":
        pp = k.salloc(2); sP = k.salloc(4); vT = k.valloc(); vd = k.valloc(8)
        k.I("s_lshr_b32", s(st0), "s2", 3)
        k.I("s_lshl_b32", s(st0), s(st0), 8)
        k.I("v_add_u32", v(vT), s(st0), "v0")
        k.I("v_lshlrev_b32", v(vT), 7, v(vT))
        k.I("s_getpc_b64", sr(pp, 2))
        k.I("s_and_b32", s(pp), s(pp), "0xffffff00")
        srd(k, sP, pp, "CODE_BYTES-4096")
        k.I("buffer_load_dword", v(vd), v(vT), sr(sP, 4), 0, mods="offen")
        for (ko, nbytes, n) in ((16, 448 * 896, 1), (32, 448 * 3584, 2)):
            k.I("s_load_dwordx2", sr(pp, 2), "s[0:1]", ko)
            k.I("s_waitcnt", "lgkmcnt(0)")
            srd(k, sP, pp, nbytes)
            for i in range(n):
                k.I("s_mov_b32", s(st0), hex(i * 8192 * 128))
                k.I("buffer_load_dword", v(vd + 1 + i + (0 if ko == 16 else 1)), v(vT), sr(sP, 4), s(st0), mods="offen")
        vG = k.valloc()
        k.I("s_lshl_b32", s(st0), "s2", 8)
        k.I("v_add_u32", v(vG), s(st0), "v0")
        k.I("v_lshlrev_b32", v(vG), 7, v(vG))
        for n_, (ko, nbytes) in enumerate(((40, 2048 * 4096), (56, 896 * 896))):
            k.I("s_load_dwordx2", sr(pp, 2), "s[0:1]", ko)
            k.I("s_waitcnt", "lgkmcnt(0)")
            srd(k, sP, pp, nbytes)
            k.I("buffer_load_dword", v(vd + 5 + n_), v(vG), sr(sP, 4), 0, mods="offen")
        srd(k, sP, pWS, 0x1C00000)
        k.I("v_lshlrev_b32", v(t0), 9, v(vT))
        k.I("buffer_load_dword", v(vd + 4), v(t0), sr(sP, 4), 0, mods="offen")
    sm0x = k.salloc()
    k.I("s_mul_i32", s(sm0x), s(swave), NXS * XSL)
    k.I("s_add_u32", s(sm0x), s(sm0x), XRING)
    aX = k.valloc(4); vW = k.valloc(); aG = k.valloc(4); vWj = k.valloc()
    gg = k.valloc()
    k.I("v_and_b32", v(l31), 31, "v0")
    k.I("v_bfe_u32", v(hh), "v0", 5, 1)
    k.I("v_lshrrev_b32", v(gg), 4, v(lane))
    k.I("v_bfe_u32", v(t0), v(l31), 1, 3)
    for j in range(4):
        k.I("v_add_u32", v(t1), 2 * j, v(hh))
        k.I("v_xor_b32", v(t1), v(t1), v(t0))
        k.I("v_lshlrev_b32", v(t1), 4, v(t1))
        k.I("v_lshl_add_u32", v(aX + j), v(l31), 7, v(t1))
        k.I("v_add_u32", v(aX + j), s(sm0x), v(aX + j))
    for rg in range(2):
        k.I("v_add_u32", v(t0), 16 * rg, v(l15))
        k.I("v_bfe_u32", v(t1), v(t0), 1, 3)
        for kk in range(2):
            k.I("v_add_u32", v(t2), 4 * kk, v(gg))
            k.I("v_xor_b32", v(t2), v(t2), v(t1))
            k.I("v_lshlrev_b32", v(t2), 4, v(t2))
            k.I("v_lshl_add_u32", v(aG + 2 * rg + kk), v(t0), 7, v(t2))
            k.I("v_add_u32", v(aG + 2 * rg + kk), s(sm0x), v(aG + 2 * rg + kk))
    k.I("v_bfe_u32", v(t0), "v0", 2, 2)
    k.I("v_lshl_add_u32", v(t1), v(hh), 3, v(t0))
    k.I("v_mul_u32_u24", v(t1), 192, v(t1))
    k.I("v_bfe_u32", v(t2), "v0", 4, 1)
    k.I("v_lshl_add_u32", v(t1), v(t2), 5, v(t1))
    k.I("v_and_b32", v(t2), 3, "v0")
    k.I("v_lshl_add_u32", v(vW), v(t2), 3, v(t1))
    k.I("v_lshl_add_u32", v(t0), v(gg), 3, v(t0))
    k.I("v_mul_u32_u24", v(t0), 192, v(t0))
    k.I("v_lshl_add_u32", v(vWj), v(t2), 3, v(t0))
    k.I("s_lshr_b32", s(st0), s(swave), 1)
    k.I("s_mul_i32", s(st0), s(st0), 32 * 192)
    k.I("s_and_b32", s(st1), s(swave), 1)
    k.I("s_mul_i32", s(st1), s(st1), 96)
    k.I("s_add_u32", s(st0), s(st0), s(st1))
    k.I("v_add_u32", v(vWj), s(st0), v(vWj))
    vW2 = k.valloc(); vWj2 = k.valloc()
    k.I("v_add_u32", v(vW2), 4 * WCH, v(vW))
    k.I("v_add_u32", v(vWj2), 4 * WCH, v(vWj))
    ones = k.valloc(4)
    vWq = k.valloc(); vInc = k.valloc()
    k.I("v_and_b32", v(t0), 19, v(lane))
    k.I("v_cmp_eq_u32", "vcc", 19, v(t0))
    k.I("v_mov_b32", v(t1), ONES)
    k.I("v_cndmask_b32", v(vWq), v(vW), v(t1), "vcc")
    k.I("v_mov_b32", v(t1), 16 * 192)
    k.I("v_cndmask_b32", v(vInc), v(t1), 0, "vcc")
    k.I("v_lshlrev_b32", v(t0), 4, v(lane))
    k.I("v_add_u32", v(t0), ONES, v(t0))
    for i in range(4): k.I("v_mov_b32", v(ones + i), "0x3f803f80")
    k.lg("z", "ds_write_b128", v(t0), vr(ones, 4))
    zz = k.valloc(2); vtb = k.valloc()
    k.I("v_mov_b32", v(zz), 0); k.I("v_mov_b32", v(zz + 1), 0)
    k.I("v_lshlrev_b32", v(vtb), 3, v(lane))
    k.I("v_add_u32", v(vtb), CWT, v(vtb))
    k.lg("z", "ds_write_b64", v(vtb), vr(zz, 2))
    accq = k.valloc(16, 4); acck = k.valloc(16, 4); accv = k.valloc(16, 4)
    NB = 3
    cacc = [k.valloc(4) for _ in range(3)]
    gacc = [k.valloc(4) for _ in range(2)]
    vmark = k.vnext
    xf = [k.valloc(4) for _ in range(NB)]
    wf = [[k.valloc(4) for _ in range(3)] for _ in range(NB)]
    xs = [k.valloc(4) for _ in range(4)]
    wf2 = [k.valloc(4) for _ in range(3)]
    def read_list(ks):
        c, j = ks // 4, ks % 4
        b = ks % NB
        out = [lambda: k.lg(("f", ks), "ds_read_b128", vr(xf[b], 4), v(aX + j), mods=f"offset:{(c % NXS) * XSL}")]
        for beta in range(2):
            out.append(lambda beta=beta: k.lg(("f", ks), "ds_read_b64_tr_b16", vr(wf[b][0] + 2 * beta, 2), v(vWq), mods=f"offset:{beta * 4 * 192}"))
        out.append(lambda: k.I("v_add_u32", v(vWq), v(vInc), v(vWq)))
        for sg in range(1, 3):
            for beta in range(2):
                o = (c % 4) * WCH + (16 * j + 4 * beta) * 192 + 64 * sg
                base = vW if c < 4 else vW2
                out.append(lambda o=o, sg=sg, beta=beta, base=base: k.lg(("f", ks), "ds_read_b64_tr_b16", vr(wf[b][sg] + 2 * beta, 2), v(base), mods=f"offset:{o}"))
        return out
    def aux_reads(c):
        out = []
        for j in range(4):
            out.append(lambda j=j: k.lg(("g", c), "ds_read_b128", vr(xs[j], 4), v(aG + j), mods=f"offset:{(c % NXS) * XSL}"))
        for nt in range(3):
            for beta in range(2):
                o = (c % 4) * WCH + (4 * beta) * 192 + 32 * nt
                base = vWj if c < 4 else vWj2
                out.append(lambda o=o, nt=nt, beta=beta, base=base: k.lg(("cw", c), "ds_read_b64_tr_b16", vr(wf2[nt] + 2 * beta, 2), v(base), mods=f"offset:{o}"))
        return out
    k.I("s_waitcnt", "lgkmcnt(0)")
    srd(k, sWS, pWS, WS_SIZE)
    stp.stamp(0)
    k.wait_lg("z")
    k.I("s_barrier")
    stp.stamp(1)
    if os.environ.get("TICKWAVE", "0") != "0": stp.tick = lambda i: None
    stp.tick(0)
    for f in read_list(0): f()
    for f in read_list(1): f()
    for ks in range(28):
        c, j = ks // 4, ks % 4
        b = ks % NB
        fill = []
        if ks + 2 < 28:
            fill += read_list(ks + 2)
        vm = []
        aux = []
        if j == 0: aux = aux_reads(c)[:4]
        if j == 1: aux = aux_reads(c)[4:]
        if os.environ.get("EXP_NOCOMP"):
            k.lgq = []
            if j == 1 and c < 6:
                k.I("s_barrier"); stp.tick(1 + c)
            continue
        k.wait_lg(("f", ks))
        mf = [
            lambda: k.I("v_mfma_f32_32x32x16_bf16", vr(accq, 16), vr(wf[b][0], 4), vr(xf[b], 4), 0 if ks == 0 else vr(accq, 16)),
            lambda: k.I("v_mfma_f32_32x32x16_bf16", vr(acck, 16), vr(wf[b][1], 4), vr(xf[b], 4), 0 if ks == 0 else vr(acck, 16)),
            lambda: k.I("v_mfma_f32_32x32x16_bf16", vr(accv, 16), vr(xf[b], 4), vr(wf[b][2], 4), 0 if ks == 0 else vr(accv, 16)),
        ]
        fl = fill + aux + vm
        n = len(fl)
        cuts = [0, (n + 2) // 3, (2 * n + 2) // 3, n]
        for i in range(3):
            mf[i]()
            for f in fl[cuts[i]:cuts[i + 1]]: f()
        if j == 2:
            k.wait_lg(("g", c))
            for jj in range(4):
                k.I("v_mfma_f32_16x16x32_bf16", vr(gacc[jj >> 1], 4), vr(xs[jj], 4), vr(xs[jj], 4), 0 if (c == 0 and (jj & 1) == 0) else vr(gacc[jj >> 1], 4))
        if j == 3:
            k.wait_lg(("cw", c))
            for nt in range(3):
                k.I("v_mfma_f32_16x16x32_bf16", vr(cacc[nt], 4), vr(ones, 4), vr(wf2[nt], 4), 0 if c == 0 else vr(cacc[nt], 4))
        if j == 1 and c < 6:
            k.I("s_barrier")
            stp.tick(1 + c)
    stp.tick(13)
    stp.stamp(2)
    k.vnext = vmark
    m1 = k.salloc(2); m2 = k.salloc(2); m3 = k.salloc(2)
    k.I("v_and_b32", v(t0), 3, v(lane))
    k.I("v_cmp_eq_u32", sr(m1, 2), 1, v(t0))
    k.I("v_cmp_eq_u32", sr(m2, 2), 2, v(t0))
    k.I("v_cmp_eq_u32", sr(m3, 2), 3, v(t0))
    vtl = k.valloc()
    k.I("v_lshlrev_b32", v(vtl), 2, v(l15))
    k.I("v_add_u32", v(vtl), TBL, v(vtl))
    k.I("s_and_b32", s(st1), s(swave), 1)
    k.I("s_mul_i32", s(st1), s(st1), 192)
    k.I("v_add_u32", v(t1), s(st1), v(vtl))
    k.I("s_mov_b32", "exec_lo", "0xffff")
    k.I("s_mov_b32", "exec_hi", 0)
    for nt in range(3):
        k.I("ds_add_f32", v(t1), v(cacc[nt]), mods=f"offset:{64 * nt}")
    k.I("s_mov_b64", "exec", -1)
    for rg in range(2):
        g_ = gacc[rg]
        k.I("v_cndmask_b32", v(g_), v(g_), v(g_ + 1), sr(m1, 2))
        k.I("v_cndmask_b32", v(g_), v(g_), v(g_ + 2), sr(m2, 2))
        k.I("v_cndmask_b32", v(g_), v(g_), v(g_ + 3), sr(m3, 2))
    k.I("s_lshl_b32", s(st0), s(swave), 7)
    k.I("v_add_u32", v(t0), s(st0), v(vtl))
    k.I("s_mov_b32", "exec_lo", "0x00f0000f")
    k.I("s_mov_b32", "exec_hi", "0xf0000f00")
    for rg in range(2):
        k.I("ds_write_b32", v(t0), v(gacc[rg]), mods=f"offset:{SQT - TBL + 64 * rg}")
    k.I("s_mov_b64", "exec", -1)
    sq = k.valloc(2); rl = k.valloc(2); nml = k.valloc(2); cwv = k.valloc(2)
    cwq = k.valloc(16, 4); cwk = k.valloc(16, 4); rv = k.valloc(16, 4); nv = k.valloc(16, 4)
    ta = k.valloc(); tb = k.valloc(); tc = k.valloc()
    k.I("v_lshlrev_b32", v(ta), 2, v(l31))
    k.I("s_add_u32", s(st0), s(st0), TBL)
    k.I("v_add_u32", v(ta), s(st0), v(ta))
    k.I("v_mov_b32", v(nml), v(accq + 12))
    k.I("v_mov_b32", v(nml + 1), v(accq + 12))
    k.I("v_permlane32_swap_b32", v(nml), v(nml + 1))
    k.I("v_mul_f32", v(nml), hex(f32(-1.0 / 448)), v(nml + 1))
    k.I("s_waitcnt", "lgkmcnt(0)")
    k.I("ds_read_b32", v(sq), v(ta), mods=f"offset:{SQT - TBL}")
    k.I("ds_write_b32", v(ta), v(nml), mods=f"offset:{NMT - TBL}")
    k.I("s_barrier")
    k.I("v_lshlrev_b32", v(tb), 4, v(hh))
    k.I("v_add_u32", v(tb), TBL, v(tb))
    for q in range(4):
        k.I("ds_read_b128", vr(cwq + 4 * q, 4), v(tb), mods=f"offset:{CWT - TBL + 32 * q}")
        k.I("ds_read_b128", vr(cwk + 4 * q, 4), v(tb), mods=f"offset:{CWT - TBL + 128 + 32 * q}")
    k.I("v_lshlrev_b32", v(tc), 2, v(l31))
    k.I("v_add_u32", v(tc), TBL, v(tc))
    k.I("ds_read_b32", v(cwv), v(tc), mods=f"offset:{CWT - TBL + 256}")
    k.I("s_waitcnt", "lgkmcnt(9)")
    k.I("v_mul_f32", v(sq), hex(f32(1.0 / 448)), v(sq))
    k.I("v_fma_f32", v(sq), f"-{v(nml)}", v(nml), v(sq))
    k.I("v_max_f32", v(sq), 0, v(sq))
    k.I("v_add_f32", v(sq), hex(f32(1e-5)), v(sq))
    k.I("v_rsq_f32", v(rl), v(sq))
    k.I("s_lshl_b32", s(st0), s(swave), 7)
    k.I("v_add_u32", v(tb), s(st0), v(tb))
    k.I("ds_write_b32", v(ta), v(rl), mods=f"offset:{RT - TBL}")
    k.I("s_waitcnt", "lgkmcnt(0)")
    for q in range(4):
        k.I("ds_read_b128", vr(rv + 4 * q, 4), v(tb), mods=f"offset:{RT - TBL + 32 * q}")
        k.I("ds_read_b128", vr(nv + 4 * q, 4), v(tb), mods=f"offset:{NMT - TBL + 32 * q}")
    k.lgq = []
    vq = k.valloc(); vv_ = k.valloc()
    k.I("v_lshrrev_b32", v(t0), 4, v(l31))
    k.I("v_lshlrev_b32", v(vq), 10, v(t0))
    k.I("v_lshl_add_u32", v(vq), v(l15), 4, v(vq))
    k.I("v_lshl_add_u32", v(vq), v(hh), 9, v(vq))
    k.I("v_lshlrev_b32", v(vv_), 9, v(t0))
    k.I("v_lshl_add_u32", v(vv_), v(l15), 3, v(vv_))
    k.I("v_lshl_add_u32", v(vv_), v(hh), 7, v(vv_))
    sb = k.salloc()
    k.I("s_lshl_b32", s(sb), s(shd), 17)
    k.I("s_lshl_b32", s(st0), s(srb), 13)
    k.I("s_add_u32", s(sb), s(sb), s(st0))
    k.I("s_lshl_b32", s(st0), s(swave), 11)
    k.I("s_add_u32", s(sb), s(sb), s(st0))
    k.I("v_cmp_eq_u32", "vcc", 0, v(hh))
    pk = k.valloc(8, 4)
    for (acc, cw, off) in ((accq, cwq, Q_OFF), (acck, cwk, K_OFF)):
        for j in range(8):
            k.I("v_pk_fma_f32", vr(acc + 2 * j, 2), vr(cw + 2 * j, 2), vr(nml, 2), vr(acc + 2 * j, 2), mods="op_sel_hi:[1,0,1]")
        for j in range(8):
            k.I("v_pk_mul_f32", vr(acc + 2 * j, 2), vr(acc + 2 * j, 2), vr(rl, 2), mods="op_sel_hi:[1,0]")
        for j in range(8):
            k.I("v_cvt_pk_bf16_f32", v(pk + j), v(acc + 2 * j), v(acc + 2 * j + 1))
        k.I("v_cndmask_b32", v(pk + 6), 0, v(pk + 6), "vcc")
        k.I("v_cndmask_b32", v(pk + 7), 0, v(pk + 7), "vcc")
        k.I("s_add_u32", s(soff), s(sb), hex(off))
        k.I("buffer_store_dwordx4", vr(pk, 4), v(vq), sr(sWS, 4), s(soff), mods="offen")
        k.I("buffer_store_dwordx4", vr(pk + 4, 4), v(vq), sr(sWS, 4), s(soff), mods="offen offset:256")
        pk = k.valloc(8, 4)
    k.I("s_waitcnt", "lgkmcnt(0)")
    for j in range(8):
        k.I("v_pk_fma_f32", vr(accv + 2 * j, 2), vr(nv + 2 * j, 2), vr(cwv, 2), vr(accv + 2 * j, 2), mods="op_sel_hi:[1,0,1]")
    for j in range(8):
        k.I("v_pk_mul_f32", vr(accv + 2 * j, 2), vr(accv + 2 * j, 2), vr(rv + 2 * j, 2))
    for j in range(8):
        k.I("v_cvt_pk_bf16_f32", v(pk + j), v(accv + 2 * j), v(accv + 2 * j + 1))
    k.I("v_mov_b32", v(t0), "0x3f803f80")
    k.I("v_cmp_eq_u32", "vcc", 28, v(l31))
    k.I("v_cndmask_b32", v(t0), 0, v(t0), "vcc")
    k.I("v_cmp_gt_u32", "vcc", 28, v(l31))
    for j in range(8):
        k.I("v_cndmask_b32", v(pk + j), v(t0), v(pk + j), "vcc")
    k.I("s_add_u32", s(soff), s(sb), hex(V_OFF))
    for q in range(4):
        k.I("buffer_store_dwordx2", vr(pk + 2 * q, 2), v(vv_), sr(sWS, 4), s(soff), mods=f"offen offset:{(q >> 1) * 1024 + (q & 1) * 256}")
    stp.tick(15)
    stp.stamp(3)
    stp.dump_ticks()
    k.L(done)
    k.I("s_endpgm")
    k.lds = lds; k.threads = 512; k.grid = 256
    return k

import struct
def f32(x): return struct.unpack("<I", struct.pack("<f", x))[0]

def assemble(kernels):
    out = []
    hdr = open("cdna_kernels/" + NAME + ".s.ref").read().split("\n")
    for line in hdr:
        if line.startswith("; Override") or line.startswith("; grid=") or line.startswith("; @launch"): continue
        if not line.startswith(";"): break
        out.append(line)
    for k in kernels:
        out.append(f"; @launch kernel={k.name} grid=({k.grid},1,1) block=({k.threads},1,1) lds={k.lds}")
    out.append('.amdgcn_target "amdgcn-amd-amdhsa--gfx950"')
    out.append(".text")
    for k in kernels:
        n = k.fix_hazards()
        out.append(f".globl {k.name}")
        out.append(".p2align 8")
        out.append(f".type {k.name},@function")
        out.append(f"{k.name}:")
        out.append(k.render())
        out.append(f"{k.name}_end:")
        print(f"{k.name}: {len(k.ins)} instrs, hazard pads {n}, vgpr {k.vmax} agpr {k.amax} sgpr {k.smax} lds {k.lds}", file=sys.stderr)
    out.append("code_end:")
    out.append(f".set CODE_BYTES, code_end - {kernels[0].name}")
    out.append('.section .rodata,"a"')
    for k in kernels:
        out.append(".p2align 6")
        out.append(k.descriptor())
    return "\n".join(out) + "\n"

if __name__ == "__main__":
    import kernels2 as k2
    ks = [gen_k1()] + k2.rest(Stamper)
    path = sys.argv[1] if len(sys.argv) > 1 else "cdna_kernels/" + NAME + ".s"
    open(path, "w").write(assemble(ks))
```

```python
import os, struct, math
from asmlib import *
from layout import *
WS_SIZE = 0x10000000
def f32(x): return struct.unpack("<I", struct.pack("<f", x))[0]

def srd(k, dst, base, size):
    k.I("s_mov_b32", s(dst), s(base))
    k.I("s_and_b32", s(dst + 1), s(base + 1), "0xffff")
    k.I("s_mov_b32", s(dst + 2), hex(size) if isinstance(size, int) else size)
    k.I("s_mov_b32", s(dst + 3), "0x20000")

def gen_k2(Stamper):
    k = Kernel("k2_attn_kernel")
    k.snext = 4; k.vnext = 1
    KREG = 0; VREG = 24576
    lds = 49152
    done = k.newlabel("done")
    k.I("s_cmp_ge_u32", "s2", 256)
    k.I("s_cbranch_scc1", done)
    pWS = k.salloc(2)
    k.I("s_load_dwordx2", sr(pWS, 2), "s[0:1]", 80)
    sWS = k.salloc(4)
    swave = k.salloc(); srb = k.salloc(); shd = k.salloc(); st0 = k.salloc(); st1 = k.salloc(); soff = k.salloc()
    lane = k.valloc(); t0 = k.valloc(); t1 = k.valloc(); l15 = k.valloc(); gg = k.valloc()
    k.I("v_lshrrev_b32", v(t0), 6, "v0")
    k.I("v_and_b32", v(lane), 63, "v0")
    k.I("v_readfirstlane_b32", s(swave), v(t0))
    k.I("s_and_b32", s(st0), "s2", 7)
    k.I("s_lshr_b32", s(st1), "s2", 3)
    k.I("s_and_b32", s(shd), s(st1), 15)
    k.I("s_lshr_b32", s(st1), s(st1), 4)
    k.I("s_lshl_b32", s(srb), s(st0), 1)
    k.I("s_add_u32", s(srb), s(srb), s(st1))
    stp = Stamper(k, 1, sWS, swave)
    v16 = k.valloc()
    k.I("v_lshlrev_b32", v(v16), 4, v(lane))
    sb = k.salloc(); sm = k.salloc(); s16q = k.salloc()
    k.I("s_lshl_b32", s(sb), s(shd), 17)
    k.I("s_lshl_b32", s(st0), s(srb), 13)
    k.I("s_add_u32", s(sb), s(sb), s(st0))
    k.I("s_mul_i32", s(sm), s(swave), 3072)
    k.I("s_lshl_b32", s(s16q), s(srb), 3)
    k.I("s_add_u32", s(s16q), s(s16q), s(swave))
    k.I("s_waitcnt", "lgkmcnt(0)")
    srd(k, sWS, pWS, WS_SIZE)
    qf = k.valloc(4)
    k.I("s_lshl_b32", s(st0), s(swave), 10)
    k.I("s_add_u32", s(st0), s(st0), s(sb))
    k.I("s_add_u32", s(soff), s(st0), hex(Q_OFF))
    k.vm("q", "buffer_load_dwordx4", vr(qf, 4), v(v16), sr(sWS, 4), s(soff), mods="offen")
    k.I("s_add_u32", s(st1), s(sb), s(sm))
    for (reg, off) in ((KREG, K_OFF), (VREG, V_OFF)):
        for i in range(3):
            k.I("s_add_u32", s(soff), s(st1), hex(off - 16384 + i * 1024))
            k.I("s_add_u32", "m0", s(sm), hex(reg + i * 1024))
            k.vm("kv", "buffer_load_dwordx4", v(v16), sr(sWS, 4), s(soff), mods="offen lds")
    sidx2 = k.salloc()
    k.I("s_lshr_b32", s(sidx2), "s2", 3)
    code_prefetch(k, "k3_wo_kernel", sidx2, st0)
    stp.stamp(0)
    k.I("v_and_b32", v(l15), 15, v(lane))
    k.I("v_lshrrev_b32", v(gg), 4, v(lane))
    M = [k.salloc(2) for _ in range(4)]
    k.I("v_lshlrev_b32", v(t0), 2, v(gg))
    for i in range(4):
        k.I("v_add_u32", v(t1), i, v(t0))
        k.I("v_cmp_gt_u32", sr(M[i], 2), v(t1), v(l15))
    aK = k.valloc(); aV = k.valloc()
    k.I("s_lshl_b32", s(st0), s(swave), 10)
    k.I("v_add_u32", v(aK), s(st0), v(v16))
    k.I("v_lshlrev_b32", v(aV), 3, v(lane))
    k.I("s_add_u32", s(st0), s(st0), VREG)
    k.I("v_add_u32", v(aV), s(st0), v(aV))
    S = k.valloc(68, 4)
    kf = [k.valloc(4) for _ in range(6)]
    neg = k.valloc()
    k.I("v_mov_b32", v(neg), hex(f32(-1e30)))
    k.wait_vm(["q", "kv"])
    k.I("s_barrier")
    stp.stamp(1)
    NKF = 6
    for j in range(min(NKF, 17)):
        k.lg(("k", j), "ds_read_b128", vr(kf[j % NKF], 4), v(aK), mods=f"offset:{j * 1024}")
    for j in range(17):
        k.wait_lg(("k", j))
        k.I("v_mfma_f32_16x16x32_bf16", vr(S + 4 * j, 4), vr(kf[j % NKF], 4), vr(qf, 4), 0)
        if j + NKF < 17:
            k.lg(("k", j + NKF), "ds_read_b128", vr(kf[j % NKF], 4), v(aK), mods=f"offset:{(j + NKF) * 1024}")
    vf = k.valloc(9 * 2 * 4, 4)
    def vread(kp):
        for dt in range(2):
            for beta in range(2):
                tile = min(2 * kp + beta, 16)
                k.lg(("v", kp), "ds_read_b64", vr(vf + (kp * 2 + dt) * 4 + 2 * beta, 2), v(aV), mods=f"offset:{tile * 1024 + dt * 512}")
    for kp in range(3): vread(kp)
    for i in range(4):
        k.I("v_cndmask_b32", v(S + i), v(neg), v(S + i), sr(M[i], 2))
        k.I("v_cndmask_b32", v(S + 64 + i), v(S + 64 + i), v(neg), sr(M[i], 2))
    nofix = k.newlabel("nofix")
    k.I("s_cmp_ge_u32", s(s16q), 16)
    k.I("s_cbranch_scc1", nofix)
    k.I("s_sub_u32", s(st0), 16, s(s16q))
    for j in range(16):
        lab = k.newlabel("sk")
        k.I("s_cmp_le_u32", s(st0), j)
        k.I("s_cbranch_scc1", lab)
        for i in range(4): k.I("v_mov_b32", v(S + 4 * j + i), v(neg))
        k.L(lab)
    k.L(nofix)
    mx = k.valloc(4)
    for c in range(4):
        k.I("v_max3_f32", v(mx + c), v(S + c * 17), v(S + c * 17 + 1), v(S + c * 17 + 2))
    for r in range(7):
        for c in range(4):
            b = c * 17 + 3 + 2 * r
            k.I("v_max3_f32", v(mx + c), v(mx + c), v(S + b), v(S + b + 1))
    k.I("v_max3_f32", v(mx), v(mx), v(mx + 1), v(mx + 2))
    k.I("v_max_f32", v(mx), v(mx), v(mx + 3))
    for sw in ("v_permlane16_swap_b32", "v_permlane32_swap_b32"):
        k.I("v_mov_b32", v(mx + 1), v(mx))
        k.I(sw, v(mx), v(mx + 1))
        k.I("v_max_f32", v(mx), v(mx), v(mx + 1))
    cs = 28 ** -0.5 * math.log2(math.e)
    sc = k.salloc()
    k.I("s_mov_b32", s(sc), hex(f32(cs)))
    k.I("v_mul_f32", v(mx), hex(f32(-cs)), v(mx))
    for kp in range(3, 6): vread(kp)
    P = k.valloc(36, 4)
    k.I("v_mov_b32", v(P + 34), 0); k.I("v_mov_b32", v(P + 35), 0)
    O = [k.valloc(4), k.valloc(4)]
    def softmax_tile(j):
        for i in range(4): k.I("v_fma_f32", v(S + 4 * j + i), v(S + 4 * j + i), s(sc), v(mx))
        for i in range(4): k.I("v_exp_f32", v(S + 4 * j + i), v(S + 4 * j + i))
    def pack_tile(j):
        k.I("v_cvt_pk_bf16_f32", v(P + 2 * j), v(S + 4 * j), v(S + 4 * j + 1))
        k.I("v_cvt_pk_bf16_f32", v(P + 2 * j + 1), v(S + 4 * j + 2), v(S + 4 * j + 3))
    for kp in range(9):
        tiles = [2 * kp, 2 * kp + 1] if kp < 8 else [16]
        for j in tiles: softmax_tile(j)
        for j in tiles: pack_tile(j)
        if kp == 2:
            for q in range(6, 9): vread(q)
        if kp >= 1:
            q = kp - 1
            k.wait_lg(("v", q))
            for dt in range(2):
                k.I("v_mfma_f32_16x16x32_bf16", vr(O[dt], 4), vr(vf + (q * 2 + dt) * 4, 4), vr(P + 4 * q, 4), 0 if q == 0 else vr(O[dt], 4))
    k.wait_lg(("v", 8))
    for dt in range(2):
        k.I("v_mfma_f32_16x16x32_bf16", vr(O[dt], 4), vr(vf + (8 * 2 + dt) * 4, 4), vr(P + 32, 4), vr(O[dt], 4))
    la = k.valloc(); lb = k.valloc()
    k.I("v_mov_b32", v(la), v(O[1])); k.I("v_mov_b32", v(lb), v(O[1]))
    k.I("v_permlane32_swap_b32", v(la), v(lb))
    k.I("v_mov_b32", v(la), v(lb))
    k.I("v_permlane16_swap_b32", v(la), v(lb))
    k.I("v_rcp_f32", v(lb), v(lb))
    for dt in range(2):
        for i in range(4): k.I("v_mul_f32", v(O[dt] + i), v(O[dt] + i), v(lb))
    pk = k.valloc(4)
    for dt in range(2):
        k.I("v_cvt_pk_bf16_f32", v(pk + 2 * dt), v(O[dt]), v(O[dt] + 1))
        k.I("v_cvt_pk_bf16_f32", v(pk + 2 * dt + 1), v(O[dt] + 2), v(O[dt] + 3))
    k.I("v_cmp_gt_u32", "vcc", 3, v(gg))
    k.I("v_cndmask_b32", v(pk + 2), 0, v(pk + 2), "vcc")
    k.I("v_cndmask_b32", v(pk + 3), 0, v(pk + 3), "vcc")
    vo = k.valloc()
    k.I("s_and_b32", s(st0), s(swave), 1)
    k.I("s_lshl_b32", s(st0), s(st0), 8)
    k.I("v_lshlrev_b32", v(vo), 4, v(l15))
    k.I("v_add_u32", v(vo), s(st0), v(vo))
    k.I("v_lshrrev_b32", v(t0), 1, v(gg))
    k.I("v_lshl_add_u32", v(vo), v(t0), 9, v(vo))
    k.I("v_and_b32", v(t0), 1, v(gg))
    k.I("v_lshl_add_u32", v(vo), v(t0), 3, v(vo))
    k.I("s_lshl_b32", s(st0), s(srb), 2)
    k.I("s_lshr_b32", s(st1), s(swave), 1)
    k.I("s_add_u32", s(st0), s(st0), s(st1))
    k.I("s_lshl_b32", s(st0), s(st0), 15)
    k.I("s_lshl_b32", s(st1), s(shd), 11)
    k.I("s_add_u32", s(st0), s(st0), s(st1))
    k.I("s_add_u32", s(soff), s(st0), hex(O_OFF))
    for dt in range(2):
        k.I("buffer_store_dwordx2", vr(pk + 2 * dt, 2), v(vo), sr(sWS, 4), s(soff), mods=f"offen offset:{dt * 1024}")
    stp.stamp(2)
    k.L(done)
    k.I("s_endpgm")
    k.lds = lds; k.threads = 512; k.grid = 256
    return k


def code_prefetch(k, nxt, sidx, tmp_s, tid="v0"):
    if os.environ.get("PFC", "1") != "1": return
    pp = k.salloc(2); sP = k.salloc(4); vT = k.valloc(); vd = k.valloc()
    lab = k.newlabel("pc")
    k.I("s_getpc_b64", sr(pp, 2))
    k.L(lab)
    k.I("s_add_u32", s(pp), s(pp), f"{nxt}-{lab}")
    k.I("s_addc_u32", s(pp + 1), s(pp + 1), 0)
    srd(k, sP, pp, f"{nxt}_end-{nxt}")
    k.I("s_lshl_b32", s(tmp_s), s(sidx), 8)
    k.I("v_add_u32", v(vT), s(tmp_s), tid)
    k.I("v_lshlrev_b32", v(vT), 7, v(vT))
    k.vm("pfc", "buffer_load_dword", v(vd), v(vT), sr(sP, 4), 0, mods="offen")

def common_start(k, nwg):
    k.snext = 4; k.vnext = 1
    done = k.newlabel("done")
    k.I("s_cmp_ge_u32", "s2", nwg)
    k.I("s_cbranch_scc1", done)
    R = dict(done=done)
    R["swave"] = k.salloc(); R["st0"] = k.salloc(); R["st1"] = k.salloc(); R["soff"] = k.salloc()
    R["lane"] = k.valloc(); R["t0"] = k.valloc(); R["t1"] = k.valloc(); R["t2"] = k.valloc()
    k.I("v_lshrrev_b32", v(R["t0"]), 6, "v0")
    k.I("v_and_b32", v(R["lane"]), 63, "v0")
    k.I("v_readfirstlane_b32", s(R["swave"]), v(R["t0"]))
    return R

def interleave(k, mf, fl):
    n = len(fl); m = len(mf)
    cuts = [(i * n + m - 1) // m for i in range(m + 1)]
    cuts[-1] = n
    for i in range(m):
        mf[i]()
        for f in fl[cuts[i]:cuts[i + 1]]: f()

def stats_from_packed(k, P, n, accs, accq, tmp):
    for j in range(n):
        t = tmp[j % len(tmp)]
        k.I("v_lshlrev_b32", v(t), 16, v(P + j))
        k.I("v_and_b32", v(t + 1), "0xffff0000", v(P + j))
        if j == 0:
            k.I("v_pk_mul_f32", vr(accq, 2), vr(t, 2), vr(t, 2))
            k.I("v_mov_b32", v(accs), v(t)); k.I("v_mov_b32", v(accs + 1), v(t + 1))
        else:
            k.I("v_pk_add_f32", vr(accs, 2), vr(accs, 2), vr(t, 2))
            k.I("v_pk_fma_f32", vr(accq, 2), vr(t, 2), vr(t, 2), vr(accq, 2))
    k.I("v_add_f32", v(accs), v(accs), v(accs + 1))
    k.I("v_add_f32", v(accq), v(accq), v(accq + 1))
    for r_ in (accs, accq):
        k.I("v_mov_b32", v(r_ + 1), v(r_))
        k.I("v_permlane32_swap_b32", v(r_), v(r_ + 1))
        k.I("v_add_f32", v(r_), v(r_), v(r_ + 1))

def gen_k3(Stamper):
    k = Kernel("k3_wo_kernel")
    WREG = 0; OREG = 58368
    lds = OREG + 65536
    R = common_start(k, 256)
    swave, st0, st1, soff, lane, t0, t1, t2 = (R[x] for x in ("swave", "st0", "st1", "soff", "lane", "t0", "t1", "t2"))
    pX = k.salloc(2); pWo = k.salloc(2); pWin = k.salloc(2); pWS = k.salloc(2)
    k.I("s_load_dwordx2", sr(pX, 2), "s[0:1]", 0)
    k.I("s_load_dwordx2", sr(pWo, 2), "s[0:1]", 16)
    k.I("s_load_dwordx2", sr(pWin, 2), "s[0:1]", 32)
    k.I("s_load_dwordx2", sr(pWS, 2), "s[0:1]", 80)
    sWS = k.salloc(4); sWo = k.salloc(4); sX = k.salloc(4)
    sj = k.salloc(); sidx = k.salloc(); srt = k.salloc(); snt = k.salloc(); sw3 = k.salloc()
    k.I("s_and_b32", s(sj), "s2", 7)
    k.I("s_lshr_b32", s(sidx), "s2", 3)
    k.I("s_and_b32", s(sw3), s(swave), 3)
    stp = Stamper(k, 2, sWS, swave)
    aux = k.newlabel("aux")
    k.I("s_cmp_ge_u32", s(sidx), 28)
    k.I("s_cbranch_scc1", aux)
    k.I("s_mul_i32", s(st0), s(sidx), 37)
    k.I("s_lshr_b32", s(st0), s(st0), 8)
    k.I("s_mul_i32", s(st1), s(st0), 7)
    k.I("s_sub_u32", s(snt), s(sidx), s(st1))
    k.I("s_lshl_b32", s(srt), s(sj), 2)
    k.I("s_add_u32", s(srt), s(srt), s(st0))
    k.I("s_waitcnt", "lgkmcnt(0)")
    srd(k, sWS, pWS, WS_SIZE)
    comp = k.newlabel("compute")
    k.I("s_cmp_lt_u32", s(swave), 4)
    k.I("s_cbranch_scc1", comp)
    vsave = k.vnext
    srd(k, sWo, pWo, 448 * 896)
    v16 = k.valloc(); vWo = k.valloc()
    k.I("v_lshlrev_b32", v(v16), 4, v(lane))
    k.I("v_lshrrev_b32", v(t0), 3, v(lane))
    k.I("v_mul_u32_u24", v(t0), 896, v(t0))
    k.I("v_bfe_u32", v(t1), v(lane), 4, 1)
    k.I("v_lshlrev_b32", v(t1), 2, v(t1))
    k.I("v_and_b32", v(t2), 7, v(lane))
    k.I("v_xor_b32", v(t1), v(t1), v(t2))
    k.I("v_lshl_add_u32", v(vWo), v(t1), 4, v(t0))
    sOb = k.salloc(); sWb = k.salloc(); smO = k.salloc(); smW = k.salloc()
    k.I("s_lshl_b32", s(sOb), s(srt), 16)
    k.I("s_lshl_b32", s(st0), s(sw3), 10)
    k.I("s_add_u32", s(sOb), s(sOb), s(st0))
    k.I("s_add_u32", s(sOb), s(sOb), hex(O_OFF))
    k.I("s_add_u32", s(smO), s(st0), OREG)
    k.I("s_mul_i32", s(sWb), s(sw3), 8 * 896)
    k.I("s_lshl_b32", s(st1), s(snt), 7)
    k.I("s_add_u32", s(sWb), s(sWb), s(st1))
    k.I("s_add_u32", s(smW), s(st0), WREG)
    def issue(c):
        for r2 in range(2):
            k.I("s_add_u32", s(soff), s(sOb), hex(r2 * 32768 + c * 4096))
            k.I("s_add_u32", "m0", s(smO), hex(r2 * 32768 + c * 4096))
            k.vm(("S", c), "buffer_load_dwordx4", v(v16), sr(sWS, 4), s(soff), mods="offen lds")
        for i in range(2):
            k.I("s_add_u32", s(soff), s(sWb), hex((56 * c + 32 * i) * 896))
            k.I("s_add_u32", "m0", s(smW), hex((56 * c + 32 * i) * 128))
            k.vm(("S", c), "buffer_load_dwordx4", v(vWo), sr(sWo, 4), s(soff), mods="offen lds")
    LA = 3
    for c in range(LA): issue(c)
    for c in range(8):
        k.wait_vm(("S", c))
        k.I("s_barrier")
        if c + LA < 8: issue(c + LA)
    k.I("s_endpgm")
    k.L(comp)
    k.vnext = vsave; k.vmq = []; k.lgq = []
    srd(k, sX, pX, 2048 * 896)
    l31 = k.valloc(); hh = k.valloc()
    k.I("v_and_b32", v(l31), 31, v(lane))
    k.I("v_lshrrev_b32", v(hh), 5, v(lane))
    srh = k.salloc(); snh = k.salloc(); sst = k.salloc(); sntile = k.salloc()
    k.I("s_and_b32", s(srh), s(swave), 1)
    k.I("s_lshr_b32", s(snh), s(swave), 1)
    k.I("s_lshl_b32", s(sst), s(srt), 1)
    k.I("s_add_u32", s(sst), s(sst), s(srh))
    k.I("s_lshl_b32", s(sntile), s(snt), 1)
    k.I("s_add_u32", s(sntile), s(sntile), s(snh))
    xr = k.valloc(8, 4); vx = k.valloc()
    k.I("v_mul_u32_u24", v(vx), 896, v(l31))
    k.I("v_lshl_add_u32", v(vx), v(hh), 3, v(vx))
    k.I("s_mul_i32", s(soff), s(sst), 32 * 896)
    k.I("s_lshl_b32", s(st0), s(sntile), 6)
    k.I("s_add_u32", s(soff), s(soff), s(st0))
    for q in range(4):
        k.vm("x", "buffer_load_dwordx2", vr(xr + 2 * q, 2), v(vx), sr(sX, 4), s(soff), mods=f"offen offset:{16 * q}")
    code_prefetch(k, "k4_win_kernel", sidx, st0)
    stp.stamp(0)
    aO = k.valloc(); vW = k.valloc()
    k.I("v_lshlrev_b32", v(aO), 4, v(lane))
    k.I("s_lshl_b32", s(st0), s(srh), 15)
    k.I("s_add_u32", s(st0), s(st0), OREG)
    k.I("v_add_u32", v(aO), s(st0), v(aO))
    k.I("v_bfe_u32", v(t0), v(lane), 2, 2)
    k.I("v_lshl_add_u32", v(t0), v(hh), 3, v(t0))
    k.I("v_lshlrev_b32", v(vW), 7, v(t0))
    k.I("v_bfe_u32", v(t0), v(lane), 4, 1)
    k.I("v_lshlrev_b32", v(t0), 1, v(t0))
    k.I("v_bfe_u32", v(t1), v(lane), 1, 1)
    k.I("v_add_u32", v(t0), v(t0), v(t1))
    k.I("s_lshl_b32", s(st0), s(snh), 2)
    k.I("v_add_u32", v(t0), s(st0), v(t0))
    k.I("v_bfe_u32", v(t1), v(lane), 3, 1)
    k.I("v_lshlrev_b32", v(t1), 2, v(t1))
    k.I("v_xor_b32", v(t0), v(t0), v(t1))
    k.I("v_lshl_add_u32", v(vW), v(t0), 4, v(vW))
    k.I("v_and_b32", v(t0), 1, v(lane))
    k.I("v_lshl_add_u32", v(vW), v(t0), 3, v(vW))
    acc = k.valloc(16, 4)
    NB = 3
    of = [k.valloc(4) for _ in range(NB)]; wf = [k.valloc(4) for _ in range(NB)]
    def rl(ks):
        b = ks % NB
        out = [lambda: k.lg(("f", ks), "ds_read_b128", vr(of[b], 4), v(aO), mods=f"offset:{ks * 1024}")]
        for beta in range(2):
            o = (28 * (ks >> 1) + 16 * (ks & 1) + 4 * beta) * 128
            out.append(lambda o=o, beta=beta: k.lg(("f", ks), "ds_read_b64_tr_b16", vr(wf[b] + 2 * beta, 2), v(vW), mods=f"offset:{o}"))
        return out
    k.I("s_barrier")
    stp.stamp(1)
    for f in rl(0) + rl(1): f()
    for ks in range(32):
        c, j = ks // 4, ks % 4
        b = ks % NB
        k.wait_lg(("f", ks))
        k.I("v_mfma_f32_32x32x16_bf16", vr(acc, 16), vr(wf[b], 4), vr(of[b], 4), 0 if ks == 0 else vr(acc, 16))
        if j == 1 and c < 7: k.I("s_barrier")
        if ks + 2 < 32 and not (j == 1 and False):
            pass
        nxt = ks + 2
        if nxt < 32:
            for f in rl(nxt): f()
    EOF_MARK = None
    stp.stamp(2)
    k.wait_vm("x")
    tmp = [k.valloc(2) for _ in range(4)]
    for q in range(4):
        for d in range(2):
            t = tmp[(2 * q + d) % 4]
            k.I("v_lshlrev_b32", v(t), 16, v(xr + 2 * q + d))
            k.I("v_and_b32", v(t + 1), "0xffff0000", v(xr + 2 * q + d))
            k.I("v_pk_add_f32", vr(acc + 4 * q + 2 * d, 2), vr(acc + 4 * q + 2 * d, 2), vr(t, 2))
    P = k.valloc(8, 4)
    for j in range(8): k.I("v_cvt_pk_bf16_f32", v(P + j), v(acc + 2 * j), v(acc + 2 * j + 1))
    v16 = k.valloc()
    k.I("v_lshlrev_b32", v(v16), 4, v(lane))
    k.I("s_mul_i32", s(soff), s(sst), 28 * 1024)
    k.I("s_lshl_b32", s(st0), s(sntile), 11)
    k.I("s_add_u32", s(soff), s(soff), s(st0))
    k.I("s_add_u32", s(soff), s(soff), hex(H_OFF))
    k.I("buffer_store_dwordx4", vr(P, 4), v(v16), sr(sWS, 4), s(soff), mods="offen")
    k.I("buffer_store_dwordx4", vr(P + 4, 4), v(v16), sr(sWS, 4), s(soff), mods="offen offset:1024")
    accs = k.valloc(2); accq = k.valloc(2)
    stats_from_packed(k, P, 8, accs, accq, tmp)
    k.I("v_mov_b32", v(accs + 1), v(accq))
    vh = k.valloc()
    k.I("v_mul_u32_u24", v(vh), 112, v(l31))
    k.I("s_mul_i32", s(soff), s(sst), 32 * 112)
    k.I("s_lshl_b32", s(st0), s(sntile), 3)
    k.I("s_add_u32", s(soff), s(soff), s(st0))
    k.I("s_add_u32", s(soff), s(soff), hex(HS_OFF))
    k.I("s_mov_b32", "exec_hi", 0)
    k.I("buffer_store_dwordx2", vr(accs, 2), v(vh), sr(sWS, 4), s(soff), mods="offen")
    stp.stamp(3)
    k.I("s_endpgm")
    k.L(aux)
    k.vnext = vsave; k.vmq = []; k.lgq = []
    sa = k.salloc(); sWin = k.salloc(4)
    k.I("s_sub_u32", s(sa), s(sidx), 28)
    k.I("s_lshl_b32", s(sa), s(sa), 3)
    k.I("s_add_u32", s(sa), s(sa), s(sj))
    k.I("s_waitcnt", "lgkmcnt(0)")
    srd(k, sWS, pWS, WS_SIZE)
    ff = k.valloc(4)
    for i in range(4): k.I("v_mov_b32", v(ff + i), -1)
    k.I("v_lshlrev_b32", v(t1), 4, "v0")
    k.I("v_mov_b32", v(t2), "0x7fffff00")
    k.I("v_cmp_gt_u32", "vcc", 448, "v0")
    k.I("v_cndmask_b32", v(t1), v(t2), v(t1), "vcc")
    k.I("s_mul_i32", s(st0), s(sa), 7168)
    k.I("s_add_u32", s(st0), s(st0), hex(EX_OFF))
    k.I("buffer_store_dwordx4", vr(ff, 4), v(t1), sr(sWS, 4), s(st0), mods="offen")
    k.I("s_cmp_ge_u32", s(sa), 28)
    k.I("s_cbranch_scc1", R["done"])
    srd(k, sWin, pWin, 448 * 3584)
    vg = k.valloc()
    k.I("v_lshrrev_b32", v(t0), 3, v(lane))
    k.I("v_mul_u32_u24", v(t0), 3584, v(t0))
    k.I("v_bfe_u32", v(t1), v(lane), 4, 1)
    k.I("v_lshlrev_b32", v(t1), 2, v(t1))
    k.I("v_and_b32", v(t2), 7, v(lane))
    k.I("v_xor_b32", v(t1), v(t1), v(t2))
    k.I("v_lshl_add_u32", v(vg), v(t1), 4, v(t0))
    sb = k.salloc(); sm = k.salloc()
    k.I("s_mul_i32", s(sb), s(swave), 56 * 3584)
    k.I("s_lshl_b32", s(st0), s(sa), 7)
    k.I("s_add_u32", s(sb), s(sb), s(st0))
    k.I("s_mul_i32", s(sm), s(swave), 56 * 128)
    for i in range(7):
        k.I("s_add_u32", s(soff), s(sb), hex(i * 8 * 3584))
        k.I("s_add_u32", "m0", s(sm), hex(i * 1024))
        k.I("buffer_load_dwordx4", v(vg), sr(sWin, 4), s(soff), mods="offen lds")
    z = k.valloc(); TB = 57344
    k.I("v_mov_b32", v(z), 0)
    k.I("v_lshlrev_b32", v(t0), 2, v(lane))
    k.I("v_add_u32", v(t0), TB, v(t0))
    k.I("ds_write_b32", v(t0), v(z))
    gg = k.valloc(); vB = k.valloc(); ones = k.valloc(4)
    k.I("v_lshrrev_b32", v(gg), 4, v(lane))
    k.I("v_bfe_u32", v(t0), v(lane), 2, 2)
    k.I("v_lshl_add_u32", v(t0), v(gg), 3, v(t0))
    k.I("v_lshlrev_b32", v(vB), 7, v(t0))
    k.I("v_bfe_u32", v(t0), v(lane), 1, 1)
    k.I("s_lshl_b32", s(st0), s(sw3), 1)
    k.I("v_add_u32", v(t0), s(st0), v(t0))
    k.I("v_bfe_u32", v(t1), v(lane), 3, 1)
    k.I("v_lshlrev_b32", v(t1), 2, v(t1))
    k.I("v_xor_b32", v(t0), v(t0), v(t1))
    k.I("v_lshl_add_u32", v(vB), v(t0), 4, v(vB))
    k.I("v_and_b32", v(t0), 1, v(lane))
    k.I("v_lshl_add_u32", v(vB), v(t0), 3, v(vB))
    k.I("s_lshr_b32", s(st0), s(swave), 2)
    k.I("s_mul_i32", s(st0), s(st0), 224 * 128)
    k.I("v_add_u32", v(vB), s(st0), v(vB))
    for i in range(4): k.I("v_mov_b32", v(ones + i), "0x3f803f80")
    k.I("s_waitcnt", "vmcnt(0) lgkmcnt(0)")
    k.I("s_barrier")
    bf = [k.valloc(4) for _ in range(7)]
    for kk in range(7):
        for beta in range(2):
            k.I("ds_read_b64_tr_b16", vr(bf[kk] + 2 * beta, 2), v(vB), mods=f"offset:{(32 * kk + 4 * beta) * 128}")
    ca = k.valloc(4)
    k.I("s_waitcnt", "lgkmcnt(0)")
    for kk in range(7):
        k.I("v_mfma_f32_16x16x32_bf16", vr(ca, 4), vr(ones, 4), vr(bf[kk], 4), 0 if kk == 0 else vr(ca, 4))
    k.I("v_and_b32", v(t0), 15, v(lane))
    k.I("s_lshl_b32", s(st0), s(sw3), 6)
    k.I("s_add_u32", s(st0), s(st0), TB)
    k.I("v_lshlrev_b32", v(t0), 2, v(t0))
    k.I("v_add_u32", v(t0), s(st0), v(t0))
    k.I("s_mov_b32", "exec_lo", "0xffff")
    k.I("s_mov_b32", "exec_hi", 0)
    k.I("ds_add_f32", v(t0), v(ca))
    k.I("s_mov_b64", "exec", -1)
    k.I("s_waitcnt", "lgkmcnt(0)")
    k.I("s_barrier")
    k.I("s_cmp_lg_u32", s(swave), 0)
    k.I("s_cbranch_scc1", R["done"])
    k.I("v_lshlrev_b32", v(t0), 2, v(lane))
    k.I("v_add_u32", v(t1), TB, v(t0))
    k.I("ds_read_b32", v(z), v(t1))
    k.I("s_lshl_b32", s(st0), s(sa), 8)
    k.I("s_add_u32", s(st0), s(st0), hex(CW_OFF))
    k.I("s_waitcnt", "lgkmcnt(0)")
    k.I("buffer_store_dword", v(z), v(t0), sr(sWS, 4), s(st0), mods="offen")
    k.L(R["done"])
    k.I("s_endpgm")
    k.lds = lds; k.threads = 512; k.grid = 256
    return k


GELU_C0 = -2.0 * math.sqrt(2.0 / math.pi) * math.log2(math.e)
GELU_C1 = GELU_C0 * 0.044715

def gen_k4(Stamper):
    k = Kernel("k4_win_kernel")
    NS = 4; SLOT = 32768; TRB = NS * SLOT
    STB = TRB
    lds = TRB + 4096
    R = common_start(k, 224)
    swave, st0, st1, soff, lane, t0, t1, t2 = (R[x] for x in ("swave", "st0", "st1", "soff", "lane", "t0", "t1", "t2"))
    pWin = k.salloc(2); pWS = k.salloc(2)
    k.I("s_load_dwordx2", sr(pWin, 2), "s[0:1]", 32)
    k.I("s_load_dwordx2", sr(pWS, 2), "s[0:1]", 80)
    sWS = k.salloc(4); sWin = k.salloc(4)
    sj = k.salloc(); sidx = k.salloc(); srb = k.salloc(); sct = k.salloc(); sw3 = k.salloc()
    k.I("s_and_b32", s(sj), "s2", 7)
    k.I("s_lshr_b32", s(sidx), "s2", 3)
    k.I("s_and_b32", s(sw3), s(swave), 3)
    k.I("s_cmp_ge_u32", s(sidx), 14)
    k.I("s_cselect_b32", s(st0), 1, 0)
    k.I("s_mul_i32", s(st1), s(st0), 14)
    k.I("s_sub_u32", s(sct), s(sidx), s(st1))
    k.I("s_lshl_b32", s(srb), s(sj), 1)
    k.I("s_add_u32", s(srb), s(srb), s(st0))
    stp = Stamper(k, 3, sWS, swave)
    k.I("s_waitcnt", "lgkmcnt(0)")
    srd(k, sWS, pWS, WS_SIZE)
    comp = k.newlabel("compute")
    k.I("s_cmp_lt_u32", s(swave), 4)
    k.I("s_cbranch_scc1", comp)
    vsave = k.vnext
    srd(k, sWin, pWin, 448 * 3584)
    v16 = k.valloc(); vWo = k.valloc()
    k.I("v_lshlrev_b32", v(v16), 4, v(lane))
    k.I("v_lshrrev_b32", v(t0), 4, v(lane))
    k.I("v_lshlrev_b32", v(t1), 2, v(t0))
    k.I("v_and_b32", v(t2), 15, v(lane))
    k.I("v_xor_b32", v(t1), v(t1), v(t2))
    k.I("v_mul_u32_u24", v(vWo), 3584, v(t0))
    k.I("v_and_b32", v(t2), 7, v(t1))
    k.I("v_lshl_add_u32", v(vWo), v(t2), 4, v(vWo))
    k.I("v_add_u32", v(t2), 1792, v(vWo))
    k.I("v_cmp_gt_u32", "vcc", 8, v(t1))
    k.I("v_cndmask_b32", v(vWo), v(vWo), v(t2), "vcc")
    sHb = k.salloc(); sWb = k.salloc(); smH = k.salloc(); smW = k.salloc()
    k.I("s_lshl_b32", s(st0), s(srb), 2)
    k.I("s_add_u32", s(st0), s(st0), s(sw3))
    k.I("s_mul_i32", s(sHb), s(st0), 28 * 1024)
    k.I("s_add_u32", s(sHb), s(sHb), hex(H_OFF))
    k.I("s_lshl_b32", s(smH), s(sw3), 12)
    k.I("s_mul_i32", s(sWb), s(sw3), 16 * 3584)
    k.I("s_lshl_b32", s(st1), s(sct), 7)
    k.I("s_add_u32", s(sWb), s(sWb), s(st1))
    k.I("s_add_u32", s(smW), s(smH), 16384)
    def issue(c):
        sl = (c % NS) * SLOT
        for i in range(4):
            k.I("s_add_u32", s(soff), s(sHb), hex((4 * c + i) * 1024))
            k.I("s_add_u32", "m0", s(smH), hex(sl + i * 1024))
            k.vm(("S", c), "buffer_load_dwordx4", v(v16), sr(sWS, 4), s(soff), mods="offen lds")
        for i in range(4):
            k.I("s_add_u32", s(soff), s(sWb), hex((64 * c + 4 * i) * 3584))
            k.I("s_add_u32", "m0", s(smW), hex(sl + i * 1024))
            k.vm(("S", c), "buffer_load_dwordx4", v(vWo), sr(sWin, 4), s(soff), mods="offen lds")
    issue(0); issue(1)
    for c in range(7):
        k.wait_vm(("S", c))
        k.I("s_barrier")
        if c == 0: issue(2); issue(3)
        elif c + 2 < 7 and c >= 2: issue(c + 2)
    k.I("s_barrier")
    k.I("s_endpgm")
    k.L(comp)
    k.vnext = vsave; k.vmq = []; k.lgq = []
    l31 = k.valloc(); hh = k.valloc()
    k.I("v_and_b32", v(l31), 31, v(lane))
    k.I("v_lshrrev_b32", v(hh), 5, v(lane))
    srh = k.salloc(); sch = k.salloc(); sst = k.salloc()
    k.I("s_and_b32", s(srh), s(swave), 1)
    k.I("s_lshr_b32", s(sch), s(swave), 1)
    k.I("s_lshl_b32", s(sst), s(srb), 2)
    k.I("s_lshl_b32", s(st0), s(srh), 1)
    k.I("s_add_u32", s(sst), s(sst), s(st0))
    hs = [k.valloc(16, 4) for _ in range(2)]
    vh = k.valloc()
    k.I("v_mul_u32_u24", v(vh), 112, v(l31))
    k.I("v_lshl_add_u32", v(vh), v(hh), 6, v(vh))
    for t in range(2):
        k.I("s_add_u32", s(st0), s(sst), t)
        k.I("s_mul_i32", s(soff), s(st0), 32 * 112)
        k.I("s_add_u32", s(soff), s(soff), hex(HS_OFF))
        for i in range(4):
            k.vm("hs", "buffer_load_dwordx4", vr(hs[t] + 4 * i, 4), v(vh), sr(sWS, 4), s(soff), mods=f"offen offset:{16 * i}")
    cw = [k.valloc(16, 4) for _ in range(2)]
    vc = k.valloc()
    k.I("v_lshlrev_b32", v(vc), 4, v(hh))
    k.I("s_lshl_b32", s(st0), s(sct), 8)
    k.I("s_lshl_b32", s(st1), s(sch), 7)
    k.I("s_add_u32", s(st0), s(st0), s(st1))
    for z in range(2):
        k.I("s_add_u32", s(soff), s(st0), hex(CW_OFF + (896 * 4 if z == 0 else 0)))
        for q in range(4):
            k.vm("cw", "buffer_load_dwordx4", vr(cw[z] + 4 * q, 4), v(vc), sr(sWS, 4), s(soff), mods=f"offen offset:{32 * q}")
    if os.environ.get("PF2", "0") == "1":
        pp = k.salloc(2); sP = k.salloc(4); vT = k.valloc(); vd = k.valloc(2)
        k.I("s_load_dwordx2", sr(pp, 2), "s[0:1]", 40)
        k.I("s_lshl_b32", s(st0), s(sidx), 8)
        k.I("v_add_u32", v(vT), s(st0), "v0")
        k.I("s_waitcnt", "lgkmcnt(0)")
        srd(k, sP, pp, 2048 * 4096)
        k.I("s_lshr_b32", s(st0), s(sj), 1)
        k.I("s_lshl_b32", s(st0), s(st0), 21)
        k.I("s_and_b32", s(st1), s(sj), 1)
        k.I("s_lshl_b32", s(st1), s(st1), 11)
        k.I("s_add_u32", s(st0), s(st0), s(st1))
        for i in range(2):
            k.I("v_add_u32", v(t0), 7168 * i, v(vT))
            k.I("v_lshrrev_b32", v(t1), 4, v(t0))
            k.I("v_lshlrev_b32", v(t1), 12, v(t1))
            k.I("v_and_b32", v(t2), 15, v(t0))
            k.I("v_lshl_add_u32", v(t1), v(t2), 7, v(t1))
            if i == 1:
                k.I("v_mov_b32", v(t2), "0x7fffff00")
                k.I("v_cmp_gt_u32", "vcc", 8192, v(t0))
                k.I("v_cndmask_b32", v(t1), v(t2), v(t1), "vcc")
            k.vm("pf", "buffer_load_dword", v(vd + i), v(t1), sr(sP, 4), s(st0), mods="offen")
    code_prefetch(k, "k5_sp_kernel", sidx, st0)
    stp.stamp(0)
    aH = k.valloc(); vW = [k.valloc(), k.valloc()]
    k.I("v_lshlrev_b32", v(aH), 4, v(lane))
    k.I("s_lshl_b32", s(st0), s(srh), 13)
    k.I("v_add_u32", v(aH), s(st0), v(aH))
    k.I("v_bfe_u32", v(t0), v(lane), 2, 2)
    k.I("v_lshl_add_u32", v(t1), v(hh), 2, v(t0))
    k.I("v_lshlrev_b32", v(t1), 8, v(t1))
    k.I("v_add_u32", v(t1), 16384, v(t1))
    k.I("v_bfe_u32", v(t2), v(lane), 4, 1)
    k.I("v_lshlrev_b32", v(t2), 1, v(t2))
    k.I("v_bfe_u32", v(vW[0]), v(lane), 1, 1)
    k.I("v_add_u32", v(t2), v(t2), v(vW[0]))
    k.I("s_lshl_b32", s(st0), s(sch), 2)
    k.I("v_add_u32", v(t2), s(st0), v(t2))
    k.I("v_lshlrev_b32", v(t0), 2, v(t0))
    k.I("v_xor_b32", v(vW[0]), v(t2), v(t0))
    k.I("v_add_u32", v(t2), 8, v(t2))
    k.I("v_xor_b32", v(vW[1]), v(t2), v(t0))
    k.I("v_and_b32", v(t2), 1, v(lane))
    for z in range(2):
        k.I("v_lshl_add_u32", v(vW[z]), v(vW[z]), 4, v(t1))
        k.I("v_lshl_add_u32", v(vW[z]), v(t2), 3, v(vW[z]))
    aH2 = k.valloc(); vW2 = [k.valloc(), k.valloc()]
    k.I("v_add_u32", v(aH2), 65536, v(aH))
    for z in range(2): k.I("v_add_u32", v(vW2[z]), 65536, v(vW[z]))
    acc = [[k.valloc(16, 4) for _ in range(2)] for _ in range(2)]
    vmark = k.vnext
    NB = 3
    hf = [[k.valloc(4) for _ in range(2)] for _ in range(NB)]
    wf = [[k.valloc(4) for _ in range(2)] for _ in range(NB)]
    def rl(ks):
        c, j = ks // 4, ks % 4
        b = ks % NB
        sl = (c % NS) * SLOT
        hi = sl >= 65536
        so = sl - (65536 if hi else 0)
        out = []
        for t in range(2):
            out.append(lambda t=t: k.lg(("f", ks), "ds_read_b128", vr(hf[b][t], 4), v(aH2 if hi else aH), mods=f"offset:{so + t * 4096 + j * 1024}"))
        for z in range(2):
            for beta in range(2):
                o = so + (16 * j + 8 * beta) * 256
                out.append(lambda o=o, z=z, beta=beta: k.lg(("f", ks), "ds_read_b64_tr_b16", vr(wf[b][z] + 2 * beta, 2), v((vW2 if hi else vW)[z]), mods=f"offset:{o}"))
        return out
    k.I("s_barrier")
    stp.stamp(1)
    for f in rl(0) + rl(1): f()
    for ks in range(28):
        c, j = ks // 4, ks % 4
        b = ks % NB
        k.wait_lg(("f", ks))
        mf = []
        for z in range(2):
            for t in range(2):
                mf.append(lambda z=z, t=t: k.I("v_mfma_f32_32x32x16_bf16", vr(acc[z][t], 16), vr(wf[b][z], 4), vr(hf[b][t], 4), 0 if ks == 0 else vr(acc[z][t], 16)))
        if j == 2 and c < 6:
            pass
        fl = rl(ks + 2) if ks + 2 < 28 else []
        if j == 2 and ks + 2 < 28:
            k.I("s_barrier")
        interleave(k, mf, fl)
    stp.stamp(2)
    k.vnext = vmark
    k.wait_vm(["hs", "cw"])
    rr = [k.valloc(2) for _ in range(2)]; nm = [k.valloc(2) for _ in range(2)]
    c0r = [k.valloc(2) for _ in range(2)]; c1r = [k.valloc(2) for _ in range(2)]
    k.I("v_cmp_eq_u32", "vcc", 0, v(hh))
    for t in range(2):
        H = hs[t]
        for i in range(12, 16): k.I("v_cndmask_b32", v(H + i), 0, v(H + i), "vcc")
        for i in range(4): k.I("v_pk_add_f32", vr(H + 2 * i, 2), vr(H + 2 * i, 2), vr(H + 8 + 2 * i, 2))
        for i in range(2): k.I("v_pk_add_f32", vr(H + 2 * i, 2), vr(H + 2 * i, 2), vr(H + 4 + 2 * i, 2))
        k.I("v_pk_add_f32", vr(H, 2), vr(H, 2), vr(H + 2, 2))
        for e in range(2):
            k.I("v_mov_b32", v(H + 2), v(H + e))
            k.I("v_permlane32_swap_b32", v(H + e), v(H + 2))
            k.I("v_add_f32", v(H + e), v(H + e), v(H + 2))
        k.I("v_mul_f32", v(nm[t]), hex(f32(-1.0 / 448)), v(H))
        k.I("v_mul_f32", v(H + 1), hex(f32(1.0 / 448)), v(H + 1))
        k.I("v_fma_f32", v(H + 1), f"-{v(nm[t])}", v(nm[t]), v(H + 1))
        k.I("v_max_f32", v(H + 1), 0, v(H + 1))
        k.I("v_add_f32", v(H + 1), hex(f32(1e-5)), v(H + 1))
        k.I("v_rsq_f32", v(rr[t]), v(H + 1))
        k.I("v_mul_f32", v(c0r[t]), hex(f32(GELU_C0)), v(rr[t]))
        k.I("v_mul_f32", v(c1r[t]), v(rr[t]), v(rr[t]))
        k.I("v_mul_f32", v(c1r[t]), v(c1r[t]), v(rr[t]))
        k.I("v_mul_f32", v(c1r[t]), hex(f32(GELU_C1)), v(c1r[t]))
    norh = k.newlabel("norh")
    k.I("s_or_b32", s(st0), s(sct), s(sch))
    k.I("s_cmp_lg_u32", s(st0), 0)
    k.I("s_cbranch_scc1", norh)
    k.I("v_lshlrev_b32", v(t0), 2, v(l31))
    for t in range(2):
        k.I("s_add_u32", s(st0), s(sst), t)
        k.I("s_lshl_b32", s(st0), s(st0), 7)
        k.I("s_add_u32", s(st0), s(st0), hex(RH_OFF))
        k.I("buffer_store_dword", v(rr[t]), v(t0), sr(sWS, 4), s(st0), mods="offen")
    k.L(norh)
    tp = [k.valloc(2) for _ in range(4)]
    def gelu_tile(A, z, t):
        for j in range(8):
            k.I("v_pk_fma_f32", vr(A + 2 * j, 2), vr(cw[z] + 2 * j, 2), vr(nm[t], 2), vr(A + 2 * j, 2), mods="op_sel_hi:[1,0,1]")
        for j0 in range(0, 8, 4):
            for j in range(j0, j0 + 4):
                T = tp[j - j0]
                k.I("v_pk_mul_f32", vr(T, 2), vr(A + 2 * j, 2), vr(A + 2 * j, 2))
            for j in range(j0, j0 + 4):
                T = tp[j - j0]
                k.I("v_pk_fma_f32", vr(T, 2), vr(T, 2), vr(c1r[t], 2), vr(c0r[t], 2), mods="op_sel_hi:[1,0,0]")
            for j in range(j0, j0 + 4):
                T = tp[j - j0]
                k.I("v_pk_mul_f32", vr(T, 2), vr(T, 2), vr(A + 2 * j, 2))
            for j in range(j0, j0 + 4):
                T = tp[j - j0]
                k.I("v_exp_f32", v(T), v(T)); k.I("v_exp_f32", v(T + 1), v(T + 1))
            for j in range(j0, j0 + 4):
                T = tp[j - j0]
                k.I("v_pk_add_f32", vr(T, 2), vr(T, 2), "1.0", mods="op_sel_hi:[1,0]")
            for j in range(j0, j0 + 4):
                T = tp[j - j0]
                k.I("v_rcp_f32", v(T), v(T)); k.I("v_rcp_f32", v(T + 1), v(T + 1))
            for j in range(j0, j0 + 4):
                T = tp[j - j0]
                k.I("v_pk_mul_f32", vr(A + 2 * j, 2), vr(A + 2 * j, 2), vr(T, 2))
    accs = [k.valloc(2) for _ in range(2)]; accq = [k.valloc(2) for _ in range(2)]
    for t in range(2):
        A = acc[0][t]
        gelu_tile(A, 0, t)
        for j in range(8):
            k.I("v_pk_mul_f32", vr(A + 2 * j, 2), vr(A + 2 * j, 2), vr(rr[t], 2), mods="op_sel_hi:[1,0]")
        k.I("v_pk_add_f32", vr(accs[t], 2), vr(A, 2), vr(A + 2, 2))
        k.I("v_pk_mul_f32", vr(accq[t], 2), vr(A, 2), vr(A, 2))
        k.I("v_pk_fma_f32", vr(accq[t], 2), vr(A + 2, 2), vr(A + 2, 2), vr(accq[t], 2))
        for j in range(2, 8):
            k.I("v_pk_add_f32", vr(accs[t], 2), vr(accs[t], 2), vr(A + 2 * j, 2))
            k.I("v_pk_fma_f32", vr(accq[t], 2), vr(A + 2 * j, 2), vr(A + 2 * j, 2), vr(accq[t], 2))
        k.I("v_add_f32", v(accs[t]), v(accs[t]), v(accs[t] + 1))
        k.I("v_add_f32", v(accs[t] + 1), v(accq[t]), v(accq[t] + 1))
        for e in range(2):
            k.I("v_mov_b32", v(accq[t]), v(accs[t] + e))
            k.I("v_permlane32_swap_b32", v(accs[t] + e), v(accq[t]))
            k.I("v_add_f32", v(accs[t] + e), v(accs[t] + e), v(accq[t]))
    vs = k.valloc()
    k.I("v_lshlrev_b32", v(vs), 3, v(l31))
    k.I("s_lshl_b32", s(st0), s(srh), 9)
    k.I("s_add_u32", s(st0), s(st0), STB)
    k.I("v_add_u32", v(vs), s(st0), v(vs))
    k.I("s_lshl_b32", s(st0), s(sch), 10)
    k.I("v_add_u32", v(t0), s(st0), v(vs))
    for t in range(2):
        k.I("ds_write_b64", v(t0), vr(accs[t], 2), mods=f"offset:{t * 256}")
    k.I("s_waitcnt", "lgkmcnt(0)")
    k.I("s_barrier")
    pub = k.newlabel("nopub")
    k.I("s_cmp_lg_u32", s(sch), 0)
    k.I("s_cbranch_scc1", pub)
    oth = k.valloc(4)
    for t in range(2):
        k.I("ds_read_b64", vr(oth + 2 * t, 2), v(vs), mods=f"offset:{1024 + t * 256}")
    k.I("s_waitcnt", "lgkmcnt(0)")
    for t in range(2):
        k.I("v_pk_add_f32", vr(oth + 2 * t, 2), vr(oth + 2 * t, 2), vr(accs[t], 2))
        k.I("v_mov_b32", v(t1), "0x7fc00000")
        k.I("v_cmp_eq_u32", "vcc", -1, v(oth + 2 * t + 1))
        k.I("v_cndmask_b32", v(oth + 2 * t + 1), v(oth + 2 * t + 1), v(t1), "vcc")
    ve = k.valloc()
    k.I("v_mul_u32_u24", v(ve), 112, v(l31))
    k.I("s_mul_i32", s(soff), s(sst), 32 * 112)
    k.I("s_lshl_b32", s(st0), s(sct), 3)
    k.I("s_add_u32", s(soff), s(soff), s(st0))
    k.I("s_add_u32", s(soff), s(soff), hex(EX_OFF))
    k.I("s_mov_b32", "exec_hi", 0)
    for t in range(2):
        k.I("buffer_store_dwordx2", vr(oth + 2 * t, 2), v(ve), sr(sWS, 4), s(soff), mods=f"offen offset:{t * 32 * 112} sc0 sc1")
    k.I("s_mov_b64", "exec", -1)
    k.L(pub)
    stp.stamp(3)
    v16 = k.valloc()
    k.I("v_lshlrev_b32", v(v16), 4, v(lane))
    P = [k.valloc(8, 4) for _ in range(2)]
    sft = k.salloc()
    k.I("s_lshl_b32", s(sft), s(sct), 1)
    k.I("s_add_u32", s(sft), s(sft), s(sch))
    for t in range(2):
        A = acc[1][t]
        gelu_tile(A, 1, t)
        for j in range(8): k.I("v_cvt_pk_bf16_f32", v(P[t] + j), v(A + 2 * j), v(A + 2 * j + 1))
        k.I("s_add_u32", s(st0), s(sst), t)
        k.I("s_mul_i32", s(soff), s(st0), 56 * 1024)
        k.I("s_lshl_b32", s(st0), s(sft), 11)
        k.I("s_add_u32", s(soff), s(soff), s(st0))
        k.I("s_add_u32", s(soff), s(soff), hex(Z1_OFF))
        k.I("buffer_store_dwordx4", vr(P[t], 4), v(v16), sr(sWS, 4), s(soff), mods="offen")
        k.I("buffer_store_dwordx4", vr(P[t] + 4, 4), v(v16), sr(sWS, 4), s(soff), mods="offen offset:1024")
    stp.stamp(4)
    ex = hs
    k.I("v_mul_u32_u24", v(vh), 112, v(l31))
    k.I("v_lshl_add_u32", v(vh), v(hh), 6, v(vh))
    k.I("s_mul_i32", s(soff), s(sst), 32 * 112)
    k.I("s_add_u32", s(soff), s(soff), hex(EX_OFF))
    scount = k.salloc(); sbad = k.salloc(2)
    k.I("s_mov_b32", s(scount), 0)
    poll = k.newlabel("poll"); pdone = k.newlabel("pdone")
    k.L(poll)
    for t in range(2):
        for i in range(4):
            k.I("buffer_load_dwordx4", vr(ex[t] + 4 * i, 4), v(vh), sr(sWS, 4), s(soff), mods=f"offen offset:{t * 32 * 112 + 16 * i} sc0 sc1")
    k.I("s_waitcnt", "vmcnt(0)")
    k.I("v_cmp_eq_u32", "vcc", 0, v(hh))
    for t in range(2):
        for i in range(12, 16): k.I("v_cndmask_b32", v(ex[t] + i), 0, v(ex[t] + i), "vcc")
    k.I("v_max_u32", v(t0), v(ex[0] + 1), v(ex[0] + 3))
    for t in range(2):
        for i in range(8):
            if t == 0 and i < 2: continue
            k.I("v_max_u32", v(t0), v(t0), v(ex[t] + 2 * i + 1))
    k.I("v_cmp_eq_u32", "vcc", -1, v(t0))
    k.I("s_add_u32", s(scount), s(scount), 1)
    k.I("s_cmp_eq_u64", "vcc", 0)
    k.I("s_cbranch_scc1", pdone)
    k.I("s_cmp_lt_u32", s(scount), 0x40000)
    k.I("s_cbranch_scc0", pdone)
    k.I("s_sleep", 1)
    k.I("s_branch", poll)
    k.L(pdone)
    sc_ = [k.valloc(2) for _ in range(2)]; zm = [k.valloc(2) for _ in range(2)]
    for t in range(2):
        H = ex[t]
        for i in range(4): k.I("v_pk_add_f32", vr(H + 2 * i, 2), vr(H + 2 * i, 2), vr(H + 8 + 2 * i, 2))
        for i in range(2): k.I("v_pk_add_f32", vr(H + 2 * i, 2), vr(H + 2 * i, 2), vr(H + 4 + 2 * i, 2))
        k.I("v_pk_add_f32", vr(H, 2), vr(H, 2), vr(H + 2, 2))
        for e in range(2):
            k.I("v_mov_b32", v(H + 2), v(H + e))
            k.I("v_permlane32_swap_b32", v(H + e), v(H + 2))
            k.I("v_add_f32", v(H + e), v(H + e), v(H + 2))
        k.I("v_mul_f32", v(zm[t]), hex(f32(-1.0 / 896)), v(H))
        k.I("v_mul_f32", v(H + 1), hex(f32(1.0 / 896)), v(H + 1))
        k.I("v_fma_f32", v(H + 1), f"-{v(zm[t])}", v(zm[t]), v(H + 1))
        k.I("v_max_f32", v(H + 1), 0, v(H + 1))
        k.I("v_add_f32", v(H + 1), hex(f32(1e-5)), v(H + 1))
        k.I("v_rsq_f32", v(sc_[t]), v(H + 1))
        k.I("v_mul_f32", v(zm[t]), v(zm[t]), v(sc_[t]))
    TW = 0
    vt = k.valloc(); vtr = k.valloc()
    k.I("v_lshlrev_b32", v(vt), 6, v(l31))
    k.I("v_lshl_add_u32", v(vt), v(hh), 3, v(vt))
    k.I("s_lshl_b32", s(st0), s(swave), 12)
    k.I("v_add_u32", v(vt), s(st0), v(vt))
    for t in range(2):
        A = acc[0][t]
        for j in range(8):
            k.I("v_pk_fma_f32", vr(A + 2 * j, 2), vr(A + 2 * j, 2), vr(sc_[t], 2), vr(zm[t], 2), mods="op_sel_hi:[1,0,0]")
        for j in range(8): k.I("v_cvt_pk_bf16_f32", v(P[t] + j), v(A + 2 * j), v(A + 2 * j + 1))
        for q in range(4):
            k.I("ds_write_b64", v(vt), vr(P[t] + 2 * q, 2), mods=f"offset:{t * 2048 + 16 * q}")
    k.I("v_bfe_u32", v(t0), v(lane), 2, 2)
    k.I("v_lshl_add_u32", v(t0), v(hh), 3, v(t0))
    k.I("v_lshlrev_b32", v(vtr), 6, v(t0))
    k.I("v_bfe_u32", v(t0), v(lane), 4, 1)
    k.I("v_lshl_add_u32", v(vtr), v(t0), 5, v(vtr))
    k.I("v_and_b32", v(t0), 3, v(lane))
    k.I("v_lshl_add_u32", v(vtr), v(t0), 3, v(vtr))
    k.I("s_lshl_b32", s(st0), s(swave), 12)
    k.I("v_add_u32", v(vtr), s(st0), v(vtr))
    k.I("s_waitcnt", "lgkmcnt(0)")
    Z = cw[0]
    for ks in range(4):
        for beta in range(2):
            k.I("ds_read_b64_tr_b16", vr(Z + 4 * ks + 2 * beta, 2), v(vtr), mods=f"offset:{(16 * ks + 4 * beta) * 64}")
    k.I("s_mul_i32", s(soff), s(sft), ZS)
    k.I("s_lshr_b32", s(st0), s(sst), 5)
    k.I("s_mul_i32", s(st0), s(st0), ZK)
    k.I("s_add_u32", s(soff), s(soff), s(st0))
    k.I("s_and_b32", s(st0), s(sst), 31)
    k.I("s_lshl_b32", s(st0), s(st0), 11)
    k.I("s_add_u32", s(soff), s(soff), s(st0))
    k.I("s_add_u32", s(soff), s(soff), hex(Z2_OFF))
    for ks in range(4):
        k.I("s_waitcnt", f"lgkmcnt({6 - 2 * ks})")
        k.I("buffer_store_dwordx4", vr(Z + 4 * ks, 4), v(v16), sr(sWS, 4), s(soff), mods=f"offen offset:{ks * 1024}")
    stp.stamp(5)
    k.L(R["done"])
    k.I("s_endpgm")
    k.lds = lds; k.threads = 512; k.grid = 224
    return k


def gen_k5(Stamper):
    k = Kernel("k5_sp_kernel")
    NS = 4; SLOT = 32768
    lds = NS * SLOT
    R = common_start(k, 224)
    swave, st0, st1, soff, lane, t0, t1, t2 = (R[x] for x in ("swave", "st0", "st1", "soff", "lane", "t0", "t1", "t2"))
    pSp = k.salloc(2); pB = k.salloc(2); pWS = k.salloc(2)
    k.I("s_load_dwordx2", sr(pSp, 2), "s[0:1]", 40)
    k.I("s_load_dwordx2", sr(pB, 2), "s[0:1]", 48)
    k.I("s_load_dwordx2", sr(pWS, 2), "s[0:1]", 80)
    sWS = k.salloc(4); sSp = k.salloc(4); sB = k.salloc(4)
    sj = k.salloc(); sidx = k.salloc(); stt = k.salloc(); sft = k.salloc(); skap = k.salloc(); sw3 = k.salloc()
    if os.environ.get("K5MAP") == "linear":
        k.I("s_mul_i32", s(sj), "s2", 2341)
        k.I("s_lshr_b32", s(sj), s(sj), 16)
        k.I("s_mul_i32", s(sidx), s(sj), 28)
        k.I("s_sub_u32", s(sidx), "s2", s(sidx))
    else:
        k.I("s_and_b32", s(sj), "s2", 7)
        k.I("s_lshr_b32", s(sidx), "s2", 3)
    k.I("s_and_b32", s(sw3), s(swave), 3)
    k.I("s_and_b32", s(skap), s(sj), 1)
    k.I("s_mul_i32", s(st0), s(sidx), 37)
    k.I("s_lshr_b32", s(st0), s(st0), 8)
    k.I("s_mul_i32", s(st1), s(st0), 7)
    k.I("s_sub_u32", s(sft), s(sidx), s(st1))
    k.I("s_lshr_b32", s(stt), s(sj), 1)
    k.I("s_lshl_b32", s(stt), s(stt), 2)
    k.I("s_add_u32", s(stt), s(stt), s(st0))
    stp = Stamper(k, 4, sWS, swave)
    if os.environ.get("TICKWAVE", "0") != "0": stp.tick(0)
    k.I("s_waitcnt", "lgkmcnt(0)")
    srd(k, sWS, pWS, WS_SIZE)
    comp = k.newlabel("compute")
    k.I("s_cmp_lt_u32", s(swave), 4)
    k.I("s_cbranch_scc1", comp)
    vsave = k.vnext
    srd(k, sSp, pSp, 2048 * 4096)
    v16 = k.valloc(); vWo = k.valloc(2)
    k.I("v_lshlrev_b32", v(v16), 4, v(lane))
    k.I("v_lshrrev_b32", v(t0), 3, v(lane))
    k.I("v_lshlrev_b32", v(t0), 12, v(t0))
    k.I("v_lshrrev_b32", v(t1), 4, v(lane))
    k.I("v_and_b32", v(t2), 7, v(lane))
    k.I("v_xor_b32", v(t1), v(t1), v(t2))
    k.I("v_lshl_add_u32", v(vWo), v(t1), 4, v(t0))
    k.I("v_xor_b32", v(t1), 4, v(t1))
    k.I("v_lshl_add_u32", v(vWo + 1), v(t1), 4, v(t0))
    sZb = k.salloc(); sWb = k.salloc(); smZ = k.salloc(); smW = k.salloc()
    k.I("s_lshl_b32", s(st0), s(sft), 2)
    k.I("s_add_u32", s(st0), s(st0), s(sw3))
    k.I("s_mul_i32", s(sZb), s(st0), ZS)
    k.I("s_mul_i32", s(st1), s(skap), ZK)
    k.I("s_add_u32", s(sZb), s(sZb), s(st1))
    k.I("s_add_u32", s(sZb), s(sZb), hex(Z2_OFF))
    k.I("s_lshl_b32", s(smZ), s(sw3), 12)
    k.I("s_lshl_b32", s(st0), s(stt), 7)
    k.I("s_lshl_b32", s(st1), s(sw3), 5)
    k.I("s_add_u32", s(st0), s(st0), s(st1))
    k.I("s_lshl_b32", s(sWb), s(st0), 12)
    k.I("s_lshl_b32", s(st1), s(skap), 11)
    k.I("s_add_u32", s(sWb), s(sWb), s(st1))
    k.I("s_add_u32", s(smW), s(smZ), 16384)
    def issue(c):
        sl = (c % NS) * SLOT
        def zpart():
            for i in range(4):
                k.I("s_add_u32", s(soff), s(sZb), hex((4 * c + i) * 1024))
                k.I("s_add_u32", "m0", s(smZ), hex(sl + i * 1024))
                k.vm(("S", c), "buffer_load_dwordx4", v(v16), sr(sWS, 4), s(soff), mods="offen lds")
                if os.environ.get("DIAG5") and c == 0 and i in (0, 3):
                    k.I("s_waitcnt", "vmcnt(0)"); stp.tick(10 + (i > 0))
        def wpart():
            for i in range(4):
                k.I("s_add_u32", s(soff), s(sWb), hex(i * 8 * 4096 + c * 128))
                k.I("s_add_u32", "m0", s(smW), hex(sl + i * 1024))
                k.vm(("S", c), "buffer_load_dwordx4", v(vWo + (i & 1)), sr(sSp, 4), s(soff), mods="offen lds")
                if os.environ.get("DIAG5") and c == 0 and i in (0, 3):
                    k.I("s_waitcnt", "vmcnt(0)"); stp.tick(12 + (i > 0))
        if os.environ.get("DIAG5") == "2": wpart(); zpart()
        else: zpart(); wpart()
    NST = 16
    sZ1 = k.salloc()
    k.I("s_lshl_b32", s(st0), s(stt), 2)
    k.I("s_add_u32", s(st0), s(st0), s(sw3))
    k.I("s_mul_i32", s(sZ1), s(st0), 56 * 1024)
    k.I("s_lshl_b32", s(st1), s(sft), 13)
    k.I("s_add_u32", s(sZ1), s(sZ1), s(st1))
    k.I("s_add_u32", s(sZ1), s(sZ1), hex(Z1_OFF))
    smZ1 = k.salloc()
    k.I("s_lshl_b32", s(smZ1), s(sw3), 13)
    def issue_z1():
        sl = (NST % NS) * SLOT
        for i in range(8):
            k.I("s_add_u32", s(soff), s(sZ1), hex(i * 1024))
            k.I("s_add_u32", "m0", s(smZ1), hex(sl + i * 1024))
            k.vm(("S", NST), "buffer_load_dwordx4", v(v16), sr(sWS, 4), s(soff), mods="offen lds")
    LT = os.environ.get("TICKWAVE", "0") != "0"
    if LT: stp.tick(1)
    issue(0)
    if LT: stp.tick(2)
    issue(1)
    if LT: stp.tick(3)
    for c in range(NST):
        k.wait_vm(("S", c))
        if LT and c < 3: stp.tick(4 + 2 * c)
        k.I("s_barrier")
        if LT and c < 3: stp.tick(5 + 2 * c)
        if c == 0: issue(2); issue(3)
        elif c + 2 < NST and c >= 2: issue(c + 2)
        elif c + 2 == NST: issue_z1()
    k.wait_vm(("S", NST))
    k.I("s_barrier")
    if LT: stp.dump_ticks()
    k.I("s_endpgm")
    k.L(comp)
    k.vnext = vsave; k.vmq = []; k.lgq = []
    srd(k, sB, pB, 4096)
    l31 = k.valloc(); hh = k.valloc()
    k.I("v_and_b32", v(l31), 31, v(lane))
    k.I("v_lshrrev_b32", v(hh), 5, v(lane))
    sfh = k.salloc(); sth = k.salloc(); sst = k.salloc(); sf32 = k.salloc()
    k.I("s_and_b32", s(sfh), s(swave), 1)
    k.I("s_lshr_b32", s(sth), s(swave), 1)
    k.I("s_lshl_b32", s(sst), s(stt), 2)
    k.I("s_lshl_b32", s(st0), s(sth), 1)
    k.I("s_add_u32", s(sst), s(sst), s(st0))
    k.I("s_lshl_b32", s(sf32), s(sft), 2)
    k.I("s_lshl_b32", s(st0), s(sfh), 1)
    k.I("s_add_u32", s(sf32), s(sf32), s(st0))
    if os.environ.get("PF3", "0") == "1":
        vT0 = k.valloc(); vd0 = k.valloc(2)
        k.I("s_lshl_b32", s(st0), s(sidx), 8)
        k.I("v_add_u32", v(vT0), s(st0), "v0")
        k.I("s_lshl_b32", s(st1), s(skap), 16)
        k.I("s_add_u32", s(st1), s(st1), hex(Z2_OFF))
        for i in range(2):
            k.I("v_add_u32", v(t0), 7168 * i, v(vT0))
            k.I("v_lshrrev_b32", v(t1), 9, v(t0))
            k.I("v_lshlrev_b32", v(t1), 17, v(t1))
            k.I("v_and_b32", v(t2), 511, v(t0))
            k.I("v_lshl_add_u32", v(t1), v(t2), 7, v(t1))
            k.vm("pf", "buffer_load_dword", v(vd0 + i), v(t1), sr(sWS, 4), s(st1), mods="offen")
    v16 = k.valloc()
    k.I("v_lshlrev_b32", v(v16), 4, v(lane))
    z1 = [[k.valloc(8, 4) for _ in range(2)] for _ in range(2)]
    rr = [k.valloc(2) for _ in range(2)]; bb = [k.valloc(2) for _ in range(2)]
    k.I("v_lshlrev_b32", v(t0), 2, v(l31))
    k.I("v_lshlrev_b32", v(t1), 1, v(l31))
    for ti in range(2):
        k.I("s_add_u32", s(st0), s(sst), ti)
        k.I("s_lshl_b32", s(soff), s(st0), 7)
        k.I("s_add_u32", s(soff), s(soff), hex(RH_OFF))
        k.vm("z1", "buffer_load_dword", v(rr[ti]), v(t0), sr(sWS, 4), s(soff), mods="offen")
        k.I("s_lshl_b32", s(soff), s(st0), 6)
        k.vm("z1", "buffer_load_ushort", v(bb[ti]), v(t1), sr(sB, 4), s(soff), mods="offen")
    if os.environ.get("PF2", "0") == "1":
        pp = k.salloc(2); sP = k.salloc(4); vT = k.valloc(); vd = k.valloc(2)
        k.I("s_load_dwordx2", sr(pp, 2), "s[0:1]", 56)
        k.I("s_lshl_b32", s(st0), s(sidx), 8)
        k.I("v_add_u32", v(vT), s(st0), "v0")
        k.I("v_lshlrev_b32", v(vT), 7, v(vT))
        k.I("s_waitcnt", "lgkmcnt(0)")
        srd(k, sP, pp, 896 * 896)
        k.vm("pf", "buffer_load_dword", v(vd), v(vT), sr(sP, 4), 0, mods="offen")
    code_prefetch(k, "k6_wout_kernel", sidx, st0)
    stp.stamp(0)
    aZ = k.valloc(); aW = k.valloc(4)
    k.I("s_lshl_b32", s(st0), s(sfh), 13)
    k.I("v_add_u32", v(aZ), s(st0), v(v16))
    k.I("v_bfe_u32", v(t0), v(l31), 1, 3)
    for j in range(4):
        k.I("v_add_u32", v(t1), 2 * j, v(hh))
        k.I("v_xor_b32", v(t1), v(t1), v(t0))
        k.I("v_lshlrev_b32", v(t1), 4, v(t1))
        k.I("v_lshl_add_u32", v(aW + j), v(l31), 7, v(t1))
        k.I("s_lshl_b32", s(st0), s(sth), 13)
        k.I("s_add_u32", s(st0), s(st0), 16384)
        k.I("v_add_u32", v(aW + j), s(st0), v(aW + j))
    aZ2 = k.valloc(); aW2 = k.valloc(4)
    k.I("v_add_u32", v(aZ2), 65536, v(aZ))
    for j in range(4): k.I("v_add_u32", v(aW2 + j), 65536, v(aW + j))
    acc = [[k.valloc(16, 4) for _ in range(2)] for _ in range(2)]
    NB = 3
    zf = [[k.valloc(4) for _ in range(2)] for _ in range(NB)]
    wf = [[k.valloc(4) for _ in range(2)] for _ in range(NB)]
    def rl(ks):
        c, j = ks // 4, ks % 4
        b = ks % NB
        sl = (c % NS) * SLOT
        hi = sl >= 65536
        so = sl - (65536 if hi else 0)
        out = []
        for fi in range(2):
            out.append(lambda fi=fi: k.lg(("f", ks), "ds_read_b128", vr(zf[b][fi], 4), v(aZ2 if hi else aZ), mods=f"offset:{so + fi * 4096 + j * 1024}"))
        for ti in range(2):
            out.append(lambda ti=ti: k.lg(("f", ks), "ds_read_b128", vr(wf[b][ti], 4), v((aW2 if hi else aW) + j), mods=f"offset:{so + ti * 4096}"))
        return out
    k.I("s_barrier")
    stp.stamp(1)
    for f in rl(0) + rl(1): f()
    NKS = NST * 4
    for ks in range(NKS):
        c, j = ks // 4, ks % 4
        b = ks % NB
        k.wait_lg(("f", ks))
        mf = []
        for fi in range(2):
            for ti in range(2):
                mf.append(lambda fi=fi, ti=ti: k.I("v_mfma_f32_32x32x16_bf16", vr(acc[fi][ti], 16), vr(zf[b][fi], 4), vr(wf[b][ti], 4), 0 if ks == 0 else vr(acc[fi][ti], 16)))
        fl = rl(ks + 2) if ks + 2 < NKS else []
        if j == 2 and ks + 2 < NKS:
            if not LT and 4 <= c < 11: stp.tick(2 * (c - 4))
            k.I("s_barrier")
            if not LT and 4 <= c < 11: stp.tick(2 * (c - 4) + 1)
        interleave(k, mf, fl)
    stp.stamp(2)
    if not LT: stp.dump_ticks()
    k.I("s_barrier")
    vz = k.valloc()
    k.I("s_lshl_b32", s(st0), s(sth), 14)
    k.I("s_lshl_b32", s(st1), s(sfh), 12)
    k.I("s_add_u32", s(st0), s(st0), s(st1))
    k.I("s_add_u32", s(st0), s(st0), (NST % NS) * SLOT)
    k.I("v_add_u32", v(vz), s(st0), v(v16))
    for ti in range(2):
        for fi in range(2):
            for hf_ in range(2):
                k.lg(("z1", ti, fi), "ds_read_b128", vr(z1[fi][ti] + 4 * hf_, 4), v(vz), mods=f"offset:{ti * 8192 + fi * 2048 + hf_ * 1024}")
    k.wait_vm("z1")
    for ti in range(2):
        k.I("v_lshlrev_b32", v(bb[ti]), 16, v(bb[ti]))
        k.I("v_mul_f32", v(bb[ti]), v(bb[ti]), v(rr[ti]))
    k.I("s_cmp_eq_u32", s(skap), 0)
    k.I("s_cselect_b32", s(st0), "1.0", 0)
    for ti in range(2): k.I("v_mul_f32", v(bb[ti]), s(st0), v(bb[ti]))
    tp = [k.valloc(2) for _ in range(4)]
    P = [k.valloc(8, 4) for _ in range(2)]
    sU = k.salloc()
    k.I("s_mul_i32", s(sU), s(skap), U1_OFF - U0_OFF)
    k.I("s_add_u32", s(sU), s(sU), hex(U0_OFF))
    n = 0
    for ti in range(2):
        for fi in range(2):
            A = acc[fi][ti]; Zp = z1[fi][ti]; PP = P[n & 1]; n += 1
            for j in range(8):
                k.I("v_pk_fma_f32", vr(A + 2 * j, 2), vr(A + 2 * j, 2), vr(rr[ti], 2), vr(bb[ti], 2), mods="op_sel_hi:[1,0,0]")
            k.wait_lg(("z1", ti, fi))
            for j in range(8):
                T = tp[j % 4]
                k.I("v_lshlrev_b32", v(T), 16, v(Zp + j))
                k.I("v_and_b32", v(T + 1), "0xffff0000", v(Zp + j))
                k.I("v_pk_mul_f32", vr(A + 2 * j, 2), vr(A + 2 * j, 2), vr(T, 2))
            for j in range(8): k.I("v_cvt_pk_bf16_f32", v(PP + j), v(A + 2 * j), v(A + 2 * j + 1))
            k.I("s_add_u32", s(st0), s(sst), ti)
            k.I("s_mul_i32", s(soff), s(st0), 56 * 1024)
            k.I("s_add_u32", s(st0), s(sf32), fi)
            k.I("s_lshl_b32", s(st0), s(st0), 11)
            k.I("s_add_u32", s(soff), s(soff), s(st0))
            k.I("s_add_u32", s(soff), s(soff), s(sU))
            k.I("buffer_store_dwordx4", vr(PP, 4), v(v16), sr(sWS, 4), s(soff), mods="offen")
            k.I("buffer_store_dwordx4", vr(PP + 4, 4), v(v16), sr(sWS, 4), s(soff), mods="offen offset:1024")
    stp.stamp(3)
    k.L(R["done"])
    k.I("s_endpgm")
    k.lds = lds; k.threads = 512; k.grid = 224
    return k

def gen_k6(Stamper):
    k = Kernel("k6_wout_kernel")
    NS = 5; SLOT = 24576
    RED = 0
    lds = NS * SLOT
    R = common_start(k, 224)
    swave, st0, st1, soff, lane, t0, t1, t2 = (R[x] for x in ("swave", "st0", "st1", "soff", "lane", "t0", "t1", "t2"))
    pWo = k.salloc(2); pOut = k.salloc(2); pWS = k.salloc(2)
    k.I("s_load_dwordx2", sr(pWo, 2), "s[0:1]", 56)
    k.I("s_load_dwordx2", sr(pOut, 2), "s[0:1]", 64)
    k.I("s_load_dwordx2", sr(pWS, 2), "s[0:1]", 80)
    sWS = k.salloc(4); sWo = k.salloc(4); sOut = k.salloc(4)
    sj = k.salloc(); sidx = k.salloc(); srt = k.salloc(); snt = k.salloc(); sw3 = k.salloc()
    k.I("s_and_b32", s(sj), "s2", 7)
    k.I("s_lshr_b32", s(sidx), "s2", 3)
    k.I("s_and_b32", s(sw3), s(swave), 3)
    k.I("s_mul_i32", s(st0), s(sidx), 37)
    k.I("s_lshr_b32", s(st0), s(st0), 8)
    k.I("s_mul_i32", s(st1), s(st0), 7)
    k.I("s_sub_u32", s(snt), s(sidx), s(st1))
    k.I("s_lshl_b32", s(srt), s(sj), 2)
    k.I("s_add_u32", s(srt), s(srt), s(st0))
    stp = Stamper(k, 5, sWS, swave)
    k.I("s_waitcnt", "lgkmcnt(0)")
    srd(k, sWS, pWS, WS_SIZE)
    comp = k.newlabel("compute")
    k.I("s_cmp_lt_u32", s(swave), 4)
    k.I("s_cbranch_scc1", comp)
    vsave = k.vnext
    srd(k, sWo, pWo, 896 * 896)
    v16 = k.valloc(); vWo = k.valloc()
    k.I("v_lshlrev_b32", v(v16), 4, v(lane))
    k.I("v_lshrrev_b32", v(t0), 3, v(lane))
    k.I("v_mul_u32_u24", v(t0), 896, v(t0))
    k.I("v_bfe_u32", v(t1), v(lane), 4, 1)
    k.I("v_lshlrev_b32", v(t1), 2, v(t1))
    k.I("v_and_b32", v(t2), 7, v(lane))
    k.I("v_xor_b32", v(t1), v(t1), v(t2))
    k.I("v_lshl_add_u32", v(vWo), v(t1), 4, v(t0))
    sUb = k.salloc(); sWb = k.salloc(); smU = k.salloc(); smW = k.salloc()
    k.I("s_lshr_b32", s(st0), s(sw3), 1)
    k.I("s_lshl_b32", s(st1), s(srt), 1)
    k.I("s_add_u32", s(st1), s(st1), s(st0))
    k.I("s_mul_i32", s(sUb), s(st1), 56 * 1024)
    k.I("s_and_b32", s(st1), s(sw3), 1)
    k.I("s_mul_i32", s(smU), s(st1), U1_OFF - U0_OFF)
    k.I("s_add_u32", s(sUb), s(sUb), s(smU))
    k.I("s_add_u32", s(sUb), s(sUb), hex(U0_OFF))
    k.I("s_lshl_b32", s(smU), s(st1), 13)
    k.I("s_lshl_b32", s(st0), s(st0), 12)
    k.I("s_add_u32", s(smU), s(smU), s(st0))
    k.I("s_mul_i32", s(sWb), s(sw3), 16 * 896)
    k.I("s_lshl_b32", s(st1), s(snt), 7)
    k.I("s_add_u32", s(sWb), s(sWb), s(st1))
    k.I("s_lshl_b32", s(smW), s(sw3), 11)
    k.I("s_add_u32", s(smW), s(smW), 16384)
    def issue(c):
        sl = (c % NS) * SLOT
        for i in range(4):
            k.I("s_add_u32", s(soff), s(sUb), hex((4 * c + i) * 1024))
            k.I("s_add_u32", "m0", s(smU), hex(sl + i * 1024))
            k.vm(("S", c), "buffer_load_dwordx4", v(v16), sr(sWS, 4), s(soff), mods="offen lds")
        for i in range(2):
            k.I("s_add_u32", s(soff), s(sWb), hex((64 * c + 8 * i) * 896))
            k.I("s_add_u32", "m0", s(smW), hex(sl + i * 1024))
            k.vm(("S", c), "buffer_load_dwordx4", v(vWo), sr(sWo, 4), s(soff), mods="offen lds")
    NST = 14
    for c in range(3): issue(c)
    for c in range(NST):
        k.wait_vm(("S", c))
        k.I("s_barrier")
        if c == 0: issue(3); issue(4)
        elif c + 3 < NST and c >= 2: issue(c + 3)
    k.I("s_endpgm")
    k.L(comp)
    k.vnext = vsave; k.vmq = []; k.lgq = []
    srd(k, sOut, pOut, 2048 * 896)
    l31 = k.valloc(); hh = k.valloc()
    k.I("v_and_b32", v(l31), 31, v(lane))
    k.I("v_lshrrev_b32", v(hh), 5, v(lane))
    srh = k.salloc(); snh = k.salloc(); sst = k.salloc(); sntile = k.salloc()
    k.I("s_and_b32", s(srh), s(swave), 1)
    k.I("s_lshr_b32", s(snh), s(swave), 1)
    k.I("s_lshl_b32", s(sst), s(srt), 1)
    k.I("s_add_u32", s(sst), s(sst), s(srh))
    k.I("s_lshl_b32", s(sntile), s(snt), 1)
    k.I("s_add_u32", s(sntile), s(sntile), s(snh))
    if os.environ.get("PF3", "0") == "1":
        vT0 = k.valloc(); vd0 = k.valloc(2)
        k.I("s_lshl_b32", s(st0), s(sidx), 8)
        k.I("v_add_u32", v(vT0), s(st0), "v0")
        k.I("v_mov_b32", v(t0), hex(U1_OFF - U0_OFF - 3584 * 128))
        k.I("v_cmp_le_u32", "vcc", 3584, v(vT0))
        k.I("v_cndmask_b32", v(t0), 0, v(t0), "vcc")
        k.I("v_lshl_add_u32", v(t0), v(vT0), 7, v(t0))
        k.I("s_mul_i32", s(st1), s(sj), 8 * 56 * 1024)
        k.I("s_add_u32", s(st1), s(st1), hex(U0_OFF))
        k.vm("pf", "buffer_load_dword", v(vd0), v(t0), sr(sWS, 4), s(st1), mods="offen")
    v16 = k.valloc()
    k.I("v_lshlrev_b32", v(v16), 4, v(lane))
    hr = k.valloc(8, 4)
    k.I("s_mul_i32", s(soff), s(sst), 28 * 1024)
    k.I("s_lshl_b32", s(st0), s(sntile), 11)
    k.I("s_add_u32", s(soff), s(soff), s(st0))
    k.I("s_add_u32", s(soff), s(soff), hex(H_OFF))
    k.vm("h", "buffer_load_dwordx4", vr(hr, 4), v(v16), sr(sWS, 4), s(soff), mods="offen")
    k.vm("h", "buffer_load_dwordx4", vr(hr + 4, 4), v(v16), sr(sWS, 4), s(soff), mods="offen offset:1024")
    stp.stamp(0)
    aU = k.valloc(); vW = k.valloc()
    k.I("s_lshl_b32", s(st0), s(srh), 12)
    k.I("v_add_u32", v(aU), s(st0), v(v16))
    k.I("v_bfe_u32", v(t0), v(lane), 2, 2)
    k.I("v_lshl_add_u32", v(t0), v(hh), 2, v(t0))
    k.I("v_lshlrev_b32", v(vW), 7, v(t0))
    k.I("v_add_u32", v(vW), 16384, v(vW))
    k.I("v_bfe_u32", v(t0), v(lane), 4, 1)
    k.I("v_lshlrev_b32", v(t0), 1, v(t0))
    k.I("v_bfe_u32", v(t1), v(lane), 1, 1)
    k.I("v_add_u32", v(t0), v(t0), v(t1))
    k.I("s_lshl_b32", s(st0), s(snh), 2)
    k.I("v_add_u32", v(t0), s(st0), v(t0))
    k.I("v_bfe_u32", v(t1), v(lane), 3, 1)
    k.I("v_lshlrev_b32", v(t1), 2, v(t1))
    k.I("v_xor_b32", v(t0), v(t0), v(t1))
    k.I("v_lshl_add_u32", v(vW), v(t0), 4, v(vW))
    k.I("v_and_b32", v(t0), 1, v(lane))
    k.I("v_lshl_add_u32", v(vW), v(t0), 3, v(vW))
    aU2 = k.valloc(); vW2 = k.valloc()
    k.I("v_add_u32", v(aU2), 3 * SLOT, v(aU))
    k.I("v_add_u32", v(vW2), 3 * SLOT, v(vW))
    acc = k.valloc(16, 4)
    NB = 3
    uf = [[k.valloc(4) for _ in range(2)] for _ in range(NB)]; wf = [k.valloc(4) for _ in range(NB)]
    def rl(ks):
        c, j = ks // 4, ks % 4
        b = ks % NB
        sl = (c % NS)
        hi = sl >= 3
        so = (sl - (3 if hi else 0)) * SLOT
        out = []
        for ar_ in range(2):
            out.append(lambda ar_=ar_: k.lg(("f", ks), "ds_read_b128", vr(uf[b][ar_], 4), v(aU2 if hi else aU), mods=f"offset:{so + ar_ * 8192 + j * 1024}"))
        for beta in range(2):
            o = so + (16 * j + 8 * beta) * 128
            out.append(lambda o=o, beta=beta: k.lg(("f", ks), "ds_read_b64_tr_b16", vr(wf[b] + 2 * beta, 2), v(vW2 if hi else vW), mods=f"offset:{o}"))
        return out
    k.I("s_barrier")
    stp.stamp(1)
    for f in rl(0) + rl(1): f()
    NKS = NST * 4
    for ks in range(NKS):
        c, j = ks // 4, ks % 4
        b = ks % NB
        k.wait_lg(("f", ks))
        mf = [lambda ar_=ar_: k.I("v_mfma_f32_32x32x16_bf16", vr(acc, 16), vr(wf[b], 4), vr(uf[b][ar_], 4), 0 if (ks == 0 and ar_ == 0) else vr(acc, 16)) for ar_ in range(2)]
        fl = rl(ks + 2) if ks + 2 < NKS else []
        if j == 2 and ks + 2 < NKS: k.I("s_barrier")
        interleave(k, mf, fl)
    stp.stamp(2)
    k.wait_vm("h")
    tp = [k.valloc(2) for _ in range(4)]
    for j in range(8):
        T = tp[j % 4]
        k.I("v_lshlrev_b32", v(T), 16, v(hr + j))
        k.I("v_and_b32", v(T + 1), "0xffff0000", v(hr + j))
        k.I("v_pk_add_f32", vr(acc + 2 * j, 2), vr(acc + 2 * j, 2), vr(T, 2))
    P = k.valloc(8, 4)
    for j in range(8): k.I("v_cvt_pk_bf16_f32", v(P + j), v(acc + 2 * j), v(acc + 2 * j + 1))
    for kp in range(2):
        k.I("v_permlane32_swap_b32", v(P + 4 * kp), v(P + 4 * kp + 2))
        k.I("v_permlane32_swap_b32", v(P + 4 * kp + 1), v(P + 4 * kp + 3))
    vo = k.valloc()
    k.I("v_mul_u32_u24", v(vo), 896, v(l31))
    k.I("v_lshl_add_u32", v(vo), v(hh), 4, v(vo))
    k.I("s_mul_i32", s(soff), s(sst), 32 * 896)
    k.I("s_lshl_b32", s(st0), s(sntile), 6)
    k.I("s_add_u32", s(soff), s(soff), s(st0))
    for kp in range(2):
        k.I("buffer_store_dwordx4", vr(P + 4 * kp, 4), v(vo), sr(sOut, 4), s(soff), mods=f"offen offset:{32 * kp}")
    stp.stamp(3)
    k.L(R["done"])
    k.I("s_endpgm")
    k.lds = lds; k.threads = 512; k.grid = 224
    return k

def rest(Stamper):
    return [gen_k2(Stamper), gen_k3(Stamper), gen_k4(Stamper), gen_k5(Stamper), gen_k6(Stamper)]
```

```python
import os, struct, math
from asmlib import *
from layout import *
WS_SIZE = 0x10000000
def f32(x): return struct.unpack("<I", struct.pack("<f", x))[0]

def srd(k, dst, base, size):
    k.I("s_mov_b32", s(dst), s(base))
    k.I("s_and_b32", s(dst + 1), s(base + 1), "0xffff")
    k.I("s_mov_b32", s(dst + 2), hex(size) if isinstance(size, int) else size)
    k.I("s_mov_b32", s(dst + 3), "0x20000")

def gen_k2(Stamper):
    k = Kernel("k2_attn_kernel")
    k.snext = 4; k.vnext = 1
    KREG = 0; VREG = 24576
    lds = 49152
    done = k.newlabel("done")
    k.I("s_cmp_ge_u32", "s2", 256)
    k.I("s_cbranch_scc1", done)
    pWS = k.salloc(2)
    k.I("s_load_dwordx2", sr(pWS, 2), "s[0:1]", 80)
    sWS = k.salloc(4)
    swave = k.salloc(); srb = k.salloc(); shd = k.salloc(); st0 = k.salloc(); st1 = k.salloc(); soff = k.salloc()
    lane = k.valloc(); t0 = k.valloc(); t1 = k.valloc(); l15 = k.valloc(); gg = k.valloc()
    k.I("v_lshrrev_b32", v(t0), 6, "v0")
    k.I("v_and_b32", v(lane), 63, "v0")
    k.I("v_readfirstlane_b32", s(swave), v(t0))
    k.I("s_and_b32", s(st0), "s2", 7)
    k.I("s_lshr_b32", s(st1), "s2", 3)
    k.I("s_and_b32", s(shd), s(st1), 15)
    k.I("s_lshr_b32", s(st1), s(st1), 4)
    k.I("s_lshl_b32", s(srb), s(st0), 1)
    k.I("s_add_u32", s(srb), s(srb), s(st1))
    stp = Stamper(k, 1, sWS, swave)
    v16 = k.valloc()
    k.I("v_lshlrev_b32", v(v16), 4, v(lane))
    sb = k.salloc(); sm = k.salloc(); s16q = k.salloc()
    k.I("s_lshl_b32", s(sb), s(shd), 17)
    k.I("s_lshl_b32", s(st0), s(srb), 13)
    k.I("s_add_u32", s(sb), s(sb), s(st0))
    k.I("s_mul_i32", s(sm), s(swave), 3072)
    k.I("s_lshl_b32", s(s16q), s(srb), 3)
    k.I("s_add_u32", s(s16q), s(s16q), s(swave))
    k.I("s_waitcnt", "lgkmcnt(0)")
    srd(k, sWS, pWS, WS_SIZE)
    qf = k.valloc(4)
    k.I("s_lshl_b32", s(st0), s(swave), 10)
    k.I("s_add_u32", s(st0), s(st0), s(sb))
    k.I("s_add_u32", s(soff), s(st0), hex(Q_OFF))
    k.vm("q", "buffer_load_dwordx4", vr(qf, 4), v(v16), sr(sWS, 4), s(soff), mods="offen")
    k.I("s_add_u32", s(st1), s(sb), s(sm))
    for (reg, off) in ((KREG, K_OFF), (VREG, V_OFF)):
        for i in range(3):
            k.I("s_add_u32", s(soff), s(st1), hex(off - 16384 + i * 1024))
            k.I("s_add_u32", "m0", s(sm), hex(reg + i * 1024))
            k.vm("kv", "buffer_load_dwordx4", v(v16), sr(sWS, 4), s(soff), mods="offen lds")
    sidx2 = k.salloc()
    k.I("s_lshr_b32", s(sidx2), "s2", 3)
    code_prefetch(k, "k3_wo_kernel", sidx2, st0)
    stp.stamp(0)
    k.I("v_and_b32", v(l15), 15, v(lane))
    k.I("v_lshrrev_b32", v(gg), 4, v(lane))
    M = [k.salloc(2) for _ in range(4)]
    k.I("v_lshlrev_b32", v(t0), 2, v(gg))
    for i in range(4):
        k.I("v_add_u32", v(t1), i, v(t0))
        k.I("v_cmp_gt_u32", sr(M[i], 2), v(t1), v(l15))
    aK = k.valloc(); aV = k.valloc()
    k.I("s_lshl_b32", s(st0), s(swave), 10)
    k.I("v_add_u32", v(aK), s(st0), v(v16))
    k.I("v_lshlrev_b32", v(aV), 3, v(lane))
    k.I("s_add_u32", s(st0), s(st0), VREG)
    k.I("v_add_u32", v(aV), s(st0), v(aV))
    S = k.valloc(68, 4)
    kf = [k.valloc(4) for _ in range(6)]
    neg = k.valloc()
    k.I("v_mov_b32", v(neg), hex(f32(-1e30)))
    k.wait_vm(["q", "kv"])
    k.I("s_barrier")
    stp.stamp(1)
    NKF = 6
    for j in range(min(NKF, 17)):
        k.lg(("k", j), "ds_read_b128", vr(kf[j % NKF], 4), v(aK), mods=f"offset:{j * 1024}")
    for j in range(17):
        k.wait_lg(("k", j))
        k.I("v_mfma_f32_16x16x32_bf16", vr(S + 4 * j, 4), vr(kf[j % NKF], 4), vr(qf, 4), 0)
        if j + NKF < 17:
            k.lg(("k", j + NKF), "ds_read_b128", vr(kf[j % NKF], 4), v(aK), mods=f"offset:{(j + NKF) * 1024}")
    vT = k.valloc()
    k.I("s_lshl_b32", s(st0), s(sidx2), 9)
    k.I("v_add_u32", v(vT), s(st0), "v0")
    k.I("v_lshlrev_b32", v(vT), 7, v(vT))
    l2_prefetch(k, 32, 448 * 3584, vT, 16384, st0)
    k.lgq = []
    vf = k.valloc(9 * 2 * 4, 4)
    def vread(kp):
        for dt in range(2):
            for beta in range(2):
                tile = min(2 * kp + beta, 16)
                k.lg(("v", kp), "ds_read_b64", vr(vf + (kp * 2 + dt) * 4 + 2 * beta, 2), v(aV), mods=f"offset:{tile * 1024 + dt * 512}")
    for kp in range(3): vread(kp)
    for i in range(4):
        k.I("v_cndmask_b32", v(S + i), v(neg), v(S + i), sr(M[i], 2))
        k.I("v_cndmask_b32", v(S + 64 + i), v(S + 64 + i), v(neg), sr(M[i], 2))
    nofix = k.newlabel("nofix")
    k.I("s_cmp_ge_u32", s(s16q), 16)
    k.I("s_cbranch_scc1", nofix)
    k.I("s_sub_u32", s(st0), 16, s(s16q))
    for j in range(16):
        lab = k.newlabel("sk")
        k.I("s_cmp_le_u32", s(st0), j)
        k.I("s_cbranch_scc1", lab)
        for i in range(4): k.I("v_mov_b32", v(S + 4 * j + i), v(neg))
        k.L(lab)
    k.L(nofix)
    mx = k.valloc(4)
    for c in range(4):
        k.I("v_max3_f32", v(mx + c), v(S + c * 17), v(S + c * 17 + 1), v(S + c * 17 + 2))
    for r in range(7):
        for c in range(4):
            b = c * 17 + 3 + 2 * r
            k.I("v_max3_f32", v(mx + c), v(mx + c), v(S + b), v(S + b + 1))
    k.I("v_max3_f32", v(mx), v(mx), v(mx + 1), v(mx + 2))
    k.I("v_max_f32", v(mx), v(mx), v(mx + 3))
    for sw in ("v_permlane16_swap_b32", "v_permlane32_swap_b32"):
        k.I("v_mov_b32", v(mx + 1), v(mx))
        k.I(sw, v(mx), v(mx + 1))
        k.I("v_max_f32", v(mx), v(mx), v(mx + 1))
    cs = 28 ** -0.5 * math.log2(math.e)
    sc = k.salloc()
    k.I("s_mov_b32", s(sc), hex(f32(cs)))
    k.I("v_mul_f32", v(mx), hex(f32(-cs)), v(mx))
    for kp in range(3, 6): vread(kp)
    P = k.valloc(36, 4)
    k.I("v_mov_b32", v(P + 34), 0); k.I("v_mov_b32", v(P + 35), 0)
    O = [k.valloc(4), k.valloc(4)]
    def softmax_tile(j):
        for i in range(4): k.I("v_fma_f32", v(S + 4 * j + i), v(S + 4 * j + i), s(sc), v(mx))
        for i in range(4): k.I("v_exp_f32", v(S + 4 * j + i), v(S + 4 * j + i))
    def pack_tile(j):
        k.I("v_cvt_pk_bf16_f32", v(P + 2 * j), v(S + 4 * j), v(S + 4 * j + 1))
        k.I("v_cvt_pk_bf16_f32", v(P + 2 * j + 1), v(S + 4 * j + 2), v(S + 4 * j + 3))
    for kp in range(9):
        tiles = [2 * kp, 2 * kp + 1] if kp < 8 else [16]
        for j in tiles: softmax_tile(j)
        for j in tiles: pack_tile(j)
        if kp == 2:
            for q in range(6, 9): vread(q)
        if kp >= 1:
            q = kp - 1
            k.wait_lg(("v", q))
            for dt in range(2):
                k.I("v_mfma_f32_16x16x32_bf16", vr(O[dt], 4), vr(vf + (q * 2 + dt) * 4, 4), vr(P + 4 * q, 4), 0 if q == 0 else vr(O[dt], 4))
    k.wait_lg(("v", 8))
    for dt in range(2):
        k.I("v_mfma_f32_16x16x32_bf16", vr(O[dt], 4), vr(vf + (8 * 2 + dt) * 4, 4), vr(P + 32, 4), vr(O[dt], 4))
    la = k.valloc(); lb = k.valloc()
    k.I("v_mov_b32", v(la), v(O[1])); k.I("v_mov_b32", v(lb), v(O[1]))
    k.I("v_permlane32_swap_b32", v(la), v(lb))
    k.I("v_mov_b32", v(la), v(lb))
    k.I("v_permlane16_swap_b32", v(la), v(lb))
    k.I("v_rcp_f32", v(lb), v(lb))
    for dt in range(2):
        for i in range(4): k.I("v_mul_f32", v(O[dt] + i), v(O[dt] + i), v(lb))
    pk = k.valloc(4)
    for dt in range(2):
        k.I("v_cvt_pk_bf16_f32", v(pk + 2 * dt), v(O[dt]), v(O[dt] + 1))
        k.I("v_cvt_pk_bf16_f32", v(pk + 2 * dt + 1), v(O[dt] + 2), v(O[dt] + 3))
    k.I("v_cmp_gt_u32", "vcc", 3, v(gg))
    k.I("v_cndmask_b32", v(pk + 2), 0, v(pk + 2), "vcc")
    k.I("v_cndmask_b32", v(pk + 3), 0, v(pk + 3), "vcc")
    vo = k.valloc()
    k.I("s_and_b32", s(st0), s(swave), 1)
    k.I("s_lshl_b32", s(st0), s(st0), 8)
    k.I("v_lshlrev_b32", v(vo), 4, v(l15))
    k.I("v_add_u32", v(vo), s(st0), v(vo))
    k.I("v_lshrrev_b32", v(t0), 1, v(gg))
    k.I("v_lshl_add_u32", v(vo), v(t0), 9, v(vo))
    k.I("v_and_b32", v(t0), 1, v(gg))
    k.I("v_lshl_add_u32", v(vo), v(t0), 3, v(vo))
    k.I("s_lshl_b32", s(st0), s(srb), 2)
    k.I("s_lshr_b32", s(st1), s(swave), 1)
    k.I("s_add_u32", s(st0), s(st0), s(st1))
    k.I("s_lshl_b32", s(st0), s(st0), 15)
    k.I("s_lshl_b32", s(st1), s(shd), 11)
    k.I("s_add_u32", s(st0), s(st0), s(st1))
    k.I("s_add_u32", s(soff), s(st0), hex(O_OFF))
    for dt in range(2):
        k.I("buffer_store_dwordx2", vr(pk + 2 * dt, 2), v(vo), sr(sWS, 4), s(soff), mods=f"offen offset:{dt * 1024}")
    stp.stamp(2)
    k.L(done)
    k.I("s_endpgm")
    k.lds = lds; k.threads = 512; k.grid = 256
    return k


def code_prefetch(k, nxt, sidx, tmp_s, tid="v0"):
    if os.environ.get("PFC", "1") != "1": return
    pp = k.salloc(2); sP = k.salloc(4); vT = k.valloc(); vd = k.valloc()
    lab = k.newlabel("pc")
    k.I("s_getpc_b64", sr(pp, 2))
    k.L(lab)
    k.I("s_add_u32", s(pp), s(pp), f"{nxt}-{lab}")
    k.I("s_addc_u32", s(pp + 1), s(pp + 1), 0)
    srd(k, sP, pp, f"{nxt}_end-{nxt}")
    k.I("s_lshl_b32", s(tmp_s), s(sidx), 8)
    k.I("v_add_u32", v(vT), s(tmp_s), tid)
    k.I("v_lshlrev_b32", v(vT), 7, v(vT))
    k.vm("pfc", "buffer_load_dword", v(vd), v(vT), sr(sP, 4), 0, mods="offen")

def l2_prefetch(k, kernarg_off, nbytes, vT128, nthreads, tmp_s):
    if os.environ.get("PFT", "0") != "1": return
    pp = k.salloc(2); sP = k.salloc(4)
    k.I("s_load_dwordx2", sr(pp, 2), "s[0:1]", kernarg_off)
    k.I("s_waitcnt", "lgkmcnt(0)")
    srd(k, sP, pp, nbytes)
    n = -(-nbytes // (128 * nthreads))
    for i in range(n):
        vd = k.valloc()
        k.I("s_mov_b32", s(tmp_s), hex(i * nthreads * 128))
        k.vm("pft", "buffer_load_dword", v(vd), v(vT128), sr(sP, 4), s(tmp_s), mods="offen")

def common_start(k, nwg):
    k.snext = 4; k.vnext = 1
    done = k.newlabel("done")
    k.I("s_cmp_ge_u32", "s2", nwg)
    k.I("s_cbranch_scc1", done)
    R = dict(done=done)
    R["swave"] = k.salloc(); R["st0"] = k.salloc(); R["st1"] = k.salloc(); R["soff"] = k.salloc()
    R["lane"] = k.valloc(); R["t0"] = k.valloc(); R["t1"] = k.valloc(); R["t2"] = k.valloc()
    k.I("v_lshrrev_b32", v(R["t0"]), 6, "v0")
    k.I("v_and_b32", v(R["lane"]), 63, "v0")
    k.I("v_readfirstlane_b32", s(R["swave"]), v(R["t0"]))
    return R

def interleave(k, mf, fl):
    n = len(fl); m = len(mf)
    cuts = [(i * n + m - 1) // m for i in range(m + 1)]
    cuts[-1] = n
    for i in range(m):
        mf[i]()
        for f in fl[cuts[i]:cuts[i + 1]]: f()

def stats_from_packed(k, P, n, accs, accq, tmp):
    for j in range(n):
        t = tmp[j % len(tmp)]
        k.I("v_lshlrev_b32", v(t), 16, v(P + j))
        k.I("v_and_b32", v(t + 1), "0xffff0000", v(P + j))
        if j == 0:
            k.I("v_pk_mul_f32", vr(accq, 2), vr(t, 2), vr(t, 2))
            k.I("v_mov_b32", v(accs), v(t)); k.I("v_mov_b32", v(accs + 1), v(t + 1))
        else:
            k.I("v_pk_add_f32", vr(accs, 2), vr(accs, 2), vr(t, 2))
            k.I("v_pk_fma_f32", vr(accq, 2), vr(t, 2), vr(t, 2), vr(accq, 2))
    k.I("v_add_f32", v(accs), v(accs), v(accs + 1))
    k.I("v_add_f32", v(accq), v(accq), v(accq + 1))
    for r_ in (accs, accq):
        k.I("v_mov_b32", v(r_ + 1), v(r_))
        k.I("v_permlane32_swap_b32", v(r_), v(r_ + 1))
        k.I("v_add_f32", v(r_), v(r_), v(r_ + 1))

def gen_k3(Stamper):
    k = Kernel("k3_wo_kernel")
    WREG = 0; OREG = 58368
    lds = OREG + 65536
    R = common_start(k, 256)
    swave, st0, st1, soff, lane, t0, t1, t2 = (R[x] for x in ("swave", "st0", "st1", "soff", "lane", "t0", "t1", "t2"))
    pX = k.salloc(2); pWo = k.salloc(2); pWin = k.salloc(2); pWS = k.salloc(2)
    k.I("s_load_dwordx2", sr(pX, 2), "s[0:1]", 0)
    k.I("s_load_dwordx2", sr(pWo, 2), "s[0:1]", 16)
    k.I("s_load_dwordx2", sr(pWin, 2), "s[0:1]", 32)
    k.I("s_load_dwordx2", sr(pWS, 2), "s[0:1]", 80)
    sWS = k.salloc(4); sWo = k.salloc(4); sX = k.salloc(4)
    sj = k.salloc(); sidx = k.salloc(); srt = k.salloc(); snt = k.salloc(); sw3 = k.salloc()
    k.I("s_and_b32", s(sj), "s2", 7)
    k.I("s_lshr_b32", s(sidx), "s2", 3)
    k.I("s_and_b32", s(sw3), s(swave), 3)
    stp = Stamper(k, 2, sWS, swave)
    aux = k.newlabel("aux")
    k.I("s_cmp_ge_u32", s(sidx), 28)
    k.I("s_cbranch_scc1", aux)
    k.I("s_mul_i32", s(st0), s(sidx), 37)
    k.I("s_lshr_b32", s(st0), s(st0), 8)
    k.I("s_mul_i32", s(st1), s(st0), 7)
    k.I("s_sub_u32", s(snt), s(sidx), s(st1))
    k.I("s_lshl_b32", s(srt), s(sj), 2)
    k.I("s_add_u32", s(srt), s(srt), s(st0))
    k.I("s_waitcnt", "lgkmcnt(0)")
    srd(k, sWS, pWS, WS_SIZE)
    comp = k.newlabel("compute")
    k.I("s_cmp_lt_u32", s(swave), 4)
    k.I("s_cbranch_scc1", comp)
    vsave = k.vnext
    srd(k, sWo, pWo, 448 * 896)
    v16 = k.valloc(); vWo = k.valloc()
    k.I("v_lshlrev_b32", v(v16), 4, v(lane))
    k.I("v_lshrrev_b32", v(t0), 3, v(lane))
    k.I("v_mul_u32_u24", v(t0), 896, v(t0))
    k.I("v_bfe_u32", v(t1), v(lane), 4, 1)
    k.I("v_lshlrev_b32", v(t1), 2, v(t1))
    k.I("v_and_b32", v(t2), 7, v(lane))
    k.I("v_xor_b32", v(t1), v(t1), v(t2))
    k.I("v_lshl_add_u32", v(vWo), v(t1), 4, v(t0))
    sOb = k.salloc(); sWb = k.salloc(); smO = k.salloc(); smW = k.salloc()
    k.I("s_lshl_b32", s(sOb), s(srt), 16)
    k.I("s_lshl_b32", s(st0), s(sw3), 10)
    k.I("s_add_u32", s(sOb), s(sOb), s(st0))
    k.I("s_add_u32", s(sOb), s(sOb), hex(O_OFF))
    k.I("s_add_u32", s(smO), s(st0), OREG)
    k.I("s_mul_i32", s(sWb), s(sw3), 8 * 896)
    k.I("s_lshl_b32", s(st1), s(snt), 7)
    k.I("s_add_u32", s(sWb), s(sWb), s(st1))
    k.I("s_add_u32", s(smW), s(st0), WREG)
    def issue(c):
        for r2 in range(2):
            k.I("s_add_u32", s(soff), s(sOb), hex(r2 * 32768 + c * 4096))
            k.I("s_add_u32", "m0", s(smO), hex(r2 * 32768 + c * 4096))
            k.vm(("S", c), "buffer_load_dwordx4", v(v16), sr(sWS, 4), s(soff), mods="offen lds")
        for i in range(2):
            k.I("s_add_u32", s(soff), s(sWb), hex((56 * c + 32 * i) * 896))
            k.I("s_add_u32", "m0", s(smW), hex((56 * c + 32 * i) * 128))
            k.vm(("S", c), "buffer_load_dwordx4", v(vWo), sr(sWo, 4), s(soff), mods="offen lds")
    LA = 3
    for c in range(LA): issue(c)
    for c in range(8):
        k.wait_vm(("S", c))
        k.I("s_barrier")
        if c + LA < 8: issue(c + LA)
    k.I("s_endpgm")
    k.L(comp)
    k.vnext = vsave; k.vmq = []; k.lgq = []
    srd(k, sX, pX, 2048 * 896)
    l31 = k.valloc(); hh = k.valloc()
    k.I("v_and_b32", v(l31), 31, v(lane))
    k.I("v_lshrrev_b32", v(hh), 5, v(lane))
    srh = k.salloc(); snh = k.salloc(); sst = k.salloc(); sntile = k.salloc()
    k.I("s_and_b32", s(srh), s(swave), 1)
    k.I("s_lshr_b32", s(snh), s(swave), 1)
    k.I("s_lshl_b32", s(sst), s(srt), 1)
    k.I("s_add_u32", s(sst), s(sst), s(srh))
    k.I("s_lshl_b32", s(sntile), s(snt), 1)
    k.I("s_add_u32", s(sntile), s(sntile), s(snh))
    xr = k.valloc(8, 4); vx = k.valloc()
    k.I("v_mul_u32_u24", v(vx), 896, v(l31))
    k.I("v_lshl_add_u32", v(vx), v(hh), 3, v(vx))
    k.I("s_mul_i32", s(soff), s(sst), 32 * 896)
    k.I("s_lshl_b32", s(st0), s(sntile), 6)
    k.I("s_add_u32", s(soff), s(soff), s(st0))
    for q in range(4):
        k.vm("x", "buffer_load_dwordx2", vr(xr + 2 * q, 2), v(vx), sr(sX, 4), s(soff), mods=f"offen offset:{16 * q}")
    code_prefetch(k, "k4_win_kernel", sidx, st0)
    stp.stamp(0)
    aO = k.valloc(); vW = k.valloc()
    k.I("v_lshlrev_b32", v(aO), 4, v(lane))
    k.I("s_lshl_b32", s(st0), s(srh), 15)
    k.I("s_add_u32", s(st0), s(st0), OREG)
    k.I("v_add_u32", v(aO), s(st0), v(aO))
    k.I("v_bfe_u32", v(t0), v(lane), 2, 2)
    k.I("v_lshl_add_u32", v(t0), v(hh), 3, v(t0))
    k.I("v_lshlrev_b32", v(vW), 7, v(t0))
    k.I("v_bfe_u32", v(t0), v(lane), 4, 1)
    k.I("v_lshlrev_b32", v(t0), 1, v(t0))
    k.I("v_bfe_u32", v(t1), v(lane), 1, 1)
    k.I("v_add_u32", v(t0), v(t0), v(t1))
    k.I("s_lshl_b32", s(st0), s(snh), 2)
    k.I("v_add_u32", v(t0), s(st0), v(t0))
    k.I("v_bfe_u32", v(t1), v(lane), 3, 1)
    k.I("v_lshlrev_b32", v(t1), 2, v(t1))
    k.I("v_xor_b32", v(t0), v(t0), v(t1))
    k.I("v_lshl_add_u32", v(vW), v(t0), 4, v(vW))
    k.I("v_and_b32", v(t0), 1, v(lane))
    k.I("v_lshl_add_u32", v(vW), v(t0), 3, v(vW))
    acc = k.valloc(16, 4)
    NB = 3
    of = [k.valloc(4) for _ in range(NB)]; wf = [k.valloc(4) for _ in range(NB)]
    def rl(ks):
        b = ks % NB
        out = [lambda: k.lg(("f", ks), "ds_read_b128", vr(of[b], 4), v(aO), mods=f"offset:{ks * 1024}")]
        for beta in range(2):
            o = (28 * (ks >> 1) + 16 * (ks & 1) + 4 * beta) * 128
            out.append(lambda o=o, beta=beta: k.lg(("f", ks), "ds_read_b64_tr_b16", vr(wf[b] + 2 * beta, 2), v(vW), mods=f"offset:{o}"))
        return out
    k.I("s_barrier")
    stp.stamp(1)
    for f in rl(0) + rl(1): f()
    for ks in range(32):
        c, j = ks // 4, ks % 4
        b = ks % NB
        k.wait_lg(("f", ks))
        k.I("v_mfma_f32_32x32x16_bf16", vr(acc, 16), vr(wf[b], 4), vr(of[b], 4), 0 if ks == 0 else vr(acc, 16))
        if j == 1 and c < 7: k.I("s_barrier")
        if ks + 2 < 32 and not (j == 1 and False):
            pass
        nxt = ks + 2
        if nxt < 32:
            for f in rl(nxt): f()
    EOF_MARK = None
    stp.stamp(2)
    k.wait_vm("x")
    tmp = [k.valloc(2) for _ in range(4)]
    for q in range(4):
        for d in range(2):
            t = tmp[(2 * q + d) % 4]
            k.I("v_lshlrev_b32", v(t), 16, v(xr + 2 * q + d))
            k.I("v_and_b32", v(t + 1), "0xffff0000", v(xr + 2 * q + d))
            k.I("v_pk_add_f32", vr(acc + 4 * q + 2 * d, 2), vr(acc + 4 * q + 2 * d, 2), vr(t, 2))
    P = k.valloc(8, 4)
    for j in range(8): k.I("v_cvt_pk_bf16_f32", v(P + j), v(acc + 2 * j), v(acc + 2 * j + 1))
    v16 = k.valloc()
    k.I("v_lshlrev_b32", v(v16), 4, v(lane))
    k.I("s_mul_i32", s(soff), s(sst), 28 * 1024)
    k.I("s_lshl_b32", s(st0), s(sntile), 11)
    k.I("s_add_u32", s(soff), s(soff), s(st0))
    k.I("s_add_u32", s(soff), s(soff), hex(H_OFF))
    k.I("buffer_store_dwordx4", vr(P, 4), v(v16), sr(sWS, 4), s(soff), mods="offen")
    k.I("buffer_store_dwordx4", vr(P + 4, 4), v(v16), sr(sWS, 4), s(soff), mods="offen offset:1024")
    accs = k.valloc(2); accq = k.valloc(2)
    stats_from_packed(k, P, 8, accs, accq, tmp)
    k.I("v_mov_b32", v(accs + 1), v(accq))
    vh = k.valloc()
    k.I("v_mul_u32_u24", v(vh), 112, v(l31))
    k.I("s_mul_i32", s(soff), s(sst), 32 * 112)
    k.I("s_lshl_b32", s(st0), s(sntile), 3)
    k.I("s_add_u32", s(soff), s(soff), s(st0))
    k.I("s_add_u32", s(soff), s(soff), hex(HS_OFF))
    k.I("s_mov_b32", "exec_hi", 0)
    k.I("buffer_store_dwordx2", vr(accs, 2), v(vh), sr(sWS, 4), s(soff), mods="offen")
    stp.stamp(3)
    k.I("s_endpgm")
    k.L(aux)
    k.vnext = vsave; k.vmq = []; k.lgq = []
    sa = k.salloc(); sWin = k.salloc(4)
    k.I("s_sub_u32", s(sa), s(sidx), 28)
    k.I("s_lshl_b32", s(sa), s(sa), 3)
    k.I("s_add_u32", s(sa), s(sa), s(sj))
    k.I("s_waitcnt", "lgkmcnt(0)")
    srd(k, sWS, pWS, WS_SIZE)
    ff = k.valloc(4)
    for i in range(4): k.I("v_mov_b32", v(ff + i), -1)
    k.I("v_lshlrev_b32", v(t1), 4, "v0")
    k.I("v_mov_b32", v(t2), "0x7fffff00")
    k.I("v_cmp_gt_u32", "vcc", 448, "v0")
    k.I("v_cndmask_b32", v(t1), v(t2), v(t1), "vcc")
    k.I("s_mul_i32", s(st0), s(sa), 7168)
    k.I("s_add_u32", s(st0), s(st0), hex(EX_OFF))
    k.I("buffer_store_dwordx4", vr(ff, 4), v(t1), sr(sWS, 4), s(st0), mods="offen")
    k.I("s_cmp_ge_u32", s(sa), 28)
    k.I("s_cbranch_scc1", R["done"])
    srd(k, sWin, pWin, 448 * 3584)
    vg = k.valloc()
    k.I("v_lshrrev_b32", v(t0), 3, v(lane))
    k.I("v_mul_u32_u24", v(t0), 3584, v(t0))
    k.I("v_bfe_u32", v(t1), v(lane), 4, 1)
    k.I("v_lshlrev_b32", v(t1), 2, v(t1))
    k.I("v_and_b32", v(t2), 7, v(lane))
    k.I("v_xor_b32", v(t1), v(t1), v(t2))
    k.I("v_lshl_add_u32", v(vg), v(t1), 4, v(t0))
    sb = k.salloc(); sm = k.salloc()
    k.I("s_mul_i32", s(sb), s(swave), 56 * 3584)
    k.I("s_lshl_b32", s(st0), s(sa), 7)
    k.I("s_add_u32", s(sb), s(sb), s(st0))
    k.I("s_mul_i32", s(sm), s(swave), 56 * 128)
    for i in range(7):
        k.I("s_add_u32", s(soff), s(sb), hex(i * 8 * 3584))
        k.I("s_add_u32", "m0", s(sm), hex(i * 1024))
        k.I("buffer_load_dwordx4", v(vg), sr(sWin, 4), s(soff), mods="offen lds")
    z = k.valloc(); TB = 57344
    k.I("v_mov_b32", v(z), 0)
    k.I("v_lshlrev_b32", v(t0), 2, v(lane))
    k.I("v_add_u32", v(t0), TB, v(t0))
    k.I("ds_write_b32", v(t0), v(z))
    gg = k.valloc(); vB = k.valloc(); ones = k.valloc(4)
    k.I("v_lshrrev_b32", v(gg), 4, v(lane))
    k.I("v_bfe_u32", v(t0), v(lane), 2, 2)
    k.I("v_lshl_add_u32", v(t0), v(gg), 3, v(t0))
    k.I("v_lshlrev_b32", v(vB), 7, v(t0))
    k.I("v_bfe_u32", v(t0), v(lane), 1, 1)
    k.I("s_lshl_b32", s(st0), s(sw3), 1)
    k.I("v_add_u32", v(t0), s(st0), v(t0))
    k.I("v_bfe_u32", v(t1), v(lane), 3, 1)
    k.I("v_lshlrev_b32", v(t1), 2, v(t1))
    k.I("v_xor_b32", v(t0), v(t0), v(t1))
    k.I("v_lshl_add_u32", v(vB), v(t0), 4, v(vB))
    k.I("v_and_b32", v(t0), 1, v(lane))
    k.I("v_lshl_add_u32", v(vB), v(t0), 3, v(vB))
    k.I("s_lshr_b32", s(st0), s(swave), 2)
    k.I("s_mul_i32", s(st0), s(st0), 224 * 128)
    k.I("v_add_u32", v(vB), s(st0), v(vB))
    for i in range(4): k.I("v_mov_b32", v(ones + i), "0x3f803f80")
    k.I("s_waitcnt", "vmcnt(0) lgkmcnt(0)")
    k.I("s_barrier")
    bf = [k.valloc(4) for _ in range(7)]
    for kk in range(7):
        for beta in range(2):
            k.I("ds_read_b64_tr_b16", vr(bf[kk] + 2 * beta, 2), v(vB), mods=f"offset:{(32 * kk + 4 * beta) * 128}")
    ca = k.valloc(4)
    k.I("s_waitcnt", "lgkmcnt(0)")
    for kk in range(7):
        k.I("v_mfma_f32_16x16x32_bf16", vr(ca, 4), vr(ones, 4), vr(bf[kk], 4), 0 if kk == 0 else vr(ca, 4))
    k.I("v_and_b32", v(t0), 15, v(lane))
    k.I("s_lshl_b32", s(st0), s(sw3), 6)
    k.I("s_add_u32", s(st0), s(st0), TB)
    k.I("v_lshlrev_b32", v(t0), 2, v(t0))
    k.I("v_add_u32", v(t0), s(st0), v(t0))
    k.I("s_mov_b32", "exec_lo", "0xffff")
    k.I("s_mov_b32", "exec_hi", 0)
    k.I("ds_add_f32", v(t0), v(ca))
    k.I("s_mov_b64", "exec", -1)
    k.I("s_waitcnt", "lgkmcnt(0)")
    k.I("s_barrier")
    k.I("s_cmp_lg_u32", s(swave), 0)
    k.I("s_cbranch_scc1", R["done"])
    k.I("v_lshlrev_b32", v(t0), 2, v(lane))
    k.I("v_add_u32", v(t1), TB, v(t0))
    k.I("ds_read_b32", v(z), v(t1))
    k.I("s_lshl_b32", s(st0), s(sa), 8)
    k.I("s_add_u32", s(st0), s(st0), hex(CW_OFF))
    k.I("s_waitcnt", "lgkmcnt(0)")
    k.I("buffer_store_dword", v(z), v(t0), sr(sWS, 4), s(st0), mods="offen")
    k.L(R["done"])
    k.I("s_endpgm")
    k.lds = lds; k.threads = 512; k.grid = 256
    return k


GELU_C0 = -2.0 * math.sqrt(2.0 / math.pi) * math.log2(math.e)
GELU_C1 = GELU_C0 * 0.044715

def gen_k4(Stamper):
    k = Kernel("k4_win_kernel")
    NS = 4; SLOT = 32768; TRB = NS * SLOT
    STB = TRB
    lds = TRB + 4096
    R = common_start(k, 224)
    swave, st0, st1, soff, lane, t0, t1, t2 = (R[x] for x in ("swave", "st0", "st1", "soff", "lane", "t0", "t1", "t2"))
    pWin = k.salloc(2); pWS = k.salloc(2)
    k.I("s_load_dwordx2", sr(pWin, 2), "s[0:1]", 32)
    k.I("s_load_dwordx2", sr(pWS, 2), "s[0:1]", 80)
    sWS = k.salloc(4); sWin = k.salloc(4)
    sj = k.salloc(); sidx = k.salloc(); srb = k.salloc(); sct = k.salloc(); sw3 = k.salloc()
    k.I("s_and_b32", s(sj), "s2", 7)
    k.I("s_lshr_b32", s(sidx), "s2", 3)
    k.I("s_and_b32", s(sw3), s(swave), 3)
    k.I("s_cmp_ge_u32", s(sidx), 14)
    k.I("s_cselect_b32", s(st0), 1, 0)
    k.I("s_mul_i32", s(st1), s(st0), 14)
    k.I("s_sub_u32", s(sct), s(sidx), s(st1))
    k.I("s_lshl_b32", s(srb), s(sj), 1)
    k.I("s_add_u32", s(srb), s(srb), s(st0))
    stp = Stamper(k, 3, sWS, swave)
    k.I("s_waitcnt", "lgkmcnt(0)")
    srd(k, sWS, pWS, WS_SIZE)
    comp = k.newlabel("compute")
    k.I("s_cmp_lt_u32", s(swave), 4)
    k.I("s_cbranch_scc1", comp)
    vsave = k.vnext
    srd(k, sWin, pWin, 448 * 3584)
    v16 = k.valloc(); vWo = k.valloc()
    k.I("v_lshlrev_b32", v(v16), 4, v(lane))
    k.I("v_lshrrev_b32", v(t0), 4, v(lane))
    k.I("v_lshlrev_b32", v(t1), 2, v(t0))
    k.I("v_and_b32", v(t2), 15, v(lane))
    k.I("v_xor_b32", v(t1), v(t1), v(t2))
    k.I("v_mul_u32_u24", v(vWo), 3584, v(t0))
    k.I("v_and_b32", v(t2), 7, v(t1))
    k.I("v_lshl_add_u32", v(vWo), v(t2), 4, v(vWo))
    k.I("v_add_u32", v(t2), 1792, v(vWo))
    k.I("v_cmp_gt_u32", "vcc", 8, v(t1))
    k.I("v_cndmask_b32", v(vWo), v(vWo), v(t2), "vcc")
    sHb = k.salloc(); sWb = k.salloc(); smH = k.salloc(); smW = k.salloc()
    k.I("s_lshl_b32", s(st0), s(srb), 2)
    k.I("s_add_u32", s(st0), s(st0), s(sw3))
    k.I("s_mul_i32", s(sHb), s(st0), 28 * 1024)
    k.I("s_add_u32", s(sHb), s(sHb), hex(H_OFF))
    k.I("s_lshl_b32", s(smH), s(sw3), 12)
    k.I("s_mul_i32", s(sWb), s(sw3), 16 * 3584)
    k.I("s_lshl_b32", s(st1), s(sct), 7)
    k.I("s_add_u32", s(sWb), s(sWb), s(st1))
    k.I("s_add_u32", s(smW), s(smH), 16384)
    def issue(c):
        sl = (c % NS) * SLOT
        for i in range(4):
            k.I("s_add_u32", s(soff), s(sHb), hex((4 * c + i) * 1024))
            k.I("s_add_u32", "m0", s(smH), hex(sl + i * 1024))
            k.vm(("S", c), "buffer_load_dwordx4", v(v16), sr(sWS, 4), s(soff), mods="offen lds")
        for i in range(4):
            k.I("s_add_u32", s(soff), s(sWb), hex((64 * c + 4 * i) * 3584))
            k.I("s_add_u32", "m0", s(smW), hex(sl + i * 1024))
            k.vm(("S", c), "buffer_load_dwordx4", v(vWo), sr(sWin, 4), s(soff), mods="offen lds")
    issue(0); issue(1)
    for c in range(7):
        k.wait_vm(("S", c))
        k.I("s_barrier")
        if c == 0: issue(2); issue(3)
        elif c + 2 < 7 and c >= 2: issue(c + 2)
    if os.environ.get("PFT", "0") == "1":
        pp = k.salloc(2); sP = k.salloc(4); vT = k.valloc(); vd = k.valloc(2)
        k.I("s_load_dwordx2", sr(pp, 2), "s[0:1]", 40)
        k.I("s_lshl_b32", s(st0), s(sidx), 8)
        k.I("v_subrev_u32", v(vT), 256, "v0")
        k.I("v_add_u32", v(vT), s(st0), v(vT))
        k.I("s_waitcnt", "lgkmcnt(0)")
        srd(k, sP, pp, 2048 * 4096)
        k.I("s_lshr_b32", s(st0), s(sj), 1)
        k.I("s_lshl_b32", s(st0), s(st0), 21)
        k.I("s_and_b32", s(st1), s(sj), 1)
        k.I("s_lshl_b32", s(st1), s(st1), 11)
        k.I("s_add_u32", s(st0), s(st0), s(st1))
        for i in range(2):
            k.I("v_add_u32", v(t0), 7168 * i, v(vT))
            k.I("v_lshrrev_b32", v(t1), 4, v(t0))
            k.I("v_lshlrev_b32", v(t1), 12, v(t1))
            k.I("v_and_b32", v(t2), 15, v(t0))
            k.I("v_lshl_add_u32", v(t1), v(t2), 7, v(t1))
            if i == 1:
                k.I("v_mov_b32", v(t2), "0x7fffff00")
                k.I("v_cmp_gt_u32", "vcc", 8192, v(t0))
                k.I("v_cndmask_b32", v(t1), v(t2), v(t1), "vcc")
            k.I("buffer_load_dword", v(vd + i), v(t1), sr(sP, 4), s(st0), mods="offen")
    k.I("s_barrier")
    k.I("s_endpgm")
    k.L(comp)
    k.vnext = vsave; k.vmq = []; k.lgq = []
    l31 = k.valloc(); hh = k.valloc()
    k.I("v_and_b32", v(l31), 31, v(lane))
    k.I("v_lshrrev_b32", v(hh), 5, v(lane))
    srh = k.salloc(); sch = k.salloc(); sst = k.salloc()
    k.I("s_and_b32", s(srh), s(swave), 1)
    k.I("s_lshr_b32", s(sch), s(swave), 1)
    k.I("s_lshl_b32", s(sst), s(srb), 2)
    k.I("s_lshl_b32", s(st0), s(srh), 1)
    k.I("s_add_u32", s(sst), s(sst), s(st0))
    hs = [k.valloc(16, 4) for _ in range(2)]
    vh = k.valloc()
    k.I("v_mul_u32_u24", v(vh), 112, v(l31))
    k.I("v_lshl_add_u32", v(vh), v(hh), 6, v(vh))
    for t in range(2):
        k.I("s_add_u32", s(st0), s(sst), t)
        k.I("s_mul_i32", s(soff), s(st0), 32 * 112)
        k.I("s_add_u32", s(soff), s(soff), hex(HS_OFF))
        for i in range(4):
            k.vm("hs", "buffer_load_dwordx4", vr(hs[t] + 4 * i, 4), v(vh), sr(sWS, 4), s(soff), mods=f"offen offset:{16 * i}")
    cw = [k.valloc(16, 4) for _ in range(2)]
    vc = k.valloc()
    k.I("v_lshlrev_b32", v(vc), 4, v(hh))
    k.I("s_lshl_b32", s(st0), s(sct), 8)
    k.I("s_lshl_b32", s(st1), s(sch), 7)
    k.I("s_add_u32", s(st0), s(st0), s(st1))
    for z in range(2):
        k.I("s_add_u32", s(soff), s(st0), hex(CW_OFF + (896 * 4 if z == 0 else 0)))
        for q in range(4):
            k.vm("cw", "buffer_load_dwordx4", vr(cw[z] + 4 * q, 4), v(vc), sr(sWS, 4), s(soff), mods=f"offen offset:{32 * q}")
    if os.environ.get("PF2", "0") == "1":
        pp = k.salloc(2); sP = k.salloc(4); vT = k.valloc(); vd = k.valloc(2)
        k.I("s_load_dwordx2", sr(pp, 2), "s[0:1]", 40)
        k.I("s_lshl_b32", s(st0), s(sidx), 8)
        k.I("v_add_u32", v(vT), s(st0), "v0")
        k.I("s_waitcnt", "lgkmcnt(0)")
        srd(k, sP, pp, 2048 * 4096)
        k.I("s_lshr_b32", s(st0), s(sj), 1)
        k.I("s_lshl_b32", s(st0), s(st0), 21)
        k.I("s_and_b32", s(st1), s(sj), 1)
        k.I("s_lshl_b32", s(st1), s(st1), 11)
        k.I("s_add_u32", s(st0), s(st0), s(st1))
        for i in range(2):
            k.I("v_add_u32", v(t0), 7168 * i, v(vT))
            k.I("v_lshrrev_b32", v(t1), 4, v(t0))
            k.I("v_lshlrev_b32", v(t1), 12, v(t1))
            k.I("v_and_b32", v(t2), 15, v(t0))
            k.I("v_lshl_add_u32", v(t1), v(t2), 7, v(t1))
            if i == 1:
                k.I("v_mov_b32", v(t2), "0x7fffff00")
                k.I("v_cmp_gt_u32", "vcc", 8192, v(t0))
                k.I("v_cndmask_b32", v(t1), v(t2), v(t1), "vcc")
            k.vm("pf", "buffer_load_dword", v(vd + i), v(t1), sr(sP, 4), s(st0), mods="offen")
    code_prefetch(k, "k5_sp_kernel", sidx, st0)
    stp.stamp(0)
    aH = k.valloc(); vW = [k.valloc(), k.valloc()]
    k.I("v_lshlrev_b32", v(aH), 4, v(lane))
    k.I("s_lshl_b32", s(st0), s(srh), 13)
    k.I("v_add_u32", v(aH), s(st0), v(aH))
    k.I("v_bfe_u32", v(t0), v(lane), 2, 2)
    k.I("v_lshl_add_u32", v(t1), v(hh), 2, v(t0))
    k.I("v_lshlrev_b32", v(t1), 8, v(t1))
    k.I("v_add_u32", v(t1), 16384, v(t1))
    k.I("v_bfe_u32", v(t2), v(lane), 4, 1)
    k.I("v_lshlrev_b32", v(t2), 1, v(t2))
    k.I("v_bfe_u32", v(vW[0]), v(lane), 1, 1)
    k.I("v_add_u32", v(t2), v(t2), v(vW[0]))
    k.I("s_lshl_b32", s(st0), s(sch), 2)
    k.I("v_add_u32", v(t2), s(st0), v(t2))
    k.I("v_lshlrev_b32", v(t0), 2, v(t0))
    k.I("v_xor_b32", v(vW[0]), v(t2), v(t0))
    k.I("v_add_u32", v(t2), 8, v(t2))
    k.I("v_xor_b32", v(vW[1]), v(t2), v(t0))
    k.I("v_and_b32", v(t2), 1, v(lane))
    for z in range(2):
        k.I("v_lshl_add_u32", v(vW[z]), v(vW[z]), 4, v(t1))
        k.I("v_lshl_add_u32", v(vW[z]), v(t2), 3, v(vW[z]))
    aH2 = k.valloc(); vW2 = [k.valloc(), k.valloc()]
    k.I("v_add_u32", v(aH2), 65536, v(aH))
    for z in range(2): k.I("v_add_u32", v(vW2[z]), 65536, v(vW[z]))
    acc = [[k.valloc(16, 4) for _ in range(2)] for _ in range(2)]
    vmark = k.vnext
    NB = 3
    hf = [[k.valloc(4) for _ in range(2)] for _ in range(NB)]
    wf = [[k.valloc(4) for _ in range(2)] for _ in range(NB)]
    def rl(ks):
        c, j = ks // 4, ks % 4
        b = ks % NB
        sl = (c % NS) * SLOT
        hi = sl >= 65536
        so = sl - (65536 if hi else 0)
        out = []
        for t in range(2):
            out.append(lambda t=t: k.lg(("f", ks), "ds_read_b128", vr(hf[b][t], 4), v(aH2 if hi else aH), mods=f"offset:{so + t * 4096 + j * 1024}"))
        for z in range(2):
            for beta in range(2):
                o = so + (16 * j + 8 * beta) * 256
                out.append(lambda o=o, z=z, beta=beta: k.lg(("f", ks), "ds_read_b64_tr_b16", vr(wf[b][z] + 2 * beta, 2), v((vW2 if hi else vW)[z]), mods=f"offset:{o}"))
        return out
    k.I("s_barrier")
    stp.stamp(1)
    for f in rl(0) + rl(1): f()
    for ks in range(28):
        c, j = ks // 4, ks % 4
        b = ks % NB
        k.wait_lg(("f", ks))
        mf = []
        for z in range(2):
            for t in range(2):
                mf.append(lambda z=z, t=t: k.I("v_mfma_f32_32x32x16_bf16", vr(acc[z][t], 16), vr(wf[b][z], 4), vr(hf[b][t], 4), 0 if ks == 0 else vr(acc[z][t], 16)))
        if j == 2 and c < 6:
            pass
        fl = rl(ks + 2) if ks + 2 < 28 else []
        if j == 2 and ks + 2 < 28:
            k.I("s_barrier")
        interleave(k, mf, fl)
    stp.stamp(2)
    k.vnext = vmark
    k.wait_vm(["hs", "cw"])
    rr = [k.valloc(2) for _ in range(2)]; nm = [k.valloc(2) for _ in range(2)]
    c0r = [k.valloc(2) for _ in range(2)]; c1r = [k.valloc(2) for _ in range(2)]
    k.I("v_cmp_eq_u32", "vcc", 0, v(hh))
    for t in range(2):
        H = hs[t]
        for i in range(12, 16): k.I("v_cndmask_b32", v(H + i), 0, v(H + i), "vcc")
        for i in range(4): k.I("v_pk_add_f32", vr(H + 2 * i, 2), vr(H + 2 * i, 2), vr(H + 8 + 2 * i, 2))
        for i in range(2): k.I("v_pk_add_f32", vr(H + 2 * i, 2), vr(H + 2 * i, 2), vr(H + 4 + 2 * i, 2))
        k.I("v_pk_add_f32", vr(H, 2), vr(H, 2), vr(H + 2, 2))
        for e in range(2):
            k.I("v_mov_b32", v(H + 2), v(H + e))
            k.I("v_permlane32_swap_b32", v(H + e), v(H + 2))
            k.I("v_add_f32", v(H + e), v(H + e), v(H + 2))
        k.I("v_mul_f32", v(nm[t]), hex(f32(-1.0 / 448)), v(H))
        k.I("v_mul_f32", v(H + 1), hex(f32(1.0 / 448)), v(H + 1))
        k.I("v_fma_f32", v(H + 1), f"-{v(nm[t])}", v(nm[t]), v(H + 1))
        k.I("v_max_f32", v(H + 1), 0, v(H + 1))
        k.I("v_add_f32", v(H + 1), hex(f32(1e-5)), v(H + 1))
        k.I("v_rsq_f32", v(rr[t]), v(H + 1))
        k.I("v_mul_f32", v(c0r[t]), hex(f32(GELU_C0)), v(rr[t]))
        k.I("v_mul_f32", v(c1r[t]), v(rr[t]), v(rr[t]))
        k.I("v_mul_f32", v(c1r[t]), v(c1r[t]), v(rr[t]))
        k.I("v_mul_f32", v(c1r[t]), hex(f32(GELU_C1)), v(c1r[t]))
    norh = k.newlabel("norh")
    k.I("s_or_b32", s(st0), s(sct), s(sch))
    k.I("s_cmp_lg_u32", s(st0), 0)
    k.I("s_cbranch_scc1", norh)
    k.I("v_lshlrev_b32", v(t0), 2, v(l31))
    for t in range(2):
        k.I("s_add_u32", s(st0), s(sst), t)
        k.I("s_lshl_b32", s(st0), s(st0), 7)
        k.I("s_add_u32", s(st0), s(st0), hex(RH_OFF))
        k.I("buffer_store_dword", v(rr[t]), v(t0), sr(sWS, 4), s(st0), mods="offen")
    k.L(norh)
    tp = [k.valloc(2) for _ in range(4)]
    def gelu_tile(A, z, t):
        for j in range(8):
            k.I("v_pk_fma_f32", vr(A + 2 * j, 2), vr(cw[z] + 2 * j, 2), vr(nm[t], 2), vr(A + 2 * j, 2), mods="op_sel_hi:[1,0,1]")
        for j0 in range(0, 8, 4):
            for j in range(j0, j0 + 4):
                T = tp[j - j0]
                k.I("v_pk_mul_f32", vr(T, 2), vr(A + 2 * j, 2), vr(A + 2 * j, 2))
            for j in range(j0, j0 + 4):
                T = tp[j - j0]
                k.I("v_pk_fma_f32", vr(T, 2), vr(T, 2), vr(c1r[t], 2), vr(c0r[t], 2), mods="op_sel_hi:[1,0,0]")
            for j in range(j0, j0 + 4):
                T = tp[j - j0]
                k.I("v_pk_mul_f32", vr(T, 2), vr(T, 2), vr(A + 2 * j, 2))
            for j in range(j0, j0 + 4):
                T = tp[j - j0]
                k.I("v_exp_f32", v(T), v(T)); k.I("v_exp_f32", v(T + 1), v(T + 1))
            for j in range(j0, j0 + 4):
                T = tp[j - j0]
                k.I("v_pk_add_f32", vr(T, 2), vr(T, 2), "1.0", mods="op_sel_hi:[1,0]")
            for j in range(j0, j0 + 4):
                T = tp[j - j0]
                k.I("v_rcp_f32", v(T), v(T)); k.I("v_rcp_f32", v(T + 1), v(T + 1))
            for j in range(j0, j0 + 4):
                T = tp[j - j0]
                k.I("v_pk_mul_f32", vr(A + 2 * j, 2), vr(A + 2 * j, 2), vr(T, 2))
    accs = [k.valloc(2) for _ in range(2)]; accq = [k.valloc(2) for _ in range(2)]
    for t in range(2):
        A = acc[0][t]
        gelu_tile(A, 0, t)
        for j in range(8):
            k.I("v_pk_mul_f32", vr(A + 2 * j, 2), vr(A + 2 * j, 2), vr(rr[t], 2), mods="op_sel_hi:[1,0]")
        k.I("v_pk_add_f32", vr(accs[t], 2), vr(A, 2), vr(A + 2, 2))
        k.I("v_pk_mul_f32", vr(accq[t], 2), vr(A, 2), vr(A, 2))
        k.I("v_pk_fma_f32", vr(accq[t], 2), vr(A + 2, 2), vr(A + 2, 2), vr(accq[t], 2))
        for j in range(2, 8):
            k.I("v_pk_add_f32", vr(accs[t], 2), vr(accs[t], 2), vr(A + 2 * j, 2))
            k.I("v_pk_fma_f32", vr(accq[t], 2), vr(A + 2 * j, 2), vr(A + 2 * j, 2), vr(accq[t], 2))
        k.I("v_add_f32", v(accs[t]), v(accs[t]), v(accs[t] + 1))
        k.I("v_add_f32", v(accs[t] + 1), v(accq[t]), v(accq[t] + 1))
        for e in range(2):
            k.I("v_mov_b32", v(accq[t]), v(accs[t] + e))
            k.I("v_permlane32_swap_b32", v(accs[t] + e), v(accq[t]))
            k.I("v_add_f32", v(accs[t] + e), v(accs[t] + e), v(accq[t]))
    vs = k.valloc()
    k.I("v_lshlrev_b32", v(vs), 3, v(l31))
    k.I("s_lshl_b32", s(st0), s(srh), 9)
    k.I("s_add_u32", s(st0), s(st0), STB)
    k.I("v_add_u32", v(vs), s(st0), v(vs))
    k.I("s_lshl_b32", s(st0), s(sch), 10)
    k.I("v_add_u32", v(t0), s(st0), v(vs))
    for t in range(2):
        k.I("ds_write_b64", v(t0), vr(accs[t], 2), mods=f"offset:{t * 256}")
    k.I("s_waitcnt", "lgkmcnt(0)")
    k.I("s_barrier")
    pub = k.newlabel("nopub")
    k.I("s_cmp_lg_u32", s(sch), 0)
    k.I("s_cbranch_scc1", pub)
    oth = k.valloc(4)
    for t in range(2):
        k.I("ds_read_b64", vr(oth + 2 * t, 2), v(vs), mods=f"offset:{1024 + t * 256}")
    k.I("s_waitcnt", "lgkmcnt(0)")
    for t in range(2):
        k.I("v_pk_add_f32", vr(oth + 2 * t, 2), vr(oth + 2 * t, 2), vr(accs[t], 2))
        k.I("v_mov_b32", v(t1), "0x7fc00000")
        k.I("v_cmp_eq_u32", "vcc", -1, v(oth + 2 * t + 1))
        k.I("v_cndmask_b32", v(oth + 2 * t + 1), v(oth + 2 * t + 1), v(t1), "vcc")
    ve = k.valloc()
    k.I("v_mul_u32_u24", v(ve), 112, v(l31))
    k.I("s_mul_i32", s(soff), s(sst), 32 * 112)
    k.I("s_lshl_b32", s(st0), s(sct), 3)
    k.I("s_add_u32", s(soff), s(soff), s(st0))
    k.I("s_add_u32", s(soff), s(soff), hex(EX_OFF))
    k.I("s_mov_b32", "exec_hi", 0)
    for t in range(2):
        k.I("buffer_store_dwordx2", vr(oth + 2 * t, 2), v(ve), sr(sWS, 4), s(soff), mods=f"offen offset:{t * 32 * 112} sc0 sc1")
    k.I("s_mov_b64", "exec", -1)
    k.L(pub)
    stp.stamp(3)
    v16 = k.valloc()
    k.I("v_lshlrev_b32", v(v16), 4, v(lane))
    P = [k.valloc(8, 4) for _ in range(2)]
    sft = k.salloc()
    k.I("s_lshl_b32", s(sft), s(sct), 1)
    k.I("s_add_u32", s(sft), s(sft), s(sch))
    for t in range(2):
        A = acc[1][t]
        gelu_tile(A, 1, t)
        for j in range(8): k.I("v_cvt_pk_bf16_f32", v(P[t] + j), v(A + 2 * j), v(A + 2 * j + 1))
        k.I("s_add_u32", s(st0), s(sst), t)
        k.I("s_mul_i32", s(soff), s(st0), 56 * 1024)
        k.I("s_lshl_b32", s(st0), s(sft), 11)
        k.I("s_add_u32", s(soff), s(soff), s(st0))
        k.I("s_add_u32", s(soff), s(soff), hex(Z1_OFF))
        k.I("buffer_store_dwordx4", vr(P[t], 4), v(v16), sr(sWS, 4), s(soff), mods="offen")
        k.I("buffer_store_dwordx4", vr(P[t] + 4, 4), v(v16), sr(sWS, 4), s(soff), mods="offen offset:1024")
    stp.stamp(4)
    ex = hs
    k.I("v_mul_u32_u24", v(vh), 112, v(l31))
    k.I("v_lshl_add_u32", v(vh), v(hh), 6, v(vh))
    k.I("s_mul_i32", s(soff), s(sst), 32 * 112)
    k.I("s_add_u32", s(soff), s(soff), hex(EX_OFF))
    scount = k.salloc(); sbad = k.salloc(2)
    k.I("s_mov_b32", s(scount), 0)
    poll = k.newlabel("poll"); pdone = k.newlabel("pdone")
    k.L(poll)
    for t in range(2):
        for i in range(4):
            k.I("buffer_load_dwordx4", vr(ex[t] + 4 * i, 4), v(vh), sr(sWS, 4), s(soff), mods=f"offen offset:{t * 32 * 112 + 16 * i} sc0 sc1")
    k.I("s_waitcnt", "vmcnt(0)")
    k.I("v_cmp_eq_u32", "vcc", 0, v(hh))
    for t in range(2):
        for i in range(12, 16): k.I("v_cndmask_b32", v(ex[t] + i), 0, v(ex[t] + i), "vcc")
    k.I("v_max_u32", v(t0), v(ex[0] + 1), v(ex[0] + 3))
    for t in range(2):
        for i in range(8):
            if t == 0 and i < 2: continue
            k.I("v_max_u32", v(t0), v(t0), v(ex[t] + 2 * i + 1))
    k.I("v_cmp_eq_u32", "vcc", -1, v(t0))
    k.I("s_add_u32", s(scount), s(scount), 1)
    k.I("s_cmp_eq_u64", "vcc", 0)
    k.I("s_cbranch_scc1", pdone)
    k.I("s_cmp_lt_u32", s(scount), 0x40000)
    k.I("s_cbranch_scc0", pdone)
    k.I("s_sleep", 1)
    k.I("s_branch", poll)
    k.L(pdone)
    sc_ = [k.valloc(2) for _ in range(2)]; zm = [k.valloc(2) for _ in range(2)]
    for t in range(2):
        H = ex[t]
        for i in range(4): k.I("v_pk_add_f32", vr(H + 2 * i, 2), vr(H + 2 * i, 2), vr(H + 8 + 2 * i, 2))
        for i in range(2): k.I("v_pk_add_f32", vr(H + 2 * i, 2), vr(H + 2 * i, 2), vr(H + 4 + 2 * i, 2))
        k.I("v_pk_add_f32", vr(H, 2), vr(H, 2), vr(H + 2, 2))
        for e in range(2):
            k.I("v_mov_b32", v(H + 2), v(H + e))
            k.I("v_permlane32_swap_b32", v(H + e), v(H + 2))
            k.I("v_add_f32", v(H + e), v(H + e), v(H + 2))
        k.I("v_mul_f32", v(zm[t]), hex(f32(-1.0 / 896)), v(H))
        k.I("v_mul_f32", v(H + 1), hex(f32(1.0 / 896)), v(H + 1))
        k.I("v_fma_f32", v(H + 1), f"-{v(zm[t])}", v(zm[t]), v(H + 1))
        k.I("v_max_f32", v(H + 1), 0, v(H + 1))
        k.I("v_add_f32", v(H + 1), hex(f32(1e-5)), v(H + 1))
        k.I("v_rsq_f32", v(sc_[t]), v(H + 1))
        k.I("v_mul_f32", v(zm[t]), v(zm[t]), v(sc_[t]))
    TW = 0
    vt = k.valloc(); vtr = k.valloc()
    k.I("v_lshlrev_b32", v(vt), 6, v(l31))
    k.I("v_lshl_add_u32", v(vt), v(hh), 3, v(vt))
    k.I("s_lshl_b32", s(st0), s(swave), 12)
    k.I("v_add_u32", v(vt), s(st0), v(vt))
    for t in range(2):
        A = acc[0][t]
        for j in range(8):
            k.I("v_pk_fma_f32", vr(A + 2 * j, 2), vr(A + 2 * j, 2), vr(sc_[t], 2), vr(zm[t], 2), mods="op_sel_hi:[1,0,0]")
        for j in range(8): k.I("v_cvt_pk_bf16_f32", v(P[t] + j), v(A + 2 * j), v(A + 2 * j + 1))
        for q in range(4):
            k.I("ds_write_b64", v(vt), vr(P[t] + 2 * q, 2), mods=f"offset:{t * 2048 + 16 * q}")
    k.I("v_bfe_u32", v(t0), v(lane), 2, 2)
    k.I("v_lshl_add_u32", v(t0), v(hh), 3, v(t0))
    k.I("v_lshlrev_b32", v(vtr), 6, v(t0))
    k.I("v_bfe_u32", v(t0), v(lane), 4, 1)
    k.I("v_lshl_add_u32", v(vtr), v(t0), 5, v(vtr))
    k.I("v_and_b32", v(t0), 3, v(lane))
    k.I("v_lshl_add_u32", v(vtr), v(t0), 3, v(vtr))
    k.I("s_lshl_b32", s(st0), s(swave), 12)
    k.I("v_add_u32", v(vtr), s(st0), v(vtr))
    k.I("s_waitcnt", "lgkmcnt(0)")
    Z = cw[0]
    for ks in range(4):
        for beta in range(2):
            k.I("ds_read_b64_tr_b16", vr(Z + 4 * ks + 2 * beta, 2), v(vtr), mods=f"offset:{(16 * ks + 4 * beta) * 64}")
    k.I("s_mul_i32", s(soff), s(sft), ZS)
    k.I("s_lshr_b32", s(st0), s(sst), 5)
    k.I("s_mul_i32", s(st0), s(st0), ZK)
    k.I("s_add_u32", s(soff), s(soff), s(st0))
    k.I("s_and_b32", s(st0), s(sst), 31)
    k.I("s_lshl_b32", s(st0), s(st0), 11)
    k.I("s_add_u32", s(soff), s(soff), s(st0))
    k.I("s_add_u32", s(soff), s(soff), hex(Z2_OFF))
    for ks in range(4):
        k.I("s_waitcnt", f"lgkmcnt({6 - 2 * ks})")
        k.I("buffer_store_dwordx4", vr(Z + 4 * ks, 4), v(v16), sr(sWS, 4), s(soff), mods=f"offen offset:{ks * 1024}")
    stp.stamp(5)
    k.L(R["done"])
    k.I("s_endpgm")
    k.lds = lds; k.threads = 512; k.grid = 224
    return k


def gen_k5(Stamper):
    k = Kernel("k5_sp_kernel")
    NS = 4; SLOT = 32768
    Z1REG = NS * SLOT
    lds = Z1REG + 32768
    R = common_start(k, 224)
    swave, st0, st1, soff, lane, t0, t1, t2 = (R[x] for x in ("swave", "st0", "st1", "soff", "lane", "t0", "t1", "t2"))
    pSp = k.salloc(2); pB = k.salloc(2); pWS = k.salloc(2)
    k.I("s_load_dwordx2", sr(pSp, 2), "s[0:1]", 40)
    k.I("s_load_dwordx2", sr(pB, 2), "s[0:1]", 48)
    k.I("s_load_dwordx2", sr(pWS, 2), "s[0:1]", 80)
    sWS = k.salloc(4); sSp = k.salloc(4); sB = k.salloc(4)
    sj = k.salloc(); sidx = k.salloc(); stt = k.salloc(); sft = k.salloc(); skap = k.salloc(); sw3 = k.salloc()
    if os.environ.get("K5MAP") == "linear":
        k.I("s_mul_i32", s(sj), "s2", 2341)
        k.I("s_lshr_b32", s(sj), s(sj), 16)
        k.I("s_mul_i32", s(sidx), s(sj), 28)
        k.I("s_sub_u32", s(sidx), "s2", s(sidx))
    else:
        k.I("s_and_b32", s(sj), "s2", 7)
        k.I("s_lshr_b32", s(sidx), "s2", 3)
    k.I("s_and_b32", s(sw3), s(swave), 3)
    k.I("s_and_b32", s(skap), s(sj), 1)
    k.I("s_mul_i32", s(st0), s(sidx), 37)
    k.I("s_lshr_b32", s(st0), s(st0), 8)
    k.I("s_mul_i32", s(st1), s(st0), 7)
    k.I("s_sub_u32", s(sft), s(sidx), s(st1))
    k.I("s_lshr_b32", s(stt), s(sj), 1)
    k.I("s_lshl_b32", s(stt), s(stt), 2)
    k.I("s_add_u32", s(stt), s(stt), s(st0))
    stp = Stamper(k, 4, sWS, swave)
    if os.environ.get("TICKWAVE", "0") != "0": stp.tick(0)
    k.I("s_waitcnt", "lgkmcnt(0)")
    srd(k, sWS, pWS, WS_SIZE)
    comp = k.newlabel("compute")
    k.I("s_cmp_lt_u32", s(swave), 4)
    k.I("s_cbranch_scc1", comp)
    vsave = k.vnext
    srd(k, sSp, pSp, 2048 * 4096)
    v16 = k.valloc(); vWo = k.valloc(2)
    k.I("v_lshlrev_b32", v(v16), 4, v(lane))
    k.I("v_lshrrev_b32", v(t0), 3, v(lane))
    k.I("v_lshlrev_b32", v(t0), 12, v(t0))
    k.I("v_lshrrev_b32", v(t1), 4, v(lane))
    k.I("v_and_b32", v(t2), 7, v(lane))
    k.I("v_xor_b32", v(t1), v(t1), v(t2))
    k.I("v_lshl_add_u32", v(vWo), v(t1), 4, v(t0))
    k.I("v_xor_b32", v(t1), 4, v(t1))
    k.I("v_lshl_add_u32", v(vWo + 1), v(t1), 4, v(t0))
    sZb = k.salloc(); sWb = k.salloc(); smZ = k.salloc(); smW = k.salloc()
    k.I("s_lshl_b32", s(st0), s(sft), 2)
    k.I("s_add_u32", s(st0), s(st0), s(sw3))
    k.I("s_mul_i32", s(sZb), s(st0), ZS)
    k.I("s_mul_i32", s(st1), s(skap), ZK)
    k.I("s_add_u32", s(sZb), s(sZb), s(st1))
    k.I("s_add_u32", s(sZb), s(sZb), hex(Z2_OFF))
    k.I("s_lshl_b32", s(smZ), s(sw3), 12)
    k.I("s_lshl_b32", s(st0), s(stt), 7)
    k.I("s_lshl_b32", s(st1), s(sw3), 5)
    k.I("s_add_u32", s(st0), s(st0), s(st1))
    k.I("s_lshl_b32", s(sWb), s(st0), 12)
    k.I("s_lshl_b32", s(st1), s(skap), 11)
    k.I("s_add_u32", s(sWb), s(sWb), s(st1))
    k.I("s_add_u32", s(smW), s(smZ), 16384)
    def issue(c):
        sl = (c % NS) * SLOT
        def zpart():
            for i in range(4):
                k.I("s_add_u32", s(soff), s(sZb), hex((4 * c + i) * 1024))
                k.I("s_add_u32", "m0", s(smZ), hex(sl + i * 1024))
                k.vm(("S", c), "buffer_load_dwordx4", v(v16), sr(sWS, 4), s(soff), mods="offen lds")
                if os.environ.get("DIAG5") and c == 0 and i in (0, 3):
                    k.I("s_waitcnt", "vmcnt(0)"); stp.tick(10 + (i > 0))
        def wpart():
            for i in range(4):
                k.I("s_add_u32", s(soff), s(sWb), hex(i * 8 * 4096 + c * 128))
                k.I("s_add_u32", "m0", s(smW), hex(sl + i * 1024))
                k.vm(("S", c), "buffer_load_dwordx4", v(vWo + (i & 1)), sr(sSp, 4), s(soff), mods="offen lds")
                if os.environ.get("DIAG5") and c == 0 and i in (0, 3):
                    k.I("s_waitcnt", "vmcnt(0)"); stp.tick(12 + (i > 0))
        if os.environ.get("DIAG5") == "2": wpart(); zpart()
        else: zpart(); wpart()
    NST = 16
    sZ1 = k.salloc()
    k.I("s_lshl_b32", s(st0), s(stt), 2)
    k.I("s_add_u32", s(st0), s(st0), s(sw3))
    k.I("s_mul_i32", s(sZ1), s(st0), 56 * 1024)
    k.I("s_lshl_b32", s(st1), s(sft), 13)
    k.I("s_add_u32", s(sZ1), s(sZ1), s(st1))
    k.I("s_add_u32", s(sZ1), s(sZ1), hex(Z1_OFF))
    smZ1 = k.salloc()
    k.I("s_lshl_b32", s(smZ1), s(sw3), 13)
    def issue_z1(i, tag):
        k.I("s_add_u32", s(soff), s(sZ1), hex(i * 1024))
        k.I("s_add_u32", "m0", s(smZ1), hex(Z1REG + i * 1024))
        k.vm(("S", tag), "buffer_load_dwordx4", v(v16), sr(sWS, 4), s(soff), mods="offen lds")
    LT = os.environ.get("TICKWAVE", "0") != "0"
    if LT: stp.tick(1)
    issue(0)
    if LT: stp.tick(2)
    issue(1)
    if LT: stp.tick(3)
    for c in range(NST):
        k.wait_vm(("S", c))
        if LT and c < 3: stp.tick(4 + 2 * c)
        k.I("s_barrier")
        if LT and c < 3: stp.tick(5 + 2 * c)
        if c == 0: issue(2); issue(3)
        elif c + 2 < NST and c >= 2:
            issue(c + 2)
            if 3 <= c < 11: issue_z1(c - 3, c + 2)
    vT = k.valloc()
    k.I("s_lshl_b32", s(st0), s(sidx), 8)
    k.I("v_subrev_u32", v(vT), 256, "v0")
    k.I("v_add_u32", v(vT), s(st0), v(vT))
    k.I("v_lshlrev_b32", v(vT), 7, v(vT))
    l2_prefetch(k, 56, 896 * 896, vT, 7168, st0)
    if LT: stp.dump_ticks()
    k.I("s_endpgm")
    k.L(comp)
    k.vnext = vsave; k.vmq = []; k.lgq = []
    srd(k, sB, pB, 4096)
    l31 = k.valloc(); hh = k.valloc()
    k.I("v_and_b32", v(l31), 31, v(lane))
    k.I("v_lshrrev_b32", v(hh), 5, v(lane))
    sfh = k.salloc(); sth = k.salloc(); sst = k.salloc(); sf32 = k.salloc()
    k.I("s_and_b32", s(sfh), s(swave), 1)
    k.I("s_lshr_b32", s(sth), s(swave), 1)
    k.I("s_lshl_b32", s(sst), s(stt), 2)
    k.I("s_lshl_b32", s(st0), s(sth), 1)
    k.I("s_add_u32", s(sst), s(sst), s(st0))
    k.I("s_lshl_b32", s(sf32), s(sft), 2)
    k.I("s_lshl_b32", s(st0), s(sfh), 1)
    k.I("s_add_u32", s(sf32), s(sf32), s(st0))
    if os.environ.get("PF3", "0") == "1":
        vT0 = k.valloc(); vd0 = k.valloc(2)
        k.I("s_lshl_b32", s(st0), s(sidx), 8)
        k.I("v_add_u32", v(vT0), s(st0), "v0")
        k.I("s_lshl_b32", s(st1), s(skap), 16)
        k.I("s_add_u32", s(st1), s(st1), hex(Z2_OFF))
        for i in range(2):
            k.I("v_add_u32", v(t0), 7168 * i, v(vT0))
            k.I("v_lshrrev_b32", v(t1), 9, v(t0))
            k.I("v_lshlrev_b32", v(t1), 17, v(t1))
            k.I("v_and_b32", v(t2), 511, v(t0))
            k.I("v_lshl_add_u32", v(t1), v(t2), 7, v(t1))
            k.vm("pf", "buffer_load_dword", v(vd0 + i), v(t1), sr(sWS, 4), s(st1), mods="offen")
    v16 = k.valloc()
    k.I("v_lshlrev_b32", v(v16), 4, v(lane))
    z1 = [[k.valloc(8, 4) for _ in range(2)] for _ in range(2)]
    rr = [k.valloc(2) for _ in range(2)]; bb = [k.valloc(2) for _ in range(2)]
    k.I("v_lshlrev_b32", v(t0), 2, v(l31))
    k.I("v_lshlrev_b32", v(t1), 1, v(l31))
    for ti in range(2):
        k.I("s_add_u32", s(st0), s(sst), ti)
        k.I("s_lshl_b32", s(soff), s(st0), 7)
        k.I("s_add_u32", s(soff), s(soff), hex(RH_OFF))
        k.vm("z1", "buffer_load_dword", v(rr[ti]), v(t0), sr(sWS, 4), s(soff), mods="offen")
        k.I("s_lshl_b32", s(soff), s(st0), 6)
        k.vm("z1", "buffer_load_ushort", v(bb[ti]), v(t1), sr(sB, 4), s(soff), mods="offen")
    if os.environ.get("PF2", "0") == "1":
        pp = k.salloc(2); sP = k.salloc(4); vT = k.valloc(); vd = k.valloc(2)
        k.I("s_load_dwordx2", sr(pp, 2), "s[0:1]", 56)
        k.I("s_lshl_b32", s(st0), s(sidx), 8)
        k.I("v_add_u32", v(vT), s(st0), "v0")
        k.I("v_lshlrev_b32", v(vT), 7, v(vT))
        k.I("s_waitcnt", "lgkmcnt(0)")
        srd(k, sP, pp, 896 * 896)
        k.vm("pf", "buffer_load_dword", v(vd), v(vT), sr(sP, 4), 0, mods="offen")
    code_prefetch(k, "k6_wout_kernel", sidx, st0)
    stp.stamp(0)
    aZ = k.valloc(); aW = k.valloc(4)
    k.I("s_lshl_b32", s(st0), s(sfh), 13)
    k.I("v_add_u32", v(aZ), s(st0), v(v16))
    k.I("v_bfe_u32", v(t0), v(l31), 1, 3)
    for j in range(4):
        k.I("v_add_u32", v(t1), 2 * j, v(hh))
        k.I("v_xor_b32", v(t1), v(t1), v(t0))
        k.I("v_lshlrev_b32", v(t1), 4, v(t1))
        k.I("v_lshl_add_u32", v(aW + j), v(l31), 7, v(t1))
        k.I("s_lshl_b32", s(st0), s(sth), 13)
        k.I("s_add_u32", s(st0), s(st0), 16384)
        k.I("v_add_u32", v(aW + j), s(st0), v(aW + j))
    aZ2 = k.valloc(); aW2 = k.valloc(4)
    k.I("v_add_u32", v(aZ2), 65536, v(aZ))
    for j in range(4): k.I("v_add_u32", v(aW2 + j), 65536, v(aW + j))
    acc = [[k.valloc(16, 4) for _ in range(2)] for _ in range(2)]
    NB = 3
    zf = [[k.valloc(4) for _ in range(2)] for _ in range(NB)]
    wf = [[k.valloc(4) for _ in range(2)] for _ in range(NB)]
    def rl(ks):
        c, j = ks // 4, ks % 4
        b = ks % NB
        sl = (c % NS) * SLOT
        hi = sl >= 65536
        so = sl - (65536 if hi else 0)
        out = []
        for fi in range(2):
            out.append(lambda fi=fi: k.lg(("f", ks), "ds_read_b128", vr(zf[b][fi], 4), v(aZ2 if hi else aZ), mods=f"offset:{so + fi * 4096 + j * 1024}"))
        for ti in range(2):
            out.append(lambda ti=ti: k.lg(("f", ks), "ds_read_b128", vr(wf[b][ti], 4), v((aW2 if hi else aW) + j), mods=f"offset:{so + ti * 4096}"))
        return out
    k.I("s_barrier")
    stp.stamp(1)
    for f in rl(0) + rl(1): f()
    NKS = NST * 4
    for ks in range(NKS):
        c, j = ks // 4, ks % 4
        b = ks % NB
        k.wait_lg(("f", ks))
        mf = []
        for fi in range(2):
            for ti in range(2):
                mf.append(lambda fi=fi, ti=ti: k.I("v_mfma_f32_32x32x16_bf16", vr(acc[fi][ti], 16), vr(zf[b][fi], 4), vr(wf[b][ti], 4), 0 if ks == 0 else vr(acc[fi][ti], 16)))
        fl = rl(ks + 2) if ks + 2 < NKS else []
        if j == 2 and ks + 2 < NKS:
            if not LT and c in (0, 13, 14): stp.tick({0: 0, 13: 1, 14: 2}[c])
            k.I("s_barrier")
        interleave(k, mf, fl)
    if not LT: stp.tick(3)
    stp.stamp(2)
    if not LT: stp.tick(4)
    if not LT: stp.tick(5)
    vz = k.valloc()
    k.I("s_lshl_b32", s(st0), s(sth), 14)
    k.I("s_lshl_b32", s(st1), s(sfh), 12)
    k.I("s_add_u32", s(st0), s(st0), s(st1))
    k.I("s_add_u32", s(st0), s(st0), Z1REG)
    k.I("v_add_u32", v(vz), s(st0), v(v16))
    for ti in range(2):
        for fi in range(2):
            for hf_ in range(2):
                k.lg(("z1", ti, fi), "ds_read_b128", vr(z1[fi][ti] + 4 * hf_, 4), v(vz), mods=f"offset:{ti * 8192 + fi * 2048 + hf_ * 1024}")
    k.wait_vm("z1")
    for ti in range(2):
        k.I("v_lshlrev_b32", v(bb[ti]), 16, v(bb[ti]))
        k.I("v_mul_f32", v(bb[ti]), v(bb[ti]), v(rr[ti]))
    k.I("s_cmp_eq_u32", s(skap), 0)
    k.I("s_cselect_b32", s(st0), "1.0", 0)
    for ti in range(2): k.I("v_mul_f32", v(bb[ti]), s(st0), v(bb[ti]))
    tp = [k.valloc(2) for _ in range(4)]
    P = [k.valloc(8, 4) for _ in range(2)]
    sU = k.salloc()
    k.I("s_mul_i32", s(sU), s(skap), U1_OFF - U0_OFF)
    k.I("s_add_u32", s(sU), s(sU), hex(U0_OFF))
    n = 0
    for ti in range(2):
        for fi in range(2):
            A = acc[fi][ti]; Zp = z1[fi][ti]; PP = P[n & 1]; n += 1
            for j in range(8):
                k.I("v_pk_fma_f32", vr(A + 2 * j, 2), vr(A + 2 * j, 2), vr(rr[ti], 2), vr(bb[ti], 2), mods="op_sel_hi:[1,0,0]")
            k.wait_lg(("z1", ti, fi))
            for j in range(8):
                T = tp[j % 4]
                k.I("v_lshlrev_b32", v(T), 16, v(Zp + j))
                k.I("v_and_b32", v(T + 1), "0xffff0000", v(Zp + j))
                k.I("v_pk_mul_f32", vr(A + 2 * j, 2), vr(A + 2 * j, 2), vr(T, 2))
            for j in range(8): k.I("v_cvt_pk_bf16_f32", v(PP + j), v(A + 2 * j), v(A + 2 * j + 1))
            k.I("s_add_u32", s(st0), s(sst), ti)
            k.I("s_mul_i32", s(soff), s(st0), 56 * 1024)
            k.I("s_add_u32", s(st0), s(sf32), fi)
            k.I("s_lshl_b32", s(st0), s(st0), 11)
            k.I("s_add_u32", s(soff), s(soff), s(st0))
            k.I("s_add_u32", s(soff), s(soff), s(sU))
            k.I("buffer_store_dwordx4", vr(PP, 4), v(v16), sr(sWS, 4), s(soff), mods="offen")
            k.I("buffer_store_dwordx4", vr(PP + 4, 4), v(v16), sr(sWS, 4), s(soff), mods="offen offset:1024")
            if not LT: stp.tick(5 + n)
    stp.stamp(3)
    if not LT: stp.tick(10)
    if not LT: stp.dump_ticks()
    k.L(R["done"])
    k.I("s_endpgm")
    k.lds = lds; k.threads = 512; k.grid = 224
    return k

def gen_k6(Stamper):
    k = Kernel("k6_wout_kernel")
    NS = 5; SLOT = 24576
    RED = 0
    lds = NS * SLOT
    R = common_start(k, 224)
    swave, st0, st1, soff, lane, t0, t1, t2 = (R[x] for x in ("swave", "st0", "st1", "soff", "lane", "t0", "t1", "t2"))
    pWo = k.salloc(2); pOut = k.salloc(2); pWS = k.salloc(2)
    k.I("s_load_dwordx2", sr(pWo, 2), "s[0:1]", 56)
    k.I("s_load_dwordx2", sr(pOut, 2), "s[0:1]", 64)
    k.I("s_load_dwordx2", sr(pWS, 2), "s[0:1]", 80)
    sWS = k.salloc(4); sWo = k.salloc(4); sOut = k.salloc(4)
    sj = k.salloc(); sidx = k.salloc(); srt = k.salloc(); snt = k.salloc(); sw3 = k.salloc()
    k.I("s_and_b32", s(sj), "s2", 7)
    k.I("s_lshr_b32", s(sidx), "s2", 3)
    k.I("s_and_b32", s(sw3), s(swave), 3)
    k.I("s_mul_i32", s(st0), s(sidx), 37)
    k.I("s_lshr_b32", s(st0), s(st0), 8)
    k.I("s_mul_i32", s(st1), s(st0), 7)
    k.I("s_sub_u32", s(snt), s(sidx), s(st1))
    k.I("s_lshl_b32", s(srt), s(sj), 2)
    k.I("s_add_u32", s(srt), s(srt), s(st0))
    stp = Stamper(k, 5, sWS, swave)
    k.I("s_waitcnt", "lgkmcnt(0)")
    srd(k, sWS, pWS, WS_SIZE)
    comp = k.newlabel("compute")
    k.I("s_cmp_lt_u32", s(swave), 4)
    k.I("s_cbranch_scc1", comp)
    vsave = k.vnext
    srd(k, sWo, pWo, 896 * 896)
    v16 = k.valloc(); vWo = k.valloc()
    k.I("v_lshlrev_b32", v(v16), 4, v(lane))
    k.I("v_lshrrev_b32", v(t0), 3, v(lane))
    k.I("v_mul_u32_u24", v(t0), 896, v(t0))
    k.I("v_bfe_u32", v(t1), v(lane), 4, 1)
    k.I("v_lshlrev_b32", v(t1), 2, v(t1))
    k.I("v_and_b32", v(t2), 7, v(lane))
    k.I("v_xor_b32", v(t1), v(t1), v(t2))
    k.I("v_lshl_add_u32", v(vWo), v(t1), 4, v(t0))
    sUb = k.salloc(); sWb = k.salloc(); smU = k.salloc(); smW = k.salloc()
    k.I("s_lshr_b32", s(st0), s(sw3), 1)
    k.I("s_lshl_b32", s(st1), s(srt), 1)
    k.I("s_add_u32", s(st1), s(st1), s(st0))
    k.I("s_mul_i32", s(sUb), s(st1), 56 * 1024)
    k.I("s_and_b32", s(st1), s(sw3), 1)
    k.I("s_mul_i32", s(smU), s(st1), U1_OFF - U0_OFF)
    k.I("s_add_u32", s(sUb), s(sUb), s(smU))
    k.I("s_add_u32", s(sUb), s(sUb), hex(U0_OFF))
    k.I("s_lshl_b32", s(smU), s(st1), 13)
    k.I("s_lshl_b32", s(st0), s(st0), 12)
    k.I("s_add_u32", s(smU), s(smU), s(st0))
    k.I("s_mul_i32", s(sWb), s(sw3), 16 * 896)
    k.I("s_lshl_b32", s(st1), s(snt), 7)
    k.I("s_add_u32", s(sWb), s(sWb), s(st1))
    k.I("s_lshl_b32", s(smW), s(sw3), 11)
    k.I("s_add_u32", s(smW), s(smW), 16384)
    def issue(c):
        sl = (c % NS) * SLOT
        for i in range(4):
            k.I("s_add_u32", s(soff), s(sUb), hex((4 * c + i) * 1024))
            k.I("s_add_u32", "m0", s(smU), hex(sl + i * 1024))
            k.vm(("S", c), "buffer_load_dwordx4", v(v16), sr(sWS, 4), s(soff), mods="offen lds")
        for i in range(2):
            k.I("s_add_u32", s(soff), s(sWb), hex((64 * c + 8 * i) * 896))
            k.I("s_add_u32", "m0", s(smW), hex(sl + i * 1024))
            k.vm(("S", c), "buffer_load_dwordx4", v(vWo), sr(sWo, 4), s(soff), mods="offen lds")
    NST = 14
    for c in range(3): issue(c)
    for c in range(NST):
        k.wait_vm(("S", c))
        k.I("s_barrier")
        if c == 0: issue(3); issue(4)
        elif c + 3 < NST and c >= 2: issue(c + 3)
    k.I("s_endpgm")
    k.L(comp)
    k.vnext = vsave; k.vmq = []; k.lgq = []
    srd(k, sOut, pOut, 2048 * 896)
    l31 = k.valloc(); hh = k.valloc()
    k.I("v_and_b32", v(l31), 31, v(lane))
    k.I("v_lshrrev_b32", v(hh), 5, v(lane))
    srh = k.salloc(); snh = k.salloc(); sst = k.salloc(); sntile = k.salloc()
    k.I("s_and_b32", s(srh), s(swave), 1)
    k.I("s_lshr_b32", s(snh), s(swave), 1)
    k.I("s_lshl_b32", s(sst), s(srt), 1)
    k.I("s_add_u32", s(sst), s(sst), s(srh))
    k.I("s_lshl_b32", s(sntile), s(snt), 1)
    k.I("s_add_u32", s(sntile), s(sntile), s(snh))
    if os.environ.get("PF3", "0") == "1":
        vT0 = k.valloc(); vd0 = k.valloc(2)
        k.I("s_lshl_b32", s(st0), s(sidx), 8)
        k.I("v_add_u32", v(vT0), s(st0), "v0")
        k.I("v_mov_b32", v(t0), hex(U1_OFF - U0_OFF - 3584 * 128))
        k.I("v_cmp_le_u32", "vcc", 3584, v(vT0))
        k.I("v_cndmask_b32", v(t0), 0, v(t0), "vcc")
        k.I("v_lshl_add_u32", v(t0), v(vT0), 7, v(t0))
        k.I("s_mul_i32", s(st1), s(sj), 8 * 56 * 1024)
        k.I("s_add_u32", s(st1), s(st1), hex(U0_OFF))
        k.vm("pf", "buffer_load_dword", v(vd0), v(t0), sr(sWS, 4), s(st1), mods="offen")
    v16 = k.valloc()
    k.I("v_lshlrev_b32", v(v16), 4, v(lane))
    hr = k.valloc(8, 4)
    k.I("s_mul_i32", s(soff), s(sst), 28 * 1024)
    k.I("s_lshl_b32", s(st0), s(sntile), 11)
    k.I("s_add_u32", s(soff), s(soff), s(st0))
    k.I("s_add_u32", s(soff), s(soff), hex(H_OFF))
    k.vm("h", "buffer_load_dwordx4", vr(hr, 4), v(v16), sr(sWS, 4), s(soff), mods="offen")
    k.vm("h", "buffer_load_dwordx4", vr(hr + 4, 4), v(v16), sr(sWS, 4), s(soff), mods="offen offset:1024")
    stp.stamp(0)
    aU = k.valloc(); vW = k.valloc()
    k.I("s_lshl_b32", s(st0), s(srh), 12)
    k.I("v_add_u32", v(aU), s(st0), v(v16))
    k.I("v_bfe_u32", v(t0), v(lane), 2, 2)
    k.I("v_lshl_add_u32", v(t0), v(hh), 2, v(t0))
    k.I("v_lshlrev_b32", v(vW), 7, v(t0))
    k.I("v_add_u32", v(vW), 16384, v(vW))
    k.I("v_bfe_u32", v(t0), v(lane), 4, 1)
    k.I("v_lshlrev_b32", v(t0), 1, v(t0))
    k.I("v_bfe_u32", v(t1), v(lane), 1, 1)
    k.I("v_add_u32", v(t0), v(t0), v(t1))
    k.I("s_lshl_b32", s(st0), s(snh), 2)
    k.I("v_add_u32", v(t0), s(st0), v(t0))
    k.I("v_bfe_u32", v(t1), v(lane), 3, 1)
    k.I("v_lshlrev_b32", v(t1), 2, v(t1))
    k.I("v_xor_b32", v(t0), v(t0), v(t1))
    k.I("v_lshl_add_u32", v(vW), v(t0), 4, v(vW))
    k.I("v_and_b32", v(t0), 1, v(lane))
    k.I("v_lshl_add_u32", v(vW), v(t0), 3, v(vW))
    aU2 = k.valloc(); vW2 = k.valloc()
    k.I("v_add_u32", v(aU2), 3 * SLOT, v(aU))
    k.I("v_add_u32", v(vW2), 3 * SLOT, v(vW))
    acc = k.valloc(16, 4)
    NB = 3
    uf = [[k.valloc(4) for _ in range(2)] for _ in range(NB)]; wf = [k.valloc(4) for _ in range(NB)]
    def rl(ks):
        c, j = ks // 4, ks % 4
        b = ks % NB
        sl = (c % NS)
        hi = sl >= 3
        so = (sl - (3 if hi else 0)) * SLOT
        out = []
        for ar_ in range(2):
            out.append(lambda ar_=ar_: k.lg(("f", ks), "ds_read_b128", vr(uf[b][ar_], 4), v(aU2 if hi else aU), mods=f"offset:{so + ar_ * 8192 + j * 1024}"))
        for beta in range(2):
            o = so + (16 * j + 8 * beta) * 128
            out.append(lambda o=o, beta=beta: k.lg(("f", ks), "ds_read_b64_tr_b16", vr(wf[b] + 2 * beta, 2), v(vW2 if hi else vW), mods=f"offset:{o}"))
        return out
    k.I("s_barrier")
    stp.stamp(1)
    for f in rl(0) + rl(1): f()
    NKS = NST * 4
    for ks in range(NKS):
        c, j = ks // 4, ks % 4
        b = ks % NB
        k.wait_lg(("f", ks))
        mf = [lambda ar_=ar_: k.I("v_mfma_f32_32x32x16_bf16", vr(acc, 16), vr(wf[b], 4), vr(uf[b][ar_], 4), 0 if (ks == 0 and ar_ == 0) else vr(acc, 16)) for ar_ in range(2)]
        fl = rl(ks + 2) if ks + 2 < NKS else []
        if j == 2 and ks + 2 < NKS: k.I("s_barrier")
        interleave(k, mf, fl)
    stp.stamp(2)
    k.wait_vm("h")
    tp = [k.valloc(2) for _ in range(4)]
    for j in range(8):
        T = tp[j % 4]
        k.I("v_lshlrev_b32", v(T), 16, v(hr + j))
        k.I("v_and_b32", v(T + 1), "0xffff0000", v(hr + j))
        k.I("v_pk_add_f32", vr(acc + 2 * j, 2), vr(acc + 2 * j, 2), vr(T, 2))
    P = k.valloc(8, 4)
    for j in range(8): k.I("v_cvt_pk_bf16_f32", v(P + j), v(acc + 2 * j), v(acc + 2 * j + 1))
    for kp in range(2):
        k.I("v_permlane32_swap_b32", v(P + 4 * kp), v(P + 4 * kp + 2))
        k.I("v_permlane32_swap_b32", v(P + 4 * kp + 1), v(P + 4 * kp + 3))
    vo = k.valloc()
    k.I("v_mul_u32_u24", v(vo), 896, v(l31))
    k.I("v_lshl_add_u32", v(vo), v(hh), 4, v(vo))
    k.I("s_mul_i32", s(soff), s(sst), 32 * 896)
    k.I("s_lshl_b32", s(st0), s(sntile), 6)
    k.I("s_add_u32", s(soff), s(soff), s(st0))
    for kp in range(2):
        k.I("buffer_store_dwordx4", vr(P + 4 * kp, 4), v(vo), sr(sOut, 4), s(soff), mods=f"offen offset:{32 * kp}")
    stp.stamp(3)
    k.L(R["done"])
    k.I("s_endpgm")
    k.lds = lds; k.threads = 512; k.grid = 224
    return k

def rest(Stamper):
    return [gen_k2(Stamper), gen_k3(Stamper), gen_k4(Stamper), gen_k5(Stamper), gen_k6(Stamper)]
```

```python
import sys, os
sys.path.insert(0, os.path.dirname(__file__))
from asmlib import *
from layout import *

NAME = "sequential_preLN__sliding_block__mixer_gmlp__prompt"
STAMPS = os.environ.get("GEN_STAMPS", "0") == "1"
WS_SIZE = 0x10000000

def srd(k, dst, base, size):
    k.I("s_mov_b32", s(dst), s(base))
    k.I("s_and_b32", s(dst + 1), s(base + 1), "0xffff")
    k.I("s_mov_b32", s(dst + 2), hex(size) if isinstance(size, int) else size)
    k.I("s_mov_b32", s(dst + 3), "0x20000")

class Stamper:
    def __init__(self, k, kidx, sWS, swave):
        self.k, self.kidx, self.sWS, self.swave = k, kidx, sWS, swave
        if STAMPS:
            self.st = k.salloc(2); self.vt = k.valloc(2); self.vo = k.valloc(1); self.ex = k.salloc(2)
    def tick(self, i):
        if not STAMPS: return
        if not hasattr(self, "tk"): self.tk = self.k.salloc(32, 4)
        self.k.I("s_memtime", sr(self.tk + 2 * i, 2))
        self.nt = max(getattr(self, "nt", 0), i + 1)
    def dump_ticks(self):
        if not STAMPS or not hasattr(self, "tk"): return
        k = self.k
        k.I("s_waitcnt", "lgkmcnt(0)")
        k.lgq = []
        k.I("s_lshl_b32", s(self.ex), "s2", 7)
        k.I("s_add_u32", s(self.ex), s(self.ex), hex(TICK_OFF + self.kidx * 256 * 128))
        k.I("s_cmp_lg_u32", s(self.swave), int(os.environ.get("TICKWAVE", "0")))
        k.I("s_cselect_b32", s(self.ex), "0x7ffffff0", s(self.ex))
        k.I("s_mov_b64", sr(self.st, 2), "exec")
        k.I("s_mov_b64", "exec", 1)
        k.I("v_mov_b32", v(self.vo), 0)
        for i in range(16):
            k.I("v_mov_b32", v(self.vt), s(self.tk + 2 * i))
            k.I("v_mov_b32", v(self.vt + 1), s(self.tk + 2 * i + 1))
            k.I("buffer_store_dwordx2", vr(self.vt, 2), v(self.vo), sr(self.sWS, 4), s(self.ex), mods=f"offen offset:{8 * i}")
            k.I("s_nop", 1)
        k.I("s_mov_b64", "exec", sr(self.st, 2))
    def stamp(self, j):
        if not STAMPS: return
        k = self.k
        k.I("s_memrealtime", sr(self.st, 2))
        k.I("s_lshl_b32", s(self.ex), "s2", 6)
        k.I("s_add_u32", s(self.ex), s(self.ex), hex(STAMP_OFF + self.kidx * 256 * 64 + j * 8))
        k.I("s_cmp_lg_u32", s(self.swave), 0)
        k.I("s_cselect_b32", s(self.ex), "0x7ffffff0", s(self.ex))
        k.I("s_waitcnt", "lgkmcnt(0)")
        k.lgq = []
        k.I("v_mov_b32", v(self.vt), s(self.st))
        k.I("v_mov_b32", v(self.vt + 1), s(self.st + 1))
        k.I("v_mov_b32", v(self.vo), 0)
        k.I("s_mov_b64", sr(self.st, 2), "exec")
        k.I("s_mov_b64", "exec", 1)
        k.I("buffer_store_dwordx2", vr(self.vt, 2), v(self.vo), sr(self.sWS, 4), s(self.ex), mods="offen")
        k.I("s_mov_b64", "exec", sr(self.st, 2))
        k.vmq.append("stamp")

class DbgStamper:
    LAST = {0: 3, 1: 2, 2: 3, 3: 5, 4: 3, 5: 3}
    def __init__(self, k, kidx, sWS, swave):
        self.k, self.kidx, self.swave = k, kidx, swave
        self.st = k.salloc(2); self.vt = k.valloc(2); self.vo = k.valloc(1); self.ex = k.salloc(2)
        self.pd = k.salloc(2); self.sD = k.salloc(4)
        k.I("s_memrealtime", sr(self.st, 2))
        k.I("s_load_dwordx2", sr(self.pd, 2), "s[0:1]", 72)
        self.t0 = k.salloc(2)
        k.I("s_waitcnt", "lgkmcnt(0)")
        k.I("s_mov_b32", s(self.t0), s(self.st))
        k.I("s_sub_u32", s(self.pd), s(self.pd), 512 * kidx)
        k.I("s_subb_u32", s(self.pd + 1), s(self.pd + 1), 0)
        srd(k, self.sD, self.pd, 512 * 5 + 256)
    def tick(self, i): pass
    def dump_ticks(self): pass
    def stamp(self, j):
        if j != self.LAST[self.kidx]: return
        k = self.k
        k.I("s_memrealtime", sr(self.st, 2))
        k.I("s_or_b32", s(self.ex), "s2", s(self.swave))
        k.I("s_cmp_lg_u32", s(self.ex), 0)
        k.I("s_cselect_b32", s(self.ex), "0x7ffffff0", 8 * self.kidx)
        k.I("s_waitcnt", "lgkmcnt(0)")
        k.lgq = []
        k.I("v_mov_b32", v(self.vt), s(self.t0))
        k.I("v_mov_b32", v(self.vt + 1), s(self.st))
        k.I("v_mov_b32", v(self.vo), 0)
        k.I("s_mov_b64", sr(self.st, 2), "exec")
        k.I("s_mov_b64", "exec", 1)
        for tg in range(6):
            k.I("buffer_store_dwordx2", vr(self.vt, 2), v(self.vo), sr(self.sD, 4), s(self.ex), mods=f"offen offset:{512 * tg}")
            k.vmq.append("stamp")
        k.I("s_mov_b64", "exec", sr(self.st, 2))

if os.environ.get("GEN_DBG"): Stamper = DbgStamper

def gen_k1():
    k = Kernel("k1_qkv_kernel")
    k.snext = 4; k.vnext = 1
    WREG = 0; WCH = 12288; XRING = 7 * WCH; XSL = 4096; NXS = 4
    TBL = XRING + 4 * NXS * XSL
    CWT = TBL; RT = TBL + 512; NMT = TBL + 1024; SQT = TBL + 1536
    ONES = TBL + 2048
    lds = ONES + 1024
    done = k.newlabel("done")
    k.I("s_cmp_ge_u32", "s2", 256)
    k.I("s_cbranch_scc1", done)
    pX = k.salloc(4); pWS = k.salloc(2)
    k.I("s_load_dwordx4", sr(pX, 4), "s[0:1]", 0)
    k.I("s_load_dwordx2", sr(pWS, 2), "s[0:1]", 80)
    sX = k.salloc(4); sW = k.salloc(4); sWS = k.salloc(4)
    swave = k.salloc(); srb = k.salloc(); shd = k.salloc(); st0 = k.salloc(); st1 = k.salloc(); soff = k.salloc()
    lane = k.valloc(); l31 = k.valloc(); hh = k.valloc(); t0 = k.valloc(); t1 = k.valloc(); t2 = k.valloc()
    k.I("v_lshrrev_b32", v(t0), 6, "v0")
    k.I("v_and_b32", v(lane), 63, "v0")
    k.I("v_readfirstlane_b32", s(swave), v(t0))
    k.I("s_and_b32", s(st0), "s2", 7)
    k.I("s_lshr_b32", s(st1), "s2", 3)
    k.I("s_and_b32", s(shd), s(st1), 15)
    k.I("s_lshr_b32", s(st1), s(st1), 4)
    k.I("s_lshl_b32", s(srb), s(st0), 1)
    k.I("s_add_u32", s(srb), s(srb), s(st1))
    stp = Stamper(k, 0, sWS, swave)
    sw3 = k.salloc()
    k.I("s_and_b32", s(sw3), s(swave), 3)
    l15 = k.valloc()
    k.I("v_and_b32", v(l15), 15, v(lane))
    k.I("s_waitcnt", "lgkmcnt(0)")
    srd(k, sW, pX + 2, 448 * 2688)
    srd(k, sX, pX, 2048 * 896)
    comp = k.newlabel("compute")
    k.I("s_cmp_lt_u32", s(swave), 4)
    k.I("s_cbranch_scc1", comp)
    vsave = k.vnext
    vXo = k.valloc(4)
    k.I("v_lshrrev_b32", v(t0), 3, v(lane))
    k.I("v_mul_u32_u24", v(t0), 896, v(t0))
    k.I("v_lshrrev_b32", v(t1), 4, v(lane))
    k.I("v_and_b32", v(t2), 7, v(lane))
    k.I("v_xor_b32", v(t1), v(t1), v(t2))
    k.I("v_lshl_add_u32", v(vXo), v(t1), 4, v(t0))
    k.I("v_xor_b32", v(t1), 4, v(t1))
    k.I("v_lshl_add_u32", v(vXo + 1), v(t1), 4, v(t0))
    k.I("v_add_u32", v(vXo + 1), 8 * 896, v(vXo + 1))
    k.I("v_add_u32", v(vXo + 2), 16 * 896, v(vXo))
    k.I("v_add_u32", v(vXo + 3), 16 * 896, v(vXo + 1))
    vWo = k.valloc(3)
    for b in range(3):
        k.I("v_add_u32", v(t0), 64 * b, v(lane))
        k.I("v_mul_u32_u24", v(t1), 171, v(t0))
        k.I("v_lshrrev_b32", v(t1), 11, v(t1))
        k.I("v_mul_u32_u24", v(t2), 12, v(t1))
        k.I("v_sub_u32", v(t0), v(t0), v(t2))
        k.I("v_mul_u32_u24", v(vWo + b), 2688, v(t1))
        k.I("v_lshrrev_b32", v(t2), 2, v(t0))
        k.I("v_mul_u32_u24", v(t2), 896, v(t2))
        k.I("v_and_b32", v(t0), 3, v(t0))
        k.I("v_lshl_add_u32", v(t2), v(t0), 4, v(t2))
        k.I("v_add_u32", v(vWo + b), v(vWo + b), v(t2))
        if os.environ.get("EXP_WCONT"):
            k.I("v_lshlrev_b32", v(vWo + b), 4, v(lane))
            k.I("v_add_u32", v(vWo + b), 1024 * b, v(vWo + b))
    sWb = k.salloc(); sm0 = k.salloc(); sXb = k.salloc(); sm0x = k.salloc()
    k.I("s_mul_i32", s(sWb), s(shd), 56)
    k.I("s_mul_i32", s(st0), s(sw3), 16 * 2688)
    k.I("s_add_u32", s(sWb), s(sWb), s(st0))
    k.I("s_mul_i32", s(sm0), s(sw3), 3 * 1024)
    k.I("s_lshl_b32", s(st0), s(srb), 7)
    k.I("s_lshl_b32", s(st1), s(sw3), 5)
    k.I("s_add_u32", s(st0), s(st0), s(st1))
    k.I("s_mul_i32", s(sXb), s(st0), 896)
    k.I("s_mul_i32", s(sm0x), s(sw3), NXS * XSL)
    k.I("s_add_u32", s(sm0x), s(sm0x), XRING)
    def wdma(c, b):
        if os.environ.get("EXP_NODMA") and c >= 3: return
        k.I("s_add_u32", s(soff), s(sWb), hex(c * 64 * 2688))
        k.I("s_add_u32", "m0", s(sm0), hex(WREG + c * WCH + b * 1024))
        k.vm(("W", c), "buffer_load_dwordx4", v(vWo + b), sr(sW, 4), s(soff), mods="offen lds")
    def xdma(c, j):
        if os.environ.get("EXP_NODMA") and c >= 2: return
        k.I("s_add_u32", s(soff), s(sXb), hex(c * 128))
        k.I("s_add_u32", "m0", s(sm0x), hex((c % NXS) * XSL + j * 1024))
        k.vm(("X", c), "buffer_load_dwordx4", v(vXo + j), sr(sX, 4), s(soff), mods="offen lds")
    for c in range(2):
        for b in range(3): wdma(c, b)
        for j in range(4): xdma(c, j)
    for b in range(3): wdma(2, b)
    LT = os.environ.get("TICKWAVE", "0") != "0"
    if LT: stp.tick(0)
    for c in range(7):
        k.wait_vm([("W", c), ("X", c)])
        if LT and c < 5: stp.tick(1 + 3 * c)
        k.I("s_barrier")
        if LT and c < 5: stp.tick(2 + 3 * c)
        if c + 2 <= 6:
            for j in range(4): xdma(c + 2, j)
        if c + 3 <= 6:
            for b in range(3): wdma(c + 3, b)
        if LT and c < 5: stp.tick(3 + 3 * c)
    vTp = k.valloc()
    k.I("s_lshr_b32", s(st0), "s2", 3)
    k.I("s_lshl_b32", s(st0), s(st0), 8)
    k.I("v_subrev_u32", v(vTp), 256, "v0")
    k.I("v_add_u32", v(vTp), s(st0), v(vTp))
    k.I("v_lshlrev_b32", v(vTp), 7, v(vTp))
    import kernels2
    k.I("s_barrier")
    if LT:
        srd(k, sWS, pWS, WS_SIZE)
        stp.dump_ticks()
    k.I("s_endpgm")
    k.L(comp)
    k.vnext = vsave; k.vmq = []; k.lgq = []
    vpf = k.valloc(); vpd = k.valloc(4)
    k.I("s_lshr_b32", s(st0), "s2", 3)
    k.I("s_lshl_b32", s(st0), s(st0), 8)
    k.I("v_add_u32", v(vpf), s(st0), "v0")
    k.I("v_lshlrev_b32", v(vpf), 7, v(vpf))
    if not os.environ.get("EXP_NOPF"):
        k.I("buffer_load_dword", v(vpd), v(vpf), sr(sW, 4), 0, mods="offen")
        k.I("v_add_u32", v(vpf), 8192 * 128, v(vpf))
        k.I("buffer_load_dword", v(vpd + 1), v(vpf), sr(sW, 4), 0, mods="offen")
        k.I("s_and_b32", s(st0), "s2", 7)
        k.I("s_mul_i32", s(st0), s(st0), 256 * 896)
        k.I("v_subrev_u32", v(vpf), 9408 * 128, v(vpf))
        k.I("v_mov_b32", v(t0), hex(256 * 896))
        k.I("v_cmp_lt_u32", "vcc", v(vpf), v(t0))
        k.I("v_mov_b32", v(t1), "0x7fffff00")
        k.I("v_cndmask_b32", v(vpf), v(t1), v(vpf), "vcc")
        k.I("buffer_load_dword", v(vpd + 2), v(vpf), sr(sX, 4), s(st0), mods="offen")
    sidx1 = k.salloc()
    k.I("s_lshr_b32", s(sidx1), "s2", 3)
    import kernels2
    kernels2.code_prefetch(k, "k2_attn_kernel", sidx1, st0)
    if os.environ.get("PF2", "0") == "1":
        pp = k.salloc(2); sP = k.salloc(4); vT = k.valloc(); vd = k.valloc(8)
        k.I("s_lshr_b32", s(st0), "s2", 3)
        k.I("s_lshl_b32", s(st0), s(st0), 8)
        k.I("v_add_u32", v(vT), s(st0), "v0")
        k.I("v_lshlrev_b32", v(vT), 7, v(vT))
        k.I("s_getpc_b64", sr(pp, 2))
        k.I("s_and_b32", s(pp), s(pp), "0xffffff00")
        srd(k, sP, pp, "CODE_BYTES-4096")
        k.I("buffer_load_dword", v(vd), v(vT), sr(sP, 4), 0, mods="offen")
        for (ko, nbytes, n) in ((16, 448 * 896, 1), (32, 448 * 3584, 2)):
            k.I("s_load_dwordx2", sr(pp, 2), "s[0:1]", ko)
            k.I("s_waitcnt", "lgkmcnt(0)")
            srd(k, sP, pp, nbytes)
            for i in range(n):
                k.I("s_mov_b32", s(st0), hex(i * 8192 * 128))
                k.I("buffer_load_dword", v(vd + 1 + i + (0 if ko == 16 else 1)), v(vT), sr(sP, 4), s(st0), mods="offen")
        vG = k.valloc()
        k.I("s_lshl_b32", s(st0), "s2", 8)
        k.I("v_add_u32", v(vG), s(st0), "v0")
        k.I("v_lshlrev_b32", v(vG), 7, v(vG))
        for n_, (ko, nbytes) in enumerate(((40, 2048 * 4096), (56, 896 * 896))):
            k.I("s_load_dwordx2", sr(pp, 2), "s[0:1]", ko)
            k.I("s_waitcnt", "lgkmcnt(0)")
            srd(k, sP, pp, nbytes)
            k.I("buffer_load_dword", v(vd + 5 + n_), v(vG), sr(sP, 4), 0, mods="offen")
        srd(k, sP, pWS, 0x1C00000)
        k.I("v_lshlrev_b32", v(t0), 9, v(vT))
        k.I("buffer_load_dword", v(vd + 4), v(t0), sr(sP, 4), 0, mods="offen")
    sm0x = k.salloc()
    k.I("s_mul_i32", s(sm0x), s(swave), NXS * XSL)
    k.I("s_add_u32", s(sm0x), s(sm0x), XRING)
    aX = k.valloc(4); vW = k.valloc(); aG = k.valloc(4); vWj = k.valloc()
    gg = k.valloc()
    k.I("v_and_b32", v(l31), 31, "v0")
    k.I("v_bfe_u32", v(hh), "v0", 5, 1)
    k.I("v_lshrrev_b32", v(gg), 4, v(lane))
    k.I("v_bfe_u32", v(t0), v(l31), 1, 3)
    for j in range(4):
        k.I("v_add_u32", v(t1), 2 * j, v(hh))
        k.I("v_xor_b32", v(t1), v(t1), v(t0))
        k.I("v_lshlrev_b32", v(t1), 4, v(t1))
        k.I("v_lshl_add_u32", v(aX + j), v(l31), 7, v(t1))
        k.I("v_add_u32", v(aX + j), s(sm0x), v(aX + j))
    for rg in range(2):
        k.I("v_add_u32", v(t0), 16 * rg, v(l15))
        k.I("v_bfe_u32", v(t1), v(t0), 1, 3)
        for kk in range(2):
            k.I("v_add_u32", v(t2), 4 * kk, v(gg))
            k.I("v_xor_b32", v(t2), v(t2), v(t1))
            k.I("v_lshlrev_b32", v(t2), 4, v(t2))
            k.I("v_lshl_add_u32", v(aG + 2 * rg + kk), v(t0), 7, v(t2))
            k.I("v_add_u32", v(aG + 2 * rg + kk), s(sm0x), v(aG + 2 * rg + kk))
    k.I("v_bfe_u32", v(t0), "v0", 2, 2)
    k.I("v_lshl_add_u32", v(t1), v(hh), 3, v(t0))
    k.I("v_mul_u32_u24", v(t1), 192, v(t1))
    k.I("v_bfe_u32", v(t2), "v0", 4, 1)
    k.I("v_lshl_add_u32", v(t1), v(t2), 5, v(t1))
    k.I("v_and_b32", v(t2), 3, "v0")
    k.I("v_lshl_add_u32", v(vW), v(t2), 3, v(t1))
    k.I("v_lshl_add_u32", v(t0), v(gg), 3, v(t0))
    k.I("v_mul_u32_u24", v(t0), 192, v(t0))
    k.I("v_lshl_add_u32", v(vWj), v(t2), 3, v(t0))
    k.I("s_lshr_b32", s(st0), s(swave), 1)
    k.I("s_mul_i32", s(st0), s(st0), 32 * 192)
    k.I("s_and_b32", s(st1), s(swave), 1)
    k.I("s_mul_i32", s(st1), s(st1), 96)
    k.I("s_add_u32", s(st0), s(st0), s(st1))
    k.I("v_add_u32", v(vWj), s(st0), v(vWj))
    vW2 = k.valloc(); vWj2 = k.valloc()
    k.I("v_add_u32", v(vW2), 4 * WCH, v(vW))
    k.I("v_add_u32", v(vWj2), 4 * WCH, v(vWj))
    ones = k.valloc(4)
    vWq = k.valloc(); vInc = k.valloc()
    k.I("v_and_b32", v(t0), 19, v(lane))
    k.I("v_cmp_eq_u32", "vcc", 19, v(t0))
    k.I("v_mov_b32", v(t1), ONES)
    k.I("v_cndmask_b32", v(vWq), v(vW), v(t1), "vcc")
    k.I("v_mov_b32", v(t1), 16 * 192)
    k.I("v_cndmask_b32", v(vInc), v(t1), 0, "vcc")
    k.I("v_lshlrev_b32", v(t0), 4, v(lane))
    k.I("v_add_u32", v(t0), ONES, v(t0))
    for i in range(4): k.I("v_mov_b32", v(ones + i), "0x3f803f80")
    k.lg("z", "ds_write_b128", v(t0), vr(ones, 4))
    zz = k.valloc(2); vtb = k.valloc()
    k.I("v_mov_b32", v(zz), 0); k.I("v_mov_b32", v(zz + 1), 0)
    k.I("v_lshlrev_b32", v(vtb), 3, v(lane))
    k.I("v_add_u32", v(vtb), CWT, v(vtb))
    k.lg("z", "ds_write_b64", v(vtb), vr(zz, 2))
    accq = k.valloc(16, 4); acck = k.valloc(16, 4); accv = k.valloc(16, 4)
    NB = 3
    cacc = [k.valloc(4) for _ in range(3)]
    gacc = [k.valloc(4) for _ in range(2)]
    vmark = k.vnext
    xf = [k.valloc(4) for _ in range(NB)]
    wf = [[k.valloc(4) for _ in range(3)] for _ in range(NB)]
    xs = [k.valloc(4) for _ in range(4)]
    wf2 = [k.valloc(4) for _ in range(3)]
    def read_list(ks):
        c, j = ks // 4, ks % 4
        b = ks % NB
        out = [lambda: k.lg(("f", ks), "ds_read_b128", vr(xf[b], 4), v(aX + j), mods=f"offset:{(c % NXS) * XSL}")]
        for beta in range(2):
            out.append(lambda beta=beta: k.lg(("f", ks), "ds_read_b64_tr_b16", vr(wf[b][0] + 2 * beta, 2), v(vWq), mods=f"offset:{beta * 4 * 192}"))
        out.append(lambda: k.I("v_add_u32", v(vWq), v(vInc), v(vWq)))
        for sg in range(1, 3):
            for beta in range(2):
                o = (c % 4) * WCH + (16 * j + 4 * beta) * 192 + 64 * sg
                base = vW if c < 4 else vW2
                out.append(lambda o=o, sg=sg, beta=beta, base=base: k.lg(("f", ks), "ds_read_b64_tr_b16", vr(wf[b][sg] + 2 * beta, 2), v(base), mods=f"offset:{o}"))
        return out
    def aux_reads(c):
        out = []
        for j in range(4):
            out.append(lambda j=j: k.lg(("g", c), "ds_read_b128", vr(xs[j], 4), v(aG + j), mods=f"offset:{(c % NXS) * XSL}"))
        for nt in range(3):
            for beta in range(2):
                o = (c % 4) * WCH + (4 * beta) * 192 + 32 * nt
                base = vWj if c < 4 else vWj2
                out.append(lambda o=o, nt=nt, beta=beta, base=base: k.lg(("cw", c), "ds_read_b64_tr_b16", vr(wf2[nt] + 2 * beta, 2), v(base), mods=f"offset:{o}"))
        return out
    k.I("s_waitcnt", "lgkmcnt(0)")
    srd(k, sWS, pWS, WS_SIZE)
    stp.stamp(0)
    k.wait_lg("z")
    k.I("s_barrier")
    stp.stamp(1)
    if os.environ.get("TICKWAVE", "0") != "0": stp.tick = lambda i: None
    stp.tick(0)
    for f in read_list(0): f()
    for f in read_list(1): f()
    for ks in range(28):
        c, j = ks // 4, ks % 4
        b = ks % NB
        fill = []
        if ks + 2 < 28:
            fill += read_list(ks + 2)
        vm = []
        aux = []
        if j == 0: aux = aux_reads(c)[:4]
        if j == 1: aux = aux_reads(c)[4:]
        if os.environ.get("EXP_NOCOMP"):
            k.lgq = []
            if j == 1 and c < 6:
                k.I("s_barrier"); stp.tick(1 + c)
            continue
        k.wait_lg(("f", ks))
        mf = [
            lambda: k.I("v_mfma_f32_32x32x16_bf16", vr(accq, 16), vr(wf[b][0], 4), vr(xf[b], 4), 0 if ks == 0 else vr(accq, 16)),
            lambda: k.I("v_mfma_f32_32x32x16_bf16", vr(acck, 16), vr(wf[b][1], 4), vr(xf[b], 4), 0 if ks == 0 else vr(acck, 16)),
            lambda: k.I("v_mfma_f32_32x32x16_bf16", vr(accv, 16), vr(xf[b], 4), vr(wf[b][2], 4), 0 if ks == 0 else vr(accv, 16)),
        ]
        fl = fill + aux + vm
        n = len(fl)
        cuts = [0, (n + 2) // 3, (2 * n + 2) // 3, n]
        for i in range(3):
            mf[i]()
            for f in fl[cuts[i]:cuts[i + 1]]: f()
        if j == 2:
            k.wait_lg(("g", c))
            for jj in range(4):
                k.I("v_mfma_f32_16x16x32_bf16", vr(gacc[jj >> 1], 4), vr(xs[jj], 4), vr(xs[jj], 4), 0 if (c == 0 and (jj & 1) == 0) else vr(gacc[jj >> 1], 4))
        if j == 3:
            k.wait_lg(("cw", c))
            for nt in range(3):
                k.I("v_mfma_f32_16x16x32_bf16", vr(cacc[nt], 4), vr(ones, 4), vr(wf2[nt], 4), 0 if c == 0 else vr(cacc[nt], 4))
        if j == 1 and c < 6:
            k.I("s_barrier")
            stp.tick(1 + c)
    stp.tick(13)
    stp.stamp(2)
    k.vnext = vmark
    m1 = k.salloc(2); m2 = k.salloc(2); m3 = k.salloc(2)
    k.I("v_and_b32", v(t0), 3, v(lane))
    k.I("v_cmp_eq_u32", sr(m1, 2), 1, v(t0))
    k.I("v_cmp_eq_u32", sr(m2, 2), 2, v(t0))
    k.I("v_cmp_eq_u32", sr(m3, 2), 3, v(t0))
    vtl = k.valloc()
    k.I("v_lshlrev_b32", v(vtl), 2, v(l15))
    k.I("v_add_u32", v(vtl), TBL, v(vtl))
    k.I("s_and_b32", s(st1), s(swave), 1)
    k.I("s_mul_i32", s(st1), s(st1), 192)
    k.I("v_add_u32", v(t1), s(st1), v(vtl))
    k.I("s_mov_b32", "exec_lo", "0xffff")
    k.I("s_mov_b32", "exec_hi", 0)
    for nt in range(3):
        k.I("ds_add_f32", v(t1), v(cacc[nt]), mods=f"offset:{64 * nt}")
    k.I("s_mov_b64", "exec", -1)
    for rg in range(2):
        g_ = gacc[rg]
        k.I("v_cndmask_b32", v(g_), v(g_), v(g_ + 1), sr(m1, 2))
        k.I("v_cndmask_b32", v(g_), v(g_), v(g_ + 2), sr(m2, 2))
        k.I("v_cndmask_b32", v(g_), v(g_), v(g_ + 3), sr(m3, 2))
    k.I("s_lshl_b32", s(st0), s(swave), 7)
    k.I("v_add_u32", v(t0), s(st0), v(vtl))
    k.I("s_mov_b32", "exec_lo", "0x00f0000f")
    k.I("s_mov_b32", "exec_hi", "0xf0000f00")
    for rg in range(2):
        k.I("ds_write_b32", v(t0), v(gacc[rg]), mods=f"offset:{SQT - TBL + 64 * rg}")
    k.I("s_mov_b64", "exec", -1)
    sq = k.valloc(2); rl = k.valloc(2); nml = k.valloc(2); cwv = k.valloc(2)
    cwq = k.valloc(16, 4); cwk = k.valloc(16, 4); rv = k.valloc(16, 4); nv = k.valloc(16, 4)
    ta = k.valloc(); tb = k.valloc(); tc = k.valloc()
    k.I("v_lshlrev_b32", v(ta), 2, v(l31))
    k.I("s_add_u32", s(st0), s(st0), TBL)
    k.I("v_add_u32", v(ta), s(st0), v(ta))
    k.I("v_mov_b32", v(nml), v(accq + 12))
    k.I("v_mov_b32", v(nml + 1), v(accq + 12))
    k.I("v_permlane32_swap_b32", v(nml), v(nml + 1))
    k.I("v_mul_f32", v(nml), hex(f32(-1.0 / 448)), v(nml + 1))
    k.I("s_waitcnt", "lgkmcnt(0)")
    k.I("ds_read_b32", v(sq), v(ta), mods=f"offset:{SQT - TBL}")
    k.I("ds_write_b32", v(ta), v(nml), mods=f"offset:{NMT - TBL}")
    k.I("s_barrier")
    k.I("v_lshlrev_b32", v(tb), 4, v(hh))
    k.I("v_add_u32", v(tb), TBL, v(tb))
    for q in range(4):
        k.I("ds_read_b128", vr(cwq + 4 * q, 4), v(tb), mods=f"offset:{CWT - TBL + 32 * q}")
        k.I("ds_read_b128", vr(cwk + 4 * q, 4), v(tb), mods=f"offset:{CWT - TBL + 128 + 32 * q}")
    k.I("v_lshlrev_b32", v(tc), 2, v(l31))
    k.I("v_add_u32", v(tc), TBL, v(tc))
    k.I("ds_read_b32", v(cwv), v(tc), mods=f"offset:{CWT - TBL + 256}")
    k.I("s_waitcnt", "lgkmcnt(9)")
    k.I("v_mul_f32", v(sq), hex(f32(1.0 / 448)), v(sq))
    k.I("v_fma_f32", v(sq), f"-{v(nml)}", v(nml), v(sq))
    k.I("v_max_f32", v(sq), 0, v(sq))
    k.I("v_add_f32", v(sq), hex(f32(1e-5)), v(sq))
    k.I("v_rsq_f32", v(rl), v(sq))
    k.I("s_lshl_b32", s(st0), s(swave), 7)
    k.I("v_add_u32", v(tb), s(st0), v(tb))
    k.I("ds_write_b32", v(ta), v(rl), mods=f"offset:{RT - TBL}")
    k.I("s_waitcnt", "lgkmcnt(0)")
    for q in range(4):
        k.I("ds_read_b128", vr(rv + 4 * q, 4), v(tb), mods=f"offset:{RT - TBL + 32 * q}")
        k.I("ds_read_b128", vr(nv + 4 * q, 4), v(tb), mods=f"offset:{NMT - TBL + 32 * q}")
    k.lgq = []
    vq = k.valloc(); vv_ = k.valloc()
    k.I("v_lshrrev_b32", v(t0), 4, v(l31))
    k.I("v_lshlrev_b32", v(vq), 10, v(t0))
    k.I("v_lshl_add_u32", v(vq), v(l15), 4, v(vq))
    k.I("v_lshl_add_u32", v(vq), v(hh), 9, v(vq))
    k.I("v_lshlrev_b32", v(vv_), 9, v(t0))
    k.I("v_lshl_add_u32", v(vv_), v(l15), 3, v(vv_))
    k.I("v_lshl_add_u32", v(vv_), v(hh), 7, v(vv_))
    sb = k.salloc()
    k.I("s_lshl_b32", s(sb), s(shd), 17)
    k.I("s_lshl_b32", s(st0), s(srb), 13)
    k.I("s_add_u32", s(sb), s(sb), s(st0))
    k.I("s_lshl_b32", s(st0), s(swave), 11)
    k.I("s_add_u32", s(sb), s(sb), s(st0))
    k.I("v_cmp_eq_u32", "vcc", 0, v(hh))
    pk = k.valloc(8, 4)
    for (acc, cw, off) in ((accq, cwq, Q_OFF), (acck, cwk, K_OFF)):
        for j in range(8):
            k.I("v_pk_fma_f32", vr(acc + 2 * j, 2), vr(cw + 2 * j, 2), vr(nml, 2), vr(acc + 2 * j, 2), mods="op_sel_hi:[1,0,1]")
        for j in range(8):
            k.I("v_pk_mul_f32", vr(acc + 2 * j, 2), vr(acc + 2 * j, 2), vr(rl, 2), mods="op_sel_hi:[1,0]")
        for j in range(8):
            k.I("v_cvt_pk_bf16_f32", v(pk + j), v(acc + 2 * j), v(acc + 2 * j + 1))
        k.I("v_cndmask_b32", v(pk + 6), 0, v(pk + 6), "vcc")
        k.I("v_cndmask_b32", v(pk + 7), 0, v(pk + 7), "vcc")
        k.I("s_add_u32", s(soff), s(sb), hex(off))
        k.I("buffer_store_dwordx4", vr(pk, 4), v(vq), sr(sWS, 4), s(soff), mods="offen")
        k.I("buffer_store_dwordx4", vr(pk + 4, 4), v(vq), sr(sWS, 4), s(soff), mods="offen offset:256")
        pk = k.valloc(8, 4)
    k.I("s_waitcnt", "lgkmcnt(0)")
    for j in range(8):
        k.I("v_pk_fma_f32", vr(accv + 2 * j, 2), vr(nv + 2 * j, 2), vr(cwv, 2), vr(accv + 2 * j, 2), mods="op_sel_hi:[1,0,1]")
    for j in range(8):
        k.I("v_pk_mul_f32", vr(accv + 2 * j, 2), vr(accv + 2 * j, 2), vr(rv + 2 * j, 2))
    for j in range(8):
        k.I("v_cvt_pk_bf16_f32", v(pk + j), v(accv + 2 * j), v(accv + 2 * j + 1))
    k.I("v_mov_b32", v(t0), "0x3f803f80")
    k.I("v_cmp_eq_u32", "vcc", 28, v(l31))
    k.I("v_cndmask_b32", v(t0), 0, v(t0), "vcc")
    k.I("v_cmp_gt_u32", "vcc", 28, v(l31))
    for j in range(8):
        k.I("v_cndmask_b32", v(pk + j), v(t0), v(pk + j), "vcc")
    k.I("s_add_u32", s(soff), s(sb), hex(V_OFF))
    for q in range(4):
        k.I("buffer_store_dwordx2", vr(pk + 2 * q, 2), v(vv_), sr(sWS, 4), s(soff), mods=f"offen offset:{(q >> 1) * 1024 + (q & 1) * 256}")
    stp.tick(15)
    stp.stamp(3)
    stp.dump_ticks()
    k.L(done)
    k.I("s_endpgm")
    k.lds = lds; k.threads = 512; k.grid = 256
    return k

import struct
def f32(x): return struct.unpack("<I", struct.pack("<f", x))[0]

def assemble(kernels):
    out = []
    hdr = open("cdna_kernels/" + NAME + ".s.ref").read().split("\n")
    for line in hdr:
        if line.startswith("; Override") or line.startswith("; grid=") or line.startswith("; @launch"): continue
        if not line.startswith(";"): break
        out.append(line)
    for k in kernels:
        out.append(f"; @launch kernel={k.name} grid=({k.grid},1,1) block=({k.threads},1,1) lds={k.lds}")
    out.append('.amdgcn_target "amdgcn-amd-amdhsa--gfx950"')
    out.append(".text")
    for k in kernels:
        n = k.fix_hazards()
        out.append(f".globl {k.name}")
        out.append(".p2align 8")
        out.append(f".type {k.name},@function")
        out.append(f"{k.name}:")
        out.append(k.render())
        out.append(f"{k.name}_end:")
        print(f"{k.name}: {len(k.ins)} instrs, hazard pads {n}, vgpr {k.vmax} agpr {k.amax} sgpr {k.smax} lds {k.lds}", file=sys.stderr)
    out.append("code_end:")
    out.append(f".set CODE_BYTES, code_end - {kernels[0].name}")
    out.append('.section .rodata,"a"')
    for k in kernels:
        out.append(".p2align 6")
        out.append(k.descriptor())
    return "\n".join(out) + "\n"

if __name__ == "__main__":
    import kernels2 as k2
    ks = [gen_k1()] + k2.rest(Stamper)
    path = sys.argv[1] if len(sys.argv) > 1 else "cdna_kernels/" + NAME + ".s"
    open(path, "w").write(assemble(ks))
```

```python
import os, struct, math
from asmlib import *
from layout import *
WS_SIZE = 0x10000000
def f32(x): return struct.unpack("<I", struct.pack("<f", x))[0]

def srd(k, dst, base, size):
    k.I("s_mov_b32", s(dst), s(base))
    k.I("s_and_b32", s(dst + 1), s(base + 1), "0xffff")
    k.I("s_mov_b32", s(dst + 2), hex(size) if isinstance(size, int) else size)
    k.I("s_mov_b32", s(dst + 3), "0x20000")

def gen_k2(Stamper):
    k = Kernel("k2_attn_kernel")
    k.snext = 4; k.vnext = 1
    KREG = 0; VREG = 24576
    lds = 49152
    done = k.newlabel("done")
    k.I("s_cmp_ge_u32", "s2", 256)
    k.I("s_cbranch_scc1", done)
    pWS = k.salloc(2)
    k.I("s_load_dwordx2", sr(pWS, 2), "s[0:1]", 80)
    sWS = k.salloc(4)
    swave = k.salloc(); srb = k.salloc(); shd = k.salloc(); st0 = k.salloc(); st1 = k.salloc(); soff = k.salloc()
    lane = k.valloc(); t0 = k.valloc(); t1 = k.valloc(); l15 = k.valloc(); gg = k.valloc()
    k.I("v_lshrrev_b32", v(t0), 6, "v0")
    k.I("v_and_b32", v(lane), 63, "v0")
    k.I("v_readfirstlane_b32", s(swave), v(t0))
    k.I("s_and_b32", s(st0), "s2", 7)
    k.I("s_lshr_b32", s(st1), "s2", 3)
    k.I("s_and_b32", s(shd), s(st1), 15)
    k.I("s_lshr_b32", s(st1), s(st1), 4)
    k.I("s_lshl_b32", s(srb), s(st0), 1)
    k.I("s_add_u32", s(srb), s(srb), s(st1))
    stp = Stamper(k, 1, sWS, swave)
    v16 = k.valloc()
    k.I("v_lshlrev_b32", v(v16), 4, v(lane))
    sb = k.salloc(); sm = k.salloc(); s16q = k.salloc()
    k.I("s_lshl_b32", s(sb), s(shd), 17)
    k.I("s_lshl_b32", s(st0), s(srb), 13)
    k.I("s_add_u32", s(sb), s(sb), s(st0))
    k.I("s_mul_i32", s(sm), s(swave), 3072)
    k.I("s_lshl_b32", s(s16q), s(srb), 3)
    k.I("s_add_u32", s(s16q), s(s16q), s(swave))
    k.I("s_waitcnt", "lgkmcnt(0)")
    srd(k, sWS, pWS, WS_SIZE)
    qf = k.valloc(4)
    k.I("s_lshl_b32", s(st0), s(swave), 10)
    k.I("s_add_u32", s(st0), s(st0), s(sb))
    k.I("s_add_u32", s(soff), s(st0), hex(Q_OFF))
    k.vm("q", "buffer_load_dwordx4", vr(qf, 4), v(v16), sr(sWS, 4), s(soff), mods="offen")
    k.I("s_add_u32", s(st1), s(sb), s(sm))
    for (reg, off) in ((KREG, K_OFF), (VREG, V_OFF)):
        for i in range(3):
            k.I("s_add_u32", s(soff), s(st1), hex(off - 16384 + i * 1024))
            k.I("s_add_u32", "m0", s(sm), hex(reg + i * 1024))
            k.vm("kv", "buffer_load_dwordx4", v(v16), sr(sWS, 4), s(soff), mods="offen lds")
    sidx2 = k.salloc()
    k.I("s_lshr_b32", s(sidx2), "s2", 3)
    code_prefetch(k, "k3_wo_kernel", sidx2, st0)
    stp.stamp(0)
    k.I("v_and_b32", v(l15), 15, v(lane))
    k.I("v_lshrrev_b32", v(gg), 4, v(lane))
    M = [k.salloc(2) for _ in range(4)]
    k.I("v_lshlrev_b32", v(t0), 2, v(gg))
    for i in range(4):
        k.I("v_add_u32", v(t1), i, v(t0))
        k.I("v_cmp_gt_u32", sr(M[i], 2), v(t1), v(l15))
    aK = k.valloc(); aV = k.valloc()
    k.I("s_lshl_b32", s(st0), s(swave), 10)
    k.I("v_add_u32", v(aK), s(st0), v(v16))
    k.I("v_lshlrev_b32", v(aV), 3, v(lane))
    k.I("s_add_u32", s(st0), s(st0), VREG)
    k.I("v_add_u32", v(aV), s(st0), v(aV))
    S = k.valloc(68, 4)
    kf = [k.valloc(4) for _ in range(6)]
    neg = k.valloc()
    k.I("v_mov_b32", v(neg), hex(f32(-1e30)))
    k.wait_vm(["q", "kv"])
    k.I("s_barrier")
    stp.stamp(1)
    NKF = 6
    for j in range(min(NKF, 17)):
        k.lg(("k", j), "ds_read_b128", vr(kf[j % NKF], 4), v(aK), mods=f"offset:{j * 1024}")
    for j in range(17):
        k.wait_lg(("k", j))
        k.I("v_mfma_f32_16x16x32_bf16", vr(S + 4 * j, 4), vr(kf[j % NKF], 4), vr(qf, 4), 0)
        if j + NKF < 17:
            k.lg(("k", j + NKF), "ds_read_b128", vr(kf[j % NKF], 4), v(aK), mods=f"offset:{(j + NKF) * 1024}")
    vT = k.valloc()
    k.I("s_lshl_b32", s(st0), s(sidx2), 9)
    k.I("v_add_u32", v(vT), s(st0), "v0")
    k.I("v_lshlrev_b32", v(vT), 7, v(vT))
    l2_prefetch(k, 32, 448 * 3584, vT, 16384, st0)
    k.lgq = []
    vf = k.valloc(9 * 2 * 4, 4)
    def vread(kp):
        for dt in range(2):
            for beta in range(2):
                tile = min(2 * kp + beta, 16)
                k.lg(("v", kp), "ds_read_b64", vr(vf + (kp * 2 + dt) * 4 + 2 * beta, 2), v(aV), mods=f"offset:{tile * 1024 + dt * 512}")
    for kp in range(3): vread(kp)
    for i in range(4):
        k.I("v_cndmask_b32", v(S + i), v(neg), v(S + i), sr(M[i], 2))
        k.I("v_cndmask_b32", v(S + 64 + i), v(S + 64 + i), v(neg), sr(M[i], 2))
    nofix = k.newlabel("nofix")
    k.I("s_cmp_ge_u32", s(s16q), 16)
    k.I("s_cbranch_scc1", nofix)
    k.I("s_sub_u32", s(st0), 16, s(s16q))
    for j in range(16):
        lab = k.newlabel("sk")
        k.I("s_cmp_le_u32", s(st0), j)
        k.I("s_cbranch_scc1", lab)
        for i in range(4): k.I("v_mov_b32", v(S + 4 * j + i), v(neg))
        k.L(lab)
    k.L(nofix)
    mx = k.valloc(4)
    for c in range(4):
        k.I("v_max3_f32", v(mx + c), v(S + c * 17), v(S + c * 17 + 1), v(S + c * 17 + 2))
    for r in range(7):
        for c in range(4):
            b = c * 17 + 3 + 2 * r
            k.I("v_max3_f32", v(mx + c), v(mx + c), v(S + b), v(S + b + 1))
    k.I("v_max3_f32", v(mx), v(mx), v(mx + 1), v(mx + 2))
    k.I("v_max_f32", v(mx), v(mx), v(mx + 3))
    for sw in ("v_permlane16_swap_b32", "v_permlane32_swap_b32"):
        k.I("v_mov_b32", v(mx + 1), v(mx))
        k.I(sw, v(mx), v(mx + 1))
        k.I("v_max_f32", v(mx), v(mx), v(mx + 1))
    cs = 28 ** -0.5 * math.log2(math.e)
    sc = k.salloc()
    k.I("s_mov_b32", s(sc), hex(f32(cs)))
    k.I("v_mul_f32", v(mx), hex(f32(-cs)), v(mx))
    for kp in range(3, 6): vread(kp)
    P = k.valloc(36, 4)
    k.I("v_mov_b32", v(P + 34), 0); k.I("v_mov_b32", v(P + 35), 0)
    O = [k.valloc(4), k.valloc(4)]
    def softmax_tile(j):
        for i in range(4): k.I("v_fma_f32", v(S + 4 * j + i), v(S + 4 * j + i), s(sc), v(mx))
        for i in range(4): k.I("v_exp_f32", v(S + 4 * j + i), v(S + 4 * j + i))
    def pack_tile(j):
        k.I("v_cvt_pk_bf16_f32", v(P + 2 * j), v(S + 4 * j), v(S + 4 * j + 1))
        k.I("v_cvt_pk_bf16_f32", v(P + 2 * j + 1), v(S + 4 * j + 2), v(S + 4 * j + 3))
    for kp in range(9):
        tiles = [2 * kp, 2 * kp + 1] if kp < 8 else [16]
        for j in tiles: softmax_tile(j)
        for j in tiles: pack_tile(j)
        if kp == 2:
            for q in range(6, 9): vread(q)
        if kp >= 1:
            q = kp - 1
            k.wait_lg(("v", q))
            for dt in range(2):
                k.I("v_mfma_f32_16x16x32_bf16", vr(O[dt], 4), vr(vf + (q * 2 + dt) * 4, 4), vr(P + 4 * q, 4), 0 if q == 0 else vr(O[dt], 4))
    k.wait_lg(("v", 8))
    for dt in range(2):
        k.I("v_mfma_f32_16x16x32_bf16", vr(O[dt], 4), vr(vf + (8 * 2 + dt) * 4, 4), vr(P + 32, 4), vr(O[dt], 4))
    la = k.valloc(); lb = k.valloc()
    k.I("v_mov_b32", v(la), v(O[1])); k.I("v_mov_b32", v(lb), v(O[1]))
    k.I("v_permlane32_swap_b32", v(la), v(lb))
    k.I("v_mov_b32", v(la), v(lb))
    k.I("v_permlane16_swap_b32", v(la), v(lb))
    k.I("v_rcp_f32", v(lb), v(lb))
    for dt in range(2):
        for i in range(4): k.I("v_mul_f32", v(O[dt] + i), v(O[dt] + i), v(lb))
    pk = k.valloc(4)
    for dt in range(2):
        k.I("v_cvt_pk_bf16_f32", v(pk + 2 * dt), v(O[dt]), v(O[dt] + 1))
        k.I("v_cvt_pk_bf16_f32", v(pk + 2 * dt + 1), v(O[dt] + 2), v(O[dt] + 3))
    k.I("v_cmp_gt_u32", "vcc", 3, v(gg))
    k.I("v_cndmask_b32", v(pk + 2), 0, v(pk + 2), "vcc")
    k.I("v_cndmask_b32", v(pk + 3), 0, v(pk + 3), "vcc")
    vo = k.valloc()
    k.I("s_and_b32", s(st0), s(swave), 1)
    k.I("s_lshl_b32", s(st0), s(st0), 8)
    k.I("v_lshlrev_b32", v(vo), 4, v(l15))
    k.I("v_add_u32", v(vo), s(st0), v(vo))
    k.I("v_lshrrev_b32", v(t0), 1, v(gg))
    k.I("v_lshl_add_u32", v(vo), v(t0), 9, v(vo))
    k.I("v_and_b32", v(t0), 1, v(gg))
    k.I("v_lshl_add_u32", v(vo), v(t0), 3, v(vo))
    k.I("s_lshl_b32", s(st0), s(srb), 2)
    k.I("s_lshr_b32", s(st1), s(swave), 1)
    k.I("s_add_u32", s(st0), s(st0), s(st1))
    k.I("s_lshl_b32", s(st0), s(st0), 15)
    k.I("s_lshl_b32", s(st1), s(shd), 11)
    k.I("s_add_u32", s(st0), s(st0), s(st1))
    k.I("s_add_u32", s(soff), s(st0), hex(O_OFF))
    for dt in range(2):
        k.I("buffer_store_dwordx2", vr(pk + 2 * dt, 2), v(vo), sr(sWS, 4), s(soff), mods=f"offen offset:{dt * 1024}")
    stp.stamp(2)
    k.L(done)
    k.I("s_endpgm")
    k.lds = lds; k.threads = 512; k.grid = 256
    return k


def code_prefetch(k, nxt, sidx, tmp_s, tid="v0"):
    if os.environ.get("PFC", "1") != "1": return
    pp = k.salloc(2); sP = k.salloc(4); vT = k.valloc(); vd = k.valloc()
    lab = k.newlabel("pc")
    k.I("s_getpc_b64", sr(pp, 2))
    k.L(lab)
    k.I("s_add_u32", s(pp), s(pp), f"{nxt}-{lab}")
    k.I("s_addc_u32", s(pp + 1), s(pp + 1), 0)
    srd(k, sP, pp, f"{nxt}_end-{nxt}")
    k.I("s_lshl_b32", s(tmp_s), s(sidx), 8)
    k.I("v_add_u32", v(vT), s(tmp_s), tid)
    k.I("v_lshlrev_b32", v(vT), 7, v(vT))
    k.vm("pfc", "buffer_load_dword", v(vd), v(vT), sr(sP, 4), 0, mods="offen")

def l2_prefetch(k, kernarg_off, nbytes, vT128, nthreads, tmp_s):
    if os.environ.get("PFT", "0") != "1": return
    pp = k.salloc(2); sP = k.salloc(4)
    k.I("s_load_dwordx2", sr(pp, 2), "s[0:1]", kernarg_off)
    k.I("s_waitcnt", "lgkmcnt(0)")
    srd(k, sP, pp, nbytes)
    n = -(-nbytes // (128 * nthreads))
    for i in range(n):
        vd = k.valloc()
        k.I("s_mov_b32", s(tmp_s), hex(i * nthreads * 128))
        k.vm("pft", "buffer_load_dword", v(vd), v(vT128), sr(sP, 4), s(tmp_s), mods="offen")

def common_start(k, nwg):
    k.snext = 4; k.vnext = 1
    done = k.newlabel("done")
    k.I("s_cmp_ge_u32", "s2", nwg)
    k.I("s_cbranch_scc1", done)
    R = dict(done=done)
    R["swave"] = k.salloc(); R["st0"] = k.salloc(); R["st1"] = k.salloc(); R["soff"] = k.salloc()
    R["lane"] = k.valloc(); R["t0"] = k.valloc(); R["t1"] = k.valloc(); R["t2"] = k.valloc()
    k.I("v_lshrrev_b32", v(R["t0"]), 6, "v0")
    k.I("v_and_b32", v(R["lane"]), 63, "v0")
    k.I("v_readfirstlane_b32", s(R["swave"]), v(R["t0"]))
    return R

def interleave(k, mf, fl):
    n = len(fl); m = len(mf)
    cuts = [(i * n + m - 1) // m for i in range(m + 1)]
    cuts[-1] = n
    for i in range(m):
        mf[i]()
        for f in fl[cuts[i]:cuts[i + 1]]: f()

def stats_from_packed(k, P, n, accs, accq, tmp):
    for j in range(n):
        t = tmp[j % len(tmp)]
        k.I("v_lshlrev_b32", v(t), 16, v(P + j))
        k.I("v_and_b32", v(t + 1), "0xffff0000", v(P + j))
        if j == 0:
            k.I("v_pk_mul_f32", vr(accq, 2), vr(t, 2), vr(t, 2))
            k.I("v_mov_b32", v(accs), v(t)); k.I("v_mov_b32", v(accs + 1), v(t + 1))
        else:
            k.I("v_pk_add_f32", vr(accs, 2), vr(accs, 2), vr(t, 2))
            k.I("v_pk_fma_f32", vr(accq, 2), vr(t, 2), vr(t, 2), vr(accq, 2))
    k.I("v_add_f32", v(accs), v(accs), v(accs + 1))
    k.I("v_add_f32", v(accq), v(accq), v(accq + 1))
    for r_ in (accs, accq):
        k.I("v_mov_b32", v(r_ + 1), v(r_))
        k.I("v_permlane32_swap_b32", v(r_), v(r_ + 1))
        k.I("v_add_f32", v(r_), v(r_), v(r_ + 1))

def gen_k3(Stamper):
    k = Kernel("k3_wo_kernel")
    WREG = 0; OREG = 58368
    lds = OREG + 65536
    R = common_start(k, 256)
    swave, st0, st1, soff, lane, t0, t1, t2 = (R[x] for x in ("swave", "st0", "st1", "soff", "lane", "t0", "t1", "t2"))
    pX = k.salloc(2); pWo = k.salloc(2); pWin = k.salloc(2); pWS = k.salloc(2)
    k.I("s_load_dwordx2", sr(pX, 2), "s[0:1]", 0)
    k.I("s_load_dwordx2", sr(pWo, 2), "s[0:1]", 16)
    k.I("s_load_dwordx2", sr(pWin, 2), "s[0:1]", 32)
    k.I("s_load_dwordx2", sr(pWS, 2), "s[0:1]", 80)
    sWS = k.salloc(4); sWo = k.salloc(4); sX = k.salloc(4)
    sj = k.salloc(); sidx = k.salloc(); srt = k.salloc(); snt = k.salloc(); sw3 = k.salloc()
    k.I("s_and_b32", s(sj), "s2", 7)
    k.I("s_lshr_b32", s(sidx), "s2", 3)
    k.I("s_and_b32", s(sw3), s(swave), 3)
    stp = Stamper(k, 2, sWS, swave)
    aux = k.newlabel("aux")
    k.I("s_cmp_ge_u32", s(sidx), 28)
    k.I("s_cbranch_scc1", aux)
    k.I("s_mul_i32", s(st0), s(sidx), 37)
    k.I("s_lshr_b32", s(st0), s(st0), 8)
    k.I("s_mul_i32", s(st1), s(st0), 7)
    k.I("s_sub_u32", s(snt), s(sidx), s(st1))
    k.I("s_lshl_b32", s(srt), s(sj), 2)
    k.I("s_add_u32", s(srt), s(srt), s(st0))
    k.I("s_waitcnt", "lgkmcnt(0)")
    srd(k, sWS, pWS, WS_SIZE)
    comp = k.newlabel("compute")
    k.I("s_cmp_lt_u32", s(swave), 4)
    k.I("s_cbranch_scc1", comp)
    vsave = k.vnext
    srd(k, sWo, pWo, 448 * 896)
    v16 = k.valloc(); vWo = k.valloc()
    k.I("v_lshlrev_b32", v(v16), 4, v(lane))
    k.I("v_lshrrev_b32", v(t0), 3, v(lane))
    k.I("v_mul_u32_u24", v(t0), 896, v(t0))
    k.I("v_bfe_u32", v(t1), v(lane), 4, 1)
    k.I("v_lshlrev_b32", v(t1), 2, v(t1))
    k.I("v_and_b32", v(t2), 7, v(lane))
    k.I("v_xor_b32", v(t1), v(t1), v(t2))
    k.I("v_lshl_add_u32", v(vWo), v(t1), 4, v(t0))
    sOb = k.salloc(); sWb = k.salloc(); smO = k.salloc(); smW = k.salloc()
    k.I("s_lshl_b32", s(sOb), s(srt), 16)
    k.I("s_lshl_b32", s(st0), s(sw3), 10)
    k.I("s_add_u32", s(sOb), s(sOb), s(st0))
    k.I("s_add_u32", s(sOb), s(sOb), hex(O_OFF))
    k.I("s_add_u32", s(smO), s(st0), OREG)
    k.I("s_mul_i32", s(sWb), s(sw3), 8 * 896)
    k.I("s_lshl_b32", s(st1), s(snt), 7)
    k.I("s_add_u32", s(sWb), s(sWb), s(st1))
    k.I("s_add_u32", s(smW), s(st0), WREG)
    def issue(c):
        for r2 in range(2):
            k.I("s_add_u32", s(soff), s(sOb), hex(r2 * 32768 + c * 4096))
            k.I("s_add_u32", "m0", s(smO), hex(r2 * 32768 + c * 4096))
            k.vm(("S", c), "buffer_load_dwordx4", v(v16), sr(sWS, 4), s(soff), mods="offen lds")
        for i in range(2):
            k.I("s_add_u32", s(soff), s(sWb), hex((56 * c + 32 * i) * 896))
            k.I("s_add_u32", "m0", s(smW), hex((56 * c + 32 * i) * 128))
            k.vm(("S", c), "buffer_load_dwordx4", v(vWo), sr(sWo, 4), s(soff), mods="offen lds")
    LA = 3
    for c in range(LA): issue(c)
    for c in range(8):
        k.wait_vm(("S", c))
        k.I("s_barrier")
        if c + LA < 8: issue(c + LA)
    k.I("s_endpgm")
    k.L(comp)
    k.vnext = vsave; k.vmq = []; k.lgq = []
    srd(k, sX, pX, 2048 * 896)
    l31 = k.valloc(); hh = k.valloc()
    k.I("v_and_b32", v(l31), 31, v(lane))
    k.I("v_lshrrev_b32", v(hh), 5, v(lane))
    srh = k.salloc(); snh = k.salloc(); sst = k.salloc(); sntile = k.salloc()
    k.I("s_and_b32", s(srh), s(swave), 1)
    k.I("s_lshr_b32", s(snh), s(swave), 1)
    k.I("s_lshl_b32", s(sst), s(srt), 1)
    k.I("s_add_u32", s(sst), s(sst), s(srh))
    k.I("s_lshl_b32", s(sntile), s(snt), 1)
    k.I("s_add_u32", s(sntile), s(sntile), s(snh))
    xr = k.valloc(8, 4); vx = k.valloc()
    k.I("v_mul_u32_u24", v(vx), 896, v(l31))
    k.I("v_lshl_add_u32", v(vx), v(hh), 3, v(vx))
    k.I("s_mul_i32", s(soff), s(sst), 32 * 896)
    k.I("s_lshl_b32", s(st0), s(sntile), 6)
    k.I("s_add_u32", s(soff), s(soff), s(st0))
    for q in range(4):
        k.vm("x", "buffer_load_dwordx2", vr(xr + 2 * q, 2), v(vx), sr(sX, 4), s(soff), mods=f"offen offset:{16 * q}")
    code_prefetch(k, "k4_win_kernel", sidx, st0)
    stp.stamp(0)
    aO = k.valloc(); vW = k.valloc()
    k.I("v_lshlrev_b32", v(aO), 4, v(lane))
    k.I("s_lshl_b32", s(st0), s(srh), 15)
    k.I("s_add_u32", s(st0), s(st0), OREG)
    k.I("v_add_u32", v(aO), s(st0), v(aO))
    k.I("v_bfe_u32", v(t0), v(lane), 2, 2)
    k.I("v_lshl_add_u32", v(t0), v(hh), 3, v(t0))
    k.I("v_lshlrev_b32", v(vW), 7, v(t0))
    k.I("v_bfe_u32", v(t0), v(lane), 4, 1)
    k.I("v_lshlrev_b32", v(t0), 1, v(t0))
    k.I("v_bfe_u32", v(t1), v(lane), 1, 1)
    k.I("v_add_u32", v(t0), v(t0), v(t1))
    k.I("s_lshl_b32", s(st0), s(snh), 2)
    k.I("v_add_u32", v(t0), s(st0), v(t0))
    k.I("v_bfe_u32", v(t1), v(lane), 3, 1)
    k.I("v_lshlrev_b32", v(t1), 2, v(t1))
    k.I("v_xor_b32", v(t0), v(t0), v(t1))
    k.I("v_lshl_add_u32", v(vW), v(t0), 4, v(vW))
    k.I("v_and_b32", v(t0), 1, v(lane))
    k.I("v_lshl_add_u32", v(vW), v(t0), 3, v(vW))
    acc = k.valloc(16, 4)
    NB = 3
    of = [k.valloc(4) for _ in range(NB)]; wf = [k.valloc(4) for _ in range(NB)]
    def rl(ks):
        b = ks % NB
        out = [lambda: k.lg(("f", ks), "ds_read_b128", vr(of[b], 4), v(aO), mods=f"offset:{ks * 1024}")]
        for beta in range(2):
            o = (28 * (ks >> 1) + 16 * (ks & 1) + 4 * beta) * 128
            out.append(lambda o=o, beta=beta: k.lg(("f", ks), "ds_read_b64_tr_b16", vr(wf[b] + 2 * beta, 2), v(vW), mods=f"offset:{o}"))
        return out
    k.I("s_barrier")
    stp.stamp(1)
    for f in rl(0) + rl(1): f()
    for ks in range(32):
        c, j = ks // 4, ks % 4
        b = ks % NB
        k.wait_lg(("f", ks))
        k.I("v_mfma_f32_32x32x16_bf16", vr(acc, 16), vr(wf[b], 4), vr(of[b], 4), 0 if ks == 0 else vr(acc, 16))
        if j == 1 and c < 7: k.I("s_barrier")
        if ks + 2 < 32 and not (j == 1 and False):
            pass
        nxt = ks + 2
        if nxt < 32:
            for f in rl(nxt): f()
    EOF_MARK = None
    stp.stamp(2)
    k.wait_vm("x")
    tmp = [k.valloc(2) for _ in range(4)]
    for q in range(4):
        for d in range(2):
            t = tmp[(2 * q + d) % 4]
            k.I("v_lshlrev_b32", v(t), 16, v(xr + 2 * q + d))
            k.I("v_and_b32", v(t + 1), "0xffff0000", v(xr + 2 * q + d))
            k.I("v_pk_add_f32", vr(acc + 4 * q + 2 * d, 2), vr(acc + 4 * q + 2 * d, 2), vr(t, 2))
    P = k.valloc(8, 4)
    for j in range(8): k.I("v_cvt_pk_bf16_f32", v(P + j), v(acc + 2 * j), v(acc + 2 * j + 1))
    v16 = k.valloc()
    k.I("v_lshlrev_b32", v(v16), 4, v(lane))
    k.I("s_mul_i32", s(soff), s(sst), 28 * 1024)
    k.I("s_lshl_b32", s(st0), s(sntile), 11)
    k.I("s_add_u32", s(soff), s(soff), s(st0))
    k.I("s_add_u32", s(soff), s(soff), hex(H_OFF))
    k.I("buffer_store_dwordx4", vr(P, 4), v(v16), sr(sWS, 4), s(soff), mods="offen")
    k.I("buffer_store_dwordx4", vr(P + 4, 4), v(v16), sr(sWS, 4), s(soff), mods="offen offset:1024")
    accs = k.valloc(2); accq = k.valloc(2)
    stats_from_packed(k, P, 8, accs, accq, tmp)
    k.I("v_mov_b32", v(accs + 1), v(accq))
    vh = k.valloc()
    k.I("v_mul_u32_u24", v(vh), 112, v(l31))
    k.I("s_mul_i32", s(soff), s(sst), 32 * 112)
    k.I("s_lshl_b32", s(st0), s(sntile), 3)
    k.I("s_add_u32", s(soff), s(soff), s(st0))
    k.I("s_add_u32", s(soff), s(soff), hex(HS_OFF))
    k.I("s_mov_b32", "exec_hi", 0)
    k.I("buffer_store_dwordx2", vr(accs, 2), v(vh), sr(sWS, 4), s(soff), mods="offen")
    stp.stamp(3)
    k.I("s_endpgm")
    k.L(aux)
    k.vnext = vsave; k.vmq = []; k.lgq = []
    sa = k.salloc(); sWin = k.salloc(4)
    k.I("s_sub_u32", s(sa), s(sidx), 28)
    k.I("s_lshl_b32", s(sa), s(sa), 3)
    k.I("s_add_u32", s(sa), s(sa), s(sj))
    k.I("s_waitcnt", "lgkmcnt(0)")
    srd(k, sWS, pWS, WS_SIZE)
    ff = k.valloc(4)
    for i in range(4): k.I("v_mov_b32", v(ff + i), -1)
    k.I("v_lshlrev_b32", v(t1), 4, "v0")
    k.I("v_mov_b32", v(t2), "0x7fffff00")
    k.I("v_cmp_gt_u32", "vcc", 448, "v0")
    k.I("v_cndmask_b32", v(t1), v(t2), v(t1), "vcc")
    k.I("s_mul_i32", s(st0), s(sa), 7168)
    k.I("s_add_u32", s(st0), s(st0), hex(EX_OFF))
    k.I("buffer_store_dwordx4", vr(ff, 4), v(t1), sr(sWS, 4), s(st0), mods="offen")
    k.I("s_cmp_ge_u32", s(sa), 28)
    k.I("s_cbranch_scc1", R["done"])
    srd(k, sWin, pWin, 448 * 3584)
    vg = k.valloc()
    k.I("v_lshrrev_b32", v(t0), 3, v(lane))
    k.I("v_mul_u32_u24", v(t0), 3584, v(t0))
    k.I("v_bfe_u32", v(t1), v(lane), 4, 1)
    k.I("v_lshlrev_b32", v(t1), 2, v(t1))
    k.I("v_and_b32", v(t2), 7, v(lane))
    k.I("v_xor_b32", v(t1), v(t1), v(t2))
    k.I("v_lshl_add_u32", v(vg), v(t1), 4, v(t0))
    sb = k.salloc(); sm = k.salloc()
    k.I("s_mul_i32", s(sb), s(swave), 56 * 3584)
    k.I("s_lshl_b32", s(st0), s(sa), 7)
    k.I("s_add_u32", s(sb), s(sb), s(st0))
    k.I("s_mul_i32", s(sm), s(swave), 56 * 128)
    for i in range(7):
        k.I("s_add_u32", s(soff), s(sb), hex(i * 8 * 3584))
        k.I("s_add_u32", "m0", s(sm), hex(i * 1024))
        k.I("buffer_load_dwordx4", v(vg), sr(sWin, 4), s(soff), mods="offen lds")
    z = k.valloc(); TB = 57344
    k.I("v_mov_b32", v(z), 0)
    k.I("v_lshlrev_b32", v(t0), 2, v(lane))
    k.I("v_add_u32", v(t0), TB, v(t0))
    k.I("ds_write_b32", v(t0), v(z))
    gg = k.valloc(); vB = k.valloc(); ones = k.valloc(4)
    k.I("v_lshrrev_b32", v(gg), 4, v(lane))
    k.I("v_bfe_u32", v(t0), v(lane), 2, 2)
    k.I("v_lshl_add_u32", v(t0), v(gg), 3, v(t0))
    k.I("v_lshlrev_b32", v(vB), 7, v(t0))
    k.I("v_bfe_u32", v(t0), v(lane), 1, 1)
    k.I("s_lshl_b32", s(st0), s(sw3), 1)
    k.I("v_add_u32", v(t0), s(st0), v(t0))
    k.I("v_bfe_u32", v(t1), v(lane), 3, 1)
    k.I("v_lshlrev_b32", v(t1), 2, v(t1))
    k.I("v_xor_b32", v(t0), v(t0), v(t1))
    k.I("v_lshl_add_u32", v(vB), v(t0), 4, v(vB))
    k.I("v_and_b32", v(t0), 1, v(lane))
    k.I("v_lshl_add_u32", v(vB), v(t0), 3, v(vB))
    k.I("s_lshr_b32", s(st0), s(swave), 2)
    k.I("s_mul_i32", s(st0), s(st0), 224 * 128)
    k.I("v_add_u32", v(vB), s(st0), v(vB))
    for i in range(4): k.I("v_mov_b32", v(ones + i), "0x3f803f80")
    k.I("s_waitcnt", "vmcnt(0) lgkmcnt(0)")
    k.I("s_barrier")
    bf = [k.valloc(4) for _ in range(7)]
    for kk in range(7):
        for beta in range(2):
            k.I("ds_read_b64_tr_b16", vr(bf[kk] + 2 * beta, 2), v(vB), mods=f"offset:{(32 * kk + 4 * beta) * 128}")
    ca = k.valloc(4)
    k.I("s_waitcnt", "lgkmcnt(0)")
    for kk in range(7):
        k.I("v_mfma_f32_16x16x32_bf16", vr(ca, 4), vr(ones, 4), vr(bf[kk], 4), 0 if kk == 0 else vr(ca, 4))
    k.I("v_and_b32", v(t0), 15, v(lane))
    k.I("s_lshl_b32", s(st0), s(sw3), 6)
    k.I("s_add_u32", s(st0), s(st0), TB)
    k.I("v_lshlrev_b32", v(t0), 2, v(t0))
    k.I("v_add_u32", v(t0), s(st0), v(t0))
    k.I("s_mov_b32", "exec_lo", "0xffff")
    k.I("s_mov_b32", "exec_hi", 0)
    k.I("ds_add_f32", v(t0), v(ca))
    k.I("s_mov_b64", "exec", -1)
    k.I("s_waitcnt", "lgkmcnt(0)")
    k.I("s_barrier")
    k.I("s_cmp_lg_u32", s(swave), 0)
    k.I("s_cbranch_scc1", R["done"])
    k.I("v_lshlrev_b32", v(t0), 2, v(lane))
    k.I("v_add_u32", v(t1), TB, v(t0))
    k.I("ds_read_b32", v(z), v(t1))
    k.I("s_lshl_b32", s(st0), s(sa), 8)
    k.I("s_add_u32", s(st0), s(st0), hex(CW_OFF))
    k.I("s_waitcnt", "lgkmcnt(0)")
    k.I("buffer_store_dword", v(z), v(t0), sr(sWS, 4), s(st0), mods="offen")
    k.L(R["done"])
    k.I("s_endpgm")
    k.lds = lds; k.threads = 512; k.grid = 256
    return k


GELU_C0 = -2.0 * math.sqrt(2.0 / math.pi) * math.log2(math.e)
GELU_C1 = GELU_C0 * 0.044715

def gen_k4(Stamper):
    k = Kernel("k4_win_kernel")
    NS = 4; SLOT = 32768; TRB = NS * SLOT
    STB = TRB
    lds = TRB + 4096
    R = common_start(k, 224)
    swave, st0, st1, soff, lane, t0, t1, t2 = (R[x] for x in ("swave", "st0", "st1", "soff", "lane", "t0", "t1", "t2"))
    pWin = k.salloc(2); pWS = k.salloc(2)
    k.I("s_load_dwordx2", sr(pWin, 2), "s[0:1]", 32)
    k.I("s_load_dwordx2", sr(pWS, 2), "s[0:1]", 80)
    sWS = k.salloc(4); sWin = k.salloc(4)
    sj = k.salloc(); sidx = k.salloc(); srb = k.salloc(); sct = k.salloc(); sw3 = k.salloc()
    k.I("s_and_b32", s(sj), "s2", 7)
    k.I("s_lshr_b32", s(sidx), "s2", 3)
    k.I("s_and_b32", s(sw3), s(swave), 3)
    k.I("s_cmp_ge_u32", s(sidx), 14)
    k.I("s_cselect_b32", s(st0), 1, 0)
    k.I("s_mul_i32", s(st1), s(st0), 14)
    k.I("s_sub_u32", s(sct), s(sidx), s(st1))
    k.I("s_lshl_b32", s(srb), s(sj), 1)
    k.I("s_add_u32", s(srb), s(srb), s(st0))
    stp = Stamper(k, 3, sWS, swave)
    k.I("s_waitcnt", "lgkmcnt(0)")
    srd(k, sWS, pWS, WS_SIZE)
    comp = k.newlabel("compute")
    k.I("s_cmp_lt_u32", s(swave), 4)
    k.I("s_cbranch_scc1", comp)
    vsave = k.vnext
    srd(k, sWin, pWin, 448 * 3584)
    v16 = k.valloc(); vWo = k.valloc()
    k.I("v_lshlrev_b32", v(v16), 4, v(lane))
    k.I("v_lshrrev_b32", v(t0), 4, v(lane))
    k.I("v_lshlrev_b32", v(t1), 2, v(t0))
    k.I("v_and_b32", v(t2), 15, v(lane))
    k.I("v_xor_b32", v(t1), v(t1), v(t2))
    k.I("v_mul_u32_u24", v(vWo), 3584, v(t0))
    k.I("v_and_b32", v(t2), 7, v(t1))
    k.I("v_lshl_add_u32", v(vWo), v(t2), 4, v(vWo))
    k.I("v_add_u32", v(t2), 1792, v(vWo))
    k.I("v_cmp_gt_u32", "vcc", 8, v(t1))
    k.I("v_cndmask_b32", v(vWo), v(vWo), v(t2), "vcc")
    sHb = k.salloc(); sWb = k.salloc(); smH = k.salloc(); smW = k.salloc()
    k.I("s_lshl_b32", s(st0), s(srb), 2)
    k.I("s_add_u32", s(st0), s(st0), s(sw3))
    k.I("s_mul_i32", s(sHb), s(st0), 28 * 1024)
    k.I("s_add_u32", s(sHb), s(sHb), hex(H_OFF))
    k.I("s_lshl_b32", s(smH), s(sw3), 12)
    k.I("s_mul_i32", s(sWb), s(sw3), 16 * 3584)
    k.I("s_lshl_b32", s(st1), s(sct), 7)
    k.I("s_add_u32", s(sWb), s(sWb), s(st1))
    k.I("s_add_u32", s(smW), s(smH), 16384)
    def issue(c):
        sl = (c % NS) * SLOT
        for i in range(4):
            k.I("s_add_u32", s(soff), s(sHb), hex((4 * c + i) * 1024))
            k.I("s_add_u32", "m0", s(smH), hex(sl + i * 1024))
            k.vm(("S", c), "buffer_load_dwordx4", v(v16), sr(sWS, 4), s(soff), mods="offen lds")
        for i in range(4):
            k.I("s_add_u32", s(soff), s(sWb), hex((64 * c + 4 * i) * 3584))
            k.I("s_add_u32", "m0", s(smW), hex(sl + i * 1024))
            k.vm(("S", c), "buffer_load_dwordx4", v(vWo), sr(sWin, 4), s(soff), mods="offen lds")
    issue(0); issue(1)
    for c in range(7):
        k.wait_vm(("S", c))
        k.I("s_barrier")
        if c == 0: issue(2); issue(3)
        elif c + 2 < 7 and c >= 2: issue(c + 2)
    if os.environ.get("PFT", "0") == "1":
        pp = k.salloc(2); sP = k.salloc(4); vT = k.valloc(); vd = k.valloc(2)
        k.I("s_load_dwordx2", sr(pp, 2), "s[0:1]", 40)
        k.I("s_lshl_b32", s(st0), s(sidx), 8)
        k.I("v_subrev_u32", v(vT), 256, "v0")
        k.I("v_add_u32", v(vT), s(st0), v(vT))
        k.I("s_waitcnt", "lgkmcnt(0)")
        srd(k, sP, pp, 2048 * 4096)
        k.I("s_lshr_b32", s(st0), s(sj), 1)
        k.I("s_lshl_b32", s(st0), s(st0), 21)
        k.I("s_and_b32", s(st1), s(sj), 1)
        k.I("s_lshl_b32", s(st1), s(st1), 11)
        k.I("s_add_u32", s(st0), s(st0), s(st1))
        for i in range(2):
            k.I("v_add_u32", v(t0), 7168 * i, v(vT))
            k.I("v_lshrrev_b32", v(t1), 4, v(t0))
            k.I("v_lshlrev_b32", v(t1), 12, v(t1))
            k.I("v_and_b32", v(t2), 15, v(t0))
            k.I("v_lshl_add_u32", v(t1), v(t2), 7, v(t1))
            if i == 1:
                k.I("v_mov_b32", v(t2), "0x7fffff00")
                k.I("v_cmp_gt_u32", "vcc", 8192, v(t0))
                k.I("v_cndmask_b32", v(t1), v(t2), v(t1), "vcc")
            k.I("buffer_load_dword", v(vd + i), v(t1), sr(sP, 4), s(st0), mods="offen")
    k.I("s_barrier")
    k.I("s_endpgm")
    k.L(comp)
    k.vnext = vsave; k.vmq = []; k.lgq = []
    l31 = k.valloc(); hh = k.valloc()
    k.I("v_and_b32", v(l31), 31, v(lane))
    k.I("v_lshrrev_b32", v(hh), 5, v(lane))
    srh = k.salloc(); sch = k.salloc(); sst = k.salloc()
    k.I("s_and_b32", s(srh), s(swave), 1)
    k.I("s_lshr_b32", s(sch), s(swave), 1)
    k.I("s_lshl_b32", s(sst), s(srb), 2)
    k.I("s_lshl_b32", s(st0), s(srh), 1)
    k.I("s_add_u32", s(sst), s(sst), s(st0))
    hs = [k.valloc(16, 4) for _ in range(2)]
    vh = k.valloc()
    k.I("v_mul_u32_u24", v(vh), 112, v(l31))
    k.I("v_lshl_add_u32", v(vh), v(hh), 6, v(vh))
    for t in range(2):
        k.I("s_add_u32", s(st0), s(sst), t)
        k.I("s_mul_i32", s(soff), s(st0), 32 * 112)
        k.I("s_add_u32", s(soff), s(soff), hex(HS_OFF))
        for i in range(4):
            k.vm("hs", "buffer_load_dwordx4", vr(hs[t] + 4 * i, 4), v(vh), sr(sWS, 4), s(soff), mods=f"offen offset:{16 * i}")
    cw = [k.valloc(16, 4) for _ in range(2)]
    vc = k.valloc()
    k.I("v_lshlrev_b32", v(vc), 4, v(hh))
    k.I("s_lshl_b32", s(st0), s(sct), 8)
    k.I("s_lshl_b32", s(st1), s(sch), 7)
    k.I("s_add_u32", s(st0), s(st0), s(st1))
    for z in range(2):
        k.I("s_add_u32", s(soff), s(st0), hex(CW_OFF + (896 * 4 if z == 0 else 0)))
        for q in range(4):
            k.vm("cw", "buffer_load_dwordx4", vr(cw[z] + 4 * q, 4), v(vc), sr(sWS, 4), s(soff), mods=f"offen offset:{32 * q}")
    if os.environ.get("PF2", "0") == "1":
        pp = k.salloc(2); sP = k.salloc(4); vT = k.valloc(); vd = k.valloc(2)
        k.I("s_load_dwordx2", sr(pp, 2), "s[0:1]", 40)
        k.I("s_lshl_b32", s(st0), s(sidx), 8)
        k.I("v_add_u32", v(vT), s(st0), "v0")
        k.I("s_waitcnt", "lgkmcnt(0)")
        srd(k, sP, pp, 2048 * 4096)
        k.I("s_lshr_b32", s(st0), s(sj), 1)
        k.I("s_lshl_b32", s(st0), s(st0), 21)
        k.I("s_and_b32", s(st1), s(sj), 1)
        k.I("s_lshl_b32", s(st1), s(st1), 11)
        k.I("s_add_u32", s(st0), s(st0), s(st1))
        for i in range(2):
            k.I("v_add_u32", v(t0), 7168 * i, v(vT))
            k.I("v_lshrrev_b32", v(t1), 4, v(t0))
            k.I("v_lshlrev_b32", v(t1), 12, v(t1))
            k.I("v_and_b32", v(t2), 15, v(t0))
            k.I("v_lshl_add_u32", v(t1), v(t2), 7, v(t1))
            if i == 1:
                k.I("v_mov_b32", v(t2), "0x7fffff00")
                k.I("v_cmp_gt_u32", "vcc", 8192, v(t0))
                k.I("v_cndmask_b32", v(t1), v(t2), v(t1), "vcc")
            k.vm("pf", "buffer_load_dword", v(vd + i), v(t1), sr(sP, 4), s(st0), mods="offen")
    code_prefetch(k, "k5_sp_kernel", sidx, st0)
    stp.stamp(0)
    aH = k.valloc(); vW = [k.valloc(), k.valloc()]
    k.I("v_lshlrev_b32", v(aH), 4, v(lane))
    k.I("s_lshl_b32", s(st0), s(srh), 13)
    k.I("v_add_u32", v(aH), s(st0), v(aH))
    k.I("v_bfe_u32", v(t0), v(lane), 2, 2)
    k.I("v_lshl_add_u32", v(t1), v(hh), 2, v(t0))
    k.I("v_lshlrev_b32", v(t1), 8, v(t1))
    k.I("v_add_u32", v(t1), 16384, v(t1))
    k.I("v_bfe_u32", v(t2), v(lane), 4, 1)
    k.I("v_lshlrev_b32", v(t2), 1, v(t2))
    k.I("v_bfe_u32", v(vW[0]), v(lane), 1, 1)
    k.I("v_add_u32", v(t2), v(t2), v(vW[0]))
    k.I("s_lshl_b32", s(st0), s(sch), 2)
    k.I("v_add_u32", v(t2), s(st0), v(t2))
    k.I("v_lshlrev_b32", v(t0), 2, v(t0))
    k.I("v_xor_b32", v(vW[0]), v(t2), v(t0))
    k.I("v_add_u32", v(t2), 8, v(t2))
    k.I("v_xor_b32", v(vW[1]), v(t2), v(t0))
    k.I("v_and_b32", v(t2), 1, v(lane))
    for z in range(2):
        k.I("v_lshl_add_u32", v(vW[z]), v(vW[z]), 4, v(t1))
        k.I("v_lshl_add_u32", v(vW[z]), v(t2), 3, v(vW[z]))
    aH2 = k.valloc(); vW2 = [k.valloc(), k.valloc()]
    k.I("v_add_u32", v(aH2), 65536, v(aH))
    for z in range(2): k.I("v_add_u32", v(vW2[z]), 65536, v(vW[z]))
    acc = [[k.valloc(16, 4) for _ in range(2)] for _ in range(2)]
    vmark = k.vnext
    NB = 3
    hf = [[k.valloc(4) for _ in range(2)] for _ in range(NB)]
    wf = [[k.valloc(4) for _ in range(2)] for _ in range(NB)]
    def rl(ks):
        c, j = ks // 4, ks % 4
        b = ks % NB
        sl = (c % NS) * SLOT
        hi = sl >= 65536
        so = sl - (65536 if hi else 0)
        out = []
        for t in range(2):
            out.append(lambda t=t: k.lg(("f", ks), "ds_read_b128", vr(hf[b][t], 4), v(aH2 if hi else aH), mods=f"offset:{so + t * 4096 + j * 1024}"))
        for z in range(2):
            for beta in range(2):
                o = so + (16 * j + 8 * beta) * 256
                out.append(lambda o=o, z=z, beta=beta: k.lg(("f", ks), "ds_read_b64_tr_b16", vr(wf[b][z] + 2 * beta, 2), v((vW2 if hi else vW)[z]), mods=f"offset:{o}"))
        return out
    k.I("s_barrier")
    stp.stamp(1)
    for f in rl(0) + rl(1): f()
    for ks in range(28):
        c, j = ks // 4, ks % 4
        b = ks % NB
        k.wait_lg(("f", ks))
        mf = []
        for z in range(2):
            for t in range(2):
                mf.append(lambda z=z, t=t: k.I("v_mfma_f32_32x32x16_bf16", vr(acc[z][t], 16), vr(wf[b][z], 4), vr(hf[b][t], 4), 0 if ks == 0 else vr(acc[z][t], 16)))
        if j == 2 and c < 6:
            pass
        fl = rl(ks + 2) if ks + 2 < 28 else []
        if j == 2 and ks + 2 < 28:
            k.I("s_barrier")
        interleave(k, mf, fl)
    stp.stamp(2)
    k.vnext = vmark
    k.wait_vm(["hs", "cw"])
    rr = [k.valloc(2) for _ in range(2)]; nm = [k.valloc(2) for _ in range(2)]
    c0r = [k.valloc(2) for _ in range(2)]; c1r = [k.valloc(2) for _ in range(2)]
    k.I("v_cmp_eq_u32", "vcc", 0, v(hh))
    for t in range(2):
        H = hs[t]
        for i in range(12, 16): k.I("v_cndmask_b32", v(H + i), 0, v(H + i), "vcc")
        for i in range(4): k.I("v_pk_add_f32", vr(H + 2 * i, 2), vr(H + 2 * i, 2), vr(H + 8 + 2 * i, 2))
        for i in range(2): k.I("v_pk_add_f32", vr(H + 2 * i, 2), vr(H + 2 * i, 2), vr(H + 4 + 2 * i, 2))
        k.I("v_pk_add_f32", vr(H, 2), vr(H, 2), vr(H + 2, 2))
        for e in range(2):
            k.I("v_mov_b32", v(H + 2), v(H + e))
            k.I("v_permlane32_swap_b32", v(H + e), v(H + 2))
            k.I("v_add_f32", v(H + e), v(H + e), v(H + 2))
        k.I("v_mul_f32", v(nm[t]), hex(f32(-1.0 / 448)), v(H))
        k.I("v_mul_f32", v(H + 1), hex(f32(1.0 / 448)), v(H + 1))
        k.I("v_fma_f32", v(H + 1), f"-{v(nm[t])}", v(nm[t]), v(H + 1))
        k.I("v_max_f32", v(H + 1), 0, v(H + 1))
        k.I("v_add_f32", v(H + 1), hex(f32(1e-5)), v(H + 1))
        k.I("v_rsq_f32", v(rr[t]), v(H + 1))
        k.I("v_mul_f32", v(c0r[t]), hex(f32(GELU_C0)), v(rr[t]))
        k.I("v_mul_f32", v(c1r[t]), v(rr[t]), v(rr[t]))
        k.I("v_mul_f32", v(c1r[t]), v(c1r[t]), v(rr[t]))
        k.I("v_mul_f32", v(c1r[t]), hex(f32(GELU_C1)), v(c1r[t]))
    norh = k.newlabel("norh")
    k.I("s_or_b32", s(st0), s(sct), s(sch))
    k.I("s_cmp_lg_u32", s(st0), 0)
    k.I("s_cbranch_scc1", norh)
    k.I("v_lshlrev_b32", v(t0), 2, v(l31))
    for t in range(2):
        k.I("s_add_u32", s(st0), s(sst), t)
        k.I("s_lshl_b32", s(st0), s(st0), 7)
        k.I("s_add_u32", s(st0), s(st0), hex(RH_OFF))
        k.I("buffer_store_dword", v(rr[t]), v(t0), sr(sWS, 4), s(st0), mods="offen")
    k.L(norh)
    tp = [k.valloc(2) for _ in range(4)]
    def gelu_tile(A, z, t):
        for j in range(8):
            k.I("v_pk_fma_f32", vr(A + 2 * j, 2), vr(cw[z] + 2 * j, 2), vr(nm[t], 2), vr(A + 2 * j, 2), mods="op_sel_hi:[1,0,1]")
        for j0 in range(0, 8, 4):
            for j in range(j0, j0 + 4):
                T = tp[j - j0]
                k.I("v_pk_mul_f32", vr(T, 2), vr(A + 2 * j, 2), vr(A + 2 * j, 2))
            for j in range(j0, j0 + 4):
                T = tp[j - j0]
                k.I("v_pk_fma_f32", vr(T, 2), vr(T, 2), vr(c1r[t], 2), vr(c0r[t], 2), mods="op_sel_hi:[1,0,0]")
            for j in range(j0, j0 + 4):
                T = tp[j - j0]
                k.I("v_pk_mul_f32", vr(T, 2), vr(T, 2), vr(A + 2 * j, 2))
            for j in range(j0, j0 + 4):
                T = tp[j - j0]
                k.I("v_exp_f32", v(T), v(T)); k.I("v_exp_f32", v(T + 1), v(T + 1))
            for j in range(j0, j0 + 4):
                T = tp[j - j0]
                k.I("v_pk_add_f32", vr(T, 2), vr(T, 2), "1.0", mods="op_sel_hi:[1,0]")
            for j in range(j0, j0 + 4):
                T = tp[j - j0]
                k.I("v_rcp_f32", v(T), v(T)); k.I("v_rcp_f32", v(T + 1), v(T + 1))
            for j in range(j0, j0 + 4):
                T = tp[j - j0]
                k.I("v_pk_mul_f32", vr(A + 2 * j, 2), vr(A + 2 * j, 2), vr(T, 2))
    accs = [k.valloc(2) for _ in range(2)]; accq = [k.valloc(2) for _ in range(2)]
    for t in range(2):
        A = acc[0][t]
        gelu_tile(A, 0, t)
        for j in range(8):
            k.I("v_pk_mul_f32", vr(A + 2 * j, 2), vr(A + 2 * j, 2), vr(rr[t], 2), mods="op_sel_hi:[1,0]")
        k.I("v_pk_add_f32", vr(accs[t], 2), vr(A, 2), vr(A + 2, 2))
        k.I("v_pk_mul_f32", vr(accq[t], 2), vr(A, 2), vr(A, 2))
        k.I("v_pk_fma_f32", vr(accq[t], 2), vr(A + 2, 2), vr(A + 2, 2), vr(accq[t], 2))
        for j in range(2, 8):
            k.I("v_pk_add_f32", vr(accs[t], 2), vr(accs[t], 2), vr(A + 2 * j, 2))
            k.I("v_pk_fma_f32", vr(accq[t], 2), vr(A + 2 * j, 2), vr(A + 2 * j, 2), vr(accq[t], 2))
        k.I("v_add_f32", v(accs[t]), v(accs[t]), v(accs[t] + 1))
        k.I("v_add_f32", v(accs[t] + 1), v(accq[t]), v(accq[t] + 1))
        for e in range(2):
            k.I("v_mov_b32", v(accq[t]), v(accs[t] + e))
            k.I("v_permlane32_swap_b32", v(accs[t] + e), v(accq[t]))
            k.I("v_add_f32", v(accs[t] + e), v(accs[t] + e), v(accq[t]))
    vs = k.valloc()
    k.I("v_lshlrev_b32", v(vs), 3, v(l31))
    k.I("s_lshl_b32", s(st0), s(srh), 9)
    k.I("s_add_u32", s(st0), s(st0), STB)
    k.I("v_add_u32", v(vs), s(st0), v(vs))
    k.I("s_lshl_b32", s(st0), s(sch), 10)
    k.I("v_add_u32", v(t0), s(st0), v(vs))
    for t in range(2):
        k.I("ds_write_b64", v(t0), vr(accs[t], 2), mods=f"offset:{t * 256}")
    k.I("s_waitcnt", "lgkmcnt(0)")
    k.I("s_barrier")
    pub = k.newlabel("nopub")
    k.I("s_cmp_lg_u32", s(sch), 0)
    k.I("s_cbranch_scc1", pub)
    oth = k.valloc(4)
    for t in range(2):
        k.I("ds_read_b64", vr(oth + 2 * t, 2), v(vs), mods=f"offset:{1024 + t * 256}")
    k.I("s_waitcnt", "lgkmcnt(0)")
    for t in range(2):
        k.I("v_pk_add_f32", vr(oth + 2 * t, 2), vr(oth + 2 * t, 2), vr(accs[t], 2))
        k.I("v_mov_b32", v(t1), "0x7fc00000")
        k.I("v_cmp_eq_u32", "vcc", -1, v(oth + 2 * t + 1))
        k.I("v_cndmask_b32", v(oth + 2 * t + 1), v(oth + 2 * t + 1), v(t1), "vcc")
    ve = k.valloc()
    k.I("v_mul_u32_u24", v(ve), 112, v(l31))
    k.I("s_mul_i32", s(soff), s(sst), 32 * 112)
    k.I("s_lshl_b32", s(st0), s(sct), 3)
    k.I("s_add_u32", s(soff), s(soff), s(st0))
    k.I("s_add_u32", s(soff), s(soff), hex(EX_OFF))
    k.I("s_mov_b32", "exec_hi", 0)
    for t in range(2):
        k.I("buffer_store_dwordx2", vr(oth + 2 * t, 2), v(ve), sr(sWS, 4), s(soff), mods=f"offen offset:{t * 32 * 112} sc0 sc1")
    k.I("s_mov_b64", "exec", -1)
    k.L(pub)
    stp.stamp(3)
    v16 = k.valloc()
    k.I("v_lshlrev_b32", v(v16), 4, v(lane))
    P = [k.valloc(8, 4) for _ in range(2)]
    sft = k.salloc()
    k.I("s_lshl_b32", s(sft), s(sct), 1)
    k.I("s_add_u32", s(sft), s(sft), s(sch))
    for t in range(2):
        A = acc[1][t]
        gelu_tile(A, 1, t)
        for j in range(8): k.I("v_cvt_pk_bf16_f32", v(P[t] + j), v(A + 2 * j), v(A + 2 * j + 1))
        k.I("s_add_u32", s(st0), s(sst), t)
        k.I("s_mul_i32", s(soff), s(st0), 56 * 1024)
        k.I("s_lshl_b32", s(st0), s(sft), 11)
        k.I("s_add_u32", s(soff), s(soff), s(st0))
        k.I("s_add_u32", s(soff), s(soff), hex(Z1_OFF))
        k.I("buffer_store_dwordx4", vr(P[t], 4), v(v16), sr(sWS, 4), s(soff), mods="offen")
        k.I("buffer_store_dwordx4", vr(P[t] + 4, 4), v(v16), sr(sWS, 4), s(soff), mods="offen offset:1024")
    stp.stamp(4)
    ex = hs
    k.I("v_mul_u32_u24", v(vh), 112, v(l31))
    k.I("v_lshl_add_u32", v(vh), v(hh), 6, v(vh))
    k.I("s_mul_i32", s(soff), s(sst), 32 * 112)
    k.I("s_add_u32", s(soff), s(soff), hex(EX_OFF))
    scount = k.salloc(); sbad = k.salloc(2)
    k.I("s_mov_b32", s(scount), 0)
    poll = k.newlabel("poll"); pdone = k.newlabel("pdone")
    k.L(poll)
    for t in range(2):
        for i in range(4):
            k.I("buffer_load_dwordx4", vr(ex[t] + 4 * i, 4), v(vh), sr(sWS, 4), s(soff), mods=f"offen offset:{t * 32 * 112 + 16 * i} sc0 sc1")
    k.I("s_waitcnt", "vmcnt(0)")
    k.I("v_cmp_eq_u32", "vcc", 0, v(hh))
    for t in range(2):
        for i in range(12, 16): k.I("v_cndmask_b32", v(ex[t] + i), 0, v(ex[t] + i), "vcc")
    k.I("v_max_u32", v(t0), v(ex[0] + 1), v(ex[0] + 3))
    for t in range(2):
        for i in range(8):
            if t == 0 and i < 2: continue
            k.I("v_max_u32", v(t0), v(t0), v(ex[t] + 2 * i + 1))
    k.I("v_cmp_eq_u32", "vcc", -1, v(t0))
    k.I("s_add_u32", s(scount), s(scount), 1)
    k.I("s_cmp_eq_u64", "vcc", 0)
    k.I("s_cbranch_scc1", pdone)
    k.I("s_cmp_lt_u32", s(scount), 0x40000)
    k.I("s_cbranch_scc0", pdone)
    k.I("s_sleep", 1)
    k.I("s_branch", poll)
    k.L(pdone)
    sc_ = [k.valloc(2) for _ in range(2)]; zm = [k.valloc(2) for _ in range(2)]
    for t in range(2):
        H = ex[t]
        for i in range(4): k.I("v_pk_add_f32", vr(H + 2 * i, 2), vr(H + 2 * i, 2), vr(H + 8 + 2 * i, 2))
        for i in range(2): k.I("v_pk_add_f32", vr(H + 2 * i, 2), vr(H + 2 * i, 2), vr(H + 4 + 2 * i, 2))
        k.I("v_pk_add_f32", vr(H, 2), vr(H, 2), vr(H + 2, 2))
        for e in range(2):
            k.I("v_mov_b32", v(H + 2), v(H + e))
            k.I("v_permlane32_swap_b32", v(H + e), v(H + 2))
            k.I("v_add_f32", v(H + e), v(H + e), v(H + 2))
        k.I("v_mul_f32", v(zm[t]), hex(f32(-1.0 / 896)), v(H))
        k.I("v_mul_f32", v(H + 1), hex(f32(1.0 / 896)), v(H + 1))
        k.I("v_fma_f32", v(H + 1), f"-{v(zm[t])}", v(zm[t]), v(H + 1))
        k.I("v_max_f32", v(H + 1), 0, v(H + 1))
        k.I("v_add_f32", v(H + 1), hex(f32(1e-5)), v(H + 1))
        k.I("v_rsq_f32", v(sc_[t]), v(H + 1))
        k.I("v_mul_f32", v(zm[t]), v(zm[t]), v(sc_[t]))
    TW = 0
    vt = k.valloc(); vtr = k.valloc()
    k.I("v_lshlrev_b32", v(vt), 6, v(l31))
    k.I("v_lshl_add_u32", v(vt), v(hh), 3, v(vt))
    k.I("s_lshl_b32", s(st0), s(swave), 12)
    k.I("v_add_u32", v(vt), s(st0), v(vt))
    for t in range(2):
        A = acc[0][t]
        for j in range(8):
            k.I("v_pk_fma_f32", vr(A + 2 * j, 2), vr(A + 2 * j, 2), vr(sc_[t], 2), vr(zm[t], 2), mods="op_sel_hi:[1,0,0]")
        for j in range(8): k.I("v_cvt_pk_bf16_f32", v(P[t] + j), v(A + 2 * j), v(A + 2 * j + 1))
        for q in range(4):
            k.I("ds_write_b64", v(vt), vr(P[t] + 2 * q, 2), mods=f"offset:{t * 2048 + 16 * q}")
    k.I("v_bfe_u32", v(t0), v(lane), 2, 2)
    k.I("v_lshl_add_u32", v(t0), v(hh), 3, v(t0))
    k.I("v_lshlrev_b32", v(vtr), 6, v(t0))
    k.I("v_bfe_u32", v(t0), v(lane), 4, 1)
    k.I("v_lshl_add_u32", v(vtr), v(t0), 5, v(vtr))
    k.I("v_and_b32", v(t0), 3, v(lane))
    k.I("v_lshl_add_u32", v(vtr), v(t0), 3, v(vtr))
    k.I("s_lshl_b32", s(st0), s(swave), 12)
    k.I("v_add_u32", v(vtr), s(st0), v(vtr))
    k.I("s_waitcnt", "lgkmcnt(0)")
    Z = cw[0]
    for ks in range(4):
        for beta in range(2):
            k.I("ds_read_b64_tr_b16", vr(Z + 4 * ks + 2 * beta, 2), v(vtr), mods=f"offset:{(16 * ks + 4 * beta) * 64}")
    k.I("s_mul_i32", s(soff), s(sft), ZS)
    k.I("s_lshr_b32", s(st0), s(sst), 5)
    k.I("s_mul_i32", s(st0), s(st0), ZK)
    k.I("s_add_u32", s(soff), s(soff), s(st0))
    k.I("s_and_b32", s(st0), s(sst), 31)
    k.I("s_lshl_b32", s(st0), s(st0), 11)
    k.I("s_add_u32", s(soff), s(soff), s(st0))
    k.I("s_add_u32", s(soff), s(soff), hex(Z2_OFF))
    for ks in range(4):
        k.I("s_waitcnt", f"lgkmcnt({6 - 2 * ks})")
        k.I("buffer_store_dwordx4", vr(Z + 4 * ks, 4), v(v16), sr(sWS, 4), s(soff), mods=f"offen offset:{ks * 1024}")
    stp.stamp(5)
    k.L(R["done"])
    k.I("s_endpgm")
    k.lds = lds; k.threads = 512; k.grid = 224
    return k


def gen_k5(Stamper):
    k = Kernel("k5_sp_kernel")
    NS = 4; SLOT = 32768
    Z1REG = NS * SLOT
    lds = Z1REG + 32768
    R = common_start(k, 224)
    swave, st0, st1, soff, lane, t0, t1, t2 = (R[x] for x in ("swave", "st0", "st1", "soff", "lane", "t0", "t1", "t2"))
    pSp = k.salloc(2); pB = k.salloc(2); pWS = k.salloc(2)
    k.I("s_load_dwordx2", sr(pSp, 2), "s[0:1]", 40)
    k.I("s_load_dwordx2", sr(pB, 2), "s[0:1]", 48)
    k.I("s_load_dwordx2", sr(pWS, 2), "s[0:1]", 80)
    sWS = k.salloc(4); sSp = k.salloc(4); sB = k.salloc(4)
    sj = k.salloc(); sidx = k.salloc(); stt = k.salloc(); sft = k.salloc(); skap = k.salloc(); sw3 = k.salloc()
    if os.environ.get("K5MAP") == "linear":
        k.I("s_mul_i32", s(sj), "s2", 2341)
        k.I("s_lshr_b32", s(sj), s(sj), 16)
        k.I("s_mul_i32", s(sidx), s(sj), 28)
        k.I("s_sub_u32", s(sidx), "s2", s(sidx))
    else:
        k.I("s_and_b32", s(sj), "s2", 7)
        k.I("s_lshr_b32", s(sidx), "s2", 3)
    k.I("s_and_b32", s(sw3), s(swave), 3)
    k.I("s_and_b32", s(skap), s(sj), 1)
    k.I("s_mul_i32", s(st0), s(sidx), 37)
    k.I("s_lshr_b32", s(st0), s(st0), 8)
    k.I("s_mul_i32", s(st1), s(st0), 7)
    k.I("s_sub_u32", s(sft), s(sidx), s(st1))
    k.I("s_lshr_b32", s(stt), s(sj), 1)
    k.I("s_lshl_b32", s(stt), s(stt), 2)
    k.I("s_add_u32", s(stt), s(stt), s(st0))
    stp = Stamper(k, 4, sWS, swave)
    if os.environ.get("TICKWAVE", "0") != "0": stp.tick(0)
    k.I("s_waitcnt", "lgkmcnt(0)")
    srd(k, sWS, pWS, WS_SIZE)
    comp = k.newlabel("compute")
    k.I("s_cmp_lt_u32", s(swave), 4)
    k.I("s_cbranch_scc1", comp)
    vsave = k.vnext
    srd(k, sSp, pSp, 2048 * 4096)
    v16 = k.valloc(); vWo = k.valloc(2)
    k.I("v_lshlrev_b32", v(v16), 4, v(lane))
    k.I("v_lshrrev_b32", v(t0), 3, v(lane))
    k.I("v_lshlrev_b32", v(t0), 12, v(t0))
    k.I("v_lshrrev_b32", v(t1), 4, v(lane))
    k.I("v_and_b32", v(t2), 7, v(lane))
    k.I("v_xor_b32", v(t1), v(t1), v(t2))
    k.I("v_lshl_add_u32", v(vWo), v(t1), 4, v(t0))
    k.I("v_xor_b32", v(t1), 4, v(t1))
    k.I("v_lshl_add_u32", v(vWo + 1), v(t1), 4, v(t0))
    sZb = k.salloc(); sWb = k.salloc(); smZ = k.salloc(); smW = k.salloc()
    k.I("s_lshl_b32", s(st0), s(sft), 2)
    k.I("s_add_u32", s(st0), s(st0), s(sw3))
    k.I("s_mul_i32", s(sZb), s(st0), ZS)
    k.I("s_mul_i32", s(st1), s(skap), ZK)
    k.I("s_add_u32", s(sZb), s(sZb), s(st1))
    k.I("s_add_u32", s(sZb), s(sZb), hex(Z2_OFF))
    k.I("s_lshl_b32", s(smZ), s(sw3), 12)
    k.I("s_lshl_b32", s(st0), s(stt), 7)
    k.I("s_lshl_b32", s(st1), s(sw3), 5)
    k.I("s_add_u32", s(st0), s(st0), s(st1))
    k.I("s_lshl_b32", s(sWb), s(st0), 12)
    k.I("s_lshl_b32", s(st1), s(skap), 11)
    k.I("s_add_u32", s(sWb), s(sWb), s(st1))
    k.I("s_add_u32", s(smW), s(smZ), 16384)
    def issue(c):
        sl = (c % NS) * SLOT
        def zpart():
            for i in range(4):
                k.I("s_add_u32", s(soff), s(sZb), hex((4 * c + i) * 1024))
                k.I("s_add_u32", "m0", s(smZ), hex(sl + i * 1024))
                k.vm(("S", c), "buffer_load_dwordx4", v(v16), sr(sWS, 4), s(soff), mods="offen lds")
                if os.environ.get("DIAG5") and c == 0 and i in (0, 3):
                    k.I("s_waitcnt", "vmcnt(0)"); stp.tick(10 + (i > 0))
        def wpart():
            for i in range(4):
                k.I("s_add_u32", s(soff), s(sWb), hex(i * 8 * 4096 + c * 128))
                k.I("s_add_u32", "m0", s(smW), hex(sl + i * 1024))
                k.vm(("S", c), "buffer_load_dwordx4", v(vWo + (i & 1)), sr(sSp, 4), s(soff), mods="offen lds")
                if os.environ.get("DIAG5") and c == 0 and i in (0, 3):
                    k.I("s_waitcnt", "vmcnt(0)"); stp.tick(12 + (i > 0))
        if os.environ.get("DIAG5") == "2": wpart(); zpart()
        else: zpart(); wpart()
    NST = 16
    sZ1 = k.salloc()
    k.I("s_lshl_b32", s(st0), s(stt), 2)
    k.I("s_add_u32", s(st0), s(st0), s(sw3))
    k.I("s_mul_i32", s(sZ1), s(st0), 56 * 1024)
    k.I("s_lshl_b32", s(st1), s(sft), 13)
    k.I("s_add_u32", s(sZ1), s(sZ1), s(st1))
    k.I("s_add_u32", s(sZ1), s(sZ1), hex(Z1_OFF))
    smZ1 = k.salloc()
    k.I("s_lshl_b32", s(smZ1), s(sw3), 13)
    def issue_z1(i, tag):
        k.I("s_add_u32", s(soff), s(sZ1), hex(i * 1024))
        k.I("s_add_u32", "m0", s(smZ1), hex(Z1REG + i * 1024))
        k.vm(("S", tag), "buffer_load_dwordx4", v(v16), sr(sWS, 4), s(soff), mods="offen lds")
    LT = os.environ.get("TICKWAVE", "0") != "0"
    if LT: stp.tick(1)
    issue(0)
    if LT: stp.tick(2)
    issue(1)
    if LT: stp.tick(3)
    for c in range(NST):
        k.wait_vm(("S", c))
        if LT and c < 3: stp.tick(4 + 2 * c)
        k.I("s_barrier")
        if LT and c < 3: stp.tick(5 + 2 * c)
        if c == 0: issue(2); issue(3)
        elif c + 2 < NST and c >= 2:
            issue(c + 2)
            if 3 <= c < 11: issue_z1(c - 3, c + 2)
    vT = k.valloc()
    k.I("s_lshl_b32", s(st0), s(sidx), 8)
    k.I("v_subrev_u32", v(vT), 256, "v0")
    k.I("v_add_u32", v(vT), s(st0), v(vT))
    k.I("v_lshlrev_b32", v(vT), 7, v(vT))
    l2_prefetch(k, 56, 896 * 896, vT, 7168, st0)
    if LT: stp.dump_ticks()
    k.I("s_endpgm")
    k.L(comp)
    k.vnext = vsave; k.vmq = []; k.lgq = []
    srd(k, sB, pB, 4096)
    l31 = k.valloc(); hh = k.valloc()
    k.I("v_and_b32", v(l31), 31, v(lane))
    k.I("v_lshrrev_b32", v(hh), 5, v(lane))
    sfh = k.salloc(); sth = k.salloc(); sst = k.salloc(); sf32 = k.salloc()
    k.I("s_and_b32", s(sfh), s(swave), 1)
    k.I("s_lshr_b32", s(sth), s(swave), 1)
    k.I("s_lshl_b32", s(sst), s(stt), 2)
    k.I("s_lshl_b32", s(st0), s(sth), 1)
    k.I("s_add_u32", s(sst), s(sst), s(st0))
    k.I("s_lshl_b32", s(sf32), s(sft), 2)
    k.I("s_lshl_b32", s(st0), s(sfh), 1)
    k.I("s_add_u32", s(sf32), s(sf32), s(st0))
    if os.environ.get("PF3", "0") == "1":
        vT0 = k.valloc(); vd0 = k.valloc(2)
        k.I("s_lshl_b32", s(st0), s(sidx), 8)
        k.I("v_add_u32", v(vT0), s(st0), "v0")
        k.I("s_lshl_b32", s(st1), s(skap), 16)
        k.I("s_add_u32", s(st1), s(st1), hex(Z2_OFF))
        for i in range(2):
            k.I("v_add_u32", v(t0), 7168 * i, v(vT0))
            k.I("v_lshrrev_b32", v(t1), 9, v(t0))
            k.I("v_lshlrev_b32", v(t1), 17, v(t1))
            k.I("v_and_b32", v(t2), 511, v(t0))
            k.I("v_lshl_add_u32", v(t1), v(t2), 7, v(t1))
            k.vm("pf", "buffer_load_dword", v(vd0 + i), v(t1), sr(sWS, 4), s(st1), mods="offen")
    v16 = k.valloc()
    k.I("v_lshlrev_b32", v(v16), 4, v(lane))
    z1 = [[k.valloc(8, 4) for _ in range(2)] for _ in range(2)]
    rr = [k.valloc(2) for _ in range(2)]; bb = [k.valloc(2) for _ in range(2)]
    k.I("v_lshlrev_b32", v(t0), 2, v(l31))
    k.I("v_lshlrev_b32", v(t1), 1, v(l31))
    for ti in range(2):
        k.I("s_add_u32", s(st0), s(sst), ti)
        k.I("s_lshl_b32", s(soff), s(st0), 7)
        k.I("s_add_u32", s(soff), s(soff), hex(RH_OFF))
        k.vm("z1", "buffer_load_dword", v(rr[ti]), v(t0), sr(sWS, 4), s(soff), mods="offen")
        k.I("s_lshl_b32", s(soff), s(st0), 6)
        k.vm("z1", "buffer_load_ushort", v(bb[ti]), v(t1), sr(sB, 4), s(soff), mods="offen")
    if os.environ.get("PF2", "0") == "1":
        pp = k.salloc(2); sP = k.salloc(4); vT = k.valloc(); vd = k.valloc(2)
        k.I("s_load_dwordx2", sr(pp, 2), "s[0:1]", 56)
        k.I("s_lshl_b32", s(st0), s(sidx), 8)
        k.I("v_add_u32", v(vT), s(st0), "v0")
        k.I("v_lshlrev_b32", v(vT), 7, v(vT))
        k.I("s_waitcnt", "lgkmcnt(0)")
        srd(k, sP, pp, 896 * 896)
        k.vm("pf", "buffer_load_dword", v(vd), v(vT), sr(sP, 4), 0, mods="offen")
    code_prefetch(k, "k6_wout_kernel", sidx, st0)
    stp.stamp(0)
    aZ = k.valloc(); aW = k.valloc(4)
    k.I("s_lshl_b32", s(st0), s(sfh), 13)
    k.I("v_add_u32", v(aZ), s(st0), v(v16))
    k.I("v_bfe_u32", v(t0), v(l31), 1, 3)
    for j in range(4):
        k.I("v_add_u32", v(t1), 2 * j, v(hh))
        k.I("v_xor_b32", v(t1), v(t1), v(t0))
        k.I("v_lshlrev_b32", v(t1), 4, v(t1))
        k.I("v_lshl_add_u32", v(aW + j), v(l31), 7, v(t1))
        k.I("s_lshl_b32", s(st0), s(sth), 13)
        k.I("s_add_u32", s(st0), s(st0), 16384)
        k.I("v_add_u32", v(aW + j), s(st0), v(aW + j))
    aZ2 = k.valloc(); aW2 = k.valloc(4)
    k.I("v_add_u32", v(aZ2), 65536, v(aZ))
    for j in range(4): k.I("v_add_u32", v(aW2 + j), 65536, v(aW + j))
    acc = [[k.valloc(16, 4) for _ in range(2)] for _ in range(2)]
    NB = 3
    zf = [[k.valloc(4) for _ in range(2)] for _ in range(NB)]
    wf = [[k.valloc(4) for _ in range(2)] for _ in range(NB)]
    def rl(ks):
        c, j = ks // 4, ks % 4
        b = ks % NB
        sl = (c % NS) * SLOT
        hi = sl >= 65536
        so = sl - (65536 if hi else 0)
        out = []
        for fi in range(2):
            out.append(lambda fi=fi: k.lg(("f", ks), "ds_read_b128", vr(zf[b][fi], 4), v(aZ2 if hi else aZ), mods=f"offset:{so + fi * 4096 + j * 1024}"))
        for ti in range(2):
            out.append(lambda ti=ti: k.lg(("f", ks), "ds_read_b128", vr(wf[b][ti], 4), v((aW2 if hi else aW) + j), mods=f"offset:{so + ti * 4096}"))
        return out
    k.I("s_barrier")
    stp.stamp(1)
    for f in rl(0) + rl(1): f()
    NKS = NST * 4
    for ks in range(NKS):
        c, j = ks // 4, ks % 4
        b = ks % NB
        k.wait_lg(("f", ks))
        mf = []
        for fi in range(2):
            for ti in range(2):
                mf.append(lambda fi=fi, ti=ti: k.I("v_mfma_f32_32x32x16_bf16", vr(acc[fi][ti], 16), vr(zf[b][fi], 4), vr(wf[b][ti], 4), 0 if ks == 0 else vr(acc[fi][ti], 16)))
        fl = rl(ks + 2) if ks + 2 < NKS else []
        if j == 2 and ks + 2 < NKS:
            if not LT and c in (0, 13, 14): stp.tick({0: 0, 13: 1, 14: 2}[c])
            k.I("s_barrier")
        interleave(k, mf, fl)
    if not LT: stp.tick(3)
    stp.stamp(2)
    if not LT: stp.tick(4)
    if not LT: stp.tick(5)
    vz = k.valloc()
    k.I("s_lshl_b32", s(st0), s(sth), 14)
    k.I("s_lshl_b32", s(st1), s(sfh), 12)
    k.I("s_add_u32", s(st0), s(st0), s(st1))
    k.I("s_add_u32", s(st0), s(st0), Z1REG)
    k.I("v_add_u32", v(vz), s(st0), v(v16))
    for ti in range(2):
        for fi in range(2):
            for hf_ in range(2):
                k.lg(("z1", ti, fi), "ds_read_b128", vr(z1[fi][ti] + 4 * hf_, 4), v(vz), mods=f"offset:{ti * 8192 + fi * 2048 + hf_ * 1024}")
    k.wait_vm("z1")
    for ti in range(2):
        k.I("v_lshlrev_b32", v(bb[ti]), 16, v(bb[ti]))
        k.I("v_mul_f32", v(bb[ti]), v(bb[ti]), v(rr[ti]))
    k.I("s_cmp_eq_u32", s(skap), 0)
    k.I("s_cselect_b32", s(st0), "1.0", 0)
    for ti in range(2): k.I("v_mul_f32", v(bb[ti]), s(st0), v(bb[ti]))
    tp = [k.valloc(2) for _ in range(4)]
    P = [k.valloc(8, 4) for _ in range(2)]
    sU = k.salloc()
    k.I("s_mul_i32", s(sU), s(skap), U1_OFF - U0_OFF)
    k.I("s_add_u32", s(sU), s(sU), hex(U0_OFF))
    n = 0
    for ti in range(2):
        for fi in range(2):
            A = acc[fi][ti]; Zp = z1[fi][ti]; PP = P[n & 1]; n += 1
            for j in range(8):
                k.I("v_pk_fma_f32", vr(A + 2 * j, 2), vr(A + 2 * j, 2), vr(rr[ti], 2), vr(bb[ti], 2), mods="op_sel_hi:[1,0,0]")
            k.wait_lg(("z1", ti, fi))
            for j in range(8):
                T = tp[j % 4]
                k.I("v_lshlrev_b32", v(T), 16, v(Zp + j))
                k.I("v_and_b32", v(T + 1), "0xffff0000", v(Zp + j))
                k.I("v_pk_mul_f32", vr(A + 2 * j, 2), vr(A + 2 * j, 2), vr(T, 2))
            for j in range(8): k.I("v_cvt_pk_bf16_f32", v(PP + j), v(A + 2 * j), v(A + 2 * j + 1))
            k.I("s_add_u32", s(st0), s(sst), ti)
            k.I("s_mul_i32", s(soff), s(st0), 56 * 1024)
            k.I("s_add_u32", s(st0), s(sf32), fi)
            k.I("s_lshl_b32", s(st0), s(st0), 11)
            k.I("s_add_u32", s(soff), s(soff), s(st0))
            k.I("s_add_u32", s(soff), s(soff), s(sU))
            k.I("buffer_store_dwordx4", vr(PP, 4), v(v16), sr(sWS, 4), s(soff), mods="offen")
            k.I("buffer_store_dwordx4", vr(PP + 4, 4), v(v16), sr(sWS, 4), s(soff), mods="offen offset:1024")
            if not LT: stp.tick(5 + n)
    stp.stamp(3)
    if not LT: stp.tick(10)
    if not LT: stp.dump_ticks()
    k.L(R["done"])
    k.I("s_endpgm")
    k.lds = lds; k.threads = 512; k.grid = 224
    return k

def gen_k6(Stamper):
    k = Kernel("k6_wout_kernel")
    NS = 5; SLOT = 24576
    RED = 0
    lds = NS * SLOT
    R = common_start(k, 224)
    swave, st0, st1, soff, lane, t0, t1, t2 = (R[x] for x in ("swave", "st0", "st1", "soff", "lane", "t0", "t1", "t2"))
    pWo = k.salloc(2); pOut = k.salloc(2); pWS = k.salloc(2)
    k.I("s_load_dwordx2", sr(pWo, 2), "s[0:1]", 56)
    k.I("s_load_dwordx2", sr(pOut, 2), "s[0:1]", 64)
    k.I("s_load_dwordx2", sr(pWS, 2), "s[0:1]", 80)
    sWS = k.salloc(4); sWo = k.salloc(4); sOut = k.salloc(4)
    sj = k.salloc(); sidx = k.salloc(); srt = k.salloc(); snt = k.salloc(); sw3 = k.salloc()
    k.I("s_and_b32", s(sj), "s2", 7)
    k.I("s_lshr_b32", s(sidx), "s2", 3)
    k.I("s_and_b32", s(sw3), s(swave), 3)
    k.I("s_mul_i32", s(st0), s(sidx), 37)
    k.I("s_lshr_b32", s(st0), s(st0), 8)
    k.I("s_mul_i32", s(st1), s(st0), 7)
    k.I("s_sub_u32", s(snt), s(sidx), s(st1))
    k.I("s_lshl_b32", s(srt), s(sj), 2)
    k.I("s_add_u32", s(srt), s(srt), s(st0))
    stp = Stamper(k, 5, sWS, swave)
    k.I("s_waitcnt", "lgkmcnt(0)")
    srd(k, sWS, pWS, WS_SIZE)
    comp = k.newlabel("compute")
    k.I("s_cmp_lt_u32", s(swave), 4)
    k.I("s_cbranch_scc1", comp)
    vsave = k.vnext
    srd(k, sWo, pWo, 896 * 896)
    v16 = k.valloc(); vWo = k.valloc()
    k.I("v_lshlrev_b32", v(v16), 4, v(lane))
    k.I("v_lshrrev_b32", v(t0), 3, v(lane))
    k.I("v_mul_u32_u24", v(t0), 896, v(t0))
    k.I("v_bfe_u32", v(t1), v(lane), 4, 1)
    k.I("v_lshlrev_b32", v(t1), 2, v(t1))
    k.I("v_and_b32", v(t2), 7, v(lane))
    k.I("v_xor_b32", v(t1), v(t1), v(t2))
    k.I("v_lshl_add_u32", v(vWo), v(t1), 4, v(t0))
    sUb = k.salloc(); sWb = k.salloc(); smU = k.salloc(); smW = k.salloc()
    k.I("s_lshr_b32", s(st0), s(sw3), 1)
    k.I("s_lshl_b32", s(st1), s(srt), 1)
    k.I("s_add_u32", s(st1), s(st1), s(st0))
    k.I("s_mul_i32", s(sUb), s(st1), 56 * 1024)
    k.I("s_and_b32", s(st1), s(sw3), 1)
    k.I("s_mul_i32", s(smU), s(st1), U1_OFF - U0_OFF)
    k.I("s_add_u32", s(sUb), s(sUb), s(smU))
    k.I("s_add_u32", s(sUb), s(sUb), hex(U0_OFF))
    k.I("s_lshl_b32", s(smU), s(st1), 13)
    k.I("s_lshl_b32", s(st0), s(st0), 12)
    k.I("s_add_u32", s(smU), s(smU), s(st0))
    k.I("s_mul_i32", s(sWb), s(sw3), 16 * 896)
    k.I("s_lshl_b32", s(st1), s(snt), 7)
    k.I("s_add_u32", s(sWb), s(sWb), s(st1))
    k.I("s_lshl_b32", s(smW), s(sw3), 11)
    k.I("s_add_u32", s(smW), s(smW), 16384)
    def issue(c):
        sl = (c % NS) * SLOT
        for i in range(4):
            k.I("s_add_u32", s(soff), s(sUb), hex((4 * c + i) * 1024))
            k.I("s_add_u32", "m0", s(smU), hex(sl + i * 1024))
            k.vm(("S", c), "buffer_load_dwordx4", v(v16), sr(sWS, 4), s(soff), mods="offen lds")
        for i in range(2):
            k.I("s_add_u32", s(soff), s(sWb), hex((64 * c + 8 * i) * 896))
            k.I("s_add_u32", "m0", s(smW), hex(sl + i * 1024))
            k.vm(("S", c), "buffer_load_dwordx4", v(vWo), sr(sWo, 4), s(soff), mods="offen lds")
    NST = 14
    for c in range(3): issue(c)
    for c in range(NST):
        k.wait_vm(("S", c))
        k.I("s_barrier")
        if c == 0: issue(3); issue(4)
        elif c + 3 < NST and c >= 2: issue(c + 3)
    k.I("s_endpgm")
    k.L(comp)
    k.vnext = vsave; k.vmq = []; k.lgq = []
    srd(k, sOut, pOut, 2048 * 896)
    l31 = k.valloc(); hh = k.valloc()
    k.I("v_and_b32", v(l31), 31, v(lane))
    k.I("v_lshrrev_b32", v(hh), 5, v(lane))
    srh = k.salloc(); snh = k.salloc(); sst = k.salloc(); sntile = k.salloc()
    k.I("s_and_b32", s(srh), s(swave), 1)
    k.I("s_lshr_b32", s(snh), s(swave), 1)
    k.I("s_lshl_b32", s(sst), s(srt), 1)
    k.I("s_add_u32", s(sst), s(sst), s(srh))
    k.I("s_lshl_b32", s(sntile), s(snt), 1)
    k.I("s_add_u32", s(sntile), s(sntile), s(snh))
    if os.environ.get("PF3", "0") == "1":
        vT0 = k.valloc(); vd0 = k.valloc(2)
        k.I("s_lshl_b32", s(st0), s(sidx), 8)
        k.I("v_add_u32", v(vT0), s(st0), "v0")
        k.I("v_mov_b32", v(t0), hex(U1_OFF - U0_OFF - 3584 * 128))
        k.I("v_cmp_le_u32", "vcc", 3584, v(vT0))
        k.I("v_cndmask_b32", v(t0), 0, v(t0), "vcc")
        k.I("v_lshl_add_u32", v(t0), v(vT0), 7, v(t0))
        k.I("s_mul_i32", s(st1), s(sj), 8 * 56 * 1024)
        k.I("s_add_u32", s(st1), s(st1), hex(U0_OFF))
        k.vm("pf", "buffer_load_dword", v(vd0), v(t0), sr(sWS, 4), s(st1), mods="offen")
    v16 = k.valloc()
    k.I("v_lshlrev_b32", v(v16), 4, v(lane))
    hr = k.valloc(8, 4)
    k.I("s_mul_i32", s(soff), s(sst), 28 * 1024)
    k.I("s_lshl_b32", s(st0), s(sntile), 11)
    k.I("s_add_u32", s(soff), s(soff), s(st0))
    k.I("s_add_u32", s(soff), s(soff), hex(H_OFF))
    k.vm("h", "buffer_load_dwordx4", vr(hr, 4), v(v16), sr(sWS, 4), s(soff), mods="offen")
    k.vm("h", "buffer_load_dwordx4", vr(hr + 4, 4), v(v16), sr(sWS, 4), s(soff), mods="offen offset:1024")
    stp.stamp(0)
    aU = k.valloc(); vW = k.valloc()
    k.I("s_lshl_b32", s(st0), s(srh), 12)
    k.I("v_add_u32", v(aU), s(st0), v(v16))
    k.I("v_bfe_u32", v(t0), v(lane), 2, 2)
    k.I("v_lshl_add_u32", v(t0), v(hh), 2, v(t0))
    k.I("v_lshlrev_b32", v(vW), 7, v(t0))
    k.I("v_add_u32", v(vW), 16384, v(vW))
    k.I("v_bfe_u32", v(t0), v(lane), 4, 1)
    k.I("v_lshlrev_b32", v(t0), 1, v(t0))
    k.I("v_bfe_u32", v(t1), v(lane), 1, 1)
    k.I("v_add_u32", v(t0), v(t0), v(t1))
    k.I("s_lshl_b32", s(st0), s(snh), 2)
    k.I("v_add_u32", v(t0), s(st0), v(t0))
    k.I("v_bfe_u32", v(t1), v(lane), 3, 1)
    k.I("v_lshlrev_b32", v(t1), 2, v(t1))
    k.I("v_xor_b32", v(t0), v(t0), v(t1))
    k.I("v_lshl_add_u32", v(vW), v(t0), 4, v(vW))
    k.I("v_and_b32", v(t0), 1, v(lane))
    k.I("v_lshl_add_u32", v(vW), v(t0), 3, v(vW))
    aU2 = k.valloc(); vW2 = k.valloc()
    k.I("v_add_u32", v(aU2), 3 * SLOT, v(aU))
    k.I("v_add_u32", v(vW2), 3 * SLOT, v(vW))
    acc = k.valloc(16, 4)
    NB = 3
    uf = [[k.valloc(4) for _ in range(2)] for _ in range(NB)]; wf = [k.valloc(4) for _ in range(NB)]
    def rl(ks):
        c, j = ks // 4, ks % 4
        b = ks % NB
        sl = (c % NS)
        hi = sl >= 3
        so = (sl - (3 if hi else 0)) * SLOT
        out = []
        for ar_ in range(2):
            out.append(lambda ar_=ar_: k.lg(("f", ks), "ds_read_b128", vr(uf[b][ar_], 4), v(aU2 if hi else aU), mods=f"offset:{so + ar_ * 8192 + j * 1024}"))
        for beta in range(2):
            o = so + (16 * j + 8 * beta) * 128
            out.append(lambda o=o, beta=beta: k.lg(("f", ks), "ds_read_b64_tr_b16", vr(wf[b] + 2 * beta, 2), v(vW2 if hi else vW), mods=f"offset:{o}"))
        return out
    k.I("s_barrier")
    stp.stamp(1)
    for f in rl(0) + rl(1): f()
    NKS = NST * 4
    for ks in range(NKS):
        c, j = ks // 4, ks % 4
        b = ks % NB
        k.wait_lg(("f", ks))
        mf = [lambda ar_=ar_: k.I("v_mfma_f32_32x32x16_bf16", vr(acc, 16), vr(wf[b], 4), vr(uf[b][ar_], 4), 0 if (ks == 0 and ar_ == 0) else vr(acc, 16)) for ar_ in range(2)]
        fl = rl(ks + 2) if ks + 2 < NKS else []
        if j == 2 and ks + 2 < NKS: k.I("s_barrier")
        interleave(k, mf, fl)
    stp.stamp(2)
    k.wait_vm("h")
    tp = [k.valloc(2) for _ in range(4)]
    for j in range(8):
        T = tp[j % 4]
        k.I("v_lshlrev_b32", v(T), 16, v(hr + j))
        k.I("v_and_b32", v(T + 1), "0xffff0000", v(hr + j))
        k.I("v_pk_add_f32", vr(acc + 2 * j, 2), vr(acc + 2 * j, 2), vr(T, 2))
    P = k.valloc(8, 4)
    for j in range(8): k.I("v_cvt_pk_bf16_f32", v(P + j), v(acc + 2 * j), v(acc + 2 * j + 1))
    for kp in range(2):
        k.I("v_permlane32_swap_b32", v(P + 4 * kp), v(P + 4 * kp + 2))
        k.I("v_permlane32_swap_b32", v(P + 4 * kp + 1), v(P + 4 * kp + 3))
    vo = k.valloc()
    k.I("v_mul_u32_u24", v(vo), 896, v(l31))
    k.I("v_lshl_add_u32", v(vo), v(hh), 4, v(vo))
    k.I("s_mul_i32", s(soff), s(sst), 32 * 896)
    k.I("s_lshl_b32", s(st0), s(sntile), 6)
    k.I("s_add_u32", s(soff), s(soff), s(st0))
    for kp in range(2):
        k.I("buffer_store_dwordx4", vr(P + 4 * kp, 4), v(vo), sr(sOut, 4), s(soff), mods=f"offen offset:{32 * kp}")
    stp.stamp(3)
    if os.environ.get("SPIN"):
        ka, ja, kb, jb = [int(x) for x in os.environ["SPIN"].split(",")]
        sa_ = k.salloc(2); sb_ = k.salloc(2); sn_ = k.salloc(2); sq_ = k.salloc(2)
        lab = k.newlabel("spin"); out_ = k.newlabel("spun")
        k.I("s_or_b32", s(st0), "s2", s(swave))
        k.I("s_cmp_lg_u32", s(st0), 0)
        k.I("s_cbranch_scc1", out_)
        k.I("s_load_dwordx2", sr(sa_, 2), sr(pWS, 2), hex(STAMP_OFF + ka * 256 * 64 + ja * 8))
        if kb >= 0: k.I("s_load_dwordx2", sr(sb_, 2), sr(pWS, 2), hex(STAMP_OFF + kb * 256 * 64 + jb * 8))
        else: k.I("s_memrealtime", sr(sb_, 2))
        k.I("s_memrealtime", sr(sn_, 2))
        k.I("s_waitcnt", "lgkmcnt(0)")
        k.I("s_sub_u32", s(sa_), s(sb_), s(sa_))
        k.I("s_min_u32", s(sa_), s(sa_), 20000)
        k.I("s_add_u32", s(sn_), s(sn_), s(sa_))
        k.L(lab)
        k.I("s_memrealtime", sr(sq_, 2))
        k.I("s_waitcnt", "lgkmcnt(0)")
        k.I("s_sub_u32", s(sq_), s(sq_), s(sn_))
        k.I("s_cmp_lt_i32", s(sq_), 0)
        k.I("s_cbranch_scc1", lab)
        k.L(out_)
    k.L(R["done"])
    k.I("s_endpgm")
    k.lds = lds; k.threads = 512; k.grid = 224
    return k

def rest(Stamper):
    return [gen_k2(Stamper), gen_k3(Stamper), gen_k4(Stamper), gen_k5(Stamper), gen_k6(Stamper)]
```

```python
import os, struct, math
from asmlib import *
from layout import *
WS_SIZE = 0x10000000
def f32(x): return struct.unpack("<I", struct.pack("<f", x))[0]

def srd(k, dst, base, size):
    k.I("s_mov_b32", s(dst), s(base))
    k.I("s_and_b32", s(dst + 1), s(base + 1), "0xffff")
    k.I("s_mov_b32", s(dst + 2), hex(size) if isinstance(size, int) else size)
    k.I("s_mov_b32", s(dst + 3), "0x20000")

def gen_k2(Stamper):
    k = Kernel("k2_attn_kernel")
    k.snext = 4; k.vnext = 1
    KREG = 0; VREG = 24576
    lds = 49152
    done = k.newlabel("done")
    k.I("s_cmp_ge_u32", "s2", 256)
    k.I("s_cbranch_scc1", done)
    pWS = k.salloc(2)
    k.I("s_load_dwordx2", sr(pWS, 2), "s[0:1]", 80)
    sWS = k.salloc(4)
    swave = k.salloc(); srb = k.salloc(); shd = k.salloc(); st0 = k.salloc(); st1 = k.salloc(); soff = k.salloc()
    lane = k.valloc(); t0 = k.valloc(); t1 = k.valloc(); l15 = k.valloc(); gg = k.valloc()
    k.I("v_lshrrev_b32", v(t0), 6, "v0")
    k.I("v_and_b32", v(lane), 63, "v0")
    k.I("v_readfirstlane_b32", s(swave), v(t0))
    k.I("s_and_b32", s(st0), "s2", 7)
    k.I("s_lshr_b32", s(st1), "s2", 3)
    k.I("s_and_b32", s(shd), s(st1), 15)
    k.I("s_lshr_b32", s(st1), s(st1), 4)
    k.I("s_lshl_b32", s(srb), s(st0), 1)
    k.I("s_add_u32", s(srb), s(srb), s(st1))
    stp = Stamper(k, 1, sWS, swave)
    v16 = k.valloc()
    k.I("v_lshlrev_b32", v(v16), 4, v(lane))
    sb = k.salloc(); sm = k.salloc(); s16q = k.salloc()
    k.I("s_lshl_b32", s(sb), s(shd), 17)
    k.I("s_lshl_b32", s(st0), s(srb), 13)
    k.I("s_add_u32", s(sb), s(sb), s(st0))
    k.I("s_mul_i32", s(sm), s(swave), 3072)
    k.I("s_lshl_b32", s(s16q), s(srb), 3)
    k.I("s_add_u32", s(s16q), s(s16q), s(swave))
    k.I("s_waitcnt", "lgkmcnt(0)")
    srd(k, sWS, pWS, WS_SIZE)
    qf = k.valloc(4)
    k.I("s_lshl_b32", s(st0), s(swave), 10)
    k.I("s_add_u32", s(st0), s(st0), s(sb))
    k.I("s_add_u32", s(soff), s(st0), hex(Q_OFF))
    k.vm("q", "buffer_load_dwordx4", vr(qf, 4), v(v16), sr(sWS, 4), s(soff), mods="offen")
    k.I("s_add_u32", s(st1), s(sb), s(sm))
    for (reg, off) in ((KREG, K_OFF), (VREG, V_OFF)):
        for i in range(3):
            k.I("s_add_u32", s(soff), s(st1), hex(off - 16384 + i * 1024))
            k.I("s_add_u32", "m0", s(sm), hex(reg + i * 1024))
            k.vm("kv", "buffer_load_dwordx4", v(v16), sr(sWS, 4), s(soff), mods="offen lds")
    sidx2 = k.salloc()
    k.I("s_lshr_b32", s(sidx2), "s2", 3)
    code_prefetch(k, "k3_wo_kernel", sidx2, st0)
    stp.stamp(0)
    k.I("v_and_b32", v(l15), 15, v(lane))
    k.I("v_lshrrev_b32", v(gg), 4, v(lane))
    M = [k.salloc(2) for _ in range(4)]
    k.I("v_lshlrev_b32", v(t0), 2, v(gg))
    for i in range(4):
        k.I("v_add_u32", v(t1), i, v(t0))
        k.I("v_cmp_gt_u32", sr(M[i], 2), v(t1), v(l15))
    aK = k.valloc(); aV = k.valloc()
    k.I("s_lshl_b32", s(st0), s(swave), 10)
    k.I("v_add_u32", v(aK), s(st0), v(v16))
    k.I("v_lshlrev_b32", v(aV), 3, v(lane))
    k.I("s_add_u32", s(st0), s(st0), VREG)
    k.I("v_add_u32", v(aV), s(st0), v(aV))
    S = k.valloc(68, 4)
    kf = [k.valloc(4) for _ in range(6)]
    neg = k.valloc()
    k.I("v_mov_b32", v(neg), hex(f32(-1e30)))
    k.wait_vm(["q", "kv"])
    k.I("s_barrier")
    stp.stamp(1)
    NKF = 6
    for j in range(min(NKF, 17)):
        k.lg(("k", j), "ds_read_b128", vr(kf[j % NKF], 4), v(aK), mods=f"offset:{j * 1024}")
    for j in range(17):
        k.wait_lg(("k", j))
        k.I("v_mfma_f32_16x16x32_bf16", vr(S + 4 * j, 4), vr(kf[j % NKF], 4), vr(qf, 4), 0)
        if j + NKF < 17:
            k.lg(("k", j + NKF), "ds_read_b128", vr(kf[j % NKF], 4), v(aK), mods=f"offset:{(j + NKF) * 1024}")
    vT = k.valloc()
    k.I("s_lshl_b32", s(st0), s(sidx2), 9)
    k.I("v_add_u32", v(vT), s(st0), "v0")
    k.I("v_lshlrev_b32", v(vT), 7, v(vT))
    l2_prefetch(k, 32, 448 * 3584, vT, 16384, st0)
    k.lgq = []
    vf = k.valloc(9 * 2 * 4, 4)
    def vread(kp):
        for dt in range(2):
            for beta in range(2):
                tile = min(2 * kp + beta, 16)
                k.lg(("v", kp), "ds_read_b64", vr(vf + (kp * 2 + dt) * 4 + 2 * beta, 2), v(aV), mods=f"offset:{tile * 1024 + dt * 512}")
    for kp in range(3): vread(kp)
    for i in range(4):
        k.I("v_cndmask_b32", v(S + i), v(neg), v(S + i), sr(M[i], 2))
        k.I("v_cndmask_b32", v(S + 64 + i), v(S + 64 + i), v(neg), sr(M[i], 2))
    nofix = k.newlabel("nofix")
    k.I("s_cmp_ge_u32", s(s16q), 16)
    k.I("s_cbranch_scc1", nofix)
    k.I("s_sub_u32", s(st0), 16, s(s16q))
    for j in range(16):
        lab = k.newlabel("sk")
        k.I("s_cmp_le_u32", s(st0), j)
        k.I("s_cbranch_scc1", lab)
        for i in range(4): k.I("v_mov_b32", v(S + 4 * j + i), v(neg))
        k.L(lab)
    k.L(nofix)
    mx = k.valloc(4)
    for c in range(4):
        k.I("v_max3_f32", v(mx + c), v(S + c * 17), v(S + c * 17 + 1), v(S + c * 17 + 2))
    for r in range(7):
        for c in range(4):
            b = c * 17 + 3 + 2 * r
            k.I("v_max3_f32", v(mx + c), v(mx + c), v(S + b), v(S + b + 1))
    k.I("v_max3_f32", v(mx), v(mx), v(mx + 1), v(mx + 2))
    k.I("v_max_f32", v(mx), v(mx), v(mx + 3))
    for sw in ("v_permlane16_swap_b32", "v_permlane32_swap_b32"):
        k.I("v_mov_b32", v(mx + 1), v(mx))
        k.I(sw, v(mx), v(mx + 1))
        k.I("v_max_f32", v(mx), v(mx), v(mx + 1))
    cs = 28 ** -0.5 * math.log2(math.e)
    sc = k.salloc()
    k.I("s_mov_b32", s(sc), hex(f32(cs)))
    k.I("v_mul_f32", v(mx), hex(f32(-cs)), v(mx))
    for kp in range(3, 6): vread(kp)
    P = k.valloc(36, 4)
    k.I("v_mov_b32", v(P + 34), 0); k.I("v_mov_b32", v(P + 35), 0)
    O = [k.valloc(4), k.valloc(4)]
    def softmax_tile(j):
        for i in range(4): k.I("v_fma_f32", v(S + 4 * j + i), v(S + 4 * j + i), s(sc), v(mx))
        for i in range(4): k.I("v_exp_f32", v(S + 4 * j + i), v(S + 4 * j + i))
    def pack_tile(j):
        k.I("v_cvt_pk_bf16_f32", v(P + 2 * j), v(S + 4 * j), v(S + 4 * j + 1))
        k.I("v_cvt_pk_bf16_f32", v(P + 2 * j + 1), v(S + 4 * j + 2), v(S + 4 * j + 3))
    for kp in range(9):
        tiles = [2 * kp, 2 * kp + 1] if kp < 8 else [16]
        for j in tiles: softmax_tile(j)
        for j in tiles: pack_tile(j)
        if kp == 2:
            for q in range(6, 9): vread(q)
        if kp >= 1:
            q = kp - 1
            k.wait_lg(("v", q))
            for dt in range(2):
                k.I("v_mfma_f32_16x16x32_bf16", vr(O[dt], 4), vr(vf + (q * 2 + dt) * 4, 4), vr(P + 4 * q, 4), 0 if q == 0 else vr(O[dt], 4))
    k.wait_lg(("v", 8))
    for dt in range(2):
        k.I("v_mfma_f32_16x16x32_bf16", vr(O[dt], 4), vr(vf + (8 * 2 + dt) * 4, 4), vr(P + 32, 4), vr(O[dt], 4))
    la = k.valloc(); lb = k.valloc()
    k.I("v_mov_b32", v(la), v(O[1])); k.I("v_mov_b32", v(lb), v(O[1]))
    k.I("v_permlane32_swap_b32", v(la), v(lb))
    k.I("v_mov_b32", v(la), v(lb))
    k.I("v_permlane16_swap_b32", v(la), v(lb))
    k.I("v_rcp_f32", v(lb), v(lb))
    for dt in range(2):
        for i in range(4): k.I("v_mul_f32", v(O[dt] + i), v(O[dt] + i), v(lb))
    pk = k.valloc(4)
    for dt in range(2):
        k.I("v_cvt_pk_bf16_f32", v(pk + 2 * dt), v(O[dt]), v(O[dt] + 1))
        k.I("v_cvt_pk_bf16_f32", v(pk + 2 * dt + 1), v(O[dt] + 2), v(O[dt] + 3))
    k.I("v_cmp_gt_u32", "vcc", 3, v(gg))
    k.I("v_cndmask_b32", v(pk + 2), 0, v(pk + 2), "vcc")
    k.I("v_cndmask_b32", v(pk + 3), 0, v(pk + 3), "vcc")
    vo = k.valloc()
    k.I("s_and_b32", s(st0), s(swave), 1)
    k.I("s_lshl_b32", s(st0), s(st0), 8)
    k.I("v_lshlrev_b32", v(vo), 4, v(l15))
    k.I("v_add_u32", v(vo), s(st0), v(vo))
    k.I("v_lshrrev_b32", v(t0), 1, v(gg))
    k.I("v_lshl_add_u32", v(vo), v(t0), 9, v(vo))
    k.I("v_and_b32", v(t0), 1, v(gg))
    k.I("v_lshl_add_u32", v(vo), v(t0), 3, v(vo))
    k.I("s_lshl_b32", s(st0), s(srb), 2)
    k.I("s_lshr_b32", s(st1), s(swave), 1)
    k.I("s_add_u32", s(st0), s(st0), s(st1))
    k.I("s_lshl_b32", s(st0), s(st0), 15)
    k.I("s_lshl_b32", s(st1), s(shd), 11)
    k.I("s_add_u32", s(st0), s(st0), s(st1))
    k.I("s_add_u32", s(soff), s(st0), hex(O_OFF))
    for dt in range(2):
        k.I("buffer_store_dwordx2", vr(pk + 2 * dt, 2), v(vo), sr(sWS, 4), s(soff), mods=f"offen offset:{dt * 1024}")
    stp.stamp(2)
    k.L(done)
    k.I("s_endpgm")
    k.lds = lds; k.threads = 512; k.grid = 256
    return k


def code_prefetch(k, nxt, sidx, tmp_s, tid="v0"):
    if os.environ.get("PFC", "1") != "1": return
    pp = k.salloc(2); sP = k.salloc(4); vT = k.valloc(); vd = k.valloc()
    lab = k.newlabel("pc")
    k.I("s_getpc_b64", sr(pp, 2))
    k.L(lab)
    k.I("s_add_u32", s(pp), s(pp), f"{nxt}-{lab}")
    k.I("s_addc_u32", s(pp + 1), s(pp + 1), 0)
    srd(k, sP, pp, f"{nxt}_end-{nxt}")
    k.I("s_lshl_b32", s(tmp_s), s(sidx), 8)
    k.I("v_add_u32", v(vT), s(tmp_s), tid)
    k.I("v_lshlrev_b32", v(vT), 7, v(vT))
    k.vm("pfc", "buffer_load_dword", v(vd), v(vT), sr(sP, 4), 0, mods="offen")

def l2_prefetch(k, kernarg_off, nbytes, vT128, nthreads, tmp_s):
    if os.environ.get("PFT", "0") != "1": return
    pp = k.salloc(2); sP = k.salloc(4)
    k.I("s_load_dwordx2", sr(pp, 2), "s[0:1]", kernarg_off)
    k.I("s_waitcnt", "lgkmcnt(0)")
    srd(k, sP, pp, nbytes)
    n = -(-nbytes // (128 * nthreads))
    for i in range(n):
        vd = k.valloc()
        k.I("s_mov_b32", s(tmp_s), hex(i * nthreads * 128))
        k.vm("pft", "buffer_load_dword", v(vd), v(vT128), sr(sP, 4), s(tmp_s), mods="offen")

def common_start(k, nwg):
    k.snext = 4; k.vnext = 1
    done = k.newlabel("done")
    k.I("s_cmp_ge_u32", "s2", nwg)
    k.I("s_cbranch_scc1", done)
    R = dict(done=done)
    R["swave"] = k.salloc(); R["st0"] = k.salloc(); R["st1"] = k.salloc(); R["soff"] = k.salloc()
    R["lane"] = k.valloc(); R["t0"] = k.valloc(); R["t1"] = k.valloc(); R["t2"] = k.valloc()
    k.I("v_lshrrev_b32", v(R["t0"]), 6, "v0")
    k.I("v_and_b32", v(R["lane"]), 63, "v0")
    k.I("v_readfirstlane_b32", s(R["swave"]), v(R["t0"]))
    return R

def interleave(k, mf, fl):
    n = len(fl); m = len(mf)
    cuts = [(i * n + m - 1) // m for i in range(m + 1)]
    cuts[-1] = n
    for i in range(m):
        mf[i]()
        for f in fl[cuts[i]:cuts[i + 1]]: f()

def stats_from_packed(k, P, n, accs, accq, tmp):
    for j in range(n):
        t = tmp[j % len(tmp)]
        k.I("v_lshlrev_b32", v(t), 16, v(P + j))
        k.I("v_and_b32", v(t + 1), "0xffff0000", v(P + j))
        if j == 0:
            k.I("v_pk_mul_f32", vr(accq, 2), vr(t, 2), vr(t, 2))
            k.I("v_mov_b32", v(accs), v(t)); k.I("v_mov_b32", v(accs + 1), v(t + 1))
        else:
            k.I("v_pk_add_f32", vr(accs, 2), vr(accs, 2), vr(t, 2))
            k.I("v_pk_fma_f32", vr(accq, 2), vr(t, 2), vr(t, 2), vr(accq, 2))
    k.I("v_add_f32", v(accs), v(accs), v(accs + 1))
    k.I("v_add_f32", v(accq), v(accq), v(accq + 1))
    for r_ in (accs, accq):
        k.I("v_mov_b32", v(r_ + 1), v(r_))
        k.I("v_permlane32_swap_b32", v(r_), v(r_ + 1))
        k.I("v_add_f32", v(r_), v(r_), v(r_ + 1))

def gen_k3(Stamper):
    k = Kernel("k3_wo_kernel")
    WREG = 0; OREG = 58368
    lds = OREG + 65536
    R = common_start(k, 256)
    swave, st0, st1, soff, lane, t0, t1, t2 = (R[x] for x in ("swave", "st0", "st1", "soff", "lane", "t0", "t1", "t2"))
    pX = k.salloc(2); pWo = k.salloc(2); pWin = k.salloc(2); pWS = k.salloc(2)
    k.I("s_load_dwordx2", sr(pX, 2), "s[0:1]", 0)
    k.I("s_load_dwordx2", sr(pWo, 2), "s[0:1]", 16)
    k.I("s_load_dwordx2", sr(pWin, 2), "s[0:1]", 32)
    k.I("s_load_dwordx2", sr(pWS, 2), "s[0:1]", 80)
    sWS = k.salloc(4); sWo = k.salloc(4); sX = k.salloc(4)
    sj = k.salloc(); sidx = k.salloc(); srt = k.salloc(); snt = k.salloc(); sw3 = k.salloc()
    k.I("s_and_b32", s(sj), "s2", 7)
    k.I("s_lshr_b32", s(sidx), "s2", 3)
    k.I("s_and_b32", s(sw3), s(swave), 3)
    stp = Stamper(k, 2, sWS, swave)
    aux = k.newlabel("aux")
    k.I("s_cmp_ge_u32", s(sidx), 28)
    k.I("s_cbranch_scc1", aux)
    k.I("s_mul_i32", s(st0), s(sidx), 37)
    k.I("s_lshr_b32", s(st0), s(st0), 8)
    k.I("s_mul_i32", s(st1), s(st0), 7)
    k.I("s_sub_u32", s(snt), s(sidx), s(st1))
    k.I("s_lshl_b32", s(srt), s(sj), 2)
    k.I("s_add_u32", s(srt), s(srt), s(st0))
    k.I("s_waitcnt", "lgkmcnt(0)")
    srd(k, sWS, pWS, WS_SIZE)
    comp = k.newlabel("compute")
    k.I("s_cmp_lt_u32", s(swave), 4)
    k.I("s_cbranch_scc1", comp)
    vsave = k.vnext
    srd(k, sWo, pWo, 448 * 896)
    v16 = k.valloc(); vWo = k.valloc()
    k.I("v_lshlrev_b32", v(v16), 4, v(lane))
    k.I("v_lshrrev_b32", v(t0), 3, v(lane))
    k.I("v_mul_u32_u24", v(t0), 896, v(t0))
    k.I("v_bfe_u32", v(t1), v(lane), 4, 1)
    k.I("v_lshlrev_b32", v(t1), 2, v(t1))
    k.I("v_and_b32", v(t2), 7, v(lane))
    k.I("v_xor_b32", v(t1), v(t1), v(t2))
    k.I("v_lshl_add_u32", v(vWo), v(t1), 4, v(t0))
    sOb = k.salloc(); sWb = k.salloc(); smO = k.salloc(); smW = k.salloc()
    k.I("s_lshl_b32", s(sOb), s(srt), 16)
    k.I("s_lshl_b32", s(st0), s(sw3), 10)
    k.I("s_add_u32", s(sOb), s(sOb), s(st0))
    k.I("s_add_u32", s(sOb), s(sOb), hex(O_OFF))
    k.I("s_add_u32", s(smO), s(st0), OREG)
    k.I("s_mul_i32", s(sWb), s(sw3), 8 * 896)
    k.I("s_lshl_b32", s(st1), s(snt), 7)
    k.I("s_add_u32", s(sWb), s(sWb), s(st1))
    k.I("s_add_u32", s(smW), s(st0), WREG)
    def issue(c):
        for r2 in range(2):
            k.I("s_add_u32", s(soff), s(sOb), hex(r2 * 32768 + c * 4096))
            k.I("s_add_u32", "m0", s(smO), hex(r2 * 32768 + c * 4096))
            k.vm(("S", c), "buffer_load_dwordx4", v(v16), sr(sWS, 4), s(soff), mods="offen lds")
        for i in range(2):
            k.I("s_add_u32", s(soff), s(sWb), hex((56 * c + 32 * i) * 896))
            k.I("s_add_u32", "m0", s(smW), hex((56 * c + 32 * i) * 128))
            k.vm(("S", c), "buffer_load_dwordx4", v(vWo), sr(sWo, 4), s(soff), mods="offen lds")
    LA = 3
    for c in range(LA): issue(c)
    for c in range(8):
        k.wait_vm(("S", c))
        k.I("s_barrier")
        if c + LA < 8: issue(c + LA)
    k.I("s_endpgm")
    k.L(comp)
    k.vnext = vsave; k.vmq = []; k.lgq = []
    srd(k, sX, pX, 2048 * 896)
    l31 = k.valloc(); hh = k.valloc()
    k.I("v_and_b32", v(l31), 31, v(lane))
    k.I("v_lshrrev_b32", v(hh), 5, v(lane))
    srh = k.salloc(); snh = k.salloc(); sst = k.salloc(); sntile = k.salloc()
    k.I("s_and_b32", s(srh), s(swave), 1)
    k.I("s_lshr_b32", s(snh), s(swave), 1)
    k.I("s_lshl_b32", s(sst), s(srt), 1)
    k.I("s_add_u32", s(sst), s(sst), s(srh))
    k.I("s_lshl_b32", s(sntile), s(snt), 1)
    k.I("s_add_u32", s(sntile), s(sntile), s(snh))
    xr = k.valloc(8, 4); vx = k.valloc()
    k.I("v_mul_u32_u24", v(vx), 896, v(l31))
    k.I("v_lshl_add_u32", v(vx), v(hh), 3, v(vx))
    k.I("s_mul_i32", s(soff), s(sst), 32 * 896)
    k.I("s_lshl_b32", s(st0), s(sntile), 6)
    k.I("s_add_u32", s(soff), s(soff), s(st0))
    for q in range(4):
        k.vm("x", "buffer_load_dwordx2", vr(xr + 2 * q, 2), v(vx), sr(sX, 4), s(soff), mods=f"offen offset:{16 * q}")
    code_prefetch(k, "k4_win_kernel", sidx, st0)
    stp.stamp(0)
    aO = k.valloc(); vW = k.valloc()
    k.I("v_lshlrev_b32", v(aO), 4, v(lane))
    k.I("s_lshl_b32", s(st0), s(srh), 15)
    k.I("s_add_u32", s(st0), s(st0), OREG)
    k.I("v_add_u32", v(aO), s(st0), v(aO))
    k.I("v_bfe_u32", v(t0), v(lane), 2, 2)
    k.I("v_lshl_add_u32", v(t0), v(hh), 3, v(t0))
    k.I("v_lshlrev_b32", v(vW), 7, v(t0))
    k.I("v_bfe_u32", v(t0), v(lane), 4, 1)
    k.I("v_lshlrev_b32", v(t0), 1, v(t0))
    k.I("v_bfe_u32", v(t1), v(lane), 1, 1)
    k.I("v_add_u32", v(t0), v(t0), v(t1))
    k.I("s_lshl_b32", s(st0), s(snh), 2)
    k.I("v_add_u32", v(t0), s(st0), v(t0))
    k.I("v_bfe_u32", v(t1), v(lane), 3, 1)
    k.I("v_lshlrev_b32", v(t1), 2, v(t1))
    k.I("v_xor_b32", v(t0), v(t0), v(t1))
    k.I("v_lshl_add_u32", v(vW), v(t0), 4, v(vW))
    k.I("v_and_b32", v(t0), 1, v(lane))
    k.I("v_lshl_add_u32", v(vW), v(t0), 3, v(vW))
    acc = k.valloc(16, 4)
    NB = 3
    of = [k.valloc(4) for _ in range(NB)]; wf = [k.valloc(4) for _ in range(NB)]
    def rl(ks):
        b = ks % NB
        out = [lambda: k.lg(("f", ks), "ds_read_b128", vr(of[b], 4), v(aO), mods=f"offset:{ks * 1024}")]
        for beta in range(2):
            o = (28 * (ks >> 1) + 16 * (ks & 1) + 4 * beta) * 128
            out.append(lambda o=o, beta=beta: k.lg(("f", ks), "ds_read_b64_tr_b16", vr(wf[b] + 2 * beta, 2), v(vW), mods=f"offset:{o}"))
        return out
    k.I("s_barrier")
    stp.stamp(1)
    for f in rl(0) + rl(1): f()
    for ks in range(32):
        c, j = ks // 4, ks % 4
        b = ks % NB
        k.wait_lg(("f", ks))
        k.I("v_mfma_f32_32x32x16_bf16", vr(acc, 16), vr(wf[b], 4), vr(of[b], 4), 0 if ks == 0 else vr(acc, 16))
        if j == 1 and c < 7: k.I("s_barrier")
        if ks + 2 < 32 and not (j == 1 and False):
            pass
        nxt = ks + 2
        if nxt < 32:
            for f in rl(nxt): f()
    EOF_MARK = None
    stp.stamp(2)
    k.wait_vm("x")
    tmp = [k.valloc(2) for _ in range(4)]
    for q in range(4):
        for d in range(2):
            t = tmp[(2 * q + d) % 4]
            k.I("v_lshlrev_b32", v(t), 16, v(xr + 2 * q + d))
            k.I("v_and_b32", v(t + 1), "0xffff0000", v(xr + 2 * q + d))
            k.I("v_pk_add_f32", vr(acc + 4 * q + 2 * d, 2), vr(acc + 4 * q + 2 * d, 2), vr(t, 2))
    P = k.valloc(8, 4)
    for j in range(8): k.I("v_cvt_pk_bf16_f32", v(P + j), v(acc + 2 * j), v(acc + 2 * j + 1))
    v16 = k.valloc()
    k.I("v_lshlrev_b32", v(v16), 4, v(lane))
    k.I("s_mul_i32", s(soff), s(sst), 28 * 1024)
    k.I("s_lshl_b32", s(st0), s(sntile), 11)
    k.I("s_add_u32", s(soff), s(soff), s(st0))
    k.I("s_add_u32", s(soff), s(soff), hex(H_OFF))
    k.I("buffer_store_dwordx4", vr(P, 4), v(v16), sr(sWS, 4), s(soff), mods="offen")
    k.I("buffer_store_dwordx4", vr(P + 4, 4), v(v16), sr(sWS, 4), s(soff), mods="offen offset:1024")
    accs = k.valloc(2); accq = k.valloc(2)
    stats_from_packed(k, P, 8, accs, accq, tmp)
    k.I("v_mov_b32", v(accs + 1), v(accq))
    vh = k.valloc()
    k.I("v_mul_u32_u24", v(vh), 112, v(l31))
    k.I("s_mul_i32", s(soff), s(sst), 32 * 112)
    k.I("s_lshl_b32", s(st0), s(sntile), 3)
    k.I("s_add_u32", s(soff), s(soff), s(st0))
    k.I("s_add_u32", s(soff), s(soff), hex(HS_OFF))
    k.I("s_mov_b32", "exec_hi", 0)
    k.I("buffer_store_dwordx2", vr(accs, 2), v(vh), sr(sWS, 4), s(soff), mods="offen")
    stp.stamp(3)
    k.I("s_endpgm")
    k.L(aux)
    k.vnext = vsave; k.vmq = []; k.lgq = []
    sa = k.salloc(); sWin = k.salloc(4)
    k.I("s_sub_u32", s(sa), s(sidx), 28)
    k.I("s_lshl_b32", s(sa), s(sa), 3)
    k.I("s_add_u32", s(sa), s(sa), s(sj))
    k.I("s_waitcnt", "lgkmcnt(0)")
    srd(k, sWS, pWS, WS_SIZE)
    ff = k.valloc(4)
    for i in range(4): k.I("v_mov_b32", v(ff + i), -1)
    k.I("v_lshlrev_b32", v(t1), 4, "v0")
    k.I("v_mov_b32", v(t2), "0x7fffff00")
    k.I("v_cmp_gt_u32", "vcc", 448, "v0")
    k.I("v_cndmask_b32", v(t1), v(t2), v(t1), "vcc")
    k.I("s_mul_i32", s(st0), s(sa), 7168)
    k.I("s_add_u32", s(st0), s(st0), hex(EX_OFF))
    k.I("buffer_store_dwordx4", vr(ff, 4), v(t1), sr(sWS, 4), s(st0), mods="offen")
    k.I("s_cmp_ge_u32", s(sa), 28)
    k.I("s_cbranch_scc1", R["done"])
    srd(k, sWin, pWin, 448 * 3584)
    vg = k.valloc()
    k.I("v_lshrrev_b32", v(t0), 3, v(lane))
    k.I("v_mul_u32_u24", v(t0), 3584, v(t0))
    k.I("v_bfe_u32", v(t1), v(lane), 4, 1)
    k.I("v_lshlrev_b32", v(t1), 2, v(t1))
    k.I("v_and_b32", v(t2), 7, v(lane))
    k.I("v_xor_b32", v(t1), v(t1), v(t2))
    k.I("v_lshl_add_u32", v(vg), v(t1), 4, v(t0))
    sb = k.salloc(); sm = k.salloc()
    k.I("s_mul_i32", s(sb), s(swave), 56 * 3584)
    k.I("s_lshl_b32", s(st0), s(sa), 7)
    k.I("s_add_u32", s(sb), s(sb), s(st0))
    k.I("s_mul_i32", s(sm), s(swave), 56 * 128)
    for i in range(7):
        k.I("s_add_u32", s(soff), s(sb), hex(i * 8 * 3584))
        k.I("s_add_u32", "m0", s(sm), hex(i * 1024))
        k.I("buffer_load_dwordx4", v(vg), sr(sWin, 4), s(soff), mods="offen lds")
    z = k.valloc(); TB = 57344
    k.I("v_mov_b32", v(z), 0)
    k.I("v_lshlrev_b32", v(t0), 2, v(lane))
    k.I("v_add_u32", v(t0), TB, v(t0))
    k.I("ds_write_b32", v(t0), v(z))
    gg = k.valloc(); vB = k.valloc(); ones = k.valloc(4)
    k.I("v_lshrrev_b32", v(gg), 4, v(lane))
    k.I("v_bfe_u32", v(t0), v(lane), 2, 2)
    k.I("v_lshl_add_u32", v(t0), v(gg), 3, v(t0))
    k.I("v_lshlrev_b32", v(vB), 7, v(t0))
    k.I("v_bfe_u32", v(t0), v(lane), 1, 1)
    k.I("s_lshl_b32", s(st0), s(sw3), 1)
    k.I("v_add_u32", v(t0), s(st0), v(t0))
    k.I("v_bfe_u32", v(t1), v(lane), 3, 1)
    k.I("v_lshlrev_b32", v(t1), 2, v(t1))
    k.I("v_xor_b32", v(t0), v(t0), v(t1))
    k.I("v_lshl_add_u32", v(vB), v(t0), 4, v(vB))
    k.I("v_and_b32", v(t0), 1, v(lane))
    k.I("v_lshl_add_u32", v(vB), v(t0), 3, v(vB))
    k.I("s_lshr_b32", s(st0), s(swave), 2)
    k.I("s_mul_i32", s(st0), s(st0), 224 * 128)
    k.I("v_add_u32", v(vB), s(st0), v(vB))
    for i in range(4): k.I("v_mov_b32", v(ones + i), "0x3f803f80")
    k.I("s_waitcnt", "vmcnt(0) lgkmcnt(0)")
    k.I("s_barrier")
    bf = [k.valloc(4) for _ in range(7)]
    for kk in range(7):
        for beta in range(2):
            k.I("ds_read_b64_tr_b16", vr(bf[kk] + 2 * beta, 2), v(vB), mods=f"offset:{(32 * kk + 4 * beta) * 128}")
    ca = k.valloc(4)
    k.I("s_waitcnt", "lgkmcnt(0)")
    for kk in range(7):
        k.I("v_mfma_f32_16x16x32_bf16", vr(ca, 4), vr(ones, 4), vr(bf[kk], 4), 0 if kk == 0 else vr(ca, 4))
    k.I("v_and_b32", v(t0), 15, v(lane))
    k.I("s_lshl_b32", s(st0), s(sw3), 6)
    k.I("s_add_u32", s(st0), s(st0), TB)
    k.I("v_lshlrev_b32", v(t0), 2, v(t0))
    k.I("v_add_u32", v(t0), s(st0), v(t0))
    k.I("s_mov_b32", "exec_lo", "0xffff")
    k.I("s_mov_b32", "exec_hi", 0)
    k.I("ds_add_f32", v(t0), v(ca))
    k.I("s_mov_b64", "exec", -1)
    k.I("s_waitcnt", "lgkmcnt(0)")
    k.I("s_barrier")
    k.I("s_cmp_lg_u32", s(swave), 0)
    k.I("s_cbranch_scc1", R["done"])
    k.I("v_lshlrev_b32", v(t0), 2, v(lane))
    k.I("v_add_u32", v(t1), TB, v(t0))
    k.I("ds_read_b32", v(z), v(t1))
    k.I("s_lshl_b32", s(st0), s(sa), 8)
    k.I("s_add_u32", s(st0), s(st0), hex(CW_OFF))
    k.I("s_waitcnt", "lgkmcnt(0)")
    k.I("buffer_store_dword", v(z), v(t0), sr(sWS, 4), s(st0), mods="offen")
    k.L(R["done"])
    k.I("s_endpgm")
    k.lds = lds; k.threads = 512; k.grid = 256
    return k


GELU_C0 = -2.0 * math.sqrt(2.0 / math.pi) * math.log2(math.e)
GELU_C1 = GELU_C0 * 0.044715

def gen_k4(Stamper):
    k = Kernel("k4_win_kernel")
    NS = 4; SLOT = 32768; TRB = NS * SLOT
    STB = TRB
    lds = TRB + 4096
    R = common_start(k, 224)
    swave, st0, st1, soff, lane, t0, t1, t2 = (R[x] for x in ("swave", "st0", "st1", "soff", "lane", "t0", "t1", "t2"))
    pWin = k.salloc(2); pWS = k.salloc(2)
    k.I("s_load_dwordx2", sr(pWin, 2), "s[0:1]", 32)
    k.I("s_load_dwordx2", sr(pWS, 2), "s[0:1]", 80)
    sWS = k.salloc(4); sWin = k.salloc(4)
    sj = k.salloc(); sidx = k.salloc(); srb = k.salloc(); sct = k.salloc(); sw3 = k.salloc()
    k.I("s_and_b32", s(sj), "s2", 7)
    k.I("s_lshr_b32", s(sidx), "s2", 3)
    k.I("s_and_b32", s(sw3), s(swave), 3)
    k.I("s_cmp_ge_u32", s(sidx), 14)
    k.I("s_cselect_b32", s(st0), 1, 0)
    k.I("s_mul_i32", s(st1), s(st0), 14)
    k.I("s_sub_u32", s(sct), s(sidx), s(st1))
    k.I("s_lshl_b32", s(srb), s(sj), 1)
    k.I("s_add_u32", s(srb), s(srb), s(st0))
    stp = Stamper(k, 3, sWS, swave)
    k.I("s_waitcnt", "lgkmcnt(0)")
    srd(k, sWS, pWS, WS_SIZE)
    comp = k.newlabel("compute")
    k.I("s_cmp_lt_u32", s(swave), 4)
    k.I("s_cbranch_scc1", comp)
    vsave = k.vnext
    srd(k, sWin, pWin, 448 * 3584)
    v16 = k.valloc(); vWo = k.valloc()
    k.I("v_lshlrev_b32", v(v16), 4, v(lane))
    k.I("v_lshrrev_b32", v(t0), 4, v(lane))
    k.I("v_lshlrev_b32", v(t1), 2, v(t0))
    k.I("v_and_b32", v(t2), 15, v(lane))
    k.I("v_xor_b32", v(t1), v(t1), v(t2))
    k.I("v_mul_u32_u24", v(vWo), 3584, v(t0))
    k.I("v_and_b32", v(t2), 7, v(t1))
    k.I("v_lshl_add_u32", v(vWo), v(t2), 4, v(vWo))
    k.I("v_add_u32", v(t2), 1792, v(vWo))
    k.I("v_cmp_gt_u32", "vcc", 8, v(t1))
    k.I("v_cndmask_b32", v(vWo), v(vWo), v(t2), "vcc")
    sHb = k.salloc(); sWb = k.salloc(); smH = k.salloc(); smW = k.salloc()
    k.I("s_lshl_b32", s(st0), s(srb), 2)
    k.I("s_add_u32", s(st0), s(st0), s(sw3))
    k.I("s_mul_i32", s(sHb), s(st0), 28 * 1024)
    k.I("s_add_u32", s(sHb), s(sHb), hex(H_OFF))
    k.I("s_lshl_b32", s(smH), s(sw3), 12)
    k.I("s_mul_i32", s(sWb), s(sw3), 16 * 3584)
    k.I("s_lshl_b32", s(st1), s(sct), 7)
    k.I("s_add_u32", s(sWb), s(sWb), s(st1))
    k.I("s_add_u32", s(smW), s(smH), 16384)
    def issue(c):
        sl = (c % NS) * SLOT
        for i in range(4):
            k.I("s_add_u32", s(soff), s(sHb), hex((4 * c + i) * 1024))
            k.I("s_add_u32", "m0", s(smH), hex(sl + i * 1024))
            k.vm(("S", c), "buffer_load_dwordx4", v(v16), sr(sWS, 4), s(soff), mods="offen lds")
        for i in range(4):
            k.I("s_add_u32", s(soff), s(sWb), hex((64 * c + 4 * i) * 3584))
            k.I("s_add_u32", "m0", s(smW), hex(sl + i * 1024))
            k.vm(("S", c), "buffer_load_dwordx4", v(vWo), sr(sWin, 4), s(soff), mods="offen lds")
    issue(0); issue(1)
    for c in range(7):
        k.wait_vm(("S", c))
        k.I("s_barrier")
        if c == 0: issue(2); issue(3)
        elif c + 2 < 7 and c >= 2: issue(c + 2)
    if os.environ.get("PFT", "0") == "1":
        pp = k.salloc(2); sP = k.salloc(4); vT = k.valloc(); vd = k.valloc(2)
        k.I("s_load_dwordx2", sr(pp, 2), "s[0:1]", 40)
        k.I("s_lshl_b32", s(st0), s(sidx), 8)
        k.I("v_subrev_u32", v(vT), 256, "v0")
        k.I("v_add_u32", v(vT), s(st0), v(vT))
        k.I("s_waitcnt", "lgkmcnt(0)")
        srd(k, sP, pp, 2048 * 4096)
        k.I("s_lshr_b32", s(st0), s(sj), 1)
        k.I("s_lshl_b32", s(st0), s(st0), 21)
        k.I("s_and_b32", s(st1), s(sj), 1)
        k.I("s_lshl_b32", s(st1), s(st1), 11)
        k.I("s_add_u32", s(st0), s(st0), s(st1))
        for i in range(2):
            k.I("v_add_u32", v(t0), 7168 * i, v(vT))
            k.I("v_lshrrev_b32", v(t1), 4, v(t0))
            k.I("v_lshlrev_b32", v(t1), 12, v(t1))
            k.I("v_and_b32", v(t2), 15, v(t0))
            k.I("v_lshl_add_u32", v(t1), v(t2), 7, v(t1))
            if i == 1:
                k.I("v_mov_b32", v(t2), "0x7fffff00")
                k.I("v_cmp_gt_u32", "vcc", 8192, v(t0))
                k.I("v_cndmask_b32", v(t1), v(t2), v(t1), "vcc")
            k.I("buffer_load_dword", v(vd + i), v(t1), sr(sP, 4), s(st0), mods="offen")
    k.I("s_barrier")
    k.I("s_endpgm")
    k.L(comp)
    k.vnext = vsave; k.vmq = []; k.lgq = []
    l31 = k.valloc(); hh = k.valloc()
    k.I("v_and_b32", v(l31), 31, v(lane))
    k.I("v_lshrrev_b32", v(hh), 5, v(lane))
    srh = k.salloc(); sch = k.salloc(); sst = k.salloc()
    k.I("s_and_b32", s(srh), s(swave), 1)
    k.I("s_lshr_b32", s(sch), s(swave), 1)
    k.I("s_lshl_b32", s(sst), s(srb), 2)
    k.I("s_lshl_b32", s(st0), s(srh), 1)
    k.I("s_add_u32", s(sst), s(sst), s(st0))
    hs = [k.valloc(16, 4) for _ in range(2)]
    vh = k.valloc()
    k.I("v_mul_u32_u24", v(vh), 112, v(l31))
    k.I("v_lshl_add_u32", v(vh), v(hh), 6, v(vh))
    for t in range(2):
        k.I("s_add_u32", s(st0), s(sst), t)
        k.I("s_mul_i32", s(soff), s(st0), 32 * 112)
        k.I("s_add_u32", s(soff), s(soff), hex(HS_OFF))
        for i in range(4):
            k.vm("hs", "buffer_load_dwordx4", vr(hs[t] + 4 * i, 4), v(vh), sr(sWS, 4), s(soff), mods=f"offen offset:{16 * i}")
    cw = [k.valloc(16, 4) for _ in range(2)]
    vc = k.valloc()
    k.I("v_lshlrev_b32", v(vc), 4, v(hh))
    k.I("s_lshl_b32", s(st0), s(sct), 8)
    k.I("s_lshl_b32", s(st1), s(sch), 7)
    k.I("s_add_u32", s(st0), s(st0), s(st1))
    for z in range(2):
        k.I("s_add_u32", s(soff), s(st0), hex(CW_OFF + (896 * 4 if z == 0 else 0)))
        for q in range(4):
            k.vm("cw", "buffer_load_dwordx4", vr(cw[z] + 4 * q, 4), v(vc), sr(sWS, 4), s(soff), mods=f"offen offset:{32 * q}")
    if os.environ.get("PF2", "0") == "1":
        pp = k.salloc(2); sP = k.salloc(4); vT = k.valloc(); vd = k.valloc(2)
        k.I("s_load_dwordx2", sr(pp, 2), "s[0:1]", 40)
        k.I("s_lshl_b32", s(st0), s(sidx), 8)
        k.I("v_add_u32", v(vT), s(st0), "v0")
        k.I("s_waitcnt", "lgkmcnt(0)")
        srd(k, sP, pp, 2048 * 4096)
        k.I("s_lshr_b32", s(st0), s(sj), 1)
        k.I("s_lshl_b32", s(st0), s(st0), 21)
        k.I("s_and_b32", s(st1), s(sj), 1)
        k.I("s_lshl_b32", s(st1), s(st1), 11)
        k.I("s_add_u32", s(st0), s(st0), s(st1))
        for i in range(2):
            k.I("v_add_u32", v(t0), 7168 * i, v(vT))
            k.I("v_lshrrev_b32", v(t1), 4, v(t0))
            k.I("v_lshlrev_b32", v(t1), 12, v(t1))
            k.I("v_and_b32", v(t2), 15, v(t0))
            k.I("v_lshl_add_u32", v(t1), v(t2), 7, v(t1))
            if i == 1:
                k.I("v_mov_b32", v(t2), "0x7fffff00")
                k.I("v_cmp_gt_u32", "vcc", 8192, v(t0))
                k.I("v_cndmask_b32", v(t1), v(t2), v(t1), "vcc")
            k.vm("pf", "buffer_load_dword", v(vd + i), v(t1), sr(sP, 4), s(st0), mods="offen")
    code_prefetch(k, "k5_sp_kernel", sidx, st0)
    stp.stamp(0)
    aH = k.valloc(); vW = [k.valloc(), k.valloc()]
    k.I("v_lshlrev_b32", v(aH), 4, v(lane))
    k.I("s_lshl_b32", s(st0), s(srh), 13)
    k.I("v_add_u32", v(aH), s(st0), v(aH))
    k.I("v_bfe_u32", v(t0), v(lane), 2, 2)
    k.I("v_lshl_add_u32", v(t1), v(hh), 2, v(t0))
    k.I("v_lshlrev_b32", v(t1), 8, v(t1))
    k.I("v_add_u32", v(t1), 16384, v(t1))
    k.I("v_bfe_u32", v(t2), v(lane), 4, 1)
    k.I("v_lshlrev_b32", v(t2), 1, v(t2))
    k.I("v_bfe_u32", v(vW[0]), v(lane), 1, 1)
    k.I("v_add_u32", v(t2), v(t2), v(vW[0]))
    k.I("s_lshl_b32", s(st0), s(sch), 2)
    k.I("v_add_u32", v(t2), s(st0), v(t2))
    k.I("v_lshlrev_b32", v(t0), 2, v(t0))
    k.I("v_xor_b32", v(vW[0]), v(t2), v(t0))
    k.I("v_add_u32", v(t2), 8, v(t2))
    k.I("v_xor_b32", v(vW[1]), v(t2), v(t0))
    k.I("v_and_b32", v(t2), 1, v(lane))
    for z in range(2):
        k.I("v_lshl_add_u32", v(vW[z]), v(vW[z]), 4, v(t1))
        k.I("v_lshl_add_u32", v(vW[z]), v(t2), 3, v(vW[z]))
    aH2 = k.valloc(); vW2 = [k.valloc(), k.valloc()]
    k.I("v_add_u32", v(aH2), 65536, v(aH))
    for z in range(2): k.I("v_add_u32", v(vW2[z]), 65536, v(vW[z]))
    acc = [[k.valloc(16, 4) for _ in range(2)] for _ in range(2)]
    vmark = k.vnext
    NB = 3
    hf = [[k.valloc(4) for _ in range(2)] for _ in range(NB)]
    wf = [[k.valloc(4) for _ in range(2)] for _ in range(NB)]
    def rl(ks):
        c, j = ks // 4, ks % 4
        b = ks % NB
        sl = (c % NS) * SLOT
        hi = sl >= 65536
        so = sl - (65536 if hi else 0)
        out = []
        for t in range(2):
            out.append(lambda t=t: k.lg(("f", ks), "ds_read_b128", vr(hf[b][t], 4), v(aH2 if hi else aH), mods=f"offset:{so + t * 4096 + j * 1024}"))
        for z in range(2):
            for beta in range(2):
                o = so + (16 * j + 8 * beta) * 256
                out.append(lambda o=o, z=z, beta=beta: k.lg(("f", ks), "ds_read_b64_tr_b16", vr(wf[b][z] + 2 * beta, 2), v((vW2 if hi else vW)[z]), mods=f"offset:{o}"))
        return out
    k.I("s_barrier")
    stp.stamp(1)
    for f in rl(0) + rl(1): f()
    for ks in range(28):
        c, j = ks // 4, ks % 4
        b = ks % NB
        k.wait_lg(("f", ks))
        mf = []
        for z in range(2):
            for t in range(2):
                mf.append(lambda z=z, t=t: k.I("v_mfma_f32_32x32x16_bf16", vr(acc[z][t], 16), vr(wf[b][z], 4), vr(hf[b][t], 4), 0 if ks == 0 else vr(acc[z][t], 16)))
        if j == 2 and c < 6:
            pass
        fl = rl(ks + 2) if ks + 2 < 28 else []
        if j == 2 and ks + 2 < 28:
            k.I("s_barrier")
        interleave(k, mf, fl)
    stp.stamp(2)
    k.vnext = vmark
    k.wait_vm(["hs", "cw"])
    rr = [k.valloc(2) for _ in range(2)]; nm = [k.valloc(2) for _ in range(2)]
    c0r = [k.valloc(2) for _ in range(2)]; c1r = [k.valloc(2) for _ in range(2)]
    k.I("v_cmp_eq_u32", "vcc", 0, v(hh))
    for t in range(2):
        H = hs[t]
        for i in range(12, 16): k.I("v_cndmask_b32", v(H + i), 0, v(H + i), "vcc")
        for i in range(4): k.I("v_pk_add_f32", vr(H + 2 * i, 2), vr(H + 2 * i, 2), vr(H + 8 + 2 * i, 2))
        for i in range(2): k.I("v_pk_add_f32", vr(H + 2 * i, 2), vr(H + 2 * i, 2), vr(H + 4 + 2 * i, 2))
        k.I("v_pk_add_f32", vr(H, 2), vr(H, 2), vr(H + 2, 2))
        for e in range(2):
            k.I("v_mov_b32", v(H + 2), v(H + e))
            k.I("v_permlane32_swap_b32", v(H + e), v(H + 2))
            k.I("v_add_f32", v(H + e), v(H + e), v(H + 2))
        k.I("v_mul_f32", v(nm[t]), hex(f32(-1.0 / 448)), v(H))
        k.I("v_mul_f32", v(H + 1), hex(f32(1.0 / 448)), v(H + 1))
        k.I("v_fma_f32", v(H + 1), f"-{v(nm[t])}", v(nm[t]), v(H + 1))
        k.I("v_max_f32", v(H + 1), 0, v(H + 1))
        k.I("v_add_f32", v(H + 1), hex(f32(1e-5)), v(H + 1))
        k.I("v_rsq_f32", v(rr[t]), v(H + 1))
        k.I("v_mul_f32", v(c0r[t]), hex(f32(GELU_C0)), v(rr[t]))
        k.I("v_mul_f32", v(c1r[t]), v(rr[t]), v(rr[t]))
        k.I("v_mul_f32", v(c1r[t]), v(c1r[t]), v(rr[t]))
        k.I("v_mul_f32", v(c1r[t]), hex(f32(GELU_C1)), v(c1r[t]))
    norh = k.newlabel("norh")
    k.I("s_or_b32", s(st0), s(sct), s(sch))
    k.I("s_cmp_lg_u32", s(st0), 0)
    k.I("s_cbranch_scc1", norh)
    k.I("v_lshlrev_b32", v(t0), 2, v(l31))
    for t in range(2):
        k.I("s_add_u32", s(st0), s(sst), t)
        k.I("s_lshl_b32", s(st0), s(st0), 7)
        k.I("s_add_u32", s(st0), s(st0), hex(RH_OFF))
        k.I("buffer_store_dword", v(rr[t]), v(t0), sr(sWS, 4), s(st0), mods="offen")
    k.L(norh)
    tp = [k.valloc(2) for _ in range(4)]
    def gelu_tile(A, z, t):
        for j in range(8):
            k.I("v_pk_fma_f32", vr(A + 2 * j, 2), vr(cw[z] + 2 * j, 2), vr(nm[t], 2), vr(A + 2 * j, 2), mods="op_sel_hi:[1,0,1]")
        for j0 in range(0, 8, 4):
            for j in range(j0, j0 + 4):
                T = tp[j - j0]
                k.I("v_pk_mul_f32", vr(T, 2), vr(A + 2 * j, 2), vr(A + 2 * j, 2))
            for j in range(j0, j0 + 4):
                T = tp[j - j0]
                k.I("v_pk_fma_f32", vr(T, 2), vr(T, 2), vr(c1r[t], 2), vr(c0r[t], 2), mods="op_sel_hi:[1,0,0]")
            for j in range(j0, j0 + 4):
                T = tp[j - j0]
                k.I("v_pk_mul_f32", vr(T, 2), vr(T, 2), vr(A + 2 * j, 2))
            for j in range(j0, j0 + 4):
                T = tp[j - j0]
                k.I("v_exp_f32", v(T), v(T)); k.I("v_exp_f32", v(T + 1), v(T + 1))
            for j in range(j0, j0 + 4):
                T = tp[j - j0]
                k.I("v_pk_add_f32", vr(T, 2), vr(T, 2), "1.0", mods="op_sel_hi:[1,0]")
            for j in range(j0, j0 + 4):
                T = tp[j - j0]
                k.I("v_rcp_f32", v(T), v(T)); k.I("v_rcp_f32", v(T + 1), v(T + 1))
            for j in range(j0, j0 + 4):
                T = tp[j - j0]
                k.I("v_pk_mul_f32", vr(A + 2 * j, 2), vr(A + 2 * j, 2), vr(T, 2))
    accs = [k.valloc(2) for _ in range(2)]; accq = [k.valloc(2) for _ in range(2)]
    for t in range(2):
        A = acc[0][t]
        gelu_tile(A, 0, t)
        for j in range(8):
            k.I("v_pk_mul_f32", vr(A + 2 * j, 2), vr(A + 2 * j, 2), vr(rr[t], 2), mods="op_sel_hi:[1,0]")
        k.I("v_pk_add_f32", vr(accs[t], 2), vr(A, 2), vr(A + 2, 2))
        k.I("v_pk_mul_f32", vr(accq[t], 2), vr(A, 2), vr(A, 2))
        k.I("v_pk_fma_f32", vr(accq[t], 2), vr(A + 2, 2), vr(A + 2, 2), vr(accq[t], 2))
        for j in range(2, 8):
            k.I("v_pk_add_f32", vr(accs[t], 2), vr(accs[t], 2), vr(A + 2 * j, 2))
            k.I("v_pk_fma_f32", vr(accq[t], 2), vr(A + 2 * j, 2), vr(A + 2 * j, 2), vr(accq[t], 2))
        k.I("v_add_f32", v(accs[t]), v(accs[t]), v(accs[t] + 1))
        k.I("v_add_f32", v(accs[t] + 1), v(accq[t]), v(accq[t] + 1))
        for e in range(2):
            k.I("v_mov_b32", v(accq[t]), v(accs[t] + e))
            k.I("v_permlane32_swap_b32", v(accs[t] + e), v(accq[t]))
            k.I("v_add_f32", v(accs[t] + e), v(accs[t] + e), v(accq[t]))
    vs = k.valloc()
    k.I("v_lshlrev_b32", v(vs), 3, v(l31))
    k.I("s_lshl_b32", s(st0), s(srh), 9)
    k.I("s_add_u32", s(st0), s(st0), STB)
    k.I("v_add_u32", v(vs), s(st0), v(vs))
    k.I("s_lshl_b32", s(st0), s(sch), 10)
    k.I("v_add_u32", v(t0), s(st0), v(vs))
    for t in range(2):
        k.I("ds_write_b64", v(t0), vr(accs[t], 2), mods=f"offset:{t * 256}")
    k.I("s_waitcnt", "lgkmcnt(0)")
    k.I("s_barrier")
    pub = k.newlabel("nopub")
    k.I("s_cmp_lg_u32", s(sch), 0)
    k.I("s_cbranch_scc1", pub)
    oth = k.valloc(4)
    for t in range(2):
        k.I("ds_read_b64", vr(oth + 2 * t, 2), v(vs), mods=f"offset:{1024 + t * 256}")
    k.I("s_waitcnt", "lgkmcnt(0)")
    for t in range(2):
        k.I("v_pk_add_f32", vr(oth + 2 * t, 2), vr(oth + 2 * t, 2), vr(accs[t], 2))
        k.I("v_mov_b32", v(t1), "0x7fc00000")
        k.I("v_cmp_eq_u32", "vcc", -1, v(oth + 2 * t + 1))
        k.I("v_cndmask_b32", v(oth + 2 * t + 1), v(oth + 2 * t + 1), v(t1), "vcc")
    ve = k.valloc()
    k.I("v_mul_u32_u24", v(ve), 112, v(l31))
    k.I("s_mul_i32", s(soff), s(sst), 32 * 112)
    k.I("s_lshl_b32", s(st0), s(sct), 3)
    k.I("s_add_u32", s(soff), s(soff), s(st0))
    k.I("s_add_u32", s(soff), s(soff), hex(EX_OFF))
    k.I("s_mov_b32", "exec_hi", 0)
    for t in range(2):
        k.I("buffer_store_dwordx2", vr(oth + 2 * t, 2), v(ve), sr(sWS, 4), s(soff), mods=f"offen offset:{t * 32 * 112} sc0 sc1")
    k.I("s_mov_b64", "exec", -1)
    k.L(pub)
    stp.stamp(3)
    v16 = k.valloc()
    k.I("v_lshlrev_b32", v(v16), 4, v(lane))
    P = [k.valloc(8, 4) for _ in range(2)]
    sft = k.salloc()
    k.I("s_lshl_b32", s(sft), s(sct), 1)
    k.I("s_add_u32", s(sft), s(sft), s(sch))
    for t in range(2):
        A = acc[1][t]
        gelu_tile(A, 1, t)
        for j in range(8): k.I("v_cvt_pk_bf16_f32", v(P[t] + j), v(A + 2 * j), v(A + 2 * j + 1))
        k.I("s_add_u32", s(st0), s(sst), t)
        k.I("s_mul_i32", s(soff), s(st0), 56 * 1024)
        k.I("s_lshl_b32", s(st0), s(sft), 11)
        k.I("s_add_u32", s(soff), s(soff), s(st0))
        k.I("s_add_u32", s(soff), s(soff), hex(Z1_OFF))
        k.I("buffer_store_dwordx4", vr(P[t], 4), v(v16), sr(sWS, 4), s(soff), mods="offen")
        k.I("buffer_store_dwordx4", vr(P[t] + 4, 4), v(v16), sr(sWS, 4), s(soff), mods="offen offset:1024")
    stp.stamp(4)
    ex = hs
    k.I("v_mul_u32_u24", v(vh), 112, v(l31))
    k.I("v_lshl_add_u32", v(vh), v(hh), 6, v(vh))
    k.I("s_mul_i32", s(soff), s(sst), 32 * 112)
    k.I("s_add_u32", s(soff), s(soff), hex(EX_OFF))
    scount = k.salloc(); sbad = k.salloc(2)
    k.I("s_mov_b32", s(scount), 0)
    poll = k.newlabel("poll"); pdone = k.newlabel("pdone")
    k.L(poll)
    for t in range(2):
        for i in range(4):
            k.I("buffer_load_dwordx4", vr(ex[t] + 4 * i, 4), v(vh), sr(sWS, 4), s(soff), mods=f"offen offset:{t * 32 * 112 + 16 * i} sc0 sc1")
    k.I("s_waitcnt", "vmcnt(0)")
    k.I("v_cmp_eq_u32", "vcc", 0, v(hh))
    for t in range(2):
        for i in range(12, 16): k.I("v_cndmask_b32", v(ex[t] + i), 0, v(ex[t] + i), "vcc")
    k.I("v_max_u32", v(t0), v(ex[0] + 1), v(ex[0] + 3))
    for t in range(2):
        for i in range(8):
            if t == 0 and i < 2: continue
            k.I("v_max_u32", v(t0), v(t0), v(ex[t] + 2 * i + 1))
    k.I("v_cmp_eq_u32", "vcc", -1, v(t0))
    k.I("s_add_u32", s(scount), s(scount), 1)
    k.I("s_cmp_eq_u64", "vcc", 0)
    k.I("s_cbranch_scc1", pdone)
    k.I("s_cmp_lt_u32", s(scount), 0x40000)
    k.I("s_cbranch_scc0", pdone)
    k.I("s_sleep", 1)
    k.I("s_branch", poll)
    k.L(pdone)
    sc_ = [k.valloc(2) for _ in range(2)]; zm = [k.valloc(2) for _ in range(2)]
    for t in range(2):
        H = ex[t]
        for i in range(4): k.I("v_pk_add_f32", vr(H + 2 * i, 2), vr(H + 2 * i, 2), vr(H + 8 + 2 * i, 2))
        for i in range(2): k.I("v_pk_add_f32", vr(H + 2 * i, 2), vr(H + 2 * i, 2), vr(H + 4 + 2 * i, 2))
        k.I("v_pk_add_f32", vr(H, 2), vr(H, 2), vr(H + 2, 2))
        for e in range(2):
            k.I("v_mov_b32", v(H + 2), v(H + e))
            k.I("v_permlane32_swap_b32", v(H + e), v(H + 2))
            k.I("v_add_f32", v(H + e), v(H + e), v(H + 2))
        k.I("v_mul_f32", v(zm[t]), hex(f32(-1.0 / 896)), v(H))
        k.I("v_mul_f32", v(H + 1), hex(f32(1.0 / 896)), v(H + 1))
        k.I("v_fma_f32", v(H + 1), f"-{v(zm[t])}", v(zm[t]), v(H + 1))
        k.I("v_max_f32", v(H + 1), 0, v(H + 1))
        k.I("v_add_f32", v(H + 1), hex(f32(1e-5)), v(H + 1))
        k.I("v_rsq_f32", v(sc_[t]), v(H + 1))
        k.I("v_mul_f32", v(zm[t]), v(zm[t]), v(sc_[t]))
    TW = 0
    vt = k.valloc(); vtr = k.valloc()
    k.I("v_lshlrev_b32", v(vt), 6, v(l31))
    k.I("v_lshl_add_u32", v(vt), v(hh), 3, v(vt))
    k.I("s_lshl_b32", s(st0), s(swave), 12)
    k.I("v_add_u32", v(vt), s(st0), v(vt))
    for t in range(2):
        A = acc[0][t]
        for j in range(8):
            k.I("v_pk_fma_f32", vr(A + 2 * j, 2), vr(A + 2 * j, 2), vr(sc_[t], 2), vr(zm[t], 2), mods="op_sel_hi:[1,0,0]")
        for j in range(8): k.I("v_cvt_pk_bf16_f32", v(P[t] + j), v(A + 2 * j), v(A + 2 * j + 1))
        for q in range(4):
            k.I("ds_write_b64", v(vt), vr(P[t] + 2 * q, 2), mods=f"offset:{t * 2048 + 16 * q}")
    k.I("v_bfe_u32", v(t0), v(lane), 2, 2)
    k.I("v_lshl_add_u32", v(t0), v(hh), 3, v(t0))
    k.I("v_lshlrev_b32", v(vtr), 6, v(t0))
    k.I("v_bfe_u32", v(t0), v(lane), 4, 1)
    k.I("v_lshl_add_u32", v(vtr), v(t0), 5, v(vtr))
    k.I("v_and_b32", v(t0), 3, v(lane))
    k.I("v_lshl_add_u32", v(vtr), v(t0), 3, v(vtr))
    k.I("s_lshl_b32", s(st0), s(swave), 12)
    k.I("v_add_u32", v(vtr), s(st0), v(vtr))
    k.I("s_waitcnt", "lgkmcnt(0)")
    Z = cw[0]
    for ks in range(4):
        for beta in range(2):
            k.I("ds_read_b64_tr_b16", vr(Z + 4 * ks + 2 * beta, 2), v(vtr), mods=f"offset:{(16 * ks + 4 * beta) * 64}")
    k.I("s_mul_i32", s(soff), s(sft), ZS)
    k.I("s_lshr_b32", s(st0), s(sst), 5)
    k.I("s_mul_i32", s(st0), s(st0), ZK)
    k.I("s_add_u32", s(soff), s(soff), s(st0))
    k.I("s_and_b32", s(st0), s(sst), 31)
    k.I("s_lshl_b32", s(st0), s(st0), 11)
    k.I("s_add_u32", s(soff), s(soff), s(st0))
    k.I("s_add_u32", s(soff), s(soff), hex(Z2_OFF))
    for ks in range(4):
        k.I("s_waitcnt", f"lgkmcnt({6 - 2 * ks})")
        k.I("buffer_store_dwordx4", vr(Z + 4 * ks, 4), v(v16), sr(sWS, 4), s(soff), mods=f"offen offset:{ks * 1024}")
    stp.stamp(5)
    k.L(R["done"])
    k.I("s_endpgm")
    k.lds = lds; k.threads = 512; k.grid = 224
    return k


def gen_k5(Stamper):
    k = Kernel("k5_sp_kernel")
    NS = 4; SLOT = 32768
    Z1REG = NS * SLOT
    lds = Z1REG + 32768
    R = common_start(k, 224)
    swave, st0, st1, soff, lane, t0, t1, t2 = (R[x] for x in ("swave", "st0", "st1", "soff", "lane", "t0", "t1", "t2"))
    pSp = k.salloc(2); pB = k.salloc(2); pWS = k.salloc(2)
    k.I("s_load_dwordx2", sr(pSp, 2), "s[0:1]", 40)
    k.I("s_load_dwordx2", sr(pB, 2), "s[0:1]", 48)
    k.I("s_load_dwordx2", sr(pWS, 2), "s[0:1]", 80)
    sWS = k.salloc(4); sSp = k.salloc(4); sB = k.salloc(4)
    sj = k.salloc(); sidx = k.salloc(); stt = k.salloc(); sft = k.salloc(); skap = k.salloc(); sw3 = k.salloc()
    if os.environ.get("K5MAP") == "linear":
        k.I("s_mul_i32", s(sj), "s2", 2341)
        k.I("s_lshr_b32", s(sj), s(sj), 16)
        k.I("s_mul_i32", s(sidx), s(sj), 28)
        k.I("s_sub_u32", s(sidx), "s2", s(sidx))
    else:
        k.I("s_and_b32", s(sj), "s2", 7)
        k.I("s_lshr_b32", s(sidx), "s2", 3)
    k.I("s_and_b32", s(sw3), s(swave), 3)
    k.I("s_and_b32", s(skap), s(sj), 1)
    k.I("s_mul_i32", s(st0), s(sidx), 37)
    k.I("s_lshr_b32", s(st0), s(st0), 8)
    k.I("s_mul_i32", s(st1), s(st0), 7)
    k.I("s_sub_u32", s(sft), s(sidx), s(st1))
    k.I("s_lshr_b32", s(stt), s(sj), 1)
    k.I("s_lshl_b32", s(stt), s(stt), 2)
    k.I("s_add_u32", s(stt), s(stt), s(st0))
    stp = Stamper(k, 4, sWS, swave)
    if os.environ.get("TICKWAVE", "0") != "0": stp.tick(0)
    k.I("s_waitcnt", "lgkmcnt(0)")
    srd(k, sWS, pWS, WS_SIZE)
    comp = k.newlabel("compute")
    k.I("s_cmp_lt_u32", s(swave), 4)
    k.I("s_cbranch_scc1", comp)
    vsave = k.vnext
    srd(k, sSp, pSp, 2048 * 4096)
    v16 = k.valloc(); vWo = k.valloc(2)
    k.I("v_lshlrev_b32", v(v16), 4, v(lane))
    k.I("v_lshrrev_b32", v(t0), 3, v(lane))
    k.I("v_lshlrev_b32", v(t0), 12, v(t0))
    k.I("v_lshrrev_b32", v(t1), 4, v(lane))
    k.I("v_and_b32", v(t2), 7, v(lane))
    k.I("v_xor_b32", v(t1), v(t1), v(t2))
    k.I("v_lshl_add_u32", v(vWo), v(t1), 4, v(t0))
    k.I("v_xor_b32", v(t1), 4, v(t1))
    k.I("v_lshl_add_u32", v(vWo + 1), v(t1), 4, v(t0))
    sZb = k.salloc(); sWb = k.salloc(); smZ = k.salloc(); smW = k.salloc()
    k.I("s_lshl_b32", s(st0), s(sft), 2)
    k.I("s_add_u32", s(st0), s(st0), s(sw3))
    k.I("s_mul_i32", s(sZb), s(st0), ZS)
    k.I("s_mul_i32", s(st1), s(skap), ZK)
    k.I("s_add_u32", s(sZb), s(sZb), s(st1))
    k.I("s_add_u32", s(sZb), s(sZb), hex(Z2_OFF))
    k.I("s_lshl_b32", s(smZ), s(sw3), 12)
    k.I("s_lshl_b32", s(st0), s(stt), 7)
    k.I("s_lshl_b32", s(st1), s(sw3), 5)
    k.I("s_add_u32", s(st0), s(st0), s(st1))
    k.I("s_lshl_b32", s(sWb), s(st0), 12)
    k.I("s_lshl_b32", s(st1), s(skap), 11)
    k.I("s_add_u32", s(sWb), s(sWb), s(st1))
    k.I("s_add_u32", s(smW), s(smZ), 16384)
    def issue(c):
        sl = (c % NS) * SLOT
        def zpart():
            for i in range(4):
                k.I("s_add_u32", s(soff), s(sZb), hex((4 * c + i) * 1024))
                k.I("s_add_u32", "m0", s(smZ), hex(sl + i * 1024))
                k.vm(("S", c), "buffer_load_dwordx4", v(v16), sr(sWS, 4), s(soff), mods="offen lds")
                if os.environ.get("DIAG5") and c == 0 and i in (0, 3):
                    k.I("s_waitcnt", "vmcnt(0)"); stp.tick(10 + (i > 0))
        def wpart():
            for i in range(4):
                k.I("s_add_u32", s(soff), s(sWb), hex(i * 8 * 4096 + c * 128))
                k.I("s_add_u32", "m0", s(smW), hex(sl + i * 1024))
                k.vm(("S", c), "buffer_load_dwordx4", v(vWo + (i & 1)), sr(sSp, 4), s(soff), mods="offen lds")
                if os.environ.get("DIAG5") and c == 0 and i in (0, 3):
                    k.I("s_waitcnt", "vmcnt(0)"); stp.tick(12 + (i > 0))
        if os.environ.get("DIAG5") == "2": wpart(); zpart()
        else: zpart(); wpart()
    NST = 16
    sZ1 = k.salloc()
    k.I("s_lshl_b32", s(st0), s(stt), 2)
    k.I("s_add_u32", s(st0), s(st0), s(sw3))
    k.I("s_mul_i32", s(sZ1), s(st0), 56 * 1024)
    k.I("s_lshl_b32", s(st1), s(sft), 13)
    k.I("s_add_u32", s(sZ1), s(sZ1), s(st1))
    k.I("s_add_u32", s(sZ1), s(sZ1), hex(Z1_OFF))
    smZ1 = k.salloc()
    k.I("s_lshl_b32", s(smZ1), s(sw3), 13)
    def issue_z1(i, tag):
        k.I("s_add_u32", s(soff), s(sZ1), hex(i * 1024))
        k.I("s_add_u32", "m0", s(smZ1), hex(Z1REG + i * 1024))
        k.vm(("S", tag), "buffer_load_dwordx4", v(v16), sr(sWS, 4), s(soff), mods="offen lds")
    LT = os.environ.get("TICKWAVE", "0") != "0"
    if LT: stp.tick(1)
    issue(0)
    if LT: stp.tick(2)
    issue(1)
    if LT: stp.tick(3)
    for c in range(NST):
        k.wait_vm(("S", c))
        if LT and c < 3: stp.tick(4 + 2 * c)
        k.I("s_barrier")
        if LT and c < 3: stp.tick(5 + 2 * c)
        if c == 0: issue(2); issue(3)
        elif c + 2 < NST and c >= 2:
            issue(c + 2)
            if 3 <= c < 11: issue_z1(c - 3, c + 2)
    vT = k.valloc()
    k.I("s_lshl_b32", s(st0), s(sidx), 8)
    k.I("v_subrev_u32", v(vT), 256, "v0")
    k.I("v_add_u32", v(vT), s(st0), v(vT))
    k.I("v_lshlrev_b32", v(vT), 7, v(vT))
    l2_prefetch(k, 56, 896 * 896, vT, 7168, st0)
    if LT: stp.dump_ticks()
    k.I("s_endpgm")
    k.L(comp)
    k.vnext = vsave; k.vmq = []; k.lgq = []
    srd(k, sB, pB, 4096)
    l31 = k.valloc(); hh = k.valloc()
    k.I("v_and_b32", v(l31), 31, v(lane))
    k.I("v_lshrrev_b32", v(hh), 5, v(lane))
    sfh = k.salloc(); sth = k.salloc(); sst = k.salloc(); sf32 = k.salloc()
    k.I("s_and_b32", s(sfh), s(swave), 1)
    k.I("s_lshr_b32", s(sth), s(swave), 1)
    k.I("s_lshl_b32", s(sst), s(stt), 2)
    k.I("s_lshl_b32", s(st0), s(sth), 1)
    k.I("s_add_u32", s(sst), s(sst), s(st0))
    k.I("s_lshl_b32", s(sf32), s(sft), 2)
    k.I("s_lshl_b32", s(st0), s(sfh), 1)
    k.I("s_add_u32", s(sf32), s(sf32), s(st0))
    if os.environ.get("PF3", "0") == "1":
        vT0 = k.valloc(); vd0 = k.valloc(2)
        k.I("s_lshl_b32", s(st0), s(sidx), 8)
        k.I("v_add_u32", v(vT0), s(st0), "v0")
        k.I("s_lshl_b32", s(st1), s(skap), 16)
        k.I("s_add_u32", s(st1), s(st1), hex(Z2_OFF))
        for i in range(2):
            k.I("v_add_u32", v(t0), 7168 * i, v(vT0))
            k.I("v_lshrrev_b32", v(t1), 9, v(t0))
            k.I("v_lshlrev_b32", v(t1), 17, v(t1))
            k.I("v_and_b32", v(t2), 511, v(t0))
            k.I("v_lshl_add_u32", v(t1), v(t2), 7, v(t1))
            k.vm("pf", "buffer_load_dword", v(vd0 + i), v(t1), sr(sWS, 4), s(st1), mods="offen")
    v16 = k.valloc()
    k.I("v_lshlrev_b32", v(v16), 4, v(lane))
    z1 = [[k.valloc(8, 4) for _ in range(2)] for _ in range(2)]
    rr = [k.valloc(2) for _ in range(2)]; bb = [k.valloc(2) for _ in range(2)]
    k.I("v_lshlrev_b32", v(t0), 2, v(l31))
    k.I("v_lshlrev_b32", v(t1), 1, v(l31))
    for ti in range(2):
        k.I("s_add_u32", s(st0), s(sst), ti)
        k.I("s_lshl_b32", s(soff), s(st0), 7)
        k.I("s_add_u32", s(soff), s(soff), hex(RH_OFF))
        k.vm("z1", "buffer_load_dword", v(rr[ti]), v(t0), sr(sWS, 4), s(soff), mods="offen")
        k.I("s_lshl_b32", s(soff), s(st0), 6)
        k.vm("z1", "buffer_load_ushort", v(bb[ti]), v(t1), sr(sB, 4), s(soff), mods="offen")
    if os.environ.get("PF2", "0") == "1":
        pp = k.salloc(2); sP = k.salloc(4); vT = k.valloc(); vd = k.valloc(2)
        k.I("s_load_dwordx2", sr(pp, 2), "s[0:1]", 56)
        k.I("s_lshl_b32", s(st0), s(sidx), 8)
        k.I("v_add_u32", v(vT), s(st0), "v0")
        k.I("v_lshlrev_b32", v(vT), 7, v(vT))
        k.I("s_waitcnt", "lgkmcnt(0)")
        srd(k, sP, pp, 896 * 896)
        k.vm("pf", "buffer_load_dword", v(vd), v(vT), sr(sP, 4), 0, mods="offen")
    code_prefetch(k, "k6_wout_kernel", sidx, st0)
    stp.stamp(0)
    aZ = k.valloc(); aW = k.valloc(4)
    k.I("s_lshl_b32", s(st0), s(sfh), 13)
    k.I("v_add_u32", v(aZ), s(st0), v(v16))
    k.I("v_bfe_u32", v(t0), v(l31), 1, 3)
    for j in range(4):
        k.I("v_add_u32", v(t1), 2 * j, v(hh))
        k.I("v_xor_b32", v(t1), v(t1), v(t0))
        k.I("v_lshlrev_b32", v(t1), 4, v(t1))
        k.I("v_lshl_add_u32", v(aW + j), v(l31), 7, v(t1))
        k.I("s_lshl_b32", s(st0), s(sth), 13)
        k.I("s_add_u32", s(st0), s(st0), 16384)
        k.I("v_add_u32", v(aW + j), s(st0), v(aW + j))
    aZ2 = k.valloc(); aW2 = k.valloc(4)
    k.I("v_add_u32", v(aZ2), 65536, v(aZ))
    for j in range(4): k.I("v_add_u32", v(aW2 + j), 65536, v(aW + j))
    acc = [[k.valloc(16, 4) for _ in range(2)] for _ in range(2)]
    NB = 3
    zf = [[k.valloc(4) for _ in range(2)] for _ in range(NB)]
    wf = [[k.valloc(4) for _ in range(2)] for _ in range(NB)]
    def rl(ks):
        c, j = ks // 4, ks % 4
        b = ks % NB
        sl = (c % NS) * SLOT
        hi = sl >= 65536
        so = sl - (65536 if hi else 0)
        out = []
        for fi in range(2):
            out.append(lambda fi=fi: k.lg(("f", ks), "ds_read_b128", vr(zf[b][fi], 4), v(aZ2 if hi else aZ), mods=f"offset:{so + fi * 4096 + j * 1024}"))
        for ti in range(2):
            out.append(lambda ti=ti: k.lg(("f", ks), "ds_read_b128", vr(wf[b][ti], 4), v((aW2 if hi else aW) + j), mods=f"offset:{so + ti * 4096}"))
        return out
    k.I("s_barrier")
    stp.stamp(1)
    for f in rl(0) + rl(1): f()
    NKS = NST * 4
    for ks in range(NKS):
        c, j = ks // 4, ks % 4
        b = ks % NB
        k.wait_lg(("f", ks))
        mf = []
        for fi in range(2):
            for ti in range(2):
                mf.append(lambda fi=fi, ti=ti: k.I("v_mfma_f32_32x32x16_bf16", vr(acc[fi][ti], 16), vr(zf[b][fi], 4), vr(wf[b][ti], 4), 0 if ks == 0 else vr(acc[fi][ti], 16)))
        fl = rl(ks + 2) if ks + 2 < NKS else []
        if j == 2 and ks + 2 < NKS:
            if not LT and c in (0, 13, 14): stp.tick({0: 0, 13: 1, 14: 2}[c])
            k.I("s_barrier")
        interleave(k, mf, fl)
    if not LT: stp.tick(3)
    stp.stamp(2)
    if not LT: stp.tick(4)
    if not LT: stp.tick(5)
    vz = k.valloc()
    k.I("s_lshl_b32", s(st0), s(sth), 14)
    k.I("s_lshl_b32", s(st1), s(sfh), 12)
    k.I("s_add_u32", s(st0), s(st0), s(st1))
    k.I("s_add_u32", s(st0), s(st0), Z1REG)
    k.I("v_add_u32", v(vz), s(st0), v(v16))
    for ti in range(2):
        for fi in range(2):
            for hf_ in range(2):
                k.lg(("z1", ti, fi), "ds_read_b128", vr(z1[fi][ti] + 4 * hf_, 4), v(vz), mods=f"offset:{ti * 8192 + fi * 2048 + hf_ * 1024}")
    k.wait_vm("z1")
    for ti in range(2):
        k.I("v_lshlrev_b32", v(bb[ti]), 16, v(bb[ti]))
        k.I("v_mul_f32", v(bb[ti]), v(bb[ti]), v(rr[ti]))
    k.I("s_cmp_eq_u32", s(skap), 0)
    k.I("s_cselect_b32", s(st0), "1.0", 0)
    for ti in range(2): k.I("v_mul_f32", v(bb[ti]), s(st0), v(bb[ti]))
    tp = [k.valloc(2) for _ in range(4)]
    P = [k.valloc(8, 4) for _ in range(2)]
    sU = k.salloc()
    k.I("s_mul_i32", s(sU), s(skap), U1_OFF - U0_OFF)
    k.I("s_add_u32", s(sU), s(sU), hex(U0_OFF))
    n = 0
    for ti in range(2):
        for fi in range(2):
            A = acc[fi][ti]; Zp = z1[fi][ti]; PP = P[n & 1]; n += 1
            for j in range(8):
                k.I("v_pk_fma_f32", vr(A + 2 * j, 2), vr(A + 2 * j, 2), vr(rr[ti], 2), vr(bb[ti], 2), mods="op_sel_hi:[1,0,0]")
            k.wait_lg(("z1", ti, fi))
            for j in range(8):
                T = tp[j % 4]
                k.I("v_lshlrev_b32", v(T), 16, v(Zp + j))
                k.I("v_and_b32", v(T + 1), "0xffff0000", v(Zp + j))
                k.I("v_pk_mul_f32", vr(A + 2 * j, 2), vr(A + 2 * j, 2), vr(T, 2))
            for j in range(8): k.I("v_cvt_pk_bf16_f32", v(PP + j), v(A + 2 * j), v(A + 2 * j + 1))
            k.I("s_add_u32", s(st0), s(sst), ti)
            k.I("s_mul_i32", s(soff), s(st0), 56 * 1024)
            k.I("s_add_u32", s(st0), s(sf32), fi)
            k.I("s_lshl_b32", s(st0), s(st0), 11)
            k.I("s_add_u32", s(soff), s(soff), s(st0))
            k.I("s_add_u32", s(soff), s(soff), s(sU))
            k.I("buffer_store_dwordx4", vr(PP, 4), v(v16), sr(sWS, 4), s(soff), mods="offen")
            k.I("buffer_store_dwordx4", vr(PP + 4, 4), v(v16), sr(sWS, 4), s(soff), mods="offen offset:1024")
            if not LT: stp.tick(5 + n)
    stp.stamp(3)
    if not LT: stp.tick(10)
    if not LT: stp.dump_ticks()
    k.L(R["done"])
    k.I("s_endpgm")
    k.lds = lds; k.threads = 512; k.grid = 224
    return k

def gen_k6(Stamper):
    k = Kernel("k6_wout_kernel")
    NS = 5; SLOT = 24576
    RED = 0
    lds = NS * SLOT
    R = common_start(k, 224)
    swave, st0, st1, soff, lane, t0, t1, t2 = (R[x] for x in ("swave", "st0", "st1", "soff", "lane", "t0", "t1", "t2"))
    pWo = k.salloc(2); pOut = k.salloc(2); pWS = k.salloc(2)
    k.I("s_load_dwordx2", sr(pWo, 2), "s[0:1]", 56)
    k.I("s_load_dwordx2", sr(pOut, 2), "s[0:1]", 64)
    k.I("s_load_dwordx2", sr(pWS, 2), "s[0:1]", 80)
    sWS = k.salloc(4); sWo = k.salloc(4); sOut = k.salloc(4)
    sj = k.salloc(); sidx = k.salloc(); srt = k.salloc(); snt = k.salloc(); sw3 = k.salloc()
    k.I("s_and_b32", s(sj), "s2", 7)
    k.I("s_lshr_b32", s(sidx), "s2", 3)
    k.I("s_and_b32", s(sw3), s(swave), 3)
    k.I("s_mul_i32", s(st0), s(sidx), 37)
    k.I("s_lshr_b32", s(st0), s(st0), 8)
    k.I("s_mul_i32", s(st1), s(st0), 7)
    k.I("s_sub_u32", s(snt), s(sidx), s(st1))
    k.I("s_lshl_b32", s(srt), s(sj), 2)
    k.I("s_add_u32", s(srt), s(srt), s(st0))
    stp = Stamper(k, 5, sWS, swave)
    k.I("s_waitcnt", "lgkmcnt(0)")
    srd(k, sWS, pWS, WS_SIZE)
    comp = k.newlabel("compute")
    k.I("s_cmp_lt_u32", s(swave), 4)
    k.I("s_cbranch_scc1", comp)
    vsave = k.vnext
    srd(k, sWo, pWo, 896 * 896)
    v16 = k.valloc(); vWo = k.valloc()
    k.I("v_lshlrev_b32", v(v16), 4, v(lane))
    k.I("v_lshrrev_b32", v(t0), 3, v(lane))
    k.I("v_mul_u32_u24", v(t0), 896, v(t0))
    k.I("v_bfe_u32", v(t1), v(lane), 4, 1)
    k.I("v_lshlrev_b32", v(t1), 2, v(t1))
    k.I("v_and_b32", v(t2), 7, v(lane))
    k.I("v_xor_b32", v(t1), v(t1), v(t2))
    k.I("v_lshl_add_u32", v(vWo), v(t1), 4, v(t0))
    sUb = k.salloc(); sWb = k.salloc(); smU = k.salloc(); smW = k.salloc()
    k.I("s_lshr_b32", s(st0), s(sw3), 1)
    k.I("s_lshl_b32", s(st1), s(srt), 1)
    k.I("s_add_u32", s(st1), s(st1), s(st0))
    k.I("s_mul_i32", s(sUb), s(st1), 56 * 1024)
    k.I("s_and_b32", s(st1), s(sw3), 1)
    k.I("s_mul_i32", s(smU), s(st1), U1_OFF - U0_OFF)
    k.I("s_add_u32", s(sUb), s(sUb), s(smU))
    k.I("s_add_u32", s(sUb), s(sUb), hex(U0_OFF))
    k.I("s_lshl_b32", s(smU), s(st1), 13)
    k.I("s_lshl_b32", s(st0), s(st0), 12)
    k.I("s_add_u32", s(smU), s(smU), s(st0))
    k.I("s_mul_i32", s(sWb), s(sw3), 16 * 896)
    k.I("s_lshl_b32", s(st1), s(snt), 7)
    k.I("s_add_u32", s(sWb), s(sWb), s(st1))
    k.I("s_lshl_b32", s(smW), s(sw3), 11)
    k.I("s_add_u32", s(smW), s(smW), 16384)
    def issue(c):
        sl = (c % NS) * SLOT
        for i in range(4):
            k.I("s_add_u32", s(soff), s(sUb), hex((4 * c + i) * 1024))
            k.I("s_add_u32", "m0", s(smU), hex(sl + i * 1024))
            k.vm(("S", c), "buffer_load_dwordx4", v(v16), sr(sWS, 4), s(soff), mods="offen lds")
        for i in range(2):
            k.I("s_add_u32", s(soff), s(sWb), hex((64 * c + 8 * i) * 896))
            k.I("s_add_u32", "m0", s(smW), hex(sl + i * 1024))
            k.vm(("S", c), "buffer_load_dwordx4", v(vWo), sr(sWo, 4), s(soff), mods="offen lds")
    NST = 14
    for c in range(3): issue(c)
    for c in range(NST):
        k.wait_vm(("S", c))
        k.I("s_barrier")
        if c == 0: issue(3); issue(4)
        elif c + 3 < NST and c >= 2: issue(c + 3)
    k.I("s_endpgm")
    k.L(comp)
    k.vnext = vsave; k.vmq = []; k.lgq = []
    srd(k, sOut, pOut, 2048 * 896)
    l31 = k.valloc(); hh = k.valloc()
    k.I("v_and_b32", v(l31), 31, v(lane))
    k.I("v_lshrrev_b32", v(hh), 5, v(lane))
    srh = k.salloc(); snh = k.salloc(); sst = k.salloc(); sntile = k.salloc()
    k.I("s_and_b32", s(srh), s(swave), 1)
    k.I("s_lshr_b32", s(snh), s(swave), 1)
    k.I("s_lshl_b32", s(sst), s(srt), 1)
    k.I("s_add_u32", s(sst), s(sst), s(srh))
    k.I("s_lshl_b32", s(sntile), s(snt), 1)
    k.I("s_add_u32", s(sntile), s(sntile), s(snh))
    if os.environ.get("PF3", "0") == "1":
        vT0 = k.valloc(); vd0 = k.valloc(2)
        k.I("s_lshl_b32", s(st0), s(sidx), 8)
        k.I("v_add_u32", v(vT0), s(st0), "v0")
        k.I("v_mov_b32", v(t0), hex(U1_OFF - U0_OFF - 3584 * 128))
        k.I("v_cmp_le_u32", "vcc", 3584, v(vT0))
        k.I("v_cndmask_b32", v(t0), 0, v(t0), "vcc")
        k.I("v_lshl_add_u32", v(t0), v(vT0), 7, v(t0))
        k.I("s_mul_i32", s(st1), s(sj), 8 * 56 * 1024)
        k.I("s_add_u32", s(st1), s(st1), hex(U0_OFF))
        k.vm("pf", "buffer_load_dword", v(vd0), v(t0), sr(sWS, 4), s(st1), mods="offen")
    v16 = k.valloc()
    k.I("v_lshlrev_b32", v(v16), 4, v(lane))
    hr = k.valloc(8, 4)
    k.I("s_mul_i32", s(soff), s(sst), 28 * 1024)
    k.I("s_lshl_b32", s(st0), s(sntile), 11)
    k.I("s_add_u32", s(soff), s(soff), s(st0))
    k.I("s_add_u32", s(soff), s(soff), hex(H_OFF))
    k.vm("h", "buffer_load_dwordx4", vr(hr, 4), v(v16), sr(sWS, 4), s(soff), mods="offen")
    k.vm("h", "buffer_load_dwordx4", vr(hr + 4, 4), v(v16), sr(sWS, 4), s(soff), mods="offen offset:1024")
    stp.stamp(0)
    aU = k.valloc(); vW = k.valloc()
    k.I("s_lshl_b32", s(st0), s(srh), 12)
    k.I("v_add_u32", v(aU), s(st0), v(v16))
    k.I("v_bfe_u32", v(t0), v(lane), 2, 2)
    k.I("v_lshl_add_u32", v(t0), v(hh), 2, v(t0))
    k.I("v_lshlrev_b32", v(vW), 7, v(t0))
    k.I("v_add_u32", v(vW), 16384, v(vW))
    k.I("v_bfe_u32", v(t0), v(lane), 4, 1)
    k.I("v_lshlrev_b32", v(t0), 1, v(t0))
    k.I("v_bfe_u32", v(t1), v(lane), 1, 1)
    k.I("v_add_u32", v(t0), v(t0), v(t1))
    k.I("s_lshl_b32", s(st0), s(snh), 2)
    k.I("v_add_u32", v(t0), s(st0), v(t0))
    k.I("v_bfe_u32", v(t1), v(lane), 3, 1)
    k.I("v_lshlrev_b32", v(t1), 2, v(t1))
    k.I("v_xor_b32", v(t0), v(t0), v(t1))
    k.I("v_lshl_add_u32", v(vW), v(t0), 4, v(vW))
    k.I("v_and_b32", v(t0), 1, v(lane))
    k.I("v_lshl_add_u32", v(vW), v(t0), 3, v(vW))
    aU2 = k.valloc(); vW2 = k.valloc()
    k.I("v_add_u32", v(aU2), 3 * SLOT, v(aU))
    k.I("v_add_u32", v(vW2), 3 * SLOT, v(vW))
    acc = k.valloc(16, 4)
    NB = 3
    uf = [[k.valloc(4) for _ in range(2)] for _ in range(NB)]; wf = [k.valloc(4) for _ in range(NB)]
    def rl(ks):
        c, j = ks // 4, ks % 4
        b = ks % NB
        sl = (c % NS)
        hi = sl >= 3
        so = (sl - (3 if hi else 0)) * SLOT
        out = []
        for ar_ in range(2):
            out.append(lambda ar_=ar_: k.lg(("f", ks), "ds_read_b128", vr(uf[b][ar_], 4), v(aU2 if hi else aU), mods=f"offset:{so + ar_ * 8192 + j * 1024}"))
        for beta in range(2):
            o = so + (16 * j + 8 * beta) * 128
            out.append(lambda o=o, beta=beta: k.lg(("f", ks), "ds_read_b64_tr_b16", vr(wf[b] + 2 * beta, 2), v(vW2 if hi else vW), mods=f"offset:{o}"))
        return out
    k.I("s_barrier")
    stp.stamp(1)
    for f in rl(0) + rl(1): f()
    NKS = NST * 4
    for ks in range(NKS):
        c, j = ks // 4, ks % 4
        b = ks % NB
        k.wait_lg(("f", ks))
        mf = [lambda ar_=ar_: k.I("v_mfma_f32_32x32x16_bf16", vr(acc, 16), vr(wf[b], 4), vr(uf[b][ar_], 4), 0 if (ks == 0 and ar_ == 0) else vr(acc, 16)) for ar_ in range(2)]
        fl = rl(ks + 2) if ks + 2 < NKS else []
        if j == 2 and ks + 2 < NKS: k.I("s_barrier")
        interleave(k, mf, fl)
    stp.stamp(2)
    k.wait_vm("h")
    tp = [k.valloc(2) for _ in range(4)]
    for j in range(8):
        T = tp[j % 4]
        k.I("v_lshlrev_b32", v(T), 16, v(hr + j))
        k.I("v_and_b32", v(T + 1), "0xffff0000", v(hr + j))
        k.I("v_pk_add_f32", vr(acc + 2 * j, 2), vr(acc + 2 * j, 2), vr(T, 2))
    P = k.valloc(8, 4)
    for j in range(8): k.I("v_cvt_pk_bf16_f32", v(P + j), v(acc + 2 * j), v(acc + 2 * j + 1))
    for kp in range(2):
        k.I("v_permlane32_swap_b32", v(P + 4 * kp), v(P + 4 * kp + 2))
        k.I("v_permlane32_swap_b32", v(P + 4 * kp + 1), v(P + 4 * kp + 3))
    vo = k.valloc()
    k.I("v_mul_u32_u24", v(vo), 896, v(l31))
    k.I("v_lshl_add_u32", v(vo), v(hh), 4, v(vo))
    k.I("s_mul_i32", s(soff), s(sst), 32 * 896)
    k.I("s_lshl_b32", s(st0), s(sntile), 6)
    k.I("s_add_u32", s(soff), s(soff), s(st0))
    for kp in range(2):
        k.I("buffer_store_dwordx4", vr(P + 4 * kp, 4), v(vo), sr(sOut, 4), s(soff), mods=f"offen offset:{32 * kp}")
    stp.stamp(3)
    if os.environ.get("SPIN"):
        ka, ja, kb, jb = [int(x) for x in os.environ["SPIN"].split(",")]
        sa_ = k.salloc(2); sb_ = k.salloc(2); sn_ = k.salloc(2); sq_ = k.salloc(2)
        lab = k.newlabel("spin"); out_ = k.newlabel("spun")
        k.I("s_or_b32", s(st0), "s2", s(swave))
        k.I("s_cmp_lg_u32", s(st0), 0)
        k.I("s_cbranch_scc1", out_)
        k.I("s_mov_b32", s(st0), hex(STAMP_OFF + ka * 256 * 64 + ja * 8))
        k.I("s_load_dwordx2", sr(sa_, 2), sr(pWS, 2), s(st0))
        k.I("s_mov_b32", s(st1), hex(STAMP_OFF + max(kb, 0) * 256 * 64 + jb * 8))
        if kb >= 0: k.I("s_load_dwordx2", sr(sb_, 2), sr(pWS, 2), s(st1))
        else: k.I("s_memrealtime", sr(sb_, 2))
        k.I("s_memrealtime", sr(sn_, 2))
        k.I("s_waitcnt", "lgkmcnt(0)")
        k.I("s_sub_u32", s(sa_), s(sb_), s(sa_))
        k.I("s_min_u32", s(sa_), s(sa_), 20000)
        k.I("s_add_u32", s(sn_), s(sn_), s(sa_))
        k.L(lab)
        k.I("s_memrealtime", sr(sq_, 2))
        k.I("s_waitcnt", "lgkmcnt(0)")
        k.I("s_sub_u32", s(sq_), s(sq_), s(sn_))
        k.I("s_cmp_lt_i32", s(sq_), 0)
        k.I("s_cbranch_scc1", lab)
        k.L(out_)
    k.L(R["done"])
    k.I("s_endpgm")
    k.lds = lds; k.threads = 512; k.grid = 224
    return k

def rest(Stamper):
    return [gen_k2(Stamper), gen_k3(Stamper), gen_k4(Stamper), gen_k5(Stamper), gen_k6(Stamper)]
```

```python
import os, struct, math
from asmlib import *
from layout import *
WS_SIZE = 0x10000000
def f32(x): return struct.unpack("<I", struct.pack("<f", x))[0]

def srd(k, dst, base, size):
    k.I("s_mov_b32", s(dst), s(base))
    k.I("s_and_b32", s(dst + 1), s(base + 1), "0xffff")
    k.I("s_mov_b32", s(dst + 2), hex(size) if isinstance(size, int) else size)
    k.I("s_mov_b32", s(dst + 3), "0x20000")

def gen_k2(Stamper):
    k = Kernel("k2_attn_kernel")
    k.snext = 4; k.vnext = 1
    KREG = 0; VREG = 24576
    lds = 49152
    done = k.newlabel("done")
    k.I("s_cmp_ge_u32", "s2", 256)
    k.I("s_cbranch_scc1", done)
    pWS = k.salloc(2)
    k.I("s_load_dwordx2", sr(pWS, 2), "s[0:1]", 80)
    sWS = k.salloc(4)
    swave = k.salloc(); srb = k.salloc(); shd = k.salloc(); st0 = k.salloc(); st1 = k.salloc(); soff = k.salloc()
    lane = k.valloc(); t0 = k.valloc(); t1 = k.valloc(); l15 = k.valloc(); gg = k.valloc()
    k.I("v_lshrrev_b32", v(t0), 6, "v0")
    k.I("v_and_b32", v(lane), 63, "v0")
    k.I("v_readfirstlane_b32", s(swave), v(t0))
    k.I("s_and_b32", s(st0), "s2", 7)
    k.I("s_lshr_b32", s(st1), "s2", 3)
    k.I("s_and_b32", s(shd), s(st1), 15)
    k.I("s_lshr_b32", s(st1), s(st1), 4)
    k.I("s_lshl_b32", s(srb), s(st0), 1)
    k.I("s_add_u32", s(srb), s(srb), s(st1))
    stp = Stamper(k, 1, sWS, swave)
    v16 = k.valloc()
    k.I("v_lshlrev_b32", v(v16), 4, v(lane))
    sb = k.salloc(); sm = k.salloc(); s16q = k.salloc()
    k.I("s_lshl_b32", s(sb), s(shd), 17)
    k.I("s_lshl_b32", s(st0), s(srb), 13)
    k.I("s_add_u32", s(sb), s(sb), s(st0))
    k.I("s_mul_i32", s(sm), s(swave), 3072)
    k.I("s_lshl_b32", s(s16q), s(srb), 3)
    k.I("s_add_u32", s(s16q), s(s16q), s(swave))
    k.I("s_waitcnt", "lgkmcnt(0)")
    srd(k, sWS, pWS, WS_SIZE)
    qf = k.valloc(4)
    k.I("s_lshl_b32", s(st0), s(swave), 10)
    k.I("s_add_u32", s(st0), s(st0), s(sb))
    k.I("s_add_u32", s(soff), s(st0), hex(Q_OFF))
    k.vm("q", "buffer_load_dwordx4", vr(qf, 4), v(v16), sr(sWS, 4), s(soff), mods="offen")
    k.I("s_add_u32", s(st1), s(sb), s(sm))
    for (reg, off) in ((KREG, K_OFF), (VREG, V_OFF)):
        for i in range(3):
            k.I("s_add_u32", s(soff), s(st1), hex(off - 16384 + i * 1024))
            k.I("s_add_u32", "m0", s(sm), hex(reg + i * 1024))
            k.vm("kv", "buffer_load_dwordx4", v(v16), sr(sWS, 4), s(soff), mods="offen lds")
    mall_prefetch(k, 40, 2048 * 4096, 0, 16, 8, swave, lane, st0, t0, t1)
    sidx2 = k.salloc()
    k.I("s_lshr_b32", s(sidx2), "s2", 3)
    code_prefetch(k, "k3_wo_kernel", sidx2, st0)
    stp.stamp(0)
    k.I("v_and_b32", v(l15), 15, v(lane))
    k.I("v_lshrrev_b32", v(gg), 4, v(lane))
    M = [k.salloc(2) for _ in range(4)]
    k.I("v_lshlrev_b32", v(t0), 2, v(gg))
    for i in range(4):
        k.I("v_add_u32", v(t1), i, v(t0))
        k.I("v_cmp_gt_u32", sr(M[i], 2), v(t1), v(l15))
    aK = k.valloc(); aV = k.valloc()
    k.I("s_lshl_b32", s(st0), s(swave), 10)
    k.I("v_add_u32", v(aK), s(st0), v(v16))
    k.I("v_lshlrev_b32", v(aV), 3, v(lane))
    k.I("s_add_u32", s(st0), s(st0), VREG)
    k.I("v_add_u32", v(aV), s(st0), v(aV))
    S = k.valloc(68, 4)
    kf = [k.valloc(4) for _ in range(6)]
    neg = k.valloc()
    k.I("v_mov_b32", v(neg), hex(f32(-1e30)))
    k.wait_vm(["q", "kv"])
    k.I("s_barrier")
    stp.stamp(1)
    NKF = 6
    for j in range(min(NKF, 17)):
        k.lg(("k", j), "ds_read_b128", vr(kf[j % NKF], 4), v(aK), mods=f"offset:{j * 1024}")
    for j in range(17):
        k.wait_lg(("k", j))
        k.I("v_mfma_f32_16x16x32_bf16", vr(S + 4 * j, 4), vr(kf[j % NKF], 4), vr(qf, 4), 0)
        if j + NKF < 17:
            k.lg(("k", j + NKF), "ds_read_b128", vr(kf[j % NKF], 4), v(aK), mods=f"offset:{(j + NKF) * 1024}")
    vT = k.valloc()
    k.I("s_lshl_b32", s(st0), s(sidx2), 9)
    k.I("v_add_u32", v(vT), s(st0), "v0")
    k.I("v_lshlrev_b32", v(vT), 7, v(vT))
    l2_prefetch(k, 32, 448 * 3584, vT, 16384, st0)
    k.lgq = []
    vf = k.valloc(9 * 2 * 4, 4)
    def vread(kp):
        for dt in range(2):
            for beta in range(2):
                tile = min(2 * kp + beta, 16)
                k.lg(("v", kp), "ds_read_b64", vr(vf + (kp * 2 + dt) * 4 + 2 * beta, 2), v(aV), mods=f"offset:{tile * 1024 + dt * 512}")
    for kp in range(3): vread(kp)
    for i in range(4):
        k.I("v_cndmask_b32", v(S + i), v(neg), v(S + i), sr(M[i], 2))
        k.I("v_cndmask_b32", v(S + 64 + i), v(S + 64 + i), v(neg), sr(M[i], 2))
    nofix = k.newlabel("nofix")
    k.I("s_cmp_ge_u32", s(s16q), 16)
    k.I("s_cbranch_scc1", nofix)
    k.I("s_sub_u32", s(st0), 16, s(s16q))
    for j in range(16):
        lab = k.newlabel("sk")
        k.I("s_cmp_le_u32", s(st0), j)
        k.I("s_cbranch_scc1", lab)
        for i in range(4): k.I("v_mov_b32", v(S + 4 * j + i), v(neg))
        k.L(lab)
    k.L(nofix)
    mx = k.valloc(4)
    for c in range(4):
        k.I("v_max3_f32", v(mx + c), v(S + c * 17), v(S + c * 17 + 1), v(S + c * 17 + 2))
    for r in range(7):
        for c in range(4):
            b = c * 17 + 3 + 2 * r
            k.I("v_max3_f32", v(mx + c), v(mx + c), v(S + b), v(S + b + 1))
    k.I("v_max3_f32", v(mx), v(mx), v(mx + 1), v(mx + 2))
    k.I("v_max_f32", v(mx), v(mx), v(mx + 3))
    for sw in ("v_permlane16_swap_b32", "v_permlane32_swap_b32"):
        k.I("v_mov_b32", v(mx + 1), v(mx))
        k.I(sw, v(mx), v(mx + 1))
        k.I("v_max_f32", v(mx), v(mx), v(mx + 1))
    cs = 28 ** -0.5 * math.log2(math.e)
    sc = k.salloc()
    k.I("s_mov_b32", s(sc), hex(f32(cs)))
    k.I("v_mul_f32", v(mx), hex(f32(-cs)), v(mx))
    for kp in range(3, 6): vread(kp)
    P = k.valloc(36, 4)
    k.I("v_mov_b32", v(P + 34), 0); k.I("v_mov_b32", v(P + 35), 0)
    O = [k.valloc(4), k.valloc(4)]
    def softmax_tile(j):
        for i in range(4): k.I("v_fma_f32", v(S + 4 * j + i), v(S + 4 * j + i), s(sc), v(mx))
        for i in range(4): k.I("v_exp_f32", v(S + 4 * j + i), v(S + 4 * j + i))
    def pack_tile(j):
        k.I("v_cvt_pk_bf16_f32", v(P + 2 * j), v(S + 4 * j), v(S + 4 * j + 1))
        k.I("v_cvt_pk_bf16_f32", v(P + 2 * j + 1), v(S + 4 * j + 2), v(S + 4 * j + 3))
    for kp in range(9):
        tiles = [2 * kp, 2 * kp + 1] if kp < 8 else [16]
        for j in tiles: softmax_tile(j)
        for j in tiles: pack_tile(j)
        if kp == 2:
            for q in range(6, 9): vread(q)
        if kp >= 1:
            q = kp - 1
            k.wait_lg(("v", q))
            for dt in range(2):
                k.I("v_mfma_f32_16x16x32_bf16", vr(O[dt], 4), vr(vf + (q * 2 + dt) * 4, 4), vr(P + 4 * q, 4), 0 if q == 0 else vr(O[dt], 4))
    k.wait_lg(("v", 8))
    for dt in range(2):
        k.I("v_mfma_f32_16x16x32_bf16", vr(O[dt], 4), vr(vf + (8 * 2 + dt) * 4, 4), vr(P + 32, 4), vr(O[dt], 4))
    la = k.valloc(); lb = k.valloc()
    k.I("v_mov_b32", v(la), v(O[1])); k.I("v_mov_b32", v(lb), v(O[1]))
    k.I("v_permlane32_swap_b32", v(la), v(lb))
    k.I("v_mov_b32", v(la), v(lb))
    k.I("v_permlane16_swap_b32", v(la), v(lb))
    k.I("v_rcp_f32", v(lb), v(lb))
    for dt in range(2):
        for i in range(4): k.I("v_mul_f32", v(O[dt] + i), v(O[dt] + i), v(lb))
    pk = k.valloc(4)
    for dt in range(2):
        k.I("v_cvt_pk_bf16_f32", v(pk + 2 * dt), v(O[dt]), v(O[dt] + 1))
        k.I("v_cvt_pk_bf16_f32", v(pk + 2 * dt + 1), v(O[dt] + 2), v(O[dt] + 3))
    k.I("v_cmp_gt_u32", "vcc", 3, v(gg))
    k.I("v_cndmask_b32", v(pk + 2), 0, v(pk + 2), "vcc")
    k.I("v_cndmask_b32", v(pk + 3), 0, v(pk + 3), "vcc")
    vo = k.valloc()
    k.I("s_and_b32", s(st0), s(swave), 1)
    k.I("s_lshl_b32", s(st0), s(st0), 8)
    k.I("v_lshlrev_b32", v(vo), 4, v(l15))
    k.I("v_add_u32", v(vo), s(st0), v(vo))
    k.I("v_lshrrev_b32", v(t0), 1, v(gg))
    k.I("v_lshl_add_u32", v(vo), v(t0), 9, v(vo))
    k.I("v_and_b32", v(t0), 1, v(gg))
    k.I("v_lshl_add_u32", v(vo), v(t0), 3, v(vo))
    k.I("s_lshl_b32", s(st0), s(srb), 2)
    k.I("s_lshr_b32", s(st1), s(swave), 1)
    k.I("s_add_u32", s(st0), s(st0), s(st1))
    k.I("s_lshl_b32", s(st0), s(st0), 15)
    k.I("s_lshl_b32", s(st1), s(shd), 11)
    k.I("s_add_u32", s(st0), s(st0), s(st1))
    k.I("s_add_u32", s(soff), s(st0), hex(O_OFF))
    for dt in range(2):
        k.I("buffer_store_dwordx2", vr(pk + 2 * dt, 2), v(vo), sr(sWS, 4), s(soff), mods=f"offen offset:{dt * 1024}")
    stp.stamp(2)
    k.L(done)
    k.I("s_endpgm")
    k.lds = lds; k.threads = 512; k.grid = 256
    return k


def code_prefetch(k, nxt, sidx, tmp_s, tid="v0"):
    if os.environ.get("PFC", "1") != "1": return
    pp = k.salloc(2); sP = k.salloc(4); vT = k.valloc(); vd = k.valloc()
    lab = k.newlabel("pc")
    k.I("s_getpc_b64", sr(pp, 2))
    k.L(lab)
    k.I("s_add_u32", s(pp), s(pp), f"{nxt}-{lab}")
    k.I("s_addc_u32", s(pp + 1), s(pp + 1), 0)
    srd(k, sP, pp, f"{nxt}_end-{nxt}")
    k.I("s_lshl_b32", s(tmp_s), s(sidx), 8)
    k.I("v_add_u32", v(vT), s(tmp_s), tid)
    k.I("v_lshlrev_b32", v(vT), 7, v(vT))
    k.vm("pfc", "buffer_load_dword", v(vd), v(vT), sr(sP, 4), 0, mods="offen")

def l2_prefetch(k, kernarg_off, nbytes, vT128, nthreads, tmp_s):
    if os.environ.get("PFT", "1") != "1": return
    pp = k.salloc(2); sP = k.salloc(4)
    k.I("s_load_dwordx2", sr(pp, 2), "s[0:1]", kernarg_off)
    k.I("s_waitcnt", "lgkmcnt(0)")
    srd(k, sP, pp, nbytes)
    n = -(-nbytes // (128 * nthreads))
    for i in range(n):
        vd = k.valloc()
        k.I("s_mov_b32", s(tmp_s), hex(i * nthreads * 128))
        k.vm("pft", "buffer_load_dword", v(vd), v(vT128), sr(sP, 4), s(tmp_s), mods="offen")

def mall_prefetch(k, kernarg_off, nbytes, first, per, nw, swave, lane, tmp_s, tv0, tv1, flag="PFM"):
    if os.environ.get(flag, "1") != "1": return
    pp = k.salloc(2); sP = k.salloc(4); vd = k.valloc()
    k.I("s_load_dwordx2", sr(pp, 2), "s[0:1]", kernarg_off)
    k.I("s_mul_i32", s(tmp_s), "s2", nw)
    k.I("s_add_u32", s(tmp_s), s(tmp_s), s(swave))
    k.I("s_mul_i32", s(tmp_s), s(tmp_s), per)
    k.I("s_add_u32", s(tmp_s), s(tmp_s), first)
    k.I("s_lshl_b32", s(tmp_s), s(tmp_s), 7)
    k.I("v_lshlrev_b32", v(tv0), 7, v(lane))
    k.I("v_mov_b32", v(tv1), "0x7fffff00")
    k.I("v_cmp_gt_u32", "vcc", per, v(lane))
    k.I("v_cndmask_b32", v(tv0), v(tv1), v(tv0), "vcc")
    k.I("s_waitcnt", "lgkmcnt(0)")
    k.lgq = []
    srd(k, sP, pp, nbytes)
    k.vm("pfm", "buffer_load_dword", v(vd), v(tv0), sr(sP, 4), s(tmp_s), mods="offen")

def common_start(k, nwg):
    k.snext = 4; k.vnext = 1
    done = k.newlabel("done")
    k.I("s_cmp_ge_u32", "s2", nwg)
    k.I("s_cbranch_scc1", done)
    R = dict(done=done)
    R["swave"] = k.salloc(); R["st0"] = k.salloc(); R["st1"] = k.salloc(); R["soff"] = k.salloc()
    R["lane"] = k.valloc(); R["t0"] = k.valloc(); R["t1"] = k.valloc(); R["t2"] = k.valloc()
    k.I("v_lshrrev_b32", v(R["t0"]), 6, "v0")
    k.I("v_and_b32", v(R["lane"]), 63, "v0")
    k.I("v_readfirstlane_b32", s(R["swave"]), v(R["t0"]))
    return R

def interleave(k, mf, fl):
    n = len(fl); m = len(mf)
    cuts = [(i * n + m - 1) // m for i in range(m + 1)]
    cuts[-1] = n
    for i in range(m):
        mf[i]()
        for f in fl[cuts[i]:cuts[i + 1]]: f()

def stats_from_packed(k, P, n, accs, accq, tmp):
    for j in range(n):
        t = tmp[j % len(tmp)]
        k.I("v_lshlrev_b32", v(t), 16, v(P + j))
        k.I("v_and_b32", v(t + 1), "0xffff0000", v(P + j))
        if j == 0:
            k.I("v_pk_mul_f32", vr(accq, 2), vr(t, 2), vr(t, 2))
            k.I("v_mov_b32", v(accs), v(t)); k.I("v_mov_b32", v(accs + 1), v(t + 1))
        else:
            k.I("v_pk_add_f32", vr(accs, 2), vr(accs, 2), vr(t, 2))
            k.I("v_pk_fma_f32", vr(accq, 2), vr(t, 2), vr(t, 2), vr(accq, 2))
    k.I("v_add_f32", v(accs), v(accs), v(accs + 1))
    k.I("v_add_f32", v(accq), v(accq), v(accq + 1))
    for r_ in (accs, accq):
        k.I("v_mov_b32", v(r_ + 1), v(r_))
        k.I("v_permlane32_swap_b32", v(r_), v(r_ + 1))
        k.I("v_add_f32", v(r_), v(r_), v(r_ + 1))

def gen_k3(Stamper):
    k = Kernel("k3_wo_kernel")
    WREG = 0; OREG = 58368
    lds = OREG + 65536
    R = common_start(k, 256)
    swave, st0, st1, soff, lane, t0, t1, t2 = (R[x] for x in ("swave", "st0", "st1", "soff", "lane", "t0", "t1", "t2"))
    pX = k.salloc(2); pWo = k.salloc(2); pWin = k.salloc(2); pWS = k.salloc(2)
    k.I("s_load_dwordx2", sr(pX, 2), "s[0:1]", 0)
    k.I("s_load_dwordx2", sr(pWo, 2), "s[0:1]", 16)
    k.I("s_load_dwordx2", sr(pWin, 2), "s[0:1]", 32)
    k.I("s_load_dwordx2", sr(pWS, 2), "s[0:1]", 80)
    sWS = k.salloc(4); sWo = k.salloc(4); sX = k.salloc(4)
    sj = k.salloc(); sidx = k.salloc(); srt = k.salloc(); snt = k.salloc(); sw3 = k.salloc()
    k.I("s_and_b32", s(sj), "s2", 7)
    k.I("s_lshr_b32", s(sidx), "s2", 3)
    k.I("s_and_b32", s(sw3), s(swave), 3)
    stp = Stamper(k, 2, sWS, swave)
    aux = k.newlabel("aux")
    k.I("s_cmp_ge_u32", s(sidx), 28)
    k.I("s_cbranch_scc1", aux)
    k.I("s_mul_i32", s(st0), s(sidx), 37)
    k.I("s_lshr_b32", s(st0), s(st0), 8)
    k.I("s_mul_i32", s(st1), s(st0), 7)
    k.I("s_sub_u32", s(snt), s(sidx), s(st1))
    k.I("s_lshl_b32", s(srt), s(sj), 2)
    k.I("s_add_u32", s(srt), s(srt), s(st0))
    k.I("s_waitcnt", "lgkmcnt(0)")
    srd(k, sWS, pWS, WS_SIZE)
    comp = k.newlabel("compute")
    k.I("s_cmp_lt_u32", s(swave), 4)
    k.I("s_cbranch_scc1", comp)
    vsave = k.vnext
    srd(k, sWo, pWo, 448 * 896)
    v16 = k.valloc(); vWo = k.valloc()
    k.I("v_lshlrev_b32", v(v16), 4, v(lane))
    k.I("v_lshrrev_b32", v(t0), 3, v(lane))
    k.I("v_mul_u32_u24", v(t0), 896, v(t0))
    k.I("v_bfe_u32", v(t1), v(lane), 4, 1)
    k.I("v_lshlrev_b32", v(t1), 2, v(t1))
    k.I("v_and_b32", v(t2), 7, v(lane))
    k.I("v_xor_b32", v(t1), v(t1), v(t2))
    k.I("v_lshl_add_u32", v(vWo), v(t1), 4, v(t0))
    sOb = k.salloc(); sWb = k.salloc(); smO = k.salloc(); smW = k.salloc()
    k.I("s_lshl_b32", s(sOb), s(srt), 16)
    k.I("s_lshl_b32", s(st0), s(sw3), 10)
    k.I("s_add_u32", s(sOb), s(sOb), s(st0))
    k.I("s_add_u32", s(sOb), s(sOb), hex(O_OFF))
    k.I("s_add_u32", s(smO), s(st0), OREG)
    k.I("s_mul_i32", s(sWb), s(sw3), 8 * 896)
    k.I("s_lshl_b32", s(st1), s(snt), 7)
    k.I("s_add_u32", s(sWb), s(sWb), s(st1))
    k.I("s_add_u32", s(smW), s(st0), WREG)
    def issue(c):
        for r2 in range(2):
            k.I("s_add_u32", s(soff), s(sOb), hex(r2 * 32768 + c * 4096))
            k.I("s_add_u32", "m0", s(smO), hex(r2 * 32768 + c * 4096))
            k.vm(("S", c), "buffer_load_dwordx4", v(v16), sr(sWS, 4), s(soff), mods="offen lds")
        for i in range(2):
            k.I("s_add_u32", s(soff), s(sWb), hex((56 * c + 32 * i) * 896))
            k.I("s_add_u32", "m0", s(smW), hex((56 * c + 32 * i) * 128))
            k.vm(("S", c), "buffer_load_dwordx4", v(vWo), sr(sWo, 4), s(soff), mods="offen lds")
    LA = 3
    for c in range(LA): issue(c)
    for c in range(8):
        k.wait_vm(("S", c))
        k.I("s_barrier")
        if c + LA < 8: issue(c + LA)
    k.I("s_endpgm")
    k.L(comp)
    k.vnext = vsave; k.vmq = []; k.lgq = []
    srd(k, sX, pX, 2048 * 896)
    l31 = k.valloc(); hh = k.valloc()
    k.I("v_and_b32", v(l31), 31, v(lane))
    k.I("v_lshrrev_b32", v(hh), 5, v(lane))
    srh = k.salloc(); snh = k.salloc(); sst = k.salloc(); sntile = k.salloc()
    k.I("s_and_b32", s(srh), s(swave), 1)
    k.I("s_lshr_b32", s(snh), s(swave), 1)
    k.I("s_lshl_b32", s(sst), s(srt), 1)
    k.I("s_add_u32", s(sst), s(sst), s(srh))
    k.I("s_lshl_b32", s(sntile), s(snt), 1)
    k.I("s_add_u32", s(sntile), s(sntile), s(snh))
    xr = k.valloc(8, 4); vx = k.valloc()
    k.I("v_mul_u32_u24", v(vx), 896, v(l31))
    k.I("v_lshl_add_u32", v(vx), v(hh), 3, v(vx))
    k.I("s_mul_i32", s(soff), s(sst), 32 * 896)
    k.I("s_lshl_b32", s(st0), s(sntile), 6)
    k.I("s_add_u32", s(soff), s(soff), s(st0))
    for q in range(4):
        k.vm("x", "buffer_load_dwordx2", vr(xr + 2 * q, 2), v(vx), sr(sX, 4), s(soff), mods=f"offen offset:{16 * q}")
    mall_prefetch(k, 40, 2048 * 4096, 32768, 37, 4, swave, lane, st0, t0, t1)
    code_prefetch(k, "k4_win_kernel", sidx, st0)
    stp.stamp(0)
    aO = k.valloc(); vW = k.valloc()
    k.I("v_lshlrev_b32", v(aO), 4, v(lane))
    k.I("s_lshl_b32", s(st0), s(srh), 15)
    k.I("s_add_u32", s(st0), s(st0), OREG)
    k.I("v_add_u32", v(aO), s(st0), v(aO))
    k.I("v_bfe_u32", v(t0), v(lane), 2, 2)
    k.I("v_lshl_add_u32", v(t0), v(hh), 3, v(t0))
    k.I("v_lshlrev_b32", v(vW), 7, v(t0))
    k.I("v_bfe_u32", v(t0), v(lane), 4, 1)
    k.I("v_lshlrev_b32", v(t0), 1, v(t0))
    k.I("v_bfe_u32", v(t1), v(lane), 1, 1)
    k.I("v_add_u32", v(t0), v(t0), v(t1))
    k.I("s_lshl_b32", s(st0), s(snh), 2)
    k.I("v_add_u32", v(t0), s(st0), v(t0))
    k.I("v_bfe_u32", v(t1), v(lane), 3, 1)
    k.I("v_lshlrev_b32", v(t1), 2, v(t1))
    k.I("v_xor_b32", v(t0), v(t0), v(t1))
    k.I("v_lshl_add_u32", v(vW), v(t0), 4, v(vW))
    k.I("v_and_b32", v(t0), 1, v(lane))
    k.I("v_lshl_add_u32", v(vW), v(t0), 3, v(vW))
    acc = k.valloc(16, 4)
    NB = 3
    of = [k.valloc(4) for _ in range(NB)]; wf = [k.valloc(4) for _ in range(NB)]
    def rl(ks):
        b = ks % NB
        out = [lambda: k.lg(("f", ks), "ds_read_b128", vr(of[b], 4), v(aO), mods=f"offset:{ks * 1024}")]
        for beta in range(2):
            o = (28 * (ks >> 1) + 16 * (ks & 1) + 4 * beta) * 128
            out.append(lambda o=o, beta=beta: k.lg(("f", ks), "ds_read_b64_tr_b16", vr(wf[b] + 2 * beta, 2), v(vW), mods=f"offset:{o}"))
        return out
    k.I("s_barrier")
    stp.stamp(1)
    for f in rl(0) + rl(1): f()
    for ks in range(32):
        c, j = ks // 4, ks % 4
        b = ks % NB
        k.wait_lg(("f", ks))
        k.I("v_mfma_f32_32x32x16_bf16", vr(acc, 16), vr(wf[b], 4), vr(of[b], 4), 0 if ks == 0 else vr(acc, 16))
        if j == 1 and c < 7: k.I("s_barrier")
        if ks + 2 < 32 and not (j == 1 and False):
            pass
        nxt = ks + 2
        if nxt < 32:
            for f in rl(nxt): f()
    EOF_MARK = None
    stp.stamp(2)
    k.wait_vm("x")
    tmp = [k.valloc(2) for _ in range(4)]
    for q in range(4):
        for d in range(2):
            t = tmp[(2 * q + d) % 4]
            k.I("v_lshlrev_b32", v(t), 16, v(xr + 2 * q + d))
            k.I("v_and_b32", v(t + 1), "0xffff0000", v(xr + 2 * q + d))
            k.I("v_pk_add_f32", vr(acc + 4 * q + 2 * d, 2), vr(acc + 4 * q + 2 * d, 2), vr(t, 2))
    P = k.valloc(8, 4)
    for j in range(8): k.I("v_cvt_pk_bf16_f32", v(P + j), v(acc + 2 * j), v(acc + 2 * j + 1))
    v16 = k.valloc()
    k.I("v_lshlrev_b32", v(v16), 4, v(lane))
    k.I("s_mul_i32", s(soff), s(sst), 28 * 1024)
    k.I("s_lshl_b32", s(st0), s(sntile), 11)
    k.I("s_add_u32", s(soff), s(soff), s(st0))
    k.I("s_add_u32", s(soff), s(soff), hex(H_OFF))
    k.I("buffer_store_dwordx4", vr(P, 4), v(v16), sr(sWS, 4), s(soff), mods="offen")
    k.I("buffer_store_dwordx4", vr(P + 4, 4), v(v16), sr(sWS, 4), s(soff), mods="offen offset:1024")
    accs = k.valloc(2); accq = k.valloc(2)
    stats_from_packed(k, P, 8, accs, accq, tmp)
    k.I("v_mov_b32", v(accs + 1), v(accq))
    vh = k.valloc()
    k.I("v_mul_u32_u24", v(vh), 112, v(l31))
    k.I("s_mul_i32", s(soff), s(sst), 32 * 112)
    k.I("s_lshl_b32", s(st0), s(sntile), 3)
    k.I("s_add_u32", s(soff), s(soff), s(st0))
    k.I("s_add_u32", s(soff), s(soff), hex(HS_OFF))
    k.I("s_mov_b32", "exec_hi", 0)
    k.I("buffer_store_dwordx2", vr(accs, 2), v(vh), sr(sWS, 4), s(soff), mods="offen")
    stp.stamp(3)
    k.I("s_endpgm")
    k.L(aux)
    k.vnext = vsave; k.vmq = []; k.lgq = []
    sa = k.salloc(); sWin = k.salloc(4)
    k.I("s_sub_u32", s(sa), s(sidx), 28)
    k.I("s_lshl_b32", s(sa), s(sa), 3)
    k.I("s_add_u32", s(sa), s(sa), s(sj))
    k.I("s_waitcnt", "lgkmcnt(0)")
    srd(k, sWS, pWS, WS_SIZE)
    ff = k.valloc(4)
    for i in range(4): k.I("v_mov_b32", v(ff + i), -1)
    k.I("v_lshlrev_b32", v(t1), 4, "v0")
    k.I("v_mov_b32", v(t2), "0x7fffff00")
    k.I("v_cmp_gt_u32", "vcc", 448, "v0")
    k.I("v_cndmask_b32", v(t1), v(t2), v(t1), "vcc")
    k.I("s_mul_i32", s(st0), s(sa), 7168)
    k.I("s_add_u32", s(st0), s(st0), hex(EX_OFF))
    k.I("buffer_store_dwordx4", vr(ff, 4), v(t1), sr(sWS, 4), s(st0), mods="offen")
    k.I("s_cmp_ge_u32", s(sa), 28)
    k.I("s_cbranch_scc1", R["done"])
    srd(k, sWin, pWin, 448 * 3584)
    vg = k.valloc()
    k.I("v_lshrrev_b32", v(t0), 3, v(lane))
    k.I("v_mul_u32_u24", v(t0), 3584, v(t0))
    k.I("v_bfe_u32", v(t1), v(lane), 4, 1)
    k.I("v_lshlrev_b32", v(t1), 2, v(t1))
    k.I("v_and_b32", v(t2), 7, v(lane))
    k.I("v_xor_b32", v(t1), v(t1), v(t2))
    k.I("v_lshl_add_u32", v(vg), v(t1), 4, v(t0))
    sb = k.salloc(); sm = k.salloc()
    k.I("s_mul_i32", s(sb), s(swave), 56 * 3584)
    k.I("s_lshl_b32", s(st0), s(sa), 7)
    k.I("s_add_u32", s(sb), s(sb), s(st0))
    k.I("s_mul_i32", s(sm), s(swave), 56 * 128)
    for i in range(7):
        k.I("s_add_u32", s(soff), s(sb), hex(i * 8 * 3584))
        k.I("s_add_u32", "m0", s(sm), hex(i * 1024))
        k.I("buffer_load_dwordx4", v(vg), sr(sWin, 4), s(soff), mods="offen lds")
    z = k.valloc(); TB = 57344
    k.I("v_mov_b32", v(z), 0)
    k.I("v_lshlrev_b32", v(t0), 2, v(lane))
    k.I("v_add_u32", v(t0), TB, v(t0))
    k.I("ds_write_b32", v(t0), v(z))
    gg = k.valloc(); vB = k.valloc(); ones = k.valloc(4)
    k.I("v_lshrrev_b32", v(gg), 4, v(lane))
    k.I("v_bfe_u32", v(t0), v(lane), 2, 2)
    k.I("v_lshl_add_u32", v(t0), v(gg), 3, v(t0))
    k.I("v_lshlrev_b32", v(vB), 7, v(t0))
    k.I("v_bfe_u32", v(t0), v(lane), 1, 1)
    k.I("s_lshl_b32", s(st0), s(sw3), 1)
    k.I("v_add_u32", v(t0), s(st0), v(t0))
    k.I("v_bfe_u32", v(t1), v(lane), 3, 1)
    k.I("v_lshlrev_b32", v(t1), 2, v(t1))
    k.I("v_xor_b32", v(t0), v(t0), v(t1))
    k.I("v_lshl_add_u32", v(vB), v(t0), 4, v(vB))
    k.I("v_and_b32", v(t0), 1, v(lane))
    k.I("v_lshl_add_u32", v(vB), v(t0), 3, v(vB))
    k.I("s_lshr_b32", s(st0), s(swave), 2)
    k.I("s_mul_i32", s(st0), s(st0), 224 * 128)
    k.I("v_add_u32", v(vB), s(st0), v(vB))
    for i in range(4): k.I("v_mov_b32", v(ones + i), "0x3f803f80")
    k.I("s_waitcnt", "vmcnt(0) lgkmcnt(0)")
    k.I("s_barrier")
    bf = [k.valloc(4) for _ in range(7)]
    for kk in range(7):
        for beta in range(2):
            k.I("ds_read_b64_tr_b16", vr(bf[kk] + 2 * beta, 2), v(vB), mods=f"offset:{(32 * kk + 4 * beta) * 128}")
    ca = k.valloc(4)
    k.I("s_waitcnt", "lgkmcnt(0)")
    for kk in range(7):
        k.I("v_mfma_f32_16x16x32_bf16", vr(ca, 4), vr(ones, 4), vr(bf[kk], 4), 0 if kk == 0 else vr(ca, 4))
    k.I("v_and_b32", v(t0), 15, v(lane))
    k.I("s_lshl_b32", s(st0), s(sw3), 6)
    k.I("s_add_u32", s(st0), s(st0), TB)
    k.I("v_lshlrev_b32", v(t0), 2, v(t0))
    k.I("v_add_u32", v(t0), s(st0), v(t0))
    k.I("s_mov_b32", "exec_lo", "0xffff")
    k.I("s_mov_b32", "exec_hi", 0)
    k.I("ds_add_f32", v(t0), v(ca))
    k.I("s_mov_b64", "exec", -1)
    k.I("s_waitcnt", "lgkmcnt(0)")
    k.I("s_barrier")
    k.I("s_cmp_lg_u32", s(swave), 0)
    k.I("s_cbranch_scc1", R["done"])
    k.I("v_lshlrev_b32", v(t0), 2, v(lane))
    k.I("v_add_u32", v(t1), TB, v(t0))
    k.I("ds_read_b32", v(z), v(t1))
    k.I("s_lshl_b32", s(st0), s(sa), 8)
    k.I("s_add_u32", s(st0), s(st0), hex(CW_OFF))
    k.I("s_waitcnt", "lgkmcnt(0)")
    k.I("buffer_store_dword", v(z), v(t0), sr(sWS, 4), s(st0), mods="offen")
    k.L(R["done"])
    k.I("s_endpgm")
    k.lds = lds; k.threads = 512; k.grid = 256
    return k


GELU_C0 = -2.0 * math.sqrt(2.0 / math.pi) * math.log2(math.e)
GELU_C1 = GELU_C0 * 0.044715

def gen_k4(Stamper):
    k = Kernel("k4_win_kernel")
    NS = 4; SLOT = 32768; TRB = NS * SLOT
    STB = TRB
    lds = TRB + 4096
    R = common_start(k, 224)
    swave, st0, st1, soff, lane, t0, t1, t2 = (R[x] for x in ("swave", "st0", "st1", "soff", "lane", "t0", "t1", "t2"))
    pWin = k.salloc(2); pWS = k.salloc(2)
    k.I("s_load_dwordx2", sr(pWin, 2), "s[0:1]", 32)
    k.I("s_load_dwordx2", sr(pWS, 2), "s[0:1]", 80)
    sWS = k.salloc(4); sWin = k.salloc(4)
    sj = k.salloc(); sidx = k.salloc(); srb = k.salloc(); sct = k.salloc(); sw3 = k.salloc()
    k.I("s_and_b32", s(sj), "s2", 7)
    k.I("s_lshr_b32", s(sidx), "s2", 3)
    k.I("s_and_b32", s(sw3), s(swave), 3)
    k.I("s_cmp_ge_u32", s(sidx), 14)
    k.I("s_cselect_b32", s(st0), 1, 0)
    k.I("s_mul_i32", s(st1), s(st0), 14)
    k.I("s_sub_u32", s(sct), s(sidx), s(st1))
    k.I("s_lshl_b32", s(srb), s(sj), 1)
    k.I("s_add_u32", s(srb), s(srb), s(st0))
    stp = Stamper(k, 3, sWS, swave)
    k.I("s_waitcnt", "lgkmcnt(0)")
    srd(k, sWS, pWS, WS_SIZE)
    comp = k.newlabel("compute")
    k.I("s_cmp_lt_u32", s(swave), 4)
    k.I("s_cbranch_scc1", comp)
    vsave = k.vnext
    srd(k, sWin, pWin, 448 * 3584)
    v16 = k.valloc(); vWo = k.valloc()
    k.I("v_lshlrev_b32", v(v16), 4, v(lane))
    k.I("v_lshrrev_b32", v(t0), 4, v(lane))
    k.I("v_lshlrev_b32", v(t1), 2, v(t0))
    k.I("v_and_b32", v(t2), 15, v(lane))
    k.I("v_xor_b32", v(t1), v(t1), v(t2))
    k.I("v_mul_u32_u24", v(vWo), 3584, v(t0))
    k.I("v_and_b32", v(t2), 7, v(t1))
    k.I("v_lshl_add_u32", v(vWo), v(t2), 4, v(vWo))
    k.I("v_add_u32", v(t2), 1792, v(vWo))
    k.I("v_cmp_gt_u32", "vcc", 8, v(t1))
    k.I("v_cndmask_b32", v(vWo), v(vWo), v(t2), "vcc")
    sHb = k.salloc(); sWb = k.salloc(); smH = k.salloc(); smW = k.salloc()
    k.I("s_lshl_b32", s(st0), s(srb), 2)
    k.I("s_add_u32", s(st0), s(st0), s(sw3))
    k.I("s_mul_i32", s(sHb), s(st0), 28 * 1024)
    k.I("s_add_u32", s(sHb), s(sHb), hex(H_OFF))
    k.I("s_lshl_b32", s(smH), s(sw3), 12)
    k.I("s_mul_i32", s(sWb), s(sw3), 16 * 3584)
    k.I("s_lshl_b32", s(st1), s(sct), 7)
    k.I("s_add_u32", s(sWb), s(sWb), s(st1))
    k.I("s_add_u32", s(smW), s(smH), 16384)
    def issue(c):
        sl = (c % NS) * SLOT
        for i in range(4):
            k.I("s_add_u32", s(soff), s(sHb), hex((4 * c + i) * 1024))
            k.I("s_add_u32", "m0", s(smH), hex(sl + i * 1024))
            k.vm(("S", c), "buffer_load_dwordx4", v(v16), sr(sWS, 4), s(soff), mods="offen lds")
        for i in range(4):
            k.I("s_add_u32", s(soff), s(sWb), hex((64 * c + 4 * i) * 3584))
            k.I("s_add_u32", "m0", s(smW), hex(sl + i * 1024))
            k.vm(("S", c), "buffer_load_dwordx4", v(vWo), sr(sWin, 4), s(soff), mods="offen lds")
    issue(0); issue(1)
    for c in range(7):
        k.wait_vm(("S", c))
        k.I("s_barrier")
        if c == 0: issue(2); issue(3)
        elif c + 2 < 7 and c >= 2: issue(c + 2)
    if os.environ.get("PFT", "1") == "1":
        pp = k.salloc(2); sP = k.salloc(4); vT = k.valloc(); vd = k.valloc(2)
        k.I("s_load_dwordx2", sr(pp, 2), "s[0:1]", 40)
        k.I("s_lshl_b32", s(st0), s(sidx), 8)
        k.I("v_subrev_u32", v(vT), 256, "v0")
        k.I("v_add_u32", v(vT), s(st0), v(vT))
        k.I("s_waitcnt", "lgkmcnt(0)")
        srd(k, sP, pp, 2048 * 4096)
        k.I("s_lshr_b32", s(st0), s(sj), 1)
        k.I("s_lshl_b32", s(st0), s(st0), 21)
        k.I("s_and_b32", s(st1), s(sj), 1)
        k.I("s_lshl_b32", s(st1), s(st1), 11)
        k.I("s_add_u32", s(st0), s(st0), s(st1))
        for i in range(2):
            k.I("v_add_u32", v(t0), 7168 * i, v(vT))
            k.I("v_lshrrev_b32", v(t1), 4, v(t0))
            k.I("v_lshlrev_b32", v(t1), 12, v(t1))
            k.I("v_and_b32", v(t2), 15, v(t0))
            k.I("v_lshl_add_u32", v(t1), v(t2), 7, v(t1))
            if i == 1:
                k.I("v_mov_b32", v(t2), "0x7fffff00")
                k.I("v_cmp_gt_u32", "vcc", 8192, v(t0))
                k.I("v_cndmask_b32", v(t1), v(t2), v(t1), "vcc")
            k.I("buffer_load_dword", v(vd + i), v(t1), sr(sP, 4), s(st0), mods="offen")
    k.I("s_barrier")
    k.I("s_endpgm")
    k.L(comp)
    k.vnext = vsave; k.vmq = []; k.lgq = []
    l31 = k.valloc(); hh = k.valloc()
    k.I("v_and_b32", v(l31), 31, v(lane))
    k.I("v_lshrrev_b32", v(hh), 5, v(lane))
    srh = k.salloc(); sch = k.salloc(); sst = k.salloc()
    k.I("s_and_b32", s(srh), s(swave), 1)
    k.I("s_lshr_b32", s(sch), s(swave), 1)
    k.I("s_lshl_b32", s(sst), s(srb), 2)
    k.I("s_lshl_b32", s(st0), s(srh), 1)
    k.I("s_add_u32", s(sst), s(sst), s(st0))
    hs = [k.valloc(16, 4) for _ in range(2)]
    vh = k.valloc()
    k.I("v_mul_u32_u24", v(vh), 112, v(l31))
    k.I("v_lshl_add_u32", v(vh), v(hh), 6, v(vh))
    for t in range(2):
        k.I("s_add_u32", s(st0), s(sst), t)
        k.I("s_mul_i32", s(soff), s(st0), 32 * 112)
        k.I("s_add_u32", s(soff), s(soff), hex(HS_OFF))
        for i in range(4):
            k.vm("hs", "buffer_load_dwordx4", vr(hs[t] + 4 * i, 4), v(vh), sr(sWS, 4), s(soff), mods=f"offen offset:{16 * i}")
    cw = [k.valloc(16, 4) for _ in range(2)]
    vc = k.valloc()
    k.I("v_lshlrev_b32", v(vc), 4, v(hh))
    k.I("s_lshl_b32", s(st0), s(sct), 8)
    k.I("s_lshl_b32", s(st1), s(sch), 7)
    k.I("s_add_u32", s(st0), s(st0), s(st1))
    for z in range(2):
        k.I("s_add_u32", s(soff), s(st0), hex(CW_OFF + (896 * 4 if z == 0 else 0)))
        for q in range(4):
            k.vm("cw", "buffer_load_dwordx4", vr(cw[z] + 4 * q, 4), v(vc), sr(sWS, 4), s(soff), mods=f"offen offset:{32 * q}")
    if os.environ.get("PF2", "0") == "1":
        pp = k.salloc(2); sP = k.salloc(4); vT = k.valloc(); vd = k.valloc(2)
        k.I("s_load_dwordx2", sr(pp, 2), "s[0:1]", 40)
        k.I("s_lshl_b32", s(st0), s(sidx), 8)
        k.I("v_add_u32", v(vT), s(st0), "v0")
        k.I("s_waitcnt", "lgkmcnt(0)")
        srd(k, sP, pp, 2048 * 4096)
        k.I("s_lshr_b32", s(st0), s(sj), 1)
        k.I("s_lshl_b32", s(st0), s(st0), 21)
        k.I("s_and_b32", s(st1), s(sj), 1)
        k.I("s_lshl_b32", s(st1), s(st1), 11)
        k.I("s_add_u32", s(st0), s(st0), s(st1))
        for i in range(2):
            k.I("v_add_u32", v(t0), 7168 * i, v(vT))
            k.I("v_lshrrev_b32", v(t1), 4, v(t0))
            k.I("v_lshlrev_b32", v(t1), 12, v(t1))
            k.I("v_and_b32", v(t2), 15, v(t0))
            k.I("v_lshl_add_u32", v(t1), v(t2), 7, v(t1))
            if i == 1:
                k.I("v_mov_b32", v(t2), "0x7fffff00")
                k.I("v_cmp_gt_u32", "vcc", 8192, v(t0))
                k.I("v_cndmask_b32", v(t1), v(t2), v(t1), "vcc")
            k.vm("pf", "buffer_load_dword", v(vd + i), v(t1), sr(sP, 4), s(st0), mods="offen")
    mall_prefetch(k, 56, 896 * 896, 0, 7, 4, swave, lane, st0, t0, t1)
    code_prefetch(k, "k5_sp_kernel", sidx, st0)
    stp.stamp(0)
    aH = k.valloc(); vW = [k.valloc(), k.valloc()]
    k.I("v_lshlrev_b32", v(aH), 4, v(lane))
    k.I("s_lshl_b32", s(st0), s(srh), 13)
    k.I("v_add_u32", v(aH), s(st0), v(aH))
    k.I("v_bfe_u32", v(t0), v(lane), 2, 2)
    k.I("v_lshl_add_u32", v(t1), v(hh), 2, v(t0))
    k.I("v_lshlrev_b32", v(t1), 8, v(t1))
    k.I("v_add_u32", v(t1), 16384, v(t1))
    k.I("v_bfe_u32", v(t2), v(lane), 4, 1)
    k.I("v_lshlrev_b32", v(t2), 1, v(t2))
    k.I("v_bfe_u32", v(vW[0]), v(lane), 1, 1)
    k.I("v_add_u32", v(t2), v(t2), v(vW[0]))
    k.I("s_lshl_b32", s(st0), s(sch), 2)
    k.I("v_add_u32", v(t2), s(st0), v(t2))
    k.I("v_lshlrev_b32", v(t0), 2, v(t0))
    k.I("v_xor_b32", v(vW[0]), v(t2), v(t0))
    k.I("v_add_u32", v(t2), 8, v(t2))
    k.I("v_xor_b32", v(vW[1]), v(t2), v(t0))
    k.I("v_and_b32", v(t2), 1, v(lane))
    for z in range(2):
        k.I("v_lshl_add_u32", v(vW[z]), v(vW[z]), 4, v(t1))
        k.I("v_lshl_add_u32", v(vW[z]), v(t2), 3, v(vW[z]))
    aH2 = k.valloc(); vW2 = [k.valloc(), k.valloc()]
    k.I("v_add_u32", v(aH2), 65536, v(aH))
    for z in range(2): k.I("v_add_u32", v(vW2[z]), 65536, v(vW[z]))
    acc = [[k.valloc(16, 4) for _ in range(2)] for _ in range(2)]
    vmark = k.vnext
    NB = 3
    hf = [[k.valloc(4) for _ in range(2)] for _ in range(NB)]
    wf = [[k.valloc(4) for _ in range(2)] for _ in range(NB)]
    def rl(ks):
        c, j = ks // 4, ks % 4
        b = ks % NB
        sl = (c % NS) * SLOT
        hi = sl >= 65536
        so = sl - (65536 if hi else 0)
        out = []
        for t in range(2):
            out.append(lambda t=t: k.lg(("f", ks), "ds_read_b128", vr(hf[b][t], 4), v(aH2 if hi else aH), mods=f"offset:{so + t * 4096 + j * 1024}"))
        for z in range(2):
            for beta in range(2):
                o = so + (16 * j + 8 * beta) * 256
                out.append(lambda o=o, z=z, beta=beta: k.lg(("f", ks), "ds_read_b64_tr_b16", vr(wf[b][z] + 2 * beta, 2), v((vW2 if hi else vW)[z]), mods=f"offset:{o}"))
        return out
    k.I("s_barrier")
    stp.stamp(1)
    for f in rl(0) + rl(1): f()
    for ks in range(28):
        c, j = ks // 4, ks % 4
        b = ks % NB
        k.wait_lg(("f", ks))
        mf = []
        for z in range(2):
            for t in range(2):
                mf.append(lambda z=z, t=t: k.I("v_mfma_f32_32x32x16_bf16", vr(acc[z][t], 16), vr(wf[b][z], 4), vr(hf[b][t], 4), 0 if ks == 0 else vr(acc[z][t], 16)))
        if j == 2 and c < 6:
            pass
        fl = rl(ks + 2) if ks + 2 < 28 else []
        if j == 2 and ks + 2 < 28:
            k.I("s_barrier")
        interleave(k, mf, fl)
    stp.stamp(2)
    k.vnext = vmark
    k.wait_vm(["hs", "cw"])
    rr = [k.valloc(2) for _ in range(2)]; nm = [k.valloc(2) for _ in range(2)]
    c0r = [k.valloc(2) for _ in range(2)]; c1r = [k.valloc(2) for _ in range(2)]
    k.I("v_cmp_eq_u32", "vcc", 0, v(hh))
    for t in range(2):
        H = hs[t]
        for i in range(12, 16): k.I("v_cndmask_b32", v(H + i), 0, v(H + i), "vcc")
        for i in range(4): k.I("v_pk_add_f32", vr(H + 2 * i, 2), vr(H + 2 * i, 2), vr(H + 8 + 2 * i, 2))
        for i in range(2): k.I("v_pk_add_f32", vr(H + 2 * i, 2), vr(H + 2 * i, 2), vr(H + 4 + 2 * i, 2))
        k.I("v_pk_add_f32", vr(H, 2), vr(H, 2), vr(H + 2, 2))
        for e in range(2):
            k.I("v_mov_b32", v(H + 2), v(H + e))
            k.I("v_permlane32_swap_b32", v(H + e), v(H + 2))
            k.I("v_add_f32", v(H + e), v(H + e), v(H + 2))
        k.I("v_mul_f32", v(nm[t]), hex(f32(-1.0 / 448)), v(H))
        k.I("v_mul_f32", v(H + 1), hex(f32(1.0 / 448)), v(H + 1))
        k.I("v_fma_f32", v(H + 1), f"-{v(nm[t])}", v(nm[t]), v(H + 1))
        k.I("v_max_f32", v(H + 1), 0, v(H + 1))
        k.I("v_add_f32", v(H + 1), hex(f32(1e-5)), v(H + 1))
        k.I("v_rsq_f32", v(rr[t]), v(H + 1))
        k.I("v_mul_f32", v(c0r[t]), hex(f32(GELU_C0)), v(rr[t]))
        k.I("v_mul_f32", v(c1r[t]), v(rr[t]), v(rr[t]))
        k.I("v_mul_f32", v(c1r[t]), v(c1r[t]), v(rr[t]))
        k.I("v_mul_f32", v(c1r[t]), hex(f32(GELU_C1)), v(c1r[t]))
    norh = k.newlabel("norh")
    k.I("s_or_b32", s(st0), s(sct), s(sch))
    k.I("s_cmp_lg_u32", s(st0), 0)
    k.I("s_cbranch_scc1", norh)
    k.I("v_lshlrev_b32", v(t0), 2, v(l31))
    for t in range(2):
        k.I("s_add_u32", s(st0), s(sst), t)
        k.I("s_lshl_b32", s(st0), s(st0), 7)
        k.I("s_add_u32", s(st0), s(st0), hex(RH_OFF))
        k.I("buffer_store_dword", v(rr[t]), v(t0), sr(sWS, 4), s(st0), mods="offen")
    k.L(norh)
    tp = [k.valloc(2) for _ in range(4)]
    def gelu_tile(A, z, t):
        for j in range(8):
            k.I("v_pk_fma_f32", vr(A + 2 * j, 2), vr(cw[z] + 2 * j, 2), vr(nm[t], 2), vr(A + 2 * j, 2), mods="op_sel_hi:[1,0,1]")
        for j0 in range(0, 8, 4):
            for j in range(j0, j0 + 4):
                T = tp[j - j0]
                k.I("v_pk_mul_f32", vr(T, 2), vr(A + 2 * j, 2), vr(A + 2 * j, 2))
            for j in range(j0, j0 + 4):
                T = tp[j - j0]
                k.I("v_pk_fma_f32", vr(T, 2), vr(T, 2), vr(c1r[t], 2), vr(c0r[t], 2), mods="op_sel_hi:[1,0,0]")
            for j in range(j0, j0 + 4):
                T = tp[j - j0]
                k.I("v_pk_mul_f32", vr(T, 2), vr(T, 2), vr(A + 2 * j, 2))
            for j in range(j0, j0 + 4):
                T = tp[j - j0]
                k.I("v_exp_f32", v(T), v(T)); k.I("v_exp_f32", v(T + 1), v(T + 1))
            for j in range(j0, j0 + 4):
                T = tp[j - j0]
                k.I("v_pk_add_f32", vr(T, 2), vr(T, 2), "1.0", mods="op_sel_hi:[1,0]")
            for j in range(j0, j0 + 4):
                T = tp[j - j0]
                k.I("v_rcp_f32", v(T), v(T)); k.I("v_rcp_f32", v(T + 1), v(T + 1))
            for j in range(j0, j0 + 4):
                T = tp[j - j0]
                k.I("v_pk_mul_f32", vr(A + 2 * j, 2), vr(A + 2 * j, 2), vr(T, 2))
    accs = [k.valloc(2) for _ in range(2)]; accq = [k.valloc(2) for _ in range(2)]
    for t in range(2):
        A = acc[0][t]
        gelu_tile(A, 0, t)
        for j in range(8):
            k.I("v_pk_mul_f32", vr(A + 2 * j, 2), vr(A + 2 * j, 2), vr(rr[t], 2), mods="op_sel_hi:[1,0]")
        k.I("v_pk_add_f32", vr(accs[t], 2), vr(A, 2), vr(A + 2, 2))
        k.I("v_pk_mul_f32", vr(accq[t], 2), vr(A, 2), vr(A, 2))
        k.I("v_pk_fma_f32", vr(accq[t], 2), vr(A + 2, 2), vr(A + 2, 2), vr(accq[t], 2))
        for j in range(2, 8):
            k.I("v_pk_add_f32", vr(accs[t], 2), vr(accs[t], 2), vr(A + 2 * j, 2))
            k.I("v_pk_fma_f32", vr(accq[t], 2), vr(A + 2 * j, 2), vr(A + 2 * j, 2), vr(accq[t], 2))
        k.I("v_add_f32", v(accs[t]), v(accs[t]), v(accs[t] + 1))
        k.I("v_add_f32", v(accs[t] + 1), v(accq[t]), v(accq[t] + 1))
        for e in range(2):
            k.I("v_mov_b32", v(accq[t]), v(accs[t] + e))
            k.I("v_permlane32_swap_b32", v(accs[t] + e), v(accq[t]))
            k.I("v_add_f32", v(accs[t] + e), v(accs[t] + e), v(accq[t]))
    vs = k.valloc()
    k.I("v_lshlrev_b32", v(vs), 3, v(l31))
    k.I("s_lshl_b32", s(st0), s(srh), 9)
    k.I("s_add_u32", s(st0), s(st0), STB)
    k.I("v_add_u32", v(vs), s(st0), v(vs))
    k.I("s_lshl_b32", s(st0), s(sch), 10)
    k.I("v_add_u32", v(t0), s(st0), v(vs))
    for t in range(2):
        k.I("ds_write_b64", v(t0), vr(accs[t], 2), mods=f"offset:{t * 256}")
    k.I("s_waitcnt", "lgkmcnt(0)")
    k.I("s_barrier")
    pub = k.newlabel("nopub")
    k.I("s_cmp_lg_u32", s(sch), 0)
    k.I("s_cbranch_scc1", pub)
    oth = k.valloc(4)
    for t in range(2):
        k.I("ds_read_b64", vr(oth + 2 * t, 2), v(vs), mods=f"offset:{1024 + t * 256}")
    k.I("s_waitcnt", "lgkmcnt(0)")
    for t in range(2):
        k.I("v_pk_add_f32", vr(oth + 2 * t, 2), vr(oth + 2 * t, 2), vr(accs[t], 2))
        k.I("v_mov_b32", v(t1), "0x7fc00000")
        k.I("v_cmp_eq_u32", "vcc", -1, v(oth + 2 * t + 1))
        k.I("v_cndmask_b32", v(oth + 2 * t + 1), v(oth + 2 * t + 1), v(t1), "vcc")
    ve = k.valloc()
    k.I("v_mul_u32_u24", v(ve), 112, v(l31))
    k.I("s_mul_i32", s(soff), s(sst), 32 * 112)
    k.I("s_lshl_b32", s(st0), s(sct), 3)
    k.I("s_add_u32", s(soff), s(soff), s(st0))
    k.I("s_add_u32", s(soff), s(soff), hex(EX_OFF))
    k.I("s_mov_b32", "exec_hi", 0)
    for t in range(2):
        k.I("buffer_store_dwordx2", vr(oth + 2 * t, 2), v(ve), sr(sWS, 4), s(soff), mods=f"offen offset:{t * 32 * 112} sc0 sc1")
    k.I("s_mov_b64", "exec", -1)
    k.L(pub)
    stp.stamp(3)
    v16 = k.valloc()
    k.I("v_lshlrev_b32", v(v16), 4, v(lane))
    P = [k.valloc(8, 4) for _ in range(2)]
    sft = k.salloc()
    k.I("s_lshl_b32", s(sft), s(sct), 1)
    k.I("s_add_u32", s(sft), s(sft), s(sch))
    for t in range(2):
        A = acc[1][t]
        gelu_tile(A, 1, t)
        for j in range(8): k.I("v_cvt_pk_bf16_f32", v(P[t] + j), v(A + 2 * j), v(A + 2 * j + 1))
        k.I("s_add_u32", s(st0), s(sst), t)
        k.I("s_mul_i32", s(soff), s(st0), 56 * 1024)
        k.I("s_lshl_b32", s(st0), s(sft), 11)
        k.I("s_add_u32", s(soff), s(soff), s(st0))
        k.I("s_add_u32", s(soff), s(soff), hex(Z1_OFF))
        k.I("buffer_store_dwordx4", vr(P[t], 4), v(v16), sr(sWS, 4), s(soff), mods="offen")
        k.I("buffer_store_dwordx4", vr(P[t] + 4, 4), v(v16), sr(sWS, 4), s(soff), mods="offen offset:1024")
    stp.stamp(4)
    ex = hs
    k.I("v_mul_u32_u24", v(vh), 112, v(l31))
    k.I("v_lshl_add_u32", v(vh), v(hh), 6, v(vh))
    k.I("s_mul_i32", s(soff), s(sst), 32 * 112)
    k.I("s_add_u32", s(soff), s(soff), hex(EX_OFF))
    scount = k.salloc(); sbad = k.salloc(2)
    k.I("s_mov_b32", s(scount), 0)
    poll = k.newlabel("poll"); pdone = k.newlabel("pdone")
    k.L(poll)
    for t in range(2):
        for i in range(4):
            k.I("buffer_load_dwordx4", vr(ex[t] + 4 * i, 4), v(vh), sr(sWS, 4), s(soff), mods=f"offen offset:{t * 32 * 112 + 16 * i} sc0 sc1")
    k.I("s_waitcnt", "vmcnt(0)")
    k.I("v_cmp_eq_u32", "vcc", 0, v(hh))
    for t in range(2):
        for i in range(12, 16): k.I("v_cndmask_b32", v(ex[t] + i), 0, v(ex[t] + i), "vcc")
    k.I("v_max_u32", v(t0), v(ex[0] + 1), v(ex[0] + 3))
    for t in range(2):
        for i in range(8):
            if t == 0 and i < 2: continue
            k.I("v_max_u32", v(t0), v(t0), v(ex[t] + 2 * i + 1))
    k.I("v_cmp_eq_u32", "vcc", -1, v(t0))
    k.I("s_add_u32", s(scount), s(scount), 1)
    k.I("s_cmp_eq_u64", "vcc", 0)
    k.I("s_cbranch_scc1", pdone)
    k.I("s_cmp_lt_u32", s(scount), 0x40000)
    k.I("s_cbranch_scc0", pdone)
    k.I("s_sleep", 1)
    k.I("s_branch", poll)
    k.L(pdone)
    sc_ = [k.valloc(2) for _ in range(2)]; zm = [k.valloc(2) for _ in range(2)]
    for t in range(2):
        H = ex[t]
        for i in range(4): k.I("v_pk_add_f32", vr(H + 2 * i, 2), vr(H + 2 * i, 2), vr(H + 8 + 2 * i, 2))
        for i in range(2): k.I("v_pk_add_f32", vr(H + 2 * i, 2), vr(H + 2 * i, 2), vr(H + 4 + 2 * i, 2))
        k.I("v_pk_add_f32", vr(H, 2), vr(H, 2), vr(H + 2, 2))
        for e in range(2):
            k.I("v_mov_b32", v(H + 2), v(H + e))
            k.I("v_permlane32_swap_b32", v(H + e), v(H + 2))
            k.I("v_add_f32", v(H + e), v(H + e), v(H + 2))
        k.I("v_mul_f32", v(zm[t]), hex(f32(-1.0 / 896)), v(H))
        k.I("v_mul_f32", v(H + 1), hex(f32(1.0 / 896)), v(H + 1))
        k.I("v_fma_f32", v(H + 1), f"-{v(zm[t])}", v(zm[t]), v(H + 1))
        k.I("v_max_f32", v(H + 1), 0, v(H + 1))
        k.I("v_add_f32", v(H + 1), hex(f32(1e-5)), v(H + 1))
        k.I("v_rsq_f32", v(sc_[t]), v(H + 1))
        k.I("v_mul_f32", v(zm[t]), v(zm[t]), v(sc_[t]))
    TW = 0
    vt = k.valloc(); vtr = k.valloc()
    k.I("v_lshlrev_b32", v(vt), 6, v(l31))
    k.I("v_lshl_add_u32", v(vt), v(hh), 3, v(vt))
    k.I("s_lshl_b32", s(st0), s(swave), 12)
    k.I("v_add_u32", v(vt), s(st0), v(vt))
    for t in range(2):
        A = acc[0][t]
        for j in range(8):
            k.I("v_pk_fma_f32", vr(A + 2 * j, 2), vr(A + 2 * j, 2), vr(sc_[t], 2), vr(zm[t], 2), mods="op_sel_hi:[1,0,0]")
        for j in range(8): k.I("v_cvt_pk_bf16_f32", v(P[t] + j), v(A + 2 * j), v(A + 2 * j + 1))
        for q in range(4):
            k.I("ds_write_b64", v(vt), vr(P[t] + 2 * q, 2), mods=f"offset:{t * 2048 + 16 * q}")
    k.I("v_bfe_u32", v(t0), v(lane), 2, 2)
    k.I("v_lshl_add_u32", v(t0), v(hh), 3, v(t0))
    k.I("v_lshlrev_b32", v(vtr), 6, v(t0))
    k.I("v_bfe_u32", v(t0), v(lane), 4, 1)
    k.I("v_lshl_add_u32", v(vtr), v(t0), 5, v(vtr))
    k.I("v_and_b32", v(t0), 3, v(lane))
    k.I("v_lshl_add_u32", v(vtr), v(t0), 3, v(vtr))
    k.I("s_lshl_b32", s(st0), s(swave), 12)
    k.I("v_add_u32", v(vtr), s(st0), v(vtr))
    k.I("s_waitcnt", "lgkmcnt(0)")
    Z = cw[0]
    for ks in range(4):
        for beta in range(2):
            k.I("ds_read_b64_tr_b16", vr(Z + 4 * ks + 2 * beta, 2), v(vtr), mods=f"offset:{(16 * ks + 4 * beta) * 64}")
    k.I("s_mul_i32", s(soff), s(sft), ZS)
    k.I("s_lshr_b32", s(st0), s(sst), 5)
    k.I("s_mul_i32", s(st0), s(st0), ZK)
    k.I("s_add_u32", s(soff), s(soff), s(st0))
    k.I("s_and_b32", s(st0), s(sst), 31)
    k.I("s_lshl_b32", s(st0), s(st0), 11)
    k.I("s_add_u32", s(soff), s(soff), s(st0))
    k.I("s_add_u32", s(soff), s(soff), hex(Z2_OFF))
    for ks in range(4):
        k.I("s_waitcnt", f"lgkmcnt({6 - 2 * ks})")
        k.I("buffer_store_dwordx4", vr(Z + 4 * ks, 4), v(v16), sr(sWS, 4), s(soff), mods=f"offen offset:{ks * 1024}")
    stp.stamp(5)
    k.L(R["done"])
    k.I("s_endpgm")
    k.lds = lds; k.threads = 512; k.grid = 224
    return k


def gen_k5(Stamper):
    k = Kernel("k5_sp_kernel")
    NS = 4; SLOT = 32768
    Z1REG = NS * SLOT
    lds = Z1REG + 32768
    R = common_start(k, 224)
    swave, st0, st1, soff, lane, t0, t1, t2 = (R[x] for x in ("swave", "st0", "st1", "soff", "lane", "t0", "t1", "t2"))
    pSp = k.salloc(2); pB = k.salloc(2); pWS = k.salloc(2)
    k.I("s_load_dwordx2", sr(pSp, 2), "s[0:1]", 40)
    k.I("s_load_dwordx2", sr(pB, 2), "s[0:1]", 48)
    k.I("s_load_dwordx2", sr(pWS, 2), "s[0:1]", 80)
    sWS = k.salloc(4); sSp = k.salloc(4); sB = k.salloc(4)
    sj = k.salloc(); sidx = k.salloc(); stt = k.salloc(); sft = k.salloc(); skap = k.salloc(); sw3 = k.salloc()
    if os.environ.get("K5MAP") == "linear":
        k.I("s_mul_i32", s(sj), "s2", 2341)
        k.I("s_lshr_b32", s(sj), s(sj), 16)
        k.I("s_mul_i32", s(sidx), s(sj), 28)
        k.I("s_sub_u32", s(sidx), "s2", s(sidx))
    else:
        k.I("s_and_b32", s(sj), "s2", 7)
        k.I("s_lshr_b32", s(sidx), "s2", 3)
    k.I("s_and_b32", s(sw3), s(swave), 3)
    k.I("s_and_b32", s(skap), s(sj), 1)
    k.I("s_mul_i32", s(st0), s(sidx), 37)
    k.I("s_lshr_b32", s(st0), s(st0), 8)
    k.I("s_mul_i32", s(st1), s(st0), 7)
    k.I("s_sub_u32", s(sft), s(sidx), s(st1))
    k.I("s_lshr_b32", s(stt), s(sj), 1)
    k.I("s_lshl_b32", s(stt), s(stt), 2)
    k.I("s_add_u32", s(stt), s(stt), s(st0))
    stp = Stamper(k, 4, sWS, swave)
    if os.environ.get("TICKWAVE", "0") != "0": stp.tick(0)
    k.I("s_waitcnt", "lgkmcnt(0)")
    srd(k, sWS, pWS, WS_SIZE)
    comp = k.newlabel("compute")
    k.I("s_cmp_lt_u32", s(swave), 4)
    k.I("s_cbranch_scc1", comp)
    vsave = k.vnext
    srd(k, sSp, pSp, 2048 * 4096)
    v16 = k.valloc(); vWo = k.valloc(2)
    k.I("v_lshlrev_b32", v(v16), 4, v(lane))
    k.I("v_lshrrev_b32", v(t0), 3, v(lane))
    k.I("v_lshlrev_b32", v(t0), 12, v(t0))
    k.I("v_lshrrev_b32", v(t1), 4, v(lane))
    k.I("v_and_b32", v(t2), 7, v(lane))
    k.I("v_xor_b32", v(t1), v(t1), v(t2))
    k.I("v_lshl_add_u32", v(vWo), v(t1), 4, v(t0))
    k.I("v_xor_b32", v(t1), 4, v(t1))
    k.I("v_lshl_add_u32", v(vWo + 1), v(t1), 4, v(t0))
    sZb = k.salloc(); sWb = k.salloc(); smZ = k.salloc(); smW = k.salloc()
    k.I("s_lshl_b32", s(st0), s(sft), 2)
    k.I("s_add_u32", s(st0), s(st0), s(sw3))
    k.I("s_mul_i32", s(sZb), s(st0), ZS)
    k.I("s_mul_i32", s(st1), s(skap), ZK)
    k.I("s_add_u32", s(sZb), s(sZb), s(st1))
    k.I("s_add_u32", s(sZb), s(sZb), hex(Z2_OFF))
    k.I("s_lshl_b32", s(smZ), s(sw3), 12)
    k.I("s_lshl_b32", s(st0), s(stt), 7)
    k.I("s_lshl_b32", s(st1), s(sw3), 5)
    k.I("s_add_u32", s(st0), s(st0), s(st1))
    k.I("s_lshl_b32", s(sWb), s(st0), 12)
    k.I("s_lshl_b32", s(st1), s(skap), 11)
    k.I("s_add_u32", s(sWb), s(sWb), s(st1))
    k.I("s_add_u32", s(smW), s(smZ), 16384)
    def issue(c):
        sl = (c % NS) * SLOT
        def zpart():
            for i in range(4):
                k.I("s_add_u32", s(soff), s(sZb), hex((4 * c + i) * 1024))
                k.I("s_add_u32", "m0", s(smZ), hex(sl + i * 1024))
                k.vm(("S", c), "buffer_load_dwordx4", v(v16), sr(sWS, 4), s(soff), mods="offen lds")
                if os.environ.get("DIAG5") and c == 0 and i in (0, 3):
                    k.I("s_waitcnt", "vmcnt(0)"); stp.tick(10 + (i > 0))
        def wpart():
            for i in range(4):
                k.I("s_add_u32", s(soff), s(sWb), hex(i * 8 * 4096 + c * 128))
                k.I("s_add_u32", "m0", s(smW), hex(sl + i * 1024))
                k.vm(("S", c), "buffer_load_dwordx4", v(vWo + (i & 1)), sr(sSp, 4), s(soff), mods="offen lds")
                if os.environ.get("DIAG5") and c == 0 and i in (0, 3):
                    k.I("s_waitcnt", "vmcnt(0)"); stp.tick(12 + (i > 0))
        if os.environ.get("DIAG5") == "2": wpart(); zpart()
        else: zpart(); wpart()
    NST = 16
    sZ1 = k.salloc()
    k.I("s_lshl_b32", s(st0), s(stt), 2)
    k.I("s_add_u32", s(st0), s(st0), s(sw3))
    k.I("s_mul_i32", s(sZ1), s(st0), 56 * 1024)
    k.I("s_lshl_b32", s(st1), s(sft), 13)
    k.I("s_add_u32", s(sZ1), s(sZ1), s(st1))
    k.I("s_add_u32", s(sZ1), s(sZ1), hex(Z1_OFF))
    smZ1 = k.salloc()
    k.I("s_lshl_b32", s(smZ1), s(sw3), 13)
    def issue_z1(i, tag):
        k.I("s_add_u32", s(soff), s(sZ1), hex(i * 1024))
        k.I("s_add_u32", "m0", s(smZ1), hex(Z1REG + i * 1024))
        k.vm(("S", tag), "buffer_load_dwordx4", v(v16), sr(sWS, 4), s(soff), mods="offen lds")
    LT = os.environ.get("TICKWAVE", "0") != "0"
    if LT: stp.tick(1)
    issue(0)
    if LT: stp.tick(2)
    issue(1)
    if LT: stp.tick(3)
    for c in range(NST):
        k.wait_vm(("S", c))
        if LT and c < 3: stp.tick(4 + 2 * c)
        k.I("s_barrier")
        if LT and c < 3: stp.tick(5 + 2 * c)
        if c == 0: issue(2); issue(3)
        elif c + 2 < NST and c >= 2:
            issue(c + 2)
            if 3 <= c < 11: issue_z1(c - 3, c + 2)
    vT = k.valloc()
    k.I("s_lshl_b32", s(st0), s(sidx), 8)
    k.I("v_subrev_u32", v(vT), 256, "v0")
    k.I("v_add_u32", v(vT), s(st0), v(vT))
    k.I("v_lshlrev_b32", v(vT), 7, v(vT))
    l2_prefetch(k, 56, 896 * 896, vT, 7168, st0)
    if LT: stp.dump_ticks()
    k.I("s_endpgm")
    k.L(comp)
    k.vnext = vsave; k.vmq = []; k.lgq = []
    srd(k, sB, pB, 4096)
    l31 = k.valloc(); hh = k.valloc()
    k.I("v_and_b32", v(l31), 31, v(lane))
    k.I("v_lshrrev_b32", v(hh), 5, v(lane))
    sfh = k.salloc(); sth = k.salloc(); sst = k.salloc(); sf32 = k.salloc()
    k.I("s_and_b32", s(sfh), s(swave), 1)
    k.I("s_lshr_b32", s(sth), s(swave), 1)
    k.I("s_lshl_b32", s(sst), s(stt), 2)
    k.I("s_lshl_b32", s(st0), s(sth), 1)
    k.I("s_add_u32", s(sst), s(sst), s(st0))
    k.I("s_lshl_b32", s(sf32), s(sft), 2)
    k.I("s_lshl_b32", s(st0), s(sfh), 1)
    k.I("s_add_u32", s(sf32), s(sf32), s(st0))
    if os.environ.get("PF3", "0") == "1":
        vT0 = k.valloc(); vd0 = k.valloc(2)
        k.I("s_lshl_b32", s(st0), s(sidx), 8)
        k.I("v_add_u32", v(vT0), s(st0), "v0")
        k.I("s_lshl_b32", s(st1), s(skap), 16)
        k.I("s_add_u32", s(st1), s(st1), hex(Z2_OFF))
        for i in range(2):
            k.I("v_add_u32", v(t0), 7168 * i, v(vT0))
            k.I("v_lshrrev_b32", v(t1), 9, v(t0))
            k.I("v_lshlrev_b32", v(t1), 17, v(t1))
            k.I("v_and_b32", v(t2), 511, v(t0))
            k.I("v_lshl_add_u32", v(t1), v(t2), 7, v(t1))
            k.vm("pf", "buffer_load_dword", v(vd0 + i), v(t1), sr(sWS, 4), s(st1), mods="offen")
    v16 = k.valloc()
    k.I("v_lshlrev_b32", v(v16), 4, v(lane))
    z1 = [[k.valloc(8, 4) for _ in range(2)] for _ in range(2)]
    rr = [k.valloc(2) for _ in range(2)]; bb = [k.valloc(2) for _ in range(2)]
    k.I("v_lshlrev_b32", v(t0), 2, v(l31))
    k.I("v_lshlrev_b32", v(t1), 1, v(l31))
    for ti in range(2):
        k.I("s_add_u32", s(st0), s(sst), ti)
        k.I("s_lshl_b32", s(soff), s(st0), 7)
        k.I("s_add_u32", s(soff), s(soff), hex(RH_OFF))
        k.vm("z1", "buffer_load_dword", v(rr[ti]), v(t0), sr(sWS, 4), s(soff), mods="offen")
        k.I("s_lshl_b32", s(soff), s(st0), 6)
        k.vm("z1", "buffer_load_ushort", v(bb[ti]), v(t1), sr(sB, 4), s(soff), mods="offen")
    if os.environ.get("PF2", "0") == "1":
        pp = k.salloc(2); sP = k.salloc(4); vT = k.valloc(); vd = k.valloc(2)
        k.I("s_load_dwordx2", sr(pp, 2), "s[0:1]", 56)
        k.I("s_lshl_b32", s(st0), s(sidx), 8)
        k.I("v_add_u32", v(vT), s(st0), "v0")
        k.I("v_lshlrev_b32", v(vT), 7, v(vT))
        k.I("s_waitcnt", "lgkmcnt(0)")
        srd(k, sP, pp, 896 * 896)
        k.vm("pf", "buffer_load_dword", v(vd), v(vT), sr(sP, 4), 0, mods="offen")
    code_prefetch(k, "k6_wout_kernel", sidx, st0)
    stp.stamp(0)
    aZ = k.valloc(); aW = k.valloc(4)
    k.I("s_lshl_b32", s(st0), s(sfh), 13)
    k.I("v_add_u32", v(aZ), s(st0), v(v16))
    k.I("v_bfe_u32", v(t0), v(l31), 1, 3)
    for j in range(4):
        k.I("v_add_u32", v(t1), 2 * j, v(hh))
        k.I("v_xor_b32", v(t1), v(t1), v(t0))
        k.I("v_lshlrev_b32", v(t1), 4, v(t1))
        k.I("v_lshl_add_u32", v(aW + j), v(l31), 7, v(t1))
        k.I("s_lshl_b32", s(st0), s(sth), 13)
        k.I("s_add_u32", s(st0), s(st0), 16384)
        k.I("v_add_u32", v(aW + j), s(st0), v(aW + j))
    aZ2 = k.valloc(); aW2 = k.valloc(4)
    k.I("v_add_u32", v(aZ2), 65536, v(aZ))
    for j in range(4): k.I("v_add_u32", v(aW2 + j), 65536, v(aW + j))
    acc = [[k.valloc(16, 4) for _ in range(2)] for _ in range(2)]
    NB = 3
    zf = [[k.valloc(4) for _ in range(2)] for _ in range(NB)]
    wf = [[k.valloc(4) for _ in range(2)] for _ in range(NB)]
    def rl(ks):
        c, j = ks // 4, ks % 4
        b = ks % NB
        sl = (c % NS) * SLOT
        hi = sl >= 65536
        so = sl - (65536 if hi else 0)
        out = []
        for fi in range(2):
            out.append(lambda fi=fi: k.lg(("f", ks), "ds_read_b128", vr(zf[b][fi], 4), v(aZ2 if hi else aZ), mods=f"offset:{so + fi * 4096 + j * 1024}"))
        for ti in range(2):
            out.append(lambda ti=ti: k.lg(("f", ks), "ds_read_b128", vr(wf[b][ti], 4), v((aW2 if hi else aW) + j), mods=f"offset:{so + ti * 4096}"))
        return out
    k.I("s_barrier")
    stp.stamp(1)
    for f in rl(0) + rl(1): f()
    NKS = NST * 4
    for ks in range(NKS):
        c, j = ks // 4, ks % 4
        b = ks % NB
        k.wait_lg(("f", ks))
        mf = []
        for fi in range(2):
            for ti in range(2):
                mf.append(lambda fi=fi, ti=ti: k.I("v_mfma_f32_32x32x16_bf16", vr(acc[fi][ti], 16), vr(zf[b][fi], 4), vr(wf[b][ti], 4), 0 if ks == 0 else vr(acc[fi][ti], 16)))
        fl = rl(ks + 2) if ks + 2 < NKS else []
        if j == 2 and ks + 2 < NKS:
            if not LT and c in (0, 13, 14): stp.tick({0: 0, 13: 1, 14: 2}[c])
            k.I("s_barrier")
        interleave(k, mf, fl)
    if not LT: stp.tick(3)
    stp.stamp(2)
    if not LT: stp.tick(4)
    if not LT: stp.tick(5)
    vz = k.valloc()
    k.I("s_lshl_b32", s(st0), s(sth), 14)
    k.I("s_lshl_b32", s(st1), s(sfh), 12)
    k.I("s_add_u32", s(st0), s(st0), s(st1))
    k.I("s_add_u32", s(st0), s(st0), Z1REG)
    k.I("v_add_u32", v(vz), s(st0), v(v16))
    for ti in range(2):
        for fi in range(2):
            for hf_ in range(2):
                k.lg(("z1", ti, fi), "ds_read_b128", vr(z1[fi][ti] + 4 * hf_, 4), v(vz), mods=f"offset:{ti * 8192 + fi * 2048 + hf_ * 1024}")
    k.wait_vm("z1")
    for ti in range(2):
        k.I("v_lshlrev_b32", v(bb[ti]), 16, v(bb[ti]))
        k.I("v_mul_f32", v(bb[ti]), v(bb[ti]), v(rr[ti]))
    k.I("s_cmp_eq_u32", s(skap), 0)
    k.I("s_cselect_b32", s(st0), "1.0", 0)
    for ti in range(2): k.I("v_mul_f32", v(bb[ti]), s(st0), v(bb[ti]))
    tp = [k.valloc(2) for _ in range(4)]
    P = [k.valloc(8, 4) for _ in range(2)]
    sU = k.salloc()
    k.I("s_mul_i32", s(sU), s(skap), U1_OFF - U0_OFF)
    k.I("s_add_u32", s(sU), s(sU), hex(U0_OFF))
    n = 0
    for ti in range(2):
        for fi in range(2):
            A = acc[fi][ti]; Zp = z1[fi][ti]; PP = P[n & 1]; n += 1
            for j in range(8):
                k.I("v_pk_fma_f32", vr(A + 2 * j, 2), vr(A + 2 * j, 2), vr(rr[ti], 2), vr(bb[ti], 2), mods="op_sel_hi:[1,0,0]")
            k.wait_lg(("z1", ti, fi))
            for j in range(8):
                T = tp[j % 4]
                k.I("v_lshlrev_b32", v(T), 16, v(Zp + j))
                k.I("v_and_b32", v(T + 1), "0xffff0000", v(Zp + j))
                k.I("v_pk_mul_f32", vr(A + 2 * j, 2), vr(A + 2 * j, 2), vr(T, 2))
            for j in range(8): k.I("v_cvt_pk_bf16_f32", v(PP + j), v(A + 2 * j), v(A + 2 * j + 1))
            k.I("s_add_u32", s(st0), s(sst), ti)
            k.I("s_mul_i32", s(soff), s(st0), 56 * 1024)
            k.I("s_add_u32", s(st0), s(sf32), fi)
            k.I("s_lshl_b32", s(st0), s(st0), 11)
            k.I("s_add_u32", s(soff), s(soff), s(st0))
            k.I("s_add_u32", s(soff), s(soff), s(sU))
            k.I("buffer_store_dwordx4", vr(PP, 4), v(v16), sr(sWS, 4), s(soff), mods="offen")
            k.I("buffer_store_dwordx4", vr(PP + 4, 4), v(v16), sr(sWS, 4), s(soff), mods="offen offset:1024")
            if not LT: stp.tick(5 + n)
    stp.stamp(3)
    if not LT: stp.tick(10)
    if not LT: stp.dump_ticks()
    k.L(R["done"])
    k.I("s_endpgm")
    k.lds = lds; k.threads = 512; k.grid = 224
    return k

def gen_k6(Stamper):
    k = Kernel("k6_wout_kernel")
    NS = 5; SLOT = 24576
    RED = 0
    lds = NS * SLOT
    R = common_start(k, 224)
    swave, st0, st1, soff, lane, t0, t1, t2 = (R[x] for x in ("swave", "st0", "st1", "soff", "lane", "t0", "t1", "t2"))
    pWo = k.salloc(2); pOut = k.salloc(2); pWS = k.salloc(2)
    k.I("s_load_dwordx2", sr(pWo, 2), "s[0:1]", 56)
    k.I("s_load_dwordx2", sr(pOut, 2), "s[0:1]", 64)
    k.I("s_load_dwordx2", sr(pWS, 2), "s[0:1]", 80)
    sWS = k.salloc(4); sWo = k.salloc(4); sOut = k.salloc(4)
    sj = k.salloc(); sidx = k.salloc(); srt = k.salloc(); snt = k.salloc(); sw3 = k.salloc()
    k.I("s_and_b32", s(sj), "s2", 7)
    k.I("s_lshr_b32", s(sidx), "s2", 3)
    k.I("s_and_b32", s(sw3), s(swave), 3)
    k.I("s_mul_i32", s(st0), s(sidx), 37)
    k.I("s_lshr_b32", s(st0), s(st0), 8)
    k.I("s_mul_i32", s(st1), s(st0), 7)
    k.I("s_sub_u32", s(snt), s(sidx), s(st1))
    k.I("s_lshl_b32", s(srt), s(sj), 2)
    k.I("s_add_u32", s(srt), s(srt), s(st0))
    stp = Stamper(k, 5, sWS, swave)
    k.I("s_waitcnt", "lgkmcnt(0)")
    srd(k, sWS, pWS, WS_SIZE)
    comp = k.newlabel("compute")
    k.I("s_cmp_lt_u32", s(swave), 4)
    k.I("s_cbranch_scc1", comp)
    vsave = k.vnext
    srd(k, sWo, pWo, 896 * 896)
    v16 = k.valloc(); vWo = k.valloc()
    k.I("v_lshlrev_b32", v(v16), 4, v(lane))
    k.I("v_lshrrev_b32", v(t0), 3, v(lane))
    k.I("v_mul_u32_u24", v(t0), 896, v(t0))
    k.I("v_bfe_u32", v(t1), v(lane), 4, 1)
    k.I("v_lshlrev_b32", v(t1), 2, v(t1))
    k.I("v_and_b32", v(t2), 7, v(lane))
    k.I("v_xor_b32", v(t1), v(t1), v(t2))
    k.I("v_lshl_add_u32", v(vWo), v(t1), 4, v(t0))
    sUb = k.salloc(); sWb = k.salloc(); smU = k.salloc(); smW = k.salloc()
    k.I("s_lshr_b32", s(st0), s(sw3), 1)
    k.I("s_lshl_b32", s(st1), s(srt), 1)
    k.I("s_add_u32", s(st1), s(st1), s(st0))
    k.I("s_mul_i32", s(sUb), s(st1), 56 * 1024)
    k.I("s_and_b32", s(st1), s(sw3), 1)
    k.I("s_mul_i32", s(smU), s(st1), U1_OFF - U0_OFF)
    k.I("s_add_u32", s(sUb), s(sUb), s(smU))
    k.I("s_add_u32", s(sUb), s(sUb), hex(U0_OFF))
    k.I("s_lshl_b32", s(smU), s(st1), 13)
    k.I("s_lshl_b32", s(st0), s(st0), 12)
    k.I("s_add_u32", s(smU), s(smU), s(st0))
    k.I("s_mul_i32", s(sWb), s(sw3), 16 * 896)
    k.I("s_lshl_b32", s(st1), s(snt), 7)
    k.I("s_add_u32", s(sWb), s(sWb), s(st1))
    k.I("s_lshl_b32", s(smW), s(sw3), 11)
    k.I("s_add_u32", s(smW), s(smW), 16384)
    def issue(c):
        sl = (c % NS) * SLOT
        for i in range(4):
            k.I("s_add_u32", s(soff), s(sUb), hex((4 * c + i) * 1024))
            k.I("s_add_u32", "m0", s(smU), hex(sl + i * 1024))
            k.vm(("S", c), "buffer_load_dwordx4", v(v16), sr(sWS, 4), s(soff), mods="offen lds")
        for i in range(2):
            k.I("s_add_u32", s(soff), s(sWb), hex((64 * c + 8 * i) * 896))
            k.I("s_add_u32", "m0", s(smW), hex(sl + i * 1024))
            k.vm(("S", c), "buffer_load_dwordx4", v(vWo), sr(sWo, 4), s(soff), mods="offen lds")
    NST = 14
    for c in range(3): issue(c)
    for c in range(NST):
        k.wait_vm(("S", c))
        k.I("s_barrier")
        if c == 0: issue(3); issue(4)
        elif c + 3 < NST and c >= 2: issue(c + 3)
    k.I("s_endpgm")
    k.L(comp)
    k.vnext = vsave; k.vmq = []; k.lgq = []
    srd(k, sOut, pOut, 2048 * 896)
    l31 = k.valloc(); hh = k.valloc()
    k.I("v_and_b32", v(l31), 31, v(lane))
    k.I("v_lshrrev_b32", v(hh), 5, v(lane))
    srh = k.salloc(); snh = k.salloc(); sst = k.salloc(); sntile = k.salloc()
    k.I("s_and_b32", s(srh), s(swave), 1)
    k.I("s_lshr_b32", s(snh), s(swave), 1)
    k.I("s_lshl_b32", s(sst), s(srt), 1)
    k.I("s_add_u32", s(sst), s(sst), s(srh))
    k.I("s_lshl_b32", s(sntile), s(snt), 1)
    k.I("s_add_u32", s(sntile), s(sntile), s(snh))
    if os.environ.get("PF3", "0") == "1":
        vT0 = k.valloc(); vd0 = k.valloc(2)
        k.I("s_lshl_b32", s(st0), s(sidx), 8)
        k.I("v_add_u32", v(vT0), s(st0), "v0")
        k.I("v_mov_b32", v(t0), hex(U1_OFF - U0_OFF - 3584 * 128))
        k.I("v_cmp_le_u32", "vcc", 3584, v(vT0))
        k.I("v_cndmask_b32", v(t0), 0, v(t0), "vcc")
        k.I("v_lshl_add_u32", v(t0), v(vT0), 7, v(t0))
        k.I("s_mul_i32", s(st1), s(sj), 8 * 56 * 1024)
        k.I("s_add_u32", s(st1), s(st1), hex(U0_OFF))
        k.vm("pf", "buffer_load_dword", v(vd0), v(t0), sr(sWS, 4), s(st1), mods="offen")
    v16 = k.valloc()
    k.I("v_lshlrev_b32", v(v16), 4, v(lane))
    hr = k.valloc(8, 4)
    k.I("s_mul_i32", s(soff), s(sst), 28 * 1024)
    k.I("s_lshl_b32", s(st0), s(sntile), 11)
    k.I("s_add_u32", s(soff), s(soff), s(st0))
    k.I("s_add_u32", s(soff), s(soff), hex(H_OFF))
    k.vm("h", "buffer_load_dwordx4", vr(hr, 4), v(v16), sr(sWS, 4), s(soff), mods="offen")
    k.vm("h", "buffer_load_dwordx4", vr(hr + 4, 4), v(v16), sr(sWS, 4), s(soff), mods="offen offset:1024")
    stp.stamp(0)
    aU = k.valloc(); vW = k.valloc()
    k.I("s_lshl_b32", s(st0), s(srh), 12)
    k.I("v_add_u32", v(aU), s(st0), v(v16))
    k.I("v_bfe_u32", v(t0), v(lane), 2, 2)
    k.I("v_lshl_add_u32", v(t0), v(hh), 2, v(t0))
    k.I("v_lshlrev_b32", v(vW), 7, v(t0))
    k.I("v_add_u32", v(vW), 16384, v(vW))
    k.I("v_bfe_u32", v(t0), v(lane), 4, 1)
    k.I("v_lshlrev_b32", v(t0), 1, v(t0))
    k.I("v_bfe_u32", v(t1), v(lane), 1, 1)
    k.I("v_add_u32", v(t0), v(t0), v(t1))
    k.I("s_lshl_b32", s(st0), s(snh), 2)
    k.I("v_add_u32", v(t0), s(st0), v(t0))
    k.I("v_bfe_u32", v(t1), v(lane), 3, 1)
    k.I("v_lshlrev_b32", v(t1), 2, v(t1))
    k.I("v_xor_b32", v(t0), v(t0), v(t1))
    k.I("v_lshl_add_u32", v(vW), v(t0), 4, v(vW))
    k.I("v_and_b32", v(t0), 1, v(lane))
    k.I("v_lshl_add_u32", v(vW), v(t0), 3, v(vW))
    aU2 = k.valloc(); vW2 = k.valloc()
    k.I("v_add_u32", v(aU2), 3 * SLOT, v(aU))
    k.I("v_add_u32", v(vW2), 3 * SLOT, v(vW))
    acc = k.valloc(16, 4)
    NB = 3
    uf = [[k.valloc(4) for _ in range(2)] for _ in range(NB)]; wf = [k.valloc(4) for _ in range(NB)]
    def rl(ks):
        c, j = ks // 4, ks % 4
        b = ks % NB
        sl = (c % NS)
        hi = sl >= 3
        so = (sl - (3 if hi else 0)) * SLOT
        out = []
        for ar_ in range(2):
            out.append(lambda ar_=ar_: k.lg(("f", ks), "ds_read_b128", vr(uf[b][ar_], 4), v(aU2 if hi else aU), mods=f"offset:{so + ar_ * 8192 + j * 1024}"))
        for beta in range(2):
            o = so + (16 * j + 8 * beta) * 128
            out.append(lambda o=o, beta=beta: k.lg(("f", ks), "ds_read_b64_tr_b16", vr(wf[b] + 2 * beta, 2), v(vW2 if hi else vW), mods=f"offset:{o}"))
        return out
    k.I("s_barrier")
    stp.stamp(1)
    for f in rl(0) + rl(1): f()
    NKS = NST * 4
    for ks in range(NKS):
        c, j = ks // 4, ks % 4
        b = ks % NB
        k.wait_lg(("f", ks))
        mf = [lambda ar_=ar_: k.I("v_mfma_f32_32x32x16_bf16", vr(acc, 16), vr(wf[b], 4), vr(uf[b][ar_], 4), 0 if (ks == 0 and ar_ == 0) else vr(acc, 16)) for ar_ in range(2)]
        fl = rl(ks + 2) if ks + 2 < NKS else []
        if j == 2 and ks + 2 < NKS: k.I("s_barrier")
        interleave(k, mf, fl)
    stp.stamp(2)
    k.wait_vm("h")
    tp = [k.valloc(2) for _ in range(4)]
    for j in range(8):
        T = tp[j % 4]
        k.I("v_lshlrev_b32", v(T), 16, v(hr + j))
        k.I("v_and_b32", v(T + 1), "0xffff0000", v(hr + j))
        k.I("v_pk_add_f32", vr(acc + 2 * j, 2), vr(acc + 2 * j, 2), vr(T, 2))
    P = k.valloc(8, 4)
    for j in range(8): k.I("v_cvt_pk_bf16_f32", v(P + j), v(acc + 2 * j), v(acc + 2 * j + 1))
    for kp in range(2):
        k.I("v_permlane32_swap_b32", v(P + 4 * kp), v(P + 4 * kp + 2))
        k.I("v_permlane32_swap_b32", v(P + 4 * kp + 1), v(P + 4 * kp + 3))
    vo = k.valloc()
    k.I("v_mul_u32_u24", v(vo), 896, v(l31))
    k.I("v_lshl_add_u32", v(vo), v(hh), 4, v(vo))
    k.I("s_mul_i32", s(soff), s(sst), 32 * 896)
    k.I("s_lshl_b32", s(st0), s(sntile), 6)
    k.I("s_add_u32", s(soff), s(soff), s(st0))
    for kp in range(2):
        k.I("buffer_store_dwordx4", vr(P + 4 * kp, 4), v(vo), sr(sOut, 4), s(soff), mods=f"offen offset:{32 * kp}")
    stp.stamp(3)
    if os.environ.get("SPIN"):
        ka, ja, kb, jb = [int(x) for x in os.environ["SPIN"].split(",")]
        sa_ = k.salloc(2); sb_ = k.salloc(2); sn_ = k.salloc(2); sq_ = k.salloc(2)
        lab = k.newlabel("spin"); out_ = k.newlabel("spun")
        k.I("s_or_b32", s(st0), "s2", s(swave))
        k.I("s_cmp_lg_u32", s(st0), 0)
        k.I("s_cbranch_scc1", out_)
        k.I("s_mov_b32", s(st0), hex(STAMP_OFF + ka * 256 * 64 + ja * 8))
        k.I("s_load_dwordx2", sr(sa_, 2), sr(pWS, 2), s(st0))
        k.I("s_mov_b32", s(st1), hex(STAMP_OFF + max(kb, 0) * 256 * 64 + jb * 8))
        if kb >= 0: k.I("s_load_dwordx2", sr(sb_, 2), sr(pWS, 2), s(st1))
        else: k.I("s_memrealtime", sr(sb_, 2))
        k.I("s_memrealtime", sr(sn_, 2))
        k.I("s_waitcnt", "lgkmcnt(0)")
        k.I("s_sub_u32", s(sa_), s(sb_), s(sa_))
        k.I("s_min_u32", s(sa_), s(sa_), 20000)
        k.I("s_add_u32", s(sn_), s(sn_), s(sa_))
        k.L(lab)
        k.I("s_memrealtime", sr(sq_, 2))
        k.I("s_waitcnt", "lgkmcnt(0)")
        k.I("s_sub_u32", s(sq_), s(sq_), s(sn_))
        k.I("s_cmp_lt_i32", s(sq_), 0)
        k.I("s_cbranch_scc1", lab)
        k.L(out_)
    k.L(R["done"])
    k.I("s_endpgm")
    k.lds = lds; k.threads = 512; k.grid = 224
    return k

def rest(Stamper):
    return [gen_k2(Stamper), gen_k3(Stamper), gen_k4(Stamper), gen_k5(Stamper), gen_k6(Stamper)]
```

```python
import os, struct, math
from asmlib import *
from layout import *
WS_SIZE = 0x10000000
def f32(x): return struct.unpack("<I", struct.pack("<f", x))[0]

def srd(k, dst, base, size):
    k.I("s_mov_b32", s(dst), s(base))
    k.I("s_and_b32", s(dst + 1), s(base + 1), "0xffff")
    k.I("s_mov_b32", s(dst + 2), hex(size) if isinstance(size, int) else size)
    k.I("s_mov_b32", s(dst + 3), "0x20000")

def gen_k2(Stamper):
    k = Kernel("k2_attn_kernel")
    k.snext = 4; k.vnext = 1
    KREG = 0; VREG = 24576
    lds = 49152
    done = k.newlabel("done")
    k.I("s_cmp_ge_u32", "s2", 256)
    k.I("s_cbranch_scc1", done)
    pWS = k.salloc(2)
    k.I("s_load_dwordx2", sr(pWS, 2), "s[0:1]", 80)
    sWS = k.salloc(4)
    swave = k.salloc(); srb = k.salloc(); shd = k.salloc(); st0 = k.salloc(); st1 = k.salloc(); soff = k.salloc()
    lane = k.valloc(); t0 = k.valloc(); t1 = k.valloc(); l15 = k.valloc(); gg = k.valloc()
    k.I("v_lshrrev_b32", v(t0), 6, "v0")
    k.I("v_and_b32", v(lane), 63, "v0")
    k.I("v_readfirstlane_b32", s(swave), v(t0))
    k.I("s_and_b32", s(st0), "s2", 7)
    k.I("s_lshr_b32", s(st1), "s2", 3)
    k.I("s_and_b32", s(shd), s(st1), 15)
    k.I("s_lshr_b32", s(st1), s(st1), 4)
    k.I("s_lshl_b32", s(srb), s(st0), 1)
    k.I("s_add_u32", s(srb), s(srb), s(st1))
    stp = Stamper(k, 1, sWS, swave)
    v16 = k.valloc()
    k.I("v_lshlrev_b32", v(v16), 4, v(lane))
    sb = k.salloc(); sm = k.salloc(); s16q = k.salloc()
    k.I("s_lshl_b32", s(sb), s(shd), 17)
    k.I("s_lshl_b32", s(st0), s(srb), 13)
    k.I("s_add_u32", s(sb), s(sb), s(st0))
    k.I("s_mul_i32", s(sm), s(swave), 3072)
    k.I("s_lshl_b32", s(s16q), s(srb), 3)
    k.I("s_add_u32", s(s16q), s(s16q), s(swave))
    k.I("s_waitcnt", "lgkmcnt(0)")
    srd(k, sWS, pWS, WS_SIZE)
    qf = k.valloc(4)
    k.I("s_lshl_b32", s(st0), s(swave), 10)
    k.I("s_add_u32", s(st0), s(st0), s(sb))
    k.I("s_add_u32", s(soff), s(st0), hex(Q_OFF))
    k.vm("q", "buffer_load_dwordx4", vr(qf, 4), v(v16), sr(sWS, 4), s(soff), mods="offen")
    k.I("s_add_u32", s(st1), s(sb), s(sm))
    for (reg, off) in ((KREG, K_OFF), (VREG, V_OFF)):
        for i in range(3):
            k.I("s_add_u32", s(soff), s(st1), hex(off - 16384 + i * 1024))
            k.I("s_add_u32", "m0", s(sm), hex(reg + i * 1024))
            k.vm("kv", "buffer_load_dwordx4", v(v16), sr(sWS, 4), s(soff), mods="offen lds")
    sidx2 = k.salloc()
    k.I("s_lshr_b32", s(sidx2), "s2", 3)
    code_prefetch(k, "k3_wo_kernel", sidx2, st0)
    stp.stamp(0)
    k.I("v_and_b32", v(l15), 15, v(lane))
    k.I("v_lshrrev_b32", v(gg), 4, v(lane))
    M = [k.salloc(2) for _ in range(4)]
    k.I("v_lshlrev_b32", v(t0), 2, v(gg))
    for i in range(4):
        k.I("v_add_u32", v(t1), i, v(t0))
        k.I("v_cmp_gt_u32", sr(M[i], 2), v(t1), v(l15))
    aK = k.valloc(); aV = k.valloc()
    k.I("s_lshl_b32", s(st0), s(swave), 10)
    k.I("v_add_u32", v(aK), s(st0), v(v16))
    k.I("v_lshlrev_b32", v(aV), 3, v(lane))
    k.I("s_add_u32", s(st0), s(st0), VREG)
    k.I("v_add_u32", v(aV), s(st0), v(aV))
    S = k.valloc(68, 4)
    kf = [k.valloc(4) for _ in range(6)]
    neg = k.valloc()
    k.I("v_mov_b32", v(neg), hex(f32(-1e30)))
    k.wait_vm(["q", "kv"])
    k.I("s_barrier")
    stp.stamp(1)
    NKF = 6
    for j in range(min(NKF, 17)):
        k.lg(("k", j), "ds_read_b128", vr(kf[j % NKF], 4), v(aK), mods=f"offset:{j * 1024}")
    for j in range(17):
        k.wait_lg(("k", j))
        k.I("v_mfma_f32_16x16x32_bf16", vr(S + 4 * j, 4), vr(kf[j % NKF], 4), vr(qf, 4), 0)
        if j + NKF < 17:
            k.lg(("k", j + NKF), "ds_read_b128", vr(kf[j % NKF], 4), v(aK), mods=f"offset:{(j + NKF) * 1024}")
    vT = k.valloc()
    k.I("s_lshl_b32", s(st0), s(sidx2), 9)
    k.I("v_add_u32", v(vT), s(st0), "v0")
    k.I("v_lshlrev_b32", v(vT), 7, v(vT))
    l2_prefetch(k, 16, 448 * 896, vT, 16384, st0)
    l2_prefetch(k, 32, 448 * 3584, vT, 16384, st0)
    k.lgq = []
    vf = k.valloc(9 * 2 * 4, 4)
    def vread(kp):
        for dt in range(2):
            for beta in range(2):
                tile = min(2 * kp + beta, 16)
                k.lg(("v", kp), "ds_read_b64", vr(vf + (kp * 2 + dt) * 4 + 2 * beta, 2), v(aV), mods=f"offset:{tile * 1024 + dt * 512}")
    for kp in range(3): vread(kp)
    for i in range(4):
        k.I("v_cndmask_b32", v(S + i), v(neg), v(S + i), sr(M[i], 2))
        k.I("v_cndmask_b32", v(S + 64 + i), v(S + 64 + i), v(neg), sr(M[i], 2))
    nofix = k.newlabel("nofix")
    k.I("s_cmp_ge_u32", s(s16q), 16)
    k.I("s_cbranch_scc1", nofix)
    k.I("s_sub_u32", s(st0), 16, s(s16q))
    for j in range(16):
        lab = k.newlabel("sk")
        k.I("s_cmp_le_u32", s(st0), j)
        k.I("s_cbranch_scc1", lab)
        for i in range(4): k.I("v_mov_b32", v(S + 4 * j + i), v(neg))
        k.L(lab)
    k.L(nofix)
    mx = k.valloc(4)
    for c in range(4):
        k.I("v_max3_f32", v(mx + c), v(S + c * 17), v(S + c * 17 + 1), v(S + c * 17 + 2))
    for r in range(7):
        for c in range(4):
            b = c * 17 + 3 + 2 * r
            k.I("v_max3_f32", v(mx + c), v(mx + c), v(S + b), v(S + b + 1))
    k.I("v_max3_f32", v(mx), v(mx), v(mx + 1), v(mx + 2))
    k.I("v_max_f32", v(mx), v(mx), v(mx + 3))
    for sw in ("v_permlane16_swap_b32", "v_permlane32_swap_b32"):
        k.I("v_mov_b32", v(mx + 1), v(mx))
        k.I(sw, v(mx), v(mx + 1))
        k.I("v_max_f32", v(mx), v(mx), v(mx + 1))
    cs = 28 ** -0.5 * math.log2(math.e)
    sc = k.salloc()
    k.I("s_mov_b32", s(sc), hex(f32(cs)))
    k.I("v_mul_f32", v(mx), hex(f32(-cs)), v(mx))
    for kp in range(3, 6): vread(kp)
    P = k.valloc(36, 4)
    k.I("v_mov_b32", v(P + 34), 0); k.I("v_mov_b32", v(P + 35), 0)
    O = [k.valloc(4), k.valloc(4)]
    def softmax_tile(j):
        for i in range(4): k.I("v_fma_f32", v(S + 4 * j + i), v(S + 4 * j + i), s(sc), v(mx))
        for i in range(4): k.I("v_exp_f32", v(S + 4 * j + i), v(S + 4 * j + i))
    def pack_tile(j):
        k.I("v_cvt_pk_bf16_f32", v(P + 2 * j), v(S + 4 * j), v(S + 4 * j + 1))
        k.I("v_cvt_pk_bf16_f32", v(P + 2 * j + 1), v(S + 4 * j + 2), v(S + 4 * j + 3))
    for kp in range(9):
        tiles = [2 * kp, 2 * kp + 1] if kp < 8 else [16]
        for j in tiles: softmax_tile(j)
        for j in tiles: pack_tile(j)
        if kp == 2:
            for q in range(6, 9): vread(q)
        if kp >= 1:
            q = kp - 1
            k.wait_lg(("v", q))
            for dt in range(2):
                k.I("v_mfma_f32_16x16x32_bf16", vr(O[dt], 4), vr(vf + (q * 2 + dt) * 4, 4), vr(P + 4 * q, 4), 0 if q == 0 else vr(O[dt], 4))
    k.wait_lg(("v", 8))
    for dt in range(2):
        k.I("v_mfma_f32_16x16x32_bf16", vr(O[dt], 4), vr(vf + (8 * 2 + dt) * 4, 4), vr(P + 32, 4), vr(O[dt], 4))
    la = k.valloc(); lb = k.valloc()
    k.I("v_mov_b32", v(la), v(O[1])); k.I("v_mov_b32", v(lb), v(O[1]))
    k.I("v_permlane32_swap_b32", v(la), v(lb))
    k.I("v_mov_b32", v(la), v(lb))
    k.I("v_permlane16_swap_b32", v(la), v(lb))
    k.I("v_rcp_f32", v(lb), v(lb))
    for dt in range(2):
        for i in range(4): k.I("v_mul_f32", v(O[dt] + i), v(O[dt] + i), v(lb))
    pk = k.valloc(4)
    for dt in range(2):
        k.I("v_cvt_pk_bf16_f32", v(pk + 2 * dt), v(O[dt]), v(O[dt] + 1))
        k.I("v_cvt_pk_bf16_f32", v(pk + 2 * dt + 1), v(O[dt] + 2), v(O[dt] + 3))
    k.I("v_cmp_gt_u32", "vcc", 3, v(gg))
    k.I("v_cndmask_b32", v(pk + 2), 0, v(pk + 2), "vcc")
    k.I("v_cndmask_b32", v(pk + 3), 0, v(pk + 3), "vcc")
    vo = k.valloc()
    k.I("s_and_b32", s(st0), s(swave), 1)
    k.I("s_lshl_b32", s(st0), s(st0), 8)
    k.I("v_lshlrev_b32", v(vo), 4, v(l15))
    k.I("v_add_u32", v(vo), s(st0), v(vo))
    k.I("v_lshrrev_b32", v(t0), 1, v(gg))
    k.I("v_lshl_add_u32", v(vo), v(t0), 9, v(vo))
    k.I("v_and_b32", v(t0), 1, v(gg))
    k.I("v_lshl_add_u32", v(vo), v(t0), 3, v(vo))
    k.I("s_lshl_b32", s(st0), s(srb), 2)
    k.I("s_lshr_b32", s(st1), s(swave), 1)
    k.I("s_add_u32", s(st0), s(st0), s(st1))
    k.I("s_lshl_b32", s(st0), s(st0), 15)
    k.I("s_lshl_b32", s(st1), s(shd), 11)
    k.I("s_add_u32", s(st0), s(st0), s(st1))
    k.I("s_add_u32", s(soff), s(st0), hex(O_OFF))
    for dt in range(2):
        k.I("buffer_store_dwordx2", vr(pk + 2 * dt, 2), v(vo), sr(sWS, 4), s(soff), mods=f"offen offset:{dt * 1024}")
    stp.stamp(2)
    k.L(done)
    k.I("s_endpgm")
    k.lds = lds; k.threads = 512; k.grid = 256
    return k


def code_prefetch(k, nxt, sidx, tmp_s, tid="v0"):
    if os.environ.get("PFC", "1") != "1": return
    pp = k.salloc(2); sP = k.salloc(4); vT = k.valloc(); vd = k.valloc()
    lab = k.newlabel("pc")
    k.I("s_getpc_b64", sr(pp, 2))
    k.L(lab)
    k.I("s_add_u32", s(pp), s(pp), f"{nxt}-{lab}")
    k.I("s_addc_u32", s(pp + 1), s(pp + 1), 0)
    srd(k, sP, pp, f"{nxt}_end-{nxt}")
    k.I("s_lshl_b32", s(tmp_s), s(sidx), 8)
    k.I("v_add_u32", v(vT), s(tmp_s), tid)
    k.I("v_lshlrev_b32", v(vT), 7, v(vT))
    k.vm("pfc", "buffer_load_dword", v(vd), v(vT), sr(sP, 4), 0, mods="offen")

def l2_prefetch(k, kernarg_off, nbytes, vT128, nthreads, tmp_s):
    if os.environ.get("PFT", "1") != "1": return
    pp = k.salloc(2); sP = k.salloc(4)
    k.I("s_load_dwordx2", sr(pp, 2), "s[0:1]", kernarg_off)
    k.I("s_waitcnt", "lgkmcnt(0)")
    srd(k, sP, pp, nbytes)
    n = -(-nbytes // (128 * nthreads))
    for i in range(n):
        vd = k.valloc()
        k.I("s_mov_b32", s(tmp_s), hex(i * nthreads * 128))
        k.vm("pft", "buffer_load_dword", v(vd), v(vT128), sr(sP, 4), s(tmp_s), mods="offen")

def mall_prefetch(k, kernarg_off, nbytes, first, per, nw, swave, lane, tmp_s, tv0, tv1, flag="PFM"):
    if os.environ.get(flag, "1") != "1": return
    pp = k.salloc(2); sP = k.salloc(4); vd = k.valloc()
    k.I("s_load_dwordx2", sr(pp, 2), "s[0:1]", kernarg_off)
    k.I("s_mul_i32", s(tmp_s), "s2", nw)
    k.I("s_add_u32", s(tmp_s), s(tmp_s), s(swave))
    k.I("s_mul_i32", s(tmp_s), s(tmp_s), per)
    k.I("s_add_u32", s(tmp_s), s(tmp_s), first)
    k.I("s_lshl_b32", s(tmp_s), s(tmp_s), 7)
    k.I("v_lshlrev_b32", v(tv0), 7, v(lane))
    k.I("v_mov_b32", v(tv1), "0x7fffff00")
    k.I("v_cmp_gt_u32", "vcc", per, v(lane))
    k.I("v_cndmask_b32", v(tv0), v(tv1), v(tv0), "vcc")
    k.I("s_waitcnt", "lgkmcnt(0)")
    k.lgq = []
    srd(k, sP, pp, nbytes)
    k.vm("pfm", "buffer_load_dword", v(vd), v(tv0), sr(sP, 4), s(tmp_s), mods="offen")

def common_start(k, nwg):
    k.snext = 4; k.vnext = 1
    done = k.newlabel("done")
    k.I("s_cmp_ge_u32", "s2", nwg)
    k.I("s_cbranch_scc1", done)
    R = dict(done=done)
    R["swave"] = k.salloc(); R["st0"] = k.salloc(); R["st1"] = k.salloc(); R["soff"] = k.salloc()
    R["lane"] = k.valloc(); R["t0"] = k.valloc(); R["t1"] = k.valloc(); R["t2"] = k.valloc()
    k.I("v_lshrrev_b32", v(R["t0"]), 6, "v0")
    k.I("v_and_b32", v(R["lane"]), 63, "v0")
    k.I("v_readfirstlane_b32", s(R["swave"]), v(R["t0"]))
    return R

def interleave(k, mf, fl):
    n = len(fl); m = len(mf)
    cuts = [(i * n + m - 1) // m for i in range(m + 1)]
    cuts[-1] = n
    for i in range(m):
        mf[i]()
        for f in fl[cuts[i]:cuts[i + 1]]: f()

def stats_from_packed(k, P, n, accs, accq, tmp):
    for j in range(n):
        t = tmp[j % len(tmp)]
        k.I("v_lshlrev_b32", v(t), 16, v(P + j))
        k.I("v_and_b32", v(t + 1), "0xffff0000", v(P + j))
        if j == 0:
            k.I("v_pk_mul_f32", vr(accq, 2), vr(t, 2), vr(t, 2))
            k.I("v_mov_b32", v(accs), v(t)); k.I("v_mov_b32", v(accs + 1), v(t + 1))
        else:
            k.I("v_pk_add_f32", vr(accs, 2), vr(accs, 2), vr(t, 2))
            k.I("v_pk_fma_f32", vr(accq, 2), vr(t, 2), vr(t, 2), vr(accq, 2))
    k.I("v_add_f32", v(accs), v(accs), v(accs + 1))
    k.I("v_add_f32", v(accq), v(accq), v(accq + 1))
    for r_ in (accs, accq):
        k.I("v_mov_b32", v(r_ + 1), v(r_))
        k.I("v_permlane32_swap_b32", v(r_), v(r_ + 1))
        k.I("v_add_f32", v(r_), v(r_), v(r_ + 1))

def gen_k3(Stamper):
    k = Kernel("k3_wo_kernel")
    WREG = 0; OREG = 58368
    lds = OREG + 65536
    R = common_start(k, 256)
    swave, st0, st1, soff, lane, t0, t1, t2 = (R[x] for x in ("swave", "st0", "st1", "soff", "lane", "t0", "t1", "t2"))
    pX = k.salloc(2); pWo = k.salloc(2); pWin = k.salloc(2); pWS = k.salloc(2)
    k.I("s_load_dwordx2", sr(pX, 2), "s[0:1]", 0)
    k.I("s_load_dwordx2", sr(pWo, 2), "s[0:1]", 16)
    k.I("s_load_dwordx2", sr(pWin, 2), "s[0:1]", 32)
    k.I("s_load_dwordx2", sr(pWS, 2), "s[0:1]", 80)
    sWS = k.salloc(4); sWo = k.salloc(4); sX = k.salloc(4)
    sj = k.salloc(); sidx = k.salloc(); srt = k.salloc(); snt = k.salloc(); sw3 = k.salloc()
    k.I("s_and_b32", s(sj), "s2", 7)
    k.I("s_lshr_b32", s(sidx), "s2", 3)
    k.I("s_and_b32", s(sw3), s(swave), 3)
    stp = Stamper(k, 2, sWS, swave)
    aux = k.newlabel("aux")
    k.I("s_cmp_ge_u32", s(sidx), 28)
    k.I("s_cbranch_scc1", aux)
    k.I("s_mul_i32", s(st0), s(sidx), 37)
    k.I("s_lshr_b32", s(st0), s(st0), 8)
    k.I("s_mul_i32", s(st1), s(st0), 7)
    k.I("s_sub_u32", s(snt), s(sidx), s(st1))
    k.I("s_lshl_b32", s(srt), s(sj), 2)
    k.I("s_add_u32", s(srt), s(srt), s(st0))
    k.I("s_waitcnt", "lgkmcnt(0)")
    srd(k, sWS, pWS, WS_SIZE)
    comp = k.newlabel("compute")
    k.I("s_cmp_lt_u32", s(swave), 4)
    k.I("s_cbranch_scc1", comp)
    vsave = k.vnext
    srd(k, sWo, pWo, 448 * 896)
    v16 = k.valloc(); vWo = k.valloc()
    k.I("v_lshlrev_b32", v(v16), 4, v(lane))
    k.I("v_lshrrev_b32", v(t0), 3, v(lane))
    k.I("v_mul_u32_u24", v(t0), 896, v(t0))
    k.I("v_bfe_u32", v(t1), v(lane), 4, 1)
    k.I("v_lshlrev_b32", v(t1), 2, v(t1))
    k.I("v_and_b32", v(t2), 7, v(lane))
    k.I("v_xor_b32", v(t1), v(t1), v(t2))
    k.I("v_lshl_add_u32", v(vWo), v(t1), 4, v(t0))
    sOb = k.salloc(); sWb = k.salloc(); smO = k.salloc(); smW = k.salloc()
    k.I("s_lshl_b32", s(sOb), s(srt), 16)
    k.I("s_lshl_b32", s(st0), s(sw3), 10)
    k.I("s_add_u32", s(sOb), s(sOb), s(st0))
    k.I("s_add_u32", s(sOb), s(sOb), hex(O_OFF))
    k.I("s_add_u32", s(smO), s(st0), OREG)
    k.I("s_mul_i32", s(sWb), s(sw3), 8 * 896)
    k.I("s_lshl_b32", s(st1), s(snt), 7)
    k.I("s_add_u32", s(sWb), s(sWb), s(st1))
    k.I("s_add_u32", s(smW), s(st0), WREG)
    def issue(c):
        for r2 in range(2):
            k.I("s_add_u32", s(soff), s(sOb), hex(r2 * 32768 + c * 4096))
            k.I("s_add_u32", "m0", s(smO), hex(r2 * 32768 + c * 4096))
            k.vm(("S", c), "buffer_load_dwordx4", v(v16), sr(sWS, 4), s(soff), mods="offen lds")
        for i in range(2):
            k.I("s_add_u32", s(soff), s(sWb), hex((56 * c + 32 * i) * 896))
            k.I("s_add_u32", "m0", s(smW), hex((56 * c + 32 * i) * 128))
            k.vm(("S", c), "buffer_load_dwordx4", v(vWo), sr(sWo, 4), s(soff), mods="offen lds")
    LA = 3
    for c in range(LA): issue(c)
    for c in range(8):
        k.wait_vm(("S", c))
        k.I("s_barrier")
        if c + LA < 8: issue(c + LA)
    k.I("s_endpgm")
    k.L(comp)
    k.vnext = vsave; k.vmq = []; k.lgq = []
    srd(k, sX, pX, 2048 * 896)
    l31 = k.valloc(); hh = k.valloc()
    k.I("v_and_b32", v(l31), 31, v(lane))
    k.I("v_lshrrev_b32", v(hh), 5, v(lane))
    srh = k.salloc(); snh = k.salloc(); sst = k.salloc(); sntile = k.salloc()
    k.I("s_and_b32", s(srh), s(swave), 1)
    k.I("s_lshr_b32", s(snh), s(swave), 1)
    k.I("s_lshl_b32", s(sst), s(srt), 1)
    k.I("s_add_u32", s(sst), s(sst), s(srh))
    k.I("s_lshl_b32", s(sntile), s(snt), 1)
    k.I("s_add_u32", s(sntile), s(sntile), s(snh))
    xr = k.valloc(8, 4); vx = k.valloc()
    k.I("v_mul_u32_u24", v(vx), 896, v(l31))
    k.I("v_lshl_add_u32", v(vx), v(hh), 3, v(vx))
    k.I("s_mul_i32", s(soff), s(sst), 32 * 896)
    k.I("s_lshl_b32", s(st0), s(sntile), 6)
    k.I("s_add_u32", s(soff), s(soff), s(st0))
    for q in range(4):
        k.vm("x", "buffer_load_dwordx2", vr(xr + 2 * q, 2), v(vx), sr(sX, 4), s(soff), mods=f"offen offset:{16 * q}")
    code_prefetch(k, "k4_win_kernel", sidx, st0)
    stp.stamp(0)
    aO = k.valloc(); vW = k.valloc()
    k.I("v_lshlrev_b32", v(aO), 4, v(lane))
    k.I("s_lshl_b32", s(st0), s(srh), 15)
    k.I("s_add_u32", s(st0), s(st0), OREG)
    k.I("v_add_u32", v(aO), s(st0), v(aO))
    k.I("v_bfe_u32", v(t0), v(lane), 2, 2)
    k.I("v_lshl_add_u32", v(t0), v(hh), 3, v(t0))
    k.I("v_lshlrev_b32", v(vW), 7, v(t0))
    k.I("v_bfe_u32", v(t0), v(lane), 4, 1)
    k.I("v_lshlrev_b32", v(t0), 1, v(t0))
    k.I("v_bfe_u32", v(t1), v(lane), 1, 1)
    k.I("v_add_u32", v(t0), v(t0), v(t1))
    k.I("s_lshl_b32", s(st0), s(snh), 2)
    k.I("v_add_u32", v(t0), s(st0), v(t0))
    k.I("v_bfe_u32", v(t1), v(lane), 3, 1)
    k.I("v_lshlrev_b32", v(t1), 2, v(t1))
    k.I("v_xor_b32", v(t0), v(t0), v(t1))
    k.I("v_lshl_add_u32", v(vW), v(t0), 4, v(vW))
    k.I("v_and_b32", v(t0), 1, v(lane))
    k.I("v_lshl_add_u32", v(vW), v(t0), 3, v(vW))
    acc = k.valloc(16, 4)
    NB = 3
    of = [k.valloc(4) for _ in range(NB)]; wf = [k.valloc(4) for _ in range(NB)]
    def rl(ks):
        b = ks % NB
        out = [lambda: k.lg(("f", ks), "ds_read_b128", vr(of[b], 4), v(aO), mods=f"offset:{ks * 1024}")]
        for beta in range(2):
            o = (28 * (ks >> 1) + 16 * (ks & 1) + 4 * beta) * 128
            out.append(lambda o=o, beta=beta: k.lg(("f", ks), "ds_read_b64_tr_b16", vr(wf[b] + 2 * beta, 2), v(vW), mods=f"offset:{o}"))
        return out
    k.I("s_barrier")
    stp.stamp(1)
    for f in rl(0) + rl(1): f()
    for ks in range(32):
        c, j = ks // 4, ks % 4
        b = ks % NB
        k.wait_lg(("f", ks))
        k.I("v_mfma_f32_32x32x16_bf16", vr(acc, 16), vr(wf[b], 4), vr(of[b], 4), 0 if ks == 0 else vr(acc, 16))
        if j == 1 and c < 7: k.I("s_barrier")
        if ks + 2 < 32 and not (j == 1 and False):
            pass
        nxt = ks + 2
        if nxt < 32:
            for f in rl(nxt): f()
    EOF_MARK = None
    stp.stamp(2)
    k.wait_vm("x")
    tmp = [k.valloc(2) for _ in range(4)]
    for q in range(4):
        for d in range(2):
            t = tmp[(2 * q + d) % 4]
            k.I("v_lshlrev_b32", v(t), 16, v(xr + 2 * q + d))
            k.I("v_and_b32", v(t + 1), "0xffff0000", v(xr + 2 * q + d))
            k.I("v_pk_add_f32", vr(acc + 4 * q + 2 * d, 2), vr(acc + 4 * q + 2 * d, 2), vr(t, 2))
    P = k.valloc(8, 4)
    for j in range(8): k.I("v_cvt_pk_bf16_f32", v(P + j), v(acc + 2 * j), v(acc + 2 * j + 1))
    v16 = k.valloc()
    k.I("v_lshlrev_b32", v(v16), 4, v(lane))
    k.I("s_mul_i32", s(soff), s(sst), 28 * 1024)
    k.I("s_lshl_b32", s(st0), s(sntile), 11)
    k.I("s_add_u32", s(soff), s(soff), s(st0))
    k.I("s_add_u32", s(soff), s(soff), hex(H_OFF))
    k.I("buffer_store_dwordx4", vr(P, 4), v(v16), sr(sWS, 4), s(soff), mods="offen")
    k.I("buffer_store_dwordx4", vr(P + 4, 4), v(v16), sr(sWS, 4), s(soff), mods="offen offset:1024")
    accs = k.valloc(2); accq = k.valloc(2)
    stats_from_packed(k, P, 8, accs, accq, tmp)
    k.I("v_mov_b32", v(accs + 1), v(accq))
    vh = k.valloc()
    k.I("v_mul_u32_u24", v(vh), 112, v(l31))
    k.I("s_mul_i32", s(soff), s(sst), 32 * 112)
    k.I("s_lshl_b32", s(st0), s(sntile), 3)
    k.I("s_add_u32", s(soff), s(soff), s(st0))
    k.I("s_add_u32", s(soff), s(soff), hex(HS_OFF))
    k.I("s_mov_b32", "exec_hi", 0)
    k.I("buffer_store_dwordx2", vr(accs, 2), v(vh), sr(sWS, 4), s(soff), mods="offen")
    stp.stamp(3)
    k.I("s_endpgm")
    k.L(aux)
    k.vnext = vsave; k.vmq = []; k.lgq = []
    sa = k.salloc(); sWin = k.salloc(4)
    k.I("s_sub_u32", s(sa), s(sidx), 28)
    k.I("s_lshl_b32", s(sa), s(sa), 3)
    k.I("s_add_u32", s(sa), s(sa), s(sj))
    k.I("s_waitcnt", "lgkmcnt(0)")
    srd(k, sWS, pWS, WS_SIZE)
    ff = k.valloc(4)
    for i in range(4): k.I("v_mov_b32", v(ff + i), -1)
    k.I("v_lshlrev_b32", v(t1), 4, "v0")
    k.I("v_mov_b32", v(t2), "0x7fffff00")
    k.I("v_cmp_gt_u32", "vcc", 448, "v0")
    k.I("v_cndmask_b32", v(t1), v(t2), v(t1), "vcc")
    k.I("s_mul_i32", s(st0), s(sa), 7168)
    k.I("s_add_u32", s(st0), s(st0), hex(EX_OFF))
    k.I("buffer_store_dwordx4", vr(ff, 4), v(t1), sr(sWS, 4), s(st0), mods="offen")
    k.I("s_cmp_ge_u32", s(sa), 28)
    k.I("s_cbranch_scc1", R["done"])
    srd(k, sWin, pWin, 448 * 3584)
    vg = k.valloc()
    k.I("v_lshrrev_b32", v(t0), 3, v(lane))
    k.I("v_mul_u32_u24", v(t0), 3584, v(t0))
    k.I("v_bfe_u32", v(t1), v(lane), 4, 1)
    k.I("v_lshlrev_b32", v(t1), 2, v(t1))
    k.I("v_and_b32", v(t2), 7, v(lane))
    k.I("v_xor_b32", v(t1), v(t1), v(t2))
    k.I("v_lshl_add_u32", v(vg), v(t1), 4, v(t0))
    sb = k.salloc(); sm = k.salloc()
    k.I("s_mul_i32", s(sb), s(swave), 56 * 3584)
    k.I("s_lshl_b32", s(st0), s(sa), 7)
    k.I("s_add_u32", s(sb), s(sb), s(st0))
    k.I("s_mul_i32", s(sm), s(swave), 56 * 128)
    for i in range(7):
        k.I("s_add_u32", s(soff), s(sb), hex(i * 8 * 3584))
        k.I("s_add_u32", "m0", s(sm), hex(i * 1024))
        k.I("buffer_load_dwordx4", v(vg), sr(sWin, 4), s(soff), mods="offen lds")
    z = k.valloc(); TB = 57344
    k.I("v_mov_b32", v(z), 0)
    k.I("v_lshlrev_b32", v(t0), 2, v(lane))
    k.I("v_add_u32", v(t0), TB, v(t0))
    k.I("ds_write_b32", v(t0), v(z))
    gg = k.valloc(); vB = k.valloc(); ones = k.valloc(4)
    k.I("v_lshrrev_b32", v(gg), 4, v(lane))
    k.I("v_bfe_u32", v(t0), v(lane), 2, 2)
    k.I("v_lshl_add_u32", v(t0), v(gg), 3, v(t0))
    k.I("v_lshlrev_b32", v(vB), 7, v(t0))
    k.I("v_bfe_u32", v(t0), v(lane), 1, 1)
    k.I("s_lshl_b32", s(st0), s(sw3), 1)
    k.I("v_add_u32", v(t0), s(st0), v(t0))
    k.I("v_bfe_u32", v(t1), v(lane), 3, 1)
    k.I("v_lshlrev_b32", v(t1), 2, v(t1))
    k.I("v_xor_b32", v(t0), v(t0), v(t1))
    k.I("v_lshl_add_u32", v(vB), v(t0), 4, v(vB))
    k.I("v_and_b32", v(t0), 1, v(lane))
    k.I("v_lshl_add_u32", v(vB), v(t0), 3, v(vB))
    k.I("s_lshr_b32", s(st0), s(swave), 2)
    k.I("s_mul_i32", s(st0), s(st0), 224 * 128)
    k.I("v_add_u32", v(vB), s(st0), v(vB))
    for i in range(4): k.I("v_mov_b32", v(ones + i), "0x3f803f80")
    k.I("s_waitcnt", "vmcnt(0) lgkmcnt(0)")
    k.I("s_barrier")
    bf = [k.valloc(4) for _ in range(7)]
    for kk in range(7):
        for beta in range(2):
            k.I("ds_read_b64_tr_b16", vr(bf[kk] + 2 * beta, 2), v(vB), mods=f"offset:{(32 * kk + 4 * beta) * 128}")
    ca = k.valloc(4)
    k.I("s_waitcnt", "lgkmcnt(0)")
    for kk in range(7):
        k.I("v_mfma_f32_16x16x32_bf16", vr(ca, 4), vr(ones, 4), vr(bf[kk], 4), 0 if kk == 0 else vr(ca, 4))
    k.I("v_and_b32", v(t0), 15, v(lane))
    k.I("s_lshl_b32", s(st0), s(sw3), 6)
    k.I("s_add_u32", s(st0), s(st0), TB)
    k.I("v_lshlrev_b32", v(t0), 2, v(t0))
    k.I("v_add_u32", v(t0), s(st0), v(t0))
    k.I("s_mov_b32", "exec_lo", "0xffff")
    k.I("s_mov_b32", "exec_hi", 0)
    k.I("ds_add_f32", v(t0), v(ca))
    k.I("s_mov_b64", "exec", -1)
    k.I("s_waitcnt", "lgkmcnt(0)")
    k.I("s_barrier")
    k.I("s_cmp_lg_u32", s(swave), 0)
    k.I("s_cbranch_scc1", R["done"])
    k.I("v_lshlrev_b32", v(t0), 2, v(lane))
    k.I("v_add_u32", v(t1), TB, v(t0))
    k.I("ds_read_b32", v(z), v(t1))
    k.I("s_lshl_b32", s(st0), s(sa), 8)
    k.I("s_add_u32", s(st0), s(st0), hex(CW_OFF))
    k.I("s_waitcnt", "lgkmcnt(0)")
    k.I("buffer_store_dword", v(z), v(t0), sr(sWS, 4), s(st0), mods="offen")
    k.L(R["done"])
    k.I("s_endpgm")
    k.lds = lds; k.threads = 512; k.grid = 256
    return k


GELU_C0 = -2.0 * math.sqrt(2.0 / math.pi) * math.log2(math.e)
GELU_C1 = GELU_C0 * 0.044715

def gen_k4(Stamper):
    k = Kernel("k4_win_kernel")
    NS = 4; SLOT = 32768; TRB = NS * SLOT
    STB = TRB
    lds = TRB + 4096
    R = common_start(k, 256)
    swave, st0, st1, soff, lane, t0, t1, t2 = (R[x] for x in ("swave", "st0", "st1", "soff", "lane", "t0", "t1", "t2"))
    pWin = k.salloc(2); pWS = k.salloc(2)
    k.I("s_load_dwordx2", sr(pWin, 2), "s[0:1]", 32)
    k.I("s_load_dwordx2", sr(pWS, 2), "s[0:1]", 80)
    sWS = k.salloc(4); sWin = k.salloc(4)
    sj = k.salloc(); sidx = k.salloc(); srb = k.salloc(); sct = k.salloc(); sw3 = k.salloc()
    k.I("s_and_b32", s(sj), "s2", 7)
    k.I("s_lshr_b32", s(sidx), "s2", 3)
    k.I("s_and_b32", s(sw3), s(swave), 3)
    pfrole = k.newlabel("pfrole")
    k.I("s_cmp_ge_u32", s(sidx), 28)
    k.I("s_cbranch_scc1", pfrole)
    k.I("s_cmp_ge_u32", s(sidx), 14)
    k.I("s_cselect_b32", s(st0), 1, 0)
    k.I("s_mul_i32", s(st1), s(st0), 14)
    k.I("s_sub_u32", s(sct), s(sidx), s(st1))
    k.I("s_lshl_b32", s(srb), s(sj), 1)
    k.I("s_add_u32", s(srb), s(srb), s(st0))
    stp = Stamper(k, 3, sWS, swave)
    k.I("s_waitcnt", "lgkmcnt(0)")
    srd(k, sWS, pWS, WS_SIZE)
    comp = k.newlabel("compute")
    k.I("s_cmp_lt_u32", s(swave), 4)
    k.I("s_cbranch_scc1", comp)
    vsave = k.vnext
    srd(k, sWin, pWin, 448 * 3584)
    v16 = k.valloc(); vWo = k.valloc()
    k.I("v_lshlrev_b32", v(v16), 4, v(lane))
    k.I("v_lshrrev_b32", v(t0), 4, v(lane))
    k.I("v_lshlrev_b32", v(t1), 2, v(t0))
    k.I("v_and_b32", v(t2), 15, v(lane))
    k.I("v_xor_b32", v(t1), v(t1), v(t2))
    k.I("v_mul_u32_u24", v(vWo), 3584, v(t0))
    k.I("v_and_b32", v(t2), 7, v(t1))
    k.I("v_lshl_add_u32", v(vWo), v(t2), 4, v(vWo))
    k.I("v_add_u32", v(t2), 1792, v(vWo))
    k.I("v_cmp_gt_u32", "vcc", 8, v(t1))
    k.I("v_cndmask_b32", v(vWo), v(vWo), v(t2), "vcc")
    sHb = k.salloc(); sWb = k.salloc(); smH = k.salloc(); smW = k.salloc()
    k.I("s_lshl_b32", s(st0), s(srb), 2)
    k.I("s_add_u32", s(st0), s(st0), s(sw3))
    k.I("s_mul_i32", s(sHb), s(st0), 28 * 1024)
    k.I("s_add_u32", s(sHb), s(sHb), hex(H_OFF))
    k.I("s_lshl_b32", s(smH), s(sw3), 12)
    k.I("s_mul_i32", s(sWb), s(sw3), 16 * 3584)
    k.I("s_lshl_b32", s(st1), s(sct), 7)
    k.I("s_add_u32", s(sWb), s(sWb), s(st1))
    k.I("s_add_u32", s(smW), s(smH), 16384)
    def issue(c):
        sl = (c % NS) * SLOT
        for i in range(4):
            k.I("s_add_u32", s(soff), s(sHb), hex((4 * c + i) * 1024))
            k.I("s_add_u32", "m0", s(smH), hex(sl + i * 1024))
            k.vm(("S", c), "buffer_load_dwordx4", v(v16), sr(sWS, 4), s(soff), mods="offen lds")
        for i in range(4):
            k.I("s_add_u32", s(soff), s(sWb), hex((64 * c + 4 * i) * 3584))
            k.I("s_add_u32", "m0", s(smW), hex(sl + i * 1024))
            k.vm(("S", c), "buffer_load_dwordx4", v(vWo), sr(sWin, 4), s(soff), mods="offen lds")
    issue(0); issue(1)
    for c in range(7):
        k.wait_vm(("S", c))
        k.I("s_barrier")
        if c == 0: issue(2); issue(3)
        elif c + 2 < 7 and c >= 2: issue(c + 2)
    k.I("s_barrier")
    k.I("s_endpgm")
    k.L(comp)
    k.vnext = vsave; k.vmq = []; k.lgq = []
    l31 = k.valloc(); hh = k.valloc()
    k.I("v_and_b32", v(l31), 31, v(lane))
    k.I("v_lshrrev_b32", v(hh), 5, v(lane))
    srh = k.salloc(); sch = k.salloc(); sst = k.salloc()
    k.I("s_and_b32", s(srh), s(swave), 1)
    k.I("s_lshr_b32", s(sch), s(swave), 1)
    k.I("s_lshl_b32", s(sst), s(srb), 2)
    k.I("s_lshl_b32", s(st0), s(srh), 1)
    k.I("s_add_u32", s(sst), s(sst), s(st0))
    hs = [k.valloc(16, 4) for _ in range(2)]
    vh = k.valloc()
    k.I("v_mul_u32_u24", v(vh), 112, v(l31))
    k.I("v_lshl_add_u32", v(vh), v(hh), 6, v(vh))
    for t in range(2):
        k.I("s_add_u32", s(st0), s(sst), t)
        k.I("s_mul_i32", s(soff), s(st0), 32 * 112)
        k.I("s_add_u32", s(soff), s(soff), hex(HS_OFF))
        for i in range(4):
            k.vm("hs", "buffer_load_dwordx4", vr(hs[t] + 4 * i, 4), v(vh), sr(sWS, 4), s(soff), mods=f"offen offset:{16 * i}")
    cw = [k.valloc(16, 4) for _ in range(2)]
    vc = k.valloc()
    k.I("v_lshlrev_b32", v(vc), 4, v(hh))
    k.I("s_lshl_b32", s(st0), s(sct), 8)
    k.I("s_lshl_b32", s(st1), s(sch), 7)
    k.I("s_add_u32", s(st0), s(st0), s(st1))
    for z in range(2):
        k.I("s_add_u32", s(soff), s(st0), hex(CW_OFF + (896 * 4 if z == 0 else 0)))
        for q in range(4):
            k.vm("cw", "buffer_load_dwordx4", vr(cw[z] + 4 * q, 4), v(vc), sr(sWS, 4), s(soff), mods=f"offen offset:{32 * q}")
    if os.environ.get("PF2", "0") == "1":
        pp = k.salloc(2); sP = k.salloc(4); vT = k.valloc(); vd = k.valloc(2)
        k.I("s_load_dwordx2", sr(pp, 2), "s[0:1]", 40)
        k.I("s_lshl_b32", s(st0), s(sidx), 8)
        k.I("v_add_u32", v(vT), s(st0), "v0")
        k.I("s_waitcnt", "lgkmcnt(0)")
        srd(k, sP, pp, 2048 * 4096)
        k.I("s_lshr_b32", s(st0), s(sj), 1)
        k.I("s_lshl_b32", s(st0), s(st0), 21)
        k.I("s_and_b32", s(st1), s(sj), 1)
        k.I("s_lshl_b32", s(st1), s(st1), 11)
        k.I("s_add_u32", s(st0), s(st0), s(st1))
        for i in range(2):
            k.I("v_add_u32", v(t0), 7168 * i, v(vT))
            k.I("v_lshrrev_b32", v(t1), 4, v(t0))
            k.I("v_lshlrev_b32", v(t1), 12, v(t1))
            k.I("v_and_b32", v(t2), 15, v(t0))
            k.I("v_lshl_add_u32", v(t1), v(t2), 7, v(t1))
            if i == 1:
                k.I("v_mov_b32", v(t2), "0x7fffff00")
                k.I("v_cmp_gt_u32", "vcc", 8192, v(t0))
                k.I("v_cndmask_b32", v(t1), v(t2), v(t1), "vcc")
            k.vm("pf", "buffer_load_dword", v(vd + i), v(t1), sr(sP, 4), s(st0), mods="offen")
    code_prefetch(k, "k5_sp_kernel", sidx, st0)
    stp.stamp(0)
    aH = k.valloc(); vW = [k.valloc(), k.valloc()]
    k.I("v_lshlrev_b32", v(aH), 4, v(lane))
    k.I("s_lshl_b32", s(st0), s(srh), 13)
    k.I("v_add_u32", v(aH), s(st0), v(aH))
    k.I("v_bfe_u32", v(t0), v(lane), 2, 2)
    k.I("v_lshl_add_u32", v(t1), v(hh), 2, v(t0))
    k.I("v_lshlrev_b32", v(t1), 8, v(t1))
    k.I("v_add_u32", v(t1), 16384, v(t1))
    k.I("v_bfe_u32", v(t2), v(lane), 4, 1)
    k.I("v_lshlrev_b32", v(t2), 1, v(t2))
    k.I("v_bfe_u32", v(vW[0]), v(lane), 1, 1)
    k.I("v_add_u32", v(t2), v(t2), v(vW[0]))
    k.I("s_lshl_b32", s(st0), s(sch), 2)
    k.I("v_add_u32", v(t2), s(st0), v(t2))
    k.I("v_lshlrev_b32", v(t0), 2, v(t0))
    k.I("v_xor_b32", v(vW[0]), v(t2), v(t0))
    k.I("v_add_u32", v(t2), 8, v(t2))
    k.I("v_xor_b32", v(vW[1]), v(t2), v(t0))
    k.I("v_and_b32", v(t2), 1, v(lane))
    for z in range(2):
        k.I("v_lshl_add_u32", v(vW[z]), v(vW[z]), 4, v(t1))
        k.I("v_lshl_add_u32", v(vW[z]), v(t2), 3, v(vW[z]))
    aH2 = k.valloc(); vW2 = [k.valloc(), k.valloc()]
    k.I("v_add_u32", v(aH2), 65536, v(aH))
    for z in range(2): k.I("v_add_u32", v(vW2[z]), 65536, v(vW[z]))
    acc = [[k.valloc(16, 4) for _ in range(2)] for _ in range(2)]
    vmark = k.vnext
    NB = 3
    hf = [[k.valloc(4) for _ in range(2)] for _ in range(NB)]
    wf = [[k.valloc(4) for _ in range(2)] for _ in range(NB)]
    def rl(ks):
        c, j = ks // 4, ks % 4
        b = ks % NB
        sl = (c % NS) * SLOT
        hi = sl >= 65536
        so = sl - (65536 if hi else 0)
        out = []
        for t in range(2):
            out.append(lambda t=t: k.lg(("f", ks), "ds_read_b128", vr(hf[b][t], 4), v(aH2 if hi else aH), mods=f"offset:{so + t * 4096 + j * 1024}"))
        for z in range(2):
            for beta in range(2):
                o = so + (16 * j + 8 * beta) * 256
                out.append(lambda o=o, z=z, beta=beta: k.lg(("f", ks), "ds_read_b64_tr_b16", vr(wf[b][z] + 2 * beta, 2), v((vW2 if hi else vW)[z]), mods=f"offset:{o}"))
        return out
    k.I("s_barrier")
    stp.stamp(1)
    for f in rl(0) + rl(1): f()
    for ks in range(28):
        c, j = ks // 4, ks % 4
        b = ks % NB
        k.wait_lg(("f", ks))
        mf = []
        for z in range(2):
            for t in range(2):
                mf.append(lambda z=z, t=t: k.I("v_mfma_f32_32x32x16_bf16", vr(acc[z][t], 16), vr(wf[b][z], 4), vr(hf[b][t], 4), 0 if ks == 0 else vr(acc[z][t], 16)))
        if j == 2 and c < 6:
            pass
        fl = rl(ks + 2) if ks + 2 < 28 else []
        if j == 2 and ks + 2 < 28:
            k.I("s_barrier")
        interleave(k, mf, fl)
    stp.stamp(2)
    k.vnext = vmark
    k.wait_vm(["hs", "cw"])
    rr = [k.valloc(2) for _ in range(2)]; nm = [k.valloc(2) for _ in range(2)]
    c0r = [k.valloc(2) for _ in range(2)]; c1r = [k.valloc(2) for _ in range(2)]
    k.I("v_cmp_eq_u32", "vcc", 0, v(hh))
    for t in range(2):
        H = hs[t]
        for i in range(12, 16): k.I("v_cndmask_b32", v(H + i), 0, v(H + i), "vcc")
        for i in range(4): k.I("v_pk_add_f32", vr(H + 2 * i, 2), vr(H + 2 * i, 2), vr(H + 8 + 2 * i, 2))
        for i in range(2): k.I("v_pk_add_f32", vr(H + 2 * i, 2), vr(H + 2 * i, 2), vr(H + 4 + 2 * i, 2))
        k.I("v_pk_add_f32", vr(H, 2), vr(H, 2), vr(H + 2, 2))
        for e in range(2):
            k.I("v_mov_b32", v(H + 2), v(H + e))
            k.I("v_permlane32_swap_b32", v(H + e), v(H + 2))
            k.I("v_add_f32", v(H + e), v(H + e), v(H + 2))
        k.I("v_mul_f32", v(nm[t]), hex(f32(-1.0 / 448)), v(H))
        k.I("v_mul_f32", v(H + 1), hex(f32(1.0 / 448)), v(H + 1))
        k.I("v_fma_f32", v(H + 1), f"-{v(nm[t])}", v(nm[t]), v(H + 1))
        k.I("v_max_f32", v(H + 1), 0, v(H + 1))
        k.I("v_add_f32", v(H + 1), hex(f32(1e-5)), v(H + 1))
        k.I("v_rsq_f32", v(rr[t]), v(H + 1))
        k.I("v_mul_f32", v(c0r[t]), hex(f32(GELU_C0)), v(rr[t]))
        k.I("v_mul_f32", v(c1r[t]), v(rr[t]), v(rr[t]))
        k.I("v_mul_f32", v(c1r[t]), v(c1r[t]), v(rr[t]))
        k.I("v_mul_f32", v(c1r[t]), hex(f32(GELU_C1)), v(c1r[t]))
    norh = k.newlabel("norh")
    k.I("s_or_b32", s(st0), s(sct), s(sch))
    k.I("s_cmp_lg_u32", s(st0), 0)
    k.I("s_cbranch_scc1", norh)
    k.I("v_lshlrev_b32", v(t0), 2, v(l31))
    for t in range(2):
        k.I("s_add_u32", s(st0), s(sst), t)
        k.I("s_lshl_b32", s(st0), s(st0), 7)
        k.I("s_add_u32", s(st0), s(st0), hex(RH_OFF))
        k.I("buffer_store_dword", v(rr[t]), v(t0), sr(sWS, 4), s(st0), mods="offen")
    k.L(norh)
    tp = [k.valloc(2) for _ in range(4)]
    def gelu_tile(A, z, t):
        for j in range(8):
            k.I("v_pk_fma_f32", vr(A + 2 * j, 2), vr(cw[z] + 2 * j, 2), vr(nm[t], 2), vr(A + 2 * j, 2), mods="op_sel_hi:[1,0,1]")
        for j0 in range(0, 8, 4):
            for j in range(j0, j0 + 4):
                T = tp[j - j0]
                k.I("v_pk_mul_f32", vr(T, 2), vr(A + 2 * j, 2), vr(A + 2 * j, 2))
            for j in range(j0, j0 + 4):
                T = tp[j - j0]
                k.I("v_pk_fma_f32", vr(T, 2), vr(T, 2), vr(c1r[t], 2), vr(c0r[t], 2), mods="op_sel_hi:[1,0,0]")
            for j in range(j0, j0 + 4):
                T = tp[j - j0]
                k.I("v_pk_mul_f32", vr(T, 2), vr(T, 2), vr(A + 2 * j, 2))
            for j in range(j0, j0 + 4):
                T = tp[j - j0]
                k.I("v_exp_f32", v(T), v(T)); k.I("v_exp_f32", v(T + 1), v(T + 1))
            for j in range(j0, j0 + 4):
                T = tp[j - j0]
                k.I("v_pk_add_f32", vr(T, 2), vr(T, 2), "1.0", mods="op_sel_hi:[1,0]")
            for j in range(j0, j0 + 4):
                T = tp[j - j0]
                k.I("v_rcp_f32", v(T), v(T)); k.I("v_rcp_f32", v(T + 1), v(T + 1))
            for j in range(j0, j0 + 4):
                T = tp[j - j0]
                k.I("v_pk_mul_f32", vr(A + 2 * j, 2), vr(A + 2 * j, 2), vr(T, 2))
    accs = [k.valloc(2) for _ in range(2)]; accq = [k.valloc(2) for _ in range(2)]
    for t in range(2):
        A = acc[0][t]
        gelu_tile(A, 0, t)
        for j in range(8):
            k.I("v_pk_mul_f32", vr(A + 2 * j, 2), vr(A + 2 * j, 2), vr(rr[t], 2), mods="op_sel_hi:[1,0]")
        k.I("v_pk_add_f32", vr(accs[t], 2), vr(A, 2), vr(A + 2, 2))
        k.I("v_pk_mul_f32", vr(accq[t], 2), vr(A, 2), vr(A, 2))
        k.I("v_pk_fma_f32", vr(accq[t], 2), vr(A + 2, 2), vr(A + 2, 2), vr(accq[t], 2))
        for j in range(2, 8):
            k.I("v_pk_add_f32", vr(accs[t], 2), vr(accs[t], 2), vr(A + 2 * j, 2))
            k.I("v_pk_fma_f32", vr(accq[t], 2), vr(A + 2 * j, 2), vr(A + 2 * j, 2), vr(accq[t], 2))
        k.I("v_add_f32", v(accs[t]), v(accs[t]), v(accs[t] + 1))
        k.I("v_add_f32", v(accs[t] + 1), v(accq[t]), v(accq[t] + 1))
        for e in range(2):
            k.I("v_mov_b32", v(accq[t]), v(accs[t] + e))
            k.I("v_permlane32_swap_b32", v(accs[t] + e), v(accq[t]))
            k.I("v_add_f32", v(accs[t] + e), v(accs[t] + e), v(accq[t]))
    vs = k.valloc()
    k.I("v_lshlrev_b32", v(vs), 3, v(l31))
    k.I("s_lshl_b32", s(st0), s(srh), 9)
    k.I("s_add_u32", s(st0), s(st0), STB)
    k.I("v_add_u32", v(vs), s(st0), v(vs))
    k.I("s_lshl_b32", s(st0), s(sch), 10)
    k.I("v_add_u32", v(t0), s(st0), v(vs))
    for t in range(2):
        k.I("ds_write_b64", v(t0), vr(accs[t], 2), mods=f"offset:{t * 256}")
    k.I("s_waitcnt", "lgkmcnt(0)")
    k.I("s_barrier")
    pub = k.newlabel("nopub")
    k.I("s_cmp_lg_u32", s(sch), 0)
    k.I("s_cbranch_scc1", pub)
    oth = k.valloc(4)
    for t in range(2):
        k.I("ds_read_b64", vr(oth + 2 * t, 2), v(vs), mods=f"offset:{1024 + t * 256}")
    k.I("s_waitcnt", "lgkmcnt(0)")
    for t in range(2):
        k.I("v_pk_add_f32", vr(oth + 2 * t, 2), vr(oth + 2 * t, 2), vr(accs[t], 2))
        k.I("v_mov_b32", v(t1), "0x7fc00000")
        k.I("v_cmp_eq_u32", "vcc", -1, v(oth + 2 * t + 1))
        k.I("v_cndmask_b32", v(oth + 2 * t + 1), v(oth + 2 * t + 1), v(t1), "vcc")
    ve = k.valloc()
    k.I("v_mul_u32_u24", v(ve), 112, v(l31))
    k.I("s_mul_i32", s(soff), s(sst), 32 * 112)
    k.I("s_lshl_b32", s(st0), s(sct), 3)
    k.I("s_add_u32", s(soff), s(soff), s(st0))
    k.I("s_add_u32", s(soff), s(soff), hex(EX_OFF))
    k.I("s_mov_b32", "exec_hi", 0)
    for t in range(2):
        k.I("buffer_store_dwordx2", vr(oth + 2 * t, 2), v(ve), sr(sWS, 4), s(soff), mods=f"offen offset:{t * 32 * 112} sc0 sc1")
    k.I("s_mov_b64", "exec", -1)
    k.L(pub)
    stp.stamp(3)
    v16 = k.valloc()
    k.I("v_lshlrev_b32", v(v16), 4, v(lane))
    P = [k.valloc(8, 4) for _ in range(2)]
    sft = k.salloc()
    k.I("s_lshl_b32", s(sft), s(sct), 1)
    k.I("s_add_u32", s(sft), s(sft), s(sch))
    for t in range(2):
        A = acc[1][t]
        gelu_tile(A, 1, t)
        for j in range(8): k.I("v_cvt_pk_bf16_f32", v(P[t] + j), v(A + 2 * j), v(A + 2 * j + 1))
        k.I("s_add_u32", s(st0), s(sst), t)
        k.I("s_mul_i32", s(soff), s(st0), 56 * 1024)
        k.I("s_lshl_b32", s(st0), s(sft), 11)
        k.I("s_add_u32", s(soff), s(soff), s(st0))
        k.I("s_add_u32", s(soff), s(soff), hex(Z1_OFF))
        k.I("buffer_store_dwordx4", vr(P[t], 4), v(v16), sr(sWS, 4), s(soff), mods="offen")
        k.I("buffer_store_dwordx4", vr(P[t] + 4, 4), v(v16), sr(sWS, 4), s(soff), mods="offen offset:1024")
    stp.stamp(4)
    ex = hs
    k.I("v_mul_u32_u24", v(vh), 112, v(l31))
    k.I("v_lshl_add_u32", v(vh), v(hh), 6, v(vh))
    k.I("s_mul_i32", s(soff), s(sst), 32 * 112)
    k.I("s_add_u32", s(soff), s(soff), hex(EX_OFF))
    scount = k.salloc(); sbad = k.salloc(2)
    k.I("s_mov_b32", s(scount), 0)
    poll = k.newlabel("poll"); pdone = k.newlabel("pdone")
    k.L(poll)
    for t in range(2):
        for i in range(4):
            k.I("buffer_load_dwordx4", vr(ex[t] + 4 * i, 4), v(vh), sr(sWS, 4), s(soff), mods=f"offen offset:{t * 32 * 112 + 16 * i} sc0 sc1")
    k.I("s_waitcnt", "vmcnt(0)")
    k.I("v_cmp_eq_u32", "vcc", 0, v(hh))
    for t in range(2):
        for i in range(12, 16): k.I("v_cndmask_b32", v(ex[t] + i), 0, v(ex[t] + i), "vcc")
    k.I("v_max_u32", v(t0), v(ex[0] + 1), v(ex[0] + 3))
    for t in range(2):
        for i in range(8):
            if t == 0 and i < 2: continue
            k.I("v_max_u32", v(t0), v(t0), v(ex[t] + 2 * i + 1))
    k.I("v_cmp_eq_u32", "vcc", -1, v(t0))
    k.I("s_add_u32", s(scount), s(scount), 1)
    k.I("s_cmp_eq_u64", "vcc", 0)
    k.I("s_cbranch_scc1", pdone)
    k.I("s_cmp_lt_u32", s(scount), 0x40000)
    k.I("s_cbranch_scc0", pdone)
    k.I("s_sleep", 1)
    k.I("s_branch", poll)
    k.L(pdone)
    sc_ = [k.valloc(2) for _ in range(2)]; zm = [k.valloc(2) for _ in range(2)]
    for t in range(2):
        H = ex[t]
        for i in range(4): k.I("v_pk_add_f32", vr(H + 2 * i, 2), vr(H + 2 * i, 2), vr(H + 8 + 2 * i, 2))
        for i in range(2): k.I("v_pk_add_f32", vr(H + 2 * i, 2), vr(H + 2 * i, 2), vr(H + 4 + 2 * i, 2))
        k.I("v_pk_add_f32", vr(H, 2), vr(H, 2), vr(H + 2, 2))
        for e in range(2):
            k.I("v_mov_b32", v(H + 2), v(H + e))
            k.I("v_permlane32_swap_b32", v(H + e), v(H + 2))
            k.I("v_add_f32", v(H + e), v(H + e), v(H + 2))
        k.I("v_mul_f32", v(zm[t]), hex(f32(-1.0 / 896)), v(H))
        k.I("v_mul_f32", v(H + 1), hex(f32(1.0 / 896)), v(H + 1))
        k.I("v_fma_f32", v(H + 1), f"-{v(zm[t])}", v(zm[t]), v(H + 1))
        k.I("v_max_f32", v(H + 1), 0, v(H + 1))
        k.I("v_add_f32", v(H + 1), hex(f32(1e-5)), v(H + 1))
        k.I("v_rsq_f32", v(sc_[t]), v(H + 1))
        k.I("v_mul_f32", v(zm[t]), v(zm[t]), v(sc_[t]))
    TW = 0
    vt = k.valloc(); vtr = k.valloc()
    k.I("v_lshlrev_b32", v(vt), 6, v(l31))
    k.I("v_lshl_add_u32", v(vt), v(hh), 3, v(vt))
    k.I("s_lshl_b32", s(st0), s(swave), 12)
    k.I("v_add_u32", v(vt), s(st0), v(vt))
    for t in range(2):
        A = acc[0][t]
        for j in range(8):
            k.I("v_pk_fma_f32", vr(A + 2 * j, 2), vr(A + 2 * j, 2), vr(sc_[t], 2), vr(zm[t], 2), mods="op_sel_hi:[1,0,0]")
        for j in range(8): k.I("v_cvt_pk_bf16_f32", v(P[t] + j), v(A + 2 * j), v(A + 2 * j + 1))
        for q in range(4):
            k.I("ds_write_b64", v(vt), vr(P[t] + 2 * q, 2), mods=f"offset:{t * 2048 + 16 * q}")
    k.I("v_bfe_u32", v(t0), v(lane), 2, 2)
    k.I("v_lshl_add_u32", v(t0), v(hh), 3, v(t0))
    k.I("v_lshlrev_b32", v(vtr), 6, v(t0))
    k.I("v_bfe_u32", v(t0), v(lane), 4, 1)
    k.I("v_lshl_add_u32", v(vtr), v(t0), 5, v(vtr))
    k.I("v_and_b32", v(t0), 3, v(lane))
    k.I("v_lshl_add_u32", v(vtr), v(t0), 3, v(vtr))
    k.I("s_lshl_b32", s(st0), s(swave), 12)
    k.I("v_add_u32", v(vtr), s(st0), v(vtr))
    k.I("s_waitcnt", "lgkmcnt(0)")
    Z = cw[0]
    for ks in range(4):
        for beta in range(2):
            k.I("ds_read_b64_tr_b16", vr(Z + 4 * ks + 2 * beta, 2), v(vtr), mods=f"offset:{(16 * ks + 4 * beta) * 64}")
    k.I("s_mul_i32", s(soff), s(sft), ZS)
    k.I("s_lshr_b32", s(st0), s(sst), 5)
    k.I("s_mul_i32", s(st0), s(st0), ZK)
    k.I("s_add_u32", s(soff), s(soff), s(st0))
    k.I("s_and_b32", s(st0), s(sst), 31)
    k.I("s_lshl_b32", s(st0), s(st0), 11)
    k.I("s_add_u32", s(soff), s(soff), s(st0))
    k.I("s_add_u32", s(soff), s(soff), hex(Z2_OFF))
    for ks in range(4):
        k.I("s_waitcnt", f"lgkmcnt({6 - 2 * ks})")
        k.I("buffer_store_dwordx4", vr(Z + 4 * ks, 4), v(v16), sr(sWS, 4), s(soff), mods=f"offen offset:{ks * 1024}")
    stp.stamp(5)
    k.I("s_endpgm")
    k.L(pfrole)
    pp = k.salloc(2); sP = k.salloc(4); vT = k.valloc(); vd = k.valloc(4)
    k.I("s_load_dwordx2", sr(pp, 2), "s[0:1]", 40)
    k.I("s_sub_u32", s(st0), s(sidx), 28)
    k.I("s_lshl_b32", s(st0), s(st0), 9)
    k.I("v_add_u32", v(vT), s(st0), "v0")
    k.I("s_lshr_b32", s(st0), s(sj), 1)
    k.I("s_lshl_b32", s(st0), s(st0), 21)
    k.I("s_and_b32", s(st1), s(sj), 1)
    k.I("s_lshl_b32", s(st1), s(st1), 11)
    k.I("s_add_u32", s(st0), s(st0), s(st1))
    k.I("s_waitcnt", "lgkmcnt(0)")
    srd(k, sP, pp, 2048 * 4096)
    for i in range(4):
        k.I("v_add_u32", v(t0), 2048 * i, v(vT))
        k.I("v_lshrrev_b32", v(t1), 4, v(t0))
        k.I("v_lshlrev_b32", v(t1), 12, v(t1))
        k.I("v_and_b32", v(t2), 15, v(t0))
        k.I("v_lshl_add_u32", v(t1), v(t2), 7, v(t1))
        k.I("buffer_load_dword", v(vd + i), v(t1), sr(sP, 4), s(st0), mods="offen")
    k.L(R["done"])
    k.I("s_endpgm")
    k.lds = lds; k.threads = 512; k.grid = 256
    return k


def gen_k5(Stamper):
    k = Kernel("k5_sp_kernel")
    NS = 4; SLOT = 32768
    Z1REG = NS * SLOT
    lds = Z1REG + 32768
    R = common_start(k, 256)
    swave, st0, st1, soff, lane, t0, t1, t2 = (R[x] for x in ("swave", "st0", "st1", "soff", "lane", "t0", "t1", "t2"))
    pSp = k.salloc(2); pB = k.salloc(2); pWS = k.salloc(2)
    k.I("s_load_dwordx2", sr(pSp, 2), "s[0:1]", 40)
    k.I("s_load_dwordx2", sr(pB, 2), "s[0:1]", 48)
    k.I("s_load_dwordx2", sr(pWS, 2), "s[0:1]", 80)
    sWS = k.salloc(4); sSp = k.salloc(4); sB = k.salloc(4)
    sj = k.salloc(); sidx = k.salloc(); stt = k.salloc(); sft = k.salloc(); skap = k.salloc(); sw3 = k.salloc()
    if os.environ.get("K5MAP") == "linear":
        k.I("s_mul_i32", s(sj), "s2", 2341)
        k.I("s_lshr_b32", s(sj), s(sj), 16)
        k.I("s_mul_i32", s(sidx), s(sj), 28)
        k.I("s_sub_u32", s(sidx), "s2", s(sidx))
    else:
        k.I("s_and_b32", s(sj), "s2", 7)
        k.I("s_lshr_b32", s(sidx), "s2", 3)
    pfrole = k.newlabel("pfrole")
    k.I("s_cmp_ge_u32", s(sidx), 28)
    k.I("s_cbranch_scc1", pfrole)
    k.I("s_and_b32", s(sw3), s(swave), 3)
    k.I("s_and_b32", s(skap), s(sj), 1)
    k.I("s_mul_i32", s(st0), s(sidx), 37)
    k.I("s_lshr_b32", s(st0), s(st0), 8)
    k.I("s_mul_i32", s(st1), s(st0), 7)
    k.I("s_sub_u32", s(sft), s(sidx), s(st1))
    k.I("s_lshr_b32", s(stt), s(sj), 1)
    k.I("s_lshl_b32", s(stt), s(stt), 2)
    k.I("s_add_u32", s(stt), s(stt), s(st0))
    stp = Stamper(k, 4, sWS, swave)
    if os.environ.get("TICKWAVE", "0") != "0": stp.tick(0)
    k.I("s_waitcnt", "lgkmcnt(0)")
    srd(k, sWS, pWS, WS_SIZE)
    comp = k.newlabel("compute")
    k.I("s_cmp_lt_u32", s(swave), 4)
    k.I("s_cbranch_scc1", comp)
    vsave = k.vnext
    srd(k, sSp, pSp, 2048 * 4096)
    v16 = k.valloc(); vWo = k.valloc(2)
    k.I("v_lshlrev_b32", v(v16), 4, v(lane))
    k.I("v_lshrrev_b32", v(t0), 3, v(lane))
    k.I("v_lshlrev_b32", v(t0), 12, v(t0))
    k.I("v_lshrrev_b32", v(t1), 4, v(lane))
    k.I("v_and_b32", v(t2), 7, v(lane))
    k.I("v_xor_b32", v(t1), v(t1), v(t2))
    k.I("v_lshl_add_u32", v(vWo), v(t1), 4, v(t0))
    k.I("v_xor_b32", v(t1), 4, v(t1))
    k.I("v_lshl_add_u32", v(vWo + 1), v(t1), 4, v(t0))
    sZb = k.salloc(); sWb = k.salloc(); smZ = k.salloc(); smW = k.salloc()
    k.I("s_lshl_b32", s(st0), s(sft), 2)
    k.I("s_add_u32", s(st0), s(st0), s(sw3))
    k.I("s_mul_i32", s(sZb), s(st0), ZS)
    k.I("s_mul_i32", s(st1), s(skap), ZK)
    k.I("s_add_u32", s(sZb), s(sZb), s(st1))
    k.I("s_add_u32", s(sZb), s(sZb), hex(Z2_OFF))
    k.I("s_lshl_b32", s(smZ), s(sw3), 12)
    k.I("s_lshl_b32", s(st0), s(stt), 7)
    k.I("s_lshl_b32", s(st1), s(sw3), 5)
    k.I("s_add_u32", s(st0), s(st0), s(st1))
    k.I("s_lshl_b32", s(sWb), s(st0), 12)
    k.I("s_lshl_b32", s(st1), s(skap), 11)
    k.I("s_add_u32", s(sWb), s(sWb), s(st1))
    k.I("s_add_u32", s(smW), s(smZ), 16384)
    def issue(c):
        sl = (c % NS) * SLOT
        def zpart():
            for i in range(4):
                k.I("s_add_u32", s(soff), s(sZb), hex((4 * c + i) * 1024))
                k.I("s_add_u32", "m0", s(smZ), hex(sl + i * 1024))
                k.vm(("S", c), "buffer_load_dwordx4", v(v16), sr(sWS, 4), s(soff), mods="offen lds")
                if os.environ.get("DIAG5") and c == 0 and i in (0, 3):
                    k.I("s_waitcnt", "vmcnt(0)"); stp.tick(10 + (i > 0))
        def wpart():
            for i in range(4):
                k.I("s_add_u32", s(soff), s(sWb), hex(i * 8 * 4096 + c * 128))
                k.I("s_add_u32", "m0", s(smW), hex(sl + i * 1024))
                k.vm(("S", c), "buffer_load_dwordx4", v(vWo + (i & 1)), sr(sSp, 4), s(soff), mods="offen lds")
                if os.environ.get("DIAG5") and c == 0 and i in (0, 3):
                    k.I("s_waitcnt", "vmcnt(0)"); stp.tick(12 + (i > 0))
        if os.environ.get("DIAG5") == "2": wpart(); zpart()
        else: zpart(); wpart()
    NST = 16
    sZ1 = k.salloc()
    k.I("s_lshl_b32", s(st0), s(stt), 2)
    k.I("s_add_u32", s(st0), s(st0), s(sw3))
    k.I("s_mul_i32", s(sZ1), s(st0), 56 * 1024)
    k.I("s_lshl_b32", s(st1), s(sft), 13)
    k.I("s_add_u32", s(sZ1), s(sZ1), s(st1))
    k.I("s_add_u32", s(sZ1), s(sZ1), hex(Z1_OFF))
    smZ1 = k.salloc()
    k.I("s_lshl_b32", s(smZ1), s(sw3), 13)
    def issue_z1(i, tag):
        k.I("s_add_u32", s(soff), s(sZ1), hex(i * 1024))
        k.I("s_add_u32", "m0", s(smZ1), hex(Z1REG + i * 1024))
        k.vm(("S", tag), "buffer_load_dwordx4", v(v16), sr(sWS, 4), s(soff), mods="offen lds")
    LT = os.environ.get("TICKWAVE", "0") != "0"
    if LT: stp.tick(1)
    issue(0)
    if LT: stp.tick(2)
    issue(1)
    if LT: stp.tick(3)
    for c in range(NST):
        k.wait_vm(("S", c))
        if LT and c < 3: stp.tick(4 + 2 * c)
        k.I("s_barrier")
        if LT and c < 3: stp.tick(5 + 2 * c)
        if c == 0: issue(2); issue(3)
        elif c + 2 < NST and c >= 2:
            issue(c + 2)
            if 3 <= c < 11: issue_z1(c - 3, c + 2)
    vT = k.valloc()
    k.I("s_lshl_b32", s(st0), s(sidx), 8)
    k.I("v_subrev_u32", v(vT), 256, "v0")
    k.I("v_add_u32", v(vT), s(st0), v(vT))
    k.I("v_lshlrev_b32", v(vT), 7, v(vT))
    if LT: stp.dump_ticks()
    k.I("s_endpgm")
    k.L(comp)
    k.vnext = vsave; k.vmq = []; k.lgq = []
    srd(k, sB, pB, 4096)
    l31 = k.valloc(); hh = k.valloc()
    k.I("v_and_b32", v(l31), 31, v(lane))
    k.I("v_lshrrev_b32", v(hh), 5, v(lane))
    sfh = k.salloc(); sth = k.salloc(); sst = k.salloc(); sf32 = k.salloc()
    k.I("s_and_b32", s(sfh), s(swave), 1)
    k.I("s_lshr_b32", s(sth), s(swave), 1)
    k.I("s_lshl_b32", s(sst), s(stt), 2)
    k.I("s_lshl_b32", s(st0), s(sth), 1)
    k.I("s_add_u32", s(sst), s(sst), s(st0))
    k.I("s_lshl_b32", s(sf32), s(sft), 2)
    k.I("s_lshl_b32", s(st0), s(sfh), 1)
    k.I("s_add_u32", s(sf32), s(sf32), s(st0))
    if os.environ.get("PF3", "0") == "1":
        vT0 = k.valloc(); vd0 = k.valloc(2)
        k.I("s_lshl_b32", s(st0), s(sidx), 8)
        k.I("v_add_u32", v(vT0), s(st0), "v0")
        k.I("s_lshl_b32", s(st1), s(skap), 16)
        k.I("s_add_u32", s(st1), s(st1), hex(Z2_OFF))
        for i in range(2):
            k.I("v_add_u32", v(t0), 7168 * i, v(vT0))
            k.I("v_lshrrev_b32", v(t1), 9, v(t0))
            k.I("v_lshlrev_b32", v(t1), 17, v(t1))
            k.I("v_and_b32", v(t2), 511, v(t0))
            k.I("v_lshl_add_u32", v(t1), v(t2), 7, v(t1))
            k.vm("pf", "buffer_load_dword", v(vd0 + i), v(t1), sr(sWS, 4), s(st1), mods="offen")
    v16 = k.valloc()
    k.I("v_lshlrev_b32", v(v16), 4, v(lane))
    z1 = [[k.valloc(8, 4) for _ in range(2)] for _ in range(2)]
    rr = [k.valloc(2) for _ in range(2)]; bb = [k.valloc(2) for _ in range(2)]
    k.I("v_lshlrev_b32", v(t0), 2, v(l31))
    k.I("v_lshlrev_b32", v(t1), 1, v(l31))
    for ti in range(2):
        k.I("s_add_u32", s(st0), s(sst), ti)
        k.I("s_lshl_b32", s(soff), s(st0), 7)
        k.I("s_add_u32", s(soff), s(soff), hex(RH_OFF))
        k.vm("z1", "buffer_load_dword", v(rr[ti]), v(t0), sr(sWS, 4), s(soff), mods="offen")
        k.I("s_lshl_b32", s(soff), s(st0), 6)
        k.vm("z1", "buffer_load_ushort", v(bb[ti]), v(t1), sr(sB, 4), s(soff), mods="offen")
    if os.environ.get("PF2", "0") == "1":
        pp = k.salloc(2); sP = k.salloc(4); vT = k.valloc(); vd = k.valloc(2)
        k.I("s_load_dwordx2", sr(pp, 2), "s[0:1]", 56)
        k.I("s_lshl_b32", s(st0), s(sidx), 8)
        k.I("v_add_u32", v(vT), s(st0), "v0")
        k.I("v_lshlrev_b32", v(vT), 7, v(vT))
        k.I("s_waitcnt", "lgkmcnt(0)")
        srd(k, sP, pp, 896 * 896)
        k.vm("pf", "buffer_load_dword", v(vd), v(vT), sr(sP, 4), 0, mods="offen")
    code_prefetch(k, "k6_wout_kernel", sidx, st0)
    stp.stamp(0)
    aZ = k.valloc(); aW = k.valloc(4)
    k.I("s_lshl_b32", s(st0), s(sfh), 13)
    k.I("v_add_u32", v(aZ), s(st0), v(v16))
    k.I("v_bfe_u32", v(t0), v(l31), 1, 3)
    for j in range(4):
        k.I("v_add_u32", v(t1), 2 * j, v(hh))
        k.I("v_xor_b32", v(t1), v(t1), v(t0))
        k.I("v_lshlrev_b32", v(t1), 4, v(t1))
        k.I("v_lshl_add_u32", v(aW + j), v(l31), 7, v(t1))
        k.I("s_lshl_b32", s(st0), s(sth), 13)
        k.I("s_add_u32", s(st0), s(st0), 16384)
        k.I("v_add_u32", v(aW + j), s(st0), v(aW + j))
    aZ2 = k.valloc(); aW2 = k.valloc(4)
    k.I("v_add_u32", v(aZ2), 65536, v(aZ))
    for j in range(4): k.I("v_add_u32", v(aW2 + j), 65536, v(aW + j))
    acc = [[k.valloc(16, 4) for _ in range(2)] for _ in range(2)]
    NB = 3
    zf = [[k.valloc(4) for _ in range(2)] for _ in range(NB)]
    wf = [[k.valloc(4) for _ in range(2)] for _ in range(NB)]
    def rl(ks):
        c, j = ks // 4, ks % 4
        b = ks % NB
        sl = (c % NS) * SLOT
        hi = sl >= 65536
        so = sl - (65536 if hi else 0)
        out = []
        for fi in range(2):
            out.append(lambda fi=fi: k.lg(("f", ks), "ds_read_b128", vr(zf[b][fi], 4), v(aZ2 if hi else aZ), mods=f"offset:{so + fi * 4096 + j * 1024}"))
        for ti in range(2):
            out.append(lambda ti=ti: k.lg(("f", ks), "ds_read_b128", vr(wf[b][ti], 4), v((aW2 if hi else aW) + j), mods=f"offset:{so + ti * 4096}"))
        return out
    k.I("s_barrier")
    stp.stamp(1)
    for f in rl(0) + rl(1): f()
    NKS = NST * 4
    for ks in range(NKS):
        c, j = ks // 4, ks % 4
        b = ks % NB
        k.wait_lg(("f", ks))
        mf = []
        for fi in range(2):
            for ti in range(2):
                mf.append(lambda fi=fi, ti=ti: k.I("v_mfma_f32_32x32x16_bf16", vr(acc[fi][ti], 16), vr(zf[b][fi], 4), vr(wf[b][ti], 4), 0 if ks == 0 else vr(acc[fi][ti], 16)))
        fl = rl(ks + 2) if ks + 2 < NKS else []
        if j == 2 and ks + 2 < NKS:
            if not LT and c in (0, 13, 14): stp.tick({0: 0, 13: 1, 14: 2}[c])
            k.I("s_barrier")
        interleave(k, mf, fl)
    if not LT: stp.tick(3)
    stp.stamp(2)
    if not LT: stp.tick(4)
    if not LT: stp.tick(5)
    vz = k.valloc()
    k.I("s_lshl_b32", s(st0), s(sth), 14)
    k.I("s_lshl_b32", s(st1), s(sfh), 12)
    k.I("s_add_u32", s(st0), s(st0), s(st1))
    k.I("s_add_u32", s(st0), s(st0), Z1REG)
    k.I("v_add_u32", v(vz), s(st0), v(v16))
    for ti in range(2):
        for fi in range(2):
            for hf_ in range(2):
                k.lg(("z1", ti, fi), "ds_read_b128", vr(z1[fi][ti] + 4 * hf_, 4), v(vz), mods=f"offset:{ti * 8192 + fi * 2048 + hf_ * 1024}")
    k.wait_vm("z1")
    for ti in range(2):
        k.I("v_lshlrev_b32", v(bb[ti]), 16, v(bb[ti]))
        k.I("v_mul_f32", v(bb[ti]), v(bb[ti]), v(rr[ti]))
    k.I("s_cmp_eq_u32", s(skap), 0)
    k.I("s_cselect_b32", s(st0), "1.0", 0)
    for ti in range(2): k.I("v_mul_f32", v(bb[ti]), s(st0), v(bb[ti]))
    tp = [k.valloc(2) for _ in range(4)]
    P = [k.valloc(8, 4) for _ in range(2)]
    sU = k.salloc()
    k.I("s_mul_i32", s(sU), s(skap), U1_OFF - U0_OFF)
    k.I("s_add_u32", s(sU), s(sU), hex(U0_OFF))
    n = 0
    for ti in range(2):
        for fi in range(2):
            A = acc[fi][ti]; Zp = z1[fi][ti]; PP = P[n & 1]; n += 1
            for j in range(8):
                k.I("v_pk_fma_f32", vr(A + 2 * j, 2), vr(A + 2 * j, 2), vr(rr[ti], 2), vr(bb[ti], 2), mods="op_sel_hi:[1,0,0]")
            k.wait_lg(("z1", ti, fi))
            for j in range(8):
                T = tp[j % 4]
                k.I("v_lshlrev_b32", v(T), 16, v(Zp + j))
                k.I("v_and_b32", v(T + 1), "0xffff0000", v(Zp + j))
                k.I("v_pk_mul_f32", vr(A + 2 * j, 2), vr(A + 2 * j, 2), vr(T, 2))
            for j in range(8): k.I("v_cvt_pk_bf16_f32", v(PP + j), v(A + 2 * j), v(A + 2 * j + 1))
            k.I("s_add_u32", s(st0), s(sst), ti)
            k.I("s_mul_i32", s(soff), s(st0), 56 * 1024)
            k.I("s_add_u32", s(st0), s(sf32), fi)
            k.I("s_lshl_b32", s(st0), s(st0), 11)
            k.I("s_add_u32", s(soff), s(soff), s(st0))
            k.I("s_add_u32", s(soff), s(soff), s(sU))
            k.I("buffer_store_dwordx4", vr(PP, 4), v(v16), sr(sWS, 4), s(soff), mods="offen")
            k.I("buffer_store_dwordx4", vr(PP + 4, 4), v(v16), sr(sWS, 4), s(soff), mods="offen offset:1024")
            if not LT: stp.tick(5 + n)
    stp.stamp(3)
    if not LT: stp.tick(10)
    if not LT: stp.dump_ticks()
    k.I("s_endpgm")
    k.L(pfrole)
    vT2 = k.valloc()
    k.I("s_sub_u32", s(st0), s(sidx), 28)
    k.I("s_lshl_b32", s(st0), s(st0), 9)
    k.I("v_add_u32", v(vT2), s(st0), "v0")
    k.I("v_lshlrev_b32", v(vT2), 7, v(vT2))
    l2_prefetch(k, 56, 896 * 896, vT2, 2048, st0)
    k.L(R["done"])
    k.I("s_endpgm")
    k.lds = lds; k.threads = 512; k.grid = 256
    return k

def gen_k6(Stamper):
    k = Kernel("k6_wout_kernel")
    NS = 5; SLOT = 24576
    RED = 0
    lds = NS * SLOT
    R = common_start(k, 224)
    swave, st0, st1, soff, lane, t0, t1, t2 = (R[x] for x in ("swave", "st0", "st1", "soff", "lane", "t0", "t1", "t2"))
    pWo = k.salloc(2); pOut = k.salloc(2); pWS = k.salloc(2)
    k.I("s_load_dwordx2", sr(pWo, 2), "s[0:1]", 56)
    k.I("s_load_dwordx2", sr(pOut, 2), "s[0:1]", 64)
    k.I("s_load_dwordx2", sr(pWS, 2), "s[0:1]", 80)
    sWS = k.salloc(4); sWo = k.salloc(4); sOut = k.salloc(4)
    sj = k.salloc(); sidx = k.salloc(); srt = k.salloc(); snt = k.salloc(); sw3 = k.salloc()
    k.I("s_and_b32", s(sj), "s2", 7)
    k.I("s_lshr_b32", s(sidx), "s2", 3)
    k.I("s_and_b32", s(sw3), s(swave), 3)
    k.I("s_mul_i32", s(st0), s(sidx), 37)
    k.I("s_lshr_b32", s(st0), s(st0), 8)
    k.I("s_mul_i32", s(st1), s(st0), 7)
    k.I("s_sub_u32", s(snt), s(sidx), s(st1))
    k.I("s_lshl_b32", s(srt), s(sj), 2)
    k.I("s_add_u32", s(srt), s(srt), s(st0))
    stp = Stamper(k, 5, sWS, swave)
    k.I("s_waitcnt", "lgkmcnt(0)")
    srd(k, sWS, pWS, WS_SIZE)
    comp = k.newlabel("compute")
    k.I("s_cmp_lt_u32", s(swave), 4)
    k.I("s_cbranch_scc1", comp)
    vsave = k.vnext
    srd(k, sWo, pWo, 896 * 896)
    v16 = k.valloc(); vWo = k.valloc()
    k.I("v_lshlrev_b32", v(v16), 4, v(lane))
    k.I("v_lshrrev_b32", v(t0), 3, v(lane))
    k.I("v_mul_u32_u24", v(t0), 896, v(t0))
    k.I("v_bfe_u32", v(t1), v(lane), 4, 1)
    k.I("v_lshlrev_b32", v(t1), 2, v(t1))
    k.I("v_and_b32", v(t2), 7, v(lane))
    k.I("v_xor_b32", v(t1), v(t1), v(t2))
    k.I("v_lshl_add_u32", v(vWo), v(t1), 4, v(t0))
    sUb = k.salloc(); sWb = k.salloc(); smU = k.salloc(); smW = k.salloc()
    k.I("s_lshr_b32", s(st0), s(sw3), 1)
    k.I("s_lshl_b32", s(st1), s(srt), 1)
    k.I("s_add_u32", s(st1), s(st1), s(st0))
    k.I("s_mul_i32", s(sUb), s(st1), 56 * 1024)
    k.I("s_and_b32", s(st1), s(sw3), 1)
    k.I("s_mul_i32", s(smU), s(st1), U1_OFF - U0_OFF)
    k.I("s_add_u32", s(sUb), s(sUb), s(smU))
    k.I("s_add_u32", s(sUb), s(sUb), hex(U0_OFF))
    k.I("s_lshl_b32", s(smU), s(st1), 13)
    k.I("s_lshl_b32", s(st0), s(st0), 12)
    k.I("s_add_u32", s(smU), s(smU), s(st0))
    k.I("s_mul_i32", s(sWb), s(sw3), 16 * 896)
    k.I("s_lshl_b32", s(st1), s(snt), 7)
    k.I("s_add_u32", s(sWb), s(sWb), s(st1))
    k.I("s_lshl_b32", s(smW), s(sw3), 11)
    k.I("s_add_u32", s(smW), s(smW), 16384)
    def issue(c):
        sl = (c % NS) * SLOT
        for i in range(4):
            k.I("s_add_u32", s(soff), s(sUb), hex((4 * c + i) * 1024))
            k.I("s_add_u32", "m0", s(smU), hex(sl + i * 1024))
            k.vm(("S", c), "buffer_load_dwordx4", v(v16), sr(sWS, 4), s(soff), mods="offen lds")
        for i in range(2):
            k.I("s_add_u32", s(soff), s(sWb), hex((64 * c + 8 * i) * 896))
            k.I("s_add_u32", "m0", s(smW), hex(sl + i * 1024))
            k.vm(("S", c), "buffer_load_dwordx4", v(vWo), sr(sWo, 4), s(soff), mods="offen lds")
    NST = 14
    for c in range(3): issue(c)
    for c in range(NST):
        k.wait_vm(("S", c))
        k.I("s_barrier")
        if c == 0: issue(3); issue(4)
        elif c + 3 < NST and c >= 2: issue(c + 3)
    k.I("s_endpgm")
    k.L(comp)
    k.vnext = vsave; k.vmq = []; k.lgq = []
    srd(k, sOut, pOut, 2048 * 896)
    l31 = k.valloc(); hh = k.valloc()
    k.I("v_and_b32", v(l31), 31, v(lane))
    k.I("v_lshrrev_b32", v(hh), 5, v(lane))
    srh = k.salloc(); snh = k.salloc(); sst = k.salloc(); sntile = k.salloc()
    k.I("s_and_b32", s(srh), s(swave), 1)
    k.I("s_lshr_b32", s(snh), s(swave), 1)
    k.I("s_lshl_b32", s(sst), s(srt), 1)
    k.I("s_add_u32", s(sst), s(sst), s(srh))
    k.I("s_lshl_b32", s(sntile), s(snt), 1)
    k.I("s_add_u32", s(sntile), s(sntile), s(snh))
    if os.environ.get("PF3", "0") == "1":
        vT0 = k.valloc(); vd0 = k.valloc(2)
        k.I("s_lshl_b32", s(st0), s(sidx), 8)
        k.I("v_add_u32", v(vT0), s(st0), "v0")
        k.I("v_mov_b32", v(t0), hex(U1_OFF - U0_OFF - 3584 * 128))
        k.I("v_cmp_le_u32", "vcc", 3584, v(vT0))
        k.I("v_cndmask_b32", v(t0), 0, v(t0), "vcc")
        k.I("v_lshl_add_u32", v(t0), v(vT0), 7, v(t0))
        k.I("s_mul_i32", s(st1), s(sj), 8 * 56 * 1024)
        k.I("s_add_u32", s(st1), s(st1), hex(U0_OFF))
        k.vm("pf", "buffer_load_dword", v(vd0), v(t0), sr(sWS, 4), s(st1), mods="offen")
    v16 = k.valloc()
    k.I("v_lshlrev_b32", v(v16), 4, v(lane))
    hr = k.valloc(8, 4)
    k.I("s_mul_i32", s(soff), s(sst), 28 * 1024)
    k.I("s_lshl_b32", s(st0), s(sntile), 11)
    k.I("s_add_u32", s(soff), s(soff), s(st0))
    k.I("s_add_u32", s(soff), s(soff), hex(H_OFF))
    k.vm("h", "buffer_load_dwordx4", vr(hr, 4), v(v16), sr(sWS, 4), s(soff), mods="offen")
    k.vm("h", "buffer_load_dwordx4", vr(hr + 4, 4), v(v16), sr(sWS, 4), s(soff), mods="offen offset:1024")
    stp.stamp(0)
    aU = k.valloc(); vW = k.valloc()
    k.I("s_lshl_b32", s(st0), s(srh), 12)
    k.I("v_add_u32", v(aU), s(st0), v(v16))
    k.I("v_bfe_u32", v(t0), v(lane), 2, 2)
    k.I("v_lshl_add_u32", v(t0), v(hh), 2, v(t0))
    k.I("v_lshlrev_b32", v(vW), 7, v(t0))
    k.I("v_add_u32", v(vW), 16384, v(vW))
    k.I("v_bfe_u32", v(t0), v(lane), 4, 1)
    k.I("v_lshlrev_b32", v(t0), 1, v(t0))
    k.I("v_bfe_u32", v(t1), v(lane), 1, 1)
    k.I("v_add_u32", v(t0), v(t0), v(t1))
    k.I("s_lshl_b32", s(st0), s(snh), 2)
    k.I("v_add_u32", v(t0), s(st0), v(t0))
    k.I("v_bfe_u32", v(t1), v(lane), 3, 1)
    k.I("v_lshlrev_b32", v(t1), 2, v(t1))
    k.I("v_xor_b32", v(t0), v(t0), v(t1))
    k.I("v_lshl_add_u32", v(vW), v(t0), 4, v(vW))
    k.I("v_and_b32", v(t0), 1, v(lane))
    k.I("v_lshl_add_u32", v(vW), v(t0), 3, v(vW))
    aU2 = k.valloc(); vW2 = k.valloc()
    k.I("v_add_u32", v(aU2), 3 * SLOT, v(aU))
    k.I("v_add_u32", v(vW2), 3 * SLOT, v(vW))
    acc = k.valloc(16, 4)
    NB = 3
    uf = [[k.valloc(4) for _ in range(2)] for _ in range(NB)]; wf = [k.valloc(4) for _ in range(NB)]
    def rl(ks):
        c, j = ks // 4, ks % 4
        b = ks % NB
        sl = (c % NS)
        hi = sl >= 3
        so = (sl - (3 if hi else 0)) * SLOT
        out = []
        for ar_ in range(2):
            out.append(lambda ar_=ar_: k.lg(("f", ks), "ds_read_b128", vr(uf[b][ar_], 4), v(aU2 if hi else aU), mods=f"offset:{so + ar_ * 8192 + j * 1024}"))
        for beta in range(2):
            o = so + (16 * j + 8 * beta) * 128
            out.append(lambda o=o, beta=beta: k.lg(("f", ks), "ds_read_b64_tr_b16", vr(wf[b] + 2 * beta, 2), v(vW2 if hi else vW), mods=f"offset:{o}"))
        return out
    k.I("s_barrier")
    stp.stamp(1)
    for f in rl(0) + rl(1): f()
    NKS = NST * 4
    for ks in range(NKS):
        c, j = ks // 4, ks % 4
        b = ks % NB
        k.wait_lg(("f", ks))
        mf = [lambda ar_=ar_: k.I("v_mfma_f32_32x32x16_bf16", vr(acc, 16), vr(wf[b], 4), vr(uf[b][ar_], 4), 0 if (ks == 0 and ar_ == 0) else vr(acc, 16)) for ar_ in range(2)]
        fl = rl(ks + 2) if ks + 2 < NKS else []
        if j == 2 and ks + 2 < NKS: k.I("s_barrier")
        interleave(k, mf, fl)
    stp.stamp(2)
    k.wait_vm("h")
    tp = [k.valloc(2) for _ in range(4)]
    for j in range(8):
        T = tp[j % 4]
        k.I("v_lshlrev_b32", v(T), 16, v(hr + j))
        k.I("v_and_b32", v(T + 1), "0xffff0000", v(hr + j))
        k.I("v_pk_add_f32", vr(acc + 2 * j, 2), vr(acc + 2 * j, 2), vr(T, 2))
    P = k.valloc(8, 4)
    for j in range(8): k.I("v_cvt_pk_bf16_f32", v(P + j), v(acc + 2 * j), v(acc + 2 * j + 1))
    for kp in range(2):
        k.I("v_permlane32_swap_b32", v(P + 4 * kp), v(P + 4 * kp + 2))
        k.I("v_permlane32_swap_b32", v(P + 4 * kp + 1), v(P + 4 * kp + 3))
    vo = k.valloc()
    k.I("v_mul_u32_u24", v(vo), 896, v(l31))
    k.I("v_lshl_add_u32", v(vo), v(hh), 4, v(vo))
    k.I("s_mul_i32", s(soff), s(sst), 32 * 896)
    k.I("s_lshl_b32", s(st0), s(sntile), 6)
    k.I("s_add_u32", s(soff), s(soff), s(st0))
    for kp in range(2):
        k.I("buffer_store_dwordx4", vr(P + 4 * kp, 4), v(vo), sr(sOut, 4), s(soff), mods=f"offen offset:{32 * kp}")
    stp.stamp(3)
    if os.environ.get("SPIN"):
        ka, ja, kb, jb = [int(x) for x in os.environ["SPIN"].split(",")]
        sa_ = k.salloc(2); sb_ = k.salloc(2); sn_ = k.salloc(2); sq_ = k.salloc(2)
        lab = k.newlabel("spin"); out_ = k.newlabel("spun")
        k.I("s_or_b32", s(st0), "s2", s(swave))
        k.I("s_cmp_lg_u32", s(st0), 0)
        k.I("s_cbranch_scc1", out_)
        k.I("s_mov_b32", s(st0), hex(STAMP_OFF + ka * 256 * 64 + ja * 8))
        k.I("s_load_dwordx2", sr(sa_, 2), sr(pWS, 2), s(st0))
        k.I("s_mov_b32", s(st1), hex(STAMP_OFF + max(kb, 0) * 256 * 64 + jb * 8))
        if kb >= 0: k.I("s_load_dwordx2", sr(sb_, 2), sr(pWS, 2), s(st1))
        else: k.I("s_memrealtime", sr(sb_, 2))
        k.I("s_memrealtime", sr(sn_, 2))
        k.I("s_waitcnt", "lgkmcnt(0)")
        k.I("s_sub_u32", s(sa_), s(sb_), s(sa_))
        k.I("s_min_u32", s(sa_), s(sa_), 20000)
        k.I("s_add_u32", s(sn_), s(sn_), s(sa_))
        k.L(lab)
        k.I("s_memrealtime", sr(sq_, 2))
        k.I("s_waitcnt", "lgkmcnt(0)")
        k.I("s_sub_u32", s(sq_), s(sq_), s(sn_))
        k.I("s_cmp_lt_i32", s(sq_), 0)
        k.I("s_cbranch_scc1", lab)
        k.L(out_)
    k.L(R["done"])
    k.I("s_endpgm")
    k.lds = lds; k.threads = 512; k.grid = 224
    return k

def rest(Stamper):
    return [gen_k2(Stamper), gen_k3(Stamper), gen_k4(Stamper), gen_k5(Stamper), gen_k6(Stamper)]
```

```python
import os, struct, math
from asmlib import *
from layout import *
WS_SIZE = 0x10000000
def f32(x): return struct.unpack("<I", struct.pack("<f", x))[0]

def srd(k, dst, base, size):
    k.I("s_mov_b32", s(dst), s(base))
    k.I("s_and_b32", s(dst + 1), s(base + 1), "0xffff")
    k.I("s_mov_b32", s(dst + 2), hex(size) if isinstance(size, int) else size)
    k.I("s_mov_b32", s(dst + 3), "0x20000")

def gen_k2(Stamper):
    k = Kernel("k2_attn_kernel")
    k.snext = 4; k.vnext = 1
    KREG = 0; VREG = 24576
    lds = 49152
    done = k.newlabel("done")
    k.I("s_cmp_ge_u32", "s2", 256)
    k.I("s_cbranch_scc1", done)
    pWS = k.salloc(2)
    k.I("s_load_dwordx2", sr(pWS, 2), "s[0:1]", 80)
    sWS = k.salloc(4)
    swave = k.salloc(); srb = k.salloc(); shd = k.salloc(); st0 = k.salloc(); st1 = k.salloc(); soff = k.salloc()
    lane = k.valloc(); t0 = k.valloc(); t1 = k.valloc(); l15 = k.valloc(); gg = k.valloc()
    k.I("v_lshrrev_b32", v(t0), 6, "v0")
    k.I("v_and_b32", v(lane), 63, "v0")
    k.I("v_readfirstlane_b32", s(swave), v(t0))
    k.I("s_and_b32", s(st0), "s2", 7)
    k.I("s_lshr_b32", s(st1), "s2", 3)
    k.I("s_and_b32", s(shd), s(st1), 15)
    k.I("s_lshr_b32", s(st1), s(st1), 4)
    k.I("s_lshl_b32", s(srb), s(st0), 1)
    k.I("s_add_u32", s(srb), s(srb), s(st1))
    stp = Stamper(k, 1, sWS, swave)
    v16 = k.valloc()
    k.I("v_lshlrev_b32", v(v16), 4, v(lane))
    sb = k.salloc(); sm = k.salloc(); s16q = k.salloc()
    k.I("s_lshl_b32", s(sb), s(shd), 17)
    k.I("s_lshl_b32", s(st0), s(srb), 13)
    k.I("s_add_u32", s(sb), s(sb), s(st0))
    k.I("s_mul_i32", s(sm), s(swave), 3072)
    k.I("s_lshl_b32", s(s16q), s(srb), 3)
    k.I("s_add_u32", s(s16q), s(s16q), s(swave))
    k.I("s_waitcnt", "lgkmcnt(0)")
    srd(k, sWS, pWS, WS_SIZE)
    qf = k.valloc(4)
    k.I("s_lshl_b32", s(st0), s(swave), 10)
    k.I("s_add_u32", s(st0), s(st0), s(sb))
    k.I("s_add_u32", s(soff), s(st0), hex(Q_OFF))
    k.vm("q", "buffer_load_dwordx4", vr(qf, 4), v(v16), sr(sWS, 4), s(soff), mods="offen")
    k.I("s_add_u32", s(st1), s(sb), s(sm))
    for (reg, off) in ((KREG, K_OFF), (VREG, V_OFF)):
        for i in range(3):
            k.I("s_add_u32", s(soff), s(st1), hex(off - 16384 + i * 1024))
            k.I("s_add_u32", "m0", s(sm), hex(reg + i * 1024))
            k.vm("kv", "buffer_load_dwordx4", v(v16), sr(sWS, 4), s(soff), mods="offen lds")
    sidx2 = k.salloc()
    k.I("s_lshr_b32", s(sidx2), "s2", 3)
    code_prefetch(k, "k3_wo_kernel", sidx2, st0)
    stp.stamp(0)
    k.I("v_and_b32", v(l15), 15, v(lane))
    k.I("v_lshrrev_b32", v(gg), 4, v(lane))
    M = [k.salloc(2) for _ in range(4)]
    k.I("v_lshlrev_b32", v(t0), 2, v(gg))
    for i in range(4):
        k.I("v_add_u32", v(t1), i, v(t0))
        k.I("v_cmp_gt_u32", sr(M[i], 2), v(t1), v(l15))
    aK = k.valloc(); aV = k.valloc()
    k.I("s_lshl_b32", s(st0), s(swave), 10)
    k.I("v_add_u32", v(aK), s(st0), v(v16))
    k.I("v_lshlrev_b32", v(aV), 3, v(lane))
    k.I("s_add_u32", s(st0), s(st0), VREG)
    k.I("v_add_u32", v(aV), s(st0), v(aV))
    S = k.valloc(68, 4)
    kf = [k.valloc(4) for _ in range(6)]
    neg = k.valloc()
    k.I("v_mov_b32", v(neg), hex(f32(-1e30)))
    k.wait_vm(["q", "kv"])
    k.I("s_barrier")
    stp.stamp(1)
    NKF = 6
    for j in range(min(NKF, 17)):
        k.lg(("k", j), "ds_read_b128", vr(kf[j % NKF], 4), v(aK), mods=f"offset:{j * 1024}")
    for j in range(17):
        k.wait_lg(("k", j))
        k.I("v_mfma_f32_16x16x32_bf16", vr(S + 4 * j, 4), vr(kf[j % NKF], 4), vr(qf, 4), 0)
        if j + NKF < 17:
            k.lg(("k", j + NKF), "ds_read_b128", vr(kf[j % NKF], 4), v(aK), mods=f"offset:{(j + NKF) * 1024}")
    vT = k.valloc()
    k.I("s_lshl_b32", s(st0), s(sidx2), 9)
    k.I("v_add_u32", v(vT), s(st0), "v0")
    k.I("v_lshlrev_b32", v(vT), 7, v(vT))
    if os.environ.get("PFK2", "1") == "1":
        l2_prefetch(k, 16, 448 * 896, vT, 16384, st0)
        l2_prefetch(k, 32, 448 * 3584, vT, 16384, st0)
        k.lgq = []
    vf = k.valloc(9 * 2 * 4, 4)
    def vread(kp):
        for dt in range(2):
            for beta in range(2):
                tile = min(2 * kp + beta, 16)
                k.lg(("v", kp), "ds_read_b64", vr(vf + (kp * 2 + dt) * 4 + 2 * beta, 2), v(aV), mods=f"offset:{tile * 1024 + dt * 512}")
    for kp in range(3): vread(kp)
    for i in range(4):
        k.I("v_cndmask_b32", v(S + i), v(neg), v(S + i), sr(M[i], 2))
        k.I("v_cndmask_b32", v(S + 64 + i), v(S + 64 + i), v(neg), sr(M[i], 2))
    nofix = k.newlabel("nofix")
    k.I("s_cmp_ge_u32", s(s16q), 16)
    k.I("s_cbranch_scc1", nofix)
    k.I("s_sub_u32", s(st0), 16, s(s16q))
    for j in range(16):
        lab = k.newlabel("sk")
        k.I("s_cmp_le_u32", s(st0), j)
        k.I("s_cbranch_scc1", lab)
        for i in range(4): k.I("v_mov_b32", v(S + 4 * j + i), v(neg))
        k.L(lab)
    k.L(nofix)
    mx = k.valloc(4)
    for c in range(4):
        k.I("v_max3_f32", v(mx + c), v(S + c * 17), v(S + c * 17 + 1), v(S + c * 17 + 2))
    for r in range(7):
        for c in range(4):
            b = c * 17 + 3 + 2 * r
            k.I("v_max3_f32", v(mx + c), v(mx + c), v(S + b), v(S + b + 1))
    k.I("v_max3_f32", v(mx), v(mx), v(mx + 1), v(mx + 2))
    k.I("v_max_f32", v(mx), v(mx), v(mx + 3))
    for sw in ("v_permlane16_swap_b32", "v_permlane32_swap_b32"):
        k.I("v_mov_b32", v(mx + 1), v(mx))
        k.I(sw, v(mx), v(mx + 1))
        k.I("v_max_f32", v(mx), v(mx), v(mx + 1))
    cs = 28 ** -0.5 * math.log2(math.e)
    sc = k.salloc()
    k.I("s_mov_b32", s(sc), hex(f32(cs)))
    k.I("v_mul_f32", v(mx), hex(f32(-cs)), v(mx))
    for kp in range(3, 6): vread(kp)
    P = k.valloc(36, 4)
    k.I("v_mov_b32", v(P + 34), 0); k.I("v_mov_b32", v(P + 35), 0)
    O = [k.valloc(4), k.valloc(4)]
    def softmax_tile(j):
        for i in range(4): k.I("v_fma_f32", v(S + 4 * j + i), v(S + 4 * j + i), s(sc), v(mx))
        for i in range(4): k.I("v_exp_f32", v(S + 4 * j + i), v(S + 4 * j + i))
    def pack_tile(j):
        k.I("v_cvt_pk_bf16_f32", v(P + 2 * j), v(S + 4 * j), v(S + 4 * j + 1))
        k.I("v_cvt_pk_bf16_f32", v(P + 2 * j + 1), v(S + 4 * j + 2), v(S + 4 * j + 3))
    for kp in range(9):
        tiles = [2 * kp, 2 * kp + 1] if kp < 8 else [16]
        for j in tiles: softmax_tile(j)
        for j in tiles: pack_tile(j)
        if kp == 2:
            for q in range(6, 9): vread(q)
        if kp >= 1:
            q = kp - 1
            k.wait_lg(("v", q))
            for dt in range(2):
                k.I("v_mfma_f32_16x16x32_bf16", vr(O[dt], 4), vr(vf + (q * 2 + dt) * 4, 4), vr(P + 4 * q, 4), 0 if q == 0 else vr(O[dt], 4))
    k.wait_lg(("v", 8))
    for dt in range(2):
        k.I("v_mfma_f32_16x16x32_bf16", vr(O[dt], 4), vr(vf + (8 * 2 + dt) * 4, 4), vr(P + 32, 4), vr(O[dt], 4))
    la = k.valloc(); lb = k.valloc()
    k.I("v_mov_b32", v(la), v(O[1])); k.I("v_mov_b32", v(lb), v(O[1]))
    k.I("v_permlane32_swap_b32", v(la), v(lb))
    k.I("v_mov_b32", v(la), v(lb))
    k.I("v_permlane16_swap_b32", v(la), v(lb))
    k.I("v_rcp_f32", v(lb), v(lb))
    for dt in range(2):
        for i in range(4): k.I("v_mul_f32", v(O[dt] + i), v(O[dt] + i), v(lb))
    pk = k.valloc(4)
    for dt in range(2):
        k.I("v_cvt_pk_bf16_f32", v(pk + 2 * dt), v(O[dt]), v(O[dt] + 1))
        k.I("v_cvt_pk_bf16_f32", v(pk + 2 * dt + 1), v(O[dt] + 2), v(O[dt] + 3))
    k.I("v_cmp_gt_u32", "vcc", 3, v(gg))
    k.I("v_cndmask_b32", v(pk + 2), 0, v(pk + 2), "vcc")
    k.I("v_cndmask_b32", v(pk + 3), 0, v(pk + 3), "vcc")
    vo = k.valloc()
    k.I("s_and_b32", s(st0), s(swave), 1)
    k.I("s_lshl_b32", s(st0), s(st0), 8)
    k.I("v_lshlrev_b32", v(vo), 4, v(l15))
    k.I("v_add_u32", v(vo), s(st0), v(vo))
    k.I("v_lshrrev_b32", v(t0), 1, v(gg))
    k.I("v_lshl_add_u32", v(vo), v(t0), 9, v(vo))
    k.I("v_and_b32", v(t0), 1, v(gg))
    k.I("v_lshl_add_u32", v(vo), v(t0), 3, v(vo))
    k.I("s_lshl_b32", s(st0), s(srb), 2)
    k.I("s_lshr_b32", s(st1), s(swave), 1)
    k.I("s_add_u32", s(st0), s(st0), s(st1))
    k.I("s_lshl_b32", s(st0), s(st0), 15)
    k.I("s_lshl_b32", s(st1), s(shd), 11)
    k.I("s_add_u32", s(st0), s(st0), s(st1))
    k.I("s_add_u32", s(soff), s(st0), hex(O_OFF))
    for dt in range(2):
        k.I("buffer_store_dwordx2", vr(pk + 2 * dt, 2), v(vo), sr(sWS, 4), s(soff), mods=f"offen offset:{dt * 1024}")
    stp.stamp(2)
    k.L(done)
    k.I("s_endpgm")
    k.lds = lds; k.threads = 512; k.grid = 256
    return k


def code_prefetch(k, nxt, sidx, tmp_s, tid="v0"):
    if os.environ.get("PFC", "1") != "1": return
    pp = k.salloc(2); sP = k.salloc(4); vT = k.valloc(); vd = k.valloc()
    lab = k.newlabel("pc")
    k.I("s_getpc_b64", sr(pp, 2))
    k.L(lab)
    k.I("s_add_u32", s(pp), s(pp), f"{nxt}-{lab}")
    k.I("s_addc_u32", s(pp + 1), s(pp + 1), 0)
    srd(k, sP, pp, f"{nxt}_end-{nxt}")
    k.I("s_lshl_b32", s(tmp_s), s(sidx), 8)
    k.I("v_add_u32", v(vT), s(tmp_s), tid)
    k.I("v_lshlrev_b32", v(vT), 7, v(vT))
    k.vm("pfc", "buffer_load_dword", v(vd), v(vT), sr(sP, 4), 0, mods="offen")

def l2_prefetch(k, kernarg_off, nbytes, vT128, nthreads, tmp_s):
    if os.environ.get("PFT", "1") != "1": return
    pp = k.salloc(2); sP = k.salloc(4)
    k.I("s_load_dwordx2", sr(pp, 2), "s[0:1]", kernarg_off)
    k.I("s_waitcnt", "lgkmcnt(0)")
    srd(k, sP, pp, nbytes)
    n = -(-nbytes // (128 * nthreads))
    for i in range(n):
        vd = k.valloc()
        k.I("s_mov_b32", s(tmp_s), hex(i * nthreads * 128))
        k.vm("pft", "buffer_load_dword", v(vd), v(vT128), sr(sP, 4), s(tmp_s), mods="offen")

def mall_prefetch(k, kernarg_off, nbytes, first, per, nw, swave, lane, tmp_s, tv0, tv1, flag="PFM"):
    if os.environ.get(flag, "1") != "1": return
    pp = k.salloc(2); sP = k.salloc(4); vd = k.valloc()
    k.I("s_load_dwordx2", sr(pp, 2), "s[0:1]", kernarg_off)
    k.I("s_mul_i32", s(tmp_s), "s2", nw)
    k.I("s_add_u32", s(tmp_s), s(tmp_s), s(swave))
    k.I("s_mul_i32", s(tmp_s), s(tmp_s), per)
    k.I("s_add_u32", s(tmp_s), s(tmp_s), first)
    k.I("s_lshl_b32", s(tmp_s), s(tmp_s), 7)
    k.I("v_lshlrev_b32", v(tv0), 7, v(lane))
    k.I("v_mov_b32", v(tv1), "0x7fffff00")
    k.I("v_cmp_gt_u32", "vcc", per, v(lane))
    k.I("v_cndmask_b32", v(tv0), v(tv1), v(tv0), "vcc")
    k.I("s_waitcnt", "lgkmcnt(0)")
    k.lgq = []
    srd(k, sP, pp, nbytes)
    k.vm("pfm", "buffer_load_dword", v(vd), v(tv0), sr(sP, 4), s(tmp_s), mods="offen")

def common_start(k, nwg):
    k.snext = 4; k.vnext = 1
    done = k.newlabel("done")
    k.I("s_cmp_ge_u32", "s2", nwg)
    k.I("s_cbranch_scc1", done)
    R = dict(done=done)
    R["swave"] = k.salloc(); R["st0"] = k.salloc(); R["st1"] = k.salloc(); R["soff"] = k.salloc()
    R["lane"] = k.valloc(); R["t0"] = k.valloc(); R["t1"] = k.valloc(); R["t2"] = k.valloc()
    k.I("v_lshrrev_b32", v(R["t0"]), 6, "v0")
    k.I("v_and_b32", v(R["lane"]), 63, "v0")
    k.I("v_readfirstlane_b32", s(R["swave"]), v(R["t0"]))
    return R

def interleave(k, mf, fl):
    n = len(fl); m = len(mf)
    cuts = [(i * n + m - 1) // m for i in range(m + 1)]
    cuts[-1] = n
    for i in range(m):
        mf[i]()
        for f in fl[cuts[i]:cuts[i + 1]]: f()

def stats_from_packed(k, P, n, accs, accq, tmp):
    for j in range(n):
        t = tmp[j % len(tmp)]
        k.I("v_lshlrev_b32", v(t), 16, v(P + j))
        k.I("v_and_b32", v(t + 1), "0xffff0000", v(P + j))
        if j == 0:
            k.I("v_pk_mul_f32", vr(accq, 2), vr(t, 2), vr(t, 2))
            k.I("v_mov_b32", v(accs), v(t)); k.I("v_mov_b32", v(accs + 1), v(t + 1))
        else:
            k.I("v_pk_add_f32", vr(accs, 2), vr(accs, 2), vr(t, 2))
            k.I("v_pk_fma_f32", vr(accq, 2), vr(t, 2), vr(t, 2), vr(accq, 2))
    k.I("v_add_f32", v(accs), v(accs), v(accs + 1))
    k.I("v_add_f32", v(accq), v(accq), v(accq + 1))
    for r_ in (accs, accq):
        k.I("v_mov_b32", v(r_ + 1), v(r_))
        k.I("v_permlane32_swap_b32", v(r_), v(r_ + 1))
        k.I("v_add_f32", v(r_), v(r_), v(r_ + 1))

def gen_k3(Stamper):
    k = Kernel("k3_wo_kernel")
    WREG = 0; OREG = 58368
    lds = OREG + 65536
    R = common_start(k, 256)
    swave, st0, st1, soff, lane, t0, t1, t2 = (R[x] for x in ("swave", "st0", "st1", "soff", "lane", "t0", "t1", "t2"))
    pX = k.salloc(2); pWo = k.salloc(2); pWin = k.salloc(2); pWS = k.salloc(2)
    k.I("s_load_dwordx2", sr(pX, 2), "s[0:1]", 0)
    k.I("s_load_dwordx2", sr(pWo, 2), "s[0:1]", 16)
    k.I("s_load_dwordx2", sr(pWin, 2), "s[0:1]", 32)
    k.I("s_load_dwordx2", sr(pWS, 2), "s[0:1]", 80)
    sWS = k.salloc(4); sWo = k.salloc(4); sX = k.salloc(4)
    sj = k.salloc(); sidx = k.salloc(); srt = k.salloc(); snt = k.salloc(); sw3 = k.salloc()
    k.I("s_and_b32", s(sj), "s2", 7)
    k.I("s_lshr_b32", s(sidx), "s2", 3)
    k.I("s_and_b32", s(sw3), s(swave), 3)
    stp = Stamper(k, 2, sWS, swave)
    aux = k.newlabel("aux")
    k.I("s_cmp_ge_u32", s(sidx), 28)
    k.I("s_cbranch_scc1", aux)
    k.I("s_mul_i32", s(st0), s(sidx), 37)
    k.I("s_lshr_b32", s(st0), s(st0), 8)
    k.I("s_mul_i32", s(st1), s(st0), 7)
    k.I("s_sub_u32", s(snt), s(sidx), s(st1))
    k.I("s_lshl_b32", s(srt), s(sj), 2)
    k.I("s_add_u32", s(srt), s(srt), s(st0))
    k.I("s_waitcnt", "lgkmcnt(0)")
    srd(k, sWS, pWS, WS_SIZE)
    comp = k.newlabel("compute")
    k.I("s_cmp_lt_u32", s(swave), 4)
    k.I("s_cbranch_scc1", comp)
    vsave = k.vnext
    srd(k, sWo, pWo, 448 * 896)
    v16 = k.valloc(); vWo = k.valloc()
    k.I("v_lshlrev_b32", v(v16), 4, v(lane))
    k.I("v_lshrrev_b32", v(t0), 3, v(lane))
    k.I("v_mul_u32_u24", v(t0), 896, v(t0))
    k.I("v_bfe_u32", v(t1), v(lane), 4, 1)
    k.I("v_lshlrev_b32", v(t1), 2, v(t1))
    k.I("v_and_b32", v(t2), 7, v(lane))
    k.I("v_xor_b32", v(t1), v(t1), v(t2))
    k.I("v_lshl_add_u32", v(vWo), v(t1), 4, v(t0))
    sOb = k.salloc(); sWb = k.salloc(); smO = k.salloc(); smW = k.salloc()
    k.I("s_lshl_b32", s(sOb), s(srt), 16)
    k.I("s_lshl_b32", s(st0), s(sw3), 10)
    k.I("s_add_u32", s(sOb), s(sOb), s(st0))
    k.I("s_add_u32", s(sOb), s(sOb), hex(O_OFF))
    k.I("s_add_u32", s(smO), s(st0), OREG)
    k.I("s_mul_i32", s(sWb), s(sw3), 8 * 896)
    k.I("s_lshl_b32", s(st1), s(snt), 7)
    k.I("s_add_u32", s(sWb), s(sWb), s(st1))
    k.I("s_add_u32", s(smW), s(st0), WREG)
    def issue(c):
        for r2 in range(2):
            k.I("s_add_u32", s(soff), s(sOb), hex(r2 * 32768 + c * 4096))
            k.I("s_add_u32", "m0", s(smO), hex(r2 * 32768 + c * 4096))
            k.vm(("S", c), "buffer_load_dwordx4", v(v16), sr(sWS, 4), s(soff), mods="offen lds")
        for i in range(2):
            k.I("s_add_u32", s(soff), s(sWb), hex((56 * c + 32 * i) * 896))
            k.I("s_add_u32", "m0", s(smW), hex((56 * c + 32 * i) * 128))
            k.vm(("S", c), "buffer_load_dwordx4", v(vWo), sr(sWo, 4), s(soff), mods="offen lds")
    LA = 3
    for c in range(LA): issue(c)
    for c in range(8):
        k.wait_vm(("S", c))
        k.I("s_barrier")
        if c + LA < 8: issue(c + LA)
    k.I("s_endpgm")
    k.L(comp)
    k.vnext = vsave; k.vmq = []; k.lgq = []
    srd(k, sX, pX, 2048 * 896)
    l31 = k.valloc(); hh = k.valloc()
    k.I("v_and_b32", v(l31), 31, v(lane))
    k.I("v_lshrrev_b32", v(hh), 5, v(lane))
    srh = k.salloc(); snh = k.salloc(); sst = k.salloc(); sntile = k.salloc()
    k.I("s_and_b32", s(srh), s(swave), 1)
    k.I("s_lshr_b32", s(snh), s(swave), 1)
    k.I("s_lshl_b32", s(sst), s(srt), 1)
    k.I("s_add_u32", s(sst), s(sst), s(srh))
    k.I("s_lshl_b32", s(sntile), s(snt), 1)
    k.I("s_add_u32", s(sntile), s(sntile), s(snh))
    xr = k.valloc(8, 4); vx = k.valloc()
    k.I("v_mul_u32_u24", v(vx), 896, v(l31))
    k.I("v_lshl_add_u32", v(vx), v(hh), 3, v(vx))
    k.I("s_mul_i32", s(soff), s(sst), 32 * 896)
    k.I("s_lshl_b32", s(st0), s(sntile), 6)
    k.I("s_add_u32", s(soff), s(soff), s(st0))
    for q in range(4):
        k.vm("x", "buffer_load_dwordx2", vr(xr + 2 * q, 2), v(vx), sr(sX, 4), s(soff), mods=f"offen offset:{16 * q}")
    code_prefetch(k, "k4_win_kernel", sidx, st0)
    stp.stamp(0)
    aO = k.valloc(); vW = k.valloc()
    k.I("v_lshlrev_b32", v(aO), 4, v(lane))
    k.I("s_lshl_b32", s(st0), s(srh), 15)
    k.I("s_add_u32", s(st0), s(st0), OREG)
    k.I("v_add_u32", v(aO), s(st0), v(aO))
    k.I("v_bfe_u32", v(t0), v(lane), 2, 2)
    k.I("v_lshl_add_u32", v(t0), v(hh), 3, v(t0))
    k.I("v_lshlrev_b32", v(vW), 7, v(t0))
    k.I("v_bfe_u32", v(t0), v(lane), 4, 1)
    k.I("v_lshlrev_b32", v(t0), 1, v(t0))
    k.I("v_bfe_u32", v(t1), v(lane), 1, 1)
    k.I("v_add_u32", v(t0), v(t0), v(t1))
    k.I("s_lshl_b32", s(st0), s(snh), 2)
    k.I("v_add_u32", v(t0), s(st0), v(t0))
    k.I("v_bfe_u32", v(t1), v(lane), 3, 1)
    k.I("v_lshlrev_b32", v(t1), 2, v(t1))
    k.I("v_xor_b32", v(t0), v(t0), v(t1))
    k.I("v_lshl_add_u32", v(vW), v(t0), 4, v(vW))
    k.I("v_and_b32", v(t0), 1, v(lane))
    k.I("v_lshl_add_u32", v(vW), v(t0), 3, v(vW))
    acc = k.valloc(16, 4)
    NB = 3
    of = [k.valloc(4) for _ in range(NB)]; wf = [k.valloc(4) for _ in range(NB)]
    def rl(ks):
        b = ks % NB
        out = [lambda: k.lg(("f", ks), "ds_read_b128", vr(of[b], 4), v(aO), mods=f"offset:{ks * 1024}")]
        for beta in range(2):
            o = (28 * (ks >> 1) + 16 * (ks & 1) + 4 * beta) * 128
            out.append(lambda o=o, beta=beta: k.lg(("f", ks), "ds_read_b64_tr_b16", vr(wf[b] + 2 * beta, 2), v(vW), mods=f"offset:{o}"))
        return out
    k.I("s_barrier")
    stp.stamp(1)
    for f in rl(0) + rl(1): f()
    for ks in range(32):
        c, j = ks // 4, ks % 4
        b = ks % NB
        k.wait_lg(("f", ks))
        k.I("v_mfma_f32_32x32x16_bf16", vr(acc, 16), vr(wf[b], 4), vr(of[b], 4), 0 if ks == 0 else vr(acc, 16))
        if j == 1 and c < 7: k.I("s_barrier")
        if ks + 2 < 32 and not (j == 1 and False):
            pass
        nxt = ks + 2
        if nxt < 32:
            for f in rl(nxt): f()
    EOF_MARK = None
    stp.stamp(2)
    k.wait_vm("x")
    tmp = [k.valloc(2) for _ in range(4)]
    for q in range(4):
        for d in range(2):
            t = tmp[(2 * q + d) % 4]
            k.I("v_lshlrev_b32", v(t), 16, v(xr + 2 * q + d))
            k.I("v_and_b32", v(t + 1), "0xffff0000", v(xr + 2 * q + d))
            k.I("v_pk_add_f32", vr(acc + 4 * q + 2 * d, 2), vr(acc + 4 * q + 2 * d, 2), vr(t, 2))
    P = k.valloc(8, 4)
    for j in range(8): k.I("v_cvt_pk_bf16_f32", v(P + j), v(acc + 2 * j), v(acc + 2 * j + 1))
    v16 = k.valloc()
    k.I("v_lshlrev_b32", v(v16), 4, v(lane))
    k.I("s_mul_i32", s(soff), s(sst), 28 * 1024)
    k.I("s_lshl_b32", s(st0), s(sntile), 11)
    k.I("s_add_u32", s(soff), s(soff), s(st0))
    k.I("s_add_u32", s(soff), s(soff), hex(H_OFF))
    k.I("buffer_store_dwordx4", vr(P, 4), v(v16), sr(sWS, 4), s(soff), mods="offen")
    k.I("buffer_store_dwordx4", vr(P + 4, 4), v(v16), sr(sWS, 4), s(soff), mods="offen offset:1024")
    accs = k.valloc(2); accq = k.valloc(2)
    stats_from_packed(k, P, 8, accs, accq, tmp)
    k.I("v_mov_b32", v(accs + 1), v(accq))
    vh = k.valloc()
    k.I("v_mul_u32_u24", v(vh), 112, v(l31))
    k.I("s_mul_i32", s(soff), s(sst), 32 * 112)
    k.I("s_lshl_b32", s(st0), s(sntile), 3)
    k.I("s_add_u32", s(soff), s(soff), s(st0))
    k.I("s_add_u32", s(soff), s(soff), hex(HS_OFF))
    k.I("s_mov_b32", "exec_hi", 0)
    k.I("buffer_store_dwordx2", vr(accs, 2), v(vh), sr(sWS, 4), s(soff), mods="offen")
    stp.stamp(3)
    k.I("s_endpgm")
    k.L(aux)
    k.vnext = vsave; k.vmq = []; k.lgq = []
    sa = k.salloc(); sWin = k.salloc(4)
    k.I("s_sub_u32", s(sa), s(sidx), 28)
    k.I("s_lshl_b32", s(sa), s(sa), 3)
    k.I("s_add_u32", s(sa), s(sa), s(sj))
    k.I("s_waitcnt", "lgkmcnt(0)")
    srd(k, sWS, pWS, WS_SIZE)
    ff = k.valloc(4)
    for i in range(4): k.I("v_mov_b32", v(ff + i), -1)
    k.I("v_lshlrev_b32", v(t1), 4, "v0")
    k.I("v_mov_b32", v(t2), "0x7fffff00")
    k.I("v_cmp_gt_u32", "vcc", 448, "v0")
    k.I("v_cndmask_b32", v(t1), v(t2), v(t1), "vcc")
    k.I("s_mul_i32", s(st0), s(sa), 7168)
    k.I("s_add_u32", s(st0), s(st0), hex(EX_OFF))
    k.I("buffer_store_dwordx4", vr(ff, 4), v(t1), sr(sWS, 4), s(st0), mods="offen")
    zf = k.valloc(4)
    for i in range(4): k.I("v_mov_b32", v(zf + i), 0)
    k.I("v_lshlrev_b32", v(t1), 4, "v0")
    k.I("v_mov_b32", v(t2), "0x7fffff00")
    k.I("v_cmp_gt_u32", "vcc", 32, "v0")
    k.I("v_cndmask_b32", v(t1), v(t2), v(t1), "vcc")
    k.I("s_lshl_b32", s(st0), s(sa), 9)
    k.I("s_add_u32", s(st0), s(st0), hex(FL_OFF))
    k.I("buffer_store_dwordx4", vr(zf, 4), v(t1), sr(sWS, 4), s(st0), mods="offen")
    k.I("s_cmp_ge_u32", s(sa), 28)
    k.I("s_cbranch_scc1", R["done"])
    srd(k, sWin, pWin, 448 * 3584)
    vg = k.valloc()
    k.I("v_lshrrev_b32", v(t0), 3, v(lane))
    k.I("v_mul_u32_u24", v(t0), 3584, v(t0))
    k.I("v_bfe_u32", v(t1), v(lane), 4, 1)
    k.I("v_lshlrev_b32", v(t1), 2, v(t1))
    k.I("v_and_b32", v(t2), 7, v(lane))
    k.I("v_xor_b32", v(t1), v(t1), v(t2))
    k.I("v_lshl_add_u32", v(vg), v(t1), 4, v(t0))
    sb = k.salloc(); sm = k.salloc()
    k.I("s_mul_i32", s(sb), s(swave), 56 * 3584)
    k.I("s_lshl_b32", s(st0), s(sa), 7)
    k.I("s_add_u32", s(sb), s(sb), s(st0))
    k.I("s_mul_i32", s(sm), s(swave), 56 * 128)
    for i in range(7):
        k.I("s_add_u32", s(soff), s(sb), hex(i * 8 * 3584))
        k.I("s_add_u32", "m0", s(sm), hex(i * 1024))
        k.I("buffer_load_dwordx4", v(vg), sr(sWin, 4), s(soff), mods="offen lds")
    z = k.valloc(); TB = 57344
    k.I("v_mov_b32", v(z), 0)
    k.I("v_lshlrev_b32", v(t0), 2, v(lane))
    k.I("v_add_u32", v(t0), TB, v(t0))
    k.I("ds_write_b32", v(t0), v(z))
    gg = k.valloc(); vB = k.valloc(); ones = k.valloc(4)
    k.I("v_lshrrev_b32", v(gg), 4, v(lane))
    k.I("v_bfe_u32", v(t0), v(lane), 2, 2)
    k.I("v_lshl_add_u32", v(t0), v(gg), 3, v(t0))
    k.I("v_lshlrev_b32", v(vB), 7, v(t0))
    k.I("v_bfe_u32", v(t0), v(lane), 1, 1)
    k.I("s_lshl_b32", s(st0), s(sw3), 1)
    k.I("v_add_u32", v(t0), s(st0), v(t0))
    k.I("v_bfe_u32", v(t1), v(lane), 3, 1)
    k.I("v_lshlrev_b32", v(t1), 2, v(t1))
    k.I("v_xor_b32", v(t0), v(t0), v(t1))
    k.I("v_lshl_add_u32", v(vB), v(t0), 4, v(vB))
    k.I("v_and_b32", v(t0), 1, v(lane))
    k.I("v_lshl_add_u32", v(vB), v(t0), 3, v(vB))
    k.I("s_lshr_b32", s(st0), s(swave), 2)
    k.I("s_mul_i32", s(st0), s(st0), 224 * 128)
    k.I("v_add_u32", v(vB), s(st0), v(vB))
    for i in range(4): k.I("v_mov_b32", v(ones + i), "0x3f803f80")
    k.I("s_waitcnt", "vmcnt(0) lgkmcnt(0)")
    k.I("s_barrier")
    bf = [k.valloc(4) for _ in range(7)]
    for kk in range(7):
        for beta in range(2):
            k.I("ds_read_b64_tr_b16", vr(bf[kk] + 2 * beta, 2), v(vB), mods=f"offset:{(32 * kk + 4 * beta) * 128}")
    ca = k.valloc(4)
    k.I("s_waitcnt", "lgkmcnt(0)")
    for kk in range(7):
        k.I("v_mfma_f32_16x16x32_bf16", vr(ca, 4), vr(ones, 4), vr(bf[kk], 4), 0 if kk == 0 else vr(ca, 4))
    k.I("v_and_b32", v(t0), 15, v(lane))
    k.I("s_lshl_b32", s(st0), s(sw3), 6)
    k.I("s_add_u32", s(st0), s(st0), TB)
    k.I("v_lshlrev_b32", v(t0), 2, v(t0))
    k.I("v_add_u32", v(t0), s(st0), v(t0))
    k.I("s_mov_b32", "exec_lo", "0xffff")
    k.I("s_mov_b32", "exec_hi", 0)
    k.I("ds_add_f32", v(t0), v(ca))
    k.I("s_mov_b64", "exec", -1)
    k.I("s_waitcnt", "lgkmcnt(0)")
    k.I("s_barrier")
    k.I("s_cmp_lg_u32", s(swave), 0)
    k.I("s_cbranch_scc1", R["done"])
    k.I("v_lshlrev_b32", v(t0), 2, v(lane))
    k.I("v_add_u32", v(t1), TB, v(t0))
    k.I("ds_read_b32", v(z), v(t1))
    k.I("s_lshl_b32", s(st0), s(sa), 8)
    k.I("s_add_u32", s(st0), s(st0), hex(CW_OFF))
    k.I("s_waitcnt", "lgkmcnt(0)")
    k.I("buffer_store_dword", v(z), v(t0), sr(sWS, 4), s(st0), mods="offen")
    k.L(R["done"])
    k.I("s_endpgm")
    k.lds = lds; k.threads = 512; k.grid = 256
    return k


GELU_C0 = -2.0 * math.sqrt(2.0 / math.pi) * math.log2(math.e)
GELU_C1 = GELU_C0 * 0.044715

def gen_k4(Stamper):
    k = Kernel("k4_win_kernel")
    NS = 4; SLOT = 32768; TRB = NS * SLOT
    STB = TRB
    lds = TRB + 4096
    R = common_start(k, 256)
    swave, st0, st1, soff, lane, t0, t1, t2 = (R[x] for x in ("swave", "st0", "st1", "soff", "lane", "t0", "t1", "t2"))
    pWin = k.salloc(2); pWS = k.salloc(2)
    k.I("s_load_dwordx2", sr(pWin, 2), "s[0:1]", 32)
    k.I("s_load_dwordx2", sr(pWS, 2), "s[0:1]", 80)
    sWS = k.salloc(4); sWin = k.salloc(4)
    sj = k.salloc(); sidx = k.salloc(); srb = k.salloc(); sct = k.salloc(); sw3 = k.salloc()
    k.I("s_and_b32", s(sj), "s2", 7)
    k.I("s_lshr_b32", s(sidx), "s2", 3)
    k.I("s_and_b32", s(sw3), s(swave), 3)
    pfrole = k.newlabel("pfrole")
    k.I("s_cmp_ge_u32", s(sidx), 28)
    k.I("s_cbranch_scc1", pfrole)
    k.I("s_cmp_ge_u32", s(sidx), 14)
    k.I("s_cselect_b32", s(st0), 1, 0)
    k.I("s_mul_i32", s(st1), s(st0), 14)
    k.I("s_sub_u32", s(sct), s(sidx), s(st1))
    k.I("s_lshl_b32", s(srb), s(sj), 1)
    k.I("s_add_u32", s(srb), s(srb), s(st0))
    stp = Stamper(k, 3, sWS, swave)
    k.I("s_waitcnt", "lgkmcnt(0)")
    srd(k, sWS, pWS, WS_SIZE)
    comp = k.newlabel("compute")
    k.I("s_cmp_lt_u32", s(swave), 4)
    k.I("s_cbranch_scc1", comp)
    vsave = k.vnext
    srd(k, sWin, pWin, 448 * 3584)
    v16 = k.valloc(); vWo = k.valloc()
    k.I("v_lshlrev_b32", v(v16), 4, v(lane))
    k.I("v_lshrrev_b32", v(t0), 4, v(lane))
    k.I("v_lshlrev_b32", v(t1), 2, v(t0))
    k.I("v_and_b32", v(t2), 15, v(lane))
    k.I("v_xor_b32", v(t1), v(t1), v(t2))
    k.I("v_mul_u32_u24", v(vWo), 3584, v(t0))
    k.I("v_and_b32", v(t2), 7, v(t1))
    k.I("v_lshl_add_u32", v(vWo), v(t2), 4, v(vWo))
    k.I("v_add_u32", v(t2), 1792, v(vWo))
    k.I("v_cmp_gt_u32", "vcc", 8, v(t1))
    k.I("v_cndmask_b32", v(vWo), v(vWo), v(t2), "vcc")
    sHb = k.salloc(); sWb = k.salloc(); smH = k.salloc(); smW = k.salloc()
    k.I("s_lshl_b32", s(st0), s(srb), 2)
    k.I("s_add_u32", s(st0), s(st0), s(sw3))
    k.I("s_mul_i32", s(sHb), s(st0), 28 * 1024)
    k.I("s_add_u32", s(sHb), s(sHb), hex(H_OFF))
    k.I("s_lshl_b32", s(smH), s(sw3), 12)
    k.I("s_mul_i32", s(sWb), s(sw3), 16 * 3584)
    k.I("s_lshl_b32", s(st1), s(sct), 7)
    k.I("s_add_u32", s(sWb), s(sWb), s(st1))
    k.I("s_add_u32", s(smW), s(smH), 16384)
    def issue(c):
        sl = (c % NS) * SLOT
        for i in range(4):
            k.I("s_add_u32", s(soff), s(sHb), hex((4 * c + i) * 1024))
            k.I("s_add_u32", "m0", s(smH), hex(sl + i * 1024))
            k.vm(("S", c), "buffer_load_dwordx4", v(v16), sr(sWS, 4), s(soff), mods="offen lds")
        for i in range(4):
            k.I("s_add_u32", s(soff), s(sWb), hex((64 * c + 4 * i) * 3584))
            k.I("s_add_u32", "m0", s(smW), hex(sl + i * 1024))
            k.vm(("S", c), "buffer_load_dwordx4", v(vWo), sr(sWin, 4), s(soff), mods="offen lds")
    issue(0); issue(1)
    for c in range(7):
        k.wait_vm(("S", c))
        k.I("s_barrier")
        if c == 0: issue(2); issue(3)
        elif c + 2 < 7 and c >= 2: issue(c + 2)
    k.I("s_barrier")
    k.I("s_endpgm")
    k.L(comp)
    k.vnext = vsave; k.vmq = []; k.lgq = []
    l31 = k.valloc(); hh = k.valloc()
    k.I("v_and_b32", v(l31), 31, v(lane))
    k.I("v_lshrrev_b32", v(hh), 5, v(lane))
    srh = k.salloc(); sch = k.salloc(); sst = k.salloc()
    k.I("s_and_b32", s(srh), s(swave), 1)
    k.I("s_lshr_b32", s(sch), s(swave), 1)
    k.I("s_lshl_b32", s(sst), s(srb), 2)
    k.I("s_lshl_b32", s(st0), s(srh), 1)
    k.I("s_add_u32", s(sst), s(sst), s(st0))
    hs = [k.valloc(16, 4) for _ in range(2)]
    vh = k.valloc()
    k.I("v_mul_u32_u24", v(vh), 112, v(l31))
    k.I("v_lshl_add_u32", v(vh), v(hh), 6, v(vh))
    for t in range(2):
        k.I("s_add_u32", s(st0), s(sst), t)
        k.I("s_mul_i32", s(soff), s(st0), 32 * 112)
        k.I("s_add_u32", s(soff), s(soff), hex(HS_OFF))
        for i in range(4):
            k.vm("hs", "buffer_load_dwordx4", vr(hs[t] + 4 * i, 4), v(vh), sr(sWS, 4), s(soff), mods=f"offen offset:{16 * i}")
    cw = [k.valloc(16, 4) for _ in range(2)]
    vc = k.valloc()
    k.I("v_lshlrev_b32", v(vc), 4, v(hh))
    k.I("s_lshl_b32", s(st0), s(sct), 8)
    k.I("s_lshl_b32", s(st1), s(sch), 7)
    k.I("s_add_u32", s(st0), s(st0), s(st1))
    for z in range(2):
        k.I("s_add_u32", s(soff), s(st0), hex(CW_OFF + (896 * 4 if z == 0 else 0)))
        for q in range(4):
            k.vm("cw", "buffer_load_dwordx4", vr(cw[z] + 4 * q, 4), v(vc), sr(sWS, 4), s(soff), mods=f"offen offset:{32 * q}")
    if os.environ.get("PF2", "0") == "1":
        pp = k.salloc(2); sP = k.salloc(4); vT = k.valloc(); vd = k.valloc(2)
        k.I("s_load_dwordx2", sr(pp, 2), "s[0:1]", 40)
        k.I("s_lshl_b32", s(st0), s(sidx), 8)
        k.I("v_add_u32", v(vT), s(st0), "v0")
        k.I("s_waitcnt", "lgkmcnt(0)")
        srd(k, sP, pp, 2048 * 4096)
        k.I("s_lshr_b32", s(st0), s(sj), 1)
        k.I("s_lshl_b32", s(st0), s(st0), 21)
        k.I("s_and_b32", s(st1), s(sj), 1)
        k.I("s_lshl_b32", s(st1), s(st1), 11)
        k.I("s_add_u32", s(st0), s(st0), s(st1))
        for i in range(2):
            k.I("v_add_u32", v(t0), 7168 * i, v(vT))
            k.I("v_lshrrev_b32", v(t1), 4, v(t0))
            k.I("v_lshlrev_b32", v(t1), 12, v(t1))
            k.I("v_and_b32", v(t2), 15, v(t0))
            k.I("v_lshl_add_u32", v(t1), v(t2), 7, v(t1))
            if i == 1:
                k.I("v_mov_b32", v(t2), "0x7fffff00")
                k.I("v_cmp_gt_u32", "vcc", 8192, v(t0))
                k.I("v_cndmask_b32", v(t1), v(t2), v(t1), "vcc")
            k.vm("pf", "buffer_load_dword", v(vd + i), v(t1), sr(sP, 4), s(st0), mods="offen")
    code_prefetch(k, "k5_sp_kernel", sidx, st0)
    stp.stamp(0)
    aH = k.valloc(); vW = [k.valloc(), k.valloc()]
    k.I("v_lshlrev_b32", v(aH), 4, v(lane))
    k.I("s_lshl_b32", s(st0), s(srh), 13)
    k.I("v_add_u32", v(aH), s(st0), v(aH))
    k.I("v_bfe_u32", v(t0), v(lane), 2, 2)
    k.I("v_lshl_add_u32", v(t1), v(hh), 2, v(t0))
    k.I("v_lshlrev_b32", v(t1), 8, v(t1))
    k.I("v_add_u32", v(t1), 16384, v(t1))
    k.I("v_bfe_u32", v(t2), v(lane), 4, 1)
    k.I("v_lshlrev_b32", v(t2), 1, v(t2))
    k.I("v_bfe_u32", v(vW[0]), v(lane), 1, 1)
    k.I("v_add_u32", v(t2), v(t2), v(vW[0]))
    k.I("s_lshl_b32", s(st0), s(sch), 2)
    k.I("v_add_u32", v(t2), s(st0), v(t2))
    k.I("v_lshlrev_b32", v(t0), 2, v(t0))
    k.I("v_xor_b32", v(vW[0]), v(t2), v(t0))
    k.I("v_add_u32", v(t2), 8, v(t2))
    k.I("v_xor_b32", v(vW[1]), v(t2), v(t0))
    k.I("v_and_b32", v(t2), 1, v(lane))
    for z in range(2):
        k.I("v_lshl_add_u32", v(vW[z]), v(vW[z]), 4, v(t1))
        k.I("v_lshl_add_u32", v(vW[z]), v(t2), 3, v(vW[z]))
    aH2 = k.valloc(); vW2 = [k.valloc(), k.valloc()]
    k.I("v_add_u32", v(aH2), 65536, v(aH))
    for z in range(2): k.I("v_add_u32", v(vW2[z]), 65536, v(vW[z]))
    acc = [[k.valloc(16, 4) for _ in range(2)] for _ in range(2)]
    vmark = k.vnext
    NB = 3
    hf = [[k.valloc(4) for _ in range(2)] for _ in range(NB)]
    wf = [[k.valloc(4) for _ in range(2)] for _ in range(NB)]
    def rl(ks):
        c, j = ks // 4, ks % 4
        b = ks % NB
        sl = (c % NS) * SLOT
        hi = sl >= 65536
        so = sl - (65536 if hi else 0)
        out = []
        for t in range(2):
            out.append(lambda t=t: k.lg(("f", ks), "ds_read_b128", vr(hf[b][t], 4), v(aH2 if hi else aH), mods=f"offset:{so + t * 4096 + j * 1024}"))
        for z in range(2):
            for beta in range(2):
                o = so + (16 * j + 8 * beta) * 256
                out.append(lambda o=o, z=z, beta=beta: k.lg(("f", ks), "ds_read_b64_tr_b16", vr(wf[b][z] + 2 * beta, 2), v((vW2 if hi else vW)[z]), mods=f"offset:{o}"))
        return out
    k.I("s_barrier")
    stp.stamp(1)
    for f in rl(0) + rl(1): f()
    for ks in range(28):
        c, j = ks // 4, ks % 4
        b = ks % NB
        k.wait_lg(("f", ks))
        mf = []
        for z in range(2):
            for t in range(2):
                mf.append(lambda z=z, t=t: k.I("v_mfma_f32_32x32x16_bf16", vr(acc[z][t], 16), vr(wf[b][z], 4), vr(hf[b][t], 4), 0 if ks == 0 else vr(acc[z][t], 16)))
        if j == 2 and c < 6:
            pass
        fl = rl(ks + 2) if ks + 2 < 28 else []
        if j == 2 and ks + 2 < 28:
            k.I("s_barrier")
        interleave(k, mf, fl)
    stp.stamp(2)
    k.vnext = vmark
    k.wait_vm(["hs", "cw"])
    rr = [k.valloc(2) for _ in range(2)]; nm = [k.valloc(2) for _ in range(2)]
    c0r = [k.valloc(2) for _ in range(2)]; c1r = [k.valloc(2) for _ in range(2)]
    k.I("v_cmp_eq_u32", "vcc", 0, v(hh))
    for t in range(2):
        H = hs[t]
        for i in range(12, 16): k.I("v_cndmask_b32", v(H + i), 0, v(H + i), "vcc")
        for i in range(4): k.I("v_pk_add_f32", vr(H + 2 * i, 2), vr(H + 2 * i, 2), vr(H + 8 + 2 * i, 2))
        for i in range(2): k.I("v_pk_add_f32", vr(H + 2 * i, 2), vr(H + 2 * i, 2), vr(H + 4 + 2 * i, 2))
        k.I("v_pk_add_f32", vr(H, 2), vr(H, 2), vr(H + 2, 2))
        for e in range(2):
            k.I("v_mov_b32", v(H + 2), v(H + e))
            k.I("v_permlane32_swap_b32", v(H + e), v(H + 2))
            k.I("v_add_f32", v(H + e), v(H + e), v(H + 2))
        k.I("v_mul_f32", v(nm[t]), hex(f32(-1.0 / 448)), v(H))
        k.I("v_mul_f32", v(H + 1), hex(f32(1.0 / 448)), v(H + 1))
        k.I("v_fma_f32", v(H + 1), f"-{v(nm[t])}", v(nm[t]), v(H + 1))
        k.I("v_max_f32", v(H + 1), 0, v(H + 1))
        k.I("v_add_f32", v(H + 1), hex(f32(1e-5)), v(H + 1))
        k.I("v_rsq_f32", v(rr[t]), v(H + 1))
        k.I("v_mul_f32", v(c0r[t]), hex(f32(GELU_C0)), v(rr[t]))
        k.I("v_mul_f32", v(c1r[t]), v(rr[t]), v(rr[t]))
        k.I("v_mul_f32", v(c1r[t]), v(c1r[t]), v(rr[t]))
        k.I("v_mul_f32", v(c1r[t]), hex(f32(GELU_C1)), v(c1r[t]))
    norh = k.newlabel("norh")
    k.I("s_or_b32", s(st0), s(sct), s(sch))
    k.I("s_cmp_lg_u32", s(st0), 0)
    k.I("s_cbranch_scc1", norh)
    k.I("v_lshlrev_b32", v(t0), 2, v(l31))
    for t in range(2):
        k.I("s_add_u32", s(st0), s(sst), t)
        k.I("s_lshl_b32", s(st0), s(st0), 7)
        k.I("s_add_u32", s(st0), s(st0), hex(RH_OFF))
        k.I("buffer_store_dword", v(rr[t]), v(t0), sr(sWS, 4), s(st0), mods="offen")
    k.L(norh)
    tp = [k.valloc(2) for _ in range(4)]
    def gelu_tile(A, z, t):
        for j in range(8):
            k.I("v_pk_fma_f32", vr(A + 2 * j, 2), vr(cw[z] + 2 * j, 2), vr(nm[t], 2), vr(A + 2 * j, 2), mods="op_sel_hi:[1,0,1]")
        for j0 in range(0, 8, 4):
            for j in range(j0, j0 + 4):
                T = tp[j - j0]
                k.I("v_pk_mul_f32", vr(T, 2), vr(A + 2 * j, 2), vr(A + 2 * j, 2))
            for j in range(j0, j0 + 4):
                T = tp[j - j0]
                k.I("v_pk_fma_f32", vr(T, 2), vr(T, 2), vr(c1r[t], 2), vr(c0r[t], 2), mods="op_sel_hi:[1,0,0]")
            for j in range(j0, j0 + 4):
                T = tp[j - j0]
                k.I("v_pk_mul_f32", vr(T, 2), vr(T, 2), vr(A + 2 * j, 2))
            for j in range(j0, j0 + 4):
                T = tp[j - j0]
                k.I("v_exp_f32", v(T), v(T)); k.I("v_exp_f32", v(T + 1), v(T + 1))
            for j in range(j0, j0 + 4):
                T = tp[j - j0]
                k.I("v_pk_add_f32", vr(T, 2), vr(T, 2), "1.0", mods="op_sel_hi:[1,0]")
            for j in range(j0, j0 + 4):
                T = tp[j - j0]
                k.I("v_rcp_f32", v(T), v(T)); k.I("v_rcp_f32", v(T + 1), v(T + 1))
            for j in range(j0, j0 + 4):
                T = tp[j - j0]
                k.I("v_pk_mul_f32", vr(A + 2 * j, 2), vr(A + 2 * j, 2), vr(T, 2))
    accs = [k.valloc(2) for _ in range(2)]; accq = [k.valloc(2) for _ in range(2)]
    for t in range(2):
        A = acc[0][t]
        gelu_tile(A, 0, t)
        for j in range(8):
            k.I("v_pk_mul_f32", vr(A + 2 * j, 2), vr(A + 2 * j, 2), vr(rr[t], 2), mods="op_sel_hi:[1,0]")
        k.I("v_pk_add_f32", vr(accs[t], 2), vr(A, 2), vr(A + 2, 2))
        k.I("v_pk_mul_f32", vr(accq[t], 2), vr(A, 2), vr(A, 2))
        k.I("v_pk_fma_f32", vr(accq[t], 2), vr(A + 2, 2), vr(A + 2, 2), vr(accq[t], 2))
        for j in range(2, 8):
            k.I("v_pk_add_f32", vr(accs[t], 2), vr(accs[t], 2), vr(A + 2 * j, 2))
            k.I("v_pk_fma_f32", vr(accq[t], 2), vr(A + 2 * j, 2), vr(A + 2 * j, 2), vr(accq[t], 2))
        k.I("v_add_f32", v(accs[t]), v(accs[t]), v(accs[t] + 1))
        k.I("v_add_f32", v(accs[t] + 1), v(accq[t]), v(accq[t] + 1))
        for e in range(2):
            k.I("v_mov_b32", v(accq[t]), v(accs[t] + e))
            k.I("v_permlane32_swap_b32", v(accs[t] + e), v(accq[t]))
            k.I("v_add_f32", v(accs[t] + e), v(accs[t] + e), v(accq[t]))
    vs = k.valloc()
    k.I("v_lshlrev_b32", v(vs), 3, v(l31))
    k.I("s_lshl_b32", s(st0), s(srh), 9)
    k.I("s_add_u32", s(st0), s(st0), STB)
    k.I("v_add_u32", v(vs), s(st0), v(vs))
    k.I("s_lshl_b32", s(st0), s(sch), 10)
    k.I("v_add_u32", v(t0), s(st0), v(vs))
    for t in range(2):
        k.I("ds_write_b64", v(t0), vr(accs[t], 2), mods=f"offset:{t * 256}")
    k.I("s_waitcnt", "lgkmcnt(0)")
    k.I("s_barrier")
    pub = k.newlabel("nopub")
    k.I("s_cmp_lg_u32", s(sch), 0)
    k.I("s_cbranch_scc1", pub)
    oth = k.valloc(4)
    for t in range(2):
        k.I("ds_read_b64", vr(oth + 2 * t, 2), v(vs), mods=f"offset:{1024 + t * 256}")
    k.I("s_waitcnt", "lgkmcnt(0)")
    for t in range(2):
        k.I("v_pk_add_f32", vr(oth + 2 * t, 2), vr(oth + 2 * t, 2), vr(accs[t], 2))
        k.I("v_mov_b32", v(t1), "0x7fc00000")
        k.I("v_cmp_eq_u32", "vcc", -1, v(oth + 2 * t + 1))
        k.I("v_cndmask_b32", v(oth + 2 * t + 1), v(oth + 2 * t + 1), v(t1), "vcc")
    ve = k.valloc()
    k.I("v_mul_u32_u24", v(ve), 112, v(l31))
    k.I("s_mul_i32", s(soff), s(sst), 32 * 112)
    k.I("s_lshl_b32", s(st0), s(sct), 3)
    k.I("s_add_u32", s(soff), s(soff), s(st0))
    k.I("s_add_u32", s(soff), s(soff), hex(EX_OFF))
    k.I("s_mov_b32", "exec_hi", 0)
    for t in range(2):
        k.I("buffer_store_dwordx2", vr(oth + 2 * t, 2), v(ve), sr(sWS, 4), s(soff), mods=f"offen offset:{t * 32 * 112} sc0 sc1")
    k.I("s_mov_b64", "exec", -1)
    k.L(pub)
    stp.stamp(3)
    v16 = k.valloc()
    k.I("v_lshlrev_b32", v(v16), 4, v(lane))
    P = [k.valloc(8, 4) for _ in range(2)]
    sft = k.salloc()
    k.I("s_lshl_b32", s(sft), s(sct), 1)
    k.I("s_add_u32", s(sft), s(sft), s(sch))
    for t in range(2):
        A = acc[1][t]
        gelu_tile(A, 1, t)
        for j in range(8): k.I("v_cvt_pk_bf16_f32", v(P[t] + j), v(A + 2 * j), v(A + 2 * j + 1))
        k.I("s_add_u32", s(st0), s(sst), t)
        k.I("s_mul_i32", s(soff), s(st0), 56 * 1024)
        k.I("s_lshl_b32", s(st0), s(sft), 11)
        k.I("s_add_u32", s(soff), s(soff), s(st0))
        k.I("s_add_u32", s(soff), s(soff), hex(Z1_OFF))
        k.I("buffer_store_dwordx4", vr(P[t], 4), v(v16), sr(sWS, 4), s(soff), mods="offen")
        k.I("buffer_store_dwordx4", vr(P[t] + 4, 4), v(v16), sr(sWS, 4), s(soff), mods="offen offset:1024")
    stp.stamp(4)
    ex = hs
    k.I("v_mul_u32_u24", v(vh), 112, v(l31))
    k.I("v_lshl_add_u32", v(vh), v(hh), 6, v(vh))
    k.I("s_mul_i32", s(soff), s(sst), 32 * 112)
    k.I("s_add_u32", s(soff), s(soff), hex(EX_OFF))
    scount = k.salloc(); sbad = k.salloc(2)
    k.I("s_mov_b32", s(scount), 0)
    poll = k.newlabel("poll"); pdone = k.newlabel("pdone")
    k.L(poll)
    for t in range(2):
        for i in range(4):
            k.I("buffer_load_dwordx4", vr(ex[t] + 4 * i, 4), v(vh), sr(sWS, 4), s(soff), mods=f"offen offset:{t * 32 * 112 + 16 * i} sc0 sc1")
    k.I("s_waitcnt", "vmcnt(0)")
    k.I("v_cmp_eq_u32", "vcc", 0, v(hh))
    for t in range(2):
        for i in range(12, 16): k.I("v_cndmask_b32", v(ex[t] + i), 0, v(ex[t] + i), "vcc")
    k.I("v_max_u32", v(t0), v(ex[0] + 1), v(ex[0] + 3))
    for t in range(2):
        for i in range(8):
            if t == 0 and i < 2: continue
            k.I("v_max_u32", v(t0), v(t0), v(ex[t] + 2 * i + 1))
    k.I("v_cmp_eq_u32", "vcc", -1, v(t0))
    k.I("s_add_u32", s(scount), s(scount), 1)
    k.I("s_cmp_eq_u64", "vcc", 0)
    k.I("s_cbranch_scc1", pdone)
    k.I("s_cmp_lt_u32", s(scount), 0x40000)
    k.I("s_cbranch_scc0", pdone)
    k.I("s_sleep", 1)
    k.I("s_branch", poll)
    k.L(pdone)
    sc_ = [k.valloc(2) for _ in range(2)]; zm = [k.valloc(2) for _ in range(2)]
    for t in range(2):
        H = ex[t]
        for i in range(4): k.I("v_pk_add_f32", vr(H + 2 * i, 2), vr(H + 2 * i, 2), vr(H + 8 + 2 * i, 2))
        for i in range(2): k.I("v_pk_add_f32", vr(H + 2 * i, 2), vr(H + 2 * i, 2), vr(H + 4 + 2 * i, 2))
        k.I("v_pk_add_f32", vr(H, 2), vr(H, 2), vr(H + 2, 2))
        for e in range(2):
            k.I("v_mov_b32", v(H + 2), v(H + e))
            k.I("v_permlane32_swap_b32", v(H + e), v(H + 2))
            k.I("v_add_f32", v(H + e), v(H + e), v(H + 2))
        k.I("v_mul_f32", v(zm[t]), hex(f32(-1.0 / 896)), v(H))
        k.I("v_mul_f32", v(H + 1), hex(f32(1.0 / 896)), v(H + 1))
        k.I("v_fma_f32", v(H + 1), f"-{v(zm[t])}", v(zm[t]), v(H + 1))
        k.I("v_max_f32", v(H + 1), 0, v(H + 1))
        k.I("v_add_f32", v(H + 1), hex(f32(1e-5)), v(H + 1))
        k.I("v_rsq_f32", v(sc_[t]), v(H + 1))
        k.I("v_mul_f32", v(zm[t]), v(zm[t]), v(sc_[t]))
    TW = 0
    vt = k.valloc(); vtr = k.valloc()
    k.I("v_lshlrev_b32", v(vt), 6, v(l31))
    k.I("v_lshl_add_u32", v(vt), v(hh), 3, v(vt))
    k.I("s_lshl_b32", s(st0), s(swave), 12)
    k.I("v_add_u32", v(vt), s(st0), v(vt))
    for t in range(2):
        A = acc[0][t]
        for j in range(8):
            k.I("v_pk_fma_f32", vr(A + 2 * j, 2), vr(A + 2 * j, 2), vr(sc_[t], 2), vr(zm[t], 2), mods="op_sel_hi:[1,0,0]")
        for j in range(8): k.I("v_cvt_pk_bf16_f32", v(P[t] + j), v(A + 2 * j), v(A + 2 * j + 1))
        for q in range(4):
            k.I("ds_write_b64", v(vt), vr(P[t] + 2 * q, 2), mods=f"offset:{t * 2048 + 16 * q}")
    k.I("v_bfe_u32", v(t0), v(lane), 2, 2)
    k.I("v_lshl_add_u32", v(t0), v(hh), 3, v(t0))
    k.I("v_lshlrev_b32", v(vtr), 6, v(t0))
    k.I("v_bfe_u32", v(t0), v(lane), 4, 1)
    k.I("v_lshl_add_u32", v(vtr), v(t0), 5, v(vtr))
    k.I("v_and_b32", v(t0), 3, v(lane))
    k.I("v_lshl_add_u32", v(vtr), v(t0), 3, v(vtr))
    k.I("s_lshl_b32", s(st0), s(swave), 12)
    k.I("v_add_u32", v(vtr), s(st0), v(vtr))
    k.I("s_waitcnt", "lgkmcnt(0)")
    Z = cw[0]
    for ks in range(4):
        for beta in range(2):
            k.I("ds_read_b64_tr_b16", vr(Z + 4 * ks + 2 * beta, 2), v(vtr), mods=f"offset:{(16 * ks + 4 * beta) * 64}")
    k.I("s_mul_i32", s(soff), s(sft), ZS)
    k.I("s_lshr_b32", s(st0), s(sst), 5)
    k.I("s_mul_i32", s(st0), s(st0), ZK)
    k.I("s_add_u32", s(soff), s(soff), s(st0))
    k.I("s_and_b32", s(st0), s(sst), 31)
    k.I("s_lshl_b32", s(st0), s(st0), 11)
    k.I("s_add_u32", s(soff), s(soff), s(st0))
    k.I("s_add_u32", s(soff), s(soff), hex(Z2_OFF))
    for ks in range(4):
        k.I("s_waitcnt", f"lgkmcnt({6 - 2 * ks})")
        k.I("buffer_store_dwordx4", vr(Z + 4 * ks, 4), v(v16), sr(sWS, 4), s(soff), mods=f"offen offset:{ks * 1024}")
    stp.stamp(5)
    k.I("s_endpgm")
    k.L(pfrole)
    pp = k.salloc(2); sP = k.salloc(4); vT = k.valloc(); vd = k.valloc(4)
    k.I("s_load_dwordx2", sr(pp, 2), "s[0:1]", 40)
    k.I("s_sub_u32", s(st0), s(sidx), 28)
    k.I("s_lshl_b32", s(st0), s(st0), 9)
    k.I("v_add_u32", v(vT), s(st0), "v0")
    k.I("s_lshr_b32", s(st0), s(sj), 1)
    k.I("s_lshl_b32", s(st0), s(st0), 21)
    k.I("s_and_b32", s(st1), s(sj), 1)
    k.I("s_lshl_b32", s(st1), s(st1), 11)
    k.I("s_add_u32", s(st0), s(st0), s(st1))
    k.I("s_waitcnt", "lgkmcnt(0)")
    srd(k, sP, pp, 2048 * 4096)
    for i in range(4):
        k.I("v_add_u32", v(t0), 2048 * i, v(vT))
        k.I("v_lshrrev_b32", v(t1), 4, v(t0))
        k.I("v_lshlrev_b32", v(t1), 12, v(t1))
        k.I("v_and_b32", v(t2), 15, v(t0))
        k.I("v_lshl_add_u32", v(t1), v(t2), 7, v(t1))
        k.I("buffer_load_dword", v(vd + i), v(t1), sr(sP, 4), s(st0), mods="offen")
    k.L(R["done"])
    k.I("s_endpgm")
    k.lds = lds; k.threads = 512; k.grid = 256
    return k


def gen_k5(Stamper):
    k = Kernel("k5_sp_kernel")
    NS = 4; SLOT = 32768
    Z1REG = NS * SLOT
    lds = Z1REG + 32768
    R = common_start(k, 256)
    swave, st0, st1, soff, lane, t0, t1, t2 = (R[x] for x in ("swave", "st0", "st1", "soff", "lane", "t0", "t1", "t2"))
    pSp = k.salloc(2); pB = k.salloc(2); pWS = k.salloc(2)
    k.I("s_load_dwordx2", sr(pSp, 2), "s[0:1]", 40)
    k.I("s_load_dwordx2", sr(pB, 2), "s[0:1]", 48)
    k.I("s_load_dwordx2", sr(pWS, 2), "s[0:1]", 80)
    sWS = k.salloc(4); sSp = k.salloc(4); sB = k.salloc(4)
    sj = k.salloc(); sidx = k.salloc(); stt = k.salloc(); sft = k.salloc(); skap = k.salloc(); sw3 = k.salloc()
    if os.environ.get("K5MAP") == "linear":
        k.I("s_mul_i32", s(sj), "s2", 2341)
        k.I("s_lshr_b32", s(sj), s(sj), 16)
        k.I("s_mul_i32", s(sidx), s(sj), 28)
        k.I("s_sub_u32", s(sidx), "s2", s(sidx))
    else:
        k.I("s_and_b32", s(sj), "s2", 7)
        k.I("s_lshr_b32", s(sidx), "s2", 3)
    pfrole = k.newlabel("pfrole")
    k.I("s_cmp_ge_u32", s(sidx), 28)
    k.I("s_cbranch_scc1", pfrole)
    k.I("s_and_b32", s(sw3), s(swave), 3)
    k.I("s_and_b32", s(skap), s(sj), 1)
    k.I("s_mul_i32", s(st0), s(sidx), 37)
    k.I("s_lshr_b32", s(st0), s(st0), 8)
    k.I("s_mul_i32", s(st1), s(st0), 7)
    k.I("s_sub_u32", s(sft), s(sidx), s(st1))
    k.I("s_lshr_b32", s(stt), s(sj), 1)
    k.I("s_lshl_b32", s(stt), s(stt), 2)
    k.I("s_add_u32", s(stt), s(stt), s(st0))
    stp = Stamper(k, 4, sWS, swave)
    if os.environ.get("TICKWAVE", "0") != "0": stp.tick(0)
    k.I("s_waitcnt", "lgkmcnt(0)")
    srd(k, sWS, pWS, WS_SIZE)
    comp = k.newlabel("compute")
    k.I("s_cmp_lt_u32", s(swave), 4)
    k.I("s_cbranch_scc1", comp)
    vsave = k.vnext
    srd(k, sSp, pSp, 2048 * 4096)
    v16 = k.valloc(); vWo = k.valloc(2)
    k.I("v_lshlrev_b32", v(v16), 4, v(lane))
    k.I("v_lshrrev_b32", v(t0), 3, v(lane))
    k.I("v_lshlrev_b32", v(t0), 12, v(t0))
    k.I("v_lshrrev_b32", v(t1), 4, v(lane))
    k.I("v_and_b32", v(t2), 7, v(lane))
    k.I("v_xor_b32", v(t1), v(t1), v(t2))
    k.I("v_lshl_add_u32", v(vWo), v(t1), 4, v(t0))
    k.I("v_xor_b32", v(t1), 4, v(t1))
    k.I("v_lshl_add_u32", v(vWo + 1), v(t1), 4, v(t0))
    sZb = k.salloc(); sWb = k.salloc(); smZ = k.salloc(); smW = k.salloc()
    k.I("s_lshl_b32", s(st0), s(sft), 2)
    k.I("s_add_u32", s(st0), s(st0), s(sw3))
    k.I("s_mul_i32", s(sZb), s(st0), ZS)
    k.I("s_mul_i32", s(st1), s(skap), ZK)
    k.I("s_add_u32", s(sZb), s(sZb), s(st1))
    k.I("s_add_u32", s(sZb), s(sZb), hex(Z2_OFF))
    k.I("s_lshl_b32", s(smZ), s(sw3), 12)
    k.I("s_lshl_b32", s(st0), s(stt), 7)
    k.I("s_lshl_b32", s(st1), s(sw3), 5)
    k.I("s_add_u32", s(st0), s(st0), s(st1))
    k.I("s_lshl_b32", s(sWb), s(st0), 12)
    k.I("s_lshl_b32", s(st1), s(skap), 11)
    k.I("s_add_u32", s(sWb), s(sWb), s(st1))
    k.I("s_add_u32", s(smW), s(smZ), 16384)
    def issue(c):
        sl = (c % NS) * SLOT
        def zpart():
            for i in range(4):
                k.I("s_add_u32", s(soff), s(sZb), hex((4 * c + i) * 1024))
                k.I("s_add_u32", "m0", s(smZ), hex(sl + i * 1024))
                k.vm(("S", c), "buffer_load_dwordx4", v(v16), sr(sWS, 4), s(soff), mods="offen lds")
                if os.environ.get("DIAG5") and c == 0 and i in (0, 3):
                    k.I("s_waitcnt", "vmcnt(0)"); stp.tick(10 + (i > 0))
        def wpart():
            for i in range(4):
                k.I("s_add_u32", s(soff), s(sWb), hex(i * 8 * 4096 + c * 128))
                k.I("s_add_u32", "m0", s(smW), hex(sl + i * 1024))
                k.vm(("S", c), "buffer_load_dwordx4", v(vWo + (i & 1)), sr(sSp, 4), s(soff), mods="offen lds")
                if os.environ.get("DIAG5") and c == 0 and i in (0, 3):
                    k.I("s_waitcnt", "vmcnt(0)"); stp.tick(12 + (i > 0))
        if os.environ.get("DIAG5") == "2": wpart(); zpart()
        else: zpart(); wpart()
    NST = 16
    sZ1 = k.salloc()
    k.I("s_lshl_b32", s(st0), s(stt), 2)
    k.I("s_add_u32", s(st0), s(st0), s(sw3))
    k.I("s_mul_i32", s(sZ1), s(st0), 56 * 1024)
    k.I("s_lshl_b32", s(st1), s(sft), 13)
    k.I("s_add_u32", s(sZ1), s(sZ1), s(st1))
    k.I("s_add_u32", s(sZ1), s(sZ1), hex(Z1_OFF))
    smZ1 = k.salloc()
    k.I("s_lshl_b32", s(smZ1), s(sw3), 13)
    def issue_z1(i, tag):
        k.I("s_add_u32", s(soff), s(sZ1), hex(i * 1024))
        k.I("s_add_u32", "m0", s(smZ1), hex(Z1REG + i * 1024))
        k.vm(("S", tag), "buffer_load_dwordx4", v(v16), sr(sWS, 4), s(soff), mods="offen lds")
    LT = os.environ.get("TICKWAVE", "0") != "0"
    if LT: stp.tick(1)
    issue(0)
    if LT: stp.tick(2)
    issue(1)
    if LT: stp.tick(3)
    for c in range(NST):
        k.wait_vm(("S", c))
        if LT and c < 3: stp.tick(4 + 2 * c)
        k.I("s_barrier")
        if LT and c < 3: stp.tick(5 + 2 * c)
        if c == 0: issue(2); issue(3)
        elif c + 2 < NST and c >= 2:
            issue(c + 2)
            if 3 <= c < 11: issue_z1(c - 3, c + 2)
    vT = k.valloc()
    k.I("s_lshl_b32", s(st0), s(sidx), 8)
    k.I("v_subrev_u32", v(vT), 256, "v0")
    k.I("v_add_u32", v(vT), s(st0), v(vT))
    k.I("v_lshlrev_b32", v(vT), 7, v(vT))
    if LT: stp.dump_ticks()
    k.I("s_endpgm")
    k.L(comp)
    k.vnext = vsave; k.vmq = []; k.lgq = []
    srd(k, sB, pB, 4096)
    l31 = k.valloc(); hh = k.valloc()
    k.I("v_and_b32", v(l31), 31, v(lane))
    k.I("v_lshrrev_b32", v(hh), 5, v(lane))
    sfh = k.salloc(); sth = k.salloc(); sst = k.salloc(); sf32 = k.salloc()
    k.I("s_and_b32", s(sfh), s(swave), 1)
    k.I("s_lshr_b32", s(sth), s(swave), 1)
    k.I("s_lshl_b32", s(sst), s(stt), 2)
    k.I("s_lshl_b32", s(st0), s(sth), 1)
    k.I("s_add_u32", s(sst), s(sst), s(st0))
    k.I("s_lshl_b32", s(sf32), s(sft), 2)
    k.I("s_lshl_b32", s(st0), s(sfh), 1)
    k.I("s_add_u32", s(sf32), s(sf32), s(st0))
    if os.environ.get("PF3", "0") == "1":
        vT0 = k.valloc(); vd0 = k.valloc(2)
        k.I("s_lshl_b32", s(st0), s(sidx), 8)
        k.I("v_add_u32", v(vT0), s(st0), "v0")
        k.I("s_lshl_b32", s(st1), s(skap), 16)
        k.I("s_add_u32", s(st1), s(st1), hex(Z2_OFF))
        for i in range(2):
            k.I("v_add_u32", v(t0), 7168 * i, v(vT0))
            k.I("v_lshrrev_b32", v(t1), 9, v(t0))
            k.I("v_lshlrev_b32", v(t1), 17, v(t1))
            k.I("v_and_b32", v(t2), 511, v(t0))
            k.I("v_lshl_add_u32", v(t1), v(t2), 7, v(t1))
            k.vm("pf", "buffer_load_dword", v(vd0 + i), v(t1), sr(sWS, 4), s(st1), mods="offen")
    v16 = k.valloc()
    k.I("v_lshlrev_b32", v(v16), 4, v(lane))
    z1 = [[k.valloc(8, 4) for _ in range(2)] for _ in range(2)]
    rr = [k.valloc(2) for _ in range(2)]; bb = [k.valloc(2) for _ in range(2)]
    k.I("v_lshlrev_b32", v(t0), 2, v(l31))
    k.I("v_lshlrev_b32", v(t1), 1, v(l31))
    for ti in range(2):
        k.I("s_add_u32", s(st0), s(sst), ti)
        k.I("s_lshl_b32", s(soff), s(st0), 7)
        k.I("s_add_u32", s(soff), s(soff), hex(RH_OFF))
        k.vm("z1", "buffer_load_dword", v(rr[ti]), v(t0), sr(sWS, 4), s(soff), mods="offen")
        k.I("s_lshl_b32", s(soff), s(st0), 6)
        k.vm("z1", "buffer_load_ushort", v(bb[ti]), v(t1), sr(sB, 4), s(soff), mods="offen")
    if os.environ.get("PF2", "0") == "1":
        pp = k.salloc(2); sP = k.salloc(4); vT = k.valloc(); vd = k.valloc(2)
        k.I("s_load_dwordx2", sr(pp, 2), "s[0:1]", 56)
        k.I("s_lshl_b32", s(st0), s(sidx), 8)
        k.I("v_add_u32", v(vT), s(st0), "v0")
        k.I("v_lshlrev_b32", v(vT), 7, v(vT))
        k.I("s_waitcnt", "lgkmcnt(0)")
        srd(k, sP, pp, 896 * 896)
        k.vm("pf", "buffer_load_dword", v(vd), v(vT), sr(sP, 4), 0, mods="offen")
    code_prefetch(k, "k6_wout_kernel", sidx, st0)
    stp.stamp(0)
    aZ = k.valloc(); aW = k.valloc(4)
    k.I("s_lshl_b32", s(st0), s(sfh), 13)
    k.I("v_add_u32", v(aZ), s(st0), v(v16))
    k.I("v_bfe_u32", v(t0), v(l31), 1, 3)
    for j in range(4):
        k.I("v_add_u32", v(t1), 2 * j, v(hh))
        k.I("v_xor_b32", v(t1), v(t1), v(t0))
        k.I("v_lshlrev_b32", v(t1), 4, v(t1))
        k.I("v_lshl_add_u32", v(aW + j), v(l31), 7, v(t1))
        k.I("s_lshl_b32", s(st0), s(sth), 13)
        k.I("s_add_u32", s(st0), s(st0), 16384)
        k.I("v_add_u32", v(aW + j), s(st0), v(aW + j))
    aZ2 = k.valloc(); aW2 = k.valloc(4)
    k.I("v_add_u32", v(aZ2), 65536, v(aZ))
    for j in range(4): k.I("v_add_u32", v(aW2 + j), 65536, v(aW + j))
    acc = [[k.valloc(16, 4) for _ in range(2)] for _ in range(2)]
    NB = 3
    zf = [[k.valloc(4) for _ in range(2)] for _ in range(NB)]
    wf = [[k.valloc(4) for _ in range(2)] for _ in range(NB)]
    def rl(ks):
        c, j = ks // 4, ks % 4
        b = ks % NB
        sl = (c % NS) * SLOT
        hi = sl >= 65536
        so = sl - (65536 if hi else 0)
        out = []
        for fi in range(2):
            out.append(lambda fi=fi: k.lg(("f", ks), "ds_read_b128", vr(zf[b][fi], 4), v(aZ2 if hi else aZ), mods=f"offset:{so + fi * 4096 + j * 1024}"))
        for ti in range(2):
            out.append(lambda ti=ti: k.lg(("f", ks), "ds_read_b128", vr(wf[b][ti], 4), v((aW2 if hi else aW) + j), mods=f"offset:{so + ti * 4096}"))
        return out
    k.I("s_barrier")
    stp.stamp(1)
    for f in rl(0) + rl(1): f()
    NKS = NST * 4
    for ks in range(NKS):
        c, j = ks // 4, ks % 4
        b = ks % NB
        k.wait_lg(("f", ks))
        mf = []
        for fi in range(2):
            for ti in range(2):
                mf.append(lambda fi=fi, ti=ti: k.I("v_mfma_f32_32x32x16_bf16", vr(acc[fi][ti], 16), vr(zf[b][fi], 4), vr(wf[b][ti], 4), 0 if ks == 0 else vr(acc[fi][ti], 16)))
        fl = rl(ks + 2) if ks + 2 < NKS else []
        if j == 2 and ks + 2 < NKS:
            if not LT and c in (0, 13, 14): stp.tick({0: 0, 13: 1, 14: 2}[c])
            k.I("s_barrier")
        interleave(k, mf, fl)
    if not LT: stp.tick(3)
    stp.stamp(2)
    if not LT: stp.tick(4)
    if not LT: stp.tick(5)
    vz = k.valloc()
    k.I("s_lshl_b32", s(st0), s(sth), 14)
    k.I("s_lshl_b32", s(st1), s(sfh), 12)
    k.I("s_add_u32", s(st0), s(st0), s(st1))
    k.I("s_add_u32", s(st0), s(st0), Z1REG)
    k.I("v_add_u32", v(vz), s(st0), v(v16))
    for ti in range(2):
        for fi in range(2):
            for hf_ in range(2):
                k.lg(("z1", ti, fi), "ds_read_b128", vr(z1[fi][ti] + 4 * hf_, 4), v(vz), mods=f"offset:{ti * 8192 + fi * 2048 + hf_ * 1024}")
    k.wait_vm("z1")
    for ti in range(2):
        k.I("v_lshlrev_b32", v(bb[ti]), 16, v(bb[ti]))
        k.I("v_mul_f32", v(bb[ti]), v(bb[ti]), v(rr[ti]))
    k.I("s_cmp_eq_u32", s(skap), 0)
    k.I("s_cselect_b32", s(st0), "1.0", 0)
    for ti in range(2): k.I("v_mul_f32", v(bb[ti]), s(st0), v(bb[ti]))
    tp = [k.valloc(2) for _ in range(4)]
    P = [k.valloc(8, 4) for _ in range(2)]
    sU = k.salloc()
    k.I("s_mul_i32", s(sU), s(skap), U1_OFF - U0_OFF)
    k.I("s_add_u32", s(sU), s(sU), hex(U0_OFF))
    n = 0
    for ti in range(2):
        for fi in range(2):
            A = acc[fi][ti]; Zp = z1[fi][ti]; PP = P[n & 1]; n += 1
            for j in range(8):
                k.I("v_pk_fma_f32", vr(A + 2 * j, 2), vr(A + 2 * j, 2), vr(rr[ti], 2), vr(bb[ti], 2), mods="op_sel_hi:[1,0,0]")
            k.wait_lg(("z1", ti, fi))
            for j in range(8):
                T = tp[j % 4]
                k.I("v_lshlrev_b32", v(T), 16, v(Zp + j))
                k.I("v_and_b32", v(T + 1), "0xffff0000", v(Zp + j))
                k.I("v_pk_mul_f32", vr(A + 2 * j, 2), vr(A + 2 * j, 2), vr(T, 2))
            for j in range(8): k.I("v_cvt_pk_bf16_f32", v(PP + j), v(A + 2 * j), v(A + 2 * j + 1))
            k.I("s_add_u32", s(st0), s(sst), ti)
            k.I("s_mul_i32", s(soff), s(st0), 56 * 1024)
            k.I("s_add_u32", s(st0), s(sf32), fi)
            k.I("s_lshl_b32", s(st0), s(st0), 11)
            k.I("s_add_u32", s(soff), s(soff), s(st0))
            k.I("s_add_u32", s(soff), s(soff), s(sU))
            k.I("buffer_store_dwordx4", vr(PP, 4), v(v16), sr(sWS, 4), s(soff), mods="offen")
            k.I("buffer_store_dwordx4", vr(PP + 4, 4), v(v16), sr(sWS, 4), s(soff), mods="offen offset:1024")
            if not LT: stp.tick(5 + n)
    stp.stamp(3)
    if not LT: stp.tick(10)
    if not LT: stp.dump_ticks()
    k.I("s_endpgm")
    k.L(pfrole)
    vT2 = k.valloc()
    k.I("s_sub_u32", s(st0), s(sidx), 28)
    k.I("s_lshl_b32", s(st0), s(st0), 9)
    k.I("v_add_u32", v(vT2), s(st0), "v0")
    k.I("v_lshlrev_b32", v(vT2), 7, v(vT2))
    l2_prefetch(k, 56, 896 * 896, vT2, 2048, st0)
    k.L(R["done"])
    k.I("s_endpgm")
    k.lds = lds; k.threads = 512; k.grid = 256
    return k

def gen_k56(Stamper):
    k = Kernel("k5_sp_kernel")
    NS = 4; SLOT = 32768
    Z1REG = NS * SLOT
    lds = Z1REG + 32768
    R = common_start(k, 256)
    swave, st0, st1, soff, lane, t0, t1, t2 = (R[x] for x in ("swave", "st0", "st1", "soff", "lane", "t0", "t1", "t2"))
    pSp = k.salloc(2); pB = k.salloc(2); pWS = k.salloc(2)
    k.I("s_load_dwordx2", sr(pSp, 2), "s[0:1]", 40)
    k.I("s_load_dwordx2", sr(pB, 2), "s[0:1]", 48)
    k.I("s_load_dwordx2", sr(pWS, 2), "s[0:1]", 80)
    pWo = k.salloc(2); pOD = k.salloc(4)
    k.I("s_load_dwordx2", sr(pWo, 2), "s[0:1]", 56)
    k.I("s_load_dwordx4", sr(pOD, 4), "s[0:1]", 64)
    sWS = k.salloc(4); sSp = k.salloc(4); sB = k.salloc(4); sWo = k.salloc(4); sOut = k.salloc(4); sD = k.salloc(4)
    sj = k.salloc(); sidx = k.salloc(); stt = k.salloc(); sft = k.salloc(); skap = k.salloc(); sw3 = k.salloc()
    if os.environ.get("K5MAP") == "linear":
        k.I("s_mul_i32", s(sj), "s2", 2341)
        k.I("s_lshr_b32", s(sj), s(sj), 16)
        k.I("s_mul_i32", s(sidx), s(sj), 28)
        k.I("s_sub_u32", s(sidx), "s2", s(sidx))
    else:
        k.I("s_and_b32", s(sj), "s2", 7)
        k.I("s_lshr_b32", s(sidx), "s2", 3)
    pfrole = k.newlabel("pfrole")
    k.I("s_cmp_ge_u32", s(sidx), 28)
    k.I("s_cbranch_scc1", pfrole)
    k.I("s_and_b32", s(sw3), s(swave), 3)
    k.I("s_and_b32", s(skap), s(sj), 1)
    k.I("s_mul_i32", s(st0), s(sidx), 37)
    k.I("s_lshr_b32", s(st0), s(st0), 8)
    k.I("s_mul_i32", s(st1), s(st0), 7)
    k.I("s_sub_u32", s(sft), s(sidx), s(st1))
    k.I("s_lshr_b32", s(stt), s(sj), 1)
    k.I("s_lshl_b32", s(stt), s(stt), 2)
    k.I("s_add_u32", s(stt), s(stt), s(st0))
    stp = Stamper(k, 4, sWS, swave)
    if os.environ.get("TICKWAVE", "0") != "0": stp.tick(0)
    k.I("s_waitcnt", "lgkmcnt(0)")
    srd(k, sWS, pWS, WS_SIZE)
    comp = k.newlabel("compute")
    k.I("s_cmp_lt_u32", s(swave), 4)
    k.I("s_cbranch_scc1", comp)
    vsave = k.vnext
    srd(k, sSp, pSp, 2048 * 4096)
    v16 = k.valloc(); vWo = k.valloc(2)
    k.I("v_lshlrev_b32", v(v16), 4, v(lane))
    k.I("v_lshrrev_b32", v(t0), 3, v(lane))
    k.I("v_lshlrev_b32", v(t0), 12, v(t0))
    k.I("v_lshrrev_b32", v(t1), 4, v(lane))
    k.I("v_and_b32", v(t2), 7, v(lane))
    k.I("v_xor_b32", v(t1), v(t1), v(t2))
    k.I("v_lshl_add_u32", v(vWo), v(t1), 4, v(t0))
    k.I("v_xor_b32", v(t1), 4, v(t1))
    k.I("v_lshl_add_u32", v(vWo + 1), v(t1), 4, v(t0))
    sZb = k.salloc(); sWb = k.salloc(); smZ = k.salloc(); smW = k.salloc()
    k.I("s_lshl_b32", s(st0), s(sft), 2)
    k.I("s_add_u32", s(st0), s(st0), s(sw3))
    k.I("s_mul_i32", s(sZb), s(st0), ZS)
    k.I("s_mul_i32", s(st1), s(skap), ZK)
    k.I("s_add_u32", s(sZb), s(sZb), s(st1))
    k.I("s_add_u32", s(sZb), s(sZb), hex(Z2_OFF))
    k.I("s_lshl_b32", s(smZ), s(sw3), 12)
    k.I("s_lshl_b32", s(st0), s(stt), 7)
    k.I("s_lshl_b32", s(st1), s(sw3), 5)
    k.I("s_add_u32", s(st0), s(st0), s(st1))
    k.I("s_lshl_b32", s(sWb), s(st0), 12)
    k.I("s_lshl_b32", s(st1), s(skap), 11)
    k.I("s_add_u32", s(sWb), s(sWb), s(st1))
    k.I("s_add_u32", s(smW), s(smZ), 16384)
    def issue(c):
        sl = (c % NS) * SLOT
        def zpart():
            for i in range(4):
                k.I("s_add_u32", s(soff), s(sZb), hex((4 * c + i) * 1024))
                k.I("s_add_u32", "m0", s(smZ), hex(sl + i * 1024))
                k.vm(("S", c), "buffer_load_dwordx4", v(v16), sr(sWS, 4), s(soff), mods="offen lds")
                if os.environ.get("DIAG5") and c == 0 and i in (0, 3):
                    k.I("s_waitcnt", "vmcnt(0)"); stp.tick(10 + (i > 0))
        def wpart():
            for i in range(4):
                k.I("s_add_u32", s(soff), s(sWb), hex(i * 8 * 4096 + c * 128))
                k.I("s_add_u32", "m0", s(smW), hex(sl + i * 1024))
                k.vm(("S", c), "buffer_load_dwordx4", v(vWo + (i & 1)), sr(sSp, 4), s(soff), mods="offen lds")
                if os.environ.get("DIAG5") and c == 0 and i in (0, 3):
                    k.I("s_waitcnt", "vmcnt(0)"); stp.tick(12 + (i > 0))
        if os.environ.get("DIAG5") == "2": wpart(); zpart()
        else: zpart(); wpart()
    NST = 16
    sZ1 = k.salloc()
    k.I("s_lshl_b32", s(st0), s(stt), 2)
    k.I("s_add_u32", s(st0), s(st0), s(sw3))
    k.I("s_mul_i32", s(sZ1), s(st0), 56 * 1024)
    k.I("s_lshl_b32", s(st1), s(sft), 13)
    k.I("s_add_u32", s(sZ1), s(sZ1), s(st1))
    k.I("s_add_u32", s(sZ1), s(sZ1), hex(Z1_OFF))
    smZ1 = k.salloc()
    k.I("s_lshl_b32", s(smZ1), s(sw3), 13)
    def issue_z1(i, tag):
        k.I("s_add_u32", s(soff), s(sZ1), hex(i * 1024))
        k.I("s_add_u32", "m0", s(smZ1), hex(Z1REG + i * 1024))
        k.vm(("S", tag), "buffer_load_dwordx4", v(v16), sr(sWS, 4), s(soff), mods="offen lds")
    LT = os.environ.get("TICKWAVE", "0") != "0"
    if LT: stp.tick(1)
    issue(0)
    if LT: stp.tick(2)
    issue(1)
    if LT: stp.tick(3)
    for c in range(NST):
        k.wait_vm(("S", c))
        if LT and c < 3: stp.tick(4 + 2 * c)
        k.I("s_barrier")
        if LT and c < 3: stp.tick(5 + 2 * c)
        if c == 0: issue(2); issue(3)
        elif c + 2 < NST and c >= 2:
            issue(c + 2)
            if 3 <= c < 11: issue_z1(c - 3, c + 2)
    srd(k, sWo, pWo, 896 * 896)
    vWd = k.valloc(); sWd = k.salloc(); smD = k.salloc()
    k.I("v_lshrrev_b32", v(t0), 3, v(lane))
    k.I("v_mul_u32_u24", v(t0), 896, v(t0))
    k.I("v_bfe_u32", v(t1), v(lane), 4, 1)
    k.I("v_lshlrev_b32", v(t1), 2, v(t1))
    k.I("v_and_b32", v(t2), 7, v(lane))
    k.I("v_xor_b32", v(t1), v(t1), v(t2))
    k.I("v_lshl_add_u32", v(vWd), v(t1), 4, v(t0))
    k.I("s_mul_i32", s(sWd), s(sw3), 224 * 896)
    k.I("s_lshl_b32", s(st1), s(sft), 7)
    k.I("s_add_u32", s(sWd), s(sWd), s(st1))
    k.I("s_mul_i32", s(smD), s(sw3), 224 * 128)
    k.I("s_barrier")
    for i in range(28):
        k.I("s_add_u32", s(soff), s(sWd), hex(i * 8 * 896))
        k.I("s_add_u32", "m0", s(smD), hex(i * 1024))
        k.I("buffer_load_dwordx4", v(vWd), sr(sWo, 4), s(soff), mods="offen lds")
    k.I("s_barrier")
    k.I("s_waitcnt", "vmcnt(0)")
    k.I("s_barrier")
    k.I("s_endpgm")
    k.L(comp)
    k.vnext = vsave; k.vmq = []; k.lgq = []
    srd(k, sB, pB, 4096)
    l31 = k.valloc(); hh = k.valloc()
    k.I("v_and_b32", v(l31), 31, v(lane))
    k.I("v_lshrrev_b32", v(hh), 5, v(lane))
    sfh = k.salloc(); sth = k.salloc(); sst = k.salloc(); sf32 = k.salloc()
    k.I("s_and_b32", s(sfh), s(swave), 1)
    k.I("s_lshr_b32", s(sth), s(swave), 1)
    k.I("s_lshl_b32", s(sst), s(stt), 2)
    k.I("s_lshl_b32", s(st0), s(sth), 1)
    k.I("s_add_u32", s(sst), s(sst), s(st0))
    k.I("s_lshl_b32", s(sf32), s(sft), 2)
    k.I("s_lshl_b32", s(st0), s(sfh), 1)
    k.I("s_add_u32", s(sf32), s(sf32), s(st0))
    if os.environ.get("PF3", "0") == "1":
        vT0 = k.valloc(); vd0 = k.valloc(2)
        k.I("s_lshl_b32", s(st0), s(sidx), 8)
        k.I("v_add_u32", v(vT0), s(st0), "v0")
        k.I("s_lshl_b32", s(st1), s(skap), 16)
        k.I("s_add_u32", s(st1), s(st1), hex(Z2_OFF))
        for i in range(2):
            k.I("v_add_u32", v(t0), 7168 * i, v(vT0))
            k.I("v_lshrrev_b32", v(t1), 9, v(t0))
            k.I("v_lshlrev_b32", v(t1), 17, v(t1))
            k.I("v_and_b32", v(t2), 511, v(t0))
            k.I("v_lshl_add_u32", v(t1), v(t2), 7, v(t1))
            k.vm("pf", "buffer_load_dword", v(vd0 + i), v(t1), sr(sWS, 4), s(st1), mods="offen")
    v16 = k.valloc()
    k.I("v_lshlrev_b32", v(v16), 4, v(lane))
    vB = k.vnext
    z1 = [[k.valloc(8, 4) for _ in range(2)] for _ in range(2)]
    rr = [k.valloc(2) for _ in range(2)]; bb = [k.valloc(2) for _ in range(2)]
    k.I("v_lshlrev_b32", v(t0), 2, v(l31))
    k.I("v_lshlrev_b32", v(t1), 1, v(l31))
    for ti in range(2):
        k.I("s_add_u32", s(st0), s(sst), ti)
        k.I("s_lshl_b32", s(soff), s(st0), 7)
        k.I("s_add_u32", s(soff), s(soff), hex(RH_OFF))
        k.vm("z1", "buffer_load_dword", v(rr[ti]), v(t0), sr(sWS, 4), s(soff), mods="offen")
        k.I("s_lshl_b32", s(soff), s(st0), 6)
        k.vm("z1", "buffer_load_ushort", v(bb[ti]), v(t1), sr(sB, 4), s(soff), mods="offen")
    if os.environ.get("PF2", "0") == "1":
        pp = k.salloc(2); sP = k.salloc(4); vT = k.valloc(); vd = k.valloc(2)
        k.I("s_load_dwordx2", sr(pp, 2), "s[0:1]", 56)
        k.I("s_lshl_b32", s(st0), s(sidx), 8)
        k.I("v_add_u32", v(vT), s(st0), "v0")
        k.I("v_lshlrev_b32", v(vT), 7, v(vT))
        k.I("s_waitcnt", "lgkmcnt(0)")
        srd(k, sP, pp, 896 * 896)
        k.vm("pf", "buffer_load_dword", v(vd), v(vT), sr(sP, 4), 0, mods="offen")
    stp.stamp(0)
    aZ = k.valloc(); aW = k.valloc(4)
    k.I("s_lshl_b32", s(st0), s(sfh), 13)
    k.I("v_add_u32", v(aZ), s(st0), v(v16))
    k.I("v_bfe_u32", v(t0), v(l31), 1, 3)
    for j in range(4):
        k.I("v_add_u32", v(t1), 2 * j, v(hh))
        k.I("v_xor_b32", v(t1), v(t1), v(t0))
        k.I("v_lshlrev_b32", v(t1), 4, v(t1))
        k.I("v_lshl_add_u32", v(aW + j), v(l31), 7, v(t1))
        k.I("s_lshl_b32", s(st0), s(sth), 13)
        k.I("s_add_u32", s(st0), s(st0), 16384)
        k.I("v_add_u32", v(aW + j), s(st0), v(aW + j))
    aZ2 = k.valloc(); aW2 = k.valloc(4)
    k.I("v_add_u32", v(aZ2), 65536, v(aZ))
    for j in range(4): k.I("v_add_u32", v(aW2 + j), 65536, v(aW + j))
    acc = [[k.valloc(16, 4) for _ in range(2)] for _ in range(2)]
    NB = 3
    zf = [[k.valloc(4) for _ in range(2)] for _ in range(NB)]
    wf = [[k.valloc(4) for _ in range(2)] for _ in range(NB)]
    def rl(ks):
        c, j = ks // 4, ks % 4
        b = ks % NB
        sl = (c % NS) * SLOT
        hi = sl >= 65536
        so = sl - (65536 if hi else 0)
        out = []
        for fi in range(2):
            out.append(lambda fi=fi: k.lg(("f", ks), "ds_read_b128", vr(zf[b][fi], 4), v(aZ2 if hi else aZ), mods=f"offset:{so + fi * 4096 + j * 1024}"))
        for ti in range(2):
            out.append(lambda ti=ti: k.lg(("f", ks), "ds_read_b128", vr(wf[b][ti], 4), v((aW2 if hi else aW) + j), mods=f"offset:{so + ti * 4096}"))
        return out
    k.I("s_barrier")
    if not os.environ.get("DIAG56"): stp.stamp(1)
    for f in rl(0) + rl(1): f()
    NKS = NST * 4
    for ks in range(NKS):
        c, j = ks // 4, ks % 4
        b = ks % NB
        k.wait_lg(("f", ks))
        mf = []
        for fi in range(2):
            for ti in range(2):
                mf.append(lambda fi=fi, ti=ti: k.I("v_mfma_f32_32x32x16_bf16", vr(acc[fi][ti], 16), vr(zf[b][fi], 4), vr(wf[b][ti], 4), 0 if ks == 0 else vr(acc[fi][ti], 16)))
        fl = rl(ks + 2) if ks + 2 < NKS else []
        if j == 2 and ks + 2 < NKS:
            k.I("s_barrier")
        interleave(k, mf, fl)
    k.I("s_barrier")
    if not os.environ.get("DIAG56"): stp.stamp(2)
    vz = k.valloc()
    k.I("s_lshl_b32", s(st0), s(sth), 14)
    k.I("s_lshl_b32", s(st1), s(sfh), 12)
    k.I("s_add_u32", s(st0), s(st0), s(st1))
    k.I("s_add_u32", s(st0), s(st0), Z1REG)
    k.I("v_add_u32", v(vz), s(st0), v(v16))
    for ti in range(2):
        for fi in range(2):
            for hf_ in range(2):
                k.lg(("z1", ti, fi), "ds_read_b128", vr(z1[fi][ti] + 4 * hf_, 4), v(vz), mods=f"offset:{ti * 8192 + fi * 2048 + hf_ * 1024}")
    k.wait_vm("z1")
    for ti in range(2):
        k.I("v_lshlrev_b32", v(bb[ti]), 16, v(bb[ti]))
        k.I("v_mul_f32", v(bb[ti]), v(bb[ti]), v(rr[ti]))
    k.I("s_cmp_eq_u32", s(skap), 0)
    k.I("s_cselect_b32", s(st0), "1.0", 0)
    for ti in range(2): k.I("v_mul_f32", v(bb[ti]), s(st0), v(bb[ti]))
    tp = [k.valloc(2) for _ in range(4)]
    P = [k.valloc(8, 4) for _ in range(2)]
    sU = k.salloc()
    k.I("s_mul_i32", s(sU), s(skap), U1_OFF - U0_OFF)
    k.I("s_add_u32", s(sU), s(sU), hex(U0_OFF))
    n = 0
    for ti in range(2):
        for fi in range(2):
            A = acc[fi][ti]; Zp = z1[fi][ti]; PP = P[n & 1]; n += 1
            for j in range(8):
                k.I("v_pk_fma_f32", vr(A + 2 * j, 2), vr(A + 2 * j, 2), vr(rr[ti], 2), vr(bb[ti], 2), mods="op_sel_hi:[1,0,0]")
            k.wait_lg(("z1", ti, fi))
            for j in range(8):
                T = tp[j % 4]
                k.I("v_lshlrev_b32", v(T), 16, v(Zp + j))
                k.I("v_and_b32", v(T + 1), "0xffff0000", v(Zp + j))
                k.I("v_pk_mul_f32", vr(A + 2 * j, 2), vr(A + 2 * j, 2), vr(T, 2))
            for j in range(8): k.I("v_cvt_pk_bf16_f32", v(PP + j), v(A + 2 * j), v(A + 2 * j + 1))
            k.I("s_add_u32", s(st0), s(sst), ti)
            k.I("s_mul_i32", s(soff), s(st0), 56 * 1024)
            k.I("s_add_u32", s(st0), s(sf32), fi)
            k.I("s_lshl_b32", s(st0), s(st0), 11)
            k.I("s_add_u32", s(soff), s(soff), s(st0))
            k.I("s_add_u32", s(soff), s(soff), s(sU))
            k.I("buffer_store_dwordx4", vr(PP, 4), v(v16), sr(sWS, 4), s(soff), mods="offen")
            k.I("buffer_store_dwordx4", vr(PP + 4, 4), v(v16), sr(sWS, 4), s(soff), mods="offen offset:1024")
    stp.stamp(3)
    k.vnext = vB
    srd(k, sOut, pOD, 2048 * 896)
    srd(k, sD, pOD + 2, 256)
    srh = k.salloc(); skh = k.salloc(); sstB = k.salloc()
    k.I("s_and_b32", s(srh), s(swave), 1)
    k.I("s_lshr_b32", s(skh), s(swave), 1)
    k.I("s_lshl_b32", s(sstB), s(stt), 2)
    k.I("s_lshl_b32", s(st0), s(skap), 1)
    k.I("s_add_u32", s(sstB), s(sstB), s(st0))
    k.I("s_add_u32", s(sstB), s(sstB), s(srh))
    hr = k.valloc(8, 4)
    k.I("s_mul_i32", s(soff), s(sstB), 28 * 1024)
    k.I("s_lshl_b32", s(st0), s(sft), 1)
    k.I("s_add_u32", s(st0), s(st0), s(skh))
    sntile = k.salloc()
    k.I("s_mov_b32", s(sntile), s(st0))
    k.I("s_lshl_b32", s(st0), s(st0), 11)
    k.I("s_add_u32", s(soff), s(soff), s(st0))
    k.I("s_add_u32", s(soff), s(soff), hex(H_OFF))
    k.I("s_waitcnt", "vmcnt(0)")
    if os.environ.get("DIAG56"): stp.stamp(1); k.I("s_waitcnt", "vmcnt(0)")
    k.vmq = []
    k.I("s_barrier")
    if os.environ.get("DIAG56"): stp.stamp(2); k.I("s_waitcnt", "vmcnt(0)"); k.vmq = []
    k.vm("h", "buffer_load_dwordx4", vr(hr, 4), v(v16), sr(sWS, 4), s(soff), mods="offen")
    k.vm("h", "buffer_load_dwordx4", vr(hr + 4, 4), v(v16), sr(sWS, 4), s(soff), mods="offen offset:1024")
    nopoll = k.newlabel("nopoll")
    k.I("s_cmp_lg_u32", s(swave), 0)
    k.I("s_cbranch_scc1", nopoll)
    fl = k.valloc(2); vz0 = k.valloc(); one = k.valloc()
    k.I("s_mul_i32", s(st0), s(skap), 7)
    k.I("s_add_u32", s(st0), s(st0), s(sft))
    k.I("s_lshl_b32", s(st0), s(st0), 2)
    k.I("s_lshl_b32", s(st1), s(stt), 8)
    k.I("s_add_u32", s(st1), s(st1), hex(FL_OFF))
    k.I("s_add_u32", s(st0), s(st0), s(st1))
    k.I("v_mov_b32", v(vz0), 0)
    k.I("v_mov_b32", v(one), 1)
    k.I("s_mov_b64", "exec", 1)
    k.I("buffer_store_dword", v(one), v(vz0), sr(sWS, 4), s(st0), mods="offen sc0 sc1")
    k.I("s_mov_b64", "exec", -1)
    k.I("v_min_u32", v(vz0), 13, v(lane))
    k.I("v_lshlrev_b32", v(vz0), 2, v(vz0))
    scount = k.salloc()
    k.I("s_mov_b32", s(scount), 0)
    poll = k.newlabel("poll"); pdone = k.newlabel("pdone")
    k.L(poll)
    k.I("buffer_load_dword", v(fl), v(vz0), sr(sWS, 4), s(st1), mods="offen sc0 sc1")
    k.I("s_waitcnt", "vmcnt(0)")
    k.I("v_cmp_ne_u32", "vcc", 1, v(fl))
    k.I("s_add_u32", s(scount), s(scount), 1)
    k.I("s_cmp_eq_u64", "vcc", 0)
    k.I("s_cbranch_scc1", pdone)
    k.I("s_cmp_lt_u32", s(scount), 0x100000)
    k.I("s_cbranch_scc0", pdone)
    k.I("s_sleep", 1)
    k.I("s_branch", poll)
    k.L(pdone)
    k.L(nopoll)
    if os.environ.get("DIAG56"): stp.stamp(7); k.I("s_waitcnt", "vmcnt(0)")
    k.vmq = ["h", "h"]
    vWb = [k.valloc(), k.valloc()]
    k.I("v_bfe_u32", v(t0), v(lane), 2, 2)
    k.I("v_lshl_add_u32", v(t0), v(hh), 2, v(t0))
    k.I("s_mul_i32", s(st0), s(skh), 448)
    k.I("v_add_u32", v(t0), s(st0), v(t0))
    k.I("v_lshlrev_b32", v(t0), 7, v(t0))
    k.I("v_bfe_u32", v(t1), v(lane), 4, 1)
    k.I("v_lshlrev_b32", v(t1), 1, v(t1))
    k.I("v_bfe_u32", v(t2), v(lane), 1, 1)
    k.I("v_add_u32", v(t1), v(t1), v(t2))
    k.I("v_bfe_u32", v(t2), v(lane), 3, 1)
    k.I("v_lshlrev_b32", v(t2), 2, v(t2))
    for n2 in range(2):
        k.I("v_add_u32", v(vWb[n2]), 4 * n2, v(t1))
        k.I("v_xor_b32", v(vWb[n2]), v(vWb[n2]), v(t2))
        k.I("v_lshl_add_u32", v(vWb[n2]), v(vWb[n2]), 4, v(t0))
    k.I("v_and_b32", v(t1), 1, v(lane))
    for n2 in range(2): k.I("v_lshl_add_u32", v(vWb[n2]), v(t1), 3, v(vWb[n2]))
    sU0 = k.salloc(); sU1 = k.salloc()
    k.I("s_mul_i32", s(sU0), s(sstB), 56 * 1024)
    k.I("s_mul_i32", s(st0), s(skh), 28 * 1024)
    k.I("s_add_u32", s(sU0), s(sU0), s(st0))
    k.I("s_add_u32", s(sU1), s(sU0), hex(U1_OFF))
    k.I("s_add_u32", s(sU0), s(sU0), hex(U0_OFF))
    accB = [k.valloc(16, 4) for _ in range(2)]
    NU = 12
    uf = [[k.valloc(4) for _ in range(2)] for _ in range(NU)]
    NBW = 3
    wfB = [[k.valloc(4) for _ in range(2)] for _ in range(NBW)]
    k.I("s_barrier")
    stp.stamp(4)
    def uload(j):
        for ar_, sU in enumerate((sU0, sU1)):
            k.I("s_add_u32", s(soff), s(sU), hex(j * 1024))
            k.vm(("u", j), "buffer_load_dwordx4", vr(uf[j % NU][ar_], 4), v(v16), sr(sWS, 4), s(soff), mods="offen sc1")
    def wread(j):
        out = []
        for n2 in range(2):
            for beta in range(2):
                out.append(lambda n2=n2, beta=beta: k.lg(("w", j), "ds_read_b64_tr_b16", vr(wfB[j % NBW][n2] + 2 * beta, 2), v(vWb[n2]), mods=f"offset:{(16 * j + 8 * beta) * 128}"))
        return out
    for j in range(NU): uload(j)
    for f in wread(0) + wread(1): f()
    for j in range(28):
        k.wait_vm(("u", j))
        k.wait_lg(("w", j))
        mf = []
        for ar_ in range(2):
            for n2 in range(2):
                mf.append(lambda ar_=ar_, n2=n2: k.I("v_mfma_f32_32x32x16_bf16", vr(accB[n2], 16), vr(wfB[j % NBW][n2], 4), vr(uf[j % NU][ar_], 4), 0 if (j == 0 and ar_ == 0) else vr(accB[n2], 16)))
        fl_ = wread(j + 2) if j + 2 < 28 else []
        interleave(k, mf, fl_)
        if j + NU < 28: uload(j + NU)
    stp.stamp(5)
    RED = 114688
    vr1 = k.valloc(); vr2 = k.valloc()
    k.I("s_lshl_b32", s(st0), s(srh), 13)
    k.I("s_add_u32", s(st0), s(st0), RED)
    k.I("v_add_u32", v(vr1), s(st0), v(v16))
    k.I("s_lshl_b32", s(st1), s(skh), 12)
    k.I("v_add_u32", v(vr2), s(st1), v(vr1))
    k.I("s_xor_b32", s(st1), s(st1), 4096)
    k.I("v_add_u32", v(vr1), s(st1), v(vr1))
    keep = k.valloc(16, 4)
    lab_a = k.newlabel("kh1"); lab_b = k.newlabel("khj")
    k.I("s_cmp_lg_u32", s(skh), 0)
    k.I("s_cbranch_scc1", lab_a)
    for q in range(4): k.I("ds_write_b128", v(vr1), vr(accB[1] + 4 * q, 4), mods=f"offset:{q * 1024}")
    for i in range(16): k.I("v_mov_b32", v(keep + i), v(accB[0] + i))
    k.I("s_branch", lab_b)
    k.L(lab_a)
    for q in range(4): k.I("ds_write_b128", v(vr1), vr(accB[0] + 4 * q, 4), mods=f"offset:{q * 1024}")
    for i in range(16): k.I("v_mov_b32", v(keep + i), v(accB[1] + i))
    k.L(lab_b)
    k.I("s_waitcnt", "lgkmcnt(0)")
    k.lgq = []
    k.I("s_barrier")
    oth = k.valloc(16, 4)
    for q in range(4): k.I("ds_read_b128", vr(oth + 4 * q, 4), v(vr2), mods=f"offset:{q * 1024}")
    k.wait_vm("h")
    tpB = [k.valloc(2) for _ in range(4)]
    for j in range(8):
        T = tpB[j % 4]
        k.I("v_lshlrev_b32", v(T), 16, v(hr + j))
        k.I("v_and_b32", v(T + 1), "0xffff0000", v(hr + j))
        k.I("v_pk_add_f32", vr(keep + 2 * j, 2), vr(keep + 2 * j, 2), vr(T, 2))
    k.I("s_waitcnt", "lgkmcnt(0)")
    for j in range(8): k.I("v_pk_add_f32", vr(keep + 2 * j, 2), vr(keep + 2 * j, 2), vr(oth + 2 * j, 2))
    PB = k.valloc(8, 4)
    for j in range(8): k.I("v_cvt_pk_bf16_f32", v(PB + j), v(keep + 2 * j), v(keep + 2 * j + 1))
    for kp in range(2):
        k.I("v_permlane32_swap_b32", v(PB + 4 * kp), v(PB + 4 * kp + 2))
        k.I("v_permlane32_swap_b32", v(PB + 4 * kp + 1), v(PB + 4 * kp + 3))
    vo = k.valloc()
    k.I("v_mul_u32_u24", v(vo), 896, v(l31))
    k.I("v_lshl_add_u32", v(vo), v(hh), 4, v(vo))
    k.I("s_mul_i32", s(soff), s(sstB), 32 * 896)
    k.I("s_lshl_b32", s(st0), s(sntile), 6)
    k.I("s_add_u32", s(soff), s(soff), s(st0))
    for kp in range(2):
        k.I("buffer_store_dwordx4", vr(PB + 4 * kp, 4), v(vo), sr(sOut, 4), s(soff), mods=f"offen offset:{32 * kp}")
    stp.stamp(6)
    k.I("s_endpgm")
    k.L(pfrole)
    vT2 = k.valloc()
    k.I("s_sub_u32", s(st0), s(sidx), 28)
    k.I("s_lshl_b32", s(st0), s(st0), 9)
    k.I("v_add_u32", v(vT2), s(st0), "v0")
    k.I("v_lshlrev_b32", v(vT2), 7, v(vT2))
    l2_prefetch(k, 56, 896 * 896, vT2, 2048, st0)
    k.L(R["done"])
    k.I("s_endpgm")
    k.lds = lds; k.threads = 512; k.grid = 256
    return k

def gen_k6(Stamper):
    k = Kernel("k6_wout_kernel")
    NS = 5; SLOT = 24576
    RED = 0
    lds = NS * SLOT
    R = common_start(k, 224)
    swave, st0, st1, soff, lane, t0, t1, t2 = (R[x] for x in ("swave", "st0", "st1", "soff", "lane", "t0", "t1", "t2"))
    pWo = k.salloc(2); pOut = k.salloc(2); pWS = k.salloc(2)
    k.I("s_load_dwordx2", sr(pWo, 2), "s[0:1]", 56)
    k.I("s_load_dwordx2", sr(pOut, 2), "s[0:1]", 64)
    k.I("s_load_dwordx2", sr(pWS, 2), "s[0:1]", 80)
    sWS = k.salloc(4); sWo = k.salloc(4); sOut = k.salloc(4)
    sj = k.salloc(); sidx = k.salloc(); srt = k.salloc(); snt = k.salloc(); sw3 = k.salloc()
    k.I("s_and_b32", s(sj), "s2", 7)
    k.I("s_lshr_b32", s(sidx), "s2", 3)
    k.I("s_and_b32", s(sw3), s(swave), 3)
    k.I("s_mul_i32", s(st0), s(sidx), 37)
    k.I("s_lshr_b32", s(st0), s(st0), 8)
    k.I("s_mul_i32", s(st1), s(st0), 7)
    k.I("s_sub_u32", s(snt), s(sidx), s(st1))
    k.I("s_lshl_b32", s(srt), s(sj), 2)
    k.I("s_add_u32", s(srt), s(srt), s(st0))
    stp = Stamper(k, 5, sWS, swave)
    k.I("s_waitcnt", "lgkmcnt(0)")
    srd(k, sWS, pWS, WS_SIZE)
    comp = k.newlabel("compute")
    k.I("s_cmp_lt_u32", s(swave), 4)
    k.I("s_cbranch_scc1", comp)
    vsave = k.vnext
    srd(k, sWo, pWo, 896 * 896)
    v16 = k.valloc(); vWo = k.valloc()
    k.I("v_lshlrev_b32", v(v16), 4, v(lane))
    k.I("v_lshrrev_b32", v(t0), 3, v(lane))
    k.I("v_mul_u32_u24", v(t0), 896, v(t0))
    k.I("v_bfe_u32", v(t1), v(lane), 4, 1)
    k.I("v_lshlrev_b32", v(t1), 2, v(t1))
    k.I("v_and_b32", v(t2), 7, v(lane))
    k.I("v_xor_b32", v(t1), v(t1), v(t2))
    k.I("v_lshl_add_u32", v(vWo), v(t1), 4, v(t0))
    sUb = k.salloc(); sWb = k.salloc(); smU = k.salloc(); smW = k.salloc()
    k.I("s_lshr_b32", s(st0), s(sw3), 1)
    k.I("s_lshl_b32", s(st1), s(srt), 1)
    k.I("s_add_u32", s(st1), s(st1), s(st0))
    k.I("s_mul_i32", s(sUb), s(st1), 56 * 1024)
    k.I("s_and_b32", s(st1), s(sw3), 1)
    k.I("s_mul_i32", s(smU), s(st1), U1_OFF - U0_OFF)
    k.I("s_add_u32", s(sUb), s(sUb), s(smU))
    k.I("s_add_u32", s(sUb), s(sUb), hex(U0_OFF))
    k.I("s_lshl_b32", s(smU), s(st1), 13)
    k.I("s_lshl_b32", s(st0), s(st0), 12)
    k.I("s_add_u32", s(smU), s(smU), s(st0))
    k.I("s_mul_i32", s(sWb), s(sw3), 16 * 896)
    k.I("s_lshl_b32", s(st1), s(snt), 7)
    k.I("s_add_u32", s(sWb), s(sWb), s(st1))
    k.I("s_lshl_b32", s(smW), s(sw3), 11)
    k.I("s_add_u32", s(smW), s(smW), 16384)
    def issue(c):
        sl = (c % NS) * SLOT
        for i in range(4):
            k.I("s_add_u32", s(soff), s(sUb), hex((4 * c + i) * 1024))
            k.I("s_add_u32", "m0", s(smU), hex(sl + i * 1024))
            k.vm(("S", c), "buffer_load_dwordx4", v(v16), sr(sWS, 4), s(soff), mods="offen lds")
        for i in range(2):
            k.I("s_add_u32", s(soff), s(sWb), hex((64 * c + 8 * i) * 896))
            k.I("s_add_u32", "m0", s(smW), hex(sl + i * 1024))
            k.vm(("S", c), "buffer_load_dwordx4", v(vWo), sr(sWo, 4), s(soff), mods="offen lds")
    NST = 14
    for c in range(3): issue(c)
    for c in range(NST):
        k.wait_vm(("S", c))
        k.I("s_barrier")
        if c == 0: issue(3); issue(4)
        elif c + 3 < NST and c >= 2: issue(c + 3)
    k.I("s_endpgm")
    k.L(comp)
    k.vnext = vsave; k.vmq = []; k.lgq = []
    srd(k, sOut, pOut, 2048 * 896)
    l31 = k.valloc(); hh = k.valloc()
    k.I("v_and_b32", v(l31), 31, v(lane))
    k.I("v_lshrrev_b32", v(hh), 5, v(lane))
    srh = k.salloc(); snh = k.salloc(); sst = k.salloc(); sntile = k.salloc()
    k.I("s_and_b32", s(srh), s(swave), 1)
    k.I("s_lshr_b32", s(snh), s(swave), 1)
    k.I("s_lshl_b32", s(sst), s(srt), 1)
    k.I("s_add_u32", s(sst), s(sst), s(srh))
    k.I("s_lshl_b32", s(sntile), s(snt), 1)
    k.I("s_add_u32", s(sntile), s(sntile), s(snh))
    if os.environ.get("PF3", "0") == "1":
        vT0 = k.valloc(); vd0 = k.valloc(2)
        k.I("s_lshl_b32", s(st0), s(sidx), 8)
        k.I("v_add_u32", v(vT0), s(st0), "v0")
        k.I("v_mov_b32", v(t0), hex(U1_OFF - U0_OFF - 3584 * 128))
        k.I("v_cmp_le_u32", "vcc", 3584, v(vT0))
        k.I("v_cndmask_b32", v(t0), 0, v(t0), "vcc")
        k.I("v_lshl_add_u32", v(t0), v(vT0), 7, v(t0))
        k.I("s_mul_i32", s(st1), s(sj), 8 * 56 * 1024)
        k.I("s_add_u32", s(st1), s(st1), hex(U0_OFF))
        k.vm("pf", "buffer_load_dword", v(vd0), v(t0), sr(sWS, 4), s(st1), mods="offen")
    v16 = k.valloc()
    k.I("v_lshlrev_b32", v(v16), 4, v(lane))
    hr = k.valloc(8, 4)
    k.I("s_mul_i32", s(soff), s(sst), 28 * 1024)
    k.I("s_lshl_b32", s(st0), s(sntile), 11)
    k.I("s_add_u32", s(soff), s(soff), s(st0))
    k.I("s_add_u32", s(soff), s(soff), hex(H_OFF))
    k.vm("h", "buffer_load_dwordx4", vr(hr, 4), v(v16), sr(sWS, 4), s(soff), mods="offen")
    k.vm("h", "buffer_load_dwordx4", vr(hr + 4, 4), v(v16), sr(sWS, 4), s(soff), mods="offen offset:1024")
    stp.stamp(0)
    aU = k.valloc(); vW = k.valloc()
    k.I("s_lshl_b32", s(st0), s(srh), 12)
    k.I("v_add_u32", v(aU), s(st0), v(v16))
    k.I("v_bfe_u32", v(t0), v(lane), 2, 2)
    k.I("v_lshl_add_u32", v(t0), v(hh), 2, v(t0))
    k.I("v_lshlrev_b32", v(vW), 7, v(t0))
    k.I("v_add_u32", v(vW), 16384, v(vW))
    k.I("v_bfe_u32", v(t0), v(lane), 4, 1)
    k.I("v_lshlrev_b32", v(t0), 1, v(t0))
    k.I("v_bfe_u32", v(t1), v(lane), 1, 1)
    k.I("v_add_u32", v(t0), v(t0), v(t1))
    k.I("s_lshl_b32", s(st0), s(snh), 2)
    k.I("v_add_u32", v(t0), s(st0), v(t0))
    k.I("v_bfe_u32", v(t1), v(lane), 3, 1)
    k.I("v_lshlrev_b32", v(t1), 2, v(t1))
    k.I("v_xor_b32", v(t0), v(t0), v(t1))
    k.I("v_lshl_add_u32", v(vW), v(t0), 4, v(vW))
    k.I("v_and_b32", v(t0), 1, v(lane))
    k.I("v_lshl_add_u32", v(vW), v(t0), 3, v(vW))
    aU2 = k.valloc(); vW2 = k.valloc()
    k.I("v_add_u32", v(aU2), 3 * SLOT, v(aU))
    k.I("v_add_u32", v(vW2), 3 * SLOT, v(vW))
    acc = k.valloc(16, 4)
    NB = 3
    uf = [[k.valloc(4) for _ in range(2)] for _ in range(NB)]; wf = [k.valloc(4) for _ in range(NB)]
    def rl(ks):
        c, j = ks // 4, ks % 4
        b = ks % NB
        sl = (c % NS)
        hi = sl >= 3
        so = (sl - (3 if hi else 0)) * SLOT
        out = []
        for ar_ in range(2):
            out.append(lambda ar_=ar_: k.lg(("f", ks), "ds_read_b128", vr(uf[b][ar_], 4), v(aU2 if hi else aU), mods=f"offset:{so + ar_ * 8192 + j * 1024}"))
        for beta in range(2):
            o = so + (16 * j + 8 * beta) * 128
            out.append(lambda o=o, beta=beta: k.lg(("f", ks), "ds_read_b64_tr_b16", vr(wf[b] + 2 * beta, 2), v(vW2 if hi else vW), mods=f"offset:{o}"))
        return out
    k.I("s_barrier")
    stp.stamp(1)
    for f in rl(0) + rl(1): f()
    NKS = NST * 4
    for ks in range(NKS):
        c, j = ks // 4, ks % 4
        b = ks % NB
        k.wait_lg(("f", ks))
        mf = [lambda ar_=ar_: k.I("v_mfma_f32_32x32x16_bf16", vr(acc, 16), vr(wf[b], 4), vr(uf[b][ar_], 4), 0 if (ks == 0 and ar_ == 0) else vr(acc, 16)) for ar_ in range(2)]
        fl = rl(ks + 2) if ks + 2 < NKS else []
        if j == 2 and ks + 2 < NKS: k.I("s_barrier")
        interleave(k, mf, fl)
    stp.stamp(2)
    k.wait_vm("h")
    tp = [k.valloc(2) for _ in range(4)]
    for j in range(8):
        T = tp[j % 4]
        k.I("v_lshlrev_b32", v(T), 16, v(hr + j))
        k.I("v_and_b32", v(T + 1), "0xffff0000", v(hr + j))
        k.I("v_pk_add_f32", vr(acc + 2 * j, 2), vr(acc + 2 * j, 2), vr(T, 2))
    P = k.valloc(8, 4)
    for j in range(8): k.I("v_cvt_pk_bf16_f32", v(P + j), v(acc + 2 * j), v(acc + 2 * j + 1))
    for kp in range(2):
        k.I("v_permlane32_swap_b32", v(P + 4 * kp), v(P + 4 * kp + 2))
        k.I("v_permlane32_swap_b32", v(P + 4 * kp + 1), v(P + 4 * kp + 3))
    vo = k.valloc()
    k.I("v_mul_u32_u24", v(vo), 896, v(l31))
    k.I("v_lshl_add_u32", v(vo), v(hh), 4, v(vo))
    k.I("s_mul_i32", s(soff), s(sst), 32 * 896)
    k.I("s_lshl_b32", s(st0), s(sntile), 6)
    k.I("s_add_u32", s(soff), s(soff), s(st0))
    for kp in range(2):
        k.I("buffer_store_dwordx4", vr(P + 4 * kp, 4), v(vo), sr(sOut, 4), s(soff), mods=f"offen offset:{32 * kp}")
    stp.stamp(3)
    if os.environ.get("SPIN"):
        ka, ja, kb, jb = [int(x) for x in os.environ["SPIN"].split(",")]
        sa_ = k.salloc(2); sb_ = k.salloc(2); sn_ = k.salloc(2); sq_ = k.salloc(2)
        lab = k.newlabel("spin"); out_ = k.newlabel("spun")
        k.I("s_or_b32", s(st0), "s2", s(swave))
        k.I("s_cmp_lg_u32", s(st0), 0)
        k.I("s_cbranch_scc1", out_)
        k.I("s_mov_b32", s(st0), hex(STAMP_OFF + ka * 256 * 64 + ja * 8))
        k.I("s_load_dwordx2", sr(sa_, 2), sr(pWS, 2), s(st0))
        k.I("s_mov_b32", s(st1), hex(STAMP_OFF + max(kb, 0) * 256 * 64 + jb * 8))
        if kb >= 0: k.I("s_load_dwordx2", sr(sb_, 2), sr(pWS, 2), s(st1))
        else: k.I("s_memrealtime", sr(sb_, 2))
        k.I("s_memrealtime", sr(sn_, 2))
        k.I("s_waitcnt", "lgkmcnt(0)")
        k.I("s_sub_u32", s(sa_), s(sb_), s(sa_))
        k.I("s_min_u32", s(sa_), s(sa_), 20000)
        k.I("s_add_u32", s(sn_), s(sn_), s(sa_))
        k.L(lab)
        k.I("s_memrealtime", sr(sq_, 2))
        k.I("s_waitcnt", "lgkmcnt(0)")
        k.I("s_sub_u32", s(sq_), s(sq_), s(sn_))
        k.I("s_cmp_lt_i32", s(sq_), 0)
        k.I("s_cbranch_scc1", lab)
        k.L(out_)
    k.L(R["done"])
    k.I("s_endpgm")
    k.lds = lds; k.threads = 512; k.grid = 224
    return k

def rest(Stamper):
    if os.environ.get("MERGE56", "1") == "1":
        return [gen_k2(Stamper), gen_k3(Stamper), gen_k4(Stamper), gen_k56(Stamper)]
    return [gen_k2(Stamper), gen_k3(Stamper), gen_k4(Stamper), gen_k5(Stamper), gen_k6(Stamper)]
```

```python
import sys, os
sys.path.insert(0, os.path.dirname(__file__))
from asmlib import *
from layout import *

NAME = "sequential_preLN__sliding_block__mixer_gmlp__prompt"
STAMPS = os.environ.get("GEN_STAMPS", "0") == "1"
WS_SIZE = 0x10000000

def srd(k, dst, base, size):
    k.I("s_mov_b32", s(dst), s(base))
    k.I("s_and_b32", s(dst + 1), s(base + 1), "0xffff")
    k.I("s_mov_b32", s(dst + 2), hex(size) if isinstance(size, int) else size)
    k.I("s_mov_b32", s(dst + 3), "0x20000")

class Stamper:
    def __init__(self, k, kidx, sWS, swave):
        self.k, self.kidx, self.sWS, self.swave = k, kidx, sWS, swave
        if STAMPS:
            self.st = k.salloc(2); self.vt = k.valloc(2); self.vo = k.valloc(1); self.ex = k.salloc(2)
    def tick(self, i):
        if not STAMPS: return
        if not hasattr(self, "tk"): self.tk = self.k.salloc(32, 4)
        self.k.I("s_memtime", sr(self.tk + 2 * i, 2))
        self.nt = max(getattr(self, "nt", 0), i + 1)
    def dump_ticks(self):
        if not STAMPS or not hasattr(self, "tk"): return
        k = self.k
        k.I("s_waitcnt", "lgkmcnt(0)")
        k.lgq = []
        k.I("s_lshl_b32", s(self.ex), "s2", 7)
        k.I("s_add_u32", s(self.ex), s(self.ex), hex(TICK_OFF + self.kidx * 256 * 128))
        k.I("s_cmp_lg_u32", s(self.swave), int(os.environ.get("TICKWAVE", "0")))
        k.I("s_cselect_b32", s(self.ex), "0x7ffffff0", s(self.ex))
        k.I("s_mov_b64", sr(self.st, 2), "exec")
        k.I("s_mov_b64", "exec", 1)
        k.I("v_mov_b32", v(self.vo), 0)
        for i in range(16):
            k.I("v_mov_b32", v(self.vt), s(self.tk + 2 * i))
            k.I("v_mov_b32", v(self.vt + 1), s(self.tk + 2 * i + 1))
            k.I("buffer_store_dwordx2", vr(self.vt, 2), v(self.vo), sr(self.sWS, 4), s(self.ex), mods=f"offen offset:{8 * i}")
            k.I("s_nop", 1)
        k.I("s_mov_b64", "exec", sr(self.st, 2))
    def stamp(self, j):
        if not STAMPS: return
        k = self.k
        k.I("s_memrealtime", sr(self.st, 2))
        k.I("s_lshl_b32", s(self.ex), "s2", 6)
        k.I("s_add_u32", s(self.ex), s(self.ex), hex(STAMP_OFF + self.kidx * 256 * 64 + j * 8))
        k.I("s_cmp_lg_u32", s(self.swave), 0)
        k.I("s_cselect_b32", s(self.ex), "0x7ffffff0", s(self.ex))
        k.I("s_waitcnt", "lgkmcnt(0)")
        k.lgq = []
        k.I("v_mov_b32", v(self.vt), s(self.st))
        k.I("v_mov_b32", v(self.vt + 1), s(self.st + 1))
        k.I("v_mov_b32", v(self.vo), 0)
        k.I("s_mov_b64", sr(self.st, 2), "exec")
        k.I("s_mov_b64", "exec", 1)
        k.I("buffer_store_dwordx2", vr(self.vt, 2), v(self.vo), sr(self.sWS, 4), s(self.ex), mods="offen")
        k.I("s_mov_b64", "exec", sr(self.st, 2))
        k.vmq.append("stamp")

class DbgStamper:
    LAST = {0: 3, 1: 2, 2: 3, 3: 5, 4: 3, 5: 3}
    def __init__(self, k, kidx, sWS, swave):
        self.k, self.kidx, self.swave = k, kidx, swave
        self.st = k.salloc(2); self.vt = k.valloc(2); self.vo = k.valloc(1); self.ex = k.salloc(2)
        self.pd = k.salloc(2); self.sD = k.salloc(4)
        k.I("s_memrealtime", sr(self.st, 2))
        k.I("s_load_dwordx2", sr(self.pd, 2), "s[0:1]", 72)
        self.t0 = k.salloc(2)
        k.I("s_waitcnt", "lgkmcnt(0)")
        k.I("s_mov_b32", s(self.t0), s(self.st))
        k.I("s_sub_u32", s(self.pd), s(self.pd), 512 * kidx)
        k.I("s_subb_u32", s(self.pd + 1), s(self.pd + 1), 0)
        srd(k, self.sD, self.pd, 512 * 5 + 256)
    def tick(self, i): pass
    def dump_ticks(self): pass
    def stamp(self, j):
        if j != self.LAST[self.kidx]: return
        k = self.k
        k.I("s_memrealtime", sr(self.st, 2))
        k.I("s_or_b32", s(self.ex), "s2", s(self.swave))
        k.I("s_cmp_lg_u32", s(self.ex), 0)
        k.I("s_cselect_b32", s(self.ex), "0x7ffffff0", 8 * self.kidx)
        k.I("s_waitcnt", "lgkmcnt(0)")
        k.lgq = []
        k.I("v_mov_b32", v(self.vt), s(self.t0))
        k.I("v_mov_b32", v(self.vt + 1), s(self.st))
        k.I("v_mov_b32", v(self.vo), 0)
        k.I("s_mov_b64", sr(self.st, 2), "exec")
        k.I("s_mov_b64", "exec", 1)
        for tg in range(6):
            k.I("buffer_store_dwordx2", vr(self.vt, 2), v(self.vo), sr(self.sD, 4), s(self.ex), mods=f"offen offset:{512 * tg}")
            k.vmq.append("stamp")
        k.I("s_mov_b64", "exec", sr(self.st, 2))

if os.environ.get("GEN_DBG"): Stamper = DbgStamper

def gen_k1():
    k = Kernel("k1_qkv_kernel")
    k.snext = 4; k.vnext = 1
    WREG = 0; WCH = 12288; XRING = 7 * WCH; XSL = 4096; NXS = 4
    TBL = XRING + 4 * NXS * XSL
    CWT = TBL; RT = TBL + 512; NMT = TBL + 1024; SQT = TBL + 1536
    ONES = TBL + 2048
    lds = ONES + 1024
    done = k.newlabel("done")
    k.I("s_cmp_ge_u32", "s2", 256)
    k.I("s_cbranch_scc1", done)
    pX = k.salloc(4); pWS = k.salloc(2)
    k.I("s_load_dwordx4", sr(pX, 4), "s[0:1]", 0)
    k.I("s_load_dwordx2", sr(pWS, 2), "s[0:1]", 80)
    sX = k.salloc(4); sW = k.salloc(4); sWS = k.salloc(4)
    swave = k.salloc(); srb = k.salloc(); shd = k.salloc(); st0 = k.salloc(); st1 = k.salloc(); soff = k.salloc()
    lane = k.valloc(); l31 = k.valloc(); hh = k.valloc(); t0 = k.valloc(); t1 = k.valloc(); t2 = k.valloc()
    k.I("v_lshrrev_b32", v(t0), 6, "v0")
    k.I("v_and_b32", v(lane), 63, "v0")
    k.I("v_readfirstlane_b32", s(swave), v(t0))
    k.I("s_and_b32", s(st0), "s2", 7)
    k.I("s_lshr_b32", s(st1), "s2", 3)
    k.I("s_and_b32", s(shd), s(st1), 15)
    k.I("s_lshr_b32", s(st1), s(st1), 4)
    k.I("s_lshl_b32", s(srb), s(st0), 1)
    k.I("s_add_u32", s(srb), s(srb), s(st1))
    stp = Stamper(k, 0, sWS, swave)
    sw3 = k.salloc()
    k.I("s_and_b32", s(sw3), s(swave), 3)
    l15 = k.valloc()
    k.I("v_and_b32", v(l15), 15, v(lane))
    k.I("s_waitcnt", "lgkmcnt(0)")
    srd(k, sW, pX + 2, 448 * 2688)
    srd(k, sX, pX, 2048 * 896)
    comp = k.newlabel("compute")
    k.I("s_cmp_lt_u32", s(swave), 4)
    k.I("s_cbranch_scc1", comp)
    vsave = k.vnext
    vXo = k.valloc(4)
    k.I("v_lshrrev_b32", v(t0), 3, v(lane))
    k.I("v_mul_u32_u24", v(t0), 896, v(t0))
    k.I("v_lshrrev_b32", v(t1), 4, v(lane))
    k.I("v_and_b32", v(t2), 7, v(lane))
    k.I("v_xor_b32", v(t1), v(t1), v(t2))
    k.I("v_lshl_add_u32", v(vXo), v(t1), 4, v(t0))
    k.I("v_xor_b32", v(t1), 4, v(t1))
    k.I("v_lshl_add_u32", v(vXo + 1), v(t1), 4, v(t0))
    k.I("v_add_u32", v(vXo + 1), 8 * 896, v(vXo + 1))
    k.I("v_add_u32", v(vXo + 2), 16 * 896, v(vXo))
    k.I("v_add_u32", v(vXo + 3), 16 * 896, v(vXo + 1))
    vWo = k.valloc(3)
    for b in range(3):
        k.I("v_add_u32", v(t0), 64 * b, v(lane))
        k.I("v_mul_u32_u24", v(t1), 171, v(t0))
        k.I("v_lshrrev_b32", v(t1), 11, v(t1))
        k.I("v_mul_u32_u24", v(t2), 12, v(t1))
        k.I("v_sub_u32", v(t0), v(t0), v(t2))
        k.I("v_mul_u32_u24", v(vWo + b), 2688, v(t1))
        k.I("v_lshrrev_b32", v(t2), 2, v(t0))
        k.I("v_mul_u32_u24", v(t2), 896, v(t2))
        k.I("v_and_b32", v(t0), 3, v(t0))
        k.I("v_lshl_add_u32", v(t2), v(t0), 4, v(t2))
        k.I("v_add_u32", v(vWo + b), v(vWo + b), v(t2))
        if os.environ.get("EXP_WCONT"):
            k.I("v_lshlrev_b32", v(vWo + b), 4, v(lane))
            k.I("v_add_u32", v(vWo + b), 1024 * b, v(vWo + b))
    sWb = k.salloc(); sm0 = k.salloc(); sXb = k.salloc(); sm0x = k.salloc()
    k.I("s_mul_i32", s(sWb), s(shd), 56)
    k.I("s_mul_i32", s(st0), s(sw3), 16 * 2688)
    k.I("s_add_u32", s(sWb), s(sWb), s(st0))
    k.I("s_mul_i32", s(sm0), s(sw3), 3 * 1024)
    k.I("s_lshl_b32", s(st0), s(srb), 7)
    k.I("s_lshl_b32", s(st1), s(sw3), 5)
    k.I("s_add_u32", s(st0), s(st0), s(st1))
    k.I("s_mul_i32", s(sXb), s(st0), 896)
    k.I("s_mul_i32", s(sm0x), s(sw3), NXS * XSL)
    k.I("s_add_u32", s(sm0x), s(sm0x), XRING)
    def wdma(c, b):
        if os.environ.get("EXP_NODMA") and c >= 3: return
        k.I("s_add_u32", s(soff), s(sWb), hex(c * 64 * 2688))
        k.I("s_add_u32", "m0", s(sm0), hex(WREG + c * WCH + b * 1024))
        k.vm(("W", c), "buffer_load_dwordx4", v(vWo + b), sr(sW, 4), s(soff), mods="offen lds")
    def xdma(c, j):
        if os.environ.get("EXP_NODMA") and c >= 2: return
        k.I("s_add_u32", s(soff), s(sXb), hex(c * 128))
        k.I("s_add_u32", "m0", s(sm0x), hex((c % NXS) * XSL + j * 1024))
        k.vm(("X", c), "buffer_load_dwordx4", v(vXo + j), sr(sX, 4), s(soff), mods="offen lds")
    for c in range(2):
        for b in range(3): wdma(c, b)
        for j in range(4): xdma(c, j)
    for b in range(3): wdma(2, b)
    LT = os.environ.get("TICKWAVE", "0") != "0"
    if LT: stp.tick(0)
    for c in range(7):
        k.wait_vm([("W", c), ("X", c)])
        if LT and c < 5: stp.tick(1 + 3 * c)
        k.I("s_barrier")
        if LT and c < 5: stp.tick(2 + 3 * c)
        if c + 2 <= 6:
            for j in range(4): xdma(c + 2, j)
        if c + 3 <= 6:
            for b in range(3): wdma(c + 3, b)
        if c == 4 and os.environ.get("PFK1", "0") == "1":
            import kernels2
            vTp = k.valloc()
            k.I("s_lshr_b32", s(st0), "s2", 3)
            k.I("s_lshl_b32", s(st0), s(st0), 8)
            k.I("v_subrev_u32", v(vTp), 256, "v0")
            k.I("v_add_u32", v(vTp), s(st0), v(vTp))
            k.I("v_lshlrev_b32", v(vTp), 7, v(vTp))
            kernels2.l2_prefetch(k, 16, 448 * 896, vTp, 8192, st0)
            kernels2.l2_prefetch(k, 32, 448 * 3584, vTp, 8192, st0)
        if LT and c < 5: stp.tick(3 + 3 * c)
    vTp = k.valloc()
    k.I("s_lshr_b32", s(st0), "s2", 3)
    k.I("s_lshl_b32", s(st0), s(st0), 8)
    k.I("v_subrev_u32", v(vTp), 256, "v0")
    k.I("v_add_u32", v(vTp), s(st0), v(vTp))
    k.I("v_lshlrev_b32", v(vTp), 7, v(vTp))
    import kernels2
    k.I("s_barrier")
    if LT:
        srd(k, sWS, pWS, WS_SIZE)
        stp.dump_ticks()
    k.I("s_endpgm")
    k.L(comp)
    k.vnext = vsave; k.vmq = []; k.lgq = []
    vpf = k.valloc(); vpd = k.valloc(4)
    k.I("s_lshr_b32", s(st0), "s2", 3)
    k.I("s_lshl_b32", s(st0), s(st0), 8)
    k.I("v_add_u32", v(vpf), s(st0), "v0")
    k.I("v_lshlrev_b32", v(vpf), 7, v(vpf))
    if not os.environ.get("EXP_NOPF"):
        k.I("buffer_load_dword", v(vpd), v(vpf), sr(sW, 4), 0, mods="offen")
        k.I("v_add_u32", v(vpf), 8192 * 128, v(vpf))
        k.I("buffer_load_dword", v(vpd + 1), v(vpf), sr(sW, 4), 0, mods="offen")
        k.I("s_and_b32", s(st0), "s2", 7)
        k.I("s_mul_i32", s(st0), s(st0), 256 * 896)
        k.I("v_subrev_u32", v(vpf), 9408 * 128, v(vpf))
        k.I("v_mov_b32", v(t0), hex(256 * 896))
        k.I("v_cmp_lt_u32", "vcc", v(vpf), v(t0))
        k.I("v_mov_b32", v(t1), "0x7fffff00")
        k.I("v_cndmask_b32", v(vpf), v(t1), v(vpf), "vcc")
        k.I("buffer_load_dword", v(vpd + 2), v(vpf), sr(sX, 4), s(st0), mods="offen")
    sidx1 = k.salloc()
    k.I("s_lshr_b32", s(sidx1), "s2", 3)
    import kernels2
    kernels2.code_prefetch(k, "k2_attn_kernel", sidx1, st0)
    if os.environ.get("PF2", "0") == "1":
        pp = k.salloc(2); sP = k.salloc(4); vT = k.valloc(); vd = k.valloc(8)
        k.I("s_lshr_b32", s(st0), "s2", 3)
        k.I("s_lshl_b32", s(st0), s(st0), 8)
        k.I("v_add_u32", v(vT), s(st0), "v0")
        k.I("v_lshlrev_b32", v(vT), 7, v(vT))
        k.I("s_getpc_b64", sr(pp, 2))
        k.I("s_and_b32", s(pp), s(pp), "0xffffff00")
        srd(k, sP, pp, "CODE_BYTES-4096")
        k.I("buffer_load_dword", v(vd), v(vT), sr(sP, 4), 0, mods="offen")
        for (ko, nbytes, n) in ((16, 448 * 896, 1), (32, 448 * 3584, 2)):
            k.I("s_load_dwordx2", sr(pp, 2), "s[0:1]", ko)
            k.I("s_waitcnt", "lgkmcnt(0)")
            srd(k, sP, pp, nbytes)
            for i in range(n):
                k.I("s_mov_b32", s(st0), hex(i * 8192 * 128))
                k.I("buffer_load_dword", v(vd + 1 + i + (0 if ko == 16 else 1)), v(vT), sr(sP, 4), s(st0), mods="offen")
        vG = k.valloc()
        k.I("s_lshl_b32", s(st0), "s2", 8)
        k.I("v_add_u32", v(vG), s(st0), "v0")
        k.I("v_lshlrev_b32", v(vG), 7, v(vG))
        for n_, (ko, nbytes) in enumerate(((40, 2048 * 4096), (56, 896 * 896))):
            k.I("s_load_dwordx2", sr(pp, 2), "s[0:1]", ko)
            k.I("s_waitcnt", "lgkmcnt(0)")
            srd(k, sP, pp, nbytes)
            k.I("buffer_load_dword", v(vd + 5 + n_), v(vG), sr(sP, 4), 0, mods="offen")
        srd(k, sP, pWS, 0x1C00000)
        k.I("v_lshlrev_b32", v(t0), 9, v(vT))
        k.I("buffer_load_dword", v(vd + 4), v(t0), sr(sP, 4), 0, mods="offen")
    sm0x = k.salloc()
    k.I("s_mul_i32", s(sm0x), s(swave), NXS * XSL)
    k.I("s_add_u32", s(sm0x), s(sm0x), XRING)
    aX = k.valloc(4); vW = k.valloc(); aG = k.valloc(4); vWj = k.valloc()
    gg = k.valloc()
    k.I("v_and_b32", v(l31), 31, "v0")
    k.I("v_bfe_u32", v(hh), "v0", 5, 1)
    k.I("v_lshrrev_b32", v(gg), 4, v(lane))
    k.I("v_bfe_u32", v(t0), v(l31), 1, 3)
    for j in range(4):
        k.I("v_add_u32", v(t1), 2 * j, v(hh))
        k.I("v_xor_b32", v(t1), v(t1), v(t0))
        k.I("v_lshlrev_b32", v(t1), 4, v(t1))
        k.I("v_lshl_add_u32", v(aX + j), v(l31), 7, v(t1))
        k.I("v_add_u32", v(aX + j), s(sm0x), v(aX + j))
    for rg in range(2):
        k.I("v_add_u32", v(t0), 16 * rg, v(l15))
        k.I("v_bfe_u32", v(t1), v(t0), 1, 3)
        for kk in range(2):
            k.I("v_add_u32", v(t2), 4 * kk, v(gg))
            k.I("v_xor_b32", v(t2), v(t2), v(t1))
            k.I("v_lshlrev_b32", v(t2), 4, v(t2))
            k.I("v_lshl_add_u32", v(aG + 2 * rg + kk), v(t0), 7, v(t2))
            k.I("v_add_u32", v(aG + 2 * rg + kk), s(sm0x), v(aG + 2 * rg + kk))
    k.I("v_bfe_u32", v(t0), "v0", 2, 2)
    k.I("v_lshl_add_u32", v(t1), v(hh), 3, v(t0))
    k.I("v_mul_u32_u24", v(t1), 192, v(t1))
    k.I("v_bfe_u32", v(t2), "v0", 4, 1)
    k.I("v_lshl_add_u32", v(t1), v(t2), 5, v(t1))
    k.I("v_and_b32", v(t2), 3, "v0")
    k.I("v_lshl_add_u32", v(vW), v(t2), 3, v(t1))
    k.I("v_lshl_add_u32", v(t0), v(gg), 3, v(t0))
    k.I("v_mul_u32_u24", v(t0), 192, v(t0))
    k.I("v_lshl_add_u32", v(vWj), v(t2), 3, v(t0))
    k.I("s_lshr_b32", s(st0), s(swave), 1)
    k.I("s_mul_i32", s(st0), s(st0), 32 * 192)
    k.I("s_and_b32", s(st1), s(swave), 1)
    k.I("s_mul_i32", s(st1), s(st1), 96)
    k.I("s_add_u32", s(st0), s(st0), s(st1))
    k.I("v_add_u32", v(vWj), s(st0), v(vWj))
    vW2 = k.valloc(); vWj2 = k.valloc()
    k.I("v_add_u32", v(vW2), 4 * WCH, v(vW))
    k.I("v_add_u32", v(vWj2), 4 * WCH, v(vWj))
    ones = k.valloc(4)
    vWq = k.valloc(); vInc = k.valloc()
    k.I("v_and_b32", v(t0), 19, v(lane))
    k.I("v_cmp_eq_u32", "vcc", 19, v(t0))
    k.I("v_mov_b32", v(t1), ONES)
    k.I("v_cndmask_b32", v(vWq), v(vW), v(t1), "vcc")
    k.I("v_mov_b32", v(t1), 16 * 192)
    k.I("v_cndmask_b32", v(vInc), v(t1), 0, "vcc")
    k.I("v_lshlrev_b32", v(t0), 4, v(lane))
    k.I("v_add_u32", v(t0), ONES, v(t0))
    for i in range(4): k.I("v_mov_b32", v(ones + i), "0x3f803f80")
    k.lg("z", "ds_write_b128", v(t0), vr(ones, 4))
    zz = k.valloc(2); vtb = k.valloc()
    k.I("v_mov_b32", v(zz), 0); k.I("v_mov_b32", v(zz + 1), 0)
    k.I("v_lshlrev_b32", v(vtb), 3, v(lane))
    k.I("v_add_u32", v(vtb), CWT, v(vtb))
    k.lg("z", "ds_write_b64", v(vtb), vr(zz, 2))
    accq = k.valloc(16, 4); acck = k.valloc(16, 4); accv = k.valloc(16, 4)
    NB = 3
    cacc = [k.valloc(4) for _ in range(3)]
    gacc = [k.valloc(4) for _ in range(2)]
    vmark = k.vnext
    xf = [k.valloc(4) for _ in range(NB)]
    wf = [[k.valloc(4) for _ in range(3)] for _ in range(NB)]
    xs = [k.valloc(4) for _ in range(4)]
    wf2 = [k.valloc(4) for _ in range(3)]
    def read_list(ks):
        c, j = ks // 4, ks % 4
        b = ks % NB
        out = [lambda: k.lg(("f", ks), "ds_read_b128", vr(xf[b], 4), v(aX + j), mods=f"offset:{(c % NXS) * XSL}")]
        for beta in range(2):
            out.append(lambda beta=beta: k.lg(("f", ks), "ds_read_b64_tr_b16", vr(wf[b][0] + 2 * beta, 2), v(vWq), mods=f"offset:{beta * 4 * 192}"))
        out.append(lambda: k.I("v_add_u32", v(vWq), v(vInc), v(vWq)))
        for sg in range(1, 3):
            for beta in range(2):
                o = (c % 4) * WCH + (16 * j + 4 * beta) * 192 + 64 * sg
                base = vW if c < 4 else vW2
                out.append(lambda o=o, sg=sg, beta=beta, base=base: k.lg(("f", ks), "ds_read_b64_tr_b16", vr(wf[b][sg] + 2 * beta, 2), v(base), mods=f"offset:{o}"))
        return out
    def aux_reads(c):
        out = []
        for j in range(4):
            out.append(lambda j=j: k.lg(("g", c), "ds_read_b128", vr(xs[j], 4), v(aG + j), mods=f"offset:{(c % NXS) * XSL}"))
        for nt in range(3):
            for beta in range(2):
                o = (c % 4) * WCH + (4 * beta) * 192 + 32 * nt
                base = vWj if c < 4 else vWj2
                out.append(lambda o=o, nt=nt, beta=beta, base=base: k.lg(("cw", c), "ds_read_b64_tr_b16", vr(wf2[nt] + 2 * beta, 2), v(base), mods=f"offset:{o}"))
        return out
    k.I("s_waitcnt", "lgkmcnt(0)")
    srd(k, sWS, pWS, WS_SIZE)
    stp.stamp(0)
    k.wait_lg("z")
    k.I("s_barrier")
    stp.stamp(1)
    if os.environ.get("TICKWAVE", "0") != "0": stp.tick = lambda i: None
    stp.tick(0)
    for f in read_list(0): f()
    for f in read_list(1): f()
    for ks in range(28):
        c, j = ks // 4, ks % 4
        b = ks % NB
        fill = []
        if ks + 2 < 28:
            fill += read_list(ks + 2)
        vm = []
        aux = []
        if j == 0: aux = aux_reads(c)[:4]
        if j == 1: aux = aux_reads(c)[4:]
        if os.environ.get("EXP_NOCOMP"):
            k.lgq = []
            if j == 1 and c < 6:
                k.I("s_barrier"); stp.tick(1 + c)
            continue
        k.wait_lg(("f", ks))
        mf = [
            lambda: k.I("v_mfma_f32_32x32x16_bf16", vr(accq, 16), vr(wf[b][0], 4), vr(xf[b], 4), 0 if ks == 0 else vr(accq, 16)),
            lambda: k.I("v_mfma_f32_32x32x16_bf16", vr(acck, 16), vr(wf[b][1], 4), vr(xf[b], 4), 0 if ks == 0 else vr(acck, 16)),
            lambda: k.I("v_mfma_f32_32x32x16_bf16", vr(accv, 16), vr(xf[b], 4), vr(wf[b][2], 4), 0 if ks == 0 else vr(accv, 16)),
        ]
        fl = fill + aux + vm
        n = len(fl)
        cuts = [0, (n + 2) // 3, (2 * n + 2) // 3, n]
        for i in range(3):
            mf[i]()
            for f in fl[cuts[i]:cuts[i + 1]]: f()
        if j == 2:
            k.wait_lg(("g", c))
            for jj in range(4):
                k.I("v_mfma_f32_16x16x32_bf16", vr(gacc[jj >> 1], 4), vr(xs[jj], 4), vr(xs[jj], 4), 0 if (c == 0 and (jj & 1) == 0) else vr(gacc[jj >> 1], 4))
        if j == 3:
            k.wait_lg(("cw", c))
            for nt in range(3):
                k.I("v_mfma_f32_16x16x32_bf16", vr(cacc[nt], 4), vr(ones, 4), vr(wf2[nt], 4), 0 if c == 0 else vr(cacc[nt], 4))
        if j == 1 and c < 6:
            k.I("s_barrier")
            stp.tick(1 + c)
    stp.tick(13)
    stp.stamp(2)
    k.vnext = vmark
    m1 = k.salloc(2); m2 = k.salloc(2); m3 = k.salloc(2)
    k.I("v_and_b32", v(t0), 3, v(lane))
    k.I("v_cmp_eq_u32", sr(m1, 2), 1, v(t0))
    k.I("v_cmp_eq_u32", sr(m2, 2), 2, v(t0))
    k.I("v_cmp_eq_u32", sr(m3, 2), 3, v(t0))
    vtl = k.valloc()
    k.I("v_lshlrev_b32", v(vtl), 2, v(l15))
    k.I("v_add_u32", v(vtl), TBL, v(vtl))
    k.I("s_and_b32", s(st1), s(swave), 1)
    k.I("s_mul_i32", s(st1), s(st1), 192)
    k.I("v_add_u32", v(t1), s(st1), v(vtl))
    k.I("s_mov_b32", "exec_lo", "0xffff")
    k.I("s_mov_b32", "exec_hi", 0)
    for nt in range(3):
        k.I("ds_add_f32", v(t1), v(cacc[nt]), mods=f"offset:{64 * nt}")
    k.I("s_mov_b64", "exec", -1)
    for rg in range(2):
        g_ = gacc[rg]
        k.I("v_cndmask_b32", v(g_), v(g_), v(g_ + 1), sr(m1, 2))
        k.I("v_cndmask_b32", v(g_), v(g_), v(g_ + 2), sr(m2, 2))
        k.I("v_cndmask_b32", v(g_), v(g_), v(g_ + 3), sr(m3, 2))
    k.I("s_lshl_b32", s(st0), s(swave), 7)
    k.I("v_add_u32", v(t0), s(st0), v(vtl))
    k.I("s_mov_b32", "exec_lo", "0x00f0000f")
    k.I("s_mov_b32", "exec_hi", "0xf0000f00")
    for rg in range(2):
        k.I("ds_write_b32", v(t0), v(gacc[rg]), mods=f"offset:{SQT - TBL + 64 * rg}")
    k.I("s_mov_b64", "exec", -1)
    sq = k.valloc(2); rl = k.valloc(2); nml = k.valloc(2); cwv = k.valloc(2)
    cwq = k.valloc(16, 4); cwk = k.valloc(16, 4); rv = k.valloc(16, 4); nv = k.valloc(16, 4)
    ta = k.valloc(); tb = k.valloc(); tc = k.valloc()
    k.I("v_lshlrev_b32", v(ta), 2, v(l31))
    k.I("s_add_u32", s(st0), s(st0), TBL)
    k.I("v_add_u32", v(ta), s(st0), v(ta))
    k.I("v_mov_b32", v(nml), v(accq + 12))
    k.I("v_mov_b32", v(nml + 1), v(accq + 12))
    k.I("v_permlane32_swap_b32", v(nml), v(nml + 1))
    k.I("v_mul_f32", v(nml), hex(f32(-1.0 / 448)), v(nml + 1))
    k.I("s_waitcnt", "lgkmcnt(0)")
    k.I("ds_read_b32", v(sq), v(ta), mods=f"offset:{SQT - TBL}")
    k.I("ds_write_b32", v(ta), v(nml), mods=f"offset:{NMT - TBL}")
    k.I("s_barrier")
    k.I("v_lshlrev_b32", v(tb), 4, v(hh))
    k.I("v_add_u32", v(tb), TBL, v(tb))
    for q in range(4):
        k.I("ds_read_b128", vr(cwq + 4 * q, 4), v(tb), mods=f"offset:{CWT - TBL + 32 * q}")
        k.I("ds_read_b128", vr(cwk + 4 * q, 4), v(tb), mods=f"offset:{CWT - TBL + 128 + 32 * q}")
    k.I("v_lshlrev_b32", v(tc), 2, v(l31))
    k.I("v_add_u32", v(tc), TBL, v(tc))
    k.I("ds_read_b32", v(cwv), v(tc), mods=f"offset:{CWT - TBL + 256}")
    k.I("s_waitcnt", "lgkmcnt(9)")
    k.I("v_mul_f32", v(sq), hex(f32(1.0 / 448)), v(sq))
    k.I("v_fma_f32", v(sq), f"-{v(nml)}", v(nml), v(sq))
    k.I("v_max_f32", v(sq), 0, v(sq))
    k.I("v_add_f32", v(sq), hex(f32(1e-5)), v(sq))
    k.I("v_rsq_f32", v(rl), v(sq))
    k.I("s_lshl_b32", s(st0), s(swave), 7)
    k.I("v_add_u32", v(tb), s(st0), v(tb))
    k.I("ds_write_b32", v(ta), v(rl), mods=f"offset:{RT - TBL}")
    k.I("s_waitcnt", "lgkmcnt(0)")
    for q in range(4):
        k.I("ds_read_b128", vr(rv + 4 * q, 4), v(tb), mods=f"offset:{RT - TBL + 32 * q}")
        k.I("ds_read_b128", vr(nv + 4 * q, 4), v(tb), mods=f"offset:{NMT - TBL + 32 * q}")
    k.lgq = []
    vq = k.valloc(); vv_ = k.valloc()
    k.I("v_lshrrev_b32", v(t0), 4, v(l31))
    k.I("v_lshlrev_b32", v(vq), 10, v(t0))
    k.I("v_lshl_add_u32", v(vq), v(l15), 4, v(vq))
    k.I("v_lshl_add_u32", v(vq), v(hh), 9, v(vq))
    k.I("v_lshlrev_b32", v(vv_), 9, v(t0))
    k.I("v_lshl_add_u32", v(vv_), v(l15), 3, v(vv_))
    k.I("v_lshl_add_u32", v(vv_), v(hh), 7, v(vv_))
    sb = k.salloc()
    k.I("s_lshl_b32", s(sb), s(shd), 17)
    k.I("s_lshl_b32", s(st0), s(srb), 13)
    k.I("s_add_u32", s(sb), s(sb), s(st0))
    k.I("s_lshl_b32", s(st0), s(swave), 11)
    k.I("s_add_u32", s(sb), s(sb), s(st0))
    k.I("v_cmp_eq_u32", "vcc", 0, v(hh))
    pk = k.valloc(8, 4)
    for (acc, cw, off) in ((accq, cwq, Q_OFF), (acck, cwk, K_OFF)):
        for j in range(8):
            k.I("v_pk_fma_f32", vr(acc + 2 * j, 2), vr(cw + 2 * j, 2), vr(nml, 2), vr(acc + 2 * j, 2), mods="op_sel_hi:[1,0,1]")
        for j in range(8):
            k.I("v_pk_mul_f32", vr(acc + 2 * j, 2), vr(acc + 2 * j, 2), vr(rl, 2), mods="op_sel_hi:[1,0]")
        for j in range(8):
            k.I("v_cvt_pk_bf16_f32", v(pk + j), v(acc + 2 * j), v(acc + 2 * j + 1))
        k.I("v_cndmask_b32", v(pk + 6), 0, v(pk + 6), "vcc")
        k.I("v_cndmask_b32", v(pk + 7), 0, v(pk + 7), "vcc")
        k.I("s_add_u32", s(soff), s(sb), hex(off))
        k.I("buffer_store_dwordx4", vr(pk, 4), v(vq), sr(sWS, 4), s(soff), mods="offen")
        k.I("buffer_store_dwordx4", vr(pk + 4, 4), v(vq), sr(sWS, 4), s(soff), mods="offen offset:256")
        pk = k.valloc(8, 4)
    k.I("s_waitcnt", "lgkmcnt(0)")
    for j in range(8):
        k.I("v_pk_fma_f32", vr(accv + 2 * j, 2), vr(nv + 2 * j, 2), vr(cwv, 2), vr(accv + 2 * j, 2), mods="op_sel_hi:[1,0,1]")
    for j in range(8):
        k.I("v_pk_mul_f32", vr(accv + 2 * j, 2), vr(accv + 2 * j, 2), vr(rv + 2 * j, 2))
    for j in range(8):
        k.I("v_cvt_pk_bf16_f32", v(pk + j), v(accv + 2 * j), v(accv + 2 * j + 1))
    k.I("v_mov_b32", v(t0), "0x3f803f80")
    k.I("v_cmp_eq_u32", "vcc", 28, v(l31))
    k.I("v_cndmask_b32", v(t0), 0, v(t0), "vcc")
    k.I("v_cmp_gt_u32", "vcc", 28, v(l31))
    for j in range(8):
        k.I("v_cndmask_b32", v(pk + j), v(t0), v(pk + j), "vcc")
    k.I("s_add_u32", s(soff), s(sb), hex(V_OFF))
    for q in range(4):
        k.I("buffer_store_dwordx2", vr(pk + 2 * q, 2), v(vv_), sr(sWS, 4), s(soff), mods=f"offen offset:{(q >> 1) * 1024 + (q & 1) * 256}")
    stp.tick(15)
    stp.stamp(3)
    stp.dump_ticks()
    k.L(done)
    k.I("s_endpgm")
    k.lds = lds; k.threads = 512; k.grid = 256
    return k

import struct
def f32(x): return struct.unpack("<I", struct.pack("<f", x))[0]

def assemble(kernels):
    out = []
    hdr = open("cdna_kernels/" + NAME + ".s.ref").read().split("\n")
    for line in hdr:
        if line.startswith("; Override") or line.startswith("; grid=") or line.startswith("; @launch"): continue
        if not line.startswith(";"): break
        out.append(line)
    for k in kernels:
        out.append(f"; @launch kernel={k.name} grid=({k.grid},1,1) block=({k.threads},1,1) lds={k.lds}")
    out.append('.amdgcn_target "amdgcn-amd-amdhsa--gfx950"')
    out.append(".text")
    for k in kernels:
        n = k.fix_hazards()
        out.append(f".globl {k.name}")
        out.append(".p2align 8")
        out.append(f".type {k.name},@function")
        out.append(f"{k.name}:")
        out.append(k.render())
        out.append(f"{k.name}_end:")
        print(f"{k.name}: {len(k.ins)} instrs, hazard pads {n}, vgpr {k.vmax} agpr {k.amax} sgpr {k.smax} lds {k.lds}", file=sys.stderr)
    out.append("code_end:")
    out.append(f".set CODE_BYTES, code_end - {kernels[0].name}")
    out.append('.section .rodata,"a"')
    for k in kernels:
        out.append(".p2align 6")
        out.append(k.descriptor())
    return "\n".join(out) + "\n"

if __name__ == "__main__":
    import kernels2 as k2
    ks = [gen_k1()] + k2.rest(Stamper)
    path = sys.argv[1] if len(sys.argv) > 1 else "cdna_kernels/" + NAME + ".s"
    open(path, "w").write(assemble(ks))
```

```python
import os, struct, math
from asmlib import *
from layout import *
WS_SIZE = 0x10000000
def f32(x): return struct.unpack("<I", struct.pack("<f", x))[0]

def srd(k, dst, base, size):
    k.I("s_mov_b32", s(dst), s(base))
    k.I("s_and_b32", s(dst + 1), s(base + 1), "0xffff")
    k.I("s_mov_b32", s(dst + 2), hex(size) if isinstance(size, int) else size)
    k.I("s_mov_b32", s(dst + 3), "0x20000")

def gen_k2(Stamper):
    k = Kernel("k2_attn_kernel")
    k.snext = 4; k.vnext = 1
    KREG = 0; VREG = 24576
    lds = 49152
    done = k.newlabel("done")
    k.I("s_cmp_ge_u32", "s2", 256)
    k.I("s_cbranch_scc1", done)
    pWS = k.salloc(2)
    k.I("s_load_dwordx2", sr(pWS, 2), "s[0:1]", 80)
    sWS = k.salloc(4)
    swave = k.salloc(); srb = k.salloc(); shd = k.salloc(); st0 = k.salloc(); st1 = k.salloc(); soff = k.salloc()
    lane = k.valloc(); t0 = k.valloc(); t1 = k.valloc(); l15 = k.valloc(); gg = k.valloc()
    k.I("v_lshrrev_b32", v(t0), 6, "v0")
    k.I("v_and_b32", v(lane), 63, "v0")
    k.I("v_readfirstlane_b32", s(swave), v(t0))
    k.I("s_and_b32", s(st0), "s2", 7)
    k.I("s_lshr_b32", s(st1), "s2", 3)
    k.I("s_and_b32", s(shd), s(st1), 15)
    k.I("s_lshr_b32", s(st1), s(st1), 4)
    k.I("s_lshl_b32", s(srb), s(st0), 1)
    k.I("s_add_u32", s(srb), s(srb), s(st1))
    stp = Stamper(k, 1, sWS, swave)
    v16 = k.valloc()
    k.I("v_lshlrev_b32", v(v16), 4, v(lane))
    sb = k.salloc(); sm = k.salloc(); s16q = k.salloc()
    k.I("s_lshl_b32", s(sb), s(shd), 17)
    k.I("s_lshl_b32", s(st0), s(srb), 13)
    k.I("s_add_u32", s(sb), s(sb), s(st0))
    k.I("s_mul_i32", s(sm), s(swave), 3072)
    k.I("s_lshl_b32", s(s16q), s(srb), 3)
    k.I("s_add_u32", s(s16q), s(s16q), s(swave))
    k.I("s_waitcnt", "lgkmcnt(0)")
    srd(k, sWS, pWS, WS_SIZE)
    qf = k.valloc(4)
    k.I("s_lshl_b32", s(st0), s(swave), 10)
    k.I("s_add_u32", s(st0), s(st0), s(sb))
    k.I("s_add_u32", s(soff), s(st0), hex(Q_OFF))
    k.vm("q", "buffer_load_dwordx4", vr(qf, 4), v(v16), sr(sWS, 4), s(soff), mods="offen")
    k.I("s_add_u32", s(st1), s(sb), s(sm))
    for (reg, off) in ((KREG, K_OFF), (VREG, V_OFF)):
        for i in range(3):
            k.I("s_add_u32", s(soff), s(st1), hex(off - 16384 + i * 1024))
            k.I("s_add_u32", "m0", s(sm), hex(reg + i * 1024))
            k.vm("kv", "buffer_load_dwordx4", v(v16), sr(sWS, 4), s(soff), mods="offen lds")
    sidx2 = k.salloc()
    k.I("s_lshr_b32", s(sidx2), "s2", 3)
    code_prefetch(k, "k3_wo_kernel", sidx2, st0)
    stp.stamp(0)
    k.I("v_and_b32", v(l15), 15, v(lane))
    k.I("v_lshrrev_b32", v(gg), 4, v(lane))
    M = [k.salloc(2) for _ in range(4)]
    k.I("v_lshlrev_b32", v(t0), 2, v(gg))
    for i in range(4):
        k.I("v_add_u32", v(t1), i, v(t0))
        k.I("v_cmp_gt_u32", sr(M[i], 2), v(t1), v(l15))
    aK = k.valloc(); aV = k.valloc()
    k.I("s_lshl_b32", s(st0), s(swave), 10)
    k.I("v_add_u32", v(aK), s(st0), v(v16))
    k.I("v_lshlrev_b32", v(aV), 3, v(lane))
    k.I("s_add_u32", s(st0), s(st0), VREG)
    k.I("v_add_u32", v(aV), s(st0), v(aV))
    S = k.valloc(68, 4)
    kf = [k.valloc(4) for _ in range(6)]
    neg = k.valloc()
    k.I("v_mov_b32", v(neg), hex(f32(-1e30)))
    k.wait_vm(["q", "kv"])
    k.I("s_barrier")
    stp.stamp(1)
    NKF = 6
    for j in range(min(NKF, 17)):
        k.lg(("k", j), "ds_read_b128", vr(kf[j % NKF], 4), v(aK), mods=f"offset:{j * 1024}")
    for j in range(17):
        k.wait_lg(("k", j))
        k.I("v_mfma_f32_16x16x32_bf16", vr(S + 4 * j, 4), vr(kf[j % NKF], 4), vr(qf, 4), 0)
        if j + NKF < 17:
            k.lg(("k", j + NKF), "ds_read_b128", vr(kf[j % NKF], 4), v(aK), mods=f"offset:{(j + NKF) * 1024}")
    vT = k.valloc()
    k.I("s_lshl_b32", s(st0), s(sidx2), 9)
    k.I("v_add_u32", v(vT), s(st0), "v0")
    k.I("v_lshlrev_b32", v(vT), 7, v(vT))
    if os.environ.get("PFK2", "1") == "1":
        l2_prefetch(k, 16, 448 * 896, vT, 16384, st0)
        if os.environ.get("PFWIN", "k2") == "k2": l2_prefetch(k, 32, 448 * 3584, vT, 16384, st0)
        k.lgq = []
    vf = k.valloc(9 * 2 * 4, 4)
    def vread(kp):
        for dt in range(2):
            for beta in range(2):
                tile = min(2 * kp + beta, 16)
                k.lg(("v", kp), "ds_read_b64", vr(vf + (kp * 2 + dt) * 4 + 2 * beta, 2), v(aV), mods=f"offset:{tile * 1024 + dt * 512}")
    for kp in range(3): vread(kp)
    for i in range(4):
        k.I("v_cndmask_b32", v(S + i), v(neg), v(S + i), sr(M[i], 2))
        k.I("v_cndmask_b32", v(S + 64 + i), v(S + 64 + i), v(neg), sr(M[i], 2))
    nofix = k.newlabel("nofix")
    k.I("s_cmp_ge_u32", s(s16q), 16)
    k.I("s_cbranch_scc1", nofix)
    k.I("s_sub_u32", s(st0), 16, s(s16q))
    for j in range(16):
        lab = k.newlabel("sk")
        k.I("s_cmp_le_u32", s(st0), j)
        k.I("s_cbranch_scc1", lab)
        for i in range(4): k.I("v_mov_b32", v(S + 4 * j + i), v(neg))
        k.L(lab)
    k.L(nofix)
    mx = k.valloc(4)
    for c in range(4):
        k.I("v_max3_f32", v(mx + c), v(S + c * 17), v(S + c * 17 + 1), v(S + c * 17 + 2))
    for r in range(7):
        for c in range(4):
            b = c * 17 + 3 + 2 * r
            k.I("v_max3_f32", v(mx + c), v(mx + c), v(S + b), v(S + b + 1))
    k.I("v_max3_f32", v(mx), v(mx), v(mx + 1), v(mx + 2))
    k.I("v_max_f32", v(mx), v(mx), v(mx + 3))
    for sw in ("v_permlane16_swap_b32", "v_permlane32_swap_b32"):
        k.I("v_mov_b32", v(mx + 1), v(mx))
        k.I(sw, v(mx), v(mx + 1))
        k.I("v_max_f32", v(mx), v(mx), v(mx + 1))
    cs = 28 ** -0.5 * math.log2(math.e)
    sc = k.salloc()
    k.I("s_mov_b32", s(sc), hex(f32(cs)))
    k.I("v_mul_f32", v(mx), hex(f32(-cs)), v(mx))
    for kp in range(3, 6): vread(kp)
    P = k.valloc(36, 4)
    k.I("v_mov_b32", v(P + 34), 0); k.I("v_mov_b32", v(P + 35), 0)
    O = [k.valloc(4), k.valloc(4)]
    def softmax_tile(j):
        for i in range(4): k.I("v_fma_f32", v(S + 4 * j + i), v(S + 4 * j + i), s(sc), v(mx))
        for i in range(4): k.I("v_exp_f32", v(S + 4 * j + i), v(S + 4 * j + i))
    def pack_tile(j):
        k.I("v_cvt_pk_bf16_f32", v(P + 2 * j), v(S + 4 * j), v(S + 4 * j + 1))
        k.I("v_cvt_pk_bf16_f32", v(P + 2 * j + 1), v(S + 4 * j + 2), v(S + 4 * j + 3))
    for kp in range(9):
        tiles = [2 * kp, 2 * kp + 1] if kp < 8 else [16]
        for j in tiles: softmax_tile(j)
        for j in tiles: pack_tile(j)
        if kp == 2:
            for q in range(6, 9): vread(q)
        if kp >= 1:
            q = kp - 1
            k.wait_lg(("v", q))
            for dt in range(2):
                k.I("v_mfma_f32_16x16x32_bf16", vr(O[dt], 4), vr(vf + (q * 2 + dt) * 4, 4), vr(P + 4 * q, 4), 0 if q == 0 else vr(O[dt], 4))
    k.wait_lg(("v", 8))
    for dt in range(2):
        k.I("v_mfma_f32_16x16x32_bf16", vr(O[dt], 4), vr(vf + (8 * 2 + dt) * 4, 4), vr(P + 32, 4), vr(O[dt], 4))
    la = k.valloc(); lb = k.valloc()
    k.I("v_mov_b32", v(la), v(O[1])); k.I("v_mov_b32", v(lb), v(O[1]))
    k.I("v_permlane32_swap_b32", v(la), v(lb))
    k.I("v_mov_b32", v(la), v(lb))
    k.I("v_permlane16_swap_b32", v(la), v(lb))
    k.I("v_rcp_f32", v(lb), v(lb))
    for dt in range(2):
        for i in range(4): k.I("v_mul_f32", v(O[dt] + i), v(O[dt] + i), v(lb))
    pk = k.valloc(4)
    for dt in range(2):
        k.I("v_cvt_pk_bf16_f32", v(pk + 2 * dt), v(O[dt]), v(O[dt] + 1))
        k.I("v_cvt_pk_bf16_f32", v(pk + 2 * dt + 1), v(O[dt] + 2), v(O[dt] + 3))
    k.I("v_cmp_gt_u32", "vcc", 3, v(gg))
    k.I("v_cndmask_b32", v(pk + 2), 0, v(pk + 2), "vcc")
    k.I("v_cndmask_b32", v(pk + 3), 0, v(pk + 3), "vcc")
    vo = k.valloc()
    k.I("s_and_b32", s(st0), s(swave), 1)
    k.I("s_lshl_b32", s(st0), s(st0), 8)
    k.I("v_lshlrev_b32", v(vo), 4, v(l15))
    k.I("v_add_u32", v(vo), s(st0), v(vo))
    k.I("v_lshrrev_b32", v(t0), 1, v(gg))
    k.I("v_lshl_add_u32", v(vo), v(t0), 9, v(vo))
    k.I("v_and_b32", v(t0), 1, v(gg))
    k.I("v_lshl_add_u32", v(vo), v(t0), 3, v(vo))
    k.I("s_lshl_b32", s(st0), s(srb), 2)
    k.I("s_lshr_b32", s(st1), s(swave), 1)
    k.I("s_add_u32", s(st0), s(st0), s(st1))
    k.I("s_lshl_b32", s(st0), s(st0), 15)
    k.I("s_lshl_b32", s(st1), s(shd), 11)
    k.I("s_add_u32", s(st0), s(st0), s(st1))
    k.I("s_add_u32", s(soff), s(st0), hex(O_OFF))
    for dt in range(2):
        k.I("buffer_store_dwordx2", vr(pk + 2 * dt, 2), v(vo), sr(sWS, 4), s(soff), mods=f"offen offset:{dt * 1024}")
    stp.stamp(2)
    k.L(done)
    k.I("s_endpgm")
    k.lds = lds; k.threads = 512; k.grid = 256
    return k


def code_prefetch(k, nxt, sidx, tmp_s, tid="v0"):
    if os.environ.get("PFC", "1") != "1": return
    pp = k.salloc(2); sP = k.salloc(4); vT = k.valloc(); vd = k.valloc()
    lab = k.newlabel("pc")
    k.I("s_getpc_b64", sr(pp, 2))
    k.L(lab)
    k.I("s_add_u32", s(pp), s(pp), f"{nxt}-{lab}")
    k.I("s_addc_u32", s(pp + 1), s(pp + 1), 0)
    srd(k, sP, pp, f"{nxt}_end-{nxt}")
    k.I("s_lshl_b32", s(tmp_s), s(sidx), 8)
    k.I("v_add_u32", v(vT), s(tmp_s), tid)
    k.I("v_lshlrev_b32", v(vT), 7, v(vT))
    k.vm("pfc", "buffer_load_dword", v(vd), v(vT), sr(sP, 4), 0, mods="offen")

def l2_prefetch(k, kernarg_off, nbytes, vT128, nthreads, tmp_s):
    if os.environ.get("PFT", "1") != "1": return
    pp = k.salloc(2); sP = k.salloc(4)
    k.I("s_load_dwordx2", sr(pp, 2), "s[0:1]", kernarg_off)
    k.I("s_waitcnt", "lgkmcnt(0)")
    srd(k, sP, pp, nbytes)
    n = -(-nbytes // (128 * nthreads))
    for i in range(n):
        vd = k.valloc()
        k.I("s_mov_b32", s(tmp_s), hex(i * nthreads * 128))
        k.vm("pft", "buffer_load_dword", v(vd), v(vT128), sr(sP, 4), s(tmp_s), mods="offen")

def mall_prefetch(k, kernarg_off, nbytes, first, per, nw, swave, lane, tmp_s, tv0, tv1, flag="PFM"):
    if os.environ.get(flag, "1") != "1": return
    pp = k.salloc(2); sP = k.salloc(4); vd = k.valloc()
    k.I("s_load_dwordx2", sr(pp, 2), "s[0:1]", kernarg_off)
    k.I("s_mul_i32", s(tmp_s), "s2", nw)
    k.I("s_add_u32", s(tmp_s), s(tmp_s), s(swave))
    k.I("s_mul_i32", s(tmp_s), s(tmp_s), per)
    k.I("s_add_u32", s(tmp_s), s(tmp_s), first)
    k.I("s_lshl_b32", s(tmp_s), s(tmp_s), 7)
    k.I("v_lshlrev_b32", v(tv0), 7, v(lane))
    k.I("v_mov_b32", v(tv1), "0x7fffff00")
    k.I("v_cmp_gt_u32", "vcc", per, v(lane))
    k.I("v_cndmask_b32", v(tv0), v(tv1), v(tv0), "vcc")
    k.I("s_waitcnt", "lgkmcnt(0)")
    k.lgq = []
    srd(k, sP, pp, nbytes)
    k.vm("pfm", "buffer_load_dword", v(vd), v(tv0), sr(sP, 4), s(tmp_s), mods="offen")

def common_start(k, nwg):
    k.snext = 4; k.vnext = 1
    done = k.newlabel("done")
    k.I("s_cmp_ge_u32", "s2", nwg)
    k.I("s_cbranch_scc1", done)
    R = dict(done=done)
    R["swave"] = k.salloc(); R["st0"] = k.salloc(); R["st1"] = k.salloc(); R["soff"] = k.salloc()
    R["lane"] = k.valloc(); R["t0"] = k.valloc(); R["t1"] = k.valloc(); R["t2"] = k.valloc()
    k.I("v_lshrrev_b32", v(R["t0"]), 6, "v0")
    k.I("v_and_b32", v(R["lane"]), 63, "v0")
    k.I("v_readfirstlane_b32", s(R["swave"]), v(R["t0"]))
    return R

def interleave(k, mf, fl):
    n = len(fl); m = len(mf)
    cuts = [(i * n + m - 1) // m for i in range(m + 1)]
    cuts[-1] = n
    for i in range(m):
        mf[i]()
        for f in fl[cuts[i]:cuts[i + 1]]: f()

def stats_from_packed(k, P, n, accs, accq, tmp):
    for j in range(n):
        t = tmp[j % len(tmp)]
        k.I("v_lshlrev_b32", v(t), 16, v(P + j))
        k.I("v_and_b32", v(t + 1), "0xffff0000", v(P + j))
        if j == 0:
            k.I("v_pk_mul_f32", vr(accq, 2), vr(t, 2), vr(t, 2))
            k.I("v_mov_b32", v(accs), v(t)); k.I("v_mov_b32", v(accs + 1), v(t + 1))
        else:
            k.I("v_pk_add_f32", vr(accs, 2), vr(accs, 2), vr(t, 2))
            k.I("v_pk_fma_f32", vr(accq, 2), vr(t, 2), vr(t, 2), vr(accq, 2))
    k.I("v_add_f32", v(accs), v(accs), v(accs + 1))
    k.I("v_add_f32", v(accq), v(accq), v(accq + 1))
    for r_ in (accs, accq):
        k.I("v_mov_b32", v(r_ + 1), v(r_))
        k.I("v_permlane32_swap_b32", v(r_), v(r_ + 1))
        k.I("v_add_f32", v(r_), v(r_), v(r_ + 1))

def gen_k3(Stamper):
    k = Kernel("k3_wo_kernel")
    WREG = 0; OREG = 58368
    lds = OREG + 65536
    R = common_start(k, 256)
    swave, st0, st1, soff, lane, t0, t1, t2 = (R[x] for x in ("swave", "st0", "st1", "soff", "lane", "t0", "t1", "t2"))
    pX = k.salloc(2); pWo = k.salloc(2); pWin = k.salloc(2); pWS = k.salloc(2)
    k.I("s_load_dwordx2", sr(pX, 2), "s[0:1]", 0)
    k.I("s_load_dwordx2", sr(pWo, 2), "s[0:1]", 16)
    k.I("s_load_dwordx2", sr(pWin, 2), "s[0:1]", 32)
    k.I("s_load_dwordx2", sr(pWS, 2), "s[0:1]", 80)
    sWS = k.salloc(4); sWo = k.salloc(4); sX = k.salloc(4)
    sj = k.salloc(); sidx = k.salloc(); srt = k.salloc(); snt = k.salloc(); sw3 = k.salloc()
    k.I("s_and_b32", s(sj), "s2", 7)
    k.I("s_lshr_b32", s(sidx), "s2", 3)
    k.I("s_and_b32", s(sw3), s(swave), 3)
    stp = Stamper(k, 2, sWS, swave)
    aux = k.newlabel("aux")
    k.I("s_cmp_ge_u32", s(sidx), 28)
    k.I("s_cbranch_scc1", aux)
    k.I("s_mul_i32", s(st0), s(sidx), 37)
    k.I("s_lshr_b32", s(st0), s(st0), 8)
    k.I("s_mul_i32", s(st1), s(st0), 7)
    k.I("s_sub_u32", s(snt), s(sidx), s(st1))
    k.I("s_lshl_b32", s(srt), s(sj), 2)
    k.I("s_add_u32", s(srt), s(srt), s(st0))
    k.I("s_waitcnt", "lgkmcnt(0)")
    srd(k, sWS, pWS, WS_SIZE)
    comp = k.newlabel("compute")
    k.I("s_cmp_lt_u32", s(swave), 4)
    k.I("s_cbranch_scc1", comp)
    vsave = k.vnext
    srd(k, sWo, pWo, 448 * 896)
    v16 = k.valloc(); vWo = k.valloc()
    k.I("v_lshlrev_b32", v(v16), 4, v(lane))
    k.I("v_lshrrev_b32", v(t0), 3, v(lane))
    k.I("v_mul_u32_u24", v(t0), 896, v(t0))
    k.I("v_bfe_u32", v(t1), v(lane), 4, 1)
    k.I("v_lshlrev_b32", v(t1), 2, v(t1))
    k.I("v_and_b32", v(t2), 7, v(lane))
    k.I("v_xor_b32", v(t1), v(t1), v(t2))
    k.I("v_lshl_add_u32", v(vWo), v(t1), 4, v(t0))
    sOb = k.salloc(); sWb = k.salloc(); smO = k.salloc(); smW = k.salloc()
    k.I("s_lshl_b32", s(sOb), s(srt), 16)
    k.I("s_lshl_b32", s(st0), s(sw3), 10)
    k.I("s_add_u32", s(sOb), s(sOb), s(st0))
    k.I("s_add_u32", s(sOb), s(sOb), hex(O_OFF))
    k.I("s_add_u32", s(smO), s(st0), OREG)
    k.I("s_mul_i32", s(sWb), s(sw3), 8 * 896)
    k.I("s_lshl_b32", s(st1), s(snt), 7)
    k.I("s_add_u32", s(sWb), s(sWb), s(st1))
    k.I("s_add_u32", s(smW), s(st0), WREG)
    def issue(c):
        for r2 in range(2):
            k.I("s_add_u32", s(soff), s(sOb), hex(r2 * 32768 + c * 4096))
            k.I("s_add_u32", "m0", s(smO), hex(r2 * 32768 + c * 4096))
            k.vm(("S", c), "buffer_load_dwordx4", v(v16), sr(sWS, 4), s(soff), mods="offen lds")
        for i in range(2):
            k.I("s_add_u32", s(soff), s(sWb), hex((56 * c + 32 * i) * 896))
            k.I("s_add_u32", "m0", s(smW), hex((56 * c + 32 * i) * 128))
            k.vm(("S", c), "buffer_load_dwordx4", v(vWo), sr(sWo, 4), s(soff), mods="offen lds")
    LA = 3
    for c in range(LA): issue(c)
    for c in range(8):
        k.wait_vm(("S", c))
        k.I("s_barrier")
        if c + LA < 8: issue(c + LA)
    k.I("s_endpgm")
    k.L(comp)
    k.vnext = vsave; k.vmq = []; k.lgq = []
    srd(k, sX, pX, 2048 * 896)
    l31 = k.valloc(); hh = k.valloc()
    k.I("v_and_b32", v(l31), 31, v(lane))
    k.I("v_lshrrev_b32", v(hh), 5, v(lane))
    srh = k.salloc(); snh = k.salloc(); sst = k.salloc(); sntile = k.salloc()
    k.I("s_and_b32", s(srh), s(swave), 1)
    k.I("s_lshr_b32", s(snh), s(swave), 1)
    k.I("s_lshl_b32", s(sst), s(srt), 1)
    k.I("s_add_u32", s(sst), s(sst), s(srh))
    k.I("s_lshl_b32", s(sntile), s(snt), 1)
    k.I("s_add_u32", s(sntile), s(sntile), s(snh))
    xr = k.valloc(8, 4); vx = k.valloc()
    k.I("v_mul_u32_u24", v(vx), 896, v(l31))
    k.I("v_lshl_add_u32", v(vx), v(hh), 3, v(vx))
    k.I("s_mul_i32", s(soff), s(sst), 32 * 896)
    k.I("s_lshl_b32", s(st0), s(sntile), 6)
    k.I("s_add_u32", s(soff), s(soff), s(st0))
    for q in range(4):
        k.vm("x", "buffer_load_dwordx2", vr(xr + 2 * q, 2), v(vx), sr(sX, 4), s(soff), mods=f"offen offset:{16 * q}")
    code_prefetch(k, "k4_win_kernel", sidx, st0)
    stp.stamp(0)
    aO = k.valloc(); vW = k.valloc()
    k.I("v_lshlrev_b32", v(aO), 4, v(lane))
    k.I("s_lshl_b32", s(st0), s(srh), 15)
    k.I("s_add_u32", s(st0), s(st0), OREG)
    k.I("v_add_u32", v(aO), s(st0), v(aO))
    k.I("v_bfe_u32", v(t0), v(lane), 2, 2)
    k.I("v_lshl_add_u32", v(t0), v(hh), 3, v(t0))
    k.I("v_lshlrev_b32", v(vW), 7, v(t0))
    k.I("v_bfe_u32", v(t0), v(lane), 4, 1)
    k.I("v_lshlrev_b32", v(t0), 1, v(t0))
    k.I("v_bfe_u32", v(t1), v(lane), 1, 1)
    k.I("v_add_u32", v(t0), v(t0), v(t1))
    k.I("s_lshl_b32", s(st0), s(snh), 2)
    k.I("v_add_u32", v(t0), s(st0), v(t0))
    k.I("v_bfe_u32", v(t1), v(lane), 3, 1)
    k.I("v_lshlrev_b32", v(t1), 2, v(t1))
    k.I("v_xor_b32", v(t0), v(t0), v(t1))
    k.I("v_lshl_add_u32", v(vW), v(t0), 4, v(vW))
    k.I("v_and_b32", v(t0), 1, v(lane))
    k.I("v_lshl_add_u32", v(vW), v(t0), 3, v(vW))
    acc = k.valloc(16, 4)
    NB = 3
    of = [k.valloc(4) for _ in range(NB)]; wf = [k.valloc(4) for _ in range(NB)]
    def rl(ks):
        b = ks % NB
        out = [lambda: k.lg(("f", ks), "ds_read_b128", vr(of[b], 4), v(aO), mods=f"offset:{ks * 1024}")]
        for beta in range(2):
            o = (28 * (ks >> 1) + 16 * (ks & 1) + 4 * beta) * 128
            out.append(lambda o=o, beta=beta: k.lg(("f", ks), "ds_read_b64_tr_b16", vr(wf[b] + 2 * beta, 2), v(vW), mods=f"offset:{o}"))
        return out
    k.I("s_barrier")
    stp.stamp(1)
    for f in rl(0) + rl(1): f()
    for ks in range(32):
        c, j = ks // 4, ks % 4
        b = ks % NB
        k.wait_lg(("f", ks))
        k.I("v_mfma_f32_32x32x16_bf16", vr(acc, 16), vr(wf[b], 4), vr(of[b], 4), 0 if ks == 0 else vr(acc, 16))
        if j == 1 and c < 7: k.I("s_barrier")
        if ks + 2 < 32 and not (j == 1 and False):
            pass
        nxt = ks + 2
        if nxt < 32:
            for f in rl(nxt): f()
    EOF_MARK = None
    stp.stamp(2)
    k.wait_vm("x")
    tmp = [k.valloc(2) for _ in range(4)]
    for q in range(4):
        for d in range(2):
            t = tmp[(2 * q + d) % 4]
            k.I("v_lshlrev_b32", v(t), 16, v(xr + 2 * q + d))
            k.I("v_and_b32", v(t + 1), "0xffff0000", v(xr + 2 * q + d))
            k.I("v_pk_add_f32", vr(acc + 4 * q + 2 * d, 2), vr(acc + 4 * q + 2 * d, 2), vr(t, 2))
    P = k.valloc(8, 4)
    for j in range(8): k.I("v_cvt_pk_bf16_f32", v(P + j), v(acc + 2 * j), v(acc + 2 * j + 1))
    v16 = k.valloc()
    k.I("v_lshlrev_b32", v(v16), 4, v(lane))
    k.I("s_mul_i32", s(soff), s(sst), 28 * 1024)
    k.I("s_lshl_b32", s(st0), s(sntile), 11)
    k.I("s_add_u32", s(soff), s(soff), s(st0))
    k.I("s_add_u32", s(soff), s(soff), hex(H_OFF))
    k.I("buffer_store_dwordx4", vr(P, 4), v(v16), sr(sWS, 4), s(soff), mods="offen")
    k.I("buffer_store_dwordx4", vr(P + 4, 4), v(v16), sr(sWS, 4), s(soff), mods="offen offset:1024")
    accs = k.valloc(2); accq = k.valloc(2)
    stats_from_packed(k, P, 8, accs, accq, tmp)
    k.I("v_mov_b32", v(accs + 1), v(accq))
    vh = k.valloc()
    k.I("v_mul_u32_u24", v(vh), 112, v(l31))
    k.I("s_mul_i32", s(soff), s(sst), 32 * 112)
    k.I("s_lshl_b32", s(st0), s(sntile), 3)
    k.I("s_add_u32", s(soff), s(soff), s(st0))
    k.I("s_add_u32", s(soff), s(soff), hex(HS_OFF))
    k.I("s_mov_b32", "exec_hi", 0)
    k.I("buffer_store_dwordx2", vr(accs, 2), v(vh), sr(sWS, 4), s(soff), mods="offen")
    stp.stamp(3)
    k.I("s_endpgm")
    k.L(aux)
    k.vnext = vsave; k.vmq = []; k.lgq = []
    sa = k.salloc(); sWin = k.salloc(4)
    k.I("s_sub_u32", s(sa), s(sidx), 28)
    k.I("s_lshl_b32", s(sa), s(sa), 3)
    k.I("s_add_u32", s(sa), s(sa), s(sj))
    k.I("s_waitcnt", "lgkmcnt(0)")
    srd(k, sWS, pWS, WS_SIZE)
    ff = k.valloc(4)
    for i in range(4): k.I("v_mov_b32", v(ff + i), -1)
    k.I("v_lshlrev_b32", v(t1), 4, "v0")
    k.I("v_mov_b32", v(t2), "0x7fffff00")
    k.I("v_cmp_gt_u32", "vcc", 448, "v0")
    k.I("v_cndmask_b32", v(t1), v(t2), v(t1), "vcc")
    k.I("s_mul_i32", s(st0), s(sa), 7168)
    k.I("s_add_u32", s(st0), s(st0), hex(EX_OFF))
    k.I("buffer_store_dwordx4", vr(ff, 4), v(t1), sr(sWS, 4), s(st0), mods="offen")
    zf = k.valloc(4)
    for i in range(4): k.I("v_mov_b32", v(zf + i), 0)
    k.I("v_lshlrev_b32", v(t1), 4, "v0")
    k.I("v_mov_b32", v(t2), "0x7fffff00")
    k.I("v_cmp_gt_u32", "vcc", 32, "v0")
    k.I("v_cndmask_b32", v(t1), v(t2), v(t1), "vcc")
    k.I("s_lshl_b32", s(st0), s(sa), 9)
    k.I("s_add_u32", s(st0), s(st0), hex(FL_OFF))
    k.I("buffer_store_dwordx4", vr(zf, 4), v(t1), sr(sWS, 4), s(st0), mods="offen")
    srd(k, sWin, pWin, 448 * 3584)
    def win_prefetch():
        if os.environ.get("PFWIN", "k2") != "k3": return
        vTw = k.valloc(); vdw = k.valloc(7)
        k.I("s_sub_u32", s(st0), s(sidx), 28)
        k.I("s_lshl_b32", s(st0), s(st0), 9)
        k.I("v_add_u32", v(vTw), s(st0), "v0")
        k.I("v_lshlrev_b32", v(vTw), 7, v(vTw))
        for i in range(7):
            k.I("s_mov_b32", s(st0), hex(i * 2048 * 128))
            k.I("buffer_load_dword", v(vdw + i), v(vTw), sr(sWin, 4), s(st0), mods="offen")
    nocs = k.newlabel("nocs")
    k.I("s_cmp_ge_u32", s(sa), 28)
    k.I("s_cbranch_scc1", nocs)
    vg = k.valloc()
    k.I("v_lshrrev_b32", v(t0), 3, v(lane))
    k.I("v_mul_u32_u24", v(t0), 3584, v(t0))
    k.I("v_bfe_u32", v(t1), v(lane), 4, 1)
    k.I("v_lshlrev_b32", v(t1), 2, v(t1))
    k.I("v_and_b32", v(t2), 7, v(lane))
    k.I("v_xor_b32", v(t1), v(t1), v(t2))
    k.I("v_lshl_add_u32", v(vg), v(t1), 4, v(t0))
    sb = k.salloc(); sm = k.salloc()
    k.I("s_mul_i32", s(sb), s(swave), 56 * 3584)
    k.I("s_lshl_b32", s(st0), s(sa), 7)
    k.I("s_add_u32", s(sb), s(sb), s(st0))
    k.I("s_mul_i32", s(sm), s(swave), 56 * 128)
    for i in range(7):
        k.I("s_add_u32", s(soff), s(sb), hex(i * 8 * 3584))
        k.I("s_add_u32", "m0", s(sm), hex(i * 1024))
        k.I("buffer_load_dwordx4", v(vg), sr(sWin, 4), s(soff), mods="offen lds")
    win_prefetch()
    z = k.valloc(); TB = 57344
    k.I("v_mov_b32", v(z), 0)
    k.I("v_lshlrev_b32", v(t0), 2, v(lane))
    k.I("v_add_u32", v(t0), TB, v(t0))
    k.I("ds_write_b32", v(t0), v(z))
    gg = k.valloc(); vB = k.valloc(); ones = k.valloc(4)
    k.I("v_lshrrev_b32", v(gg), 4, v(lane))
    k.I("v_bfe_u32", v(t0), v(lane), 2, 2)
    k.I("v_lshl_add_u32", v(t0), v(gg), 3, v(t0))
    k.I("v_lshlrev_b32", v(vB), 7, v(t0))
    k.I("v_bfe_u32", v(t0), v(lane), 1, 1)
    k.I("s_lshl_b32", s(st0), s(sw3), 1)
    k.I("v_add_u32", v(t0), s(st0), v(t0))
    k.I("v_bfe_u32", v(t1), v(lane), 3, 1)
    k.I("v_lshlrev_b32", v(t1), 2, v(t1))
    k.I("v_xor_b32", v(t0), v(t0), v(t1))
    k.I("v_lshl_add_u32", v(vB), v(t0), 4, v(vB))
    k.I("v_and_b32", v(t0), 1, v(lane))
    k.I("v_lshl_add_u32", v(vB), v(t0), 3, v(vB))
    k.I("s_lshr_b32", s(st0), s(swave), 2)
    k.I("s_mul_i32", s(st0), s(st0), 224 * 128)
    k.I("v_add_u32", v(vB), s(st0), v(vB))
    for i in range(4): k.I("v_mov_b32", v(ones + i), "0x3f803f80")
    k.I("s_waitcnt", "vmcnt(7) lgkmcnt(0)" if os.environ.get("PFWIN", "k2") == "k3" else "vmcnt(0) lgkmcnt(0)")
    k.I("s_barrier")
    bf = [k.valloc(4) for _ in range(7)]
    for kk in range(7):
        for beta in range(2):
            k.I("ds_read_b64_tr_b16", vr(bf[kk] + 2 * beta, 2), v(vB), mods=f"offset:{(32 * kk + 4 * beta) * 128}")
    ca = k.valloc(4)
    k.I("s_waitcnt", "lgkmcnt(0)")
    for kk in range(7):
        k.I("v_mfma_f32_16x16x32_bf16", vr(ca, 4), vr(ones, 4), vr(bf[kk], 4), 0 if kk == 0 else vr(ca, 4))
    k.I("v_and_b32", v(t0), 15, v(lane))
    k.I("s_lshl_b32", s(st0), s(sw3), 6)
    k.I("s_add_u32", s(st0), s(st0), TB)
    k.I("v_lshlrev_b32", v(t0), 2, v(t0))
    k.I("v_add_u32", v(t0), s(st0), v(t0))
    k.I("s_mov_b32", "exec_lo", "0xffff")
    k.I("s_mov_b32", "exec_hi", 0)
    k.I("ds_add_f32", v(t0), v(ca))
    k.I("s_mov_b64", "exec", -1)
    k.I("s_waitcnt", "lgkmcnt(0)")
    k.I("s_barrier")
    k.I("s_cmp_lg_u32", s(swave), 0)
    k.I("s_cbranch_scc1", R["done"])
    k.I("v_lshlrev_b32", v(t0), 2, v(lane))
    k.I("v_add_u32", v(t1), TB, v(t0))
    k.I("ds_read_b32", v(z), v(t1))
    k.I("s_lshl_b32", s(st0), s(sa), 8)
    k.I("s_add_u32", s(st0), s(st0), hex(CW_OFF))
    k.I("s_waitcnt", "lgkmcnt(0)")
    k.I("buffer_store_dword", v(z), v(t0), sr(sWS, 4), s(st0), mods="offen")
    k.I("s_endpgm")
    k.L(nocs)
    win_prefetch()
    k.L(R["done"])
    k.I("s_endpgm")
    k.lds = lds; k.threads = 512; k.grid = 256
    return k


GELU_C0 = -2.0 * math.sqrt(2.0 / math.pi) * math.log2(math.e)
GELU_C1 = GELU_C0 * 0.044715

def gen_k4(Stamper):
    k = Kernel("k4_win_kernel")
    NS = 4; SLOT = 32768; TRB = NS * SLOT
    STB = TRB
    lds = TRB + 4096
    R = common_start(k, 256)
    swave, st0, st1, soff, lane, t0, t1, t2 = (R[x] for x in ("swave", "st0", "st1", "soff", "lane", "t0", "t1", "t2"))
    pWin = k.salloc(2); pWS = k.salloc(2)
    k.I("s_load_dwordx2", sr(pWin, 2), "s[0:1]", 32)
    k.I("s_load_dwordx2", sr(pWS, 2), "s[0:1]", 80)
    sWS = k.salloc(4); sWin = k.salloc(4)
    sj = k.salloc(); sidx = k.salloc(); srb = k.salloc(); sct = k.salloc(); sw3 = k.salloc()
    k.I("s_and_b32", s(sj), "s2", 7)
    k.I("s_lshr_b32", s(sidx), "s2", 3)
    k.I("s_and_b32", s(sw3), s(swave), 3)
    pfrole = k.newlabel("pfrole")
    k.I("s_cmp_ge_u32", s(sidx), 28)
    k.I("s_cbranch_scc1", pfrole)
    k.I("s_cmp_ge_u32", s(sidx), 14)
    k.I("s_cselect_b32", s(st0), 1, 0)
    k.I("s_mul_i32", s(st1), s(st0), 14)
    k.I("s_sub_u32", s(sct), s(sidx), s(st1))
    k.I("s_lshl_b32", s(srb), s(sj), 1)
    k.I("s_add_u32", s(srb), s(srb), s(st0))
    stp = Stamper(k, 3, sWS, swave)
    k.I("s_waitcnt", "lgkmcnt(0)")
    srd(k, sWS, pWS, WS_SIZE)
    comp = k.newlabel("compute")
    k.I("s_cmp_lt_u32", s(swave), 4)
    k.I("s_cbranch_scc1", comp)
    vsave = k.vnext
    srd(k, sWin, pWin, 448 * 3584)
    v16 = k.valloc(); vWo = k.valloc()
    k.I("v_lshlrev_b32", v(v16), 4, v(lane))
    k.I("v_lshrrev_b32", v(t0), 4, v(lane))
    k.I("v_lshlrev_b32", v(t1), 2, v(t0))
    k.I("v_and_b32", v(t2), 15, v(lane))
    k.I("v_xor_b32", v(t1), v(t1), v(t2))
    k.I("v_mul_u32_u24", v(vWo), 3584, v(t0))
    k.I("v_and_b32", v(t2), 7, v(t1))
    k.I("v_lshl_add_u32", v(vWo), v(t2), 4, v(vWo))
    k.I("v_add_u32", v(t2), 1792, v(vWo))
    k.I("v_cmp_gt_u32", "vcc", 8, v(t1))
    k.I("v_cndmask_b32", v(vWo), v(vWo), v(t2), "vcc")
    sHb = k.salloc(); sWb = k.salloc(); smH = k.salloc(); smW = k.salloc()
    k.I("s_lshl_b32", s(st0), s(srb), 2)
    k.I("s_add_u32", s(st0), s(st0), s(sw3))
    k.I("s_mul_i32", s(sHb), s(st0), 28 * 1024)
    k.I("s_add_u32", s(sHb), s(sHb), hex(H_OFF))
    k.I("s_lshl_b32", s(smH), s(sw3), 12)
    k.I("s_mul_i32", s(sWb), s(sw3), 16 * 3584)
    k.I("s_lshl_b32", s(st1), s(sct), 7)
    k.I("s_add_u32", s(sWb), s(sWb), s(st1))
    k.I("s_add_u32", s(smW), s(smH), 16384)
    def issue(c):
        sl = (c % NS) * SLOT
        for i in range(4):
            k.I("s_add_u32", s(soff), s(sHb), hex((4 * c + i) * 1024))
            k.I("s_add_u32", "m0", s(smH), hex(sl + i * 1024))
            k.vm(("S", c), "buffer_load_dwordx4", v(v16), sr(sWS, 4), s(soff), mods="offen lds")
        for i in range(4):
            k.I("s_add_u32", s(soff), s(sWb), hex((64 * c + 4 * i) * 3584))
            k.I("s_add_u32", "m0", s(smW), hex(sl + i * 1024))
            k.vm(("S", c), "buffer_load_dwordx4", v(vWo), sr(sWin, 4), s(soff), mods="offen lds")
    issue(0); issue(1)
    for c in range(7):
        k.wait_vm(("S", c))
        k.I("s_barrier")
        if c == 0: issue(2); issue(3)
        elif c + 2 < 7 and c >= 2: issue(c + 2)
    k.I("s_barrier")
    k.I("s_endpgm")
    k.L(comp)
    k.vnext = vsave; k.vmq = []; k.lgq = []
    l31 = k.valloc(); hh = k.valloc()
    k.I("v_and_b32", v(l31), 31, v(lane))
    k.I("v_lshrrev_b32", v(hh), 5, v(lane))
    srh = k.salloc(); sch = k.salloc(); sst = k.salloc()
    k.I("s_and_b32", s(srh), s(swave), 1)
    k.I("s_lshr_b32", s(sch), s(swave), 1)
    k.I("s_lshl_b32", s(sst), s(srb), 2)
    k.I("s_lshl_b32", s(st0), s(srh), 1)
    k.I("s_add_u32", s(sst), s(sst), s(st0))
    hs = [k.valloc(16, 4) for _ in range(2)]
    vh = k.valloc()
    k.I("v_mul_u32_u24", v(vh), 112, v(l31))
    k.I("v_lshl_add_u32", v(vh), v(hh), 6, v(vh))
    for t in range(2):
        k.I("s_add_u32", s(st0), s(sst), t)
        k.I("s_mul_i32", s(soff), s(st0), 32 * 112)
        k.I("s_add_u32", s(soff), s(soff), hex(HS_OFF))
        for i in range(4):
            k.vm("hs", "buffer_load_dwordx4", vr(hs[t] + 4 * i, 4), v(vh), sr(sWS, 4), s(soff), mods=f"offen offset:{16 * i}")
    cw = [k.valloc(16, 4) for _ in range(2)]
    vc = k.valloc()
    k.I("v_lshlrev_b32", v(vc), 4, v(hh))
    k.I("s_lshl_b32", s(st0), s(sct), 8)
    k.I("s_lshl_b32", s(st1), s(sch), 7)
    k.I("s_add_u32", s(st0), s(st0), s(st1))
    for z in range(2):
        k.I("s_add_u32", s(soff), s(st0), hex(CW_OFF + (896 * 4 if z == 0 else 0)))
        for q in range(4):
            k.vm("cw", "buffer_load_dwordx4", vr(cw[z] + 4 * q, 4), v(vc), sr(sWS, 4), s(soff), mods=f"offen offset:{32 * q}")
    if os.environ.get("PF2", "0") == "1":
        pp = k.salloc(2); sP = k.salloc(4); vT = k.valloc(); vd = k.valloc(2)
        k.I("s_load_dwordx2", sr(pp, 2), "s[0:1]", 40)
        k.I("s_lshl_b32", s(st0), s(sidx), 8)
        k.I("v_add_u32", v(vT), s(st0), "v0")
        k.I("s_waitcnt", "lgkmcnt(0)")
        srd(k, sP, pp, 2048 * 4096)
        k.I("s_lshr_b32", s(st0), s(sj), 1)
        k.I("s_lshl_b32", s(st0), s(st0), 21)
        k.I("s_and_b32", s(st1), s(sj), 1)
        k.I("s_lshl_b32", s(st1), s(st1), 11)
        k.I("s_add_u32", s(st0), s(st0), s(st1))
        for i in range(2):
            k.I("v_add_u32", v(t0), 7168 * i, v(vT))
            k.I("v_lshrrev_b32", v(t1), 4, v(t0))
            k.I("v_lshlrev_b32", v(t1), 12, v(t1))
            k.I("v_and_b32", v(t2), 15, v(t0))
            k.I("v_lshl_add_u32", v(t1), v(t2), 7, v(t1))
            if i == 1:
                k.I("v_mov_b32", v(t2), "0x7fffff00")
                k.I("v_cmp_gt_u32", "vcc", 8192, v(t0))
                k.I("v_cndmask_b32", v(t1), v(t2), v(t1), "vcc")
            k.vm("pf", "buffer_load_dword", v(vd + i), v(t1), sr(sP, 4), s(st0), mods="offen")
    code_prefetch(k, "k5_sp_kernel", sidx, st0)
    stp.stamp(0)
    aH = k.valloc(); vW = [k.valloc(), k.valloc()]
    k.I("v_lshlrev_b32", v(aH), 4, v(lane))
    k.I("s_lshl_b32", s(st0), s(srh), 13)
    k.I("v_add_u32", v(aH), s(st0), v(aH))
    k.I("v_bfe_u32", v(t0), v(lane), 2, 2)
    k.I("v_lshl_add_u32", v(t1), v(hh), 2, v(t0))
    k.I("v_lshlrev_b32", v(t1), 8, v(t1))
    k.I("v_add_u32", v(t1), 16384, v(t1))
    k.I("v_bfe_u32", v(t2), v(lane), 4, 1)
    k.I("v_lshlrev_b32", v(t2), 1, v(t2))
    k.I("v_bfe_u32", v(vW[0]), v(lane), 1, 1)
    k.I("v_add_u32", v(t2), v(t2), v(vW[0]))
    k.I("s_lshl_b32", s(st0), s(sch), 2)
    k.I("v_add_u32", v(t2), s(st0), v(t2))
    k.I("v_lshlrev_b32", v(t0), 2, v(t0))
    k.I("v_xor_b32", v(vW[0]), v(t2), v(t0))
    k.I("v_add_u32", v(t2), 8, v(t2))
    k.I("v_xor_b32", v(vW[1]), v(t2), v(t0))
    k.I("v_and_b32", v(t2), 1, v(lane))
    for z in range(2):
        k.I("v_lshl_add_u32", v(vW[z]), v(vW[z]), 4, v(t1))
        k.I("v_lshl_add_u32", v(vW[z]), v(t2), 3, v(vW[z]))
    aH2 = k.valloc(); vW2 = [k.valloc(), k.valloc()]
    k.I("v_add_u32", v(aH2), 65536, v(aH))
    for z in range(2): k.I("v_add_u32", v(vW2[z]), 65536, v(vW[z]))
    acc = [[k.valloc(16, 4) for _ in range(2)] for _ in range(2)]
    vmark = k.vnext
    NB = 3
    hf = [[k.valloc(4) for _ in range(2)] for _ in range(NB)]
    wf = [[k.valloc(4) for _ in range(2)] for _ in range(NB)]
    def rl(ks):
        c, j = ks // 4, ks % 4
        b = ks % NB
        sl = (c % NS) * SLOT
        hi = sl >= 65536
        so = sl - (65536 if hi else 0)
        out = []
        for t in range(2):
            out.append(lambda t=t: k.lg(("f", ks), "ds_read_b128", vr(hf[b][t], 4), v(aH2 if hi else aH), mods=f"offset:{so + t * 4096 + j * 1024}"))
        for z in range(2):
            for beta in range(2):
                o = so + (16 * j + 8 * beta) * 256
                out.append(lambda o=o, z=z, beta=beta: k.lg(("f", ks), "ds_read_b64_tr_b16", vr(wf[b][z] + 2 * beta, 2), v((vW2 if hi else vW)[z]), mods=f"offset:{o}"))
        return out
    k.I("s_barrier")
    stp.stamp(1)
    for f in rl(0) + rl(1): f()
    for ks in range(28):
        c, j = ks // 4, ks % 4
        b = ks % NB
        k.wait_lg(("f", ks))
        mf = []
        for z in range(2):
            for t in range(2):
                mf.append(lambda z=z, t=t: k.I("v_mfma_f32_32x32x16_bf16", vr(acc[z][t], 16), vr(wf[b][z], 4), vr(hf[b][t], 4), 0 if ks == 0 else vr(acc[z][t], 16)))
        if j == 2 and c < 6:
            pass
        fl = rl(ks + 2) if ks + 2 < 28 else []
        if j == 2 and ks + 2 < 28:
            k.I("s_barrier")
        interleave(k, mf, fl)
    stp.stamp(2)
    k.vnext = vmark
    k.wait_vm(["hs", "cw"])
    rr = [k.valloc(2) for _ in range(2)]; nm = [k.valloc(2) for _ in range(2)]
    c0r = [k.valloc(2) for _ in range(2)]; c1r = [k.valloc(2) for _ in range(2)]
    k.I("v_cmp_eq_u32", "vcc", 0, v(hh))
    for t in range(2):
        H = hs[t]
        for i in range(12, 16): k.I("v_cndmask_b32", v(H + i), 0, v(H + i), "vcc")
        for i in range(4): k.I("v_pk_add_f32", vr(H + 2 * i, 2), vr(H + 2 * i, 2), vr(H + 8 + 2 * i, 2))
        for i in range(2): k.I("v_pk_add_f32", vr(H + 2 * i, 2), vr(H + 2 * i, 2), vr(H + 4 + 2 * i, 2))
        k.I("v_pk_add_f32", vr(H, 2), vr(H, 2), vr(H + 2, 2))
        for e in range(2):
            k.I("v_mov_b32", v(H + 2), v(H + e))
            k.I("v_permlane32_swap_b32", v(H + e), v(H + 2))
            k.I("v_add_f32", v(H + e), v(H + e), v(H + 2))
        k.I("v_mul_f32", v(nm[t]), hex(f32(-1.0 / 448)), v(H))
        k.I("v_mul_f32", v(H + 1), hex(f32(1.0 / 448)), v(H + 1))
        k.I("v_fma_f32", v(H + 1), f"-{v(nm[t])}", v(nm[t]), v(H + 1))
        k.I("v_max_f32", v(H + 1), 0, v(H + 1))
        k.I("v_add_f32", v(H + 1), hex(f32(1e-5)), v(H + 1))
        k.I("v_rsq_f32", v(rr[t]), v(H + 1))
        k.I("v_mul_f32", v(c0r[t]), hex(f32(GELU_C0)), v(rr[t]))
        k.I("v_mul_f32", v(c1r[t]), v(rr[t]), v(rr[t]))
        k.I("v_mul_f32", v(c1r[t]), v(c1r[t]), v(rr[t]))
        k.I("v_mul_f32", v(c1r[t]), hex(f32(GELU_C1)), v(c1r[t]))
    norh = k.newlabel("norh")
    k.I("s_or_b32", s(st0), s(sct), s(sch))
    k.I("s_cmp_lg_u32", s(st0), 0)
    k.I("s_cbranch_scc1", norh)
    k.I("v_lshlrev_b32", v(t0), 2, v(l31))
    for t in range(2):
        k.I("s_add_u32", s(st0), s(sst), t)
        k.I("s_lshl_b32", s(st0), s(st0), 7)
        k.I("s_add_u32", s(st0), s(st0), hex(RH_OFF))
        k.I("buffer_store_dword", v(rr[t]), v(t0), sr(sWS, 4), s(st0), mods="offen")
    k.L(norh)
    tp = [k.valloc(2) for _ in range(4)]
    def gelu_tile(A, z, t):
        for j in range(8):
            k.I("v_pk_fma_f32", vr(A + 2 * j, 2), vr(cw[z] + 2 * j, 2), vr(nm[t], 2), vr(A + 2 * j, 2), mods="op_sel_hi:[1,0,1]")
        for j0 in range(0, 8, 4):
            for j in range(j0, j0 + 4):
                T = tp[j - j0]
                k.I("v_pk_mul_f32", vr(T, 2), vr(A + 2 * j, 2), vr(A + 2 * j, 2))
            for j in range(j0, j0 + 4):
                T = tp[j - j0]
                k.I("v_pk_fma_f32", vr(T, 2), vr(T, 2), vr(c1r[t], 2), vr(c0r[t], 2), mods="op_sel_hi:[1,0,0]")
            for j in range(j0, j0 + 4):
                T = tp[j - j0]
                k.I("v_pk_mul_f32", vr(T, 2), vr(T, 2), vr(A + 2 * j, 2))
            for j in range(j0, j0 + 4):
                T = tp[j - j0]
                k.I("v_exp_f32", v(T), v(T)); k.I("v_exp_f32", v(T + 1), v(T + 1))
            for j in range(j0, j0 + 4):
                T = tp[j - j0]
                k.I("v_pk_add_f32", vr(T, 2), vr(T, 2), "1.0", mods="op_sel_hi:[1,0]")
            for j in range(j0, j0 + 4):
                T = tp[j - j0]
                k.I("v_rcp_f32", v(T), v(T)); k.I("v_rcp_f32", v(T + 1), v(T + 1))
            for j in range(j0, j0 + 4):
                T = tp[j - j0]
                k.I("v_pk_mul_f32", vr(A + 2 * j, 2), vr(A + 2 * j, 2), vr(T, 2))
    accs = [k.valloc(2) for _ in range(2)]; accq = [k.valloc(2) for _ in range(2)]
    for t in range(2):
        A = acc[0][t]
        gelu_tile(A, 0, t)
        for j in range(8):
            k.I("v_pk_mul_f32", vr(A + 2 * j, 2), vr(A + 2 * j, 2), vr(rr[t], 2), mods="op_sel_hi:[1,0]")
        k.I("v_pk_add_f32", vr(accs[t], 2), vr(A, 2), vr(A + 2, 2))
        k.I("v_pk_mul_f32", vr(accq[t], 2), vr(A, 2), vr(A, 2))
        k.I("v_pk_fma_f32", vr(accq[t], 2), vr(A + 2, 2), vr(A + 2, 2), vr(accq[t], 2))
        for j in range(2, 8):
            k.I("v_pk_add_f32", vr(accs[t], 2), vr(accs[t], 2), vr(A + 2 * j, 2))
            k.I("v_pk_fma_f32", vr(accq[t], 2), vr(A + 2 * j, 2), vr(A + 2 * j, 2), vr(accq[t], 2))
        k.I("v_add_f32", v(accs[t]), v(accs[t]), v(accs[t] + 1))
        k.I("v_add_f32", v(accs[t] + 1), v(accq[t]), v(accq[t] + 1))
        for e in range(2):
            k.I("v_mov_b32", v(accq[t]), v(accs[t] + e))
            k.I("v_permlane32_swap_b32", v(accs[t] + e), v(accq[t]))
            k.I("v_add_f32", v(accs[t] + e), v(accs[t] + e), v(accq[t]))
    vs = k.valloc()
    k.I("v_lshlrev_b32", v(vs), 3, v(l31))
    k.I("s_lshl_b32", s(st0), s(srh), 9)
    k.I("s_add_u32", s(st0), s(st0), STB)
    k.I("v_add_u32", v(vs), s(st0), v(vs))
    k.I("s_lshl_b32", s(st0), s(sch), 10)
    k.I("v_add_u32", v(t0), s(st0), v(vs))
    for t in range(2):
        k.I("ds_write_b64", v(t0), vr(accs[t], 2), mods=f"offset:{t * 256}")
    k.I("s_waitcnt", "lgkmcnt(0)")
    k.I("s_barrier")
    pub = k.newlabel("nopub")
    k.I("s_cmp_lg_u32", s(sch), 0)
    k.I("s_cbranch_scc1", pub)
    oth = k.valloc(4)
    for t in range(2):
        k.I("ds_read_b64", vr(oth + 2 * t, 2), v(vs), mods=f"offset:{1024 + t * 256}")
    k.I("s_waitcnt", "lgkmcnt(0)")
    for t in range(2):
        k.I("v_pk_add_f32", vr(oth + 2 * t, 2), vr(oth + 2 * t, 2), vr(accs[t], 2))
        k.I("v_mov_b32", v(t1), "0x7fc00000")
        k.I("v_cmp_eq_u32", "vcc", -1, v(oth + 2 * t + 1))
        k.I("v_cndmask_b32", v(oth + 2 * t + 1), v(oth + 2 * t + 1), v(t1), "vcc")
    ve = k.valloc()
    k.I("v_mul_u32_u24", v(ve), 112, v(l31))
    k.I("s_mul_i32", s(soff), s(sst), 32 * 112)
    k.I("s_lshl_b32", s(st0), s(sct), 3)
    k.I("s_add_u32", s(soff), s(soff), s(st0))
    k.I("s_add_u32", s(soff), s(soff), hex(EX_OFF))
    k.I("s_mov_b32", "exec_hi", 0)
    for t in range(2):
        k.I("buffer_store_dwordx2", vr(oth + 2 * t, 2), v(ve), sr(sWS, 4), s(soff), mods=f"offen offset:{t * 32 * 112} sc0 sc1")
    k.I("s_mov_b64", "exec", -1)
    k.L(pub)
    stp.stamp(3)
    v16 = k.valloc()
    k.I("v_lshlrev_b32", v(v16), 4, v(lane))
    P = [k.valloc(8, 4) for _ in range(2)]
    sft = k.salloc()
    k.I("s_lshl_b32", s(sft), s(sct), 1)
    k.I("s_add_u32", s(sft), s(sft), s(sch))
    for t in range(2):
        A = acc[1][t]
        gelu_tile(A, 1, t)
        for j in range(8): k.I("v_cvt_pk_bf16_f32", v(P[t] + j), v(A + 2 * j), v(A + 2 * j + 1))
        k.I("s_add_u32", s(st0), s(sst), t)
        k.I("s_mul_i32", s(soff), s(st0), 56 * 1024)
        k.I("s_lshl_b32", s(st0), s(sft), 11)
        k.I("s_add_u32", s(soff), s(soff), s(st0))
        k.I("s_add_u32", s(soff), s(soff), hex(Z1_OFF))
        k.I("buffer_store_dwordx4", vr(P[t], 4), v(v16), sr(sWS, 4), s(soff), mods="offen")
        k.I("buffer_store_dwordx4", vr(P[t] + 4, 4), v(v16), sr(sWS, 4), s(soff), mods="offen offset:1024")
    stp.stamp(4)
    ex = hs
    k.I("v_mul_u32_u24", v(vh), 112, v(l31))
    k.I("v_lshl_add_u32", v(vh), v(hh), 6, v(vh))
    k.I("s_mul_i32", s(soff), s(sst), 32 * 112)
    k.I("s_add_u32", s(soff), s(soff), hex(EX_OFF))
    scount = k.salloc(); sbad = k.salloc(2)
    k.I("s_mov_b32", s(scount), 0)
    poll = k.newlabel("poll"); pdone = k.newlabel("pdone")
    k.L(poll)
    for t in range(2):
        for i in range(4):
            k.I("buffer_load_dwordx4", vr(ex[t] + 4 * i, 4), v(vh), sr(sWS, 4), s(soff), mods=f"offen offset:{t * 32 * 112 + 16 * i} sc0 sc1")
    k.I("s_waitcnt", "vmcnt(0)")
    k.I("v_cmp_eq_u32", "vcc", 0, v(hh))
    for t in range(2):
        for i in range(12, 16): k.I("v_cndmask_b32", v(ex[t] + i), 0, v(ex[t] + i), "vcc")
    k.I("v_max_u32", v(t0), v(ex[0] + 1), v(ex[0] + 3))
    for t in range(2):
        for i in range(8):
            if t == 0 and i < 2: continue
            k.I("v_max_u32", v(t0), v(t0), v(ex[t] + 2 * i + 1))
    k.I("v_cmp_eq_u32", "vcc", -1, v(t0))
    k.I("s_add_u32", s(scount), s(scount), 1)
    k.I("s_cmp_eq_u64", "vcc", 0)
    k.I("s_cbranch_scc1", pdone)
    k.I("s_cmp_lt_u32", s(scount), 0x40000)
    k.I("s_cbranch_scc0", pdone)
    k.I("s_sleep", 1)
    k.I("s_branch", poll)
    k.L(pdone)
    sc_ = [k.valloc(2) for _ in range(2)]; zm = [k.valloc(2) for _ in range(2)]
    for t in range(2):
        H = ex[t]
        for i in range(4): k.I("v_pk_add_f32", vr(H + 2 * i, 2), vr(H + 2 * i, 2), vr(H + 8 + 2 * i, 2))
        for i in range(2): k.I("v_pk_add_f32", vr(H + 2 * i, 2), vr(H + 2 * i, 2), vr(H + 4 + 2 * i, 2))
        k.I("v_pk_add_f32", vr(H, 2), vr(H, 2), vr(H + 2, 2))
        for e in range(2):
            k.I("v_mov_b32", v(H + 2), v(H + e))
            k.I("v_permlane32_swap_b32", v(H + e), v(H + 2))
            k.I("v_add_f32", v(H + e), v(H + e), v(H + 2))
        k.I("v_mul_f32", v(zm[t]), hex(f32(-1.0 / 896)), v(H))
        k.I("v_mul_f32", v(H + 1), hex(f32(1.0 / 896)), v(H + 1))
        k.I("v_fma_f32", v(H + 1), f"-{v(zm[t])}", v(zm[t]), v(H + 1))
        k.I("v_max_f32", v(H + 1), 0, v(H + 1))
        k.I("v_add_f32", v(H + 1), hex(f32(1e-5)), v(H + 1))
        k.I("v_rsq_f32", v(sc_[t]), v(H + 1))
        k.I("v_mul_f32", v(zm[t]), v(zm[t]), v(sc_[t]))
    TW = 0
    vt = k.valloc(); vtr = k.valloc()
    k.I("v_lshlrev_b32", v(vt), 6, v(l31))
    k.I("v_lshl_add_u32", v(vt), v(hh), 3, v(vt))
    k.I("s_lshl_b32", s(st0), s(swave), 12)
    k.I("v_add_u32", v(vt), s(st0), v(vt))
    for t in range(2):
        A = acc[0][t]
        for j in range(8):
            k.I("v_pk_fma_f32", vr(A + 2 * j, 2), vr(A + 2 * j, 2), vr(sc_[t], 2), vr(zm[t], 2), mods="op_sel_hi:[1,0,0]")
        for j in range(8): k.I("v_cvt_pk_bf16_f32", v(P[t] + j), v(A + 2 * j), v(A + 2 * j + 1))
        for q in range(4):
            k.I("ds_write_b64", v(vt), vr(P[t] + 2 * q, 2), mods=f"offset:{t * 2048 + 16 * q}")
    k.I("v_bfe_u32", v(t0), v(lane), 2, 2)
    k.I("v_lshl_add_u32", v(t0), v(hh), 3, v(t0))
    k.I("v_lshlrev_b32", v(vtr), 6, v(t0))
    k.I("v_bfe_u32", v(t0), v(lane), 4, 1)
    k.I("v_lshl_add_u32", v(vtr), v(t0), 5, v(vtr))
    k.I("v_and_b32", v(t0), 3, v(lane))
    k.I("v_lshl_add_u32", v(vtr), v(t0), 3, v(vtr))
    k.I("s_lshl_b32", s(st0), s(swave), 12)
    k.I("v_add_u32", v(vtr), s(st0), v(vtr))
    k.I("s_waitcnt", "lgkmcnt(0)")
    Z = cw[0]
    for ks in range(4):
        for beta in range(2):
            k.I("ds_read_b64_tr_b16", vr(Z + 4 * ks + 2 * beta, 2), v(vtr), mods=f"offset:{(16 * ks + 4 * beta) * 64}")
    k.I("s_mul_i32", s(soff), s(sft), ZS)
    k.I("s_lshr_b32", s(st0), s(sst), 5)
    k.I("s_mul_i32", s(st0), s(st0), ZK)
    k.I("s_add_u32", s(soff), s(soff), s(st0))
    k.I("s_and_b32", s(st0), s(sst), 31)
    k.I("s_lshl_b32", s(st0), s(st0), 11)
    k.I("s_add_u32", s(soff), s(soff), s(st0))
    k.I("s_add_u32", s(soff), s(soff), hex(Z2_OFF))
    for ks in range(4):
        k.I("s_waitcnt", f"lgkmcnt({6 - 2 * ks})")
        k.I("buffer_store_dwordx4", vr(Z + 4 * ks, 4), v(v16), sr(sWS, 4), s(soff), mods=f"offen offset:{ks * 1024}")
    stp.stamp(5)
    k.I("s_endpgm")
    k.L(pfrole)
    pp = k.salloc(2); sP = k.salloc(4); vT = k.valloc(); vd = k.valloc(4)
    k.I("s_load_dwordx2", sr(pp, 2), "s[0:1]", 40)
    k.I("s_sub_u32", s(st0), s(sidx), 28)
    k.I("s_lshl_b32", s(st0), s(st0), 9)
    k.I("v_add_u32", v(vT), s(st0), "v0")
    k.I("s_lshr_b32", s(st0), s(sj), 1)
    k.I("s_lshl_b32", s(st0), s(st0), 21)
    k.I("s_and_b32", s(st1), s(sj), 1)
    k.I("s_lshl_b32", s(st1), s(st1), 11)
    k.I("s_add_u32", s(st0), s(st0), s(st1))
    k.I("s_waitcnt", "lgkmcnt(0)")
    srd(k, sP, pp, 2048 * 4096)
    for i in range(4):
        k.I("v_add_u32", v(t0), 2048 * i, v(vT))
        k.I("v_lshrrev_b32", v(t1), 4, v(t0))
        k.I("v_lshlrev_b32", v(t1), 12, v(t1))
        k.I("v_and_b32", v(t2), 15, v(t0))
        k.I("v_lshl_add_u32", v(t1), v(t2), 7, v(t1))
        k.I("buffer_load_dword", v(vd + i), v(t1), sr(sP, 4), s(st0), mods="offen")
    k.L(R["done"])
    k.I("s_endpgm")
    k.lds = lds; k.threads = 512; k.grid = 256
    return k


def gen_k5(Stamper):
    k = Kernel("k5_sp_kernel")
    NS = 4; SLOT = 32768
    Z1REG = NS * SLOT
    lds = Z1REG + 32768
    R = common_start(k, 256)
    swave, st0, st1, soff, lane, t0, t1, t2 = (R[x] for x in ("swave", "st0", "st1", "soff", "lane", "t0", "t1", "t2"))
    pSp = k.salloc(2); pB = k.salloc(2); pWS = k.salloc(2)
    k.I("s_load_dwordx2", sr(pSp, 2), "s[0:1]", 40)
    k.I("s_load_dwordx2", sr(pB, 2), "s[0:1]", 48)
    k.I("s_load_dwordx2", sr(pWS, 2), "s[0:1]", 80)
    sWS = k.salloc(4); sSp = k.salloc(4); sB = k.salloc(4)
    sj = k.salloc(); sidx = k.salloc(); stt = k.salloc(); sft = k.salloc(); skap = k.salloc(); sw3 = k.salloc()
    if os.environ.get("K5MAP") == "linear":
        k.I("s_mul_i32", s(sj), "s2", 2341)
        k.I("s_lshr_b32", s(sj), s(sj), 16)
        k.I("s_mul_i32", s(sidx), s(sj), 28)
        k.I("s_sub_u32", s(sidx), "s2", s(sidx))
    else:
        k.I("s_and_b32", s(sj), "s2", 7)
        k.I("s_lshr_b32", s(sidx), "s2", 3)
    pfrole = k.newlabel("pfrole")
    k.I("s_cmp_ge_u32", s(sidx), 28)
    k.I("s_cbranch_scc1", pfrole)
    k.I("s_and_b32", s(sw3), s(swave), 3)
    k.I("s_and_b32", s(skap), s(sj), 1)
    k.I("s_mul_i32", s(st0), s(sidx), 37)
    k.I("s_lshr_b32", s(st0), s(st0), 8)
    k.I("s_mul_i32", s(st1), s(st0), 7)
    k.I("s_sub_u32", s(sft), s(sidx), s(st1))
    k.I("s_lshr_b32", s(stt), s(sj), 1)
    k.I("s_lshl_b32", s(stt), s(stt), 2)
    k.I("s_add_u32", s(stt), s(stt), s(st0))
    stp = Stamper(k, 4, sWS, swave)
    if os.environ.get("TICKWAVE", "0") != "0": stp.tick(0)
    k.I("s_waitcnt", "lgkmcnt(0)")
    srd(k, sWS, pWS, WS_SIZE)
    comp = k.newlabel("compute")
    k.I("s_cmp_lt_u32", s(swave), 4)
    k.I("s_cbranch_scc1", comp)
    vsave = k.vnext
    srd(k, sSp, pSp, 2048 * 4096)
    v16 = k.valloc(); vWo = k.valloc(2)
    k.I("v_lshlrev_b32", v(v16), 4, v(lane))
    k.I("v_lshrrev_b32", v(t0), 3, v(lane))
    k.I("v_lshlrev_b32", v(t0), 12, v(t0))
    k.I("v_lshrrev_b32", v(t1), 4, v(lane))
    k.I("v_and_b32", v(t2), 7, v(lane))
    k.I("v_xor_b32", v(t1), v(t1), v(t2))
    k.I("v_lshl_add_u32", v(vWo), v(t1), 4, v(t0))
    k.I("v_xor_b32", v(t1), 4, v(t1))
    k.I("v_lshl_add_u32", v(vWo + 1), v(t1), 4, v(t0))
    sZb = k.salloc(); sWb = k.salloc(); smZ = k.salloc(); smW = k.salloc()
    k.I("s_lshl_b32", s(st0), s(sft), 2)
    k.I("s_add_u32", s(st0), s(st0), s(sw3))
    k.I("s_mul_i32", s(sZb), s(st0), ZS)
    k.I("s_mul_i32", s(st1), s(skap), ZK)
    k.I("s_add_u32", s(sZb), s(sZb), s(st1))
    k.I("s_add_u32", s(sZb), s(sZb), hex(Z2_OFF))
    k.I("s_lshl_b32", s(smZ), s(sw3), 12)
    k.I("s_lshl_b32", s(st0), s(stt), 7)
    k.I("s_lshl_b32", s(st1), s(sw3), 5)
    k.I("s_add_u32", s(st0), s(st0), s(st1))
    k.I("s_lshl_b32", s(sWb), s(st0), 12)
    k.I("s_lshl_b32", s(st1), s(skap), 11)
    k.I("s_add_u32", s(sWb), s(sWb), s(st1))
    k.I("s_add_u32", s(smW), s(smZ), 16384)
    def issue(c):
        sl = (c % NS) * SLOT
        def zpart():
            for i in range(4):
                k.I("s_add_u32", s(soff), s(sZb), hex((4 * c + i) * 1024))
                k.I("s_add_u32", "m0", s(smZ), hex(sl + i * 1024))
                k.vm(("S", c), "buffer_load_dwordx4", v(v16), sr(sWS, 4), s(soff), mods="offen lds")
                if os.environ.get("DIAG5") and c == 0 and i in (0, 3):
                    k.I("s_waitcnt", "vmcnt(0)"); stp.tick(10 + (i > 0))
        def wpart():
            for i in range(4):
                k.I("s_add_u32", s(soff), s(sWb), hex(i * 8 * 4096 + c * 128))
                k.I("s_add_u32", "m0", s(smW), hex(sl + i * 1024))
                k.vm(("S", c), "buffer_load_dwordx4", v(vWo + (i & 1)), sr(sSp, 4), s(soff), mods="offen lds")
                if os.environ.get("DIAG5") and c == 0 and i in (0, 3):
                    k.I("s_waitcnt", "vmcnt(0)"); stp.tick(12 + (i > 0))
        if os.environ.get("DIAG5") == "2": wpart(); zpart()
        else: zpart(); wpart()
    NST = 16
    sZ1 = k.salloc()
    k.I("s_lshl_b32", s(st0), s(stt), 2)
    k.I("s_add_u32", s(st0), s(st0), s(sw3))
    k.I("s_mul_i32", s(sZ1), s(st0), 56 * 1024)
    k.I("s_lshl_b32", s(st1), s(sft), 13)
    k.I("s_add_u32", s(sZ1), s(sZ1), s(st1))
    k.I("s_add_u32", s(sZ1), s(sZ1), hex(Z1_OFF))
    smZ1 = k.salloc()
    k.I("s_lshl_b32", s(smZ1), s(sw3), 13)
    def issue_z1(i, tag):
        k.I("s_add_u32", s(soff), s(sZ1), hex(i * 1024))
        k.I("s_add_u32", "m0", s(smZ1), hex(Z1REG + i * 1024))
        k.vm(("S", tag), "buffer_load_dwordx4", v(v16), sr(sWS, 4), s(soff), mods="offen lds")
    LT = os.environ.get("TICKWAVE", "0") != "0"
    if LT: stp.tick(1)
    issue(0)
    if LT: stp.tick(2)
    issue(1)
    if LT: stp.tick(3)
    for c in range(NST):
        k.wait_vm(("S", c))
        if LT and c < 3: stp.tick(4 + 2 * c)
        k.I("s_barrier")
        if LT and c < 3: stp.tick(5 + 2 * c)
        if c == 0: issue(2); issue(3)
        elif c + 2 < NST and c >= 2:
            issue(c + 2)
            if 3 <= c < 11: issue_z1(c - 3, c + 2)
    vT = k.valloc()
    k.I("s_lshl_b32", s(st0), s(sidx), 8)
    k.I("v_subrev_u32", v(vT), 256, "v0")
    k.I("v_add_u32", v(vT), s(st0), v(vT))
    k.I("v_lshlrev_b32", v(vT), 7, v(vT))
    if LT: stp.dump_ticks()
    k.I("s_endpgm")
    k.L(comp)
    k.vnext = vsave; k.vmq = []; k.lgq = []
    srd(k, sB, pB, 4096)
    l31 = k.valloc(); hh = k.valloc()
    k.I("v_and_b32", v(l31), 31, v(lane))
    k.I("v_lshrrev_b32", v(hh), 5, v(lane))
    sfh = k.salloc(); sth = k.salloc(); sst = k.salloc(); sf32 = k.salloc()
    k.I("s_and_b32", s(sfh), s(swave), 1)
    k.I("s_lshr_b32", s(sth), s(swave), 1)
    k.I("s_lshl_b32", s(sst), s(stt), 2)
    k.I("s_lshl_b32", s(st0), s(sth), 1)
    k.I("s_add_u32", s(sst), s(sst), s(st0))
    k.I("s_lshl_b32", s(sf32), s(sft), 2)
    k.I("s_lshl_b32", s(st0), s(sfh), 1)
    k.I("s_add_u32", s(sf32), s(sf32), s(st0))
    if os.environ.get("PF3", "0") == "1":
        vT0 = k.valloc(); vd0 = k.valloc(2)
        k.I("s_lshl_b32", s(st0), s(sidx), 8)
        k.I("v_add_u32", v(vT0), s(st0), "v0")
        k.I("s_lshl_b32", s(st1), s(skap), 16)
        k.I("s_add_u32", s(st1), s(st1), hex(Z2_OFF))
        for i in range(2):
            k.I("v_add_u32", v(t0), 7168 * i, v(vT0))
            k.I("v_lshrrev_b32", v(t1), 9, v(t0))
            k.I("v_lshlrev_b32", v(t1), 17, v(t1))
            k.I("v_and_b32", v(t2), 511, v(t0))
            k.I("v_lshl_add_u32", v(t1), v(t2), 7, v(t1))
            k.vm("pf", "buffer_load_dword", v(vd0 + i), v(t1), sr(sWS, 4), s(st1), mods="offen")
    v16 = k.valloc()
    k.I("v_lshlrev_b32", v(v16), 4, v(lane))
    z1 = [[k.valloc(8, 4) for _ in range(2)] for _ in range(2)]
    rr = [k.valloc(2) for _ in range(2)]; bb = [k.valloc(2) for _ in range(2)]
    k.I("v_lshlrev_b32", v(t0), 2, v(l31))
    k.I("v_lshlrev_b32", v(t1), 1, v(l31))
    for ti in range(2):
        k.I("s_add_u32", s(st0), s(sst), ti)
        k.I("s_lshl_b32", s(soff), s(st0), 7)
        k.I("s_add_u32", s(soff), s(soff), hex(RH_OFF))
        k.vm("z1", "buffer_load_dword", v(rr[ti]), v(t0), sr(sWS, 4), s(soff), mods="offen")
        k.I("s_lshl_b32", s(soff), s(st0), 6)
        k.vm("z1", "buffer_load_ushort", v(bb[ti]), v(t1), sr(sB, 4), s(soff), mods="offen")
    if os.environ.get("PF2", "0") == "1":
        pp = k.salloc(2); sP = k.salloc(4); vT = k.valloc(); vd = k.valloc(2)
        k.I("s_load_dwordx2", sr(pp, 2), "s[0:1]", 56)
        k.I("s_lshl_b32", s(st0), s(sidx), 8)
        k.I("v_add_u32", v(vT), s(st0), "v0")
        k.I("v_lshlrev_b32", v(vT), 7, v(vT))
        k.I("s_waitcnt", "lgkmcnt(0)")
        srd(k, sP, pp, 896 * 896)
        k.vm("pf", "buffer_load_dword", v(vd), v(vT), sr(sP, 4), 0, mods="offen")
    code_prefetch(k, "k6_wout_kernel", sidx, st0)
    stp.stamp(0)
    aZ = k.valloc(); aW = k.valloc(4)
    k.I("s_lshl_b32", s(st0), s(sfh), 13)
    k.I("v_add_u32", v(aZ), s(st0), v(v16))
    k.I("v_bfe_u32", v(t0), v(l31), 1, 3)
    for j in range(4):
        k.I("v_add_u32", v(t1), 2 * j, v(hh))
        k.I("v_xor_b32", v(t1), v(t1), v(t0))
        k.I("v_lshlrev_b32", v(t1), 4, v(t1))
        k.I("v_lshl_add_u32", v(aW + j), v(l31), 7, v(t1))
        k.I("s_lshl_b32", s(st0), s(sth), 13)
        k.I("s_add_u32", s(st0), s(st0), 16384)
        k.I("v_add_u32", v(aW + j), s(st0), v(aW + j))
    aZ2 = k.valloc(); aW2 = k.valloc(4)
    k.I("v_add_u32", v(aZ2), 65536, v(aZ))
    for j in range(4): k.I("v_add_u32", v(aW2 + j), 65536, v(aW + j))
    acc = [[k.valloc(16, 4) for _ in range(2)] for _ in range(2)]
    NB = 3
    zf = [[k.valloc(4) for _ in range(2)] for _ in range(NB)]
    wf = [[k.valloc(4) for _ in range(2)] for _ in range(NB)]
    def rl(ks):
        c, j = ks // 4, ks % 4
        b = ks % NB
        sl = (c % NS) * SLOT
        hi = sl >= 65536
        so = sl - (65536 if hi else 0)
        out = []
        for fi in range(2):
            out.append(lambda fi=fi: k.lg(("f", ks), "ds_read_b128", vr(zf[b][fi], 4), v(aZ2 if hi else aZ), mods=f"offset:{so + fi * 4096 + j * 1024}"))
        for ti in range(2):
            out.append(lambda ti=ti: k.lg(("f", ks), "ds_read_b128", vr(wf[b][ti], 4), v((aW2 if hi else aW) + j), mods=f"offset:{so + ti * 4096}"))
        return out
    k.I("s_barrier")
    stp.stamp(1)
    for f in rl(0) + rl(1): f()
    NKS = NST * 4
    for ks in range(NKS):
        c, j = ks // 4, ks % 4
        b = ks % NB
        k.wait_lg(("f", ks))
        mf = []
        for fi in range(2):
            for ti in range(2):
                mf.append(lambda fi=fi, ti=ti: k.I("v_mfma_f32_32x32x16_bf16", vr(acc[fi][ti], 16), vr(zf[b][fi], 4), vr(wf[b][ti], 4), 0 if ks == 0 else vr(acc[fi][ti], 16)))
        fl = rl(ks + 2) if ks + 2 < NKS else []
        if j == 2 and ks + 2 < NKS:
            if not LT and c in (0, 13, 14): stp.tick({0: 0, 13: 1, 14: 2}[c])
            k.I("s_barrier")
        interleave(k, mf, fl)
    if not LT: stp.tick(3)
    stp.stamp(2)
    if not LT: stp.tick(4)
    if not LT: stp.tick(5)
    vz = k.valloc()
    k.I("s_lshl_b32", s(st0), s(sth), 14)
    k.I("s_lshl_b32", s(st1), s(sfh), 12)
    k.I("s_add_u32", s(st0), s(st0), s(st1))
    k.I("s_add_u32", s(st0), s(st0), Z1REG)
    k.I("v_add_u32", v(vz), s(st0), v(v16))
    for ti in range(2):
        for fi in range(2):
            for hf_ in range(2):
                k.lg(("z1", ti, fi), "ds_read_b128", vr(z1[fi][ti] + 4 * hf_, 4), v(vz), mods=f"offset:{ti * 8192 + fi * 2048 + hf_ * 1024}")
    k.wait_vm("z1")
    for ti in range(2):
        k.I("v_lshlrev_b32", v(bb[ti]), 16, v(bb[ti]))
        k.I("v_mul_f32", v(bb[ti]), v(bb[ti]), v(rr[ti]))
    k.I("s_cmp_eq_u32", s(skap), 0)
    k.I("s_cselect_b32", s(st0), "1.0", 0)
    for ti in range(2): k.I("v_mul_f32", v(bb[ti]), s(st0), v(bb[ti]))
    tp = [k.valloc(2) for _ in range(4)]
    P = [k.valloc(8, 4) for _ in range(2)]
    sU = k.salloc()
    k.I("s_mul_i32", s(sU), s(skap), U1_OFF - U0_OFF)
    k.I("s_add_u32", s(sU), s(sU), hex(U0_OFF))
    n = 0
    for ti in range(2):
        for fi in range(2):
            A = acc[fi][ti]; Zp = z1[fi][ti]; PP = P[n & 1]; n += 1
            for j in range(8):
                k.I("v_pk_fma_f32", vr(A + 2 * j, 2), vr(A + 2 * j, 2), vr(rr[ti], 2), vr(bb[ti], 2), mods="op_sel_hi:[1,0,0]")
            k.wait_lg(("z1", ti, fi))
            for j in range(8):
                T = tp[j % 4]
                k.I("v_lshlrev_b32", v(T), 16, v(Zp + j))
                k.I("v_and_b32", v(T + 1), "0xffff0000", v(Zp + j))
                k.I("v_pk_mul_f32", vr(A + 2 * j, 2), vr(A + 2 * j, 2), vr(T, 2))
            for j in range(8): k.I("v_cvt_pk_bf16_f32", v(PP + j), v(A + 2 * j), v(A + 2 * j + 1))
            k.I("s_add_u32", s(st0), s(sst), ti)
            k.I("s_mul_i32", s(soff), s(st0), 56 * 1024)
            k.I("s_add_u32", s(st0), s(sf32), fi)
            k.I("s_lshl_b32", s(st0), s(st0), 11)
            k.I("s_add_u32", s(soff), s(soff), s(st0))
            k.I("s_add_u32", s(soff), s(soff), s(sU))
            k.I("buffer_store_dwordx4", vr(PP, 4), v(v16), sr(sWS, 4), s(soff), mods="offen")
            k.I("buffer_store_dwordx4", vr(PP + 4, 4), v(v16), sr(sWS, 4), s(soff), mods="offen offset:1024")
            if not LT: stp.tick(5 + n)
    stp.stamp(3)
    if not LT: stp.tick(10)
    if not LT: stp.dump_ticks()
    k.I("s_endpgm")
    k.L(pfrole)
    vT2 = k.valloc()
    k.I("s_sub_u32", s(st0), s(sidx), 28)
    k.I("s_lshl_b32", s(st0), s(st0), 9)
    k.I("v_add_u32", v(vT2), s(st0), "v0")
    k.I("v_lshlrev_b32", v(vT2), 7, v(vT2))
    l2_prefetch(k, 56, 896 * 896, vT2, 2048, st0)
    k.L(R["done"])
    k.I("s_endpgm")
    k.lds = lds; k.threads = 512; k.grid = 256
    return k

def gen_k56(Stamper):
    k = Kernel("k5_sp_kernel")
    NS = 4; SLOT = 32768
    Z1REG = NS * SLOT
    lds = Z1REG + 32768
    R = common_start(k, 256)
    swave, st0, st1, soff, lane, t0, t1, t2 = (R[x] for x in ("swave", "st0", "st1", "soff", "lane", "t0", "t1", "t2"))
    pSp = k.salloc(2); pB = k.salloc(2); pWS = k.salloc(2)
    k.I("s_load_dwordx2", sr(pSp, 2), "s[0:1]", 40)
    k.I("s_load_dwordx2", sr(pB, 2), "s[0:1]", 48)
    k.I("s_load_dwordx2", sr(pWS, 2), "s[0:1]", 80)
    pWo = k.salloc(2); pOD = k.salloc(4)
    k.I("s_load_dwordx2", sr(pWo, 2), "s[0:1]", 56)
    k.I("s_load_dwordx4", sr(pOD, 4), "s[0:1]", 64)
    sWS = k.salloc(4); sSp = k.salloc(4); sB = k.salloc(4); sWo = k.salloc(4); sOut = k.salloc(4); sD = k.salloc(4)
    sj = k.salloc(); sidx = k.salloc(); stt = k.salloc(); sft = k.salloc(); skap = k.salloc(); sw3 = k.salloc()
    if os.environ.get("K5MAP") == "linear":
        k.I("s_mul_i32", s(sj), "s2", 2341)
        k.I("s_lshr_b32", s(sj), s(sj), 16)
        k.I("s_mul_i32", s(sidx), s(sj), 28)
        k.I("s_sub_u32", s(sidx), "s2", s(sidx))
    else:
        k.I("s_and_b32", s(sj), "s2", 7)
        k.I("s_lshr_b32", s(sidx), "s2", 3)
    pfrole = k.newlabel("pfrole")
    k.I("s_cmp_ge_u32", s(sidx), 28)
    k.I("s_cbranch_scc1", pfrole)
    k.I("s_and_b32", s(sw3), s(swave), 3)
    k.I("s_and_b32", s(skap), s(sj), 1)
    k.I("s_mul_i32", s(st0), s(sidx), 37)
    k.I("s_lshr_b32", s(st0), s(st0), 8)
    k.I("s_mul_i32", s(st1), s(st0), 7)
    k.I("s_sub_u32", s(sft), s(sidx), s(st1))
    k.I("s_lshr_b32", s(stt), s(sj), 1)
    k.I("s_lshl_b32", s(stt), s(stt), 2)
    k.I("s_add_u32", s(stt), s(stt), s(st0))
    stp = Stamper(k, 4, sWS, swave)
    if os.environ.get("TICKWAVE", "0") != "0": stp.tick(0)
    k.I("s_waitcnt", "lgkmcnt(0)")
    srd(k, sWS, pWS, WS_SIZE)
    comp = k.newlabel("compute")
    k.I("s_cmp_lt_u32", s(swave), 4)
    k.I("s_cbranch_scc1", comp)
    vsave = k.vnext
    srd(k, sSp, pSp, 2048 * 4096)
    v16 = k.valloc(); vWo = k.valloc(2)
    k.I("v_lshlrev_b32", v(v16), 4, v(lane))
    k.I("v_lshrrev_b32", v(t0), 3, v(lane))
    k.I("v_lshlrev_b32", v(t0), 12, v(t0))
    k.I("v_lshrrev_b32", v(t1), 4, v(lane))
    k.I("v_and_b32", v(t2), 7, v(lane))
    k.I("v_xor_b32", v(t1), v(t1), v(t2))
    k.I("v_lshl_add_u32", v(vWo), v(t1), 4, v(t0))
    k.I("v_xor_b32", v(t1), 4, v(t1))
    k.I("v_lshl_add_u32", v(vWo + 1), v(t1), 4, v(t0))
    sZb = k.salloc(); sWb = k.salloc(); smZ = k.salloc(); smW = k.salloc()
    k.I("s_lshl_b32", s(st0), s(sft), 2)
    k.I("s_add_u32", s(st0), s(st0), s(sw3))
    k.I("s_mul_i32", s(sZb), s(st0), ZS)
    k.I("s_mul_i32", s(st1), s(skap), ZK)
    k.I("s_add_u32", s(sZb), s(sZb), s(st1))
    k.I("s_add_u32", s(sZb), s(sZb), hex(Z2_OFF))
    k.I("s_lshl_b32", s(smZ), s(sw3), 12)
    k.I("s_lshl_b32", s(st0), s(stt), 7)
    k.I("s_lshl_b32", s(st1), s(sw3), 5)
    k.I("s_add_u32", s(st0), s(st0), s(st1))
    k.I("s_lshl_b32", s(sWb), s(st0), 12)
    k.I("s_lshl_b32", s(st1), s(skap), 11)
    k.I("s_add_u32", s(sWb), s(sWb), s(st1))
    k.I("s_add_u32", s(smW), s(smZ), 16384)
    def issue(c):
        sl = (c % NS) * SLOT
        def zpart():
            for i in range(4):
                k.I("s_add_u32", s(soff), s(sZb), hex((4 * c + i) * 1024))
                k.I("s_add_u32", "m0", s(smZ), hex(sl + i * 1024))
                k.vm(("S", c), "buffer_load_dwordx4", v(v16), sr(sWS, 4), s(soff), mods="offen lds")
                if os.environ.get("DIAG5") and c == 0 and i in (0, 3):
                    k.I("s_waitcnt", "vmcnt(0)"); stp.tick(10 + (i > 0))
        def wpart():
            for i in range(4):
                k.I("s_add_u32", s(soff), s(sWb), hex(i * 8 * 4096 + c * 128))
                k.I("s_add_u32", "m0", s(smW), hex(sl + i * 1024))
                k.vm(("S", c), "buffer_load_dwordx4", v(vWo + (i & 1)), sr(sSp, 4), s(soff), mods="offen lds")
                if os.environ.get("DIAG5") and c == 0 and i in (0, 3):
                    k.I("s_waitcnt", "vmcnt(0)"); stp.tick(12 + (i > 0))
        if os.environ.get("DIAG5") == "2": wpart(); zpart()
        else: zpart(); wpart()
    NST = 16
    sZ1 = k.salloc()
    k.I("s_lshl_b32", s(st0), s(stt), 2)
    k.I("s_add_u32", s(st0), s(st0), s(sw3))
    k.I("s_mul_i32", s(sZ1), s(st0), 56 * 1024)
    k.I("s_lshl_b32", s(st1), s(sft), 13)
    k.I("s_add_u32", s(sZ1), s(sZ1), s(st1))
    k.I("s_add_u32", s(sZ1), s(sZ1), hex(Z1_OFF))
    smZ1 = k.salloc()
    k.I("s_lshl_b32", s(smZ1), s(sw3), 13)
    def issue_z1(i, tag):
        k.I("s_add_u32", s(soff), s(sZ1), hex(i * 1024))
        k.I("s_add_u32", "m0", s(smZ1), hex(Z1REG + i * 1024))
        k.vm(("S", tag), "buffer_load_dwordx4", v(v16), sr(sWS, 4), s(soff), mods="offen lds")
    LT = os.environ.get("TICKWAVE", "0") != "0"
    if LT: stp.tick(1)
    issue(0)
    if LT: stp.tick(2)
    issue(1)
    if LT: stp.tick(3)
    for c in range(NST):
        k.wait_vm(("S", c))
        if LT and c < 3: stp.tick(4 + 2 * c)
        k.I("s_barrier")
        if LT and c < 3: stp.tick(5 + 2 * c)
        if c == 0: issue(2); issue(3)
        elif c + 2 < NST and c >= 2:
            issue(c + 2)
            if 3 <= c < 11: issue_z1(c - 3, c + 2)
    srd(k, sWo, pWo, 896 * 896)
    vWd = k.valloc(); sWd = k.salloc(); smD = k.salloc()
    k.I("v_lshrrev_b32", v(t0), 3, v(lane))
    k.I("v_mul_u32_u24", v(t0), 896, v(t0))
    k.I("v_bfe_u32", v(t1), v(lane), 4, 1)
    k.I("v_lshlrev_b32", v(t1), 2, v(t1))
    k.I("v_and_b32", v(t2), 7, v(lane))
    k.I("v_xor_b32", v(t1), v(t1), v(t2))
    k.I("v_lshl_add_u32", v(vWd), v(t1), 4, v(t0))
    k.I("s_mul_i32", s(sWd), s(sw3), 224 * 896)
    k.I("s_lshl_b32", s(st1), s(sft), 7)
    k.I("s_add_u32", s(sWd), s(sWd), s(st1))
    k.I("s_mul_i32", s(smD), s(sw3), 224 * 128)
    k.I("s_barrier")
    for i in range(28):
        k.I("s_add_u32", s(soff), s(sWd), hex(i * 8 * 896))
        k.I("s_add_u32", "m0", s(smD), hex(i * 1024))
        k.I("buffer_load_dwordx4", v(vWd), sr(sWo, 4), s(soff), mods="offen lds")
    k.I("s_barrier")
    k.I("s_waitcnt", "vmcnt(0)")
    k.I("s_barrier")
    k.I("s_endpgm")
    k.L(comp)
    k.vnext = vsave; k.vmq = []; k.lgq = []
    srd(k, sB, pB, 4096)
    l31 = k.valloc(); hh = k.valloc()
    k.I("v_and_b32", v(l31), 31, v(lane))
    k.I("v_lshrrev_b32", v(hh), 5, v(lane))
    sfh = k.salloc(); sth = k.salloc(); sst = k.salloc(); sf32 = k.salloc()
    k.I("s_and_b32", s(sfh), s(swave), 1)
    k.I("s_lshr_b32", s(sth), s(swave), 1)
    k.I("s_lshl_b32", s(sst), s(stt), 2)
    k.I("s_lshl_b32", s(st0), s(sth), 1)
    k.I("s_add_u32", s(sst), s(sst), s(st0))
    k.I("s_lshl_b32", s(sf32), s(sft), 2)
    k.I("s_lshl_b32", s(st0), s(sfh), 1)
    k.I("s_add_u32", s(sf32), s(sf32), s(st0))
    if os.environ.get("PF3", "0") == "1":
        vT0 = k.valloc(); vd0 = k.valloc(2)
        k.I("s_lshl_b32", s(st0), s(sidx), 8)
        k.I("v_add_u32", v(vT0), s(st0), "v0")
        k.I("s_lshl_b32", s(st1), s(skap), 16)
        k.I("s_add_u32", s(st1), s(st1), hex(Z2_OFF))
        for i in range(2):
            k.I("v_add_u32", v(t0), 7168 * i, v(vT0))
            k.I("v_lshrrev_b32", v(t1), 9, v(t0))
            k.I("v_lshlrev_b32", v(t1), 17, v(t1))
            k.I("v_and_b32", v(t2), 511, v(t0))
            k.I("v_lshl_add_u32", v(t1), v(t2), 7, v(t1))
            k.vm("pf", "buffer_load_dword", v(vd0 + i), v(t1), sr(sWS, 4), s(st1), mods="offen")
    v16 = k.valloc()
    k.I("v_lshlrev_b32", v(v16), 4, v(lane))
    vB = k.vnext
    z1 = [[k.valloc(8, 4) for _ in range(2)] for _ in range(2)]
    rr = [k.valloc(2) for _ in range(2)]; bb = [k.valloc(2) for _ in range(2)]
    k.I("v_lshlrev_b32", v(t0), 2, v(l31))
    k.I("v_lshlrev_b32", v(t1), 1, v(l31))
    for ti in range(2):
        k.I("s_add_u32", s(st0), s(sst), ti)
        k.I("s_lshl_b32", s(soff), s(st0), 7)
        k.I("s_add_u32", s(soff), s(soff), hex(RH_OFF))
        k.vm("z1", "buffer_load_dword", v(rr[ti]), v(t0), sr(sWS, 4), s(soff), mods="offen")
        k.I("s_lshl_b32", s(soff), s(st0), 6)
        k.vm("z1", "buffer_load_ushort", v(bb[ti]), v(t1), sr(sB, 4), s(soff), mods="offen")
    if os.environ.get("PF2", "0") == "1":
        pp = k.salloc(2); sP = k.salloc(4); vT = k.valloc(); vd = k.valloc(2)
        k.I("s_load_dwordx2", sr(pp, 2), "s[0:1]", 56)
        k.I("s_lshl_b32", s(st0), s(sidx), 8)
        k.I("v_add_u32", v(vT), s(st0), "v0")
        k.I("v_lshlrev_b32", v(vT), 7, v(vT))
        k.I("s_waitcnt", "lgkmcnt(0)")
        srd(k, sP, pp, 896 * 896)
        k.vm("pf", "buffer_load_dword", v(vd), v(vT), sr(sP, 4), 0, mods="offen")
    stp.stamp(0)
    aZ = k.valloc(); aW = k.valloc(4)
    k.I("s_lshl_b32", s(st0), s(sfh), 13)
    k.I("v_add_u32", v(aZ), s(st0), v(v16))
    k.I("v_bfe_u32", v(t0), v(l31), 1, 3)
    for j in range(4):
        k.I("v_add_u32", v(t1), 2 * j, v(hh))
        k.I("v_xor_b32", v(t1), v(t1), v(t0))
        k.I("v_lshlrev_b32", v(t1), 4, v(t1))
        k.I("v_lshl_add_u32", v(aW + j), v(l31), 7, v(t1))
        k.I("s_lshl_b32", s(st0), s(sth), 13)
        k.I("s_add_u32", s(st0), s(st0), 16384)
        k.I("v_add_u32", v(aW + j), s(st0), v(aW + j))
    aZ2 = k.valloc(); aW2 = k.valloc(4)
    k.I("v_add_u32", v(aZ2), 65536, v(aZ))
    for j in range(4): k.I("v_add_u32", v(aW2 + j), 65536, v(aW + j))
    acc = [[k.valloc(16, 4) for _ in range(2)] for _ in range(2)]
    NB = 3
    zf = [[k.valloc(4) for _ in range(2)] for _ in range(NB)]
    wf = [[k.valloc(4) for _ in range(2)] for _ in range(NB)]
    def rl(ks):
        c, j = ks // 4, ks % 4
        b = ks % NB
        sl = (c % NS) * SLOT
        hi = sl >= 65536
        so = sl - (65536 if hi else 0)
        out = []
        for fi in range(2):
            out.append(lambda fi=fi: k.lg(("f", ks), "ds_read_b128", vr(zf[b][fi], 4), v(aZ2 if hi else aZ), mods=f"offset:{so + fi * 4096 + j * 1024}"))
        for ti in range(2):
            out.append(lambda ti=ti: k.lg(("f", ks), "ds_read_b128", vr(wf[b][ti], 4), v((aW2 if hi else aW) + j), mods=f"offset:{so + ti * 4096}"))
        return out
    k.I("s_barrier")
    if not os.environ.get("DIAG56"): stp.stamp(1)
    for f in rl(0) + rl(1): f()
    NKS = NST * 4
    for ks in range(NKS):
        c, j = ks // 4, ks % 4
        b = ks % NB
        k.wait_lg(("f", ks))
        mf = []
        for fi in range(2):
            for ti in range(2):
                mf.append(lambda fi=fi, ti=ti: k.I("v_mfma_f32_32x32x16_bf16", vr(acc[fi][ti], 16), vr(zf[b][fi], 4), vr(wf[b][ti], 4), 0 if ks == 0 else vr(acc[fi][ti], 16)))
        fl = rl(ks + 2) if ks + 2 < NKS else []
        if j == 2 and ks + 2 < NKS:
            k.I("s_barrier")
        interleave(k, mf, fl)
    k.I("s_barrier")
    if not os.environ.get("DIAG56"): stp.stamp(2)
    vz = k.valloc()
    k.I("s_lshl_b32", s(st0), s(sth), 14)
    k.I("s_lshl_b32", s(st1), s(sfh), 12)
    k.I("s_add_u32", s(st0), s(st0), s(st1))
    k.I("s_add_u32", s(st0), s(st0), Z1REG)
    k.I("v_add_u32", v(vz), s(st0), v(v16))
    for ti in range(2):
        for fi in range(2):
            for hf_ in range(2):
                k.lg(("z1", ti, fi), "ds_read_b128", vr(z1[fi][ti] + 4 * hf_, 4), v(vz), mods=f"offset:{ti * 8192 + fi * 2048 + hf_ * 1024}")
    k.wait_vm("z1")
    for ti in range(2):
        k.I("v_lshlrev_b32", v(bb[ti]), 16, v(bb[ti]))
        k.I("v_mul_f32", v(bb[ti]), v(bb[ti]), v(rr[ti]))
    k.I("s_cmp_eq_u32", s(skap), 0)
    k.I("s_cselect_b32", s(st0), "1.0", 0)
    for ti in range(2): k.I("v_mul_f32", v(bb[ti]), s(st0), v(bb[ti]))
    tp = [k.valloc(2) for _ in range(4)]
    P = [k.valloc(8, 4) for _ in range(2)]
    sU = k.salloc()
    k.I("s_mul_i32", s(sU), s(skap), U1_OFF - U0_OFF)
    k.I("s_add_u32", s(sU), s(sU), hex(U0_OFF))
    n = 0
    for ti in range(2):
        for fi in range(2):
            A = acc[fi][ti]; Zp = z1[fi][ti]; PP = P[n & 1]; n += 1
            for j in range(8):
                k.I("v_pk_fma_f32", vr(A + 2 * j, 2), vr(A + 2 * j, 2), vr(rr[ti], 2), vr(bb[ti], 2), mods="op_sel_hi:[1,0,0]")
            k.wait_lg(("z1", ti, fi))
            for j in range(8):
                T = tp[j % 4]
                k.I("v_lshlrev_b32", v(T), 16, v(Zp + j))
                k.I("v_and_b32", v(T + 1), "0xffff0000", v(Zp + j))
                k.I("v_pk_mul_f32", vr(A + 2 * j, 2), vr(A + 2 * j, 2), vr(T, 2))
            for j in range(8): k.I("v_cvt_pk_bf16_f32", v(PP + j), v(A + 2 * j), v(A + 2 * j + 1))
            k.I("s_add_u32", s(st0), s(sst), ti)
            k.I("s_mul_i32", s(soff), s(st0), 56 * 1024)
            k.I("s_add_u32", s(st0), s(sf32), fi)
            k.I("s_lshl_b32", s(st0), s(st0), 11)
            k.I("s_add_u32", s(soff), s(soff), s(st0))
            k.I("s_add_u32", s(soff), s(soff), s(sU))
            k.I("buffer_store_dwordx4", vr(PP, 4), v(v16), sr(sWS, 4), s(soff), mods="offen")
            k.I("buffer_store_dwordx4", vr(PP + 4, 4), v(v16), sr(sWS, 4), s(soff), mods="offen offset:1024")
    stp.stamp(3)
    k.vnext = vB
    srd(k, sOut, pOD, 2048 * 896)
    srd(k, sD, pOD + 2, 256)
    srh = k.salloc(); skh = k.salloc(); sstB = k.salloc()
    k.I("s_and_b32", s(srh), s(swave), 1)
    k.I("s_lshr_b32", s(skh), s(swave), 1)
    k.I("s_lshl_b32", s(sstB), s(stt), 2)
    k.I("s_lshl_b32", s(st0), s(skap), 1)
    k.I("s_add_u32", s(sstB), s(sstB), s(st0))
    k.I("s_add_u32", s(sstB), s(sstB), s(srh))
    hr = k.valloc(8, 4)
    k.I("s_mul_i32", s(soff), s(sstB), 28 * 1024)
    k.I("s_lshl_b32", s(st0), s(sft), 1)
    k.I("s_add_u32", s(st0), s(st0), s(skh))
    sntile = k.salloc()
    k.I("s_mov_b32", s(sntile), s(st0))
    k.I("s_lshl_b32", s(st0), s(st0), 11)
    k.I("s_add_u32", s(soff), s(soff), s(st0))
    k.I("s_add_u32", s(soff), s(soff), hex(H_OFF))
    k.I("s_waitcnt", "vmcnt(0)")
    if os.environ.get("DIAG56"): stp.stamp(1); k.I("s_waitcnt", "vmcnt(0)")
    k.vmq = []
    k.I("s_barrier")
    if os.environ.get("DIAG56"): stp.stamp(2); k.I("s_waitcnt", "vmcnt(0)"); k.vmq = []
    k.vm("h", "buffer_load_dwordx4", vr(hr, 4), v(v16), sr(sWS, 4), s(soff), mods="offen")
    k.vm("h", "buffer_load_dwordx4", vr(hr + 4, 4), v(v16), sr(sWS, 4), s(soff), mods="offen offset:1024")
    nopoll = k.newlabel("nopoll")
    k.I("s_cmp_lg_u32", s(swave), 0)
    k.I("s_cbranch_scc1", nopoll)
    fl = k.valloc(2); vz0 = k.valloc(); one = k.valloc()
    k.I("s_mul_i32", s(st0), s(skap), 7)
    k.I("s_add_u32", s(st0), s(st0), s(sft))
    k.I("s_lshl_b32", s(st0), s(st0), 2)
    k.I("s_lshl_b32", s(st1), s(stt), 8)
    k.I("s_add_u32", s(st1), s(st1), hex(FL_OFF))
    k.I("s_add_u32", s(st0), s(st0), s(st1))
    k.I("v_mov_b32", v(vz0), 0)
    k.I("v_mov_b32", v(one), 1)
    k.I("s_mov_b64", "exec", 1)
    k.I("buffer_store_dword", v(one), v(vz0), sr(sWS, 4), s(st0), mods="offen sc0 sc1")
    k.I("s_mov_b64", "exec", -1)
    k.I("v_min_u32", v(vz0), 13, v(lane))
    k.I("v_lshlrev_b32", v(vz0), 2, v(vz0))
    scount = k.salloc()
    k.I("s_mov_b32", s(scount), 0)
    poll = k.newlabel("poll"); pdone = k.newlabel("pdone")
    k.L(poll)
    k.I("buffer_load_dword", v(fl), v(vz0), sr(sWS, 4), s(st1), mods="offen sc0 sc1")
    k.I("s_waitcnt", "vmcnt(0)")
    k.I("v_cmp_ne_u32", "vcc", 1, v(fl))
    k.I("s_add_u32", s(scount), s(scount), 1)
    k.I("s_cmp_eq_u64", "vcc", 0)
    k.I("s_cbranch_scc1", pdone)
    k.I("s_cmp_lt_u32", s(scount), 0x100000)
    k.I("s_cbranch_scc0", pdone)
    k.I("s_sleep", 1)
    k.I("s_branch", poll)
    k.L(pdone)
    k.L(nopoll)
    if os.environ.get("DIAG56"): stp.stamp(7); k.I("s_waitcnt", "vmcnt(0)")
    k.vmq = ["h", "h"]
    vWb = [k.valloc(), k.valloc()]
    k.I("v_bfe_u32", v(t0), v(lane), 2, 2)
    k.I("v_lshl_add_u32", v(t0), v(hh), 2, v(t0))
    k.I("s_mul_i32", s(st0), s(skh), 448)
    k.I("v_add_u32", v(t0), s(st0), v(t0))
    k.I("v_lshlrev_b32", v(t0), 7, v(t0))
    k.I("v_bfe_u32", v(t1), v(lane), 4, 1)
    k.I("v_lshlrev_b32", v(t1), 1, v(t1))
    k.I("v_bfe_u32", v(t2), v(lane), 1, 1)
    k.I("v_add_u32", v(t1), v(t1), v(t2))
    k.I("v_bfe_u32", v(t2), v(lane), 3, 1)
    k.I("v_lshlrev_b32", v(t2), 2, v(t2))
    for n2 in range(2):
        k.I("v_add_u32", v(vWb[n2]), 4 * n2, v(t1))
        k.I("v_xor_b32", v(vWb[n2]), v(vWb[n2]), v(t2))
        k.I("v_lshl_add_u32", v(vWb[n2]), v(vWb[n2]), 4, v(t0))
    k.I("v_and_b32", v(t1), 1, v(lane))
    for n2 in range(2): k.I("v_lshl_add_u32", v(vWb[n2]), v(t1), 3, v(vWb[n2]))
    sU0 = k.salloc(); sU1 = k.salloc()
    k.I("s_mul_i32", s(sU0), s(sstB), 56 * 1024)
    k.I("s_mul_i32", s(st0), s(skh), 28 * 1024)
    k.I("s_add_u32", s(sU0), s(sU0), s(st0))
    k.I("s_add_u32", s(sU1), s(sU0), hex(U1_OFF))
    k.I("s_add_u32", s(sU0), s(sU0), hex(U0_OFF))
    accB = [k.valloc(16, 4) for _ in range(2)]
    NU = 12
    uf = [[k.valloc(4) for _ in range(2)] for _ in range(NU)]
    NBW = 3
    wfB = [[k.valloc(4) for _ in range(2)] for _ in range(NBW)]
    k.I("s_barrier")
    stp.stamp(4)
    def uload(j):
        for ar_, sU in enumerate((sU0, sU1)):
            k.I("s_add_u32", s(soff), s(sU), hex(j * 1024))
            k.vm(("u", j), "buffer_load_dwordx4", vr(uf[j % NU][ar_], 4), v(v16), sr(sWS, 4), s(soff), mods="offen sc1")
    def wread(j):
        out = []
        for n2 in range(2):
            for beta in range(2):
                out.append(lambda n2=n2, beta=beta: k.lg(("w", j), "ds_read_b64_tr_b16", vr(wfB[j % NBW][n2] + 2 * beta, 2), v(vWb[n2]), mods=f"offset:{(16 * j + 8 * beta) * 128}"))
        return out
    for j in range(NU): uload(j)
    for f in wread(0) + wread(1): f()
    for j in range(28):
        k.wait_vm(("u", j))
        k.wait_lg(("w", j))
        mf = []
        for ar_ in range(2):
            for n2 in range(2):
                mf.append(lambda ar_=ar_, n2=n2: k.I("v_mfma_f32_32x32x16_bf16", vr(accB[n2], 16), vr(wfB[j % NBW][n2], 4), vr(uf[j % NU][ar_], 4), 0 if (j == 0 and ar_ == 0) else vr(accB[n2], 16)))
        fl_ = wread(j + 2) if j + 2 < 28 else []
        interleave(k, mf, fl_)
        if j + NU < 28: uload(j + NU)
    stp.stamp(5)
    RED = 114688
    vr1 = k.valloc(); vr2 = k.valloc()
    k.I("s_lshl_b32", s(st0), s(srh), 13)
    k.I("s_add_u32", s(st0), s(st0), RED)
    k.I("v_add_u32", v(vr1), s(st0), v(v16))
    k.I("s_lshl_b32", s(st1), s(skh), 12)
    k.I("v_add_u32", v(vr2), s(st1), v(vr1))
    k.I("s_xor_b32", s(st1), s(st1), 4096)
    k.I("v_add_u32", v(vr1), s(st1), v(vr1))
    keep = k.valloc(16, 4)
    lab_a = k.newlabel("kh1"); lab_b = k.newlabel("khj")
    k.I("s_cmp_lg_u32", s(skh), 0)
    k.I("s_cbranch_scc1", lab_a)
    for q in range(4): k.I("ds_write_b128", v(vr1), vr(accB[1] + 4 * q, 4), mods=f"offset:{q * 1024}")
    for i in range(16): k.I("v_mov_b32", v(keep + i), v(accB[0] + i))
    k.I("s_branch", lab_b)
    k.L(lab_a)
    for q in range(4): k.I("ds_write_b128", v(vr1), vr(accB[0] + 4 * q, 4), mods=f"offset:{q * 1024}")
    for i in range(16): k.I("v_mov_b32", v(keep + i), v(accB[1] + i))
    k.L(lab_b)
    k.I("s_waitcnt", "lgkmcnt(0)")
    k.lgq = []
    k.I("s_barrier")
    oth = k.valloc(16, 4)
    for q in range(4): k.I("ds_read_b128", vr(oth + 4 * q, 4), v(vr2), mods=f"offset:{q * 1024}")
    k.wait_vm("h")
    tpB = [k.valloc(2) for _ in range(4)]
    for j in range(8):
        T = tpB[j % 4]
        k.I("v_lshlrev_b32", v(T), 16, v(hr + j))
        k.I("v_and_b32", v(T + 1), "0xffff0000", v(hr + j))
        k.I("v_pk_add_f32", vr(keep + 2 * j, 2), vr(keep + 2 * j, 2), vr(T, 2))
    k.I("s_waitcnt", "lgkmcnt(0)")
    for j in range(8): k.I("v_pk_add_f32", vr(keep + 2 * j, 2), vr(keep + 2 * j, 2), vr(oth + 2 * j, 2))
    PB = k.valloc(8, 4)
    for j in range(8): k.I("v_cvt_pk_bf16_f32", v(PB + j), v(keep + 2 * j), v(keep + 2 * j + 1))
    for kp in range(2):
        k.I("v_permlane32_swap_b32", v(PB + 4 * kp), v(PB + 4 * kp + 2))
        k.I("v_permlane32_swap_b32", v(PB + 4 * kp + 1), v(PB + 4 * kp + 3))
    vo = k.valloc()
    k.I("v_mul_u32_u24", v(vo), 896, v(l31))
    k.I("v_lshl_add_u32", v(vo), v(hh), 4, v(vo))
    k.I("s_mul_i32", s(soff), s(sstB), 32 * 896)
    k.I("s_lshl_b32", s(st0), s(sntile), 6)
    k.I("s_add_u32", s(soff), s(soff), s(st0))
    for kp in range(2):
        k.I("buffer_store_dwordx4", vr(PB + 4 * kp, 4), v(vo), sr(sOut, 4), s(soff), mods=f"offen offset:{32 * kp}")
    stp.stamp(6)
    k.I("s_endpgm")
    k.L(pfrole)
    vT2 = k.valloc()
    k.I("s_sub_u32", s(st0), s(sidx), 28)
    k.I("s_lshl_b32", s(st0), s(st0), 9)
    k.I("v_add_u32", v(vT2), s(st0), "v0")
    k.I("v_lshlrev_b32", v(vT2), 7, v(vT2))
    l2_prefetch(k, 56, 896 * 896, vT2, 2048, st0)
    k.L(R["done"])
    k.I("s_endpgm")
    k.lds = lds; k.threads = 512; k.grid = 256
    return k

def gen_k6(Stamper):
    k = Kernel("k6_wout_kernel")
    NS = 5; SLOT = 24576
    RED = 0
    lds = NS * SLOT
    R = common_start(k, 224)
    swave, st0, st1, soff, lane, t0, t1, t2 = (R[x] for x in ("swave", "st0", "st1", "soff", "lane", "t0", "t1", "t2"))
    pWo = k.salloc(2); pOut = k.salloc(2); pWS = k.salloc(2)
    k.I("s_load_dwordx2", sr(pWo, 2), "s[0:1]", 56)
    k.I("s_load_dwordx2", sr(pOut, 2), "s[0:1]", 64)
    k.I("s_load_dwordx2", sr(pWS, 2), "s[0:1]", 80)
    sWS = k.salloc(4); sWo = k.salloc(4); sOut = k.salloc(4)
    sj = k.salloc(); sidx = k.salloc(); srt = k.salloc(); snt = k.salloc(); sw3 = k.salloc()
    k.I("s_and_b32", s(sj), "s2", 7)
    k.I("s_lshr_b32", s(sidx), "s2", 3)
    k.I("s_and_b32", s(sw3), s(swave), 3)
    k.I("s_mul_i32", s(st0), s(sidx), 37)
    k.I("s_lshr_b32", s(st0), s(st0), 8)
    k.I("s_mul_i32", s(st1), s(st0), 7)
    k.I("s_sub_u32", s(snt), s(sidx), s(st1))
    k.I("s_lshl_b32", s(srt), s(sj), 2)
    k.I("s_add_u32", s(srt), s(srt), s(st0))
    stp = Stamper(k, 5, sWS, swave)
    k.I("s_waitcnt", "lgkmcnt(0)")
    srd(k, sWS, pWS, WS_SIZE)
    comp = k.newlabel("compute")
    k.I("s_cmp_lt_u32", s(swave), 4)
    k.I("s_cbranch_scc1", comp)
    vsave = k.vnext
    srd(k, sWo, pWo, 896 * 896)
    v16 = k.valloc(); vWo = k.valloc()
    k.I("v_lshlrev_b32", v(v16), 4, v(lane))
    k.I("v_lshrrev_b32", v(t0), 3, v(lane))
    k.I("v_mul_u32_u24", v(t0), 896, v(t0))
    k.I("v_bfe_u32", v(t1), v(lane), 4, 1)
    k.I("v_lshlrev_b32", v(t1), 2, v(t1))
    k.I("v_and_b32", v(t2), 7, v(lane))
    k.I("v_xor_b32", v(t1), v(t1), v(t2))
    k.I("v_lshl_add_u32", v(vWo), v(t1), 4, v(t0))
    sUb = k.salloc(); sWb = k.salloc(); smU = k.salloc(); smW = k.salloc()
    k.I("s_lshr_b32", s(st0), s(sw3), 1)
    k.I("s_lshl_b32", s(st1), s(srt), 1)
    k.I("s_add_u32", s(st1), s(st1), s(st0))
    k.I("s_mul_i32", s(sUb), s(st1), 56 * 1024)
    k.I("s_and_b32", s(st1), s(sw3), 1)
    k.I("s_mul_i32", s(smU), s(st1), U1_OFF - U0_OFF)
    k.I("s_add_u32", s(sUb), s(sUb), s(smU))
    k.I("s_add_u32", s(sUb), s(sUb), hex(U0_OFF))
    k.I("s_lshl_b32", s(smU), s(st1), 13)
    k.I("s_lshl_b32", s(st0), s(st0), 12)
    k.I("s_add_u32", s(smU), s(smU), s(st0))
    k.I("s_mul_i32", s(sWb), s(sw3), 16 * 896)
    k.I("s_lshl_b32", s(st1), s(snt), 7)
    k.I("s_add_u32", s(sWb), s(sWb), s(st1))
    k.I("s_lshl_b32", s(smW), s(sw3), 11)
    k.I("s_add_u32", s(smW), s(smW), 16384)
    def issue(c):
        sl = (c % NS) * SLOT
        for i in range(4):
            k.I("s_add_u32", s(soff), s(sUb), hex((4 * c + i) * 1024))
            k.I("s_add_u32", "m0", s(smU), hex(sl + i * 1024))
            k.vm(("S", c), "buffer_load_dwordx4", v(v16), sr(sWS, 4), s(soff), mods="offen lds")
        for i in range(2):
            k.I("s_add_u32", s(soff), s(sWb), hex((64 * c + 8 * i) * 896))
            k.I("s_add_u32", "m0", s(smW), hex(sl + i * 1024))
            k.vm(("S", c), "buffer_load_dwordx4", v(vWo), sr(sWo, 4), s(soff), mods="offen lds")
    NST = 14
    for c in range(3): issue(c)
    for c in range(NST):
        k.wait_vm(("S", c))
        k.I("s_barrier")
        if c == 0: issue(3); issue(4)
        elif c + 3 < NST and c >= 2: issue(c + 3)
    k.I("s_endpgm")
    k.L(comp)
    k.vnext = vsave; k.vmq = []; k.lgq = []
    srd(k, sOut, pOut, 2048 * 896)
    l31 = k.valloc(); hh = k.valloc()
    k.I("v_and_b32", v(l31), 31, v(lane))
    k.I("v_lshrrev_b32", v(hh), 5, v(lane))
    srh = k.salloc(); snh = k.salloc(); sst = k.salloc(); sntile = k.salloc()
    k.I("s_and_b32", s(srh), s(swave), 1)
    k.I("s_lshr_b32", s(snh), s(swave), 1)
    k.I("s_lshl_b32", s(sst), s(srt), 1)
    k.I("s_add_u32", s(sst), s(sst), s(srh))
    k.I("s_lshl_b32", s(sntile), s(snt), 1)
    k.I("s_add_u32", s(sntile), s(sntile), s(snh))
    if os.environ.get("PF3", "0") == "1":
        vT0 = k.valloc(); vd0 = k.valloc(2)
        k.I("s_lshl_b32", s(st0), s(sidx), 8)
        k.I("v_add_u32", v(vT0), s(st0), "v0")
        k.I("v_mov_b32", v(t0), hex(U1_OFF - U0_OFF - 3584 * 128))
        k.I("v_cmp_le_u32", "vcc", 3584, v(vT0))
        k.I("v_cndmask_b32", v(t0), 0, v(t0), "vcc")
        k.I("v_lshl_add_u32", v(t0), v(vT0), 7, v(t0))
        k.I("s_mul_i32", s(st1), s(sj), 8 * 56 * 1024)
        k.I("s_add_u32", s(st1), s(st1), hex(U0_OFF))
        k.vm("pf", "buffer_load_dword", v(vd0), v(t0), sr(sWS, 4), s(st1), mods="offen")
    v16 = k.valloc()
    k.I("v_lshlrev_b32", v(v16), 4, v(lane))
    hr = k.valloc(8, 4)
    k.I("s_mul_i32", s(soff), s(sst), 28 * 1024)
    k.I("s_lshl_b32", s(st0), s(sntile), 11)
    k.I("s_add_u32", s(soff), s(soff), s(st0))
    k.I("s_add_u32", s(soff), s(soff), hex(H_OFF))
    k.vm("h", "buffer_load_dwordx4", vr(hr, 4), v(v16), sr(sWS, 4), s(soff), mods="offen")
    k.vm("h", "buffer_load_dwordx4", vr(hr + 4, 4), v(v16), sr(sWS, 4), s(soff), mods="offen offset:1024")
    stp.stamp(0)
    aU = k.valloc(); vW = k.valloc()
    k.I("s_lshl_b32", s(st0), s(srh), 12)
    k.I("v_add_u32", v(aU), s(st0), v(v16))
    k.I("v_bfe_u32", v(t0), v(lane), 2, 2)
    k.I("v_lshl_add_u32", v(t0), v(hh), 2, v(t0))
    k.I("v_lshlrev_b32", v(vW), 7, v(t0))
    k.I("v_add_u32", v(vW), 16384, v(vW))
    k.I("v_bfe_u32", v(t0), v(lane), 4, 1)
    k.I("v_lshlrev_b32", v(t0), 1, v(t0))
    k.I("v_bfe_u32", v(t1), v(lane), 1, 1)
    k.I("v_add_u32", v(t0), v(t0), v(t1))
    k.I("s_lshl_b32", s(st0), s(snh), 2)
    k.I("v_add_u32", v(t0), s(st0), v(t0))
    k.I("v_bfe_u32", v(t1), v(lane), 3, 1)
    k.I("v_lshlrev_b32", v(t1), 2, v(t1))
    k.I("v_xor_b32", v(t0), v(t0), v(t1))
    k.I("v_lshl_add_u32", v(vW), v(t0), 4, v(vW))
    k.I("v_and_b32", v(t0), 1, v(lane))
    k.I("v_lshl_add_u32", v(vW), v(t0), 3, v(vW))
    aU2 = k.valloc(); vW2 = k.valloc()
    k.I("v_add_u32", v(aU2), 3 * SLOT, v(aU))
    k.I("v_add_u32", v(vW2), 3 * SLOT, v(vW))
    acc = k.valloc(16, 4)
    NB = 3
    uf = [[k.valloc(4) for _ in range(2)] for _ in range(NB)]; wf = [k.valloc(4) for _ in range(NB)]
    def rl(ks):
        c, j = ks // 4, ks % 4
        b = ks % NB
        sl = (c % NS)
        hi = sl >= 3
        so = (sl - (3 if hi else 0)) * SLOT
        out = []
        for ar_ in range(2):
            out.append(lambda ar_=ar_: k.lg(("f", ks), "ds_read_b128", vr(uf[b][ar_], 4), v(aU2 if hi else aU), mods=f"offset:{so + ar_ * 8192 + j * 1024}"))
        for beta in range(2):
            o = so + (16 * j + 8 * beta) * 128
            out.append(lambda o=o, beta=beta: k.lg(("f", ks), "ds_read_b64_tr_b16", vr(wf[b] + 2 * beta, 2), v(vW2 if hi else vW), mods=f"offset:{o}"))
        return out
    k.I("s_barrier")
    stp.stamp(1)
    for f in rl(0) + rl(1): f()
    NKS = NST * 4
    for ks in range(NKS):
        c, j = ks // 4, ks % 4
        b = ks % NB
        k.wait_lg(("f", ks))
        mf = [lambda ar_=ar_: k.I("v_mfma_f32_32x32x16_bf16", vr(acc, 16), vr(wf[b], 4), vr(uf[b][ar_], 4), 0 if (ks == 0 and ar_ == 0) else vr(acc, 16)) for ar_ in range(2)]
        fl = rl(ks + 2) if ks + 2 < NKS else []
        if j == 2 and ks + 2 < NKS: k.I("s_barrier")
        interleave(k, mf, fl)
    stp.stamp(2)
    k.wait_vm("h")
    tp = [k.valloc(2) for _ in range(4)]
    for j in range(8):
        T = tp[j % 4]
        k.I("v_lshlrev_b32", v(T), 16, v(hr + j))
        k.I("v_and_b32", v(T + 1), "0xffff0000", v(hr + j))
        k.I("v_pk_add_f32", vr(acc + 2 * j, 2), vr(acc + 2 * j, 2), vr(T, 2))
    P = k.valloc(8, 4)
    for j in range(8): k.I("v_cvt_pk_bf16_f32", v(P + j), v(acc + 2 * j), v(acc + 2 * j + 1))
    for kp in range(2):
        k.I("v_permlane32_swap_b32", v(P + 4 * kp), v(P + 4 * kp + 2))
        k.I("v_permlane32_swap_b32", v(P + 4 * kp + 1), v(P + 4 * kp + 3))
    vo = k.valloc()
    k.I("v_mul_u32_u24", v(vo), 896, v(l31))
    k.I("v_lshl_add_u32", v(vo), v(hh), 4, v(vo))
    k.I("s_mul_i32", s(soff), s(sst), 32 * 896)
    k.I("s_lshl_b32", s(st0), s(sntile), 6)
    k.I("s_add_u32", s(soff), s(soff), s(st0))
    for kp in range(2):
        k.I("buffer_store_dwordx4", vr(P + 4 * kp, 4), v(vo), sr(sOut, 4), s(soff), mods=f"offen offset:{32 * kp}")
    stp.stamp(3)
    if os.environ.get("SPIN"):
        ka, ja, kb, jb = [int(x) for x in os.environ["SPIN"].split(",")]
        sa_ = k.salloc(2); sb_ = k.salloc(2); sn_ = k.salloc(2); sq_ = k.salloc(2)
        lab = k.newlabel("spin"); out_ = k.newlabel("spun")
        k.I("s_or_b32", s(st0), "s2", s(swave))
        k.I("s_cmp_lg_u32", s(st0), 0)
        k.I("s_cbranch_scc1", out_)
        k.I("s_mov_b32", s(st0), hex(STAMP_OFF + ka * 256 * 64 + ja * 8))
        k.I("s_load_dwordx2", sr(sa_, 2), sr(pWS, 2), s(st0))
        k.I("s_mov_b32", s(st1), hex(STAMP_OFF + max(kb, 0) * 256 * 64 + jb * 8))
        if kb >= 0: k.I("s_load_dwordx2", sr(sb_, 2), sr(pWS, 2), s(st1))
        else: k.I("s_memrealtime", sr(sb_, 2))
        k.I("s_memrealtime", sr(sn_, 2))
        k.I("s_waitcnt", "lgkmcnt(0)")
        k.I("s_sub_u32", s(sa_), s(sb_), s(sa_))
        k.I("s_min_u32", s(sa_), s(sa_), 20000)
        k.I("s_add_u32", s(sn_), s(sn_), s(sa_))
        k.L(lab)
        k.I("s_memrealtime", sr(sq_, 2))
        k.I("s_waitcnt", "lgkmcnt(0)")
        k.I("s_sub_u32", s(sq_), s(sq_), s(sn_))
        k.I("s_cmp_lt_i32", s(sq_), 0)
        k.I("s_cbranch_scc1", lab)
        k.L(out_)
    k.L(R["done"])
    k.I("s_endpgm")
    k.lds = lds; k.threads = 512; k.grid = 224
    return k

def rest(Stamper):
    if os.environ.get("MERGE56", "0") == "1":
        return [gen_k2(Stamper), gen_k3(Stamper), gen_k4(Stamper), gen_k56(Stamper)]
    return [gen_k2(Stamper), gen_k3(Stamper), gen_k4(Stamper), gen_k5(Stamper), gen_k6(Stamper)]
```

```python
import sys, os
sys.path.insert(0, os.path.dirname(__file__))
from asmlib import *
from layout import *

NAME = "sequential_preLN__sliding_block__mixer_gmlp__prompt"
STAMPS = os.environ.get("GEN_STAMPS", "0") == "1"
WS_SIZE = 0x10000000

def srd(k, dst, base, size):
    k.I("s_mov_b32", s(dst), s(base))
    k.I("s_and_b32", s(dst + 1), s(base + 1), "0xffff")
    k.I("s_mov_b32", s(dst + 2), hex(size) if isinstance(size, int) else size)
    k.I("s_mov_b32", s(dst + 3), "0x20000")

class Stamper:
    def __init__(self, k, kidx, sWS, swave):
        self.k, self.kidx, self.sWS, self.swave = k, kidx, sWS, swave
        if STAMPS:
            self.st = k.salloc(2); self.vt = k.valloc(2); self.vo = k.valloc(1); self.ex = k.salloc(2)
    def tick(self, i):
        if not STAMPS: return
        if not hasattr(self, "tk"): self.tk = self.k.salloc(32, 4)
        self.k.I("s_memtime", sr(self.tk + 2 * i, 2))
        self.nt = max(getattr(self, "nt", 0), i + 1)
    def dump_ticks(self):
        if not STAMPS or not hasattr(self, "tk"): return
        k = self.k
        k.I("s_waitcnt", "lgkmcnt(0)")
        k.lgq = []
        k.I("s_lshl_b32", s(self.ex), "s2", 7)
        k.I("s_add_u32", s(self.ex), s(self.ex), hex(TICK_OFF + self.kidx * 256 * 128))
        k.I("s_cmp_lg_u32", s(self.swave), int(os.environ.get("TICKWAVE", "0")))
        k.I("s_cselect_b32", s(self.ex), "0x7ffffff0", s(self.ex))
        k.I("s_mov_b64", sr(self.st, 2), "exec")
        k.I("s_mov_b64", "exec", 1)
        k.I("v_mov_b32", v(self.vo), 0)
        for i in range(16):
            k.I("v_mov_b32", v(self.vt), s(self.tk + 2 * i))
            k.I("v_mov_b32", v(self.vt + 1), s(self.tk + 2 * i + 1))
            k.I("buffer_store_dwordx2", vr(self.vt, 2), v(self.vo), sr(self.sWS, 4), s(self.ex), mods=f"offen offset:{8 * i}")
            k.I("s_nop", 1)
        k.I("s_mov_b64", "exec", sr(self.st, 2))
    def stamp(self, j):
        if not STAMPS: return
        k = self.k
        k.I("s_memrealtime", sr(self.st, 2))
        k.I("s_lshl_b32", s(self.ex), "s2", 6)
        k.I("s_add_u32", s(self.ex), s(self.ex), hex(STAMP_OFF + self.kidx * 256 * 64 + j * 8))
        k.I("s_cmp_lg_u32", s(self.swave), 0)
        k.I("s_cselect_b32", s(self.ex), "0x7ffffff0", s(self.ex))
        k.I("s_waitcnt", "lgkmcnt(0)")
        k.lgq = []
        k.I("v_mov_b32", v(self.vt), s(self.st))
        k.I("v_mov_b32", v(self.vt + 1), s(self.st + 1))
        k.I("v_mov_b32", v(self.vo), 0)
        k.I("s_mov_b64", sr(self.st, 2), "exec")
        k.I("s_mov_b64", "exec", 1)
        k.I("buffer_store_dwordx2", vr(self.vt, 2), v(self.vo), sr(self.sWS, 4), s(self.ex), mods="offen")
        k.I("s_mov_b64", "exec", sr(self.st, 2))
        k.vmq.append("stamp")

class DbgStamper:
    LAST = {0: 3, 1: 2, 2: 3, 3: 5, 4: 3, 5: 3}
    def __init__(self, k, kidx, sWS, swave):
        self.k, self.kidx, self.swave = k, kidx, swave
        self.st = k.salloc(2); self.vt = k.valloc(2); self.vo = k.valloc(1); self.ex = k.salloc(2)
        self.pd = k.salloc(2); self.sD = k.salloc(4)
        k.I("s_memrealtime", sr(self.st, 2))
        k.I("s_load_dwordx2", sr(self.pd, 2), "s[0:1]", 72)
        self.t0 = k.salloc(2)
        k.I("s_waitcnt", "lgkmcnt(0)")
        k.I("s_mov_b32", s(self.t0), s(self.st))
        k.I("s_sub_u32", s(self.pd), s(self.pd), 512 * kidx)
        k.I("s_subb_u32", s(self.pd + 1), s(self.pd + 1), 0)
        srd(k, self.sD, self.pd, 512 * 5 + 256)
    def tick(self, i): pass
    def dump_ticks(self): pass
    def stamp(self, j):
        if j != self.LAST[self.kidx]: return
        k = self.k
        k.I("s_memrealtime", sr(self.st, 2))
        k.I("s_or_b32", s(self.ex), "s2", s(self.swave))
        k.I("s_cmp_lg_u32", s(self.ex), 0)
        k.I("s_cselect_b32", s(self.ex), "0x7ffffff0", 8 * self.kidx)
        k.I("s_waitcnt", "lgkmcnt(0)")
        k.lgq = []
        k.I("v_mov_b32", v(self.vt), s(self.t0))
        k.I("v_mov_b32", v(self.vt + 1), s(self.st))
        k.I("v_mov_b32", v(self.vo), 0)
        k.I("s_mov_b64", sr(self.st, 2), "exec")
        k.I("s_mov_b64", "exec", 1)
        for tg in range(6):
            k.I("buffer_store_dwordx2", vr(self.vt, 2), v(self.vo), sr(self.sD, 4), s(self.ex), mods=f"offen offset:{512 * tg}")
            k.vmq.append("stamp")
        k.I("s_mov_b64", "exec", sr(self.st, 2))

if os.environ.get("GEN_DBG"): Stamper = DbgStamper

def gen_k1():
    k = Kernel("k1_qkv_kernel")
    k.snext = 4; k.vnext = 1
    WREG = 0; WCH = 12288; XRING = 7 * WCH; XSL = 4096; NXS = 4
    TBL = XRING + 4 * NXS * XSL
    CWT = TBL; RT = TBL + 512; NMT = TBL + 1024; SQT = TBL + 1536
    ONES = TBL + 2048
    lds = ONES + 1024
    done = k.newlabel("done")
    k.I("s_cmp_ge_u32", "s2", 256)
    k.I("s_cbranch_scc1", done)
    pX = k.salloc(4); pWS = k.salloc(2)
    k.I("s_load_dwordx4", sr(pX, 4), "s[0:1]", 0)
    k.I("s_load_dwordx2", sr(pWS, 2), "s[0:1]", 80)
    sX = k.salloc(4); sW = k.salloc(4); sWS = k.salloc(4)
    swave = k.salloc(); srb = k.salloc(); shd = k.salloc(); st0 = k.salloc(); st1 = k.salloc(); soff = k.salloc()
    lane = k.valloc(); l31 = k.valloc(); hh = k.valloc(); t0 = k.valloc(); t1 = k.valloc(); t2 = k.valloc()
    k.I("v_lshrrev_b32", v(t0), 6, "v0")
    k.I("v_and_b32", v(lane), 63, "v0")
    k.I("v_readfirstlane_b32", s(swave), v(t0))
    k.I("s_and_b32", s(st0), "s2", 7)
    k.I("s_lshr_b32", s(st1), "s2", 3)
    k.I("s_and_b32", s(shd), s(st1), 15)
    k.I("s_lshr_b32", s(st1), s(st1), 4)
    k.I("s_lshl_b32", s(srb), s(st0), 1)
    k.I("s_add_u32", s(srb), s(srb), s(st1))
    stp = Stamper(k, 0, sWS, swave)
    sw3 = k.salloc()
    k.I("s_and_b32", s(sw3), s(swave), 3)
    l15 = k.valloc()
    k.I("v_and_b32", v(l15), 15, v(lane))
    k.I("s_waitcnt", "lgkmcnt(0)")
    srd(k, sW, pX + 2, 448 * 2688)
    srd(k, sX, pX, 2048 * 896)
    comp = k.newlabel("compute")
    k.I("s_cmp_lt_u32", s(swave), 4)
    k.I("s_cbranch_scc1", comp)
    vsave = k.vnext
    vXo = k.valloc(4)
    k.I("v_lshrrev_b32", v(t0), 3, v(lane))
    k.I("v_mul_u32_u24", v(t0), 896, v(t0))
    k.I("v_lshrrev_b32", v(t1), 4, v(lane))
    k.I("v_and_b32", v(t2), 7, v(lane))
    k.I("v_xor_b32", v(t1), v(t1), v(t2))
    k.I("v_lshl_add_u32", v(vXo), v(t1), 4, v(t0))
    k.I("v_xor_b32", v(t1), 4, v(t1))
    k.I("v_lshl_add_u32", v(vXo + 1), v(t1), 4, v(t0))
    k.I("v_add_u32", v(vXo + 1), 8 * 896, v(vXo + 1))
    k.I("v_add_u32", v(vXo + 2), 16 * 896, v(vXo))
    k.I("v_add_u32", v(vXo + 3), 16 * 896, v(vXo + 1))
    vWo = k.valloc(3)
    for b in range(3):
        k.I("v_add_u32", v(t0), 64 * b, v(lane))
        k.I("v_mul_u32_u24", v(t1), 171, v(t0))
        k.I("v_lshrrev_b32", v(t1), 11, v(t1))
        k.I("v_mul_u32_u24", v(t2), 12, v(t1))
        k.I("v_sub_u32", v(t0), v(t0), v(t2))
        k.I("v_mul_u32_u24", v(vWo + b), 2688, v(t1))
        k.I("v_lshrrev_b32", v(t2), 2, v(t0))
        k.I("v_mul_u32_u24", v(t2), 896, v(t2))
        k.I("v_and_b32", v(t0), 3, v(t0))
        k.I("v_lshl_add_u32", v(t2), v(t0), 4, v(t2))
        k.I("v_add_u32", v(vWo + b), v(vWo + b), v(t2))
        if os.environ.get("EXP_WCONT"):
            k.I("v_lshlrev_b32", v(vWo + b), 4, v(lane))
            k.I("v_add_u32", v(vWo + b), 1024 * b, v(vWo + b))
    sWb = k.salloc(); sm0 = k.salloc(); sXb = k.salloc(); sm0x = k.salloc()
    k.I("s_mul_i32", s(sWb), s(shd), 56)
    k.I("s_mul_i32", s(st0), s(sw3), 16 * 2688)
    k.I("s_add_u32", s(sWb), s(sWb), s(st0))
    k.I("s_mul_i32", s(sm0), s(sw3), 3 * 1024)
    k.I("s_lshl_b32", s(st0), s(srb), 7)
    k.I("s_lshl_b32", s(st1), s(sw3), 5)
    k.I("s_add_u32", s(st0), s(st0), s(st1))
    k.I("s_mul_i32", s(sXb), s(st0), 896)
    k.I("s_mul_i32", s(sm0x), s(sw3), NXS * XSL)
    k.I("s_add_u32", s(sm0x), s(sm0x), XRING)
    def wdma(c, b):
        if os.environ.get("EXP_NODMA") and c >= 3: return
        k.I("s_add_u32", s(soff), s(sWb), hex(c * 64 * 2688))
        k.I("s_add_u32", "m0", s(sm0), hex(WREG + c * WCH + b * 1024))
        k.vm(("W", c), "buffer_load_dwordx4", v(vWo + b), sr(sW, 4), s(soff), mods="offen lds")
    def xdma(c, j):
        if os.environ.get("EXP_NODMA") and c >= 2: return
        k.I("s_add_u32", s(soff), s(sXb), hex(c * 128))
        k.I("s_add_u32", "m0", s(sm0x), hex((c % NXS) * XSL + j * 1024))
        k.vm(("X", c), "buffer_load_dwordx4", v(vXo + j), sr(sX, 4), s(soff), mods="offen lds")
    for c in range(2):
        for b in range(3): wdma(c, b)
        for j in range(4): xdma(c, j)
    for b in range(3): wdma(2, b)
    LT = os.environ.get("TICKWAVE", "0") != "0"
    if LT: stp.tick(0)
    for c in range(7):
        k.wait_vm([("W", c), ("X", c)])
        if LT and c < 5: stp.tick(1 + 3 * c)
        k.I("s_barrier")
        if LT and c < 5: stp.tick(2 + 3 * c)
        if c + 2 <= 6:
            for j in range(4): xdma(c + 2, j)
        if c + 3 <= 6:
            for b in range(3): wdma(c + 3, b)
        if c == 4 and os.environ.get("PFK1", "0") == "g":
            import kernels2
            kernels2.mall_prefetch(k, 16, 448 * 896, 0, 4, 4, sw3, lane, st0, t0, t1)
            kernels2.mall_prefetch(k, 32, 448 * 3584, 0, 13, 4, sw3, lane, st0, t0, t1)
        if c == 4 and os.environ.get("PFK1", "0") == "g2":
            import kernels2
            kernels2.mall_prefetch(k, 16, 448 * 896, 0, 4, 4, sw3, lane, st0, t0, t1)
            kernels2.mall_prefetch(k, 32, 448 * 3584, 0, 13, 4, sw3, lane, st0, t0, t1)
            kernels2.mall_prefetch(k, 40, 2048 * 4096, 0, 64, 4, sw3, lane, st0, t0, t1)
        if c == 4 and os.environ.get("PFK1", "0") == "1":
            import kernels2
            vTp = k.valloc()
            k.I("s_lshr_b32", s(st0), "s2", 3)
            k.I("s_lshl_b32", s(st0), s(st0), 8)
            k.I("v_subrev_u32", v(vTp), 256, "v0")
            k.I("v_add_u32", v(vTp), s(st0), v(vTp))
            k.I("v_lshlrev_b32", v(vTp), 7, v(vTp))
            kernels2.l2_prefetch(k, 16, 448 * 896, vTp, 8192, st0)
            kernels2.l2_prefetch(k, 32, 448 * 3584, vTp, 8192, st0)
        if LT and c < 5: stp.tick(3 + 3 * c)
    vTp = k.valloc()
    k.I("s_lshr_b32", s(st0), "s2", 3)
    k.I("s_lshl_b32", s(st0), s(st0), 8)
    k.I("v_subrev_u32", v(vTp), 256, "v0")
    k.I("v_add_u32", v(vTp), s(st0), v(vTp))
    k.I("v_lshlrev_b32", v(vTp), 7, v(vTp))
    import kernels2
    k.I("s_barrier")
    if LT:
        srd(k, sWS, pWS, WS_SIZE)
        stp.dump_ticks()
    k.I("s_endpgm")
    k.L(comp)
    k.vnext = vsave; k.vmq = []; k.lgq = []
    vpf = k.valloc(); vpd = k.valloc(4)
    k.I("s_lshr_b32", s(st0), "s2", 3)
    k.I("s_lshl_b32", s(st0), s(st0), 8)
    k.I("v_add_u32", v(vpf), s(st0), "v0")
    k.I("v_lshlrev_b32", v(vpf), 7, v(vpf))
    if not os.environ.get("EXP_NOPF"):
        k.I("buffer_load_dword", v(vpd), v(vpf), sr(sW, 4), 0, mods="offen")
        k.I("v_add_u32", v(vpf), 8192 * 128, v(vpf))
        k.I("buffer_load_dword", v(vpd + 1), v(vpf), sr(sW, 4), 0, mods="offen")
        k.I("s_and_b32", s(st0), "s2", 7)
        k.I("s_mul_i32", s(st0), s(st0), 256 * 896)
        k.I("v_subrev_u32", v(vpf), 9408 * 128, v(vpf))
        k.I("v_mov_b32", v(t0), hex(256 * 896))
        k.I("v_cmp_lt_u32", "vcc", v(vpf), v(t0))
        k.I("v_mov_b32", v(t1), "0x7fffff00")
        k.I("v_cndmask_b32", v(vpf), v(t1), v(vpf), "vcc")
        k.I("buffer_load_dword", v(vpd + 2), v(vpf), sr(sX, 4), s(st0), mods="offen")
    sidx1 = k.salloc()
    k.I("s_lshr_b32", s(sidx1), "s2", 3)
    import kernels2
    kernels2.code_prefetch(k, "k2_attn_kernel", sidx1, st0)
    if os.environ.get("PF2", "0") == "1":
        pp = k.salloc(2); sP = k.salloc(4); vT = k.valloc(); vd = k.valloc(8)
        k.I("s_lshr_b32", s(st0), "s2", 3)
        k.I("s_lshl_b32", s(st0), s(st0), 8)
        k.I("v_add_u32", v(vT), s(st0), "v0")
        k.I("v_lshlrev_b32", v(vT), 7, v(vT))
        k.I("s_getpc_b64", sr(pp, 2))
        k.I("s_and_b32", s(pp), s(pp), "0xffffff00")
        srd(k, sP, pp, "CODE_BYTES-4096")
        k.I("buffer_load_dword", v(vd), v(vT), sr(sP, 4), 0, mods="offen")
        for (ko, nbytes, n) in ((16, 448 * 896, 1), (32, 448 * 3584, 2)):
            k.I("s_load_dwordx2", sr(pp, 2), "s[0:1]", ko)
            k.I("s_waitcnt", "lgkmcnt(0)")
            srd(k, sP, pp, nbytes)
            for i in range(n):
                k.I("s_mov_b32", s(st0), hex(i * 8192 * 128))
                k.I("buffer_load_dword", v(vd + 1 + i + (0 if ko == 16 else 1)), v(vT), sr(sP, 4), s(st0), mods="offen")
        vG = k.valloc()
        k.I("s_lshl_b32", s(st0), "s2", 8)
        k.I("v_add_u32", v(vG), s(st0), "v0")
        k.I("v_lshlrev_b32", v(vG), 7, v(vG))
        for n_, (ko, nbytes) in enumerate(((40, 2048 * 4096), (56, 896 * 896))):
            k.I("s_load_dwordx2", sr(pp, 2), "s[0:1]", ko)
            k.I("s_waitcnt", "lgkmcnt(0)")
            srd(k, sP, pp, nbytes)
            k.I("buffer_load_dword", v(vd + 5 + n_), v(vG), sr(sP, 4), 0, mods="offen")
        srd(k, sP, pWS, 0x1C00000)
        k.I("v_lshlrev_b32", v(t0), 9, v(vT))
        k.I("buffer_load_dword", v(vd + 4), v(t0), sr(sP, 4), 0, mods="offen")
    sm0x = k.salloc()
    k.I("s_mul_i32", s(sm0x), s(swave), NXS * XSL)
    k.I("s_add_u32", s(sm0x), s(sm0x), XRING)
    aX = k.valloc(4); vW = k.valloc(); aG = k.valloc(4); vWj = k.valloc()
    gg = k.valloc()
    k.I("v_and_b32", v(l31), 31, "v0")
    k.I("v_bfe_u32", v(hh), "v0", 5, 1)
    k.I("v_lshrrev_b32", v(gg), 4, v(lane))
    k.I("v_bfe_u32", v(t0), v(l31), 1, 3)
    for j in range(4):
        k.I("v_add_u32", v(t1), 2 * j, v(hh))
        k.I("v_xor_b32", v(t1), v(t1), v(t0))
        k.I("v_lshlrev_b32", v(t1), 4, v(t1))
        k.I("v_lshl_add_u32", v(aX + j), v(l31), 7, v(t1))
        k.I("v_add_u32", v(aX + j), s(sm0x), v(aX + j))
    for rg in range(2):
        k.I("v_add_u32", v(t0), 16 * rg, v(l15))
        k.I("v_bfe_u32", v(t1), v(t0), 1, 3)
        for kk in range(2):
            k.I("v_add_u32", v(t2), 4 * kk, v(gg))
            k.I("v_xor_b32", v(t2), v(t2), v(t1))
            k.I("v_lshlrev_b32", v(t2), 4, v(t2))
            k.I("v_lshl_add_u32", v(aG + 2 * rg + kk), v(t0), 7, v(t2))
            k.I("v_add_u32", v(aG + 2 * rg + kk), s(sm0x), v(aG + 2 * rg + kk))
    k.I("v_bfe_u32", v(t0), "v0", 2, 2)
    k.I("v_lshl_add_u32", v(t1), v(hh), 3, v(t0))
    k.I("v_mul_u32_u24", v(t1), 192, v(t1))
    k.I("v_bfe_u32", v(t2), "v0", 4, 1)
    k.I("v_lshl_add_u32", v(t1), v(t2), 5, v(t1))
    k.I("v_and_b32", v(t2), 3, "v0")
    k.I("v_lshl_add_u32", v(vW), v(t2), 3, v(t1))
    k.I("v_lshl_add_u32", v(t0), v(gg), 3, v(t0))
    k.I("v_mul_u32_u24", v(t0), 192, v(t0))
    k.I("v_lshl_add_u32", v(vWj), v(t2), 3, v(t0))
    k.I("s_lshr_b32", s(st0), s(swave), 1)
    k.I("s_mul_i32", s(st0), s(st0), 32 * 192)
    k.I("s_and_b32", s(st1), s(swave), 1)
    k.I("s_mul_i32", s(st1), s(st1), 96)
    k.I("s_add_u32", s(st0), s(st0), s(st1))
    k.I("v_add_u32", v(vWj), s(st0), v(vWj))
    vW2 = k.valloc(); vWj2 = k.valloc()
    k.I("v_add_u32", v(vW2), 4 * WCH, v(vW))
    k.I("v_add_u32", v(vWj2), 4 * WCH, v(vWj))
    ones = k.valloc(4)
    vWq = k.valloc(); vInc = k.valloc()
    k.I("v_and_b32", v(t0), 19, v(lane))
    k.I("v_cmp_eq_u32", "vcc", 19, v(t0))
    k.I("v_mov_b32", v(t1), ONES)
    k.I("v_cndmask_b32", v(vWq), v(vW), v(t1), "vcc")
    k.I("v_mov_b32", v(t1), 16 * 192)
    k.I("v_cndmask_b32", v(vInc), v(t1), 0, "vcc")
    k.I("v_lshlrev_b32", v(t0), 4, v(lane))
    k.I("v_add_u32", v(t0), ONES, v(t0))
    for i in range(4): k.I("v_mov_b32", v(ones + i), "0x3f803f80")
    k.lg("z", "ds_write_b128", v(t0), vr(ones, 4))
    zz = k.valloc(2); vtb = k.valloc()
    k.I("v_mov_b32", v(zz), 0); k.I("v_mov_b32", v(zz + 1), 0)
    k.I("v_lshlrev_b32", v(vtb), 3, v(lane))
    k.I("v_add_u32", v(vtb), CWT, v(vtb))
    k.lg("z", "ds_write_b64", v(vtb), vr(zz, 2))
    accq = k.valloc(16, 4); acck = k.valloc(16, 4); accv = k.valloc(16, 4)
    NB = 3
    cacc = [k.valloc(4) for _ in range(3)]
    gacc = [k.valloc(4) for _ in range(2)]
    vmark = k.vnext
    xf = [k.valloc(4) for _ in range(NB)]
    wf = [[k.valloc(4) for _ in range(3)] for _ in range(NB)]
    xs = [k.valloc(4) for _ in range(4)]
    wf2 = [k.valloc(4) for _ in range(3)]
    def read_list(ks):
        c, j = ks // 4, ks % 4
        b = ks % NB
        out = [lambda: k.lg(("f", ks), "ds_read_b128", vr(xf[b], 4), v(aX + j), mods=f"offset:{(c % NXS) * XSL}")]
        for beta in range(2):
            out.append(lambda beta=beta: k.lg(("f", ks), "ds_read_b64_tr_b16", vr(wf[b][0] + 2 * beta, 2), v(vWq), mods=f"offset:{beta * 4 * 192}"))
        out.append(lambda: k.I("v_add_u32", v(vWq), v(vInc), v(vWq)))
        for sg in range(1, 3):
            for beta in range(2):
                o = (c % 4) * WCH + (16 * j + 4 * beta) * 192 + 64 * sg
                base = vW if c < 4 else vW2
                out.append(lambda o=o, sg=sg, beta=beta, base=base: k.lg(("f", ks), "ds_read_b64_tr_b16", vr(wf[b][sg] + 2 * beta, 2), v(base), mods=f"offset:{o}"))
        return out
    def aux_reads(c):
        out = []
        for j in range(4):
            out.append(lambda j=j: k.lg(("g", c), "ds_read_b128", vr(xs[j], 4), v(aG + j), mods=f"offset:{(c % NXS) * XSL}"))
        for nt in range(3):
            for beta in range(2):
                o = (c % 4) * WCH + (4 * beta) * 192 + 32 * nt
                base = vWj if c < 4 else vWj2
                out.append(lambda o=o, nt=nt, beta=beta, base=base: k.lg(("cw", c), "ds_read_b64_tr_b16", vr(wf2[nt] + 2 * beta, 2), v(base), mods=f"offset:{o}"))
        return out
    k.I("s_waitcnt", "lgkmcnt(0)")
    srd(k, sWS, pWS, WS_SIZE)
    stp.stamp(0)
    k.wait_lg("z")
    k.I("s_barrier")
    stp.stamp(1)
    if os.environ.get("TICKWAVE", "0") != "0": stp.tick = lambda i: None
    stp.tick(0)
    for f in read_list(0): f()
    for f in read_list(1): f()
    for ks in range(28):
        c, j = ks // 4, ks % 4
        b = ks % NB
        fill = []
        if ks + 2 < 28:
            fill += read_list(ks + 2)
        vm = []
        aux = []
        if j == 0: aux = aux_reads(c)[:4]
        if j == 1: aux = aux_reads(c)[4:]
        if os.environ.get("EXP_NOCOMP"):
            k.lgq = []
            if j == 1 and c < 6:
                k.I("s_barrier"); stp.tick(1 + c)
            continue
        k.wait_lg(("f", ks))
        mf = [
            lambda: k.I("v_mfma_f32_32x32x16_bf16", vr(accq, 16), vr(wf[b][0], 4), vr(xf[b], 4), 0 if ks == 0 else vr(accq, 16)),
            lambda: k.I("v_mfma_f32_32x32x16_bf16", vr(acck, 16), vr(wf[b][1], 4), vr(xf[b], 4), 0 if ks == 0 else vr(acck, 16)),
            lambda: k.I("v_mfma_f32_32x32x16_bf16", vr(accv, 16), vr(xf[b], 4), vr(wf[b][2], 4), 0 if ks == 0 else vr(accv, 16)),
        ]
        fl = fill + aux + vm
        n = len(fl)
        cuts = [0, (n + 2) // 3, (2 * n + 2) // 3, n]
        for i in range(3):
            mf[i]()
            for f in fl[cuts[i]:cuts[i + 1]]: f()
        if j == 2:
            k.wait_lg(("g", c))
            for jj in range(4):
                k.I("v_mfma_f32_16x16x32_bf16", vr(gacc[jj >> 1], 4), vr(xs[jj], 4), vr(xs[jj], 4), 0 if (c == 0 and (jj & 1) == 0) else vr(gacc[jj >> 1], 4))
        if j == 3:
            k.wait_lg(("cw", c))
            for nt in range(3):
                k.I("v_mfma_f32_16x16x32_bf16", vr(cacc[nt], 4), vr(ones, 4), vr(wf2[nt], 4), 0 if c == 0 else vr(cacc[nt], 4))
        if j == 1 and c < 6:
            k.I("s_barrier")
            stp.tick(1 + c)
    stp.tick(13)
    stp.stamp(2)
    k.vnext = vmark
    m1 = k.salloc(2); m2 = k.salloc(2); m3 = k.salloc(2)
    k.I("v_and_b32", v(t0), 3, v(lane))
    k.I("v_cmp_eq_u32", sr(m1, 2), 1, v(t0))
    k.I("v_cmp_eq_u32", sr(m2, 2), 2, v(t0))
    k.I("v_cmp_eq_u32", sr(m3, 2), 3, v(t0))
    vtl = k.valloc()
    k.I("v_lshlrev_b32", v(vtl), 2, v(l15))
    k.I("v_add_u32", v(vtl), TBL, v(vtl))
    k.I("s_and_b32", s(st1), s(swave), 1)
    k.I("s_mul_i32", s(st1), s(st1), 192)
    k.I("v_add_u32", v(t1), s(st1), v(vtl))
    k.I("s_mov_b32", "exec_lo", "0xffff")
    k.I("s_mov_b32", "exec_hi", 0)
    for nt in range(3):
        k.I("ds_add_f32", v(t1), v(cacc[nt]), mods=f"offset:{64 * nt}")
    k.I("s_mov_b64", "exec", -1)
    for rg in range(2):
        g_ = gacc[rg]
        k.I("v_cndmask_b32", v(g_), v(g_), v(g_ + 1), sr(m1, 2))
        k.I("v_cndmask_b32", v(g_), v(g_), v(g_ + 2), sr(m2, 2))
        k.I("v_cndmask_b32", v(g_), v(g_), v(g_ + 3), sr(m3, 2))
    k.I("s_lshl_b32", s(st0), s(swave), 7)
    k.I("v_add_u32", v(t0), s(st0), v(vtl))
    k.I("s_mov_b32", "exec_lo", "0x00f0000f")
    k.I("s_mov_b32", "exec_hi", "0xf0000f00")
    for rg in range(2):
        k.I("ds_write_b32", v(t0), v(gacc[rg]), mods=f"offset:{SQT - TBL + 64 * rg}")
    k.I("s_mov_b64", "exec", -1)
    sq = k.valloc(2); rl = k.valloc(2); nml = k.valloc(2); cwv = k.valloc(2)
    cwq = k.valloc(16, 4); cwk = k.valloc(16, 4); rv = k.valloc(16, 4); nv = k.valloc(16, 4)
    ta = k.valloc(); tb = k.valloc(); tc = k.valloc()
    k.I("v_lshlrev_b32", v(ta), 2, v(l31))
    k.I("s_add_u32", s(st0), s(st0), TBL)
    k.I("v_add_u32", v(ta), s(st0), v(ta))
    k.I("v_mov_b32", v(nml), v(accq + 12))
    k.I("v_mov_b32", v(nml + 1), v(accq + 12))
    k.I("v_permlane32_swap_b32", v(nml), v(nml + 1))
    k.I("v_mul_f32", v(nml), hex(f32(-1.0 / 448)), v(nml + 1))
    k.I("s_waitcnt", "lgkmcnt(0)")
    k.I("ds_read_b32", v(sq), v(ta), mods=f"offset:{SQT - TBL}")
    k.I("ds_write_b32", v(ta), v(nml), mods=f"offset:{NMT - TBL}")
    k.I("s_barrier")
    k.I("v_lshlrev_b32", v(tb), 4, v(hh))
    k.I("v_add_u32", v(tb), TBL, v(tb))
    for q in range(4):
        k.I("ds_read_b128", vr(cwq + 4 * q, 4), v(tb), mods=f"offset:{CWT - TBL + 32 * q}")
        k.I("ds_read_b128", vr(cwk + 4 * q, 4), v(tb), mods=f"offset:{CWT - TBL + 128 + 32 * q}")
    k.I("v_lshlrev_b32", v(tc), 2, v(l31))
    k.I("v_add_u32", v(tc), TBL, v(tc))
    k.I("ds_read_b32", v(cwv), v(tc), mods=f"offset:{CWT - TBL + 256}")
    k.I("s_waitcnt", "lgkmcnt(9)")
    k.I("v_mul_f32", v(sq), hex(f32(1.0 / 448)), v(sq))
    k.I("v_fma_f32", v(sq), f"-{v(nml)}", v(nml), v(sq))
    k.I("v_max_f32", v(sq), 0, v(sq))
    k.I("v_add_f32", v(sq), hex(f32(1e-5)), v(sq))
    k.I("v_rsq_f32", v(rl), v(sq))
    k.I("s_lshl_b32", s(st0), s(swave), 7)
    k.I("v_add_u32", v(tb), s(st0), v(tb))
    k.I("ds_write_b32", v(ta), v(rl), mods=f"offset:{RT - TBL}")
    k.I("s_waitcnt", "lgkmcnt(0)")
    for q in range(4):
        k.I("ds_read_b128", vr(rv + 4 * q, 4), v(tb), mods=f"offset:{RT - TBL + 32 * q}")
        k.I("ds_read_b128", vr(nv + 4 * q, 4), v(tb), mods=f"offset:{NMT - TBL + 32 * q}")
    k.lgq = []
    vq = k.valloc(); vv_ = k.valloc()
    k.I("v_lshrrev_b32", v(t0), 4, v(l31))
    k.I("v_lshlrev_b32", v(vq), 10, v(t0))
    k.I("v_lshl_add_u32", v(vq), v(l15), 4, v(vq))
    k.I("v_lshl_add_u32", v(vq), v(hh), 9, v(vq))
    k.I("v_lshlrev_b32", v(vv_), 9, v(t0))
    k.I("v_lshl_add_u32", v(vv_), v(l15), 3, v(vv_))
    k.I("v_lshl_add_u32", v(vv_), v(hh), 7, v(vv_))
    sb = k.salloc()
    k.I("s_lshl_b32", s(sb), s(shd), 17)
    k.I("s_lshl_b32", s(st0), s(srb), 13)
    k.I("s_add_u32", s(sb), s(sb), s(st0))
    k.I("s_lshl_b32", s(st0), s(swave), 11)
    k.I("s_add_u32", s(sb), s(sb), s(st0))
    k.I("v_cmp_eq_u32", "vcc", 0, v(hh))
    pk = k.valloc(8, 4)
    for (acc, cw, off) in ((accq, cwq, Q_OFF), (acck, cwk, K_OFF)):
        for j in range(8):
            k.I("v_pk_fma_f32", vr(acc + 2 * j, 2), vr(cw + 2 * j, 2), vr(nml, 2), vr(acc + 2 * j, 2), mods="op_sel_hi:[1,0,1]")
        for j in range(8):
            k.I("v_pk_mul_f32", vr(acc + 2 * j, 2), vr(acc + 2 * j, 2), vr(rl, 2), mods="op_sel_hi:[1,0]")
        for j in range(8):
            k.I("v_cvt_pk_bf16_f32", v(pk + j), v(acc + 2 * j), v(acc + 2 * j + 1))
        k.I("v_cndmask_b32", v(pk + 6), 0, v(pk + 6), "vcc")
        k.I("v_cndmask_b32", v(pk + 7), 0, v(pk + 7), "vcc")
        k.I("s_add_u32", s(soff), s(sb), hex(off))
        k.I("buffer_store_dwordx4", vr(pk, 4), v(vq), sr(sWS, 4), s(soff), mods="offen")
        k.I("buffer_store_dwordx4", vr(pk + 4, 4), v(vq), sr(sWS, 4), s(soff), mods="offen offset:256")
        pk = k.valloc(8, 4)
    k.I("s_waitcnt", "lgkmcnt(0)")
    for j in range(8):
        k.I("v_pk_fma_f32", vr(accv + 2 * j, 2), vr(nv + 2 * j, 2), vr(cwv, 2), vr(accv + 2 * j, 2), mods="op_sel_hi:[1,0,1]")
    for j in range(8):
        k.I("v_pk_mul_f32", vr(accv + 2 * j, 2), vr(accv + 2 * j, 2), vr(rv + 2 * j, 2))
    for j in range(8):
        k.I("v_cvt_pk_bf16_f32", v(pk + j), v(accv + 2 * j), v(accv + 2 * j + 1))
    k.I("v_mov_b32", v(t0), "0x3f803f80")
    k.I("v_cmp_eq_u32", "vcc", 28, v(l31))
    k.I("v_cndmask_b32", v(t0), 0, v(t0), "vcc")
    k.I("v_cmp_gt_u32", "vcc", 28, v(l31))
    for j in range(8):
        k.I("v_cndmask_b32", v(pk + j), v(t0), v(pk + j), "vcc")
    k.I("s_add_u32", s(soff), s(sb), hex(V_OFF))
    for q in range(4):
        k.I("buffer_store_dwordx2", vr(pk + 2 * q, 2), v(vv_), sr(sWS, 4), s(soff), mods=f"offen offset:{(q >> 1) * 1024 + (q & 1) * 256}")
    stp.tick(15)
    stp.stamp(3)
    stp.dump_ticks()
    k.L(done)
    k.I("s_endpgm")
    k.lds = lds; k.threads = 512; k.grid = 256
    return k

import struct
def f32(x): return struct.unpack("<I", struct.pack("<f", x))[0]

def assemble(kernels):
    out = []
    hdr = open("cdna_kernels/" + NAME + ".s.ref").read().split("\n")
    for line in hdr:
        if line.startswith("; Override") or line.startswith("; grid=") or line.startswith("; @launch"): continue
        if not line.startswith(";"): break
        out.append(line)
    for k in kernels:
        out.append(f"; @launch kernel={k.name} grid=({k.grid},1,1) block=({k.threads},1,1) lds={k.lds}")
    out.append('.amdgcn_target "amdgcn-amd-amdhsa--gfx950"')
    out.append(".text")
    for k in kernels:
        n = k.fix_hazards()
        out.append(f".globl {k.name}")
        out.append(".p2align 8")
        out.append(f".type {k.name},@function")
        out.append(f"{k.name}:")
        out.append(k.render())
        out.append(f"{k.name}_end:")
        print(f"{k.name}: {len(k.ins)} instrs, hazard pads {n}, vgpr {k.vmax} agpr {k.amax} sgpr {k.smax} lds {k.lds}", file=sys.stderr)
    out.append("code_end:")
    out.append(f".set CODE_BYTES, code_end - {kernels[0].name}")
    out.append('.section .rodata,"a"')
    for k in kernels:
        out.append(".p2align 6")
        out.append(k.descriptor())
    return "\n".join(out) + "\n"

if __name__ == "__main__":
    import kernels2 as k2
    ks = [gen_k1()] + k2.rest(Stamper)
    path = sys.argv[1] if len(sys.argv) > 1 else "cdna_kernels/" + NAME + ".s"
    open(path, "w").write(assemble(ks))
```

```python
import os, struct, math
from asmlib import *
from layout import *
WS_SIZE = 0x10000000
def f32(x): return struct.unpack("<I", struct.pack("<f", x))[0]

def srd(k, dst, base, size):
    k.I("s_mov_b32", s(dst), s(base))
    k.I("s_and_b32", s(dst + 1), s(base + 1), "0xffff")
    k.I("s_mov_b32", s(dst + 2), hex(size) if isinstance(size, int) else size)
    k.I("s_mov_b32", s(dst + 3), "0x20000")

def gen_k2(Stamper):
    k = Kernel("k2_attn_kernel")
    k.snext = 4; k.vnext = 1
    KREG = 0; VREG = 24576
    lds = 49152
    done = k.newlabel("done")
    k.I("s_cmp_ge_u32", "s2", 256)
    k.I("s_cbranch_scc1", done)
    pWS = k.salloc(2)
    k.I("s_load_dwordx2", sr(pWS, 2), "s[0:1]", 80)
    sWS = k.salloc(4)
    swave = k.salloc(); srb = k.salloc(); shd = k.salloc(); st0 = k.salloc(); st1 = k.salloc(); soff = k.salloc()
    lane = k.valloc(); t0 = k.valloc(); t1 = k.valloc(); l15 = k.valloc(); gg = k.valloc()
    k.I("v_lshrrev_b32", v(t0), 6, "v0")
    k.I("v_and_b32", v(lane), 63, "v0")
    k.I("v_readfirstlane_b32", s(swave), v(t0))
    k.I("s_and_b32", s(st0), "s2", 7)
    k.I("s_lshr_b32", s(st1), "s2", 3)
    k.I("s_and_b32", s(shd), s(st1), 15)
    k.I("s_lshr_b32", s(st1), s(st1), 4)
    k.I("s_lshl_b32", s(srb), s(st0), 1)
    k.I("s_add_u32", s(srb), s(srb), s(st1))
    stp = Stamper(k, 1, sWS, swave)
    v16 = k.valloc()
    k.I("v_lshlrev_b32", v(v16), 4, v(lane))
    sb = k.salloc(); sm = k.salloc(); s16q = k.salloc()
    k.I("s_lshl_b32", s(sb), s(shd), 17)
    k.I("s_lshl_b32", s(st0), s(srb), 13)
    k.I("s_add_u32", s(sb), s(sb), s(st0))
    k.I("s_mul_i32", s(sm), s(swave), 3072)
    k.I("s_lshl_b32", s(s16q), s(srb), 3)
    k.I("s_add_u32", s(s16q), s(s16q), s(swave))
    k.I("s_waitcnt", "lgkmcnt(0)")
    srd(k, sWS, pWS, WS_SIZE)
    qf = k.valloc(4)
    k.I("s_lshl_b32", s(st0), s(swave), 10)
    k.I("s_add_u32", s(st0), s(st0), s(sb))
    k.I("s_add_u32", s(soff), s(st0), hex(Q_OFF))
    k.vm("q", "buffer_load_dwordx4", vr(qf, 4), v(v16), sr(sWS, 4), s(soff), mods="offen")
    k.I("s_add_u32", s(st1), s(sb), s(sm))
    for (reg, off) in ((KREG, K_OFF), (VREG, V_OFF)):
        for i in range(3):
            k.I("s_add_u32", s(soff), s(st1), hex(off - 16384 + i * 1024))
            k.I("s_add_u32", "m0", s(sm), hex(reg + i * 1024))
            k.vm("kv", "buffer_load_dwordx4", v(v16), sr(sWS, 4), s(soff), mods="offen lds")
    sidx2 = k.salloc()
    k.I("s_lshr_b32", s(sidx2), "s2", 3)
    code_prefetch(k, "k3_wo_kernel", sidx2, st0)
    stp.stamp(0)
    k.I("v_and_b32", v(l15), 15, v(lane))
    k.I("v_lshrrev_b32", v(gg), 4, v(lane))
    M = [k.salloc(2) for _ in range(4)]
    k.I("v_lshlrev_b32", v(t0), 2, v(gg))
    for i in range(4):
        k.I("v_add_u32", v(t1), i, v(t0))
        k.I("v_cmp_gt_u32", sr(M[i], 2), v(t1), v(l15))
    aK = k.valloc(); aV = k.valloc()
    k.I("s_lshl_b32", s(st0), s(swave), 10)
    k.I("v_add_u32", v(aK), s(st0), v(v16))
    k.I("v_lshlrev_b32", v(aV), 3, v(lane))
    k.I("s_add_u32", s(st0), s(st0), VREG)
    k.I("v_add_u32", v(aV), s(st0), v(aV))
    S = k.valloc(68, 4)
    kf = [k.valloc(4) for _ in range(6)]
    neg = k.valloc()
    k.I("v_mov_b32", v(neg), hex(f32(-1e30)))
    k.wait_vm(["q", "kv"])
    k.I("s_barrier")
    stp.stamp(1)
    NKF = 6
    for j in range(min(NKF, 17)):
        k.lg(("k", j), "ds_read_b128", vr(kf[j % NKF], 4), v(aK), mods=f"offset:{j * 1024}")
    for j in range(17):
        k.wait_lg(("k", j))
        k.I("v_mfma_f32_16x16x32_bf16", vr(S + 4 * j, 4), vr(kf[j % NKF], 4), vr(qf, 4), 0)
        if j + NKF < 17:
            k.lg(("k", j + NKF), "ds_read_b128", vr(kf[j % NKF], 4), v(aK), mods=f"offset:{(j + NKF) * 1024}")
    vT = k.valloc()
    k.I("s_lshl_b32", s(st0), s(sidx2), 9)
    k.I("v_add_u32", v(vT), s(st0), "v0")
    k.I("v_lshlrev_b32", v(vT), 7, v(vT))
    if os.environ.get("PFK2", "1") == "1":
        l2_prefetch(k, 16, 448 * 896, vT, 16384, st0)
        if os.environ.get("PFWIN", "k2") == "k2": l2_prefetch(k, 32, 448 * 3584, vT, 16384, st0)
        k.lgq = []
    vf = k.valloc(9 * 2 * 4, 4)
    def vread(kp):
        for dt in range(2):
            for beta in range(2):
                tile = min(2 * kp + beta, 16)
                k.lg(("v", kp), "ds_read_b64", vr(vf + (kp * 2 + dt) * 4 + 2 * beta, 2), v(aV), mods=f"offset:{tile * 1024 + dt * 512}")
    for kp in range(3): vread(kp)
    for i in range(4):
        k.I("v_cndmask_b32", v(S + i), v(neg), v(S + i), sr(M[i], 2))
        k.I("v_cndmask_b32", v(S + 64 + i), v(S + 64 + i), v(neg), sr(M[i], 2))
    nofix = k.newlabel("nofix")
    k.I("s_cmp_ge_u32", s(s16q), 16)
    k.I("s_cbranch_scc1", nofix)
    k.I("s_sub_u32", s(st0), 16, s(s16q))
    for j in range(16):
        lab = k.newlabel("sk")
        k.I("s_cmp_le_u32", s(st0), j)
        k.I("s_cbranch_scc1", lab)
        for i in range(4): k.I("v_mov_b32", v(S + 4 * j + i), v(neg))
        k.L(lab)
    k.L(nofix)
    mx = k.valloc(4)
    for c in range(4):
        k.I("v_max3_f32", v(mx + c), v(S + c * 17), v(S + c * 17 + 1), v(S + c * 17 + 2))
    for r in range(7):
        for c in range(4):
            b = c * 17 + 3 + 2 * r
            k.I("v_max3_f32", v(mx + c), v(mx + c), v(S + b), v(S + b + 1))
    k.I("v_max3_f32", v(mx), v(mx), v(mx + 1), v(mx + 2))
    k.I("v_max_f32", v(mx), v(mx), v(mx + 3))
    for sw in ("v_permlane16_swap_b32", "v_permlane32_swap_b32"):
        k.I("v_mov_b32", v(mx + 1), v(mx))
        k.I(sw, v(mx), v(mx + 1))
        k.I("v_max_f32", v(mx), v(mx), v(mx + 1))
    cs = 28 ** -0.5 * math.log2(math.e)
    sc = k.salloc()
    k.I("s_mov_b32", s(sc), hex(f32(cs)))
    k.I("v_mul_f32", v(mx), hex(f32(-cs)), v(mx))
    for kp in range(3, 6): vread(kp)
    P = k.valloc(36, 4)
    k.I("v_mov_b32", v(P + 34), 0); k.I("v_mov_b32", v(P + 35), 0)
    O = [k.valloc(4), k.valloc(4)]
    def softmax_tile(j):
        for i in range(4): k.I("v_fma_f32", v(S + 4 * j + i), v(S + 4 * j + i), s(sc), v(mx))
        for i in range(4): k.I("v_exp_f32", v(S + 4 * j + i), v(S + 4 * j + i))
    def pack_tile(j):
        k.I("v_cvt_pk_bf16_f32", v(P + 2 * j), v(S + 4 * j), v(S + 4 * j + 1))
        k.I("v_cvt_pk_bf16_f32", v(P + 2 * j + 1), v(S + 4 * j + 2), v(S + 4 * j + 3))
    for kp in range(9):
        tiles = [2 * kp, 2 * kp + 1] if kp < 8 else [16]
        for j in tiles: softmax_tile(j)
        for j in tiles: pack_tile(j)
        if kp == 2:
            for q in range(6, 9): vread(q)
        if kp >= 1:
            q = kp - 1
            k.wait_lg(("v", q))
            for dt in range(2):
                k.I("v_mfma_f32_16x16x32_bf16", vr(O[dt], 4), vr(vf + (q * 2 + dt) * 4, 4), vr(P + 4 * q, 4), 0 if q == 0 else vr(O[dt], 4))
    k.wait_lg(("v", 8))
    for dt in range(2):
        k.I("v_mfma_f32_16x16x32_bf16", vr(O[dt], 4), vr(vf + (8 * 2 + dt) * 4, 4), vr(P + 32, 4), vr(O[dt], 4))
    la = k.valloc(); lb = k.valloc()
    k.I("v_mov_b32", v(la), v(O[1])); k.I("v_mov_b32", v(lb), v(O[1]))
    k.I("v_permlane32_swap_b32", v(la), v(lb))
    k.I("v_mov_b32", v(la), v(lb))
    k.I("v_permlane16_swap_b32", v(la), v(lb))
    k.I("v_rcp_f32", v(lb), v(lb))
    for dt in range(2):
        for i in range(4): k.I("v_mul_f32", v(O[dt] + i), v(O[dt] + i), v(lb))
    pk = k.valloc(4)
    for dt in range(2):
        k.I("v_cvt_pk_bf16_f32", v(pk + 2 * dt), v(O[dt]), v(O[dt] + 1))
        k.I("v_cvt_pk_bf16_f32", v(pk + 2 * dt + 1), v(O[dt] + 2), v(O[dt] + 3))
    k.I("v_cmp_gt_u32", "vcc", 3, v(gg))
    k.I("v_cndmask_b32", v(pk + 2), 0, v(pk + 2), "vcc")
    k.I("v_cndmask_b32", v(pk + 3), 0, v(pk + 3), "vcc")
    vo = k.valloc()
    k.I("s_and_b32", s(st0), s(swave), 1)
    k.I("s_lshl_b32", s(st0), s(st0), 8)
    k.I("v_lshlrev_b32", v(vo), 4, v(l15))
    k.I("v_add_u32", v(vo), s(st0), v(vo))
    k.I("v_lshrrev_b32", v(t0), 1, v(gg))
    k.I("v_lshl_add_u32", v(vo), v(t0), 9, v(vo))
    k.I("v_and_b32", v(t0), 1, v(gg))
    k.I("v_lshl_add_u32", v(vo), v(t0), 3, v(vo))
    k.I("s_lshl_b32", s(st0), s(srb), 2)
    k.I("s_lshr_b32", s(st1), s(swave), 1)
    k.I("s_add_u32", s(st0), s(st0), s(st1))
    k.I("s_lshl_b32", s(st0), s(st0), 15)
    k.I("s_lshl_b32", s(st1), s(shd), 11)
    k.I("s_add_u32", s(st0), s(st0), s(st1))
    k.I("s_add_u32", s(soff), s(st0), hex(O_OFF))
    for dt in range(2):
        k.I("buffer_store_dwordx2", vr(pk + 2 * dt, 2), v(vo), sr(sWS, 4), s(soff), mods=f"offen offset:{dt * 1024}")
    stp.stamp(2)
    k.L(done)
    k.I("s_endpgm")
    k.lds = lds; k.threads = 512; k.grid = 256
    return k


def code_prefetch(k, nxt, sidx, tmp_s, tid="v0"):
    if os.environ.get("PFC", "1") != "1": return
    pp = k.salloc(2); sP = k.salloc(4); vT = k.valloc(); vd = k.valloc()
    lab = k.newlabel("pc")
    k.I("s_getpc_b64", sr(pp, 2))
    k.L(lab)
    k.I("s_add_u32", s(pp), s(pp), f"{nxt}-{lab}")
    k.I("s_addc_u32", s(pp + 1), s(pp + 1), 0)
    srd(k, sP, pp, f"{nxt}_end-{nxt}")
    k.I("s_lshl_b32", s(tmp_s), s(sidx), 8)
    k.I("v_add_u32", v(vT), s(tmp_s), tid)
    k.I("v_lshlrev_b32", v(vT), 7, v(vT))
    k.vm("pfc", "buffer_load_dword", v(vd), v(vT), sr(sP, 4), 0, mods="offen")

def l2_prefetch(k, kernarg_off, nbytes, vT128, nthreads, tmp_s):
    if os.environ.get("PFT", "1") != "1": return
    pp = k.salloc(2); sP = k.salloc(4)
    k.I("s_load_dwordx2", sr(pp, 2), "s[0:1]", kernarg_off)
    k.I("s_waitcnt", "lgkmcnt(0)")
    srd(k, sP, pp, nbytes)
    n = -(-nbytes // (128 * nthreads))
    for i in range(n):
        vd = k.valloc()
        k.I("s_mov_b32", s(tmp_s), hex(i * nthreads * 128))
        k.vm("pft", "buffer_load_dword", v(vd), v(vT128), sr(sP, 4), s(tmp_s), mods="offen")

def mall_prefetch(k, kernarg_off, nbytes, first, per, nw, swave, lane, tmp_s, tv0, tv1, flag="PFM"):
    if os.environ.get(flag, "1") != "1": return
    pp = k.salloc(2); sP = k.salloc(4); vd = k.valloc()
    k.I("s_load_dwordx2", sr(pp, 2), "s[0:1]", kernarg_off)
    k.I("s_mul_i32", s(tmp_s), "s2", nw)
    k.I("s_add_u32", s(tmp_s), s(tmp_s), s(swave))
    k.I("s_mul_i32", s(tmp_s), s(tmp_s), per)
    k.I("s_add_u32", s(tmp_s), s(tmp_s), first)
    k.I("s_lshl_b32", s(tmp_s), s(tmp_s), 7)
    k.I("v_lshlrev_b32", v(tv0), 7, v(lane))
    k.I("v_mov_b32", v(tv1), "0x7fffff00")
    k.I("v_cmp_gt_u32", "vcc", per, v(lane))
    k.I("v_cndmask_b32", v(tv0), v(tv1), v(tv0), "vcc")
    k.I("s_waitcnt", "lgkmcnt(0)")
    k.lgq = []
    srd(k, sP, pp, nbytes)
    k.vm("pfm", "buffer_load_dword", v(vd), v(tv0), sr(sP, 4), s(tmp_s), mods="offen")

def common_start(k, nwg):
    k.snext = 4; k.vnext = 1
    done = k.newlabel("done")
    k.I("s_cmp_ge_u32", "s2", nwg)
    k.I("s_cbranch_scc1", done)
    R = dict(done=done)
    R["swave"] = k.salloc(); R["st0"] = k.salloc(); R["st1"] = k.salloc(); R["soff"] = k.salloc()
    R["lane"] = k.valloc(); R["t0"] = k.valloc(); R["t1"] = k.valloc(); R["t2"] = k.valloc()
    k.I("v_lshrrev_b32", v(R["t0"]), 6, "v0")
    k.I("v_and_b32", v(R["lane"]), 63, "v0")
    k.I("v_readfirstlane_b32", s(R["swave"]), v(R["t0"]))
    return R

def interleave(k, mf, fl):
    n = len(fl); m = len(mf)
    cuts = [(i * n + m - 1) // m for i in range(m + 1)]
    cuts[-1] = n
    for i in range(m):
        mf[i]()
        for f in fl[cuts[i]:cuts[i + 1]]: f()

def stats_from_packed(k, P, n, accs, accq, tmp):
    for j in range(n):
        t = tmp[j % len(tmp)]
        k.I("v_lshlrev_b32", v(t), 16, v(P + j))
        k.I("v_and_b32", v(t + 1), "0xffff0000", v(P + j))
        if j == 0:
            k.I("v_pk_mul_f32", vr(accq, 2), vr(t, 2), vr(t, 2))
            k.I("v_mov_b32", v(accs), v(t)); k.I("v_mov_b32", v(accs + 1), v(t + 1))
        else:
            k.I("v_pk_add_f32", vr(accs, 2), vr(accs, 2), vr(t, 2))
            k.I("v_pk_fma_f32", vr(accq, 2), vr(t, 2), vr(t, 2), vr(accq, 2))
    k.I("v_add_f32", v(accs), v(accs), v(accs + 1))
    k.I("v_add_f32", v(accq), v(accq), v(accq + 1))
    for r_ in (accs, accq):
        k.I("v_mov_b32", v(r_ + 1), v(r_))
        k.I("v_permlane32_swap_b32", v(r_), v(r_ + 1))
        k.I("v_add_f32", v(r_), v(r_), v(r_ + 1))

def gen_k3(Stamper):
    k = Kernel("k3_wo_kernel")
    WREG = 0; OREG = 58368
    lds = OREG + 65536
    R = common_start(k, 256)
    swave, st0, st1, soff, lane, t0, t1, t2 = (R[x] for x in ("swave", "st0", "st1", "soff", "lane", "t0", "t1", "t2"))
    pX = k.salloc(2); pWo = k.salloc(2); pWin = k.salloc(2); pWS = k.salloc(2)
    k.I("s_load_dwordx2", sr(pX, 2), "s[0:1]", 0)
    k.I("s_load_dwordx2", sr(pWo, 2), "s[0:1]", 16)
    k.I("s_load_dwordx2", sr(pWin, 2), "s[0:1]", 32)
    k.I("s_load_dwordx2", sr(pWS, 2), "s[0:1]", 80)
    sWS = k.salloc(4); sWo = k.salloc(4); sX = k.salloc(4)
    sj = k.salloc(); sidx = k.salloc(); srt = k.salloc(); snt = k.salloc(); sw3 = k.salloc()
    k.I("s_and_b32", s(sj), "s2", 7)
    k.I("s_lshr_b32", s(sidx), "s2", 3)
    k.I("s_and_b32", s(sw3), s(swave), 3)
    stp = Stamper(k, 2, sWS, swave)
    aux = k.newlabel("aux")
    k.I("s_cmp_ge_u32", s(sidx), 28)
    k.I("s_cbranch_scc1", aux)
    k.I("s_mul_i32", s(st0), s(sidx), 37)
    k.I("s_lshr_b32", s(st0), s(st0), 8)
    k.I("s_mul_i32", s(st1), s(st0), 7)
    k.I("s_sub_u32", s(snt), s(sidx), s(st1))
    k.I("s_lshl_b32", s(srt), s(sj), 2)
    k.I("s_add_u32", s(srt), s(srt), s(st0))
    k.I("s_waitcnt", "lgkmcnt(0)")
    srd(k, sWS, pWS, WS_SIZE)
    comp = k.newlabel("compute")
    k.I("s_cmp_lt_u32", s(swave), 4)
    k.I("s_cbranch_scc1", comp)
    vsave = k.vnext
    srd(k, sWo, pWo, 448 * 896)
    v16 = k.valloc(); vWo = k.valloc()
    k.I("v_lshlrev_b32", v(v16), 4, v(lane))
    k.I("v_lshrrev_b32", v(t0), 3, v(lane))
    k.I("v_mul_u32_u24", v(t0), 896, v(t0))
    k.I("v_bfe_u32", v(t1), v(lane), 4, 1)
    k.I("v_lshlrev_b32", v(t1), 2, v(t1))
    k.I("v_and_b32", v(t2), 7, v(lane))
    k.I("v_xor_b32", v(t1), v(t1), v(t2))
    k.I("v_lshl_add_u32", v(vWo), v(t1), 4, v(t0))
    sOb = k.salloc(); sWb = k.salloc(); smO = k.salloc(); smW = k.salloc()
    k.I("s_lshl_b32", s(sOb), s(srt), 16)
    k.I("s_lshl_b32", s(st0), s(sw3), 10)
    k.I("s_add_u32", s(sOb), s(sOb), s(st0))
    k.I("s_add_u32", s(sOb), s(sOb), hex(O_OFF))
    k.I("s_add_u32", s(smO), s(st0), OREG)
    k.I("s_mul_i32", s(sWb), s(sw3), 8 * 896)
    k.I("s_lshl_b32", s(st1), s(snt), 7)
    k.I("s_add_u32", s(sWb), s(sWb), s(st1))
    k.I("s_add_u32", s(smW), s(st0), WREG)
    def issue(c):
        for r2 in range(2):
            k.I("s_add_u32", s(soff), s(sOb), hex(r2 * 32768 + c * 4096))
            k.I("s_add_u32", "m0", s(smO), hex(r2 * 32768 + c * 4096))
            k.vm(("S", c), "buffer_load_dwordx4", v(v16), sr(sWS, 4), s(soff), mods="offen lds")
        for i in range(2):
            k.I("s_add_u32", s(soff), s(sWb), hex((56 * c + 32 * i) * 896))
            k.I("s_add_u32", "m0", s(smW), hex((56 * c + 32 * i) * 128))
            k.vm(("S", c), "buffer_load_dwordx4", v(vWo), sr(sWo, 4), s(soff), mods="offen lds")
    LA = 3
    for c in range(LA): issue(c)
    for c in range(8):
        k.wait_vm(("S", c))
        k.I("s_barrier")
        if c + LA < 8: issue(c + LA)
    k.I("s_endpgm")
    k.L(comp)
    k.vnext = vsave; k.vmq = []; k.lgq = []
    srd(k, sX, pX, 2048 * 896)
    l31 = k.valloc(); hh = k.valloc()
    k.I("v_and_b32", v(l31), 31, v(lane))
    k.I("v_lshrrev_b32", v(hh), 5, v(lane))
    srh = k.salloc(); snh = k.salloc(); sst = k.salloc(); sntile = k.salloc()
    k.I("s_and_b32", s(srh), s(swave), 1)
    k.I("s_lshr_b32", s(snh), s(swave), 1)
    k.I("s_lshl_b32", s(sst), s(srt), 1)
    k.I("s_add_u32", s(sst), s(sst), s(srh))
    k.I("s_lshl_b32", s(sntile), s(snt), 1)
    k.I("s_add_u32", s(sntile), s(sntile), s(snh))
    xr = k.valloc(8, 4); vx = k.valloc()
    k.I("v_mul_u32_u24", v(vx), 896, v(l31))
    k.I("v_lshl_add_u32", v(vx), v(hh), 3, v(vx))
    k.I("s_mul_i32", s(soff), s(sst), 32 * 896)
    k.I("s_lshl_b32", s(st0), s(sntile), 6)
    k.I("s_add_u32", s(soff), s(soff), s(st0))
    for q in range(4):
        k.vm("x", "buffer_load_dwordx2", vr(xr + 2 * q, 2), v(vx), sr(sX, 4), s(soff), mods=f"offen offset:{16 * q}")
    code_prefetch(k, "k4_win_kernel", sidx, st0)
    stp.stamp(0)
    aO = k.valloc(); vW = k.valloc()
    k.I("v_lshlrev_b32", v(aO), 4, v(lane))
    k.I("s_lshl_b32", s(st0), s(srh), 15)
    k.I("s_add_u32", s(st0), s(st0), OREG)
    k.I("v_add_u32", v(aO), s(st0), v(aO))
    k.I("v_bfe_u32", v(t0), v(lane), 2, 2)
    k.I("v_lshl_add_u32", v(t0), v(hh), 3, v(t0))
    k.I("v_lshlrev_b32", v(vW), 7, v(t0))
    k.I("v_bfe_u32", v(t0), v(lane), 4, 1)
    k.I("v_lshlrev_b32", v(t0), 1, v(t0))
    k.I("v_bfe_u32", v(t1), v(lane), 1, 1)
    k.I("v_add_u32", v(t0), v(t0), v(t1))
    k.I("s_lshl_b32", s(st0), s(snh), 2)
    k.I("v_add_u32", v(t0), s(st0), v(t0))
    k.I("v_bfe_u32", v(t1), v(lane), 3, 1)
    k.I("v_lshlrev_b32", v(t1), 2, v(t1))
    k.I("v_xor_b32", v(t0), v(t0), v(t1))
    k.I("v_lshl_add_u32", v(vW), v(t0), 4, v(vW))
    k.I("v_and_b32", v(t0), 1, v(lane))
    k.I("v_lshl_add_u32", v(vW), v(t0), 3, v(vW))
    acc = k.valloc(16, 4)
    NB = 3
    of = [k.valloc(4) for _ in range(NB)]; wf = [k.valloc(4) for _ in range(NB)]
    def rl(ks):
        b = ks % NB
        out = [lambda: k.lg(("f", ks), "ds_read_b128", vr(of[b], 4), v(aO), mods=f"offset:{ks * 1024}")]
        for beta in range(2):
            o = (28 * (ks >> 1) + 16 * (ks & 1) + 4 * beta) * 128
            out.append(lambda o=o, beta=beta: k.lg(("f", ks), "ds_read_b64_tr_b16", vr(wf[b] + 2 * beta, 2), v(vW), mods=f"offset:{o}"))
        return out
    k.I("s_barrier")
    stp.stamp(1)
    for f in rl(0) + rl(1): f()
    for ks in range(32):
        c, j = ks // 4, ks % 4
        b = ks % NB
        k.wait_lg(("f", ks))
        k.I("v_mfma_f32_32x32x16_bf16", vr(acc, 16), vr(wf[b], 4), vr(of[b], 4), 0 if ks == 0 else vr(acc, 16))
        if j == 1 and c < 7: k.I("s_barrier")
        if ks + 2 < 32 and not (j == 1 and False):
            pass
        nxt = ks + 2
        if nxt < 32:
            for f in rl(nxt): f()
    EOF_MARK = None
    stp.stamp(2)
    k.wait_vm("x")
    tmp = [k.valloc(2) for _ in range(4)]
    for q in range(4):
        for d in range(2):
            t = tmp[(2 * q + d) % 4]
            k.I("v_lshlrev_b32", v(t), 16, v(xr + 2 * q + d))
            k.I("v_and_b32", v(t + 1), "0xffff0000", v(xr + 2 * q + d))
            k.I("v_pk_add_f32", vr(acc + 4 * q + 2 * d, 2), vr(acc + 4 * q + 2 * d, 2), vr(t, 2))
    P = k.valloc(8, 4)
    for j in range(8): k.I("v_cvt_pk_bf16_f32", v(P + j), v(acc + 2 * j), v(acc + 2 * j + 1))
    v16 = k.valloc()
    k.I("v_lshlrev_b32", v(v16), 4, v(lane))
    k.I("s_mul_i32", s(soff), s(sst), 28 * 1024)
    k.I("s_lshl_b32", s(st0), s(sntile), 11)
    k.I("s_add_u32", s(soff), s(soff), s(st0))
    k.I("s_add_u32", s(soff), s(soff), hex(H_OFF))
    k.I("buffer_store_dwordx4", vr(P, 4), v(v16), sr(sWS, 4), s(soff), mods="offen")
    k.I("buffer_store_dwordx4", vr(P + 4, 4), v(v16), sr(sWS, 4), s(soff), mods="offen offset:1024")
    accs = k.valloc(2); accq = k.valloc(2)
    stats_from_packed(k, P, 8, accs, accq, tmp)
    k.I("v_mov_b32", v(accs + 1), v(accq))
    vh = k.valloc()
    k.I("v_mul_u32_u24", v(vh), 112, v(l31))
    k.I("s_mul_i32", s(soff), s(sst), 32 * 112)
    k.I("s_lshl_b32", s(st0), s(sntile), 3)
    k.I("s_add_u32", s(soff), s(soff), s(st0))
    k.I("s_add_u32", s(soff), s(soff), hex(HS_OFF))
    k.I("s_mov_b32", "exec_hi", 0)
    k.I("buffer_store_dwordx2", vr(accs, 2), v(vh), sr(sWS, 4), s(soff), mods="offen")
    stp.stamp(3)
    k.I("s_endpgm")
    k.L(aux)
    k.vnext = vsave; k.vmq = []; k.lgq = []
    sa = k.salloc(); sWin = k.salloc(4)
    k.I("s_sub_u32", s(sa), s(sidx), 28)
    k.I("s_lshl_b32", s(sa), s(sa), 3)
    k.I("s_add_u32", s(sa), s(sa), s(sj))
    k.I("s_waitcnt", "lgkmcnt(0)")
    srd(k, sWS, pWS, WS_SIZE)
    ff = k.valloc(4)
    for i in range(4): k.I("v_mov_b32", v(ff + i), -1)
    k.I("v_lshlrev_b32", v(t1), 4, "v0")
    k.I("v_mov_b32", v(t2), "0x7fffff00")
    k.I("v_cmp_gt_u32", "vcc", 448, "v0")
    k.I("v_cndmask_b32", v(t1), v(t2), v(t1), "vcc")
    k.I("s_mul_i32", s(st0), s(sa), 7168)
    k.I("s_add_u32", s(st0), s(st0), hex(EX_OFF))
    k.I("buffer_store_dwordx4", vr(ff, 4), v(t1), sr(sWS, 4), s(st0), mods="offen")
    zf = k.valloc(4)
    for i in range(4): k.I("v_mov_b32", v(zf + i), 0)
    k.I("v_lshlrev_b32", v(t1), 4, "v0")
    k.I("v_mov_b32", v(t2), "0x7fffff00")
    k.I("v_cmp_gt_u32", "vcc", 32, "v0")
    k.I("v_cndmask_b32", v(t1), v(t2), v(t1), "vcc")
    k.I("s_lshl_b32", s(st0), s(sa), 9)
    k.I("s_add_u32", s(st0), s(st0), hex(FL_OFF))
    k.I("buffer_store_dwordx4", vr(zf, 4), v(t1), sr(sWS, 4), s(st0), mods="offen")
    srd(k, sWin, pWin, 448 * 3584)
    def win_prefetch():
        if os.environ.get("PFWIN", "k2") != "k3": return
        vTw = k.valloc(); vdw = k.valloc(7)
        k.I("s_sub_u32", s(st0), s(sidx), 28)
        k.I("s_lshl_b32", s(st0), s(st0), 9)
        k.I("v_add_u32", v(vTw), s(st0), "v0")
        k.I("v_lshlrev_b32", v(vTw), 7, v(vTw))
        for i in range(7):
            k.I("s_mov_b32", s(st0), hex(i * 2048 * 128))
            k.I("buffer_load_dword", v(vdw + i), v(vTw), sr(sWin, 4), s(st0), mods="offen")
    nocs = k.newlabel("nocs")
    k.I("s_cmp_ge_u32", s(sa), 28)
    k.I("s_cbranch_scc1", nocs)
    vg = k.valloc()
    k.I("v_lshrrev_b32", v(t0), 3, v(lane))
    k.I("v_mul_u32_u24", v(t0), 3584, v(t0))
    k.I("v_bfe_u32", v(t1), v(lane), 4, 1)
    k.I("v_lshlrev_b32", v(t1), 2, v(t1))
    k.I("v_and_b32", v(t2), 7, v(lane))
    k.I("v_xor_b32", v(t1), v(t1), v(t2))
    k.I("v_lshl_add_u32", v(vg), v(t1), 4, v(t0))
    sb = k.salloc(); sm = k.salloc()
    k.I("s_mul_i32", s(sb), s(swave), 56 * 3584)
    k.I("s_lshl_b32", s(st0), s(sa), 7)
    k.I("s_add_u32", s(sb), s(sb), s(st0))
    k.I("s_mul_i32", s(sm), s(swave), 56 * 128)
    for i in range(7):
        k.I("s_add_u32", s(soff), s(sb), hex(i * 8 * 3584))
        k.I("s_add_u32", "m0", s(sm), hex(i * 1024))
        k.I("buffer_load_dwordx4", v(vg), sr(sWin, 4), s(soff), mods="offen lds")
    win_prefetch()
    z = k.valloc(); TB = 57344
    k.I("v_mov_b32", v(z), 0)
    k.I("v_lshlrev_b32", v(t0), 2, v(lane))
    k.I("v_add_u32", v(t0), TB, v(t0))
    k.I("ds_write_b32", v(t0), v(z))
    gg = k.valloc(); vB = k.valloc(); ones = k.valloc(4)
    k.I("v_lshrrev_b32", v(gg), 4, v(lane))
    k.I("v_bfe_u32", v(t0), v(lane), 2, 2)
    k.I("v_lshl_add_u32", v(t0), v(gg), 3, v(t0))
    k.I("v_lshlrev_b32", v(vB), 7, v(t0))
    k.I("v_bfe_u32", v(t0), v(lane), 1, 1)
    k.I("s_lshl_b32", s(st0), s(sw3), 1)
    k.I("v_add_u32", v(t0), s(st0), v(t0))
    k.I("v_bfe_u32", v(t1), v(lane), 3, 1)
    k.I("v_lshlrev_b32", v(t1), 2, v(t1))
    k.I("v_xor_b32", v(t0), v(t0), v(t1))
    k.I("v_lshl_add_u32", v(vB), v(t0), 4, v(vB))
    k.I("v_and_b32", v(t0), 1, v(lane))
    k.I("v_lshl_add_u32", v(vB), v(t0), 3, v(vB))
    k.I("s_lshr_b32", s(st0), s(swave), 2)
    k.I("s_mul_i32", s(st0), s(st0), 224 * 128)
    k.I("v_add_u32", v(vB), s(st0), v(vB))
    for i in range(4): k.I("v_mov_b32", v(ones + i), "0x3f803f80")
    k.I("s_waitcnt", "vmcnt(7) lgkmcnt(0)" if os.environ.get("PFWIN", "k2") == "k3" else "vmcnt(0) lgkmcnt(0)")
    k.I("s_barrier")
    bf = [k.valloc(4) for _ in range(7)]
    for kk in range(7):
        for beta in range(2):
            k.I("ds_read_b64_tr_b16", vr(bf[kk] + 2 * beta, 2), v(vB), mods=f"offset:{(32 * kk + 4 * beta) * 128}")
    ca = k.valloc(4)
    k.I("s_waitcnt", "lgkmcnt(0)")
    for kk in range(7):
        k.I("v_mfma_f32_16x16x32_bf16", vr(ca, 4), vr(ones, 4), vr(bf[kk], 4), 0 if kk == 0 else vr(ca, 4))
    k.I("v_and_b32", v(t0), 15, v(lane))
    k.I("s_lshl_b32", s(st0), s(sw3), 6)
    k.I("s_add_u32", s(st0), s(st0), TB)
    k.I("v_lshlrev_b32", v(t0), 2, v(t0))
    k.I("v_add_u32", v(t0), s(st0), v(t0))
    k.I("s_mov_b32", "exec_lo", "0xffff")
    k.I("s_mov_b32", "exec_hi", 0)
    k.I("ds_add_f32", v(t0), v(ca))
    k.I("s_mov_b64", "exec", -1)
    k.I("s_waitcnt", "lgkmcnt(0)")
    k.I("s_barrier")
    k.I("s_cmp_lg_u32", s(swave), 0)
    k.I("s_cbranch_scc1", R["done"])
    k.I("v_lshlrev_b32", v(t0), 2, v(lane))
    k.I("v_add_u32", v(t1), TB, v(t0))
    k.I("ds_read_b32", v(z), v(t1))
    k.I("s_lshl_b32", s(st0), s(sa), 8)
    k.I("s_add_u32", s(st0), s(st0), hex(CW_OFF))
    k.I("s_waitcnt", "lgkmcnt(0)")
    k.I("buffer_store_dword", v(z), v(t0), sr(sWS, 4), s(st0), mods="offen")
    k.I("s_endpgm")
    k.L(nocs)
    win_prefetch()
    k.L(R["done"])
    k.I("s_endpgm")
    k.lds = lds; k.threads = 512; k.grid = 256
    return k


GELU_C0 = -2.0 * math.sqrt(2.0 / math.pi) * math.log2(math.e)
GELU_C1 = GELU_C0 * 0.044715

def gen_k4(Stamper):
    k = Kernel("k4_win_kernel")
    NS = 4; SLOT = 32768; TRB = NS * SLOT
    STB = TRB
    lds = TRB + 4096
    R = common_start(k, 256)
    swave, st0, st1, soff, lane, t0, t1, t2 = (R[x] for x in ("swave", "st0", "st1", "soff", "lane", "t0", "t1", "t2"))
    pWin = k.salloc(2); pWS = k.salloc(2)
    k.I("s_load_dwordx2", sr(pWin, 2), "s[0:1]", 32)
    k.I("s_load_dwordx2", sr(pWS, 2), "s[0:1]", 80)
    sWS = k.salloc(4); sWin = k.salloc(4)
    sj = k.salloc(); sidx = k.salloc(); srb = k.salloc(); sct = k.salloc(); sw3 = k.salloc()
    k.I("s_and_b32", s(sj), "s2", 7)
    k.I("s_lshr_b32", s(sidx), "s2", 3)
    k.I("s_and_b32", s(sw3), s(swave), 3)
    pfrole = k.newlabel("pfrole")
    k.I("s_cmp_ge_u32", s(sidx), 28)
    k.I("s_cbranch_scc1", pfrole)
    k.I("s_cmp_ge_u32", s(sidx), 14)
    k.I("s_cselect_b32", s(st0), 1, 0)
    k.I("s_mul_i32", s(st1), s(st0), 14)
    k.I("s_sub_u32", s(sct), s(sidx), s(st1))
    k.I("s_lshl_b32", s(srb), s(sj), 1)
    k.I("s_add_u32", s(srb), s(srb), s(st0))
    stp = Stamper(k, 3, sWS, swave)
    k.I("s_waitcnt", "lgkmcnt(0)")
    srd(k, sWS, pWS, WS_SIZE)
    comp = k.newlabel("compute")
    k.I("s_cmp_lt_u32", s(swave), 4)
    k.I("s_cbranch_scc1", comp)
    vsave = k.vnext
    srd(k, sWin, pWin, 448 * 3584)
    v16 = k.valloc(); vWo = k.valloc()
    k.I("v_lshlrev_b32", v(v16), 4, v(lane))
    k.I("v_lshrrev_b32", v(t0), 4, v(lane))
    k.I("v_lshlrev_b32", v(t1), 2, v(t0))
    k.I("v_and_b32", v(t2), 15, v(lane))
    k.I("v_xor_b32", v(t1), v(t1), v(t2))
    k.I("v_mul_u32_u24", v(vWo), 3584, v(t0))
    k.I("v_and_b32", v(t2), 7, v(t1))
    k.I("v_lshl_add_u32", v(vWo), v(t2), 4, v(vWo))
    k.I("v_add_u32", v(t2), 1792, v(vWo))
    k.I("v_cmp_gt_u32", "vcc", 8, v(t1))
    k.I("v_cndmask_b32", v(vWo), v(vWo), v(t2), "vcc")
    sHb = k.salloc(); sWb = k.salloc(); smH = k.salloc(); smW = k.salloc()
    k.I("s_lshl_b32", s(st0), s(srb), 2)
    k.I("s_add_u32", s(st0), s(st0), s(sw3))
    k.I("s_mul_i32", s(sHb), s(st0), 28 * 1024)
    k.I("s_add_u32", s(sHb), s(sHb), hex(H_OFF))
    k.I("s_lshl_b32", s(smH), s(sw3), 12)
    k.I("s_mul_i32", s(sWb), s(sw3), 16 * 3584)
    k.I("s_lshl_b32", s(st1), s(sct), 7)
    k.I("s_add_u32", s(sWb), s(sWb), s(st1))
    k.I("s_add_u32", s(smW), s(smH), 16384)
    def issue(c):
        sl = (c % NS) * SLOT
        for i in range(4):
            k.I("s_add_u32", s(soff), s(sHb), hex((4 * c + i) * 1024))
            k.I("s_add_u32", "m0", s(smH), hex(sl + i * 1024))
            k.vm(("S", c), "buffer_load_dwordx4", v(v16), sr(sWS, 4), s(soff), mods="offen lds")
        for i in range(4):
            k.I("s_add_u32", s(soff), s(sWb), hex((64 * c + 4 * i) * 3584))
            k.I("s_add_u32", "m0", s(smW), hex(sl + i * 1024))
            k.vm(("S", c), "buffer_load_dwordx4", v(vWo), sr(sWin, 4), s(soff), mods="offen lds")
    issue(0); issue(1)
    for c in range(7):
        k.wait_vm(("S", c))
        k.I("s_barrier")
        if c == 0: issue(2); issue(3)
        elif c + 2 < 7 and c >= 2: issue(c + 2)
    k.I("s_barrier")
    k.I("s_endpgm")
    k.L(comp)
    k.vnext = vsave; k.vmq = []; k.lgq = []
    l31 = k.valloc(); hh = k.valloc()
    k.I("v_and_b32", v(l31), 31, v(lane))
    k.I("v_lshrrev_b32", v(hh), 5, v(lane))
    srh = k.salloc(); sch = k.salloc(); sst = k.salloc()
    k.I("s_and_b32", s(srh), s(swave), 1)
    k.I("s_lshr_b32", s(sch), s(swave), 1)
    k.I("s_lshl_b32", s(sst), s(srb), 2)
    k.I("s_lshl_b32", s(st0), s(srh), 1)
    k.I("s_add_u32", s(sst), s(sst), s(st0))
    hs = [k.valloc(16, 4) for _ in range(2)]
    vh = k.valloc()
    k.I("v_mul_u32_u24", v(vh), 112, v(l31))
    k.I("v_lshl_add_u32", v(vh), v(hh), 6, v(vh))
    for t in range(2):
        k.I("s_add_u32", s(st0), s(sst), t)
        k.I("s_mul_i32", s(soff), s(st0), 32 * 112)
        k.I("s_add_u32", s(soff), s(soff), hex(HS_OFF))
        for i in range(4):
            k.vm("hs", "buffer_load_dwordx4", vr(hs[t] + 4 * i, 4), v(vh), sr(sWS, 4), s(soff), mods=f"offen offset:{16 * i}")
    cw = [k.valloc(16, 4) for _ in range(2)]
    vc = k.valloc()
    k.I("v_lshlrev_b32", v(vc), 4, v(hh))
    k.I("s_lshl_b32", s(st0), s(sct), 8)
    k.I("s_lshl_b32", s(st1), s(sch), 7)
    k.I("s_add_u32", s(st0), s(st0), s(st1))
    for z in range(2):
        k.I("s_add_u32", s(soff), s(st0), hex(CW_OFF + (896 * 4 if z == 0 else 0)))
        for q in range(4):
            k.vm("cw", "buffer_load_dwordx4", vr(cw[z] + 4 * q, 4), v(vc), sr(sWS, 4), s(soff), mods=f"offen offset:{32 * q}")
    if os.environ.get("PF2", "0") == "1":
        pp = k.salloc(2); sP = k.salloc(4); vT = k.valloc(); vd = k.valloc(2)
        k.I("s_load_dwordx2", sr(pp, 2), "s[0:1]", 40)
        k.I("s_lshl_b32", s(st0), s(sidx), 8)
        k.I("v_add_u32", v(vT), s(st0), "v0")
        k.I("s_waitcnt", "lgkmcnt(0)")
        srd(k, sP, pp, 2048 * 4096)
        k.I("s_lshr_b32", s(st0), s(sj), 1)
        k.I("s_lshl_b32", s(st0), s(st0), 21)
        k.I("s_and_b32", s(st1), s(sj), 1)
        k.I("s_lshl_b32", s(st1), s(st1), 11)
        k.I("s_add_u32", s(st0), s(st0), s(st1))
        for i in range(2):
            k.I("v_add_u32", v(t0), 7168 * i, v(vT))
            k.I("v_lshrrev_b32", v(t1), 4, v(t0))
            k.I("v_lshlrev_b32", v(t1), 12, v(t1))
            k.I("v_and_b32", v(t2), 15, v(t0))
            k.I("v_lshl_add_u32", v(t1), v(t2), 7, v(t1))
            if i == 1:
                k.I("v_mov_b32", v(t2), "0x7fffff00")
                k.I("v_cmp_gt_u32", "vcc", 8192, v(t0))
                k.I("v_cndmask_b32", v(t1), v(t2), v(t1), "vcc")
            k.vm("pf", "buffer_load_dword", v(vd + i), v(t1), sr(sP, 4), s(st0), mods="offen")
    code_prefetch(k, "k5_sp_kernel", sidx, st0)
    stp.stamp(0)
    aH = k.valloc(); vW = [k.valloc(), k.valloc()]
    k.I("v_lshlrev_b32", v(aH), 4, v(lane))
    k.I("s_lshl_b32", s(st0), s(srh), 13)
    k.I("v_add_u32", v(aH), s(st0), v(aH))
    k.I("v_bfe_u32", v(t0), v(lane), 2, 2)
    k.I("v_lshl_add_u32", v(t1), v(hh), 2, v(t0))
    k.I("v_lshlrev_b32", v(t1), 8, v(t1))
    k.I("v_add_u32", v(t1), 16384, v(t1))
    k.I("v_bfe_u32", v(t2), v(lane), 4, 1)
    k.I("v_lshlrev_b32", v(t2), 1, v(t2))
    k.I("v_bfe_u32", v(vW[0]), v(lane), 1, 1)
    k.I("v_add_u32", v(t2), v(t2), v(vW[0]))
    k.I("s_lshl_b32", s(st0), s(sch), 2)
    k.I("v_add_u32", v(t2), s(st0), v(t2))
    k.I("v_lshlrev_b32", v(t0), 2, v(t0))
    k.I("v_xor_b32", v(vW[0]), v(t2), v(t0))
    k.I("v_add_u32", v(t2), 8, v(t2))
    k.I("v_xor_b32", v(vW[1]), v(t2), v(t0))
    k.I("v_and_b32", v(t2), 1, v(lane))
    for z in range(2):
        k.I("v_lshl_add_u32", v(vW[z]), v(vW[z]), 4, v(t1))
        k.I("v_lshl_add_u32", v(vW[z]), v(t2), 3, v(vW[z]))
    aH2 = k.valloc(); vW2 = [k.valloc(), k.valloc()]
    k.I("v_add_u32", v(aH2), 65536, v(aH))
    for z in range(2): k.I("v_add_u32", v(vW2[z]), 65536, v(vW[z]))
    acc = [[k.valloc(16, 4) for _ in range(2)] for _ in range(2)]
    vmark = k.vnext
    NB = 3
    hf = [[k.valloc(4) for _ in range(2)] for _ in range(NB)]
    wf = [[k.valloc(4) for _ in range(2)] for _ in range(NB)]
    def rl(ks):
        c, j = ks // 4, ks % 4
        b = ks % NB
        sl = (c % NS) * SLOT
        hi = sl >= 65536
        so = sl - (65536 if hi else 0)
        out = []
        for t in range(2):
            out.append(lambda t=t: k.lg(("f", ks), "ds_read_b128", vr(hf[b][t], 4), v(aH2 if hi else aH), mods=f"offset:{so + t * 4096 + j * 1024}"))
        for z in range(2):
            for beta in range(2):
                o = so + (16 * j + 8 * beta) * 256
                out.append(lambda o=o, z=z, beta=beta: k.lg(("f", ks), "ds_read_b64_tr_b16", vr(wf[b][z] + 2 * beta, 2), v((vW2 if hi else vW)[z]), mods=f"offset:{o}"))
        return out
    k.I("s_barrier")
    stp.stamp(1)
    for f in rl(0) + rl(1): f()
    for ks in range(28):
        c, j = ks // 4, ks % 4
        b = ks % NB
        k.wait_lg(("f", ks))
        mf = []
        for z in range(2):
            for t in range(2):
                mf.append(lambda z=z, t=t: k.I("v_mfma_f32_32x32x16_bf16", vr(acc[z][t], 16), vr(wf[b][z], 4), vr(hf[b][t], 4), 0 if ks == 0 else vr(acc[z][t], 16)))
        if j == 2 and c < 6:
            pass
        fl = rl(ks + 2) if ks + 2 < 28 else []
        if j == 2 and ks + 2 < 28:
            k.I("s_barrier")
        interleave(k, mf, fl)
    stp.stamp(2)
    k.vnext = vmark
    k.wait_vm(["hs", "cw"])
    rr = [k.valloc(2) for _ in range(2)]; nm = [k.valloc(2) for _ in range(2)]
    c0r = [k.valloc(2) for _ in range(2)]; c1r = [k.valloc(2) for _ in range(2)]
    k.I("v_cmp_eq_u32", "vcc", 0, v(hh))
    for t in range(2):
        H = hs[t]
        for i in range(12, 16): k.I("v_cndmask_b32", v(H + i), 0, v(H + i), "vcc")
        for i in range(4): k.I("v_pk_add_f32", vr(H + 2 * i, 2), vr(H + 2 * i, 2), vr(H + 8 + 2 * i, 2))
        for i in range(2): k.I("v_pk_add_f32", vr(H + 2 * i, 2), vr(H + 2 * i, 2), vr(H + 4 + 2 * i, 2))
        k.I("v_pk_add_f32", vr(H, 2), vr(H, 2), vr(H + 2, 2))
        for e in range(2):
            k.I("v_mov_b32", v(H + 2), v(H + e))
            k.I("v_permlane32_swap_b32", v(H + e), v(H + 2))
            k.I("v_add_f32", v(H + e), v(H + e), v(H + 2))
        k.I("v_mul_f32", v(nm[t]), hex(f32(-1.0 / 448)), v(H))
        k.I("v_mul_f32", v(H + 1), hex(f32(1.0 / 448)), v(H + 1))
        k.I("v_fma_f32", v(H + 1), f"-{v(nm[t])}", v(nm[t]), v(H + 1))
        k.I("v_max_f32", v(H + 1), 0, v(H + 1))
        k.I("v_add_f32", v(H + 1), hex(f32(1e-5)), v(H + 1))
        k.I("v_rsq_f32", v(rr[t]), v(H + 1))
        k.I("v_mul_f32", v(c0r[t]), hex(f32(GELU_C0)), v(rr[t]))
        k.I("v_mul_f32", v(c1r[t]), v(rr[t]), v(rr[t]))
        k.I("v_mul_f32", v(c1r[t]), v(c1r[t]), v(rr[t]))
        k.I("v_mul_f32", v(c1r[t]), hex(f32(GELU_C1)), v(c1r[t]))
    norh = k.newlabel("norh")
    k.I("s_or_b32", s(st0), s(sct), s(sch))
    k.I("s_cmp_lg_u32", s(st0), 0)
    k.I("s_cbranch_scc1", norh)
    k.I("v_lshlrev_b32", v(t0), 2, v(l31))
    for t in range(2):
        k.I("s_add_u32", s(st0), s(sst), t)
        k.I("s_lshl_b32", s(st0), s(st0), 7)
        k.I("s_add_u32", s(st0), s(st0), hex(RH_OFF))
        k.I("buffer_store_dword", v(rr[t]), v(t0), sr(sWS, 4), s(st0), mods="offen")
    k.L(norh)
    tp = [k.valloc(2) for _ in range(4)]
    def gelu_tile(A, z, t):
        for j in range(8):
            k.I("v_pk_fma_f32", vr(A + 2 * j, 2), vr(cw[z] + 2 * j, 2), vr(nm[t], 2), vr(A + 2 * j, 2), mods="op_sel_hi:[1,0,1]")
        for j0 in range(0, 8, 4):
            for j in range(j0, j0 + 4):
                T = tp[j - j0]
                k.I("v_pk_mul_f32", vr(T, 2), vr(A + 2 * j, 2), vr(A + 2 * j, 2))
            for j in range(j0, j0 + 4):
                T = tp[j - j0]
                k.I("v_pk_fma_f32", vr(T, 2), vr(T, 2), vr(c1r[t], 2), vr(c0r[t], 2), mods="op_sel_hi:[1,0,0]")
            for j in range(j0, j0 + 4):
                T = tp[j - j0]
                k.I("v_pk_mul_f32", vr(T, 2), vr(T, 2), vr(A + 2 * j, 2))
            for j in range(j0, j0 + 4):
                T = tp[j - j0]
                k.I("v_exp_f32", v(T), v(T)); k.I("v_exp_f32", v(T + 1), v(T + 1))
            for j in range(j0, j0 + 4):
                T = tp[j - j0]
                k.I("v_pk_add_f32", vr(T, 2), vr(T, 2), "1.0", mods="op_sel_hi:[1,0]")
            for j in range(j0, j0 + 4):
                T = tp[j - j0]
                k.I("v_rcp_f32", v(T), v(T)); k.I("v_rcp_f32", v(T + 1), v(T + 1))
            for j in range(j0, j0 + 4):
                T = tp[j - j0]
                k.I("v_pk_mul_f32", vr(A + 2 * j, 2), vr(A + 2 * j, 2), vr(T, 2))
    accs = [k.valloc(2) for _ in range(2)]; accq = [k.valloc(2) for _ in range(2)]
    for t in range(2):
        A = acc[0][t]
        gelu_tile(A, 0, t)
        for j in range(8):
            k.I("v_pk_mul_f32", vr(A + 2 * j, 2), vr(A + 2 * j, 2), vr(rr[t], 2), mods="op_sel_hi:[1,0]")
        k.I("v_pk_add_f32", vr(accs[t], 2), vr(A, 2), vr(A + 2, 2))
        k.I("v_pk_mul_f32", vr(accq[t], 2), vr(A, 2), vr(A, 2))
        k.I("v_pk_fma_f32", vr(accq[t], 2), vr(A + 2, 2), vr(A + 2, 2), vr(accq[t], 2))
        for j in range(2, 8):
            k.I("v_pk_add_f32", vr(accs[t], 2), vr(accs[t], 2), vr(A + 2 * j, 2))
            k.I("v_pk_fma_f32", vr(accq[t], 2), vr(A + 2 * j, 2), vr(A + 2 * j, 2), vr(accq[t], 2))
        k.I("v_add_f32", v(accs[t]), v(accs[t]), v(accs[t] + 1))
        k.I("v_add_f32", v(accs[t] + 1), v(accq[t]), v(accq[t] + 1))
        for e in range(2):
            k.I("v_mov_b32", v(accq[t]), v(accs[t] + e))
            k.I("v_permlane32_swap_b32", v(accs[t] + e), v(accq[t]))
            k.I("v_add_f32", v(accs[t] + e), v(accs[t] + e), v(accq[t]))
    vs = k.valloc()
    k.I("v_lshlrev_b32", v(vs), 3, v(l31))
    k.I("s_lshl_b32", s(st0), s(srh), 9)
    k.I("s_add_u32", s(st0), s(st0), STB)
    k.I("v_add_u32", v(vs), s(st0), v(vs))
    k.I("s_lshl_b32", s(st0), s(sch), 10)
    k.I("v_add_u32", v(t0), s(st0), v(vs))
    for t in range(2):
        k.I("ds_write_b64", v(t0), vr(accs[t], 2), mods=f"offset:{t * 256}")
    k.I("s_waitcnt", "lgkmcnt(0)")
    k.I("s_barrier")
    pub = k.newlabel("nopub")
    k.I("s_cmp_lg_u32", s(sch), 0)
    k.I("s_cbranch_scc1", pub)
    oth = k.valloc(4)
    for t in range(2):
        k.I("ds_read_b64", vr(oth + 2 * t, 2), v(vs), mods=f"offset:{1024 + t * 256}")
    k.I("s_waitcnt", "lgkmcnt(0)")
    for t in range(2):
        k.I("v_pk_add_f32", vr(oth + 2 * t, 2), vr(oth + 2 * t, 2), vr(accs[t], 2))
        k.I("v_mov_b32", v(t1), "0x7fc00000")
        k.I("v_cmp_eq_u32", "vcc", -1, v(oth + 2 * t + 1))
        k.I("v_cndmask_b32", v(oth + 2 * t + 1), v(oth + 2 * t + 1), v(t1), "vcc")
    ve = k.valloc()
    k.I("v_mul_u32_u24", v(ve), 112, v(l31))
    k.I("s_mul_i32", s(soff), s(sst), 32 * 112)
    k.I("s_lshl_b32", s(st0), s(sct), 3)
    k.I("s_add_u32", s(soff), s(soff), s(st0))
    k.I("s_add_u32", s(soff), s(soff), hex(EX_OFF))
    k.I("s_mov_b32", "exec_hi", 0)
    for t in range(2):
        k.I("buffer_store_dwordx2", vr(oth + 2 * t, 2), v(ve), sr(sWS, 4), s(soff), mods=f"offen offset:{t * 32 * 112} sc0 sc1")
    k.I("s_mov_b64", "exec", -1)
    k.L(pub)
    stp.stamp(3)
    v16 = k.valloc()
    k.I("v_lshlrev_b32", v(v16), 4, v(lane))
    P = [k.valloc(8, 4) for _ in range(2)]
    sft = k.salloc()
    k.I("s_lshl_b32", s(sft), s(sct), 1)
    k.I("s_add_u32", s(sft), s(sft), s(sch))
    for t in range(2):
        A = acc[1][t]
        gelu_tile(A, 1, t)
        for j in range(8): k.I("v_cvt_pk_bf16_f32", v(P[t] + j), v(A + 2 * j), v(A + 2 * j + 1))
        k.I("s_add_u32", s(st0), s(sst), t)
        k.I("s_mul_i32", s(soff), s(st0), 56 * 1024)
        k.I("s_lshl_b32", s(st0), s(sft), 11)
        k.I("s_add_u32", s(soff), s(soff), s(st0))
        k.I("s_add_u32", s(soff), s(soff), hex(Z1_OFF))
        k.I("buffer_store_dwordx4", vr(P[t], 4), v(v16), sr(sWS, 4), s(soff), mods="offen")
        k.I("buffer_store_dwordx4", vr(P[t] + 4, 4), v(v16), sr(sWS, 4), s(soff), mods="offen offset:1024")
    stp.stamp(4)
    ex = hs
    k.I("v_mul_u32_u24", v(vh), 112, v(l31))
    k.I("v_lshl_add_u32", v(vh), v(hh), 6, v(vh))
    k.I("s_mul_i32", s(soff), s(sst), 32 * 112)
    k.I("s_add_u32", s(soff), s(soff), hex(EX_OFF))
    scount = k.salloc(); sbad = k.salloc(2)
    k.I("s_mov_b32", s(scount), 0)
    poll = k.newlabel("poll"); pdone = k.newlabel("pdone")
    k.L(poll)
    for t in range(2):
        for i in range(4):
            k.I("buffer_load_dwordx4", vr(ex[t] + 4 * i, 4), v(vh), sr(sWS, 4), s(soff), mods=f"offen offset:{t * 32 * 112 + 16 * i} sc0 sc1")
    k.I("s_waitcnt", "vmcnt(0)")
    k.I("v_cmp_eq_u32", "vcc", 0, v(hh))
    for t in range(2):
        for i in range(12, 16): k.I("v_cndmask_b32", v(ex[t] + i), 0, v(ex[t] + i), "vcc")
    k.I("v_max_u32", v(t0), v(ex[0] + 1), v(ex[0] + 3))
    for t in range(2):
        for i in range(8):
            if t == 0 and i < 2: continue
            k.I("v_max_u32", v(t0), v(t0), v(ex[t] + 2 * i + 1))
    k.I("v_cmp_eq_u32", "vcc", -1, v(t0))
    k.I("s_add_u32", s(scount), s(scount), 1)
    k.I("s_cmp_eq_u64", "vcc", 0)
    k.I("s_cbranch_scc1", pdone)
    k.I("s_cmp_lt_u32", s(scount), 0x40000)
    k.I("s_cbranch_scc0", pdone)
    k.I("s_sleep", 1)
    k.I("s_branch", poll)
    k.L(pdone)
    sc_ = [k.valloc(2) for _ in range(2)]; zm = [k.valloc(2) for _ in range(2)]
    for t in range(2):
        H = ex[t]
        for i in range(4): k.I("v_pk_add_f32", vr(H + 2 * i, 2), vr(H + 2 * i, 2), vr(H + 8 + 2 * i, 2))
        for i in range(2): k.I("v_pk_add_f32", vr(H + 2 * i, 2), vr(H + 2 * i, 2), vr(H + 4 + 2 * i, 2))
        k.I("v_pk_add_f32", vr(H, 2), vr(H, 2), vr(H + 2, 2))
        for e in range(2):
            k.I("v_mov_b32", v(H + 2), v(H + e))
            k.I("v_permlane32_swap_b32", v(H + e), v(H + 2))
            k.I("v_add_f32", v(H + e), v(H + e), v(H + 2))
        k.I("v_mul_f32", v(zm[t]), hex(f32(-1.0 / 896)), v(H))
        k.I("v_mul_f32", v(H + 1), hex(f32(1.0 / 896)), v(H + 1))
        k.I("v_fma_f32", v(H + 1), f"-{v(zm[t])}", v(zm[t]), v(H + 1))
        k.I("v_max_f32", v(H + 1), 0, v(H + 1))
        k.I("v_add_f32", v(H + 1), hex(f32(1e-5)), v(H + 1))
        k.I("v_rsq_f32", v(sc_[t]), v(H + 1))
        k.I("v_mul_f32", v(zm[t]), v(zm[t]), v(sc_[t]))
    TW = 0
    vt = k.valloc(); vtr = k.valloc()
    k.I("v_lshlrev_b32", v(vt), 6, v(l31))
    k.I("v_lshl_add_u32", v(vt), v(hh), 3, v(vt))
    k.I("s_lshl_b32", s(st0), s(swave), 12)
    k.I("v_add_u32", v(vt), s(st0), v(vt))
    for t in range(2):
        A = acc[0][t]
        for j in range(8):
            k.I("v_pk_fma_f32", vr(A + 2 * j, 2), vr(A + 2 * j, 2), vr(sc_[t], 2), vr(zm[t], 2), mods="op_sel_hi:[1,0,0]")
        for j in range(8): k.I("v_cvt_pk_bf16_f32", v(P[t] + j), v(A + 2 * j), v(A + 2 * j + 1))
        for q in range(4):
            k.I("ds_write_b64", v(vt), vr(P[t] + 2 * q, 2), mods=f"offset:{t * 2048 + 16 * q}")
    k.I("v_bfe_u32", v(t0), v(lane), 2, 2)
    k.I("v_lshl_add_u32", v(t0), v(hh), 3, v(t0))
    k.I("v_lshlrev_b32", v(vtr), 6, v(t0))
    k.I("v_bfe_u32", v(t0), v(lane), 4, 1)
    k.I("v_lshl_add_u32", v(vtr), v(t0), 5, v(vtr))
    k.I("v_and_b32", v(t0), 3, v(lane))
    k.I("v_lshl_add_u32", v(vtr), v(t0), 3, v(vtr))
    k.I("s_lshl_b32", s(st0), s(swave), 12)
    k.I("v_add_u32", v(vtr), s(st0), v(vtr))
    k.I("s_waitcnt", "lgkmcnt(0)")
    Z = cw[0]
    for ks in range(4):
        for beta in range(2):
            k.I("ds_read_b64_tr_b16", vr(Z + 4 * ks + 2 * beta, 2), v(vtr), mods=f"offset:{(16 * ks + 4 * beta) * 64}")
    k.I("s_mul_i32", s(soff), s(sft), ZS)
    k.I("s_lshr_b32", s(st0), s(sst), 5)
    k.I("s_mul_i32", s(st0), s(st0), ZK)
    k.I("s_add_u32", s(soff), s(soff), s(st0))
    k.I("s_and_b32", s(st0), s(sst), 31)
    k.I("s_lshl_b32", s(st0), s(st0), 11)
    k.I("s_add_u32", s(soff), s(soff), s(st0))
    k.I("s_add_u32", s(soff), s(soff), hex(Z2_OFF))
    for ks in range(4):
        k.I("s_waitcnt", f"lgkmcnt({6 - 2 * ks})")
        k.I("buffer_store_dwordx4", vr(Z + 4 * ks, 4), v(v16), sr(sWS, 4), s(soff), mods=f"offen offset:{ks * 1024}")
    stp.stamp(5)
    k.I("s_endpgm")
    k.L(pfrole)
    pp = k.salloc(2); sP = k.salloc(4); vT = k.valloc(); vd = k.valloc(4)
    k.I("s_load_dwordx2", sr(pp, 2), "s[0:1]", 40)
    k.I("s_sub_u32", s(st0), s(sidx), 28)
    k.I("s_lshl_b32", s(st0), s(st0), 9)
    k.I("v_add_u32", v(vT), s(st0), "v0")
    k.I("s_lshr_b32", s(st0), s(sj), 1)
    k.I("s_lshl_b32", s(st0), s(st0), 21)
    k.I("s_and_b32", s(st1), s(sj), 1)
    k.I("s_lshl_b32", s(st1), s(st1), 11)
    k.I("s_add_u32", s(st0), s(st0), s(st1))
    k.I("s_waitcnt", "lgkmcnt(0)")
    srd(k, sP, pp, 2048 * 4096)
    for i in range(4):
        k.I("v_add_u32", v(t0), 2048 * i, v(vT))
        k.I("v_lshrrev_b32", v(t1), 4, v(t0))
        k.I("v_lshlrev_b32", v(t1), 12, v(t1))
        k.I("v_and_b32", v(t2), 15, v(t0))
        k.I("v_lshl_add_u32", v(t1), v(t2), 7, v(t1))
        k.I("buffer_load_dword", v(vd + i), v(t1), sr(sP, 4), s(st0), mods="offen")
    k.L(R["done"])
    k.I("s_endpgm")
    k.lds = lds; k.threads = 512; k.grid = 256
    return k


def gen_k4b(Stamper):
    k = Kernel("k4_win_kernel")
    HREG = 0; WRING = 114688; WSL = 8192; NS = 5
    CWT = WRING + NS * WSL
    lds = CWT + 512
    R = common_start(k, 256)
    swave, st0, st1, soff, lane, t0, t1, t2 = (R[x] for x in ("swave", "st0", "st1", "soff", "lane", "t0", "t1", "t2"))
    pWin = k.salloc(2); pWS = k.salloc(2)
    k.I("s_load_dwordx2", sr(pWin, 2), "s[0:1]", 32)
    k.I("s_load_dwordx2", sr(pWS, 2), "s[0:1]", 80)
    sWS = k.salloc(4); sWin = k.salloc(4)
    sj = k.salloc(); sidx = k.salloc(); srb = k.salloc(); sct = k.salloc(); sw3 = k.salloc()
    k.I("s_and_b32", s(sj), "s2", 7)
    k.I("s_lshr_b32", s(sidx), "s2", 3)
    k.I("s_and_b32", s(sw3), s(swave), 3)
    pfrole = k.newlabel("pfrole")
    k.I("s_cmp_ge_u32", s(sidx), 28)
    k.I("s_cbranch_scc1", pfrole)
    k.I("s_cmp_ge_u32", s(sidx), 14)
    k.I("s_cselect_b32", s(st0), 1, 0)
    k.I("s_mul_i32", s(st1), s(st0), 14)
    k.I("s_sub_u32", s(sct), s(sidx), s(st1))
    k.I("s_lshl_b32", s(srb), s(sj), 1)
    k.I("s_add_u32", s(srb), s(srb), s(st0))
    stp = Stamper(k, 3, sWS, swave)
    sst = k.salloc()
    k.I("s_lshl_b32", s(sst), s(srb), 2)
    k.I("s_add_u32", s(sst), s(sst), s(sw3))
    k.I("s_waitcnt", "lgkmcnt(0)")
    srd(k, sWS, pWS, WS_SIZE)
    comp = k.newlabel("compute")
    k.I("s_cmp_lt_u32", s(swave), 4)
    k.I("s_cbranch_scc1", comp)
    vsave = k.vnext
    srd(k, sWin, pWin, 448 * 3584)
    v16 = k.valloc(); vWo = k.valloc()
    k.I("v_lshlrev_b32", v(v16), 4, v(lane))
    k.I("v_lshrrev_b32", v(t0), 3, v(lane))
    k.I("v_mul_u32_u24", v(t0), 3584, v(t0))
    k.I("v_bfe_u32", v(t1), v(lane), 4, 1)
    k.I("v_lshlrev_b32", v(t1), 2, v(t1))
    k.I("v_and_b32", v(t2), 7, v(lane))
    k.I("v_xor_b32", v(t1), v(t1), v(t2))
    k.I("v_lshl_add_u32", v(vWo), v(t1), 4, v(t0))
    sHb = k.salloc(); sWb = k.salloc(); smH = k.salloc(); smW = k.salloc()
    k.I("s_mul_i32", s(sHb), s(sst), 28 * 1024)
    k.I("s_add_u32", s(sHb), s(sHb), hex(H_OFF))
    k.I("s_mul_i32", s(smH), s(sw3), 28 * 1024)
    k.I("s_mul_i32", s(sWb), s(sw3), 16 * 3584)
    k.I("s_lshl_b32", s(st1), s(sct), 7)
    k.I("s_add_u32", s(sWb), s(sWb), s(st1))
    k.I("s_lshl_b32", s(smW), s(sw3), 11)
    k.I("s_add_u32", s(smW), s(smW), WRING)
    def issue(c):
        if c < 7:
            for i in range(4):
                k.I("s_add_u32", s(soff), s(sHb), hex((4 * c + i) * 1024))
                k.I("s_add_u32", "m0", s(smH), hex(HREG + (4 * c + i) * 1024))
                k.vm(("S", c), "buffer_load_dwordx4", v(v16), sr(sWS, 4), s(soff), mods="offen lds")
        cc = c % 7
        col = 1792 if c < 7 else 0
        for i in range(2):
            k.I("s_add_u32", s(soff), s(sWb), hex((64 * cc + 8 * i) * 3584 + col))
            k.I("s_add_u32", "m0", s(smW), hex((c % NS) * WSL + i * 1024))
            k.vm(("S", c), "buffer_load_dwordx4", v(vWo), sr(sWin, 4), s(soff), mods="offen lds")
    nocw = k.newlabel("nocw")
    issue(0)
    k.I("s_cmp_ge_u32", s(sw3), 2)
    k.I("s_cbranch_scc1", nocw)
    k.I("v_lshlrev_b32", v(t0), 2, v(lane))
    k.I("s_lshl_b32", s(st0), s(sct), 8)
    k.I("s_xor_b32", s(st1), s(sw3), 1)
    k.I("s_mul_i32", s(st1), s(st1), 896 * 4)
    k.I("s_add_u32", s(st0), s(st0), s(st1))
    k.I("s_add_u32", s(soff), s(st0), hex(CW_OFF))
    k.I("s_lshl_b32", s(st1), s(sw3), 8)
    k.I("s_add_u32", "m0", s(st1), CWT)
    k.I("buffer_load_dword", v(t0), sr(sWS, 4), s(soff), mods="offen lds")
    k.L(nocw)
    k.vmq.append(("S", 1))
    issue(1); issue(2)
    NST = 14
    for c in range(NST):
        if c == 0:
            k.I("s_waitcnt", "vmcnt(12)")
            k.vmq = k.vmq[6:]
        else:
            k.wait_vm(("S", c))
        k.I("s_barrier")
        if c == 0: issue(3); issue(4)
        elif c >= 2 and c + 3 < NST: issue(c + 3)
    k.I("s_endpgm")
    k.L(comp)
    k.vnext = vsave; k.vmq = []; k.lgq = []
    l31 = k.valloc(); hh = k.valloc()
    k.I("v_and_b32", v(l31), 31, v(lane))
    k.I("v_lshrrev_b32", v(hh), 5, v(lane))
    hs = k.valloc(16, 4); vh = k.valloc()
    k.I("v_mul_u32_u24", v(vh), 112, v(l31))
    k.I("v_lshl_add_u32", v(vh), v(hh), 6, v(vh))
    k.I("s_mul_i32", s(soff), s(sst), 32 * 112)
    sEX = k.salloc()
    k.I("s_add_u32", s(sEX), s(soff), hex(EX_OFF))
    k.I("s_add_u32", s(soff), s(soff), hex(HS_OFF))
    for i in range(4):
        k.vm("hs", "buffer_load_dwordx4", vr(hs + 4 * i, 4), v(vh), sr(sWS, 4), s(soff), mods=f"offen offset:{16 * i}")
    code_prefetch(k, "k5_sp_kernel", sidx, st0)
    stp.stamp(0)
    aH = k.valloc(); v16 = k.valloc(); vW = [k.valloc(), k.valloc()]
    k.I("v_lshlrev_b32", v(v16), 4, v(lane))
    k.I("s_mul_i32", s(st0), s(swave), 28 * 1024)
    k.I("v_add_u32", v(aH), s(st0), v(v16))
    k.I("v_bfe_u32", v(t0), v(lane), 2, 2)
    k.I("v_lshl_add_u32", v(t0), v(hh), 2, v(t0))
    k.I("v_lshlrev_b32", v(t0), 7, v(t0))
    k.I("v_add_u32", v(t0), WRING, v(t0))
    k.I("v_bfe_u32", v(t1), v(lane), 4, 1)
    k.I("v_lshlrev_b32", v(t1), 1, v(t1))
    k.I("v_bfe_u32", v(t2), v(lane), 1, 1)
    k.I("v_add_u32", v(t1), v(t1), v(t2))
    k.I("v_bfe_u32", v(t2), v(lane), 3, 1)
    k.I("v_lshlrev_b32", v(t2), 2, v(t2))
    for n2 in range(2):
        k.I("v_add_u32", v(vW[n2]), 4 * n2, v(t1))
        k.I("v_xor_b32", v(vW[n2]), v(vW[n2]), v(t2))
        k.I("v_lshl_add_u32", v(vW[n2]), v(vW[n2]), 4, v(t0))
    k.I("v_and_b32", v(t1), 1, v(lane))
    for n2 in range(2): k.I("v_lshl_add_u32", v(vW[n2]), v(t1), 3, v(vW[n2]))
    rr = k.valloc(2); nm = k.valloc(2); c0r = k.valloc(2); c1r = k.valloc(2)
    k.wait_vm("hs")
    k.I("v_cmp_eq_u32", "vcc", 0, v(hh))
    H = hs
    for i in range(12, 16): k.I("v_cndmask_b32", v(H + i), 0, v(H + i), "vcc")
    for i in range(4): k.I("v_pk_add_f32", vr(H + 2 * i, 2), vr(H + 2 * i, 2), vr(H + 8 + 2 * i, 2))
    for i in range(2): k.I("v_pk_add_f32", vr(H + 2 * i, 2), vr(H + 2 * i, 2), vr(H + 4 + 2 * i, 2))
    k.I("v_pk_add_f32", vr(H, 2), vr(H, 2), vr(H + 2, 2))
    for e in range(2):
        k.I("v_mov_b32", v(H + 2), v(H + e))
        k.I("v_permlane32_swap_b32", v(H + e), v(H + 2))
        k.I("v_add_f32", v(H + e), v(H + e), v(H + 2))
    k.I("v_mul_f32", v(nm), hex(f32(-1.0 / 448)), v(H))
    k.I("v_mul_f32", v(H + 1), hex(f32(1.0 / 448)), v(H + 1))
    k.I("v_fma_f32", v(H + 1), f"-{v(nm)}", v(nm), v(H + 1))
    k.I("v_max_f32", v(H + 1), 0, v(H + 1))
    k.I("v_add_f32", v(H + 1), hex(f32(1e-5)), v(H + 1))
    k.I("v_rsq_f32", v(rr), v(H + 1))
    k.I("v_mul_f32", v(c0r), hex(f32(GELU_C0)), v(rr))
    k.I("v_mul_f32", v(c1r), v(rr), v(rr))
    k.I("v_mul_f32", v(c1r), v(c1r), v(rr))
    k.I("v_mul_f32", v(c1r), hex(f32(GELU_C1)), v(c1r))
    norh = k.newlabel("norh")
    k.I("s_cmp_lg_u32", s(sct), 0)
    k.I("s_cbranch_scc1", norh)
    k.I("v_lshlrev_b32", v(t0), 2, v(l31))
    k.I("s_lshl_b32", s(st0), s(sst), 7)
    k.I("s_add_u32", s(st0), s(st0), hex(RH_OFF))
    k.I("buffer_store_dword", v(rr), v(t0), sr(sWS, 4), s(st0), mods="offen")
    k.L(norh)
    acc = [[k.valloc(16, 4) for _ in range(2)] for _ in range(2)]
    cwr = hs
    tp = [k.valloc(2) for _ in range(4)]
    NB = 3
    hf = [k.valloc(4) for _ in range(NB)]
    wf = [[k.valloc(4) for _ in range(2)] for _ in range(NB)]
    def rl(g):
        ks = g % 28; c = g // 4; j = g % 4
        b = g % NB
        out = [lambda: k.lg(("f", g), "ds_read_b128", vr(hf[b], 4), v(aH), mods=f"offset:{ks * 1024}")]
        for n2 in range(2):
            for beta in range(2):
                o = (c % NS) * WSL + (16 * j + 8 * beta) * 128
                out.append(lambda o=o, n2=n2, beta=beta: k.lg(("f", g), "ds_read_b64_tr_b16", vr(wf[b][n2] + 2 * beta, 2), v(vW[n2]), mods=f"offset:{o}"))
        return out
    vcw = k.valloc()
    k.I("v_lshlrev_b32", v(vcw), 4, v(hh))
    k.I("v_add_u32", v(vcw), CWT, v(vcw))
    def gelu_tile(A, z, n2):
        for q in range(4):
            k.lg("cw", "ds_read_b128", vr(cwr + 4 * q, 4), v(vcw), mods=f"offset:{z * 256 + n2 * 128 + 32 * q}")
        k.wait_lg("cw")
        for j in range(8):
            k.I("v_pk_fma_f32", vr(A + 2 * j, 2), vr(cwr + 2 * j, 2), vr(nm, 2), vr(A + 2 * j, 2), mods="op_sel_hi:[1,0,1]")
        for j0 in range(0, 8, 4):
            for j in range(j0, j0 + 4): k.I("v_pk_mul_f32", vr(tp[j - j0], 2), vr(A + 2 * j, 2), vr(A + 2 * j, 2))
            for j in range(j0, j0 + 4): k.I("v_pk_fma_f32", vr(tp[j - j0], 2), vr(tp[j - j0], 2), vr(c1r, 2), vr(c0r, 2), mods="op_sel_hi:[1,0,0]")
            for j in range(j0, j0 + 4): k.I("v_pk_mul_f32", vr(tp[j - j0], 2), vr(tp[j - j0], 2), vr(A + 2 * j, 2))
            for j in range(j0, j0 + 4):
                k.I("v_exp_f32", v(tp[j - j0]), v(tp[j - j0])); k.I("v_exp_f32", v(tp[j - j0] + 1), v(tp[j - j0] + 1))
            for j in range(j0, j0 + 4): k.I("v_pk_add_f32", vr(tp[j - j0], 2), vr(tp[j - j0], 2), "1.0", mods="op_sel_hi:[1,0]")
            for j in range(j0, j0 + 4):
                k.I("v_rcp_f32", v(tp[j - j0]), v(tp[j - j0])); k.I("v_rcp_f32", v(tp[j - j0] + 1), v(tp[j - j0] + 1))
            for j in range(j0, j0 + 4): k.I("v_pk_mul_f32", vr(A + 2 * j, 2), vr(A + 2 * j, 2), vr(tp[j - j0], 2))
    def mainloop(z):
        for g in range(28 * z, 28 * z + 28):
            ks = g % 28; j = g % 4; c = g // 4
            b = g % NB
            k.wait_lg(("f", g))
            mf = [lambda n2=n2: k.I("v_mfma_f32_32x32x16_bf16", vr(acc[z][n2], 16), vr(wf[b][n2], 4), vr(hf[b], 4), 0 if ks == 0 else vr(acc[z][n2], 16)) for n2 in range(2)]
            nxt = g + 2
            fl = rl(nxt) if nxt < 28 * z + 28 else []
            if j == 2 and c + 1 < NST: k.I("s_barrier")
            interleave(k, mf, fl)
    k.I("s_barrier")
    stp.stamp(1)
    for f in rl(0) + rl(1): f()
    mainloop(0)
    for f in rl(28) + rl(29): f()
    stp.stamp(2)
    accs = k.valloc(2); accq = k.valloc(2)
    for n2 in range(2):
        A = acc[0][n2]
        gelu_tile(A, 0, n2)
        for j in range(8):
            k.I("v_pk_mul_f32", vr(A + 2 * j, 2), vr(A + 2 * j, 2), vr(rr, 2), mods="op_sel_hi:[1,0]")
        for j in range(8):
            if n2 == 0 and j == 0:
                k.I("v_mov_b32", v(accs), v(A)); k.I("v_mov_b32", v(accs + 1), v(A + 1))
                k.I("v_pk_mul_f32", vr(accq, 2), vr(A, 2), vr(A, 2))
            else:
                k.I("v_pk_add_f32", vr(accs, 2), vr(accs, 2), vr(A + 2 * j, 2))
                k.I("v_pk_fma_f32", vr(accq, 2), vr(A + 2 * j, 2), vr(A + 2 * j, 2), vr(accq, 2))
    k.I("v_add_f32", v(accs), v(accs), v(accs + 1))
    k.I("v_add_f32", v(accs + 1), v(accq), v(accq + 1))
    for e in range(2):
        k.I("v_mov_b32", v(accq), v(accs + e))
        k.I("v_permlane32_swap_b32", v(accs + e), v(accq))
        k.I("v_add_f32", v(accs + e), v(accs + e), v(accq))
    k.I("v_mov_b32", v(t1), "0x7fc00000")
    k.I("v_cmp_eq_u32", "vcc", -1, v(accs + 1))
    k.I("v_cndmask_b32", v(accs + 1), v(accs + 1), v(t1), "vcc")
    ve = k.valloc()
    k.I("v_mul_u32_u24", v(ve), 112, v(l31))
    k.I("s_lshl_b32", s(st0), s(sct), 3)
    k.I("s_add_u32", s(soff), s(sEX), s(st0))
    k.I("s_mov_b32", "exec_hi", 0)
    k.I("buffer_store_dwordx2", vr(accs, 2), v(ve), sr(sWS, 4), s(soff), mods="offen sc0 sc1")
    k.I("s_mov_b64", "exec", -1)
    stp.stamp(3)
    mainloop(1)
    ex = k.valloc(16, 4)
    for i in range(4):
        k.I("buffer_load_dwordx4", vr(ex + 4 * i, 4), v(vh), sr(sWS, 4), s(sEX), mods=f"offen offset:{16 * i} sc0 sc1")
    P = [k.valloc(8, 4) for _ in range(2)]
    sft = k.salloc()
    k.I("s_lshl_b32", s(sft), s(sct), 1)
    for n2 in range(2):
        A = acc[1][n2]
        gelu_tile(A, 1, n2)
        for j in range(8): k.I("v_cvt_pk_bf16_f32", v(P[n2] + j), v(A + 2 * j), v(A + 2 * j + 1))
        k.I("s_mul_i32", s(soff), s(sst), 56 * 1024)
        k.I("s_add_u32", s(st0), s(sft), n2)
        k.I("s_lshl_b32", s(st0), s(st0), 11)
        k.I("s_add_u32", s(soff), s(soff), s(st0))
        k.I("s_add_u32", s(soff), s(soff), hex(Z1_OFF))
        k.I("buffer_store_dwordx4", vr(P[n2], 4), v(v16), sr(sWS, 4), s(soff), mods="offen")
        k.I("buffer_store_dwordx4", vr(P[n2] + 4, 4), v(v16), sr(sWS, 4), s(soff), mods="offen offset:1024")
    stp.stamp(4)
    scount = k.salloc()
    k.I("s_mov_b32", s(scount), 0)
    poll = k.newlabel("poll"); pdone = k.newlabel("pdone"); pchk = k.newlabel("pchk")
    k.I("s_waitcnt", "vmcnt(4)")
    k.I("s_branch", pchk)
    k.L(poll)
    for i in range(4):
        k.I("buffer_load_dwordx4", vr(ex + 4 * i, 4), v(vh), sr(sWS, 4), s(sEX), mods=f"offen offset:{16 * i} sc0 sc1")
    k.I("s_waitcnt", "vmcnt(0)")
    k.L(pchk)
    k.I("v_cmp_eq_u32", "vcc", 0, v(hh))
    for i in range(12, 16): k.I("v_cndmask_b32", v(ex + i), 0, v(ex + i), "vcc")
    k.I("v_max_u32", v(t0), v(ex + 1), v(ex + 3))
    for i in range(2, 8): k.I("v_max_u32", v(t0), v(t0), v(ex + 2 * i + 1))
    k.I("v_cmp_eq_u32", "vcc", -1, v(t0))
    k.I("s_add_u32", s(scount), s(scount), 1)
    k.I("s_cmp_eq_u64", "vcc", 0)
    k.I("s_cbranch_scc1", pdone)
    k.I("s_cmp_lt_u32", s(scount), 0x40000)
    k.I("s_cbranch_scc0", pdone)
    k.I("s_sleep", 1)
    k.I("s_branch", poll)
    k.L(pdone)
    k.vmq = []
    sc_ = k.valloc(2); zm = k.valloc(2)
    H = ex
    for i in range(4): k.I("v_pk_add_f32", vr(H + 2 * i, 2), vr(H + 2 * i, 2), vr(H + 8 + 2 * i, 2))
    for i in range(2): k.I("v_pk_add_f32", vr(H + 2 * i, 2), vr(H + 2 * i, 2), vr(H + 4 + 2 * i, 2))
    k.I("v_pk_add_f32", vr(H, 2), vr(H, 2), vr(H + 2, 2))
    for e in range(2):
        k.I("v_mov_b32", v(H + 2), v(H + e))
        k.I("v_permlane32_swap_b32", v(H + e), v(H + 2))
        k.I("v_add_f32", v(H + e), v(H + e), v(H + 2))
    k.I("v_mul_f32", v(zm), hex(f32(-1.0 / 896)), v(H))
    k.I("v_mul_f32", v(H + 1), hex(f32(1.0 / 896)), v(H + 1))
    k.I("v_fma_f32", v(H + 1), f"-{v(zm)}", v(zm), v(H + 1))
    k.I("v_max_f32", v(H + 1), 0, v(H + 1))
    k.I("v_add_f32", v(H + 1), hex(f32(1e-5)), v(H + 1))
    k.I("v_rsq_f32", v(sc_), v(H + 1))
    k.I("v_mul_f32", v(zm), v(zm), v(sc_))
    vt = k.valloc(); vtr = k.valloc()
    k.I("s_mul_i32", s(st0), s(swave), 28 * 1024)
    k.I("v_mul_u32_u24", v(vt), 136, v(l31))
    k.I("v_lshl_add_u32", v(vt), v(hh), 3, v(vt))
    k.I("v_add_u32", v(vt), s(st0), v(vt))
    for n2 in range(2):
        A = acc[0][n2]
        for j in range(8):
            k.I("v_pk_fma_f32", vr(A + 2 * j, 2), vr(A + 2 * j, 2), vr(sc_, 2), vr(zm, 2), mods="op_sel_hi:[1,0,0]")
        for j in range(8): k.I("v_cvt_pk_bf16_f32", v(P[n2] + j), v(A + 2 * j), v(A + 2 * j + 1))
        for q in range(4):
            k.I("ds_write_b64", v(vt), vr(P[n2] + 2 * q, 2), mods=f"offset:{64 * n2 + 16 * q}")
    k.I("v_bfe_u32", v(t0), v(lane), 2, 2)
    k.I("v_lshl_add_u32", v(t0), v(hh), 3, v(t0))
    k.I("v_mul_u32_u24", v(vtr), 136, v(t0))
    k.I("v_bfe_u32", v(t0), v(lane), 4, 1)
    k.I("v_lshl_add_u32", v(vtr), v(t0), 5, v(vtr))
    k.I("v_and_b32", v(t0), 3, v(lane))
    k.I("v_lshl_add_u32", v(vtr), v(t0), 3, v(vtr))
    k.I("v_add_u32", v(vtr), s(st0), v(vtr))
    k.I("s_waitcnt", "lgkmcnt(0)")
    Z = acc[1][0]
    for n2 in range(2):
        for ks in range(2):
            for beta in range(2):
                k.I("ds_read_b64_tr_b16", vr(Z + 8 * n2 + 4 * ks + 2 * beta, 2), v(vtr), mods=f"offset:{(16 * ks + 4 * beta) * 136 + 64 * n2}")
    k.I("s_lshr_b32", s(st0), s(sst), 5)
    k.I("s_mul_i32", s(st0), s(st0), ZK)
    k.I("s_and_b32", s(st1), s(sst), 31)
    k.I("s_lshl_b32", s(st1), s(st1), 11)
    k.I("s_add_u32", s(st0), s(st0), s(st1))
    k.I("s_add_u32", s(st0), s(st0), hex(Z2_OFF))
    for n2 in range(2):
        k.I("s_add_u32", s(st1), s(sft), n2)
        k.I("s_mul_i32", s(soff), s(st1), ZS)
        k.I("s_add_u32", s(soff), s(soff), s(st0))
        for ks in range(2):
            k.I("s_waitcnt", f"lgkmcnt({6 - 4 * n2 - 2 * ks})")
            k.I("buffer_store_dwordx4", vr(Z + 8 * n2 + 4 * ks, 4), v(v16), sr(sWS, 4), s(soff), mods=f"offen offset:{ks * 1024}")
    stp.stamp(5)
    k.I("s_endpgm")
    k.L(pfrole)
    pp = k.salloc(2); sP = k.salloc(4); vT = k.valloc(); vd = k.valloc(4)
    k.I("s_load_dwordx2", sr(pp, 2), "s[0:1]", 40)
    k.I("s_sub_u32", s(st0), s(sidx), 28)
    k.I("s_lshl_b32", s(st0), s(st0), 9)
    k.I("v_add_u32", v(vT), s(st0), "v0")
    k.I("s_lshr_b32", s(st0), s(sj), 1)
    k.I("s_lshl_b32", s(st0), s(st0), 21)
    k.I("s_and_b32", s(st1), s(sj), 1)
    k.I("s_lshl_b32", s(st1), s(st1), 11)
    k.I("s_add_u32", s(st0), s(st0), s(st1))
    k.I("s_waitcnt", "lgkmcnt(0)")
    srd(k, sP, pp, 2048 * 4096)
    for i in range(4):
        k.I("v_add_u32", v(t0), 2048 * i, v(vT))
        k.I("v_lshrrev_b32", v(t1), 4, v(t0))
        k.I("v_lshlrev_b32", v(t1), 12, v(t1))
        k.I("v_and_b32", v(t2), 15, v(t0))
        k.I("v_lshl_add_u32", v(t1), v(t2), 7, v(t1))
        k.I("buffer_load_dword", v(vd + i), v(t1), sr(sP, 4), s(st0), mods="offen")
    k.L(R["done"])
    k.I("s_endpgm")
    k.lds = lds; k.threads = 512; k.grid = 256
    return k

def gen_k5(Stamper):
    k = Kernel("k5_sp_kernel")
    NS = 4; SLOT = 32768
    Z1REG = NS * SLOT
    lds = Z1REG + 32768
    R = common_start(k, 256)
    swave, st0, st1, soff, lane, t0, t1, t2 = (R[x] for x in ("swave", "st0", "st1", "soff", "lane", "t0", "t1", "t2"))
    pSp = k.salloc(2); pB = k.salloc(2); pWS = k.salloc(2)
    k.I("s_load_dwordx2", sr(pSp, 2), "s[0:1]", 40)
    k.I("s_load_dwordx2", sr(pB, 2), "s[0:1]", 48)
    k.I("s_load_dwordx2", sr(pWS, 2), "s[0:1]", 80)
    sWS = k.salloc(4); sSp = k.salloc(4); sB = k.salloc(4)
    sj = k.salloc(); sidx = k.salloc(); stt = k.salloc(); sft = k.salloc(); skap = k.salloc(); sw3 = k.salloc()
    if os.environ.get("K5MAP") == "linear":
        k.I("s_mul_i32", s(sj), "s2", 2341)
        k.I("s_lshr_b32", s(sj), s(sj), 16)
        k.I("s_mul_i32", s(sidx), s(sj), 28)
        k.I("s_sub_u32", s(sidx), "s2", s(sidx))
    else:
        k.I("s_and_b32", s(sj), "s2", 7)
        k.I("s_lshr_b32", s(sidx), "s2", 3)
    pfrole = k.newlabel("pfrole")
    k.I("s_cmp_ge_u32", s(sidx), 28)
    k.I("s_cbranch_scc1", pfrole)
    k.I("s_and_b32", s(sw3), s(swave), 3)
    k.I("s_and_b32", s(skap), s(sj), 1)
    k.I("s_mul_i32", s(st0), s(sidx), 37)
    k.I("s_lshr_b32", s(st0), s(st0), 8)
    k.I("s_mul_i32", s(st1), s(st0), 7)
    k.I("s_sub_u32", s(sft), s(sidx), s(st1))
    k.I("s_lshr_b32", s(stt), s(sj), 1)
    k.I("s_lshl_b32", s(stt), s(stt), 2)
    k.I("s_add_u32", s(stt), s(stt), s(st0))
    stp = Stamper(k, 4, sWS, swave)
    if os.environ.get("TICKWAVE", "0") != "0": stp.tick(0)
    k.I("s_waitcnt", "lgkmcnt(0)")
    srd(k, sWS, pWS, WS_SIZE)
    comp = k.newlabel("compute")
    k.I("s_cmp_lt_u32", s(swave), 4)
    k.I("s_cbranch_scc1", comp)
    vsave = k.vnext
    srd(k, sSp, pSp, 2048 * 4096)
    v16 = k.valloc(); vWo = k.valloc(2)
    k.I("v_lshlrev_b32", v(v16), 4, v(lane))
    k.I("v_lshrrev_b32", v(t0), 3, v(lane))
    k.I("v_lshlrev_b32", v(t0), 12, v(t0))
    k.I("v_lshrrev_b32", v(t1), 4, v(lane))
    k.I("v_and_b32", v(t2), 7, v(lane))
    k.I("v_xor_b32", v(t1), v(t1), v(t2))
    k.I("v_lshl_add_u32", v(vWo), v(t1), 4, v(t0))
    k.I("v_xor_b32", v(t1), 4, v(t1))
    k.I("v_lshl_add_u32", v(vWo + 1), v(t1), 4, v(t0))
    sZb = k.salloc(); sWb = k.salloc(); smZ = k.salloc(); smW = k.salloc()
    k.I("s_lshl_b32", s(st0), s(sft), 2)
    k.I("s_add_u32", s(st0), s(st0), s(sw3))
    k.I("s_mul_i32", s(sZb), s(st0), ZS)
    k.I("s_mul_i32", s(st1), s(skap), ZK)
    k.I("s_add_u32", s(sZb), s(sZb), s(st1))
    k.I("s_add_u32", s(sZb), s(sZb), hex(Z2_OFF))
    k.I("s_lshl_b32", s(smZ), s(sw3), 12)
    k.I("s_lshl_b32", s(st0), s(stt), 7)
    k.I("s_lshl_b32", s(st1), s(sw3), 5)
    k.I("s_add_u32", s(st0), s(st0), s(st1))
    k.I("s_lshl_b32", s(sWb), s(st0), 12)
    k.I("s_lshl_b32", s(st1), s(skap), 11)
    k.I("s_add_u32", s(sWb), s(sWb), s(st1))
    k.I("s_add_u32", s(smW), s(smZ), 16384)
    def issue(c):
        sl = (c % NS) * SLOT
        def zpart():
            for i in range(4):
                k.I("s_add_u32", s(soff), s(sZb), hex((4 * c + i) * 1024))
                k.I("s_add_u32", "m0", s(smZ), hex(sl + i * 1024))
                k.vm(("S", c), "buffer_load_dwordx4", v(v16), sr(sWS, 4), s(soff), mods="offen lds")
                if os.environ.get("DIAG5") and c == 0 and i in (0, 3):
                    k.I("s_waitcnt", "vmcnt(0)"); stp.tick(10 + (i > 0))
        def wpart():
            for i in range(4):
                k.I("s_add_u32", s(soff), s(sWb), hex(i * 8 * 4096 + c * 128))
                k.I("s_add_u32", "m0", s(smW), hex(sl + i * 1024))
                k.vm(("S", c), "buffer_load_dwordx4", v(vWo + (i & 1)), sr(sSp, 4), s(soff), mods="offen lds")
                if os.environ.get("DIAG5") and c == 0 and i in (0, 3):
                    k.I("s_waitcnt", "vmcnt(0)"); stp.tick(12 + (i > 0))
        if os.environ.get("DIAG5") == "2": wpart(); zpart()
        else: zpart(); wpart()
    NST = 16
    sZ1 = k.salloc()
    k.I("s_lshl_b32", s(st0), s(stt), 2)
    k.I("s_add_u32", s(st0), s(st0), s(sw3))
    k.I("s_mul_i32", s(sZ1), s(st0), 56 * 1024)
    k.I("s_lshl_b32", s(st1), s(sft), 13)
    k.I("s_add_u32", s(sZ1), s(sZ1), s(st1))
    k.I("s_add_u32", s(sZ1), s(sZ1), hex(Z1_OFF))
    smZ1 = k.salloc()
    k.I("s_lshl_b32", s(smZ1), s(sw3), 13)
    def issue_z1(i, tag):
        k.I("s_add_u32", s(soff), s(sZ1), hex(i * 1024))
        k.I("s_add_u32", "m0", s(smZ1), hex(Z1REG + i * 1024))
        k.vm(("S", tag), "buffer_load_dwordx4", v(v16), sr(sWS, 4), s(soff), mods="offen lds")
    LT = os.environ.get("TICKWAVE", "0") != "0"
    if LT: stp.tick(1)
    issue(0)
    if LT: stp.tick(2)
    issue(1)
    if LT: stp.tick(3)
    for c in range(NST):
        k.wait_vm(("S", c))
        if LT and c < 3: stp.tick(4 + 2 * c)
        k.I("s_barrier")
        if LT and c < 3: stp.tick(5 + 2 * c)
        if c == 0: issue(2); issue(3)
        elif c + 2 < NST and c >= 2:
            issue(c + 2)
            if 3 <= c < 11: issue_z1(c - 3, c + 2)
    vT = k.valloc()
    k.I("s_lshl_b32", s(st0), s(sidx), 8)
    k.I("v_subrev_u32", v(vT), 256, "v0")
    k.I("v_add_u32", v(vT), s(st0), v(vT))
    k.I("v_lshlrev_b32", v(vT), 7, v(vT))
    if LT: stp.dump_ticks()
    k.I("s_endpgm")
    k.L(comp)
    k.vnext = vsave; k.vmq = []; k.lgq = []
    srd(k, sB, pB, 4096)
    l31 = k.valloc(); hh = k.valloc()
    k.I("v_and_b32", v(l31), 31, v(lane))
    k.I("v_lshrrev_b32", v(hh), 5, v(lane))
    sfh = k.salloc(); sth = k.salloc(); sst = k.salloc(); sf32 = k.salloc()
    k.I("s_and_b32", s(sfh), s(swave), 1)
    k.I("s_lshr_b32", s(sth), s(swave), 1)
    k.I("s_lshl_b32", s(sst), s(stt), 2)
    k.I("s_lshl_b32", s(st0), s(sth), 1)
    k.I("s_add_u32", s(sst), s(sst), s(st0))
    k.I("s_lshl_b32", s(sf32), s(sft), 2)
    k.I("s_lshl_b32", s(st0), s(sfh), 1)
    k.I("s_add_u32", s(sf32), s(sf32), s(st0))
    if os.environ.get("PF3", "0") == "1":
        vT0 = k.valloc(); vd0 = k.valloc(2)
        k.I("s_lshl_b32", s(st0), s(sidx), 8)
        k.I("v_add_u32", v(vT0), s(st0), "v0")
        k.I("s_lshl_b32", s(st1), s(skap), 16)
        k.I("s_add_u32", s(st1), s(st1), hex(Z2_OFF))
        for i in range(2):
            k.I("v_add_u32", v(t0), 7168 * i, v(vT0))
            k.I("v_lshrrev_b32", v(t1), 9, v(t0))
            k.I("v_lshlrev_b32", v(t1), 17, v(t1))
            k.I("v_and_b32", v(t2), 511, v(t0))
            k.I("v_lshl_add_u32", v(t1), v(t2), 7, v(t1))
            k.vm("pf", "buffer_load_dword", v(vd0 + i), v(t1), sr(sWS, 4), s(st1), mods="offen")
    v16 = k.valloc()
    k.I("v_lshlrev_b32", v(v16), 4, v(lane))
    z1 = [[k.valloc(8, 4) for _ in range(2)] for _ in range(2)]
    rr = [k.valloc(2) for _ in range(2)]; bb = [k.valloc(2) for _ in range(2)]
    k.I("v_lshlrev_b32", v(t0), 2, v(l31))
    k.I("v_lshlrev_b32", v(t1), 1, v(l31))
    for ti in range(2):
        k.I("s_add_u32", s(st0), s(sst), ti)
        k.I("s_lshl_b32", s(soff), s(st0), 7)
        k.I("s_add_u32", s(soff), s(soff), hex(RH_OFF))
        k.vm("z1", "buffer_load_dword", v(rr[ti]), v(t0), sr(sWS, 4), s(soff), mods="offen")
        k.I("s_lshl_b32", s(soff), s(st0), 6)
        k.vm("z1", "buffer_load_ushort", v(bb[ti]), v(t1), sr(sB, 4), s(soff), mods="offen")
    if os.environ.get("PF2", "0") == "1":
        pp = k.salloc(2); sP = k.salloc(4); vT = k.valloc(); vd = k.valloc(2)
        k.I("s_load_dwordx2", sr(pp, 2), "s[0:1]", 56)
        k.I("s_lshl_b32", s(st0), s(sidx), 8)
        k.I("v_add_u32", v(vT), s(st0), "v0")
        k.I("v_lshlrev_b32", v(vT), 7, v(vT))
        k.I("s_waitcnt", "lgkmcnt(0)")
        srd(k, sP, pp, 896 * 896)
        k.vm("pf", "buffer_load_dword", v(vd), v(vT), sr(sP, 4), 0, mods="offen")
    code_prefetch(k, "k6_wout_kernel", sidx, st0)
    stp.stamp(0)
    aZ = k.valloc(); aW = k.valloc(4)
    k.I("s_lshl_b32", s(st0), s(sfh), 13)
    k.I("v_add_u32", v(aZ), s(st0), v(v16))
    k.I("v_bfe_u32", v(t0), v(l31), 1, 3)
    for j in range(4):
        k.I("v_add_u32", v(t1), 2 * j, v(hh))
        k.I("v_xor_b32", v(t1), v(t1), v(t0))
        k.I("v_lshlrev_b32", v(t1), 4, v(t1))
        k.I("v_lshl_add_u32", v(aW + j), v(l31), 7, v(t1))
        k.I("s_lshl_b32", s(st0), s(sth), 13)
        k.I("s_add_u32", s(st0), s(st0), 16384)
        k.I("v_add_u32", v(aW + j), s(st0), v(aW + j))
    aZ2 = k.valloc(); aW2 = k.valloc(4)
    k.I("v_add_u32", v(aZ2), 65536, v(aZ))
    for j in range(4): k.I("v_add_u32", v(aW2 + j), 65536, v(aW + j))
    acc = [[k.valloc(16, 4) for _ in range(2)] for _ in range(2)]
    NB = 3
    zf = [[k.valloc(4) for _ in range(2)] for _ in range(NB)]
    wf = [[k.valloc(4) for _ in range(2)] for _ in range(NB)]
    def rl(ks):
        c, j = ks // 4, ks % 4
        b = ks % NB
        sl = (c % NS) * SLOT
        hi = sl >= 65536
        so = sl - (65536 if hi else 0)
        out = []
        for fi in range(2):
            out.append(lambda fi=fi: k.lg(("f", ks), "ds_read_b128", vr(zf[b][fi], 4), v(aZ2 if hi else aZ), mods=f"offset:{so + fi * 4096 + j * 1024}"))
        for ti in range(2):
            out.append(lambda ti=ti: k.lg(("f", ks), "ds_read_b128", vr(wf[b][ti], 4), v((aW2 if hi else aW) + j), mods=f"offset:{so + ti * 4096}"))
        return out
    k.I("s_barrier")
    stp.stamp(1)
    for f in rl(0) + rl(1): f()
    NKS = NST * 4
    for ks in range(NKS):
        c, j = ks // 4, ks % 4
        b = ks % NB
        k.wait_lg(("f", ks))
        mf = []
        for fi in range(2):
            for ti in range(2):
                mf.append(lambda fi=fi, ti=ti: k.I("v_mfma_f32_32x32x16_bf16", vr(acc[fi][ti], 16), vr(zf[b][fi], 4), vr(wf[b][ti], 4), 0 if ks == 0 else vr(acc[fi][ti], 16)))
        fl = rl(ks + 2) if ks + 2 < NKS else []
        if j == 2 and ks + 2 < NKS:
            if not LT and c in (0, 13, 14): stp.tick({0: 0, 13: 1, 14: 2}[c])
            k.I("s_barrier")
        interleave(k, mf, fl)
    if not LT: stp.tick(3)
    stp.stamp(2)
    if not LT: stp.tick(4)
    if not LT: stp.tick(5)
    vz = k.valloc()
    k.I("s_lshl_b32", s(st0), s(sth), 14)
    k.I("s_lshl_b32", s(st1), s(sfh), 12)
    k.I("s_add_u32", s(st0), s(st0), s(st1))
    k.I("s_add_u32", s(st0), s(st0), Z1REG)
    k.I("v_add_u32", v(vz), s(st0), v(v16))
    for ti in range(2):
        for fi in range(2):
            for hf_ in range(2):
                k.lg(("z1", ti, fi), "ds_read_b128", vr(z1[fi][ti] + 4 * hf_, 4), v(vz), mods=f"offset:{ti * 8192 + fi * 2048 + hf_ * 1024}")
    k.wait_vm("z1")
    for ti in range(2):
        k.I("v_lshlrev_b32", v(bb[ti]), 16, v(bb[ti]))
        k.I("v_mul_f32", v(bb[ti]), v(bb[ti]), v(rr[ti]))
    k.I("s_cmp_eq_u32", s(skap), 0)
    k.I("s_cselect_b32", s(st0), "1.0", 0)
    for ti in range(2): k.I("v_mul_f32", v(bb[ti]), s(st0), v(bb[ti]))
    tp = [k.valloc(2) for _ in range(4)]
    P = [k.valloc(8, 4) for _ in range(2)]
    sU = k.salloc()
    k.I("s_mul_i32", s(sU), s(skap), U1_OFF - U0_OFF)
    k.I("s_add_u32", s(sU), s(sU), hex(U0_OFF))
    n = 0
    for ti in range(2):
        for fi in range(2):
            A = acc[fi][ti]; Zp = z1[fi][ti]; PP = P[n & 1]; n += 1
            for j in range(8):
                k.I("v_pk_fma_f32", vr(A + 2 * j, 2), vr(A + 2 * j, 2), vr(rr[ti], 2), vr(bb[ti], 2), mods="op_sel_hi:[1,0,0]")
            k.wait_lg(("z1", ti, fi))
            for j in range(8):
                T = tp[j % 4]
                k.I("v_lshlrev_b32", v(T), 16, v(Zp + j))
                k.I("v_and_b32", v(T + 1), "0xffff0000", v(Zp + j))
                k.I("v_pk_mul_f32", vr(A + 2 * j, 2), vr(A + 2 * j, 2), vr(T, 2))
            for j in range(8): k.I("v_cvt_pk_bf16_f32", v(PP + j), v(A + 2 * j), v(A + 2 * j + 1))
            k.I("s_add_u32", s(st0), s(sst), ti)
            k.I("s_mul_i32", s(soff), s(st0), 56 * 1024)
            k.I("s_add_u32", s(st0), s(sf32), fi)
            k.I("s_lshl_b32", s(st0), s(st0), 11)
            k.I("s_add_u32", s(soff), s(soff), s(st0))
            k.I("s_add_u32", s(soff), s(soff), s(sU))
            k.I("buffer_store_dwordx4", vr(PP, 4), v(v16), sr(sWS, 4), s(soff), mods="offen")
            k.I("buffer_store_dwordx4", vr(PP + 4, 4), v(v16), sr(sWS, 4), s(soff), mods="offen offset:1024")
            if not LT: stp.tick(5 + n)
    stp.stamp(3)
    if not LT: stp.tick(10)
    if not LT: stp.dump_ticks()
    k.I("s_endpgm")
    k.L(pfrole)
    vT2 = k.valloc()
    k.I("s_sub_u32", s(st0), s(sidx), 28)
    k.I("s_lshl_b32", s(st0), s(st0), 9)
    k.I("v_add_u32", v(vT2), s(st0), "v0")
    k.I("v_lshlrev_b32", v(vT2), 7, v(vT2))
    l2_prefetch(k, 56, 896 * 896, vT2, 2048, st0)
    k.L(R["done"])
    k.I("s_endpgm")
    k.lds = lds; k.threads = 512; k.grid = 256
    return k

def gen_k56(Stamper):
    k = Kernel("k5_sp_kernel")
    NS = 4; SLOT = 32768
    Z1REG = NS * SLOT
    lds = Z1REG + 32768
    R = common_start(k, 256)
    swave, st0, st1, soff, lane, t0, t1, t2 = (R[x] for x in ("swave", "st0", "st1", "soff", "lane", "t0", "t1", "t2"))
    pSp = k.salloc(2); pB = k.salloc(2); pWS = k.salloc(2)
    k.I("s_load_dwordx2", sr(pSp, 2), "s[0:1]", 40)
    k.I("s_load_dwordx2", sr(pB, 2), "s[0:1]", 48)
    k.I("s_load_dwordx2", sr(pWS, 2), "s[0:1]", 80)
    pWo = k.salloc(2); pOD = k.salloc(4)
    k.I("s_load_dwordx2", sr(pWo, 2), "s[0:1]", 56)
    k.I("s_load_dwordx4", sr(pOD, 4), "s[0:1]", 64)
    sWS = k.salloc(4); sSp = k.salloc(4); sB = k.salloc(4); sWo = k.salloc(4); sOut = k.salloc(4); sD = k.salloc(4)
    sj = k.salloc(); sidx = k.salloc(); stt = k.salloc(); sft = k.salloc(); skap = k.salloc(); sw3 = k.salloc()
    if os.environ.get("K5MAP") == "linear":
        k.I("s_mul_i32", s(sj), "s2", 2341)
        k.I("s_lshr_b32", s(sj), s(sj), 16)
        k.I("s_mul_i32", s(sidx), s(sj), 28)
        k.I("s_sub_u32", s(sidx), "s2", s(sidx))
    else:
        k.I("s_and_b32", s(sj), "s2", 7)
        k.I("s_lshr_b32", s(sidx), "s2", 3)
    pfrole = k.newlabel("pfrole")
    k.I("s_cmp_ge_u32", s(sidx), 28)
    k.I("s_cbranch_scc1", pfrole)
    k.I("s_and_b32", s(sw3), s(swave), 3)
    k.I("s_and_b32", s(skap), s(sj), 1)
    k.I("s_mul_i32", s(st0), s(sidx), 37)
    k.I("s_lshr_b32", s(st0), s(st0), 8)
    k.I("s_mul_i32", s(st1), s(st0), 7)
    k.I("s_sub_u32", s(sft), s(sidx), s(st1))
    k.I("s_lshr_b32", s(stt), s(sj), 1)
    k.I("s_lshl_b32", s(stt), s(stt), 2)
    k.I("s_add_u32", s(stt), s(stt), s(st0))
    stp = Stamper(k, 4, sWS, swave)
    if os.environ.get("TICKWAVE", "0") != "0": stp.tick(0)
    k.I("s_waitcnt", "lgkmcnt(0)")
    srd(k, sWS, pWS, WS_SIZE)
    comp = k.newlabel("compute")
    k.I("s_cmp_lt_u32", s(swave), 4)
    k.I("s_cbranch_scc1", comp)
    vsave = k.vnext
    srd(k, sSp, pSp, 2048 * 4096)
    v16 = k.valloc(); vWo = k.valloc(2)
    k.I("v_lshlrev_b32", v(v16), 4, v(lane))
    k.I("v_lshrrev_b32", v(t0), 3, v(lane))
    k.I("v_lshlrev_b32", v(t0), 12, v(t0))
    k.I("v_lshrrev_b32", v(t1), 4, v(lane))
    k.I("v_and_b32", v(t2), 7, v(lane))
    k.I("v_xor_b32", v(t1), v(t1), v(t2))
    k.I("v_lshl_add_u32", v(vWo), v(t1), 4, v(t0))
    k.I("v_xor_b32", v(t1), 4, v(t1))
    k.I("v_lshl_add_u32", v(vWo + 1), v(t1), 4, v(t0))
    sZb = k.salloc(); sWb = k.salloc(); smZ = k.salloc(); smW = k.salloc()
    k.I("s_lshl_b32", s(st0), s(sft), 2)
    k.I("s_add_u32", s(st0), s(st0), s(sw3))
    k.I("s_mul_i32", s(sZb), s(st0), ZS)
    k.I("s_mul_i32", s(st1), s(skap), ZK)
    k.I("s_add_u32", s(sZb), s(sZb), s(st1))
    k.I("s_add_u32", s(sZb), s(sZb), hex(Z2_OFF))
    k.I("s_lshl_b32", s(smZ), s(sw3), 12)
    k.I("s_lshl_b32", s(st0), s(stt), 7)
    k.I("s_lshl_b32", s(st1), s(sw3), 5)
    k.I("s_add_u32", s(st0), s(st0), s(st1))
    k.I("s_lshl_b32", s(sWb), s(st0), 12)
    k.I("s_lshl_b32", s(st1), s(skap), 11)
    k.I("s_add_u32", s(sWb), s(sWb), s(st1))
    k.I("s_add_u32", s(smW), s(smZ), 16384)
    def issue(c):
        sl = (c % NS) * SLOT
        def zpart():
            for i in range(4):
                k.I("s_add_u32", s(soff), s(sZb), hex((4 * c + i) * 1024))
                k.I("s_add_u32", "m0", s(smZ), hex(sl + i * 1024))
                k.vm(("S", c), "buffer_load_dwordx4", v(v16), sr(sWS, 4), s(soff), mods="offen lds")
                if os.environ.get("DIAG5") and c == 0 and i in (0, 3):
                    k.I("s_waitcnt", "vmcnt(0)"); stp.tick(10 + (i > 0))
        def wpart():
            for i in range(4):
                k.I("s_add_u32", s(soff), s(sWb), hex(i * 8 * 4096 + c * 128))
                k.I("s_add_u32", "m0", s(smW), hex(sl + i * 1024))
                k.vm(("S", c), "buffer_load_dwordx4", v(vWo + (i & 1)), sr(sSp, 4), s(soff), mods="offen lds")
                if os.environ.get("DIAG5") and c == 0 and i in (0, 3):
                    k.I("s_waitcnt", "vmcnt(0)"); stp.tick(12 + (i > 0))
        if os.environ.get("DIAG5") == "2": wpart(); zpart()
        else: zpart(); wpart()
    NST = 16
    sZ1 = k.salloc()
    k.I("s_lshl_b32", s(st0), s(stt), 2)
    k.I("s_add_u32", s(st0), s(st0), s(sw3))
    k.I("s_mul_i32", s(sZ1), s(st0), 56 * 1024)
    k.I("s_lshl_b32", s(st1), s(sft), 13)
    k.I("s_add_u32", s(sZ1), s(sZ1), s(st1))
    k.I("s_add_u32", s(sZ1), s(sZ1), hex(Z1_OFF))
    smZ1 = k.salloc()
    k.I("s_lshl_b32", s(smZ1), s(sw3), 13)
    def issue_z1(i, tag):
        k.I("s_add_u32", s(soff), s(sZ1), hex(i * 1024))
        k.I("s_add_u32", "m0", s(smZ1), hex(Z1REG + i * 1024))
        k.vm(("S", tag), "buffer_load_dwordx4", v(v16), sr(sWS, 4), s(soff), mods="offen lds")
    LT = os.environ.get("TICKWAVE", "0") != "0"
    if LT: stp.tick(1)
    issue(0)
    if LT: stp.tick(2)
    issue(1)
    if LT: stp.tick(3)
    for c in range(NST):
        k.wait_vm(("S", c))
        if LT and c < 3: stp.tick(4 + 2 * c)
        k.I("s_barrier")
        if LT and c < 3: stp.tick(5 + 2 * c)
        if c == 0: issue(2); issue(3)
        elif c + 2 < NST and c >= 2:
            issue(c + 2)
            if 3 <= c < 11: issue_z1(c - 3, c + 2)
    srd(k, sWo, pWo, 896 * 896)
    vWd = k.valloc(); sWd = k.salloc(); smD = k.salloc()
    k.I("v_lshrrev_b32", v(t0), 3, v(lane))
    k.I("v_mul_u32_u24", v(t0), 896, v(t0))
    k.I("v_bfe_u32", v(t1), v(lane), 4, 1)
    k.I("v_lshlrev_b32", v(t1), 2, v(t1))
    k.I("v_and_b32", v(t2), 7, v(lane))
    k.I("v_xor_b32", v(t1), v(t1), v(t2))
    k.I("v_lshl_add_u32", v(vWd), v(t1), 4, v(t0))
    k.I("s_mul_i32", s(sWd), s(sw3), 224 * 896)
    k.I("s_lshl_b32", s(st1), s(sft), 7)
    k.I("s_add_u32", s(sWd), s(sWd), s(st1))
    k.I("s_mul_i32", s(smD), s(sw3), 224 * 128)
    k.I("s_barrier")
    for i in range(28):
        k.I("s_add_u32", s(soff), s(sWd), hex(i * 8 * 896))
        k.I("s_add_u32", "m0", s(smD), hex(i * 1024))
        k.I("buffer_load_dwordx4", v(vWd), sr(sWo, 4), s(soff), mods="offen lds")
    k.I("s_barrier")
    k.I("s_waitcnt", "vmcnt(0)")
    k.I("s_barrier")
    k.I("s_endpgm")
    k.L(comp)
    k.vnext = vsave; k.vmq = []; k.lgq = []
    srd(k, sB, pB, 4096)
    l31 = k.valloc(); hh = k.valloc()
    k.I("v_and_b32", v(l31), 31, v(lane))
    k.I("v_lshrrev_b32", v(hh), 5, v(lane))
    sfh = k.salloc(); sth = k.salloc(); sst = k.salloc(); sf32 = k.salloc()
    k.I("s_and_b32", s(sfh), s(swave), 1)
    k.I("s_lshr_b32", s(sth), s(swave), 1)
    k.I("s_lshl_b32", s(sst), s(stt), 2)
    k.I("s_lshl_b32", s(st0), s(sth), 1)
    k.I("s_add_u32", s(sst), s(sst), s(st0))
    k.I("s_lshl_b32", s(sf32), s(sft), 2)
    k.I("s_lshl_b32", s(st0), s(sfh), 1)
    k.I("s_add_u32", s(sf32), s(sf32), s(st0))
    if os.environ.get("PF3", "0") == "1":
        vT0 = k.valloc(); vd0 = k.valloc(2)
        k.I("s_lshl_b32", s(st0), s(sidx), 8)
        k.I("v_add_u32", v(vT0), s(st0), "v0")
        k.I("s_lshl_b32", s(st1), s(skap), 16)
        k.I("s_add_u32", s(st1), s(st1), hex(Z2_OFF))
        for i in range(2):
            k.I("v_add_u32", v(t0), 7168 * i, v(vT0))
            k.I("v_lshrrev_b32", v(t1), 9, v(t0))
            k.I("v_lshlrev_b32", v(t1), 17, v(t1))
            k.I("v_and_b32", v(t2), 511, v(t0))
            k.I("v_lshl_add_u32", v(t1), v(t2), 7, v(t1))
            k.vm("pf", "buffer_load_dword", v(vd0 + i), v(t1), sr(sWS, 4), s(st1), mods="offen")
    v16 = k.valloc()
    k.I("v_lshlrev_b32", v(v16), 4, v(lane))
    vB = k.vnext
    z1 = [[k.valloc(8, 4) for _ in range(2)] for _ in range(2)]
    rr = [k.valloc(2) for _ in range(2)]; bb = [k.valloc(2) for _ in range(2)]
    k.I("v_lshlrev_b32", v(t0), 2, v(l31))
    k.I("v_lshlrev_b32", v(t1), 1, v(l31))
    for ti in range(2):
        k.I("s_add_u32", s(st0), s(sst), ti)
        k.I("s_lshl_b32", s(soff), s(st0), 7)
        k.I("s_add_u32", s(soff), s(soff), hex(RH_OFF))
        k.vm("z1", "buffer_load_dword", v(rr[ti]), v(t0), sr(sWS, 4), s(soff), mods="offen")
        k.I("s_lshl_b32", s(soff), s(st0), 6)
        k.vm("z1", "buffer_load_ushort", v(bb[ti]), v(t1), sr(sB, 4), s(soff), mods="offen")
    if os.environ.get("PF2", "0") == "1":
        pp = k.salloc(2); sP = k.salloc(4); vT = k.valloc(); vd = k.valloc(2)
        k.I("s_load_dwordx2", sr(pp, 2), "s[0:1]", 56)
        k.I("s_lshl_b32", s(st0), s(sidx), 8)
        k.I("v_add_u32", v(vT), s(st0), "v0")
        k.I("v_lshlrev_b32", v(vT), 7, v(vT))
        k.I("s_waitcnt", "lgkmcnt(0)")
        srd(k, sP, pp, 896 * 896)
        k.vm("pf", "buffer_load_dword", v(vd), v(vT), sr(sP, 4), 0, mods="offen")
    stp.stamp(0)
    aZ = k.valloc(); aW = k.valloc(4)
    k.I("s_lshl_b32", s(st0), s(sfh), 13)
    k.I("v_add_u32", v(aZ), s(st0), v(v16))
    k.I("v_bfe_u32", v(t0), v(l31), 1, 3)
    for j in range(4):
        k.I("v_add_u32", v(t1), 2 * j, v(hh))
        k.I("v_xor_b32", v(t1), v(t1), v(t0))
        k.I("v_lshlrev_b32", v(t1), 4, v(t1))
        k.I("v_lshl_add_u32", v(aW + j), v(l31), 7, v(t1))
        k.I("s_lshl_b32", s(st0), s(sth), 13)
        k.I("s_add_u32", s(st0), s(st0), 16384)
        k.I("v_add_u32", v(aW + j), s(st0), v(aW + j))
    aZ2 = k.valloc(); aW2 = k.valloc(4)
    k.I("v_add_u32", v(aZ2), 65536, v(aZ))
    for j in range(4): k.I("v_add_u32", v(aW2 + j), 65536, v(aW + j))
    acc = [[k.valloc(16, 4) for _ in range(2)] for _ in range(2)]
    NB = 3
    zf = [[k.valloc(4) for _ in range(2)] for _ in range(NB)]
    wf = [[k.valloc(4) for _ in range(2)] for _ in range(NB)]
    def rl(ks):
        c, j = ks // 4, ks % 4
        b = ks % NB
        sl = (c % NS) * SLOT
        hi = sl >= 65536
        so = sl - (65536 if hi else 0)
        out = []
        for fi in range(2):
            out.append(lambda fi=fi: k.lg(("f", ks), "ds_read_b128", vr(zf[b][fi], 4), v(aZ2 if hi else aZ), mods=f"offset:{so + fi * 4096 + j * 1024}"))
        for ti in range(2):
            out.append(lambda ti=ti: k.lg(("f", ks), "ds_read_b128", vr(wf[b][ti], 4), v((aW2 if hi else aW) + j), mods=f"offset:{so + ti * 4096}"))
        return out
    k.I("s_barrier")
    if not os.environ.get("DIAG56"): stp.stamp(1)
    for f in rl(0) + rl(1): f()
    NKS = NST * 4
    for ks in range(NKS):
        c, j = ks // 4, ks % 4
        b = ks % NB
        k.wait_lg(("f", ks))
        mf = []
        for fi in range(2):
            for ti in range(2):
                mf.append(lambda fi=fi, ti=ti: k.I("v_mfma_f32_32x32x16_bf16", vr(acc[fi][ti], 16), vr(zf[b][fi], 4), vr(wf[b][ti], 4), 0 if ks == 0 else vr(acc[fi][ti], 16)))
        fl = rl(ks + 2) if ks + 2 < NKS else []
        if j == 2 and ks + 2 < NKS:
            k.I("s_barrier")
        interleave(k, mf, fl)
    k.I("s_barrier")
    if not os.environ.get("DIAG56"): stp.stamp(2)
    vz = k.valloc()
    k.I("s_lshl_b32", s(st0), s(sth), 14)
    k.I("s_lshl_b32", s(st1), s(sfh), 12)
    k.I("s_add_u32", s(st0), s(st0), s(st1))
    k.I("s_add_u32", s(st0), s(st0), Z1REG)
    k.I("v_add_u32", v(vz), s(st0), v(v16))
    for ti in range(2):
        for fi in range(2):
            for hf_ in range(2):
                k.lg(("z1", ti, fi), "ds_read_b128", vr(z1[fi][ti] + 4 * hf_, 4), v(vz), mods=f"offset:{ti * 8192 + fi * 2048 + hf_ * 1024}")
    k.wait_vm("z1")
    for ti in range(2):
        k.I("v_lshlrev_b32", v(bb[ti]), 16, v(bb[ti]))
        k.I("v_mul_f32", v(bb[ti]), v(bb[ti]), v(rr[ti]))
    k.I("s_cmp_eq_u32", s(skap), 0)
    k.I("s_cselect_b32", s(st0), "1.0", 0)
    for ti in range(2): k.I("v_mul_f32", v(bb[ti]), s(st0), v(bb[ti]))
    tp = [k.valloc(2) for _ in range(4)]
    P = [k.valloc(8, 4) for _ in range(2)]
    sU = k.salloc()
    k.I("s_mul_i32", s(sU), s(skap), U1_OFF - U0_OFF)
    k.I("s_add_u32", s(sU), s(sU), hex(U0_OFF))
    n = 0
    for ti in range(2):
        for fi in range(2):
            A = acc[fi][ti]; Zp = z1[fi][ti]; PP = P[n & 1]; n += 1
            for j in range(8):
                k.I("v_pk_fma_f32", vr(A + 2 * j, 2), vr(A + 2 * j, 2), vr(rr[ti], 2), vr(bb[ti], 2), mods="op_sel_hi:[1,0,0]")
            k.wait_lg(("z1", ti, fi))
            for j in range(8):
                T = tp[j % 4]
                k.I("v_lshlrev_b32", v(T), 16, v(Zp + j))
                k.I("v_and_b32", v(T + 1), "0xffff0000", v(Zp + j))
                k.I("v_pk_mul_f32", vr(A + 2 * j, 2), vr(A + 2 * j, 2), vr(T, 2))
            for j in range(8): k.I("v_cvt_pk_bf16_f32", v(PP + j), v(A + 2 * j), v(A + 2 * j + 1))
            k.I("s_add_u32", s(st0), s(sst), ti)
            k.I("s_mul_i32", s(soff), s(st0), 56 * 1024)
            k.I("s_add_u32", s(st0), s(sf32), fi)
            k.I("s_lshl_b32", s(st0), s(st0), 11)
            k.I("s_add_u32", s(soff), s(soff), s(st0))
            k.I("s_add_u32", s(soff), s(soff), s(sU))
            k.I("buffer_store_dwordx4", vr(PP, 4), v(v16), sr(sWS, 4), s(soff), mods="offen")
            k.I("buffer_store_dwordx4", vr(PP + 4, 4), v(v16), sr(sWS, 4), s(soff), mods="offen offset:1024")
    stp.stamp(3)
    k.vnext = vB
    srd(k, sOut, pOD, 2048 * 896)
    srd(k, sD, pOD + 2, 256)
    srh = k.salloc(); skh = k.salloc(); sstB = k.salloc()
    k.I("s_and_b32", s(srh), s(swave), 1)
    k.I("s_lshr_b32", s(skh), s(swave), 1)
    k.I("s_lshl_b32", s(sstB), s(stt), 2)
    k.I("s_lshl_b32", s(st0), s(skap), 1)
    k.I("s_add_u32", s(sstB), s(sstB), s(st0))
    k.I("s_add_u32", s(sstB), s(sstB), s(srh))
    hr = k.valloc(8, 4)
    k.I("s_mul_i32", s(soff), s(sstB), 28 * 1024)
    k.I("s_lshl_b32", s(st0), s(sft), 1)
    k.I("s_add_u32", s(st0), s(st0), s(skh))
    sntile = k.salloc()
    k.I("s_mov_b32", s(sntile), s(st0))
    k.I("s_lshl_b32", s(st0), s(st0), 11)
    k.I("s_add_u32", s(soff), s(soff), s(st0))
    k.I("s_add_u32", s(soff), s(soff), hex(H_OFF))
    k.I("s_waitcnt", "vmcnt(0)")
    if os.environ.get("DIAG56"): stp.stamp(1); k.I("s_waitcnt", "vmcnt(0)")
    k.vmq = []
    k.I("s_barrier")
    if os.environ.get("DIAG56"): stp.stamp(2); k.I("s_waitcnt", "vmcnt(0)"); k.vmq = []
    k.vm("h", "buffer_load_dwordx4", vr(hr, 4), v(v16), sr(sWS, 4), s(soff), mods="offen")
    k.vm("h", "buffer_load_dwordx4", vr(hr + 4, 4), v(v16), sr(sWS, 4), s(soff), mods="offen offset:1024")
    nopoll = k.newlabel("nopoll")
    k.I("s_cmp_lg_u32", s(swave), 0)
    k.I("s_cbranch_scc1", nopoll)
    fl = k.valloc(2); vz0 = k.valloc(); one = k.valloc()
    k.I("s_mul_i32", s(st0), s(skap), 7)
    k.I("s_add_u32", s(st0), s(st0), s(sft))
    k.I("s_lshl_b32", s(st0), s(st0), 2)
    k.I("s_lshl_b32", s(st1), s(stt), 8)
    k.I("s_add_u32", s(st1), s(st1), hex(FL_OFF))
    k.I("s_add_u32", s(st0), s(st0), s(st1))
    k.I("v_mov_b32", v(vz0), 0)
    k.I("v_mov_b32", v(one), 1)
    k.I("s_mov_b64", "exec", 1)
    k.I("buffer_store_dword", v(one), v(vz0), sr(sWS, 4), s(st0), mods="offen sc0 sc1")
    k.I("s_mov_b64", "exec", -1)
    k.I("v_min_u32", v(vz0), 13, v(lane))
    k.I("v_lshlrev_b32", v(vz0), 2, v(vz0))
    scount = k.salloc()
    k.I("s_mov_b32", s(scount), 0)
    poll = k.newlabel("poll"); pdone = k.newlabel("pdone")
    k.L(poll)
    k.I("buffer_load_dword", v(fl), v(vz0), sr(sWS, 4), s(st1), mods="offen sc0 sc1")
    k.I("s_waitcnt", "vmcnt(0)")
    k.I("v_cmp_ne_u32", "vcc", 1, v(fl))
    k.I("s_add_u32", s(scount), s(scount), 1)
    k.I("s_cmp_eq_u64", "vcc", 0)
    k.I("s_cbranch_scc1", pdone)
    k.I("s_cmp_lt_u32", s(scount), 0x100000)
    k.I("s_cbranch_scc0", pdone)
    k.I("s_sleep", 1)
    k.I("s_branch", poll)
    k.L(pdone)
    k.L(nopoll)
    if os.environ.get("DIAG56"): stp.stamp(7); k.I("s_waitcnt", "vmcnt(0)")
    k.vmq = ["h", "h"]
    vWb = [k.valloc(), k.valloc()]
    k.I("v_bfe_u32", v(t0), v(lane), 2, 2)
    k.I("v_lshl_add_u32", v(t0), v(hh), 2, v(t0))
    k.I("s_mul_i32", s(st0), s(skh), 448)
    k.I("v_add_u32", v(t0), s(st0), v(t0))
    k.I("v_lshlrev_b32", v(t0), 7, v(t0))
    k.I("v_bfe_u32", v(t1), v(lane), 4, 1)
    k.I("v_lshlrev_b32", v(t1), 1, v(t1))
    k.I("v_bfe_u32", v(t2), v(lane), 1, 1)
    k.I("v_add_u32", v(t1), v(t1), v(t2))
    k.I("v_bfe_u32", v(t2), v(lane), 3, 1)
    k.I("v_lshlrev_b32", v(t2), 2, v(t2))
    for n2 in range(2):
        k.I("v_add_u32", v(vWb[n2]), 4 * n2, v(t1))
        k.I("v_xor_b32", v(vWb[n2]), v(vWb[n2]), v(t2))
        k.I("v_lshl_add_u32", v(vWb[n2]), v(vWb[n2]), 4, v(t0))
    k.I("v_and_b32", v(t1), 1, v(lane))
    for n2 in range(2): k.I("v_lshl_add_u32", v(vWb[n2]), v(t1), 3, v(vWb[n2]))
    sU0 = k.salloc(); sU1 = k.salloc()
    k.I("s_mul_i32", s(sU0), s(sstB), 56 * 1024)
    k.I("s_mul_i32", s(st0), s(skh), 28 * 1024)
    k.I("s_add_u32", s(sU0), s(sU0), s(st0))
    k.I("s_add_u32", s(sU1), s(sU0), hex(U1_OFF))
    k.I("s_add_u32", s(sU0), s(sU0), hex(U0_OFF))
    accB = [k.valloc(16, 4) for _ in range(2)]
    NU = 12
    uf = [[k.valloc(4) for _ in range(2)] for _ in range(NU)]
    NBW = 3
    wfB = [[k.valloc(4) for _ in range(2)] for _ in range(NBW)]
    k.I("s_barrier")
    stp.stamp(4)
    def uload(j):
        for ar_, sU in enumerate((sU0, sU1)):
            k.I("s_add_u32", s(soff), s(sU), hex(j * 1024))
            k.vm(("u", j), "buffer_load_dwordx4", vr(uf[j % NU][ar_], 4), v(v16), sr(sWS, 4), s(soff), mods="offen sc1")
    def wread(j):
        out = []
        for n2 in range(2):
            for beta in range(2):
                out.append(lambda n2=n2, beta=beta: k.lg(("w", j), "ds_read_b64_tr_b16", vr(wfB[j % NBW][n2] + 2 * beta, 2), v(vWb[n2]), mods=f"offset:{(16 * j + 8 * beta) * 128}"))
        return out
    for j in range(NU): uload(j)
    for f in wread(0) + wread(1): f()
    for j in range(28):
        k.wait_vm(("u", j))
        k.wait_lg(("w", j))
        mf = []
        for ar_ in range(2):
            for n2 in range(2):
                mf.append(lambda ar_=ar_, n2=n2: k.I("v_mfma_f32_32x32x16_bf16", vr(accB[n2], 16), vr(wfB[j % NBW][n2], 4), vr(uf[j % NU][ar_], 4), 0 if (j == 0 and ar_ == 0) else vr(accB[n2], 16)))
        fl_ = wread(j + 2) if j + 2 < 28 else []
        interleave(k, mf, fl_)
        if j + NU < 28: uload(j + NU)
    stp.stamp(5)
    RED = 114688
    vr1 = k.valloc(); vr2 = k.valloc()
    k.I("s_lshl_b32", s(st0), s(srh), 13)
    k.I("s_add_u32", s(st0), s(st0), RED)
    k.I("v_add_u32", v(vr1), s(st0), v(v16))
    k.I("s_lshl_b32", s(st1), s(skh), 12)
    k.I("v_add_u32", v(vr2), s(st1), v(vr1))
    k.I("s_xor_b32", s(st1), s(st1), 4096)
    k.I("v_add_u32", v(vr1), s(st1), v(vr1))
    keep = k.valloc(16, 4)
    lab_a = k.newlabel("kh1"); lab_b = k.newlabel("khj")
    k.I("s_cmp_lg_u32", s(skh), 0)
    k.I("s_cbranch_scc1", lab_a)
    for q in range(4): k.I("ds_write_b128", v(vr1), vr(accB[1] + 4 * q, 4), mods=f"offset:{q * 1024}")
    for i in range(16): k.I("v_mov_b32", v(keep + i), v(accB[0] + i))
    k.I("s_branch", lab_b)
    k.L(lab_a)
    for q in range(4): k.I("ds_write_b128", v(vr1), vr(accB[0] + 4 * q, 4), mods=f"offset:{q * 1024}")
    for i in range(16): k.I("v_mov_b32", v(keep + i), v(accB[1] + i))
    k.L(lab_b)
    k.I("s_waitcnt", "lgkmcnt(0)")
    k.lgq = []
    k.I("s_barrier")
    oth = k.valloc(16, 4)
    for q in range(4): k.I("ds_read_b128", vr(oth + 4 * q, 4), v(vr2), mods=f"offset:{q * 1024}")
    k.wait_vm("h")
    tpB = [k.valloc(2) for _ in range(4)]
    for j in range(8):
        T = tpB[j % 4]
        k.I("v_lshlrev_b32", v(T), 16, v(hr + j))
        k.I("v_and_b32", v(T + 1), "0xffff0000", v(hr + j))
        k.I("v_pk_add_f32", vr(keep + 2 * j, 2), vr(keep + 2 * j, 2), vr(T, 2))
    k.I("s_waitcnt", "lgkmcnt(0)")
    for j in range(8): k.I("v_pk_add_f32", vr(keep + 2 * j, 2), vr(keep + 2 * j, 2), vr(oth + 2 * j, 2))
    PB = k.valloc(8, 4)
    for j in range(8): k.I("v_cvt_pk_bf16_f32", v(PB + j), v(keep + 2 * j), v(keep + 2 * j + 1))
    for kp in range(2):
        k.I("v_permlane32_swap_b32", v(PB + 4 * kp), v(PB + 4 * kp + 2))
        k.I("v_permlane32_swap_b32", v(PB + 4 * kp + 1), v(PB + 4 * kp + 3))
    vo = k.valloc()
    k.I("v_mul_u32_u24", v(vo), 896, v(l31))
    k.I("v_lshl_add_u32", v(vo), v(hh), 4, v(vo))
    k.I("s_mul_i32", s(soff), s(sstB), 32 * 896)
    k.I("s_lshl_b32", s(st0), s(sntile), 6)
    k.I("s_add_u32", s(soff), s(soff), s(st0))
    for kp in range(2):
        k.I("buffer_store_dwordx4", vr(PB + 4 * kp, 4), v(vo), sr(sOut, 4), s(soff), mods=f"offen offset:{32 * kp}")
    stp.stamp(6)
    k.I("s_endpgm")
    k.L(pfrole)
    vT2 = k.valloc()
    k.I("s_sub_u32", s(st0), s(sidx), 28)
    k.I("s_lshl_b32", s(st0), s(st0), 9)
    k.I("v_add_u32", v(vT2), s(st0), "v0")
    k.I("v_lshlrev_b32", v(vT2), 7, v(vT2))
    l2_prefetch(k, 56, 896 * 896, vT2, 2048, st0)
    k.L(R["done"])
    k.I("s_endpgm")
    k.lds = lds; k.threads = 512; k.grid = 256
    return k

def gen_k6(Stamper):
    k = Kernel("k6_wout_kernel")
    NS = 5; SLOT = 24576
    RED = 0
    lds = NS * SLOT
    R = common_start(k, 224)
    swave, st0, st1, soff, lane, t0, t1, t2 = (R[x] for x in ("swave", "st0", "st1", "soff", "lane", "t0", "t1", "t2"))
    pWo = k.salloc(2); pOut = k.salloc(2); pWS = k.salloc(2)
    k.I("s_load_dwordx2", sr(pWo, 2), "s[0:1]", 56)
    k.I("s_load_dwordx2", sr(pOut, 2), "s[0:1]", 64)
    k.I("s_load_dwordx2", sr(pWS, 2), "s[0:1]", 80)
    sWS = k.salloc(4); sWo = k.salloc(4); sOut = k.salloc(4)
    sj = k.salloc(); sidx = k.salloc(); srt = k.salloc(); snt = k.salloc(); sw3 = k.salloc()
    k.I("s_and_b32", s(sj), "s2", 7)
    k.I("s_lshr_b32", s(sidx), "s2", 3)
    k.I("s_and_b32", s(sw3), s(swave), 3)
    k.I("s_mul_i32", s(st0), s(sidx), 37)
    k.I("s_lshr_b32", s(st0), s(st0), 8)
    k.I("s_mul_i32", s(st1), s(st0), 7)
    k.I("s_sub_u32", s(snt), s(sidx), s(st1))
    k.I("s_lshl_b32", s(srt), s(sj), 2)
    k.I("s_add_u32", s(srt), s(srt), s(st0))
    stp = Stamper(k, 5, sWS, swave)
    k.I("s_waitcnt", "lgkmcnt(0)")
    srd(k, sWS, pWS, WS_SIZE)
    comp = k.newlabel("compute")
    k.I("s_cmp_lt_u32", s(swave), 4)
    k.I("s_cbranch_scc1", comp)
    vsave = k.vnext
    srd(k, sWo, pWo, 896 * 896)
    v16 = k.valloc(); vWo = k.valloc()
    k.I("v_lshlrev_b32", v(v16), 4, v(lane))
    k.I("v_lshrrev_b32", v(t0), 3, v(lane))
    k.I("v_mul_u32_u24", v(t0), 896, v(t0))
    k.I("v_bfe_u32", v(t1), v(lane), 4, 1)
    k.I("v_lshlrev_b32", v(t1), 2, v(t1))
    k.I("v_and_b32", v(t2), 7, v(lane))
    k.I("v_xor_b32", v(t1), v(t1), v(t2))
    k.I("v_lshl_add_u32", v(vWo), v(t1), 4, v(t0))
    sUb = k.salloc(); sWb = k.salloc(); smU = k.salloc(); smW = k.salloc()
    k.I("s_lshr_b32", s(st0), s(sw3), 1)
    k.I("s_lshl_b32", s(st1), s(srt), 1)
    k.I("s_add_u32", s(st1), s(st1), s(st0))
    k.I("s_mul_i32", s(sUb), s(st1), 56 * 1024)
    k.I("s_and_b32", s(st1), s(sw3), 1)
    k.I("s_mul_i32", s(smU), s(st1), U1_OFF - U0_OFF)
    k.I("s_add_u32", s(sUb), s(sUb), s(smU))
    k.I("s_add_u32", s(sUb), s(sUb), hex(U0_OFF))
    k.I("s_lshl_b32", s(smU), s(st1), 13)
    k.I("s_lshl_b32", s(st0), s(st0), 12)
    k.I("s_add_u32", s(smU), s(smU), s(st0))
    k.I("s_mul_i32", s(sWb), s(sw3), 16 * 896)
    k.I("s_lshl_b32", s(st1), s(snt), 7)
    k.I("s_add_u32", s(sWb), s(sWb), s(st1))
    k.I("s_lshl_b32", s(smW), s(sw3), 11)
    k.I("s_add_u32", s(smW), s(smW), 16384)
    def issue(c):
        sl = (c % NS) * SLOT
        for i in range(4):
            k.I("s_add_u32", s(soff), s(sUb), hex((4 * c + i) * 1024))
            k.I("s_add_u32", "m0", s(smU), hex(sl + i * 1024))
            k.vm(("S", c), "buffer_load_dwordx4", v(v16), sr(sWS, 4), s(soff), mods="offen lds")
        for i in range(2):
            k.I("s_add_u32", s(soff), s(sWb), hex((64 * c + 8 * i) * 896))
            k.I("s_add_u32", "m0", s(smW), hex(sl + i * 1024))
            k.vm(("S", c), "buffer_load_dwordx4", v(vWo), sr(sWo, 4), s(soff), mods="offen lds")
    NST = 14
    for c in range(3): issue(c)
    for c in range(NST):
        k.wait_vm(("S", c))
        k.I("s_barrier")
        if c == 0: issue(3); issue(4)
        elif c + 3 < NST and c >= 2: issue(c + 3)
    k.I("s_endpgm")
    k.L(comp)
    k.vnext = vsave; k.vmq = []; k.lgq = []
    srd(k, sOut, pOut, 2048 * 896)
    l31 = k.valloc(); hh = k.valloc()
    k.I("v_and_b32", v(l31), 31, v(lane))
    k.I("v_lshrrev_b32", v(hh), 5, v(lane))
    srh = k.salloc(); snh = k.salloc(); sst = k.salloc(); sntile = k.salloc()
    k.I("s_and_b32", s(srh), s(swave), 1)
    k.I("s_lshr_b32", s(snh), s(swave), 1)
    k.I("s_lshl_b32", s(sst), s(srt), 1)
    k.I("s_add_u32", s(sst), s(sst), s(srh))
    k.I("s_lshl_b32", s(sntile), s(snt), 1)
    k.I("s_add_u32", s(sntile), s(sntile), s(snh))
    if os.environ.get("PF3", "0") == "1":
        vT0 = k.valloc(); vd0 = k.valloc(2)
        k.I("s_lshl_b32", s(st0), s(sidx), 8)
        k.I("v_add_u32", v(vT0), s(st0), "v0")
        k.I("v_mov_b32", v(t0), hex(U1_OFF - U0_OFF - 3584 * 128))
        k.I("v_cmp_le_u32", "vcc", 3584, v(vT0))
        k.I("v_cndmask_b32", v(t0), 0, v(t0), "vcc")
        k.I("v_lshl_add_u32", v(t0), v(vT0), 7, v(t0))
        k.I("s_mul_i32", s(st1), s(sj), 8 * 56 * 1024)
        k.I("s_add_u32", s(st1), s(st1), hex(U0_OFF))
        k.vm("pf", "buffer_load_dword", v(vd0), v(t0), sr(sWS, 4), s(st1), mods="offen")
    v16 = k.valloc()
    k.I("v_lshlrev_b32", v(v16), 4, v(lane))
    hr = k.valloc(8, 4)
    k.I("s_mul_i32", s(soff), s(sst), 28 * 1024)
    k.I("s_lshl_b32", s(st0), s(sntile), 11)
    k.I("s_add_u32", s(soff), s(soff), s(st0))
    k.I("s_add_u32", s(soff), s(soff), hex(H_OFF))
    k.vm("h", "buffer_load_dwordx4", vr(hr, 4), v(v16), sr(sWS, 4), s(soff), mods="offen")
    k.vm("h", "buffer_load_dwordx4", vr(hr + 4, 4), v(v16), sr(sWS, 4), s(soff), mods="offen offset:1024")
    stp.stamp(0)
    aU = k.valloc(); vW = k.valloc()
    k.I("s_lshl_b32", s(st0), s(srh), 12)
    k.I("v_add_u32", v(aU), s(st0), v(v16))
    k.I("v_bfe_u32", v(t0), v(lane), 2, 2)
    k.I("v_lshl_add_u32", v(t0), v(hh), 2, v(t0))
    k.I("v_lshlrev_b32", v(vW), 7, v(t0))
    k.I("v_add_u32", v(vW), 16384, v(vW))
    k.I("v_bfe_u32", v(t0), v(lane), 4, 1)
    k.I("v_lshlrev_b32", v(t0), 1, v(t0))
    k.I("v_bfe_u32", v(t1), v(lane), 1, 1)
    k.I("v_add_u32", v(t0), v(t0), v(t1))
    k.I("s_lshl_b32", s(st0), s(snh), 2)
    k.I("v_add_u32", v(t0), s(st0), v(t0))
    k.I("v_bfe_u32", v(t1), v(lane), 3, 1)
    k.I("v_lshlrev_b32", v(t1), 2, v(t1))
    k.I("v_xor_b32", v(t0), v(t0), v(t1))
    k.I("v_lshl_add_u32", v(vW), v(t0), 4, v(vW))
    k.I("v_and_b32", v(t0), 1, v(lane))
    k.I("v_lshl_add_u32", v(vW), v(t0), 3, v(vW))
    aU2 = k.valloc(); vW2 = k.valloc()
    k.I("v_add_u32", v(aU2), 3 * SLOT, v(aU))
    k.I("v_add_u32", v(vW2), 3 * SLOT, v(vW))
    acc = k.valloc(16, 4)
    NB = 3
    uf = [[k.valloc(4) for _ in range(2)] for _ in range(NB)]; wf = [k.valloc(4) for _ in range(NB)]
    def rl(ks):
        c, j = ks // 4, ks % 4
        b = ks % NB
        sl = (c % NS)
        hi = sl >= 3
        so = (sl - (3 if hi else 0)) * SLOT
        out = []
        for ar_ in range(2):
            out.append(lambda ar_=ar_: k.lg(("f", ks), "ds_read_b128", vr(uf[b][ar_], 4), v(aU2 if hi else aU), mods=f"offset:{so + ar_ * 8192 + j * 1024}"))
        for beta in range(2):
            o = so + (16 * j + 8 * beta) * 128
            out.append(lambda o=o, beta=beta: k.lg(("f", ks), "ds_read_b64_tr_b16", vr(wf[b] + 2 * beta, 2), v(vW2 if hi else vW), mods=f"offset:{o}"))
        return out
    k.I("s_barrier")
    stp.stamp(1)
    for f in rl(0) + rl(1): f()
    NKS = NST * 4
    for ks in range(NKS):
        c, j = ks // 4, ks % 4
        b = ks % NB
        k.wait_lg(("f", ks))
        mf = [lambda ar_=ar_: k.I("v_mfma_f32_32x32x16_bf16", vr(acc, 16), vr(wf[b], 4), vr(uf[b][ar_], 4), 0 if (ks == 0 and ar_ == 0) else vr(acc, 16)) for ar_ in range(2)]
        fl = rl(ks + 2) if ks + 2 < NKS else []
        if j == 2 and ks + 2 < NKS: k.I("s_barrier")
        interleave(k, mf, fl)
    stp.stamp(2)
    k.wait_vm("h")
    tp = [k.valloc(2) for _ in range(4)]
    for j in range(8):
        T = tp[j % 4]
        k.I("v_lshlrev_b32", v(T), 16, v(hr + j))
        k.I("v_and_b32", v(T + 1), "0xffff0000", v(hr + j))
        k.I("v_pk_add_f32", vr(acc + 2 * j, 2), vr(acc + 2 * j, 2), vr(T, 2))
    P = k.valloc(8, 4)
    for j in range(8): k.I("v_cvt_pk_bf16_f32", v(P + j), v(acc + 2 * j), v(acc + 2 * j + 1))
    for kp in range(2):
        k.I("v_permlane32_swap_b32", v(P + 4 * kp), v(P + 4 * kp + 2))
        k.I("v_permlane32_swap_b32", v(P + 4 * kp + 1), v(P + 4 * kp + 3))
    vo = k.valloc()
    k.I("v_mul_u32_u24", v(vo), 896, v(l31))
    k.I("v_lshl_add_u32", v(vo), v(hh), 4, v(vo))
    k.I("s_mul_i32", s(soff), s(sst), 32 * 896)
    k.I("s_lshl_b32", s(st0), s(sntile), 6)
    k.I("s_add_u32", s(soff), s(soff), s(st0))
    for kp in range(2):
        k.I("buffer_store_dwordx4", vr(P + 4 * kp, 4), v(vo), sr(sOut, 4), s(soff), mods=f"offen offset:{32 * kp}")
    stp.stamp(3)
    if os.environ.get("SPIN"):
        ka, ja, kb, jb = [int(x) for x in os.environ["SPIN"].split(",")]
        sa_ = k.salloc(2); sb_ = k.salloc(2); sn_ = k.salloc(2); sq_ = k.salloc(2)
        lab = k.newlabel("spin"); out_ = k.newlabel("spun")
        k.I("s_or_b32", s(st0), "s2", s(swave))
        k.I("s_cmp_lg_u32", s(st0), 0)
        k.I("s_cbranch_scc1", out_)
        k.I("s_mov_b32", s(st0), hex(STAMP_OFF + ka * 256 * 64 + ja * 8))
        k.I("s_load_dwordx2", sr(sa_, 2), sr(pWS, 2), s(st0))
        k.I("s_mov_b32", s(st1), hex(STAMP_OFF + max(kb, 0) * 256 * 64 + jb * 8))
        if kb >= 0: k.I("s_load_dwordx2", sr(sb_, 2), sr(pWS, 2), s(st1))
        else: k.I("s_memrealtime", sr(sb_, 2))
        k.I("s_memrealtime", sr(sn_, 2))
        k.I("s_waitcnt", "lgkmcnt(0)")
        k.I("s_sub_u32", s(sa_), s(sb_), s(sa_))
        k.I("s_min_u32", s(sa_), s(sa_), 20000)
        k.I("s_add_u32", s(sn_), s(sn_), s(sa_))
        k.L(lab)
        k.I("s_memrealtime", sr(sq_, 2))
        k.I("s_waitcnt", "lgkmcnt(0)")
        k.I("s_sub_u32", s(sq_), s(sq_), s(sn_))
        k.I("s_cmp_lt_i32", s(sq_), 0)
        k.I("s_cbranch_scc1", lab)
        k.L(out_)
    k.L(R["done"])
    k.I("s_endpgm")
    k.lds = lds; k.threads = 512; k.grid = 224
    return k

def rest(Stamper):
    if os.environ.get("MERGE56", "0") == "1":
        return [gen_k2(Stamper), gen_k3(Stamper), gen_k4(Stamper), gen_k56(Stamper)]
    return [gen_k2(Stamper), gen_k3(Stamper), (gen_k4b if os.environ.get('K4B', '1') == '1' else gen_k4)(Stamper), gen_k5(Stamper), gen_k6(Stamper)]
```

```python
import sys, os
sys.path.insert(0, os.path.dirname(__file__))
from asmlib import *
from layout import *

NAME = "sequential_preLN__sliding_block__mixer_gmlp__prompt"
STAMPS = os.environ.get("GEN_STAMPS", "0") == "1"
WS_SIZE = 0x10000000

def srd(k, dst, base, size):
    k.I("s_mov_b32", s(dst), s(base))
    k.I("s_and_b32", s(dst + 1), s(base + 1), "0xffff")
    k.I("s_mov_b32", s(dst + 2), hex(size) if isinstance(size, int) else size)
    k.I("s_mov_b32", s(dst + 3), "0x20000")

class Stamper:
    def __init__(self, k, kidx, sWS, swave):
        self.k, self.kidx, self.sWS, self.swave = k, kidx, sWS, swave
        if STAMPS:
            self.st = k.salloc(2); self.vt = k.valloc(2); self.vo = k.valloc(1); self.ex = k.salloc(2)
    def tick(self, i):
        if not STAMPS or not os.environ.get("TICKS"): return
        if not hasattr(self, "tk"): self.tk = self.k.salloc(32, 4)
        self.k.I("s_memtime", sr(self.tk + 2 * i, 2))
        self.nt = max(getattr(self, "nt", 0), i + 1)
    def dump_ticks(self):
        if not STAMPS or not hasattr(self, "tk"): return
        k = self.k
        k.I("s_waitcnt", "lgkmcnt(0)")
        k.lgq = []
        k.I("s_lshl_b32", s(self.ex), "s2", 7)
        k.I("s_add_u32", s(self.ex), s(self.ex), hex(TICK_OFF + self.kidx * 256 * 128))
        k.I("s_cmp_lg_u32", s(self.swave), int(os.environ.get("TICKWAVE", "0")))
        k.I("s_cselect_b32", s(self.ex), "0x7ffffff0", s(self.ex))
        k.I("s_mov_b64", sr(self.st, 2), "exec")
        k.I("s_mov_b64", "exec", 1)
        k.I("v_mov_b32", v(self.vo), 0)
        for i in range(16):
            k.I("v_mov_b32", v(self.vt), s(self.tk + 2 * i))
            k.I("v_mov_b32", v(self.vt + 1), s(self.tk + 2 * i + 1))
            k.I("buffer_store_dwordx2", vr(self.vt, 2), v(self.vo), sr(self.sWS, 4), s(self.ex), mods=f"offen offset:{8 * i}")
            k.I("s_nop", 1)
        k.I("s_mov_b64", "exec", sr(self.st, 2))
    def stamp(self, j):
        if not STAMPS: return
        k = self.k
        k.I("s_memrealtime", sr(self.st, 2))
        k.I("s_lshl_b32", s(self.ex), "s2", 6)
        k.I("s_add_u32", s(self.ex), s(self.ex), hex(STAMP_OFF + self.kidx * 256 * 64 + j * 8))
        k.I("s_cmp_lg_u32", s(self.swave), 0)
        k.I("s_cselect_b32", s(self.ex), "0x7ffffff0", s(self.ex))
        k.I("s_waitcnt", "lgkmcnt(0)")
        k.lgq = []
        k.I("v_mov_b32", v(self.vt), s(self.st))
        k.I("v_mov_b32", v(self.vt + 1), s(self.st + 1))
        k.I("v_mov_b32", v(self.vo), 0)
        k.I("s_mov_b64", sr(self.st, 2), "exec")
        k.I("s_mov_b64", "exec", 1)
        k.I("buffer_store_dwordx2", vr(self.vt, 2), v(self.vo), sr(self.sWS, 4), s(self.ex), mods="offen")
        k.I("s_mov_b64", "exec", sr(self.st, 2))
        k.vmq.append("stamp")

class DbgStamper:
    LAST = {0: 3, 1: 2, 2: 3, 3: 5, 4: 3, 5: 3}
    def __init__(self, k, kidx, sWS, swave):
        self.k, self.kidx, self.swave = k, kidx, swave
        self.st = k.salloc(2); self.vt = k.valloc(2); self.vo = k.valloc(1); self.ex = k.salloc(2)
        self.pd = k.salloc(2); self.sD = k.salloc(4)
        k.I("s_memrealtime", sr(self.st, 2))
        k.I("s_load_dwordx2", sr(self.pd, 2), "s[0:1]", 72)
        self.t0 = k.salloc(2)
        k.I("s_waitcnt", "lgkmcnt(0)")
        k.I("s_mov_b32", s(self.t0), s(self.st))
        k.I("s_sub_u32", s(self.pd), s(self.pd), 512 * kidx)
        k.I("s_subb_u32", s(self.pd + 1), s(self.pd + 1), 0)
        srd(k, self.sD, self.pd, 512 * 5 + 256)
    def tick(self, i): pass
    def dump_ticks(self): pass
    def stamp(self, j):
        if j != self.LAST[self.kidx]: return
        k = self.k
        k.I("s_memrealtime", sr(self.st, 2))
        k.I("s_or_b32", s(self.ex), "s2", s(self.swave))
        k.I("s_cmp_lg_u32", s(self.ex), 0)
        k.I("s_cselect_b32", s(self.ex), "0x7ffffff0", 8 * self.kidx)
        k.I("s_waitcnt", "lgkmcnt(0)")
        k.lgq = []
        k.I("v_mov_b32", v(self.vt), s(self.t0))
        k.I("v_mov_b32", v(self.vt + 1), s(self.st))
        k.I("v_mov_b32", v(self.vo), 0)
        k.I("s_mov_b64", sr(self.st, 2), "exec")
        k.I("s_mov_b64", "exec", 1)
        for tg in range(6):
            k.I("buffer_store_dwordx2", vr(self.vt, 2), v(self.vo), sr(self.sD, 4), s(self.ex), mods=f"offen offset:{512 * tg}")
            k.vmq.append("stamp")
        k.I("s_mov_b64", "exec", sr(self.st, 2))

if os.environ.get("GEN_DBG"): Stamper = DbgStamper

def gen_k1():
    k = Kernel("k1_qkv_kernel")
    k.snext = 4; k.vnext = 1
    WREG = 0; WCH = 12288; XRING = 7 * WCH; XSL = 4096; NXS = 4
    TBL = XRING + 4 * NXS * XSL
    CWT = TBL; RT = TBL + 512; NMT = TBL + 1024; SQT = TBL + 1536
    ONES = TBL + 2048
    lds = ONES + 1024
    done = k.newlabel("done")
    k.I("s_cmp_ge_u32", "s2", 256)
    k.I("s_cbranch_scc1", done)
    pX = k.salloc(4); pWS = k.salloc(2)
    k.I("s_load_dwordx4", sr(pX, 4), "s[0:1]", 0)
    k.I("s_load_dwordx2", sr(pWS, 2), "s[0:1]", 80)
    sX = k.salloc(4); sW = k.salloc(4); sWS = k.salloc(4)
    swave = k.salloc(); srb = k.salloc(); shd = k.salloc(); st0 = k.salloc(); st1 = k.salloc(); soff = k.salloc()
    lane = k.valloc(); l31 = k.valloc(); hh = k.valloc(); t0 = k.valloc(); t1 = k.valloc(); t2 = k.valloc()
    k.I("v_lshrrev_b32", v(t0), 6, "v0")
    k.I("v_and_b32", v(lane), 63, "v0")
    k.I("v_readfirstlane_b32", s(swave), v(t0))
    k.I("s_and_b32", s(st0), "s2", 7)
    k.I("s_lshr_b32", s(st1), "s2", 3)
    k.I("s_and_b32", s(shd), s(st1), 15)
    k.I("s_lshr_b32", s(st1), s(st1), 4)
    k.I("s_lshl_b32", s(srb), s(st0), 1)
    k.I("s_add_u32", s(srb), s(srb), s(st1))
    stp = Stamper(k, 0, sWS, swave)
    sw3 = k.salloc()
    k.I("s_and_b32", s(sw3), s(swave), 3)
    l15 = k.valloc()
    k.I("v_and_b32", v(l15), 15, v(lane))
    k.I("s_waitcnt", "lgkmcnt(0)")
    srd(k, sW, pX + 2, 448 * 2688)
    srd(k, sX, pX, 2048 * 896)
    comp = k.newlabel("compute")
    k.I("s_cmp_lt_u32", s(swave), 4)
    k.I("s_cbranch_scc1", comp)
    vsave = k.vnext
    vXo = k.valloc(4)
    k.I("v_lshrrev_b32", v(t0), 3, v(lane))
    k.I("v_mul_u32_u24", v(t0), 896, v(t0))
    k.I("v_lshrrev_b32", v(t1), 4, v(lane))
    k.I("v_and_b32", v(t2), 7, v(lane))
    k.I("v_xor_b32", v(t1), v(t1), v(t2))
    k.I("v_lshl_add_u32", v(vXo), v(t1), 4, v(t0))
    k.I("v_xor_b32", v(t1), 4, v(t1))
    k.I("v_lshl_add_u32", v(vXo + 1), v(t1), 4, v(t0))
    k.I("v_add_u32", v(vXo + 1), 8 * 896, v(vXo + 1))
    k.I("v_add_u32", v(vXo + 2), 16 * 896, v(vXo))
    k.I("v_add_u32", v(vXo + 3), 16 * 896, v(vXo + 1))
    vWo = k.valloc(3)
    for b in range(3):
        k.I("v_add_u32", v(t0), 64 * b, v(lane))
        k.I("v_mul_u32_u24", v(t1), 171, v(t0))
        k.I("v_lshrrev_b32", v(t1), 11, v(t1))
        k.I("v_mul_u32_u24", v(t2), 12, v(t1))
        k.I("v_sub_u32", v(t0), v(t0), v(t2))
        k.I("v_mul_u32_u24", v(vWo + b), 2688, v(t1))
        k.I("v_lshrrev_b32", v(t2), 2, v(t0))
        k.I("v_mul_u32_u24", v(t2), 896, v(t2))
        k.I("v_and_b32", v(t0), 3, v(t0))
        k.I("v_lshl_add_u32", v(t2), v(t0), 4, v(t2))
        k.I("v_add_u32", v(vWo + b), v(vWo + b), v(t2))
        if os.environ.get("EXP_WCONT"):
            k.I("v_lshlrev_b32", v(vWo + b), 4, v(lane))
            k.I("v_add_u32", v(vWo + b), 1024 * b, v(vWo + b))
    sWb = k.salloc(); sm0 = k.salloc(); sXb = k.salloc(); sm0x = k.salloc()
    k.I("s_mul_i32", s(sWb), s(shd), 56)
    k.I("s_mul_i32", s(st0), s(sw3), 16 * 2688)
    k.I("s_add_u32", s(sWb), s(sWb), s(st0))
    k.I("s_mul_i32", s(sm0), s(sw3), 3 * 1024)
    k.I("s_lshl_b32", s(st0), s(srb), 7)
    k.I("s_lshl_b32", s(st1), s(sw3), 5)
    k.I("s_add_u32", s(st0), s(st0), s(st1))
    k.I("s_mul_i32", s(sXb), s(st0), 896)
    k.I("s_mul_i32", s(sm0x), s(sw3), NXS * XSL)
    k.I("s_add_u32", s(sm0x), s(sm0x), XRING)
    def wdma(c, b):
        if os.environ.get("EXP_NODMA") and c >= 3: return
        k.I("s_add_u32", s(soff), s(sWb), hex(c * 64 * 2688))
        k.I("s_add_u32", "m0", s(sm0), hex(WREG + c * WCH + b * 1024))
        k.vm(("W", c), "buffer_load_dwordx4", v(vWo + b), sr(sW, 4), s(soff), mods="offen lds")
    def xdma(c, j):
        if os.environ.get("EXP_NODMA") and c >= 2: return
        k.I("s_add_u32", s(soff), s(sXb), hex(c * 128))
        k.I("s_add_u32", "m0", s(sm0x), hex((c % NXS) * XSL + j * 1024))
        k.vm(("X", c), "buffer_load_dwordx4", v(vXo + j), sr(sX, 4), s(soff), mods="offen lds")
    for c in range(2):
        for b in range(3): wdma(c, b)
        for j in range(4): xdma(c, j)
    for b in range(3): wdma(2, b)
    LT = os.environ.get("TICKWAVE", "0") != "0"
    if LT: stp.tick(0)
    for c in range(7):
        k.wait_vm([("W", c), ("X", c)])
        if LT and c < 5: stp.tick(1 + 3 * c)
        k.I("s_barrier")
        if LT and c < 5: stp.tick(2 + 3 * c)
        if c + 2 <= 6:
            for j in range(4): xdma(c + 2, j)
        if c + 3 <= 6:
            for b in range(3): wdma(c + 3, b)
        if c == 4 and os.environ.get("PFK1", "g2") == "g":
            import kernels2
            kernels2.mall_prefetch(k, 16, 448 * 896, 0, 4, 4, sw3, lane, st0, t0, t1)
            kernels2.mall_prefetch(k, 32, 448 * 3584, 0, 13, 4, sw3, lane, st0, t0, t1)
        if c == 4 and os.environ.get("PFK1", "g2") == "g2":
            import kernels2
            kernels2.mall_prefetch(k, 16, 448 * 896, 0, 4, 4, sw3, lane, st0, t0, t1)
            kernels2.mall_prefetch(k, 32, 448 * 3584, 0, 13, 4, sw3, lane, st0, t0, t1)
            kernels2.mall_prefetch(k, 40, 2048 * 4096, 0, 64, 4, sw3, lane, st0, t0, t1)
        if c == 4 and os.environ.get("PFK1", "g2") == "1":
            import kernels2
            vTp = k.valloc()
            k.I("s_lshr_b32", s(st0), "s2", 3)
            k.I("s_lshl_b32", s(st0), s(st0), 8)
            k.I("v_subrev_u32", v(vTp), 256, "v0")
            k.I("v_add_u32", v(vTp), s(st0), v(vTp))
            k.I("v_lshlrev_b32", v(vTp), 7, v(vTp))
            kernels2.l2_prefetch(k, 16, 448 * 896, vTp, 8192, st0)
            kernels2.l2_prefetch(k, 32, 448 * 3584, vTp, 8192, st0)
        if LT and c < 5: stp.tick(3 + 3 * c)
    vTp = k.valloc()
    k.I("s_lshr_b32", s(st0), "s2", 3)
    k.I("s_lshl_b32", s(st0), s(st0), 8)
    k.I("v_subrev_u32", v(vTp), 256, "v0")
    k.I("v_add_u32", v(vTp), s(st0), v(vTp))
    k.I("v_lshlrev_b32", v(vTp), 7, v(vTp))
    import kernels2
    k.I("s_barrier")
    if LT:
        srd(k, sWS, pWS, WS_SIZE)
        stp.dump_ticks()
    k.I("s_endpgm")
    k.L(comp)
    k.vnext = vsave; k.vmq = []; k.lgq = []
    vpf = k.valloc(); vpd = k.valloc(4)
    k.I("s_lshr_b32", s(st0), "s2", 3)
    k.I("s_lshl_b32", s(st0), s(st0), 8)
    k.I("v_add_u32", v(vpf), s(st0), "v0")
    k.I("v_lshlrev_b32", v(vpf), 7, v(vpf))
    if not os.environ.get("EXP_NOPF"):
        k.I("buffer_load_dword", v(vpd), v(vpf), sr(sW, 4), 0, mods="offen")
        k.I("v_add_u32", v(vpf), 8192 * 128, v(vpf))
        k.I("buffer_load_dword", v(vpd + 1), v(vpf), sr(sW, 4), 0, mods="offen")
        k.I("s_and_b32", s(st0), "s2", 7)
        k.I("s_mul_i32", s(st0), s(st0), 256 * 896)
        k.I("v_subrev_u32", v(vpf), 9408 * 128, v(vpf))
        k.I("v_mov_b32", v(t0), hex(256 * 896))
        k.I("v_cmp_lt_u32", "vcc", v(vpf), v(t0))
        k.I("v_mov_b32", v(t1), "0x7fffff00")
        k.I("v_cndmask_b32", v(vpf), v(t1), v(vpf), "vcc")
        k.I("buffer_load_dword", v(vpd + 2), v(vpf), sr(sX, 4), s(st0), mods="offen")
    sidx1 = k.salloc()
    k.I("s_lshr_b32", s(sidx1), "s2", 3)
    import kernels2
    kernels2.code_prefetch(k, "k2_attn_kernel", sidx1, st0)
    if os.environ.get("PF2", "0") == "1":
        pp = k.salloc(2); sP = k.salloc(4); vT = k.valloc(); vd = k.valloc(8)
        k.I("s_lshr_b32", s(st0), "s2", 3)
        k.I("s_lshl_b32", s(st0), s(st0), 8)
        k.I("v_add_u32", v(vT), s(st0), "v0")
        k.I("v_lshlrev_b32", v(vT), 7, v(vT))
        k.I("s_getpc_b64", sr(pp, 2))
        k.I("s_and_b32", s(pp), s(pp), "0xffffff00")
        srd(k, sP, pp, "CODE_BYTES-4096")
        k.I("buffer_load_dword", v(vd), v(vT), sr(sP, 4), 0, mods="offen")
        for (ko, nbytes, n) in ((16, 448 * 896, 1), (32, 448 * 3584, 2)):
            k.I("s_load_dwordx2", sr(pp, 2), "s[0:1]", ko)
            k.I("s_waitcnt", "lgkmcnt(0)")
            srd(k, sP, pp, nbytes)
            for i in range(n):
                k.I("s_mov_b32", s(st0), hex(i * 8192 * 128))
                k.I("buffer_load_dword", v(vd + 1 + i + (0 if ko == 16 else 1)), v(vT), sr(sP, 4), s(st0), mods="offen")
        vG = k.valloc()
        k.I("s_lshl_b32", s(st0), "s2", 8)
        k.I("v_add_u32", v(vG), s(st0), "v0")
        k.I("v_lshlrev_b32", v(vG), 7, v(vG))
        for n_, (ko, nbytes) in enumerate(((40, 2048 * 4096), (56, 896 * 896))):
            k.I("s_load_dwordx2", sr(pp, 2), "s[0:1]", ko)
            k.I("s_waitcnt", "lgkmcnt(0)")
            srd(k, sP, pp, nbytes)
            k.I("buffer_load_dword", v(vd + 5 + n_), v(vG), sr(sP, 4), 0, mods="offen")
        srd(k, sP, pWS, 0x1C00000)
        k.I("v_lshlrev_b32", v(t0), 9, v(vT))
        k.I("buffer_load_dword", v(vd + 4), v(t0), sr(sP, 4), 0, mods="offen")
    sm0x = k.salloc()
    k.I("s_mul_i32", s(sm0x), s(swave), NXS * XSL)
    k.I("s_add_u32", s(sm0x), s(sm0x), XRING)
    aX = k.valloc(4); vW = k.valloc(); aG = k.valloc(4); vWj = k.valloc()
    gg = k.valloc()
    k.I("v_and_b32", v(l31), 31, "v0")
    k.I("v_bfe_u32", v(hh), "v0", 5, 1)
    k.I("v_lshrrev_b32", v(gg), 4, v(lane))
    k.I("v_bfe_u32", v(t0), v(l31), 1, 3)
    for j in range(4):
        k.I("v_add_u32", v(t1), 2 * j, v(hh))
        k.I("v_xor_b32", v(t1), v(t1), v(t0))
        k.I("v_lshlrev_b32", v(t1), 4, v(t1))
        k.I("v_lshl_add_u32", v(aX + j), v(l31), 7, v(t1))
        k.I("v_add_u32", v(aX + j), s(sm0x), v(aX + j))
    for rg in range(2):
        k.I("v_add_u32", v(t0), 16 * rg, v(l15))
        k.I("v_bfe_u32", v(t1), v(t0), 1, 3)
        for kk in range(2):
            k.I("v_add_u32", v(t2), 4 * kk, v(gg))
            k.I("v_xor_b32", v(t2), v(t2), v(t1))
            k.I("v_lshlrev_b32", v(t2), 4, v(t2))
            k.I("v_lshl_add_u32", v(aG + 2 * rg + kk), v(t0), 7, v(t2))
            k.I("v_add_u32", v(aG + 2 * rg + kk), s(sm0x), v(aG + 2 * rg + kk))
    k.I("v_bfe_u32", v(t0), "v0", 2, 2)
    k.I("v_lshl_add_u32", v(t1), v(hh), 3, v(t0))
    k.I("v_mul_u32_u24", v(t1), 192, v(t1))
    k.I("v_bfe_u32", v(t2), "v0", 4, 1)
    k.I("v_lshl_add_u32", v(t1), v(t2), 5, v(t1))
    k.I("v_and_b32", v(t2), 3, "v0")
    k.I("v_lshl_add_u32", v(vW), v(t2), 3, v(t1))
    k.I("v_lshl_add_u32", v(t0), v(gg), 3, v(t0))
    k.I("v_mul_u32_u24", v(t0), 192, v(t0))
    k.I("v_lshl_add_u32", v(vWj), v(t2), 3, v(t0))
    k.I("s_lshr_b32", s(st0), s(swave), 1)
    k.I("s_mul_i32", s(st0), s(st0), 32 * 192)
    k.I("s_and_b32", s(st1), s(swave), 1)
    k.I("s_mul_i32", s(st1), s(st1), 96)
    k.I("s_add_u32", s(st0), s(st0), s(st1))
    k.I("v_add_u32", v(vWj), s(st0), v(vWj))
    vW2 = k.valloc(); vWj2 = k.valloc()
    k.I("v_add_u32", v(vW2), 4 * WCH, v(vW))
    k.I("v_add_u32", v(vWj2), 4 * WCH, v(vWj))
    ones = k.valloc(4)
    vWq = k.valloc(); vInc = k.valloc()
    k.I("v_and_b32", v(t0), 19, v(lane))
    k.I("v_cmp_eq_u32", "vcc", 19, v(t0))
    k.I("v_mov_b32", v(t1), ONES)
    k.I("v_cndmask_b32", v(vWq), v(vW), v(t1), "vcc")
    k.I("v_mov_b32", v(t1), 16 * 192)
    k.I("v_cndmask_b32", v(vInc), v(t1), 0, "vcc")
    k.I("v_lshlrev_b32", v(t0), 4, v(lane))
    k.I("v_add_u32", v(t0), ONES, v(t0))
    for i in range(4): k.I("v_mov_b32", v(ones + i), "0x3f803f80")
    k.lg("z", "ds_write_b128", v(t0), vr(ones, 4))
    zz = k.valloc(2); vtb = k.valloc()
    k.I("v_mov_b32", v(zz), 0); k.I("v_mov_b32", v(zz + 1), 0)
    k.I("v_lshlrev_b32", v(vtb), 3, v(lane))
    k.I("v_add_u32", v(vtb), CWT, v(vtb))
    k.lg("z", "ds_write_b64", v(vtb), vr(zz, 2))
    accq = k.valloc(16, 4); acck = k.valloc(16, 4); accv = k.valloc(16, 4)
    NB = 3
    cacc = [k.valloc(4) for _ in range(3)]
    gacc = [k.valloc(4) for _ in range(2)]
    vmark = k.vnext
    xf = [k.valloc(4) for _ in range(NB)]
    wf = [[k.valloc(4) for _ in range(3)] for _ in range(NB)]
    xs = [k.valloc(4) for _ in range(4)]
    wf2 = [k.valloc(4) for _ in range(3)]
    def read_list(ks):
        c, j = ks // 4, ks % 4
        b = ks % NB
        out = [lambda: k.lg(("f", ks), "ds_read_b128", vr(xf[b], 4), v(aX + j), mods=f"offset:{(c % NXS) * XSL}")]
        for beta in range(2):
            out.append(lambda beta=beta: k.lg(("f", ks), "ds_read_b64_tr_b16", vr(wf[b][0] + 2 * beta, 2), v(vWq), mods=f"offset:{beta * 4 * 192}"))
        out.append(lambda: k.I("v_add_u32", v(vWq), v(vInc), v(vWq)))
        for sg in range(1, 3):
            for beta in range(2):
                o = (c % 4) * WCH + (16 * j + 4 * beta) * 192 + 64 * sg
                base = vW if c < 4 else vW2
                out.append(lambda o=o, sg=sg, beta=beta, base=base: k.lg(("f", ks), "ds_read_b64_tr_b16", vr(wf[b][sg] + 2 * beta, 2), v(base), mods=f"offset:{o}"))
        return out
    def aux_reads(c):
        out = []
        for j in range(4):
            out.append(lambda j=j: k.lg(("g", c), "ds_read_b128", vr(xs[j], 4), v(aG + j), mods=f"offset:{(c % NXS) * XSL}"))
        for nt in range(3):
            for beta in range(2):
                o = (c % 4) * WCH + (4 * beta) * 192 + 32 * nt
                base = vWj if c < 4 else vWj2
                out.append(lambda o=o, nt=nt, beta=beta, base=base: k.lg(("cw", c), "ds_read_b64_tr_b16", vr(wf2[nt] + 2 * beta, 2), v(base), mods=f"offset:{o}"))
        return out
    k.I("s_waitcnt", "lgkmcnt(0)")
    srd(k, sWS, pWS, WS_SIZE)
    stp.stamp(0)
    k.wait_lg("z")
    k.I("s_barrier")
    stp.stamp(1)
    if os.environ.get("TICKWAVE", "0") != "0": stp.tick = lambda i: None
    stp.tick(0)
    for f in read_list(0): f()
    for f in read_list(1): f()
    for ks in range(28):
        c, j = ks // 4, ks % 4
        b = ks % NB
        fill = []
        if ks + 2 < 28:
            fill += read_list(ks + 2)
        vm = []
        aux = []
        if j == 0: aux = aux_reads(c)[:4]
        if j == 1: aux = aux_reads(c)[4:]
        if os.environ.get("EXP_NOCOMP"):
            k.lgq = []
            if j == 1 and c < 6:
                k.I("s_barrier"); stp.tick(1 + c)
            continue
        k.wait_lg(("f", ks))
        mf = [
            lambda: k.I("v_mfma_f32_32x32x16_bf16", vr(accq, 16), vr(wf[b][0], 4), vr(xf[b], 4), 0 if ks == 0 else vr(accq, 16)),
            lambda: k.I("v_mfma_f32_32x32x16_bf16", vr(acck, 16), vr(wf[b][1], 4), vr(xf[b], 4), 0 if ks == 0 else vr(acck, 16)),
            lambda: k.I("v_mfma_f32_32x32x16_bf16", vr(accv, 16), vr(xf[b], 4), vr(wf[b][2], 4), 0 if ks == 0 else vr(accv, 16)),
        ]
        fl = fill + aux + vm
        n = len(fl)
        cuts = [0, (n + 2) // 3, (2 * n + 2) // 3, n]
        for i in range(3):
            mf[i]()
            for f in fl[cuts[i]:cuts[i + 1]]: f()
        if j == 2:
            k.wait_lg(("g", c))
            for jj in range(4):
                k.I("v_mfma_f32_16x16x32_bf16", vr(gacc[jj >> 1], 4), vr(xs[jj], 4), vr(xs[jj], 4), 0 if (c == 0 and (jj & 1) == 0) else vr(gacc[jj >> 1], 4))
        if j == 3:
            k.wait_lg(("cw", c))
            for nt in range(3):
                k.I("v_mfma_f32_16x16x32_bf16", vr(cacc[nt], 4), vr(ones, 4), vr(wf2[nt], 4), 0 if c == 0 else vr(cacc[nt], 4))
        if j == 1 and c < 6:
            k.I("s_barrier")
            stp.tick(1 + c)
    stp.tick(13)
    stp.stamp(2)
    k.vnext = vmark
    m1 = k.salloc(2); m2 = k.salloc(2); m3 = k.salloc(2)
    k.I("v_and_b32", v(t0), 3, v(lane))
    k.I("v_cmp_eq_u32", sr(m1, 2), 1, v(t0))
    k.I("v_cmp_eq_u32", sr(m2, 2), 2, v(t0))
    k.I("v_cmp_eq_u32", sr(m3, 2), 3, v(t0))
    vtl = k.valloc()
    k.I("v_lshlrev_b32", v(vtl), 2, v(l15))
    k.I("v_add_u32", v(vtl), TBL, v(vtl))
    k.I("s_and_b32", s(st1), s(swave), 1)
    k.I("s_mul_i32", s(st1), s(st1), 192)
    k.I("v_add_u32", v(t1), s(st1), v(vtl))
    k.I("s_mov_b32", "exec_lo", "0xffff")
    k.I("s_mov_b32", "exec_hi", 0)
    for nt in range(3):
        k.I("ds_add_f32", v(t1), v(cacc[nt]), mods=f"offset:{64 * nt}")
    k.I("s_mov_b64", "exec", -1)
    for rg in range(2):
        g_ = gacc[rg]
        k.I("v_cndmask_b32", v(g_), v(g_), v(g_ + 1), sr(m1, 2))
        k.I("v_cndmask_b32", v(g_), v(g_), v(g_ + 2), sr(m2, 2))
        k.I("v_cndmask_b32", v(g_), v(g_), v(g_ + 3), sr(m3, 2))
    k.I("s_lshl_b32", s(st0), s(swave), 7)
    k.I("v_add_u32", v(t0), s(st0), v(vtl))
    k.I("s_mov_b32", "exec_lo", "0x00f0000f")
    k.I("s_mov_b32", "exec_hi", "0xf0000f00")
    for rg in range(2):
        k.I("ds_write_b32", v(t0), v(gacc[rg]), mods=f"offset:{SQT - TBL + 64 * rg}")
    k.I("s_mov_b64", "exec", -1)
    sq = k.valloc(2); rl = k.valloc(2); nml = k.valloc(2); cwv = k.valloc(2)
    cwq = k.valloc(16, 4); cwk = k.valloc(16, 4); rv = k.valloc(16, 4); nv = k.valloc(16, 4)
    ta = k.valloc(); tb = k.valloc(); tc = k.valloc()
    k.I("v_lshlrev_b32", v(ta), 2, v(l31))
    k.I("s_add_u32", s(st0), s(st0), TBL)
    k.I("v_add_u32", v(ta), s(st0), v(ta))
    k.I("v_mov_b32", v(nml), v(accq + 12))
    k.I("v_mov_b32", v(nml + 1), v(accq + 12))
    k.I("v_permlane32_swap_b32", v(nml), v(nml + 1))
    k.I("v_mul_f32", v(nml), hex(f32(-1.0 / 448)), v(nml + 1))
    k.I("s_waitcnt", "lgkmcnt(0)")
    k.I("ds_read_b32", v(sq), v(ta), mods=f"offset:{SQT - TBL}")
    k.I("ds_write_b32", v(ta), v(nml), mods=f"offset:{NMT - TBL}")
    k.I("s_barrier")
    k.I("v_lshlrev_b32", v(tb), 4, v(hh))
    k.I("v_add_u32", v(tb), TBL, v(tb))
    for q in range(4):
        k.I("ds_read_b128", vr(cwq + 4 * q, 4), v(tb), mods=f"offset:{CWT - TBL + 32 * q}")
        k.I("ds_read_b128", vr(cwk + 4 * q, 4), v(tb), mods=f"offset:{CWT - TBL + 128 + 32 * q}")
    k.I("v_lshlrev_b32", v(tc), 2, v(l31))
    k.I("v_add_u32", v(tc), TBL, v(tc))
    k.I("ds_read_b32", v(cwv), v(tc), mods=f"offset:{CWT - TBL + 256}")
    k.I("s_waitcnt", "lgkmcnt(9)")
    k.I("v_mul_f32", v(sq), hex(f32(1.0 / 448)), v(sq))
    k.I("v_fma_f32", v(sq), f"-{v(nml)}", v(nml), v(sq))
    k.I("v_max_f32", v(sq), 0, v(sq))
    k.I("v_add_f32", v(sq), hex(f32(1e-5)), v(sq))
    k.I("v_rsq_f32", v(rl), v(sq))
    k.I("s_lshl_b32", s(st0), s(swave), 7)
    k.I("v_add_u32", v(tb), s(st0), v(tb))
    k.I("ds_write_b32", v(ta), v(rl), mods=f"offset:{RT - TBL}")
    k.I("s_waitcnt", "lgkmcnt(0)")
    for q in range(4):
        k.I("ds_read_b128", vr(rv + 4 * q, 4), v(tb), mods=f"offset:{RT - TBL + 32 * q}")
        k.I("ds_read_b128", vr(nv + 4 * q, 4), v(tb), mods=f"offset:{NMT - TBL + 32 * q}")
    k.lgq = []
    vq = k.valloc(); vv_ = k.valloc()
    k.I("v_lshrrev_b32", v(t0), 4, v(l31))
    k.I("v_lshlrev_b32", v(vq), 10, v(t0))
    k.I("v_lshl_add_u32", v(vq), v(l15), 4, v(vq))
    k.I("v_lshl_add_u32", v(vq), v(hh), 9, v(vq))
    k.I("v_lshlrev_b32", v(vv_), 9, v(t0))
    k.I("v_lshl_add_u32", v(vv_), v(l15), 3, v(vv_))
    k.I("v_lshl_add_u32", v(vv_), v(hh), 7, v(vv_))
    sb = k.salloc()
    k.I("s_lshl_b32", s(sb), s(shd), 17)
    k.I("s_lshl_b32", s(st0), s(srb), 13)
    k.I("s_add_u32", s(sb), s(sb), s(st0))
    k.I("s_lshl_b32", s(st0), s(swave), 11)
    k.I("s_add_u32", s(sb), s(sb), s(st0))
    k.I("v_cmp_eq_u32", "vcc", 0, v(hh))
    pk = k.valloc(8, 4)
    for (acc, cw, off) in ((accq, cwq, Q_OFF), (acck, cwk, K_OFF)):
        for j in range(8):
            k.I("v_pk_fma_f32", vr(acc + 2 * j, 2), vr(cw + 2 * j, 2), vr(nml, 2), vr(acc + 2 * j, 2), mods="op_sel_hi:[1,0,1]")
        for j in range(8):
            k.I("v_pk_mul_f32", vr(acc + 2 * j, 2), vr(acc + 2 * j, 2), vr(rl, 2), mods="op_sel_hi:[1,0]")
        for j in range(8):
            k.I("v_cvt_pk_bf16_f32", v(pk + j), v(acc + 2 * j), v(acc + 2 * j + 1))
        k.I("v_cndmask_b32", v(pk + 6), 0, v(pk + 6), "vcc")
        k.I("v_cndmask_b32", v(pk + 7), 0, v(pk + 7), "vcc")
        k.I("s_add_u32", s(soff), s(sb), hex(off))
        k.I("buffer_store_dwordx4", vr(pk, 4), v(vq), sr(sWS, 4), s(soff), mods="offen")
        k.I("buffer_store_dwordx4", vr(pk + 4, 4), v(vq), sr(sWS, 4), s(soff), mods="offen offset:256")
        pk = k.valloc(8, 4)
    k.I("s_waitcnt", "lgkmcnt(0)")
    for j in range(8):
        k.I("v_pk_fma_f32", vr(accv + 2 * j, 2), vr(nv + 2 * j, 2), vr(cwv, 2), vr(accv + 2 * j, 2), mods="op_sel_hi:[1,0,1]")
    for j in range(8):
        k.I("v_pk_mul_f32", vr(accv + 2 * j, 2), vr(accv + 2 * j, 2), vr(rv + 2 * j, 2))
    for j in range(8):
        k.I("v_cvt_pk_bf16_f32", v(pk + j), v(accv + 2 * j), v(accv + 2 * j + 1))
    k.I("v_mov_b32", v(t0), "0x3f803f80")
    k.I("v_cmp_eq_u32", "vcc", 28, v(l31))
    k.I("v_cndmask_b32", v(t0), 0, v(t0), "vcc")
    k.I("v_cmp_gt_u32", "vcc", 28, v(l31))
    for j in range(8):
        k.I("v_cndmask_b32", v(pk + j), v(t0), v(pk + j), "vcc")
    k.I("s_add_u32", s(soff), s(sb), hex(V_OFF))
    for q in range(4):
        k.I("buffer_store_dwordx2", vr(pk + 2 * q, 2), v(vv_), sr(sWS, 4), s(soff), mods=f"offen offset:{(q >> 1) * 1024 + (q & 1) * 256}")
    stp.tick(15)
    stp.stamp(3)
    stp.dump_ticks()
    k.L(done)
    k.I("s_endpgm")
    k.lds = lds; k.threads = 512; k.grid = 256
    return k

import struct
def f32(x): return struct.unpack("<I", struct.pack("<f", x))[0]

def assemble(kernels):
    out = []
    hdr = open("cdna_kernels/" + NAME + ".s.ref").read().split("\n")
    for line in hdr:
        if line.startswith("; Override") or line.startswith("; grid=") or line.startswith("; @launch"): continue
        if not line.startswith(";"): break
        out.append(line)
    for k in kernels:
        out.append(f"; @launch kernel={k.name} grid=({k.grid},1,1) block=({k.threads},1,1) lds={k.lds}")
    out.append('.amdgcn_target "amdgcn-amd-amdhsa--gfx950"')
    out.append(".text")
    for k in kernels:
        n = k.fix_hazards()
        out.append(f".globl {k.name}")
        out.append(".p2align 8")
        out.append(f".type {k.name},@function")
        out.append(f"{k.name}:")
        out.append(k.render())
        out.append(f"{k.name}_end:")
        print(f"{k.name}: {len(k.ins)} instrs, hazard pads {n}, vgpr {k.vmax} agpr {k.amax} sgpr {k.smax} lds {k.lds}", file=sys.stderr)
    out.append("code_end:")
    out.append(f".set CODE_BYTES, code_end - {kernels[0].name}")
    out.append('.section .rodata,"a"')
    for k in kernels:
        out.append(".p2align 6")
        out.append(k.descriptor())
    return "\n".join(out) + "\n"

if __name__ == "__main__":
    import kernels2 as k2
    ks = [gen_k1()] + k2.rest(Stamper)
    path = sys.argv[1] if len(sys.argv) > 1 else "cdna_kernels/" + NAME + ".s"
    open(path, "w").write(assemble(ks))
```

```python
import sys, os
sys.path.insert(0, os.path.dirname(__file__))
from asmlib import *
from layout import *

NAME = "sequential_preLN__sliding_block__mixer_gmlp__prompt"
STAMPS = os.environ.get("GEN_STAMPS", "0") == "1"
WS_SIZE = 0x10000000

def srd(k, dst, base, size):
    k.I("s_mov_b32", s(dst), s(base))
    k.I("s_and_b32", s(dst + 1), s(base + 1), "0xffff")
    k.I("s_mov_b32", s(dst + 2), hex(size) if isinstance(size, int) else size)
    k.I("s_mov_b32", s(dst + 3), "0x20000")

class Stamper:
    def __init__(self, k, kidx, sWS, swave):
        self.k, self.kidx, self.sWS, self.swave = k, kidx, sWS, swave
        if STAMPS:
            self.st = k.salloc(2); self.vt = k.valloc(2); self.vo = k.valloc(1); self.ex = k.salloc(2)
    def tick(self, i):
        if not STAMPS or not os.environ.get("TICKS"): return
        if not hasattr(self, "tk"): self.tk = self.k.salloc(32, 4)
        self.k.I("s_memtime", sr(self.tk + 2 * i, 2))
        self.nt = max(getattr(self, "nt", 0), i + 1)
    def dump_ticks(self):
        if not STAMPS or not hasattr(self, "tk"): return
        k = self.k
        k.I("s_waitcnt", "lgkmcnt(0)")
        k.lgq = []
        k.I("s_lshl_b32", s(self.ex), "s2", 7)
        k.I("s_add_u32", s(self.ex), s(self.ex), hex(TICK_OFF + self.kidx * 256 * 128))
        k.I("s_cmp_lg_u32", s(self.swave), int(os.environ.get("TICKWAVE", "0")))
        k.I("s_cselect_b32", s(self.ex), "0x7ffffff0", s(self.ex))
        k.I("s_mov_b64", sr(self.st, 2), "exec")
        k.I("s_mov_b64", "exec", 1)
        k.I("v_mov_b32", v(self.vo), 0)
        for i in range(16):
            k.I("v_mov_b32", v(self.vt), s(self.tk + 2 * i))
            k.I("v_mov_b32", v(self.vt + 1), s(self.tk + 2 * i + 1))
            k.I("buffer_store_dwordx2", vr(self.vt, 2), v(self.vo), sr(self.sWS, 4), s(self.ex), mods=f"offen offset:{8 * i}")
            k.I("s_nop", 1)
        k.I("s_mov_b64", "exec", sr(self.st, 2))
    def stamp(self, j):
        if not STAMPS: return
        k = self.k
        k.I("s_memrealtime", sr(self.st, 2))
        k.I("s_lshl_b32", s(self.ex), "s2", 6)
        k.I("s_add_u32", s(self.ex), s(self.ex), hex(STAMP_OFF + self.kidx * 256 * 64 + j * 8))
        k.I("s_cmp_lg_u32", s(self.swave), 0)
        k.I("s_cselect_b32", s(self.ex), "0x7ffffff0", s(self.ex))
        k.I("s_waitcnt", "lgkmcnt(0)")
        k.lgq = []
        k.I("v_mov_b32", v(self.vt), s(self.st))
        k.I("v_mov_b32", v(self.vt + 1), s(self.st + 1))
        k.I("v_mov_b32", v(self.vo), 0)
        k.I("s_mov_b64", sr(self.st, 2), "exec")
        k.I("s_mov_b64", "exec", 1)
        k.I("buffer_store_dwordx2", vr(self.vt, 2), v(self.vo), sr(self.sWS, 4), s(self.ex), mods="offen")
        k.I("s_mov_b64", "exec", sr(self.st, 2))
        k.vmq.append("stamp")

class DbgStamper:
    LAST = {0: 3, 1: 2, 2: 3, 3: 5, 4: 3, 5: 3}
    def __init__(self, k, kidx, sWS, swave):
        self.k, self.kidx, self.swave = k, kidx, swave
        self.st = k.salloc(2); self.vt = k.valloc(2); self.vo = k.valloc(1); self.ex = k.salloc(2)
        self.pd = k.salloc(2); self.sD = k.salloc(4)
        k.I("s_memrealtime", sr(self.st, 2))
        k.I("s_load_dwordx2", sr(self.pd, 2), "s[0:1]", 72)
        self.t0 = k.salloc(2)
        k.I("s_waitcnt", "lgkmcnt(0)")
        k.I("s_mov_b32", s(self.t0), s(self.st))
        k.I("s_sub_u32", s(self.pd), s(self.pd), 512 * kidx)
        k.I("s_subb_u32", s(self.pd + 1), s(self.pd + 1), 0)
        srd(k, self.sD, self.pd, 512 * 5 + 256)
    def tick(self, i): pass
    def dump_ticks(self): pass
    def stamp(self, j):
        if j != self.LAST[self.kidx]: return
        k = self.k
        k.I("s_memrealtime", sr(self.st, 2))
        k.I("s_or_b32", s(self.ex), "s2", s(self.swave))
        k.I("s_cmp_lg_u32", s(self.ex), 0)
        k.I("s_cselect_b32", s(self.ex), "0x7ffffff0", 8 * self.kidx)
        k.I("s_waitcnt", "lgkmcnt(0)")
        k.lgq = []
        k.I("v_mov_b32", v(self.vt), s(self.t0))
        k.I("v_mov_b32", v(self.vt + 1), s(self.st))
        k.I("v_mov_b32", v(self.vo), 0)
        k.I("s_mov_b64", sr(self.st, 2), "exec")
        k.I("s_mov_b64", "exec", 1)
        for tg in range(6):
            k.I("buffer_store_dwordx2", vr(self.vt, 2), v(self.vo), sr(self.sD, 4), s(self.ex), mods=f"offen offset:{512 * tg}")
            k.vmq.append("stamp")
        k.I("s_mov_b64", "exec", sr(self.st, 2))

if os.environ.get("GEN_DBG"): Stamper = DbgStamper

def gen_k1():
    k = Kernel("k1_qkv_kernel")
    k.snext = 4; k.vnext = 1
    WREG = 0; WCH = 12288; XRING = 7 * WCH; XSL = 4096; NXS = 4
    TBL = XRING + 4 * NXS * XSL
    CWT = TBL; RT = TBL + 512; NMT = TBL + 1024; SQT = TBL + 1536
    ONES = TBL + 2048
    lds = ONES + 1024
    done = k.newlabel("done")
    k.I("s_cmp_ge_u32", "s2", 256)
    k.I("s_cbranch_scc1", done)
    pX = k.salloc(4); pWS = k.salloc(2)
    k.I("s_load_dwordx4", sr(pX, 4), "s[0:1]", 0)
    k.I("s_load_dwordx2", sr(pWS, 2), "s[0:1]", 80)
    sX = k.salloc(4); sW = k.salloc(4); sWS = k.salloc(4)
    swave = k.salloc(); srb = k.salloc(); shd = k.salloc(); st0 = k.salloc(); st1 = k.salloc(); soff = k.salloc()
    lane = k.valloc(); l31 = k.valloc(); hh = k.valloc(); t0 = k.valloc(); t1 = k.valloc(); t2 = k.valloc()
    k.I("v_lshrrev_b32", v(t0), 6, "v0")
    k.I("v_and_b32", v(lane), 63, "v0")
    k.I("v_readfirstlane_b32", s(swave), v(t0))
    k.I("s_and_b32", s(st0), "s2", 7)
    k.I("s_lshr_b32", s(st1), "s2", 3)
    k.I("s_and_b32", s(shd), s(st1), 15)
    k.I("s_lshr_b32", s(st1), s(st1), 4)
    k.I("s_lshl_b32", s(srb), s(st0), 1)
    k.I("s_add_u32", s(srb), s(srb), s(st1))
    stp = Stamper(k, 0, sWS, swave)
    sw3 = k.salloc()
    k.I("s_and_b32", s(sw3), s(swave), 3)
    l15 = k.valloc()
    k.I("v_and_b32", v(l15), 15, v(lane))
    k.I("s_waitcnt", "lgkmcnt(0)")
    srd(k, sW, pX + 2, 448 * 2688)
    srd(k, sX, pX, 2048 * 896)
    comp = k.newlabel("compute")
    k.I("s_cmp_lt_u32", s(swave), 4)
    k.I("s_cbranch_scc1", comp)
    vsave = k.vnext
    vXo = k.valloc(4)
    k.I("v_lshrrev_b32", v(t0), 3, v(lane))
    k.I("v_mul_u32_u24", v(t0), 896, v(t0))
    k.I("v_lshrrev_b32", v(t1), 4, v(lane))
    k.I("v_and_b32", v(t2), 7, v(lane))
    k.I("v_xor_b32", v(t1), v(t1), v(t2))
    k.I("v_lshl_add_u32", v(vXo), v(t1), 4, v(t0))
    k.I("v_xor_b32", v(t1), 4, v(t1))
    k.I("v_lshl_add_u32", v(vXo + 1), v(t1), 4, v(t0))
    k.I("v_add_u32", v(vXo + 1), 8 * 896, v(vXo + 1))
    k.I("v_add_u32", v(vXo + 2), 16 * 896, v(vXo))
    k.I("v_add_u32", v(vXo + 3), 16 * 896, v(vXo + 1))
    vWo = k.valloc(3)
    for b in range(3):
        k.I("v_add_u32", v(t0), 64 * b, v(lane))
        k.I("v_mul_u32_u24", v(t1), 171, v(t0))
        k.I("v_lshrrev_b32", v(t1), 11, v(t1))
        k.I("v_mul_u32_u24", v(t2), 12, v(t1))
        k.I("v_sub_u32", v(t0), v(t0), v(t2))
        k.I("v_mul_u32_u24", v(vWo + b), 2688, v(t1))
        k.I("v_lshrrev_b32", v(t2), 2, v(t0))
        k.I("v_mul_u32_u24", v(t2), 896, v(t2))
        k.I("v_and_b32", v(t0), 3, v(t0))
        k.I("v_lshl_add_u32", v(t2), v(t0), 4, v(t2))
        k.I("v_add_u32", v(vWo + b), v(vWo + b), v(t2))
        if os.environ.get("EXP_WCONT"):
            k.I("v_lshlrev_b32", v(vWo + b), 4, v(lane))
            k.I("v_add_u32", v(vWo + b), 1024 * b, v(vWo + b))
    sWb = k.salloc(); sm0 = k.salloc(); sXb = k.salloc(); sm0x = k.salloc()
    k.I("s_mul_i32", s(sWb), s(shd), 56)
    k.I("s_mul_i32", s(st0), s(sw3), 16 * 2688)
    k.I("s_add_u32", s(sWb), s(sWb), s(st0))
    k.I("s_mul_i32", s(sm0), s(sw3), 3 * 1024)
    k.I("s_lshl_b32", s(st0), s(srb), 7)
    k.I("s_lshl_b32", s(st1), s(sw3), 5)
    k.I("s_add_u32", s(st0), s(st0), s(st1))
    k.I("s_mul_i32", s(sXb), s(st0), 896)
    k.I("s_mul_i32", s(sm0x), s(sw3), NXS * XSL)
    k.I("s_add_u32", s(sm0x), s(sm0x), XRING)
    def wdma(c, b):
        if os.environ.get("EXP_NODMA") and c >= 3: return
        k.I("s_add_u32", s(soff), s(sWb), hex(c * 64 * 2688))
        k.I("s_add_u32", "m0", s(sm0), hex(WREG + c * WCH + b * 1024))
        k.vm(("W", c), "buffer_load_dwordx4", v(vWo + b), sr(sW, 4), s(soff), mods="offen lds")
    def xdma(c, j):
        if os.environ.get("EXP_NODMA") and c >= 2: return
        k.I("s_add_u32", s(soff), s(sXb), hex(c * 128))
        k.I("s_add_u32", "m0", s(sm0x), hex((c % NXS) * XSL + j * 1024))
        k.vm(("X", c), "buffer_load_dwordx4", v(vXo + j), sr(sX, 4), s(soff), mods="offen lds")
    for c in range(2):
        for b in range(3): wdma(c, b)
        for j in range(4): xdma(c, j)
    for b in range(3): wdma(2, b)
    LT = os.environ.get("TICKWAVE", "0") != "0"
    if LT: stp.tick(0)
    for c in range(7):
        k.wait_vm([("W", c), ("X", c)])
        if LT and c < 5: stp.tick(1 + 3 * c)
        k.I("s_barrier")
        if LT and c < 5: stp.tick(2 + 3 * c)
        if c + 2 <= 6:
            for j in range(4): xdma(c + 2, j)
        if c + 3 <= 6:
            for b in range(3): wdma(c + 3, b)
        if c == 4 and os.environ.get("PFK1", "0") == "g":
            import kernels2
            kernels2.mall_prefetch(k, 16, 448 * 896, 0, 4, 4, sw3, lane, st0, t0, t1)
            kernels2.mall_prefetch(k, 32, 448 * 3584, 0, 13, 4, sw3, lane, st0, t0, t1)
        if c == 4 and os.environ.get("PFK1", "0") == "g2":
            import kernels2
            kernels2.mall_prefetch(k, 16, 448 * 896, 0, 4, 4, sw3, lane, st0, t0, t1)
            kernels2.mall_prefetch(k, 32, 448 * 3584, 0, 13, 4, sw3, lane, st0, t0, t1)
            kernels2.mall_prefetch(k, 40, 2048 * 4096, 0, 64, 4, sw3, lane, st0, t0, t1)
        if c == 4 and os.environ.get("PFK1", "0") == "1":
            import kernels2
            vTp = k.valloc()
            k.I("s_lshr_b32", s(st0), "s2", 3)
            k.I("s_lshl_b32", s(st0), s(st0), 8)
            k.I("v_subrev_u32", v(vTp), 256, "v0")
            k.I("v_add_u32", v(vTp), s(st0), v(vTp))
            k.I("v_lshlrev_b32", v(vTp), 7, v(vTp))
            kernels2.l2_prefetch(k, 16, 448 * 896, vTp, 8192, st0)
            kernels2.l2_prefetch(k, 32, 448 * 3584, vTp, 8192, st0)
        if LT and c < 5: stp.tick(3 + 3 * c)
    vTp = k.valloc()
    k.I("s_lshr_b32", s(st0), "s2", 3)
    k.I("s_lshl_b32", s(st0), s(st0), 8)
    k.I("v_subrev_u32", v(vTp), 256, "v0")
    k.I("v_add_u32", v(vTp), s(st0), v(vTp))
    k.I("v_lshlrev_b32", v(vTp), 7, v(vTp))
    import kernels2
    k.I("s_barrier")
    if LT:
        srd(k, sWS, pWS, WS_SIZE)
        stp.dump_ticks()
    k.I("s_endpgm")
    k.L(comp)
    k.vnext = vsave; k.vmq = []; k.lgq = []
    vpf = k.valloc(); vpd = k.valloc(4)
    k.I("s_lshr_b32", s(st0), "s2", 3)
    k.I("s_lshl_b32", s(st0), s(st0), 8)
    k.I("v_add_u32", v(vpf), s(st0), "v0")
    k.I("v_lshlrev_b32", v(vpf), 7, v(vpf))
    if not os.environ.get("EXP_NOPF"):
        k.I("buffer_load_dword", v(vpd), v(vpf), sr(sW, 4), 0, mods="offen")
        k.I("v_add_u32", v(vpf), 8192 * 128, v(vpf))
        k.I("buffer_load_dword", v(vpd + 1), v(vpf), sr(sW, 4), 0, mods="offen")
        k.I("s_and_b32", s(st0), "s2", 7)
        k.I("s_mul_i32", s(st0), s(st0), 256 * 896)
        k.I("v_subrev_u32", v(vpf), 9408 * 128, v(vpf))
        k.I("v_mov_b32", v(t0), hex(256 * 896))
        k.I("v_cmp_lt_u32", "vcc", v(vpf), v(t0))
        k.I("v_mov_b32", v(t1), "0x7fffff00")
        k.I("v_cndmask_b32", v(vpf), v(t1), v(vpf), "vcc")
        k.I("buffer_load_dword", v(vpd + 2), v(vpf), sr(sX, 4), s(st0), mods="offen")
    sidx1 = k.salloc()
    k.I("s_lshr_b32", s(sidx1), "s2", 3)
    import kernels2
    kernels2.code_prefetch(k, "k2_attn_kernel", sidx1, st0)
    if os.environ.get("PF2", "0") == "1":
        pp = k.salloc(2); sP = k.salloc(4); vT = k.valloc(); vd = k.valloc(8)
        k.I("s_lshr_b32", s(st0), "s2", 3)
        k.I("s_lshl_b32", s(st0), s(st0), 8)
        k.I("v_add_u32", v(vT), s(st0), "v0")
        k.I("v_lshlrev_b32", v(vT), 7, v(vT))
        k.I("s_getpc_b64", sr(pp, 2))
        k.I("s_and_b32", s(pp), s(pp), "0xffffff00")
        srd(k, sP, pp, "CODE_BYTES-4096")
        k.I("buffer_load_dword", v(vd), v(vT), sr(sP, 4), 0, mods="offen")
        for (ko, nbytes, n) in ((16, 448 * 896, 1), (32, 448 * 3584, 2)):
            k.I("s_load_dwordx2", sr(pp, 2), "s[0:1]", ko)
            k.I("s_waitcnt", "lgkmcnt(0)")
            srd(k, sP, pp, nbytes)
            for i in range(n):
                k.I("s_mov_b32", s(st0), hex(i * 8192 * 128))
                k.I("buffer_load_dword", v(vd + 1 + i + (0 if ko == 16 else 1)), v(vT), sr(sP, 4), s(st0), mods="offen")
        vG = k.valloc()
        k.I("s_lshl_b32", s(st0), "s2", 8)
        k.I("v_add_u32", v(vG), s(st0), "v0")
        k.I("v_lshlrev_b32", v(vG), 7, v(vG))
        for n_, (ko, nbytes) in enumerate(((40, 2048 * 4096), (56, 896 * 896))):
            k.I("s_load_dwordx2", sr(pp, 2), "s[0:1]", ko)
            k.I("s_waitcnt", "lgkmcnt(0)")
            srd(k, sP, pp, nbytes)
            k.I("buffer_load_dword", v(vd + 5 + n_), v(vG), sr(sP, 4), 0, mods="offen")
        srd(k, sP, pWS, 0x1C00000)
        k.I("v_lshlrev_b32", v(t0), 9, v(vT))
        k.I("buffer_load_dword", v(vd + 4), v(t0), sr(sP, 4), 0, mods="offen")
    sm0x = k.salloc()
    k.I("s_mul_i32", s(sm0x), s(swave), NXS * XSL)
    k.I("s_add_u32", s(sm0x), s(sm0x), XRING)
    aX = k.valloc(4); vW = k.valloc(); aG = k.valloc(4); vWj = k.valloc()
    gg = k.valloc()
    k.I("v_and_b32", v(l31), 31, "v0")
    k.I("v_bfe_u32", v(hh), "v0", 5, 1)
    k.I("v_lshrrev_b32", v(gg), 4, v(lane))
    k.I("v_bfe_u32", v(t0), v(l31), 1, 3)
    for j in range(4):
        k.I("v_add_u32", v(t1), 2 * j, v(hh))
        k.I("v_xor_b32", v(t1), v(t1), v(t0))
        k.I("v_lshlrev_b32", v(t1), 4, v(t1))
        k.I("v_lshl_add_u32", v(aX + j), v(l31), 7, v(t1))
        k.I("v_add_u32", v(aX + j), s(sm0x), v(aX + j))
    for rg in range(2):
        k.I("v_add_u32", v(t0), 16 * rg, v(l15))
        k.I("v_bfe_u32", v(t1), v(t0), 1, 3)
        for kk in range(2):
            k.I("v_add_u32", v(t2), 4 * kk, v(gg))
            k.I("v_xor_b32", v(t2), v(t2), v(t1))
            k.I("v_lshlrev_b32", v(t2), 4, v(t2))
            k.I("v_lshl_add_u32", v(aG + 2 * rg + kk), v(t0), 7, v(t2))
            k.I("v_add_u32", v(aG + 2 * rg + kk), s(sm0x), v(aG + 2 * rg + kk))
    k.I("v_bfe_u32", v(t0), "v0", 2, 2)
    k.I("v_lshl_add_u32", v(t1), v(hh), 3, v(t0))
    k.I("v_mul_u32_u24", v(t1), 192, v(t1))
    k.I("v_bfe_u32", v(t2), "v0", 4, 1)
    k.I("v_lshl_add_u32", v(t1), v(t2), 5, v(t1))
    k.I("v_and_b32", v(t2), 3, "v0")
    k.I("v_lshl_add_u32", v(vW), v(t2), 3, v(t1))
    k.I("v_lshl_add_u32", v(t0), v(gg), 3, v(t0))
    k.I("v_mul_u32_u24", v(t0), 192, v(t0))
    k.I("v_lshl_add_u32", v(vWj), v(t2), 3, v(t0))
    k.I("s_lshr_b32", s(st0), s(swave), 1)
    k.I("s_mul_i32", s(st0), s(st0), 32 * 192)
    k.I("s_and_b32", s(st1), s(swave), 1)
    k.I("s_mul_i32", s(st1), s(st1), 96)
    k.I("s_add_u32", s(st0), s(st0), s(st1))
    k.I("v_add_u32", v(vWj), s(st0), v(vWj))
    vW2 = k.valloc(); vWj2 = k.valloc()
    k.I("v_add_u32", v(vW2), 4 * WCH, v(vW))
    k.I("v_add_u32", v(vWj2), 4 * WCH, v(vWj))
    ones = k.valloc(4)
    vWq = k.valloc(); vInc = k.valloc()
    k.I("v_and_b32", v(t0), 19, v(lane))
    k.I("v_cmp_eq_u32", "vcc", 19, v(t0))
    k.I("v_mov_b32", v(t1), ONES)
    k.I("v_cndmask_b32", v(vWq), v(vW), v(t1), "vcc")
    k.I("v_mov_b32", v(t1), 16 * 192)
    k.I("v_cndmask_b32", v(vInc), v(t1), 0, "vcc")
    k.I("v_lshlrev_b32", v(t0), 4, v(lane))
    k.I("v_add_u32", v(t0), ONES, v(t0))
    for i in range(4): k.I("v_mov_b32", v(ones + i), "0x3f803f80")
    k.lg("z", "ds_write_b128", v(t0), vr(ones, 4))
    zz = k.valloc(2); vtb = k.valloc()
    k.I("v_mov_b32", v(zz), 0); k.I("v_mov_b32", v(zz + 1), 0)
    k.I("v_lshlrev_b32", v(vtb), 3, v(lane))
    k.I("v_add_u32", v(vtb), CWT, v(vtb))
    k.lg("z", "ds_write_b64", v(vtb), vr(zz, 2))
    accq = k.valloc(16, 4); acck = k.valloc(16, 4); accv = k.valloc(16, 4)
    NB = 3
    cacc = [k.valloc(4) for _ in range(3)]
    gacc = [k.valloc(4) for _ in range(2)]
    vtl_ = k.valloc(); vcwa = k.valloc(); vsqa = k.valloc(); vrow = k.valloc(); vh4 = k.valloc(); vh4w = k.valloc(); vl31 = k.valloc()
    k.I("v_lshlrev_b32", v(vtl_), 2, v(l15))
    k.I("v_add_u32", v(vtl_), TBL, v(vtl_))
    k.I("s_and_b32", s(st1), s(swave), 1)
    k.I("s_mul_i32", s(st1), s(st1), 192)
    k.I("v_add_u32", v(vcwa), s(st1), v(vtl_))
    k.I("s_lshl_b32", s(st0), s(swave), 7)
    k.I("v_add_u32", v(vsqa), s(st0), v(vtl_))
    k.I("v_add_u32", v(vsqa), SQT - TBL, v(vsqa))
    k.I("v_lshlrev_b32", v(vl31), 2, v(l31))
    k.I("v_add_u32", v(vl31), TBL, v(vl31))
    k.I("v_add_u32", v(vrow), s(st0), v(vl31))
    k.I("v_lshlrev_b32", v(vh4), 4, v(hh))
    k.I("v_add_u32", v(vh4), TBL, v(vh4))
    k.I("v_add_u32", v(vh4w), s(st0), v(vh4))
    vmark = k.vnext
    xf = [k.valloc(4) for _ in range(NB)]
    wf = [[k.valloc(4) for _ in range(3)] for _ in range(NB)]
    xs = [k.valloc(4) for _ in range(4)]
    wf2 = [k.valloc(4) for _ in range(3)]
    def read_list(ks):
        c, j = ks // 4, ks % 4
        b = ks % NB
        out = [lambda: k.lg(("f", ks), "ds_read_b128", vr(xf[b], 4), v(aX + j), mods=f"offset:{(c % NXS) * XSL}")]
        for beta in range(2):
            out.append(lambda beta=beta: k.lg(("f", ks), "ds_read_b64_tr_b16", vr(wf[b][0] + 2 * beta, 2), v(vWq), mods=f"offset:{beta * 4 * 192}"))
        out.append(lambda: k.I("v_add_u32", v(vWq), v(vInc), v(vWq)))
        for sg in range(1, 3):
            for beta in range(2):
                o = (c % 4) * WCH + (16 * j + 4 * beta) * 192 + 64 * sg
                base = vW if c < 4 else vW2
                out.append(lambda o=o, sg=sg, beta=beta, base=base: k.lg(("f", ks), "ds_read_b64_tr_b16", vr(wf[b][sg] + 2 * beta, 2), v(base), mods=f"offset:{o}"))
        return out
    def aux_reads(c):
        out = []
        for j in range(4):
            out.append(lambda j=j: k.lg(("g", c), "ds_read_b128", vr(xs[j], 4), v(aG + j), mods=f"offset:{(c % NXS) * XSL}"))
        for nt in range(3):
            for beta in range(2):
                o = (c % 4) * WCH + (4 * beta) * 192 + 32 * nt
                base = vWj if c < 4 else vWj2
                out.append(lambda o=o, nt=nt, beta=beta, base=base: k.lg(("cw", c), "ds_read_b64_tr_b16", vr(wf2[nt] + 2 * beta, 2), v(base), mods=f"offset:{o}"))
        return out
    k.I("s_waitcnt", "lgkmcnt(0)")
    srd(k, sWS, pWS, WS_SIZE)
    stp.stamp(0)
    k.wait_lg("z")
    k.I("s_barrier")
    stp.stamp(1)
    if os.environ.get("TICKWAVE", "0") != "0": stp.tick = lambda i: None
    stp.tick(0)
    m1 = k.salloc(2); m2 = k.salloc(2); m3 = k.salloc(2)
    k.I("v_and_b32", v(t0), 3, v(lane))
    k.I("v_cmp_eq_u32", sr(m1, 2), 1, v(t0))
    k.I("v_cmp_eq_u32", sr(m2, 2), 2, v(t0))
    k.I("v_cmp_eq_u32", sr(m3, 2), 3, v(t0))
    for f in read_list(0): f()
    for f in read_list(1): f()
    for ks in range(28):
        c, j = ks // 4, ks % 4
        b = ks % NB
        fill = []
        if ks + 2 < 28:
            fill += read_list(ks + 2)
        aux = []
        if j == 0: aux = aux_reads(c)[:4]
        if j == 1: aux = aux_reads(c)[4:]
        if os.environ.get("EXP_NOCOMP"):
            k.lgq = []
            if j == 1 and c < 6:
                k.I("s_barrier"); stp.tick(1 + c)
            continue
        k.wait_lg(("f", ks))
        mf = [
            lambda: k.I("v_mfma_f32_32x32x16_bf16", vr(accq, 16), vr(wf[b][0], 4), vr(xf[b], 4), 0 if ks == 0 else vr(accq, 16)),
            lambda: k.I("v_mfma_f32_32x32x16_bf16", vr(acck, 16), vr(wf[b][1], 4), vr(xf[b], 4), 0 if ks == 0 else vr(acck, 16)),
            lambda: k.I("v_mfma_f32_32x32x16_bf16", vr(accv, 16), vr(xf[b], 4), vr(wf[b][2], 4), 0 if ks == 0 else vr(accv, 16)),
        ]
        fl = fill + aux
        if ks == 27:
            vtl = vtl_;
            def fin1():
                k.I("s_mov_b32", "exec_lo", "0xffff")
                k.I("s_mov_b32", "exec_hi", 0)
                for nt in range(3):
                    k.lg("fin", "ds_add_f32", v(vcwa), v(cacc[nt]), mods=f"offset:{64 * nt}")
                k.I("s_mov_b64", "exec", -1)
            def fin2():
                for rg in range(2):
                    g_ = gacc[rg]
                    k.I("v_cndmask_b32", v(g_), v(g_), v(g_ + 1), sr(m1, 2))
                    k.I("v_cndmask_b32", v(g_), v(g_), v(g_ + 2), sr(m2, 2))
                    k.I("v_cndmask_b32", v(g_), v(g_), v(g_ + 3), sr(m3, 2))
                k.I("s_mov_b32", "exec_lo", "0x00f0000f")
                k.I("s_mov_b32", "exec_hi", "0xf0000f00")
                for rg in range(2):
                    k.lg("fin", "ds_write_b32", v(vsqa), v(gacc[rg]), mods=f"offset:{64 * rg}")
                k.I("s_mov_b64", "exec", -1)
            fl = [fin1, fin2]
        n = len(fl)
        cuts = [0, (n + 2) // 3, (2 * n + 2) // 3, n]
        for i in range(3):
            mf[i]()
            for f in fl[cuts[i]:cuts[i + 1]]: f()
        if j == 1 + (0 if c == 6 else 1):
            k.wait_lg(("g", c))
            for jj in range(4):
                k.I("v_mfma_f32_16x16x32_bf16", vr(gacc[jj >> 1], 4), vr(xs[jj], 4), vr(xs[jj], 4), 0 if (c == 0 and (jj & 1) == 0) else vr(gacc[jj >> 1], 4))
        if j == 2 + (0 if c == 6 else 1):
            k.wait_lg(("cw", c))
            for nt in range(3):
                k.I("v_mfma_f32_16x16x32_bf16", vr(cacc[nt], 4), vr(ones, 4), vr(wf2[nt], 4), 0 if c == 0 else vr(cacc[nt], 4))
        if j == 1 and c < 6:
            k.I("s_barrier")
            stp.tick(1 + c)
    stp.tick(13)
    stp.stamp(2)
    k.vnext = vmark
    sq = k.valloc(2); rl = k.valloc(2); nml = k.valloc(2); cwv = k.valloc(2)
    cwq = k.valloc(16, 4); cwk = k.valloc(16, 4); rv = k.valloc(16, 4); nv = k.valloc(16, 4)
    k.lg("sq", "ds_read_b32", v(sq), v(vrow), mods=f"offset:{SQT - TBL}")
    k.wait_lg("fin")
    k.I("s_barrier")
    for q in range(4):
        k.lg("cwq", "ds_read_b128", vr(cwq + 4 * q, 4), v(vh4), mods=f"offset:{CWT - TBL + 32 * q}")
    for q in range(4):
        k.lg("cwk", "ds_read_b128", vr(cwk + 4 * q, 4), v(vh4), mods=f"offset:{CWT - TBL + 128 + 32 * q}")
    k.lg("cwv", "ds_read_b32", v(cwv), v(vl31), mods=f"offset:{CWT - TBL + 256}")
    k.I("v_mov_b32", v(nml), v(accq + 12))
    k.I("v_mov_b32", v(nml + 1), v(accq + 12))
    k.I("v_permlane32_swap_b32", v(nml), v(nml + 1))
    k.I("v_mul_f32", v(nml), hex(f32(-1.0 / 448)), v(nml + 1))
    k.wait_lg("sq")
    k.I("v_mul_f32", v(sq), hex(f32(1.0 / 448)), v(sq))
    k.I("v_fma_f32", v(sq), f"-{v(nml)}", v(nml), v(sq))
    k.I("v_max_f32", v(sq), 0, v(sq))
    k.I("v_add_f32", v(sq), hex(f32(1e-5)), v(sq))
    k.I("v_rsq_f32", v(rl), v(sq))
    k.I("ds_write_b32", v(vrow), v(nml), mods=f"offset:{NMT - TBL}")
    k.I("ds_write_b32", v(vrow), v(rl), mods=f"offset:{RT - TBL}")
    k.lgq += ["w", "w"]
    for q in range(4):
        k.lg("rv", "ds_read_b128", vr(rv + 4 * q, 4), v(vh4w), mods=f"offset:{RT - TBL + 32 * q}")
        k.lg("rv", "ds_read_b128", vr(nv + 4 * q, 4), v(vh4w), mods=f"offset:{NMT - TBL + 32 * q}")
    vq = k.valloc(); vv_ = k.valloc()
    k.I("v_lshrrev_b32", v(t0), 4, v(l31))
    k.I("v_lshlrev_b32", v(vq), 10, v(t0))
    k.I("v_lshl_add_u32", v(vq), v(l15), 4, v(vq))
    k.I("v_lshl_add_u32", v(vq), v(hh), 9, v(vq))
    k.I("v_lshlrev_b32", v(vv_), 9, v(t0))
    k.I("v_lshl_add_u32", v(vv_), v(l15), 3, v(vv_))
    k.I("v_lshl_add_u32", v(vv_), v(hh), 7, v(vv_))
    sb = k.salloc()
    k.I("s_lshl_b32", s(sb), s(shd), 17)
    k.I("s_lshl_b32", s(st0), s(srb), 13)
    k.I("s_add_u32", s(sb), s(sb), s(st0))
    k.I("s_lshl_b32", s(st0), s(swave), 11)
    k.I("s_add_u32", s(sb), s(sb), s(st0))
    k.I("v_cmp_eq_u32", "vcc", 0, v(hh))
    pk = k.valloc(8, 4)
    for (acc, cw, off, tg) in ((accq, cwq, Q_OFF, "cwq"), (acck, cwk, K_OFF, "cwk")):
        k.wait_lg(tg)
        for j in range(8):
            k.I("v_pk_fma_f32", vr(acc + 2 * j, 2), vr(cw + 2 * j, 2), vr(nml, 2), vr(acc + 2 * j, 2), mods="op_sel_hi:[1,0,1]")
        for j in range(8):
            k.I("v_pk_mul_f32", vr(acc + 2 * j, 2), vr(acc + 2 * j, 2), vr(rl, 2), mods="op_sel_hi:[1,0]")
        for j in range(8):
            k.I("v_cvt_pk_bf16_f32", v(pk + j), v(acc + 2 * j), v(acc + 2 * j + 1))
        k.I("v_cndmask_b32", v(pk + 6), 0, v(pk + 6), "vcc")
        k.I("v_cndmask_b32", v(pk + 7), 0, v(pk + 7), "vcc")
        k.I("s_add_u32", s(soff), s(sb), hex(off))
        k.I("buffer_store_dwordx4", vr(pk, 4), v(vq), sr(sWS, 4), s(soff), mods="offen")
        k.I("buffer_store_dwordx4", vr(pk + 4, 4), v(vq), sr(sWS, 4), s(soff), mods="offen offset:256")
        pk = k.valloc(8, 4)
    k.I("s_waitcnt", "lgkmcnt(0)")
    k.lgq = []
    for j in range(8):
        k.I("v_pk_fma_f32", vr(accv + 2 * j, 2), vr(nv + 2 * j, 2), vr(cwv, 2), vr(accv + 2 * j, 2), mods="op_sel_hi:[1,0,1]")
    for j in range(8):
        k.I("v_pk_mul_f32", vr(accv + 2 * j, 2), vr(accv + 2 * j, 2), vr(rv + 2 * j, 2))
    for j in range(8):
        k.I("v_cvt_pk_bf16_f32", v(pk + j), v(accv + 2 * j), v(accv + 2 * j + 1))
    k.I("v_mov_b32", v(t0), "0x3f803f80")
    k.I("v_cmp_eq_u32", "vcc", 28, v(l31))
    k.I("v_cndmask_b32", v(t0), 0, v(t0), "vcc")
    k.I("v_cmp_gt_u32", "vcc", 28, v(l31))
    for j in range(8):
        k.I("v_cndmask_b32", v(pk + j), v(t0), v(pk + j), "vcc")
    k.I("s_add_u32", s(soff), s(sb), hex(V_OFF))
    for q in range(4):
        k.I("buffer_store_dwordx2", vr(pk + 2 * q, 2), v(vv_), sr(sWS, 4), s(soff), mods=f"offen offset:{(q >> 1) * 1024 + (q & 1) * 256}")
    stp.tick(15)
    stp.stamp(3)
    stp.dump_ticks()
    k.L(done)
    k.I("s_endpgm")
    k.lds = lds; k.threads = 512; k.grid = 256
    return k

import struct
def f32(x): return struct.unpack("<I", struct.pack("<f", x))[0]

def assemble(kernels):
    out = []
    hdr = open("cdna_kernels/" + NAME + ".s.ref").read().split("\n")
    for line in hdr:
        if line.startswith("; Override") or line.startswith("; grid=") or line.startswith("; @launch"): continue
        if not line.startswith(";"): break
        out.append(line)
    for k in kernels:
        out.append(f"; @launch kernel={k.name} grid=({k.grid},1,1) block=({k.threads},1,1) lds={k.lds}")
    out.append('.amdgcn_target "amdgcn-amd-amdhsa--gfx950"')
    out.append(".text")
    for k in kernels:
        n = k.fix_hazards()
        out.append(f".globl {k.name}")
        out.append(".p2align 8")
        out.append(f".type {k.name},@function")
        out.append(f"{k.name}:")
        out.append(k.render())
        out.append(f"{k.name}_end:")
        print(f"{k.name}: {len(k.ins)} instrs, hazard pads {n}, vgpr {k.vmax} agpr {k.amax} sgpr {k.smax} lds {k.lds}", file=sys.stderr)
    out.append("code_end:")
    out.append(f".set CODE_BYTES, code_end - {kernels[0].name}")
    out.append('.section .rodata,"a"')
    for k in kernels:
        out.append(".p2align 6")
        out.append(k.descriptor())
    return "\n".join(out) + "\n"

if __name__ == "__main__":
    import kernels2 as k2
    ks = [gen_k1()] + k2.rest(Stamper)
    path = sys.argv[1] if len(sys.argv) > 1 else "cdna_kernels/" + NAME + ".s"
    open(path, "w").write(assemble(ks))
```

```python
import os, struct, math
from asmlib import *
from layout import *
WS_SIZE = 0x10000000
def f32(x): return struct.unpack("<I", struct.pack("<f", x))[0]

def srd(k, dst, base, size):
    k.I("s_mov_b32", s(dst), s(base))
    k.I("s_and_b32", s(dst + 1), s(base + 1), "0xffff")
    k.I("s_mov_b32", s(dst + 2), hex(size) if isinstance(size, int) else size)
    k.I("s_mov_b32", s(dst + 3), "0x20000")

def gen_k2(Stamper):
    k = Kernel("k2_attn_kernel")
    k.snext = 4; k.vnext = 1
    KREG = 0; VREG = 24576
    lds = 49152
    done = k.newlabel("done")
    k.I("s_cmp_ge_u32", "s2", 256)
    k.I("s_cbranch_scc1", done)
    pWS = k.salloc(2); pPo = k.salloc(2); pPi = k.salloc(2)
    k.I("s_load_dwordx2", sr(pWS, 2), "s[0:1]", 80)
    k.I("s_load_dwordx2", sr(pPo, 2), "s[0:1]", 16)
    k.I("s_load_dwordx2", sr(pPi, 2), "s[0:1]", 32)
    sWS = k.salloc(4); sPo = k.salloc(4); sPi = k.salloc(4)
    swave = k.salloc(); srb = k.salloc(); shd = k.salloc(); st0 = k.salloc(); st1 = k.salloc(); soff = k.salloc()
    lane = k.valloc(); t0 = k.valloc(); t1 = k.valloc(); l15 = k.valloc(); gg = k.valloc()
    k.I("v_lshrrev_b32", v(t0), 6, "v0")
    k.I("v_and_b32", v(lane), 63, "v0")
    k.I("v_readfirstlane_b32", s(swave), v(t0))
    k.I("s_and_b32", s(st0), "s2", 7)
    k.I("s_lshr_b32", s(st1), "s2", 3)
    k.I("s_and_b32", s(shd), s(st1), 15)
    k.I("s_lshr_b32", s(st1), s(st1), 4)
    k.I("s_lshl_b32", s(srb), s(st0), 1)
    k.I("s_add_u32", s(srb), s(srb), s(st1))
    stp = Stamper(k, 1, sWS, swave)
    v16 = k.valloc()
    k.I("v_lshlrev_b32", v(v16), 4, v(lane))
    sb = k.salloc(); sm = k.salloc(); s16q = k.salloc()
    k.I("s_lshl_b32", s(sb), s(shd), 17)
    k.I("s_lshl_b32", s(st0), s(srb), 13)
    k.I("s_add_u32", s(sb), s(sb), s(st0))
    k.I("s_mul_i32", s(sm), s(swave), 3072)
    k.I("s_lshl_b32", s(s16q), s(srb), 3)
    k.I("s_add_u32", s(s16q), s(s16q), s(swave))
    k.I("s_waitcnt", "lgkmcnt(0)")
    srd(k, sWS, pWS, WS_SIZE)
    srd(k, sPo, pPo, 448 * 896)
    srd(k, sPi, pPi, 448 * 3584)
    qf = k.valloc(4)
    k.I("s_lshl_b32", s(st0), s(swave), 10)
    k.I("s_add_u32", s(st0), s(st0), s(sb))
    k.I("s_add_u32", s(soff), s(st0), hex(Q_OFF))
    k.vm("q", "buffer_load_dwordx4", vr(qf, 4), v(v16), sr(sWS, 4), s(soff), mods="offen")
    k.I("s_add_u32", s(st1), s(sb), s(sm))
    for (reg, off) in ((KREG, K_OFF), (VREG, V_OFF)):
        for i in range(3):
            k.I("s_add_u32", s(soff), s(st1), hex(off - 16384 + i * 1024))
            k.I("s_add_u32", "m0", s(sm), hex(reg + i * 1024))
            k.vm("kv", "buffer_load_dwordx4", v(v16), sr(sWS, 4), s(soff), mods="offen lds")
    sidx2 = k.salloc()
    k.I("s_lshr_b32", s(sidx2), "s2", 3)
    code_prefetch(k, "k3_wo_kernel", sidx2, st0)
    stp.stamp(0)
    k.I("v_and_b32", v(l15), 15, v(lane))
    k.I("v_lshrrev_b32", v(gg), 4, v(lane))
    M = [k.salloc(2) for _ in range(4)]
    k.I("v_lshlrev_b32", v(t0), 2, v(gg))
    for i in range(4):
        k.I("v_add_u32", v(t1), i, v(t0))
        k.I("v_cmp_gt_u32", sr(M[i], 2), v(t1), v(l15))
    aK = k.valloc(); aV = k.valloc()
    k.I("s_lshl_b32", s(st0), s(swave), 10)
    k.I("v_add_u32", v(aK), s(st0), v(v16))
    k.I("v_lshlrev_b32", v(aV), 3, v(lane))
    k.I("s_add_u32", s(st0), s(st0), VREG)
    k.I("v_add_u32", v(aV), s(st0), v(aV))
    S = k.valloc(68, 4)
    kf = [k.valloc(4) for _ in range(6)]
    neg = k.valloc()
    k.I("v_mov_b32", v(neg), hex(f32(-1e30)))
    k.wait_vm(["q", "kv"])
    k.I("s_barrier")
    stp.stamp(1)
    NKF = 6
    for j in range(min(NKF, 17)):
        k.lg(("k", j), "ds_read_b128", vr(kf[j % NKF], 4), v(aK), mods=f"offset:{j * 1024}")
    for j in range(17):
        k.wait_lg(("k", j))
        k.I("v_mfma_f32_16x16x32_bf16", vr(S + 4 * j, 4), vr(kf[j % NKF], 4), vr(qf, 4), 0)
        if j + NKF < 17:
            k.lg(("k", j + NKF), "ds_read_b128", vr(kf[j % NKF], 4), v(aK), mods=f"offset:{(j + NKF) * 1024}")
    if os.environ.get("PFK2", "1") == "1":
        vd2 = k.valloc(2)
        k.I("s_lshl_b32", s(st0), s(sidx2), 3)
        k.I("s_add_u32", s(st0), s(st0), s(swave))
        k.I("s_mul_i32", s(st1), s(st0), 13 * 128)
        k.I("v_lshlrev_b32", v(t0), 7, v(lane))
        k.I("v_mov_b32", v(t1), "0x7fffff00")
        k.I("v_cmp_gt_u32", "vcc", 13, v(lane))
        k.I("v_cndmask_b32", v(t0), v(t1), v(t0), "vcc")
        k.vm("pf", "buffer_load_dword", v(vd2), v(t0), sr(sPo, 4), s(st1), mods="offen")
        k.I("s_mul_i32", s(st1), s(st0), 25)
        k.I("v_add_u32", v(t0), s(st1), v(lane))
        k.I("v_mul_u32_u24", v(t1), 37450, v(t0))
        k.I("v_lshrrev_b32", v(t1), 19, v(t1))
        k.I("v_mul_u32_u24", v(vd2 + 1), 14, v(t1))
        k.I("v_sub_u32", v(t0), v(t0), v(vd2 + 1))
        k.I("v_mul_u32_u24", v(t1), 3584, v(t1))
        k.I("v_lshl_add_u32", v(t1), v(t0), 7, v(t1))
        k.I("v_add_u32", v(vd2 + 1), 1792 - 896, v(t1))
        k.I("v_cmp_le_u32", "vcc", 7, v(t0))
        k.I("v_cndmask_b32", v(t1), v(t1), v(vd2 + 1), "vcc")
        k.I("v_mov_b32", v(t0), "0x7fffff00")
        k.I("v_cmp_gt_u32", "vcc", 25, v(lane))
        k.I("v_cndmask_b32", v(t1), v(t0), v(t1), "vcc")
        k.I("s_and_b32", s(st1), "s2", 1)
        k.I("s_mul_i32", s(st1), s(st1), 896)
        k.vm("pf", "buffer_load_dword", v(vd2 + 1), v(t1), sr(sPi, 4), s(st1), mods="offen")
    vf = k.valloc(9 * 2 * 4, 4)
    def vread(kp):
        for dt in range(2):
            for beta in range(2):
                tile = min(2 * kp + beta, 16)
                k.lg(("v", kp), "ds_read_b64", vr(vf + (kp * 2 + dt) * 4 + 2 * beta, 2), v(aV), mods=f"offset:{tile * 1024 + dt * 512}")
    for kp in range(3): vread(kp)
    for i in range(4):
        k.I("v_cndmask_b32", v(S + i), v(neg), v(S + i), sr(M[i], 2))
        k.I("v_cndmask_b32", v(S + 64 + i), v(S + 64 + i), v(neg), sr(M[i], 2))
    nofix = k.newlabel("nofix")
    k.I("s_cmp_ge_u32", s(s16q), 16)
    k.I("s_cbranch_scc1", nofix)
    k.I("s_sub_u32", s(st0), 16, s(s16q))
    for j in range(16):
        lab = k.newlabel("sk")
        k.I("s_cmp_le_u32", s(st0), j)
        k.I("s_cbranch_scc1", lab)
        for i in range(4): k.I("v_mov_b32", v(S + 4 * j + i), v(neg))
        k.L(lab)
    k.L(nofix)
    mx = k.valloc(4)
    for c in range(4):
        k.I("v_max3_f32", v(mx + c), v(S + c * 17), v(S + c * 17 + 1), v(S + c * 17 + 2))
    for r in range(7):
        for c in range(4):
            b = c * 17 + 3 + 2 * r
            k.I("v_max3_f32", v(mx + c), v(mx + c), v(S + b), v(S + b + 1))
    k.I("v_max3_f32", v(mx), v(mx), v(mx + 1), v(mx + 2))
    k.I("v_max_f32", v(mx), v(mx), v(mx + 3))
    for sw in ("v_permlane16_swap_b32", "v_permlane32_swap_b32"):
        k.I("v_mov_b32", v(mx + 1), v(mx))
        k.I(sw, v(mx), v(mx + 1))
        k.I("v_max_f32", v(mx), v(mx), v(mx + 1))
    cs = 28 ** -0.5 * math.log2(math.e)
    sc = k.salloc()
    k.I("s_mov_b32", s(sc), hex(f32(cs)))
    k.I("v_mul_f32", v(mx), hex(f32(-cs)), v(mx))
    for kp in range(3, 6): vread(kp)
    P = k.valloc(36, 4)
    k.I("v_mov_b32", v(P + 34), 0); k.I("v_mov_b32", v(P + 35), 0)
    O = [k.valloc(4), k.valloc(4)]
    def softmax_tile(j):
        for i in range(4): k.I("v_fma_f32", v(S + 4 * j + i), v(S + 4 * j + i), s(sc), v(mx))
        for i in range(4): k.I("v_exp_f32", v(S + 4 * j + i), v(S + 4 * j + i))
    def pack_tile(j):
        k.I("v_cvt_pk_bf16_f32", v(P + 2 * j), v(S + 4 * j), v(S + 4 * j + 1))
        k.I("v_cvt_pk_bf16_f32", v(P + 2 * j + 1), v(S + 4 * j + 2), v(S + 4 * j + 3))
    for kp in range(9):
        tiles = [2 * kp, 2 * kp + 1] if kp < 8 else [16]
        for j in tiles: softmax_tile(j)
        for j in tiles: pack_tile(j)
        if kp == 2:
            for q in range(6, 9): vread(q)
        if kp >= 1:
            q = kp - 1
            k.wait_lg(("v", q))
            for dt in range(2):
                k.I("v_mfma_f32_16x16x32_bf16", vr(O[dt], 4), vr(vf + (q * 2 + dt) * 4, 4), vr(P + 4 * q, 4), 0 if q == 0 else vr(O[dt], 4))
    k.wait_lg(("v", 8))
    for dt in range(2):
        k.I("v_mfma_f32_16x16x32_bf16", vr(O[dt], 4), vr(vf + (8 * 2 + dt) * 4, 4), vr(P + 32, 4), vr(O[dt], 4))
    la = k.valloc(); lb = k.valloc()
    k.I("v_mov_b32", v(la), v(O[1])); k.I("v_mov_b32", v(lb), v(O[1]))
    k.I("v_permlane32_swap_b32", v(la), v(lb))
    k.I("v_mov_b32", v(la), v(lb))
    k.I("v_permlane16_swap_b32", v(la), v(lb))
    k.I("v_rcp_f32", v(lb), v(lb))
    for dt in range(2):
        for i in range(4): k.I("v_mul_f32", v(O[dt] + i), v(O[dt] + i), v(lb))
    pk = k.valloc(4)
    for dt in range(2):
        k.I("v_cvt_pk_bf16_f32", v(pk + 2 * dt), v(O[dt]), v(O[dt] + 1))
        k.I("v_cvt_pk_bf16_f32", v(pk + 2 * dt + 1), v(O[dt] + 2), v(O[dt] + 3))
    k.I("v_cmp_gt_u32", "vcc", 3, v(gg))
    k.I("v_cndmask_b32", v(pk + 2), 0, v(pk + 2), "vcc")
    k.I("v_cndmask_b32", v(pk + 3), 0, v(pk + 3), "vcc")
    vo = k.valloc()
    k.I("s_and_b32", s(st0), s(swave), 1)
    k.I("s_lshl_b32", s(st0), s(st0), 8)
    k.I("v_lshlrev_b32", v(vo), 4, v(l15))
    k.I("v_add_u32", v(vo), s(st0), v(vo))
    k.I("v_lshrrev_b32", v(t0), 1, v(gg))
    k.I("v_lshl_add_u32", v(vo), v(t0), 9, v(vo))
    k.I("v_and_b32", v(t0), 1, v(gg))
    k.I("v_lshl_add_u32", v(vo), v(t0), 3, v(vo))
    k.I("s_lshl_b32", s(st0), s(srb), 2)
    k.I("s_lshr_b32", s(st1), s(swave), 1)
    k.I("s_add_u32", s(st0), s(st0), s(st1))
    k.I("s_lshl_b32", s(st0), s(st0), 15)
    k.I("s_lshl_b32", s(st1), s(shd), 11)
    k.I("s_add_u32", s(st0), s(st0), s(st1))
    k.I("s_add_u32", s(soff), s(st0), hex(O_OFF))
    for dt in range(2):
        k.I("buffer_store_dwordx2", vr(pk + 2 * dt, 2), v(vo), sr(sWS, 4), s(soff), mods=f"offen offset:{dt * 1024}")
    stp.stamp(2)
    k.L(done)
    k.I("s_endpgm")
    k.lds = lds; k.threads = 512; k.grid = 256
    return k


def code_prefetch(k, nxt, sidx, tmp_s, tid="v0"):
    if os.environ.get("PFC", "1") != "1": return
    pp = k.salloc(2); sP = k.salloc(4); vT = k.valloc(); vd = k.valloc()
    lab = k.newlabel("pc")
    k.I("s_getpc_b64", sr(pp, 2))
    k.L(lab)
    k.I("s_add_u32", s(pp), s(pp), f"{nxt}-{lab}")
    k.I("s_addc_u32", s(pp + 1), s(pp + 1), 0)
    srd(k, sP, pp, f"{nxt}_end-{nxt}")
    k.I("s_lshl_b32", s(tmp_s), s(sidx), 8)
    k.I("v_add_u32", v(vT), s(tmp_s), tid)
    k.I("v_lshlrev_b32", v(vT), 7, v(vT))
    k.vm("pfc", "buffer_load_dword", v(vd), v(vT), sr(sP, 4), 0, mods="offen")

def l2_prefetch(k, kernarg_off, nbytes, vT128, nthreads, tmp_s):
    if os.environ.get("PFT", "1") != "1": return
    pp = k.salloc(2); sP = k.salloc(4)
    k.I("s_load_dwordx2", sr(pp, 2), "s[0:1]", kernarg_off)
    k.I("s_waitcnt", "lgkmcnt(0)")
    srd(k, sP, pp, nbytes)
    n = -(-nbytes // (128 * nthreads))
    for i in range(n):
        vd = k.valloc()
        k.I("s_mov_b32", s(tmp_s), hex(i * nthreads * 128))
        k.vm("pft", "buffer_load_dword", v(vd), v(vT128), sr(sP, 4), s(tmp_s), mods="offen")

def mall_prefetch(k, kernarg_off, nbytes, first, per, nw, swave, lane, tmp_s, tv0, tv1, flag="PFM"):
    if os.environ.get(flag, "1") != "1": return
    pp = k.salloc(2); sP = k.salloc(4); vd = k.valloc()
    k.I("s_load_dwordx2", sr(pp, 2), "s[0:1]", kernarg_off)
    k.I("s_mul_i32", s(tmp_s), "s2", nw)
    k.I("s_add_u32", s(tmp_s), s(tmp_s), s(swave))
    k.I("s_mul_i32", s(tmp_s), s(tmp_s), per)
    k.I("s_add_u32", s(tmp_s), s(tmp_s), first)
    k.I("s_lshl_b32", s(tmp_s), s(tmp_s), 7)
    k.I("v_lshlrev_b32", v(tv0), 7, v(lane))
    k.I("v_mov_b32", v(tv1), "0x7fffff00")
    k.I("v_cmp_gt_u32", "vcc", per, v(lane))
    k.I("v_cndmask_b32", v(tv0), v(tv1), v(tv0), "vcc")
    k.I("s_waitcnt", "lgkmcnt(0)")
    k.lgq = []
    srd(k, sP, pp, nbytes)
    k.vm("pfm", "buffer_load_dword", v(vd), v(tv0), sr(sP, 4), s(tmp_s), mods="offen")

def common_start(k, nwg):
    k.snext = 4; k.vnext = 1
    done = k.newlabel("done")
    k.I("s_cmp_ge_u32", "s2", nwg)
    k.I("s_cbranch_scc1", done)
    R = dict(done=done)
    R["swave"] = k.salloc(); R["st0"] = k.salloc(); R["st1"] = k.salloc(); R["soff"] = k.salloc()
    R["lane"] = k.valloc(); R["t0"] = k.valloc(); R["t1"] = k.valloc(); R["t2"] = k.valloc()
    k.I("v_lshrrev_b32", v(R["t0"]), 6, "v0")
    k.I("v_and_b32", v(R["lane"]), 63, "v0")
    k.I("v_readfirstlane_b32", s(R["swave"]), v(R["t0"]))
    return R

def interleave(k, mf, fl):
    n = len(fl); m = len(mf)
    cuts = [(i * n + m - 1) // m for i in range(m + 1)]
    cuts[-1] = n
    for i in range(m):
        mf[i]()
        for f in fl[cuts[i]:cuts[i + 1]]: f()

def stats_from_packed(k, P, n, accs, accq, tmp):
    for j in range(n):
        t = tmp[j % len(tmp)]
        k.I("v_lshlrev_b32", v(t), 16, v(P + j))
        k.I("v_and_b32", v(t + 1), "0xffff0000", v(P + j))
        if j == 0:
            k.I("v_pk_mul_f32", vr(accq, 2), vr(t, 2), vr(t, 2))
            k.I("v_mov_b32", v(accs), v(t)); k.I("v_mov_b32", v(accs + 1), v(t + 1))
        else:
            k.I("v_pk_add_f32", vr(accs, 2), vr(accs, 2), vr(t, 2))
            k.I("v_pk_fma_f32", vr(accq, 2), vr(t, 2), vr(t, 2), vr(accq, 2))
    k.I("v_add_f32", v(accs), v(accs), v(accs + 1))
    k.I("v_add_f32", v(accq), v(accq), v(accq + 1))
    for r_ in (accs, accq):
        k.I("v_mov_b32", v(r_ + 1), v(r_))
        k.I("v_permlane32_swap_b32", v(r_), v(r_ + 1))
        k.I("v_add_f32", v(r_), v(r_), v(r_ + 1))

def gen_k3(Stamper):
    k = Kernel("k3_wo_kernel")
    WREG = 0; OREG = 58368
    lds = OREG + 65536
    R = common_start(k, 256)
    swave, st0, st1, soff, lane, t0, t1, t2 = (R[x] for x in ("swave", "st0", "st1", "soff", "lane", "t0", "t1", "t2"))
    pX = k.salloc(2); pWo = k.salloc(2); pWin = k.salloc(2); pWS = k.salloc(2)
    k.I("s_load_dwordx2", sr(pX, 2), "s[0:1]", 0)
    k.I("s_load_dwordx2", sr(pWo, 2), "s[0:1]", 16)
    k.I("s_load_dwordx2", sr(pWin, 2), "s[0:1]", 32)
    k.I("s_load_dwordx2", sr(pWS, 2), "s[0:1]", 80)
    sWS = k.salloc(4); sWo = k.salloc(4); sX = k.salloc(4)
    sj = k.salloc(); sidx = k.salloc(); srt = k.salloc(); snt = k.salloc(); sw3 = k.salloc()
    k.I("s_and_b32", s(sj), "s2", 7)
    k.I("s_lshr_b32", s(sidx), "s2", 3)
    k.I("s_and_b32", s(sw3), s(swave), 3)
    stp = Stamper(k, 2, sWS, swave)
    aux = k.newlabel("aux")
    k.I("s_cmp_ge_u32", s(sidx), 28)
    k.I("s_cbranch_scc1", aux)
    k.I("s_mul_i32", s(st0), s(sidx), 37)
    k.I("s_lshr_b32", s(st0), s(st0), 8)
    k.I("s_mul_i32", s(st1), s(st0), 7)
    k.I("s_sub_u32", s(snt), s(sidx), s(st1))
    k.I("s_lshl_b32", s(srt), s(sj), 2)
    k.I("s_add_u32", s(srt), s(srt), s(st0))
    k.I("s_waitcnt", "lgkmcnt(0)")
    srd(k, sWS, pWS, WS_SIZE)
    comp = k.newlabel("compute")
    k.I("s_cmp_lt_u32", s(swave), 4)
    k.I("s_cbranch_scc1", comp)
    vsave = k.vnext
    srd(k, sWo, pWo, 448 * 896)
    v16 = k.valloc(); vWo = k.valloc()
    k.I("v_lshlrev_b32", v(v16), 4, v(lane))
    k.I("v_lshrrev_b32", v(t0), 3, v(lane))
    k.I("v_mul_u32_u24", v(t0), 896, v(t0))
    k.I("v_bfe_u32", v(t1), v(lane), 4, 1)
    k.I("v_lshlrev_b32", v(t1), 2, v(t1))
    k.I("v_and_b32", v(t2), 7, v(lane))
    k.I("v_xor_b32", v(t1), v(t1), v(t2))
    k.I("v_lshl_add_u32", v(vWo), v(t1), 4, v(t0))
    sOb = k.salloc(); sWb = k.salloc(); smO = k.salloc(); smW = k.salloc()
    k.I("s_lshl_b32", s(sOb), s(srt), 16)
    k.I("s_lshl_b32", s(st0), s(sw3), 10)
    k.I("s_add_u32", s(sOb), s(sOb), s(st0))
    k.I("s_add_u32", s(sOb), s(sOb), hex(O_OFF))
    k.I("s_add_u32", s(smO), s(st0), OREG)
    k.I("s_mul_i32", s(sWb), s(sw3), 8 * 896)
    k.I("s_lshl_b32", s(st1), s(snt), 7)
    k.I("s_add_u32", s(sWb), s(sWb), s(st1))
    k.I("s_add_u32", s(smW), s(st0), WREG)
    def issue(c):
        for r2 in range(2):
            k.I("s_add_u32", s(soff), s(sOb), hex(r2 * 32768 + c * 4096))
            k.I("s_add_u32", "m0", s(smO), hex(r2 * 32768 + c * 4096))
            k.vm(("S", c), "buffer_load_dwordx4", v(v16), sr(sWS, 4), s(soff), mods="offen lds")
        for i in range(2):
            k.I("s_add_u32", s(soff), s(sWb), hex((56 * c + 32 * i) * 896))
            k.I("s_add_u32", "m0", s(smW), hex((56 * c + 32 * i) * 128))
            k.vm(("S", c), "buffer_load_dwordx4", v(vWo), sr(sWo, 4), s(soff), mods="offen lds")
    LA = 3
    for c in range(LA): issue(c)
    for c in range(8):
        k.wait_vm(("S", c))
        k.I("s_barrier")
        if c + LA < 8: issue(c + LA)
    k.I("s_endpgm")
    k.L(comp)
    k.vnext = vsave; k.vmq = []; k.lgq = []
    srd(k, sX, pX, 2048 * 896)
    l31 = k.valloc(); hh = k.valloc()
    k.I("v_and_b32", v(l31), 31, v(lane))
    k.I("v_lshrrev_b32", v(hh), 5, v(lane))
    srh = k.salloc(); snh = k.salloc(); sst = k.salloc(); sntile = k.salloc()
    k.I("s_and_b32", s(srh), s(swave), 1)
    k.I("s_lshr_b32", s(snh), s(swave), 1)
    k.I("s_lshl_b32", s(sst), s(srt), 1)
    k.I("s_add_u32", s(sst), s(sst), s(srh))
    k.I("s_lshl_b32", s(sntile), s(snt), 1)
    k.I("s_add_u32", s(sntile), s(sntile), s(snh))
    xr = k.valloc(8, 4); vx = k.valloc()
    k.I("v_mul_u32_u24", v(vx), 896, v(l31))
    k.I("v_lshl_add_u32", v(vx), v(hh), 3, v(vx))
    k.I("s_mul_i32", s(soff), s(sst), 32 * 896)
    k.I("s_lshl_b32", s(st0), s(sntile), 6)
    k.I("s_add_u32", s(soff), s(soff), s(st0))
    for q in range(4):
        k.vm("x", "buffer_load_dwordx2", vr(xr + 2 * q, 2), v(vx), sr(sX, 4), s(soff), mods=f"offen offset:{16 * q}")
    code_prefetch(k, "k4_win_kernel", sidx, st0)
    stp.stamp(0)
    aO = k.valloc(); vW = k.valloc()
    k.I("v_lshlrev_b32", v(aO), 4, v(lane))
    k.I("s_lshl_b32", s(st0), s(srh), 15)
    k.I("s_add_u32", s(st0), s(st0), OREG)
    k.I("v_add_u32", v(aO), s(st0), v(aO))
    k.I("v_bfe_u32", v(t0), v(lane), 2, 2)
    k.I("v_lshl_add_u32", v(t0), v(hh), 3, v(t0))
    k.I("v_lshlrev_b32", v(vW), 7, v(t0))
    k.I("v_bfe_u32", v(t0), v(lane), 4, 1)
    k.I("v_lshlrev_b32", v(t0), 1, v(t0))
    k.I("v_bfe_u32", v(t1), v(lane), 1, 1)
    k.I("v_add_u32", v(t0), v(t0), v(t1))
    k.I("s_lshl_b32", s(st0), s(snh), 2)
    k.I("v_add_u32", v(t0), s(st0), v(t0))
    k.I("v_bfe_u32", v(t1), v(lane), 3, 1)
    k.I("v_lshlrev_b32", v(t1), 2, v(t1))
    k.I("v_xor_b32", v(t0), v(t0), v(t1))
    k.I("v_lshl_add_u32", v(vW), v(t0), 4, v(vW))
    k.I("v_and_b32", v(t0), 1, v(lane))
    k.I("v_lshl_add_u32", v(vW), v(t0), 3, v(vW))
    acc = k.valloc(16, 4)
    NB = 3
    of = [k.valloc(4) for _ in range(NB)]; wf = [k.valloc(4) for _ in range(NB)]
    def rl(ks):
        b = ks % NB
        out = [lambda: k.lg(("f", ks), "ds_read_b128", vr(of[b], 4), v(aO), mods=f"offset:{ks * 1024}")]
        for beta in range(2):
            o = (28 * (ks >> 1) + 16 * (ks & 1) + 4 * beta) * 128
            out.append(lambda o=o, beta=beta: k.lg(("f", ks), "ds_read_b64_tr_b16", vr(wf[b] + 2 * beta, 2), v(vW), mods=f"offset:{o}"))
        return out
    k.I("s_barrier")
    stp.stamp(1)
    for f in rl(0) + rl(1): f()
    for ks in range(32):
        c, j = ks // 4, ks % 4
        b = ks % NB
        k.wait_lg(("f", ks))
        k.I("v_mfma_f32_32x32x16_bf16", vr(acc, 16), vr(wf[b], 4), vr(of[b], 4), 0 if ks == 0 else vr(acc, 16))
        if j == 1 and c < 7: k.I("s_barrier")
        if ks + 2 < 32 and not (j == 1 and False):
            pass
        nxt = ks + 2
        if nxt < 32:
            for f in rl(nxt): f()
    EOF_MARK = None
    stp.stamp(2)
    k.wait_vm("x")
    tmp = [k.valloc(2) for _ in range(4)]
    for q in range(4):
        for d in range(2):
            t = tmp[(2 * q + d) % 4]
            k.I("v_lshlrev_b32", v(t), 16, v(xr + 2 * q + d))
            k.I("v_and_b32", v(t + 1), "0xffff0000", v(xr + 2 * q + d))
            k.I("v_pk_add_f32", vr(acc + 4 * q + 2 * d, 2), vr(acc + 4 * q + 2 * d, 2), vr(t, 2))
    P = k.valloc(8, 4)
    for j in range(8): k.I("v_cvt_pk_bf16_f32", v(P + j), v(acc + 2 * j), v(acc + 2 * j + 1))
    v16 = k.valloc()
    k.I("v_lshlrev_b32", v(v16), 4, v(lane))
    k.I("s_mul_i32", s(soff), s(sst), 28 * 1024)
    k.I("s_lshl_b32", s(st0), s(sntile), 11)
    k.I("s_add_u32", s(soff), s(soff), s(st0))
    k.I("s_add_u32", s(soff), s(soff), hex(H_OFF))
    k.I("buffer_store_dwordx4", vr(P, 4), v(v16), sr(sWS, 4), s(soff), mods="offen")
    k.I("buffer_store_dwordx4", vr(P + 4, 4), v(v16), sr(sWS, 4), s(soff), mods="offen offset:1024")
    accs = k.valloc(2); accq = k.valloc(2)
    stats_from_packed(k, P, 8, accs, accq, tmp)
    k.I("v_mov_b32", v(accs + 1), v(accq))
    vh = k.valloc()
    k.I("v_mul_u32_u24", v(vh), 112, v(l31))
    k.I("s_mul_i32", s(soff), s(sst), 32 * 112)
    k.I("s_lshl_b32", s(st0), s(sntile), 3)
    k.I("s_add_u32", s(soff), s(soff), s(st0))
    k.I("s_add_u32", s(soff), s(soff), hex(HS_OFF))
    k.I("s_mov_b32", "exec_hi", 0)
    k.I("buffer_store_dwordx2", vr(accs, 2), v(vh), sr(sWS, 4), s(soff), mods="offen")
    stp.stamp(3)
    k.I("s_endpgm")
    k.L(aux)
    k.vnext = vsave; k.vmq = []; k.lgq = []
    sa = k.salloc(); sWin = k.salloc(4)
    k.I("s_sub_u32", s(sa), s(sidx), 28)
    k.I("s_lshl_b32", s(sa), s(sa), 3)
    k.I("s_add_u32", s(sa), s(sa), s(sj))
    k.I("s_waitcnt", "lgkmcnt(0)")
    srd(k, sWS, pWS, WS_SIZE)
    ff = k.valloc(4)
    for i in range(4): k.I("v_mov_b32", v(ff + i), -1)
    k.I("v_lshlrev_b32", v(t1), 4, "v0")
    k.I("v_mov_b32", v(t2), "0x7fffff00")
    k.I("v_cmp_gt_u32", "vcc", 448, "v0")
    k.I("v_cndmask_b32", v(t1), v(t2), v(t1), "vcc")
    k.I("s_mul_i32", s(st0), s(sa), 7168)
    k.I("s_add_u32", s(st0), s(st0), hex(EX_OFF))
    k.I("buffer_store_dwordx4", vr(ff, 4), v(t1), sr(sWS, 4), s(st0), mods="offen")
    zf = k.valloc(4)
    for i in range(4): k.I("v_mov_b32", v(zf + i), 0)
    k.I("v_lshlrev_b32", v(t1), 4, "v0")
    k.I("v_mov_b32", v(t2), "0x7fffff00")
    k.I("v_cmp_gt_u32", "vcc", 32, "v0")
    k.I("v_cndmask_b32", v(t1), v(t2), v(t1), "vcc")
    k.I("s_lshl_b32", s(st0), s(sa), 9)
    k.I("s_add_u32", s(st0), s(st0), hex(FL_OFF))
    k.I("buffer_store_dwordx4", vr(zf, 4), v(t1), sr(sWS, 4), s(st0), mods="offen")
    srd(k, sWin, pWin, 448 * 3584)
    def win_prefetch():
        if os.environ.get("PFWIN", "k2") != "k3": return
        vTw = k.valloc(); vdw = k.valloc(7)
        k.I("s_sub_u32", s(st0), s(sidx), 28)
        k.I("s_lshl_b32", s(st0), s(st0), 9)
        k.I("v_add_u32", v(vTw), s(st0), "v0")
        k.I("v_lshlrev_b32", v(vTw), 7, v(vTw))
        for i in range(7):
            k.I("s_mov_b32", s(st0), hex(i * 2048 * 128))
            k.I("buffer_load_dword", v(vdw + i), v(vTw), sr(sWin, 4), s(st0), mods="offen")
    nocs = k.newlabel("nocs")
    k.I("s_cmp_ge_u32", s(sa), 28)
    k.I("s_cbranch_scc1", nocs)
    vg = k.valloc()
    k.I("v_lshrrev_b32", v(t0), 3, v(lane))
    k.I("v_mul_u32_u24", v(t0), 3584, v(t0))
    k.I("v_bfe_u32", v(t1), v(lane), 4, 1)
    k.I("v_lshlrev_b32", v(t1), 2, v(t1))
    k.I("v_and_b32", v(t2), 7, v(lane))
    k.I("v_xor_b32", v(t1), v(t1), v(t2))
    k.I("v_lshl_add_u32", v(vg), v(t1), 4, v(t0))
    sb = k.salloc(); sm = k.salloc()
    k.I("s_mul_i32", s(sb), s(swave), 56 * 3584)
    k.I("s_lshl_b32", s(st0), s(sa), 7)
    k.I("s_add_u32", s(sb), s(sb), s(st0))
    k.I("s_mul_i32", s(sm), s(swave), 56 * 128)
    for i in range(7):
        k.I("s_add_u32", s(soff), s(sb), hex(i * 8 * 3584))
        k.I("s_add_u32", "m0", s(sm), hex(i * 1024))
        k.I("buffer_load_dwordx4", v(vg), sr(sWin, 4), s(soff), mods="offen lds")
    win_prefetch()
    z = k.valloc(); TB = 57344
    k.I("v_mov_b32", v(z), 0)
    k.I("v_lshlrev_b32", v(t0), 2, v(lane))
    k.I("v_add_u32", v(t0), TB, v(t0))
    k.I("ds_write_b32", v(t0), v(z))
    gg = k.valloc(); vB = k.valloc(); ones = k.valloc(4)
    k.I("v_lshrrev_b32", v(gg), 4, v(lane))
    k.I("v_bfe_u32", v(t0), v(lane), 2, 2)
    k.I("v_lshl_add_u32", v(t0), v(gg), 3, v(t0))
    k.I("v_lshlrev_b32", v(vB), 7, v(t0))
    k.I("v_bfe_u32", v(t0), v(lane), 1, 1)
    k.I("s_lshl_b32", s(st0), s(sw3), 1)
    k.I("v_add_u32", v(t0), s(st0), v(t0))
    k.I("v_bfe_u32", v(t1), v(lane), 3, 1)
    k.I("v_lshlrev_b32", v(t1), 2, v(t1))
    k.I("v_xor_b32", v(t0), v(t0), v(t1))
    k.I("v_lshl_add_u32", v(vB), v(t0), 4, v(vB))
    k.I("v_and_b32", v(t0), 1, v(lane))
    k.I("v_lshl_add_u32", v(vB), v(t0), 3, v(vB))
    k.I("s_lshr_b32", s(st0), s(swave), 2)
    k.I("s_mul_i32", s(st0), s(st0), 224 * 128)
    k.I("v_add_u32", v(vB), s(st0), v(vB))
    for i in range(4): k.I("v_mov_b32", v(ones + i), "0x3f803f80")
    k.I("s_waitcnt", "vmcnt(7) lgkmcnt(0)" if os.environ.get("PFWIN", "k2") == "k3" else "vmcnt(0) lgkmcnt(0)")
    k.I("s_barrier")
    bf = [k.valloc(4) for _ in range(7)]
    for kk in range(7):
        for beta in range(2):
            k.I("ds_read_b64_tr_b16", vr(bf[kk] + 2 * beta, 2), v(vB), mods=f"offset:{(32 * kk + 4 * beta) * 128}")
    ca = k.valloc(4)
    k.I("s_waitcnt", "lgkmcnt(0)")
    for kk in range(7):
        k.I("v_mfma_f32_16x16x32_bf16", vr(ca, 4), vr(ones, 4), vr(bf[kk], 4), 0 if kk == 0 else vr(ca, 4))
    k.I("v_and_b32", v(t0), 15, v(lane))
    k.I("s_lshl_b32", s(st0), s(sw3), 6)
    k.I("s_add_u32", s(st0), s(st0), TB)
    k.I("v_lshlrev_b32", v(t0), 2, v(t0))
    k.I("v_add_u32", v(t0), s(st0), v(t0))
    k.I("s_mov_b32", "exec_lo", "0xffff")
    k.I("s_mov_b32", "exec_hi", 0)
    k.I("ds_add_f32", v(t0), v(ca))
    k.I("s_mov_b64", "exec", -1)
    k.I("s_waitcnt", "lgkmcnt(0)")
    k.I("s_barrier")
    k.I("s_cmp_lg_u32", s(swave), 0)
    k.I("s_cbranch_scc1", R["done"])
    k.I("v_lshlrev_b32", v(t0), 2, v(lane))
    k.I("v_add_u32", v(t1), TB, v(t0))
    k.I("ds_read_b32", v(z), v(t1))
    k.I("s_lshl_b32", s(st0), s(sa), 8)
    k.I("s_add_u32", s(st0), s(st0), hex(CW_OFF))
    k.I("s_waitcnt", "lgkmcnt(0)")
    k.I("buffer_store_dword", v(z), v(t0), sr(sWS, 4), s(st0), mods="offen")
    k.I("s_endpgm")
    k.L(nocs)
    win_prefetch()
    k.L(R["done"])
    k.I("s_endpgm")
    k.lds = lds; k.threads = 512; k.grid = 256
    return k


GELU_C0 = -2.0 * math.sqrt(2.0 / math.pi) * math.log2(math.e)
GELU_C1 = GELU_C0 * 0.044715

def gen_k4(Stamper):
    k = Kernel("k4_win_kernel")
    NS = 4; SLOT = 32768; TRB = NS * SLOT
    STB = TRB
    lds = TRB + 4096
    R = common_start(k, 256)
    swave, st0, st1, soff, lane, t0, t1, t2 = (R[x] for x in ("swave", "st0", "st1", "soff", "lane", "t0", "t1", "t2"))
    pWin = k.salloc(2); pWS = k.salloc(2)
    k.I("s_load_dwordx2", sr(pWin, 2), "s[0:1]", 32)
    k.I("s_load_dwordx2", sr(pWS, 2), "s[0:1]", 80)
    sWS = k.salloc(4); sWin = k.salloc(4)
    sj = k.salloc(); sidx = k.salloc(); srb = k.salloc(); sct = k.salloc(); sw3 = k.salloc()
    k.I("s_and_b32", s(sj), "s2", 7)
    k.I("s_lshr_b32", s(sidx), "s2", 3)
    k.I("s_and_b32", s(sw3), s(swave), 3)
    pfrole = k.newlabel("pfrole")
    k.I("s_cmp_ge_u32", s(sidx), 28)
    k.I("s_cbranch_scc1", pfrole)
    k.I("s_cmp_ge_u32", s(sidx), 14)
    k.I("s_cselect_b32", s(st0), 1, 0)
    k.I("s_mul_i32", s(st1), s(st0), 14)
    k.I("s_sub_u32", s(sct), s(sidx), s(st1))
    k.I("s_lshl_b32", s(srb), s(sj), 1)
    k.I("s_add_u32", s(srb), s(srb), s(st0))
    stp = Stamper(k, 3, sWS, swave)
    k.I("s_waitcnt", "lgkmcnt(0)")
    srd(k, sWS, pWS, WS_SIZE)
    comp = k.newlabel("compute")
    k.I("s_cmp_lt_u32", s(swave), 4)
    k.I("s_cbranch_scc1", comp)
    vsave = k.vnext
    srd(k, sWin, pWin, 448 * 3584)
    v16 = k.valloc(); vWo = k.valloc()
    k.I("v_lshlrev_b32", v(v16), 4, v(lane))
    k.I("v_lshrrev_b32", v(t0), 4, v(lane))
    k.I("v_lshlrev_b32", v(t1), 2, v(t0))
    k.I("v_and_b32", v(t2), 15, v(lane))
    k.I("v_xor_b32", v(t1), v(t1), v(t2))
    k.I("v_mul_u32_u24", v(vWo), 3584, v(t0))
    k.I("v_and_b32", v(t2), 7, v(t1))
    k.I("v_lshl_add_u32", v(vWo), v(t2), 4, v(vWo))
    k.I("v_add_u32", v(t2), 1792, v(vWo))
    k.I("v_cmp_gt_u32", "vcc", 8, v(t1))
    k.I("v_cndmask_b32", v(vWo), v(vWo), v(t2), "vcc")
    sHb = k.salloc(); sWb = k.salloc(); smH = k.salloc(); smW = k.salloc()
    k.I("s_lshl_b32", s(st0), s(srb), 2)
    k.I("s_add_u32", s(st0), s(st0), s(sw3))
    k.I("s_mul_i32", s(sHb), s(st0), 28 * 1024)
    k.I("s_add_u32", s(sHb), s(sHb), hex(H_OFF))
    k.I("s_lshl_b32", s(smH), s(sw3), 12)
    k.I("s_mul_i32", s(sWb), s(sw3), 16 * 3584)
    k.I("s_lshl_b32", s(st1), s(sct), 7)
    k.I("s_add_u32", s(sWb), s(sWb), s(st1))
    k.I("s_add_u32", s(smW), s(smH), 16384)
    def issue(c):
        sl = (c % NS) * SLOT
        for i in range(4):
            k.I("s_add_u32", s(soff), s(sHb), hex((4 * c + i) * 1024))
            k.I("s_add_u32", "m0", s(smH), hex(sl + i * 1024))
            k.vm(("S", c), "buffer_load_dwordx4", v(v16), sr(sWS, 4), s(soff), mods="offen lds")
        for i in range(4):
            k.I("s_add_u32", s(soff), s(sWb), hex((64 * c + 4 * i) * 3584))
            k.I("s_add_u32", "m0", s(smW), hex(sl + i * 1024))
            k.vm(("S", c), "buffer_load_dwordx4", v(vWo), sr(sWin, 4), s(soff), mods="offen lds")
    issue(0); issue(1)
    for c in range(7):
        k.wait_vm(("S", c))
        k.I("s_barrier")
        if c == 0: issue(2); issue(3)
        elif c + 2 < 7 and c >= 2: issue(c + 2)
    k.I("s_barrier")
    k.I("s_endpgm")
    k.L(comp)
    k.vnext = vsave; k.vmq = []; k.lgq = []
    l31 = k.valloc(); hh = k.valloc()
    k.I("v_and_b32", v(l31), 31, v(lane))
    k.I("v_lshrrev_b32", v(hh), 5, v(lane))
    srh = k.salloc(); sch = k.salloc(); sst = k.salloc()
    k.I("s_and_b32", s(srh), s(swave), 1)
    k.I("s_lshr_b32", s(sch), s(swave), 1)
    k.I("s_lshl_b32", s(sst), s(srb), 2)
    k.I("s_lshl_b32", s(st0), s(srh), 1)
    k.I("s_add_u32", s(sst), s(sst), s(st0))
    hs = [k.valloc(16, 4) for _ in range(2)]
    vh = k.valloc()
    k.I("v_mul_u32_u24", v(vh), 112, v(l31))
    k.I("v_lshl_add_u32", v(vh), v(hh), 6, v(vh))
    for t in range(2):
        k.I("s_add_u32", s(st0), s(sst), t)
        k.I("s_mul_i32", s(soff), s(st0), 32 * 112)
        k.I("s_add_u32", s(soff), s(soff), hex(HS_OFF))
        for i in range(4):
            k.vm("hs", "buffer_load_dwordx4", vr(hs[t] + 4 * i, 4), v(vh), sr(sWS, 4), s(soff), mods=f"offen offset:{16 * i}")
    cw = [k.valloc(16, 4) for _ in range(2)]
    vc = k.valloc()
    k.I("v_lshlrev_b32", v(vc), 4, v(hh))
    k.I("s_lshl_b32", s(st0), s(sct), 8)
    k.I("s_lshl_b32", s(st1), s(sch), 7)
    k.I("s_add_u32", s(st0), s(st0), s(st1))
    for z in range(2):
        k.I("s_add_u32", s(soff), s(st0), hex(CW_OFF + (896 * 4 if z == 0 else 0)))
        for q in range(4):
            k.vm("cw", "buffer_load_dwordx4", vr(cw[z] + 4 * q, 4), v(vc), sr(sWS, 4), s(soff), mods=f"offen offset:{32 * q}")
    if os.environ.get("PF2", "0") == "1":
        pp = k.salloc(2); sP = k.salloc(4); vT = k.valloc(); vd = k.valloc(2)
        k.I("s_load_dwordx2", sr(pp, 2), "s[0:1]", 40)
        k.I("s_lshl_b32", s(st0), s(sidx), 8)
        k.I("v_add_u32", v(vT), s(st0), "v0")
        k.I("s_waitcnt", "lgkmcnt(0)")
        srd(k, sP, pp, 2048 * 4096)
        k.I("s_lshr_b32", s(st0), s(sj), 1)
        k.I("s_lshl_b32", s(st0), s(st0), 21)
        k.I("s_and_b32", s(st1), s(sj), 1)
        k.I("s_lshl_b32", s(st1), s(st1), 11)
        k.I("s_add_u32", s(st0), s(st0), s(st1))
        for i in range(2):
            k.I("v_add_u32", v(t0), 7168 * i, v(vT))
            k.I("v_lshrrev_b32", v(t1), 4, v(t0))
            k.I("v_lshlrev_b32", v(t1), 12, v(t1))
            k.I("v_and_b32", v(t2), 15, v(t0))
            k.I("v_lshl_add_u32", v(t1), v(t2), 7, v(t1))
            if i == 1:
                k.I("v_mov_b32", v(t2), "0x7fffff00")
                k.I("v_cmp_gt_u32", "vcc", 8192, v(t0))
                k.I("v_cndmask_b32", v(t1), v(t2), v(t1), "vcc")
            k.vm("pf", "buffer_load_dword", v(vd + i), v(t1), sr(sP, 4), s(st0), mods="offen")
    code_prefetch(k, "k5_sp_kernel", sidx, st0)
    stp.stamp(0)
    aH = k.valloc(); vW = [k.valloc(), k.valloc()]
    k.I("v_lshlrev_b32", v(aH), 4, v(lane))
    k.I("s_lshl_b32", s(st0), s(srh), 13)
    k.I("v_add_u32", v(aH), s(st0), v(aH))
    k.I("v_bfe_u32", v(t0), v(lane), 2, 2)
    k.I("v_lshl_add_u32", v(t1), v(hh), 2, v(t0))
    k.I("v_lshlrev_b32", v(t1), 8, v(t1))
    k.I("v_add_u32", v(t1), 16384, v(t1))
    k.I("v_bfe_u32", v(t2), v(lane), 4, 1)
    k.I("v_lshlrev_b32", v(t2), 1, v(t2))
    k.I("v_bfe_u32", v(vW[0]), v(lane), 1, 1)
    k.I("v_add_u32", v(t2), v(t2), v(vW[0]))
    k.I("s_lshl_b32", s(st0), s(sch), 2)
    k.I("v_add_u32", v(t2), s(st0), v(t2))
    k.I("v_lshlrev_b32", v(t0), 2, v(t0))
    k.I("v_xor_b32", v(vW[0]), v(t2), v(t0))
    k.I("v_add_u32", v(t2), 8, v(t2))
    k.I("v_xor_b32", v(vW[1]), v(t2), v(t0))
    k.I("v_and_b32", v(t2), 1, v(lane))
    for z in range(2):
        k.I("v_lshl_add_u32", v(vW[z]), v(vW[z]), 4, v(t1))
        k.I("v_lshl_add_u32", v(vW[z]), v(t2), 3, v(vW[z]))
    aH2 = k.valloc(); vW2 = [k.valloc(), k.valloc()]
    k.I("v_add_u32", v(aH2), 65536, v(aH))
    for z in range(2): k.I("v_add_u32", v(vW2[z]), 65536, v(vW[z]))
    acc = [[k.valloc(16, 4) for _ in range(2)] for _ in range(2)]
    vmark = k.vnext
    NB = 3
    hf = [[k.valloc(4) for _ in range(2)] for _ in range(NB)]
    wf = [[k.valloc(4) for _ in range(2)] for _ in range(NB)]
    def rl(ks):
        c, j = ks // 4, ks % 4
        b = ks % NB
        sl = (c % NS) * SLOT
        hi = sl >= 65536
        so = sl - (65536 if hi else 0)
        out = []
        for t in range(2):
            out.append(lambda t=t: k.lg(("f", ks), "ds_read_b128", vr(hf[b][t], 4), v(aH2 if hi else aH), mods=f"offset:{so + t * 4096 + j * 1024}"))
        for z in range(2):
            for beta in range(2):
                o = so + (16 * j + 8 * beta) * 256
                out.append(lambda o=o, z=z, beta=beta: k.lg(("f", ks), "ds_read_b64_tr_b16", vr(wf[b][z] + 2 * beta, 2), v((vW2 if hi else vW)[z]), mods=f"offset:{o}"))
        return out
    k.I("s_barrier")
    stp.stamp(1)
    for f in rl(0) + rl(1): f()
    for ks in range(28):
        c, j = ks // 4, ks % 4
        b = ks % NB
        k.wait_lg(("f", ks))
        mf = []
        for z in range(2):
            for t in range(2):
                mf.append(lambda z=z, t=t: k.I("v_mfma_f32_32x32x16_bf16", vr(acc[z][t], 16), vr(wf[b][z], 4), vr(hf[b][t], 4), 0 if ks == 0 else vr(acc[z][t], 16)))
        if j == 2 and c < 6:
            pass
        fl = rl(ks + 2) if ks + 2 < 28 else []
        if j == 2 and ks + 2 < 28:
            k.I("s_barrier")
        interleave(k, mf, fl)
    stp.stamp(2)
    k.vnext = vmark
    k.wait_vm(["hs", "cw"])
    rr = [k.valloc(2) for _ in range(2)]; nm = [k.valloc(2) for _ in range(2)]
    c0r = [k.valloc(2) for _ in range(2)]; c1r = [k.valloc(2) for _ in range(2)]
    k.I("v_cmp_eq_u32", "vcc", 0, v(hh))
    for t in range(2):
        H = hs[t]
        for i in range(12, 16): k.I("v_cndmask_b32", v(H + i), 0, v(H + i), "vcc")
        for i in range(4): k.I("v_pk_add_f32", vr(H + 2 * i, 2), vr(H + 2 * i, 2), vr(H + 8 + 2 * i, 2))
        for i in range(2): k.I("v_pk_add_f32", vr(H + 2 * i, 2), vr(H + 2 * i, 2), vr(H + 4 + 2 * i, 2))
        k.I("v_pk_add_f32", vr(H, 2), vr(H, 2), vr(H + 2, 2))
        for e in range(2):
            k.I("v_mov_b32", v(H + 2), v(H + e))
            k.I("v_permlane32_swap_b32", v(H + e), v(H + 2))
            k.I("v_add_f32", v(H + e), v(H + e), v(H + 2))
        k.I("v_mul_f32", v(nm[t]), hex(f32(-1.0 / 448)), v(H))
        k.I("v_mul_f32", v(H + 1), hex(f32(1.0 / 448)), v(H + 1))
        k.I("v_fma_f32", v(H + 1), f"-{v(nm[t])}", v(nm[t]), v(H + 1))
        k.I("v_max_f32", v(H + 1), 0, v(H + 1))
        k.I("v_add_f32", v(H + 1), hex(f32(1e-5)), v(H + 1))
        k.I("v_rsq_f32", v(rr[t]), v(H + 1))
        k.I("v_mul_f32", v(c0r[t]), hex(f32(GELU_C0)), v(rr[t]))
        k.I("v_mul_f32", v(c1r[t]), v(rr[t]), v(rr[t]))
        k.I("v_mul_f32", v(c1r[t]), v(c1r[t]), v(rr[t]))
        k.I("v_mul_f32", v(c1r[t]), hex(f32(GELU_C1)), v(c1r[t]))
    norh = k.newlabel("norh")
    k.I("s_or_b32", s(st0), s(sct), s(sch))
    k.I("s_cmp_lg_u32", s(st0), 0)
    k.I("s_cbranch_scc1", norh)
    k.I("v_lshlrev_b32", v(t0), 2, v(l31))
    for t in range(2):
        k.I("s_add_u32", s(st0), s(sst), t)
        k.I("s_lshl_b32", s(st0), s(st0), 7)
        k.I("s_add_u32", s(st0), s(st0), hex(RH_OFF))
        k.I("buffer_store_dword", v(rr[t]), v(t0), sr(sWS, 4), s(st0), mods="offen")
    k.L(norh)
    tp = [k.valloc(2) for _ in range(4)]
    def gelu_tile(A, z, t):
        for j in range(8):
            k.I("v_pk_fma_f32", vr(A + 2 * j, 2), vr(cw[z] + 2 * j, 2), vr(nm[t], 2), vr(A + 2 * j, 2), mods="op_sel_hi:[1,0,1]")
        for j0 in range(0, 8, 4):
            for j in range(j0, j0 + 4):
                T = tp[j - j0]
                k.I("v_pk_mul_f32", vr(T, 2), vr(A + 2 * j, 2), vr(A + 2 * j, 2))
            for j in range(j0, j0 + 4):
                T = tp[j - j0]
                k.I("v_pk_fma_f32", vr(T, 2), vr(T, 2), vr(c1r[t], 2), vr(c0r[t], 2), mods="op_sel_hi:[1,0,0]")
            for j in range(j0, j0 + 4):
                T = tp[j - j0]
                k.I("v_pk_mul_f32", vr(T, 2), vr(T, 2), vr(A + 2 * j, 2))
            for j in range(j0, j0 + 4):
                T = tp[j - j0]
                k.I("v_exp_f32", v(T), v(T)); k.I("v_exp_f32", v(T + 1), v(T + 1))
            for j in range(j0, j0 + 4):
                T = tp[j - j0]
                k.I("v_pk_add_f32", vr(T, 2), vr(T, 2), "1.0", mods="op_sel_hi:[1,0]")
            for j in range(j0, j0 + 4):
                T = tp[j - j0]
                k.I("v_rcp_f32", v(T), v(T)); k.I("v_rcp_f32", v(T + 1), v(T + 1))
            for j in range(j0, j0 + 4):
                T = tp[j - j0]
                k.I("v_pk_mul_f32", vr(A + 2 * j, 2), vr(A + 2 * j, 2), vr(T, 2))
    accs = [k.valloc(2) for _ in range(2)]; accq = [k.valloc(2) for _ in range(2)]
    for t in range(2):
        A = acc[0][t]
        gelu_tile(A, 0, t)
        for j in range(8):
            k.I("v_pk_mul_f32", vr(A + 2 * j, 2), vr(A + 2 * j, 2), vr(rr[t], 2), mods="op_sel_hi:[1,0]")
        k.I("v_pk_add_f32", vr(accs[t], 2), vr(A, 2), vr(A + 2, 2))
        k.I("v_pk_mul_f32", vr(accq[t], 2), vr(A, 2), vr(A, 2))
        k.I("v_pk_fma_f32", vr(accq[t], 2), vr(A + 2, 2), vr(A + 2, 2), vr(accq[t], 2))
        for j in range(2, 8):
            k.I("v_pk_add_f32", vr(accs[t], 2), vr(accs[t], 2), vr(A + 2 * j, 2))
            k.I("v_pk_fma_f32", vr(accq[t], 2), vr(A + 2 * j, 2), vr(A + 2 * j, 2), vr(accq[t], 2))
        k.I("v_add_f32", v(accs[t]), v(accs[t]), v(accs[t] + 1))
        k.I("v_add_f32", v(accs[t] + 1), v(accq[t]), v(accq[t] + 1))
        for e in range(2):
            k.I("v_mov_b32", v(accq[t]), v(accs[t] + e))
            k.I("v_permlane32_swap_b32", v(accs[t] + e), v(accq[t]))
            k.I("v_add_f32", v(accs[t] + e), v(accs[t] + e), v(accq[t]))
    vs = k.valloc()
    k.I("v_lshlrev_b32", v(vs), 3, v(l31))
    k.I("s_lshl_b32", s(st0), s(srh), 9)
    k.I("s_add_u32", s(st0), s(st0), STB)
    k.I("v_add_u32", v(vs), s(st0), v(vs))
    k.I("s_lshl_b32", s(st0), s(sch), 10)
    k.I("v_add_u32", v(t0), s(st0), v(vs))
    for t in range(2):
        k.I("ds_write_b64", v(t0), vr(accs[t], 2), mods=f"offset:{t * 256}")
    k.I("s_waitcnt", "lgkmcnt(0)")
    k.I("s_barrier")
    pub = k.newlabel("nopub")
    k.I("s_cmp_lg_u32", s(sch), 0)
    k.I("s_cbranch_scc1", pub)
    oth = k.valloc(4)
    for t in range(2):
        k.I("ds_read_b64", vr(oth + 2 * t, 2), v(vs), mods=f"offset:{1024 + t * 256}")
    k.I("s_waitcnt", "lgkmcnt(0)")
    for t in range(2):
        k.I("v_pk_add_f32", vr(oth + 2 * t, 2), vr(oth + 2 * t, 2), vr(accs[t], 2))
        k.I("v_mov_b32", v(t1), "0x7fc00000")
        k.I("v_cmp_eq_u32", "vcc", -1, v(oth + 2 * t + 1))
        k.I("v_cndmask_b32", v(oth + 2 * t + 1), v(oth + 2 * t + 1), v(t1), "vcc")
    ve = k.valloc()
    k.I("v_mul_u32_u24", v(ve), 112, v(l31))
    k.I("s_mul_i32", s(soff), s(sst), 32 * 112)
    k.I("s_lshl_b32", s(st0), s(sct), 3)
    k.I("s_add_u32", s(soff), s(soff), s(st0))
    k.I("s_add_u32", s(soff), s(soff), hex(EX_OFF))
    k.I("s_mov_b32", "exec_hi", 0)
    for t in range(2):
        k.I("buffer_store_dwordx2", vr(oth + 2 * t, 2), v(ve), sr(sWS, 4), s(soff), mods=f"offen offset:{t * 32 * 112} sc0 sc1")
    k.I("s_mov_b64", "exec", -1)
    k.L(pub)
    stp.stamp(3)
    v16 = k.valloc()
    k.I("v_lshlrev_b32", v(v16), 4, v(lane))
    P = [k.valloc(8, 4) for _ in range(2)]
    sft = k.salloc()
    k.I("s_lshl_b32", s(sft), s(sct), 1)
    k.I("s_add_u32", s(sft), s(sft), s(sch))
    for t in range(2):
        A = acc[1][t]
        gelu_tile(A, 1, t)
        for j in range(8): k.I("v_cvt_pk_bf16_f32", v(P[t] + j), v(A + 2 * j), v(A + 2 * j + 1))
        k.I("s_add_u32", s(st0), s(sst), t)
        k.I("s_mul_i32", s(soff), s(st0), 56 * 1024)
        k.I("s_lshl_b32", s(st0), s(sft), 11)
        k.I("s_add_u32", s(soff), s(soff), s(st0))
        k.I("s_add_u32", s(soff), s(soff), hex(Z1_OFF))
        k.I("buffer_store_dwordx4", vr(P[t], 4), v(v16), sr(sWS, 4), s(soff), mods="offen")
        k.I("buffer_store_dwordx4", vr(P[t] + 4, 4), v(v16), sr(sWS, 4), s(soff), mods="offen offset:1024")
    stp.stamp(4)
    ex = hs
    k.I("v_mul_u32_u24", v(vh), 112, v(l31))
    k.I("v_lshl_add_u32", v(vh), v(hh), 6, v(vh))
    k.I("s_mul_i32", s(soff), s(sst), 32 * 112)
    k.I("s_add_u32", s(soff), s(soff), hex(EX_OFF))
    scount = k.salloc(); sbad = k.salloc(2)
    k.I("s_mov_b32", s(scount), 0)
    poll = k.newlabel("poll"); pdone = k.newlabel("pdone")
    k.L(poll)
    for t in range(2):
        for i in range(4):
            k.I("buffer_load_dwordx4", vr(ex[t] + 4 * i, 4), v(vh), sr(sWS, 4), s(soff), mods=f"offen offset:{t * 32 * 112 + 16 * i} sc0 sc1")
    k.I("s_waitcnt", "vmcnt(0)")
    k.I("v_cmp_eq_u32", "vcc", 0, v(hh))
    for t in range(2):
        for i in range(12, 16): k.I("v_cndmask_b32", v(ex[t] + i), 0, v(ex[t] + i), "vcc")
    k.I("v_max_u32", v(t0), v(ex[0] + 1), v(ex[0] + 3))
    for t in range(2):
        for i in range(8):
            if t == 0 and i < 2: continue
            k.I("v_max_u32", v(t0), v(t0), v(ex[t] + 2 * i + 1))
    k.I("v_cmp_eq_u32", "vcc", -1, v(t0))
    k.I("s_add_u32", s(scount), s(scount), 1)
    k.I("s_cmp_eq_u64", "vcc", 0)
    k.I("s_cbranch_scc1", pdone)
    k.I("s_cmp_lt_u32", s(scount), 0x40000)
    k.I("s_cbranch_scc0", pdone)
    k.I("s_sleep", 1)
    k.I("s_branch", poll)
    k.L(pdone)
    sc_ = [k.valloc(2) for _ in range(2)]; zm = [k.valloc(2) for _ in range(2)]
    for t in range(2):
        H = ex[t]
        for i in range(4): k.I("v_pk_add_f32", vr(H + 2 * i, 2), vr(H + 2 * i, 2), vr(H + 8 + 2 * i, 2))
        for i in range(2): k.I("v_pk_add_f32", vr(H + 2 * i, 2), vr(H + 2 * i, 2), vr(H + 4 + 2 * i, 2))
        k.I("v_pk_add_f32", vr(H, 2), vr(H, 2), vr(H + 2, 2))
        for e in range(2):
            k.I("v_mov_b32", v(H + 2), v(H + e))
            k.I("v_permlane32_swap_b32", v(H + e), v(H + 2))
            k.I("v_add_f32", v(H + e), v(H + e), v(H + 2))
        k.I("v_mul_f32", v(zm[t]), hex(f32(-1.0 / 896)), v(H))
        k.I("v_mul_f32", v(H + 1), hex(f32(1.0 / 896)), v(H + 1))
        k.I("v_fma_f32", v(H + 1), f"-{v(zm[t])}", v(zm[t]), v(H + 1))
        k.I("v_max_f32", v(H + 1), 0, v(H + 1))
        k.I("v_add_f32", v(H + 1), hex(f32(1e-5)), v(H + 1))
        k.I("v_rsq_f32", v(sc_[t]), v(H + 1))
        k.I("v_mul_f32", v(zm[t]), v(zm[t]), v(sc_[t]))
    TW = 0
    vt = k.valloc(); vtr = k.valloc()
    k.I("v_lshlrev_b32", v(vt), 6, v(l31))
    k.I("v_lshl_add_u32", v(vt), v(hh), 3, v(vt))
    k.I("s_lshl_b32", s(st0), s(swave), 12)
    k.I("v_add_u32", v(vt), s(st0), v(vt))
    for t in range(2):
        A = acc[0][t]
        for j in range(8):
            k.I("v_pk_fma_f32", vr(A + 2 * j, 2), vr(A + 2 * j, 2), vr(sc_[t], 2), vr(zm[t], 2), mods="op_sel_hi:[1,0,0]")
        for j in range(8): k.I("v_cvt_pk_bf16_f32", v(P[t] + j), v(A + 2 * j), v(A + 2 * j + 1))
        for q in range(4):
            k.I("ds_write_b64", v(vt), vr(P[t] + 2 * q, 2), mods=f"offset:{t * 2048 + 16 * q}")
    k.I("v_bfe_u32", v(t0), v(lane), 2, 2)
    k.I("v_lshl_add_u32", v(t0), v(hh), 3, v(t0))
    k.I("v_lshlrev_b32", v(vtr), 6, v(t0))
    k.I("v_bfe_u32", v(t0), v(lane), 4, 1)
    k.I("v_lshl_add_u32", v(vtr), v(t0), 5, v(vtr))
    k.I("v_and_b32", v(t0), 3, v(lane))
    k.I("v_lshl_add_u32", v(vtr), v(t0), 3, v(vtr))
    k.I("s_lshl_b32", s(st0), s(swave), 12)
    k.I("v_add_u32", v(vtr), s(st0), v(vtr))
    k.I("s_waitcnt", "lgkmcnt(0)")
    Z = cw[0]
    for ks in range(4):
        for beta in range(2):
            k.I("ds_read_b64_tr_b16", vr(Z + 4 * ks + 2 * beta, 2), v(vtr), mods=f"offset:{(16 * ks + 4 * beta) * 64}")
    k.I("s_mul_i32", s(soff), s(sft), ZS)
    k.I("s_lshr_b32", s(st0), s(sst), 5)
    k.I("s_mul_i32", s(st0), s(st0), ZK)
    k.I("s_add_u32", s(soff), s(soff), s(st0))
    k.I("s_and_b32", s(st0), s(sst), 31)
    k.I("s_lshl_b32", s(st0), s(st0), 11)
    k.I("s_add_u32", s(soff), s(soff), s(st0))
    k.I("s_add_u32", s(soff), s(soff), hex(Z2_OFF))
    for ks in range(4):
        k.I("s_waitcnt", f"lgkmcnt({6 - 2 * ks})")
        k.I("buffer_store_dwordx4", vr(Z + 4 * ks, 4), v(v16), sr(sWS, 4), s(soff), mods=f"offen offset:{ks * 1024}")
    stp.stamp(5)
    k.I("s_endpgm")
    k.L(pfrole)
    pp = k.salloc(2); sP = k.salloc(4); vT = k.valloc(); vd = k.valloc(4)
    k.I("s_load_dwordx2", sr(pp, 2), "s[0:1]", 40)
    k.I("s_sub_u32", s(st0), s(sidx), 28)
    k.I("s_lshl_b32", s(st0), s(st0), 9)
    k.I("v_add_u32", v(vT), s(st0), "v0")
    k.I("s_lshr_b32", s(st0), s(sj), 1)
    k.I("s_lshl_b32", s(st0), s(st0), 21)
    k.I("s_and_b32", s(st1), s(sj), 1)
    k.I("s_lshl_b32", s(st1), s(st1), 11)
    k.I("s_add_u32", s(st0), s(st0), s(st1))
    k.I("s_waitcnt", "lgkmcnt(0)")
    srd(k, sP, pp, 2048 * 4096)
    for i in range(4):
        k.I("v_add_u32", v(t0), 2048 * i, v(vT))
        k.I("v_lshrrev_b32", v(t1), 4, v(t0))
        k.I("v_lshlrev_b32", v(t1), 12, v(t1))
        k.I("v_and_b32", v(t2), 15, v(t0))
        k.I("v_lshl_add_u32", v(t1), v(t2), 7, v(t1))
        k.I("buffer_load_dword", v(vd + i), v(t1), sr(sP, 4), s(st0), mods="offen")
    k.L(R["done"])
    k.I("s_endpgm")
    k.lds = lds; k.threads = 512; k.grid = 256
    return k


def gen_k4b(Stamper):
    k = Kernel("k4_win_kernel")
    HREG = 0; WRING = 114688; WSL = 8192; NS = 5
    CWT = WRING + NS * WSL
    lds = CWT + 512
    R = common_start(k, 256)
    swave, st0, st1, soff, lane, t0, t1, t2 = (R[x] for x in ("swave", "st0", "st1", "soff", "lane", "t0", "t1", "t2"))
    pWin = k.salloc(2); pWS = k.salloc(2)
    k.I("s_load_dwordx2", sr(pWin, 2), "s[0:1]", 32)
    k.I("s_load_dwordx2", sr(pWS, 2), "s[0:1]", 80)
    sWS = k.salloc(4); sWin = k.salloc(4)
    sj = k.salloc(); sidx = k.salloc(); srb = k.salloc(); sct = k.salloc(); sw3 = k.salloc()
    k.I("s_and_b32", s(sj), "s2", 7)
    k.I("s_lshr_b32", s(sidx), "s2", 3)
    k.I("s_and_b32", s(sw3), s(swave), 3)
    pfrole = k.newlabel("pfrole")
    k.I("s_cmp_ge_u32", s(sidx), 28)
    k.I("s_cbranch_scc1", pfrole)
    k.I("s_mul_i32", s(st0), s(sidx), 37)
    k.I("s_lshr_b32", s(st0), s(st0), 8)
    k.I("s_mul_i32", s(st1), s(st0), 7)
    k.I("s_sub_u32", s(sct), s(sidx), s(st1))
    k.I("s_and_b32", s(st1), s(sj), 1)
    k.I("s_mul_i32", s(st1), s(st1), 7)
    k.I("s_add_u32", s(sct), s(sct), s(st1))
    k.I("s_lshr_b32", s(srb), s(sj), 1)
    k.I("s_lshl_b32", s(srb), s(srb), 2)
    k.I("s_add_u32", s(srb), s(srb), s(st0))
    stp = Stamper(k, 3, sWS, swave)
    sst = k.salloc()
    k.I("s_lshl_b32", s(sst), s(srb), 2)
    k.I("s_add_u32", s(sst), s(sst), s(sw3))
    k.I("s_waitcnt", "lgkmcnt(0)")
    srd(k, sWS, pWS, WS_SIZE)
    comp = k.newlabel("compute")
    k.I("s_cmp_lt_u32", s(swave), 4)
    k.I("s_cbranch_scc1", comp)
    vsave = k.vnext
    srd(k, sWin, pWin, 448 * 3584)
    v16 = k.valloc(); vWo = k.valloc()
    k.I("v_lshlrev_b32", v(v16), 4, v(lane))
    k.I("v_lshrrev_b32", v(t0), 3, v(lane))
    k.I("v_mul_u32_u24", v(t0), 3584, v(t0))
    k.I("v_bfe_u32", v(t1), v(lane), 4, 1)
    k.I("v_lshlrev_b32", v(t1), 2, v(t1))
    k.I("v_and_b32", v(t2), 7, v(lane))
    k.I("v_xor_b32", v(t1), v(t1), v(t2))
    k.I("v_lshl_add_u32", v(vWo), v(t1), 4, v(t0))
    sHb = k.salloc(); sWb = k.salloc(); smH = k.salloc(); smW = k.salloc()
    k.I("s_mul_i32", s(sHb), s(sst), 28 * 1024)
    k.I("s_add_u32", s(sHb), s(sHb), hex(H_OFF))
    k.I("s_mul_i32", s(smH), s(sw3), 28 * 1024)
    k.I("s_mul_i32", s(sWb), s(sw3), 16 * 3584)
    k.I("s_lshl_b32", s(st1), s(sct), 7)
    k.I("s_add_u32", s(sWb), s(sWb), s(st1))
    k.I("s_lshl_b32", s(smW), s(sw3), 11)
    k.I("s_add_u32", s(smW), s(smW), WRING)
    def issue(c):
        if c < 7:
            for i in range(4):
                k.I("s_add_u32", s(soff), s(sHb), hex((4 * c + i) * 1024))
                k.I("s_add_u32", "m0", s(smH), hex(HREG + (4 * c + i) * 1024))
                k.vm(("S", c), "buffer_load_dwordx4", v(v16), sr(sWS, 4), s(soff), mods="offen lds")
        cc = c % 7
        col = 1792 if c < 7 else 0
        for i in range(2):
            k.I("s_add_u32", s(soff), s(sWb), hex((64 * cc + 8 * i) * 3584 + col))
            k.I("s_add_u32", "m0", s(smW), hex((c % NS) * WSL + i * 1024))
            k.vm(("S", c), "buffer_load_dwordx4", v(vWo), sr(sWin, 4), s(soff), mods="offen lds")
    nocw = k.newlabel("nocw")
    issue(0)
    k.I("s_cmp_ge_u32", s(sw3), 2)
    k.I("s_cbranch_scc1", nocw)
    k.I("v_lshlrev_b32", v(t0), 2, v(lane))
    k.I("s_lshl_b32", s(st0), s(sct), 8)
    k.I("s_xor_b32", s(st1), s(sw3), 1)
    k.I("s_mul_i32", s(st1), s(st1), 896 * 4)
    k.I("s_add_u32", s(st0), s(st0), s(st1))
    k.I("s_add_u32", s(soff), s(st0), hex(CW_OFF))
    k.I("s_lshl_b32", s(st1), s(sw3), 8)
    k.I("s_add_u32", "m0", s(st1), CWT)
    k.I("buffer_load_dword", v(t0), sr(sWS, 4), s(soff), mods="offen lds")
    k.L(nocw)
    k.vmq.append(("S", 1))
    issue(1); issue(2)
    NST = 14
    for c in range(NST):
        if c == 0:
            k.I("s_waitcnt", "vmcnt(12)")
            k.vmq = k.vmq[6:]
        else:
            k.wait_vm(("S", c))
        k.I("s_barrier")
        if c == 0: issue(3); issue(4)
        elif c >= 2 and c + 3 < NST: issue(c + 3)
    k.I("s_endpgm")
    k.L(comp)
    k.vnext = vsave; k.vmq = []; k.lgq = []
    l31 = k.valloc(); hh = k.valloc()
    k.I("v_and_b32", v(l31), 31, v(lane))
    k.I("v_lshrrev_b32", v(hh), 5, v(lane))
    hs = k.valloc(16, 4); vh = k.valloc()
    k.I("v_mul_u32_u24", v(vh), 112, v(l31))
    k.I("v_lshl_add_u32", v(vh), v(hh), 6, v(vh))
    k.I("s_mul_i32", s(soff), s(sst), 32 * 112)
    sEX = k.salloc()
    k.I("s_add_u32", s(sEX), s(soff), hex(EX_OFF))
    k.I("s_add_u32", s(soff), s(soff), hex(HS_OFF))
    for i in range(4):
        k.vm("hs", "buffer_load_dwordx4", vr(hs + 4 * i, 4), v(vh), sr(sWS, 4), s(soff), mods=f"offen offset:{16 * i}")
    code_prefetch(k, "k5_sp_kernel", sidx, st0)
    stp.stamp(0)
    aH = k.valloc(); v16 = k.valloc(); vW = [k.valloc(), k.valloc()]
    k.I("v_lshlrev_b32", v(v16), 4, v(lane))
    k.I("s_mul_i32", s(st0), s(swave), 28 * 1024)
    k.I("v_add_u32", v(aH), s(st0), v(v16))
    k.I("v_bfe_u32", v(t0), v(lane), 2, 2)
    k.I("v_lshl_add_u32", v(t0), v(hh), 2, v(t0))
    k.I("v_lshlrev_b32", v(t0), 7, v(t0))
    k.I("v_add_u32", v(t0), WRING, v(t0))
    k.I("v_bfe_u32", v(t1), v(lane), 4, 1)
    k.I("v_lshlrev_b32", v(t1), 1, v(t1))
    k.I("v_bfe_u32", v(t2), v(lane), 1, 1)
    k.I("v_add_u32", v(t1), v(t1), v(t2))
    k.I("v_bfe_u32", v(t2), v(lane), 3, 1)
    k.I("v_lshlrev_b32", v(t2), 2, v(t2))
    for n2 in range(2):
        k.I("v_add_u32", v(vW[n2]), 4 * n2, v(t1))
        k.I("v_xor_b32", v(vW[n2]), v(vW[n2]), v(t2))
        k.I("v_lshl_add_u32", v(vW[n2]), v(vW[n2]), 4, v(t0))
    k.I("v_and_b32", v(t1), 1, v(lane))
    for n2 in range(2): k.I("v_lshl_add_u32", v(vW[n2]), v(t1), 3, v(vW[n2]))
    rr = k.valloc(2); nm = k.valloc(2); c0r = k.valloc(2); c1r = k.valloc(2)
    k.wait_vm("hs")
    k.I("v_cmp_eq_u32", "vcc", 0, v(hh))
    H = hs
    for i in range(12, 16): k.I("v_cndmask_b32", v(H + i), 0, v(H + i), "vcc")
    for i in range(4): k.I("v_pk_add_f32", vr(H + 2 * i, 2), vr(H + 2 * i, 2), vr(H + 8 + 2 * i, 2))
    for i in range(2): k.I("v_pk_add_f32", vr(H + 2 * i, 2), vr(H + 2 * i, 2), vr(H + 4 + 2 * i, 2))
    k.I("v_pk_add_f32", vr(H, 2), vr(H, 2), vr(H + 2, 2))
    for e in range(2):
        k.I("v_mov_b32", v(H + 2), v(H + e))
        k.I("v_permlane32_swap_b32", v(H + e), v(H + 2))
        k.I("v_add_f32", v(H + e), v(H + e), v(H + 2))
    k.I("v_mul_f32", v(nm), hex(f32(-1.0 / 448)), v(H))
    k.I("v_mul_f32", v(H + 1), hex(f32(1.0 / 448)), v(H + 1))
    k.I("v_fma_f32", v(H + 1), f"-{v(nm)}", v(nm), v(H + 1))
    k.I("v_max_f32", v(H + 1), 0, v(H + 1))
    k.I("v_add_f32", v(H + 1), hex(f32(1e-5)), v(H + 1))
    k.I("v_rsq_f32", v(rr), v(H + 1))
    k.I("v_mul_f32", v(c0r), hex(f32(GELU_C0)), v(rr))
    k.I("v_mul_f32", v(c1r), v(rr), v(rr))
    k.I("v_mul_f32", v(c1r), v(c1r), v(rr))
    k.I("v_mul_f32", v(c1r), hex(f32(GELU_C1)), v(c1r))
    norh = k.newlabel("norh")
    k.I("s_cmp_lg_u32", s(sct), 0)
    k.I("s_cbranch_scc1", norh)
    k.I("v_lshlrev_b32", v(t0), 2, v(l31))
    k.I("s_lshl_b32", s(st0), s(sst), 7)
    k.I("s_add_u32", s(st0), s(st0), hex(RH_OFF))
    k.I("buffer_store_dword", v(rr), v(t0), sr(sWS, 4), s(st0), mods="offen")
    k.L(norh)
    acc = [[k.valloc(16, 4) for _ in range(2)] for _ in range(2)]
    cwr = hs
    tp = [k.valloc(2) for _ in range(4)]
    NB = 3
    hf = [k.valloc(4) for _ in range(NB)]
    wf = [[k.valloc(4) for _ in range(2)] for _ in range(NB)]
    def rl(g):
        ks = g % 28; c = g // 4; j = g % 4
        b = g % NB
        out = [lambda: k.lg(("f", g), "ds_read_b128", vr(hf[b], 4), v(aH), mods=f"offset:{ks * 1024}")]
        for n2 in range(2):
            for beta in range(2):
                o = (c % NS) * WSL + (16 * j + 8 * beta) * 128
                out.append(lambda o=o, n2=n2, beta=beta: k.lg(("f", g), "ds_read_b64_tr_b16", vr(wf[b][n2] + 2 * beta, 2), v(vW[n2]), mods=f"offset:{o}"))
        return out
    vcw = k.valloc()
    k.I("v_lshlrev_b32", v(vcw), 4, v(hh))
    k.I("v_add_u32", v(vcw), CWT, v(vcw))
    def gelu_tile(A, z, n2):
        for q in range(4):
            k.lg("cw", "ds_read_b128", vr(cwr + 4 * q, 4), v(vcw), mods=f"offset:{z * 256 + n2 * 128 + 32 * q}")
        k.wait_lg("cw")
        for j in range(8):
            k.I("v_pk_fma_f32", vr(A + 2 * j, 2), vr(cwr + 2 * j, 2), vr(nm, 2), vr(A + 2 * j, 2), mods="op_sel_hi:[1,0,1]")
        for j0 in range(0, 8, 4):
            for j in range(j0, j0 + 4): k.I("v_pk_mul_f32", vr(tp[j - j0], 2), vr(A + 2 * j, 2), vr(A + 2 * j, 2))
            for j in range(j0, j0 + 4): k.I("v_pk_fma_f32", vr(tp[j - j0], 2), vr(tp[j - j0], 2), vr(c1r, 2), vr(c0r, 2), mods="op_sel_hi:[1,0,0]")
            for j in range(j0, j0 + 4): k.I("v_pk_mul_f32", vr(tp[j - j0], 2), vr(tp[j - j0], 2), vr(A + 2 * j, 2))
            for j in range(j0, j0 + 4):
                k.I("v_exp_f32", v(tp[j - j0]), v(tp[j - j0])); k.I("v_exp_f32", v(tp[j - j0] + 1), v(tp[j - j0] + 1))
            for j in range(j0, j0 + 4): k.I("v_pk_add_f32", vr(tp[j - j0], 2), vr(tp[j - j0], 2), "1.0", mods="op_sel_hi:[1,0]")
            for j in range(j0, j0 + 4):
                k.I("v_rcp_f32", v(tp[j - j0]), v(tp[j - j0])); k.I("v_rcp_f32", v(tp[j - j0] + 1), v(tp[j - j0] + 1))
            for j in range(j0, j0 + 4): k.I("v_pk_mul_f32", vr(A + 2 * j, 2), vr(A + 2 * j, 2), vr(tp[j - j0], 2))
    def mainloop(z):
        for g in range(28 * z, 28 * z + 28):
            ks = g % 28; j = g % 4; c = g // 4
            b = g % NB
            k.wait_lg(("f", g))
            mf = [lambda n2=n2: k.I("v_mfma_f32_32x32x16_bf16", vr(acc[z][n2], 16), vr(wf[b][n2], 4), vr(hf[b], 4), 0 if ks == 0 else vr(acc[z][n2], 16)) for n2 in range(2)]
            nxt = g + 2
            fl = rl(nxt) if nxt < 28 * z + 28 else []
            if j == 2 and c + 1 < NST: k.I("s_barrier")
            interleave(k, mf, fl)
    k.I("s_barrier")
    stp.stamp(1)
    for f in rl(0) + rl(1): f()
    mainloop(0)
    for f in rl(28) + rl(29): f()
    stp.stamp(2)
    accs = k.valloc(2); accq = k.valloc(2)
    for n2 in range(2):
        A = acc[0][n2]
        gelu_tile(A, 0, n2)
        for j in range(8):
            k.I("v_pk_mul_f32", vr(A + 2 * j, 2), vr(A + 2 * j, 2), vr(rr, 2), mods="op_sel_hi:[1,0]")
        for j in range(8):
            if n2 == 0 and j == 0:
                k.I("v_mov_b32", v(accs), v(A)); k.I("v_mov_b32", v(accs + 1), v(A + 1))
                k.I("v_pk_mul_f32", vr(accq, 2), vr(A, 2), vr(A, 2))
            else:
                k.I("v_pk_add_f32", vr(accs, 2), vr(accs, 2), vr(A + 2 * j, 2))
                k.I("v_pk_fma_f32", vr(accq, 2), vr(A + 2 * j, 2), vr(A + 2 * j, 2), vr(accq, 2))
    k.I("v_add_f32", v(accs), v(accs), v(accs + 1))
    k.I("v_add_f32", v(accs + 1), v(accq), v(accq + 1))
    for e in range(2):
        k.I("v_mov_b32", v(accq), v(accs + e))
        k.I("v_permlane32_swap_b32", v(accs + e), v(accq))
        k.I("v_add_f32", v(accs + e), v(accs + e), v(accq))
    k.I("v_mov_b32", v(t1), "0x7fc00000")
    k.I("v_cmp_eq_u32", "vcc", -1, v(accs + 1))
    k.I("v_cndmask_b32", v(accs + 1), v(accs + 1), v(t1), "vcc")
    ve = k.valloc()
    k.I("v_mul_u32_u24", v(ve), 112, v(l31))
    k.I("s_lshl_b32", s(st0), s(sct), 3)
    k.I("s_add_u32", s(soff), s(sEX), s(st0))
    k.I("s_mov_b32", "exec_hi", 0)
    k.I("buffer_store_dwordx2", vr(accs, 2), v(ve), sr(sWS, 4), s(soff), mods="offen sc0 sc1")
    k.I("s_mov_b64", "exec", -1)
    stp.stamp(3)
    mainloop(1)
    ex = k.valloc(16, 4)
    for i in range(4):
        k.I("buffer_load_dwordx4", vr(ex + 4 * i, 4), v(vh), sr(sWS, 4), s(sEX), mods=f"offen offset:{16 * i} sc0 sc1")
    P = [k.valloc(8, 4) for _ in range(2)]
    sft = k.salloc()
    k.I("s_lshl_b32", s(sft), s(sct), 1)
    for n2 in range(2):
        A = acc[1][n2]
        gelu_tile(A, 1, n2)
        for j in range(8): k.I("v_cvt_pk_bf16_f32", v(P[n2] + j), v(A + 2 * j), v(A + 2 * j + 1))
        k.I("s_mul_i32", s(soff), s(sst), 56 * 1024)
        k.I("s_add_u32", s(st0), s(sft), n2)
        k.I("s_lshl_b32", s(st0), s(st0), 11)
        k.I("s_add_u32", s(soff), s(soff), s(st0))
        k.I("s_add_u32", s(soff), s(soff), hex(Z1_OFF))
        k.I("buffer_store_dwordx4", vr(P[n2], 4), v(v16), sr(sWS, 4), s(soff), mods="offen")
        k.I("buffer_store_dwordx4", vr(P[n2] + 4, 4), v(v16), sr(sWS, 4), s(soff), mods="offen offset:1024")
    stp.stamp(4)
    scount = k.salloc()
    k.I("s_mov_b32", s(scount), 0)
    poll = k.newlabel("poll"); pdone = k.newlabel("pdone"); pchk = k.newlabel("pchk")
    k.I("s_waitcnt", "vmcnt(4)")
    k.I("s_branch", pchk)
    k.L(poll)
    for i in range(4):
        k.I("buffer_load_dwordx4", vr(ex + 4 * i, 4), v(vh), sr(sWS, 4), s(sEX), mods=f"offen offset:{16 * i} sc0 sc1")
    k.I("s_waitcnt", "vmcnt(0)")
    k.L(pchk)
    k.I("v_cmp_eq_u32", "vcc", 0, v(hh))
    for i in range(12, 16): k.I("v_cndmask_b32", v(ex + i), 0, v(ex + i), "vcc")
    k.I("v_max_u32", v(t0), v(ex + 1), v(ex + 3))
    for i in range(2, 8): k.I("v_max_u32", v(t0), v(t0), v(ex + 2 * i + 1))
    k.I("v_cmp_eq_u32", "vcc", -1, v(t0))
    k.I("s_add_u32", s(scount), s(scount), 1)
    k.I("s_cmp_eq_u64", "vcc", 0)
    k.I("s_cbranch_scc1", pdone)
    k.I("s_cmp_lt_u32", s(scount), 0x40000)
    k.I("s_cbranch_scc0", pdone)
    k.I("s_sleep", 1)
    k.I("s_branch", poll)
    k.L(pdone)
    k.vmq = []
    sc_ = k.valloc(2); zm = k.valloc(2)
    H = ex
    for i in range(4): k.I("v_pk_add_f32", vr(H + 2 * i, 2), vr(H + 2 * i, 2), vr(H + 8 + 2 * i, 2))
    for i in range(2): k.I("v_pk_add_f32", vr(H + 2 * i, 2), vr(H + 2 * i, 2), vr(H + 4 + 2 * i, 2))
    k.I("v_pk_add_f32", vr(H, 2), vr(H, 2), vr(H + 2, 2))
    for e in range(2):
        k.I("v_mov_b32", v(H + 2), v(H + e))
        k.I("v_permlane32_swap_b32", v(H + e), v(H + 2))
        k.I("v_add_f32", v(H + e), v(H + e), v(H + 2))
    k.I("v_mul_f32", v(zm), hex(f32(-1.0 / 896)), v(H))
    k.I("v_mul_f32", v(H + 1), hex(f32(1.0 / 896)), v(H + 1))
    k.I("v_fma_f32", v(H + 1), f"-{v(zm)}", v(zm), v(H + 1))
    k.I("v_max_f32", v(H + 1), 0, v(H + 1))
    k.I("v_add_f32", v(H + 1), hex(f32(1e-5)), v(H + 1))
    k.I("v_rsq_f32", v(sc_), v(H + 1))
    k.I("v_mul_f32", v(zm), v(zm), v(sc_))
    vt = k.valloc(); vtr = k.valloc()
    k.I("s_mul_i32", s(st0), s(swave), 28 * 1024)
    k.I("v_mul_u32_u24", v(vt), 136, v(l31))
    k.I("v_lshl_add_u32", v(vt), v(hh), 3, v(vt))
    k.I("v_add_u32", v(vt), s(st0), v(vt))
    for n2 in range(2):
        A = acc[0][n2]
        for j in range(8):
            k.I("v_pk_fma_f32", vr(A + 2 * j, 2), vr(A + 2 * j, 2), vr(sc_, 2), vr(zm, 2), mods="op_sel_hi:[1,0,0]")
        for j in range(8): k.I("v_cvt_pk_bf16_f32", v(P[n2] + j), v(A + 2 * j), v(A + 2 * j + 1))
        for q in range(4):
            k.I("ds_write_b64", v(vt), vr(P[n2] + 2 * q, 2), mods=f"offset:{64 * n2 + 16 * q}")
    k.I("v_bfe_u32", v(t0), v(lane), 2, 2)
    k.I("v_lshl_add_u32", v(t0), v(hh), 3, v(t0))
    k.I("v_mul_u32_u24", v(vtr), 136, v(t0))
    k.I("v_bfe_u32", v(t0), v(lane), 4, 1)
    k.I("v_lshl_add_u32", v(vtr), v(t0), 5, v(vtr))
    k.I("v_and_b32", v(t0), 3, v(lane))
    k.I("v_lshl_add_u32", v(vtr), v(t0), 3, v(vtr))
    k.I("v_add_u32", v(vtr), s(st0), v(vtr))
    k.I("s_waitcnt", "lgkmcnt(0)")
    Z = acc[1][0]
    for n2 in range(2):
        for ks in range(2):
            for beta in range(2):
                k.I("ds_read_b64_tr_b16", vr(Z + 8 * n2 + 4 * ks + 2 * beta, 2), v(vtr), mods=f"offset:{(16 * ks + 4 * beta) * 136 + 64 * n2}")
    k.I("s_lshr_b32", s(st0), s(sst), 5)
    k.I("s_mul_i32", s(st0), s(st0), ZK)
    k.I("s_and_b32", s(st1), s(sst), 31)
    k.I("s_lshl_b32", s(st1), s(st1), 11)
    k.I("s_add_u32", s(st0), s(st0), s(st1))
    k.I("s_add_u32", s(st0), s(st0), hex(Z2_OFF))
    for n2 in range(2):
        k.I("s_add_u32", s(st1), s(sft), n2)
        k.I("s_mul_i32", s(soff), s(st1), ZS)
        k.I("s_add_u32", s(soff), s(soff), s(st0))
        for ks in range(2):
            k.I("s_waitcnt", f"lgkmcnt({6 - 4 * n2 - 2 * ks})")
            k.I("buffer_store_dwordx4", vr(Z + 8 * n2 + 4 * ks, 4), v(v16), sr(sWS, 4), s(soff), mods=f"offen offset:{ks * 1024}")
    stp.stamp(5)
    k.I("s_endpgm")
    k.L(pfrole)
    if os.environ.get('K4PF', 'dense') == 'dense':
        pp = k.salloc(2); sP = k.salloc(4); vT = k.valloc(); vd = k.valloc(32, 4)
        k.I("s_load_dwordx2", sr(pp, 2), "s[0:1]", 40)
        k.I("s_sub_u32", s(st0), s(sidx), 28)
        k.I("s_lshl_b32", s(st0), s(st0), 3)
        k.I("s_add_u32", s(st0), s(st0), s(swave))
        k.I("s_lshl_b32", s(st0), s(st0), 16)
        k.I("s_lshr_b32", s(st1), s(sj), 1)
        k.I("s_lshl_b32", s(st1), s(st1), 21)
        k.I("s_add_u32", s(st0), s(st0), s(st1))
        k.I("s_and_b32", s(st1), s(sj), 1)
        k.I("s_lshl_b32", s(st1), s(st1), 11)
        k.I("s_add_u32", s(st0), s(st0), s(st1))
        k.I("v_lshlrev_b32", v(vT), 4, v(lane))
        k.I("s_waitcnt", "lgkmcnt(0)")
        srd(k, sP, pp, 2048 * 4096)
        for i in range(16):
            k.I("s_add_u32", s(soff), s(st0), hex(i * 4096))
            for hf_ in range(2):
                k.I("buffer_load_dwordx4", vr(vd + 4 * ((2 * i + hf_) % 8), 4), v(vT), sr(sP, 4), s(soff), mods=f"offen offset:{hf_ * 1024}")
    else:
        pp = k.salloc(2); sP = k.salloc(4); vT = k.valloc(); vd = k.valloc(4)
        k.I("s_load_dwordx2", sr(pp, 2), "s[0:1]", 40)
        k.I("s_sub_u32", s(st0), s(sidx), 28)
        k.I("s_lshl_b32", s(st0), s(st0), 9)
        k.I("v_add_u32", v(vT), s(st0), "v0")
        k.I("s_lshr_b32", s(st0), s(sj), 1)
        k.I("s_lshl_b32", s(st0), s(st0), 21)
        k.I("s_and_b32", s(st1), s(sj), 1)
        k.I("s_lshl_b32", s(st1), s(st1), 11)
        k.I("s_add_u32", s(st0), s(st0), s(st1))
        k.I("s_waitcnt", "lgkmcnt(0)")
        srd(k, sP, pp, 2048 * 4096)
        for i in range(4):
            k.I("v_add_u32", v(t0), 2048 * i, v(vT))
            k.I("v_lshrrev_b32", v(t1), 4, v(t0))
            k.I("v_lshlrev_b32", v(t1), 12, v(t1))
            k.I("v_and_b32", v(t2), 15, v(t0))
            k.I("v_lshl_add_u32", v(t1), v(t2), 7, v(t1))
            k.I("buffer_load_dword", v(vd + i), v(t1), sr(sP, 4), s(st0), mods="offen")
    k.L(R["done"])
    k.I("s_endpgm")
    k.lds = lds; k.threads = 512; k.grid = 256
    return k

def gen_k5(Stamper):
    k = Kernel("k5_sp_kernel")
    NS = 4; SLOT = 32768
    Z1REG = NS * SLOT
    lds = Z1REG + 32768
    R = common_start(k, 256)
    swave, st0, st1, soff, lane, t0, t1, t2 = (R[x] for x in ("swave", "st0", "st1", "soff", "lane", "t0", "t1", "t2"))
    pSp = k.salloc(2); pB = k.salloc(2); pWS = k.salloc(2)
    k.I("s_load_dwordx2", sr(pSp, 2), "s[0:1]", 40)
    k.I("s_load_dwordx2", sr(pB, 2), "s[0:1]", 48)
    k.I("s_load_dwordx2", sr(pWS, 2), "s[0:1]", 80)
    sWS = k.salloc(4); sSp = k.salloc(4); sB = k.salloc(4)
    sj = k.salloc(); sidx = k.salloc(); stt = k.salloc(); sft = k.salloc(); skap = k.salloc(); sw3 = k.salloc()
    if os.environ.get("K5MAP") == "linear":
        k.I("s_mul_i32", s(sj), "s2", 2341)
        k.I("s_lshr_b32", s(sj), s(sj), 16)
        k.I("s_mul_i32", s(sidx), s(sj), 28)
        k.I("s_sub_u32", s(sidx), "s2", s(sidx))
    else:
        k.I("s_and_b32", s(sj), "s2", 7)
        k.I("s_lshr_b32", s(sidx), "s2", 3)
    pfrole = k.newlabel("pfrole")
    k.I("s_cmp_ge_u32", s(sidx), 28)
    k.I("s_cbranch_scc1", pfrole)
    k.I("s_and_b32", s(sw3), s(swave), 3)
    k.I("s_and_b32", s(skap), s(sj), 1)
    k.I("s_mul_i32", s(st0), s(sidx), 37)
    k.I("s_lshr_b32", s(st0), s(st0), 8)
    k.I("s_mul_i32", s(st1), s(st0), 7)
    k.I("s_sub_u32", s(sft), s(sidx), s(st1))
    k.I("s_lshr_b32", s(stt), s(sj), 1)
    k.I("s_lshl_b32", s(stt), s(stt), 2)
    k.I("s_add_u32", s(stt), s(stt), s(st0))
    stp = Stamper(k, 4, sWS, swave)
    if os.environ.get("TICKWAVE", "0") != "0": stp.tick(0)
    k.I("s_waitcnt", "lgkmcnt(0)")
    srd(k, sWS, pWS, WS_SIZE)
    comp = k.newlabel("compute")
    k.I("s_cmp_lt_u32", s(swave), 4)
    k.I("s_cbranch_scc1", comp)
    vsave = k.vnext
    srd(k, sSp, pSp, 2048 * 4096)
    v16 = k.valloc(); vWo = k.valloc(2)
    k.I("v_lshlrev_b32", v(v16), 4, v(lane))
    k.I("v_lshrrev_b32", v(t0), 3, v(lane))
    k.I("v_lshlrev_b32", v(t0), 12, v(t0))
    k.I("v_lshrrev_b32", v(t1), 4, v(lane))
    k.I("v_and_b32", v(t2), 7, v(lane))
    k.I("v_xor_b32", v(t1), v(t1), v(t2))
    k.I("v_lshl_add_u32", v(vWo), v(t1), 4, v(t0))
    k.I("v_xor_b32", v(t1), 4, v(t1))
    k.I("v_lshl_add_u32", v(vWo + 1), v(t1), 4, v(t0))
    sZb = k.salloc(); sWb = k.salloc(); smZ = k.salloc(); smW = k.salloc()
    k.I("s_lshl_b32", s(st0), s(sft), 2)
    k.I("s_add_u32", s(st0), s(st0), s(sw3))
    k.I("s_mul_i32", s(sZb), s(st0), ZS)
    k.I("s_mul_i32", s(st1), s(skap), ZK)
    k.I("s_add_u32", s(sZb), s(sZb), s(st1))
    k.I("s_add_u32", s(sZb), s(sZb), hex(Z2_OFF))
    k.I("s_lshl_b32", s(smZ), s(sw3), 12)
    k.I("s_lshl_b32", s(st0), s(stt), 7)
    k.I("s_lshl_b32", s(st1), s(sw3), 5)
    k.I("s_add_u32", s(st0), s(st0), s(st1))
    k.I("s_lshl_b32", s(sWb), s(st0), 12)
    k.I("s_lshl_b32", s(st1), s(skap), 11)
    k.I("s_add_u32", s(sWb), s(sWb), s(st1))
    k.I("s_add_u32", s(smW), s(smZ), 16384)
    def issue(c):
        sl = (c % NS) * SLOT
        def zpart():
            for i in range(4):
                k.I("s_add_u32", s(soff), s(sZb), hex((4 * c + i) * 1024))
                k.I("s_add_u32", "m0", s(smZ), hex(sl + i * 1024))
                k.vm(("S", c), "buffer_load_dwordx4", v(v16), sr(sWS, 4), s(soff), mods="offen lds")
                if os.environ.get("DIAG5") and c == 0 and i in (0, 3):
                    k.I("s_waitcnt", "vmcnt(0)"); stp.tick(10 + (i > 0))
        def wpart():
            for i in range(4):
                k.I("s_add_u32", s(soff), s(sWb), hex(i * 8 * 4096 + c * 128))
                k.I("s_add_u32", "m0", s(smW), hex(sl + i * 1024))
                k.vm(("S", c), "buffer_load_dwordx4", v(vWo + (i & 1)), sr(sSp, 4), s(soff), mods="offen lds")
                if os.environ.get("DIAG5") and c == 0 and i in (0, 3):
                    k.I("s_waitcnt", "vmcnt(0)"); stp.tick(12 + (i > 0))
        if os.environ.get("DIAG5") == "2": wpart(); zpart()
        else: zpart(); wpart()
    NST = 16
    sZ1 = k.salloc()
    k.I("s_lshl_b32", s(st0), s(stt), 2)
    k.I("s_add_u32", s(st0), s(st0), s(sw3))
    k.I("s_mul_i32", s(sZ1), s(st0), 56 * 1024)
    k.I("s_lshl_b32", s(st1), s(sft), 13)
    k.I("s_add_u32", s(sZ1), s(sZ1), s(st1))
    k.I("s_add_u32", s(sZ1), s(sZ1), hex(Z1_OFF))
    smZ1 = k.salloc()
    k.I("s_lshl_b32", s(smZ1), s(sw3), 13)
    def issue_z1(i, tag):
        k.I("s_add_u32", s(soff), s(sZ1), hex(i * 1024))
        k.I("s_add_u32", "m0", s(smZ1), hex(Z1REG + i * 1024))
        k.vm(("S", tag), "buffer_load_dwordx4", v(v16), sr(sWS, 4), s(soff), mods="offen lds")
    LT = os.environ.get("TICKWAVE", "0") != "0"
    if LT: stp.tick(1)
    issue(0)
    if LT: stp.tick(2)
    issue(1)
    if LT: stp.tick(3)
    for c in range(NST):
        k.wait_vm(("S", c))
        if LT and c < 3: stp.tick(4 + 2 * c)
        k.I("s_barrier")
        if LT and c < 3: stp.tick(5 + 2 * c)
        if c == 0: issue(2); issue(3)
        elif c + 2 < NST and c >= 2:
            issue(c + 2)
            if 3 <= c < 11: issue_z1(c - 3, c + 2)
    vT = k.valloc()
    k.I("s_lshl_b32", s(st0), s(sidx), 8)
    k.I("v_subrev_u32", v(vT), 256, "v0")
    k.I("v_add_u32", v(vT), s(st0), v(vT))
    k.I("v_lshlrev_b32", v(vT), 7, v(vT))
    if LT: stp.dump_ticks()
    k.I("s_endpgm")
    k.L(comp)
    k.vnext = vsave; k.vmq = []; k.lgq = []
    srd(k, sB, pB, 4096)
    l31 = k.valloc(); hh = k.valloc()
    k.I("v_and_b32", v(l31), 31, v(lane))
    k.I("v_lshrrev_b32", v(hh), 5, v(lane))
    sfh = k.salloc(); sth = k.salloc(); sst = k.salloc(); sf32 = k.salloc()
    k.I("s_and_b32", s(sfh), s(swave), 1)
    k.I("s_lshr_b32", s(sth), s(swave), 1)
    k.I("s_lshl_b32", s(sst), s(stt), 2)
    k.I("s_lshl_b32", s(st0), s(sth), 1)
    k.I("s_add_u32", s(sst), s(sst), s(st0))
    k.I("s_lshl_b32", s(sf32), s(sft), 2)
    k.I("s_lshl_b32", s(st0), s(sfh), 1)
    k.I("s_add_u32", s(sf32), s(sf32), s(st0))
    if os.environ.get("PF3", "0") == "1":
        vT0 = k.valloc(); vd0 = k.valloc(2)
        k.I("s_lshl_b32", s(st0), s(sidx), 8)
        k.I("v_add_u32", v(vT0), s(st0), "v0")
        k.I("s_lshl_b32", s(st1), s(skap), 16)
        k.I("s_add_u32", s(st1), s(st1), hex(Z2_OFF))
        for i in range(2):
            k.I("v_add_u32", v(t0), 7168 * i, v(vT0))
            k.I("v_lshrrev_b32", v(t1), 9, v(t0))
            k.I("v_lshlrev_b32", v(t1), 17, v(t1))
            k.I("v_and_b32", v(t2), 511, v(t0))
            k.I("v_lshl_add_u32", v(t1), v(t2), 7, v(t1))
            k.vm("pf", "buffer_load_dword", v(vd0 + i), v(t1), sr(sWS, 4), s(st1), mods="offen")
    v16 = k.valloc()
    k.I("v_lshlrev_b32", v(v16), 4, v(lane))
    z1 = [[k.valloc(8, 4) for _ in range(2)] for _ in range(2)]
    rr = [k.valloc(2) for _ in range(2)]; bb = [k.valloc(2) for _ in range(2)]
    k.I("v_lshlrev_b32", v(t0), 2, v(l31))
    k.I("v_lshlrev_b32", v(t1), 1, v(l31))
    for ti in range(2):
        k.I("s_add_u32", s(st0), s(sst), ti)
        k.I("s_lshl_b32", s(soff), s(st0), 7)
        k.I("s_add_u32", s(soff), s(soff), hex(RH_OFF))
        k.vm("z1", "buffer_load_dword", v(rr[ti]), v(t0), sr(sWS, 4), s(soff), mods="offen")
        k.I("s_lshl_b32", s(soff), s(st0), 6)
        k.vm("z1", "buffer_load_ushort", v(bb[ti]), v(t1), sr(sB, 4), s(soff), mods="offen")
    if os.environ.get("PF2", "0") == "1":
        pp = k.salloc(2); sP = k.salloc(4); vT = k.valloc(); vd = k.valloc(2)
        k.I("s_load_dwordx2", sr(pp, 2), "s[0:1]", 56)
        k.I("s_lshl_b32", s(st0), s(sidx), 8)
        k.I("v_add_u32", v(vT), s(st0), "v0")
        k.I("v_lshlrev_b32", v(vT), 7, v(vT))
        k.I("s_waitcnt", "lgkmcnt(0)")
        srd(k, sP, pp, 896 * 896)
        k.vm("pf", "buffer_load_dword", v(vd), v(vT), sr(sP, 4), 0, mods="offen")
    code_prefetch(k, "k6_wout_kernel", sidx, st0)
    stp.stamp(0)
    aZ = k.valloc(); aW = k.valloc(4)
    k.I("s_lshl_b32", s(st0), s(sfh), 13)
    k.I("v_add_u32", v(aZ), s(st0), v(v16))
    k.I("v_bfe_u32", v(t0), v(l31), 1, 3)
    for j in range(4):
        k.I("v_add_u32", v(t1), 2 * j, v(hh))
        k.I("v_xor_b32", v(t1), v(t1), v(t0))
        k.I("v_lshlrev_b32", v(t1), 4, v(t1))
        k.I("v_lshl_add_u32", v(aW + j), v(l31), 7, v(t1))
        k.I("s_lshl_b32", s(st0), s(sth), 13)
        k.I("s_add_u32", s(st0), s(st0), 16384)
        k.I("v_add_u32", v(aW + j), s(st0), v(aW + j))
    aZ2 = k.valloc(); aW2 = k.valloc(4)
    k.I("v_add_u32", v(aZ2), 65536, v(aZ))
    for j in range(4): k.I("v_add_u32", v(aW2 + j), 65536, v(aW + j))
    acc = [[k.valloc(16, 4) for _ in range(2)] for _ in range(2)]
    NB = 3
    zf = [[k.valloc(4) for _ in range(2)] for _ in range(NB)]
    wf = [[k.valloc(4) for _ in range(2)] for _ in range(NB)]
    def rl(ks):
        c, j = ks // 4, ks % 4
        b = ks % NB
        sl = (c % NS) * SLOT
        hi = sl >= 65536
        so = sl - (65536 if hi else 0)
        out = []
        for fi in range(2):
            out.append(lambda fi=fi: k.lg(("f", ks), "ds_read_b128", vr(zf[b][fi], 4), v(aZ2 if hi else aZ), mods=f"offset:{so + fi * 4096 + j * 1024}"))
        for ti in range(2):
            out.append(lambda ti=ti: k.lg(("f", ks), "ds_read_b128", vr(wf[b][ti], 4), v((aW2 if hi else aW) + j), mods=f"offset:{so + ti * 4096}"))
        return out
    k.I("s_barrier")
    stp.stamp(1)
    for f in rl(0) + rl(1): f()
    NKS = NST * 4
    for ks in range(NKS):
        c, j = ks // 4, ks % 4
        b = ks % NB
        k.wait_lg(("f", ks))
        mf = []
        for fi in range(2):
            for ti in range(2):
                mf.append(lambda fi=fi, ti=ti: k.I("v_mfma_f32_32x32x16_bf16", vr(acc[fi][ti], 16), vr(zf[b][fi], 4), vr(wf[b][ti], 4), 0 if ks == 0 else vr(acc[fi][ti], 16)))
        fl = rl(ks + 2) if ks + 2 < NKS else []
        if j == 2 and ks + 2 < NKS:
            if not LT and c in (0, 13, 14): stp.tick({0: 0, 13: 1, 14: 2}[c])
            k.I("s_barrier")
        interleave(k, mf, fl)
    if not LT: stp.tick(3)
    stp.stamp(2)
    if not LT: stp.tick(4)
    if not LT: stp.tick(5)
    vz = k.valloc()
    k.I("s_lshl_b32", s(st0), s(sth), 14)
    k.I("s_lshl_b32", s(st1), s(sfh), 12)
    k.I("s_add_u32", s(st0), s(st0), s(st1))
    k.I("s_add_u32", s(st0), s(st0), Z1REG)
    k.I("v_add_u32", v(vz), s(st0), v(v16))
    for ti in range(2):
        for fi in range(2):
            for hf_ in range(2):
                k.lg(("z1", ti, fi), "ds_read_b128", vr(z1[fi][ti] + 4 * hf_, 4), v(vz), mods=f"offset:{ti * 8192 + fi * 2048 + hf_ * 1024}")
    k.wait_vm("z1")
    for ti in range(2):
        k.I("v_lshlrev_b32", v(bb[ti]), 16, v(bb[ti]))
        k.I("v_mul_f32", v(bb[ti]), v(bb[ti]), v(rr[ti]))
    k.I("s_cmp_eq_u32", s(skap), 0)
    k.I("s_cselect_b32", s(st0), "1.0", 0)
    for ti in range(2): k.I("v_mul_f32", v(bb[ti]), s(st0), v(bb[ti]))
    tp = [k.valloc(2) for _ in range(4)]
    P = [k.valloc(8, 4) for _ in range(2)]
    sU = k.salloc()
    k.I("s_mul_i32", s(sU), s(skap), U1_OFF - U0_OFF)
    k.I("s_add_u32", s(sU), s(sU), hex(U0_OFF))
    n = 0
    for ti in range(2):
        for fi in range(2):
            A = acc[fi][ti]; Zp = z1[fi][ti]; PP = P[n & 1]; n += 1
            for j in range(8):
                k.I("v_pk_fma_f32", vr(A + 2 * j, 2), vr(A + 2 * j, 2), vr(rr[ti], 2), vr(bb[ti], 2), mods="op_sel_hi:[1,0,0]")
            k.wait_lg(("z1", ti, fi))
            for j in range(8):
                T = tp[j % 4]
                k.I("v_lshlrev_b32", v(T), 16, v(Zp + j))
                k.I("v_and_b32", v(T + 1), "0xffff0000", v(Zp + j))
                k.I("v_pk_mul_f32", vr(A + 2 * j, 2), vr(A + 2 * j, 2), vr(T, 2))
            for j in range(8): k.I("v_cvt_pk_bf16_f32", v(PP + j), v(A + 2 * j), v(A + 2 * j + 1))
            k.I("s_add_u32", s(st0), s(sst), ti)
            k.I("s_mul_i32", s(soff), s(st0), 56 * 1024)
            k.I("s_add_u32", s(st0), s(sf32), fi)
            k.I("s_lshl_b32", s(st0), s(st0), 11)
            k.I("s_add_u32", s(soff), s(soff), s(st0))
            k.I("s_add_u32", s(soff), s(soff), s(sU))
            k.I("buffer_store_dwordx4", vr(PP, 4), v(v16), sr(sWS, 4), s(soff), mods="offen")
            k.I("buffer_store_dwordx4", vr(PP + 4, 4), v(v16), sr(sWS, 4), s(soff), mods="offen offset:1024")
            if not LT: stp.tick(5 + n)
    stp.stamp(3)
    if not LT: stp.tick(10)
    if not LT: stp.dump_ticks()
    k.I("s_endpgm")
    k.L(pfrole)
    vT2 = k.valloc()
    k.I("s_sub_u32", s(st0), s(sidx), 28)
    k.I("s_lshl_b32", s(st0), s(st0), 9)
    k.I("v_add_u32", v(vT2), s(st0), "v0")
    k.I("v_lshlrev_b32", v(vT2), 7, v(vT2))
    l2_prefetch(k, 56, 896 * 896, vT2, 2048, st0)
    k.L(R["done"])
    k.I("s_endpgm")
    k.lds = lds; k.threads = 512; k.grid = 256
    return k

def gen_k56(Stamper):
    k = Kernel("k5_sp_kernel")
    NS = 4; SLOT = 32768
    Z1REG = NS * SLOT
    lds = Z1REG + 32768
    R = common_start(k, 256)
    swave, st0, st1, soff, lane, t0, t1, t2 = (R[x] for x in ("swave", "st0", "st1", "soff", "lane", "t0", "t1", "t2"))
    pSp = k.salloc(2); pB = k.salloc(2); pWS = k.salloc(2)
    k.I("s_load_dwordx2", sr(pSp, 2), "s[0:1]", 40)
    k.I("s_load_dwordx2", sr(pB, 2), "s[0:1]", 48)
    k.I("s_load_dwordx2", sr(pWS, 2), "s[0:1]", 80)
    pWo = k.salloc(2); pOD = k.salloc(4)
    k.I("s_load_dwordx2", sr(pWo, 2), "s[0:1]", 56)
    k.I("s_load_dwordx4", sr(pOD, 4), "s[0:1]", 64)
    sWS = k.salloc(4); sSp = k.salloc(4); sB = k.salloc(4); sWo = k.salloc(4); sOut = k.salloc(4); sD = k.salloc(4)
    sj = k.salloc(); sidx = k.salloc(); stt = k.salloc(); sft = k.salloc(); skap = k.salloc(); sw3 = k.salloc()
    if os.environ.get("K5MAP") == "linear":
        k.I("s_mul_i32", s(sj), "s2", 2341)
        k.I("s_lshr_b32", s(sj), s(sj), 16)
        k.I("s_mul_i32", s(sidx), s(sj), 28)
        k.I("s_sub_u32", s(sidx), "s2", s(sidx))
    else:
        k.I("s_and_b32", s(sj), "s2", 7)
        k.I("s_lshr_b32", s(sidx), "s2", 3)
    pfrole = k.newlabel("pfrole")
    k.I("s_cmp_ge_u32", s(sidx), 28)
    k.I("s_cbranch_scc1", pfrole)
    k.I("s_and_b32", s(sw3), s(swave), 3)
    k.I("s_and_b32", s(skap), s(sj), 1)
    k.I("s_mul_i32", s(st0), s(sidx), 37)
    k.I("s_lshr_b32", s(st0), s(st0), 8)
    k.I("s_mul_i32", s(st1), s(st0), 7)
    k.I("s_sub_u32", s(sft), s(sidx), s(st1))
    k.I("s_lshr_b32", s(stt), s(sj), 1)
    k.I("s_lshl_b32", s(stt), s(stt), 2)
    k.I("s_add_u32", s(stt), s(stt), s(st0))
    stp = Stamper(k, 4, sWS, swave)
    if os.environ.get("TICKWAVE", "0") != "0": stp.tick(0)
    k.I("s_waitcnt", "lgkmcnt(0)")
    srd(k, sWS, pWS, WS_SIZE)
    comp = k.newlabel("compute")
    k.I("s_cmp_lt_u32", s(swave), 4)
    k.I("s_cbranch_scc1", comp)
    vsave = k.vnext
    srd(k, sSp, pSp, 2048 * 4096)
    v16 = k.valloc(); vWo = k.valloc(2)
    k.I("v_lshlrev_b32", v(v16), 4, v(lane))
    k.I("v_lshrrev_b32", v(t0), 3, v(lane))
    k.I("v_lshlrev_b32", v(t0), 12, v(t0))
    k.I("v_lshrrev_b32", v(t1), 4, v(lane))
    k.I("v_and_b32", v(t2), 7, v(lane))
    k.I("v_xor_b32", v(t1), v(t1), v(t2))
    k.I("v_lshl_add_u32", v(vWo), v(t1), 4, v(t0))
    k.I("v_xor_b32", v(t1), 4, v(t1))
    k.I("v_lshl_add_u32", v(vWo + 1), v(t1), 4, v(t0))
    sZb = k.salloc(); sWb = k.salloc(); smZ = k.salloc(); smW = k.salloc()
    k.I("s_lshl_b32", s(st0), s(sft), 2)
    k.I("s_add_u32", s(st0), s(st0), s(sw3))
    k.I("s_mul_i32", s(sZb), s(st0), ZS)
    k.I("s_mul_i32", s(st1), s(skap), ZK)
    k.I("s_add_u32", s(sZb), s(sZb), s(st1))
    k.I("s_add_u32", s(sZb), s(sZb), hex(Z2_OFF))
    k.I("s_lshl_b32", s(smZ), s(sw3), 12)
    k.I("s_lshl_b32", s(st0), s(stt), 7)
    k.I("s_lshl_b32", s(st1), s(sw3), 5)
    k.I("s_add_u32", s(st0), s(st0), s(st1))
    k.I("s_lshl_b32", s(sWb), s(st0), 12)
    k.I("s_lshl_b32", s(st1), s(skap), 11)
    k.I("s_add_u32", s(sWb), s(sWb), s(st1))
    k.I("s_add_u32", s(smW), s(smZ), 16384)
    def issue(c):
        sl = (c % NS) * SLOT
        def zpart():
            for i in range(4):
                k.I("s_add_u32", s(soff), s(sZb), hex((4 * c + i) * 1024))
                k.I("s_add_u32", "m0", s(smZ), hex(sl + i * 1024))
                k.vm(("S", c), "buffer_load_dwordx4", v(v16), sr(sWS, 4), s(soff), mods="offen lds")
                if os.environ.get("DIAG5") and c == 0 and i in (0, 3):
                    k.I("s_waitcnt", "vmcnt(0)"); stp.tick(10 + (i > 0))
        def wpart():
            for i in range(4):
                k.I("s_add_u32", s(soff), s(sWb), hex(i * 8 * 4096 + c * 128))
                k.I("s_add_u32", "m0", s(smW), hex(sl + i * 1024))
                k.vm(("S", c), "buffer_load_dwordx4", v(vWo + (i & 1)), sr(sSp, 4), s(soff), mods="offen lds")
                if os.environ.get("DIAG5") and c == 0 and i in (0, 3):
                    k.I("s_waitcnt", "vmcnt(0)"); stp.tick(12 + (i > 0))
        if os.environ.get("DIAG5") == "2": wpart(); zpart()
        else: zpart(); wpart()
    NST = 16
    sZ1 = k.salloc()
    k.I("s_lshl_b32", s(st0), s(stt), 2)
    k.I("s_add_u32", s(st0), s(st0), s(sw3))
    k.I("s_mul_i32", s(sZ1), s(st0), 56 * 1024)
    k.I("s_lshl_b32", s(st1), s(sft), 13)
    k.I("s_add_u32", s(sZ1), s(sZ1), s(st1))
    k.I("s_add_u32", s(sZ1), s(sZ1), hex(Z1_OFF))
    smZ1 = k.salloc()
    k.I("s_lshl_b32", s(smZ1), s(sw3), 13)
    def issue_z1(i, tag):
        k.I("s_add_u32", s(soff), s(sZ1), hex(i * 1024))
        k.I("s_add_u32", "m0", s(smZ1), hex(Z1REG + i * 1024))
        k.vm(("S", tag), "buffer_load_dwordx4", v(v16), sr(sWS, 4), s(soff), mods="offen lds")
    LT = os.environ.get("TICKWAVE", "0") != "0"
    if LT: stp.tick(1)
    issue(0)
    if LT: stp.tick(2)
    issue(1)
    if LT: stp.tick(3)
    for c in range(NST):
        k.wait_vm(("S", c))
        if LT and c < 3: stp.tick(4 + 2 * c)
        k.I("s_barrier")
        if LT and c < 3: stp.tick(5 + 2 * c)
        if c == 0: issue(2); issue(3)
        elif c + 2 < NST and c >= 2:
            issue(c + 2)
            if 3 <= c < 11: issue_z1(c - 3, c + 2)
    srd(k, sWo, pWo, 896 * 896)
    vWd = k.valloc(); sWd = k.salloc(); smD = k.salloc()
    k.I("v_lshrrev_b32", v(t0), 3, v(lane))
    k.I("v_mul_u32_u24", v(t0), 896, v(t0))
    k.I("v_bfe_u32", v(t1), v(lane), 4, 1)
    k.I("v_lshlrev_b32", v(t1), 2, v(t1))
    k.I("v_and_b32", v(t2), 7, v(lane))
    k.I("v_xor_b32", v(t1), v(t1), v(t2))
    k.I("v_lshl_add_u32", v(vWd), v(t1), 4, v(t0))
    k.I("s_mul_i32", s(sWd), s(sw3), 224 * 896)
    k.I("s_lshl_b32", s(st1), s(sft), 7)
    k.I("s_add_u32", s(sWd), s(sWd), s(st1))
    k.I("s_mul_i32", s(smD), s(sw3), 224 * 128)
    k.I("s_barrier")
    for i in range(28):
        k.I("s_add_u32", s(soff), s(sWd), hex(i * 8 * 896))
        k.I("s_add_u32", "m0", s(smD), hex(i * 1024))
        k.I("buffer_load_dwordx4", v(vWd), sr(sWo, 4), s(soff), mods="offen lds")
    k.I("s_waitcnt", "vmcnt(0)")
    k.I("s_barrier")
    k.I("s_endpgm")
    k.L(comp)
    k.vnext = vsave; k.vmq = []; k.lgq = []
    srd(k, sB, pB, 4096)
    l31 = k.valloc(); hh = k.valloc()
    k.I("v_and_b32", v(l31), 31, v(lane))
    k.I("v_lshrrev_b32", v(hh), 5, v(lane))
    sfh = k.salloc(); sth = k.salloc(); sst = k.salloc(); sf32 = k.salloc()
    k.I("s_and_b32", s(sfh), s(swave), 1)
    k.I("s_lshr_b32", s(sth), s(swave), 1)
    k.I("s_lshl_b32", s(sst), s(stt), 2)
    k.I("s_lshl_b32", s(st0), s(sth), 1)
    k.I("s_add_u32", s(sst), s(sst), s(st0))
    k.I("s_lshl_b32", s(sf32), s(sft), 2)
    k.I("s_lshl_b32", s(st0), s(sfh), 1)
    k.I("s_add_u32", s(sf32), s(sf32), s(st0))
    if os.environ.get("PF3", "0") == "1":
        vT0 = k.valloc(); vd0 = k.valloc(2)
        k.I("s_lshl_b32", s(st0), s(sidx), 8)
        k.I("v_add_u32", v(vT0), s(st0), "v0")
        k.I("s_lshl_b32", s(st1), s(skap), 16)
        k.I("s_add_u32", s(st1), s(st1), hex(Z2_OFF))
        for i in range(2):
            k.I("v_add_u32", v(t0), 7168 * i, v(vT0))
            k.I("v_lshrrev_b32", v(t1), 9, v(t0))
            k.I("v_lshlrev_b32", v(t1), 17, v(t1))
            k.I("v_and_b32", v(t2), 511, v(t0))
            k.I("v_lshl_add_u32", v(t1), v(t2), 7, v(t1))
            k.vm("pf", "buffer_load_dword", v(vd0 + i), v(t1), sr(sWS, 4), s(st1), mods="offen")
    v16 = k.valloc()
    k.I("v_lshlrev_b32", v(v16), 4, v(lane))
    vB = k.vnext
    z1 = [[k.valloc(8, 4) for _ in range(2)] for _ in range(2)]
    rr = [k.valloc(2) for _ in range(2)]; bb = [k.valloc(2) for _ in range(2)]
    k.I("v_lshlrev_b32", v(t0), 2, v(l31))
    k.I("v_lshlrev_b32", v(t1), 1, v(l31))
    for ti in range(2):
        k.I("s_add_u32", s(st0), s(sst), ti)
        k.I("s_lshl_b32", s(soff), s(st0), 7)
        k.I("s_add_u32", s(soff), s(soff), hex(RH_OFF))
        k.vm("z1", "buffer_load_dword", v(rr[ti]), v(t0), sr(sWS, 4), s(soff), mods="offen")
        k.I("s_lshl_b32", s(soff), s(st0), 6)
        k.vm("z1", "buffer_load_ushort", v(bb[ti]), v(t1), sr(sB, 4), s(soff), mods="offen")
    if os.environ.get("PF2", "0") == "1":
        pp = k.salloc(2); sP = k.salloc(4); vT = k.valloc(); vd = k.valloc(2)
        k.I("s_load_dwordx2", sr(pp, 2), "s[0:1]", 56)
        k.I("s_lshl_b32", s(st0), s(sidx), 8)
        k.I("v_add_u32", v(vT), s(st0), "v0")
        k.I("v_lshlrev_b32", v(vT), 7, v(vT))
        k.I("s_waitcnt", "lgkmcnt(0)")
        srd(k, sP, pp, 896 * 896)
        k.vm("pf", "buffer_load_dword", v(vd), v(vT), sr(sP, 4), 0, mods="offen")
    stp.stamp(0)
    aZ = k.valloc(); aW = k.valloc(4)
    k.I("s_lshl_b32", s(st0), s(sfh), 13)
    k.I("v_add_u32", v(aZ), s(st0), v(v16))
    k.I("v_bfe_u32", v(t0), v(l31), 1, 3)
    for j in range(4):
        k.I("v_add_u32", v(t1), 2 * j, v(hh))
        k.I("v_xor_b32", v(t1), v(t1), v(t0))
        k.I("v_lshlrev_b32", v(t1), 4, v(t1))
        k.I("v_lshl_add_u32", v(aW + j), v(l31), 7, v(t1))
        k.I("s_lshl_b32", s(st0), s(sth), 13)
        k.I("s_add_u32", s(st0), s(st0), 16384)
        k.I("v_add_u32", v(aW + j), s(st0), v(aW + j))
    aZ2 = k.valloc(); aW2 = k.valloc(4)
    k.I("v_add_u32", v(aZ2), 65536, v(aZ))
    for j in range(4): k.I("v_add_u32", v(aW2 + j), 65536, v(aW + j))
    acc = [[k.valloc(16, 4) for _ in range(2)] for _ in range(2)]
    NB = 3
    zf = [[k.valloc(4) for _ in range(2)] for _ in range(NB)]
    wf = [[k.valloc(4) for _ in range(2)] for _ in range(NB)]
    def rl(ks):
        c, j = ks // 4, ks % 4
        b = ks % NB
        sl = (c % NS) * SLOT
        hi = sl >= 65536
        so = sl - (65536 if hi else 0)
        out = []
        for fi in range(2):
            out.append(lambda fi=fi: k.lg(("f", ks), "ds_read_b128", vr(zf[b][fi], 4), v(aZ2 if hi else aZ), mods=f"offset:{so + fi * 4096 + j * 1024}"))
        for ti in range(2):
            out.append(lambda ti=ti: k.lg(("f", ks), "ds_read_b128", vr(wf[b][ti], 4), v((aW2 if hi else aW) + j), mods=f"offset:{so + ti * 4096}"))
        return out
    k.I("s_barrier")
    if not os.environ.get("DIAG56"): stp.stamp(1)
    for f in rl(0) + rl(1): f()
    NKS = NST * 4
    for ks in range(NKS):
        c, j = ks // 4, ks % 4
        b = ks % NB
        k.wait_lg(("f", ks))
        mf = []
        for fi in range(2):
            for ti in range(2):
                mf.append(lambda fi=fi, ti=ti: k.I("v_mfma_f32_32x32x16_bf16", vr(acc[fi][ti], 16), vr(zf[b][fi], 4), vr(wf[b][ti], 4), 0 if ks == 0 else vr(acc[fi][ti], 16)))
        fl = rl(ks + 2) if ks + 2 < NKS else []
        if j == 2 and ks + 2 < NKS:
            k.I("s_barrier")
        interleave(k, mf, fl)
    k.I("s_barrier")
    if not os.environ.get("DIAG56"): stp.stamp(2)
    vz = k.valloc()
    k.I("s_lshl_b32", s(st0), s(sth), 14)
    k.I("s_lshl_b32", s(st1), s(sfh), 12)
    k.I("s_add_u32", s(st0), s(st0), s(st1))
    k.I("s_add_u32", s(st0), s(st0), Z1REG)
    k.I("v_add_u32", v(vz), s(st0), v(v16))
    for ti in range(2):
        for fi in range(2):
            for hf_ in range(2):
                k.lg(("z1", ti, fi), "ds_read_b128", vr(z1[fi][ti] + 4 * hf_, 4), v(vz), mods=f"offset:{ti * 8192 + fi * 2048 + hf_ * 1024}")
    k.wait_vm("z1")
    for ti in range(2):
        k.I("v_lshlrev_b32", v(bb[ti]), 16, v(bb[ti]))
        k.I("v_mul_f32", v(bb[ti]), v(bb[ti]), v(rr[ti]))
    k.I("s_cmp_eq_u32", s(skap), 0)
    k.I("s_cselect_b32", s(st0), "1.0", 0)
    for ti in range(2): k.I("v_mul_f32", v(bb[ti]), s(st0), v(bb[ti]))
    tp = [k.valloc(2) for _ in range(4)]
    P = [k.valloc(8, 4) for _ in range(2)]
    sU = k.salloc()
    k.I("s_mul_i32", s(sU), s(skap), U1_OFF - U0_OFF)
    k.I("s_add_u32", s(sU), s(sU), hex(U0_OFF))
    n = 0
    for ti in range(2):
        for fi in range(2):
            A = acc[fi][ti]; Zp = z1[fi][ti]; PP = P[n & 1]; n += 1
            for j in range(8):
                k.I("v_pk_fma_f32", vr(A + 2 * j, 2), vr(A + 2 * j, 2), vr(rr[ti], 2), vr(bb[ti], 2), mods="op_sel_hi:[1,0,0]")
            k.wait_lg(("z1", ti, fi))
            for j in range(8):
                T = tp[j % 4]
                k.I("v_lshlrev_b32", v(T), 16, v(Zp + j))
                k.I("v_and_b32", v(T + 1), "0xffff0000", v(Zp + j))
                k.I("v_pk_mul_f32", vr(A + 2 * j, 2), vr(A + 2 * j, 2), vr(T, 2))
            for j in range(8): k.I("v_cvt_pk_bf16_f32", v(PP + j), v(A + 2 * j), v(A + 2 * j + 1))
            k.I("s_add_u32", s(st0), s(sst), ti)
            k.I("s_mul_i32", s(soff), s(st0), 56 * 1024)
            k.I("s_add_u32", s(st0), s(sf32), fi)
            k.I("s_lshl_b32", s(st0), s(st0), 11)
            k.I("s_add_u32", s(soff), s(soff), s(st0))
            k.I("s_add_u32", s(soff), s(soff), s(sU))
            k.I("buffer_store_dwordx4", vr(PP, 4), v(v16), sr(sWS, 4), s(soff), mods="offen")
            k.I("buffer_store_dwordx4", vr(PP + 4, 4), v(v16), sr(sWS, 4), s(soff), mods="offen offset:1024")
    stp.stamp(3)
    k.vnext = vB
    srd(k, sOut, pOD, 2048 * 896)
    srd(k, sD, pOD + 2, 256)
    srh = k.salloc(); skh = k.salloc(); sstB = k.salloc()
    k.I("s_and_b32", s(srh), s(swave), 1)
    k.I("s_lshr_b32", s(skh), s(swave), 1)
    k.I("s_lshl_b32", s(sstB), s(stt), 2)
    k.I("s_lshl_b32", s(st0), s(skap), 1)
    k.I("s_add_u32", s(sstB), s(sstB), s(st0))
    k.I("s_add_u32", s(sstB), s(sstB), s(srh))
    hr = k.valloc(8, 4)
    k.I("s_mul_i32", s(soff), s(sstB), 28 * 1024)
    k.I("s_lshl_b32", s(st0), s(sft), 1)
    k.I("s_add_u32", s(st0), s(st0), s(skh))
    sntile = k.salloc()
    k.I("s_mov_b32", s(sntile), s(st0))
    k.I("s_lshl_b32", s(st0), s(st0), 11)
    k.I("s_add_u32", s(soff), s(soff), s(st0))
    k.I("s_add_u32", s(soff), s(soff), hex(H_OFF))
    k.I("s_waitcnt", "vmcnt(0)")
    k.vmq = []
    fl = k.valloc(2); vz0 = k.valloc(); one = k.valloc()
    k.I("s_mul_i32", s(st0), s(skap), 7)
    k.I("s_add_u32", s(st0), s(st0), s(sft))
    k.I("s_lshl_b32", s(st0), s(st0), 2)
    k.I("s_add_u32", s(st0), s(st0), s(swave))
    k.I("s_lshl_b32", s(st0), s(st0), 2)
    k.I("s_lshl_b32", s(st1), s(stt), 8)
    sFL = k.salloc()
    k.I("s_add_u32", s(sFL), s(st1), hex(FL_OFF))
    k.I("s_add_u32", s(st0), s(st0), s(sFL))
    k.I("v_mov_b32", v(vz0), 0)
    k.I("v_mov_b32", v(one), 1)
    k.I("s_mov_b64", "exec", 1)
    k.I("buffer_store_dword", v(one), v(vz0), sr(sWS, 4), s(st0), mods="offen sc0 sc1")
    k.I("s_mov_b64", "exec", -1)
    k.I("buffer_load_dwordx4", vr(hr, 4), v(v16), sr(sWS, 4), s(soff), mods="offen")
    k.I("buffer_load_dwordx4", vr(hr + 4, 4), v(v16), sr(sWS, 4), s(soff), mods="offen offset:1024")
    k.I("v_min_u32", v(vz0), 55, v(lane))
    k.I("v_lshlrev_b32", v(vz0), 2, v(vz0))
    vWb = [k.valloc(), k.valloc()]
    k.I("v_bfe_u32", v(t0), v(lane), 2, 2)
    k.I("v_lshl_add_u32", v(t0), v(hh), 2, v(t0))
    k.I("s_mul_i32", s(st0), s(skh), 448)
    k.I("v_add_u32", v(t0), s(st0), v(t0))
    k.I("v_lshlrev_b32", v(t0), 7, v(t0))
    k.I("v_bfe_u32", v(t1), v(lane), 4, 1)
    k.I("v_lshlrev_b32", v(t1), 1, v(t1))
    k.I("v_bfe_u32", v(t2), v(lane), 1, 1)
    k.I("v_add_u32", v(t1), v(t1), v(t2))
    k.I("v_bfe_u32", v(t2), v(lane), 3, 1)
    k.I("v_lshlrev_b32", v(t2), 2, v(t2))
    for n2 in range(2):
        k.I("v_add_u32", v(vWb[n2]), 4 * n2, v(t1))
        k.I("v_xor_b32", v(vWb[n2]), v(vWb[n2]), v(t2))
        k.I("v_lshl_add_u32", v(vWb[n2]), v(vWb[n2]), 4, v(t0))
    k.I("v_and_b32", v(t1), 1, v(lane))
    for n2 in range(2): k.I("v_lshl_add_u32", v(vWb[n2]), v(t1), 3, v(vWb[n2]))
    sU0 = k.salloc(); sU1 = k.salloc()
    k.I("s_mul_i32", s(sU0), s(sstB), 56 * 1024)
    k.I("s_mul_i32", s(st0), s(skh), 28 * 1024)
    k.I("s_add_u32", s(sU0), s(sU0), s(st0))
    k.I("s_add_u32", s(sU1), s(sU0), hex(U1_OFF))
    k.I("s_add_u32", s(sU0), s(sU0), hex(U0_OFF))
    accB = [k.valloc(16, 4) for _ in range(2)]
    NU = 12
    uf = [[k.valloc(4) for _ in range(2)] for _ in range(NU)]
    NBW = 3
    wfB = [[k.valloc(4) for _ in range(2)] for _ in range(NBW)]
    scount = k.salloc()
    k.I("s_mov_b32", s(scount), 0)
    poll = k.newlabel("poll"); pdone = k.newlabel("pdone")
    k.L(poll)
    k.I("buffer_load_dword", v(fl), v(vz0), sr(sWS, 4), s(sFL), mods="offen sc0 sc1")
    k.I("s_waitcnt", "vmcnt(0)")
    k.I("v_cmp_ne_u32", "vcc", 1, v(fl))
    k.I("s_add_u32", s(scount), s(scount), 1)
    k.I("s_cmp_eq_u64", "vcc", 0)
    k.I("s_cbranch_scc1", pdone)
    k.I("s_cmp_lt_u32", s(scount), 0x100000)
    k.I("s_cbranch_scc0", pdone)
    k.I("s_sleep", 1)
    k.I("s_branch", poll)
    k.L(pdone)
    k.vmq = []
    stp.stamp(4)
    def uload(j):
        for ar_, sU in enumerate((sU0, sU1)):
            k.I("s_add_u32", s(soff), s(sU), hex(j * 1024))
            k.vm(("u", j), "buffer_load_dwordx4", vr(uf[j % NU][ar_], 4), v(v16), sr(sWS, 4), s(soff), mods="offen sc1")
    def wread(j):
        out = []
        for n2 in range(2):
            for beta in range(2):
                out.append(lambda n2=n2, beta=beta: k.lg(("w", j), "ds_read_b64_tr_b16", vr(wfB[j % NBW][n2] + 2 * beta, 2), v(vWb[n2]), mods=f"offset:{(16 * j + 8 * beta) * 128}"))
        return out
    for j in range(NU): uload(j)
    k.I("s_barrier")
    for f in wread(0) + wread(1): f()
    for j in range(28):
        k.wait_vm(("u", j))
        k.wait_lg(("w", j))
        mf = []
        for ar_ in range(2):
            for n2 in range(2):
                mf.append(lambda ar_=ar_, n2=n2: k.I("v_mfma_f32_32x32x16_bf16", vr(accB[n2], 16), vr(wfB[j % NBW][n2], 4), vr(uf[j % NU][ar_], 4), 0 if (j == 0 and ar_ == 0) else vr(accB[n2], 16)))
        fl_ = wread(j + 2) if j + 2 < 28 else []
        interleave(k, mf, fl_)
        if j + NU < 28: uload(j + NU)
    stp.stamp(5)
    RED = 114688
    vr1 = k.valloc(); vr2 = k.valloc()
    k.I("s_lshl_b32", s(st0), s(srh), 13)
    k.I("s_add_u32", s(st0), s(st0), RED)
    k.I("v_add_u32", v(vr1), s(st0), v(v16))
    k.I("s_lshl_b32", s(st1), s(skh), 12)
    k.I("v_add_u32", v(vr2), s(st1), v(vr1))
    k.I("s_xor_b32", s(st1), s(st1), 4096)
    k.I("v_add_u32", v(vr1), s(st1), v(vr1))
    keep = k.valloc(16, 4)
    lab_a = k.newlabel("kh1"); lab_b = k.newlabel("khj")
    k.I("s_cmp_lg_u32", s(skh), 0)
    k.I("s_cbranch_scc1", lab_a)
    for q in range(4): k.I("ds_write_b128", v(vr1), vr(accB[1] + 4 * q, 4), mods=f"offset:{q * 1024}")
    for i in range(16): k.I("v_mov_b32", v(keep + i), v(accB[0] + i))
    k.I("s_branch", lab_b)
    k.L(lab_a)
    for q in range(4): k.I("ds_write_b128", v(vr1), vr(accB[0] + 4 * q, 4), mods=f"offset:{q * 1024}")
    for i in range(16): k.I("v_mov_b32", v(keep + i), v(accB[1] + i))
    k.L(lab_b)
    k.I("s_waitcnt", "lgkmcnt(0)")
    k.lgq = []
    k.I("s_barrier")
    oth = k.valloc(16, 4)
    for q in range(4): k.I("ds_read_b128", vr(oth + 4 * q, 4), v(vr2), mods=f"offset:{q * 1024}")
    tpB = [k.valloc(2) for _ in range(4)]
    for j in range(8):
        T = tpB[j % 4]
        k.I("v_lshlrev_b32", v(T), 16, v(hr + j))
        k.I("v_and_b32", v(T + 1), "0xffff0000", v(hr + j))
        k.I("v_pk_add_f32", vr(keep + 2 * j, 2), vr(keep + 2 * j, 2), vr(T, 2))
    k.I("s_waitcnt", "lgkmcnt(0)")
    for j in range(8): k.I("v_pk_add_f32", vr(keep + 2 * j, 2), vr(keep + 2 * j, 2), vr(oth + 2 * j, 2))
    PB = k.valloc(8, 4)
    for j in range(8): k.I("v_cvt_pk_bf16_f32", v(PB + j), v(keep + 2 * j), v(keep + 2 * j + 1))
    for kp in range(2):
        k.I("v_permlane32_swap_b32", v(PB + 4 * kp), v(PB + 4 * kp + 2))
        k.I("v_permlane32_swap_b32", v(PB + 4 * kp + 1), v(PB + 4 * kp + 3))
    vo = k.valloc()
    k.I("v_mul_u32_u24", v(vo), 896, v(l31))
    k.I("v_lshl_add_u32", v(vo), v(hh), 4, v(vo))
    k.I("s_mul_i32", s(soff), s(sstB), 32 * 896)
    k.I("s_lshl_b32", s(st0), s(sntile), 6)
    k.I("s_add_u32", s(soff), s(soff), s(st0))
    for kp in range(2):
        k.I("buffer_store_dwordx4", vr(PB + 4 * kp, 4), v(vo), sr(sOut, 4), s(soff), mods=f"offen offset:{32 * kp}")
    stp.stamp(6)
    k.I("s_endpgm")
    k.L(pfrole)
    vT2 = k.valloc()
    k.I("s_sub_u32", s(st0), s(sidx), 28)
    k.I("s_lshl_b32", s(st0), s(st0), 9)
    k.I("v_add_u32", v(vT2), s(st0), "v0")
    k.I("v_lshlrev_b32", v(vT2), 7, v(vT2))
    l2_prefetch(k, 56, 896 * 896, vT2, 2048, st0)
    k.L(R["done"])
    k.I("s_endpgm")
    k.lds = lds; k.threads = 512; k.grid = 256
    return k

def gen_k6(Stamper):
    k = Kernel("k6_wout_kernel")
    NS = 5; SLOT = 24576
    RED = 0
    lds = NS * SLOT
    R = common_start(k, 224)
    swave, st0, st1, soff, lane, t0, t1, t2 = (R[x] for x in ("swave", "st0", "st1", "soff", "lane", "t0", "t1", "t2"))
    pWo = k.salloc(2); pOut = k.salloc(2); pWS = k.salloc(2)
    k.I("s_load_dwordx2", sr(pWo, 2), "s[0:1]", 56)
    k.I("s_load_dwordx2", sr(pOut, 2), "s[0:1]", 64)
    k.I("s_load_dwordx2", sr(pWS, 2), "s[0:1]", 80)
    sWS = k.salloc(4); sWo = k.salloc(4); sOut = k.salloc(4)
    sj = k.salloc(); sidx = k.salloc(); srt = k.salloc(); snt = k.salloc(); sw3 = k.salloc()
    k.I("s_and_b32", s(sj), "s2", 7)
    k.I("s_lshr_b32", s(sidx), "s2", 3)
    k.I("s_and_b32", s(sw3), s(swave), 3)
    k.I("s_mul_i32", s(st0), s(sidx), 37)
    k.I("s_lshr_b32", s(st0), s(st0), 8)
    k.I("s_mul_i32", s(st1), s(st0), 7)
    k.I("s_sub_u32", s(snt), s(sidx), s(st1))
    k.I("s_lshl_b32", s(srt), s(sj), 2)
    k.I("s_add_u32", s(srt), s(srt), s(st0))
    stp = Stamper(k, 5, sWS, swave)
    k.I("s_waitcnt", "lgkmcnt(0)")
    srd(k, sWS, pWS, WS_SIZE)
    comp = k.newlabel("compute")
    k.I("s_cmp_lt_u32", s(swave), 4)
    k.I("s_cbranch_scc1", comp)
    vsave = k.vnext
    srd(k, sWo, pWo, 896 * 896)
    v16 = k.valloc(); vWo = k.valloc()
    k.I("v_lshlrev_b32", v(v16), 4, v(lane))
    k.I("v_lshrrev_b32", v(t0), 3, v(lane))
    k.I("v_mul_u32_u24", v(t0), 896, v(t0))
    k.I("v_bfe_u32", v(t1), v(lane), 4, 1)
    k.I("v_lshlrev_b32", v(t1), 2, v(t1))
    k.I("v_and_b32", v(t2), 7, v(lane))
    k.I("v_xor_b32", v(t1), v(t1), v(t2))
    k.I("v_lshl_add_u32", v(vWo), v(t1), 4, v(t0))
    sUb = k.salloc(); sWb = k.salloc(); smU = k.salloc(); smW = k.salloc()
    k.I("s_lshr_b32", s(st0), s(sw3), 1)
    k.I("s_lshl_b32", s(st1), s(srt), 1)
    k.I("s_add_u32", s(st1), s(st1), s(st0))
    k.I("s_mul_i32", s(sUb), s(st1), 56 * 1024)
    k.I("s_and_b32", s(st1), s(sw3), 1)
    k.I("s_mul_i32", s(smU), s(st1), U1_OFF - U0_OFF)
    k.I("s_add_u32", s(sUb), s(sUb), s(smU))
    k.I("s_add_u32", s(sUb), s(sUb), hex(U0_OFF))
    k.I("s_lshl_b32", s(smU), s(st1), 13)
    k.I("s_lshl_b32", s(st0), s(st0), 12)
    k.I("s_add_u32", s(smU), s(smU), s(st0))
    k.I("s_mul_i32", s(sWb), s(sw3), 16 * 896)
    k.I("s_lshl_b32", s(st1), s(snt), 7)
    k.I("s_add_u32", s(sWb), s(sWb), s(st1))
    k.I("s_lshl_b32", s(smW), s(sw3), 11)
    k.I("s_add_u32", s(smW), s(smW), 16384)
    def issue(c):
        sl = (c % NS) * SLOT
        for i in range(4):
            k.I("s_add_u32", s(soff), s(sUb), hex((4 * c + i) * 1024))
            k.I("s_add_u32", "m0", s(smU), hex(sl + i * 1024))
            k.vm(("S", c), "buffer_load_dwordx4", v(v16), sr(sWS, 4), s(soff), mods="offen lds")
        for i in range(2):
            k.I("s_add_u32", s(soff), s(sWb), hex((64 * c + 8 * i) * 896))
            k.I("s_add_u32", "m0", s(smW), hex(sl + i * 1024))
            k.vm(("S", c), "buffer_load_dwordx4", v(vWo), sr(sWo, 4), s(soff), mods="offen lds")
    NST = 14
    for c in range(3): issue(c)
    for c in range(NST):
        k.wait_vm(("S", c))
        k.I("s_barrier")
        if c == 0: issue(3); issue(4)
        elif c + 3 < NST and c >= 2: issue(c + 3)
    k.I("s_endpgm")
    k.L(comp)
    k.vnext = vsave; k.vmq = []; k.lgq = []
    srd(k, sOut, pOut, 2048 * 896)
    l31 = k.valloc(); hh = k.valloc()
    k.I("v_and_b32", v(l31), 31, v(lane))
    k.I("v_lshrrev_b32", v(hh), 5, v(lane))
    srh = k.salloc(); snh = k.salloc(); sst = k.salloc(); sntile = k.salloc()
    k.I("s_and_b32", s(srh), s(swave), 1)
    k.I("s_lshr_b32", s(snh), s(swave), 1)
    k.I("s_lshl_b32", s(sst), s(srt), 1)
    k.I("s_add_u32", s(sst), s(sst), s(srh))
    k.I("s_lshl_b32", s(sntile), s(snt), 1)
    k.I("s_add_u32", s(sntile), s(sntile), s(snh))
    if os.environ.get("PF3", "0") == "1":
        vT0 = k.valloc(); vd0 = k.valloc(2)
        k.I("s_lshl_b32", s(st0), s(sidx), 8)
        k.I("v_add_u32", v(vT0), s(st0), "v0")
        k.I("v_mov_b32", v(t0), hex(U1_OFF - U0_OFF - 3584 * 128))
        k.I("v_cmp_le_u32", "vcc", 3584, v(vT0))
        k.I("v_cndmask_b32", v(t0), 0, v(t0), "vcc")
        k.I("v_lshl_add_u32", v(t0), v(vT0), 7, v(t0))
        k.I("s_mul_i32", s(st1), s(sj), 8 * 56 * 1024)
        k.I("s_add_u32", s(st1), s(st1), hex(U0_OFF))
        k.vm("pf", "buffer_load_dword", v(vd0), v(t0), sr(sWS, 4), s(st1), mods="offen")
    v16 = k.valloc()
    k.I("v_lshlrev_b32", v(v16), 4, v(lane))
    hr = k.valloc(8, 4)
    k.I("s_mul_i32", s(soff), s(sst), 28 * 1024)
    k.I("s_lshl_b32", s(st0), s(sntile), 11)
    k.I("s_add_u32", s(soff), s(soff), s(st0))
    k.I("s_add_u32", s(soff), s(soff), hex(H_OFF))
    k.vm("h", "buffer_load_dwordx4", vr(hr, 4), v(v16), sr(sWS, 4), s(soff), mods="offen")
    k.vm("h", "buffer_load_dwordx4", vr(hr + 4, 4), v(v16), sr(sWS, 4), s(soff), mods="offen offset:1024")
    stp.stamp(0)
    aU = k.valloc(); vW = k.valloc()
    k.I("s_lshl_b32", s(st0), s(srh), 12)
    k.I("v_add_u32", v(aU), s(st0), v(v16))
    k.I("v_bfe_u32", v(t0), v(lane), 2, 2)
    k.I("v_lshl_add_u32", v(t0), v(hh), 2, v(t0))
    k.I("v_lshlrev_b32", v(vW), 7, v(t0))
    k.I("v_add_u32", v(vW), 16384, v(vW))
    k.I("v_bfe_u32", v(t0), v(lane), 4, 1)
    k.I("v_lshlrev_b32", v(t0), 1, v(t0))
    k.I("v_bfe_u32", v(t1), v(lane), 1, 1)
    k.I("v_add_u32", v(t0), v(t0), v(t1))
    k.I("s_lshl_b32", s(st0), s(snh), 2)
    k.I("v_add_u32", v(t0), s(st0), v(t0))
    k.I("v_bfe_u32", v(t1), v(lane), 3, 1)
    k.I("v_lshlrev_b32", v(t1), 2, v(t1))
    k.I("v_xor_b32", v(t0), v(t0), v(t1))
    k.I("v_lshl_add_u32", v(vW), v(t0), 4, v(vW))
    k.I("v_and_b32", v(t0), 1, v(lane))
    k.I("v_lshl_add_u32", v(vW), v(t0), 3, v(vW))
    aU2 = k.valloc(); vW2 = k.valloc()
    k.I("v_add_u32", v(aU2), 3 * SLOT, v(aU))
    k.I("v_add_u32", v(vW2), 3 * SLOT, v(vW))
    acc = k.valloc(16, 4)
    NB = 3
    uf = [[k.valloc(4) for _ in range(2)] for _ in range(NB)]; wf = [k.valloc(4) for _ in range(NB)]
    def rl(ks):
        c, j = ks // 4, ks % 4
        b = ks % NB
        sl = (c % NS)
        hi = sl >= 3
        so = (sl - (3 if hi else 0)) * SLOT
        out = []
        for ar_ in range(2):
            out.append(lambda ar_=ar_: k.lg(("f", ks), "ds_read_b128", vr(uf[b][ar_], 4), v(aU2 if hi else aU), mods=f"offset:{so + ar_ * 8192 + j * 1024}"))
        for beta in range(2):
            o = so + (16 * j + 8 * beta) * 128
            out.append(lambda o=o, beta=beta: k.lg(("f", ks), "ds_read_b64_tr_b16", vr(wf[b] + 2 * beta, 2), v(vW2 if hi else vW), mods=f"offset:{o}"))
        return out
    k.I("s_barrier")
    stp.stamp(1)
    for f in rl(0) + rl(1): f()
    NKS = NST * 4
    for ks in range(NKS):
        c, j = ks // 4, ks % 4
        b = ks % NB
        k.wait_lg(("f", ks))
        mf = [lambda ar_=ar_: k.I("v_mfma_f32_32x32x16_bf16", vr(acc, 16), vr(wf[b], 4), vr(uf[b][ar_], 4), 0 if (ks == 0 and ar_ == 0) else vr(acc, 16)) for ar_ in range(2)]
        fl = rl(ks + 2) if ks + 2 < NKS else []
        if j == 2 and ks + 2 < NKS: k.I("s_barrier")
        interleave(k, mf, fl)
    stp.stamp(2)
    k.wait_vm("h")
    tp = [k.valloc(2) for _ in range(4)]
    for j in range(8):
        T = tp[j % 4]
        k.I("v_lshlrev_b32", v(T), 16, v(hr + j))
        k.I("v_and_b32", v(T + 1), "0xffff0000", v(hr + j))
        k.I("v_pk_add_f32", vr(acc + 2 * j, 2), vr(acc + 2 * j, 2), vr(T, 2))
    P = k.valloc(8, 4)
    for j in range(8): k.I("v_cvt_pk_bf16_f32", v(P + j), v(acc + 2 * j), v(acc + 2 * j + 1))
    for kp in range(2):
        k.I("v_permlane32_swap_b32", v(P + 4 * kp), v(P + 4 * kp + 2))
        k.I("v_permlane32_swap_b32", v(P + 4 * kp + 1), v(P + 4 * kp + 3))
    vo = k.valloc()
    k.I("v_mul_u32_u24", v(vo), 896, v(l31))
    k.I("v_lshl_add_u32", v(vo), v(hh), 4, v(vo))
    k.I("s_mul_i32", s(soff), s(sst), 32 * 896)
    k.I("s_lshl_b32", s(st0), s(sntile), 6)
    k.I("s_add_u32", s(soff), s(soff), s(st0))
    for kp in range(2):
        k.I("buffer_store_dwordx4", vr(P + 4 * kp, 4), v(vo), sr(sOut, 4), s(soff), mods=f"offen offset:{32 * kp}")
    stp.stamp(3)
    if os.environ.get("SPIN"):
        ka, ja, kb, jb = [int(x) for x in os.environ["SPIN"].split(",")]
        sa_ = k.salloc(2); sb_ = k.salloc(2); sn_ = k.salloc(2); sq_ = k.salloc(2)
        lab = k.newlabel("spin"); out_ = k.newlabel("spun")
        k.I("s_or_b32", s(st0), "s2", s(swave))
        k.I("s_cmp_lg_u32", s(st0), 0)
        k.I("s_cbranch_scc1", out_)
        k.I("s_mov_b32", s(st0), hex(STAMP_OFF + ka * 256 * 64 + ja * 8))
        k.I("s_load_dwordx2", sr(sa_, 2), sr(pWS, 2), s(st0))
        k.I("s_mov_b32", s(st1), hex(STAMP_OFF + max(kb, 0) * 256 * 64 + jb * 8))
        if kb >= 0: k.I("s_load_dwordx2", sr(sb_, 2), sr(pWS, 2), s(st1))
        else: k.I("s_memrealtime", sr(sb_, 2))
        k.I("s_memrealtime", sr(sn_, 2))
        k.I("s_waitcnt", "lgkmcnt(0)")
        k.I("s_sub_u32", s(sa_), s(sb_), s(sa_))
        k.I("s_min_u32", s(sa_), s(sa_), 20000)
        k.I("s_add_u32", s(sn_), s(sn_), s(sa_))
        k.L(lab)
        k.I("s_memrealtime", sr(sq_, 2))
        k.I("s_waitcnt", "lgkmcnt(0)")
        k.I("s_sub_u32", s(sq_), s(sq_), s(sn_))
        k.I("s_cmp_lt_i32", s(sq_), 0)
        k.I("s_cbranch_scc1", lab)
        k.L(out_)
    k.L(R["done"])
    k.I("s_endpgm")
    k.lds = lds; k.threads = 512; k.grid = 224
    return k

def rest(Stamper):
    if os.environ.get("MERGE56", "0") == "1":
        return [gen_k2(Stamper), gen_k3(Stamper), gen_k4(Stamper), gen_k56(Stamper)]
    return [gen_k2(Stamper), gen_k3(Stamper), (gen_k4b if os.environ.get('K4B', '1') == '1' else gen_k4)(Stamper), gen_k5(Stamper), gen_k6(Stamper)]
```

```python
import os, struct, math
from asmlib import *
from layout import *
WS_SIZE = 0x10000000
def f32(x): return struct.unpack("<I", struct.pack("<f", x))[0]

def srd(k, dst, base, size):
    k.I("s_mov_b32", s(dst), s(base))
    k.I("s_and_b32", s(dst + 1), s(base + 1), "0xffff")
    k.I("s_mov_b32", s(dst + 2), hex(size) if isinstance(size, int) else size)
    k.I("s_mov_b32", s(dst + 3), "0x20000")

def gen_k2(Stamper):
    k = Kernel("k2_attn_kernel")
    k.snext = 4; k.vnext = 1
    KREG = 0; VREG = 24576
    lds = 49152
    done = k.newlabel("done")
    k.I("s_cmp_ge_u32", "s2", 256)
    k.I("s_cbranch_scc1", done)
    pWS = k.salloc(2); pPo = k.salloc(2); pPi = k.salloc(2)
    k.I("s_load_dwordx2", sr(pWS, 2), "s[0:1]", 80)
    k.I("s_load_dwordx2", sr(pPo, 2), "s[0:1]", 16)
    k.I("s_load_dwordx2", sr(pPi, 2), "s[0:1]", 32)
    sWS = k.salloc(4); sPo = k.salloc(4); sPi = k.salloc(4)
    swave = k.salloc(); srb = k.salloc(); shd = k.salloc(); st0 = k.salloc(); st1 = k.salloc(); soff = k.salloc()
    lane = k.valloc(); t0 = k.valloc(); t1 = k.valloc(); l15 = k.valloc(); gg = k.valloc()
    k.I("v_lshrrev_b32", v(t0), 6, "v0")
    k.I("v_and_b32", v(lane), 63, "v0")
    k.I("v_readfirstlane_b32", s(swave), v(t0))
    map_rb_hd(k, srb, shd, st0, st1)
    stp = Stamper(k, 1, sWS, swave)
    v16 = k.valloc()
    k.I("v_lshlrev_b32", v(v16), 4, v(lane))
    sb = k.salloc(); sm = k.salloc(); s16q = k.salloc()
    k.I("s_lshl_b32", s(sb), s(shd), 17)
    k.I("s_lshl_b32", s(st0), s(srb), 13)
    k.I("s_add_u32", s(sb), s(sb), s(st0))
    k.I("s_mul_i32", s(sm), s(swave), 3072)
    k.I("s_lshl_b32", s(s16q), s(srb), 3)
    k.I("s_add_u32", s(s16q), s(s16q), s(swave))
    k.I("s_waitcnt", "lgkmcnt(0)")
    srd(k, sWS, pWS, WS_SIZE)
    srd(k, sPo, pPo, 448 * 896)
    srd(k, sPi, pPi, 448 * 3584)
    qf = k.valloc(4)
    k.I("s_lshl_b32", s(st0), s(swave), 10)
    k.I("s_add_u32", s(st0), s(st0), s(sb))
    k.I("s_add_u32", s(soff), s(st0), hex(Q_OFF))
    k.vm("q", "buffer_load_dwordx4", vr(qf, 4), v(v16), sr(sWS, 4), s(soff), mods="offen")
    k.I("s_add_u32", s(st1), s(sb), s(sm))
    for (reg, off) in ((KREG, K_OFF), (VREG, V_OFF)):
        for i in range(3):
            k.I("s_add_u32", s(soff), s(st1), hex(off - 16384 + i * 1024))
            k.I("s_add_u32", "m0", s(sm), hex(reg + i * 1024))
            k.vm("kv", "buffer_load_dwordx4", v(v16), sr(sWS, 4), s(soff), mods="offen lds")
    sidx2 = k.salloc()
    k.I("s_lshr_b32", s(sidx2), "s2", 3)
    code_prefetch(k, "k3_wo_kernel", sidx2, st0)
    stp.stamp(0)
    k.I("v_and_b32", v(l15), 15, v(lane))
    k.I("v_lshrrev_b32", v(gg), 4, v(lane))
    M = [k.salloc(2) for _ in range(4)]
    k.I("v_lshlrev_b32", v(t0), 2, v(gg))
    for i in range(4):
        k.I("v_add_u32", v(t1), i, v(t0))
        k.I("v_cmp_gt_u32", sr(M[i], 2), v(t1), v(l15))
    aK = k.valloc(); aV = k.valloc()
    k.I("s_lshl_b32", s(st0), s(swave), 10)
    k.I("v_add_u32", v(aK), s(st0), v(v16))
    k.I("v_lshlrev_b32", v(aV), 3, v(lane))
    k.I("s_add_u32", s(st0), s(st0), VREG)
    k.I("v_add_u32", v(aV), s(st0), v(aV))
    S = k.valloc(68, 4)
    kf = [k.valloc(4) for _ in range(6)]
    neg = k.valloc()
    k.I("v_mov_b32", v(neg), hex(f32(-1e30)))
    k.wait_vm(["q", "kv"])
    k.I("s_barrier")
    stp.stamp(1)
    NKF = 6
    for j in range(min(NKF, 17)):
        k.lg(("k", j), "ds_read_b128", vr(kf[j % NKF], 4), v(aK), mods=f"offset:{j * 1024}")
    for j in range(17):
        k.wait_lg(("k", j))
        k.I("v_mfma_f32_16x16x32_bf16", vr(S + 4 * j, 4), vr(kf[j % NKF], 4), vr(qf, 4), 0)
        if j + NKF < 17:
            k.lg(("k", j + NKF), "ds_read_b128", vr(kf[j % NKF], 4), v(aK), mods=f"offset:{(j + NKF) * 1024}")
    if os.environ.get("PFK2", "1") == "1":
        vd2 = k.valloc(2)
        k.I("s_lshl_b32", s(st0), s(sidx2), 3)
        k.I("s_add_u32", s(st0), s(st0), s(swave))
        k.I("s_mul_i32", s(st1), s(st0), 13 * 128)
        k.I("v_lshlrev_b32", v(t0), 7, v(lane))
        k.I("v_mov_b32", v(t1), "0x7fffff00")
        k.I("v_cmp_gt_u32", "vcc", 13, v(lane))
        k.I("v_cndmask_b32", v(t0), v(t1), v(t0), "vcc")
        k.vm("pf", "buffer_load_dword", v(vd2), v(t0), sr(sPo, 4), s(st1), mods="offen")
        k.I("s_mul_i32", s(st1), s(st0), 25)
        k.I("v_add_u32", v(t0), s(st1), v(lane))
        k.I("v_mul_u32_u24", v(t1), 37450, v(t0))
        k.I("v_lshrrev_b32", v(t1), 19, v(t1))
        k.I("v_mul_u32_u24", v(vd2 + 1), 14, v(t1))
        k.I("v_sub_u32", v(t0), v(t0), v(vd2 + 1))
        k.I("v_mul_u32_u24", v(t1), 3584, v(t1))
        k.I("v_lshl_add_u32", v(t1), v(t0), 7, v(t1))
        k.I("v_add_u32", v(vd2 + 1), 1792 - 896, v(t1))
        k.I("v_cmp_le_u32", "vcc", 7, v(t0))
        k.I("v_cndmask_b32", v(t1), v(t1), v(vd2 + 1), "vcc")
        k.I("v_mov_b32", v(t0), "0x7fffff00")
        k.I("v_cmp_gt_u32", "vcc", 25, v(lane))
        k.I("v_cndmask_b32", v(t1), v(t0), v(t1), "vcc")
        k.I("s_and_b32", s(st1), "s2", 1)
        k.I("s_mul_i32", s(st1), s(st1), 896)
        k.vm("pf", "buffer_load_dword", v(vd2 + 1), v(t1), sr(sPi, 4), s(st1), mods="offen")
    vf = k.valloc(9 * 2 * 4, 4)
    def vread(kp):
        for dt in range(2):
            for beta in range(2):
                tile = min(2 * kp + beta, 16)
                k.lg(("v", kp), "ds_read_b64", vr(vf + (kp * 2 + dt) * 4 + 2 * beta, 2), v(aV), mods=f"offset:{tile * 1024 + dt * 512}")
    for kp in range(3): vread(kp)
    for i in range(4):
        k.I("v_cndmask_b32", v(S + i), v(neg), v(S + i), sr(M[i], 2))
        k.I("v_cndmask_b32", v(S + 64 + i), v(S + 64 + i), v(neg), sr(M[i], 2))
    nofix = k.newlabel("nofix")
    k.I("s_cmp_ge_u32", s(s16q), 16)
    k.I("s_cbranch_scc1", nofix)
    k.I("s_sub_u32", s(st0), 16, s(s16q))
    for j in range(16):
        lab = k.newlabel("sk")
        k.I("s_cmp_le_u32", s(st0), j)
        k.I("s_cbranch_scc1", lab)
        for i in range(4): k.I("v_mov_b32", v(S + 4 * j + i), v(neg))
        k.L(lab)
    k.L(nofix)
    mx = k.valloc(4)
    for c in range(4):
        k.I("v_max3_f32", v(mx + c), v(S + c * 17), v(S + c * 17 + 1), v(S + c * 17 + 2))
    for r in range(7):
        for c in range(4):
            b = c * 17 + 3 + 2 * r
            k.I("v_max3_f32", v(mx + c), v(mx + c), v(S + b), v(S + b + 1))
    k.I("v_max3_f32", v(mx), v(mx), v(mx + 1), v(mx + 2))
    k.I("v_max_f32", v(mx), v(mx), v(mx + 3))
    for sw in ("v_permlane16_swap_b32", "v_permlane32_swap_b32"):
        k.I("v_mov_b32", v(mx + 1), v(mx))
        k.I(sw, v(mx), v(mx + 1))
        k.I("v_max_f32", v(mx), v(mx), v(mx + 1))
    cs = 28 ** -0.5 * math.log2(math.e)
    sc = k.salloc()
    k.I("s_mov_b32", s(sc), hex(f32(cs)))
    k.I("v_mul_f32", v(mx), hex(f32(-cs)), v(mx))
    for kp in range(3, 6): vread(kp)
    P = k.valloc(36, 4)
    k.I("v_mov_b32", v(P + 34), 0); k.I("v_mov_b32", v(P + 35), 0)
    O = [k.valloc(4), k.valloc(4)]
    def softmax_tile(j):
        for i in range(4): k.I("v_fma_f32", v(S + 4 * j + i), v(S + 4 * j + i), s(sc), v(mx))
        for i in range(4): k.I("v_exp_f32", v(S + 4 * j + i), v(S + 4 * j + i))
    def pack_tile(j):
        k.I("v_cvt_pk_bf16_f32", v(P + 2 * j), v(S + 4 * j), v(S + 4 * j + 1))
        k.I("v_cvt_pk_bf16_f32", v(P + 2 * j + 1), v(S + 4 * j + 2), v(S + 4 * j + 3))
    for kp in range(9):
        tiles = [2 * kp, 2 * kp + 1] if kp < 8 else [16]
        for j in tiles: softmax_tile(j)
        for j in tiles: pack_tile(j)
        if kp == 2:
            for q in range(6, 9): vread(q)
        if kp >= 1:
            q = kp - 1
            k.wait_lg(("v", q))
            for dt in range(2):
                k.I("v_mfma_f32_16x16x32_bf16", vr(O[dt], 4), vr(vf + (q * 2 + dt) * 4, 4), vr(P + 4 * q, 4), 0 if q == 0 else vr(O[dt], 4))
    k.wait_lg(("v", 8))
    for dt in range(2):
        k.I("v_mfma_f32_16x16x32_bf16", vr(O[dt], 4), vr(vf + (8 * 2 + dt) * 4, 4), vr(P + 32, 4), vr(O[dt], 4))
    la = k.valloc(); lb = k.valloc()
    k.I("v_mov_b32", v(la), v(O[1])); k.I("v_mov_b32", v(lb), v(O[1]))
    k.I("v_permlane32_swap_b32", v(la), v(lb))
    k.I("v_mov_b32", v(la), v(lb))
    k.I("v_permlane16_swap_b32", v(la), v(lb))
    k.I("v_rcp_f32", v(lb), v(lb))
    for dt in range(2):
        for i in range(4): k.I("v_mul_f32", v(O[dt] + i), v(O[dt] + i), v(lb))
    pk = k.valloc(4)
    for dt in range(2):
        k.I("v_cvt_pk_bf16_f32", v(pk + 2 * dt), v(O[dt]), v(O[dt] + 1))
        k.I("v_cvt_pk_bf16_f32", v(pk + 2 * dt + 1), v(O[dt] + 2), v(O[dt] + 3))
    k.I("v_cmp_gt_u32", "vcc", 3, v(gg))
    k.I("v_cndmask_b32", v(pk + 2), 0, v(pk + 2), "vcc")
    k.I("v_cndmask_b32", v(pk + 3), 0, v(pk + 3), "vcc")
    vo = k.valloc()
    k.I("s_and_b32", s(st0), s(swave), 1)
    k.I("s_lshl_b32", s(st0), s(st0), 8)
    k.I("v_lshlrev_b32", v(vo), 4, v(l15))
    k.I("v_add_u32", v(vo), s(st0), v(vo))
    k.I("v_lshrrev_b32", v(t0), 1, v(gg))
    k.I("v_lshl_add_u32", v(vo), v(t0), 9, v(vo))
    k.I("v_and_b32", v(t0), 1, v(gg))
    k.I("v_lshl_add_u32", v(vo), v(t0), 3, v(vo))
    k.I("s_lshl_b32", s(st0), s(srb), 2)
    k.I("s_lshr_b32", s(st1), s(swave), 1)
    k.I("s_add_u32", s(st0), s(st0), s(st1))
    k.I("s_lshl_b32", s(st0), s(st0), 15)
    k.I("s_lshl_b32", s(st1), s(shd), 11)
    k.I("s_add_u32", s(st0), s(st0), s(st1))
    k.I("s_add_u32", s(soff), s(st0), hex(O_OFF))
    for dt in range(2):
        k.I("buffer_store_dwordx2", vr(pk + 2 * dt, 2), v(vo), sr(sWS, 4), s(soff), mods=f"offen offset:{dt * 1024}")
    stp.stamp(2)
    k.L(done)
    k.I("s_endpgm")
    k.lds = lds; k.threads = 512; k.grid = 256
    return k


def code_prefetch(k, nxt, sidx, tmp_s, tid="v0"):
    if os.environ.get("PFC", "1") != "1": return
    pp = k.salloc(2); sP = k.salloc(4); vT = k.valloc(); vd = k.valloc()
    lab = k.newlabel("pc")
    k.I("s_getpc_b64", sr(pp, 2))
    k.L(lab)
    k.I("s_add_u32", s(pp), s(pp), f"{nxt}-{lab}")
    k.I("s_addc_u32", s(pp + 1), s(pp + 1), 0)
    srd(k, sP, pp, f"{nxt}_end-{nxt}")
    k.I("s_lshl_b32", s(tmp_s), s(sidx), 8)
    k.I("v_add_u32", v(vT), s(tmp_s), tid)
    k.I("v_lshlrev_b32", v(vT), 7, v(vT))
    k.vm("pfc", "buffer_load_dword", v(vd), v(vT), sr(sP, 4), 0, mods="offen")

def l2_prefetch(k, kernarg_off, nbytes, vT128, nthreads, tmp_s):
    if os.environ.get("PFT", "1") != "1": return
    pp = k.salloc(2); sP = k.salloc(4)
    k.I("s_load_dwordx2", sr(pp, 2), "s[0:1]", kernarg_off)
    k.I("s_waitcnt", "lgkmcnt(0)")
    srd(k, sP, pp, nbytes)
    n = -(-nbytes // (128 * nthreads))
    for i in range(n):
        vd = k.valloc()
        k.I("s_mov_b32", s(tmp_s), hex(i * nthreads * 128))
        k.vm("pft", "buffer_load_dword", v(vd), v(vT128), sr(sP, 4), s(tmp_s), mods="offen")

def mall_prefetch(k, kernarg_off, nbytes, first, per, nw, swave, lane, tmp_s, tv0, tv1, flag="PFM"):
    if os.environ.get(flag, "1") != "1": return
    pp = k.salloc(2); sP = k.salloc(4); vd = k.valloc()
    k.I("s_load_dwordx2", sr(pp, 2), "s[0:1]", kernarg_off)
    k.I("s_mul_i32", s(tmp_s), "s2", nw)
    k.I("s_add_u32", s(tmp_s), s(tmp_s), s(swave))
    k.I("s_mul_i32", s(tmp_s), s(tmp_s), per)
    k.I("s_add_u32", s(tmp_s), s(tmp_s), first)
    k.I("s_lshl_b32", s(tmp_s), s(tmp_s), 7)
    k.I("v_lshlrev_b32", v(tv0), 7, v(lane))
    k.I("v_mov_b32", v(tv1), "0x7fffff00")
    k.I("v_cmp_gt_u32", "vcc", per, v(lane))
    k.I("v_cndmask_b32", v(tv0), v(tv1), v(tv0), "vcc")
    k.I("s_waitcnt", "lgkmcnt(0)")
    k.lgq = []
    srd(k, sP, pp, nbytes)
    k.vm("pfm", "buffer_load_dword", v(vd), v(tv0), sr(sP, 4), s(tmp_s), mods="offen")

def map_rb_hd(k, srb, shd, st0, st1):
    if os.environ.get("MAP48", "1") == "1":
        k.I("s_and_b32", s(st0), "s2", 7)
        k.I("s_lshr_b32", s(st1), "s2", 3)
        k.I("s_and_b32", s(shd), s(st1), 7)
        k.I("s_lshr_b32", s(st1), s(st1), 3)
        k.I("s_lshr_b32", s(srb), s(st0), 1)
        k.I("s_lshl_b32", s(srb), s(srb), 2)
        k.I("s_add_u32", s(srb), s(srb), s(st1))
        k.I("s_and_b32", s(st0), s(st0), 1)
        k.I("s_lshl_b32", s(st0), s(st0), 3)
        k.I("s_add_u32", s(shd), s(shd), s(st0))
    else:
        k.I("s_and_b32", s(st0), "s2", 7)
        k.I("s_lshr_b32", s(st1), "s2", 3)
        k.I("s_and_b32", s(shd), s(st1), 15)
        k.I("s_lshr_b32", s(st1), s(st1), 4)
        k.I("s_lshl_b32", s(srb), s(st0), 1)
        k.I("s_add_u32", s(srb), s(srb), s(st1))

def common_start(k, nwg):
    k.snext = 4; k.vnext = 1
    done = k.newlabel("done")
    k.I("s_cmp_ge_u32", "s2", nwg)
    k.I("s_cbranch_scc1", done)
    R = dict(done=done)
    R["swave"] = k.salloc(); R["st0"] = k.salloc(); R["st1"] = k.salloc(); R["soff"] = k.salloc()
    R["lane"] = k.valloc(); R["t0"] = k.valloc(); R["t1"] = k.valloc(); R["t2"] = k.valloc()
    k.I("v_lshrrev_b32", v(R["t0"]), 6, "v0")
    k.I("v_and_b32", v(R["lane"]), 63, "v0")
    k.I("v_readfirstlane_b32", s(R["swave"]), v(R["t0"]))
    return R

def interleave(k, mf, fl):
    n = len(fl); m = len(mf)
    cuts = [(i * n + m - 1) // m for i in range(m + 1)]
    cuts[-1] = n
    for i in range(m):
        mf[i]()
        for f in fl[cuts[i]:cuts[i + 1]]: f()

def stats_from_packed(k, P, n, accs, accq, tmp):
    for j in range(n):
        t = tmp[j % len(tmp)]
        k.I("v_lshlrev_b32", v(t), 16, v(P + j))
        k.I("v_and_b32", v(t + 1), "0xffff0000", v(P + j))
        if j == 0:
            k.I("v_pk_mul_f32", vr(accq, 2), vr(t, 2), vr(t, 2))
            k.I("v_mov_b32", v(accs), v(t)); k.I("v_mov_b32", v(accs + 1), v(t + 1))
        else:
            k.I("v_pk_add_f32", vr(accs, 2), vr(accs, 2), vr(t, 2))
            k.I("v_pk_fma_f32", vr(accq, 2), vr(t, 2), vr(t, 2), vr(accq, 2))
    k.I("v_add_f32", v(accs), v(accs), v(accs + 1))
    k.I("v_add_f32", v(accq), v(accq), v(accq + 1))
    for r_ in (accs, accq):
        k.I("v_mov_b32", v(r_ + 1), v(r_))
        k.I("v_permlane32_swap_b32", v(r_), v(r_ + 1))
        k.I("v_add_f32", v(r_), v(r_), v(r_ + 1))

def gen_k3(Stamper):
    k = Kernel("k3_wo_kernel")
    WREG = 0; OREG = 58368
    lds = OREG + 65536
    R = common_start(k, 256)
    swave, st0, st1, soff, lane, t0, t1, t2 = (R[x] for x in ("swave", "st0", "st1", "soff", "lane", "t0", "t1", "t2"))
    pX = k.salloc(2); pWo = k.salloc(2); pWin = k.salloc(2); pWS = k.salloc(2)
    k.I("s_load_dwordx2", sr(pX, 2), "s[0:1]", 0)
    k.I("s_load_dwordx2", sr(pWo, 2), "s[0:1]", 16)
    k.I("s_load_dwordx2", sr(pWin, 2), "s[0:1]", 32)
    k.I("s_load_dwordx2", sr(pWS, 2), "s[0:1]", 80)
    sWS = k.salloc(4); sWo = k.salloc(4); sX = k.salloc(4)
    sj = k.salloc(); sidx = k.salloc(); srt = k.salloc(); snt = k.salloc(); sw3 = k.salloc()
    k.I("s_and_b32", s(sj), "s2", 7)
    k.I("s_lshr_b32", s(sidx), "s2", 3)
    k.I("s_and_b32", s(sw3), s(swave), 3)
    stp = Stamper(k, 2, sWS, swave)
    aux = k.newlabel("aux")
    k.I("s_cmp_ge_u32", s(sidx), 28)
    k.I("s_cbranch_scc1", aux)
    k.I("s_mul_i32", s(st0), s(sidx), 37)
    k.I("s_lshr_b32", s(st0), s(st0), 8)
    k.I("s_mul_i32", s(st1), s(st0), 7)
    k.I("s_sub_u32", s(snt), s(sidx), s(st1))
    k.I("s_lshl_b32", s(srt), s(sj), 2)
    k.I("s_add_u32", s(srt), s(srt), s(st0))
    k.I("s_waitcnt", "lgkmcnt(0)")
    srd(k, sWS, pWS, WS_SIZE)
    comp = k.newlabel("compute")
    k.I("s_cmp_lt_u32", s(swave), 4)
    k.I("s_cbranch_scc1", comp)
    vsave = k.vnext
    srd(k, sWo, pWo, 448 * 896)
    v16 = k.valloc(); vWo = k.valloc()
    k.I("v_lshlrev_b32", v(v16), 4, v(lane))
    k.I("v_lshrrev_b32", v(t0), 3, v(lane))
    k.I("v_mul_u32_u24", v(t0), 896, v(t0))
    k.I("v_bfe_u32", v(t1), v(lane), 4, 1)
    k.I("v_lshlrev_b32", v(t1), 2, v(t1))
    k.I("v_and_b32", v(t2), 7, v(lane))
    k.I("v_xor_b32", v(t1), v(t1), v(t2))
    k.I("v_lshl_add_u32", v(vWo), v(t1), 4, v(t0))
    sOb = k.salloc(); sWb = k.salloc(); smO = k.salloc(); smW = k.salloc()
    k.I("s_lshl_b32", s(sOb), s(srt), 16)
    k.I("s_lshl_b32", s(st0), s(sw3), 10)
    k.I("s_add_u32", s(sOb), s(sOb), s(st0))
    k.I("s_add_u32", s(sOb), s(sOb), hex(O_OFF))
    k.I("s_add_u32", s(smO), s(st0), OREG)
    k.I("s_mul_i32", s(sWb), s(sw3), 8 * 896)
    k.I("s_lshl_b32", s(st1), s(snt), 7)
    k.I("s_add_u32", s(sWb), s(sWb), s(st1))
    k.I("s_add_u32", s(smW), s(st0), WREG)
    def issue(c):
        for r2 in range(2):
            k.I("s_add_u32", s(soff), s(sOb), hex(r2 * 32768 + c * 4096))
            k.I("s_add_u32", "m0", s(smO), hex(r2 * 32768 + c * 4096))
            k.vm(("S", c), "buffer_load_dwordx4", v(v16), sr(sWS, 4), s(soff), mods="offen lds")
        for i in range(2):
            k.I("s_add_u32", s(soff), s(sWb), hex((56 * c + 32 * i) * 896))
            k.I("s_add_u32", "m0", s(smW), hex((56 * c + 32 * i) * 128))
            k.vm(("S", c), "buffer_load_dwordx4", v(vWo), sr(sWo, 4), s(soff), mods="offen lds")
    LA = 3
    for c in range(LA): issue(c)
    for c in range(8):
        k.wait_vm(("S", c))
        k.I("s_barrier")
        if c + LA < 8: issue(c + LA)
    k.I("s_endpgm")
    k.L(comp)
    k.vnext = vsave; k.vmq = []; k.lgq = []
    srd(k, sX, pX, 2048 * 896)
    l31 = k.valloc(); hh = k.valloc()
    k.I("v_and_b32", v(l31), 31, v(lane))
    k.I("v_lshrrev_b32", v(hh), 5, v(lane))
    srh = k.salloc(); snh = k.salloc(); sst = k.salloc(); sntile = k.salloc()
    k.I("s_and_b32", s(srh), s(swave), 1)
    k.I("s_lshr_b32", s(snh), s(swave), 1)
    k.I("s_lshl_b32", s(sst), s(srt), 1)
    k.I("s_add_u32", s(sst), s(sst), s(srh))
    k.I("s_lshl_b32", s(sntile), s(snt), 1)
    k.I("s_add_u32", s(sntile), s(sntile), s(snh))
    xr = k.valloc(8, 4); vx = k.valloc()
    k.I("v_mul_u32_u24", v(vx), 896, v(l31))
    k.I("v_lshl_add_u32", v(vx), v(hh), 3, v(vx))
    k.I("s_mul_i32", s(soff), s(sst), 32 * 896)
    k.I("s_lshl_b32", s(st0), s(sntile), 6)
    k.I("s_add_u32", s(soff), s(soff), s(st0))
    for q in range(4):
        k.vm("x", "buffer_load_dwordx2", vr(xr + 2 * q, 2), v(vx), sr(sX, 4), s(soff), mods=f"offen offset:{16 * q}")
    code_prefetch(k, "k4_win_kernel", sidx, st0)
    stp.stamp(0)
    aO = k.valloc(); vW = k.valloc()
    k.I("v_lshlrev_b32", v(aO), 4, v(lane))
    k.I("s_lshl_b32", s(st0), s(srh), 15)
    k.I("s_add_u32", s(st0), s(st0), OREG)
    k.I("v_add_u32", v(aO), s(st0), v(aO))
    k.I("v_bfe_u32", v(t0), v(lane), 2, 2)
    k.I("v_lshl_add_u32", v(t0), v(hh), 3, v(t0))
    k.I("v_lshlrev_b32", v(vW), 7, v(t0))
    k.I("v_bfe_u32", v(t0), v(lane), 4, 1)
    k.I("v_lshlrev_b32", v(t0), 1, v(t0))
    k.I("v_bfe_u32", v(t1), v(lane), 1, 1)
    k.I("v_add_u32", v(t0), v(t0), v(t1))
    k.I("s_lshl_b32", s(st0), s(snh), 2)
    k.I("v_add_u32", v(t0), s(st0), v(t0))
    k.I("v_bfe_u32", v(t1), v(lane), 3, 1)
    k.I("v_lshlrev_b32", v(t1), 2, v(t1))
    k.I("v_xor_b32", v(t0), v(t0), v(t1))
    k.I("v_lshl_add_u32", v(vW), v(t0), 4, v(vW))
    k.I("v_and_b32", v(t0), 1, v(lane))
    k.I("v_lshl_add_u32", v(vW), v(t0), 3, v(vW))
    acc = k.valloc(16, 4)
    NB = 3
    of = [k.valloc(4) for _ in range(NB)]; wf = [k.valloc(4) for _ in range(NB)]
    def rl(ks):
        b = ks % NB
        out = [lambda: k.lg(("f", ks), "ds_read_b128", vr(of[b], 4), v(aO), mods=f"offset:{ks * 1024}")]
        for beta in range(2):
            o = (28 * (ks >> 1) + 16 * (ks & 1) + 4 * beta) * 128
            out.append(lambda o=o, beta=beta: k.lg(("f", ks), "ds_read_b64_tr_b16", vr(wf[b] + 2 * beta, 2), v(vW), mods=f"offset:{o}"))
        return out
    k.I("s_barrier")
    stp.stamp(1)
    for f in rl(0) + rl(1): f()
    for ks in range(32):
        c, j = ks // 4, ks % 4
        b = ks % NB
        k.wait_lg(("f", ks))
        k.I("v_mfma_f32_32x32x16_bf16", vr(acc, 16), vr(wf[b], 4), vr(of[b], 4), 0 if ks == 0 else vr(acc, 16))
        if j == 1 and c < 7: k.I("s_barrier")
        if ks + 2 < 32 and not (j == 1 and False):
            pass
        nxt = ks + 2
        if nxt < 32:
            for f in rl(nxt): f()
    EOF_MARK = None
    stp.stamp(2)
    k.wait_vm("x")
    tmp = [k.valloc(2) for _ in range(4)]
    for q in range(4):
        for d in range(2):
            t = tmp[(2 * q + d) % 4]
            k.I("v_lshlrev_b32", v(t), 16, v(xr + 2 * q + d))
            k.I("v_and_b32", v(t + 1), "0xffff0000", v(xr + 2 * q + d))
            k.I("v_pk_add_f32", vr(acc + 4 * q + 2 * d, 2), vr(acc + 4 * q + 2 * d, 2), vr(t, 2))
    P = k.valloc(8, 4)
    for j in range(8): k.I("v_cvt_pk_bf16_f32", v(P + j), v(acc + 2 * j), v(acc + 2 * j + 1))
    v16 = k.valloc()
    k.I("v_lshlrev_b32", v(v16), 4, v(lane))
    k.I("s_mul_i32", s(soff), s(sst), 28 * 1024)
    k.I("s_lshl_b32", s(st0), s(sntile), 11)
    k.I("s_add_u32", s(soff), s(soff), s(st0))
    k.I("s_add_u32", s(soff), s(soff), hex(H_OFF))
    k.I("buffer_store_dwordx4", vr(P, 4), v(v16), sr(sWS, 4), s(soff), mods="offen")
    k.I("buffer_store_dwordx4", vr(P + 4, 4), v(v16), sr(sWS, 4), s(soff), mods="offen offset:1024")
    accs = k.valloc(2); accq = k.valloc(2)
    stats_from_packed(k, P, 8, accs, accq, tmp)
    k.I("v_mov_b32", v(accs + 1), v(accq))
    vh = k.valloc()
    k.I("v_mul_u32_u24", v(vh), 112, v(l31))
    k.I("s_mul_i32", s(soff), s(sst), 32 * 112)
    k.I("s_lshl_b32", s(st0), s(sntile), 3)
    k.I("s_add_u32", s(soff), s(soff), s(st0))
    k.I("s_add_u32", s(soff), s(soff), hex(HS_OFF))
    k.I("s_mov_b32", "exec_hi", 0)
    k.I("buffer_store_dwordx2", vr(accs, 2), v(vh), sr(sWS, 4), s(soff), mods="offen")
    stp.stamp(3)
    k.I("s_endpgm")
    k.L(aux)
    k.vnext = vsave; k.vmq = []; k.lgq = []
    sa = k.salloc(); sWin = k.salloc(4)
    k.I("s_sub_u32", s(sa), s(sidx), 28)
    k.I("s_lshl_b32", s(sa), s(sa), 3)
    k.I("s_add_u32", s(sa), s(sa), s(sj))
    k.I("s_waitcnt", "lgkmcnt(0)")
    srd(k, sWS, pWS, WS_SIZE)
    ff = k.valloc(4)
    for i in range(4): k.I("v_mov_b32", v(ff + i), -1)
    k.I("v_lshlrev_b32", v(t1), 4, "v0")
    k.I("v_mov_b32", v(t2), "0x7fffff00")
    k.I("v_cmp_gt_u32", "vcc", 448, "v0")
    k.I("v_cndmask_b32", v(t1), v(t2), v(t1), "vcc")
    k.I("s_mul_i32", s(st0), s(sa), 7168)
    k.I("s_add_u32", s(st0), s(st0), hex(EX_OFF))
    k.I("buffer_store_dwordx4", vr(ff, 4), v(t1), sr(sWS, 4), s(st0), mods="offen")
    zf = k.valloc(4)
    for i in range(4): k.I("v_mov_b32", v(zf + i), 0)
    k.I("v_lshlrev_b32", v(t1), 4, "v0")
    k.I("v_mov_b32", v(t2), "0x7fffff00")
    k.I("v_cmp_gt_u32", "vcc", 32, "v0")
    k.I("v_cndmask_b32", v(t1), v(t2), v(t1), "vcc")
    k.I("s_lshl_b32", s(st0), s(sa), 9)
    k.I("s_add_u32", s(st0), s(st0), hex(FL_OFF))
    k.I("buffer_store_dwordx4", vr(zf, 4), v(t1), sr(sWS, 4), s(st0), mods="offen")
    srd(k, sWin, pWin, 448 * 3584)
    def win_prefetch():
        if os.environ.get("PFWIN", "k2") != "k3": return
        vTw = k.valloc(); vdw = k.valloc(7)
        k.I("s_sub_u32", s(st0), s(sidx), 28)
        k.I("s_lshl_b32", s(st0), s(st0), 9)
        k.I("v_add_u32", v(vTw), s(st0), "v0")
        k.I("v_lshlrev_b32", v(vTw), 7, v(vTw))
        for i in range(7):
            k.I("s_mov_b32", s(st0), hex(i * 2048 * 128))
            k.I("buffer_load_dword", v(vdw + i), v(vTw), sr(sWin, 4), s(st0), mods="offen")
    nocs = k.newlabel("nocs")
    k.I("s_cmp_ge_u32", s(sa), 28)
    k.I("s_cbranch_scc1", nocs)
    vg = k.valloc()
    k.I("v_lshrrev_b32", v(t0), 3, v(lane))
    k.I("v_mul_u32_u24", v(t0), 3584, v(t0))
    k.I("v_bfe_u32", v(t1), v(lane), 4, 1)
    k.I("v_lshlrev_b32", v(t1), 2, v(t1))
    k.I("v_and_b32", v(t2), 7, v(lane))
    k.I("v_xor_b32", v(t1), v(t1), v(t2))
    k.I("v_lshl_add_u32", v(vg), v(t1), 4, v(t0))
    sb = k.salloc(); sm = k.salloc()
    k.I("s_mul_i32", s(sb), s(swave), 56 * 3584)
    k.I("s_lshl_b32", s(st0), s(sa), 7)
    k.I("s_add_u32", s(sb), s(sb), s(st0))
    k.I("s_mul_i32", s(sm), s(swave), 56 * 128)
    for i in range(7):
        k.I("s_add_u32", s(soff), s(sb), hex(i * 8 * 3584))
        k.I("s_add_u32", "m0", s(sm), hex(i * 1024))
        k.I("buffer_load_dwordx4", v(vg), sr(sWin, 4), s(soff), mods="offen lds")
    win_prefetch()
    z = k.valloc(); TB = 57344
    k.I("v_mov_b32", v(z), 0)
    k.I("v_lshlrev_b32", v(t0), 2, v(lane))
    k.I("v_add_u32", v(t0), TB, v(t0))
    k.I("ds_write_b32", v(t0), v(z))
    gg = k.valloc(); vB = k.valloc(); ones = k.valloc(4)
    k.I("v_lshrrev_b32", v(gg), 4, v(lane))
    k.I("v_bfe_u32", v(t0), v(lane), 2, 2)
    k.I("v_lshl_add_u32", v(t0), v(gg), 3, v(t0))
    k.I("v_lshlrev_b32", v(vB), 7, v(t0))
    k.I("v_bfe_u32", v(t0), v(lane), 1, 1)
    k.I("s_lshl_b32", s(st0), s(sw3), 1)
    k.I("v_add_u32", v(t0), s(st0), v(t0))
    k.I("v_bfe_u32", v(t1), v(lane), 3, 1)
    k.I("v_lshlrev_b32", v(t1), 2, v(t1))
    k.I("v_xor_b32", v(t0), v(t0), v(t1))
    k.I("v_lshl_add_u32", v(vB), v(t0), 4, v(vB))
    k.I("v_and_b32", v(t0), 1, v(lane))
    k.I("v_lshl_add_u32", v(vB), v(t0), 3, v(vB))
    k.I("s_lshr_b32", s(st0), s(swave), 2)
    k.I("s_mul_i32", s(st0), s(st0), 224 * 128)
    k.I("v_add_u32", v(vB), s(st0), v(vB))
    for i in range(4): k.I("v_mov_b32", v(ones + i), "0x3f803f80")
    k.I("s_waitcnt", "vmcnt(7) lgkmcnt(0)" if os.environ.get("PFWIN", "k2") == "k3" else "vmcnt(0) lgkmcnt(0)")
    k.I("s_barrier")
    bf = [k.valloc(4) for _ in range(7)]
    for kk in range(7):
        for beta in range(2):
            k.I("ds_read_b64_tr_b16", vr(bf[kk] + 2 * beta, 2), v(vB), mods=f"offset:{(32 * kk + 4 * beta) * 128}")
    ca = k.valloc(4)
    k.I("s_waitcnt", "lgkmcnt(0)")
    for kk in range(7):
        k.I("v_mfma_f32_16x16x32_bf16", vr(ca, 4), vr(ones, 4), vr(bf[kk], 4), 0 if kk == 0 else vr(ca, 4))
    k.I("v_and_b32", v(t0), 15, v(lane))
    k.I("s_lshl_b32", s(st0), s(sw3), 6)
    k.I("s_add_u32", s(st0), s(st0), TB)
    k.I("v_lshlrev_b32", v(t0), 2, v(t0))
    k.I("v_add_u32", v(t0), s(st0), v(t0))
    k.I("s_mov_b32", "exec_lo", "0xffff")
    k.I("s_mov_b32", "exec_hi", 0)
    k.I("ds_add_f32", v(t0), v(ca))
    k.I("s_mov_b64", "exec", -1)
    k.I("s_waitcnt", "lgkmcnt(0)")
    k.I("s_barrier")
    k.I("s_cmp_lg_u32", s(swave), 0)
    k.I("s_cbranch_scc1", R["done"])
    k.I("v_lshlrev_b32", v(t0), 2, v(lane))
    k.I("v_add_u32", v(t1), TB, v(t0))
    k.I("ds_read_b32", v(z), v(t1))
    k.I("s_lshl_b32", s(st0), s(sa), 8)
    k.I("s_add_u32", s(st0), s(st0), hex(CW_OFF))
    k.I("s_waitcnt", "lgkmcnt(0)")
    k.I("buffer_store_dword", v(z), v(t0), sr(sWS, 4), s(st0), mods="offen")
    k.I("s_endpgm")
    k.L(nocs)
    win_prefetch()
    k.L(R["done"])
    k.I("s_endpgm")
    k.lds = lds; k.threads = 512; k.grid = 256
    return k


GELU_C0 = -2.0 * math.sqrt(2.0 / math.pi) * math.log2(math.e)
GELU_C1 = GELU_C0 * 0.044715

def gen_k4(Stamper):
    k = Kernel("k4_win_kernel")
    NS = 4; SLOT = 32768; TRB = NS * SLOT
    STB = TRB
    lds = TRB + 4096
    R = common_start(k, 256)
    swave, st0, st1, soff, lane, t0, t1, t2 = (R[x] for x in ("swave", "st0", "st1", "soff", "lane", "t0", "t1", "t2"))
    pWin = k.salloc(2); pWS = k.salloc(2)
    k.I("s_load_dwordx2", sr(pWin, 2), "s[0:1]", 32)
    k.I("s_load_dwordx2", sr(pWS, 2), "s[0:1]", 80)
    sWS = k.salloc(4); sWin = k.salloc(4)
    sj = k.salloc(); sidx = k.salloc(); srb = k.salloc(); sct = k.salloc(); sw3 = k.salloc()
    k.I("s_and_b32", s(sj), "s2", 7)
    k.I("s_lshr_b32", s(sidx), "s2", 3)
    k.I("s_and_b32", s(sw3), s(swave), 3)
    pfrole = k.newlabel("pfrole")
    k.I("s_cmp_ge_u32", s(sidx), 28)
    k.I("s_cbranch_scc1", pfrole)
    k.I("s_cmp_ge_u32", s(sidx), 14)
    k.I("s_cselect_b32", s(st0), 1, 0)
    k.I("s_mul_i32", s(st1), s(st0), 14)
    k.I("s_sub_u32", s(sct), s(sidx), s(st1))
    k.I("s_lshl_b32", s(srb), s(sj), 1)
    k.I("s_add_u32", s(srb), s(srb), s(st0))
    stp = Stamper(k, 3, sWS, swave)
    k.I("s_waitcnt", "lgkmcnt(0)")
    srd(k, sWS, pWS, WS_SIZE)
    comp = k.newlabel("compute")
    k.I("s_cmp_lt_u32", s(swave), 4)
    k.I("s_cbranch_scc1", comp)
    vsave = k.vnext
    srd(k, sWin, pWin, 448 * 3584)
    v16 = k.valloc(); vWo = k.valloc()
    k.I("v_lshlrev_b32", v(v16), 4, v(lane))
    k.I("v_lshrrev_b32", v(t0), 4, v(lane))
    k.I("v_lshlrev_b32", v(t1), 2, v(t0))
    k.I("v_and_b32", v(t2), 15, v(lane))
    k.I("v_xor_b32", v(t1), v(t1), v(t2))
    k.I("v_mul_u32_u24", v(vWo), 3584, v(t0))
    k.I("v_and_b32", v(t2), 7, v(t1))
    k.I("v_lshl_add_u32", v(vWo), v(t2), 4, v(vWo))
    k.I("v_add_u32", v(t2), 1792, v(vWo))
    k.I("v_cmp_gt_u32", "vcc", 8, v(t1))
    k.I("v_cndmask_b32", v(vWo), v(vWo), v(t2), "vcc")
    sHb = k.salloc(); sWb = k.salloc(); smH = k.salloc(); smW = k.salloc()
    k.I("s_lshl_b32", s(st0), s(srb), 2)
    k.I("s_add_u32", s(st0), s(st0), s(sw3))
    k.I("s_mul_i32", s(sHb), s(st0), 28 * 1024)
    k.I("s_add_u32", s(sHb), s(sHb), hex(H_OFF))
    k.I("s_lshl_b32", s(smH), s(sw3), 12)
    k.I("s_mul_i32", s(sWb), s(sw3), 16 * 3584)
    k.I("s_lshl_b32", s(st1), s(sct), 7)
    k.I("s_add_u32", s(sWb), s(sWb), s(st1))
    k.I("s_add_u32", s(smW), s(smH), 16384)
    def issue(c):
        sl = (c % NS) * SLOT
        for i in range(4):
            k.I("s_add_u32", s(soff), s(sHb), hex((4 * c + i) * 1024))
            k.I("s_add_u32", "m0", s(smH), hex(sl + i * 1024))
            k.vm(("S", c), "buffer_load_dwordx4", v(v16), sr(sWS, 4), s(soff), mods="offen lds")
        for i in range(4):
            k.I("s_add_u32", s(soff), s(sWb), hex((64 * c + 4 * i) * 3584))
            k.I("s_add_u32", "m0", s(smW), hex(sl + i * 1024))
            k.vm(("S", c), "buffer_load_dwordx4", v(vWo), sr(sWin, 4), s(soff), mods="offen lds")
    issue(0); issue(1)
    for c in range(7):
        k.wait_vm(("S", c))
        k.I("s_barrier")
        if c == 0: issue(2); issue(3)
        elif c + 2 < 7 and c >= 2: issue(c + 2)
    k.I("s_barrier")
    k.I("s_endpgm")
    k.L(comp)
    k.vnext = vsave; k.vmq = []; k.lgq = []
    l31 = k.valloc(); hh = k.valloc()
    k.I("v_and_b32", v(l31), 31, v(lane))
    k.I("v_lshrrev_b32", v(hh), 5, v(lane))
    srh = k.salloc(); sch = k.salloc(); sst = k.salloc()
    k.I("s_and_b32", s(srh), s(swave), 1)
    k.I("s_lshr_b32", s(sch), s(swave), 1)
    k.I("s_lshl_b32", s(sst), s(srb), 2)
    k.I("s_lshl_b32", s(st0), s(srh), 1)
    k.I("s_add_u32", s(sst), s(sst), s(st0))
    hs = [k.valloc(16, 4) for _ in range(2)]
    vh = k.valloc()
    k.I("v_mul_u32_u24", v(vh), 112, v(l31))
    k.I("v_lshl_add_u32", v(vh), v(hh), 6, v(vh))
    for t in range(2):
        k.I("s_add_u32", s(st0), s(sst), t)
        k.I("s_mul_i32", s(soff), s(st0), 32 * 112)
        k.I("s_add_u32", s(soff), s(soff), hex(HS_OFF))
        for i in range(4):
            k.vm("hs", "buffer_load_dwordx4", vr(hs[t] + 4 * i, 4), v(vh), sr(sWS, 4), s(soff), mods=f"offen offset:{16 * i}")
    cw = [k.valloc(16, 4) for _ in range(2)]
    vc = k.valloc()
    k.I("v_lshlrev_b32", v(vc), 4, v(hh))
    k.I("s_lshl_b32", s(st0), s(sct), 8)
    k.I("s_lshl_b32", s(st1), s(sch), 7)
    k.I("s_add_u32", s(st0), s(st0), s(st1))
    for z in range(2):
        k.I("s_add_u32", s(soff), s(st0), hex(CW_OFF + (896 * 4 if z == 0 else 0)))
        for q in range(4):
            k.vm("cw", "buffer_load_dwordx4", vr(cw[z] + 4 * q, 4), v(vc), sr(sWS, 4), s(soff), mods=f"offen offset:{32 * q}")
    if os.environ.get("PF2", "0") == "1":
        pp = k.salloc(2); sP = k.salloc(4); vT = k.valloc(); vd = k.valloc(2)
        k.I("s_load_dwordx2", sr(pp, 2), "s[0:1]", 40)
        k.I("s_lshl_b32", s(st0), s(sidx), 8)
        k.I("v_add_u32", v(vT), s(st0), "v0")
        k.I("s_waitcnt", "lgkmcnt(0)")
        srd(k, sP, pp, 2048 * 4096)
        k.I("s_lshr_b32", s(st0), s(sj), 1)
        k.I("s_lshl_b32", s(st0), s(st0), 21)
        k.I("s_and_b32", s(st1), s(sj), 1)
        k.I("s_lshl_b32", s(st1), s(st1), 11)
        k.I("s_add_u32", s(st0), s(st0), s(st1))
        for i in range(2):
            k.I("v_add_u32", v(t0), 7168 * i, v(vT))
            k.I("v_lshrrev_b32", v(t1), 4, v(t0))
            k.I("v_lshlrev_b32", v(t1), 12, v(t1))
            k.I("v_and_b32", v(t2), 15, v(t0))
            k.I("v_lshl_add_u32", v(t1), v(t2), 7, v(t1))
            if i == 1:
                k.I("v_mov_b32", v(t2), "0x7fffff00")
                k.I("v_cmp_gt_u32", "vcc", 8192, v(t0))
                k.I("v_cndmask_b32", v(t1), v(t2), v(t1), "vcc")
            k.vm("pf", "buffer_load_dword", v(vd + i), v(t1), sr(sP, 4), s(st0), mods="offen")
    code_prefetch(k, "k5_sp_kernel", sidx, st0)
    stp.stamp(0)
    aH = k.valloc(); vW = [k.valloc(), k.valloc()]
    k.I("v_lshlrev_b32", v(aH), 4, v(lane))
    k.I("s_lshl_b32", s(st0), s(srh), 13)
    k.I("v_add_u32", v(aH), s(st0), v(aH))
    k.I("v_bfe_u32", v(t0), v(lane), 2, 2)
    k.I("v_lshl_add_u32", v(t1), v(hh), 2, v(t0))
    k.I("v_lshlrev_b32", v(t1), 8, v(t1))
    k.I("v_add_u32", v(t1), 16384, v(t1))
    k.I("v_bfe_u32", v(t2), v(lane), 4, 1)
    k.I("v_lshlrev_b32", v(t2), 1, v(t2))
    k.I("v_bfe_u32", v(vW[0]), v(lane), 1, 1)
    k.I("v_add_u32", v(t2), v(t2), v(vW[0]))
    k.I("s_lshl_b32", s(st0), s(sch), 2)
    k.I("v_add_u32", v(t2), s(st0), v(t2))
    k.I("v_lshlrev_b32", v(t0), 2, v(t0))
    k.I("v_xor_b32", v(vW[0]), v(t2), v(t0))
    k.I("v_add_u32", v(t2), 8, v(t2))
    k.I("v_xor_b32", v(vW[1]), v(t2), v(t0))
    k.I("v_and_b32", v(t2), 1, v(lane))
    for z in range(2):
        k.I("v_lshl_add_u32", v(vW[z]), v(vW[z]), 4, v(t1))
        k.I("v_lshl_add_u32", v(vW[z]), v(t2), 3, v(vW[z]))
    aH2 = k.valloc(); vW2 = [k.valloc(), k.valloc()]
    k.I("v_add_u32", v(aH2), 65536, v(aH))
    for z in range(2): k.I("v_add_u32", v(vW2[z]), 65536, v(vW[z]))
    acc = [[k.valloc(16, 4) for _ in range(2)] for _ in range(2)]
    vmark = k.vnext
    NB = 3
    hf = [[k.valloc(4) for _ in range(2)] for _ in range(NB)]
    wf = [[k.valloc(4) for _ in range(2)] for _ in range(NB)]
    def rl(ks):
        c, j = ks // 4, ks % 4
        b = ks % NB
        sl = (c % NS) * SLOT
        hi = sl >= 65536
        so = sl - (65536 if hi else 0)
        out = []
        for t in range(2):
            out.append(lambda t=t: k.lg(("f", ks), "ds_read_b128", vr(hf[b][t], 4), v(aH2 if hi else aH), mods=f"offset:{so + t * 4096 + j * 1024}"))
        for z in range(2):
            for beta in range(2):
                o = so + (16 * j + 8 * beta) * 256
                out.append(lambda o=o, z=z, beta=beta: k.lg(("f", ks), "ds_read_b64_tr_b16", vr(wf[b][z] + 2 * beta, 2), v((vW2 if hi else vW)[z]), mods=f"offset:{o}"))
        return out
    k.I("s_barrier")
    stp.stamp(1)
    for f in rl(0) + rl(1): f()
    for ks in range(28):
        c, j = ks // 4, ks % 4
        b = ks % NB
        k.wait_lg(("f", ks))
        mf = []
        for z in range(2):
            for t in range(2):
                mf.append(lambda z=z, t=t: k.I("v_mfma_f32_32x32x16_bf16", vr(acc[z][t], 16), vr(wf[b][z], 4), vr(hf[b][t], 4), 0 if ks == 0 else vr(acc[z][t], 16)))
        if j == 2 and c < 6:
            pass
        fl = rl(ks + 2) if ks + 2 < 28 else []
        if j == 2 and ks + 2 < 28:
            k.I("s_barrier")
        interleave(k, mf, fl)
    stp.stamp(2)
    k.vnext = vmark
    k.wait_vm(["hs", "cw"])
    rr = [k.valloc(2) for _ in range(2)]; nm = [k.valloc(2) for _ in range(2)]
    c0r = [k.valloc(2) for _ in range(2)]; c1r = [k.valloc(2) for _ in range(2)]
    k.I("v_cmp_eq_u32", "vcc", 0, v(hh))
    for t in range(2):
        H = hs[t]
        for i in range(12, 16): k.I("v_cndmask_b32", v(H + i), 0, v(H + i), "vcc")
        for i in range(4): k.I("v_pk_add_f32", vr(H + 2 * i, 2), vr(H + 2 * i, 2), vr(H + 8 + 2 * i, 2))
        for i in range(2): k.I("v_pk_add_f32", vr(H + 2 * i, 2), vr(H + 2 * i, 2), vr(H + 4 + 2 * i, 2))
        k.I("v_pk_add_f32", vr(H, 2), vr(H, 2), vr(H + 2, 2))
        for e in range(2):
            k.I("v_mov_b32", v(H + 2), v(H + e))
            k.I("v_permlane32_swap_b32", v(H + e), v(H + 2))
            k.I("v_add_f32", v(H + e), v(H + e), v(H + 2))
        k.I("v_mul_f32", v(nm[t]), hex(f32(-1.0 / 448)), v(H))
        k.I("v_mul_f32", v(H + 1), hex(f32(1.0 / 448)), v(H + 1))
        k.I("v_fma_f32", v(H + 1), f"-{v(nm[t])}", v(nm[t]), v(H + 1))
        k.I("v_max_f32", v(H + 1), 0, v(H + 1))
        k.I("v_add_f32", v(H + 1), hex(f32(1e-5)), v(H + 1))
        k.I("v_rsq_f32", v(rr[t]), v(H + 1))
        k.I("v_mul_f32", v(c0r[t]), hex(f32(GELU_C0)), v(rr[t]))
        k.I("v_mul_f32", v(c1r[t]), v(rr[t]), v(rr[t]))
        k.I("v_mul_f32", v(c1r[t]), v(c1r[t]), v(rr[t]))
        k.I("v_mul_f32", v(c1r[t]), hex(f32(GELU_C1)), v(c1r[t]))
    norh = k.newlabel("norh")
    k.I("s_or_b32", s(st0), s(sct), s(sch))
    k.I("s_cmp_lg_u32", s(st0), 0)
    k.I("s_cbranch_scc1", norh)
    k.I("v_lshlrev_b32", v(t0), 2, v(l31))
    for t in range(2):
        k.I("s_add_u32", s(st0), s(sst), t)
        k.I("s_lshl_b32", s(st0), s(st0), 7)
        k.I("s_add_u32", s(st0), s(st0), hex(RH_OFF))
        k.I("buffer_store_dword", v(rr[t]), v(t0), sr(sWS, 4), s(st0), mods="offen")
    k.L(norh)
    tp = [k.valloc(2) for _ in range(4)]
    def gelu_tile(A, z, t):
        for j in range(8):
            k.I("v_pk_fma_f32", vr(A + 2 * j, 2), vr(cw[z] + 2 * j, 2), vr(nm[t], 2), vr(A + 2 * j, 2), mods="op_sel_hi:[1,0,1]")
        for j0 in range(0, 8, 4):
            for j in range(j0, j0 + 4):
                T = tp[j - j0]
                k.I("v_pk_mul_f32", vr(T, 2), vr(A + 2 * j, 2), vr(A + 2 * j, 2))
            for j in range(j0, j0 + 4):
                T = tp[j - j0]
                k.I("v_pk_fma_f32", vr(T, 2), vr(T, 2), vr(c1r[t], 2), vr(c0r[t], 2), mods="op_sel_hi:[1,0,0]")
            for j in range(j0, j0 + 4):
                T = tp[j - j0]
                k.I("v_pk_mul_f32", vr(T, 2), vr(T, 2), vr(A + 2 * j, 2))
            for j in range(j0, j0 + 4):
                T = tp[j - j0]
                k.I("v_exp_f32", v(T), v(T)); k.I("v_exp_f32", v(T + 1), v(T + 1))
            for j in range(j0, j0 + 4):
                T = tp[j - j0]
                k.I("v_pk_add_f32", vr(T, 2), vr(T, 2), "1.0", mods="op_sel_hi:[1,0]")
            for j in range(j0, j0 + 4):
                T = tp[j - j0]
                k.I("v_rcp_f32", v(T), v(T)); k.I("v_rcp_f32", v(T + 1), v(T + 1))
            for j in range(j0, j0 + 4):
                T = tp[j - j0]
                k.I("v_pk_mul_f32", vr(A + 2 * j, 2), vr(A + 2 * j, 2), vr(T, 2))
    accs = [k.valloc(2) for _ in range(2)]; accq = [k.valloc(2) for _ in range(2)]
    for t in range(2):
        A = acc[0][t]
        gelu_tile(A, 0, t)
        for j in range(8):
            k.I("v_pk_mul_f32", vr(A + 2 * j, 2), vr(A + 2 * j, 2), vr(rr[t], 2), mods="op_sel_hi:[1,0]")
        k.I("v_pk_add_f32", vr(accs[t], 2), vr(A, 2), vr(A + 2, 2))
        k.I("v_pk_mul_f32", vr(accq[t], 2), vr(A, 2), vr(A, 2))
        k.I("v_pk_fma_f32", vr(accq[t], 2), vr(A + 2, 2), vr(A + 2, 2), vr(accq[t], 2))
        for j in range(2, 8):
            k.I("v_pk_add_f32", vr(accs[t], 2), vr(accs[t], 2), vr(A + 2 * j, 2))
            k.I("v_pk_fma_f32", vr(accq[t], 2), vr(A + 2 * j, 2), vr(A + 2 * j, 2), vr(accq[t], 2))
        k.I("v_add_f32", v(accs[t]), v(accs[t]), v(accs[t] + 1))
        k.I("v_add_f32", v(accs[t] + 1), v(accq[t]), v(accq[t] + 1))
        for e in range(2):
            k.I("v_mov_b32", v(accq[t]), v(accs[t] + e))
            k.I("v_permlane32_swap_b32", v(accs[t] + e), v(accq[t]))
            k.I("v_add_f32", v(accs[t] + e), v(accs[t] + e), v(accq[t]))
    vs = k.valloc()
    k.I("v_lshlrev_b32", v(vs), 3, v(l31))
    k.I("s_lshl_b32", s(st0), s(srh), 9)
    k.I("s_add_u32", s(st0), s(st0), STB)
    k.I("v_add_u32", v(vs), s(st0), v(vs))
    k.I("s_lshl_b32", s(st0), s(sch), 10)
    k.I("v_add_u32", v(t0), s(st0), v(vs))
    for t in range(2):
        k.I("ds_write_b64", v(t0), vr(accs[t], 2), mods=f"offset:{t * 256}")
    k.I("s_waitcnt", "lgkmcnt(0)")
    k.I("s_barrier")
    pub = k.newlabel("nopub")
    k.I("s_cmp_lg_u32", s(sch), 0)
    k.I("s_cbranch_scc1", pub)
    oth = k.valloc(4)
    for t in range(2):
        k.I("ds_read_b64", vr(oth + 2 * t, 2), v(vs), mods=f"offset:{1024 + t * 256}")
    k.I("s_waitcnt", "lgkmcnt(0)")
    for t in range(2):
        k.I("v_pk_add_f32", vr(oth + 2 * t, 2), vr(oth + 2 * t, 2), vr(accs[t], 2))
        k.I("v_mov_b32", v(t1), "0x7fc00000")
        k.I("v_cmp_eq_u32", "vcc", -1, v(oth + 2 * t + 1))
        k.I("v_cndmask_b32", v(oth + 2 * t + 1), v(oth + 2 * t + 1), v(t1), "vcc")
    ve = k.valloc()
    k.I("v_mul_u32_u24", v(ve), 112, v(l31))
    k.I("s_mul_i32", s(soff), s(sst), 32 * 112)
    k.I("s_lshl_b32", s(st0), s(sct), 3)
    k.I("s_add_u32", s(soff), s(soff), s(st0))
    k.I("s_add_u32", s(soff), s(soff), hex(EX_OFF))
    k.I("s_mov_b32", "exec_hi", 0)
    for t in range(2):
        k.I("buffer_store_dwordx2", vr(oth + 2 * t, 2), v(ve), sr(sWS, 4), s(soff), mods=f"offen offset:{t * 32 * 112} sc0 sc1")
    k.I("s_mov_b64", "exec", -1)
    k.L(pub)
    stp.stamp(3)
    v16 = k.valloc()
    k.I("v_lshlrev_b32", v(v16), 4, v(lane))
    P = [k.valloc(8, 4) for _ in range(2)]
    sft = k.salloc()
    k.I("s_lshl_b32", s(sft), s(sct), 1)
    k.I("s_add_u32", s(sft), s(sft), s(sch))
    for t in range(2):
        A = acc[1][t]
        gelu_tile(A, 1, t)
        for j in range(8): k.I("v_cvt_pk_bf16_f32", v(P[t] + j), v(A + 2 * j), v(A + 2 * j + 1))
        k.I("s_add_u32", s(st0), s(sst), t)
        k.I("s_mul_i32", s(soff), s(st0), 56 * 1024)
        k.I("s_lshl_b32", s(st0), s(sft), 11)
        k.I("s_add_u32", s(soff), s(soff), s(st0))
        k.I("s_add_u32", s(soff), s(soff), hex(Z1_OFF))
        k.I("buffer_store_dwordx4", vr(P[t], 4), v(v16), sr(sWS, 4), s(soff), mods="offen")
        k.I("buffer_store_dwordx4", vr(P[t] + 4, 4), v(v16), sr(sWS, 4), s(soff), mods="offen offset:1024")
    stp.stamp(4)
    ex = hs
    k.I("v_mul_u32_u24", v(vh), 112, v(l31))
    k.I("v_lshl_add_u32", v(vh), v(hh), 6, v(vh))
    k.I("s_mul_i32", s(soff), s(sst), 32 * 112)
    k.I("s_add_u32", s(soff), s(soff), hex(EX_OFF))
    scount = k.salloc(); sbad = k.salloc(2)
    k.I("s_mov_b32", s(scount), 0)
    poll = k.newlabel("poll"); pdone = k.newlabel("pdone")
    k.L(poll)
    for t in range(2):
        for i in range(4):
            k.I("buffer_load_dwordx4", vr(ex[t] + 4 * i, 4), v(vh), sr(sWS, 4), s(soff), mods=f"offen offset:{t * 32 * 112 + 16 * i} sc0 sc1")
    k.I("s_waitcnt", "vmcnt(0)")
    k.I("v_cmp_eq_u32", "vcc", 0, v(hh))
    for t in range(2):
        for i in range(12, 16): k.I("v_cndmask_b32", v(ex[t] + i), 0, v(ex[t] + i), "vcc")
    k.I("v_max_u32", v(t0), v(ex[0] + 1), v(ex[0] + 3))
    for t in range(2):
        for i in range(8):
            if t == 0 and i < 2: continue
            k.I("v_max_u32", v(t0), v(t0), v(ex[t] + 2 * i + 1))
    k.I("v_cmp_eq_u32", "vcc", -1, v(t0))
    k.I("s_add_u32", s(scount), s(scount), 1)
    k.I("s_cmp_eq_u64", "vcc", 0)
    k.I("s_cbranch_scc1", pdone)
    k.I("s_cmp_lt_u32", s(scount), 0x40000)
    k.I("s_cbranch_scc0", pdone)
    k.I("s_sleep", 1)
    k.I("s_branch", poll)
    k.L(pdone)
    sc_ = [k.valloc(2) for _ in range(2)]; zm = [k.valloc(2) for _ in range(2)]
    for t in range(2):
        H = ex[t]
        for i in range(4): k.I("v_pk_add_f32", vr(H + 2 * i, 2), vr(H + 2 * i, 2), vr(H + 8 + 2 * i, 2))
        for i in range(2): k.I("v_pk_add_f32", vr(H + 2 * i, 2), vr(H + 2 * i, 2), vr(H + 4 + 2 * i, 2))
        k.I("v_pk_add_f32", vr(H, 2), vr(H, 2), vr(H + 2, 2))
        for e in range(2):
            k.I("v_mov_b32", v(H + 2), v(H + e))
            k.I("v_permlane32_swap_b32", v(H + e), v(H + 2))
            k.I("v_add_f32", v(H + e), v(H + e), v(H + 2))
        k.I("v_mul_f32", v(zm[t]), hex(f32(-1.0 / 896)), v(H))
        k.I("v_mul_f32", v(H + 1), hex(f32(1.0 / 896)), v(H + 1))
        k.I("v_fma_f32", v(H + 1), f"-{v(zm[t])}", v(zm[t]), v(H + 1))
        k.I("v_max_f32", v(H + 1), 0, v(H + 1))
        k.I("v_add_f32", v(H + 1), hex(f32(1e-5)), v(H + 1))
        k.I("v_rsq_f32", v(sc_[t]), v(H + 1))
        k.I("v_mul_f32", v(zm[t]), v(zm[t]), v(sc_[t]))
    TW = 0
    vt = k.valloc(); vtr = k.valloc()
    k.I("v_lshlrev_b32", v(vt), 6, v(l31))
    k.I("v_lshl_add_u32", v(vt), v(hh), 3, v(vt))
    k.I("s_lshl_b32", s(st0), s(swave), 12)
    k.I("v_add_u32", v(vt), s(st0), v(vt))
    for t in range(2):
        A = acc[0][t]
        for j in range(8):
            k.I("v_pk_fma_f32", vr(A + 2 * j, 2), vr(A + 2 * j, 2), vr(sc_[t], 2), vr(zm[t], 2), mods="op_sel_hi:[1,0,0]")
        for j in range(8): k.I("v_cvt_pk_bf16_f32", v(P[t] + j), v(A + 2 * j), v(A + 2 * j + 1))
        for q in range(4):
            k.I("ds_write_b64", v(vt), vr(P[t] + 2 * q, 2), mods=f"offset:{t * 2048 + 16 * q}")
    k.I("v_bfe_u32", v(t0), v(lane), 2, 2)
    k.I("v_lshl_add_u32", v(t0), v(hh), 3, v(t0))
    k.I("v_lshlrev_b32", v(vtr), 6, v(t0))
    k.I("v_bfe_u32", v(t0), v(lane), 4, 1)
    k.I("v_lshl_add_u32", v(vtr), v(t0), 5, v(vtr))
    k.I("v_and_b32", v(t0), 3, v(lane))
    k.I("v_lshl_add_u32", v(vtr), v(t0), 3, v(vtr))
    k.I("s_lshl_b32", s(st0), s(swave), 12)
    k.I("v_add_u32", v(vtr), s(st0), v(vtr))
    k.I("s_waitcnt", "lgkmcnt(0)")
    Z = cw[0]
    for ks in range(4):
        for beta in range(2):
            k.I("ds_read_b64_tr_b16", vr(Z + 4 * ks + 2 * beta, 2), v(vtr), mods=f"offset:{(16 * ks + 4 * beta) * 64}")
    k.I("s_mul_i32", s(soff), s(sft), ZS)
    k.I("s_lshr_b32", s(st0), s(sst), 5)
    k.I("s_mul_i32", s(st0), s(st0), ZK)
    k.I("s_add_u32", s(soff), s(soff), s(st0))
    k.I("s_and_b32", s(st0), s(sst), 31)
    k.I("s_lshl_b32", s(st0), s(st0), 11)
    k.I("s_add_u32", s(soff), s(soff), s(st0))
    k.I("s_add_u32", s(soff), s(soff), hex(Z2_OFF))
    for ks in range(4):
        k.I("s_waitcnt", f"lgkmcnt({6 - 2 * ks})")
        k.I("buffer_store_dwordx4", vr(Z + 4 * ks, 4), v(v16), sr(sWS, 4), s(soff), mods=f"offen offset:{ks * 1024}")
    stp.stamp(5)
    k.I("s_endpgm")
    k.L(pfrole)
    pp = k.salloc(2); sP = k.salloc(4); vT = k.valloc(); vd = k.valloc(4)
    k.I("s_load_dwordx2", sr(pp, 2), "s[0:1]", 40)
    k.I("s_sub_u32", s(st0), s(sidx), 28)
    k.I("s_lshl_b32", s(st0), s(st0), 9)
    k.I("v_add_u32", v(vT), s(st0), "v0")
    k.I("s_lshr_b32", s(st0), s(sj), 1)
    k.I("s_lshl_b32", s(st0), s(st0), 21)
    k.I("s_and_b32", s(st1), s(sj), 1)
    k.I("s_lshl_b32", s(st1), s(st1), 11)
    k.I("s_add_u32", s(st0), s(st0), s(st1))
    k.I("s_waitcnt", "lgkmcnt(0)")
    srd(k, sP, pp, 2048 * 4096)
    for i in range(4):
        k.I("v_add_u32", v(t0), 2048 * i, v(vT))
        k.I("v_lshrrev_b32", v(t1), 4, v(t0))
        k.I("v_lshlrev_b32", v(t1), 12, v(t1))
        k.I("v_and_b32", v(t2), 15, v(t0))
        k.I("v_lshl_add_u32", v(t1), v(t2), 7, v(t1))
        k.I("buffer_load_dword", v(vd + i), v(t1), sr(sP, 4), s(st0), mods="offen")
    k.L(R["done"])
    k.I("s_endpgm")
    k.lds = lds; k.threads = 512; k.grid = 256
    return k


def gen_k4b(Stamper):
    k = Kernel("k4_win_kernel")
    HREG = 0; WRING = 114688; WSL = 8192; NS = 5
    CWT = WRING + NS * WSL
    lds = CWT + 512
    R = common_start(k, 256)
    swave, st0, st1, soff, lane, t0, t1, t2 = (R[x] for x in ("swave", "st0", "st1", "soff", "lane", "t0", "t1", "t2"))
    pWin = k.salloc(2); pWS = k.salloc(2)
    k.I("s_load_dwordx2", sr(pWin, 2), "s[0:1]", 32)
    k.I("s_load_dwordx2", sr(pWS, 2), "s[0:1]", 80)
    sWS = k.salloc(4); sWin = k.salloc(4)
    sj = k.salloc(); sidx = k.salloc(); srb = k.salloc(); sct = k.salloc(); sw3 = k.salloc()
    k.I("s_and_b32", s(sj), "s2", 7)
    k.I("s_lshr_b32", s(sidx), "s2", 3)
    k.I("s_and_b32", s(sw3), s(swave), 3)
    pfrole = k.newlabel("pfrole")
    k.I("s_cmp_ge_u32", s(sidx), 28)
    k.I("s_cbranch_scc1", pfrole)
    k.I("s_mul_i32", s(st0), s(sidx), 37)
    k.I("s_lshr_b32", s(st0), s(st0), 8)
    k.I("s_mul_i32", s(st1), s(st0), 7)
    k.I("s_sub_u32", s(sct), s(sidx), s(st1))
    k.I("s_and_b32", s(st1), s(sj), 1)
    k.I("s_mul_i32", s(st1), s(st1), 7)
    k.I("s_add_u32", s(sct), s(sct), s(st1))
    k.I("s_lshr_b32", s(srb), s(sj), 1)
    k.I("s_lshl_b32", s(srb), s(srb), 2)
    k.I("s_add_u32", s(srb), s(srb), s(st0))
    stp = Stamper(k, 3, sWS, swave)
    sst = k.salloc()
    k.I("s_lshl_b32", s(sst), s(srb), 2)
    k.I("s_add_u32", s(sst), s(sst), s(sw3))
    k.I("s_waitcnt", "lgkmcnt(0)")
    srd(k, sWS, pWS, WS_SIZE)
    comp = k.newlabel("compute")
    k.I("s_cmp_lt_u32", s(swave), 4)
    k.I("s_cbranch_scc1", comp)
    vsave = k.vnext
    srd(k, sWin, pWin, 448 * 3584)
    v16 = k.valloc(); vWo = k.valloc()
    k.I("v_lshlrev_b32", v(v16), 4, v(lane))
    k.I("v_lshrrev_b32", v(t0), 3, v(lane))
    k.I("v_mul_u32_u24", v(t0), 3584, v(t0))
    k.I("v_bfe_u32", v(t1), v(lane), 4, 1)
    k.I("v_lshlrev_b32", v(t1), 2, v(t1))
    k.I("v_and_b32", v(t2), 7, v(lane))
    k.I("v_xor_b32", v(t1), v(t1), v(t2))
    k.I("v_lshl_add_u32", v(vWo), v(t1), 4, v(t0))
    sHb = k.salloc(); sWb = k.salloc(); smH = k.salloc(); smW = k.salloc()
    k.I("s_mul_i32", s(sHb), s(sst), 28 * 1024)
    k.I("s_add_u32", s(sHb), s(sHb), hex(H_OFF))
    k.I("s_mul_i32", s(smH), s(sw3), 28 * 1024)
    k.I("s_mul_i32", s(sWb), s(sw3), 16 * 3584)
    k.I("s_lshl_b32", s(st1), s(sct), 7)
    k.I("s_add_u32", s(sWb), s(sWb), s(st1))
    k.I("s_lshl_b32", s(smW), s(sw3), 11)
    k.I("s_add_u32", s(smW), s(smW), WRING)
    def issue(c):
        if c < 7:
            for i in range(4):
                k.I("s_add_u32", s(soff), s(sHb), hex((4 * c + i) * 1024))
                k.I("s_add_u32", "m0", s(smH), hex(HREG + (4 * c + i) * 1024))
                k.vm(("S", c), "buffer_load_dwordx4", v(v16), sr(sWS, 4), s(soff), mods="offen lds")
        cc = c % 7
        col = 1792 if c < 7 else 0
        for i in range(2):
            k.I("s_add_u32", s(soff), s(sWb), hex((64 * cc + 8 * i) * 3584 + col))
            k.I("s_add_u32", "m0", s(smW), hex((c % NS) * WSL + i * 1024))
            k.vm(("S", c), "buffer_load_dwordx4", v(vWo), sr(sWin, 4), s(soff), mods="offen lds")
    nocw = k.newlabel("nocw")
    issue(0)
    k.I("s_cmp_ge_u32", s(sw3), 2)
    k.I("s_cbranch_scc1", nocw)
    k.I("v_lshlrev_b32", v(t0), 2, v(lane))
    k.I("s_lshl_b32", s(st0), s(sct), 8)
    k.I("s_xor_b32", s(st1), s(sw3), 1)
    k.I("s_mul_i32", s(st1), s(st1), 896 * 4)
    k.I("s_add_u32", s(st0), s(st0), s(st1))
    k.I("s_add_u32", s(soff), s(st0), hex(CW_OFF))
    k.I("s_lshl_b32", s(st1), s(sw3), 8)
    k.I("s_add_u32", "m0", s(st1), CWT)
    k.I("buffer_load_dword", v(t0), sr(sWS, 4), s(soff), mods="offen lds")
    k.L(nocw)
    k.vmq.append(("S", 1))
    issue(1); issue(2)
    NST = 14
    for c in range(NST):
        if c == 0:
            k.I("s_waitcnt", "vmcnt(12)")
            k.vmq = k.vmq[6:]
        else:
            k.wait_vm(("S", c))
        k.I("s_barrier")
        if c == 0: issue(3); issue(4)
        elif c >= 2 and c + 3 < NST: issue(c + 3)
    k.I("s_endpgm")
    k.L(comp)
    k.vnext = vsave; k.vmq = []; k.lgq = []
    l31 = k.valloc(); hh = k.valloc()
    k.I("v_and_b32", v(l31), 31, v(lane))
    k.I("v_lshrrev_b32", v(hh), 5, v(lane))
    hs = k.valloc(16, 4); vh = k.valloc()
    k.I("v_mul_u32_u24", v(vh), 112, v(l31))
    k.I("v_lshl_add_u32", v(vh), v(hh), 6, v(vh))
    k.I("s_mul_i32", s(soff), s(sst), 32 * 112)
    sEX = k.salloc()
    k.I("s_add_u32", s(sEX), s(soff), hex(EX_OFF))
    k.I("s_add_u32", s(soff), s(soff), hex(HS_OFF))
    for i in range(4):
        k.vm("hs", "buffer_load_dwordx4", vr(hs + 4 * i, 4), v(vh), sr(sWS, 4), s(soff), mods=f"offen offset:{16 * i}")
    code_prefetch(k, "k5_sp_kernel", sidx, st0)
    stp.stamp(0)
    aH = k.valloc(); v16 = k.valloc(); vW = [k.valloc(), k.valloc()]
    k.I("v_lshlrev_b32", v(v16), 4, v(lane))
    k.I("s_mul_i32", s(st0), s(swave), 28 * 1024)
    k.I("v_add_u32", v(aH), s(st0), v(v16))
    k.I("v_bfe_u32", v(t0), v(lane), 2, 2)
    k.I("v_lshl_add_u32", v(t0), v(hh), 2, v(t0))
    k.I("v_lshlrev_b32", v(t0), 7, v(t0))
    k.I("v_add_u32", v(t0), WRING, v(t0))
    k.I("v_bfe_u32", v(t1), v(lane), 4, 1)
    k.I("v_lshlrev_b32", v(t1), 1, v(t1))
    k.I("v_bfe_u32", v(t2), v(lane), 1, 1)
    k.I("v_add_u32", v(t1), v(t1), v(t2))
    k.I("v_bfe_u32", v(t2), v(lane), 3, 1)
    k.I("v_lshlrev_b32", v(t2), 2, v(t2))
    for n2 in range(2):
        k.I("v_add_u32", v(vW[n2]), 4 * n2, v(t1))
        k.I("v_xor_b32", v(vW[n2]), v(vW[n2]), v(t2))
        k.I("v_lshl_add_u32", v(vW[n2]), v(vW[n2]), 4, v(t0))
    k.I("v_and_b32", v(t1), 1, v(lane))
    for n2 in range(2): k.I("v_lshl_add_u32", v(vW[n2]), v(t1), 3, v(vW[n2]))
    rr = k.valloc(2); nm = k.valloc(2); c0r = k.valloc(2); c1r = k.valloc(2)
    k.wait_vm("hs")
    k.I("v_cmp_eq_u32", "vcc", 0, v(hh))
    H = hs
    for i in range(12, 16): k.I("v_cndmask_b32", v(H + i), 0, v(H + i), "vcc")
    for i in range(4): k.I("v_pk_add_f32", vr(H + 2 * i, 2), vr(H + 2 * i, 2), vr(H + 8 + 2 * i, 2))
    for i in range(2): k.I("v_pk_add_f32", vr(H + 2 * i, 2), vr(H + 2 * i, 2), vr(H + 4 + 2 * i, 2))
    k.I("v_pk_add_f32", vr(H, 2), vr(H, 2), vr(H + 2, 2))
    for e in range(2):
        k.I("v_mov_b32", v(H + 2), v(H + e))
        k.I("v_permlane32_swap_b32", v(H + e), v(H + 2))
        k.I("v_add_f32", v(H + e), v(H + e), v(H + 2))
    k.I("v_mul_f32", v(nm), hex(f32(-1.0 / 448)), v(H))
    k.I("v_mul_f32", v(H + 1), hex(f32(1.0 / 448)), v(H + 1))
    k.I("v_fma_f32", v(H + 1), f"-{v(nm)}", v(nm), v(H + 1))
    k.I("v_max_f32", v(H + 1), 0, v(H + 1))
    k.I("v_add_f32", v(H + 1), hex(f32(1e-5)), v(H + 1))
    k.I("v_rsq_f32", v(rr), v(H + 1))
    k.I("v_mul_f32", v(c0r), hex(f32(GELU_C0)), v(rr))
    k.I("v_mul_f32", v(c1r), v(rr), v(rr))
    k.I("v_mul_f32", v(c1r), v(c1r), v(rr))
    k.I("v_mul_f32", v(c1r), hex(f32(GELU_C1)), v(c1r))
    norh = k.newlabel("norh")
    k.I("s_cmp_lg_u32", s(sct), 0)
    k.I("s_cbranch_scc1", norh)
    k.I("v_lshlrev_b32", v(t0), 2, v(l31))
    k.I("s_lshl_b32", s(st0), s(sst), 7)
    k.I("s_add_u32", s(st0), s(st0), hex(RH_OFF))
    k.I("buffer_store_dword", v(rr), v(t0), sr(sWS, 4), s(st0), mods="offen")
    k.L(norh)
    acc = [[k.valloc(16, 4) for _ in range(2)] for _ in range(2)]
    cwr = hs
    tp = [k.valloc(2) for _ in range(4)]
    NB = 3
    hf = [k.valloc(4) for _ in range(NB)]
    wf = [[k.valloc(4) for _ in range(2)] for _ in range(NB)]
    def rl(g):
        ks = g % 28; c = g // 4; j = g % 4
        b = g % NB
        out = [lambda: k.lg(("f", g), "ds_read_b128", vr(hf[b], 4), v(aH), mods=f"offset:{ks * 1024}")]
        for n2 in range(2):
            for beta in range(2):
                o = (c % NS) * WSL + (16 * j + 8 * beta) * 128
                out.append(lambda o=o, n2=n2, beta=beta: k.lg(("f", g), "ds_read_b64_tr_b16", vr(wf[b][n2] + 2 * beta, 2), v(vW[n2]), mods=f"offset:{o}"))
        return out
    vcw = k.valloc()
    k.I("v_lshlrev_b32", v(vcw), 4, v(hh))
    k.I("v_add_u32", v(vcw), CWT, v(vcw))
    def gelu_tile(A, z, n2):
        for q in range(4):
            k.lg("cw", "ds_read_b128", vr(cwr + 4 * q, 4), v(vcw), mods=f"offset:{z * 256 + n2 * 128 + 32 * q}")
        k.wait_lg("cw")
        for j in range(8):
            k.I("v_pk_fma_f32", vr(A + 2 * j, 2), vr(cwr + 2 * j, 2), vr(nm, 2), vr(A + 2 * j, 2), mods="op_sel_hi:[1,0,1]")
        for j0 in range(0, 8, 4):
            for j in range(j0, j0 + 4): k.I("v_pk_mul_f32", vr(tp[j - j0], 2), vr(A + 2 * j, 2), vr(A + 2 * j, 2))
            for j in range(j0, j0 + 4): k.I("v_pk_fma_f32", vr(tp[j - j0], 2), vr(tp[j - j0], 2), vr(c1r, 2), vr(c0r, 2), mods="op_sel_hi:[1,0,0]")
            for j in range(j0, j0 + 4): k.I("v_pk_mul_f32", vr(tp[j - j0], 2), vr(tp[j - j0], 2), vr(A + 2 * j, 2))
            for j in range(j0, j0 + 4):
                k.I("v_exp_f32", v(tp[j - j0]), v(tp[j - j0])); k.I("v_exp_f32", v(tp[j - j0] + 1), v(tp[j - j0] + 1))
            for j in range(j0, j0 + 4): k.I("v_pk_add_f32", vr(tp[j - j0], 2), vr(tp[j - j0], 2), "1.0", mods="op_sel_hi:[1,0]")
            for j in range(j0, j0 + 4):
                k.I("v_rcp_f32", v(tp[j - j0]), v(tp[j - j0])); k.I("v_rcp_f32", v(tp[j - j0] + 1), v(tp[j - j0] + 1))
            for j in range(j0, j0 + 4): k.I("v_pk_mul_f32", vr(A + 2 * j, 2), vr(A + 2 * j, 2), vr(tp[j - j0], 2))
    def mainloop(z):
        for g in range(28 * z, 28 * z + 28):
            ks = g % 28; j = g % 4; c = g // 4
            b = g % NB
            k.wait_lg(("f", g))
            mf = [lambda n2=n2: k.I("v_mfma_f32_32x32x16_bf16", vr(acc[z][n2], 16), vr(wf[b][n2], 4), vr(hf[b], 4), 0 if ks == 0 else vr(acc[z][n2], 16)) for n2 in range(2)]
            nxt = g + 2
            fl = rl(nxt) if nxt < 28 * z + 28 else []
            if j == 2 and c + 1 < NST: k.I("s_barrier")
            interleave(k, mf, fl)
    k.I("s_barrier")
    stp.stamp(1)
    for f in rl(0) + rl(1): f()
    mainloop(0)
    for f in rl(28) + rl(29): f()
    stp.stamp(2)
    accs = k.valloc(2); accq = k.valloc(2)
    for n2 in range(2):
        A = acc[0][n2]
        gelu_tile(A, 0, n2)
        for j in range(8):
            k.I("v_pk_mul_f32", vr(A + 2 * j, 2), vr(A + 2 * j, 2), vr(rr, 2), mods="op_sel_hi:[1,0]")
        for j in range(8):
            if n2 == 0 and j == 0:
                k.I("v_mov_b32", v(accs), v(A)); k.I("v_mov_b32", v(accs + 1), v(A + 1))
                k.I("v_pk_mul_f32", vr(accq, 2), vr(A, 2), vr(A, 2))
            else:
                k.I("v_pk_add_f32", vr(accs, 2), vr(accs, 2), vr(A + 2 * j, 2))
                k.I("v_pk_fma_f32", vr(accq, 2), vr(A + 2 * j, 2), vr(A + 2 * j, 2), vr(accq, 2))
    k.I("v_add_f32", v(accs), v(accs), v(accs + 1))
    k.I("v_add_f32", v(accs + 1), v(accq), v(accq + 1))
    for e in range(2):
        k.I("v_mov_b32", v(accq), v(accs + e))
        k.I("v_permlane32_swap_b32", v(accs + e), v(accq))
        k.I("v_add_f32", v(accs + e), v(accs + e), v(accq))
    k.I("v_mov_b32", v(t1), "0x7fc00000")
    k.I("v_cmp_eq_u32", "vcc", -1, v(accs + 1))
    k.I("v_cndmask_b32", v(accs + 1), v(accs + 1), v(t1), "vcc")
    ve = k.valloc()
    k.I("v_mul_u32_u24", v(ve), 112, v(l31))
    k.I("s_lshl_b32", s(st0), s(sct), 3)
    k.I("s_add_u32", s(soff), s(sEX), s(st0))
    k.I("s_mov_b32", "exec_hi", 0)
    k.I("buffer_store_dwordx2", vr(accs, 2), v(ve), sr(sWS, 4), s(soff), mods="offen sc0 sc1")
    k.I("s_mov_b64", "exec", -1)
    stp.stamp(3)
    mainloop(1)
    ex = k.valloc(16, 4)
    for i in range(4):
        k.I("buffer_load_dwordx4", vr(ex + 4 * i, 4), v(vh), sr(sWS, 4), s(sEX), mods=f"offen offset:{16 * i} sc0 sc1")
    P = [k.valloc(8, 4) for _ in range(2)]
    sft = k.salloc()
    k.I("s_lshl_b32", s(sft), s(sct), 1)
    for n2 in range(2):
        A = acc[1][n2]
        gelu_tile(A, 1, n2)
        for j in range(8): k.I("v_cvt_pk_bf16_f32", v(P[n2] + j), v(A + 2 * j), v(A + 2 * j + 1))
        k.I("s_mul_i32", s(soff), s(sst), 56 * 1024)
        k.I("s_add_u32", s(st0), s(sft), n2)
        k.I("s_lshl_b32", s(st0), s(st0), 11)
        k.I("s_add_u32", s(soff), s(soff), s(st0))
        k.I("s_add_u32", s(soff), s(soff), hex(Z1_OFF))
        k.I("buffer_store_dwordx4", vr(P[n2], 4), v(v16), sr(sWS, 4), s(soff), mods="offen")
        k.I("buffer_store_dwordx4", vr(P[n2] + 4, 4), v(v16), sr(sWS, 4), s(soff), mods="offen offset:1024")
    stp.stamp(4)
    scount = k.salloc()
    k.I("s_mov_b32", s(scount), 0)
    poll = k.newlabel("poll"); pdone = k.newlabel("pdone"); pchk = k.newlabel("pchk")
    k.I("s_waitcnt", "vmcnt(4)")
    k.I("s_branch", pchk)
    k.L(poll)
    for i in range(4):
        k.I("buffer_load_dwordx4", vr(ex + 4 * i, 4), v(vh), sr(sWS, 4), s(sEX), mods=f"offen offset:{16 * i} sc0 sc1")
    k.I("s_waitcnt", "vmcnt(0)")
    k.L(pchk)
    k.I("v_cmp_eq_u32", "vcc", 0, v(hh))
    for i in range(12, 16): k.I("v_cndmask_b32", v(ex + i), 0, v(ex + i), "vcc")
    k.I("v_max_u32", v(t0), v(ex + 1), v(ex + 3))
    for i in range(2, 8): k.I("v_max_u32", v(t0), v(t0), v(ex + 2 * i + 1))
    k.I("v_cmp_eq_u32", "vcc", -1, v(t0))
    k.I("s_add_u32", s(scount), s(scount), 1)
    k.I("s_cmp_eq_u64", "vcc", 0)
    k.I("s_cbranch_scc1", pdone)
    k.I("s_cmp_lt_u32", s(scount), 0x40000)
    k.I("s_cbranch_scc0", pdone)
    k.I("s_sleep", 1)
    k.I("s_branch", poll)
    k.L(pdone)
    k.vmq = []
    sc_ = k.valloc(2); zm = k.valloc(2)
    H = ex
    for i in range(4): k.I("v_pk_add_f32", vr(H + 2 * i, 2), vr(H + 2 * i, 2), vr(H + 8 + 2 * i, 2))
    for i in range(2): k.I("v_pk_add_f32", vr(H + 2 * i, 2), vr(H + 2 * i, 2), vr(H + 4 + 2 * i, 2))
    k.I("v_pk_add_f32", vr(H, 2), vr(H, 2), vr(H + 2, 2))
    for e in range(2):
        k.I("v_mov_b32", v(H + 2), v(H + e))
        k.I("v_permlane32_swap_b32", v(H + e), v(H + 2))
        k.I("v_add_f32", v(H + e), v(H + e), v(H + 2))
    k.I("v_mul_f32", v(zm), hex(f32(-1.0 / 896)), v(H))
    k.I("v_mul_f32", v(H + 1), hex(f32(1.0 / 896)), v(H + 1))
    k.I("v_fma_f32", v(H + 1), f"-{v(zm)}", v(zm), v(H + 1))
    k.I("v_max_f32", v(H + 1), 0, v(H + 1))
    k.I("v_add_f32", v(H + 1), hex(f32(1e-5)), v(H + 1))
    k.I("v_rsq_f32", v(sc_), v(H + 1))
    k.I("v_mul_f32", v(zm), v(zm), v(sc_))
    vt = k.valloc(); vtr = k.valloc()
    k.I("s_mul_i32", s(st0), s(swave), 28 * 1024)
    k.I("v_mul_u32_u24", v(vt), 136, v(l31))
    k.I("v_lshl_add_u32", v(vt), v(hh), 3, v(vt))
    k.I("v_add_u32", v(vt), s(st0), v(vt))
    for n2 in range(2):
        A = acc[0][n2]
        for j in range(8):
            k.I("v_pk_fma_f32", vr(A + 2 * j, 2), vr(A + 2 * j, 2), vr(sc_, 2), vr(zm, 2), mods="op_sel_hi:[1,0,0]")
        for j in range(8): k.I("v_cvt_pk_bf16_f32", v(P[n2] + j), v(A + 2 * j), v(A + 2 * j + 1))
        for q in range(4):
            k.I("ds_write_b64", v(vt), vr(P[n2] + 2 * q, 2), mods=f"offset:{64 * n2 + 16 * q}")
    k.I("v_bfe_u32", v(t0), v(lane), 2, 2)
    k.I("v_lshl_add_u32", v(t0), v(hh), 3, v(t0))
    k.I("v_mul_u32_u24", v(vtr), 136, v(t0))
    k.I("v_bfe_u32", v(t0), v(lane), 4, 1)
    k.I("v_lshl_add_u32", v(vtr), v(t0), 5, v(vtr))
    k.I("v_and_b32", v(t0), 3, v(lane))
    k.I("v_lshl_add_u32", v(vtr), v(t0), 3, v(vtr))
    k.I("v_add_u32", v(vtr), s(st0), v(vtr))
    k.I("s_waitcnt", "lgkmcnt(0)")
    Z = acc[1][0]
    for n2 in range(2):
        for ks in range(2):
            for beta in range(2):
                k.I("ds_read_b64_tr_b16", vr(Z + 8 * n2 + 4 * ks + 2 * beta, 2), v(vtr), mods=f"offset:{(16 * ks + 4 * beta) * 136 + 64 * n2}")
    k.I("s_lshr_b32", s(st0), s(sst), 5)
    k.I("s_mul_i32", s(st0), s(st0), ZK)
    k.I("s_and_b32", s(st1), s(sst), 31)
    k.I("s_lshl_b32", s(st1), s(st1), 11)
    k.I("s_add_u32", s(st0), s(st0), s(st1))
    k.I("s_add_u32", s(st0), s(st0), hex(Z2_OFF))
    for n2 in range(2):
        k.I("s_add_u32", s(st1), s(sft), n2)
        k.I("s_mul_i32", s(soff), s(st1), ZS)
        k.I("s_add_u32", s(soff), s(soff), s(st0))
        for ks in range(2):
            k.I("s_waitcnt", f"lgkmcnt({6 - 4 * n2 - 2 * ks})")
            k.I("buffer_store_dwordx4", vr(Z + 8 * n2 + 4 * ks, 4), v(v16), sr(sWS, 4), s(soff), mods=f"offen offset:{ks * 1024}")
    stp.stamp(5)
    k.I("s_endpgm")
    k.L(pfrole)
    if os.environ.get('K4PF', 'sparse') == 'dense':
        pp = k.salloc(2); sP = k.salloc(4); vT = k.valloc(); vd = k.valloc(32, 4)
        k.I("s_load_dwordx2", sr(pp, 2), "s[0:1]", 40)
        k.I("s_sub_u32", s(st0), s(sidx), 28)
        k.I("s_lshl_b32", s(st0), s(st0), 3)
        k.I("s_add_u32", s(st0), s(st0), s(swave))
        k.I("s_lshl_b32", s(st0), s(st0), 16)
        k.I("s_lshr_b32", s(st1), s(sj), 1)
        k.I("s_lshl_b32", s(st1), s(st1), 21)
        k.I("s_add_u32", s(st0), s(st0), s(st1))
        k.I("s_and_b32", s(st1), s(sj), 1)
        k.I("s_lshl_b32", s(st1), s(st1), 11)
        k.I("s_add_u32", s(st0), s(st0), s(st1))
        k.I("v_lshlrev_b32", v(vT), 4, v(lane))
        k.I("s_waitcnt", "lgkmcnt(0)")
        srd(k, sP, pp, 2048 * 4096)
        for i in range(16):
            k.I("s_add_u32", s(soff), s(st0), hex(i * 4096))
            for hf_ in range(2):
                k.I("buffer_load_dwordx4", vr(vd + 4 * ((2 * i + hf_) % 8), 4), v(vT), sr(sP, 4), s(soff), mods=f"offen offset:{hf_ * 1024}")
    else:
        pp = k.salloc(2); sP = k.salloc(4); vT = k.valloc(); vd = k.valloc(4)
        k.I("s_load_dwordx2", sr(pp, 2), "s[0:1]", 40)
        k.I("s_sub_u32", s(st0), s(sidx), 28)
        k.I("s_lshl_b32", s(st0), s(st0), 9)
        k.I("v_add_u32", v(vT), s(st0), "v0")
        k.I("s_lshr_b32", s(st0), s(sj), 1)
        k.I("s_lshl_b32", s(st0), s(st0), 21)
        k.I("s_and_b32", s(st1), s(sj), 1)
        k.I("s_lshl_b32", s(st1), s(st1), 11)
        k.I("s_add_u32", s(st0), s(st0), s(st1))
        k.I("s_waitcnt", "lgkmcnt(0)")
        srd(k, sP, pp, 2048 * 4096)
        for i in range(4):
            k.I("v_add_u32", v(t0), 2048 * i, v(vT))
            k.I("v_lshrrev_b32", v(t1), 4, v(t0))
            k.I("v_lshlrev_b32", v(t1), 12, v(t1))
            k.I("v_and_b32", v(t2), 15, v(t0))
            k.I("v_lshl_add_u32", v(t1), v(t2), 7, v(t1))
            k.I("buffer_load_dword", v(vd + i), v(t1), sr(sP, 4), s(st0), mods="offen")
    k.L(R["done"])
    k.I("s_endpgm")
    k.lds = lds; k.threads = 512; k.grid = 256
    return k

def gen_k5(Stamper):
    k = Kernel("k5_sp_kernel")
    NS = 4; SLOT = 32768
    Z1REG = NS * SLOT
    lds = Z1REG + 32768
    R = common_start(k, 256)
    swave, st0, st1, soff, lane, t0, t1, t2 = (R[x] for x in ("swave", "st0", "st1", "soff", "lane", "t0", "t1", "t2"))
    pSp = k.salloc(2); pB = k.salloc(2); pWS = k.salloc(2)
    k.I("s_load_dwordx2", sr(pSp, 2), "s[0:1]", 40)
    k.I("s_load_dwordx2", sr(pB, 2), "s[0:1]", 48)
    k.I("s_load_dwordx2", sr(pWS, 2), "s[0:1]", 80)
    sWS = k.salloc(4); sSp = k.salloc(4); sB = k.salloc(4)
    sj = k.salloc(); sidx = k.salloc(); stt = k.salloc(); sft = k.salloc(); skap = k.salloc(); sw3 = k.salloc()
    if os.environ.get("K5MAP") == "linear":
        k.I("s_mul_i32", s(sj), "s2", 2341)
        k.I("s_lshr_b32", s(sj), s(sj), 16)
        k.I("s_mul_i32", s(sidx), s(sj), 28)
        k.I("s_sub_u32", s(sidx), "s2", s(sidx))
    else:
        k.I("s_and_b32", s(sj), "s2", 7)
        k.I("s_lshr_b32", s(sidx), "s2", 3)
    pfrole = k.newlabel("pfrole")
    k.I("s_cmp_ge_u32", s(sidx), 28)
    k.I("s_cbranch_scc1", pfrole)
    k.I("s_and_b32", s(sw3), s(swave), 3)
    k.I("s_and_b32", s(skap), s(sj), 1)
    k.I("s_mul_i32", s(st0), s(sidx), 37)
    k.I("s_lshr_b32", s(st0), s(st0), 8)
    k.I("s_mul_i32", s(st1), s(st0), 7)
    k.I("s_sub_u32", s(sft), s(sidx), s(st1))
    k.I("s_lshr_b32", s(stt), s(sj), 1)
    k.I("s_lshl_b32", s(stt), s(stt), 2)
    k.I("s_add_u32", s(stt), s(stt), s(st0))
    stp = Stamper(k, 4, sWS, swave)
    if os.environ.get("TICKWAVE", "0") != "0": stp.tick(0)
    k.I("s_waitcnt", "lgkmcnt(0)")
    srd(k, sWS, pWS, WS_SIZE)
    comp = k.newlabel("compute")
    k.I("s_cmp_lt_u32", s(swave), 4)
    k.I("s_cbranch_scc1", comp)
    vsave = k.vnext
    srd(k, sSp, pSp, 2048 * 4096)
    v16 = k.valloc(); vWo = k.valloc(2)
    k.I("v_lshlrev_b32", v(v16), 4, v(lane))
    k.I("v_lshrrev_b32", v(t0), 3, v(lane))
    k.I("v_lshlrev_b32", v(t0), 12, v(t0))
    k.I("v_lshrrev_b32", v(t1), 4, v(lane))
    k.I("v_and_b32", v(t2), 7, v(lane))
    k.I("v_xor_b32", v(t1), v(t1), v(t2))
    k.I("v_lshl_add_u32", v(vWo), v(t1), 4, v(t0))
    k.I("v_xor_b32", v(t1), 4, v(t1))
    k.I("v_lshl_add_u32", v(vWo + 1), v(t1), 4, v(t0))
    sZb = k.salloc(); sWb = k.salloc(); smZ = k.salloc(); smW = k.salloc()
    k.I("s_lshl_b32", s(st0), s(sft), 2)
    k.I("s_add_u32", s(st0), s(st0), s(sw3))
    k.I("s_mul_i32", s(sZb), s(st0), ZS)
    k.I("s_mul_i32", s(st1), s(skap), ZK)
    k.I("s_add_u32", s(sZb), s(sZb), s(st1))
    k.I("s_add_u32", s(sZb), s(sZb), hex(Z2_OFF))
    k.I("s_lshl_b32", s(smZ), s(sw3), 12)
    k.I("s_lshl_b32", s(st0), s(stt), 7)
    k.I("s_lshl_b32", s(st1), s(sw3), 5)
    k.I("s_add_u32", s(st0), s(st0), s(st1))
    k.I("s_lshl_b32", s(sWb), s(st0), 12)
    k.I("s_lshl_b32", s(st1), s(skap), 11)
    k.I("s_add_u32", s(sWb), s(sWb), s(st1))
    k.I("s_add_u32", s(smW), s(smZ), 16384)
    def issue(c):
        sl = (c % NS) * SLOT
        def zpart():
            for i in range(4):
                k.I("s_add_u32", s(soff), s(sZb), hex((4 * c + i) * 1024))
                k.I("s_add_u32", "m0", s(smZ), hex(sl + i * 1024))
                k.vm(("S", c), "buffer_load_dwordx4", v(v16), sr(sWS, 4), s(soff), mods="offen lds")
                if os.environ.get("DIAG5") and c == 0 and i in (0, 3):
                    k.I("s_waitcnt", "vmcnt(0)"); stp.tick(10 + (i > 0))
        def wpart():
            for i in range(4):
                k.I("s_add_u32", s(soff), s(sWb), hex(i * 8 * 4096 + c * 128))
                k.I("s_add_u32", "m0", s(smW), hex(sl + i * 1024))
                k.vm(("S", c), "buffer_load_dwordx4", v(vWo + (i & 1)), sr(sSp, 4), s(soff), mods="offen lds")
                if os.environ.get("DIAG5") and c == 0 and i in (0, 3):
                    k.I("s_waitcnt", "vmcnt(0)"); stp.tick(12 + (i > 0))
        if os.environ.get("DIAG5") == "2": wpart(); zpart()
        else: zpart(); wpart()
    NST = 16
    sZ1 = k.salloc()
    k.I("s_lshl_b32", s(st0), s(stt), 2)
    k.I("s_add_u32", s(st0), s(st0), s(sw3))
    k.I("s_mul_i32", s(sZ1), s(st0), 56 * 1024)
    k.I("s_lshl_b32", s(st1), s(sft), 13)
    k.I("s_add_u32", s(sZ1), s(sZ1), s(st1))
    k.I("s_add_u32", s(sZ1), s(sZ1), hex(Z1_OFF))
    smZ1 = k.salloc()
    k.I("s_lshl_b32", s(smZ1), s(sw3), 13)
    def issue_z1(i, tag):
        k.I("s_add_u32", s(soff), s(sZ1), hex(i * 1024))
        k.I("s_add_u32", "m0", s(smZ1), hex(Z1REG + i * 1024))
        k.vm(("S", tag), "buffer_load_dwordx4", v(v16), sr(sWS, 4), s(soff), mods="offen lds")
    LT = os.environ.get("TICKWAVE", "0") != "0"
    if LT: stp.tick(1)
    issue(0)
    if LT: stp.tick(2)
    issue(1)
    if LT: stp.tick(3)
    for c in range(NST):
        k.wait_vm(("S", c))
        if LT and c < 3: stp.tick(4 + 2 * c)
        k.I("s_barrier")
        if LT and c < 3: stp.tick(5 + 2 * c)
        if c == 0: issue(2); issue(3)
        elif c + 2 < NST and c >= 2:
            issue(c + 2)
            if 3 <= c < 11: issue_z1(c - 3, c + 2)
    vT = k.valloc()
    k.I("s_lshl_b32", s(st0), s(sidx), 8)
    k.I("v_subrev_u32", v(vT), 256, "v0")
    k.I("v_add_u32", v(vT), s(st0), v(vT))
    k.I("v_lshlrev_b32", v(vT), 7, v(vT))
    if LT: stp.dump_ticks()
    k.I("s_endpgm")
    k.L(comp)
    k.vnext = vsave; k.vmq = []; k.lgq = []
    srd(k, sB, pB, 4096)
    l31 = k.valloc(); hh = k.valloc()
    k.I("v_and_b32", v(l31), 31, v(lane))
    k.I("v_lshrrev_b32", v(hh), 5, v(lane))
    sfh = k.salloc(); sth = k.salloc(); sst = k.salloc(); sf32 = k.salloc()
    k.I("s_and_b32", s(sfh), s(swave), 1)
    k.I("s_lshr_b32", s(sth), s(swave), 1)
    k.I("s_lshl_b32", s(sst), s(stt), 2)
    k.I("s_lshl_b32", s(st0), s(sth), 1)
    k.I("s_add_u32", s(sst), s(sst), s(st0))
    k.I("s_lshl_b32", s(sf32), s(sft), 2)
    k.I("s_lshl_b32", s(st0), s(sfh), 1)
    k.I("s_add_u32", s(sf32), s(sf32), s(st0))
    if os.environ.get("PF3", "0") == "1":
        vT0 = k.valloc(); vd0 = k.valloc(2)
        k.I("s_lshl_b32", s(st0), s(sidx), 8)
        k.I("v_add_u32", v(vT0), s(st0), "v0")
        k.I("s_lshl_b32", s(st1), s(skap), 16)
        k.I("s_add_u32", s(st1), s(st1), hex(Z2_OFF))
        for i in range(2):
            k.I("v_add_u32", v(t0), 7168 * i, v(vT0))
            k.I("v_lshrrev_b32", v(t1), 9, v(t0))
            k.I("v_lshlrev_b32", v(t1), 17, v(t1))
            k.I("v_and_b32", v(t2), 511, v(t0))
            k.I("v_lshl_add_u32", v(t1), v(t2), 7, v(t1))
            k.vm("pf", "buffer_load_dword", v(vd0 + i), v(t1), sr(sWS, 4), s(st1), mods="offen")
    v16 = k.valloc()
    k.I("v_lshlrev_b32", v(v16), 4, v(lane))
    z1 = [[k.valloc(8, 4) for _ in range(2)] for _ in range(2)]
    rr = [k.valloc(2) for _ in range(2)]; bb = [k.valloc(2) for _ in range(2)]
    k.I("v_lshlrev_b32", v(t0), 2, v(l31))
    k.I("v_lshlrev_b32", v(t1), 1, v(l31))
    for ti in range(2):
        k.I("s_add_u32", s(st0), s(sst), ti)
        k.I("s_lshl_b32", s(soff), s(st0), 7)
        k.I("s_add_u32", s(soff), s(soff), hex(RH_OFF))
        k.vm("z1", "buffer_load_dword", v(rr[ti]), v(t0), sr(sWS, 4), s(soff), mods="offen")
        k.I("s_lshl_b32", s(soff), s(st0), 6)
        k.vm("z1", "buffer_load_ushort", v(bb[ti]), v(t1), sr(sB, 4), s(soff), mods="offen")
    if os.environ.get("PF2", "0") == "1":
        pp = k.salloc(2); sP = k.salloc(4); vT = k.valloc(); vd = k.valloc(2)
        k.I("s_load_dwordx2", sr(pp, 2), "s[0:1]", 56)
        k.I("s_lshl_b32", s(st0), s(sidx), 8)
        k.I("v_add_u32", v(vT), s(st0), "v0")
        k.I("v_lshlrev_b32", v(vT), 7, v(vT))
        k.I("s_waitcnt", "lgkmcnt(0)")
        srd(k, sP, pp, 896 * 896)
        k.vm("pf", "buffer_load_dword", v(vd), v(vT), sr(sP, 4), 0, mods="offen")
    code_prefetch(k, "k6_wout_kernel", sidx, st0)
    stp.stamp(0)
    aZ = k.valloc(); aW = k.valloc(4)
    k.I("s_lshl_b32", s(st0), s(sfh), 13)
    k.I("v_add_u32", v(aZ), s(st0), v(v16))
    k.I("v_bfe_u32", v(t0), v(l31), 1, 3)
    for j in range(4):
        k.I("v_add_u32", v(t1), 2 * j, v(hh))
        k.I("v_xor_b32", v(t1), v(t1), v(t0))
        k.I("v_lshlrev_b32", v(t1), 4, v(t1))
        k.I("v_lshl_add_u32", v(aW + j), v(l31), 7, v(t1))
        k.I("s_lshl_b32", s(st0), s(sth), 13)
        k.I("s_add_u32", s(st0), s(st0), 16384)
        k.I("v_add_u32", v(aW + j), s(st0), v(aW + j))
    aZ2 = k.valloc(); aW2 = k.valloc(4)
    k.I("v_add_u32", v(aZ2), 65536, v(aZ))
    for j in range(4): k.I("v_add_u32", v(aW2 + j), 65536, v(aW + j))
    acc = [[k.valloc(16, 4) for _ in range(2)] for _ in range(2)]
    NB = 3
    zf = [[k.valloc(4) for _ in range(2)] for _ in range(NB)]
    wf = [[k.valloc(4) for _ in range(2)] for _ in range(NB)]
    def rl(ks):
        c, j = ks // 4, ks % 4
        b = ks % NB
        sl = (c % NS) * SLOT
        hi = sl >= 65536
        so = sl - (65536 if hi else 0)
        out = []
        for fi in range(2):
            out.append(lambda fi=fi: k.lg(("f", ks), "ds_read_b128", vr(zf[b][fi], 4), v(aZ2 if hi else aZ), mods=f"offset:{so + fi * 4096 + j * 1024}"))
        for ti in range(2):
            out.append(lambda ti=ti: k.lg(("f", ks), "ds_read_b128", vr(wf[b][ti], 4), v((aW2 if hi else aW) + j), mods=f"offset:{so + ti * 4096}"))
        return out
    k.I("s_barrier")
    stp.stamp(1)
    for f in rl(0) + rl(1): f()
    NKS = NST * 4
    for ks in range(NKS):
        c, j = ks // 4, ks % 4
        b = ks % NB
        k.wait_lg(("f", ks))
        mf = []
        for fi in range(2):
            for ti in range(2):
                mf.append(lambda fi=fi, ti=ti: k.I("v_mfma_f32_32x32x16_bf16", vr(acc[fi][ti], 16), vr(zf[b][fi], 4), vr(wf[b][ti], 4), 0 if ks == 0 else vr(acc[fi][ti], 16)))
        fl = rl(ks + 2) if ks + 2 < NKS else []
        if j == 2 and ks + 2 < NKS:
            if not LT and c in (0, 13, 14): stp.tick({0: 0, 13: 1, 14: 2}[c])
            k.I("s_barrier")
        interleave(k, mf, fl)
    if not LT: stp.tick(3)
    stp.stamp(2)
    if not LT: stp.tick(4)
    if not LT: stp.tick(5)
    vz = k.valloc()
    k.I("s_lshl_b32", s(st0), s(sth), 14)
    k.I("s_lshl_b32", s(st1), s(sfh), 12)
    k.I("s_add_u32", s(st0), s(st0), s(st1))
    k.I("s_add_u32", s(st0), s(st0), Z1REG)
    k.I("v_add_u32", v(vz), s(st0), v(v16))
    for ti in range(2):
        for fi in range(2):
            for hf_ in range(2):
                k.lg(("z1", ti, fi), "ds_read_b128", vr(z1[fi][ti] + 4 * hf_, 4), v(vz), mods=f"offset:{ti * 8192 + fi * 2048 + hf_ * 1024}")
    k.wait_vm("z1")
    for ti in range(2):
        k.I("v_lshlrev_b32", v(bb[ti]), 16, v(bb[ti]))
        k.I("v_mul_f32", v(bb[ti]), v(bb[ti]), v(rr[ti]))
    k.I("s_cmp_eq_u32", s(skap), 0)
    k.I("s_cselect_b32", s(st0), "1.0", 0)
    for ti in range(2): k.I("v_mul_f32", v(bb[ti]), s(st0), v(bb[ti]))
    tp = [k.valloc(2) for _ in range(4)]
    P = [k.valloc(8, 4) for _ in range(2)]
    sU = k.salloc()
    k.I("s_mul_i32", s(sU), s(skap), U1_OFF - U0_OFF)
    k.I("s_add_u32", s(sU), s(sU), hex(U0_OFF))
    n = 0
    for ti in range(2):
        for fi in range(2):
            A = acc[fi][ti]; Zp = z1[fi][ti]; PP = P[n & 1]; n += 1
            for j in range(8):
                k.I("v_pk_fma_f32", vr(A + 2 * j, 2), vr(A + 2 * j, 2), vr(rr[ti], 2), vr(bb[ti], 2), mods="op_sel_hi:[1,0,0]")
            k.wait_lg(("z1", ti, fi))
            for j in range(8):
                T = tp[j % 4]
                k.I("v_lshlrev_b32", v(T), 16, v(Zp + j))
                k.I("v_and_b32", v(T + 1), "0xffff0000", v(Zp + j))
                k.I("v_pk_mul_f32", vr(A + 2 * j, 2), vr(A + 2 * j, 2), vr(T, 2))
            for j in range(8): k.I("v_cvt_pk_bf16_f32", v(PP + j), v(A + 2 * j), v(A + 2 * j + 1))
            k.I("s_add_u32", s(st0), s(sst), ti)
            k.I("s_mul_i32", s(soff), s(st0), 56 * 1024)
            k.I("s_add_u32", s(st0), s(sf32), fi)
            k.I("s_lshl_b32", s(st0), s(st0), 11)
            k.I("s_add_u32", s(soff), s(soff), s(st0))
            k.I("s_add_u32", s(soff), s(soff), s(sU))
            k.I("buffer_store_dwordx4", vr(PP, 4), v(v16), sr(sWS, 4), s(soff), mods="offen")
            k.I("buffer_store_dwordx4", vr(PP + 4, 4), v(v16), sr(sWS, 4), s(soff), mods="offen offset:1024")
            if not LT: stp.tick(5 + n)
    stp.stamp(3)
    if not LT: stp.tick(10)
    if not LT: stp.dump_ticks()
    k.I("s_endpgm")
    k.L(pfrole)
    vT2 = k.valloc()
    k.I("s_sub_u32", s(st0), s(sidx), 28)
    k.I("s_lshl_b32", s(st0), s(st0), 9)
    k.I("v_add_u32", v(vT2), s(st0), "v0")
    k.I("v_lshlrev_b32", v(vT2), 7, v(vT2))
    l2_prefetch(k, 56, 896 * 896, vT2, 2048, st0)
    k.L(R["done"])
    k.I("s_endpgm")
    k.lds = lds; k.threads = 512; k.grid = 256
    return k

def gen_k56(Stamper):
    k = Kernel("k5_sp_kernel")
    NS = 4; SLOT = 32768
    Z1REG = NS * SLOT
    lds = Z1REG + 32768
    R = common_start(k, 256)
    swave, st0, st1, soff, lane, t0, t1, t2 = (R[x] for x in ("swave", "st0", "st1", "soff", "lane", "t0", "t1", "t2"))
    pSp = k.salloc(2); pB = k.salloc(2); pWS = k.salloc(2)
    k.I("s_load_dwordx2", sr(pSp, 2), "s[0:1]", 40)
    k.I("s_load_dwordx2", sr(pB, 2), "s[0:1]", 48)
    k.I("s_load_dwordx2", sr(pWS, 2), "s[0:1]", 80)
    pWo = k.salloc(2); pOD = k.salloc(4)
    k.I("s_load_dwordx2", sr(pWo, 2), "s[0:1]", 56)
    k.I("s_load_dwordx4", sr(pOD, 4), "s[0:1]", 64)
    sWS = k.salloc(4); sSp = k.salloc(4); sB = k.salloc(4); sWo = k.salloc(4); sOut = k.salloc(4); sD = k.salloc(4)
    sj = k.salloc(); sidx = k.salloc(); stt = k.salloc(); sft = k.salloc(); skap = k.salloc(); sw3 = k.salloc()
    if os.environ.get("K5MAP") == "linear":
        k.I("s_mul_i32", s(sj), "s2", 2341)
        k.I("s_lshr_b32", s(sj), s(sj), 16)
        k.I("s_mul_i32", s(sidx), s(sj), 28)
        k.I("s_sub_u32", s(sidx), "s2", s(sidx))
    else:
        k.I("s_and_b32", s(sj), "s2", 7)
        k.I("s_lshr_b32", s(sidx), "s2", 3)
    pfrole = k.newlabel("pfrole")
    k.I("s_cmp_ge_u32", s(sidx), 28)
    k.I("s_cbranch_scc1", pfrole)
    k.I("s_and_b32", s(sw3), s(swave), 3)
    k.I("s_and_b32", s(skap), s(sj), 1)
    k.I("s_mul_i32", s(st0), s(sidx), 37)
    k.I("s_lshr_b32", s(st0), s(st0), 8)
    k.I("s_mul_i32", s(st1), s(st0), 7)
    k.I("s_sub_u32", s(sft), s(sidx), s(st1))
    k.I("s_lshr_b32", s(stt), s(sj), 1)
    k.I("s_lshl_b32", s(stt), s(stt), 2)
    k.I("s_add_u32", s(stt), s(stt), s(st0))
    stp = Stamper(k, 4, sWS, swave)
    if os.environ.get("TICKWAVE", "0") != "0": stp.tick(0)
    k.I("s_waitcnt", "lgkmcnt(0)")
    srd(k, sWS, pWS, WS_SIZE)
    comp = k.newlabel("compute")
    k.I("s_cmp_lt_u32", s(swave), 4)
    k.I("s_cbranch_scc1", comp)
    vsave = k.vnext
    srd(k, sSp, pSp, 2048 * 4096)
    v16 = k.valloc(); vWo = k.valloc(2)
    k.I("v_lshlrev_b32", v(v16), 4, v(lane))
    k.I("v_lshrrev_b32", v(t0), 3, v(lane))
    k.I("v_lshlrev_b32", v(t0), 12, v(t0))
    k.I("v_lshrrev_b32", v(t1), 4, v(lane))
    k.I("v_and_b32", v(t2), 7, v(lane))
    k.I("v_xor_b32", v(t1), v(t1), v(t2))
    k.I("v_lshl_add_u32", v(vWo), v(t1), 4, v(t0))
    k.I("v_xor_b32", v(t1), 4, v(t1))
    k.I("v_lshl_add_u32", v(vWo + 1), v(t1), 4, v(t0))
    sZb = k.salloc(); sWb = k.salloc(); smZ = k.salloc(); smW = k.salloc()
    k.I("s_lshl_b32", s(st0), s(sft), 2)
    k.I("s_add_u32", s(st0), s(st0), s(sw3))
    k.I("s_mul_i32", s(sZb), s(st0), ZS)
    k.I("s_mul_i32", s(st1), s(skap), ZK)
    k.I("s_add_u32", s(sZb), s(sZb), s(st1))
    k.I("s_add_u32", s(sZb), s(sZb), hex(Z2_OFF))
    k.I("s_lshl_b32", s(smZ), s(sw3), 12)
    k.I("s_lshl_b32", s(st0), s(stt), 7)
    k.I("s_lshl_b32", s(st1), s(sw3), 5)
    k.I("s_add_u32", s(st0), s(st0), s(st1))
    k.I("s_lshl_b32", s(sWb), s(st0), 12)
    k.I("s_lshl_b32", s(st1), s(skap), 11)
    k.I("s_add_u32", s(sWb), s(sWb), s(st1))
    k.I("s_add_u32", s(smW), s(smZ), 16384)
    def issue(c):
        sl = (c % NS) * SLOT
        def zpart():
            for i in range(4):
                k.I("s_add_u32", s(soff), s(sZb), hex((4 * c + i) * 1024))
                k.I("s_add_u32", "m0", s(smZ), hex(sl + i * 1024))
                k.vm(("S", c), "buffer_load_dwordx4", v(v16), sr(sWS, 4), s(soff), mods="offen lds")
                if os.environ.get("DIAG5") and c == 0 and i in (0, 3):
                    k.I("s_waitcnt", "vmcnt(0)"); stp.tick(10 + (i > 0))
        def wpart():
            for i in range(4):
                k.I("s_add_u32", s(soff), s(sWb), hex(i * 8 * 4096 + c * 128))
                k.I("s_add_u32", "m0", s(smW), hex(sl + i * 1024))
                k.vm(("S", c), "buffer_load_dwordx4", v(vWo + (i & 1)), sr(sSp, 4), s(soff), mods="offen lds")
                if os.environ.get("DIAG5") and c == 0 and i in (0, 3):
                    k.I("s_waitcnt", "vmcnt(0)"); stp.tick(12 + (i > 0))
        if os.environ.get("DIAG5") == "2": wpart(); zpart()
        else: zpart(); wpart()
    NST = 16
    sZ1 = k.salloc()
    k.I("s_lshl_b32", s(st0), s(stt), 2)
    k.I("s_add_u32", s(st0), s(st0), s(sw3))
    k.I("s_mul_i32", s(sZ1), s(st0), 56 * 1024)
    k.I("s_lshl_b32", s(st1), s(sft), 13)
    k.I("s_add_u32", s(sZ1), s(sZ1), s(st1))
    k.I("s_add_u32", s(sZ1), s(sZ1), hex(Z1_OFF))
    smZ1 = k.salloc()
    k.I("s_lshl_b32", s(smZ1), s(sw3), 13)
    def issue_z1(i, tag):
        k.I("s_add_u32", s(soff), s(sZ1), hex(i * 1024))
        k.I("s_add_u32", "m0", s(smZ1), hex(Z1REG + i * 1024))
        k.vm(("S", tag), "buffer_load_dwordx4", v(v16), sr(sWS, 4), s(soff), mods="offen lds")
    LT = os.environ.get("TICKWAVE", "0") != "0"
    if LT: stp.tick(1)
    issue(0)
    if LT: stp.tick(2)
    issue(1)
    if LT: stp.tick(3)
    for c in range(NST):
        k.wait_vm(("S", c))
        if LT and c < 3: stp.tick(4 + 2 * c)
        k.I("s_barrier")
        if LT and c < 3: stp.tick(5 + 2 * c)
        if c == 0: issue(2); issue(3)
        elif c + 2 < NST and c >= 2:
            issue(c + 2)
            if 3 <= c < 11: issue_z1(c - 3, c + 2)
    srd(k, sWo, pWo, 896 * 896)
    vWd = k.valloc(); sWd = k.salloc(); smD = k.salloc()
    k.I("v_lshrrev_b32", v(t0), 3, v(lane))
    k.I("v_mul_u32_u24", v(t0), 896, v(t0))
    k.I("v_bfe_u32", v(t1), v(lane), 4, 1)
    k.I("v_lshlrev_b32", v(t1), 2, v(t1))
    k.I("v_and_b32", v(t2), 7, v(lane))
    k.I("v_xor_b32", v(t1), v(t1), v(t2))
    k.I("v_lshl_add_u32", v(vWd), v(t1), 4, v(t0))
    k.I("s_mul_i32", s(sWd), s(sw3), 224 * 896)
    k.I("s_lshl_b32", s(st1), s(sft), 7)
    k.I("s_add_u32", s(sWd), s(sWd), s(st1))
    k.I("s_mul_i32", s(smD), s(sw3), 224 * 128)
    k.I("s_barrier")
    for i in range(28):
        k.I("s_add_u32", s(soff), s(sWd), hex(i * 8 * 896))
        k.I("s_add_u32", "m0", s(smD), hex(i * 1024))
        k.I("buffer_load_dwordx4", v(vWd), sr(sWo, 4), s(soff), mods="offen lds")
    k.I("s_waitcnt", "vmcnt(0)")
    k.I("s_barrier")
    k.I("s_endpgm")
    k.L(comp)
    k.vnext = vsave; k.vmq = []; k.lgq = []
    srd(k, sB, pB, 4096)
    l31 = k.valloc(); hh = k.valloc()
    k.I("v_and_b32", v(l31), 31, v(lane))
    k.I("v_lshrrev_b32", v(hh), 5, v(lane))
    sfh = k.salloc(); sth = k.salloc(); sst = k.salloc(); sf32 = k.salloc()
    k.I("s_and_b32", s(sfh), s(swave), 1)
    k.I("s_lshr_b32", s(sth), s(swave), 1)
    k.I("s_lshl_b32", s(sst), s(stt), 2)
    k.I("s_lshl_b32", s(st0), s(sth), 1)
    k.I("s_add_u32", s(sst), s(sst), s(st0))
    k.I("s_lshl_b32", s(sf32), s(sft), 2)
    k.I("s_lshl_b32", s(st0), s(sfh), 1)
    k.I("s_add_u32", s(sf32), s(sf32), s(st0))
    if os.environ.get("PF3", "0") == "1":
        vT0 = k.valloc(); vd0 = k.valloc(2)
        k.I("s_lshl_b32", s(st0), s(sidx), 8)
        k.I("v_add_u32", v(vT0), s(st0), "v0")
        k.I("s_lshl_b32", s(st1), s(skap), 16)
        k.I("s_add_u32", s(st1), s(st1), hex(Z2_OFF))
        for i in range(2):
            k.I("v_add_u32", v(t0), 7168 * i, v(vT0))
            k.I("v_lshrrev_b32", v(t1), 9, v(t0))
            k.I("v_lshlrev_b32", v(t1), 17, v(t1))
            k.I("v_and_b32", v(t2), 511, v(t0))
            k.I("v_lshl_add_u32", v(t1), v(t2), 7, v(t1))
            k.vm("pf", "buffer_load_dword", v(vd0 + i), v(t1), sr(sWS, 4), s(st1), mods="offen")
    v16 = k.valloc()
    k.I("v_lshlrev_b32", v(v16), 4, v(lane))
    vB = k.vnext
    z1 = [[k.valloc(8, 4) for _ in range(2)] for _ in range(2)]
    rr = [k.valloc(2) for _ in range(2)]; bb = [k.valloc(2) for _ in range(2)]
    k.I("v_lshlrev_b32", v(t0), 2, v(l31))
    k.I("v_lshlrev_b32", v(t1), 1, v(l31))
    for ti in range(2):
        k.I("s_add_u32", s(st0), s(sst), ti)
        k.I("s_lshl_b32", s(soff), s(st0), 7)
        k.I("s_add_u32", s(soff), s(soff), hex(RH_OFF))
        k.vm("z1", "buffer_load_dword", v(rr[ti]), v(t0), sr(sWS, 4), s(soff), mods="offen")
        k.I("s_lshl_b32", s(soff), s(st0), 6)
        k.vm("z1", "buffer_load_ushort", v(bb[ti]), v(t1), sr(sB, 4), s(soff), mods="offen")
    if os.environ.get("PF2", "0") == "1":
        pp = k.salloc(2); sP = k.salloc(4); vT = k.valloc(); vd = k.valloc(2)
        k.I("s_load_dwordx2", sr(pp, 2), "s[0:1]", 56)
        k.I("s_lshl_b32", s(st0), s(sidx), 8)
        k.I("v_add_u32", v(vT), s(st0), "v0")
        k.I("v_lshlrev_b32", v(vT), 7, v(vT))
        k.I("s_waitcnt", "lgkmcnt(0)")
        srd(k, sP, pp, 896 * 896)
        k.vm("pf", "buffer_load_dword", v(vd), v(vT), sr(sP, 4), 0, mods="offen")
    stp.stamp(0)
    aZ = k.valloc(); aW = k.valloc(4)
    k.I("s_lshl_b32", s(st0), s(sfh), 13)
    k.I("v_add_u32", v(aZ), s(st0), v(v16))
    k.I("v_bfe_u32", v(t0), v(l31), 1, 3)
    for j in range(4):
        k.I("v_add_u32", v(t1), 2 * j, v(hh))
        k.I("v_xor_b32", v(t1), v(t1), v(t0))
        k.I("v_lshlrev_b32", v(t1), 4, v(t1))
        k.I("v_lshl_add_u32", v(aW + j), v(l31), 7, v(t1))
        k.I("s_lshl_b32", s(st0), s(sth), 13)
        k.I("s_add_u32", s(st0), s(st0), 16384)
        k.I("v_add_u32", v(aW + j), s(st0), v(aW + j))
    aZ2 = k.valloc(); aW2 = k.valloc(4)
    k.I("v_add_u32", v(aZ2), 65536, v(aZ))
    for j in range(4): k.I("v_add_u32", v(aW2 + j), 65536, v(aW + j))
    acc = [[k.valloc(16, 4) for _ in range(2)] for _ in range(2)]
    NB = 3
    zf = [[k.valloc(4) for _ in range(2)] for _ in range(NB)]
    wf = [[k.valloc(4) for _ in range(2)] for _ in range(NB)]
    def rl(ks):
        c, j = ks // 4, ks % 4
        b = ks % NB
        sl = (c % NS) * SLOT
        hi = sl >= 65536
        so = sl - (65536 if hi else 0)
        out = []
        for fi in range(2):
            out.append(lambda fi=fi: k.lg(("f", ks), "ds_read_b128", vr(zf[b][fi], 4), v(aZ2 if hi else aZ), mods=f"offset:{so + fi * 4096 + j * 1024}"))
        for ti in range(2):
            out.append(lambda ti=ti: k.lg(("f", ks), "ds_read_b128", vr(wf[b][ti], 4), v((aW2 if hi else aW) + j), mods=f"offset:{so + ti * 4096}"))
        return out
    k.I("s_barrier")
    if not os.environ.get("DIAG56"): stp.stamp(1)
    for f in rl(0) + rl(1): f()
    NKS = NST * 4
    for ks in range(NKS):
        c, j = ks // 4, ks % 4
        b = ks % NB
        k.wait_lg(("f", ks))
        mf = []
        for fi in range(2):
            for ti in range(2):
                mf.append(lambda fi=fi, ti=ti: k.I("v_mfma_f32_32x32x16_bf16", vr(acc[fi][ti], 16), vr(zf[b][fi], 4), vr(wf[b][ti], 4), 0 if ks == 0 else vr(acc[fi][ti], 16)))
        fl = rl(ks + 2) if ks + 2 < NKS else []
        if j == 2 and ks + 2 < NKS:
            k.I("s_barrier")
        interleave(k, mf, fl)
    k.I("s_barrier")
    if not os.environ.get("DIAG56"): stp.stamp(2)
    vz = k.valloc()
    k.I("s_lshl_b32", s(st0), s(sth), 14)
    k.I("s_lshl_b32", s(st1), s(sfh), 12)
    k.I("s_add_u32", s(st0), s(st0), s(st1))
    k.I("s_add_u32", s(st0), s(st0), Z1REG)
    k.I("v_add_u32", v(vz), s(st0), v(v16))
    for ti in range(2):
        for fi in range(2):
            for hf_ in range(2):
                k.lg(("z1", ti, fi), "ds_read_b128", vr(z1[fi][ti] + 4 * hf_, 4), v(vz), mods=f"offset:{ti * 8192 + fi * 2048 + hf_ * 1024}")
    k.wait_vm("z1")
    for ti in range(2):
        k.I("v_lshlrev_b32", v(bb[ti]), 16, v(bb[ti]))
        k.I("v_mul_f32", v(bb[ti]), v(bb[ti]), v(rr[ti]))
    k.I("s_cmp_eq_u32", s(skap), 0)
    k.I("s_cselect_b32", s(st0), "1.0", 0)
    for ti in range(2): k.I("v_mul_f32", v(bb[ti]), s(st0), v(bb[ti]))
    tp = [k.valloc(2) for _ in range(4)]
    P = [k.valloc(8, 4) for _ in range(2)]
    sU = k.salloc()
    k.I("s_mul_i32", s(sU), s(skap), U1_OFF - U0_OFF)
    k.I("s_add_u32", s(sU), s(sU), hex(U0_OFF))
    n = 0
    for ti in range(2):
        for fi in range(2):
            A = acc[fi][ti]; Zp = z1[fi][ti]; PP = P[n & 1]; n += 1
            for j in range(8):
                k.I("v_pk_fma_f32", vr(A + 2 * j, 2), vr(A + 2 * j, 2), vr(rr[ti], 2), vr(bb[ti], 2), mods="op_sel_hi:[1,0,0]")
            k.wait_lg(("z1", ti, fi))
            for j in range(8):
                T = tp[j % 4]
                k.I("v_lshlrev_b32", v(T), 16, v(Zp + j))
                k.I("v_and_b32", v(T + 1), "0xffff0000", v(Zp + j))
                k.I("v_pk_mul_f32", vr(A + 2 * j, 2), vr(A + 2 * j, 2), vr(T, 2))
            for j in range(8): k.I("v_cvt_pk_bf16_f32", v(PP + j), v(A + 2 * j), v(A + 2 * j + 1))
            k.I("s_add_u32", s(st0), s(sst), ti)
            k.I("s_mul_i32", s(soff), s(st0), 56 * 1024)
            k.I("s_add_u32", s(st0), s(sf32), fi)
            k.I("s_lshl_b32", s(st0), s(st0), 11)
            k.I("s_add_u32", s(soff), s(soff), s(st0))
            k.I("s_add_u32", s(soff), s(soff), s(sU))
            k.I("buffer_store_dwordx4", vr(PP, 4), v(v16), sr(sWS, 4), s(soff), mods="offen")
            k.I("buffer_store_dwordx4", vr(PP + 4, 4), v(v16), sr(sWS, 4), s(soff), mods="offen offset:1024")
    stp.stamp(3)
    k.vnext = vB
    srd(k, sOut, pOD, 2048 * 896)
    srd(k, sD, pOD + 2, 256)
    srh = k.salloc(); skh = k.salloc(); sstB = k.salloc()
    k.I("s_and_b32", s(srh), s(swave), 1)
    k.I("s_lshr_b32", s(skh), s(swave), 1)
    k.I("s_lshl_b32", s(sstB), s(stt), 2)
    k.I("s_lshl_b32", s(st0), s(skap), 1)
    k.I("s_add_u32", s(sstB), s(sstB), s(st0))
    k.I("s_add_u32", s(sstB), s(sstB), s(srh))
    hr = k.valloc(8, 4)
    k.I("s_mul_i32", s(soff), s(sstB), 28 * 1024)
    k.I("s_lshl_b32", s(st0), s(sft), 1)
    k.I("s_add_u32", s(st0), s(st0), s(skh))
    sntile = k.salloc()
    k.I("s_mov_b32", s(sntile), s(st0))
    k.I("s_lshl_b32", s(st0), s(st0), 11)
    k.I("s_add_u32", s(soff), s(soff), s(st0))
    k.I("s_add_u32", s(soff), s(soff), hex(H_OFF))
    k.I("s_waitcnt", "vmcnt(0)")
    k.vmq = []
    fl = k.valloc(2); vz0 = k.valloc(); one = k.valloc()
    k.I("s_mul_i32", s(st0), s(skap), 7)
    k.I("s_add_u32", s(st0), s(st0), s(sft))
    k.I("s_lshl_b32", s(st0), s(st0), 2)
    k.I("s_add_u32", s(st0), s(st0), s(swave))
    k.I("s_lshl_b32", s(st0), s(st0), 2)
    k.I("s_lshl_b32", s(st1), s(stt), 8)
    sFL = k.salloc()
    k.I("s_add_u32", s(sFL), s(st1), hex(FL_OFF))
    k.I("s_add_u32", s(st0), s(st0), s(sFL))
    k.I("v_mov_b32", v(vz0), 0)
    k.I("v_mov_b32", v(one), 1)
    k.I("s_mov_b64", "exec", 1)
    k.I("buffer_store_dword", v(one), v(vz0), sr(sWS, 4), s(st0), mods="offen sc0 sc1")
    k.I("s_mov_b64", "exec", -1)
    k.I("buffer_load_dwordx4", vr(hr, 4), v(v16), sr(sWS, 4), s(soff), mods="offen")
    k.I("buffer_load_dwordx4", vr(hr + 4, 4), v(v16), sr(sWS, 4), s(soff), mods="offen offset:1024")
    k.I("v_min_u32", v(vz0), 55, v(lane))
    k.I("v_lshlrev_b32", v(vz0), 2, v(vz0))
    vWb = [k.valloc(), k.valloc()]
    k.I("v_bfe_u32", v(t0), v(lane), 2, 2)
    k.I("v_lshl_add_u32", v(t0), v(hh), 2, v(t0))
    k.I("s_mul_i32", s(st0), s(skh), 448)
    k.I("v_add_u32", v(t0), s(st0), v(t0))
    k.I("v_lshlrev_b32", v(t0), 7, v(t0))
    k.I("v_bfe_u32", v(t1), v(lane), 4, 1)
    k.I("v_lshlrev_b32", v(t1), 1, v(t1))
    k.I("v_bfe_u32", v(t2), v(lane), 1, 1)
    k.I("v_add_u32", v(t1), v(t1), v(t2))
    k.I("v_bfe_u32", v(t2), v(lane), 3, 1)
    k.I("v_lshlrev_b32", v(t2), 2, v(t2))
    for n2 in range(2):
        k.I("v_add_u32", v(vWb[n2]), 4 * n2, v(t1))
        k.I("v_xor_b32", v(vWb[n2]), v(vWb[n2]), v(t2))
        k.I("v_lshl_add_u32", v(vWb[n2]), v(vWb[n2]), 4, v(t0))
    k.I("v_and_b32", v(t1), 1, v(lane))
    for n2 in range(2): k.I("v_lshl_add_u32", v(vWb[n2]), v(t1), 3, v(vWb[n2]))
    sU0 = k.salloc(); sU1 = k.salloc()
    k.I("s_mul_i32", s(sU0), s(sstB), 56 * 1024)
    k.I("s_mul_i32", s(st0), s(skh), 28 * 1024)
    k.I("s_add_u32", s(sU0), s(sU0), s(st0))
    k.I("s_add_u32", s(sU1), s(sU0), hex(U1_OFF))
    k.I("s_add_u32", s(sU0), s(sU0), hex(U0_OFF))
    accB = [k.valloc(16, 4) for _ in range(2)]
    NU = 12
    uf = [[k.valloc(4) for _ in range(2)] for _ in range(NU)]
    NBW = 3
    wfB = [[k.valloc(4) for _ in range(2)] for _ in range(NBW)]
    scount = k.salloc()
    k.I("s_mov_b32", s(scount), 0)
    poll = k.newlabel("poll"); pdone = k.newlabel("pdone")
    k.L(poll)
    k.I("buffer_load_dword", v(fl), v(vz0), sr(sWS, 4), s(sFL), mods="offen sc0 sc1")
    k.I("s_waitcnt", "vmcnt(0)")
    k.I("v_cmp_ne_u32", "vcc", 1, v(fl))
    k.I("s_add_u32", s(scount), s(scount), 1)
    k.I("s_cmp_eq_u64", "vcc", 0)
    k.I("s_cbranch_scc1", pdone)
    k.I("s_cmp_lt_u32", s(scount), 0x100000)
    k.I("s_cbranch_scc0", pdone)
    k.I("s_sleep", 1)
    k.I("s_branch", poll)
    k.L(pdone)
    k.vmq = []
    stp.stamp(4)
    def uload(j):
        for ar_, sU in enumerate((sU0, sU1)):
            k.I("s_add_u32", s(soff), s(sU), hex(j * 1024))
            k.vm(("u", j), "buffer_load_dwordx4", vr(uf[j % NU][ar_], 4), v(v16), sr(sWS, 4), s(soff), mods="offen sc1")
    def wread(j):
        out = []
        for n2 in range(2):
            for beta in range(2):
                out.append(lambda n2=n2, beta=beta: k.lg(("w", j), "ds_read_b64_tr_b16", vr(wfB[j % NBW][n2] + 2 * beta, 2), v(vWb[n2]), mods=f"offset:{(16 * j + 8 * beta) * 128}"))
        return out
    for j in range(NU): uload(j)
    k.I("s_barrier")
    for f in wread(0) + wread(1): f()
    for j in range(28):
        k.wait_vm(("u", j))
        k.wait_lg(("w", j))
        mf = []
        for ar_ in range(2):
            for n2 in range(2):
                mf.append(lambda ar_=ar_, n2=n2: k.I("v_mfma_f32_32x32x16_bf16", vr(accB[n2], 16), vr(wfB[j % NBW][n2], 4), vr(uf[j % NU][ar_], 4), 0 if (j == 0 and ar_ == 0) else vr(accB[n2], 16)))
        fl_ = wread(j + 2) if j + 2 < 28 else []
        interleave(k, mf, fl_)
        if j + NU < 28: uload(j + NU)
    stp.stamp(5)
    RED = 114688
    vr1 = k.valloc(); vr2 = k.valloc()
    k.I("s_lshl_b32", s(st0), s(srh), 13)
    k.I("s_add_u32", s(st0), s(st0), RED)
    k.I("v_add_u32", v(vr1), s(st0), v(v16))
    k.I("s_lshl_b32", s(st1), s(skh), 12)
    k.I("v_add_u32", v(vr2), s(st1), v(vr1))
    k.I("s_xor_b32", s(st1), s(st1), 4096)
    k.I("v_add_u32", v(vr1), s(st1), v(vr1))
    keep = k.valloc(16, 4)
    lab_a = k.newlabel("kh1"); lab_b = k.newlabel("khj")
    k.I("s_cmp_lg_u32", s(skh), 0)
    k.I("s_cbranch_scc1", lab_a)
    for q in range(4): k.I("ds_write_b128", v(vr1), vr(accB[1] + 4 * q, 4), mods=f"offset:{q * 1024}")
    for i in range(16): k.I("v_mov_b32", v(keep + i), v(accB[0] + i))
    k.I("s_branch", lab_b)
    k.L(lab_a)
    for q in range(4): k.I("ds_write_b128", v(vr1), vr(accB[0] + 4 * q, 4), mods=f"offset:{q * 1024}")
    for i in range(16): k.I("v_mov_b32", v(keep + i), v(accB[1] + i))
    k.L(lab_b)
    k.I("s_waitcnt", "lgkmcnt(0)")
    k.lgq = []
    k.I("s_barrier")
    oth = k.valloc(16, 4)
    for q in range(4): k.I("ds_read_b128", vr(oth + 4 * q, 4), v(vr2), mods=f"offset:{q * 1024}")
    tpB = [k.valloc(2) for _ in range(4)]
    for j in range(8):
        T = tpB[j % 4]
        k.I("v_lshlrev_b32", v(T), 16, v(hr + j))
        k.I("v_and_b32", v(T + 1), "0xffff0000", v(hr + j))
        k.I("v_pk_add_f32", vr(keep + 2 * j, 2), vr(keep + 2 * j, 2), vr(T, 2))
    k.I("s_waitcnt", "lgkmcnt(0)")
    for j in range(8): k.I("v_pk_add_f32", vr(keep + 2 * j, 2), vr(keep + 2 * j, 2), vr(oth + 2 * j, 2))
    PB = k.valloc(8, 4)
    for j in range(8): k.I("v_cvt_pk_bf16_f32", v(PB + j), v(keep + 2 * j), v(keep + 2 * j + 1))
    for kp in range(2):
        k.I("v_permlane32_swap_b32", v(PB + 4 * kp), v(PB + 4 * kp + 2))
        k.I("v_permlane32_swap_b32", v(PB + 4 * kp + 1), v(PB + 4 * kp + 3))
    vo = k.valloc()
    k.I("v_mul_u32_u24", v(vo), 896, v(l31))
    k.I("v_lshl_add_u32", v(vo), v(hh), 4, v(vo))
    k.I("s_mul_i32", s(soff), s(sstB), 32 * 896)
    k.I("s_lshl_b32", s(st0), s(sntile), 6)
    k.I("s_add_u32", s(soff), s(soff), s(st0))
    for kp in range(2):
        k.I("buffer_store_dwordx4", vr(PB + 4 * kp, 4), v(vo), sr(sOut, 4), s(soff), mods=f"offen offset:{32 * kp}")
    stp.stamp(6)
    k.I("s_endpgm")
    k.L(pfrole)
    vT2 = k.valloc()
    k.I("s_sub_u32", s(st0), s(sidx), 28)
    k.I("s_lshl_b32", s(st0), s(st0), 9)
    k.I("v_add_u32", v(vT2), s(st0), "v0")
    k.I("v_lshlrev_b32", v(vT2), 7, v(vT2))
    l2_prefetch(k, 56, 896 * 896, vT2, 2048, st0)
    k.L(R["done"])
    k.I("s_endpgm")
    k.lds = lds; k.threads = 512; k.grid = 256
    return k

def gen_k6(Stamper):
    k = Kernel("k6_wout_kernel")
    NS = 5; SLOT = 24576
    RED = 0
    lds = NS * SLOT
    R = common_start(k, 224)
    swave, st0, st1, soff, lane, t0, t1, t2 = (R[x] for x in ("swave", "st0", "st1", "soff", "lane", "t0", "t1", "t2"))
    pWo = k.salloc(2); pOut = k.salloc(2); pWS = k.salloc(2)
    k.I("s_load_dwordx2", sr(pWo, 2), "s[0:1]", 56)
    k.I("s_load_dwordx2", sr(pOut, 2), "s[0:1]", 64)
    k.I("s_load_dwordx2", sr(pWS, 2), "s[0:1]", 80)
    sWS = k.salloc(4); sWo = k.salloc(4); sOut = k.salloc(4)
    sj = k.salloc(); sidx = k.salloc(); srt = k.salloc(); snt = k.salloc(); sw3 = k.salloc()
    k.I("s_and_b32", s(sj), "s2", 7)
    k.I("s_lshr_b32", s(sidx), "s2", 3)
    k.I("s_and_b32", s(sw3), s(swave), 3)
    k.I("s_mul_i32", s(st0), s(sidx), 37)
    k.I("s_lshr_b32", s(st0), s(st0), 8)
    k.I("s_mul_i32", s(st1), s(st0), 7)
    k.I("s_sub_u32", s(snt), s(sidx), s(st1))
    k.I("s_lshl_b32", s(srt), s(sj), 2)
    k.I("s_add_u32", s(srt), s(srt), s(st0))
    stp = Stamper(k, 5, sWS, swave)
    k.I("s_waitcnt", "lgkmcnt(0)")
    srd(k, sWS, pWS, WS_SIZE)
    comp = k.newlabel("compute")
    k.I("s_cmp_lt_u32", s(swave), 4)
    k.I("s_cbranch_scc1", comp)
    vsave = k.vnext
    srd(k, sWo, pWo, 896 * 896)
    v16 = k.valloc(); vWo = k.valloc()
    k.I("v_lshlrev_b32", v(v16), 4, v(lane))
    k.I("v_lshrrev_b32", v(t0), 3, v(lane))
    k.I("v_mul_u32_u24", v(t0), 896, v(t0))
    k.I("v_bfe_u32", v(t1), v(lane), 4, 1)
    k.I("v_lshlrev_b32", v(t1), 2, v(t1))
    k.I("v_and_b32", v(t2), 7, v(lane))
    k.I("v_xor_b32", v(t1), v(t1), v(t2))
    k.I("v_lshl_add_u32", v(vWo), v(t1), 4, v(t0))
    sUb = k.salloc(); sWb = k.salloc(); smU = k.salloc(); smW = k.salloc()
    k.I("s_lshr_b32", s(st0), s(sw3), 1)
    k.I("s_lshl_b32", s(st1), s(srt), 1)
    k.I("s_add_u32", s(st1), s(st1), s(st0))
    k.I("s_mul_i32", s(sUb), s(st1), 56 * 1024)
    k.I("s_and_b32", s(st1), s(sw3), 1)
    k.I("s_mul_i32", s(smU), s(st1), U1_OFF - U0_OFF)
    k.I("s_add_u32", s(sUb), s(sUb), s(smU))
    k.I("s_add_u32", s(sUb), s(sUb), hex(U0_OFF))
    k.I("s_lshl_b32", s(smU), s(st1), 13)
    k.I("s_lshl_b32", s(st0), s(st0), 12)
    k.I("s_add_u32", s(smU), s(smU), s(st0))
    k.I("s_mul_i32", s(sWb), s(sw3), 16 * 896)
    k.I("s_lshl_b32", s(st1), s(snt), 7)
    k.I("s_add_u32", s(sWb), s(sWb), s(st1))
    k.I("s_lshl_b32", s(smW), s(sw3), 11)
    k.I("s_add_u32", s(smW), s(smW), 16384)
    def issue(c):
        sl = (c % NS) * SLOT
        for i in range(4):
            k.I("s_add_u32", s(soff), s(sUb), hex((4 * c + i) * 1024))
            k.I("s_add_u32", "m0", s(smU), hex(sl + i * 1024))
            k.vm(("S", c), "buffer_load_dwordx4", v(v16), sr(sWS, 4), s(soff), mods="offen lds")
        for i in range(2):
            k.I("s_add_u32", s(soff), s(sWb), hex((64 * c + 8 * i) * 896))
            k.I("s_add_u32", "m0", s(smW), hex(sl + i * 1024))
            k.vm(("S", c), "buffer_load_dwordx4", v(vWo), sr(sWo, 4), s(soff), mods="offen lds")
    NST = 14
    for c in range(3): issue(c)
    for c in range(NST):
        k.wait_vm(("S", c))
        k.I("s_barrier")
        if c == 0: issue(3); issue(4)
        elif c + 3 < NST and c >= 2: issue(c + 3)
    k.I("s_endpgm")
    k.L(comp)
    k.vnext = vsave; k.vmq = []; k.lgq = []
    srd(k, sOut, pOut, 2048 * 896)
    l31 = k.valloc(); hh = k.valloc()
    k.I("v_and_b32", v(l31), 31, v(lane))
    k.I("v_lshrrev_b32", v(hh), 5, v(lane))
    srh = k.salloc(); snh = k.salloc(); sst = k.salloc(); sntile = k.salloc()
    k.I("s_and_b32", s(srh), s(swave), 1)
    k.I("s_lshr_b32", s(snh), s(swave), 1)
    k.I("s_lshl_b32", s(sst), s(srt), 1)
    k.I("s_add_u32", s(sst), s(sst), s(srh))
    k.I("s_lshl_b32", s(sntile), s(snt), 1)
    k.I("s_add_u32", s(sntile), s(sntile), s(snh))
    if os.environ.get("PF3", "0") == "1":
        vT0 = k.valloc(); vd0 = k.valloc(2)
        k.I("s_lshl_b32", s(st0), s(sidx), 8)
        k.I("v_add_u32", v(vT0), s(st0), "v0")
        k.I("v_mov_b32", v(t0), hex(U1_OFF - U0_OFF - 3584 * 128))
        k.I("v_cmp_le_u32", "vcc", 3584, v(vT0))
        k.I("v_cndmask_b32", v(t0), 0, v(t0), "vcc")
        k.I("v_lshl_add_u32", v(t0), v(vT0), 7, v(t0))
        k.I("s_mul_i32", s(st1), s(sj), 8 * 56 * 1024)
        k.I("s_add_u32", s(st1), s(st1), hex(U0_OFF))
        k.vm("pf", "buffer_load_dword", v(vd0), v(t0), sr(sWS, 4), s(st1), mods="offen")
    v16 = k.valloc()
    k.I("v_lshlrev_b32", v(v16), 4, v(lane))
    hr = k.valloc(8, 4)
    k.I("s_mul_i32", s(soff), s(sst), 28 * 1024)
    k.I("s_lshl_b32", s(st0), s(sntile), 11)
    k.I("s_add_u32", s(soff), s(soff), s(st0))
    k.I("s_add_u32", s(soff), s(soff), hex(H_OFF))
    k.vm("h", "buffer_load_dwordx4", vr(hr, 4), v(v16), sr(sWS, 4), s(soff), mods="offen")
    k.vm("h", "buffer_load_dwordx4", vr(hr + 4, 4), v(v16), sr(sWS, 4), s(soff), mods="offen offset:1024")
    stp.stamp(0)
    aU = k.valloc(); vW = k.valloc()
    k.I("s_lshl_b32", s(st0), s(srh), 12)
    k.I("v_add_u32", v(aU), s(st0), v(v16))
    k.I("v_bfe_u32", v(t0), v(lane), 2, 2)
    k.I("v_lshl_add_u32", v(t0), v(hh), 2, v(t0))
    k.I("v_lshlrev_b32", v(vW), 7, v(t0))
    k.I("v_add_u32", v(vW), 16384, v(vW))
    k.I("v_bfe_u32", v(t0), v(lane), 4, 1)
    k.I("v_lshlrev_b32", v(t0), 1, v(t0))
    k.I("v_bfe_u32", v(t1), v(lane), 1, 1)
    k.I("v_add_u32", v(t0), v(t0), v(t1))
    k.I("s_lshl_b32", s(st0), s(snh), 2)
    k.I("v_add_u32", v(t0), s(st0), v(t0))
    k.I("v_bfe_u32", v(t1), v(lane), 3, 1)
    k.I("v_lshlrev_b32", v(t1), 2, v(t1))
    k.I("v_xor_b32", v(t0), v(t0), v(t1))
    k.I("v_lshl_add_u32", v(vW), v(t0), 4, v(vW))
    k.I("v_and_b32", v(t0), 1, v(lane))
    k.I("v_lshl_add_u32", v(vW), v(t0), 3, v(vW))
    aU2 = k.valloc(); vW2 = k.valloc()
    k.I("v_add_u32", v(aU2), 3 * SLOT, v(aU))
    k.I("v_add_u32", v(vW2), 3 * SLOT, v(vW))
    acc = k.valloc(16, 4)
    NB = 3
    uf = [[k.valloc(4) for _ in range(2)] for _ in range(NB)]; wf = [k.valloc(4) for _ in range(NB)]
    def rl(ks):
        c, j = ks // 4, ks % 4
        b = ks % NB
        sl = (c % NS)
        hi = sl >= 3
        so = (sl - (3 if hi else 0)) * SLOT
        out = []
        for ar_ in range(2):
            out.append(lambda ar_=ar_: k.lg(("f", ks), "ds_read_b128", vr(uf[b][ar_], 4), v(aU2 if hi else aU), mods=f"offset:{so + ar_ * 8192 + j * 1024}"))
        for beta in range(2):
            o = so + (16 * j + 8 * beta) * 128
            out.append(lambda o=o, beta=beta: k.lg(("f", ks), "ds_read_b64_tr_b16", vr(wf[b] + 2 * beta, 2), v(vW2 if hi else vW), mods=f"offset:{o}"))
        return out
    k.I("s_barrier")
    stp.stamp(1)
    for f in rl(0) + rl(1): f()
    NKS = NST * 4
    for ks in range(NKS):
        c, j = ks // 4, ks % 4
        b = ks % NB
        k.wait_lg(("f", ks))
        mf = [lambda ar_=ar_: k.I("v_mfma_f32_32x32x16_bf16", vr(acc, 16), vr(wf[b], 4), vr(uf[b][ar_], 4), 0 if (ks == 0 and ar_ == 0) else vr(acc, 16)) for ar_ in range(2)]
        fl = rl(ks + 2) if ks + 2 < NKS else []
        if j == 2 and ks + 2 < NKS: k.I("s_barrier")
        interleave(k, mf, fl)
    stp.stamp(2)
    k.wait_vm("h")
    tp = [k.valloc(2) for _ in range(4)]
    for j in range(8):
        T = tp[j % 4]
        k.I("v_lshlrev_b32", v(T), 16, v(hr + j))
        k.I("v_and_b32", v(T + 1), "0xffff0000", v(hr + j))
        k.I("v_pk_add_f32", vr(acc + 2 * j, 2), vr(acc + 2 * j, 2), vr(T, 2))
    P = k.valloc(8, 4)
    for j in range(8): k.I("v_cvt_pk_bf16_f32", v(P + j), v(acc + 2 * j), v(acc + 2 * j + 1))
    for kp in range(2):
        k.I("v_permlane32_swap_b32", v(P + 4 * kp), v(P + 4 * kp + 2))
        k.I("v_permlane32_swap_b32", v(P + 4 * kp + 1), v(P + 4 * kp + 3))
    vo = k.valloc()
    k.I("v_mul_u32_u24", v(vo), 896, v(l31))
    k.I("v_lshl_add_u32", v(vo), v(hh), 4, v(vo))
    k.I("s_mul_i32", s(soff), s(sst), 32 * 896)
    k.I("s_lshl_b32", s(st0), s(sntile), 6)
    k.I("s_add_u32", s(soff), s(soff), s(st0))
    for kp in range(2):
        k.I("buffer_store_dwordx4", vr(P + 4 * kp, 4), v(vo), sr(sOut, 4), s(soff), mods=f"offen offset:{32 * kp}")
    stp.stamp(3)
    if os.environ.get("SPIN"):
        ka, ja, kb, jb = [int(x) for x in os.environ["SPIN"].split(",")]
        sa_ = k.salloc(2); sb_ = k.salloc(2); sn_ = k.salloc(2); sq_ = k.salloc(2)
        lab = k.newlabel("spin"); out_ = k.newlabel("spun")
        k.I("s_or_b32", s(st0), "s2", s(swave))
        k.I("s_cmp_lg_u32", s(st0), 0)
        k.I("s_cbranch_scc1", out_)
        k.I("s_mov_b32", s(st0), hex(STAMP_OFF + ka * 256 * 64 + ja * 8))
        k.I("s_load_dwordx2", sr(sa_, 2), sr(pWS, 2), s(st0))
        k.I("s_mov_b32", s(st1), hex(STAMP_OFF + max(kb, 0) * 256 * 64 + jb * 8))
        if kb >= 0: k.I("s_load_dwordx2", sr(sb_, 2), sr(pWS, 2), s(st1))
        else: k.I("s_memrealtime", sr(sb_, 2))
        k.I("s_memrealtime", sr(sn_, 2))
        k.I("s_waitcnt", "lgkmcnt(0)")
        k.I("s_sub_u32", s(sa_), s(sb_), s(sa_))
        k.I("s_min_u32", s(sa_), s(sa_), 20000)
        k.I("s_add_u32", s(sn_), s(sn_), s(sa_))
        k.L(lab)
        k.I("s_memrealtime", sr(sq_, 2))
        k.I("s_waitcnt", "lgkmcnt(0)")
        k.I("s_sub_u32", s(sq_), s(sq_), s(sn_))
        k.I("s_cmp_lt_i32", s(sq_), 0)
        k.I("s_cbranch_scc1", lab)
        k.L(out_)
    k.L(R["done"])
    k.I("s_endpgm")
    k.lds = lds; k.threads = 512; k.grid = 224
    return k

def rest(Stamper):
    if os.environ.get("MERGE56", "0") == "1":
        return [gen_k2(Stamper), gen_k3(Stamper), gen_k4(Stamper), gen_k56(Stamper)]
    return [gen_k2(Stamper), gen_k3(Stamper), (gen_k4b if os.environ.get('K4B', '1') == '1' else gen_k4)(Stamper), gen_k5(Stamper), gen_k6(Stamper)]
```

```python
import sys, os
sys.path.insert(0, os.path.dirname(__file__))
from asmlib import *
from layout import *

NAME = "sequential_preLN__sliding_block__mixer_gmlp__prompt"
STAMPS = os.environ.get("GEN_STAMPS", "0") == "1"
WS_SIZE = 0x10000000

def srd(k, dst, base, size):
    k.I("s_mov_b32", s(dst), s(base))
    k.I("s_and_b32", s(dst + 1), s(base + 1), "0xffff")
    k.I("s_mov_b32", s(dst + 2), hex(size) if isinstance(size, int) else size)
    k.I("s_mov_b32", s(dst + 3), "0x20000")

class Stamper:
    def __init__(self, k, kidx, sWS, swave):
        self.k, self.kidx, self.sWS, self.swave = k, kidx, sWS, swave
        if STAMPS:
            self.st = k.salloc(2); self.vt = k.valloc(2); self.vo = k.valloc(1); self.ex = k.salloc(2)
    def tick(self, i):
        if not STAMPS or not os.environ.get("TICKS"): return
        if not hasattr(self, "tk"): self.tk = self.k.salloc(32, 4)
        self.k.I("s_memtime", sr(self.tk + 2 * i, 2))
        self.nt = max(getattr(self, "nt", 0), i + 1)
    def dump_ticks(self):
        if not STAMPS or not hasattr(self, "tk"): return
        k = self.k
        k.I("s_waitcnt", "lgkmcnt(0)")
        k.lgq = []
        k.I("s_lshl_b32", s(self.ex), "s2", 7)
        k.I("s_add_u32", s(self.ex), s(self.ex), hex(TICK_OFF + self.kidx * 256 * 128))
        k.I("s_cmp_lg_u32", s(self.swave), int(os.environ.get("TICKWAVE", "0")))
        k.I("s_cselect_b32", s(self.ex), "0x7ffffff0", s(self.ex))
        k.I("s_mov_b64", sr(self.st, 2), "exec")
        k.I("s_mov_b64", "exec", 1)
        k.I("v_mov_b32", v(self.vo), 0)
        for i in range(16):
            k.I("v_mov_b32", v(self.vt), s(self.tk + 2 * i))
            k.I("v_mov_b32", v(self.vt + 1), s(self.tk + 2 * i + 1))
            k.I("buffer_store_dwordx2", vr(self.vt, 2), v(self.vo), sr(self.sWS, 4), s(self.ex), mods=f"offen offset:{8 * i}")
            k.I("s_nop", 1)
        k.I("s_mov_b64", "exec", sr(self.st, 2))
    def stamp(self, j):
        if not STAMPS: return
        k = self.k
        k.I("s_memrealtime", sr(self.st, 2))
        k.I("s_lshl_b32", s(self.ex), "s2", 6)
        k.I("s_add_u32", s(self.ex), s(self.ex), hex(STAMP_OFF + self.kidx * 256 * 64 + j * 8))
        k.I("s_cmp_lg_u32", s(self.swave), 0)
        k.I("s_cselect_b32", s(self.ex), "0x7ffffff0", s(self.ex))
        k.I("s_waitcnt", "lgkmcnt(0)")
        k.lgq = []
        k.I("v_mov_b32", v(self.vt), s(self.st))
        k.I("v_mov_b32", v(self.vt + 1), s(self.st + 1))
        k.I("v_mov_b32", v(self.vo), 0)
        k.I("s_mov_b64", sr(self.st, 2), "exec")
        k.I("s_mov_b64", "exec", 1)
        k.I("buffer_store_dwordx2", vr(self.vt, 2), v(self.vo), sr(self.sWS, 4), s(self.ex), mods="offen")
        k.I("s_mov_b64", "exec", sr(self.st, 2))
        k.vmq.append("stamp")

class DbgStamper:
    LAST = {0: 3, 1: 2, 2: 3, 3: 5, 4: 3, 5: 3}
    def __init__(self, k, kidx, sWS, swave):
        self.k, self.kidx, self.swave = k, kidx, swave
        self.st = k.salloc(2); self.vt = k.valloc(2); self.vo = k.valloc(1); self.ex = k.salloc(2)
        self.pd = k.salloc(2); self.sD = k.salloc(4)
        k.I("s_memrealtime", sr(self.st, 2))
        k.I("s_load_dwordx2", sr(self.pd, 2), "s[0:1]", 72)
        self.t0 = k.salloc(2)
        k.I("s_waitcnt", "lgkmcnt(0)")
        k.I("s_mov_b32", s(self.t0), s(self.st))
        k.I("s_sub_u32", s(self.pd), s(self.pd), 512 * kidx)
        k.I("s_subb_u32", s(self.pd + 1), s(self.pd + 1), 0)
        srd(k, self.sD, self.pd, 512 * 5 + 256)
    def tick(self, i): pass
    def dump_ticks(self): pass
    def stamp(self, j):
        if j != self.LAST[self.kidx]: return
        k = self.k
        k.I("s_memrealtime", sr(self.st, 2))
        k.I("s_or_b32", s(self.ex), "s2", s(self.swave))
        k.I("s_cmp_lg_u32", s(self.ex), 0)
        k.I("s_cselect_b32", s(self.ex), "0x7ffffff0", 8 * self.kidx)
        k.I("s_waitcnt", "lgkmcnt(0)")
        k.lgq = []
        k.I("v_mov_b32", v(self.vt), s(self.t0))
        k.I("v_mov_b32", v(self.vt + 1), s(self.st))
        k.I("v_mov_b32", v(self.vo), 0)
        k.I("s_mov_b64", sr(self.st, 2), "exec")
        k.I("s_mov_b64", "exec", 1)
        for tg in range(6):
            k.I("buffer_store_dwordx2", vr(self.vt, 2), v(self.vo), sr(self.sD, 4), s(self.ex), mods=f"offen offset:{512 * tg}")
            k.vmq.append("stamp")
        k.I("s_mov_b64", "exec", sr(self.st, 2))

if os.environ.get("GEN_DBG"): Stamper = DbgStamper

def gen_k1():
    k = Kernel("k1_qkv_kernel")
    k.snext = 4; k.vnext = 1
    WREG = 0; WCH = 12288; XRING = 7 * WCH; XSL = 4096; NXS = 4
    TBL = XRING + 4 * NXS * XSL
    CWT = TBL; RT = TBL + 512; NMT = TBL + 1024; SQT = TBL + 1536
    ONES = TBL + 2048
    lds = ONES + 1024
    done = k.newlabel("done")
    k.I("s_cmp_ge_u32", "s2", 256)
    k.I("s_cbranch_scc1", done)
    pX = k.salloc(4); pWS = k.salloc(2)
    k.I("s_load_dwordx4", sr(pX, 4), "s[0:1]", 0)
    k.I("s_load_dwordx2", sr(pWS, 2), "s[0:1]", 80)
    sX = k.salloc(4); sW = k.salloc(4); sWS = k.salloc(4)
    swave = k.salloc(); srb = k.salloc(); shd = k.salloc(); st0 = k.salloc(); st1 = k.salloc(); soff = k.salloc()
    lane = k.valloc(); l31 = k.valloc(); hh = k.valloc(); t0 = k.valloc(); t1 = k.valloc(); t2 = k.valloc()
    k.I("v_lshrrev_b32", v(t0), 6, "v0")
    k.I("v_and_b32", v(lane), 63, "v0")
    k.I("v_readfirstlane_b32", s(swave), v(t0))
    import kernels2
    kernels2.map_rb_hd(k, srb, shd, st0, st1)
    stp = Stamper(k, 0, sWS, swave)
    sw3 = k.salloc()
    k.I("s_and_b32", s(sw3), s(swave), 3)
    l15 = k.valloc()
    k.I("v_and_b32", v(l15), 15, v(lane))
    k.I("s_waitcnt", "lgkmcnt(0)")
    srd(k, sW, pX + 2, 448 * 2688)
    srd(k, sX, pX, 2048 * 896)
    comp = k.newlabel("compute")
    k.I("s_cmp_lt_u32", s(swave), 4)
    k.I("s_cbranch_scc1", comp)
    vsave = k.vnext
    vXo = k.valloc(4)
    k.I("v_lshrrev_b32", v(t0), 3, v(lane))
    k.I("v_mul_u32_u24", v(t0), 896, v(t0))
    k.I("v_lshrrev_b32", v(t1), 4, v(lane))
    k.I("v_and_b32", v(t2), 7, v(lane))
    k.I("v_xor_b32", v(t1), v(t1), v(t2))
    k.I("v_lshl_add_u32", v(vXo), v(t1), 4, v(t0))
    k.I("v_xor_b32", v(t1), 4, v(t1))
    k.I("v_lshl_add_u32", v(vXo + 1), v(t1), 4, v(t0))
    k.I("v_add_u32", v(vXo + 1), 8 * 896, v(vXo + 1))
    k.I("v_add_u32", v(vXo + 2), 16 * 896, v(vXo))
    k.I("v_add_u32", v(vXo + 3), 16 * 896, v(vXo + 1))
    vWo = k.valloc(3)
    for b in range(3):
        k.I("v_add_u32", v(t0), 64 * b, v(lane))
        k.I("v_mul_u32_u24", v(t1), 171, v(t0))
        k.I("v_lshrrev_b32", v(t1), 11, v(t1))
        k.I("v_mul_u32_u24", v(t2), 12, v(t1))
        k.I("v_sub_u32", v(t0), v(t0), v(t2))
        k.I("v_mul_u32_u24", v(vWo + b), 2688, v(t1))
        k.I("v_lshrrev_b32", v(t2), 2, v(t0))
        k.I("v_mul_u32_u24", v(t2), 896, v(t2))
        k.I("v_and_b32", v(t0), 3, v(t0))
        k.I("v_lshl_add_u32", v(t2), v(t0), 4, v(t2))
        k.I("v_add_u32", v(vWo + b), v(vWo + b), v(t2))
        if os.environ.get("EXP_WCONT"):
            k.I("v_lshlrev_b32", v(vWo + b), 4, v(lane))
            k.I("v_add_u32", v(vWo + b), 1024 * b, v(vWo + b))
    sWb = k.salloc(); sm0 = k.salloc(); sXb = k.salloc(); sm0x = k.salloc()
    k.I("s_mul_i32", s(sWb), s(shd), 56)
    k.I("s_mul_i32", s(st0), s(sw3), 16 * 2688)
    k.I("s_add_u32", s(sWb), s(sWb), s(st0))
    k.I("s_mul_i32", s(sm0), s(sw3), 3 * 1024)
    k.I("s_lshl_b32", s(st0), s(srb), 7)
    k.I("s_lshl_b32", s(st1), s(sw3), 5)
    k.I("s_add_u32", s(st0), s(st0), s(st1))
    k.I("s_mul_i32", s(sXb), s(st0), 896)
    k.I("s_mul_i32", s(sm0x), s(sw3), NXS * XSL)
    k.I("s_add_u32", s(sm0x), s(sm0x), XRING)
    def wdma(c, b):
        if os.environ.get("EXP_NODMA") and c >= 3: return
        k.I("s_add_u32", s(soff), s(sWb), hex(c * 64 * 2688))
        k.I("s_add_u32", "m0", s(sm0), hex(WREG + c * WCH + b * 1024))
        k.vm(("W", c), "buffer_load_dwordx4", v(vWo + b), sr(sW, 4), s(soff), mods="offen lds")
    def xdma(c, j):
        if os.environ.get("EXP_NODMA") and c >= 2: return
        k.I("s_add_u32", s(soff), s(sXb), hex(c * 128))
        k.I("s_add_u32", "m0", s(sm0x), hex((c % NXS) * XSL + j * 1024))
        k.vm(("X", c), "buffer_load_dwordx4", v(vXo + j), sr(sX, 4), s(soff), mods="offen lds")
    for c in range(2):
        for b in range(3): wdma(c, b)
        for j in range(4): xdma(c, j)
    for b in range(3): wdma(2, b)
    LT = os.environ.get("TICKWAVE", "0") != "0"
    if LT: stp.tick(0)
    for c in range(7):
        k.wait_vm([("W", c), ("X", c)])
        if LT and c < 5: stp.tick(1 + 3 * c)
        k.I("s_barrier")
        if LT and c < 5: stp.tick(2 + 3 * c)
        if c + 2 <= 6:
            for j in range(4): xdma(c + 2, j)
        if c + 3 <= 6:
            for b in range(3): wdma(c + 3, b)
        if c == 4 and os.environ.get("PFK1", "0") == "g":
            import kernels2
            kernels2.mall_prefetch(k, 16, 448 * 896, 0, 4, 4, sw3, lane, st0, t0, t1)
            kernels2.mall_prefetch(k, 32, 448 * 3584, 0, 13, 4, sw3, lane, st0, t0, t1)
        if c == 4 and os.environ.get("PFK1", "0") == "g2":
            import kernels2
            kernels2.mall_prefetch(k, 16, 448 * 896, 0, 4, 4, sw3, lane, st0, t0, t1)
            kernels2.mall_prefetch(k, 32, 448 * 3584, 0, 13, 4, sw3, lane, st0, t0, t1)
            kernels2.mall_prefetch(k, 40, 2048 * 4096, 0, 64, 4, sw3, lane, st0, t0, t1)
        if c == 4 and os.environ.get("PFK1", "0") == "1":
            import kernels2
            vTp = k.valloc()
            k.I("s_lshr_b32", s(st0), "s2", 3)
            k.I("s_lshl_b32", s(st0), s(st0), 8)
            k.I("v_subrev_u32", v(vTp), 256, "v0")
            k.I("v_add_u32", v(vTp), s(st0), v(vTp))
            k.I("v_lshlrev_b32", v(vTp), 7, v(vTp))
            kernels2.l2_prefetch(k, 16, 448 * 896, vTp, 8192, st0)
            kernels2.l2_prefetch(k, 32, 448 * 3584, vTp, 8192, st0)
        if LT and c < 5: stp.tick(3 + 3 * c)
    vTp = k.valloc()
    k.I("s_lshr_b32", s(st0), "s2", 3)
    k.I("s_lshl_b32", s(st0), s(st0), 8)
    k.I("v_subrev_u32", v(vTp), 256, "v0")
    k.I("v_add_u32", v(vTp), s(st0), v(vTp))
    k.I("v_lshlrev_b32", v(vTp), 7, v(vTp))
    import kernels2
    k.I("s_barrier")
    if LT:
        srd(k, sWS, pWS, WS_SIZE)
        stp.dump_ticks()
    k.I("s_endpgm")
    k.L(comp)
    k.vnext = vsave; k.vmq = []; k.lgq = []
    vpf = k.valloc(); vpd = k.valloc(4)
    k.I("s_lshr_b32", s(st0), "s2", 3)
    k.I("s_lshl_b32", s(st0), s(st0), 8)
    k.I("v_add_u32", v(vpf), s(st0), "v0")
    k.I("v_lshlrev_b32", v(vpf), 7, v(vpf))
    if os.environ.get("K1OWNPF"):
        k.I("buffer_load_dword", v(vpd), v(vpf), sr(sW, 4), 0, mods="offen")
        k.I("v_add_u32", v(vpf), 8192 * 128, v(vpf))
        k.I("buffer_load_dword", v(vpd + 1), v(vpf), sr(sW, 4), 0, mods="offen")
        k.I("s_and_b32", s(st0), "s2", 7)
        k.I("s_mul_i32", s(st0), s(st0), 256 * 896)
        k.I("v_subrev_u32", v(vpf), 9408 * 128, v(vpf))
        k.I("v_mov_b32", v(t0), hex(256 * 896))
        k.I("v_cmp_lt_u32", "vcc", v(vpf), v(t0))
        k.I("v_mov_b32", v(t1), "0x7fffff00")
        k.I("v_cndmask_b32", v(vpf), v(t1), v(vpf), "vcc")
        k.I("buffer_load_dword", v(vpd + 2), v(vpf), sr(sX, 4), s(st0), mods="offen")
    sidx1 = k.salloc()
    k.I("s_lshr_b32", s(sidx1), "s2", 3)
    import kernels2
    kernels2.code_prefetch(k, "k2_attn_kernel", sidx1, st0)
    if os.environ.get("PF2", "0") == "1":
        pp = k.salloc(2); sP = k.salloc(4); vT = k.valloc(); vd = k.valloc(8)
        k.I("s_lshr_b32", s(st0), "s2", 3)
        k.I("s_lshl_b32", s(st0), s(st0), 8)
        k.I("v_add_u32", v(vT), s(st0), "v0")
        k.I("v_lshlrev_b32", v(vT), 7, v(vT))
        k.I("s_getpc_b64", sr(pp, 2))
        k.I("s_and_b32", s(pp), s(pp), "0xffffff00")
        srd(k, sP, pp, "CODE_BYTES-4096")
        k.I("buffer_load_dword", v(vd), v(vT), sr(sP, 4), 0, mods="offen")
        for (ko, nbytes, n) in ((16, 448 * 896, 1), (32, 448 * 3584, 2)):
            k.I("s_load_dwordx2", sr(pp, 2), "s[0:1]", ko)
            k.I("s_waitcnt", "lgkmcnt(0)")
            srd(k, sP, pp, nbytes)
            for i in range(n):
                k.I("s_mov_b32", s(st0), hex(i * 8192 * 128))
                k.I("buffer_load_dword", v(vd + 1 + i + (0 if ko == 16 else 1)), v(vT), sr(sP, 4), s(st0), mods="offen")
        vG = k.valloc()
        k.I("s_lshl_b32", s(st0), "s2", 8)
        k.I("v_add_u32", v(vG), s(st0), "v0")
        k.I("v_lshlrev_b32", v(vG), 7, v(vG))
        for n_, (ko, nbytes) in enumerate(((40, 2048 * 4096), (56, 896 * 896))):
            k.I("s_load_dwordx2", sr(pp, 2), "s[0:1]", ko)
            k.I("s_waitcnt", "lgkmcnt(0)")
            srd(k, sP, pp, nbytes)
            k.I("buffer_load_dword", v(vd + 5 + n_), v(vG), sr(sP, 4), 0, mods="offen")
        srd(k, sP, pWS, 0x1C00000)
        k.I("v_lshlrev_b32", v(t0), 9, v(vT))
        k.I("buffer_load_dword", v(vd + 4), v(t0), sr(sP, 4), 0, mods="offen")
    sm0x = k.salloc()
    k.I("s_mul_i32", s(sm0x), s(swave), NXS * XSL)
    k.I("s_add_u32", s(sm0x), s(sm0x), XRING)
    aX = k.valloc(4); vW = k.valloc(); aG = k.valloc(4); vWj = k.valloc()
    gg = k.valloc()
    k.I("v_and_b32", v(l31), 31, "v0")
    k.I("v_bfe_u32", v(hh), "v0", 5, 1)
    k.I("v_lshrrev_b32", v(gg), 4, v(lane))
    k.I("v_bfe_u32", v(t0), v(l31), 1, 3)
    for j in range(4):
        k.I("v_add_u32", v(t1), 2 * j, v(hh))
        k.I("v_xor_b32", v(t1), v(t1), v(t0))
        k.I("v_lshlrev_b32", v(t1), 4, v(t1))
        k.I("v_lshl_add_u32", v(aX + j), v(l31), 7, v(t1))
        k.I("v_add_u32", v(aX + j), s(sm0x), v(aX + j))
    for rg in range(2):
        k.I("v_add_u32", v(t0), 16 * rg, v(l15))
        k.I("v_bfe_u32", v(t1), v(t0), 1, 3)
        for kk in range(2):
            k.I("v_add_u32", v(t2), 4 * kk, v(gg))
            k.I("v_xor_b32", v(t2), v(t2), v(t1))
            k.I("v_lshlrev_b32", v(t2), 4, v(t2))
            k.I("v_lshl_add_u32", v(aG + 2 * rg + kk), v(t0), 7, v(t2))
            k.I("v_add_u32", v(aG + 2 * rg + kk), s(sm0x), v(aG + 2 * rg + kk))
    k.I("v_bfe_u32", v(t0), "v0", 2, 2)
    k.I("v_lshl_add_u32", v(t1), v(hh), 3, v(t0))
    k.I("v_mul_u32_u24", v(t1), 192, v(t1))
    k.I("v_bfe_u32", v(t2), "v0", 4, 1)
    k.I("v_lshl_add_u32", v(t1), v(t2), 5, v(t1))
    k.I("v_and_b32", v(t2), 3, "v0")
    k.I("v_lshl_add_u32", v(vW), v(t2), 3, v(t1))
    k.I("v_lshl_add_u32", v(t0), v(gg), 3, v(t0))
    k.I("v_mul_u32_u24", v(t0), 192, v(t0))
    k.I("v_lshl_add_u32", v(vWj), v(t2), 3, v(t0))
    k.I("s_lshr_b32", s(st0), s(swave), 1)
    k.I("s_mul_i32", s(st0), s(st0), 32 * 192)
    k.I("s_and_b32", s(st1), s(swave), 1)
    k.I("s_mul_i32", s(st1), s(st1), 96)
    k.I("s_add_u32", s(st0), s(st0), s(st1))
    k.I("v_add_u32", v(vWj), s(st0), v(vWj))
    vW2 = k.valloc(); vWj2 = k.valloc()
    k.I("v_add_u32", v(vW2), 4 * WCH, v(vW))
    k.I("v_add_u32", v(vWj2), 4 * WCH, v(vWj))
    ones = k.valloc(4)
    vWq = k.valloc(); vInc = k.valloc()
    k.I("v_and_b32", v(t0), 19, v(lane))
    k.I("v_cmp_eq_u32", "vcc", 19, v(t0))
    k.I("v_mov_b32", v(t1), ONES)
    k.I("v_cndmask_b32", v(vWq), v(vW), v(t1), "vcc")
    k.I("v_mov_b32", v(t1), 16 * 192)
    k.I("v_cndmask_b32", v(vInc), v(t1), 0, "vcc")
    k.I("v_lshlrev_b32", v(t0), 4, v(lane))
    k.I("v_add_u32", v(t0), ONES, v(t0))
    for i in range(4): k.I("v_mov_b32", v(ones + i), "0x3f803f80")
    k.lg("z", "ds_write_b128", v(t0), vr(ones, 4))
    zz = k.valloc(2); vtb = k.valloc()
    k.I("v_mov_b32", v(zz), 0); k.I("v_mov_b32", v(zz + 1), 0)
    k.I("v_lshlrev_b32", v(vtb), 3, v(lane))
    k.I("v_add_u32", v(vtb), CWT, v(vtb))
    k.lg("z", "ds_write_b64", v(vtb), vr(zz, 2))
    accq = k.valloc(16, 4); acck = k.valloc(16, 4); accv = k.valloc(16, 4)
    NB = 3
    cacc = [k.valloc(4) for _ in range(3)]
    gacc = [k.valloc(4) for _ in range(2)]
    vtl_ = k.valloc(); vcwa = k.valloc(); vsqa = k.valloc(); vrow = k.valloc(); vh4 = k.valloc(); vh4w = k.valloc(); vl31 = k.valloc()
    k.I("v_lshlrev_b32", v(vtl_), 2, v(l15))
    k.I("v_add_u32", v(vtl_), TBL, v(vtl_))
    k.I("s_and_b32", s(st1), s(swave), 1)
    k.I("s_mul_i32", s(st1), s(st1), 192)
    k.I("v_add_u32", v(vcwa), s(st1), v(vtl_))
    k.I("s_lshl_b32", s(st0), s(swave), 7)
    k.I("v_add_u32", v(vsqa), s(st0), v(vtl_))
    k.I("v_add_u32", v(vsqa), SQT - TBL, v(vsqa))
    k.I("v_lshlrev_b32", v(vl31), 2, v(l31))
    k.I("v_add_u32", v(vl31), TBL, v(vl31))
    k.I("v_add_u32", v(vrow), s(st0), v(vl31))
    k.I("v_lshlrev_b32", v(vh4), 4, v(hh))
    k.I("v_add_u32", v(vh4), TBL, v(vh4))
    k.I("v_add_u32", v(vh4w), s(st0), v(vh4))
    vmark = k.vnext
    xf = [k.valloc(4) for _ in range(NB)]
    wf = [[k.valloc(4) for _ in range(3)] for _ in range(NB)]
    xs = [k.valloc(4) for _ in range(4)]
    wf2 = [k.valloc(4) for _ in range(3)]
    def read_list(ks):
        c, j = ks // 4, ks % 4
        b = ks % NB
        out = [lambda: k.lg(("f", ks), "ds_read_b128", vr(xf[b], 4), v(aX + j), mods=f"offset:{(c % NXS) * XSL}")]
        for beta in range(2):
            out.append(lambda beta=beta: k.lg(("f", ks), "ds_read_b64_tr_b16", vr(wf[b][0] + 2 * beta, 2), v(vWq), mods=f"offset:{beta * 4 * 192}"))
        out.append(lambda: k.I("v_add_u32", v(vWq), v(vInc), v(vWq)))
        for sg in range(1, 3):
            for beta in range(2):
                o = (c % 4) * WCH + (16 * j + 4 * beta) * 192 + 64 * sg
                base = vW if c < 4 else vW2
                out.append(lambda o=o, sg=sg, beta=beta, base=base: k.lg(("f", ks), "ds_read_b64_tr_b16", vr(wf[b][sg] + 2 * beta, 2), v(base), mods=f"offset:{o}"))
        return out
    def aux_reads(c):
        out = []
        for j in range(4):
            out.append(lambda j=j: k.lg(("g", c), "ds_read_b128", vr(xs[j], 4), v(aG + j), mods=f"offset:{(c % NXS) * XSL}"))
        for nt in range(3):
            for beta in range(2):
                o = (c % 4) * WCH + (4 * beta) * 192 + 32 * nt
                base = vWj if c < 4 else vWj2
                out.append(lambda o=o, nt=nt, beta=beta, base=base: k.lg(("cw", c), "ds_read_b64_tr_b16", vr(wf2[nt] + 2 * beta, 2), v(base), mods=f"offset:{o}"))
        return out
    k.I("s_waitcnt", "lgkmcnt(0)")
    srd(k, sWS, pWS, WS_SIZE)
    stp.stamp(0)
    k.wait_lg("z")
    k.I("s_barrier")
    stp.stamp(1)
    if os.environ.get("TICKWAVE", "0") != "0": stp.tick = lambda i: None
    stp.tick(0)
    m1 = k.salloc(2); m2 = k.salloc(2); m3 = k.salloc(2)
    k.I("v_and_b32", v(t0), 3, v(lane))
    k.I("v_cmp_eq_u32", sr(m1, 2), 1, v(t0))
    k.I("v_cmp_eq_u32", sr(m2, 2), 2, v(t0))
    k.I("v_cmp_eq_u32", sr(m3, 2), 3, v(t0))
    for f in read_list(0): f()
    for f in read_list(1): f()
    for ks in range(28):
        c, j = ks // 4, ks % 4
        b = ks % NB
        fill = []
        if ks + 2 < 28:
            fill += read_list(ks + 2)
        aux = []
        if j == 0: aux = aux_reads(c)[:4]
        if j == 1: aux = aux_reads(c)[4:]
        if os.environ.get("EXP_NOCOMP"):
            k.lgq = []
            if j == 1 and c < 6:
                k.I("s_barrier"); stp.tick(1 + c)
            continue
        k.wait_lg(("f", ks))
        mf = [
            lambda: k.I("v_mfma_f32_32x32x16_bf16", vr(accq, 16), vr(wf[b][0], 4), vr(xf[b], 4), 0 if ks == 0 else vr(accq, 16)),
            lambda: k.I("v_mfma_f32_32x32x16_bf16", vr(acck, 16), vr(wf[b][1], 4), vr(xf[b], 4), 0 if ks == 0 else vr(acck, 16)),
            lambda: k.I("v_mfma_f32_32x32x16_bf16", vr(accv, 16), vr(xf[b], 4), vr(wf[b][2], 4), 0 if ks == 0 else vr(accv, 16)),
        ]
        fl = fill + aux
        if ks == 27:
            vtl = vtl_;
            def fin1():
                k.I("s_mov_b32", "exec_lo", "0xffff")
                k.I("s_mov_b32", "exec_hi", 0)
                for nt in range(3):
                    k.lg("fin", "ds_add_f32", v(vcwa), v(cacc[nt]), mods=f"offset:{64 * nt}")
                k.I("s_mov_b64", "exec", -1)
            def fin2():
                for rg in range(2):
                    g_ = gacc[rg]
                    k.I("v_cndmask_b32", v(g_), v(g_), v(g_ + 1), sr(m1, 2))
                    k.I("v_cndmask_b32", v(g_), v(g_), v(g_ + 2), sr(m2, 2))
                    k.I("v_cndmask_b32", v(g_), v(g_), v(g_ + 3), sr(m3, 2))
                k.I("s_mov_b32", "exec_lo", "0x00f0000f")
                k.I("s_mov_b32", "exec_hi", "0xf0000f00")
                for rg in range(2):
                    k.lg("fin", "ds_write_b32", v(vsqa), v(gacc[rg]), mods=f"offset:{64 * rg}")
                k.I("s_mov_b64", "exec", -1)
            fl = [fin1, fin2]
        n = len(fl)
        cuts = [0, (n + 2) // 3, (2 * n + 2) // 3, n]
        for i in range(3):
            mf[i]()
            for f in fl[cuts[i]:cuts[i + 1]]: f()
        if j == 1 + (0 if c == 6 else 1):
            k.wait_lg(("g", c))
            for jj in range(4):
                k.I("v_mfma_f32_16x16x32_bf16", vr(gacc[jj >> 1], 4), vr(xs[jj], 4), vr(xs[jj], 4), 0 if (c == 0 and (jj & 1) == 0) else vr(gacc[jj >> 1], 4))
        if j == 2 + (0 if c == 6 else 1):
            k.wait_lg(("cw", c))
            for nt in range(3):
                k.I("v_mfma_f32_16x16x32_bf16", vr(cacc[nt], 4), vr(ones, 4), vr(wf2[nt], 4), 0 if c == 0 else vr(cacc[nt], 4))
        if j == 1 and c < 6:
            k.I("s_barrier")
            stp.tick(1 + c)
    stp.tick(13)
    stp.stamp(2)
    k.vnext = vmark
    sq = k.valloc(2); rl = k.valloc(2); nml = k.valloc(2); cwv = k.valloc(2)
    cwq = k.valloc(16, 4); cwk = k.valloc(16, 4); rv = k.valloc(16, 4); nv = k.valloc(16, 4)
    k.lg("sq", "ds_read_b32", v(sq), v(vrow), mods=f"offset:{SQT - TBL}")
    k.wait_lg("fin")
    k.I("s_barrier")
    for q in range(4):
        k.lg("cwq", "ds_read_b128", vr(cwq + 4 * q, 4), v(vh4), mods=f"offset:{CWT - TBL + 32 * q}")
    for q in range(4):
        k.lg("cwk", "ds_read_b128", vr(cwk + 4 * q, 4), v(vh4), mods=f"offset:{CWT - TBL + 128 + 32 * q}")
    k.lg("cwv", "ds_read_b32", v(cwv), v(vl31), mods=f"offset:{CWT - TBL + 256}")
    k.I("v_mov_b32", v(nml), v(accq + 12))
    k.I("v_mov_b32", v(nml + 1), v(accq + 12))
    k.I("v_permlane32_swap_b32", v(nml), v(nml + 1))
    k.I("v_mul_f32", v(nml), hex(f32(-1.0 / 448)), v(nml + 1))
    k.wait_lg("sq")
    k.I("v_mul_f32", v(sq), hex(f32(1.0 / 448)), v(sq))
    k.I("v_fma_f32", v(sq), f"-{v(nml)}", v(nml), v(sq))
    k.I("v_max_f32", v(sq), 0, v(sq))
    k.I("v_add_f32", v(sq), hex(f32(1e-5)), v(sq))
    k.I("v_rsq_f32", v(rl), v(sq))
    k.I("ds_write_b32", v(vrow), v(nml), mods=f"offset:{NMT - TBL}")
    k.I("ds_write_b32", v(vrow), v(rl), mods=f"offset:{RT - TBL}")
    k.lgq += ["w", "w"]
    for q in range(4):
        k.lg("rv", "ds_read_b128", vr(rv + 4 * q, 4), v(vh4w), mods=f"offset:{RT - TBL + 32 * q}")
        k.lg("rv", "ds_read_b128", vr(nv + 4 * q, 4), v(vh4w), mods=f"offset:{NMT - TBL + 32 * q}")
    vq = k.valloc(); vv_ = k.valloc()
    k.I("v_lshrrev_b32", v(t0), 4, v(l31))
    k.I("v_lshlrev_b32", v(vq), 10, v(t0))
    k.I("v_lshl_add_u32", v(vq), v(l15), 4, v(vq))
    k.I("v_lshl_add_u32", v(vq), v(hh), 9, v(vq))
    k.I("v_lshlrev_b32", v(vv_), 9, v(t0))
    k.I("v_lshl_add_u32", v(vv_), v(l15), 3, v(vv_))
    k.I("v_lshl_add_u32", v(vv_), v(hh), 7, v(vv_))
    sb = k.salloc()
    k.I("s_lshl_b32", s(sb), s(shd), 17)
    k.I("s_lshl_b32", s(st0), s(srb), 13)
    k.I("s_add_u32", s(sb), s(sb), s(st0))
    k.I("s_lshl_b32", s(st0), s(swave), 11)
    k.I("s_add_u32", s(sb), s(sb), s(st0))
    k.I("v_cmp_eq_u32", "vcc", 0, v(hh))
    pk = k.valloc(8, 4)
    for (acc, cw, off, tg) in ((accq, cwq, Q_OFF, "cwq"), (acck, cwk, K_OFF, "cwk")):
        k.wait_lg(tg)
        for j in range(8):
            k.I("v_pk_fma_f32", vr(acc + 2 * j, 2), vr(cw + 2 * j, 2), vr(nml, 2), vr(acc + 2 * j, 2), mods="op_sel_hi:[1,0,1]")
        for j in range(8):
            k.I("v_pk_mul_f32", vr(acc + 2 * j, 2), vr(acc + 2 * j, 2), vr(rl, 2), mods="op_sel_hi:[1,0]")
        for j in range(8):
            k.I("v_cvt_pk_bf16_f32", v(pk + j), v(acc + 2 * j), v(acc + 2 * j + 1))
        k.I("v_cndmask_b32", v(pk + 6), 0, v(pk + 6), "vcc")
        k.I("v_cndmask_b32", v(pk + 7), 0, v(pk + 7), "vcc")
        k.I("s_add_u32", s(soff), s(sb), hex(off))
        k.I("buffer_store_dwordx4", vr(pk, 4), v(vq), sr(sWS, 4), s(soff), mods="offen")
        k.I("buffer_store_dwordx4", vr(pk + 4, 4), v(vq), sr(sWS, 4), s(soff), mods="offen offset:256")
        pk = k.valloc(8, 4)
    k.I("s_waitcnt", "lgkmcnt(0)")
    k.lgq = []
    for j in range(8):
        k.I("v_pk_fma_f32", vr(accv + 2 * j, 2), vr(nv + 2 * j, 2), vr(cwv, 2), vr(accv + 2 * j, 2), mods="op_sel_hi:[1,0,1]")
    for j in range(8):
        k.I("v_pk_mul_f32", vr(accv + 2 * j, 2), vr(accv + 2 * j, 2), vr(rv + 2 * j, 2))
    for j in range(8):
        k.I("v_cvt_pk_bf16_f32", v(pk + j), v(accv + 2 * j), v(accv + 2 * j + 1))
    k.I("v_mov_b32", v(t0), "0x3f803f80")
    k.I("v_cmp_eq_u32", "vcc", 28, v(l31))
    k.I("v_cndmask_b32", v(t0), 0, v(t0), "vcc")
    k.I("v_cmp_gt_u32", "vcc", 28, v(l31))
    for j in range(8):
        k.I("v_cndmask_b32", v(pk + j), v(t0), v(pk + j), "vcc")
    k.I("s_add_u32", s(soff), s(sb), hex(V_OFF))
    for q in range(4):
        k.I("buffer_store_dwordx2", vr(pk + 2 * q, 2), v(vv_), sr(sWS, 4), s(soff), mods=f"offen offset:{(q >> 1) * 1024 + (q & 1) * 256}")
    stp.tick(15)
    stp.stamp(3)
    stp.dump_ticks()
    k.L(done)
    k.I("s_endpgm")
    k.lds = lds; k.threads = 512; k.grid = 256
    return k

import struct
def f32(x): return struct.unpack("<I", struct.pack("<f", x))[0]

def assemble(kernels):
    out = []
    hdr = open("cdna_kernels/" + NAME + ".s.ref").read().split("\n")
    for line in hdr:
        if line.startswith("; Override") or line.startswith("; grid=") or line.startswith("; @launch"): continue
        if not line.startswith(";"): break
        out.append(line)
    for k in kernels:
        out.append(f"; @launch kernel={k.name} grid=({k.grid},1,1) block=({k.threads},1,1) lds={k.lds}")
    out.append('.amdgcn_target "amdgcn-amd-amdhsa--gfx950"')
    out.append(".text")
    for k in kernels:
        n = k.fix_hazards()
        out.append(f".globl {k.name}")
        out.append(".p2align 8")
        out.append(f".type {k.name},@function")
        out.append(f"{k.name}:")
        out.append(k.render())
        out.append(f"{k.name}_end:")
        print(f"{k.name}: {len(k.ins)} instrs, hazard pads {n}, vgpr {k.vmax} agpr {k.amax} sgpr {k.smax} lds {k.lds}", file=sys.stderr)
    out.append("code_end:")
    out.append(f".set CODE_BYTES, code_end - {kernels[0].name}")
    out.append('.section .rodata,"a"')
    for k in kernels:
        out.append(".p2align 6")
        out.append(k.descriptor())
    return "\n".join(out) + "\n"

if __name__ == "__main__":
    import kernels2 as k2
    ks = [gen_k1()] + k2.rest(Stamper)
    path = sys.argv[1] if len(sys.argv) > 1 else "cdna_kernels/" + NAME + ".s"
    open(path, "w").write(assemble(ks))
```

```python
import os, struct, math
from asmlib import *
from layout import *
WS_SIZE = 0x10000000
def f32(x): return struct.unpack("<I", struct.pack("<f", x))[0]

def srd(k, dst, base, size):
    k.I("s_mov_b32", s(dst), s(base))
    k.I("s_and_b32", s(dst + 1), s(base + 1), "0xffff")
    k.I("s_mov_b32", s(dst + 2), hex(size) if isinstance(size, int) else size)
    k.I("s_mov_b32", s(dst + 3), "0x20000")

def gen_k2(Stamper):
    k = Kernel("k2_attn_kernel")
    k.snext = 4; k.vnext = 1
    KREG = 0; VREG = 24576
    lds = 49152
    done = k.newlabel("done")
    k.I("s_cmp_ge_u32", "s2", 256)
    k.I("s_cbranch_scc1", done)
    pWS = k.salloc(2); pPo = k.salloc(2); pPi = k.salloc(2)
    k.I("s_load_dwordx2", sr(pWS, 2), "s[0:1]", 80)
    k.I("s_load_dwordx2", sr(pPo, 2), "s[0:1]", 16)
    k.I("s_load_dwordx2", sr(pPi, 2), "s[0:1]", 32)
    sWS = k.salloc(4); sPo = k.salloc(4); sPi = k.salloc(4)
    swave = k.salloc(); srb = k.salloc(); shd = k.salloc(); st0 = k.salloc(); st1 = k.salloc(); soff = k.salloc()
    lane = k.valloc(); t0 = k.valloc(); t1 = k.valloc(); l15 = k.valloc(); gg = k.valloc()
    k.I("v_lshrrev_b32", v(t0), 6, "v0")
    k.I("v_and_b32", v(lane), 63, "v0")
    k.I("v_readfirstlane_b32", s(swave), v(t0))
    map_rb_hd(k, srb, shd, st0, st1)
    stp = Stamper(k, 1, sWS, swave)
    v16 = k.valloc()
    k.I("v_lshlrev_b32", v(v16), 4, v(lane))
    sb = k.salloc(); sm = k.salloc(); s16q = k.salloc()
    k.I("s_lshl_b32", s(sb), s(shd), 17)
    k.I("s_lshl_b32", s(st0), s(srb), 13)
    k.I("s_add_u32", s(sb), s(sb), s(st0))
    k.I("s_mul_i32", s(sm), s(swave), 3072)
    k.I("s_lshl_b32", s(s16q), s(srb), 3)
    k.I("s_add_u32", s(s16q), s(s16q), s(swave))
    k.I("s_waitcnt", "lgkmcnt(0)")
    srd(k, sWS, pWS, WS_SIZE)
    srd(k, sPo, pPo, 448 * 896)
    srd(k, sPi, pPi, 448 * 3584)
    qf = k.valloc(4)
    k.I("s_lshl_b32", s(st0), s(swave), 10)
    k.I("s_add_u32", s(st0), s(st0), s(sb))
    k.I("s_add_u32", s(soff), s(st0), hex(Q_OFF))
    k.vm("q", "buffer_load_dwordx4", vr(qf, 4), v(v16), sr(sWS, 4), s(soff), mods="offen")
    k.I("s_add_u32", s(st1), s(sb), s(sm))
    for (reg, off) in ((KREG, K_OFF), (VREG, V_OFF)):
        for i in range(3):
            k.I("s_add_u32", s(soff), s(st1), hex(off - 16384 + i * 1024))
            k.I("s_add_u32", "m0", s(sm), hex(reg + i * 1024))
            k.vm("kv", "buffer_load_dwordx4", v(v16), sr(sWS, 4), s(soff), mods="offen lds")
    sidx2 = k.salloc()
    k.I("s_lshr_b32", s(sidx2), "s2", 3)
    code_prefetch(k, "k3_wo_kernel", sidx2, st0)
    stp.stamp(0)
    k.I("v_and_b32", v(l15), 15, v(lane))
    k.I("v_lshrrev_b32", v(gg), 4, v(lane))
    M = [k.salloc(2) for _ in range(4)]
    k.I("v_lshlrev_b32", v(t0), 2, v(gg))
    for i in range(4):
        k.I("v_add_u32", v(t1), i, v(t0))
        k.I("v_cmp_gt_u32", sr(M[i], 2), v(t1), v(l15))
    aK = k.valloc(); aV = k.valloc()
    k.I("s_lshl_b32", s(st0), s(swave), 10)
    k.I("v_add_u32", v(aK), s(st0), v(v16))
    k.I("v_lshlrev_b32", v(aV), 3, v(lane))
    k.I("s_add_u32", s(st0), s(st0), VREG)
    k.I("v_add_u32", v(aV), s(st0), v(aV))
    S = k.valloc(68, 4)
    kf = [k.valloc(4) for _ in range(6)]
    neg = k.valloc()
    k.I("v_mov_b32", v(neg), hex(f32(-1e30)))
    k.wait_vm(["q", "kv"])
    k.I("s_barrier")
    stp.stamp(1)
    NKF = 6
    for j in range(min(NKF, 17)):
        k.lg(("k", j), "ds_read_b128", vr(kf[j % NKF], 4), v(aK), mods=f"offset:{j * 1024}")
    for j in range(17):
        k.wait_lg(("k", j))
        k.I("v_mfma_f32_16x16x32_bf16", vr(S + 4 * j, 4), vr(kf[j % NKF], 4), vr(qf, 4), 0)
        if j + NKF < 17:
            k.lg(("k", j + NKF), "ds_read_b128", vr(kf[j % NKF], 4), v(aK), mods=f"offset:{(j + NKF) * 1024}")
    if os.environ.get("PFK2", "1") == "1":
        vd2 = k.valloc(2)
        k.I("s_lshl_b32", s(st0), s(sidx2), 3)
        k.I("s_add_u32", s(st0), s(st0), s(swave))
        k.I("s_mul_i32", s(st1), s(st0), 13 * 128)
        k.I("v_lshlrev_b32", v(t0), 7, v(lane))
        k.I("v_mov_b32", v(t1), "0x7fffff00")
        k.I("v_cmp_gt_u32", "vcc", 13, v(lane))
        k.I("v_cndmask_b32", v(t0), v(t1), v(t0), "vcc")
        k.vm("pf", "buffer_load_dword", v(vd2), v(t0), sr(sPo, 4), s(st1), mods="offen")
        k.I("s_mul_i32", s(st1), s(st0), 25)
        k.I("v_add_u32", v(t0), s(st1), v(lane))
        k.I("v_mul_u32_u24", v(t1), 37450, v(t0))
        k.I("v_lshrrev_b32", v(t1), 19, v(t1))
        k.I("v_mul_u32_u24", v(vd2 + 1), 14, v(t1))
        k.I("v_sub_u32", v(t0), v(t0), v(vd2 + 1))
        k.I("v_mul_u32_u24", v(t1), 3584, v(t1))
        k.I("v_lshl_add_u32", v(t1), v(t0), 7, v(t1))
        k.I("v_add_u32", v(vd2 + 1), 1792 - 896, v(t1))
        k.I("v_cmp_le_u32", "vcc", 7, v(t0))
        k.I("v_cndmask_b32", v(t1), v(t1), v(vd2 + 1), "vcc")
        k.I("v_mov_b32", v(t0), "0x7fffff00")
        k.I("v_cmp_gt_u32", "vcc", 25, v(lane))
        k.I("v_cndmask_b32", v(t1), v(t0), v(t1), "vcc")
        k.I("s_and_b32", s(st1), "s2", 1)
        k.I("s_mul_i32", s(st1), s(st1), 896)
        k.vm("pf", "buffer_load_dword", v(vd2 + 1), v(t1), sr(sPi, 4), s(st1), mods="offen")
    vf = k.valloc(9 * 2 * 4, 4)
    def vread(kp):
        for dt in range(2):
            for beta in range(2):
                tile = min(2 * kp + beta, 16)
                k.lg(("v", kp), "ds_read_b64", vr(vf + (kp * 2 + dt) * 4 + 2 * beta, 2), v(aV), mods=f"offset:{tile * 1024 + dt * 512}")
    for kp in range(3): vread(kp)
    for i in range(4):
        k.I("v_cndmask_b32", v(S + i), v(neg), v(S + i), sr(M[i], 2))
        k.I("v_cndmask_b32", v(S + 64 + i), v(S + 64 + i), v(neg), sr(M[i], 2))
    nofix = k.newlabel("nofix")
    k.I("s_cmp_ge_u32", s(s16q), 16)
    k.I("s_cbranch_scc1", nofix)
    k.I("s_sub_u32", s(st0), 16, s(s16q))
    for j in range(16):
        lab = k.newlabel("sk")
        k.I("s_cmp_le_u32", s(st0), j)
        k.I("s_cbranch_scc1", lab)
        for i in range(4): k.I("v_mov_b32", v(S + 4 * j + i), v(neg))
        k.L(lab)
    k.L(nofix)
    mx = k.valloc(4)
    for c in range(4):
        k.I("v_max3_f32", v(mx + c), v(S + c * 17), v(S + c * 17 + 1), v(S + c * 17 + 2))
    for r in range(7):
        for c in range(4):
            b = c * 17 + 3 + 2 * r
            k.I("v_max3_f32", v(mx + c), v(mx + c), v(S + b), v(S + b + 1))
    k.I("v_max3_f32", v(mx), v(mx), v(mx + 1), v(mx + 2))
    k.I("v_max_f32", v(mx), v(mx), v(mx + 3))
    for sw in ("v_permlane16_swap_b32", "v_permlane32_swap_b32"):
        k.I("v_mov_b32", v(mx + 1), v(mx))
        k.I(sw, v(mx), v(mx + 1))
        k.I("v_max_f32", v(mx), v(mx), v(mx + 1))
    cs = 28 ** -0.5 * math.log2(math.e)
    sc = k.salloc()
    k.I("s_mov_b32", s(sc), hex(f32(cs)))
    k.I("v_mul_f32", v(mx), hex(f32(-cs)), v(mx))
    for kp in range(3, 6): vread(kp)
    P = k.valloc(36, 4)
    k.I("v_mov_b32", v(P + 34), 0); k.I("v_mov_b32", v(P + 35), 0)
    O = [k.valloc(4), k.valloc(4)]
    def softmax_tile(j):
        for i in range(4): k.I("v_fma_f32", v(S + 4 * j + i), v(S + 4 * j + i), s(sc), v(mx))
        for i in range(4): k.I("v_exp_f32", v(S + 4 * j + i), v(S + 4 * j + i))
    def pack_tile(j):
        k.I("v_cvt_pk_bf16_f32", v(P + 2 * j), v(S + 4 * j), v(S + 4 * j + 1))
        k.I("v_cvt_pk_bf16_f32", v(P + 2 * j + 1), v(S + 4 * j + 2), v(S + 4 * j + 3))
    for kp in range(9):
        tiles = [2 * kp, 2 * kp + 1] if kp < 8 else [16]
        for j in tiles: softmax_tile(j)
        for j in tiles: pack_tile(j)
        if kp == 2:
            for q in range(6, 9): vread(q)
        if kp >= 1:
            q = kp - 1
            k.wait_lg(("v", q))
            for dt in range(2):
                k.I("v_mfma_f32_16x16x32_bf16", vr(O[dt], 4), vr(vf + (q * 2 + dt) * 4, 4), vr(P + 4 * q, 4), 0 if q == 0 else vr(O[dt], 4))
    k.wait_lg(("v", 8))
    for dt in range(2):
        k.I("v_mfma_f32_16x16x32_bf16", vr(O[dt], 4), vr(vf + (8 * 2 + dt) * 4, 4), vr(P + 32, 4), vr(O[dt], 4))
    la = k.valloc(); lb = k.valloc()
    k.I("v_mov_b32", v(la), v(O[1])); k.I("v_mov_b32", v(lb), v(O[1]))
    k.I("v_permlane32_swap_b32", v(la), v(lb))
    k.I("v_mov_b32", v(la), v(lb))
    k.I("v_permlane16_swap_b32", v(la), v(lb))
    k.I("v_rcp_f32", v(lb), v(lb))
    for dt in range(2):
        for i in range(4): k.I("v_mul_f32", v(O[dt] + i), v(O[dt] + i), v(lb))
    pk = k.valloc(4)
    for dt in range(2):
        k.I("v_cvt_pk_bf16_f32", v(pk + 2 * dt), v(O[dt]), v(O[dt] + 1))
        k.I("v_cvt_pk_bf16_f32", v(pk + 2 * dt + 1), v(O[dt] + 2), v(O[dt] + 3))
    k.I("v_cmp_gt_u32", "vcc", 3, v(gg))
    k.I("v_cndmask_b32", v(pk + 2), 0, v(pk + 2), "vcc")
    k.I("v_cndmask_b32", v(pk + 3), 0, v(pk + 3), "vcc")
    vo = k.valloc()
    k.I("s_and_b32", s(st0), s(swave), 1)
    k.I("s_lshl_b32", s(st0), s(st0), 8)
    k.I("v_lshlrev_b32", v(vo), 4, v(l15))
    k.I("v_add_u32", v(vo), s(st0), v(vo))
    k.I("v_lshrrev_b32", v(t0), 1, v(gg))
    k.I("v_lshl_add_u32", v(vo), v(t0), 9, v(vo))
    k.I("v_and_b32", v(t0), 1, v(gg))
    k.I("v_lshl_add_u32", v(vo), v(t0), 3, v(vo))
    k.I("s_lshl_b32", s(st0), s(srb), 2)
    k.I("s_lshr_b32", s(st1), s(swave), 1)
    k.I("s_add_u32", s(st0), s(st0), s(st1))
    k.I("s_lshl_b32", s(st0), s(st0), 15)
    k.I("s_lshl_b32", s(st1), s(shd), 11)
    k.I("s_add_u32", s(st0), s(st0), s(st1))
    k.I("s_add_u32", s(soff), s(st0), hex(O_OFF))
    for dt in range(2):
        k.I("buffer_store_dwordx2", vr(pk + 2 * dt, 2), v(vo), sr(sWS, 4), s(soff), mods=f"offen offset:{dt * 1024}")
    stp.stamp(2)
    k.L(done)
    k.I("s_endpgm")
    k.lds = lds; k.threads = 512; k.grid = 256
    return k


def code_prefetch(k, nxt, sidx, tmp_s, tid="v0"):
    if os.environ.get("PFC", "1") != "1": return
    pp = k.salloc(2); sP = k.salloc(4); vT = k.valloc(); vd = k.valloc()
    lab = k.newlabel("pc")
    k.I("s_getpc_b64", sr(pp, 2))
    k.L(lab)
    k.I("s_add_u32", s(pp), s(pp), f"{nxt}-{lab}")
    k.I("s_addc_u32", s(pp + 1), s(pp + 1), 0)
    srd(k, sP, pp, f"{nxt}_end-{nxt}")
    k.I("s_lshl_b32", s(tmp_s), s(sidx), 8)
    k.I("v_add_u32", v(vT), s(tmp_s), tid)
    k.I("v_lshlrev_b32", v(vT), 7, v(vT))
    k.vm("pfc", "buffer_load_dword", v(vd), v(vT), sr(sP, 4), 0, mods="offen")

def l2_prefetch(k, kernarg_off, nbytes, vT128, nthreads, tmp_s):
    if os.environ.get("PFT", "1") != "1": return
    pp = k.salloc(2); sP = k.salloc(4)
    k.I("s_load_dwordx2", sr(pp, 2), "s[0:1]", kernarg_off)
    k.I("s_waitcnt", "lgkmcnt(0)")
    srd(k, sP, pp, nbytes)
    n = -(-nbytes // (128 * nthreads))
    for i in range(n):
        vd = k.valloc()
        k.I("s_mov_b32", s(tmp_s), hex(i * nthreads * 128))
        k.vm("pft", "buffer_load_dword", v(vd), v(vT128), sr(sP, 4), s(tmp_s), mods="offen")

def mall_prefetch(k, kernarg_off, nbytes, first, per, nw, swave, lane, tmp_s, tv0, tv1, flag="PFM"):
    if os.environ.get(flag, "1") != "1": return
    pp = k.salloc(2); sP = k.salloc(4); vd = k.valloc()
    k.I("s_load_dwordx2", sr(pp, 2), "s[0:1]", kernarg_off)
    k.I("s_mul_i32", s(tmp_s), "s2", nw)
    k.I("s_add_u32", s(tmp_s), s(tmp_s), s(swave))
    k.I("s_mul_i32", s(tmp_s), s(tmp_s), per)
    k.I("s_add_u32", s(tmp_s), s(tmp_s), first)
    k.I("s_lshl_b32", s(tmp_s), s(tmp_s), 7)
    k.I("v_lshlrev_b32", v(tv0), 7, v(lane))
    k.I("v_mov_b32", v(tv1), "0x7fffff00")
    k.I("v_cmp_gt_u32", "vcc", per, v(lane))
    k.I("v_cndmask_b32", v(tv0), v(tv1), v(tv0), "vcc")
    k.I("s_waitcnt", "lgkmcnt(0)")
    k.lgq = []
    srd(k, sP, pp, nbytes)
    k.vm("pfm", "buffer_load_dword", v(vd), v(tv0), sr(sP, 4), s(tmp_s), mods="offen")

def map_rb_hd(k, srb, shd, st0, st1):
    if os.environ.get("MAP48", "1") == "1":
        k.I("s_and_b32", s(st0), "s2", 7)
        k.I("s_lshr_b32", s(st1), "s2", 3)
        k.I("s_and_b32", s(shd), s(st1), 7)
        k.I("s_lshr_b32", s(st1), s(st1), 3)
        k.I("s_lshr_b32", s(srb), s(st0), 1)
        k.I("s_lshl_b32", s(srb), s(srb), 2)
        k.I("s_add_u32", s(srb), s(srb), s(st1))
        k.I("s_and_b32", s(st0), s(st0), 1)
        k.I("s_lshl_b32", s(st0), s(st0), 3)
        k.I("s_add_u32", s(shd), s(shd), s(st0))
    else:
        k.I("s_and_b32", s(st0), "s2", 7)
        k.I("s_lshr_b32", s(st1), "s2", 3)
        k.I("s_and_b32", s(shd), s(st1), 15)
        k.I("s_lshr_b32", s(st1), s(st1), 4)
        k.I("s_lshl_b32", s(srb), s(st0), 1)
        k.I("s_add_u32", s(srb), s(srb), s(st1))

def rot_index(k, dst, srot, c, n):
    k.I("s_add_u32", s(dst), s(srot), c)
    k.I("s_cmp_ge_u32", s(dst), n)
    k.I("s_cselect_b32", "s3", n, 0)
    k.I("s_sub_u32", s(dst), s(dst), "s3")

ROTS = os.environ.get("ROT", "1")
def rot_on(n): return str(n) in ROTS

def common_start(k, nwg):
    k.snext = 4; k.vnext = 1
    done = k.newlabel("done")
    k.I("s_cmp_ge_u32", "s2", nwg)
    k.I("s_cbranch_scc1", done)
    R = dict(done=done)
    R["swave"] = k.salloc(); R["st0"] = k.salloc(); R["st1"] = k.salloc(); R["soff"] = k.salloc()
    R["lane"] = k.valloc(); R["t0"] = k.valloc(); R["t1"] = k.valloc(); R["t2"] = k.valloc()
    k.I("v_lshrrev_b32", v(R["t0"]), 6, "v0")
    k.I("v_and_b32", v(R["lane"]), 63, "v0")
    k.I("v_readfirstlane_b32", s(R["swave"]), v(R["t0"]))
    return R

def interleave(k, mf, fl):
    n = len(fl); m = len(mf)
    cuts = [(i * n + m - 1) // m for i in range(m + 1)]
    cuts[-1] = n
    for i in range(m):
        mf[i]()
        for f in fl[cuts[i]:cuts[i + 1]]: f()

def stats_from_packed(k, P, n, accs, accq, tmp):
    for j in range(n):
        t = tmp[j % len(tmp)]
        k.I("v_lshlrev_b32", v(t), 16, v(P + j))
        k.I("v_and_b32", v(t + 1), "0xffff0000", v(P + j))
        if j == 0:
            k.I("v_pk_mul_f32", vr(accq, 2), vr(t, 2), vr(t, 2))
            k.I("v_mov_b32", v(accs), v(t)); k.I("v_mov_b32", v(accs + 1), v(t + 1))
        else:
            k.I("v_pk_add_f32", vr(accs, 2), vr(accs, 2), vr(t, 2))
            k.I("v_pk_fma_f32", vr(accq, 2), vr(t, 2), vr(t, 2), vr(accq, 2))
    k.I("v_add_f32", v(accs), v(accs), v(accs + 1))
    k.I("v_add_f32", v(accq), v(accq), v(accq + 1))
    for r_ in (accs, accq):
        k.I("v_mov_b32", v(r_ + 1), v(r_))
        k.I("v_permlane32_swap_b32", v(r_), v(r_ + 1))
        k.I("v_add_f32", v(r_), v(r_), v(r_ + 1))

def gen_k3(Stamper):
    k = Kernel("k3_wo_kernel")
    WREG = 0; OREG = 58368
    lds = OREG + 65536
    R = common_start(k, 256)
    swave, st0, st1, soff, lane, t0, t1, t2 = (R[x] for x in ("swave", "st0", "st1", "soff", "lane", "t0", "t1", "t2"))
    pX = k.salloc(2); pWo = k.salloc(2); pWin = k.salloc(2); pWS = k.salloc(2)
    k.I("s_load_dwordx2", sr(pX, 2), "s[0:1]", 0)
    k.I("s_load_dwordx2", sr(pWo, 2), "s[0:1]", 16)
    k.I("s_load_dwordx2", sr(pWin, 2), "s[0:1]", 32)
    k.I("s_load_dwordx2", sr(pWS, 2), "s[0:1]", 80)
    sWS = k.salloc(4); sWo = k.salloc(4); sX = k.salloc(4)
    sj = k.salloc(); sidx = k.salloc(); srt = k.salloc(); snt = k.salloc(); sw3 = k.salloc()
    k.I("s_and_b32", s(sj), "s2", 7)
    k.I("s_lshr_b32", s(sidx), "s2", 3)
    k.I("s_and_b32", s(sw3), s(swave), 3)
    stp = Stamper(k, 2, sWS, swave)
    aux = k.newlabel("aux")
    k.I("s_cmp_ge_u32", s(sidx), 28)
    k.I("s_cbranch_scc1", aux)
    k.I("s_mul_i32", s(st0), s(sidx), 37)
    k.I("s_lshr_b32", s(st0), s(st0), 8)
    k.I("s_mul_i32", s(st1), s(st0), 7)
    k.I("s_sub_u32", s(snt), s(sidx), s(st1))
    k.I("s_lshl_b32", s(srt), s(sj), 2)
    k.I("s_add_u32", s(srt), s(srt), s(st0))
    k.I("s_waitcnt", "lgkmcnt(0)")
    srd(k, sWS, pWS, WS_SIZE)
    comp = k.newlabel("compute")
    k.I("s_cmp_lt_u32", s(swave), 4)
    k.I("s_cbranch_scc1", comp)
    vsave = k.vnext
    srd(k, sWo, pWo, 448 * 896)
    v16 = k.valloc(); vWo = k.valloc()
    k.I("v_lshlrev_b32", v(v16), 4, v(lane))
    k.I("v_lshrrev_b32", v(t0), 3, v(lane))
    k.I("v_mul_u32_u24", v(t0), 896, v(t0))
    k.I("v_bfe_u32", v(t1), v(lane), 4, 1)
    k.I("v_lshlrev_b32", v(t1), 2, v(t1))
    k.I("v_and_b32", v(t2), 7, v(lane))
    k.I("v_xor_b32", v(t1), v(t1), v(t2))
    k.I("v_lshl_add_u32", v(vWo), v(t1), 4, v(t0))
    sOb = k.salloc(); sWb = k.salloc(); smO = k.salloc(); smW = k.salloc()
    k.I("s_lshl_b32", s(sOb), s(srt), 16)
    k.I("s_lshl_b32", s(st0), s(sw3), 10)
    k.I("s_add_u32", s(sOb), s(sOb), s(st0))
    k.I("s_add_u32", s(sOb), s(sOb), hex(O_OFF))
    k.I("s_add_u32", s(smO), s(st0), OREG)
    k.I("s_mul_i32", s(sWb), s(sw3), 8 * 896)
    k.I("s_lshl_b32", s(st1), s(snt), 7)
    k.I("s_add_u32", s(sWb), s(sWb), s(st1))
    k.I("s_add_u32", s(smW), s(st0), WREG)
    def issue(c):
        for r2 in range(2):
            k.I("s_add_u32", s(soff), s(sOb), hex(r2 * 32768 + c * 4096))
            k.I("s_add_u32", "m0", s(smO), hex(r2 * 32768 + c * 4096))
            k.vm(("S", c), "buffer_load_dwordx4", v(v16), sr(sWS, 4), s(soff), mods="offen lds")
        for i in range(2):
            k.I("s_add_u32", s(soff), s(sWb), hex((56 * c + 32 * i) * 896))
            k.I("s_add_u32", "m0", s(smW), hex((56 * c + 32 * i) * 128))
            k.vm(("S", c), "buffer_load_dwordx4", v(vWo), sr(sWo, 4), s(soff), mods="offen lds")
    LA = 3
    for c in range(LA): issue(c)
    for c in range(8):
        k.wait_vm(("S", c))
        k.I("s_barrier")
        if c + LA < 8: issue(c + LA)
    k.I("s_endpgm")
    k.L(comp)
    k.vnext = vsave; k.vmq = []; k.lgq = []
    srd(k, sX, pX, 2048 * 896)
    l31 = k.valloc(); hh = k.valloc()
    k.I("v_and_b32", v(l31), 31, v(lane))
    k.I("v_lshrrev_b32", v(hh), 5, v(lane))
    srh = k.salloc(); snh = k.salloc(); sst = k.salloc(); sntile = k.salloc()
    k.I("s_and_b32", s(srh), s(swave), 1)
    k.I("s_lshr_b32", s(snh), s(swave), 1)
    k.I("s_lshl_b32", s(sst), s(srt), 1)
    k.I("s_add_u32", s(sst), s(sst), s(srh))
    k.I("s_lshl_b32", s(sntile), s(snt), 1)
    k.I("s_add_u32", s(sntile), s(sntile), s(snh))
    xr = k.valloc(8, 4); vx = k.valloc()
    k.I("v_mul_u32_u24", v(vx), 896, v(l31))
    k.I("v_lshl_add_u32", v(vx), v(hh), 3, v(vx))
    k.I("s_mul_i32", s(soff), s(sst), 32 * 896)
    k.I("s_lshl_b32", s(st0), s(sntile), 6)
    k.I("s_add_u32", s(soff), s(soff), s(st0))
    for q in range(4):
        k.vm("x", "buffer_load_dwordx2", vr(xr + 2 * q, 2), v(vx), sr(sX, 4), s(soff), mods=f"offen offset:{16 * q}")
    code_prefetch(k, "k4_win_kernel", sidx, st0)
    stp.stamp(0)
    aO = k.valloc(); vW = k.valloc()
    k.I("v_lshlrev_b32", v(aO), 4, v(lane))
    k.I("s_lshl_b32", s(st0), s(srh), 15)
    k.I("s_add_u32", s(st0), s(st0), OREG)
    k.I("v_add_u32", v(aO), s(st0), v(aO))
    k.I("v_bfe_u32", v(t0), v(lane), 2, 2)
    k.I("v_lshl_add_u32", v(t0), v(hh), 3, v(t0))
    k.I("v_lshlrev_b32", v(vW), 7, v(t0))
    k.I("v_bfe_u32", v(t0), v(lane), 4, 1)
    k.I("v_lshlrev_b32", v(t0), 1, v(t0))
    k.I("v_bfe_u32", v(t1), v(lane), 1, 1)
    k.I("v_add_u32", v(t0), v(t0), v(t1))
    k.I("s_lshl_b32", s(st0), s(snh), 2)
    k.I("v_add_u32", v(t0), s(st0), v(t0))
    k.I("v_bfe_u32", v(t1), v(lane), 3, 1)
    k.I("v_lshlrev_b32", v(t1), 2, v(t1))
    k.I("v_xor_b32", v(t0), v(t0), v(t1))
    k.I("v_lshl_add_u32", v(vW), v(t0), 4, v(vW))
    k.I("v_and_b32", v(t0), 1, v(lane))
    k.I("v_lshl_add_u32", v(vW), v(t0), 3, v(vW))
    acc = k.valloc(16, 4)
    NB = 3
    of = [k.valloc(4) for _ in range(NB)]; wf = [k.valloc(4) for _ in range(NB)]
    def rl(ks):
        b = ks % NB
        out = [lambda: k.lg(("f", ks), "ds_read_b128", vr(of[b], 4), v(aO), mods=f"offset:{ks * 1024}")]
        for beta in range(2):
            o = (28 * (ks >> 1) + 16 * (ks & 1) + 4 * beta) * 128
            out.append(lambda o=o, beta=beta: k.lg(("f", ks), "ds_read_b64_tr_b16", vr(wf[b] + 2 * beta, 2), v(vW), mods=f"offset:{o}"))
        return out
    k.I("s_barrier")
    stp.stamp(1)
    for f in rl(0) + rl(1): f()
    for ks in range(32):
        c, j = ks // 4, ks % 4
        b = ks % NB
        k.wait_lg(("f", ks))
        k.I("v_mfma_f32_32x32x16_bf16", vr(acc, 16), vr(wf[b], 4), vr(of[b], 4), 0 if ks == 0 else vr(acc, 16))
        if j == 1 and c < 7: k.I("s_barrier")
        if ks + 2 < 32 and not (j == 1 and False):
            pass
        nxt = ks + 2
        if nxt < 32:
            for f in rl(nxt): f()
    EOF_MARK = None
    stp.stamp(2)
    k.wait_vm("x")
    tmp = [k.valloc(2) for _ in range(4)]
    for q in range(4):
        for d in range(2):
            t = tmp[(2 * q + d) % 4]
            k.I("v_lshlrev_b32", v(t), 16, v(xr + 2 * q + d))
            k.I("v_and_b32", v(t + 1), "0xffff0000", v(xr + 2 * q + d))
            k.I("v_pk_add_f32", vr(acc + 4 * q + 2 * d, 2), vr(acc + 4 * q + 2 * d, 2), vr(t, 2))
    P = k.valloc(8, 4)
    for j in range(8): k.I("v_cvt_pk_bf16_f32", v(P + j), v(acc + 2 * j), v(acc + 2 * j + 1))
    v16 = k.valloc()
    k.I("v_lshlrev_b32", v(v16), 4, v(lane))
    k.I("s_mul_i32", s(soff), s(sst), 28 * 1024)
    k.I("s_lshl_b32", s(st0), s(sntile), 11)
    k.I("s_add_u32", s(soff), s(soff), s(st0))
    k.I("s_add_u32", s(soff), s(soff), hex(H_OFF))
    k.I("buffer_store_dwordx4", vr(P, 4), v(v16), sr(sWS, 4), s(soff), mods="offen")
    k.I("buffer_store_dwordx4", vr(P + 4, 4), v(v16), sr(sWS, 4), s(soff), mods="offen offset:1024")
    accs = k.valloc(2); accq = k.valloc(2)
    stats_from_packed(k, P, 8, accs, accq, tmp)
    k.I("v_mov_b32", v(accs + 1), v(accq))
    vh = k.valloc()
    k.I("v_mul_u32_u24", v(vh), 112, v(l31))
    k.I("s_mul_i32", s(soff), s(sst), 32 * 112)
    k.I("s_lshl_b32", s(st0), s(sntile), 3)
    k.I("s_add_u32", s(soff), s(soff), s(st0))
    k.I("s_add_u32", s(soff), s(soff), hex(HS_OFF))
    k.I("s_mov_b32", "exec_hi", 0)
    k.I("buffer_store_dwordx2", vr(accs, 2), v(vh), sr(sWS, 4), s(soff), mods="offen")
    stp.stamp(3)
    k.I("s_endpgm")
    k.L(aux)
    k.vnext = vsave; k.vmq = []; k.lgq = []
    sa = k.salloc(); sWin = k.salloc(4)
    k.I("s_sub_u32", s(sa), s(sidx), 28)
    k.I("s_lshl_b32", s(sa), s(sa), 3)
    k.I("s_add_u32", s(sa), s(sa), s(sj))
    k.I("s_waitcnt", "lgkmcnt(0)")
    srd(k, sWS, pWS, WS_SIZE)
    ff = k.valloc(4)
    for i in range(4): k.I("v_mov_b32", v(ff + i), -1)
    k.I("v_lshlrev_b32", v(t1), 4, "v0")
    k.I("v_mov_b32", v(t2), "0x7fffff00")
    k.I("v_cmp_gt_u32", "vcc", 448, "v0")
    k.I("v_cndmask_b32", v(t1), v(t2), v(t1), "vcc")
    k.I("s_mul_i32", s(st0), s(sa), 7168)
    k.I("s_add_u32", s(st0), s(st0), hex(EX_OFF))
    k.I("buffer_store_dwordx4", vr(ff, 4), v(t1), sr(sWS, 4), s(st0), mods="offen")
    zf = k.valloc(4)
    for i in range(4): k.I("v_mov_b32", v(zf + i), 0)
    k.I("v_lshlrev_b32", v(t1), 4, "v0")
    k.I("v_mov_b32", v(t2), "0x7fffff00")
    k.I("v_cmp_gt_u32", "vcc", 32, "v0")
    k.I("v_cndmask_b32", v(t1), v(t2), v(t1), "vcc")
    k.I("s_lshl_b32", s(st0), s(sa), 9)
    k.I("s_add_u32", s(st0), s(st0), hex(FL_OFF))
    k.I("buffer_store_dwordx4", vr(zf, 4), v(t1), sr(sWS, 4), s(st0), mods="offen")
    srd(k, sWin, pWin, 448 * 3584)
    def win_prefetch():
        if os.environ.get("PFWIN", "k2") != "k3": return
        vTw = k.valloc(); vdw = k.valloc(7)
        k.I("s_sub_u32", s(st0), s(sidx), 28)
        k.I("s_lshl_b32", s(st0), s(st0), 9)
        k.I("v_add_u32", v(vTw), s(st0), "v0")
        k.I("v_lshlrev_b32", v(vTw), 7, v(vTw))
        for i in range(7):
            k.I("s_mov_b32", s(st0), hex(i * 2048 * 128))
            k.I("buffer_load_dword", v(vdw + i), v(vTw), sr(sWin, 4), s(st0), mods="offen")
    nocs = k.newlabel("nocs")
    k.I("s_cmp_ge_u32", s(sa), 28)
    k.I("s_cbranch_scc1", nocs)
    vg = k.valloc()
    k.I("v_lshrrev_b32", v(t0), 3, v(lane))
    k.I("v_mul_u32_u24", v(t0), 3584, v(t0))
    k.I("v_bfe_u32", v(t1), v(lane), 4, 1)
    k.I("v_lshlrev_b32", v(t1), 2, v(t1))
    k.I("v_and_b32", v(t2), 7, v(lane))
    k.I("v_xor_b32", v(t1), v(t1), v(t2))
    k.I("v_lshl_add_u32", v(vg), v(t1), 4, v(t0))
    sb = k.salloc(); sm = k.salloc()
    k.I("s_mul_i32", s(sb), s(swave), 56 * 3584)
    k.I("s_lshl_b32", s(st0), s(sa), 7)
    k.I("s_add_u32", s(sb), s(sb), s(st0))
    k.I("s_mul_i32", s(sm), s(swave), 56 * 128)
    for i in range(7):
        k.I("s_add_u32", s(soff), s(sb), hex(i * 8 * 3584))
        k.I("s_add_u32", "m0", s(sm), hex(i * 1024))
        k.I("buffer_load_dwordx4", v(vg), sr(sWin, 4), s(soff), mods="offen lds")
    win_prefetch()
    z = k.valloc(); TB = 57344
    k.I("v_mov_b32", v(z), 0)
    k.I("v_lshlrev_b32", v(t0), 2, v(lane))
    k.I("v_add_u32", v(t0), TB, v(t0))
    k.I("ds_write_b32", v(t0), v(z))
    gg = k.valloc(); vB = k.valloc(); ones = k.valloc(4)
    k.I("v_lshrrev_b32", v(gg), 4, v(lane))
    k.I("v_bfe_u32", v(t0), v(lane), 2, 2)
    k.I("v_lshl_add_u32", v(t0), v(gg), 3, v(t0))
    k.I("v_lshlrev_b32", v(vB), 7, v(t0))
    k.I("v_bfe_u32", v(t0), v(lane), 1, 1)
    k.I("s_lshl_b32", s(st0), s(sw3), 1)
    k.I("v_add_u32", v(t0), s(st0), v(t0))
    k.I("v_bfe_u32", v(t1), v(lane), 3, 1)
    k.I("v_lshlrev_b32", v(t1), 2, v(t1))
    k.I("v_xor_b32", v(t0), v(t0), v(t1))
    k.I("v_lshl_add_u32", v(vB), v(t0), 4, v(vB))
    k.I("v_and_b32", v(t0), 1, v(lane))
    k.I("v_lshl_add_u32", v(vB), v(t0), 3, v(vB))
    k.I("s_lshr_b32", s(st0), s(swave), 2)
    k.I("s_mul_i32", s(st0), s(st0), 224 * 128)
    k.I("v_add_u32", v(vB), s(st0), v(vB))
    for i in range(4): k.I("v_mov_b32", v(ones + i), "0x3f803f80")
    k.I("s_waitcnt", "vmcnt(7) lgkmcnt(0)" if os.environ.get("PFWIN", "k2") == "k3" else "vmcnt(0) lgkmcnt(0)")
    k.I("s_barrier")
    bf = [k.valloc(4) for _ in range(7)]
    for kk in range(7):
        for beta in range(2):
            k.I("ds_read_b64_tr_b16", vr(bf[kk] + 2 * beta, 2), v(vB), mods=f"offset:{(32 * kk + 4 * beta) * 128}")
    ca = k.valloc(4)
    k.I("s_waitcnt", "lgkmcnt(0)")
    for kk in range(7):
        k.I("v_mfma_f32_16x16x32_bf16", vr(ca, 4), vr(ones, 4), vr(bf[kk], 4), 0 if kk == 0 else vr(ca, 4))
    k.I("v_and_b32", v(t0), 15, v(lane))
    k.I("s_lshl_b32", s(st0), s(sw3), 6)
    k.I("s_add_u32", s(st0), s(st0), TB)
    k.I("v_lshlrev_b32", v(t0), 2, v(t0))
    k.I("v_add_u32", v(t0), s(st0), v(t0))
    k.I("s_mov_b32", "exec_lo", "0xffff")
    k.I("s_mov_b32", "exec_hi", 0)
    k.I("ds_add_f32", v(t0), v(ca))
    k.I("s_mov_b64", "exec", -1)
    k.I("s_waitcnt", "lgkmcnt(0)")
    k.I("s_barrier")
    k.I("s_cmp_lg_u32", s(swave), 0)
    k.I("s_cbranch_scc1", R["done"])
    k.I("v_lshlrev_b32", v(t0), 2, v(lane))
    k.I("v_add_u32", v(t1), TB, v(t0))
    k.I("ds_read_b32", v(z), v(t1))
    k.I("s_lshl_b32", s(st0), s(sa), 8)
    k.I("s_add_u32", s(st0), s(st0), hex(CW_OFF))
    k.I("s_waitcnt", "lgkmcnt(0)")
    k.I("buffer_store_dword", v(z), v(t0), sr(sWS, 4), s(st0), mods="offen")
    k.I("s_endpgm")
    k.L(nocs)
    win_prefetch()
    k.L(R["done"])
    k.I("s_endpgm")
    k.lds = lds; k.threads = 512; k.grid = 256
    return k


GELU_C0 = -2.0 * math.sqrt(2.0 / math.pi) * math.log2(math.e)
GELU_C1 = GELU_C0 * 0.044715

def gen_k4(Stamper):
    k = Kernel("k4_win_kernel")
    NS = 4; SLOT = 32768; TRB = NS * SLOT
    STB = TRB
    lds = TRB + 4096
    R = common_start(k, 256)
    swave, st0, st1, soff, lane, t0, t1, t2 = (R[x] for x in ("swave", "st0", "st1", "soff", "lane", "t0", "t1", "t2"))
    pWin = k.salloc(2); pWS = k.salloc(2)
    k.I("s_load_dwordx2", sr(pWin, 2), "s[0:1]", 32)
    k.I("s_load_dwordx2", sr(pWS, 2), "s[0:1]", 80)
    sWS = k.salloc(4); sWin = k.salloc(4)
    sj = k.salloc(); sidx = k.salloc(); srb = k.salloc(); sct = k.salloc(); sw3 = k.salloc()
    k.I("s_and_b32", s(sj), "s2", 7)
    k.I("s_lshr_b32", s(sidx), "s2", 3)
    k.I("s_and_b32", s(sw3), s(swave), 3)
    pfrole = k.newlabel("pfrole")
    k.I("s_cmp_ge_u32", s(sidx), 28)
    k.I("s_cbranch_scc1", pfrole)
    k.I("s_cmp_ge_u32", s(sidx), 14)
    k.I("s_cselect_b32", s(st0), 1, 0)
    k.I("s_mul_i32", s(st1), s(st0), 14)
    k.I("s_sub_u32", s(sct), s(sidx), s(st1))
    k.I("s_lshl_b32", s(srb), s(sj), 1)
    k.I("s_add_u32", s(srb), s(srb), s(st0))
    stp = Stamper(k, 3, sWS, swave)
    k.I("s_waitcnt", "lgkmcnt(0)")
    srd(k, sWS, pWS, WS_SIZE)
    comp = k.newlabel("compute")
    k.I("s_cmp_lt_u32", s(swave), 4)
    k.I("s_cbranch_scc1", comp)
    vsave = k.vnext
    srd(k, sWin, pWin, 448 * 3584)
    v16 = k.valloc(); vWo = k.valloc()
    k.I("v_lshlrev_b32", v(v16), 4, v(lane))
    k.I("v_lshrrev_b32", v(t0), 4, v(lane))
    k.I("v_lshlrev_b32", v(t1), 2, v(t0))
    k.I("v_and_b32", v(t2), 15, v(lane))
    k.I("v_xor_b32", v(t1), v(t1), v(t2))
    k.I("v_mul_u32_u24", v(vWo), 3584, v(t0))
    k.I("v_and_b32", v(t2), 7, v(t1))
    k.I("v_lshl_add_u32", v(vWo), v(t2), 4, v(vWo))
    k.I("v_add_u32", v(t2), 1792, v(vWo))
    k.I("v_cmp_gt_u32", "vcc", 8, v(t1))
    k.I("v_cndmask_b32", v(vWo), v(vWo), v(t2), "vcc")
    sHb = k.salloc(); sWb = k.salloc(); smH = k.salloc(); smW = k.salloc()
    k.I("s_lshl_b32", s(st0), s(srb), 2)
    k.I("s_add_u32", s(st0), s(st0), s(sw3))
    k.I("s_mul_i32", s(sHb), s(st0), 28 * 1024)
    k.I("s_add_u32", s(sHb), s(sHb), hex(H_OFF))
    k.I("s_lshl_b32", s(smH), s(sw3), 12)
    k.I("s_mul_i32", s(sWb), s(sw3), 16 * 3584)
    k.I("s_lshl_b32", s(st1), s(sct), 7)
    k.I("s_add_u32", s(sWb), s(sWb), s(st1))
    k.I("s_add_u32", s(smW), s(smH), 16384)
    def issue(c):
        sl = (c % NS) * SLOT
        for i in range(4):
            k.I("s_add_u32", s(soff), s(sHb), hex((4 * c + i) * 1024))
            k.I("s_add_u32", "m0", s(smH), hex(sl + i * 1024))
            k.vm(("S", c), "buffer_load_dwordx4", v(v16), sr(sWS, 4), s(soff), mods="offen lds")
        for i in range(4):
            k.I("s_add_u32", s(soff), s(sWb), hex((64 * c + 4 * i) * 3584))
            k.I("s_add_u32", "m0", s(smW), hex(sl + i * 1024))
            k.vm(("S", c), "buffer_load_dwordx4", v(vWo), sr(sWin, 4), s(soff), mods="offen lds")
    issue(0); issue(1)
    for c in range(7):
        k.wait_vm(("S", c))
        k.I("s_barrier")
        if c == 0: issue(2); issue(3)
        elif c + 2 < 7 and c >= 2: issue(c + 2)
    k.I("s_barrier")
    k.I("s_endpgm")
    k.L(comp)
    k.vnext = vsave; k.vmq = []; k.lgq = []
    l31 = k.valloc(); hh = k.valloc()
    k.I("v_and_b32", v(l31), 31, v(lane))
    k.I("v_lshrrev_b32", v(hh), 5, v(lane))
    srh = k.salloc(); sch = k.salloc(); sst = k.salloc()
    k.I("s_and_b32", s(srh), s(swave), 1)
    k.I("s_lshr_b32", s(sch), s(swave), 1)
    k.I("s_lshl_b32", s(sst), s(srb), 2)
    k.I("s_lshl_b32", s(st0), s(srh), 1)
    k.I("s_add_u32", s(sst), s(sst), s(st0))
    hs = [k.valloc(16, 4) for _ in range(2)]
    vh = k.valloc()
    k.I("v_mul_u32_u24", v(vh), 112, v(l31))
    k.I("v_lshl_add_u32", v(vh), v(hh), 6, v(vh))
    for t in range(2):
        k.I("s_add_u32", s(st0), s(sst), t)
        k.I("s_mul_i32", s(soff), s(st0), 32 * 112)
        k.I("s_add_u32", s(soff), s(soff), hex(HS_OFF))
        for i in range(4):
            k.vm("hs", "buffer_load_dwordx4", vr(hs[t] + 4 * i, 4), v(vh), sr(sWS, 4), s(soff), mods=f"offen offset:{16 * i}")
    cw = [k.valloc(16, 4) for _ in range(2)]
    vc = k.valloc()
    k.I("v_lshlrev_b32", v(vc), 4, v(hh))
    k.I("s_lshl_b32", s(st0), s(sct), 8)
    k.I("s_lshl_b32", s(st1), s(sch), 7)
    k.I("s_add_u32", s(st0), s(st0), s(st1))
    for z in range(2):
        k.I("s_add_u32", s(soff), s(st0), hex(CW_OFF + (896 * 4 if z == 0 else 0)))
        for q in range(4):
            k.vm("cw", "buffer_load_dwordx4", vr(cw[z] + 4 * q, 4), v(vc), sr(sWS, 4), s(soff), mods=f"offen offset:{32 * q}")
    if os.environ.get("PF2", "0") == "1":
        pp = k.salloc(2); sP = k.salloc(4); vT = k.valloc(); vd = k.valloc(2)
        k.I("s_load_dwordx2", sr(pp, 2), "s[0:1]", 40)
        k.I("s_lshl_b32", s(st0), s(sidx), 8)
        k.I("v_add_u32", v(vT), s(st0), "v0")
        k.I("s_waitcnt", "lgkmcnt(0)")
        srd(k, sP, pp, 2048 * 4096)
        k.I("s_lshr_b32", s(st0), s(sj), 1)
        k.I("s_lshl_b32", s(st0), s(st0), 21)
        k.I("s_and_b32", s(st1), s(sj), 1)
        k.I("s_lshl_b32", s(st1), s(st1), 11)
        k.I("s_add_u32", s(st0), s(st0), s(st1))
        for i in range(2):
            k.I("v_add_u32", v(t0), 7168 * i, v(vT))
            k.I("v_lshrrev_b32", v(t1), 4, v(t0))
            k.I("v_lshlrev_b32", v(t1), 12, v(t1))
            k.I("v_and_b32", v(t2), 15, v(t0))
            k.I("v_lshl_add_u32", v(t1), v(t2), 7, v(t1))
            if i == 1:
                k.I("v_mov_b32", v(t2), "0x7fffff00")
                k.I("v_cmp_gt_u32", "vcc", 8192, v(t0))
                k.I("v_cndmask_b32", v(t1), v(t2), v(t1), "vcc")
            k.vm("pf", "buffer_load_dword", v(vd + i), v(t1), sr(sP, 4), s(st0), mods="offen")
    code_prefetch(k, "k5_sp_kernel", sidx, st0)
    stp.stamp(0)
    aH = k.valloc(); vW = [k.valloc(), k.valloc()]
    k.I("v_lshlrev_b32", v(aH), 4, v(lane))
    k.I("s_lshl_b32", s(st0), s(srh), 13)
    k.I("v_add_u32", v(aH), s(st0), v(aH))
    k.I("v_bfe_u32", v(t0), v(lane), 2, 2)
    k.I("v_lshl_add_u32", v(t1), v(hh), 2, v(t0))
    k.I("v_lshlrev_b32", v(t1), 8, v(t1))
    k.I("v_add_u32", v(t1), 16384, v(t1))
    k.I("v_bfe_u32", v(t2), v(lane), 4, 1)
    k.I("v_lshlrev_b32", v(t2), 1, v(t2))
    k.I("v_bfe_u32", v(vW[0]), v(lane), 1, 1)
    k.I("v_add_u32", v(t2), v(t2), v(vW[0]))
    k.I("s_lshl_b32", s(st0), s(sch), 2)
    k.I("v_add_u32", v(t2), s(st0), v(t2))
    k.I("v_lshlrev_b32", v(t0), 2, v(t0))
    k.I("v_xor_b32", v(vW[0]), v(t2), v(t0))
    k.I("v_add_u32", v(t2), 8, v(t2))
    k.I("v_xor_b32", v(vW[1]), v(t2), v(t0))
    k.I("v_and_b32", v(t2), 1, v(lane))
    for z in range(2):
        k.I("v_lshl_add_u32", v(vW[z]), v(vW[z]), 4, v(t1))
        k.I("v_lshl_add_u32", v(vW[z]), v(t2), 3, v(vW[z]))
    aH2 = k.valloc(); vW2 = [k.valloc(), k.valloc()]
    k.I("v_add_u32", v(aH2), 65536, v(aH))
    for z in range(2): k.I("v_add_u32", v(vW2[z]), 65536, v(vW[z]))
    acc = [[k.valloc(16, 4) for _ in range(2)] for _ in range(2)]
    vmark = k.vnext
    NB = 3
    hf = [[k.valloc(4) for _ in range(2)] for _ in range(NB)]
    wf = [[k.valloc(4) for _ in range(2)] for _ in range(NB)]
    def rl(ks):
        c, j = ks // 4, ks % 4
        b = ks % NB
        sl = (c % NS) * SLOT
        hi = sl >= 65536
        so = sl - (65536 if hi else 0)
        out = []
        for t in range(2):
            out.append(lambda t=t: k.lg(("f", ks), "ds_read_b128", vr(hf[b][t], 4), v(aH2 if hi else aH), mods=f"offset:{so + t * 4096 + j * 1024}"))
        for z in range(2):
            for beta in range(2):
                o = so + (16 * j + 8 * beta) * 256
                out.append(lambda o=o, z=z, beta=beta: k.lg(("f", ks), "ds_read_b64_tr_b16", vr(wf[b][z] + 2 * beta, 2), v((vW2 if hi else vW)[z]), mods=f"offset:{o}"))
        return out
    k.I("s_barrier")
    stp.stamp(1)
    for f in rl(0) + rl(1): f()
    for ks in range(28):
        c, j = ks // 4, ks % 4
        b = ks % NB
        k.wait_lg(("f", ks))
        mf = []
        for z in range(2):
            for t in range(2):
                mf.append(lambda z=z, t=t: k.I("v_mfma_f32_32x32x16_bf16", vr(acc[z][t], 16), vr(wf[b][z], 4), vr(hf[b][t], 4), 0 if ks == 0 else vr(acc[z][t], 16)))
        if j == 2 and c < 6:
            pass
        fl = rl(ks + 2) if ks + 2 < 28 else []
        if j == 2 and ks + 2 < 28:
            k.I("s_barrier")
        interleave(k, mf, fl)
    stp.stamp(2)
    k.vnext = vmark
    k.wait_vm(["hs", "cw"])
    rr = [k.valloc(2) for _ in range(2)]; nm = [k.valloc(2) for _ in range(2)]
    c0r = [k.valloc(2) for _ in range(2)]; c1r = [k.valloc(2) for _ in range(2)]
    k.I("v_cmp_eq_u32", "vcc", 0, v(hh))
    for t in range(2):
        H = hs[t]
        for i in range(12, 16): k.I("v_cndmask_b32", v(H + i), 0, v(H + i), "vcc")
        for i in range(4): k.I("v_pk_add_f32", vr(H + 2 * i, 2), vr(H + 2 * i, 2), vr(H + 8 + 2 * i, 2))
        for i in range(2): k.I("v_pk_add_f32", vr(H + 2 * i, 2), vr(H + 2 * i, 2), vr(H + 4 + 2 * i, 2))
        k.I("v_pk_add_f32", vr(H, 2), vr(H, 2), vr(H + 2, 2))
        for e in range(2):
            k.I("v_mov_b32", v(H + 2), v(H + e))
            k.I("v_permlane32_swap_b32", v(H + e), v(H + 2))
            k.I("v_add_f32", v(H + e), v(H + e), v(H + 2))
        k.I("v_mul_f32", v(nm[t]), hex(f32(-1.0 / 448)), v(H))
        k.I("v_mul_f32", v(H + 1), hex(f32(1.0 / 448)), v(H + 1))
        k.I("v_fma_f32", v(H + 1), f"-{v(nm[t])}", v(nm[t]), v(H + 1))
        k.I("v_max_f32", v(H + 1), 0, v(H + 1))
        k.I("v_add_f32", v(H + 1), hex(f32(1e-5)), v(H + 1))
        k.I("v_rsq_f32", v(rr[t]), v(H + 1))
        k.I("v_mul_f32", v(c0r[t]), hex(f32(GELU_C0)), v(rr[t]))
        k.I("v_mul_f32", v(c1r[t]), v(rr[t]), v(rr[t]))
        k.I("v_mul_f32", v(c1r[t]), v(c1r[t]), v(rr[t]))
        k.I("v_mul_f32", v(c1r[t]), hex(f32(GELU_C1)), v(c1r[t]))
    norh = k.newlabel("norh")
    k.I("s_or_b32", s(st0), s(sct), s(sch))
    k.I("s_cmp_lg_u32", s(st0), 0)
    k.I("s_cbranch_scc1", norh)
    k.I("v_lshlrev_b32", v(t0), 2, v(l31))
    for t in range(2):
        k.I("s_add_u32", s(st0), s(sst), t)
        k.I("s_lshl_b32", s(st0), s(st0), 7)
        k.I("s_add_u32", s(st0), s(st0), hex(RH_OFF))
        k.I("buffer_store_dword", v(rr[t]), v(t0), sr(sWS, 4), s(st0), mods="offen")
    k.L(norh)
    tp = [k.valloc(2) for _ in range(4)]
    def gelu_tile(A, z, t):
        for j in range(8):
            k.I("v_pk_fma_f32", vr(A + 2 * j, 2), vr(cw[z] + 2 * j, 2), vr(nm[t], 2), vr(A + 2 * j, 2), mods="op_sel_hi:[1,0,1]")
        for j0 in range(0, 8, 4):
            for j in range(j0, j0 + 4):
                T = tp[j - j0]
                k.I("v_pk_mul_f32", vr(T, 2), vr(A + 2 * j, 2), vr(A + 2 * j, 2))
            for j in range(j0, j0 + 4):
                T = tp[j - j0]
                k.I("v_pk_fma_f32", vr(T, 2), vr(T, 2), vr(c1r[t], 2), vr(c0r[t], 2), mods="op_sel_hi:[1,0,0]")
            for j in range(j0, j0 + 4):
                T = tp[j - j0]
                k.I("v_pk_mul_f32", vr(T, 2), vr(T, 2), vr(A + 2 * j, 2))
            for j in range(j0, j0 + 4):
                T = tp[j - j0]
                k.I("v_exp_f32", v(T), v(T)); k.I("v_exp_f32", v(T + 1), v(T + 1))
            for j in range(j0, j0 + 4):
                T = tp[j - j0]
                k.I("v_pk_add_f32", vr(T, 2), vr(T, 2), "1.0", mods="op_sel_hi:[1,0]")
            for j in range(j0, j0 + 4):
                T = tp[j - j0]
                k.I("v_rcp_f32", v(T), v(T)); k.I("v_rcp_f32", v(T + 1), v(T + 1))
            for j in range(j0, j0 + 4):
                T = tp[j - j0]
                k.I("v_pk_mul_f32", vr(A + 2 * j, 2), vr(A + 2 * j, 2), vr(T, 2))
    accs = [k.valloc(2) for _ in range(2)]; accq = [k.valloc(2) for _ in range(2)]
    for t in range(2):
        A = acc[0][t]
        gelu_tile(A, 0, t)
        for j in range(8):
            k.I("v_pk_mul_f32", vr(A + 2 * j, 2), vr(A + 2 * j, 2), vr(rr[t], 2), mods="op_sel_hi:[1,0]")
        k.I("v_pk_add_f32", vr(accs[t], 2), vr(A, 2), vr(A + 2, 2))
        k.I("v_pk_mul_f32", vr(accq[t], 2), vr(A, 2), vr(A, 2))
        k.I("v_pk_fma_f32", vr(accq[t], 2), vr(A + 2, 2), vr(A + 2, 2), vr(accq[t], 2))
        for j in range(2, 8):
            k.I("v_pk_add_f32", vr(accs[t], 2), vr(accs[t], 2), vr(A + 2 * j, 2))
            k.I("v_pk_fma_f32", vr(accq[t], 2), vr(A + 2 * j, 2), vr(A + 2 * j, 2), vr(accq[t], 2))
        k.I("v_add_f32", v(accs[t]), v(accs[t]), v(accs[t] + 1))
        k.I("v_add_f32", v(accs[t] + 1), v(accq[t]), v(accq[t] + 1))
        for e in range(2):
            k.I("v_mov_b32", v(accq[t]), v(accs[t] + e))
            k.I("v_permlane32_swap_b32", v(accs[t] + e), v(accq[t]))
            k.I("v_add_f32", v(accs[t] + e), v(accs[t] + e), v(accq[t]))
    vs = k.valloc()
    k.I("v_lshlrev_b32", v(vs), 3, v(l31))
    k.I("s_lshl_b32", s(st0), s(srh), 9)
    k.I("s_add_u32", s(st0), s(st0), STB)
    k.I("v_add_u32", v(vs), s(st0), v(vs))
    k.I("s_lshl_b32", s(st0), s(sch), 10)
    k.I("v_add_u32", v(t0), s(st0), v(vs))
    for t in range(2):
        k.I("ds_write_b64", v(t0), vr(accs[t], 2), mods=f"offset:{t * 256}")
    k.I("s_waitcnt", "lgkmcnt(0)")
    k.I("s_barrier")
    pub = k.newlabel("nopub")
    k.I("s_cmp_lg_u32", s(sch), 0)
    k.I("s_cbranch_scc1", pub)
    oth = k.valloc(4)
    for t in range(2):
        k.I("ds_read_b64", vr(oth + 2 * t, 2), v(vs), mods=f"offset:{1024 + t * 256}")
    k.I("s_waitcnt", "lgkmcnt(0)")
    for t in range(2):
        k.I("v_pk_add_f32", vr(oth + 2 * t, 2), vr(oth + 2 * t, 2), vr(accs[t], 2))
        k.I("v_mov_b32", v(t1), "0x7fc00000")
        k.I("v_cmp_eq_u32", "vcc", -1, v(oth + 2 * t + 1))
        k.I("v_cndmask_b32", v(oth + 2 * t + 1), v(oth + 2 * t + 1), v(t1), "vcc")
    ve = k.valloc()
    k.I("v_mul_u32_u24", v(ve), 112, v(l31))
    k.I("s_mul_i32", s(soff), s(sst), 32 * 112)
    k.I("s_lshl_b32", s(st0), s(sct), 3)
    k.I("s_add_u32", s(soff), s(soff), s(st0))
    k.I("s_add_u32", s(soff), s(soff), hex(EX_OFF))
    k.I("s_mov_b32", "exec_hi", 0)
    for t in range(2):
        k.I("buffer_store_dwordx2", vr(oth + 2 * t, 2), v(ve), sr(sWS, 4), s(soff), mods=f"offen offset:{t * 32 * 112} sc0 sc1")
    k.I("s_mov_b64", "exec", -1)
    k.L(pub)
    stp.stamp(3)
    v16 = k.valloc()
    k.I("v_lshlrev_b32", v(v16), 4, v(lane))
    P = [k.valloc(8, 4) for _ in range(2)]
    sft = k.salloc()
    k.I("s_lshl_b32", s(sft), s(sct), 1)
    k.I("s_add_u32", s(sft), s(sft), s(sch))
    for t in range(2):
        A = acc[1][t]
        gelu_tile(A, 1, t)
        for j in range(8): k.I("v_cvt_pk_bf16_f32", v(P[t] + j), v(A + 2 * j), v(A + 2 * j + 1))
        k.I("s_add_u32", s(st0), s(sst), t)
        k.I("s_mul_i32", s(soff), s(st0), 56 * 1024)
        k.I("s_lshl_b32", s(st0), s(sft), 11)
        k.I("s_add_u32", s(soff), s(soff), s(st0))
        k.I("s_add_u32", s(soff), s(soff), hex(Z1_OFF))
        k.I("buffer_store_dwordx4", vr(P[t], 4), v(v16), sr(sWS, 4), s(soff), mods="offen")
        k.I("buffer_store_dwordx4", vr(P[t] + 4, 4), v(v16), sr(sWS, 4), s(soff), mods="offen offset:1024")
    stp.stamp(4)
    ex = hs
    k.I("v_mul_u32_u24", v(vh), 112, v(l31))
    k.I("v_lshl_add_u32", v(vh), v(hh), 6, v(vh))
    k.I("s_mul_i32", s(soff), s(sst), 32 * 112)
    k.I("s_add_u32", s(soff), s(soff), hex(EX_OFF))
    scount = k.salloc(); sbad = k.salloc(2)
    k.I("s_mov_b32", s(scount), 0)
    poll = k.newlabel("poll"); pdone = k.newlabel("pdone")
    k.L(poll)
    for t in range(2):
        for i in range(4):
            k.I("buffer_load_dwordx4", vr(ex[t] + 4 * i, 4), v(vh), sr(sWS, 4), s(soff), mods=f"offen offset:{t * 32 * 112 + 16 * i} sc0 sc1")
    k.I("s_waitcnt", "vmcnt(0)")
    k.I("v_cmp_eq_u32", "vcc", 0, v(hh))
    for t in range(2):
        for i in range(12, 16): k.I("v_cndmask_b32", v(ex[t] + i), 0, v(ex[t] + i), "vcc")
    k.I("v_max_u32", v(t0), v(ex[0] + 1), v(ex[0] + 3))
    for t in range(2):
        for i in range(8):
            if t == 0 and i < 2: continue
            k.I("v_max_u32", v(t0), v(t0), v(ex[t] + 2 * i + 1))
    k.I("v_cmp_eq_u32", "vcc", -1, v(t0))
    k.I("s_add_u32", s(scount), s(scount), 1)
    k.I("s_cmp_eq_u64", "vcc", 0)
    k.I("s_cbranch_scc1", pdone)
    k.I("s_cmp_lt_u32", s(scount), 0x40000)
    k.I("s_cbranch_scc0", pdone)
    k.I("s_sleep", 1)
    k.I("s_branch", poll)
    k.L(pdone)
    sc_ = [k.valloc(2) for _ in range(2)]; zm = [k.valloc(2) for _ in range(2)]
    for t in range(2):
        H = ex[t]
        for i in range(4): k.I("v_pk_add_f32", vr(H + 2 * i, 2), vr(H + 2 * i, 2), vr(H + 8 + 2 * i, 2))
        for i in range(2): k.I("v_pk_add_f32", vr(H + 2 * i, 2), vr(H + 2 * i, 2), vr(H + 4 + 2 * i, 2))
        k.I("v_pk_add_f32", vr(H, 2), vr(H, 2), vr(H + 2, 2))
        for e in range(2):
            k.I("v_mov_b32", v(H + 2), v(H + e))
            k.I("v_permlane32_swap_b32", v(H + e), v(H + 2))
            k.I("v_add_f32", v(H + e), v(H + e), v(H + 2))
        k.I("v_mul_f32", v(zm[t]), hex(f32(-1.0 / 896)), v(H))
        k.I("v_mul_f32", v(H + 1), hex(f32(1.0 / 896)), v(H + 1))
        k.I("v_fma_f32", v(H + 1), f"-{v(zm[t])}", v(zm[t]), v(H + 1))
        k.I("v_max_f32", v(H + 1), 0, v(H + 1))
        k.I("v_add_f32", v(H + 1), hex(f32(1e-5)), v(H + 1))
        k.I("v_rsq_f32", v(sc_[t]), v(H + 1))
        k.I("v_mul_f32", v(zm[t]), v(zm[t]), v(sc_[t]))
    TW = 0
    vt = k.valloc(); vtr = k.valloc()
    k.I("v_lshlrev_b32", v(vt), 6, v(l31))
    k.I("v_lshl_add_u32", v(vt), v(hh), 3, v(vt))
    k.I("s_lshl_b32", s(st0), s(swave), 12)
    k.I("v_add_u32", v(vt), s(st0), v(vt))
    for t in range(2):
        A = acc[0][t]
        for j in range(8):
            k.I("v_pk_fma_f32", vr(A + 2 * j, 2), vr(A + 2 * j, 2), vr(sc_[t], 2), vr(zm[t], 2), mods="op_sel_hi:[1,0,0]")
        for j in range(8): k.I("v_cvt_pk_bf16_f32", v(P[t] + j), v(A + 2 * j), v(A + 2 * j + 1))
        for q in range(4):
            k.I("ds_write_b64", v(vt), vr(P[t] + 2 * q, 2), mods=f"offset:{t * 2048 + 16 * q}")
    k.I("v_bfe_u32", v(t0), v(lane), 2, 2)
    k.I("v_lshl_add_u32", v(t0), v(hh), 3, v(t0))
    k.I("v_lshlrev_b32", v(vtr), 6, v(t0))
    k.I("v_bfe_u32", v(t0), v(lane), 4, 1)
    k.I("v_lshl_add_u32", v(vtr), v(t0), 5, v(vtr))
    k.I("v_and_b32", v(t0), 3, v(lane))
    k.I("v_lshl_add_u32", v(vtr), v(t0), 3, v(vtr))
    k.I("s_lshl_b32", s(st0), s(swave), 12)
    k.I("v_add_u32", v(vtr), s(st0), v(vtr))
    k.I("s_waitcnt", "lgkmcnt(0)")
    Z = cw[0]
    for ks in range(4):
        for beta in range(2):
            k.I("ds_read_b64_tr_b16", vr(Z + 4 * ks + 2 * beta, 2), v(vtr), mods=f"offset:{(16 * ks + 4 * beta) * 64}")
    k.I("s_mul_i32", s(soff), s(sft), ZS)
    k.I("s_lshr_b32", s(st0), s(sst), 5)
    k.I("s_mul_i32", s(st0), s(st0), ZK)
    k.I("s_add_u32", s(soff), s(soff), s(st0))
    k.I("s_and_b32", s(st0), s(sst), 31)
    k.I("s_lshl_b32", s(st0), s(st0), 11)
    k.I("s_add_u32", s(soff), s(soff), s(st0))
    k.I("s_add_u32", s(soff), s(soff), hex(Z2_OFF))
    for ks in range(4):
        k.I("s_waitcnt", f"lgkmcnt({6 - 2 * ks})")
        k.I("buffer_store_dwordx4", vr(Z + 4 * ks, 4), v(v16), sr(sWS, 4), s(soff), mods=f"offen offset:{ks * 1024}")
    stp.stamp(5)
    k.I("s_endpgm")
    k.L(pfrole)
    pp = k.salloc(2); sP = k.salloc(4); vT = k.valloc(); vd = k.valloc(4)
    k.I("s_load_dwordx2", sr(pp, 2), "s[0:1]", 40)
    k.I("s_sub_u32", s(st0), s(sidx), 28)
    k.I("s_lshl_b32", s(st0), s(st0), 9)
    k.I("v_add_u32", v(vT), s(st0), "v0")
    k.I("s_lshr_b32", s(st0), s(sj), 1)
    k.I("s_lshl_b32", s(st0), s(st0), 21)
    k.I("s_and_b32", s(st1), s(sj), 1)
    k.I("s_lshl_b32", s(st1), s(st1), 11)
    k.I("s_add_u32", s(st0), s(st0), s(st1))
    k.I("s_waitcnt", "lgkmcnt(0)")
    srd(k, sP, pp, 2048 * 4096)
    for i in range(4):
        k.I("v_add_u32", v(t0), 2048 * i, v(vT))
        k.I("v_lshrrev_b32", v(t1), 4, v(t0))
        k.I("v_lshlrev_b32", v(t1), 12, v(t1))
        k.I("v_and_b32", v(t2), 15, v(t0))
        k.I("v_lshl_add_u32", v(t1), v(t2), 7, v(t1))
        k.I("buffer_load_dword", v(vd + i), v(t1), sr(sP, 4), s(st0), mods="offen")
    k.L(R["done"])
    k.I("s_endpgm")
    k.lds = lds; k.threads = 512; k.grid = 256
    return k


def gen_k4b(Stamper):
    k = Kernel("k4_win_kernel")
    HREG = 0; WRING = 114688; WSL = 8192; NS = 5
    CWT = WRING + NS * WSL
    lds = CWT + 512
    R = common_start(k, 256)
    swave, st0, st1, soff, lane, t0, t1, t2 = (R[x] for x in ("swave", "st0", "st1", "soff", "lane", "t0", "t1", "t2"))
    pWin = k.salloc(2); pWS = k.salloc(2)
    k.I("s_load_dwordx2", sr(pWin, 2), "s[0:1]", 32)
    k.I("s_load_dwordx2", sr(pWS, 2), "s[0:1]", 80)
    sWS = k.salloc(4); sWin = k.salloc(4)
    sj = k.salloc(); sidx = k.salloc(); srb = k.salloc(); sct = k.salloc(); sw3 = k.salloc()
    k.I("s_and_b32", s(sj), "s2", 7)
    k.I("s_lshr_b32", s(sidx), "s2", 3)
    k.I("s_and_b32", s(sw3), s(swave), 3)
    pfrole = k.newlabel("pfrole")
    k.I("s_cmp_ge_u32", s(sidx), 28)
    k.I("s_cbranch_scc1", pfrole)
    k.I("s_mul_i32", s(st0), s(sidx), 37)
    k.I("s_lshr_b32", s(st0), s(st0), 8)
    k.I("s_mul_i32", s(st1), s(st0), 7)
    k.I("s_sub_u32", s(sct), s(sidx), s(st1))
    k.I("s_and_b32", s(st1), s(sj), 1)
    k.I("s_mul_i32", s(st1), s(st1), 7)
    k.I("s_add_u32", s(sct), s(sct), s(st1))
    k.I("s_lshr_b32", s(srb), s(sj), 1)
    k.I("s_lshl_b32", s(srb), s(srb), 2)
    k.I("s_add_u32", s(srb), s(srb), s(st0))
    stp = Stamper(k, 3, sWS, swave)
    sst = k.salloc()
    k.I("s_lshl_b32", s(sst), s(srb), 2)
    k.I("s_add_u32", s(sst), s(sst), s(sw3))
    k.I("s_waitcnt", "lgkmcnt(0)")
    srd(k, sWS, pWS, WS_SIZE)
    comp = k.newlabel("compute")
    k.I("s_cmp_lt_u32", s(swave), 4)
    k.I("s_cbranch_scc1", comp)
    vsave = k.vnext
    srd(k, sWin, pWin, 448 * 3584)
    v16 = k.valloc(); vWo = k.valloc()
    k.I("v_lshlrev_b32", v(v16), 4, v(lane))
    k.I("v_lshrrev_b32", v(t0), 3, v(lane))
    k.I("v_mul_u32_u24", v(t0), 3584, v(t0))
    k.I("v_bfe_u32", v(t1), v(lane), 4, 1)
    k.I("v_lshlrev_b32", v(t1), 2, v(t1))
    k.I("v_and_b32", v(t2), 7, v(lane))
    k.I("v_xor_b32", v(t1), v(t1), v(t2))
    k.I("v_lshl_add_u32", v(vWo), v(t1), 4, v(t0))
    sHb = k.salloc(); sWb = k.salloc(); smH = k.salloc(); smW = k.salloc()
    k.I("s_mul_i32", s(sHb), s(sst), 28 * 1024)
    k.I("s_add_u32", s(sHb), s(sHb), hex(H_OFF))
    k.I("s_mul_i32", s(smH), s(sw3), 28 * 1024)
    k.I("s_mul_i32", s(sWb), s(sw3), 16 * 3584)
    k.I("s_lshl_b32", s(st1), s(sct), 7)
    k.I("s_add_u32", s(sWb), s(sWb), s(st1))
    k.I("s_lshl_b32", s(smW), s(sw3), 11)
    k.I("s_add_u32", s(smW), s(smW), WRING)
    srot = k.salloc(); scp = k.salloc(); sa1 = k.salloc(); sa2 = k.salloc()
    k.I("s_lshl_b32", s(st0), s(srb), 1)
    k.I("s_add_u32", s(st0), s(st0), s(sct))
    k.I("s_mul_i32", s(st1), s(st0), 37)
    k.I("s_lshr_b32", s(st1), s(st1), 8)
    k.I("s_mul_i32", s(st1), s(st1), 7)
    k.I("s_sub_u32", s(srot), s(st0), s(st1))
    if not rot_on(4): k.I("s_mov_b32", s(srot), 0)
    def issue(c):
        cc = c % 7
        rot_index(k, scp, srot, cc, 7)
        if c < 7:
            k.I("s_lshl_b32", s(sa1), s(scp), 12)
            k.I("s_add_u32", s(sa1), s(sa1), s(sHb))
            for i in range(4):
                k.I("s_add_u32", s(soff), s(sa1), hex(i * 1024))
                k.I("s_add_u32", "m0", s(smH), hex(HREG + (4 * c + i) * 1024))
                k.vm(("S", c), "buffer_load_dwordx4", v(v16), sr(sWS, 4), s(soff), mods="offen lds")
        col = 1792 if c < 7 else 0
        k.I("s_mul_i32", s(sa2), s(scp), 64 * 3584)
        k.I("s_add_u32", s(sa2), s(sa2), s(sWb))
        for i in range(2):
            k.I("s_add_u32", s(soff), s(sa2), hex(8 * i * 3584 + col))
            k.I("s_add_u32", "m0", s(smW), hex((c % NS) * WSL + i * 1024))
            k.vm(("S", c), "buffer_load_dwordx4", v(vWo), sr(sWin, 4), s(soff), mods="offen lds")
    nocw = k.newlabel("nocw")
    issue(0)
    k.I("s_cmp_ge_u32", s(sw3), 2)
    k.I("s_cbranch_scc1", nocw)
    k.I("v_lshlrev_b32", v(t0), 2, v(lane))
    k.I("s_lshl_b32", s(st0), s(sct), 8)
    k.I("s_xor_b32", s(st1), s(sw3), 1)
    k.I("s_mul_i32", s(st1), s(st1), 896 * 4)
    k.I("s_add_u32", s(st0), s(st0), s(st1))
    k.I("s_add_u32", s(soff), s(st0), hex(CW_OFF))
    k.I("s_lshl_b32", s(st1), s(sw3), 8)
    k.I("s_add_u32", "m0", s(st1), CWT)
    k.I("buffer_load_dword", v(t0), sr(sWS, 4), s(soff), mods="offen lds")
    k.L(nocw)
    k.vmq.append(("S", 1))
    issue(1); issue(2)
    NST = 14
    for c in range(NST):
        if c == 0:
            k.I("s_waitcnt", "vmcnt(12)")
            k.vmq = k.vmq[6:]
        else:
            k.wait_vm(("S", c))
        k.I("s_barrier")
        if c == 0: issue(3); issue(4)
        elif c >= 2 and c + 3 < NST: issue(c + 3)
    k.I("s_endpgm")
    k.L(comp)
    k.vnext = vsave; k.vmq = []; k.lgq = []
    l31 = k.valloc(); hh = k.valloc()
    k.I("v_and_b32", v(l31), 31, v(lane))
    k.I("v_lshrrev_b32", v(hh), 5, v(lane))
    hs = k.valloc(16, 4); vh = k.valloc()
    k.I("v_mul_u32_u24", v(vh), 112, v(l31))
    k.I("v_lshl_add_u32", v(vh), v(hh), 6, v(vh))
    k.I("s_mul_i32", s(soff), s(sst), 32 * 112)
    sEX = k.salloc()
    k.I("s_add_u32", s(sEX), s(soff), hex(EX_OFF))
    k.I("s_add_u32", s(soff), s(soff), hex(HS_OFF))
    for i in range(4):
        k.vm("hs", "buffer_load_dwordx4", vr(hs + 4 * i, 4), v(vh), sr(sWS, 4), s(soff), mods=f"offen offset:{16 * i}")
    code_prefetch(k, "k5_sp_kernel", sidx, st0)
    stp.stamp(0)
    aH = k.valloc(); v16 = k.valloc(); vW = [k.valloc(), k.valloc()]
    k.I("v_lshlrev_b32", v(v16), 4, v(lane))
    k.I("s_mul_i32", s(st0), s(swave), 28 * 1024)
    k.I("v_add_u32", v(aH), s(st0), v(v16))
    k.I("v_bfe_u32", v(t0), v(lane), 2, 2)
    k.I("v_lshl_add_u32", v(t0), v(hh), 2, v(t0))
    k.I("v_lshlrev_b32", v(t0), 7, v(t0))
    k.I("v_add_u32", v(t0), WRING, v(t0))
    k.I("v_bfe_u32", v(t1), v(lane), 4, 1)
    k.I("v_lshlrev_b32", v(t1), 1, v(t1))
    k.I("v_bfe_u32", v(t2), v(lane), 1, 1)
    k.I("v_add_u32", v(t1), v(t1), v(t2))
    k.I("v_bfe_u32", v(t2), v(lane), 3, 1)
    k.I("v_lshlrev_b32", v(t2), 2, v(t2))
    for n2 in range(2):
        k.I("v_add_u32", v(vW[n2]), 4 * n2, v(t1))
        k.I("v_xor_b32", v(vW[n2]), v(vW[n2]), v(t2))
        k.I("v_lshl_add_u32", v(vW[n2]), v(vW[n2]), 4, v(t0))
    k.I("v_and_b32", v(t1), 1, v(lane))
    for n2 in range(2): k.I("v_lshl_add_u32", v(vW[n2]), v(t1), 3, v(vW[n2]))
    rr = k.valloc(2); nm = k.valloc(2); c0r = k.valloc(2); c1r = k.valloc(2)
    k.wait_vm("hs")
    k.I("v_cmp_eq_u32", "vcc", 0, v(hh))
    H = hs
    for i in range(12, 16): k.I("v_cndmask_b32", v(H + i), 0, v(H + i), "vcc")
    for i in range(4): k.I("v_pk_add_f32", vr(H + 2 * i, 2), vr(H + 2 * i, 2), vr(H + 8 + 2 * i, 2))
    for i in range(2): k.I("v_pk_add_f32", vr(H + 2 * i, 2), vr(H + 2 * i, 2), vr(H + 4 + 2 * i, 2))
    k.I("v_pk_add_f32", vr(H, 2), vr(H, 2), vr(H + 2, 2))
    for e in range(2):
        k.I("v_mov_b32", v(H + 2), v(H + e))
        k.I("v_permlane32_swap_b32", v(H + e), v(H + 2))
        k.I("v_add_f32", v(H + e), v(H + e), v(H + 2))
    k.I("v_mul_f32", v(nm), hex(f32(-1.0 / 448)), v(H))
    k.I("v_mul_f32", v(H + 1), hex(f32(1.0 / 448)), v(H + 1))
    k.I("v_fma_f32", v(H + 1), f"-{v(nm)}", v(nm), v(H + 1))
    k.I("v_max_f32", v(H + 1), 0, v(H + 1))
    k.I("v_add_f32", v(H + 1), hex(f32(1e-5)), v(H + 1))
    k.I("v_rsq_f32", v(rr), v(H + 1))
    k.I("v_mul_f32", v(c0r), hex(f32(GELU_C0)), v(rr))
    k.I("v_mul_f32", v(c1r), v(rr), v(rr))
    k.I("v_mul_f32", v(c1r), v(c1r), v(rr))
    k.I("v_mul_f32", v(c1r), hex(f32(GELU_C1)), v(c1r))
    norh = k.newlabel("norh")
    k.I("s_cmp_lg_u32", s(sct), 0)
    k.I("s_cbranch_scc1", norh)
    k.I("v_lshlrev_b32", v(t0), 2, v(l31))
    k.I("s_lshl_b32", s(st0), s(sst), 7)
    k.I("s_add_u32", s(st0), s(st0), hex(RH_OFF))
    k.I("buffer_store_dword", v(rr), v(t0), sr(sWS, 4), s(st0), mods="offen")
    k.L(norh)
    acc = [[k.valloc(16, 4) for _ in range(2)] for _ in range(2)]
    cwr = hs
    tp = [k.valloc(2) for _ in range(4)]
    NB = 3
    hf = [k.valloc(4) for _ in range(NB)]
    wf = [[k.valloc(4) for _ in range(2)] for _ in range(NB)]
    def rl(g):
        ks = g % 28; c = g // 4; j = g % 4
        b = g % NB
        out = [lambda: k.lg(("f", g), "ds_read_b128", vr(hf[b], 4), v(aH), mods=f"offset:{ks * 1024}")]
        for n2 in range(2):
            for beta in range(2):
                o = (c % NS) * WSL + (16 * j + 8 * beta) * 128
                out.append(lambda o=o, n2=n2, beta=beta: k.lg(("f", g), "ds_read_b64_tr_b16", vr(wf[b][n2] + 2 * beta, 2), v(vW[n2]), mods=f"offset:{o}"))
        return out
    vcw = k.valloc()
    k.I("v_lshlrev_b32", v(vcw), 4, v(hh))
    k.I("v_add_u32", v(vcw), CWT, v(vcw))
    def gelu_tile(A, z, n2):
        for q in range(4):
            k.lg("cw", "ds_read_b128", vr(cwr + 4 * q, 4), v(vcw), mods=f"offset:{z * 256 + n2 * 128 + 32 * q}")
        k.wait_lg("cw")
        for j in range(8):
            k.I("v_pk_fma_f32", vr(A + 2 * j, 2), vr(cwr + 2 * j, 2), vr(nm, 2), vr(A + 2 * j, 2), mods="op_sel_hi:[1,0,1]")
        for j0 in range(0, 8, 4):
            for j in range(j0, j0 + 4): k.I("v_pk_mul_f32", vr(tp[j - j0], 2), vr(A + 2 * j, 2), vr(A + 2 * j, 2))
            for j in range(j0, j0 + 4): k.I("v_pk_fma_f32", vr(tp[j - j0], 2), vr(tp[j - j0], 2), vr(c1r, 2), vr(c0r, 2), mods="op_sel_hi:[1,0,0]")
            for j in range(j0, j0 + 4): k.I("v_pk_mul_f32", vr(tp[j - j0], 2), vr(tp[j - j0], 2), vr(A + 2 * j, 2))
            for j in range(j0, j0 + 4):
                k.I("v_exp_f32", v(tp[j - j0]), v(tp[j - j0])); k.I("v_exp_f32", v(tp[j - j0] + 1), v(tp[j - j0] + 1))
            for j in range(j0, j0 + 4): k.I("v_pk_add_f32", vr(tp[j - j0], 2), vr(tp[j - j0], 2), "1.0", mods="op_sel_hi:[1,0]")
            for j in range(j0, j0 + 4):
                k.I("v_rcp_f32", v(tp[j - j0]), v(tp[j - j0])); k.I("v_rcp_f32", v(tp[j - j0] + 1), v(tp[j - j0] + 1))
            for j in range(j0, j0 + 4): k.I("v_pk_mul_f32", vr(A + 2 * j, 2), vr(A + 2 * j, 2), vr(tp[j - j0], 2))
    def mainloop(z):
        for g in range(28 * z, 28 * z + 28):
            ks = g % 28; j = g % 4; c = g // 4
            b = g % NB
            k.wait_lg(("f", g))
            mf = [lambda n2=n2: k.I("v_mfma_f32_32x32x16_bf16", vr(acc[z][n2], 16), vr(wf[b][n2], 4), vr(hf[b], 4), 0 if ks == 0 else vr(acc[z][n2], 16)) for n2 in range(2)]
            nxt = g + 2
            fl = rl(nxt) if nxt < 28 * z + 28 else []
            if j == 2 and c + 1 < NST: k.I("s_barrier")
            interleave(k, mf, fl)
    k.I("s_barrier")
    stp.stamp(1)
    for f in rl(0) + rl(1): f()
    mainloop(0)
    for f in rl(28) + rl(29): f()
    stp.stamp(2)
    accs = k.valloc(2); accq = k.valloc(2)
    for n2 in range(2):
        A = acc[0][n2]
        gelu_tile(A, 0, n2)
        for j in range(8):
            k.I("v_pk_mul_f32", vr(A + 2 * j, 2), vr(A + 2 * j, 2), vr(rr, 2), mods="op_sel_hi:[1,0]")
        for j in range(8):
            if n2 == 0 and j == 0:
                k.I("v_mov_b32", v(accs), v(A)); k.I("v_mov_b32", v(accs + 1), v(A + 1))
                k.I("v_pk_mul_f32", vr(accq, 2), vr(A, 2), vr(A, 2))
            else:
                k.I("v_pk_add_f32", vr(accs, 2), vr(accs, 2), vr(A + 2 * j, 2))
                k.I("v_pk_fma_f32", vr(accq, 2), vr(A + 2 * j, 2), vr(A + 2 * j, 2), vr(accq, 2))
    k.I("v_add_f32", v(accs), v(accs), v(accs + 1))
    k.I("v_add_f32", v(accs + 1), v(accq), v(accq + 1))
    for e in range(2):
        k.I("v_mov_b32", v(accq), v(accs + e))
        k.I("v_permlane32_swap_b32", v(accs + e), v(accq))
        k.I("v_add_f32", v(accs + e), v(accs + e), v(accq))
    k.I("v_mov_b32", v(t1), "0x7fc00000")
    k.I("v_cmp_eq_u32", "vcc", -1, v(accs + 1))
    k.I("v_cndmask_b32", v(accs + 1), v(accs + 1), v(t1), "vcc")
    ve = k.valloc()
    k.I("v_mul_u32_u24", v(ve), 112, v(l31))
    k.I("s_lshl_b32", s(st0), s(sct), 3)
    k.I("s_add_u32", s(soff), s(sEX), s(st0))
    k.I("s_mov_b32", "exec_hi", 0)
    k.I("buffer_store_dwordx2", vr(accs, 2), v(ve), sr(sWS, 4), s(soff), mods="offen sc0 sc1")
    k.I("s_mov_b64", "exec", -1)
    stp.stamp(3)
    mainloop(1)
    ex = k.valloc(16, 4)
    for i in range(4):
        k.I("buffer_load_dwordx4", vr(ex + 4 * i, 4), v(vh), sr(sWS, 4), s(sEX), mods=f"offen offset:{16 * i} sc0 sc1")
    P = [k.valloc(8, 4) for _ in range(2)]
    sft = k.salloc()
    k.I("s_lshl_b32", s(sft), s(sct), 1)
    for n2 in range(2):
        A = acc[1][n2]
        gelu_tile(A, 1, n2)
        for j in range(8): k.I("v_cvt_pk_bf16_f32", v(P[n2] + j), v(A + 2 * j), v(A + 2 * j + 1))
        k.I("s_mul_i32", s(soff), s(sst), 56 * 1024)
        k.I("s_add_u32", s(st0), s(sft), n2)
        k.I("s_lshl_b32", s(st0), s(st0), 11)
        k.I("s_add_u32", s(soff), s(soff), s(st0))
        k.I("s_add_u32", s(soff), s(soff), hex(Z1_OFF))
        k.I("buffer_store_dwordx4", vr(P[n2], 4), v(v16), sr(sWS, 4), s(soff), mods="offen")
        k.I("buffer_store_dwordx4", vr(P[n2] + 4, 4), v(v16), sr(sWS, 4), s(soff), mods="offen offset:1024")
    stp.stamp(4)
    scount = k.salloc()
    k.I("s_mov_b32", s(scount), 0)
    poll = k.newlabel("poll"); pdone = k.newlabel("pdone"); pchk = k.newlabel("pchk")
    k.I("s_waitcnt", "vmcnt(4)")
    k.I("s_branch", pchk)
    k.L(poll)
    for i in range(4):
        k.I("buffer_load_dwordx4", vr(ex + 4 * i, 4), v(vh), sr(sWS, 4), s(sEX), mods=f"offen offset:{16 * i} sc0 sc1")
    k.I("s_waitcnt", "vmcnt(0)")
    k.L(pchk)
    k.I("v_cmp_eq_u32", "vcc", 0, v(hh))
    for i in range(12, 16): k.I("v_cndmask_b32", v(ex + i), 0, v(ex + i), "vcc")
    k.I("v_max_u32", v(t0), v(ex + 1), v(ex + 3))
    for i in range(2, 8): k.I("v_max_u32", v(t0), v(t0), v(ex + 2 * i + 1))
    k.I("v_cmp_eq_u32", "vcc", -1, v(t0))
    k.I("s_add_u32", s(scount), s(scount), 1)
    k.I("s_cmp_eq_u64", "vcc", 0)
    k.I("s_cbranch_scc1", pdone)
    k.I("s_cmp_lt_u32", s(scount), 0x40000)
    k.I("s_cbranch_scc0", pdone)
    k.I("s_sleep", 1)
    k.I("s_branch", poll)
    k.L(pdone)
    k.vmq = []
    sc_ = k.valloc(2); zm = k.valloc(2)
    H = ex
    for i in range(4): k.I("v_pk_add_f32", vr(H + 2 * i, 2), vr(H + 2 * i, 2), vr(H + 8 + 2 * i, 2))
    for i in range(2): k.I("v_pk_add_f32", vr(H + 2 * i, 2), vr(H + 2 * i, 2), vr(H + 4 + 2 * i, 2))
    k.I("v_pk_add_f32", vr(H, 2), vr(H, 2), vr(H + 2, 2))
    for e in range(2):
        k.I("v_mov_b32", v(H + 2), v(H + e))
        k.I("v_permlane32_swap_b32", v(H + e), v(H + 2))
        k.I("v_add_f32", v(H + e), v(H + e), v(H + 2))
    k.I("v_mul_f32", v(zm), hex(f32(-1.0 / 896)), v(H))
    k.I("v_mul_f32", v(H + 1), hex(f32(1.0 / 896)), v(H + 1))
    k.I("v_fma_f32", v(H + 1), f"-{v(zm)}", v(zm), v(H + 1))
    k.I("v_max_f32", v(H + 1), 0, v(H + 1))
    k.I("v_add_f32", v(H + 1), hex(f32(1e-5)), v(H + 1))
    k.I("v_rsq_f32", v(sc_), v(H + 1))
    k.I("v_mul_f32", v(zm), v(zm), v(sc_))
    vt = k.valloc(); vtr = k.valloc()
    k.I("s_mul_i32", s(st0), s(swave), 28 * 1024)
    k.I("v_mul_u32_u24", v(vt), 136, v(l31))
    k.I("v_lshl_add_u32", v(vt), v(hh), 3, v(vt))
    k.I("v_add_u32", v(vt), s(st0), v(vt))
    for n2 in range(2):
        A = acc[0][n2]
        for j in range(8):
            k.I("v_pk_fma_f32", vr(A + 2 * j, 2), vr(A + 2 * j, 2), vr(sc_, 2), vr(zm, 2), mods="op_sel_hi:[1,0,0]")
        for j in range(8): k.I("v_cvt_pk_bf16_f32", v(P[n2] + j), v(A + 2 * j), v(A + 2 * j + 1))
        for q in range(4):
            k.I("ds_write_b64", v(vt), vr(P[n2] + 2 * q, 2), mods=f"offset:{64 * n2 + 16 * q}")
    k.I("v_bfe_u32", v(t0), v(lane), 2, 2)
    k.I("v_lshl_add_u32", v(t0), v(hh), 3, v(t0))
    k.I("v_mul_u32_u24", v(vtr), 136, v(t0))
    k.I("v_bfe_u32", v(t0), v(lane), 4, 1)
    k.I("v_lshl_add_u32", v(vtr), v(t0), 5, v(vtr))
    k.I("v_and_b32", v(t0), 3, v(lane))
    k.I("v_lshl_add_u32", v(vtr), v(t0), 3, v(vtr))
    k.I("v_add_u32", v(vtr), s(st0), v(vtr))
    k.I("s_waitcnt", "lgkmcnt(0)")
    Z = acc[1][0]
    for n2 in range(2):
        for ks in range(2):
            for beta in range(2):
                k.I("ds_read_b64_tr_b16", vr(Z + 8 * n2 + 4 * ks + 2 * beta, 2), v(vtr), mods=f"offset:{(16 * ks + 4 * beta) * 136 + 64 * n2}")
    k.I("s_lshr_b32", s(st0), s(sst), 5)
    k.I("s_mul_i32", s(st0), s(st0), ZK)
    k.I("s_and_b32", s(st1), s(sst), 31)
    k.I("s_lshl_b32", s(st1), s(st1), 11)
    k.I("s_add_u32", s(st0), s(st0), s(st1))
    k.I("s_add_u32", s(st0), s(st0), hex(Z2_OFF))
    for n2 in range(2):
        k.I("s_add_u32", s(st1), s(sft), n2)
        k.I("s_mul_i32", s(soff), s(st1), ZS)
        k.I("s_add_u32", s(soff), s(soff), s(st0))
        for ks in range(2):
            k.I("s_waitcnt", f"lgkmcnt({6 - 4 * n2 - 2 * ks})")
            k.I("buffer_store_dwordx4", vr(Z + 8 * n2 + 4 * ks, 4), v(v16), sr(sWS, 4), s(soff), mods=f"offen offset:{ks * 1024}")
    stp.stamp(5)
    k.I("s_endpgm")
    k.L(pfrole)
    if os.environ.get('K4PF', 'sparse') == 'dense':
        pp = k.salloc(2); sP = k.salloc(4); vT = k.valloc(); vd = k.valloc(32, 4)
        k.I("s_load_dwordx2", sr(pp, 2), "s[0:1]", 40)
        k.I("s_sub_u32", s(st0), s(sidx), 28)
        k.I("s_lshl_b32", s(st0), s(st0), 3)
        k.I("s_add_u32", s(st0), s(st0), s(swave))
        k.I("s_lshl_b32", s(st0), s(st0), 16)
        k.I("s_lshr_b32", s(st1), s(sj), 1)
        k.I("s_lshl_b32", s(st1), s(st1), 21)
        k.I("s_add_u32", s(st0), s(st0), s(st1))
        k.I("s_and_b32", s(st1), s(sj), 1)
        k.I("s_lshl_b32", s(st1), s(st1), 11)
        k.I("s_add_u32", s(st0), s(st0), s(st1))
        k.I("v_lshlrev_b32", v(vT), 4, v(lane))
        k.I("s_waitcnt", "lgkmcnt(0)")
        srd(k, sP, pp, 2048 * 4096)
        for i in range(16):
            k.I("s_add_u32", s(soff), s(st0), hex(i * 4096))
            for hf_ in range(2):
                k.I("buffer_load_dwordx4", vr(vd + 4 * ((2 * i + hf_) % 8), 4), v(vT), sr(sP, 4), s(soff), mods=f"offen offset:{hf_ * 1024}")
    else:
        pp = k.salloc(2); sP = k.salloc(4); vT = k.valloc(); vd = k.valloc(4)
        k.I("s_load_dwordx2", sr(pp, 2), "s[0:1]", 40)
        k.I("s_sub_u32", s(st0), s(sidx), 28)
        k.I("s_lshl_b32", s(st0), s(st0), 9)
        k.I("v_add_u32", v(vT), s(st0), "v0")
        k.I("s_lshr_b32", s(st0), s(sj), 1)
        k.I("s_lshl_b32", s(st0), s(st0), 21)
        k.I("s_and_b32", s(st1), s(sj), 1)
        k.I("s_lshl_b32", s(st1), s(st1), 11)
        k.I("s_add_u32", s(st0), s(st0), s(st1))
        k.I("s_waitcnt", "lgkmcnt(0)")
        srd(k, sP, pp, 2048 * 4096)
        for i in range(4):
            k.I("v_add_u32", v(t0), 2048 * i, v(vT))
            k.I("v_lshrrev_b32", v(t1), 4, v(t0))
            k.I("v_lshlrev_b32", v(t1), 12, v(t1))
            k.I("v_and_b32", v(t2), 15, v(t0))
            k.I("v_lshl_add_u32", v(t1), v(t2), 7, v(t1))
            k.I("buffer_load_dword", v(vd + i), v(t1), sr(sP, 4), s(st0), mods="offen")
    k.L(R["done"])
    k.I("s_endpgm")
    k.lds = lds; k.threads = 512; k.grid = 256
    return k

def gen_k5(Stamper):
    k = Kernel("k5_sp_kernel")
    NS = 4; SLOT = 32768
    Z1REG = NS * SLOT
    lds = Z1REG + 32768
    R = common_start(k, 256)
    swave, st0, st1, soff, lane, t0, t1, t2 = (R[x] for x in ("swave", "st0", "st1", "soff", "lane", "t0", "t1", "t2"))
    pSp = k.salloc(2); pB = k.salloc(2); pWS = k.salloc(2)
    k.I("s_load_dwordx2", sr(pSp, 2), "s[0:1]", 40)
    k.I("s_load_dwordx2", sr(pB, 2), "s[0:1]", 48)
    k.I("s_load_dwordx2", sr(pWS, 2), "s[0:1]", 80)
    sWS = k.salloc(4); sSp = k.salloc(4); sB = k.salloc(4)
    sj = k.salloc(); sidx = k.salloc(); stt = k.salloc(); sft = k.salloc(); skap = k.salloc(); sw3 = k.salloc()
    if os.environ.get("K5MAP") == "linear":
        k.I("s_mul_i32", s(sj), "s2", 2341)
        k.I("s_lshr_b32", s(sj), s(sj), 16)
        k.I("s_mul_i32", s(sidx), s(sj), 28)
        k.I("s_sub_u32", s(sidx), "s2", s(sidx))
    else:
        k.I("s_and_b32", s(sj), "s2", 7)
        k.I("s_lshr_b32", s(sidx), "s2", 3)
    pfrole = k.newlabel("pfrole")
    k.I("s_cmp_ge_u32", s(sidx), 28)
    k.I("s_cbranch_scc1", pfrole)
    k.I("s_and_b32", s(sw3), s(swave), 3)
    k.I("s_and_b32", s(skap), s(sj), 1)
    k.I("s_mul_i32", s(st0), s(sidx), 37)
    k.I("s_lshr_b32", s(st0), s(st0), 8)
    k.I("s_mul_i32", s(st1), s(st0), 7)
    k.I("s_sub_u32", s(sft), s(sidx), s(st1))
    k.I("s_lshr_b32", s(stt), s(sj), 1)
    k.I("s_lshl_b32", s(stt), s(stt), 2)
    k.I("s_add_u32", s(stt), s(stt), s(st0))
    stp = Stamper(k, 4, sWS, swave)
    if os.environ.get("TICKWAVE", "0") != "0": stp.tick(0)
    k.I("s_waitcnt", "lgkmcnt(0)")
    srd(k, sWS, pWS, WS_SIZE)
    comp = k.newlabel("compute")
    k.I("s_cmp_lt_u32", s(swave), 4)
    k.I("s_cbranch_scc1", comp)
    vsave = k.vnext
    srd(k, sSp, pSp, 2048 * 4096)
    v16 = k.valloc(); vWo = k.valloc(2)
    k.I("v_lshlrev_b32", v(v16), 4, v(lane))
    k.I("v_lshrrev_b32", v(t0), 3, v(lane))
    k.I("v_lshlrev_b32", v(t0), 12, v(t0))
    k.I("v_lshrrev_b32", v(t1), 4, v(lane))
    k.I("v_and_b32", v(t2), 7, v(lane))
    k.I("v_xor_b32", v(t1), v(t1), v(t2))
    k.I("v_lshl_add_u32", v(vWo), v(t1), 4, v(t0))
    k.I("v_xor_b32", v(t1), 4, v(t1))
    k.I("v_lshl_add_u32", v(vWo + 1), v(t1), 4, v(t0))
    sZb = k.salloc(); sWb = k.salloc(); smZ = k.salloc(); smW = k.salloc()
    k.I("s_lshl_b32", s(st0), s(sft), 2)
    k.I("s_add_u32", s(st0), s(st0), s(sw3))
    k.I("s_mul_i32", s(sZb), s(st0), ZS)
    k.I("s_mul_i32", s(st1), s(skap), ZK)
    k.I("s_add_u32", s(sZb), s(sZb), s(st1))
    k.I("s_add_u32", s(sZb), s(sZb), hex(Z2_OFF))
    k.I("s_lshl_b32", s(smZ), s(sw3), 12)
    k.I("s_lshl_b32", s(st0), s(stt), 7)
    k.I("s_lshl_b32", s(st1), s(sw3), 5)
    k.I("s_add_u32", s(st0), s(st0), s(st1))
    k.I("s_lshl_b32", s(sWb), s(st0), 12)
    k.I("s_lshl_b32", s(st1), s(skap), 11)
    k.I("s_add_u32", s(sWb), s(sWb), s(st1))
    k.I("s_add_u32", s(smW), s(smZ), 16384)
    srot = k.salloc(); scp = k.salloc(); sa1 = k.salloc(); sa2 = k.salloc()
    k.I("s_lshl_b32", s(st0), s(sft), 1)
    k.I("s_mul_i32", s(st1), s(stt), 5)
    k.I("s_add_u32", s(srot), s(st0), s(st1))
    k.I("s_and_b32", s(srot), s(srot), 15)
    if not rot_on(5): k.I("s_mov_b32", s(srot), 0)
    def issue(c):
        sl = (c % NS) * SLOT
        k.I("s_add_u32", s(scp), s(srot), c)
        k.I("s_and_b32", s(scp), s(scp), 15)
        k.I("s_lshl_b32", s(sa1), s(scp), 12)
        k.I("s_add_u32", s(sa1), s(sa1), s(sZb))
        k.I("s_lshl_b32", s(sa2), s(scp), 7)
        k.I("s_add_u32", s(sa2), s(sa2), s(sWb))
        for i in range(4):
            k.I("s_add_u32", s(soff), s(sa1), hex(i * 1024))
            k.I("s_add_u32", "m0", s(smZ), hex(sl + i * 1024))
            k.vm(("S", c), "buffer_load_dwordx4", v(v16), sr(sWS, 4), s(soff), mods="offen lds")
        for i in range(4):
            k.I("s_add_u32", s(soff), s(sa2), hex(i * 8 * 4096))
            k.I("s_add_u32", "m0", s(smW), hex(sl + i * 1024))
            k.vm(("S", c), "buffer_load_dwordx4", v(vWo + (i & 1)), sr(sSp, 4), s(soff), mods="offen lds")
    NST = 16
    sZ1 = k.salloc()
    k.I("s_lshl_b32", s(st0), s(stt), 2)
    k.I("s_add_u32", s(st0), s(st0), s(sw3))
    k.I("s_mul_i32", s(sZ1), s(st0), 56 * 1024)
    k.I("s_lshl_b32", s(st1), s(sft), 13)
    k.I("s_add_u32", s(sZ1), s(sZ1), s(st1))
    k.I("s_add_u32", s(sZ1), s(sZ1), hex(Z1_OFF))
    smZ1 = k.salloc()
    k.I("s_lshl_b32", s(smZ1), s(sw3), 13)
    def issue_z1(i, tag):
        k.I("s_add_u32", s(soff), s(sZ1), hex(i * 1024))
        k.I("s_add_u32", "m0", s(smZ1), hex(Z1REG + i * 1024))
        k.vm(("S", tag), "buffer_load_dwordx4", v(v16), sr(sWS, 4), s(soff), mods="offen lds")
    LT = os.environ.get("TICKWAVE", "0") != "0"
    if LT: stp.tick(1)
    issue(0)
    if LT: stp.tick(2)
    issue(1)
    if LT: stp.tick(3)
    for c in range(NST):
        k.wait_vm(("S", c))
        if LT and c < 3: stp.tick(4 + 2 * c)
        k.I("s_barrier")
        if LT and c < 3: stp.tick(5 + 2 * c)
        if c == 0: issue(2); issue(3)
        elif c + 2 < NST and c >= 2:
            issue(c + 2)
            if 3 <= c < 11: issue_z1(c - 3, c + 2)
    vT = k.valloc()
    k.I("s_lshl_b32", s(st0), s(sidx), 8)
    k.I("v_subrev_u32", v(vT), 256, "v0")
    k.I("v_add_u32", v(vT), s(st0), v(vT))
    k.I("v_lshlrev_b32", v(vT), 7, v(vT))
    if LT: stp.dump_ticks()
    k.I("s_endpgm")
    k.L(comp)
    k.vnext = vsave; k.vmq = []; k.lgq = []
    srd(k, sB, pB, 4096)
    l31 = k.valloc(); hh = k.valloc()
    k.I("v_and_b32", v(l31), 31, v(lane))
    k.I("v_lshrrev_b32", v(hh), 5, v(lane))
    sfh = k.salloc(); sth = k.salloc(); sst = k.salloc(); sf32 = k.salloc()
    k.I("s_and_b32", s(sfh), s(swave), 1)
    k.I("s_lshr_b32", s(sth), s(swave), 1)
    k.I("s_lshl_b32", s(sst), s(stt), 2)
    k.I("s_lshl_b32", s(st0), s(sth), 1)
    k.I("s_add_u32", s(sst), s(sst), s(st0))
    k.I("s_lshl_b32", s(sf32), s(sft), 2)
    k.I("s_lshl_b32", s(st0), s(sfh), 1)
    k.I("s_add_u32", s(sf32), s(sf32), s(st0))
    if os.environ.get("PF3", "0") == "1":
        vT0 = k.valloc(); vd0 = k.valloc(2)
        k.I("s_lshl_b32", s(st0), s(sidx), 8)
        k.I("v_add_u32", v(vT0), s(st0), "v0")
        k.I("s_lshl_b32", s(st1), s(skap), 16)
        k.I("s_add_u32", s(st1), s(st1), hex(Z2_OFF))
        for i in range(2):
            k.I("v_add_u32", v(t0), 7168 * i, v(vT0))
            k.I("v_lshrrev_b32", v(t1), 9, v(t0))
            k.I("v_lshlrev_b32", v(t1), 17, v(t1))
            k.I("v_and_b32", v(t2), 511, v(t0))
            k.I("v_lshl_add_u32", v(t1), v(t2), 7, v(t1))
            k.vm("pf", "buffer_load_dword", v(vd0 + i), v(t1), sr(sWS, 4), s(st1), mods="offen")
    v16 = k.valloc()
    k.I("v_lshlrev_b32", v(v16), 4, v(lane))
    z1 = [[k.valloc(8, 4) for _ in range(2)] for _ in range(2)]
    rr = [k.valloc(2) for _ in range(2)]; bb = [k.valloc(2) for _ in range(2)]
    k.I("v_lshlrev_b32", v(t0), 2, v(l31))
    k.I("v_lshlrev_b32", v(t1), 1, v(l31))
    for ti in range(2):
        k.I("s_add_u32", s(st0), s(sst), ti)
        k.I("s_lshl_b32", s(soff), s(st0), 7)
        k.I("s_add_u32", s(soff), s(soff), hex(RH_OFF))
        k.vm("z1", "buffer_load_dword", v(rr[ti]), v(t0), sr(sWS, 4), s(soff), mods="offen")
        k.I("s_lshl_b32", s(soff), s(st0), 6)
        k.vm("z1", "buffer_load_ushort", v(bb[ti]), v(t1), sr(sB, 4), s(soff), mods="offen")
    if os.environ.get("PF2", "0") == "1":
        pp = k.salloc(2); sP = k.salloc(4); vT = k.valloc(); vd = k.valloc(2)
        k.I("s_load_dwordx2", sr(pp, 2), "s[0:1]", 56)
        k.I("s_lshl_b32", s(st0), s(sidx), 8)
        k.I("v_add_u32", v(vT), s(st0), "v0")
        k.I("v_lshlrev_b32", v(vT), 7, v(vT))
        k.I("s_waitcnt", "lgkmcnt(0)")
        srd(k, sP, pp, 896 * 896)
        k.vm("pf", "buffer_load_dword", v(vd), v(vT), sr(sP, 4), 0, mods="offen")
    code_prefetch(k, "k6_wout_kernel", sidx, st0)
    stp.stamp(0)
    aZ = k.valloc(); aW = k.valloc(4)
    k.I("s_lshl_b32", s(st0), s(sfh), 13)
    k.I("v_add_u32", v(aZ), s(st0), v(v16))
    k.I("v_bfe_u32", v(t0), v(l31), 1, 3)
    for j in range(4):
        k.I("v_add_u32", v(t1), 2 * j, v(hh))
        k.I("v_xor_b32", v(t1), v(t1), v(t0))
        k.I("v_lshlrev_b32", v(t1), 4, v(t1))
        k.I("v_lshl_add_u32", v(aW + j), v(l31), 7, v(t1))
        k.I("s_lshl_b32", s(st0), s(sth), 13)
        k.I("s_add_u32", s(st0), s(st0), 16384)
        k.I("v_add_u32", v(aW + j), s(st0), v(aW + j))
    aZ2 = k.valloc(); aW2 = k.valloc(4)
    k.I("v_add_u32", v(aZ2), 65536, v(aZ))
    for j in range(4): k.I("v_add_u32", v(aW2 + j), 65536, v(aW + j))
    acc = [[k.valloc(16, 4) for _ in range(2)] for _ in range(2)]
    NB = 3
    zf = [[k.valloc(4) for _ in range(2)] for _ in range(NB)]
    wf = [[k.valloc(4) for _ in range(2)] for _ in range(NB)]
    def rl(ks):
        c, j = ks // 4, ks % 4
        b = ks % NB
        sl = (c % NS) * SLOT
        hi = sl >= 65536
        so = sl - (65536 if hi else 0)
        out = []
        for fi in range(2):
            out.append(lambda fi=fi: k.lg(("f", ks), "ds_read_b128", vr(zf[b][fi], 4), v(aZ2 if hi else aZ), mods=f"offset:{so + fi * 4096 + j * 1024}"))
        for ti in range(2):
            out.append(lambda ti=ti: k.lg(("f", ks), "ds_read_b128", vr(wf[b][ti], 4), v((aW2 if hi else aW) + j), mods=f"offset:{so + ti * 4096}"))
        return out
    k.I("s_barrier")
    stp.stamp(1)
    for f in rl(0) + rl(1): f()
    NKS = NST * 4
    for ks in range(NKS):
        c, j = ks // 4, ks % 4
        b = ks % NB
        k.wait_lg(("f", ks))
        mf = []
        for fi in range(2):
            for ti in range(2):
                mf.append(lambda fi=fi, ti=ti: k.I("v_mfma_f32_32x32x16_bf16", vr(acc[fi][ti], 16), vr(zf[b][fi], 4), vr(wf[b][ti], 4), 0 if ks == 0 else vr(acc[fi][ti], 16)))
        fl = rl(ks + 2) if ks + 2 < NKS else []
        if j == 2 and ks + 2 < NKS:
            if not LT and c in (0, 13, 14): stp.tick({0: 0, 13: 1, 14: 2}[c])
            k.I("s_barrier")
        interleave(k, mf, fl)
    if not LT: stp.tick(3)
    stp.stamp(2)
    if not LT: stp.tick(4)
    if not LT: stp.tick(5)
    vz = k.valloc()
    k.I("s_lshl_b32", s(st0), s(sth), 14)
    k.I("s_lshl_b32", s(st1), s(sfh), 12)
    k.I("s_add_u32", s(st0), s(st0), s(st1))
    k.I("s_add_u32", s(st0), s(st0), Z1REG)
    k.I("v_add_u32", v(vz), s(st0), v(v16))
    for ti in range(2):
        for fi in range(2):
            for hf_ in range(2):
                k.lg(("z1", ti, fi), "ds_read_b128", vr(z1[fi][ti] + 4 * hf_, 4), v(vz), mods=f"offset:{ti * 8192 + fi * 2048 + hf_ * 1024}")
    k.wait_vm("z1")
    for ti in range(2):
        k.I("v_lshlrev_b32", v(bb[ti]), 16, v(bb[ti]))
        k.I("v_mul_f32", v(bb[ti]), v(bb[ti]), v(rr[ti]))
    k.I("s_cmp_eq_u32", s(skap), 0)
    k.I("s_cselect_b32", s(st0), "1.0", 0)
    for ti in range(2): k.I("v_mul_f32", v(bb[ti]), s(st0), v(bb[ti]))
    tp = [k.valloc(2) for _ in range(4)]
    P = [k.valloc(8, 4) for _ in range(2)]
    sU = k.salloc()
    k.I("s_mul_i32", s(sU), s(skap), U1_OFF - U0_OFF)
    k.I("s_add_u32", s(sU), s(sU), hex(U0_OFF))
    n = 0
    for ti in range(2):
        for fi in range(2):
            A = acc[fi][ti]; Zp = z1[fi][ti]; PP = P[n & 1]; n += 1
            for j in range(8):
                k.I("v_pk_fma_f32", vr(A + 2 * j, 2), vr(A + 2 * j, 2), vr(rr[ti], 2), vr(bb[ti], 2), mods="op_sel_hi:[1,0,0]")
            k.wait_lg(("z1", ti, fi))
            for j in range(8):
                T = tp[j % 4]
                k.I("v_lshlrev_b32", v(T), 16, v(Zp + j))
                k.I("v_and_b32", v(T + 1), "0xffff0000", v(Zp + j))
                k.I("v_pk_mul_f32", vr(A + 2 * j, 2), vr(A + 2 * j, 2), vr(T, 2))
            for j in range(8): k.I("v_cvt_pk_bf16_f32", v(PP + j), v(A + 2 * j), v(A + 2 * j + 1))
            k.I("s_add_u32", s(st0), s(sst), ti)
            k.I("s_mul_i32", s(soff), s(st0), 56 * 1024)
            k.I("s_add_u32", s(st0), s(sf32), fi)
            k.I("s_lshl_b32", s(st0), s(st0), 11)
            k.I("s_add_u32", s(soff), s(soff), s(st0))
            k.I("s_add_u32", s(soff), s(soff), s(sU))
            k.I("buffer_store_dwordx4", vr(PP, 4), v(v16), sr(sWS, 4), s(soff), mods="offen")
            k.I("buffer_store_dwordx4", vr(PP + 4, 4), v(v16), sr(sWS, 4), s(soff), mods="offen offset:1024")
            if not LT: stp.tick(5 + n)
    stp.stamp(3)
    if not LT: stp.tick(10)
    if not LT: stp.dump_ticks()
    k.I("s_endpgm")
    k.L(pfrole)
    vT2 = k.valloc()
    k.I("s_sub_u32", s(st0), s(sidx), 28)
    k.I("s_lshl_b32", s(st0), s(st0), 9)
    k.I("v_add_u32", v(vT2), s(st0), "v0")
    k.I("v_lshlrev_b32", v(vT2), 7, v(vT2))
    l2_prefetch(k, 56, 896 * 896, vT2, 2048, st0)
    k.L(R["done"])
    k.I("s_endpgm")
    k.lds = lds; k.threads = 512; k.grid = 256
    return k

def gen_k56(Stamper):
    k = Kernel("k5_sp_kernel")
    NS = 4; SLOT = 32768
    Z1REG = NS * SLOT
    lds = Z1REG + 32768
    R = common_start(k, 256)
    swave, st0, st1, soff, lane, t0, t1, t2 = (R[x] for x in ("swave", "st0", "st1", "soff", "lane", "t0", "t1", "t2"))
    pSp = k.salloc(2); pB = k.salloc(2); pWS = k.salloc(2)
    k.I("s_load_dwordx2", sr(pSp, 2), "s[0:1]", 40)
    k.I("s_load_dwordx2", sr(pB, 2), "s[0:1]", 48)
    k.I("s_load_dwordx2", sr(pWS, 2), "s[0:1]", 80)
    pWo = k.salloc(2); pOD = k.salloc(4)
    k.I("s_load_dwordx2", sr(pWo, 2), "s[0:1]", 56)
    k.I("s_load_dwordx4", sr(pOD, 4), "s[0:1]", 64)
    sWS = k.salloc(4); sSp = k.salloc(4); sB = k.salloc(4); sWo = k.salloc(4); sOut = k.salloc(4); sD = k.salloc(4)
    sj = k.salloc(); sidx = k.salloc(); stt = k.salloc(); sft = k.salloc(); skap = k.salloc(); sw3 = k.salloc()
    if os.environ.get("K5MAP") == "linear":
        k.I("s_mul_i32", s(sj), "s2", 2341)
        k.I("s_lshr_b32", s(sj), s(sj), 16)
        k.I("s_mul_i32", s(sidx), s(sj), 28)
        k.I("s_sub_u32", s(sidx), "s2", s(sidx))
    else:
        k.I("s_and_b32", s(sj), "s2", 7)
        k.I("s_lshr_b32", s(sidx), "s2", 3)
    pfrole = k.newlabel("pfrole")
    k.I("s_cmp_ge_u32", s(sidx), 28)
    k.I("s_cbranch_scc1", pfrole)
    k.I("s_and_b32", s(sw3), s(swave), 3)
    k.I("s_and_b32", s(skap), s(sj), 1)
    k.I("s_mul_i32", s(st0), s(sidx), 37)
    k.I("s_lshr_b32", s(st0), s(st0), 8)
    k.I("s_mul_i32", s(st1), s(st0), 7)
    k.I("s_sub_u32", s(sft), s(sidx), s(st1))
    k.I("s_lshr_b32", s(stt), s(sj), 1)
    k.I("s_lshl_b32", s(stt), s(stt), 2)
    k.I("s_add_u32", s(stt), s(stt), s(st0))
    stp = Stamper(k, 4, sWS, swave)
    if os.environ.get("TICKWAVE", "0") != "0": stp.tick(0)
    k.I("s_waitcnt", "lgkmcnt(0)")
    srd(k, sWS, pWS, WS_SIZE)
    comp = k.newlabel("compute")
    k.I("s_cmp_lt_u32", s(swave), 4)
    k.I("s_cbranch_scc1", comp)
    vsave = k.vnext
    srd(k, sSp, pSp, 2048 * 4096)
    v16 = k.valloc(); vWo = k.valloc(2)
    k.I("v_lshlrev_b32", v(v16), 4, v(lane))
    k.I("v_lshrrev_b32", v(t0), 3, v(lane))
    k.I("v_lshlrev_b32", v(t0), 12, v(t0))
    k.I("v_lshrrev_b32", v(t1), 4, v(lane))
    k.I("v_and_b32", v(t2), 7, v(lane))
    k.I("v_xor_b32", v(t1), v(t1), v(t2))
    k.I("v_lshl_add_u32", v(vWo), v(t1), 4, v(t0))
    k.I("v_xor_b32", v(t1), 4, v(t1))
    k.I("v_lshl_add_u32", v(vWo + 1), v(t1), 4, v(t0))
    sZb = k.salloc(); sWb = k.salloc(); smZ = k.salloc(); smW = k.salloc()
    k.I("s_lshl_b32", s(st0), s(sft), 2)
    k.I("s_add_u32", s(st0), s(st0), s(sw3))
    k.I("s_mul_i32", s(sZb), s(st0), ZS)
    k.I("s_mul_i32", s(st1), s(skap), ZK)
    k.I("s_add_u32", s(sZb), s(sZb), s(st1))
    k.I("s_add_u32", s(sZb), s(sZb), hex(Z2_OFF))
    k.I("s_lshl_b32", s(smZ), s(sw3), 12)
    k.I("s_lshl_b32", s(st0), s(stt), 7)
    k.I("s_lshl_b32", s(st1), s(sw3), 5)
    k.I("s_add_u32", s(st0), s(st0), s(st1))
    k.I("s_lshl_b32", s(sWb), s(st0), 12)
    k.I("s_lshl_b32", s(st1), s(skap), 11)
    k.I("s_add_u32", s(sWb), s(sWb), s(st1))
    k.I("s_add_u32", s(smW), s(smZ), 16384)
    def issue(c):
        sl = (c % NS) * SLOT
        def zpart():
            for i in range(4):
                k.I("s_add_u32", s(soff), s(sZb), hex((4 * c + i) * 1024))
                k.I("s_add_u32", "m0", s(smZ), hex(sl + i * 1024))
                k.vm(("S", c), "buffer_load_dwordx4", v(v16), sr(sWS, 4), s(soff), mods="offen lds")
                if os.environ.get("DIAG5") and c == 0 and i in (0, 3):
                    k.I("s_waitcnt", "vmcnt(0)"); stp.tick(10 + (i > 0))
        def wpart():
            for i in range(4):
                k.I("s_add_u32", s(soff), s(sWb), hex(i * 8 * 4096 + c * 128))
                k.I("s_add_u32", "m0", s(smW), hex(sl + i * 1024))
                k.vm(("S", c), "buffer_load_dwordx4", v(vWo + (i & 1)), sr(sSp, 4), s(soff), mods="offen lds")
                if os.environ.get("DIAG5") and c == 0 and i in (0, 3):
                    k.I("s_waitcnt", "vmcnt(0)"); stp.tick(12 + (i > 0))
        if os.environ.get("DIAG5") == "2": wpart(); zpart()
        else: zpart(); wpart()
    NST = 16
    sZ1 = k.salloc()
    k.I("s_lshl_b32", s(st0), s(stt), 2)
    k.I("s_add_u32", s(st0), s(st0), s(sw3))
    k.I("s_mul_i32", s(sZ1), s(st0), 56 * 1024)
    k.I("s_lshl_b32", s(st1), s(sft), 13)
    k.I("s_add_u32", s(sZ1), s(sZ1), s(st1))
    k.I("s_add_u32", s(sZ1), s(sZ1), hex(Z1_OFF))
    smZ1 = k.salloc()
    k.I("s_lshl_b32", s(smZ1), s(sw3), 13)
    def issue_z1(i, tag):
        k.I("s_add_u32", s(soff), s(sZ1), hex(i * 1024))
        k.I("s_add_u32", "m0", s(smZ1), hex(Z1REG + i * 1024))
        k.vm(("S", tag), "buffer_load_dwordx4", v(v16), sr(sWS, 4), s(soff), mods="offen lds")
    LT = os.environ.get("TICKWAVE", "0") != "0"
    if LT: stp.tick(1)
    issue(0)
    if LT: stp.tick(2)
    issue(1)
    if LT: stp.tick(3)
    for c in range(NST):
        k.wait_vm(("S", c))
        if LT and c < 3: stp.tick(4 + 2 * c)
        k.I("s_barrier")
        if LT and c < 3: stp.tick(5 + 2 * c)
        if c == 0: issue(2); issue(3)
        elif c + 2 < NST and c >= 2:
            issue(c + 2)
            if 3 <= c < 11: issue_z1(c - 3, c + 2)
    srd(k, sWo, pWo, 896 * 896)
    vWd = k.valloc(); sWd = k.salloc(); smD = k.salloc()
    k.I("v_lshrrev_b32", v(t0), 3, v(lane))
    k.I("v_mul_u32_u24", v(t0), 896, v(t0))
    k.I("v_bfe_u32", v(t1), v(lane), 4, 1)
    k.I("v_lshlrev_b32", v(t1), 2, v(t1))
    k.I("v_and_b32", v(t2), 7, v(lane))
    k.I("v_xor_b32", v(t1), v(t1), v(t2))
    k.I("v_lshl_add_u32", v(vWd), v(t1), 4, v(t0))
    k.I("s_mul_i32", s(sWd), s(sw3), 224 * 896)
    k.I("s_lshl_b32", s(st1), s(sft), 7)
    k.I("s_add_u32", s(sWd), s(sWd), s(st1))
    k.I("s_mul_i32", s(smD), s(sw3), 224 * 128)
    k.I("s_barrier")
    for i in range(28):
        k.I("s_add_u32", s(soff), s(sWd), hex(i * 8 * 896))
        k.I("s_add_u32", "m0", s(smD), hex(i * 1024))
        k.I("buffer_load_dwordx4", v(vWd), sr(sWo, 4), s(soff), mods="offen lds")
    k.I("s_waitcnt", "vmcnt(0)")
    k.I("s_barrier")
    k.I("s_endpgm")
    k.L(comp)
    k.vnext = vsave; k.vmq = []; k.lgq = []
    srd(k, sB, pB, 4096)
    l31 = k.valloc(); hh = k.valloc()
    k.I("v_and_b32", v(l31), 31, v(lane))
    k.I("v_lshrrev_b32", v(hh), 5, v(lane))
    sfh = k.salloc(); sth = k.salloc(); sst = k.salloc(); sf32 = k.salloc()
    k.I("s_and_b32", s(sfh), s(swave), 1)
    k.I("s_lshr_b32", s(sth), s(swave), 1)
    k.I("s_lshl_b32", s(sst), s(stt), 2)
    k.I("s_lshl_b32", s(st0), s(sth), 1)
    k.I("s_add_u32", s(sst), s(sst), s(st0))
    k.I("s_lshl_b32", s(sf32), s(sft), 2)
    k.I("s_lshl_b32", s(st0), s(sfh), 1)
    k.I("s_add_u32", s(sf32), s(sf32), s(st0))
    if os.environ.get("PF3", "0") == "1":
        vT0 = k.valloc(); vd0 = k.valloc(2)
        k.I("s_lshl_b32", s(st0), s(sidx), 8)
        k.I("v_add_u32", v(vT0), s(st0), "v0")
        k.I("s_lshl_b32", s(st1), s(skap), 16)
        k.I("s_add_u32", s(st1), s(st1), hex(Z2_OFF))
        for i in range(2):
            k.I("v_add_u32", v(t0), 7168 * i, v(vT0))
            k.I("v_lshrrev_b32", v(t1), 9, v(t0))
            k.I("v_lshlrev_b32", v(t1), 17, v(t1))
            k.I("v_and_b32", v(t2), 511, v(t0))
            k.I("v_lshl_add_u32", v(t1), v(t2), 7, v(t1))
            k.vm("pf", "buffer_load_dword", v(vd0 + i), v(t1), sr(sWS, 4), s(st1), mods="offen")
    v16 = k.valloc()
    k.I("v_lshlrev_b32", v(v16), 4, v(lane))
    vB = k.vnext
    z1 = [[k.valloc(8, 4) for _ in range(2)] for _ in range(2)]
    rr = [k.valloc(2) for _ in range(2)]; bb = [k.valloc(2) for _ in range(2)]
    k.I("v_lshlrev_b32", v(t0), 2, v(l31))
    k.I("v_lshlrev_b32", v(t1), 1, v(l31))
    for ti in range(2):
        k.I("s_add_u32", s(st0), s(sst), ti)
        k.I("s_lshl_b32", s(soff), s(st0), 7)
        k.I("s_add_u32", s(soff), s(soff), hex(RH_OFF))
        k.vm("z1", "buffer_load_dword", v(rr[ti]), v(t0), sr(sWS, 4), s(soff), mods="offen")
        k.I("s_lshl_b32", s(soff), s(st0), 6)
        k.vm("z1", "buffer_load_ushort", v(bb[ti]), v(t1), sr(sB, 4), s(soff), mods="offen")
    if os.environ.get("PF2", "0") == "1":
        pp = k.salloc(2); sP = k.salloc(4); vT = k.valloc(); vd = k.valloc(2)
        k.I("s_load_dwordx2", sr(pp, 2), "s[0:1]", 56)
        k.I("s_lshl_b32", s(st0), s(sidx), 8)
        k.I("v_add_u32", v(vT), s(st0), "v0")
        k.I("v_lshlrev_b32", v(vT), 7, v(vT))
        k.I("s_waitcnt", "lgkmcnt(0)")
        srd(k, sP, pp, 896 * 896)
        k.vm("pf", "buffer_load_dword", v(vd), v(vT), sr(sP, 4), 0, mods="offen")
    stp.stamp(0)
    aZ = k.valloc(); aW = k.valloc(4)
    k.I("s_lshl_b32", s(st0), s(sfh), 13)
    k.I("v_add_u32", v(aZ), s(st0), v(v16))
    k.I("v_bfe_u32", v(t0), v(l31), 1, 3)
    for j in range(4):
        k.I("v_add_u32", v(t1), 2 * j, v(hh))
        k.I("v_xor_b32", v(t1), v(t1), v(t0))
        k.I("v_lshlrev_b32", v(t1), 4, v(t1))
        k.I("v_lshl_add_u32", v(aW + j), v(l31), 7, v(t1))
        k.I("s_lshl_b32", s(st0), s(sth), 13)
        k.I("s_add_u32", s(st0), s(st0), 16384)
        k.I("v_add_u32", v(aW + j), s(st0), v(aW + j))
    aZ2 = k.valloc(); aW2 = k.valloc(4)
    k.I("v_add_u32", v(aZ2), 65536, v(aZ))
    for j in range(4): k.I("v_add_u32", v(aW2 + j), 65536, v(aW + j))
    acc = [[k.valloc(16, 4) for _ in range(2)] for _ in range(2)]
    NB = 3
    zf = [[k.valloc(4) for _ in range(2)] for _ in range(NB)]
    wf = [[k.valloc(4) for _ in range(2)] for _ in range(NB)]
    def rl(ks):
        c, j = ks // 4, ks % 4
        b = ks % NB
        sl = (c % NS) * SLOT
        hi = sl >= 65536
        so = sl - (65536 if hi else 0)
        out = []
        for fi in range(2):
            out.append(lambda fi=fi: k.lg(("f", ks), "ds_read_b128", vr(zf[b][fi], 4), v(aZ2 if hi else aZ), mods=f"offset:{so + fi * 4096 + j * 1024}"))
        for ti in range(2):
            out.append(lambda ti=ti: k.lg(("f", ks), "ds_read_b128", vr(wf[b][ti], 4), v((aW2 if hi else aW) + j), mods=f"offset:{so + ti * 4096}"))
        return out
    k.I("s_barrier")
    if not os.environ.get("DIAG56"): stp.stamp(1)
    for f in rl(0) + rl(1): f()
    NKS = NST * 4
    for ks in range(NKS):
        c, j = ks // 4, ks % 4
        b = ks % NB
        k.wait_lg(("f", ks))
        mf = []
        for fi in range(2):
            for ti in range(2):
                mf.append(lambda fi=fi, ti=ti: k.I("v_mfma_f32_32x32x16_bf16", vr(acc[fi][ti], 16), vr(zf[b][fi], 4), vr(wf[b][ti], 4), 0 if ks == 0 else vr(acc[fi][ti], 16)))
        fl = rl(ks + 2) if ks + 2 < NKS else []
        if j == 2 and ks + 2 < NKS:
            k.I("s_barrier")
        interleave(k, mf, fl)
    k.I("s_barrier")
    if not os.environ.get("DIAG56"): stp.stamp(2)
    vz = k.valloc()
    k.I("s_lshl_b32", s(st0), s(sth), 14)
    k.I("s_lshl_b32", s(st1), s(sfh), 12)
    k.I("s_add_u32", s(st0), s(st0), s(st1))
    k.I("s_add_u32", s(st0), s(st0), Z1REG)
    k.I("v_add_u32", v(vz), s(st0), v(v16))
    for ti in range(2):
        for fi in range(2):
            for hf_ in range(2):
                k.lg(("z1", ti, fi), "ds_read_b128", vr(z1[fi][ti] + 4 * hf_, 4), v(vz), mods=f"offset:{ti * 8192 + fi * 2048 + hf_ * 1024}")
    k.wait_vm("z1")
    for ti in range(2):
        k.I("v_lshlrev_b32", v(bb[ti]), 16, v(bb[ti]))
        k.I("v_mul_f32", v(bb[ti]), v(bb[ti]), v(rr[ti]))
    k.I("s_cmp_eq_u32", s(skap), 0)
    k.I("s_cselect_b32", s(st0), "1.0", 0)
    for ti in range(2): k.I("v_mul_f32", v(bb[ti]), s(st0), v(bb[ti]))
    tp = [k.valloc(2) for _ in range(4)]
    P = [k.valloc(8, 4) for _ in range(2)]
    sU = k.salloc()
    k.I("s_mul_i32", s(sU), s(skap), U1_OFF - U0_OFF)
    k.I("s_add_u32", s(sU), s(sU), hex(U0_OFF))
    n = 0
    for ti in range(2):
        for fi in range(2):
            A = acc[fi][ti]; Zp = z1[fi][ti]; PP = P[n & 1]; n += 1
            for j in range(8):
                k.I("v_pk_fma_f32", vr(A + 2 * j, 2), vr(A + 2 * j, 2), vr(rr[ti], 2), vr(bb[ti], 2), mods="op_sel_hi:[1,0,0]")
            k.wait_lg(("z1", ti, fi))
            for j in range(8):
                T = tp[j % 4]
                k.I("v_lshlrev_b32", v(T), 16, v(Zp + j))
                k.I("v_and_b32", v(T + 1), "0xffff0000", v(Zp + j))
                k.I("v_pk_mul_f32", vr(A + 2 * j, 2), vr(A + 2 * j, 2), vr(T, 2))
            for j in range(8): k.I("v_cvt_pk_bf16_f32", v(PP + j), v(A + 2 * j), v(A + 2 * j + 1))
            k.I("s_add_u32", s(st0), s(sst), ti)
            k.I("s_mul_i32", s(soff), s(st0), 56 * 1024)
            k.I("s_add_u32", s(st0), s(sf32), fi)
            k.I("s_lshl_b32", s(st0), s(st0), 11)
            k.I("s_add_u32", s(soff), s(soff), s(st0))
            k.I("s_add_u32", s(soff), s(soff), s(sU))
            k.I("buffer_store_dwordx4", vr(PP, 4), v(v16), sr(sWS, 4), s(soff), mods="offen")
            k.I("buffer_store_dwordx4", vr(PP + 4, 4), v(v16), sr(sWS, 4), s(soff), mods="offen offset:1024")
    stp.stamp(3)
    k.vnext = vB
    srd(k, sOut, pOD, 2048 * 896)
    srd(k, sD, pOD + 2, 256)
    srh = k.salloc(); skh = k.salloc(); sstB = k.salloc()
    k.I("s_and_b32", s(srh), s(swave), 1)
    k.I("s_lshr_b32", s(skh), s(swave), 1)
    k.I("s_lshl_b32", s(sstB), s(stt), 2)
    k.I("s_lshl_b32", s(st0), s(skap), 1)
    k.I("s_add_u32", s(sstB), s(sstB), s(st0))
    k.I("s_add_u32", s(sstB), s(sstB), s(srh))
    hr = k.valloc(8, 4)
    k.I("s_mul_i32", s(soff), s(sstB), 28 * 1024)
    k.I("s_lshl_b32", s(st0), s(sft), 1)
    k.I("s_add_u32", s(st0), s(st0), s(skh))
    sntile = k.salloc()
    k.I("s_mov_b32", s(sntile), s(st0))
    k.I("s_lshl_b32", s(st0), s(st0), 11)
    k.I("s_add_u32", s(soff), s(soff), s(st0))
    k.I("s_add_u32", s(soff), s(soff), hex(H_OFF))
    k.I("s_waitcnt", "vmcnt(0)")
    k.vmq = []
    fl = k.valloc(2); vz0 = k.valloc(); one = k.valloc()
    k.I("s_mul_i32", s(st0), s(skap), 7)
    k.I("s_add_u32", s(st0), s(st0), s(sft))
    k.I("s_lshl_b32", s(st0), s(st0), 2)
    k.I("s_add_u32", s(st0), s(st0), s(swave))
    k.I("s_lshl_b32", s(st0), s(st0), 2)
    k.I("s_lshl_b32", s(st1), s(stt), 8)
    sFL = k.salloc()
    k.I("s_add_u32", s(sFL), s(st1), hex(FL_OFF))
    k.I("s_add_u32", s(st0), s(st0), s(sFL))
    k.I("v_mov_b32", v(vz0), 0)
    k.I("v_mov_b32", v(one), 1)
    k.I("s_mov_b64", "exec", 1)
    k.I("buffer_store_dword", v(one), v(vz0), sr(sWS, 4), s(st0), mods="offen sc0 sc1")
    k.I("s_mov_b64", "exec", -1)
    k.I("buffer_load_dwordx4", vr(hr, 4), v(v16), sr(sWS, 4), s(soff), mods="offen")
    k.I("buffer_load_dwordx4", vr(hr + 4, 4), v(v16), sr(sWS, 4), s(soff), mods="offen offset:1024")
    k.I("v_min_u32", v(vz0), 55, v(lane))
    k.I("v_lshlrev_b32", v(vz0), 2, v(vz0))
    vWb = [k.valloc(), k.valloc()]
    k.I("v_bfe_u32", v(t0), v(lane), 2, 2)
    k.I("v_lshl_add_u32", v(t0), v(hh), 2, v(t0))
    k.I("s_mul_i32", s(st0), s(skh), 448)
    k.I("v_add_u32", v(t0), s(st0), v(t0))
    k.I("v_lshlrev_b32", v(t0), 7, v(t0))
    k.I("v_bfe_u32", v(t1), v(lane), 4, 1)
    k.I("v_lshlrev_b32", v(t1), 1, v(t1))
    k.I("v_bfe_u32", v(t2), v(lane), 1, 1)
    k.I("v_add_u32", v(t1), v(t1), v(t2))
    k.I("v_bfe_u32", v(t2), v(lane), 3, 1)
    k.I("v_lshlrev_b32", v(t2), 2, v(t2))
    for n2 in range(2):
        k.I("v_add_u32", v(vWb[n2]), 4 * n2, v(t1))
        k.I("v_xor_b32", v(vWb[n2]), v(vWb[n2]), v(t2))
        k.I("v_lshl_add_u32", v(vWb[n2]), v(vWb[n2]), 4, v(t0))
    k.I("v_and_b32", v(t1), 1, v(lane))
    for n2 in range(2): k.I("v_lshl_add_u32", v(vWb[n2]), v(t1), 3, v(vWb[n2]))
    sU0 = k.salloc(); sU1 = k.salloc()
    k.I("s_mul_i32", s(sU0), s(sstB), 56 * 1024)
    k.I("s_mul_i32", s(st0), s(skh), 28 * 1024)
    k.I("s_add_u32", s(sU0), s(sU0), s(st0))
    k.I("s_add_u32", s(sU1), s(sU0), hex(U1_OFF))
    k.I("s_add_u32", s(sU0), s(sU0), hex(U0_OFF))
    accB = [k.valloc(16, 4) for _ in range(2)]
    NU = 12
    uf = [[k.valloc(4) for _ in range(2)] for _ in range(NU)]
    NBW = 3
    wfB = [[k.valloc(4) for _ in range(2)] for _ in range(NBW)]
    scount = k.salloc()
    k.I("s_mov_b32", s(scount), 0)
    poll = k.newlabel("poll"); pdone = k.newlabel("pdone")
    k.L(poll)
    k.I("buffer_load_dword", v(fl), v(vz0), sr(sWS, 4), s(sFL), mods="offen sc0 sc1")
    k.I("s_waitcnt", "vmcnt(0)")
    k.I("v_cmp_ne_u32", "vcc", 1, v(fl))
    k.I("s_add_u32", s(scount), s(scount), 1)
    k.I("s_cmp_eq_u64", "vcc", 0)
    k.I("s_cbranch_scc1", pdone)
    k.I("s_cmp_lt_u32", s(scount), 0x100000)
    k.I("s_cbranch_scc0", pdone)
    k.I("s_sleep", 1)
    k.I("s_branch", poll)
    k.L(pdone)
    k.vmq = []
    stp.stamp(4)
    def uload(j):
        for ar_, sU in enumerate((sU0, sU1)):
            k.I("s_add_u32", s(soff), s(sU), hex(j * 1024))
            k.vm(("u", j), "buffer_load_dwordx4", vr(uf[j % NU][ar_], 4), v(v16), sr(sWS, 4), s(soff), mods="offen sc1")
    def wread(j):
        out = []
        for n2 in range(2):
            for beta in range(2):
                out.append(lambda n2=n2, beta=beta: k.lg(("w", j), "ds_read_b64_tr_b16", vr(wfB[j % NBW][n2] + 2 * beta, 2), v(vWb[n2]), mods=f"offset:{(16 * j + 8 * beta) * 128}"))
        return out
    for j in range(NU): uload(j)
    k.I("s_barrier")
    for f in wread(0) + wread(1): f()
    for j in range(28):
        k.wait_vm(("u", j))
        k.wait_lg(("w", j))
        mf = []
        for ar_ in range(2):
            for n2 in range(2):
                mf.append(lambda ar_=ar_, n2=n2: k.I("v_mfma_f32_32x32x16_bf16", vr(accB[n2], 16), vr(wfB[j % NBW][n2], 4), vr(uf[j % NU][ar_], 4), 0 if (j == 0 and ar_ == 0) else vr(accB[n2], 16)))
        fl_ = wread(j + 2) if j + 2 < 28 else []
        interleave(k, mf, fl_)
        if j + NU < 28: uload(j + NU)
    stp.stamp(5)
    RED = 114688
    vr1 = k.valloc(); vr2 = k.valloc()
    k.I("s_lshl_b32", s(st0), s(srh), 13)
    k.I("s_add_u32", s(st0), s(st0), RED)
    k.I("v_add_u32", v(vr1), s(st0), v(v16))
    k.I("s_lshl_b32", s(st1), s(skh), 12)
    k.I("v_add_u32", v(vr2), s(st1), v(vr1))
    k.I("s_xor_b32", s(st1), s(st1), 4096)
    k.I("v_add_u32", v(vr1), s(st1), v(vr1))
    keep = k.valloc(16, 4)
    lab_a = k.newlabel("kh1"); lab_b = k.newlabel("khj")
    k.I("s_cmp_lg_u32", s(skh), 0)
    k.I("s_cbranch_scc1", lab_a)
    for q in range(4): k.I("ds_write_b128", v(vr1), vr(accB[1] + 4 * q, 4), mods=f"offset:{q * 1024}")
    for i in range(16): k.I("v_mov_b32", v(keep + i), v(accB[0] + i))
    k.I("s_branch", lab_b)
    k.L(lab_a)
    for q in range(4): k.I("ds_write_b128", v(vr1), vr(accB[0] + 4 * q, 4), mods=f"offset:{q * 1024}")
    for i in range(16): k.I("v_mov_b32", v(keep + i), v(accB[1] + i))
    k.L(lab_b)
    k.I("s_waitcnt", "lgkmcnt(0)")
    k.lgq = []
    k.I("s_barrier")
    oth = k.valloc(16, 4)
    for q in range(4): k.I("ds_read_b128", vr(oth + 4 * q, 4), v(vr2), mods=f"offset:{q * 1024}")
    tpB = [k.valloc(2) for _ in range(4)]
    for j in range(8):
        T = tpB[j % 4]
        k.I("v_lshlrev_b32", v(T), 16, v(hr + j))
        k.I("v_and_b32", v(T + 1), "0xffff0000", v(hr + j))
        k.I("v_pk_add_f32", vr(keep + 2 * j, 2), vr(keep + 2 * j, 2), vr(T, 2))
    k.I("s_waitcnt", "lgkmcnt(0)")
    for j in range(8): k.I("v_pk_add_f32", vr(keep + 2 * j, 2), vr(keep + 2 * j, 2), vr(oth + 2 * j, 2))
    PB = k.valloc(8, 4)
    for j in range(8): k.I("v_cvt_pk_bf16_f32", v(PB + j), v(keep + 2 * j), v(keep + 2 * j + 1))
    for kp in range(2):
        k.I("v_permlane32_swap_b32", v(PB + 4 * kp), v(PB + 4 * kp + 2))
        k.I("v_permlane32_swap_b32", v(PB + 4 * kp + 1), v(PB + 4 * kp + 3))
    vo = k.valloc()
    k.I("v_mul_u32_u24", v(vo), 896, v(l31))
    k.I("v_lshl_add_u32", v(vo), v(hh), 4, v(vo))
    k.I("s_mul_i32", s(soff), s(sstB), 32 * 896)
    k.I("s_lshl_b32", s(st0), s(sntile), 6)
    k.I("s_add_u32", s(soff), s(soff), s(st0))
    for kp in range(2):
        k.I("buffer_store_dwordx4", vr(PB + 4 * kp, 4), v(vo), sr(sOut, 4), s(soff), mods=f"offen offset:{32 * kp}")
    stp.stamp(6)
    k.I("s_endpgm")
    k.L(pfrole)
    vT2 = k.valloc()
    k.I("s_sub_u32", s(st0), s(sidx), 28)
    k.I("s_lshl_b32", s(st0), s(st0), 9)
    k.I("v_add_u32", v(vT2), s(st0), "v0")
    k.I("v_lshlrev_b32", v(vT2), 7, v(vT2))
    l2_prefetch(k, 56, 896 * 896, vT2, 2048, st0)
    k.L(R["done"])
    k.I("s_endpgm")
    k.lds = lds; k.threads = 512; k.grid = 256
    return k

def gen_k6(Stamper):
    k = Kernel("k6_wout_kernel")
    NS = 5; SLOT = 24576
    RED = 0
    lds = NS * SLOT
    R = common_start(k, 224)
    swave, st0, st1, soff, lane, t0, t1, t2 = (R[x] for x in ("swave", "st0", "st1", "soff", "lane", "t0", "t1", "t2"))
    pWo = k.salloc(2); pOut = k.salloc(2); pWS = k.salloc(2)
    k.I("s_load_dwordx2", sr(pWo, 2), "s[0:1]", 56)
    k.I("s_load_dwordx2", sr(pOut, 2), "s[0:1]", 64)
    k.I("s_load_dwordx2", sr(pWS, 2), "s[0:1]", 80)
    sWS = k.salloc(4); sWo = k.salloc(4); sOut = k.salloc(4)
    sj = k.salloc(); sidx = k.salloc(); srt = k.salloc(); snt = k.salloc(); sw3 = k.salloc()
    k.I("s_and_b32", s(sj), "s2", 7)
    k.I("s_lshr_b32", s(sidx), "s2", 3)
    k.I("s_and_b32", s(sw3), s(swave), 3)
    k.I("s_mul_i32", s(st0), s(sidx), 37)
    k.I("s_lshr_b32", s(st0), s(st0), 8)
    k.I("s_mul_i32", s(st1), s(st0), 7)
    k.I("s_sub_u32", s(snt), s(sidx), s(st1))
    k.I("s_lshl_b32", s(srt), s(sj), 2)
    k.I("s_add_u32", s(srt), s(srt), s(st0))
    stp = Stamper(k, 5, sWS, swave)
    k.I("s_waitcnt", "lgkmcnt(0)")
    srd(k, sWS, pWS, WS_SIZE)
    comp = k.newlabel("compute")
    k.I("s_cmp_lt_u32", s(swave), 4)
    k.I("s_cbranch_scc1", comp)
    vsave = k.vnext
    srd(k, sWo, pWo, 896 * 896)
    v16 = k.valloc(); vWo = k.valloc()
    k.I("v_lshlrev_b32", v(v16), 4, v(lane))
    k.I("v_lshrrev_b32", v(t0), 3, v(lane))
    k.I("v_mul_u32_u24", v(t0), 896, v(t0))
    k.I("v_bfe_u32", v(t1), v(lane), 4, 1)
    k.I("v_lshlrev_b32", v(t1), 2, v(t1))
    k.I("v_and_b32", v(t2), 7, v(lane))
    k.I("v_xor_b32", v(t1), v(t1), v(t2))
    k.I("v_lshl_add_u32", v(vWo), v(t1), 4, v(t0))
    sUb = k.salloc(); sWb = k.salloc(); smU = k.salloc(); smW = k.salloc()
    k.I("s_lshr_b32", s(st0), s(sw3), 1)
    k.I("s_lshl_b32", s(st1), s(srt), 1)
    k.I("s_add_u32", s(st1), s(st1), s(st0))
    k.I("s_mul_i32", s(sUb), s(st1), 56 * 1024)
    k.I("s_and_b32", s(st1), s(sw3), 1)
    k.I("s_mul_i32", s(smU), s(st1), U1_OFF - U0_OFF)
    k.I("s_add_u32", s(sUb), s(sUb), s(smU))
    k.I("s_add_u32", s(sUb), s(sUb), hex(U0_OFF))
    k.I("s_lshl_b32", s(smU), s(st1), 13)
    k.I("s_lshl_b32", s(st0), s(st0), 12)
    k.I("s_add_u32", s(smU), s(smU), s(st0))
    k.I("s_mul_i32", s(sWb), s(sw3), 16 * 896)
    k.I("s_lshl_b32", s(st1), s(snt), 7)
    k.I("s_add_u32", s(sWb), s(sWb), s(st1))
    k.I("s_lshl_b32", s(smW), s(sw3), 11)
    k.I("s_add_u32", s(smW), s(smW), 16384)
    srot = k.salloc(); scp = k.salloc(); sa1 = k.salloc(); sa2 = k.salloc()
    k.I("s_lshl_b32", s(st0), s(snt), 1)
    k.I("s_and_b32", s(st1), s(srt), 3)
    k.I("s_mul_i32", s(st1), s(st1), 3)
    k.I("s_add_u32", s(srot), s(st0), s(st1))
    k.I("s_cmp_ge_u32", s(srot), 14)
    k.I("s_cselect_b32", s(st0), 14, 0)
    k.I("s_sub_u32", s(srot), s(srot), s(st0))
    if not rot_on(6): k.I("s_mov_b32", s(srot), 0)
    def issue(c):
        sl = (c % NS) * SLOT
        rot_index(k, scp, srot, c, 14)
        k.I("s_lshl_b32", s(sa1), s(scp), 12)
        k.I("s_add_u32", s(sa1), s(sa1), s(sUb))
        k.I("s_mul_i32", s(sa2), s(scp), 64 * 896)
        k.I("s_add_u32", s(sa2), s(sa2), s(sWb))
        for i in range(4):
            k.I("s_add_u32", s(soff), s(sa1), hex(i * 1024))
            k.I("s_add_u32", "m0", s(smU), hex(sl + i * 1024))
            k.vm(("S", c), "buffer_load_dwordx4", v(v16), sr(sWS, 4), s(soff), mods="offen lds")
        for i in range(2):
            k.I("s_add_u32", s(soff), s(sa2), hex(8 * i * 896))
            k.I("s_add_u32", "m0", s(smW), hex(sl + i * 1024))
            k.vm(("S", c), "buffer_load_dwordx4", v(vWo), sr(sWo, 4), s(soff), mods="offen lds")
    NST = 14
    for c in range(3): issue(c)
    for c in range(NST):
        k.wait_vm(("S", c))
        k.I("s_barrier")
        if c == 0: issue(3); issue(4)
        elif c + 3 < NST and c >= 2: issue(c + 3)
    k.I("s_endpgm")
    k.L(comp)
    k.vnext = vsave; k.vmq = []; k.lgq = []
    srd(k, sOut, pOut, 2048 * 896)
    l31 = k.valloc(); hh = k.valloc()
    k.I("v_and_b32", v(l31), 31, v(lane))
    k.I("v_lshrrev_b32", v(hh), 5, v(lane))
    srh = k.salloc(); snh = k.salloc(); sst = k.salloc(); sntile = k.salloc()
    k.I("s_and_b32", s(srh), s(swave), 1)
    k.I("s_lshr_b32", s(snh), s(swave), 1)
    k.I("s_lshl_b32", s(sst), s(srt), 1)
    k.I("s_add_u32", s(sst), s(sst), s(srh))
    k.I("s_lshl_b32", s(sntile), s(snt), 1)
    k.I("s_add_u32", s(sntile), s(sntile), s(snh))
    if os.environ.get("PF3", "0") == "1":
        vT0 = k.valloc(); vd0 = k.valloc(2)
        k.I("s_lshl_b32", s(st0), s(sidx), 8)
        k.I("v_add_u32", v(vT0), s(st0), "v0")
        k.I("v_mov_b32", v(t0), hex(U1_OFF - U0_OFF - 3584 * 128))
        k.I("v_cmp_le_u32", "vcc", 3584, v(vT0))
        k.I("v_cndmask_b32", v(t0), 0, v(t0), "vcc")
        k.I("v_lshl_add_u32", v(t0), v(vT0), 7, v(t0))
        k.I("s_mul_i32", s(st1), s(sj), 8 * 56 * 1024)
        k.I("s_add_u32", s(st1), s(st1), hex(U0_OFF))
        k.vm("pf", "buffer_load_dword", v(vd0), v(t0), sr(sWS, 4), s(st1), mods="offen")
    v16 = k.valloc()
    k.I("v_lshlrev_b32", v(v16), 4, v(lane))
    hr = k.valloc(8, 4)
    k.I("s_mul_i32", s(soff), s(sst), 28 * 1024)
    k.I("s_lshl_b32", s(st0), s(sntile), 11)
    k.I("s_add_u32", s(soff), s(soff), s(st0))
    k.I("s_add_u32", s(soff), s(soff), hex(H_OFF))
    k.vm("h", "buffer_load_dwordx4", vr(hr, 4), v(v16), sr(sWS, 4), s(soff), mods="offen")
    k.vm("h", "buffer_load_dwordx4", vr(hr + 4, 4), v(v16), sr(sWS, 4), s(soff), mods="offen offset:1024")
    stp.stamp(0)
    aU = k.valloc(); vW = k.valloc()
    k.I("s_lshl_b32", s(st0), s(srh), 12)
    k.I("v_add_u32", v(aU), s(st0), v(v16))
    k.I("v_bfe_u32", v(t0), v(lane), 2, 2)
    k.I("v_lshl_add_u32", v(t0), v(hh), 2, v(t0))
    k.I("v_lshlrev_b32", v(vW), 7, v(t0))
    k.I("v_add_u32", v(vW), 16384, v(vW))
    k.I("v_bfe_u32", v(t0), v(lane), 4, 1)
    k.I("v_lshlrev_b32", v(t0), 1, v(t0))
    k.I("v_bfe_u32", v(t1), v(lane), 1, 1)
    k.I("v_add_u32", v(t0), v(t0), v(t1))
    k.I("s_lshl_b32", s(st0), s(snh), 2)
    k.I("v_add_u32", v(t0), s(st0), v(t0))
    k.I("v_bfe_u32", v(t1), v(lane), 3, 1)
    k.I("v_lshlrev_b32", v(t1), 2, v(t1))
    k.I("v_xor_b32", v(t0), v(t0), v(t1))
    k.I("v_lshl_add_u32", v(vW), v(t0), 4, v(vW))
    k.I("v_and_b32", v(t0), 1, v(lane))
    k.I("v_lshl_add_u32", v(vW), v(t0), 3, v(vW))
    aU2 = k.valloc(); vW2 = k.valloc()
    k.I("v_add_u32", v(aU2), 3 * SLOT, v(aU))
    k.I("v_add_u32", v(vW2), 3 * SLOT, v(vW))
    acc = k.valloc(16, 4)
    NB = 3
    uf = [[k.valloc(4) for _ in range(2)] for _ in range(NB)]; wf = [k.valloc(4) for _ in range(NB)]
    def rl(ks):
        c, j = ks // 4, ks % 4
        b = ks % NB
        sl = (c % NS)
        hi = sl >= 3
        so = (sl - (3 if hi else 0)) * SLOT
        out = []
        for ar_ in range(2):
            out.append(lambda ar_=ar_: k.lg(("f", ks), "ds_read_b128", vr(uf[b][ar_], 4), v(aU2 if hi else aU), mods=f"offset:{so + ar_ * 8192 + j * 1024}"))
        for beta in range(2):
            o = so + (16 * j + 8 * beta) * 128
            out.append(lambda o=o, beta=beta: k.lg(("f", ks), "ds_read_b64_tr_b16", vr(wf[b] + 2 * beta, 2), v(vW2 if hi else vW), mods=f"offset:{o}"))
        return out
    k.I("s_barrier")
    stp.stamp(1)
    for f in rl(0) + rl(1): f()
    NKS = NST * 4
    for ks in range(NKS):
        c, j = ks // 4, ks % 4
        b = ks % NB
        k.wait_lg(("f", ks))
        mf = [lambda ar_=ar_: k.I("v_mfma_f32_32x32x16_bf16", vr(acc, 16), vr(wf[b], 4), vr(uf[b][ar_], 4), 0 if (ks == 0 and ar_ == 0) else vr(acc, 16)) for ar_ in range(2)]
        fl = rl(ks + 2) if ks + 2 < NKS else []
        if j == 2 and ks + 2 < NKS: k.I("s_barrier")
        interleave(k, mf, fl)
    stp.stamp(2)
    k.wait_vm("h")
    tp = [k.valloc(2) for _ in range(4)]
    for j in range(8):
        T = tp[j % 4]
        k.I("v_lshlrev_b32", v(T), 16, v(hr + j))
        k.I("v_and_b32", v(T + 1), "0xffff0000", v(hr + j))
        k.I("v_pk_add_f32", vr(acc + 2 * j, 2), vr(acc + 2 * j, 2), vr(T, 2))
    P = k.valloc(8, 4)
    for j in range(8): k.I("v_cvt_pk_bf16_f32", v(P + j), v(acc + 2 * j), v(acc + 2 * j + 1))
    for kp in range(2):
        k.I("v_permlane32_swap_b32", v(P + 4 * kp), v(P + 4 * kp + 2))
        k.I("v_permlane32_swap_b32", v(P + 4 * kp + 1), v(P + 4 * kp + 3))
    vo = k.valloc()
    k.I("v_mul_u32_u24", v(vo), 896, v(l31))
    k.I("v_lshl_add_u32", v(vo), v(hh), 4, v(vo))
    k.I("s_mul_i32", s(soff), s(sst), 32 * 896)
    k.I("s_lshl_b32", s(st0), s(sntile), 6)
    k.I("s_add_u32", s(soff), s(soff), s(st0))
    for kp in range(2):
        k.I("buffer_store_dwordx4", vr(P + 4 * kp, 4), v(vo), sr(sOut, 4), s(soff), mods=f"offen offset:{32 * kp}")
    stp.stamp(3)
    if os.environ.get("SPIN"):
        ka, ja, kb, jb = [int(x) for x in os.environ["SPIN"].split(",")]
        sa_ = k.salloc(2); sb_ = k.salloc(2); sn_ = k.salloc(2); sq_ = k.salloc(2)
        lab = k.newlabel("spin"); out_ = k.newlabel("spun")
        k.I("s_or_b32", s(st0), "s2", s(swave))
        k.I("s_cmp_lg_u32", s(st0), 0)
        k.I("s_cbranch_scc1", out_)
        k.I("s_mov_b32", s(st0), hex(STAMP_OFF + ka * 256 * 64 + ja * 8))
        k.I("s_load_dwordx2", sr(sa_, 2), sr(pWS, 2), s(st0))
        k.I("s_mov_b32", s(st1), hex(STAMP_OFF + max(kb, 0) * 256 * 64 + jb * 8))
        if kb >= 0: k.I("s_load_dwordx2", sr(sb_, 2), sr(pWS, 2), s(st1))
        else: k.I("s_memrealtime", sr(sb_, 2))
        k.I("s_memrealtime", sr(sn_, 2))
        k.I("s_waitcnt", "lgkmcnt(0)")
        k.I("s_sub_u32", s(sa_), s(sb_), s(sa_))
        k.I("s_min_u32", s(sa_), s(sa_), 20000)
        k.I("s_add_u32", s(sn_), s(sn_), s(sa_))
        k.L(lab)
        k.I("s_memrealtime", sr(sq_, 2))
        k.I("s_waitcnt", "lgkmcnt(0)")
        k.I("s_sub_u32", s(sq_), s(sq_), s(sn_))
        k.I("s_cmp_lt_i32", s(sq_), 0)
        k.I("s_cbranch_scc1", lab)
        k.L(out_)
    k.L(R["done"])
    k.I("s_endpgm")
    k.lds = lds; k.threads = 512; k.grid = 224
    return k

def rest(Stamper):
    if os.environ.get("MERGE56", "0") == "1":
        return [gen_k2(Stamper), gen_k3(Stamper), gen_k4(Stamper), gen_k56(Stamper)]
    return [gen_k2(Stamper), gen_k3(Stamper), (gen_k4b if os.environ.get('K4B', '1') == '1' else gen_k4)(Stamper), gen_k5(Stamper), gen_k6(Stamper)]
```

```python
import sys, os
sys.path.insert(0, os.path.dirname(__file__))
from asmlib import *
from layout import *

NAME = "sequential_preLN__sliding_block__mixer_gmlp__prompt"
STAMPS = os.environ.get("GEN_STAMPS", "0") == "1"
WS_SIZE = 0x10000000

def srd(k, dst, base, size):
    k.I("s_mov_b32", s(dst), s(base))
    k.I("s_and_b32", s(dst + 1), s(base + 1), "0xffff")
    k.I("s_mov_b32", s(dst + 2), hex(size) if isinstance(size, int) else size)
    k.I("s_mov_b32", s(dst + 3), "0x20000")

class Stamper:
    def __init__(self, k, kidx, sWS, swave):
        self.k, self.kidx, self.sWS, self.swave = k, kidx, sWS, swave
        if STAMPS:
            self.st = k.salloc(2); self.vt = k.valloc(2); self.vo = k.valloc(1); self.ex = k.salloc(2)
    def tick(self, i):
        if not STAMPS or not os.environ.get("TICKS"): return
        if not hasattr(self, "tk"): self.tk = self.k.salloc(32, 4)
        self.k.I("s_memtime", sr(self.tk + 2 * i, 2))
        self.nt = max(getattr(self, "nt", 0), i + 1)
    def dump_ticks(self):
        if not STAMPS or not hasattr(self, "tk"): return
        k = self.k
        k.I("s_waitcnt", "lgkmcnt(0)")
        k.lgq = []
        k.I("s_lshl_b32", s(self.ex), "s2", 7)
        k.I("s_add_u32", s(self.ex), s(self.ex), hex(TICK_OFF + self.kidx * 256 * 128))
        k.I("s_cmp_lg_u32", s(self.swave), int(os.environ.get("TICKWAVE", "0")))
        k.I("s_cselect_b32", s(self.ex), "0x7ffffff0", s(self.ex))
        k.I("s_mov_b64", sr(self.st, 2), "exec")
        k.I("s_mov_b64", "exec", 1)
        k.I("v_mov_b32", v(self.vo), 0)
        for i in range(16):
            k.I("v_mov_b32", v(self.vt), s(self.tk + 2 * i))
            k.I("v_mov_b32", v(self.vt + 1), s(self.tk + 2 * i + 1))
            k.I("buffer_store_dwordx2", vr(self.vt, 2), v(self.vo), sr(self.sWS, 4), s(self.ex), mods=f"offen offset:{8 * i}")
            k.I("s_nop", 1)
        k.I("s_mov_b64", "exec", sr(self.st, 2))
    def stamp(self, j):
        if not STAMPS: return
        k = self.k
        k.I("s_memrealtime", sr(self.st, 2))
        k.I("s_lshl_b32", s(self.ex), "s2", 6)
        k.I("s_add_u32", s(self.ex), s(self.ex), hex(STAMP_OFF + self.kidx * 256 * 64 + j * 8))
        k.I("s_cmp_lg_u32", s(self.swave), 0)
        k.I("s_cselect_b32", s(self.ex), "0x7ffffff0", s(self.ex))
        k.I("s_waitcnt", "lgkmcnt(0)")
        k.lgq = []
        k.I("v_mov_b32", v(self.vt), s(self.st))
        k.I("v_mov_b32", v(self.vt + 1), s(self.st + 1))
        k.I("v_mov_b32", v(self.vo), 0)
        k.I("s_mov_b64", sr(self.st, 2), "exec")
        k.I("s_mov_b64", "exec", 1)
        k.I("buffer_store_dwordx2", vr(self.vt, 2), v(self.vo), sr(self.sWS, 4), s(self.ex), mods="offen")
        k.I("s_mov_b64", "exec", sr(self.st, 2))
        k.vmq.append("stamp")

class DbgStamper:
    LAST = {0: 3, 1: 2, 2: 3, 3: 5, 4: 3, 5: 3}
    def __init__(self, k, kidx, sWS, swave):
        self.k, self.kidx, self.swave = k, kidx, swave
        self.st = k.salloc(2); self.vt = k.valloc(2); self.vo = k.valloc(1); self.ex = k.salloc(2)
        self.pd = k.salloc(2); self.sD = k.salloc(4)
        k.I("s_memrealtime", sr(self.st, 2))
        k.I("s_load_dwordx2", sr(self.pd, 2), "s[0:1]", 72)
        self.t0 = k.salloc(2)
        k.I("s_waitcnt", "lgkmcnt(0)")
        k.I("s_mov_b32", s(self.t0), s(self.st))
        k.I("s_sub_u32", s(self.pd), s(self.pd), 512 * kidx)
        k.I("s_subb_u32", s(self.pd + 1), s(self.pd + 1), 0)
        srd(k, self.sD, self.pd, 512 * 5 + 256)
    def tick(self, i): pass
    def dump_ticks(self): pass
    def stamp(self, j):
        if j != self.LAST[self.kidx]: return
        k = self.k
        k.I("s_memrealtime", sr(self.st, 2))
        k.I("s_or_b32", s(self.ex), "s2", s(self.swave))
        k.I("s_cmp_lg_u32", s(self.ex), 0)
        k.I("s_cselect_b32", s(self.ex), "0x7ffffff0", 8 * self.kidx)
        k.I("s_waitcnt", "lgkmcnt(0)")
        k.lgq = []
        k.I("v_mov_b32", v(self.vt), s(self.t0))
        k.I("v_mov_b32", v(self.vt + 1), s(self.st))
        k.I("v_mov_b32", v(self.vo), 0)
        k.I("s_mov_b64", sr(self.st, 2), "exec")
        k.I("s_mov_b64", "exec", 1)
        for tg in range(6):
            k.I("buffer_store_dwordx2", vr(self.vt, 2), v(self.vo), sr(self.sD, 4), s(self.ex), mods=f"offen offset:{512 * tg}")
            k.vmq.append("stamp")
        k.I("s_mov_b64", "exec", sr(self.st, 2))

if os.environ.get("GEN_DBG"): Stamper = DbgStamper

def gen_k1():
    k = Kernel("k1_qkv_kernel")
    k.snext = 4; k.vnext = 1
    WREG = 0; WCH = 12288; XRING = 7 * WCH; XSL = 4096; NXS = 4
    TBL = XRING + 4 * NXS * XSL
    CWT = TBL; RT = TBL + 512; NMT = TBL + 1024; SQT = TBL + 1536
    ONES = TBL + 2048
    lds = ONES + 1024
    done = k.newlabel("done")
    k.I("s_cmp_ge_u32", "s2", 256)
    k.I("s_cbranch_scc1", done)
    pX = k.salloc(4); pWS = k.salloc(2)
    k.I("s_load_dwordx4", sr(pX, 4), "s[0:1]", 0)
    k.I("s_load_dwordx2", sr(pWS, 2), "s[0:1]", 80)
    sX = k.salloc(4); sW = k.salloc(4); sWS = k.salloc(4)
    swave = k.salloc(); srb = k.salloc(); shd = k.salloc(); st0 = k.salloc(); st1 = k.salloc(); soff = k.salloc()
    lane = k.valloc(); l31 = k.valloc(); hh = k.valloc(); t0 = k.valloc(); t1 = k.valloc(); t2 = k.valloc()
    k.I("v_lshrrev_b32", v(t0), 6, "v0")
    k.I("v_and_b32", v(lane), 63, "v0")
    k.I("v_readfirstlane_b32", s(swave), v(t0))
    import kernels2
    kernels2.map_rb_hd(k, srb, shd, st0, st1)
    stp = Stamper(k, 0, sWS, swave)
    sw3 = k.salloc()
    k.I("s_and_b32", s(sw3), s(swave), 3)
    l15 = k.valloc()
    k.I("v_and_b32", v(l15), 15, v(lane))
    k.I("s_waitcnt", "lgkmcnt(0)")
    srd(k, sW, pX + 2, 448 * 2688)
    srd(k, sX, pX, 2048 * 896)
    comp = k.newlabel("compute")
    k.I("s_cmp_lt_u32", s(swave), 4)
    k.I("s_cbranch_scc1", comp)
    vsave = k.vnext
    vXo = k.valloc(4)
    k.I("v_lshrrev_b32", v(t0), 3, v(lane))
    k.I("v_mul_u32_u24", v(t0), 896, v(t0))
    k.I("v_lshrrev_b32", v(t1), 4, v(lane))
    k.I("v_and_b32", v(t2), 7, v(lane))
    k.I("v_xor_b32", v(t1), v(t1), v(t2))
    k.I("v_lshl_add_u32", v(vXo), v(t1), 4, v(t0))
    k.I("v_xor_b32", v(t1), 4, v(t1))
    k.I("v_lshl_add_u32", v(vXo + 1), v(t1), 4, v(t0))
    k.I("v_add_u32", v(vXo + 1), 8 * 896, v(vXo + 1))
    k.I("v_add_u32", v(vXo + 2), 16 * 896, v(vXo))
    k.I("v_add_u32", v(vXo + 3), 16 * 896, v(vXo + 1))
    vWo = k.valloc(3)
    for b in range(3):
        k.I("v_add_u32", v(t0), 64 * b, v(lane))
        k.I("v_mul_u32_u24", v(t1), 171, v(t0))
        k.I("v_lshrrev_b32", v(t1), 11, v(t1))
        k.I("v_mul_u32_u24", v(t2), 12, v(t1))
        k.I("v_sub_u32", v(t0), v(t0), v(t2))
        k.I("v_mul_u32_u24", v(vWo + b), 2688, v(t1))
        k.I("v_lshrrev_b32", v(t2), 2, v(t0))
        k.I("v_mul_u32_u24", v(t2), 896, v(t2))
        k.I("v_and_b32", v(t0), 3, v(t0))
        k.I("v_lshl_add_u32", v(t2), v(t0), 4, v(t2))
        k.I("v_add_u32", v(vWo + b), v(vWo + b), v(t2))
        if os.environ.get("EXP_WCONT"):
            k.I("v_lshlrev_b32", v(vWo + b), 4, v(lane))
            k.I("v_add_u32", v(vWo + b), 1024 * b, v(vWo + b))
    sWb = k.salloc(); sm0 = k.salloc(); sXb = k.salloc(); sm0x = k.salloc()
    k.I("s_mul_i32", s(sWb), s(shd), 56)
    k.I("s_mul_i32", s(st0), s(sw3), 16 * 2688)
    k.I("s_add_u32", s(sWb), s(sWb), s(st0))
    k.I("s_mul_i32", s(sm0), s(sw3), 3 * 1024)
    k.I("s_lshl_b32", s(st0), s(srb), 7)
    k.I("s_lshl_b32", s(st1), s(sw3), 5)
    k.I("s_add_u32", s(st0), s(st0), s(st1))
    k.I("s_mul_i32", s(sXb), s(st0), 896)
    k.I("s_mul_i32", s(sm0x), s(sw3), NXS * XSL)
    k.I("s_add_u32", s(sm0x), s(sm0x), XRING)
    srot = k.salloc(); scp = k.salloc(); sa1 = k.salloc()
    k.I("s_lshl_b32", s(st0), s(srb), 1)
    k.I("s_add_u32", s(st0), s(st0), s(shd))
    k.I("s_mul_i32", s(st1), s(st0), 37)
    k.I("s_lshr_b32", s(st1), s(st1), 8)
    k.I("s_mul_i32", s(st1), s(st1), 7)
    k.I("s_sub_u32", s(srot), s(st0), s(st1))
    if not kernels2.rot_on(1): k.I("s_mov_b32", s(srot), 0)
    def wdma(c, b):
        if b == 0:
            kernels2.rot_index(k, scp, srot, c, 7)
            k.I("s_mul_i32", s(sa1), s(scp), 64 * 2688)
            k.I("s_add_u32", s(sa1), s(sa1), s(sWb))
        k.I("s_add_u32", "m0", s(sm0), hex(WREG + c * WCH + b * 1024))
        k.vm(("W", c), "buffer_load_dwordx4", v(vWo + b), sr(sW, 4), s(sa1), mods="offen lds")
    def xdma(c, j):
        if j == 0:
            kernels2.rot_index(k, scp, srot, c, 7)
            k.I("s_lshl_b32", s(soff), s(scp), 7)
            k.I("s_add_u32", s(soff), s(soff), s(sXb))
        k.I("s_add_u32", "m0", s(sm0x), hex((c % NXS) * XSL + j * 1024))
        k.vm(("X", c), "buffer_load_dwordx4", v(vXo + j), sr(sX, 4), s(soff), mods="offen lds")
    for c in range(2):
        for b in range(3): wdma(c, b)
        for j in range(4): xdma(c, j)
    for b in range(3): wdma(2, b)
    LT = os.environ.get("TICKWAVE", "0") != "0"
    if LT: stp.tick(0)
    for c in range(7):
        k.wait_vm([("W", c), ("X", c)])
        if LT and c < 5: stp.tick(1 + 3 * c)
        k.I("s_barrier")
        if LT and c < 5: stp.tick(2 + 3 * c)
        if c + 2 <= 6:
            for j in range(4): xdma(c + 2, j)
        if c + 3 <= 6:
            for b in range(3): wdma(c + 3, b)
        if c == 4 and os.environ.get("PFK1", "0") == "g":
            import kernels2
            kernels2.mall_prefetch(k, 16, 448 * 896, 0, 4, 4, sw3, lane, st0, t0, t1)
            kernels2.mall_prefetch(k, 32, 448 * 3584, 0, 13, 4, sw3, lane, st0, t0, t1)
        if c == 4 and os.environ.get("PFK1", "0") == "g2":
            import kernels2
            kernels2.mall_prefetch(k, 16, 448 * 896, 0, 4, 4, sw3, lane, st0, t0, t1)
            kernels2.mall_prefetch(k, 32, 448 * 3584, 0, 13, 4, sw3, lane, st0, t0, t1)
            kernels2.mall_prefetch(k, 40, 2048 * 4096, 0, 64, 4, sw3, lane, st0, t0, t1)
        if c == 4 and os.environ.get("PFK1", "0") == "1":
            import kernels2
            vTp = k.valloc()
            k.I("s_lshr_b32", s(st0), "s2", 3)
            k.I("s_lshl_b32", s(st0), s(st0), 8)
            k.I("v_subrev_u32", v(vTp), 256, "v0")
            k.I("v_add_u32", v(vTp), s(st0), v(vTp))
            k.I("v_lshlrev_b32", v(vTp), 7, v(vTp))
            kernels2.l2_prefetch(k, 16, 448 * 896, vTp, 8192, st0)
            kernels2.l2_prefetch(k, 32, 448 * 3584, vTp, 8192, st0)
        if LT and c < 5: stp.tick(3 + 3 * c)
    vTp = k.valloc()
    k.I("s_lshr_b32", s(st0), "s2", 3)
    k.I("s_lshl_b32", s(st0), s(st0), 8)
    k.I("v_subrev_u32", v(vTp), 256, "v0")
    k.I("v_add_u32", v(vTp), s(st0), v(vTp))
    k.I("v_lshlrev_b32", v(vTp), 7, v(vTp))
    import kernels2
    k.I("s_barrier")
    if LT:
        srd(k, sWS, pWS, WS_SIZE)
        stp.dump_ticks()
    k.I("s_endpgm")
    k.L(comp)
    k.vnext = vsave; k.vmq = []; k.lgq = []
    vpf = k.valloc(); vpd = k.valloc(4)
    k.I("s_lshr_b32", s(st0), "s2", 3)
    k.I("s_lshl_b32", s(st0), s(st0), 8)
    k.I("v_add_u32", v(vpf), s(st0), "v0")
    k.I("v_lshlrev_b32", v(vpf), 7, v(vpf))
    if os.environ.get("K1OWNPF"):
        k.I("buffer_load_dword", v(vpd), v(vpf), sr(sW, 4), 0, mods="offen")
        k.I("v_add_u32", v(vpf), 8192 * 128, v(vpf))
        k.I("buffer_load_dword", v(vpd + 1), v(vpf), sr(sW, 4), 0, mods="offen")
        k.I("s_and_b32", s(st0), "s2", 7)
        k.I("s_mul_i32", s(st0), s(st0), 256 * 896)
        k.I("v_subrev_u32", v(vpf), 9408 * 128, v(vpf))
        k.I("v_mov_b32", v(t0), hex(256 * 896))
        k.I("v_cmp_lt_u32", "vcc", v(vpf), v(t0))
        k.I("v_mov_b32", v(t1), "0x7fffff00")
        k.I("v_cndmask_b32", v(vpf), v(t1), v(vpf), "vcc")
        k.I("buffer_load_dword", v(vpd + 2), v(vpf), sr(sX, 4), s(st0), mods="offen")
    sidx1 = k.salloc()
    k.I("s_lshr_b32", s(sidx1), "s2", 3)
    import kernels2
    kernels2.code_prefetch(k, "k2_attn_kernel", sidx1, st0)
    if os.environ.get("PF2", "0") == "1":
        pp = k.salloc(2); sP = k.salloc(4); vT = k.valloc(); vd = k.valloc(8)
        k.I("s_lshr_b32", s(st0), "s2", 3)
        k.I("s_lshl_b32", s(st0), s(st0), 8)
        k.I("v_add_u32", v(vT), s(st0), "v0")
        k.I("v_lshlrev_b32", v(vT), 7, v(vT))
        k.I("s_getpc_b64", sr(pp, 2))
        k.I("s_and_b32", s(pp), s(pp), "0xffffff00")
        srd(k, sP, pp, "CODE_BYTES-4096")
        k.I("buffer_load_dword", v(vd), v(vT), sr(sP, 4), 0, mods="offen")
        for (ko, nbytes, n) in ((16, 448 * 896, 1), (32, 448 * 3584, 2)):
            k.I("s_load_dwordx2", sr(pp, 2), "s[0:1]", ko)
            k.I("s_waitcnt", "lgkmcnt(0)")
            srd(k, sP, pp, nbytes)
            for i in range(n):
                k.I("s_mov_b32", s(st0), hex(i * 8192 * 128))
                k.I("buffer_load_dword", v(vd + 1 + i + (0 if ko == 16 else 1)), v(vT), sr(sP, 4), s(st0), mods="offen")
        vG = k.valloc()
        k.I("s_lshl_b32", s(st0), "s2", 8)
        k.I("v_add_u32", v(vG), s(st0), "v0")
        k.I("v_lshlrev_b32", v(vG), 7, v(vG))
        for n_, (ko, nbytes) in enumerate(((40, 2048 * 4096), (56, 896 * 896))):
            k.I("s_load_dwordx2", sr(pp, 2), "s[0:1]", ko)
            k.I("s_waitcnt", "lgkmcnt(0)")
            srd(k, sP, pp, nbytes)
            k.I("buffer_load_dword", v(vd + 5 + n_), v(vG), sr(sP, 4), 0, mods="offen")
        srd(k, sP, pWS, 0x1C00000)
        k.I("v_lshlrev_b32", v(t0), 9, v(vT))
        k.I("buffer_load_dword", v(vd + 4), v(t0), sr(sP, 4), 0, mods="offen")
    sm0x = k.salloc()
    k.I("s_mul_i32", s(sm0x), s(swave), NXS * XSL)
    k.I("s_add_u32", s(sm0x), s(sm0x), XRING)
    aX = k.valloc(4); vW = k.valloc(); aG = k.valloc(4); vWj = k.valloc()
    gg = k.valloc()
    k.I("v_and_b32", v(l31), 31, "v0")
    k.I("v_bfe_u32", v(hh), "v0", 5, 1)
    k.I("v_lshrrev_b32", v(gg), 4, v(lane))
    k.I("v_bfe_u32", v(t0), v(l31), 1, 3)
    for j in range(4):
        k.I("v_add_u32", v(t1), 2 * j, v(hh))
        k.I("v_xor_b32", v(t1), v(t1), v(t0))
        k.I("v_lshlrev_b32", v(t1), 4, v(t1))
        k.I("v_lshl_add_u32", v(aX + j), v(l31), 7, v(t1))
        k.I("v_add_u32", v(aX + j), s(sm0x), v(aX + j))
    for rg in range(2):
        k.I("v_add_u32", v(t0), 16 * rg, v(l15))
        k.I("v_bfe_u32", v(t1), v(t0), 1, 3)
        for kk in range(2):
            k.I("v_add_u32", v(t2), 4 * kk, v(gg))
            k.I("v_xor_b32", v(t2), v(t2), v(t1))
            k.I("v_lshlrev_b32", v(t2), 4, v(t2))
            k.I("v_lshl_add_u32", v(aG + 2 * rg + kk), v(t0), 7, v(t2))
            k.I("v_add_u32", v(aG + 2 * rg + kk), s(sm0x), v(aG + 2 * rg + kk))
    k.I("v_bfe_u32", v(t0), "v0", 2, 2)
    k.I("v_lshl_add_u32", v(t1), v(hh), 3, v(t0))
    k.I("v_mul_u32_u24", v(t1), 192, v(t1))
    k.I("v_bfe_u32", v(t2), "v0", 4, 1)
    k.I("v_lshl_add_u32", v(t1), v(t2), 5, v(t1))
    k.I("v_and_b32", v(t2), 3, "v0")
    k.I("v_lshl_add_u32", v(vW), v(t2), 3, v(t1))
    k.I("v_lshl_add_u32", v(t0), v(gg), 3, v(t0))
    k.I("v_mul_u32_u24", v(t0), 192, v(t0))
    k.I("v_lshl_add_u32", v(vWj), v(t2), 3, v(t0))
    k.I("s_lshr_b32", s(st0), s(swave), 1)
    k.I("s_mul_i32", s(st0), s(st0), 32 * 192)
    k.I("s_and_b32", s(st1), s(swave), 1)
    k.I("s_mul_i32", s(st1), s(st1), 96)
    k.I("s_add_u32", s(st0), s(st0), s(st1))
    k.I("v_add_u32", v(vWj), s(st0), v(vWj))
    vW2 = k.valloc(); vWj2 = k.valloc()
    k.I("v_add_u32", v(vW2), 4 * WCH, v(vW))
    k.I("v_add_u32", v(vWj2), 4 * WCH, v(vWj))
    ones = k.valloc(4)
    vWq = k.valloc(); vInc = k.valloc()
    k.I("v_and_b32", v(t0), 19, v(lane))
    k.I("v_cmp_eq_u32", "vcc", 19, v(t0))
    k.I("v_mov_b32", v(t1), ONES)
    k.I("v_cndmask_b32", v(vWq), v(vW), v(t1), "vcc")
    k.I("v_mov_b32", v(t1), 16 * 192)
    k.I("v_cndmask_b32", v(vInc), v(t1), 0, "vcc")
    k.I("v_lshlrev_b32", v(t0), 4, v(lane))
    k.I("v_add_u32", v(t0), ONES, v(t0))
    for i in range(4): k.I("v_mov_b32", v(ones + i), "0x3f803f80")
    k.lg("z", "ds_write_b128", v(t0), vr(ones, 4))
    zz = k.valloc(2); vtb = k.valloc()
    k.I("v_mov_b32", v(zz), 0); k.I("v_mov_b32", v(zz + 1), 0)
    k.I("v_lshlrev_b32", v(vtb), 3, v(lane))
    k.I("v_add_u32", v(vtb), CWT, v(vtb))
    k.lg("z", "ds_write_b64", v(vtb), vr(zz, 2))
    accq = k.valloc(16, 4); acck = k.valloc(16, 4); accv = k.valloc(16, 4)
    NB = 3
    cacc = [k.valloc(4) for _ in range(3)]
    gacc = [k.valloc(4) for _ in range(2)]
    vtl_ = k.valloc(); vcwa = k.valloc(); vsqa = k.valloc(); vrow = k.valloc(); vh4 = k.valloc(); vh4w = k.valloc(); vl31 = k.valloc()
    k.I("v_lshlrev_b32", v(vtl_), 2, v(l15))
    k.I("v_add_u32", v(vtl_), TBL, v(vtl_))
    k.I("s_and_b32", s(st1), s(swave), 1)
    k.I("s_mul_i32", s(st1), s(st1), 192)
    k.I("v_add_u32", v(vcwa), s(st1), v(vtl_))
    k.I("s_lshl_b32", s(st0), s(swave), 7)
    k.I("v_add_u32", v(vsqa), s(st0), v(vtl_))
    k.I("v_add_u32", v(vsqa), SQT - TBL, v(vsqa))
    k.I("v_lshlrev_b32", v(vl31), 2, v(l31))
    k.I("v_add_u32", v(vl31), TBL, v(vl31))
    k.I("v_add_u32", v(vrow), s(st0), v(vl31))
    k.I("v_lshlrev_b32", v(vh4), 4, v(hh))
    k.I("v_add_u32", v(vh4), TBL, v(vh4))
    k.I("v_add_u32", v(vh4w), s(st0), v(vh4))
    vmark = k.vnext
    xf = [k.valloc(4) for _ in range(NB)]
    wf = [[k.valloc(4) for _ in range(3)] for _ in range(NB)]
    xs = [k.valloc(4) for _ in range(4)]
    wf2 = [k.valloc(4) for _ in range(3)]
    def read_list(ks):
        c, j = ks // 4, ks % 4
        b = ks % NB
        out = [lambda: k.lg(("f", ks), "ds_read_b128", vr(xf[b], 4), v(aX + j), mods=f"offset:{(c % NXS) * XSL}")]
        for beta in range(2):
            out.append(lambda beta=beta: k.lg(("f", ks), "ds_read_b64_tr_b16", vr(wf[b][0] + 2 * beta, 2), v(vWq), mods=f"offset:{beta * 4 * 192}"))
        out.append(lambda: k.I("v_add_u32", v(vWq), v(vInc), v(vWq)))
        for sg in range(1, 3):
            for beta in range(2):
                o = (c % 4) * WCH + (16 * j + 4 * beta) * 192 + 64 * sg
                base = vW if c < 4 else vW2
                out.append(lambda o=o, sg=sg, beta=beta, base=base: k.lg(("f", ks), "ds_read_b64_tr_b16", vr(wf[b][sg] + 2 * beta, 2), v(base), mods=f"offset:{o}"))
        return out
    def aux_reads(c):
        out = []
        for j in range(4):
            out.append(lambda j=j: k.lg(("g", c), "ds_read_b128", vr(xs[j], 4), v(aG + j), mods=f"offset:{(c % NXS) * XSL}"))
        for nt in range(3):
            for beta in range(2):
                o = (c % 4) * WCH + (4 * beta) * 192 + 32 * nt
                base = vWj if c < 4 else vWj2
                out.append(lambda o=o, nt=nt, beta=beta, base=base: k.lg(("cw", c), "ds_read_b64_tr_b16", vr(wf2[nt] + 2 * beta, 2), v(base), mods=f"offset:{o}"))
        return out
    k.I("s_waitcnt", "lgkmcnt(0)")
    srd(k, sWS, pWS, WS_SIZE)
    stp.stamp(0)
    k.wait_lg("z")
    k.I("s_barrier")
    stp.stamp(1)
    if os.environ.get("TICKWAVE", "0") != "0": stp.tick = lambda i: None
    stp.tick(0)
    m1 = k.salloc(2); m2 = k.salloc(2); m3 = k.salloc(2)
    k.I("v_and_b32", v(t0), 3, v(lane))
    k.I("v_cmp_eq_u32", sr(m1, 2), 1, v(t0))
    k.I("v_cmp_eq_u32", sr(m2, 2), 2, v(t0))
    k.I("v_cmp_eq_u32", sr(m3, 2), 3, v(t0))
    for f in read_list(0): f()
    for f in read_list(1): f()
    for ks in range(28):
        c, j = ks // 4, ks % 4
        b = ks % NB
        fill = []
        if ks + 2 < 28:
            fill += read_list(ks + 2)
        aux = []
        if j == 0: aux = aux_reads(c)[:4]
        if j == 1: aux = aux_reads(c)[4:]
        if os.environ.get("EXP_NOCOMP"):
            k.lgq = []
            if j == 1 and c < 6:
                k.I("s_barrier"); stp.tick(1 + c)
            continue
        k.wait_lg(("f", ks))
        mf = [
            lambda: k.I("v_mfma_f32_32x32x16_bf16", vr(accq, 16), vr(wf[b][0], 4), vr(xf[b], 4), 0 if ks == 0 else vr(accq, 16)),
            lambda: k.I("v_mfma_f32_32x32x16_bf16", vr(acck, 16), vr(wf[b][1], 4), vr(xf[b], 4), 0 if ks == 0 else vr(acck, 16)),
            lambda: k.I("v_mfma_f32_32x32x16_bf16", vr(accv, 16), vr(xf[b], 4), vr(wf[b][2], 4), 0 if ks == 0 else vr(accv, 16)),
        ]
        fl = fill + aux
        if ks == 27:
            vtl = vtl_;
            def fin1():
                k.I("s_mov_b32", "exec_lo", "0xffff")
                k.I("s_mov_b32", "exec_hi", 0)
                for nt in range(3):
                    k.lg("fin", "ds_add_f32", v(vcwa), v(cacc[nt]), mods=f"offset:{64 * nt}")
                k.I("s_mov_b64", "exec", -1)
            def fin2():
                for rg in range(2):
                    g_ = gacc[rg]
                    k.I("v_cndmask_b32", v(g_), v(g_), v(g_ + 1), sr(m1, 2))
                    k.I("v_cndmask_b32", v(g_), v(g_), v(g_ + 2), sr(m2, 2))
                    k.I("v_cndmask_b32", v(g_), v(g_), v(g_ + 3), sr(m3, 2))
                k.I("s_mov_b32", "exec_lo", "0x00f0000f")
                k.I("s_mov_b32", "exec_hi", "0xf0000f00")
                for rg in range(2):
                    k.lg("fin", "ds_write_b32", v(vsqa), v(gacc[rg]), mods=f"offset:{64 * rg}")
                k.I("s_mov_b64", "exec", -1)
            fl = [fin1, fin2]
        n = len(fl)
        cuts = [0, (n + 2) // 3, (2 * n + 2) // 3, n]
        for i in range(3):
            mf[i]()
            for f in fl[cuts[i]:cuts[i + 1]]: f()
        if j == 1 + (0 if c == 6 else 1):
            k.wait_lg(("g", c))
            for jj in range(4):
                k.I("v_mfma_f32_16x16x32_bf16", vr(gacc[jj >> 1], 4), vr(xs[jj], 4), vr(xs[jj], 4), 0 if (c == 0 and (jj & 1) == 0) else vr(gacc[jj >> 1], 4))
        if j == 2 + (0 if c == 6 else 1):
            k.wait_lg(("cw", c))
            for nt in range(3):
                k.I("v_mfma_f32_16x16x32_bf16", vr(cacc[nt], 4), vr(ones, 4), vr(wf2[nt], 4), 0 if c == 0 else vr(cacc[nt], 4))
        if j == 1 and c < 6:
            k.I("s_barrier")
            stp.tick(1 + c)
    stp.tick(13)
    stp.stamp(2)
    k.vnext = vmark
    sq = k.valloc(2); rl = k.valloc(2); nml = k.valloc(2); cwv = k.valloc(2)
    cwq = k.valloc(16, 4); cwk = k.valloc(16, 4); rv = k.valloc(16, 4); nv = k.valloc(16, 4)
    k.lg("sq", "ds_read_b32", v(sq), v(vrow), mods=f"offset:{SQT - TBL}")
    k.wait_lg("fin")
    k.I("s_barrier")
    for q in range(4):
        k.lg("cwq", "ds_read_b128", vr(cwq + 4 * q, 4), v(vh4), mods=f"offset:{CWT - TBL + 32 * q}")
    for q in range(4):
        k.lg("cwk", "ds_read_b128", vr(cwk + 4 * q, 4), v(vh4), mods=f"offset:{CWT - TBL + 128 + 32 * q}")
    k.lg("cwv", "ds_read_b32", v(cwv), v(vl31), mods=f"offset:{CWT - TBL + 256}")
    k.I("v_mov_b32", v(nml), v(accq + 12))
    k.I("v_mov_b32", v(nml + 1), v(accq + 12))
    k.I("v_permlane32_swap_b32", v(nml), v(nml + 1))
    k.I("v_mul_f32", v(nml), hex(f32(-1.0 / 448)), v(nml + 1))
    k.wait_lg("sq")
    k.I("v_mul_f32", v(sq), hex(f32(1.0 / 448)), v(sq))
    k.I("v_fma_f32", v(sq), f"-{v(nml)}", v(nml), v(sq))
    k.I("v_max_f32", v(sq), 0, v(sq))
    k.I("v_add_f32", v(sq), hex(f32(1e-5)), v(sq))
    k.I("v_rsq_f32", v(rl), v(sq))
    k.I("ds_write_b32", v(vrow), v(nml), mods=f"offset:{NMT - TBL}")
    k.I("ds_write_b32", v(vrow), v(rl), mods=f"offset:{RT - TBL}")
    k.lgq += ["w", "w"]
    for q in range(4):
        k.lg("rv", "ds_read_b128", vr(rv + 4 * q, 4), v(vh4w), mods=f"offset:{RT - TBL + 32 * q}")
        k.lg("rv", "ds_read_b128", vr(nv + 4 * q, 4), v(vh4w), mods=f"offset:{NMT - TBL + 32 * q}")
    vq = k.valloc(); vv_ = k.valloc()
    k.I("v_lshrrev_b32", v(t0), 4, v(l31))
    k.I("v_lshlrev_b32", v(vq), 10, v(t0))
    k.I("v_lshl_add_u32", v(vq), v(l15), 4, v(vq))
    k.I("v_lshl_add_u32", v(vq), v(hh), 9, v(vq))
    k.I("v_lshlrev_b32", v(vv_), 9, v(t0))
    k.I("v_lshl_add_u32", v(vv_), v(l15), 3, v(vv_))
    k.I("v_lshl_add_u32", v(vv_), v(hh), 7, v(vv_))
    sb = k.salloc()
    k.I("s_lshl_b32", s(sb), s(shd), 17)
    k.I("s_lshl_b32", s(st0), s(srb), 13)
    k.I("s_add_u32", s(sb), s(sb), s(st0))
    k.I("s_lshl_b32", s(st0), s(swave), 11)
    k.I("s_add_u32", s(sb), s(sb), s(st0))
    k.I("v_cmp_eq_u32", "vcc", 0, v(hh))
    pk = k.valloc(8, 4)
    for (acc, cw, off, tg) in ((accq, cwq, Q_OFF, "cwq"), (acck, cwk, K_OFF, "cwk")):
        k.wait_lg(tg)
        for j in range(8):
            k.I("v_pk_fma_f32", vr(acc + 2 * j, 2), vr(cw + 2 * j, 2), vr(nml, 2), vr(acc + 2 * j, 2), mods="op_sel_hi:[1,0,1]")
        for j in range(8):
            k.I("v_pk_mul_f32", vr(acc + 2 * j, 2), vr(acc + 2 * j, 2), vr(rl, 2), mods="op_sel_hi:[1,0]")
        for j in range(8):
            k.I("v_cvt_pk_bf16_f32", v(pk + j), v(acc + 2 * j), v(acc + 2 * j + 1))
        k.I("v_cndmask_b32", v(pk + 6), 0, v(pk + 6), "vcc")
        k.I("v_cndmask_b32", v(pk + 7), 0, v(pk + 7), "vcc")
        k.I("s_add_u32", s(soff), s(sb), hex(off))
        k.I("buffer_store_dwordx4", vr(pk, 4), v(vq), sr(sWS, 4), s(soff), mods="offen")
        k.I("buffer_store_dwordx4", vr(pk + 4, 4), v(vq), sr(sWS, 4), s(soff), mods="offen offset:256")
        pk = k.valloc(8, 4)
    k.I("s_waitcnt", "lgkmcnt(0)")
    k.lgq = []
    for j in range(8):
        k.I("v_pk_fma_f32", vr(accv + 2 * j, 2), vr(nv + 2 * j, 2), vr(cwv, 2), vr(accv + 2 * j, 2), mods="op_sel_hi:[1,0,1]")
    for j in range(8):
        k.I("v_pk_mul_f32", vr(accv + 2 * j, 2), vr(accv + 2 * j, 2), vr(rv + 2 * j, 2))
    for j in range(8):
        k.I("v_cvt_pk_bf16_f32", v(pk + j), v(accv + 2 * j), v(accv + 2 * j + 1))
    k.I("v_mov_b32", v(t0), "0x3f803f80")
    k.I("v_cmp_eq_u32", "vcc", 28, v(l31))
    k.I("v_cndmask_b32", v(t0), 0, v(t0), "vcc")
    k.I("v_cmp_gt_u32", "vcc", 28, v(l31))
    for j in range(8):
        k.I("v_cndmask_b32", v(pk + j), v(t0), v(pk + j), "vcc")
    k.I("s_add_u32", s(soff), s(sb), hex(V_OFF))
    for q in range(4):
        k.I("buffer_store_dwordx2", vr(pk + 2 * q, 2), v(vv_), sr(sWS, 4), s(soff), mods=f"offen offset:{(q >> 1) * 1024 + (q & 1) * 256}")
    stp.tick(15)
    stp.stamp(3)
    stp.dump_ticks()
    k.L(done)
    k.I("s_endpgm")
    k.lds = lds; k.threads = 512; k.grid = 256
    return k

import struct
def f32(x): return struct.unpack("<I", struct.pack("<f", x))[0]

def assemble(kernels):
    out = []
    hdr = open("cdna_kernels/" + NAME + ".s.ref").read().split("\n")
    for line in hdr:
        if line.startswith("; Override") or line.startswith("; grid=") or line.startswith("; @launch"): continue
        if not line.startswith(";"): break
        out.append(line)
    for k in kernels:
        out.append(f"; @launch kernel={k.name} grid=({k.grid},1,1) block=({k.threads},1,1) lds={k.lds}")
    out.append('.amdgcn_target "amdgcn-amd-amdhsa--gfx950"')
    out.append(".text")
    for k in kernels:
        n = k.fix_hazards()
        out.append(f".globl {k.name}")
        out.append(".p2align 8")
        out.append(f".type {k.name},@function")
        out.append(f"{k.name}:")
        out.append(k.render())
        out.append(f"{k.name}_end:")
        print(f"{k.name}: {len(k.ins)} instrs, hazard pads {n}, vgpr {k.vmax} agpr {k.amax} sgpr {k.smax} lds {k.lds}", file=sys.stderr)
    out.append("code_end:")
    out.append(f".set CODE_BYTES, code_end - {kernels[0].name}")
    out.append('.section .rodata,"a"')
    for k in kernels:
        out.append(".p2align 6")
        out.append(k.descriptor())
    return "\n".join(out) + "\n"

if __name__ == "__main__":
    import kernels2 as k2
    ks = [gen_k1()] + k2.rest(Stamper)
    path = sys.argv[1] if len(sys.argv) > 1 else "cdna_kernels/" + NAME + ".s"
    open(path, "w").write(assemble(ks))
```

```python
import os, struct
from asmlib import *
from layout import *
import kernels2
from kernels2 import srd, f32, WS_SIZE

def gen_k1c(Stamper):
    k = Kernel("k1_qkv_kernel")
    k.snext = 4; k.vnext = 1
    WREG = 0; WCH = 12288; XRING = 7 * WCH; XSL = 4096; NXS = 4
    TBL = XRING + 4 * NXS * XSL
    CWT = TBL; RT = TBL + 512; NMT = TBL + 1024; SQT = TBL + 1536
    ONES = TBL + 2048
    lds = ONES + 1024
    done = k.newlabel("done")
    k.I("s_cmp_ge_u32", "s2", 256)
    k.I("s_cbranch_scc1", done)
    pX = k.salloc(4); pWS = k.salloc(2)
    k.I("s_load_dwordx4", sr(pX, 4), "s[0:1]", 0)
    k.I("s_load_dwordx2", sr(pWS, 2), "s[0:1]", 80)
    sX = k.salloc(4); sW = k.salloc(4); sWS = k.salloc(4)
    swave = k.salloc(); srb = k.salloc(); sct = k.salloc(); st0 = k.salloc(); st1 = k.salloc(); soff = k.salloc()
    lane = k.valloc(); l31 = k.valloc(); hh = k.valloc(); t0 = k.valloc(); t1 = k.valloc(); t2 = k.valloc()
    k.I("v_lshrrev_b32", v(t0), 6, "v0")
    k.I("v_and_b32", v(lane), 63, "v0")
    k.I("v_readfirstlane_b32", s(swave), v(t0))
    kernels2.map_rb_hd(k, srb, sct, st0, st1)
    stp = Stamper(k, 0, sWS, swave)
    sw3 = k.salloc()
    k.I("s_and_b32", s(sw3), s(swave), 3)
    l15 = k.valloc()
    k.I("v_and_b32", v(l15), 15, v(lane))
    comp = k.newlabel("compute")
    k.I("s_cmp_lt_u32", s(swave), 4)
    k.I("s_cbranch_scc1", comp)
    vsave = k.vnext; ssave = k.snext
    vXo = k.valloc(4)
    k.I("v_lshrrev_b32", v(t0), 3, v(lane))
    k.I("v_mul_u32_u24", v(t0), 896, v(t0))
    k.I("v_lshrrev_b32", v(t1), 4, v(lane))
    k.I("v_and_b32", v(t2), 7, v(lane))
    k.I("v_xor_b32", v(t1), v(t1), v(t2))
    k.I("v_lshl_add_u32", v(vXo), v(t1), 4, v(t0))
    k.I("v_xor_b32", v(t1), 4, v(t1))
    k.I("v_lshl_add_u32", v(vXo + 1), v(t1), 4, v(t0))
    k.I("v_add_u32", v(vXo + 1), 8 * 896, v(vXo + 1))
    k.I("v_add_u32", v(vXo + 2), 16 * 896, v(vXo))
    k.I("v_add_u32", v(vXo + 3), 16 * 896, v(vXo + 1))
    vWo = k.valloc(3); oob = k.valloc()
    k.I("v_mov_b32", v(oob), "0x7fffff00")
    for b in range(3):
        k.I("v_add_u32", v(t0), 64 * b, v(lane))
        k.I("v_mul_u32_u24", v(t1), 171, v(t0))
        k.I("v_lshrrev_b32", v(t1), 11, v(t1))
        k.I("v_mul_u32_u24", v(t2), 12, v(t1))
        k.I("v_sub_u32", v(t0), v(t0), v(t2))
        k.I("v_mul_u32_u24", v(t1), 2688, v(t1))
        k.I("v_lshl_add_u32", v(t1), v(t0), 4, v(t1))
        k.I("v_cmp_gt_u32", "vcc", 11, v(t0))
        k.I("v_cndmask_b32", v(vWo + b), v(oob), v(t1), "vcc")
    sWb = k.salloc(); sm0 = k.salloc(); sXb = k.salloc(); sm0x = k.salloc()
    k.I("s_mul_i32", s(sWb), s(sct), 168)
    k.I("s_mul_i32", s(st0), s(sw3), 16 * 2688)
    k.I("s_add_u32", s(sWb), s(sWb), s(st0))
    k.I("s_mul_i32", s(sm0), s(sw3), 3 * 1024)
    k.I("s_lshl_b32", s(st0), s(srb), 7)
    k.I("s_lshl_b32", s(st1), s(sw3), 5)
    k.I("s_add_u32", s(st0), s(st0), s(st1))
    k.I("s_mul_i32", s(sXb), s(st0), 896)
    k.I("s_mul_i32", s(sm0x), s(sw3), NXS * XSL)
    k.I("s_add_u32", s(sm0x), s(sm0x), XRING)
    srot = k.salloc(); scp = k.salloc(); sa1 = k.salloc()
    k.I("s_lshl_b32", s(st0), s(srb), 1)
    k.I("s_add_u32", s(st0), s(st0), s(sct))
    k.I("s_mul_i32", s(st1), s(st0), 37)
    k.I("s_lshr_b32", s(st1), s(st1), 8)
    k.I("s_mul_i32", s(st1), s(st1), 7)
    k.I("s_sub_u32", s(srot), s(st0), s(st1))
    if not kernels2.rot_on(1): k.I("s_mov_b32", s(srot), 0)
    def wdma(c, b):
        if b == 0:
            kernels2.rot_index(k, scp, srot, c, 7)
            k.I("s_mul_i32", s(sa1), s(scp), 64 * 2688)
            k.I("s_add_u32", s(sa1), s(sa1), s(sWb))
        k.I("s_add_u32", "m0", s(sm0), hex(WREG + c * WCH + b * 1024))
        k.vm(("W", c), "buffer_load_dwordx4", v(vWo + b), sr(sW, 4), s(sa1), mods="offen lds")
    def xdma(c, j):
        if j == 0:
            kernels2.rot_index(k, scp, srot, c, 7)
            k.I("s_lshl_b32", s(soff), s(scp), 7)
            k.I("s_add_u32", s(soff), s(soff), s(sXb))
        k.I("s_add_u32", "m0", s(sm0x), hex((c % NXS) * XSL + j * 1024))
        k.vm(("X", c), "buffer_load_dwordx4", v(vXo + j), sr(sX, 4), s(soff), mods="offen lds")
    k.I("s_waitcnt", "lgkmcnt(0)")
    srd(k, sW, pX + 2, 448 * 2688)
    srd(k, sX, pX, 2048 * 896)
    for c in range(2):
        for b in range(3): wdma(c, b)
        for j in range(4): xdma(c, j)
    for b in range(3): wdma(2, b)
    for c in range(7):
        k.wait_vm([("W", c), ("X", c)])
        k.I("s_barrier")
        if c + 2 <= 6:
            for j in range(4): xdma(c + 2, j)
        if c + 3 <= 6:
            for b in range(3): wdma(c + 3, b)
    k.I("s_barrier")
    k.I("s_endpgm")
    k.L(comp)
    k.vnext = vsave; k.vmq = []; k.lgq = []
    sidx1 = k.salloc()
    k.I("s_lshr_b32", s(sidx1), "s2", 3)
    kernels2.code_prefetch(k, "k2_attn_kernel", sidx1, st0)
    sm0x = k.salloc()
    k.I("s_mul_i32", s(sm0x), s(swave), NXS * XSL)
    k.I("s_add_u32", s(sm0x), s(sm0x), XRING)
    aX = k.valloc(4); vW = k.valloc(); aG = k.valloc(4); vWj = k.valloc(); gg = k.valloc()
    k.I("v_and_b32", v(l31), 31, "v0")
    k.I("v_bfe_u32", v(hh), "v0", 5, 1)
    k.I("v_lshrrev_b32", v(gg), 4, v(lane))
    k.I("v_bfe_u32", v(t0), v(l31), 1, 3)
    for j in range(4):
        k.I("v_add_u32", v(t1), 2 * j, v(hh))
        k.I("v_xor_b32", v(t1), v(t1), v(t0))
        k.I("v_lshlrev_b32", v(t1), 4, v(t1))
        k.I("v_lshl_add_u32", v(aX + j), v(l31), 7, v(t1))
        k.I("v_add_u32", v(aX + j), s(sm0x), v(aX + j))
    for rg in range(2):
        k.I("v_add_u32", v(t0), 16 * rg, v(l15))
        k.I("v_bfe_u32", v(t1), v(t0), 1, 3)
        for kk in range(2):
            k.I("v_add_u32", v(t2), 4 * kk, v(gg))
            k.I("v_xor_b32", v(t2), v(t2), v(t1))
            k.I("v_lshlrev_b32", v(t2), 4, v(t2))
            k.I("v_lshl_add_u32", v(aG + 2 * rg + kk), v(t0), 7, v(t2))
            k.I("v_add_u32", v(aG + 2 * rg + kk), s(sm0x), v(aG + 2 * rg + kk))
    k.I("v_bfe_u32", v(t0), "v0", 2, 2)
    k.I("v_lshl_add_u32", v(t1), v(hh), 3, v(t0))
    k.I("v_mul_u32_u24", v(t1), 192, v(t1))
    k.I("v_bfe_u32", v(t2), "v0", 4, 1)
    k.I("v_lshl_add_u32", v(t1), v(t2), 5, v(t1))
    k.I("v_and_b32", v(t2), 3, "v0")
    k.I("v_lshl_add_u32", v(vW), v(t2), 3, v(t1))
    k.I("v_lshl_add_u32", v(t0), v(gg), 3, v(t0))
    k.I("v_mul_u32_u24", v(t0), 192, v(t0))
    k.I("v_lshl_add_u32", v(vWj), v(t2), 3, v(t0))
    k.I("s_lshr_b32", s(st0), s(swave), 1)
    k.I("s_mul_i32", s(st0), s(st0), 32 * 192)
    k.I("s_and_b32", s(st1), s(swave), 1)
    k.I("s_mul_i32", s(st1), s(st1), 96)
    k.I("s_add_u32", s(st0), s(st0), s(st1))
    k.I("v_add_u32", v(vWj), s(st0), v(vWj))
    vW2 = k.valloc(); vWj2 = k.valloc()
    k.I("v_add_u32", v(vW2), 4 * WCH, v(vW))
    k.I("v_add_u32", v(vWj2), 4 * WCH, v(vWj))
    ones = k.valloc(4); vWq = k.valloc(); vInc = k.valloc()
    k.I("v_and_b32", v(t0), 19, v(lane))
    k.I("v_cmp_eq_u32", "vcc", 19, v(t0))
    k.I("v_mov_b32", v(t1), ONES)
    k.I("v_cndmask_b32", v(vWq), v(vW), v(t1), "vcc")
    k.I("v_mov_b32", v(t1), 16 * 192)
    k.I("v_cndmask_b32", v(vInc), v(t1), 0, "vcc")
    k.I("v_lshlrev_b32", v(t0), 4, v(lane))
    k.I("v_add_u32", v(t0), ONES, v(t0))
    for i in range(4): k.I("v_mov_b32", v(ones + i), "0x3f803f80")
    k.lg("z", "ds_write_b128", v(t0), vr(ones, 4))
    zz = k.valloc(2); vtb = k.valloc()
    k.I("v_mov_b32", v(zz), 0); k.I("v_mov_b32", v(zz + 1), 0)
    k.I("v_lshlrev_b32", v(vtb), 3, v(lane))
    k.I("v_add_u32", v(vtb), CWT, v(vtb))
    k.lg("z", "ds_write_b64", v(vtb), vr(zz, 2))
    acc = [k.valloc(16, 4) for _ in range(3)]
    NB = 3
    cacc = [k.valloc(4) for _ in range(3)]
    gacc = [k.valloc(4) for _ in range(2)]
    vtl_ = k.valloc(); vcwa = k.valloc(); vsqa = k.valloc(); vrow = k.valloc(); vh4 = k.valloc(); vh4w = k.valloc(); vl31 = k.valloc()
    k.I("v_lshlrev_b32", v(vtl_), 2, v(l15))
    k.I("v_add_u32", v(vtl_), TBL, v(vtl_))
    k.I("s_and_b32", s(st1), s(swave), 1)
    k.I("s_mul_i32", s(st1), s(st1), 192)
    k.I("v_add_u32", v(vcwa), s(st1), v(vtl_))
    k.I("s_lshl_b32", s(st0), s(swave), 7)
    k.I("v_add_u32", v(vsqa), s(st0), v(vtl_))
    k.I("v_add_u32", v(vsqa), SQT - TBL, v(vsqa))
    k.I("v_lshlrev_b32", v(vl31), 2, v(l31))
    k.I("v_add_u32", v(vl31), TBL, v(vl31))
    k.I("v_add_u32", v(vrow), s(st0), v(vl31))
    k.I("v_lshlrev_b32", v(vh4), 4, v(hh))
    k.I("v_add_u32", v(vh4), TBL, v(vh4))
    k.I("v_add_u32", v(vh4w), s(st0), v(vh4))
    vq = k.valloc(); vv_ = k.valloc()
    k.I("v_lshrrev_b32", v(t0), 4, v(l31))
    k.I("v_lshlrev_b32", v(vq), 10, v(t0))
    k.I("v_lshl_add_u32", v(vq), v(l15), 4, v(vq))
    k.I("v_lshl_add_u32", v(vq), v(hh), 9, v(vq))
    k.I("v_lshlrev_b32", v(vv_), 9, v(t0))
    k.I("v_lshl_add_u32", v(vv_), v(l15), 3, v(vv_))
    k.I("v_lshl_add_u32", v(vv_), v(hh), 7, v(vv_))
    sb = k.salloc()
    k.I("s_mul_i32", s(sb), s(sct), 3 * 131072)
    k.I("s_lshl_b32", s(st0), s(srb), 13)
    k.I("s_add_u32", s(sb), s(sb), s(st0))
    k.I("s_lshl_b32", s(st0), s(swave), 11)
    k.I("s_add_u32", s(sb), s(sb), s(st0))
    m1 = k.salloc(2); m2 = k.salloc(2); m3 = k.salloc(2)
    k.I("v_and_b32", v(t0), 3, v(lane))
    k.I("v_cmp_eq_u32", sr(m1, 2), 1, v(t0))
    k.I("v_cmp_eq_u32", sr(m2, 2), 2, v(t0))
    k.I("v_cmp_eq_u32", sr(m3, 2), 3, v(t0))
    k.I("s_waitcnt", "lgkmcnt(0)")
    k.lgq = []
    srd(k, sWS, pWS, WS_SIZE)
    stp.stamp(0)
    vmark = k.vnext
    labB = k.newlabel("varB"); labC = k.newlabel("varC")
    k.I("s_cmp_ge_u32", s(sct), 11)
    k.I("s_cbranch_scc1", labC)
    k.I("s_cmp_eq_u32", s(sct), 10)
    k.I("s_cbranch_scc1", labB)

    def variant(types):
        k.vnext = vmark; k.lgq = []; k.vmq = []
        xf = [k.valloc(4) for _ in range(NB)]
        wf = [[k.valloc(4) for _ in range(3)] for _ in range(NB)]
        xs = [k.valloc(4) for _ in range(4)]
        wf2 = [k.valloc(4) for _ in range(3)]
        def read_list(ks):
            c, j = ks // 4, ks % 4
            b = ks % NB
            out = [lambda: k.lg(("f", ks), "ds_read_b128", vr(xf[b], 4), v(aX + j), mods=f"offset:{(c % NXS) * XSL}")]
            for beta in range(2):
                out.append(lambda beta=beta: k.lg(("f", ks), "ds_read_b64_tr_b16", vr(wf[b][0] + 2 * beta, 2), v(vWq), mods=f"offset:{beta * 4 * 192}"))
            out.append(lambda: k.I("v_add_u32", v(vWq), v(vInc), v(vWq)))
            for sg in range(1, 3):
                for beta in range(2):
                    o = (c % 4) * WCH + (16 * j + 4 * beta) * 192 + 56 * sg
                    base = vW if c < 4 else vW2
                    out.append(lambda o=o, sg=sg, beta=beta, base=base: k.lg(("f", ks), "ds_read_b64_tr_b16", vr(wf[b][sg] + 2 * beta, 2), v(base), mods=f"offset:{o}"))
            return out
        def aux_reads(c):
            out = []
            for j in range(4):
                out.append(lambda j=j: k.lg(("g", c), "ds_read_b128", vr(xs[j], 4), v(aG + j), mods=f"offset:{(c % NXS) * XSL}"))
            for nt in range(3):
                for beta in range(2):
                    o = (c % 4) * WCH + (4 * beta) * 192 + 32 * nt
                    base = vWj if c < 4 else vWj2
                    out.append(lambda o=o, nt=nt, beta=beta, base=base: k.lg(("cw", c), "ds_read_b64_tr_b16", vr(wf2[nt] + 2 * beta, 2), v(base), mods=f"offset:{o}"))
            return out
        k.I("s_barrier")
        stp.stamp(1)
        for f in read_list(0): f()
        for f in read_list(1): f()
        for ks in range(28):
            c, j = ks // 4, ks % 4
            b = ks % NB
            fill = read_list(ks + 2) if ks + 2 < 28 else []
            aux = []
            if j == 0: aux = aux_reads(c)[:4]
            if j == 1: aux = aux_reads(c)[4:]
            k.wait_lg(("f", ks))
            mf = []
            for sg in range(3):
                A, B = (wf[b][sg], xf[b]) if types[sg] == "k" else (xf[b], wf[b][sg])
                mf.append(lambda sg=sg, A=A, B=B: k.I("v_mfma_f32_32x32x16_bf16", vr(acc[sg], 16), vr(A, 4), vr(B, 4), 0 if ks == 0 else vr(acc[sg], 16)))
            fl = fill + aux
            if ks == 27:
                def fin1():
                    k.I("s_mov_b32", "exec_lo", "0xffff")
                    k.I("s_mov_b32", "exec_hi", 0)
                    for nt in range(3):
                        k.lg("fin", "ds_add_f32", v(vcwa), v(cacc[nt]), mods=f"offset:{64 * nt}")
                    k.I("s_mov_b64", "exec", -1)
                def fin2():
                    for rg in range(2):
                        g_ = gacc[rg]
                        k.I("v_cndmask_b32", v(g_), v(g_), v(g_ + 1), sr(m1, 2))
                        k.I("v_cndmask_b32", v(g_), v(g_), v(g_ + 2), sr(m2, 2))
                        k.I("v_cndmask_b32", v(g_), v(g_), v(g_ + 3), sr(m3, 2))
                    k.I("s_mov_b32", "exec_lo", "0x00f0000f")
                    k.I("s_mov_b32", "exec_hi", "0xf0000f00")
                    for rg in range(2):
                        k.lg("fin", "ds_write_b32", v(vsqa), v(gacc[rg]), mods=f"offset:{64 * rg}")
                    k.I("s_mov_b64", "exec", -1)
                fl = [fin1, fin2]
            n = len(fl)
            cuts = [0, (n + 2) // 3, (2 * n + 2) // 3, n]
            for i in range(3):
                mf[i]()
                for f in fl[cuts[i]:cuts[i + 1]]: f()
            if j == 1 + (0 if c == 6 else 1):
                k.wait_lg(("g", c))
                for jj in range(4):
                    k.I("v_mfma_f32_16x16x32_bf16", vr(gacc[jj >> 1], 4), vr(xs[jj], 4), vr(xs[jj], 4), 0 if (c == 0 and (jj & 1) == 0) else vr(gacc[jj >> 1], 4))
            if j == 2 + (0 if c == 6 else 1):
                k.wait_lg(("cw", c))
                for nt in range(3):
                    k.I("v_mfma_f32_16x16x32_bf16", vr(cacc[nt], 4), vr(ones, 4), vr(wf2[nt], 4), 0 if c == 0 else vr(cacc[nt], 4))
            if j == 1 and c < 6:
                k.I("s_barrier")
        stp.stamp(2)
        k.vnext = vmark
        sq = k.valloc(2); rl = k.valloc(2); nml = k.valloc(2)
        cwb = [k.valloc(16, 4) for _ in range(3)]
        rv = k.valloc(16, 4); nv = k.valloc(16, 4)
        k.lg("sq", "ds_read_b32", v(sq), v(vrow), mods=f"offset:{SQT - TBL}")
        if types[0] == "v":
            k.I("s_mov_b32", "exec_lo", hex(1 << 28))
            k.I("s_mov_b32", "exec_hi", hex(1 << 28))
            for q in range(4):
                k.lg("ms", "ds_write_b128", v(vh4w), vr(acc[0] + 4 * q, 4), mods=f"offset:{NMT - TBL + 32 * q}")
            k.I("s_mov_b64", "exec", -1)
            k.lg("msr", "ds_read_b32", v(nml + 1), v(vrow), mods=f"offset:{NMT - TBL}")
        k.wait_lg("fin")
        k.I("s_barrier")
        for sg in range(3):
            if types[sg] == "k":
                for q in range(4):
                    k.lg(("cw", sg), "ds_read_b128", vr(cwb[sg] + 4 * q, 4), v(vh4), mods=f"offset:{CWT - TBL + 112 * sg + 32 * q}")
            else:
                k.lg(("cw", sg), "ds_read_b32", v(cwb[sg]), v(vl31), mods=f"offset:{CWT - TBL + 112 * sg}")
        if types[0] == "k":
            k.I("v_mov_b32", v(nml), v(acc[0] + 12))
            k.I("v_mov_b32", v(nml + 1), v(acc[0] + 12))
            k.I("v_permlane32_swap_b32", v(nml), v(nml + 1))
        else:
            k.wait_lg("msr")
        k.I("v_mul_f32", v(nml), hex(f32(-1.0 / 448)), v(nml + 1))
        k.wait_lg("sq")
        k.I("v_mul_f32", v(sq), hex(f32(1.0 / 448)), v(sq))
        k.I("v_fma_f32", v(sq), f"-{v(nml)}", v(nml), v(sq))
        k.I("v_max_f32", v(sq), 0, v(sq))
        k.I("v_add_f32", v(sq), hex(f32(1e-5)), v(sq))
        k.I("v_rsq_f32", v(rl), v(sq))
        if "v" in types:
            k.lg("w", "ds_write_b32", v(vrow), v(nml), mods=f"offset:{NMT - TBL}")
            k.lg("w", "ds_write_b32", v(vrow), v(rl), mods=f"offset:{RT - TBL}")
            for q in range(4):
                k.lg("rv", "ds_read_b128", vr(rv + 4 * q, 4), v(vh4w), mods=f"offset:{RT - TBL + 32 * q}")
                k.lg("rv", "ds_read_b128", vr(nv + 4 * q, 4), v(vh4w), mods=f"offset:{NMT - TBL + 32 * q}")
        mk = k.salloc(2); mv = k.salloc(2)
        k.I("v_cmp_eq_u32", sr(mk, 2), 0, v(hh))
        k.I("v_cmp_gt_u32", sr(mv, 2), 28, v(l31))
        padv = k.valloc()
        k.I("v_mov_b32", v(padv), "0x3f803f80")
        k.I("v_cmp_eq_u32", "vcc", 28, v(l31))
        k.I("v_cndmask_b32", v(padv), 0, v(padv), "vcc")
        pks = [k.valloc(8, 4) for _ in range(2)]
        for sg in range(3):
            A = acc[sg]; pk = pks[sg & 1]
            k.wait_lg(("cw", sg))
            if types[sg] == "k":
                for j in range(8):
                    k.I("v_pk_fma_f32", vr(A + 2 * j, 2), vr(cwb[sg] + 2 * j, 2), vr(nml, 2), vr(A + 2 * j, 2), mods="op_sel_hi:[1,0,1]")
                for j in range(8):
                    k.I("v_pk_mul_f32", vr(A + 2 * j, 2), vr(A + 2 * j, 2), vr(rl, 2), mods="op_sel_hi:[1,0]")
                for j in range(8):
                    k.I("v_cvt_pk_bf16_f32", v(pk + j), v(A + 2 * j), v(A + 2 * j + 1))
                k.I("v_cndmask_b32", v(pk + 6), 0, v(pk + 6), sr(mk, 2))
                k.I("v_cndmask_b32", v(pk + 7), 0, v(pk + 7), sr(mk, 2))
                k.I("s_add_u32", s(soff), s(sb), hex(sg * 131072))
                k.I("buffer_store_dwordx4", vr(pk, 4), v(vq), sr(sWS, 4), s(soff), mods="offen")
                k.I("buffer_store_dwordx4", vr(pk + 4, 4), v(vq), sr(sWS, 4), s(soff), mods="offen offset:256")
            else:
                k.wait_lg("rv")
                for j in range(8):
                    k.I("v_pk_fma_f32", vr(A + 2 * j, 2), vr(nv + 2 * j, 2), vr(cwb[sg], 2), vr(A + 2 * j, 2), mods="op_sel_hi:[1,0,1]")
                for j in range(8):
                    k.I("v_pk_mul_f32", vr(A + 2 * j, 2), vr(A + 2 * j, 2), vr(rv + 2 * j, 2))
                for j in range(8):
                    k.I("v_cvt_pk_bf16_f32", v(pk + j), v(A + 2 * j), v(A + 2 * j + 1))
                for j in range(8):
                    k.I("v_cndmask_b32", v(pk + j), v(padv), v(pk + j), sr(mv, 2))
                k.I("s_add_u32", s(soff), s(sb), hex(sg * 131072))
                for q in range(4):
                    k.I("buffer_store_dwordx2", vr(pk + 2 * q, 2), v(vv_), sr(sWS, 4), s(soff), mods=f"offen offset:{(q >> 1) * 1024 + (q & 1) * 256}")
        stp.stamp(3)
        k.I("s_endpgm")
    snext0 = k.snext
    variant("kkk")
    k.L(labB); k.snext = snext0
    variant("kkv")
    k.L(labC); k.snext = snext0
    variant("vvv")
    k.L(done)
    k.I("s_endpgm")
    k.lds = lds; k.threads = 512; k.grid = 256
    return k
```

```python
import os, struct, math
from asmlib import *
from layout import *
WS_SIZE = 0x10000000
def f32(x): return struct.unpack("<I", struct.pack("<f", x))[0]

def srd(k, dst, base, size):
    k.I("s_mov_b32", s(dst), s(base))
    k.I("s_and_b32", s(dst + 1), s(base + 1), "0xffff")
    k.I("s_mov_b32", s(dst + 2), hex(size) if isinstance(size, int) else size)
    k.I("s_mov_b32", s(dst + 3), "0x20000")

def gen_k2(Stamper):
    k = Kernel("k2_attn_kernel")
    k.snext = 4; k.vnext = 1
    KREG = 0; VREG = 24576
    lds = 49152
    done = k.newlabel("done")
    k.I("s_cmp_ge_u32", "s2", 256)
    k.I("s_cbranch_scc1", done)
    pWS = k.salloc(2); pPo = k.salloc(2); pPi = k.salloc(2)
    k.I("s_load_dwordx2", sr(pWS, 2), "s[0:1]", 80)
    k.I("s_load_dwordx2", sr(pPo, 2), "s[0:1]", 16)
    k.I("s_load_dwordx2", sr(pPi, 2), "s[0:1]", 32)
    sWS = k.salloc(4); sPo = k.salloc(4); sPi = k.salloc(4)
    swave = k.salloc(); srb = k.salloc(); shd = k.salloc(); st0 = k.salloc(); st1 = k.salloc(); soff = k.salloc()
    lane = k.valloc(); t0 = k.valloc(); t1 = k.valloc(); l15 = k.valloc(); gg = k.valloc()
    k.I("v_lshrrev_b32", v(t0), 6, "v0")
    k.I("v_and_b32", v(lane), 63, "v0")
    k.I("v_readfirstlane_b32", s(swave), v(t0))
    map_rb_hd(k, srb, shd, st0, st1)
    stp = Stamper(k, 1, sWS, swave)
    v16 = k.valloc()
    k.I("v_lshlrev_b32", v(v16), 4, v(lane))
    sb = k.salloc(); sm = k.salloc(); s16q = k.salloc()
    k.I("s_lshl_b32", s(sb), s(shd), 17)
    k.I("s_lshl_b32", s(st0), s(srb), 13)
    k.I("s_add_u32", s(sb), s(sb), s(st0))
    k.I("s_mul_i32", s(sm), s(swave), 3072)
    k.I("s_lshl_b32", s(s16q), s(srb), 3)
    k.I("s_add_u32", s(s16q), s(s16q), s(swave))
    k.I("s_waitcnt", "lgkmcnt(0)")
    srd(k, sWS, pWS, WS_SIZE)
    srd(k, sPo, pPo, 448 * 896)
    srd(k, sPi, pPi, 448 * 3584)
    qf = k.valloc(4)
    k.I("s_lshl_b32", s(st0), s(swave), 10)
    k.I("s_add_u32", s(st0), s(st0), s(sb))
    k.I("s_add_u32", s(soff), s(st0), hex(Q_OFF))
    k.vm("q", "buffer_load_dwordx4", vr(qf, 4), v(v16), sr(sWS, 4), s(soff), mods="offen")
    k.I("s_add_u32", s(st1), s(sb), s(sm))
    for (reg, off) in ((KREG, K_OFF), (VREG, V_OFF)):
        for i in range(3):
            k.I("s_add_u32", s(soff), s(st1), hex(off - 16384 + i * 1024))
            k.I("s_add_u32", "m0", s(sm), hex(reg + i * 1024))
            k.vm("kv", "buffer_load_dwordx4", v(v16), sr(sWS, 4), s(soff), mods="offen lds")
    sidx2 = k.salloc()
    k.I("s_lshr_b32", s(sidx2), "s2", 3)
    code_prefetch(k, "k3_wo_kernel", sidx2, st0)
    stp.stamp(0)
    k.I("v_and_b32", v(l15), 15, v(lane))
    k.I("v_lshrrev_b32", v(gg), 4, v(lane))
    M = [k.salloc(2) for _ in range(4)]
    k.I("v_lshlrev_b32", v(t0), 2, v(gg))
    for i in range(4):
        k.I("v_add_u32", v(t1), i, v(t0))
        k.I("v_cmp_gt_u32", sr(M[i], 2), v(t1), v(l15))
    aK = k.valloc(); aV = k.valloc()
    k.I("s_lshl_b32", s(st0), s(swave), 10)
    k.I("v_add_u32", v(aK), s(st0), v(v16))
    k.I("v_lshlrev_b32", v(aV), 3, v(lane))
    k.I("s_add_u32", s(st0), s(st0), VREG)
    k.I("v_add_u32", v(aV), s(st0), v(aV))
    S = k.valloc(68, 4)
    kf = [k.valloc(4) for _ in range(6)]
    neg = k.valloc()
    k.I("v_mov_b32", v(neg), hex(f32(-1e30)))
    k.wait_vm(["q", "kv"])
    k.I("s_barrier")
    stp.stamp(1)
    NKF = 6
    for j in range(min(NKF, 17)):
        k.lg(("k", j), "ds_read_b128", vr(kf[j % NKF], 4), v(aK), mods=f"offset:{j * 1024}")
    for j in range(17):
        k.wait_lg(("k", j))
        k.I("v_mfma_f32_16x16x32_bf16", vr(S + 4 * j, 4), vr(kf[j % NKF], 4), vr(qf, 4), 0)
        if j + NKF < 17:
            k.lg(("k", j + NKF), "ds_read_b128", vr(kf[j % NKF], 4), v(aK), mods=f"offset:{(j + NKF) * 1024}")
    if os.environ.get("PFK2", "1") == "1":
        vd2 = k.valloc(2)
        k.I("s_lshl_b32", s(st0), s(sidx2), 3)
        k.I("s_add_u32", s(st0), s(st0), s(swave))
        k.I("s_mul_i32", s(st1), s(st0), 13 * 128)
        k.I("v_lshlrev_b32", v(t0), 7, v(lane))
        k.I("v_mov_b32", v(t1), "0x7fffff00")
        k.I("v_cmp_gt_u32", "vcc", 13, v(lane))
        k.I("v_cndmask_b32", v(t0), v(t1), v(t0), "vcc")
        k.vm("pf", "buffer_load_dword", v(vd2), v(t0), sr(sPo, 4), s(st1), mods="offen")
        k.I("s_mul_i32", s(st1), s(st0), 25)
        k.I("v_add_u32", v(t0), s(st1), v(lane))
        k.I("v_mul_u32_u24", v(t1), 37450, v(t0))
        k.I("v_lshrrev_b32", v(t1), 19, v(t1))
        k.I("v_mul_u32_u24", v(vd2 + 1), 14, v(t1))
        k.I("v_sub_u32", v(t0), v(t0), v(vd2 + 1))
        k.I("v_mul_u32_u24", v(t1), 3584, v(t1))
        k.I("v_lshl_add_u32", v(t1), v(t0), 7, v(t1))
        k.I("v_add_u32", v(vd2 + 1), 1792 - 896, v(t1))
        k.I("v_cmp_le_u32", "vcc", 7, v(t0))
        k.I("v_cndmask_b32", v(t1), v(t1), v(vd2 + 1), "vcc")
        k.I("v_mov_b32", v(t0), "0x7fffff00")
        k.I("v_cmp_gt_u32", "vcc", 25, v(lane))
        k.I("v_cndmask_b32", v(t1), v(t0), v(t1), "vcc")
        k.I("s_and_b32", s(st1), "s2", 1)
        k.I("s_mul_i32", s(st1), s(st1), 896)
        k.vm("pf", "buffer_load_dword", v(vd2 + 1), v(t1), sr(sPi, 4), s(st1), mods="offen")
    vf = k.valloc(9 * 2 * 4, 4)
    def vread(kp):
        for dt in range(2):
            for beta in range(2):
                tile = min(2 * kp + beta, 16)
                k.lg(("v", kp), "ds_read_b64", vr(vf + (kp * 2 + dt) * 4 + 2 * beta, 2), v(aV), mods=f"offset:{tile * 1024 + dt * 512}")
    for kp in range(3): vread(kp)
    for i in range(4):
        k.I("v_cndmask_b32", v(S + i), v(neg), v(S + i), sr(M[i], 2))
        k.I("v_cndmask_b32", v(S + 64 + i), v(S + 64 + i), v(neg), sr(M[i], 2))
    nofix = k.newlabel("nofix")
    k.I("s_cmp_ge_u32", s(s16q), 16)
    k.I("s_cbranch_scc1", nofix)
    k.I("s_sub_u32", s(st0), 16, s(s16q))
    for j in range(16):
        lab = k.newlabel("sk")
        k.I("s_cmp_le_u32", s(st0), j)
        k.I("s_cbranch_scc1", lab)
        for i in range(4): k.I("v_mov_b32", v(S + 4 * j + i), v(neg))
        k.L(lab)
    k.L(nofix)
    mx = k.valloc(4)
    for c in range(4):
        k.I("v_max3_f32", v(mx + c), v(S + c * 17), v(S + c * 17 + 1), v(S + c * 17 + 2))
    for r in range(7):
        for c in range(4):
            b = c * 17 + 3 + 2 * r
            k.I("v_max3_f32", v(mx + c), v(mx + c), v(S + b), v(S + b + 1))
    k.I("v_max3_f32", v(mx), v(mx), v(mx + 1), v(mx + 2))
    k.I("v_max_f32", v(mx), v(mx), v(mx + 3))
    for sw in ("v_permlane16_swap_b32", "v_permlane32_swap_b32"):
        k.I("v_mov_b32", v(mx + 1), v(mx))
        k.I(sw, v(mx), v(mx + 1))
        k.I("v_max_f32", v(mx), v(mx), v(mx + 1))
    cs = 28 ** -0.5 * math.log2(math.e)
    sc = k.salloc()
    k.I("s_mov_b32", s(sc), hex(f32(cs)))
    k.I("v_mul_f32", v(mx), hex(f32(-cs)), v(mx))
    for kp in range(3, 6): vread(kp)
    P = k.valloc(36, 4)
    k.I("v_mov_b32", v(P + 34), 0); k.I("v_mov_b32", v(P + 35), 0)
    O = [k.valloc(4), k.valloc(4)]
    def softmax_tile(j):
        for i in range(4): k.I("v_fma_f32", v(S + 4 * j + i), v(S + 4 * j + i), s(sc), v(mx))
        for i in range(4): k.I("v_exp_f32", v(S + 4 * j + i), v(S + 4 * j + i))
    def pack_tile(j):
        k.I("v_cvt_pk_bf16_f32", v(P + 2 * j), v(S + 4 * j), v(S + 4 * j + 1))
        k.I("v_cvt_pk_bf16_f32", v(P + 2 * j + 1), v(S + 4 * j + 2), v(S + 4 * j + 3))
    for kp in range(9):
        tiles = [2 * kp, 2 * kp + 1] if kp < 8 else [16]
        for j in tiles: softmax_tile(j)
        for j in tiles: pack_tile(j)
        if kp == 2:
            for q in range(6, 9): vread(q)
        if kp >= 1:
            q = kp - 1
            k.wait_lg(("v", q))
            for dt in range(2):
                k.I("v_mfma_f32_16x16x32_bf16", vr(O[dt], 4), vr(vf + (q * 2 + dt) * 4, 4), vr(P + 4 * q, 4), 0 if q == 0 else vr(O[dt], 4))
    k.wait_lg(("v", 8))
    for dt in range(2):
        k.I("v_mfma_f32_16x16x32_bf16", vr(O[dt], 4), vr(vf + (8 * 2 + dt) * 4, 4), vr(P + 32, 4), vr(O[dt], 4))
    la = k.valloc(); lb = k.valloc()
    k.I("v_mov_b32", v(la), v(O[1])); k.I("v_mov_b32", v(lb), v(O[1]))
    k.I("v_permlane32_swap_b32", v(la), v(lb))
    k.I("v_mov_b32", v(la), v(lb))
    k.I("v_permlane16_swap_b32", v(la), v(lb))
    k.I("v_rcp_f32", v(lb), v(lb))
    for dt in range(2):
        for i in range(4): k.I("v_mul_f32", v(O[dt] + i), v(O[dt] + i), v(lb))
    pk = k.valloc(4)
    for dt in range(2):
        k.I("v_cvt_pk_bf16_f32", v(pk + 2 * dt), v(O[dt]), v(O[dt] + 1))
        k.I("v_cvt_pk_bf16_f32", v(pk + 2 * dt + 1), v(O[dt] + 2), v(O[dt] + 3))
    k.I("v_cmp_gt_u32", "vcc", 3, v(gg))
    k.I("v_cndmask_b32", v(pk + 2), 0, v(pk + 2), "vcc")
    k.I("v_cndmask_b32", v(pk + 3), 0, v(pk + 3), "vcc")
    vo = k.valloc()
    k.I("s_and_b32", s(st0), s(swave), 1)
    k.I("s_lshl_b32", s(st0), s(st0), 8)
    k.I("v_lshlrev_b32", v(vo), 4, v(l15))
    k.I("v_add_u32", v(vo), s(st0), v(vo))
    k.I("v_lshrrev_b32", v(t0), 1, v(gg))
    k.I("v_lshl_add_u32", v(vo), v(t0), 9, v(vo))
    k.I("v_and_b32", v(t0), 1, v(gg))
    k.I("v_lshl_add_u32", v(vo), v(t0), 3, v(vo))
    k.I("s_lshl_b32", s(st0), s(srb), 2)
    k.I("s_lshr_b32", s(st1), s(swave), 1)
    k.I("s_add_u32", s(st0), s(st0), s(st1))
    k.I("s_lshl_b32", s(st0), s(st0), 15)
    k.I("s_lshl_b32", s(st1), s(shd), 11)
    k.I("s_add_u32", s(st0), s(st0), s(st1))
    k.I("s_add_u32", s(soff), s(st0), hex(O_OFF))
    for dt in range(2):
        k.I("buffer_store_dwordx2", vr(pk + 2 * dt, 2), v(vo), sr(sWS, 4), s(soff), mods=f"offen offset:{dt * 1024}")
    stp.stamp(2)
    k.L(done)
    k.I("s_endpgm")
    k.lds = lds; k.threads = 512; k.grid = 256
    return k


def code_prefetch(k, nxt, sidx, tmp_s, tid="v0"):
    if os.environ.get("PFC", "1") != "1": return
    pp = k.salloc(2); sP = k.salloc(4); vT = k.valloc(); vd = k.valloc()
    lab = k.newlabel("pc")
    k.I("s_getpc_b64", sr(pp, 2))
    k.L(lab)
    k.I("s_add_u32", s(pp), s(pp), f"{nxt}-{lab}")
    k.I("s_addc_u32", s(pp + 1), s(pp + 1), 0)
    srd(k, sP, pp, f"{nxt}_end-{nxt}")
    k.I("s_lshl_b32", s(tmp_s), s(sidx), 8)
    k.I("v_add_u32", v(vT), s(tmp_s), tid)
    k.I("v_lshlrev_b32", v(vT), 7, v(vT))
    k.vm("pfc", "buffer_load_dword", v(vd), v(vT), sr(sP, 4), 0, mods="offen")

def l2_prefetch(k, kernarg_off, nbytes, vT128, nthreads, tmp_s):
    if os.environ.get("PFT", "1") != "1": return
    pp = k.salloc(2); sP = k.salloc(4)
    k.I("s_load_dwordx2", sr(pp, 2), "s[0:1]", kernarg_off)
    k.I("s_waitcnt", "lgkmcnt(0)")
    srd(k, sP, pp, nbytes)
    n = -(-nbytes // (128 * nthreads))
    for i in range(n):
        vd = k.valloc()
        k.I("s_mov_b32", s(tmp_s), hex(i * nthreads * 128))
        k.vm("pft", "buffer_load_dword", v(vd), v(vT128), sr(sP, 4), s(tmp_s), mods="offen")

def mall_prefetch(k, kernarg_off, nbytes, first, per, nw, swave, lane, tmp_s, tv0, tv1, flag="PFM"):
    if os.environ.get(flag, "1") != "1": return
    pp = k.salloc(2); sP = k.salloc(4); vd = k.valloc()
    k.I("s_load_dwordx2", sr(pp, 2), "s[0:1]", kernarg_off)
    k.I("s_mul_i32", s(tmp_s), "s2", nw)
    k.I("s_add_u32", s(tmp_s), s(tmp_s), s(swave))
    k.I("s_mul_i32", s(tmp_s), s(tmp_s), per)
    k.I("s_add_u32", s(tmp_s), s(tmp_s), first)
    k.I("s_lshl_b32", s(tmp_s), s(tmp_s), 7)
    k.I("v_lshlrev_b32", v(tv0), 7, v(lane))
    k.I("v_mov_b32", v(tv1), "0x7fffff00")
    k.I("v_cmp_gt_u32", "vcc", per, v(lane))
    k.I("v_cndmask_b32", v(tv0), v(tv1), v(tv0), "vcc")
    k.I("s_waitcnt", "lgkmcnt(0)")
    k.lgq = []
    srd(k, sP, pp, nbytes)
    k.vm("pfm", "buffer_load_dword", v(vd), v(tv0), sr(sP, 4), s(tmp_s), mods="offen")

def map_rb_hd(k, srb, shd, st0, st1):
    if os.environ.get("MAP48", "1") == "1":
        k.I("s_and_b32", s(st0), "s2", 7)
        k.I("s_lshr_b32", s(st1), "s2", 3)
        k.I("s_and_b32", s(shd), s(st1), 7)
        k.I("s_lshr_b32", s(st1), s(st1), 3)
        k.I("s_lshr_b32", s(srb), s(st0), 1)
        k.I("s_lshl_b32", s(srb), s(srb), 2)
        k.I("s_add_u32", s(srb), s(srb), s(st1))
        k.I("s_and_b32", s(st0), s(st0), 1)
        k.I("s_lshl_b32", s(st0), s(st0), 3)
        k.I("s_add_u32", s(shd), s(shd), s(st0))
    else:
        k.I("s_and_b32", s(st0), "s2", 7)
        k.I("s_lshr_b32", s(st1), "s2", 3)
        k.I("s_and_b32", s(shd), s(st1), 15)
        k.I("s_lshr_b32", s(st1), s(st1), 4)
        k.I("s_lshl_b32", s(srb), s(st0), 1)
        k.I("s_add_u32", s(srb), s(srb), s(st1))

def rot_index(k, dst, srot, c, n):
    k.I("s_add_u32", s(dst), s(srot), c)
    k.I("s_cmp_ge_u32", s(dst), n)
    k.I("s_cselect_b32", "s3", n, 0)
    k.I("s_sub_u32", s(dst), s(dst), "s3")

ROTS = os.environ.get("ROT", "0")
def rot_on(n): return str(n) in ROTS

def common_start(k, nwg):
    k.snext = 4; k.vnext = 1
    done = k.newlabel("done")
    k.I("s_cmp_ge_u32", "s2", nwg)
    k.I("s_cbranch_scc1", done)
    R = dict(done=done)
    R["swave"] = k.salloc(); R["st0"] = k.salloc(); R["st1"] = k.salloc(); R["soff"] = k.salloc()
    R["lane"] = k.valloc(); R["t0"] = k.valloc(); R["t1"] = k.valloc(); R["t2"] = k.valloc()
    k.I("v_lshrrev_b32", v(R["t0"]), 6, "v0")
    k.I("v_and_b32", v(R["lane"]), 63, "v0")
    k.I("v_readfirstlane_b32", s(R["swave"]), v(R["t0"]))
    return R

def interleave(k, mf, fl):
    n = len(fl); m = len(mf)
    cuts = [(i * n + m - 1) // m for i in range(m + 1)]
    cuts[-1] = n
    for i in range(m):
        mf[i]()
        for f in fl[cuts[i]:cuts[i + 1]]: f()

def stats_from_packed(k, P, n, accs, accq, tmp):
    for j in range(n):
        t = tmp[j % len(tmp)]
        k.I("v_lshlrev_b32", v(t), 16, v(P + j))
        k.I("v_and_b32", v(t + 1), "0xffff0000", v(P + j))
        if j == 0:
            k.I("v_pk_mul_f32", vr(accq, 2), vr(t, 2), vr(t, 2))
            k.I("v_mov_b32", v(accs), v(t)); k.I("v_mov_b32", v(accs + 1), v(t + 1))
        else:
            k.I("v_pk_add_f32", vr(accs, 2), vr(accs, 2), vr(t, 2))
            k.I("v_pk_fma_f32", vr(accq, 2), vr(t, 2), vr(t, 2), vr(accq, 2))
    k.I("v_add_f32", v(accs), v(accs), v(accs + 1))
    k.I("v_add_f32", v(accq), v(accq), v(accq + 1))
    for r_ in (accs, accq):
        k.I("v_mov_b32", v(r_ + 1), v(r_))
        k.I("v_permlane32_swap_b32", v(r_), v(r_ + 1))
        k.I("v_add_f32", v(r_), v(r_), v(r_ + 1))

def gen_k3(Stamper):
    k = Kernel("k3_wo_kernel")
    WREG = 0; OREG = 58368
    lds = OREG + 65536
    R = common_start(k, 256)
    swave, st0, st1, soff, lane, t0, t1, t2 = (R[x] for x in ("swave", "st0", "st1", "soff", "lane", "t0", "t1", "t2"))
    pX = k.salloc(2); pWo = k.salloc(2); pWin = k.salloc(2); pWS = k.salloc(2)
    k.I("s_load_dwordx2", sr(pX, 2), "s[0:1]", 0)
    k.I("s_load_dwordx2", sr(pWo, 2), "s[0:1]", 16)
    k.I("s_load_dwordx2", sr(pWin, 2), "s[0:1]", 32)
    k.I("s_load_dwordx2", sr(pWS, 2), "s[0:1]", 80)
    sWS = k.salloc(4); sWo = k.salloc(4); sX = k.salloc(4)
    sj = k.salloc(); sidx = k.salloc(); srt = k.salloc(); snt = k.salloc(); sw3 = k.salloc()
    k.I("s_and_b32", s(sj), "s2", 7)
    k.I("s_lshr_b32", s(sidx), "s2", 3)
    k.I("s_and_b32", s(sw3), s(swave), 3)
    stp = Stamper(k, 2, sWS, swave)
    aux = k.newlabel("aux")
    k.I("s_cmp_ge_u32", s(sidx), 28)
    k.I("s_cbranch_scc1", aux)
    k.I("s_mul_i32", s(st0), s(sidx), 37)
    k.I("s_lshr_b32", s(st0), s(st0), 8)
    k.I("s_mul_i32", s(st1), s(st0), 7)
    k.I("s_sub_u32", s(snt), s(sidx), s(st1))
    k.I("s_lshl_b32", s(srt), s(sj), 2)
    k.I("s_add_u32", s(srt), s(srt), s(st0))
    comp = k.newlabel("compute")
    k.I("s_cmp_lt_u32", s(swave), 4)
    k.I("s_cbranch_scc1", comp)
    vsave = k.vnext
    v16 = k.valloc(); vWo = k.valloc()
    k.I("v_lshlrev_b32", v(v16), 4, v(lane))
    k.I("v_lshrrev_b32", v(t0), 3, v(lane))
    k.I("v_mul_u32_u24", v(t0), 896, v(t0))
    k.I("v_bfe_u32", v(t1), v(lane), 4, 1)
    k.I("v_lshlrev_b32", v(t1), 2, v(t1))
    k.I("v_and_b32", v(t2), 7, v(lane))
    k.I("v_xor_b32", v(t1), v(t1), v(t2))
    k.I("v_lshl_add_u32", v(vWo), v(t1), 4, v(t0))
    sOb = k.salloc(); sWb = k.salloc(); smO = k.salloc(); smW = k.salloc()
    k.I("s_lshl_b32", s(sOb), s(srt), 16)
    k.I("s_lshl_b32", s(st0), s(sw3), 10)
    k.I("s_add_u32", s(sOb), s(sOb), s(st0))
    k.I("s_add_u32", s(sOb), s(sOb), hex(O_OFF))
    k.I("s_add_u32", s(smO), s(st0), OREG)
    k.I("s_mul_i32", s(sWb), s(sw3), 8 * 896)
    k.I("s_lshl_b32", s(st1), s(snt), 7)
    k.I("s_add_u32", s(sWb), s(sWb), s(st1))
    k.I("s_add_u32", s(smW), s(st0), WREG)
    def issue(c):
        for r2 in range(2):
            k.I("s_add_u32", s(soff), s(sOb), hex(r2 * 32768 + c * 4096))
            k.I("s_add_u32", "m0", s(smO), hex(r2 * 32768 + c * 4096))
            k.vm(("S", c), "buffer_load_dwordx4", v(v16), sr(sWS, 4), s(soff), mods="offen lds")
        for i in range(2):
            k.I("s_add_u32", s(soff), s(sWb), hex((56 * c + 32 * i) * 896))
            k.I("s_add_u32", "m0", s(smW), hex((56 * c + 32 * i) * 128))
            k.vm(("S", c), "buffer_load_dwordx4", v(vWo), sr(sWo, 4), s(soff), mods="offen lds")
    k.I("s_waitcnt", "lgkmcnt(0)")
    srd(k, sWS, pWS, WS_SIZE)
    srd(k, sWo, pWo, 448 * 896)
    LA = 3
    for c in range(LA): issue(c)
    for c in range(8):
        k.wait_vm(("S", c))
        k.I("s_barrier")
        if c + LA < 8: issue(c + LA)
    k.I("s_endpgm")
    k.L(comp)
    k.vnext = vsave; k.vmq = []; k.lgq = []
    l31 = k.valloc(); hh = k.valloc()
    k.I("v_and_b32", v(l31), 31, v(lane))
    k.I("v_lshrrev_b32", v(hh), 5, v(lane))
    srh = k.salloc(); snh = k.salloc(); sst = k.salloc(); sntile = k.salloc()
    k.I("s_and_b32", s(srh), s(swave), 1)
    k.I("s_lshr_b32", s(snh), s(swave), 1)
    k.I("s_lshl_b32", s(sst), s(srt), 1)
    k.I("s_add_u32", s(sst), s(sst), s(srh))
    k.I("s_lshl_b32", s(sntile), s(snt), 1)
    k.I("s_add_u32", s(sntile), s(sntile), s(snh))
    xr = k.valloc(8, 4); vx = k.valloc()
    k.I("v_mul_u32_u24", v(vx), 896, v(l31))
    k.I("v_lshl_add_u32", v(vx), v(hh), 3, v(vx))
    k.I("s_mul_i32", s(soff), s(sst), 32 * 896)
    k.I("s_lshl_b32", s(st0), s(sntile), 6)
    k.I("s_add_u32", s(soff), s(soff), s(st0))
    k.I("s_waitcnt", "lgkmcnt(0)")
    srd(k, sWS, pWS, WS_SIZE)
    srd(k, sX, pX, 2048 * 896)
    for q in range(4):
        k.vm("x", "buffer_load_dwordx2", vr(xr + 2 * q, 2), v(vx), sr(sX, 4), s(soff), mods=f"offen offset:{16 * q}")
    code_prefetch(k, "k4_win_kernel", sidx, st0)
    stp.stamp(0)
    aO = k.valloc(); vW = k.valloc()
    k.I("v_lshlrev_b32", v(aO), 4, v(lane))
    k.I("s_lshl_b32", s(st0), s(srh), 15)
    k.I("s_add_u32", s(st0), s(st0), OREG)
    k.I("v_add_u32", v(aO), s(st0), v(aO))
    k.I("v_bfe_u32", v(t0), v(lane), 2, 2)
    k.I("v_lshl_add_u32", v(t0), v(hh), 3, v(t0))
    k.I("v_lshlrev_b32", v(vW), 7, v(t0))
    k.I("v_bfe_u32", v(t0), v(lane), 4, 1)
    k.I("v_lshlrev_b32", v(t0), 1, v(t0))
    k.I("v_bfe_u32", v(t1), v(lane), 1, 1)
    k.I("v_add_u32", v(t0), v(t0), v(t1))
    k.I("s_lshl_b32", s(st0), s(snh), 2)
    k.I("v_add_u32", v(t0), s(st0), v(t0))
    k.I("v_bfe_u32", v(t1), v(lane), 3, 1)
    k.I("v_lshlrev_b32", v(t1), 2, v(t1))
    k.I("v_xor_b32", v(t0), v(t0), v(t1))
    k.I("v_lshl_add_u32", v(vW), v(t0), 4, v(vW))
    k.I("v_and_b32", v(t0), 1, v(lane))
    k.I("v_lshl_add_u32", v(vW), v(t0), 3, v(vW))
    acc = k.valloc(16, 4)
    NB = 3
    of = [k.valloc(4) for _ in range(NB)]; wf = [k.valloc(4) for _ in range(NB)]
    def rl(ks):
        b = ks % NB
        out = [lambda: k.lg(("f", ks), "ds_read_b128", vr(of[b], 4), v(aO), mods=f"offset:{ks * 1024}")]
        for beta in range(2):
            o = (28 * (ks >> 1) + 16 * (ks & 1) + 4 * beta) * 128
            out.append(lambda o=o, beta=beta: k.lg(("f", ks), "ds_read_b64_tr_b16", vr(wf[b] + 2 * beta, 2), v(vW), mods=f"offset:{o}"))
        return out
    k.I("s_barrier")
    stp.stamp(1)
    for f in rl(0) + rl(1): f()
    for ks in range(32):
        c, j = ks // 4, ks % 4
        b = ks % NB
        k.wait_lg(("f", ks))
        k.I("v_mfma_f32_32x32x16_bf16", vr(acc, 16), vr(wf[b], 4), vr(of[b], 4), 0 if ks == 0 else vr(acc, 16))
        if j == 1 and c < 7: k.I("s_barrier")
        if ks + 2 < 32 and not (j == 1 and False):
            pass
        nxt = ks + 2
        if nxt < 32:
            for f in rl(nxt): f()
    EOF_MARK = None
    stp.stamp(2)
    k.wait_vm("x")
    tmp = [k.valloc(2) for _ in range(4)]
    for q in range(4):
        for d in range(2):
            t = tmp[(2 * q + d) % 4]
            k.I("v_lshlrev_b32", v(t), 16, v(xr + 2 * q + d))
            k.I("v_and_b32", v(t + 1), "0xffff0000", v(xr + 2 * q + d))
            k.I("v_pk_add_f32", vr(acc + 4 * q + 2 * d, 2), vr(acc + 4 * q + 2 * d, 2), vr(t, 2))
    P = k.valloc(8, 4)
    for j in range(8): k.I("v_cvt_pk_bf16_f32", v(P + j), v(acc + 2 * j), v(acc + 2 * j + 1))
    v16 = k.valloc()
    k.I("v_lshlrev_b32", v(v16), 4, v(lane))
    k.I("s_mul_i32", s(soff), s(sst), 28 * 1024)
    k.I("s_lshl_b32", s(st0), s(sntile), 11)
    k.I("s_add_u32", s(soff), s(soff), s(st0))
    k.I("s_add_u32", s(soff), s(soff), hex(H_OFF))
    k.I("buffer_store_dwordx4", vr(P, 4), v(v16), sr(sWS, 4), s(soff), mods="offen")
    k.I("buffer_store_dwordx4", vr(P + 4, 4), v(v16), sr(sWS, 4), s(soff), mods="offen offset:1024")
    accs = k.valloc(2); accq = k.valloc(2)
    stats_from_packed(k, P, 8, accs, accq, tmp)
    k.I("v_mov_b32", v(accs + 1), v(accq))
    vh = k.valloc()
    k.I("v_mul_u32_u24", v(vh), 112, v(l31))
    k.I("s_mul_i32", s(soff), s(sst), 32 * 112)
    k.I("s_lshl_b32", s(st0), s(sntile), 3)
    k.I("s_add_u32", s(soff), s(soff), s(st0))
    k.I("s_add_u32", s(soff), s(soff), hex(HS_OFF))
    k.I("s_mov_b32", "exec_hi", 0)
    k.I("buffer_store_dwordx2", vr(accs, 2), v(vh), sr(sWS, 4), s(soff), mods="offen")
    stp.stamp(3)
    k.I("s_endpgm")
    k.L(aux)
    k.vnext = vsave; k.vmq = []; k.lgq = []
    sa = k.salloc(); sWin = k.salloc(4)
    k.I("s_sub_u32", s(sa), s(sidx), 28)
    k.I("s_lshl_b32", s(sa), s(sa), 3)
    k.I("s_add_u32", s(sa), s(sa), s(sj))
    k.I("s_waitcnt", "lgkmcnt(0)")
    srd(k, sWS, pWS, WS_SIZE)
    ff = k.valloc(4)
    for i in range(4): k.I("v_mov_b32", v(ff + i), -1)
    k.I("v_lshlrev_b32", v(t1), 4, "v0")
    k.I("v_mov_b32", v(t2), "0x7fffff00")
    k.I("v_cmp_gt_u32", "vcc", 448, "v0")
    k.I("v_cndmask_b32", v(t1), v(t2), v(t1), "vcc")
    k.I("s_mul_i32", s(st0), s(sa), 7168)
    k.I("s_add_u32", s(st0), s(st0), hex(EX_OFF))
    k.I("buffer_store_dwordx4", vr(ff, 4), v(t1), sr(sWS, 4), s(st0), mods="offen")
    zf = k.valloc(4)
    for i in range(4): k.I("v_mov_b32", v(zf + i), 0)
    k.I("v_lshlrev_b32", v(t1), 4, "v0")
    k.I("v_mov_b32", v(t2), "0x7fffff00")
    k.I("v_cmp_gt_u32", "vcc", 32, "v0")
    k.I("v_cndmask_b32", v(t1), v(t2), v(t1), "vcc")
    k.I("s_lshl_b32", s(st0), s(sa), 9)
    k.I("s_add_u32", s(st0), s(st0), hex(FL_OFF))
    k.I("buffer_store_dwordx4", vr(zf, 4), v(t1), sr(sWS, 4), s(st0), mods="offen")
    srd(k, sWin, pWin, 448 * 3584)
    def win_prefetch():
        if os.environ.get("PFWIN", "k2") != "k3": return
        vTw = k.valloc(); vdw = k.valloc(7)
        k.I("s_sub_u32", s(st0), s(sidx), 28)
        k.I("s_lshl_b32", s(st0), s(st0), 9)
        k.I("v_add_u32", v(vTw), s(st0), "v0")
        k.I("v_lshlrev_b32", v(vTw), 7, v(vTw))
        for i in range(7):
            k.I("s_mov_b32", s(st0), hex(i * 2048 * 128))
            k.I("buffer_load_dword", v(vdw + i), v(vTw), sr(sWin, 4), s(st0), mods="offen")
    nocs = k.newlabel("nocs")
    k.I("s_cmp_ge_u32", s(sa), 28)
    k.I("s_cbranch_scc1", nocs)
    vg = k.valloc()
    k.I("v_lshrrev_b32", v(t0), 3, v(lane))
    k.I("v_mul_u32_u24", v(t0), 3584, v(t0))
    k.I("v_bfe_u32", v(t1), v(lane), 4, 1)
    k.I("v_lshlrev_b32", v(t1), 2, v(t1))
    k.I("v_and_b32", v(t2), 7, v(lane))
    k.I("v_xor_b32", v(t1), v(t1), v(t2))
    k.I("v_lshl_add_u32", v(vg), v(t1), 4, v(t0))
    sb = k.salloc(); sm = k.salloc()
    k.I("s_mul_i32", s(sb), s(swave), 56 * 3584)
    k.I("s_lshl_b32", s(st0), s(sa), 7)
    k.I("s_add_u32", s(sb), s(sb), s(st0))
    k.I("s_mul_i32", s(sm), s(swave), 56 * 128)
    for i in range(7):
        k.I("s_add_u32", s(soff), s(sb), hex(i * 8 * 3584))
        k.I("s_add_u32", "m0", s(sm), hex(i * 1024))
        k.I("buffer_load_dwordx4", v(vg), sr(sWin, 4), s(soff), mods="offen lds")
    win_prefetch()
    z = k.valloc(); TB = 57344
    k.I("v_mov_b32", v(z), 0)
    k.I("v_lshlrev_b32", v(t0), 2, v(lane))
    k.I("v_add_u32", v(t0), TB, v(t0))
    k.I("ds_write_b32", v(t0), v(z))
    gg = k.valloc(); vB = k.valloc(); ones = k.valloc(4)
    k.I("v_lshrrev_b32", v(gg), 4, v(lane))
    k.I("v_bfe_u32", v(t0), v(lane), 2, 2)
    k.I("v_lshl_add_u32", v(t0), v(gg), 3, v(t0))
    k.I("v_lshlrev_b32", v(vB), 7, v(t0))
    k.I("v_bfe_u32", v(t0), v(lane), 1, 1)
    k.I("s_lshl_b32", s(st0), s(sw3), 1)
    k.I("v_add_u32", v(t0), s(st0), v(t0))
    k.I("v_bfe_u32", v(t1), v(lane), 3, 1)
    k.I("v_lshlrev_b32", v(t1), 2, v(t1))
    k.I("v_xor_b32", v(t0), v(t0), v(t1))
    k.I("v_lshl_add_u32", v(vB), v(t0), 4, v(vB))
    k.I("v_and_b32", v(t0), 1, v(lane))
    k.I("v_lshl_add_u32", v(vB), v(t0), 3, v(vB))
    k.I("s_lshr_b32", s(st0), s(swave), 2)
    k.I("s_mul_i32", s(st0), s(st0), 224 * 128)
    k.I("v_add_u32", v(vB), s(st0), v(vB))
    for i in range(4): k.I("v_mov_b32", v(ones + i), "0x3f803f80")
    k.I("s_waitcnt", "vmcnt(7) lgkmcnt(0)" if os.environ.get("PFWIN", "k2") == "k3" else "vmcnt(0) lgkmcnt(0)")
    k.I("s_barrier")
    bf = [k.valloc(4) for _ in range(7)]
    for kk in range(7):
        for beta in range(2):
            k.I("ds_read_b64_tr_b16", vr(bf[kk] + 2 * beta, 2), v(vB), mods=f"offset:{(32 * kk + 4 * beta) * 128}")
    ca = k.valloc(4)
    k.I("s_waitcnt", "lgkmcnt(0)")
    for kk in range(7):
        k.I("v_mfma_f32_16x16x32_bf16", vr(ca, 4), vr(ones, 4), vr(bf[kk], 4), 0 if kk == 0 else vr(ca, 4))
    k.I("v_and_b32", v(t0), 15, v(lane))
    k.I("s_lshl_b32", s(st0), s(sw3), 6)
    k.I("s_add_u32", s(st0), s(st0), TB)
    k.I("v_lshlrev_b32", v(t0), 2, v(t0))
    k.I("v_add_u32", v(t0), s(st0), v(t0))
    k.I("s_mov_b32", "exec_lo", "0xffff")
    k.I("s_mov_b32", "exec_hi", 0)
    k.I("ds_add_f32", v(t0), v(ca))
    k.I("s_mov_b64", "exec", -1)
    k.I("s_waitcnt", "lgkmcnt(0)")
    k.I("s_barrier")
    k.I("s_cmp_lg_u32", s(swave), 0)
    k.I("s_cbranch_scc1", R["done"])
    k.I("v_lshlrev_b32", v(t0), 2, v(lane))
    k.I("v_add_u32", v(t1), TB, v(t0))
    k.I("ds_read_b32", v(z), v(t1))
    k.I("s_lshl_b32", s(st0), s(sa), 8)
    k.I("s_add_u32", s(st0), s(st0), hex(CW_OFF))
    k.I("s_waitcnt", "lgkmcnt(0)")
    k.I("buffer_store_dword", v(z), v(t0), sr(sWS, 4), s(st0), mods="offen")
    k.I("s_endpgm")
    k.L(nocs)
    win_prefetch()
    k.L(R["done"])
    k.I("s_endpgm")
    k.lds = lds; k.threads = 512; k.grid = 256
    return k


GELU_C0 = -2.0 * math.sqrt(2.0 / math.pi) * math.log2(math.e)
GELU_C1 = GELU_C0 * 0.044715

def gen_k4(Stamper):
    k = Kernel("k4_win_kernel")
    NS = 4; SLOT = 32768; TRB = NS * SLOT
    STB = TRB
    lds = TRB + 4096
    R = common_start(k, 256)
    swave, st0, st1, soff, lane, t0, t1, t2 = (R[x] for x in ("swave", "st0", "st1", "soff", "lane", "t0", "t1", "t2"))
    pWin = k.salloc(2); pWS = k.salloc(2)
    k.I("s_load_dwordx2", sr(pWin, 2), "s[0:1]", 32)
    k.I("s_load_dwordx2", sr(pWS, 2), "s[0:1]", 80)
    sWS = k.salloc(4); sWin = k.salloc(4)
    sj = k.salloc(); sidx = k.salloc(); srb = k.salloc(); sct = k.salloc(); sw3 = k.salloc()
    k.I("s_and_b32", s(sj), "s2", 7)
    k.I("s_lshr_b32", s(sidx), "s2", 3)
    k.I("s_and_b32", s(sw3), s(swave), 3)
    pfrole = k.newlabel("pfrole")
    k.I("s_cmp_ge_u32", s(sidx), 28)
    k.I("s_cbranch_scc1", pfrole)
    k.I("s_cmp_ge_u32", s(sidx), 14)
    k.I("s_cselect_b32", s(st0), 1, 0)
    k.I("s_mul_i32", s(st1), s(st0), 14)
    k.I("s_sub_u32", s(sct), s(sidx), s(st1))
    k.I("s_lshl_b32", s(srb), s(sj), 1)
    k.I("s_add_u32", s(srb), s(srb), s(st0))
    stp = Stamper(k, 3, sWS, swave)
    k.I("s_waitcnt", "lgkmcnt(0)")
    srd(k, sWS, pWS, WS_SIZE)
    comp = k.newlabel("compute")
    k.I("s_cmp_lt_u32", s(swave), 4)
    k.I("s_cbranch_scc1", comp)
    vsave = k.vnext
    srd(k, sWin, pWin, 448 * 3584)
    v16 = k.valloc(); vWo = k.valloc()
    k.I("v_lshlrev_b32", v(v16), 4, v(lane))
    k.I("v_lshrrev_b32", v(t0), 4, v(lane))
    k.I("v_lshlrev_b32", v(t1), 2, v(t0))
    k.I("v_and_b32", v(t2), 15, v(lane))
    k.I("v_xor_b32", v(t1), v(t1), v(t2))
    k.I("v_mul_u32_u24", v(vWo), 3584, v(t0))
    k.I("v_and_b32", v(t2), 7, v(t1))
    k.I("v_lshl_add_u32", v(vWo), v(t2), 4, v(vWo))
    k.I("v_add_u32", v(t2), 1792, v(vWo))
    k.I("v_cmp_gt_u32", "vcc", 8, v(t1))
    k.I("v_cndmask_b32", v(vWo), v(vWo), v(t2), "vcc")
    sHb = k.salloc(); sWb = k.salloc(); smH = k.salloc(); smW = k.salloc()
    k.I("s_lshl_b32", s(st0), s(srb), 2)
    k.I("s_add_u32", s(st0), s(st0), s(sw3))
    k.I("s_mul_i32", s(sHb), s(st0), 28 * 1024)
    k.I("s_add_u32", s(sHb), s(sHb), hex(H_OFF))
    k.I("s_lshl_b32", s(smH), s(sw3), 12)
    k.I("s_mul_i32", s(sWb), s(sw3), 16 * 3584)
    k.I("s_lshl_b32", s(st1), s(sct), 7)
    k.I("s_add_u32", s(sWb), s(sWb), s(st1))
    k.I("s_add_u32", s(smW), s(smH), 16384)
    def issue(c):
        sl = (c % NS) * SLOT
        for i in range(4):
            k.I("s_add_u32", s(soff), s(sHb), hex((4 * c + i) * 1024))
            k.I("s_add_u32", "m0", s(smH), hex(sl + i * 1024))
            k.vm(("S", c), "buffer_load_dwordx4", v(v16), sr(sWS, 4), s(soff), mods="offen lds")
        for i in range(4):
            k.I("s_add_u32", s(soff), s(sWb), hex((64 * c + 4 * i) * 3584))
            k.I("s_add_u32", "m0", s(smW), hex(sl + i * 1024))
            k.vm(("S", c), "buffer_load_dwordx4", v(vWo), sr(sWin, 4), s(soff), mods="offen lds")
    issue(0); issue(1)
    for c in range(7):
        k.wait_vm(("S", c))
        k.I("s_barrier")
        if c == 0: issue(2); issue(3)
        elif c + 2 < 7 and c >= 2: issue(c + 2)
    k.I("s_barrier")
    k.I("s_endpgm")
    k.L(comp)
    k.vnext = vsave; k.vmq = []; k.lgq = []
    l31 = k.valloc(); hh = k.valloc()
    k.I("v_and_b32", v(l31), 31, v(lane))
    k.I("v_lshrrev_b32", v(hh), 5, v(lane))
    srh = k.salloc(); sch = k.salloc(); sst = k.salloc()
    k.I("s_and_b32", s(srh), s(swave), 1)
    k.I("s_lshr_b32", s(sch), s(swave), 1)
    k.I("s_lshl_b32", s(sst), s(srb), 2)
    k.I("s_lshl_b32", s(st0), s(srh), 1)
    k.I("s_add_u32", s(sst), s(sst), s(st0))
    hs = [k.valloc(16, 4) for _ in range(2)]
    vh = k.valloc()
    k.I("v_mul_u32_u24", v(vh), 112, v(l31))
    k.I("v_lshl_add_u32", v(vh), v(hh), 6, v(vh))
    for t in range(2):
        k.I("s_add_u32", s(st0), s(sst), t)
        k.I("s_mul_i32", s(soff), s(st0), 32 * 112)
        k.I("s_add_u32", s(soff), s(soff), hex(HS_OFF))
        for i in range(4):
            k.vm("hs", "buffer_load_dwordx4", vr(hs[t] + 4 * i, 4), v(vh), sr(sWS, 4), s(soff), mods=f"offen offset:{16 * i}")
    cw = [k.valloc(16, 4) for _ in range(2)]
    vc = k.valloc()
    k.I("v_lshlrev_b32", v(vc), 4, v(hh))
    k.I("s_lshl_b32", s(st0), s(sct), 8)
    k.I("s_lshl_b32", s(st1), s(sch), 7)
    k.I("s_add_u32", s(st0), s(st0), s(st1))
    for z in range(2):
        k.I("s_add_u32", s(soff), s(st0), hex(CW_OFF + (896 * 4 if z == 0 else 0)))
        for q in range(4):
            k.vm("cw", "buffer_load_dwordx4", vr(cw[z] + 4 * q, 4), v(vc), sr(sWS, 4), s(soff), mods=f"offen offset:{32 * q}")
    if os.environ.get("PF2", "0") == "1":
        pp = k.salloc(2); sP = k.salloc(4); vT = k.valloc(); vd = k.valloc(2)
        k.I("s_load_dwordx2", sr(pp, 2), "s[0:1]", 40)
        k.I("s_lshl_b32", s(st0), s(sidx), 8)
        k.I("v_add_u32", v(vT), s(st0), "v0")
        k.I("s_waitcnt", "lgkmcnt(0)")
        srd(k, sP, pp, 2048 * 4096)
        k.I("s_lshr_b32", s(st0), s(sj), 1)
        k.I("s_lshl_b32", s(st0), s(st0), 21)
        k.I("s_and_b32", s(st1), s(sj), 1)
        k.I("s_lshl_b32", s(st1), s(st1), 11)
        k.I("s_add_u32", s(st0), s(st0), s(st1))
        for i in range(2):
            k.I("v_add_u32", v(t0), 7168 * i, v(vT))
            k.I("v_lshrrev_b32", v(t1), 4, v(t0))
            k.I("v_lshlrev_b32", v(t1), 12, v(t1))
            k.I("v_and_b32", v(t2), 15, v(t0))
            k.I("v_lshl_add_u32", v(t1), v(t2), 7, v(t1))
            if i == 1:
                k.I("v_mov_b32", v(t2), "0x7fffff00")
                k.I("v_cmp_gt_u32", "vcc", 8192, v(t0))
                k.I("v_cndmask_b32", v(t1), v(t2), v(t1), "vcc")
            k.vm("pf", "buffer_load_dword", v(vd + i), v(t1), sr(sP, 4), s(st0), mods="offen")
    code_prefetch(k, "k5_sp_kernel", sidx, st0)
    stp.stamp(0)
    aH = k.valloc(); vW = [k.valloc(), k.valloc()]
    k.I("v_lshlrev_b32", v(aH), 4, v(lane))
    k.I("s_lshl_b32", s(st0), s(srh), 13)
    k.I("v_add_u32", v(aH), s(st0), v(aH))
    k.I("v_bfe_u32", v(t0), v(lane), 2, 2)
    k.I("v_lshl_add_u32", v(t1), v(hh), 2, v(t0))
    k.I("v_lshlrev_b32", v(t1), 8, v(t1))
    k.I("v_add_u32", v(t1), 16384, v(t1))
    k.I("v_bfe_u32", v(t2), v(lane), 4, 1)
    k.I("v_lshlrev_b32", v(t2), 1, v(t2))
    k.I("v_bfe_u32", v(vW[0]), v(lane), 1, 1)
    k.I("v_add_u32", v(t2), v(t2), v(vW[0]))
    k.I("s_lshl_b32", s(st0), s(sch), 2)
    k.I("v_add_u32", v(t2), s(st0), v(t2))
    k.I("v_lshlrev_b32", v(t0), 2, v(t0))
    k.I("v_xor_b32", v(vW[0]), v(t2), v(t0))
    k.I("v_add_u32", v(t2), 8, v(t2))
    k.I("v_xor_b32", v(vW[1]), v(t2), v(t0))
    k.I("v_and_b32", v(t2), 1, v(lane))
    for z in range(2):
        k.I("v_lshl_add_u32", v(vW[z]), v(vW[z]), 4, v(t1))
        k.I("v_lshl_add_u32", v(vW[z]), v(t2), 3, v(vW[z]))
    aH2 = k.valloc(); vW2 = [k.valloc(), k.valloc()]
    k.I("v_add_u32", v(aH2), 65536, v(aH))
    for z in range(2): k.I("v_add_u32", v(vW2[z]), 65536, v(vW[z]))
    acc = [[k.valloc(16, 4) for _ in range(2)] for _ in range(2)]
    vmark = k.vnext
    NB = 3
    hf = [[k.valloc(4) for _ in range(2)] for _ in range(NB)]
    wf = [[k.valloc(4) for _ in range(2)] for _ in range(NB)]
    def rl(ks):
        c, j = ks // 4, ks % 4
        b = ks % NB
        sl = (c % NS) * SLOT
        hi = sl >= 65536
        so = sl - (65536 if hi else 0)
        out = []
        for t in range(2):
            out.append(lambda t=t: k.lg(("f", ks), "ds_read_b128", vr(hf[b][t], 4), v(aH2 if hi else aH), mods=f"offset:{so + t * 4096 + j * 1024}"))
        for z in range(2):
            for beta in range(2):
                o = so + (16 * j + 8 * beta) * 256
                out.append(lambda o=o, z=z, beta=beta: k.lg(("f", ks), "ds_read_b64_tr_b16", vr(wf[b][z] + 2 * beta, 2), v((vW2 if hi else vW)[z]), mods=f"offset:{o}"))
        return out
    k.I("s_barrier")
    stp.stamp(1)
    for f in rl(0) + rl(1): f()
    for ks in range(28):
        c, j = ks // 4, ks % 4
        b = ks % NB
        k.wait_lg(("f", ks))
        mf = []
        for z in range(2):
            for t in range(2):
                mf.append(lambda z=z, t=t: k.I("v_mfma_f32_32x32x16_bf16", vr(acc[z][t], 16), vr(wf[b][z], 4), vr(hf[b][t], 4), 0 if ks == 0 else vr(acc[z][t], 16)))
        if j == 2 and c < 6:
            pass
        fl = rl(ks + 2) if ks + 2 < 28 else []
        if j == 2 and ks + 2 < 28:
            k.I("s_barrier")
        interleave(k, mf, fl)
    stp.stamp(2)
    k.vnext = vmark
    k.wait_vm(["hs", "cw"])
    rr = [k.valloc(2) for _ in range(2)]; nm = [k.valloc(2) for _ in range(2)]
    c0r = [k.valloc(2) for _ in range(2)]; c1r = [k.valloc(2) for _ in range(2)]
    k.I("v_cmp_eq_u32", "vcc", 0, v(hh))
    for t in range(2):
        H = hs[t]
        for i in range(12, 16): k.I("v_cndmask_b32", v(H + i), 0, v(H + i), "vcc")
        for i in range(4): k.I("v_pk_add_f32", vr(H + 2 * i, 2), vr(H + 2 * i, 2), vr(H + 8 + 2 * i, 2))
        for i in range(2): k.I("v_pk_add_f32", vr(H + 2 * i, 2), vr(H + 2 * i, 2), vr(H + 4 + 2 * i, 2))
        k.I("v_pk_add_f32", vr(H, 2), vr(H, 2), vr(H + 2, 2))
        for e in range(2):
            k.I("v_mov_b32", v(H + 2), v(H + e))
            k.I("v_permlane32_swap_b32", v(H + e), v(H + 2))
            k.I("v_add_f32", v(H + e), v(H + e), v(H + 2))
        k.I("v_mul_f32", v(nm[t]), hex(f32(-1.0 / 448)), v(H))
        k.I("v_mul_f32", v(H + 1), hex(f32(1.0 / 448)), v(H + 1))
        k.I("v_fma_f32", v(H + 1), f"-{v(nm[t])}", v(nm[t]), v(H + 1))
        k.I("v_max_f32", v(H + 1), 0, v(H + 1))
        k.I("v_add_f32", v(H + 1), hex(f32(1e-5)), v(H + 1))
        k.I("v_rsq_f32", v(rr[t]), v(H + 1))
        k.I("v_mul_f32", v(c0r[t]), hex(f32(GELU_C0)), v(rr[t]))
        k.I("v_mul_f32", v(c1r[t]), v(rr[t]), v(rr[t]))
        k.I("v_mul_f32", v(c1r[t]), v(c1r[t]), v(rr[t]))
        k.I("v_mul_f32", v(c1r[t]), hex(f32(GELU_C1)), v(c1r[t]))
    norh = k.newlabel("norh")
    k.I("s_or_b32", s(st0), s(sct), s(sch))
    k.I("s_cmp_lg_u32", s(st0), 0)
    k.I("s_cbranch_scc1", norh)
    k.I("v_lshlrev_b32", v(t0), 2, v(l31))
    for t in range(2):
        k.I("s_add_u32", s(st0), s(sst), t)
        k.I("s_lshl_b32", s(st0), s(st0), 7)
        k.I("s_add_u32", s(st0), s(st0), hex(RH_OFF))
        k.I("buffer_store_dword", v(rr[t]), v(t0), sr(sWS, 4), s(st0), mods="offen")
    k.L(norh)
    tp = [k.valloc(2) for _ in range(4)]
    def gelu_tile(A, z, t):
        for j in range(8):
            k.I("v_pk_fma_f32", vr(A + 2 * j, 2), vr(cw[z] + 2 * j, 2), vr(nm[t], 2), vr(A + 2 * j, 2), mods="op_sel_hi:[1,0,1]")
        for j0 in range(0, 8, 4):
            for j in range(j0, j0 + 4):
                T = tp[j - j0]
                k.I("v_pk_mul_f32", vr(T, 2), vr(A + 2 * j, 2), vr(A + 2 * j, 2))
            for j in range(j0, j0 + 4):
                T = tp[j - j0]
                k.I("v_pk_fma_f32", vr(T, 2), vr(T, 2), vr(c1r[t], 2), vr(c0r[t], 2), mods="op_sel_hi:[1,0,0]")
            for j in range(j0, j0 + 4):
                T = tp[j - j0]
                k.I("v_pk_mul_f32", vr(T, 2), vr(T, 2), vr(A + 2 * j, 2))
            for j in range(j0, j0 + 4):
                T = tp[j - j0]
                k.I("v_exp_f32", v(T), v(T)); k.I("v_exp_f32", v(T + 1), v(T + 1))
            for j in range(j0, j0 + 4):
                T = tp[j - j0]
                k.I("v_pk_add_f32", vr(T, 2), vr(T, 2), "1.0", mods="op_sel_hi:[1,0]")
            for j in range(j0, j0 + 4):
                T = tp[j - j0]
                k.I("v_rcp_f32", v(T), v(T)); k.I("v_rcp_f32", v(T + 1), v(T + 1))
            for j in range(j0, j0 + 4):
                T = tp[j - j0]
                k.I("v_pk_mul_f32", vr(A + 2 * j, 2), vr(A + 2 * j, 2), vr(T, 2))
    accs = [k.valloc(2) for _ in range(2)]; accq = [k.valloc(2) for _ in range(2)]
    for t in range(2):
        A = acc[0][t]
        gelu_tile(A, 0, t)
        for j in range(8):
            k.I("v_pk_mul_f32", vr(A + 2 * j, 2), vr(A + 2 * j, 2), vr(rr[t], 2), mods="op_sel_hi:[1,0]")
        k.I("v_pk_add_f32", vr(accs[t], 2), vr(A, 2), vr(A + 2, 2))
        k.I("v_pk_mul_f32", vr(accq[t], 2), vr(A, 2), vr(A, 2))
        k.I("v_pk_fma_f32", vr(accq[t], 2), vr(A + 2, 2), vr(A + 2, 2), vr(accq[t], 2))
        for j in range(2, 8):
            k.I("v_pk_add_f32", vr(accs[t], 2), vr(accs[t], 2), vr(A + 2 * j, 2))
            k.I("v_pk_fma_f32", vr(accq[t], 2), vr(A + 2 * j, 2), vr(A + 2 * j, 2), vr(accq[t], 2))
        k.I("v_add_f32", v(accs[t]), v(accs[t]), v(accs[t] + 1))
        k.I("v_add_f32", v(accs[t] + 1), v(accq[t]), v(accq[t] + 1))
        for e in range(2):
            k.I("v_mov_b32", v(accq[t]), v(accs[t] + e))
            k.I("v_permlane32_swap_b32", v(accs[t] + e), v(accq[t]))
            k.I("v_add_f32", v(accs[t] + e), v(accs[t] + e), v(accq[t]))
    vs = k.valloc()
    k.I("v_lshlrev_b32", v(vs), 3, v(l31))
    k.I("s_lshl_b32", s(st0), s(srh), 9)
    k.I("s_add_u32", s(st0), s(st0), STB)
    k.I("v_add_u32", v(vs), s(st0), v(vs))
    k.I("s_lshl_b32", s(st0), s(sch), 10)
    k.I("v_add_u32", v(t0), s(st0), v(vs))
    for t in range(2):
        k.I("ds_write_b64", v(t0), vr(accs[t], 2), mods=f"offset:{t * 256}")
    k.I("s_waitcnt", "lgkmcnt(0)")
    k.I("s_barrier")
    pub = k.newlabel("nopub")
    k.I("s_cmp_lg_u32", s(sch), 0)
    k.I("s_cbranch_scc1", pub)
    oth = k.valloc(4)
    for t in range(2):
        k.I("ds_read_b64", vr(oth + 2 * t, 2), v(vs), mods=f"offset:{1024 + t * 256}")
    k.I("s_waitcnt", "lgkmcnt(0)")
    for t in range(2):
        k.I("v_pk_add_f32", vr(oth + 2 * t, 2), vr(oth + 2 * t, 2), vr(accs[t], 2))
        k.I("v_mov_b32", v(t1), "0x7fc00000")
        k.I("v_cmp_eq_u32", "vcc", -1, v(oth + 2 * t + 1))
        k.I("v_cndmask_b32", v(oth + 2 * t + 1), v(oth + 2 * t + 1), v(t1), "vcc")
    ve = k.valloc()
    k.I("v_mul_u32_u24", v(ve), 112, v(l31))
    k.I("s_mul_i32", s(soff), s(sst), 32 * 112)
    k.I("s_lshl_b32", s(st0), s(sct), 3)
    k.I("s_add_u32", s(soff), s(soff), s(st0))
    k.I("s_add_u32", s(soff), s(soff), hex(EX_OFF))
    k.I("s_mov_b32", "exec_hi", 0)
    for t in range(2):
        k.I("buffer_store_dwordx2", vr(oth + 2 * t, 2), v(ve), sr(sWS, 4), s(soff), mods=f"offen offset:{t * 32 * 112} sc0 sc1")
    k.I("s_mov_b64", "exec", -1)
    k.L(pub)
    stp.stamp(3)
    v16 = k.valloc()
    k.I("v_lshlrev_b32", v(v16), 4, v(lane))
    P = [k.valloc(8, 4) for _ in range(2)]
    sft = k.salloc()
    k.I("s_lshl_b32", s(sft), s(sct), 1)
    k.I("s_add_u32", s(sft), s(sft), s(sch))
    for t in range(2):
        A = acc[1][t]
        gelu_tile(A, 1, t)
        for j in range(8): k.I("v_cvt_pk_bf16_f32", v(P[t] + j), v(A + 2 * j), v(A + 2 * j + 1))
        k.I("s_add_u32", s(st0), s(sst), t)
        k.I("s_mul_i32", s(soff), s(st0), 56 * 1024)
        k.I("s_lshl_b32", s(st0), s(sft), 11)
        k.I("s_add_u32", s(soff), s(soff), s(st0))
        k.I("s_add_u32", s(soff), s(soff), hex(Z1_OFF))
        k.I("buffer_store_dwordx4", vr(P[t], 4), v(v16), sr(sWS, 4), s(soff), mods="offen")
        k.I("buffer_store_dwordx4", vr(P[t] + 4, 4), v(v16), sr(sWS, 4), s(soff), mods="offen offset:1024")
    stp.stamp(4)
    ex = hs
    k.I("v_mul_u32_u24", v(vh), 112, v(l31))
    k.I("v_lshl_add_u32", v(vh), v(hh), 6, v(vh))
    k.I("s_mul_i32", s(soff), s(sst), 32 * 112)
    k.I("s_add_u32", s(soff), s(soff), hex(EX_OFF))
    scount = k.salloc(); sbad = k.salloc(2)
    k.I("s_mov_b32", s(scount), 0)
    poll = k.newlabel("poll"); pdone = k.newlabel("pdone")
    k.L(poll)
    for t in range(2):
        for i in range(4):
            k.I("buffer_load_dwordx4", vr(ex[t] + 4 * i, 4), v(vh), sr(sWS, 4), s(soff), mods=f"offen offset:{t * 32 * 112 + 16 * i} sc0 sc1")
    k.I("s_waitcnt", "vmcnt(0)")
    k.I("v_cmp_eq_u32", "vcc", 0, v(hh))
    for t in range(2):
        for i in range(12, 16): k.I("v_cndmask_b32", v(ex[t] + i), 0, v(ex[t] + i), "vcc")
    k.I("v_max_u32", v(t0), v(ex[0] + 1), v(ex[0] + 3))
    for t in range(2):
        for i in range(8):
            if t == 0 and i < 2: continue
            k.I("v_max_u32", v(t0), v(t0), v(ex[t] + 2 * i + 1))
    k.I("v_cmp_eq_u32", "vcc", -1, v(t0))
    k.I("s_add_u32", s(scount), s(scount), 1)
    k.I("s_cmp_eq_u64", "vcc", 0)
    k.I("s_cbranch_scc1", pdone)
    k.I("s_cmp_lt_u32", s(scount), 0x40000)
    k.I("s_cbranch_scc0", pdone)
    k.I("s_sleep", 1)
    k.I("s_branch", poll)
    k.L(pdone)
    sc_ = [k.valloc(2) for _ in range(2)]; zm = [k.valloc(2) for _ in range(2)]
    for t in range(2):
        H = ex[t]
        for i in range(4): k.I("v_pk_add_f32", vr(H + 2 * i, 2), vr(H + 2 * i, 2), vr(H + 8 + 2 * i, 2))
        for i in range(2): k.I("v_pk_add_f32", vr(H + 2 * i, 2), vr(H + 2 * i, 2), vr(H + 4 + 2 * i, 2))
        k.I("v_pk_add_f32", vr(H, 2), vr(H, 2), vr(H + 2, 2))
        for e in range(2):
            k.I("v_mov_b32", v(H + 2), v(H + e))
            k.I("v_permlane32_swap_b32", v(H + e), v(H + 2))
            k.I("v_add_f32", v(H + e), v(H + e), v(H + 2))
        k.I("v_mul_f32", v(zm[t]), hex(f32(-1.0 / 896)), v(H))
        k.I("v_mul_f32", v(H + 1), hex(f32(1.0 / 896)), v(H + 1))
        k.I("v_fma_f32", v(H + 1), f"-{v(zm[t])}", v(zm[t]), v(H + 1))
        k.I("v_max_f32", v(H + 1), 0, v(H + 1))
        k.I("v_add_f32", v(H + 1), hex(f32(1e-5)), v(H + 1))
        k.I("v_rsq_f32", v(sc_[t]), v(H + 1))
        k.I("v_mul_f32", v(zm[t]), v(zm[t]), v(sc_[t]))
    TW = 0
    vt = k.valloc(); vtr = k.valloc()
    k.I("v_lshlrev_b32", v(vt), 6, v(l31))
    k.I("v_lshl_add_u32", v(vt), v(hh), 3, v(vt))
    k.I("s_lshl_b32", s(st0), s(swave), 12)
    k.I("v_add_u32", v(vt), s(st0), v(vt))
    for t in range(2):
        A = acc[0][t]
        for j in range(8):
            k.I("v_pk_fma_f32", vr(A + 2 * j, 2), vr(A + 2 * j, 2), vr(sc_[t], 2), vr(zm[t], 2), mods="op_sel_hi:[1,0,0]")
        for j in range(8): k.I("v_cvt_pk_bf16_f32", v(P[t] + j), v(A + 2 * j), v(A + 2 * j + 1))
        for q in range(4):
            k.I("ds_write_b64", v(vt), vr(P[t] + 2 * q, 2), mods=f"offset:{t * 2048 + 16 * q}")
    k.I("v_bfe_u32", v(t0), v(lane), 2, 2)
    k.I("v_lshl_add_u32", v(t0), v(hh), 3, v(t0))
    k.I("v_lshlrev_b32", v(vtr), 6, v(t0))
    k.I("v_bfe_u32", v(t0), v(lane), 4, 1)
    k.I("v_lshl_add_u32", v(vtr), v(t0), 5, v(vtr))
    k.I("v_and_b32", v(t0), 3, v(lane))
    k.I("v_lshl_add_u32", v(vtr), v(t0), 3, v(vtr))
    k.I("s_lshl_b32", s(st0), s(swave), 12)
    k.I("v_add_u32", v(vtr), s(st0), v(vtr))
    k.I("s_waitcnt", "lgkmcnt(0)")
    Z = cw[0]
    for ks in range(4):
        for beta in range(2):
            k.I("ds_read_b64_tr_b16", vr(Z + 4 * ks + 2 * beta, 2), v(vtr), mods=f"offset:{(16 * ks + 4 * beta) * 64}")
    k.I("s_mul_i32", s(soff), s(sft), ZS)
    k.I("s_lshr_b32", s(st0), s(sst), 5)
    k.I("s_mul_i32", s(st0), s(st0), ZK)
    k.I("s_add_u32", s(soff), s(soff), s(st0))
    k.I("s_and_b32", s(st0), s(sst), 31)
    k.I("s_lshl_b32", s(st0), s(st0), 11)
    k.I("s_add_u32", s(soff), s(soff), s(st0))
    k.I("s_add_u32", s(soff), s(soff), hex(Z2_OFF))
    for ks in range(4):
        k.I("s_waitcnt", f"lgkmcnt({6 - 2 * ks})")
        k.I("buffer_store_dwordx4", vr(Z + 4 * ks, 4), v(v16), sr(sWS, 4), s(soff), mods=f"offen offset:{ks * 1024}")
    stp.stamp(5)
    k.I("s_endpgm")
    k.L(pfrole)
    pp = k.salloc(2); sP = k.salloc(4); vT = k.valloc(); vd = k.valloc(4)
    k.I("s_load_dwordx2", sr(pp, 2), "s[0:1]", 40)
    k.I("s_sub_u32", s(st0), s(sidx), 28)
    k.I("s_lshl_b32", s(st0), s(st0), 9)
    k.I("v_add_u32", v(vT), s(st0), "v0")
    k.I("s_lshr_b32", s(st0), s(sj), 1)
    k.I("s_lshl_b32", s(st0), s(st0), 21)
    k.I("s_and_b32", s(st1), s(sj), 1)
    k.I("s_lshl_b32", s(st1), s(st1), 11)
    k.I("s_add_u32", s(st0), s(st0), s(st1))
    k.I("s_waitcnt", "lgkmcnt(0)")
    srd(k, sP, pp, 2048 * 4096)
    for i in range(4):
        k.I("v_add_u32", v(t0), 2048 * i, v(vT))
        k.I("v_lshrrev_b32", v(t1), 4, v(t0))
        k.I("v_lshlrev_b32", v(t1), 12, v(t1))
        k.I("v_and_b32", v(t2), 15, v(t0))
        k.I("v_lshl_add_u32", v(t1), v(t2), 7, v(t1))
        k.I("buffer_load_dword", v(vd + i), v(t1), sr(sP, 4), s(st0), mods="offen")
    k.L(R["done"])
    k.I("s_endpgm")
    k.lds = lds; k.threads = 512; k.grid = 256
    return k


def gen_k4b(Stamper):
    k = Kernel("k4_win_kernel")
    HREG = 0; WRING = 114688; WSL = 8192; NS = 5
    CWT = WRING + NS * WSL
    lds = CWT + 512
    R = common_start(k, 256)
    swave, st0, st1, soff, lane, t0, t1, t2 = (R[x] for x in ("swave", "st0", "st1", "soff", "lane", "t0", "t1", "t2"))
    pWin = k.salloc(2); pWS = k.salloc(2)
    k.I("s_load_dwordx2", sr(pWin, 2), "s[0:1]", 32)
    k.I("s_load_dwordx2", sr(pWS, 2), "s[0:1]", 80)
    sWS = k.salloc(4); sWin = k.salloc(4)
    sj = k.salloc(); sidx = k.salloc(); srb = k.salloc(); sct = k.salloc(); sw3 = k.salloc()
    k.I("s_and_b32", s(sj), "s2", 7)
    k.I("s_lshr_b32", s(sidx), "s2", 3)
    k.I("s_and_b32", s(sw3), s(swave), 3)
    pfrole = k.newlabel("pfrole")
    k.I("s_cmp_ge_u32", s(sidx), 28)
    k.I("s_cbranch_scc1", pfrole)
    k.I("s_mul_i32", s(st0), s(sidx), 37)
    k.I("s_lshr_b32", s(st0), s(st0), 8)
    k.I("s_mul_i32", s(st1), s(st0), 7)
    k.I("s_sub_u32", s(sct), s(sidx), s(st1))
    k.I("s_and_b32", s(st1), s(sj), 1)
    k.I("s_mul_i32", s(st1), s(st1), 7)
    k.I("s_add_u32", s(sct), s(sct), s(st1))
    k.I("s_lshr_b32", s(srb), s(sj), 1)
    k.I("s_lshl_b32", s(srb), s(srb), 2)
    k.I("s_add_u32", s(srb), s(srb), s(st0))
    stp = Stamper(k, 3, sWS, swave)
    sst = k.salloc()
    k.I("s_lshl_b32", s(sst), s(srb), 2)
    k.I("s_add_u32", s(sst), s(sst), s(sw3))
    comp = k.newlabel("compute")
    k.I("s_cmp_lt_u32", s(swave), 4)
    k.I("s_cbranch_scc1", comp)
    vsave = k.vnext
    v16 = k.valloc(); vWo = k.valloc()
    k.I("v_lshlrev_b32", v(v16), 4, v(lane))
    k.I("v_lshrrev_b32", v(t0), 3, v(lane))
    k.I("v_mul_u32_u24", v(t0), 3584, v(t0))
    k.I("v_bfe_u32", v(t1), v(lane), 4, 1)
    k.I("v_lshlrev_b32", v(t1), 2, v(t1))
    k.I("v_and_b32", v(t2), 7, v(lane))
    k.I("v_xor_b32", v(t1), v(t1), v(t2))
    k.I("v_lshl_add_u32", v(vWo), v(t1), 4, v(t0))
    sHb = k.salloc(); sWb = k.salloc(); smH = k.salloc(); smW = k.salloc()
    k.I("s_mul_i32", s(sHb), s(sst), 28 * 1024)
    k.I("s_add_u32", s(sHb), s(sHb), hex(H_OFF))
    k.I("s_mul_i32", s(smH), s(sw3), 28 * 1024)
    k.I("s_mul_i32", s(sWb), s(sw3), 16 * 3584)
    k.I("s_lshl_b32", s(st1), s(sct), 7)
    k.I("s_add_u32", s(sWb), s(sWb), s(st1))
    k.I("s_lshl_b32", s(smW), s(sw3), 11)
    k.I("s_add_u32", s(smW), s(smW), WRING)
    srot = k.salloc(); scp = k.salloc(); sa1 = k.salloc(); sa2 = k.salloc()
    k.I("s_lshl_b32", s(st0), s(srb), 1)
    k.I("s_add_u32", s(st0), s(st0), s(sct))
    k.I("s_mul_i32", s(st1), s(st0), 37)
    k.I("s_lshr_b32", s(st1), s(st1), 8)
    k.I("s_mul_i32", s(st1), s(st1), 7)
    k.I("s_sub_u32", s(srot), s(st0), s(st1))
    if not rot_on(4): k.I("s_mov_b32", s(srot), 0)
    def issue(c):
        cc = c % 7
        rot_index(k, scp, srot, cc, 7)
        if c < 7:
            k.I("s_lshl_b32", s(sa1), s(scp), 12)
            k.I("s_add_u32", s(sa1), s(sa1), s(sHb))
            for i in range(4):
                k.I("s_add_u32", s(soff), s(sa1), hex(i * 1024))
                k.I("s_add_u32", "m0", s(smH), hex(HREG + (4 * c + i) * 1024))
                k.vm(("S", c), "buffer_load_dwordx4", v(v16), sr(sWS, 4), s(soff), mods="offen lds")
        col = 1792 if c < 7 else 0
        k.I("s_mul_i32", s(sa2), s(scp), 64 * 3584)
        k.I("s_add_u32", s(sa2), s(sa2), s(sWb))
        for i in range(2):
            k.I("s_add_u32", s(soff), s(sa2), hex(8 * i * 3584 + col))
            k.I("s_add_u32", "m0", s(smW), hex((c % NS) * WSL + i * 1024))
            k.vm(("S", c), "buffer_load_dwordx4", v(vWo), sr(sWin, 4), s(soff), mods="offen lds")
    nocw = k.newlabel("nocw")
    k.I("s_waitcnt", "lgkmcnt(0)")
    srd(k, sWS, pWS, WS_SIZE)
    srd(k, sWin, pWin, 448 * 3584)
    issue(0)
    k.I("s_cmp_ge_u32", s(sw3), 2)
    k.I("s_cbranch_scc1", nocw)
    k.I("v_lshlrev_b32", v(t0), 2, v(lane))
    k.I("s_lshl_b32", s(st0), s(sct), 8)
    k.I("s_xor_b32", s(st1), s(sw3), 1)
    k.I("s_mul_i32", s(st1), s(st1), 896 * 4)
    k.I("s_add_u32", s(st0), s(st0), s(st1))
    k.I("s_add_u32", s(soff), s(st0), hex(CW_OFF))
    k.I("s_lshl_b32", s(st1), s(sw3), 8)
    k.I("s_add_u32", "m0", s(st1), CWT)
    k.I("buffer_load_dword", v(t0), sr(sWS, 4), s(soff), mods="offen lds")
    k.L(nocw)
    k.vmq.append(("S", 1))
    issue(1); issue(2)
    NST = 14
    for c in range(NST):
        if c == 0:
            k.I("s_waitcnt", "vmcnt(12)")
            k.vmq = k.vmq[6:]
        else:
            k.wait_vm(("S", c))
        k.I("s_barrier")
        if c == 0: issue(3); issue(4)
        elif c >= 2 and c + 3 < NST: issue(c + 3)
    k.I("s_endpgm")
    k.L(comp)
    k.vnext = vsave; k.vmq = []; k.lgq = []
    l31 = k.valloc(); hh = k.valloc()
    k.I("v_and_b32", v(l31), 31, v(lane))
    k.I("v_lshrrev_b32", v(hh), 5, v(lane))
    hs = k.valloc(16, 4); vh = k.valloc()
    k.I("v_mul_u32_u24", v(vh), 112, v(l31))
    k.I("v_lshl_add_u32", v(vh), v(hh), 6, v(vh))
    k.I("s_mul_i32", s(soff), s(sst), 32 * 112)
    sEX = k.salloc()
    k.I("s_add_u32", s(sEX), s(soff), hex(EX_OFF))
    k.I("s_add_u32", s(soff), s(soff), hex(HS_OFF))
    k.I("s_waitcnt", "lgkmcnt(0)")
    srd(k, sWS, pWS, WS_SIZE)
    for i in range(4):
        k.vm("hs", "buffer_load_dwordx4", vr(hs + 4 * i, 4), v(vh), sr(sWS, 4), s(soff), mods=f"offen offset:{16 * i}")
    code_prefetch(k, "k5_sp_kernel", sidx, st0)
    stp.stamp(0)
    aH = k.valloc(); v16 = k.valloc(); vW = [k.valloc(), k.valloc()]
    k.I("v_lshlrev_b32", v(v16), 4, v(lane))
    k.I("s_mul_i32", s(st0), s(swave), 28 * 1024)
    k.I("v_add_u32", v(aH), s(st0), v(v16))
    k.I("v_bfe_u32", v(t0), v(lane), 2, 2)
    k.I("v_lshl_add_u32", v(t0), v(hh), 2, v(t0))
    k.I("v_lshlrev_b32", v(t0), 7, v(t0))
    k.I("v_add_u32", v(t0), WRING, v(t0))
    k.I("v_bfe_u32", v(t1), v(lane), 4, 1)
    k.I("v_lshlrev_b32", v(t1), 1, v(t1))
    k.I("v_bfe_u32", v(t2), v(lane), 1, 1)
    k.I("v_add_u32", v(t1), v(t1), v(t2))
    k.I("v_bfe_u32", v(t2), v(lane), 3, 1)
    k.I("v_lshlrev_b32", v(t2), 2, v(t2))
    for n2 in range(2):
        k.I("v_add_u32", v(vW[n2]), 4 * n2, v(t1))
        k.I("v_xor_b32", v(vW[n2]), v(vW[n2]), v(t2))
        k.I("v_lshl_add_u32", v(vW[n2]), v(vW[n2]), 4, v(t0))
    k.I("v_and_b32", v(t1), 1, v(lane))
    for n2 in range(2): k.I("v_lshl_add_u32", v(vW[n2]), v(t1), 3, v(vW[n2]))
    rr = k.valloc(2); nm = k.valloc(2); c0r = k.valloc(2); c1r = k.valloc(2)
    k.wait_vm("hs")
    k.I("v_cmp_eq_u32", "vcc", 0, v(hh))
    H = hs
    for i in range(12, 16): k.I("v_cndmask_b32", v(H + i), 0, v(H + i), "vcc")
    for i in range(4): k.I("v_pk_add_f32", vr(H + 2 * i, 2), vr(H + 2 * i, 2), vr(H + 8 + 2 * i, 2))
    for i in range(2): k.I("v_pk_add_f32", vr(H + 2 * i, 2), vr(H + 2 * i, 2), vr(H + 4 + 2 * i, 2))
    k.I("v_pk_add_f32", vr(H, 2), vr(H, 2), vr(H + 2, 2))
    for e in range(2):
        k.I("v_mov_b32", v(H + 2), v(H + e))
        k.I("v_permlane32_swap_b32", v(H + e), v(H + 2))
        k.I("v_add_f32", v(H + e), v(H + e), v(H + 2))
    k.I("v_mul_f32", v(nm), hex(f32(-1.0 / 448)), v(H))
    k.I("v_mul_f32", v(H + 1), hex(f32(1.0 / 448)), v(H + 1))
    k.I("v_fma_f32", v(H + 1), f"-{v(nm)}", v(nm), v(H + 1))
    k.I("v_max_f32", v(H + 1), 0, v(H + 1))
    k.I("v_add_f32", v(H + 1), hex(f32(1e-5)), v(H + 1))
    k.I("v_rsq_f32", v(rr), v(H + 1))
    k.I("v_mul_f32", v(c0r), hex(f32(GELU_C0)), v(rr))
    k.I("v_mul_f32", v(c1r), v(rr), v(rr))
    k.I("v_mul_f32", v(c1r), v(c1r), v(rr))
    k.I("v_mul_f32", v(c1r), hex(f32(GELU_C1)), v(c1r))
    norh = k.newlabel("norh")
    k.I("s_cmp_lg_u32", s(sct), 0)
    k.I("s_cbranch_scc1", norh)
    k.I("v_lshlrev_b32", v(t0), 2, v(l31))
    k.I("s_lshl_b32", s(st0), s(sst), 7)
    k.I("s_add_u32", s(st0), s(st0), hex(RH_OFF))
    k.I("buffer_store_dword", v(rr), v(t0), sr(sWS, 4), s(st0), mods="offen")
    k.L(norh)
    acc = [[k.valloc(16, 4) for _ in range(2)] for _ in range(2)]
    cwr = hs
    tp = [k.valloc(2) for _ in range(4)]
    NB = 3
    hf = [k.valloc(4) for _ in range(NB)]
    wf = [[k.valloc(4) for _ in range(2)] for _ in range(NB)]
    def rl(g):
        ks = g % 28; c = g // 4; j = g % 4
        b = g % NB
        out = [lambda: k.lg(("f", g), "ds_read_b128", vr(hf[b], 4), v(aH), mods=f"offset:{ks * 1024}")]
        for n2 in range(2):
            for beta in range(2):
                o = (c % NS) * WSL + (16 * j + 8 * beta) * 128
                out.append(lambda o=o, n2=n2, beta=beta: k.lg(("f", g), "ds_read_b64_tr_b16", vr(wf[b][n2] + 2 * beta, 2), v(vW[n2]), mods=f"offset:{o}"))
        return out
    vcw = k.valloc()
    k.I("v_lshlrev_b32", v(vcw), 4, v(hh))
    k.I("v_add_u32", v(vcw), CWT, v(vcw))
    def gelu_tile(A, z, n2):
        for q in range(4):
            k.lg("cw", "ds_read_b128", vr(cwr + 4 * q, 4), v(vcw), mods=f"offset:{z * 256 + n2 * 128 + 32 * q}")
        k.wait_lg("cw")
        for j in range(8):
            k.I("v_pk_fma_f32", vr(A + 2 * j, 2), vr(cwr + 2 * j, 2), vr(nm, 2), vr(A + 2 * j, 2), mods="op_sel_hi:[1,0,1]")
        for j0 in range(0, 8, 4):
            for j in range(j0, j0 + 4): k.I("v_pk_mul_f32", vr(tp[j - j0], 2), vr(A + 2 * j, 2), vr(A + 2 * j, 2))
            for j in range(j0, j0 + 4): k.I("v_pk_fma_f32", vr(tp[j - j0], 2), vr(tp[j - j0], 2), vr(c1r, 2), vr(c0r, 2), mods="op_sel_hi:[1,0,0]")
            for j in range(j0, j0 + 4): k.I("v_pk_mul_f32", vr(tp[j - j0], 2), vr(tp[j - j0], 2), vr(A + 2 * j, 2))
            for j in range(j0, j0 + 4):
                k.I("v_exp_f32", v(tp[j - j0]), v(tp[j - j0])); k.I("v_exp_f32", v(tp[j - j0] + 1), v(tp[j - j0] + 1))
            for j in range(j0, j0 + 4): k.I("v_pk_add_f32", vr(tp[j - j0], 2), vr(tp[j - j0], 2), "1.0", mods="op_sel_hi:[1,0]")
            for j in range(j0, j0 + 4):
                k.I("v_rcp_f32", v(tp[j - j0]), v(tp[j - j0])); k.I("v_rcp_f32", v(tp[j - j0] + 1), v(tp[j - j0] + 1))
            for j in range(j0, j0 + 4): k.I("v_pk_mul_f32", vr(A + 2 * j, 2), vr(A + 2 * j, 2), vr(tp[j - j0], 2))
    def mainloop(z):
        for g in range(28 * z, 28 * z + 28):
            ks = g % 28; j = g % 4; c = g // 4
            b = g % NB
            k.wait_lg(("f", g))
            mf = [lambda n2=n2: k.I("v_mfma_f32_32x32x16_bf16", vr(acc[z][n2], 16), vr(wf[b][n2], 4), vr(hf[b], 4), 0 if ks == 0 else vr(acc[z][n2], 16)) for n2 in range(2)]
            nxt = g + 2
            fl = rl(nxt) if nxt < 28 * z + 28 else []
            if j == 2 and c + 1 < NST: k.I("s_barrier")
            interleave(k, mf, fl)
    k.I("s_barrier")
    stp.stamp(1)
    for f in rl(0) + rl(1): f()
    mainloop(0)
    for f in rl(28) + rl(29): f()
    stp.stamp(2)
    accs = k.valloc(2); accq = k.valloc(2)
    for n2 in range(2):
        A = acc[0][n2]
        gelu_tile(A, 0, n2)
        for j in range(8):
            k.I("v_pk_mul_f32", vr(A + 2 * j, 2), vr(A + 2 * j, 2), vr(rr, 2), mods="op_sel_hi:[1,0]")
        for j in range(8):
            if n2 == 0 and j == 0:
                k.I("v_mov_b32", v(accs), v(A)); k.I("v_mov_b32", v(accs + 1), v(A + 1))
                k.I("v_pk_mul_f32", vr(accq, 2), vr(A, 2), vr(A, 2))
            else:
                k.I("v_pk_add_f32", vr(accs, 2), vr(accs, 2), vr(A + 2 * j, 2))
                k.I("v_pk_fma_f32", vr(accq, 2), vr(A + 2 * j, 2), vr(A + 2 * j, 2), vr(accq, 2))
    k.I("v_add_f32", v(accs), v(accs), v(accs + 1))
    k.I("v_add_f32", v(accs + 1), v(accq), v(accq + 1))
    for e in range(2):
        k.I("v_mov_b32", v(accq), v(accs + e))
        k.I("v_permlane32_swap_b32", v(accs + e), v(accq))
        k.I("v_add_f32", v(accs + e), v(accs + e), v(accq))
    k.I("v_mov_b32", v(t1), "0x7fc00000")
    k.I("v_cmp_eq_u32", "vcc", -1, v(accs + 1))
    k.I("v_cndmask_b32", v(accs + 1), v(accs + 1), v(t1), "vcc")
    ve = k.valloc()
    k.I("v_mul_u32_u24", v(ve), 112, v(l31))
    k.I("s_lshl_b32", s(st0), s(sct), 3)
    k.I("s_add_u32", s(soff), s(sEX), s(st0))
    k.I("s_mov_b32", "exec_hi", 0)
    k.I("buffer_store_dwordx2", vr(accs, 2), v(ve), sr(sWS, 4), s(soff), mods="offen sc0 sc1")
    k.I("s_mov_b64", "exec", -1)
    stp.stamp(3)
    mainloop(1)
    ex = k.valloc(16, 4)
    for i in range(4):
        k.I("buffer_load_dwordx4", vr(ex + 4 * i, 4), v(vh), sr(sWS, 4), s(sEX), mods=f"offen offset:{16 * i} sc0 sc1")
    P = [k.valloc(8, 4) for _ in range(2)]
    sft = k.salloc()
    k.I("s_lshl_b32", s(sft), s(sct), 1)
    for n2 in range(2):
        A = acc[1][n2]
        gelu_tile(A, 1, n2)
        for j in range(8): k.I("v_cvt_pk_bf16_f32", v(P[n2] + j), v(A + 2 * j), v(A + 2 * j + 1))
        k.I("s_mul_i32", s(soff), s(sst), 56 * 1024)
        k.I("s_add_u32", s(st0), s(sft), n2)
        k.I("s_lshl_b32", s(st0), s(st0), 11)
        k.I("s_add_u32", s(soff), s(soff), s(st0))
        k.I("s_add_u32", s(soff), s(soff), hex(Z1_OFF))
        k.I("buffer_store_dwordx4", vr(P[n2], 4), v(v16), sr(sWS, 4), s(soff), mods="offen")
        k.I("buffer_store_dwordx4", vr(P[n2] + 4, 4), v(v16), sr(sWS, 4), s(soff), mods="offen offset:1024")
    stp.stamp(4)
    scount = k.salloc()
    k.I("s_mov_b32", s(scount), 0)
    poll = k.newlabel("poll"); pdone = k.newlabel("pdone"); pchk = k.newlabel("pchk")
    k.I("s_waitcnt", "vmcnt(4)")
    k.I("s_branch", pchk)
    k.L(poll)
    for i in range(4):
        k.I("buffer_load_dwordx4", vr(ex + 4 * i, 4), v(vh), sr(sWS, 4), s(sEX), mods=f"offen offset:{16 * i} sc0 sc1")
    k.I("s_waitcnt", "vmcnt(0)")
    k.L(pchk)
    k.I("v_cmp_eq_u32", "vcc", 0, v(hh))
    for i in range(12, 16): k.I("v_cndmask_b32", v(ex + i), 0, v(ex + i), "vcc")
    k.I("v_max_u32", v(t0), v(ex + 1), v(ex + 3))
    for i in range(2, 8): k.I("v_max_u32", v(t0), v(t0), v(ex + 2 * i + 1))
    k.I("v_cmp_eq_u32", "vcc", -1, v(t0))
    k.I("s_add_u32", s(scount), s(scount), 1)
    k.I("s_cmp_eq_u64", "vcc", 0)
    k.I("s_cbranch_scc1", pdone)
    k.I("s_cmp_lt_u32", s(scount), 0x40000)
    k.I("s_cbranch_scc0", pdone)
    k.I("s_sleep", 1)
    k.I("s_branch", poll)
    k.L(pdone)
    k.vmq = []
    sc_ = k.valloc(2); zm = k.valloc(2)
    H = ex
    for i in range(4): k.I("v_pk_add_f32", vr(H + 2 * i, 2), vr(H + 2 * i, 2), vr(H + 8 + 2 * i, 2))
    for i in range(2): k.I("v_pk_add_f32", vr(H + 2 * i, 2), vr(H + 2 * i, 2), vr(H + 4 + 2 * i, 2))
    k.I("v_pk_add_f32", vr(H, 2), vr(H, 2), vr(H + 2, 2))
    for e in range(2):
        k.I("v_mov_b32", v(H + 2), v(H + e))
        k.I("v_permlane32_swap_b32", v(H + e), v(H + 2))
        k.I("v_add_f32", v(H + e), v(H + e), v(H + 2))
    k.I("v_mul_f32", v(zm), hex(f32(-1.0 / 896)), v(H))
    k.I("v_mul_f32", v(H + 1), hex(f32(1.0 / 896)), v(H + 1))
    k.I("v_fma_f32", v(H + 1), f"-{v(zm)}", v(zm), v(H + 1))
    k.I("v_max_f32", v(H + 1), 0, v(H + 1))
    k.I("v_add_f32", v(H + 1), hex(f32(1e-5)), v(H + 1))
    k.I("v_rsq_f32", v(sc_), v(H + 1))
    k.I("v_mul_f32", v(zm), v(zm), v(sc_))
    vt = k.valloc(); vtr = k.valloc()
    k.I("s_mul_i32", s(st0), s(swave), 28 * 1024)
    k.I("v_mul_u32_u24", v(vt), 136, v(l31))
    k.I("v_lshl_add_u32", v(vt), v(hh), 3, v(vt))
    k.I("v_add_u32", v(vt), s(st0), v(vt))
    for n2 in range(2):
        A = acc[0][n2]
        for j in range(8):
            k.I("v_pk_fma_f32", vr(A + 2 * j, 2), vr(A + 2 * j, 2), vr(sc_, 2), vr(zm, 2), mods="op_sel_hi:[1,0,0]")
        for j in range(8): k.I("v_cvt_pk_bf16_f32", v(P[n2] + j), v(A + 2 * j), v(A + 2 * j + 1))
        for q in range(4):
            k.I("ds_write_b64", v(vt), vr(P[n2] + 2 * q, 2), mods=f"offset:{64 * n2 + 16 * q}")
    k.I("v_bfe_u32", v(t0), v(lane), 2, 2)
    k.I("v_lshl_add_u32", v(t0), v(hh), 3, v(t0))
    k.I("v_mul_u32_u24", v(vtr), 136, v(t0))
    k.I("v_bfe_u32", v(t0), v(lane), 4, 1)
    k.I("v_lshl_add_u32", v(vtr), v(t0), 5, v(vtr))
    k.I("v_and_b32", v(t0), 3, v(lane))
    k.I("v_lshl_add_u32", v(vtr), v(t0), 3, v(vtr))
    k.I("v_add_u32", v(vtr), s(st0), v(vtr))
    k.I("s_waitcnt", "lgkmcnt(0)")
    Z = acc[1][0]
    for n2 in range(2):
        for ks in range(2):
            for beta in range(2):
                k.I("ds_read_b64_tr_b16", vr(Z + 8 * n2 + 4 * ks + 2 * beta, 2), v(vtr), mods=f"offset:{(16 * ks + 4 * beta) * 136 + 64 * n2}")
    k.I("s_lshr_b32", s(st0), s(sst), 5)
    k.I("s_mul_i32", s(st0), s(st0), ZK)
    k.I("s_and_b32", s(st1), s(sst), 31)
    k.I("s_lshl_b32", s(st1), s(st1), 11)
    k.I("s_add_u32", s(st0), s(st0), s(st1))
    k.I("s_add_u32", s(st0), s(st0), hex(Z2_OFF))
    for n2 in range(2):
        k.I("s_add_u32", s(st1), s(sft), n2)
        k.I("s_mul_i32", s(soff), s(st1), ZS)
        k.I("s_add_u32", s(soff), s(soff), s(st0))
        for ks in range(2):
            k.I("s_waitcnt", f"lgkmcnt({6 - 4 * n2 - 2 * ks})")
            k.I("buffer_store_dwordx4", vr(Z + 8 * n2 + 4 * ks, 4), v(v16), sr(sWS, 4), s(soff), mods=f"offen offset:{ks * 1024}")
    stp.stamp(5)
    k.I("s_endpgm")
    k.L(pfrole)
    if os.environ.get('K4PF', 'sparse') == 'dense':
        pp = k.salloc(2); sP = k.salloc(4); vT = k.valloc(); vd = k.valloc(32, 4)
        k.I("s_load_dwordx2", sr(pp, 2), "s[0:1]", 40)
        k.I("s_sub_u32", s(st0), s(sidx), 28)
        k.I("s_lshl_b32", s(st0), s(st0), 3)
        k.I("s_add_u32", s(st0), s(st0), s(swave))
        k.I("s_lshl_b32", s(st0), s(st0), 16)
        k.I("s_lshr_b32", s(st1), s(sj), 1)
        k.I("s_lshl_b32", s(st1), s(st1), 21)
        k.I("s_add_u32", s(st0), s(st0), s(st1))
        k.I("s_and_b32", s(st1), s(sj), 1)
        k.I("s_lshl_b32", s(st1), s(st1), 11)
        k.I("s_add_u32", s(st0), s(st0), s(st1))
        k.I("v_lshlrev_b32", v(vT), 4, v(lane))
        k.I("s_waitcnt", "lgkmcnt(0)")
        srd(k, sP, pp, 2048 * 4096)
        for i in range(16):
            k.I("s_add_u32", s(soff), s(st0), hex(i * 4096))
            for hf_ in range(2):
                k.I("buffer_load_dwordx4", vr(vd + 4 * ((2 * i + hf_) % 8), 4), v(vT), sr(sP, 4), s(soff), mods=f"offen offset:{hf_ * 1024}")
    else:
        pp = k.salloc(2); sP = k.salloc(4); vT = k.valloc(); vd = k.valloc(4)
        k.I("s_load_dwordx2", sr(pp, 2), "s[0:1]", 40)
        k.I("s_sub_u32", s(st0), s(sidx), 28)
        k.I("s_lshl_b32", s(st0), s(st0), 9)
        k.I("v_add_u32", v(vT), s(st0), "v0")
        k.I("s_lshr_b32", s(st0), s(sj), 1)
        k.I("s_lshl_b32", s(st0), s(st0), 21)
        k.I("s_and_b32", s(st1), s(sj), 1)
        k.I("s_lshl_b32", s(st1), s(st1), 11)
        k.I("s_add_u32", s(st0), s(st0), s(st1))
        k.I("s_waitcnt", "lgkmcnt(0)")
        srd(k, sP, pp, 2048 * 4096)
        for i in range(4):
            k.I("v_add_u32", v(t0), 2048 * i, v(vT))
            k.I("v_lshrrev_b32", v(t1), 4, v(t0))
            k.I("v_lshlrev_b32", v(t1), 12, v(t1))
            k.I("v_and_b32", v(t2), 15, v(t0))
            k.I("v_lshl_add_u32", v(t1), v(t2), 7, v(t1))
            k.I("buffer_load_dword", v(vd + i), v(t1), sr(sP, 4), s(st0), mods="offen")
    k.L(R["done"])
    k.I("s_endpgm")
    k.lds = lds; k.threads = 512; k.grid = 256
    return k

def gen_k5(Stamper):
    k = Kernel("k5_sp_kernel")
    NS = 4; SLOT = 32768
    Z1REG = NS * SLOT
    lds = Z1REG + 32768
    R = common_start(k, 256)
    swave, st0, st1, soff, lane, t0, t1, t2 = (R[x] for x in ("swave", "st0", "st1", "soff", "lane", "t0", "t1", "t2"))
    pSp = k.salloc(2); pB = k.salloc(2); pWS = k.salloc(2)
    k.I("s_load_dwordx2", sr(pSp, 2), "s[0:1]", 40)
    k.I("s_load_dwordx2", sr(pB, 2), "s[0:1]", 48)
    k.I("s_load_dwordx2", sr(pWS, 2), "s[0:1]", 80)
    sWS = k.salloc(4); sSp = k.salloc(4); sB = k.salloc(4)
    sj = k.salloc(); sidx = k.salloc(); stt = k.salloc(); sft = k.salloc(); skap = k.salloc(); sw3 = k.salloc()
    if os.environ.get("K5MAP") == "linear":
        k.I("s_mul_i32", s(sj), "s2", 2341)
        k.I("s_lshr_b32", s(sj), s(sj), 16)
        k.I("s_mul_i32", s(sidx), s(sj), 28)
        k.I("s_sub_u32", s(sidx), "s2", s(sidx))
    else:
        k.I("s_and_b32", s(sj), "s2", 7)
        k.I("s_lshr_b32", s(sidx), "s2", 3)
    pfrole = k.newlabel("pfrole")
    k.I("s_cmp_ge_u32", s(sidx), 28)
    k.I("s_cbranch_scc1", pfrole)
    k.I("s_and_b32", s(sw3), s(swave), 3)
    k.I("s_and_b32", s(skap), s(sj), 1)
    k.I("s_mul_i32", s(st0), s(sidx), 37)
    k.I("s_lshr_b32", s(st0), s(st0), 8)
    k.I("s_mul_i32", s(st1), s(st0), 7)
    k.I("s_sub_u32", s(sft), s(sidx), s(st1))
    k.I("s_lshr_b32", s(stt), s(sj), 1)
    k.I("s_lshl_b32", s(stt), s(stt), 2)
    k.I("s_add_u32", s(stt), s(stt), s(st0))
    stp = Stamper(k, 4, sWS, swave)
    if os.environ.get("TICKWAVE", "0") != "0": stp.tick(0)
    comp = k.newlabel("compute")
    k.I("s_cmp_lt_u32", s(swave), 4)
    k.I("s_cbranch_scc1", comp)
    vsave = k.vnext
    v16 = k.valloc(); vWo = k.valloc(2)
    k.I("v_lshlrev_b32", v(v16), 4, v(lane))
    k.I("v_lshrrev_b32", v(t0), 3, v(lane))
    k.I("v_lshlrev_b32", v(t0), 12, v(t0))
    k.I("v_lshrrev_b32", v(t1), 4, v(lane))
    k.I("v_and_b32", v(t2), 7, v(lane))
    k.I("v_xor_b32", v(t1), v(t1), v(t2))
    k.I("v_lshl_add_u32", v(vWo), v(t1), 4, v(t0))
    k.I("v_xor_b32", v(t1), 4, v(t1))
    k.I("v_lshl_add_u32", v(vWo + 1), v(t1), 4, v(t0))
    sZb = k.salloc(); sWb = k.salloc(); smZ = k.salloc(); smW = k.salloc()
    k.I("s_lshl_b32", s(st0), s(sft), 2)
    k.I("s_add_u32", s(st0), s(st0), s(sw3))
    k.I("s_mul_i32", s(sZb), s(st0), ZS)
    k.I("s_mul_i32", s(st1), s(skap), ZK)
    k.I("s_add_u32", s(sZb), s(sZb), s(st1))
    k.I("s_add_u32", s(sZb), s(sZb), hex(Z2_OFF))
    k.I("s_lshl_b32", s(smZ), s(sw3), 12)
    k.I("s_lshl_b32", s(st0), s(stt), 7)
    k.I("s_lshl_b32", s(st1), s(sw3), 5)
    k.I("s_add_u32", s(st0), s(st0), s(st1))
    k.I("s_lshl_b32", s(sWb), s(st0), 12)
    k.I("s_lshl_b32", s(st1), s(skap), 11)
    k.I("s_add_u32", s(sWb), s(sWb), s(st1))
    k.I("s_add_u32", s(smW), s(smZ), 16384)
    srot = k.salloc(); scp = k.salloc(); sa1 = k.salloc(); sa2 = k.salloc()
    k.I("s_lshl_b32", s(st0), s(sft), 1)
    k.I("s_mul_i32", s(st1), s(stt), 5)
    k.I("s_add_u32", s(srot), s(st0), s(st1))
    k.I("s_and_b32", s(srot), s(srot), 15)
    if not rot_on(5): k.I("s_mov_b32", s(srot), 0)
    def issue(c):
        sl = (c % NS) * SLOT
        k.I("s_add_u32", s(scp), s(srot), c)
        k.I("s_and_b32", s(scp), s(scp), 15)
        k.I("s_lshl_b32", s(sa1), s(scp), 12)
        k.I("s_add_u32", s(sa1), s(sa1), s(sZb))
        k.I("s_lshl_b32", s(sa2), s(scp), 7)
        k.I("s_add_u32", s(sa2), s(sa2), s(sWb))
        for i in range(4):
            k.I("s_add_u32", s(soff), s(sa1), hex(i * 1024))
            k.I("s_add_u32", "m0", s(smZ), hex(sl + i * 1024))
            k.vm(("S", c), "buffer_load_dwordx4", v(v16), sr(sWS, 4), s(soff), mods="offen lds")
        for i in range(4):
            k.I("s_add_u32", s(soff), s(sa2), hex(i * 8 * 4096))
            k.I("s_add_u32", "m0", s(smW), hex(sl + i * 1024))
            k.vm(("S", c), "buffer_load_dwordx4", v(vWo + (i & 1)), sr(sSp, 4), s(soff), mods="offen lds")
    NST = 16
    sZ1 = k.salloc()
    k.I("s_lshl_b32", s(st0), s(stt), 2)
    k.I("s_add_u32", s(st0), s(st0), s(sw3))
    k.I("s_mul_i32", s(sZ1), s(st0), 56 * 1024)
    k.I("s_lshl_b32", s(st1), s(sft), 13)
    k.I("s_add_u32", s(sZ1), s(sZ1), s(st1))
    k.I("s_add_u32", s(sZ1), s(sZ1), hex(Z1_OFF))
    smZ1 = k.salloc()
    k.I("s_lshl_b32", s(smZ1), s(sw3), 13)
    def issue_z1(i, tag):
        k.I("s_add_u32", s(soff), s(sZ1), hex(i * 1024))
        k.I("s_add_u32", "m0", s(smZ1), hex(Z1REG + i * 1024))
        k.vm(("S", tag), "buffer_load_dwordx4", v(v16), sr(sWS, 4), s(soff), mods="offen lds")
    LT = os.environ.get("TICKWAVE", "0") != "0"
    k.I("s_waitcnt", "lgkmcnt(0)")
    srd(k, sWS, pWS, WS_SIZE)
    srd(k, sSp, pSp, 2048 * 4096)
    if LT: stp.tick(1)
    issue(0)
    if LT: stp.tick(2)
    issue(1)
    if LT: stp.tick(3)
    for c in range(NST):
        k.wait_vm(("S", c))
        if LT and c < 3: stp.tick(4 + 2 * c)
        k.I("s_barrier")
        if LT and c < 3: stp.tick(5 + 2 * c)
        if c == 0: issue(2); issue(3)
        elif c + 2 < NST and c >= 2:
            issue(c + 2)
            if 3 <= c < 11: issue_z1(c - 3, c + 2)
    vT = k.valloc()
    k.I("s_lshl_b32", s(st0), s(sidx), 8)
    k.I("v_subrev_u32", v(vT), 256, "v0")
    k.I("v_add_u32", v(vT), s(st0), v(vT))
    k.I("v_lshlrev_b32", v(vT), 7, v(vT))
    if LT: stp.dump_ticks()
    k.I("s_endpgm")
    k.L(comp)
    k.vnext = vsave; k.vmq = []; k.lgq = []
    l31 = k.valloc(); hh = k.valloc()
    k.I("v_and_b32", v(l31), 31, v(lane))
    k.I("v_lshrrev_b32", v(hh), 5, v(lane))
    sfh = k.salloc(); sth = k.salloc(); sst = k.salloc(); sf32 = k.salloc()
    k.I("s_and_b32", s(sfh), s(swave), 1)
    k.I("s_lshr_b32", s(sth), s(swave), 1)
    k.I("s_lshl_b32", s(sst), s(stt), 2)
    k.I("s_lshl_b32", s(st0), s(sth), 1)
    k.I("s_add_u32", s(sst), s(sst), s(st0))
    k.I("s_lshl_b32", s(sf32), s(sft), 2)
    k.I("s_lshl_b32", s(st0), s(sfh), 1)
    k.I("s_add_u32", s(sf32), s(sf32), s(st0))
    if os.environ.get("PF3", "0") == "1":
        vT0 = k.valloc(); vd0 = k.valloc(2)
        k.I("s_lshl_b32", s(st0), s(sidx), 8)
        k.I("v_add_u32", v(vT0), s(st0), "v0")
        k.I("s_lshl_b32", s(st1), s(skap), 16)
        k.I("s_add_u32", s(st1), s(st1), hex(Z2_OFF))
        for i in range(2):
            k.I("v_add_u32", v(t0), 7168 * i, v(vT0))
            k.I("v_lshrrev_b32", v(t1), 9, v(t0))
            k.I("v_lshlrev_b32", v(t1), 17, v(t1))
            k.I("v_and_b32", v(t2), 511, v(t0))
            k.I("v_lshl_add_u32", v(t1), v(t2), 7, v(t1))
            k.vm("pf", "buffer_load_dword", v(vd0 + i), v(t1), sr(sWS, 4), s(st1), mods="offen")
    v16 = k.valloc()
    k.I("v_lshlrev_b32", v(v16), 4, v(lane))
    z1 = [[k.valloc(8, 4) for _ in range(2)] for _ in range(2)]
    rr = [k.valloc(2) for _ in range(2)]; bb = [k.valloc(2) for _ in range(2)]
    k.I("v_lshlrev_b32", v(t0), 2, v(l31))
    k.I("v_lshlrev_b32", v(t1), 1, v(l31))
    k.I("s_waitcnt", "lgkmcnt(0)")
    srd(k, sWS, pWS, WS_SIZE)
    srd(k, sB, pB, 4096)
    for ti in range(2):
        k.I("s_add_u32", s(st0), s(sst), ti)
        k.I("s_lshl_b32", s(soff), s(st0), 7)
        k.I("s_add_u32", s(soff), s(soff), hex(RH_OFF))
        k.vm("z1", "buffer_load_dword", v(rr[ti]), v(t0), sr(sWS, 4), s(soff), mods="offen")
        k.I("s_lshl_b32", s(soff), s(st0), 6)
        k.vm("z1", "buffer_load_ushort", v(bb[ti]), v(t1), sr(sB, 4), s(soff), mods="offen")
    if os.environ.get("PF2", "0") == "1":
        pp = k.salloc(2); sP = k.salloc(4); vT = k.valloc(); vd = k.valloc(2)
        k.I("s_load_dwordx2", sr(pp, 2), "s[0:1]", 56)
        k.I("s_lshl_b32", s(st0), s(sidx), 8)
        k.I("v_add_u32", v(vT), s(st0), "v0")
        k.I("v_lshlrev_b32", v(vT), 7, v(vT))
        k.I("s_waitcnt", "lgkmcnt(0)")
        srd(k, sP, pp, 896 * 896)
        k.vm("pf", "buffer_load_dword", v(vd), v(vT), sr(sP, 4), 0, mods="offen")
    code_prefetch(k, "k6_wout_kernel", sidx, st0)
    stp.stamp(0)
    aZ = k.valloc(); aW = k.valloc(4)
    k.I("s_lshl_b32", s(st0), s(sfh), 13)
    k.I("v_add_u32", v(aZ), s(st0), v(v16))
    k.I("v_bfe_u32", v(t0), v(l31), 1, 3)
    for j in range(4):
        k.I("v_add_u32", v(t1), 2 * j, v(hh))
        k.I("v_xor_b32", v(t1), v(t1), v(t0))
        k.I("v_lshlrev_b32", v(t1), 4, v(t1))
        k.I("v_lshl_add_u32", v(aW + j), v(l31), 7, v(t1))
        k.I("s_lshl_b32", s(st0), s(sth), 13)
        k.I("s_add_u32", s(st0), s(st0), 16384)
        k.I("v_add_u32", v(aW + j), s(st0), v(aW + j))
    aZ2 = k.valloc(); aW2 = k.valloc(4)
    k.I("v_add_u32", v(aZ2), 65536, v(aZ))
    for j in range(4): k.I("v_add_u32", v(aW2 + j), 65536, v(aW + j))
    acc = [[k.valloc(16, 4) for _ in range(2)] for _ in range(2)]
    NB = 3
    zf = [[k.valloc(4) for _ in range(2)] for _ in range(NB)]
    wf = [[k.valloc(4) for _ in range(2)] for _ in range(NB)]
    def rl(ks):
        c, j = ks // 4, ks % 4
        b = ks % NB
        sl = (c % NS) * SLOT
        hi = sl >= 65536
        so = sl - (65536 if hi else 0)
        out = []
        for fi in range(2):
            out.append(lambda fi=fi: k.lg(("f", ks), "ds_read_b128", vr(zf[b][fi], 4), v(aZ2 if hi else aZ), mods=f"offset:{so + fi * 4096 + j * 1024}"))
        for ti in range(2):
            out.append(lambda ti=ti: k.lg(("f", ks), "ds_read_b128", vr(wf[b][ti], 4), v((aW2 if hi else aW) + j), mods=f"offset:{so + ti * 4096}"))
        return out
    k.I("s_barrier")
    stp.stamp(1)
    for f in rl(0) + rl(1): f()
    NKS = NST * 4
    for ks in range(NKS):
        c, j = ks // 4, ks % 4
        b = ks % NB
        k.wait_lg(("f", ks))
        mf = []
        for fi in range(2):
            for ti in range(2):
                mf.append(lambda fi=fi, ti=ti: k.I("v_mfma_f32_32x32x16_bf16", vr(acc[fi][ti], 16), vr(zf[b][fi], 4), vr(wf[b][ti], 4), 0 if ks == 0 else vr(acc[fi][ti], 16)))
        fl = rl(ks + 2) if ks + 2 < NKS else []
        if j == 2 and ks + 2 < NKS:
            if not LT and c in (0, 13, 14): stp.tick({0: 0, 13: 1, 14: 2}[c])
            k.I("s_barrier")
        interleave(k, mf, fl)
    if not LT: stp.tick(3)
    stp.stamp(2)
    if not LT: stp.tick(4)
    if not LT: stp.tick(5)
    vz = k.valloc()
    k.I("s_lshl_b32", s(st0), s(sth), 14)
    k.I("s_lshl_b32", s(st1), s(sfh), 12)
    k.I("s_add_u32", s(st0), s(st0), s(st1))
    k.I("s_add_u32", s(st0), s(st0), Z1REG)
    k.I("v_add_u32", v(vz), s(st0), v(v16))
    for ti in range(2):
        for fi in range(2):
            for hf_ in range(2):
                k.lg(("z1", ti, fi), "ds_read_b128", vr(z1[fi][ti] + 4 * hf_, 4), v(vz), mods=f"offset:{ti * 8192 + fi * 2048 + hf_ * 1024}")
    k.wait_vm("z1")
    for ti in range(2):
        k.I("v_lshlrev_b32", v(bb[ti]), 16, v(bb[ti]))
        k.I("v_mul_f32", v(bb[ti]), v(bb[ti]), v(rr[ti]))
    k.I("s_cmp_eq_u32", s(skap), 0)
    k.I("s_cselect_b32", s(st0), "1.0", 0)
    for ti in range(2): k.I("v_mul_f32", v(bb[ti]), s(st0), v(bb[ti]))
    tp = [k.valloc(2) for _ in range(4)]
    P = [k.valloc(8, 4) for _ in range(2)]
    sU = k.salloc()
    k.I("s_mul_i32", s(sU), s(skap), U1_OFF - U0_OFF)
    k.I("s_add_u32", s(sU), s(sU), hex(U0_OFF))
    n = 0
    for ti in range(2):
        for fi in range(2):
            A = acc[fi][ti]; Zp = z1[fi][ti]; PP = P[n & 1]; n += 1
            for j in range(8):
                k.I("v_pk_fma_f32", vr(A + 2 * j, 2), vr(A + 2 * j, 2), vr(rr[ti], 2), vr(bb[ti], 2), mods="op_sel_hi:[1,0,0]")
            k.wait_lg(("z1", ti, fi))
            for j in range(8):
                T = tp[j % 4]
                k.I("v_lshlrev_b32", v(T), 16, v(Zp + j))
                k.I("v_and_b32", v(T + 1), "0xffff0000", v(Zp + j))
                k.I("v_pk_mul_f32", vr(A + 2 * j, 2), vr(A + 2 * j, 2), vr(T, 2))
            for j in range(8): k.I("v_cvt_pk_bf16_f32", v(PP + j), v(A + 2 * j), v(A + 2 * j + 1))
            k.I("s_add_u32", s(st0), s(sst), ti)
            k.I("s_mul_i32", s(soff), s(st0), 56 * 1024)
            k.I("s_add_u32", s(st0), s(sf32), fi)
            k.I("s_lshl_b32", s(st0), s(st0), 11)
            k.I("s_add_u32", s(soff), s(soff), s(st0))
            k.I("s_add_u32", s(soff), s(soff), s(sU))
            k.I("buffer_store_dwordx4", vr(PP, 4), v(v16), sr(sWS, 4), s(soff), mods="offen")
            k.I("buffer_store_dwordx4", vr(PP + 4, 4), v(v16), sr(sWS, 4), s(soff), mods="offen offset:1024")
            if not LT: stp.tick(5 + n)
    stp.stamp(3)
    if not LT: stp.tick(10)
    if not LT: stp.dump_ticks()
    k.I("s_endpgm")
    k.L(pfrole)
    vT2 = k.valloc()
    k.I("s_sub_u32", s(st0), s(sidx), 28)
    k.I("s_lshl_b32", s(st0), s(st0), 9)
    k.I("v_add_u32", v(vT2), s(st0), "v0")
    k.I("v_lshlrev_b32", v(vT2), 7, v(vT2))
    l2_prefetch(k, 56, 896 * 896, vT2, 2048, st0)
    k.L(R["done"])
    k.I("s_endpgm")
    k.lds = lds; k.threads = 512; k.grid = 256
    return k

def gen_k56(Stamper):
    k = Kernel("k5_sp_kernel")
    NS = 4; SLOT = 32768
    Z1REG = NS * SLOT
    lds = Z1REG + 32768
    R = common_start(k, 256)
    swave, st0, st1, soff, lane, t0, t1, t2 = (R[x] for x in ("swave", "st0", "st1", "soff", "lane", "t0", "t1", "t2"))
    pSp = k.salloc(2); pB = k.salloc(2); pWS = k.salloc(2)
    k.I("s_load_dwordx2", sr(pSp, 2), "s[0:1]", 40)
    k.I("s_load_dwordx2", sr(pB, 2), "s[0:1]", 48)
    k.I("s_load_dwordx2", sr(pWS, 2), "s[0:1]", 80)
    pWo = k.salloc(2); pOD = k.salloc(4)
    k.I("s_load_dwordx2", sr(pWo, 2), "s[0:1]", 56)
    k.I("s_load_dwordx4", sr(pOD, 4), "s[0:1]", 64)
    sWS = k.salloc(4); sSp = k.salloc(4); sB = k.salloc(4); sWo = k.salloc(4); sOut = k.salloc(4); sD = k.salloc(4)
    sj = k.salloc(); sidx = k.salloc(); stt = k.salloc(); sft = k.salloc(); skap = k.salloc(); sw3 = k.salloc()
    if os.environ.get("K5MAP") == "linear":
        k.I("s_mul_i32", s(sj), "s2", 2341)
        k.I("s_lshr_b32", s(sj), s(sj), 16)
        k.I("s_mul_i32", s(sidx), s(sj), 28)
        k.I("s_sub_u32", s(sidx), "s2", s(sidx))
    else:
        k.I("s_and_b32", s(sj), "s2", 7)
        k.I("s_lshr_b32", s(sidx), "s2", 3)
    pfrole = k.newlabel("pfrole")
    k.I("s_cmp_ge_u32", s(sidx), 28)
    k.I("s_cbranch_scc1", pfrole)
    k.I("s_and_b32", s(sw3), s(swave), 3)
    k.I("s_and_b32", s(skap), s(sj), 1)
    k.I("s_mul_i32", s(st0), s(sidx), 37)
    k.I("s_lshr_b32", s(st0), s(st0), 8)
    k.I("s_mul_i32", s(st1), s(st0), 7)
    k.I("s_sub_u32", s(sft), s(sidx), s(st1))
    k.I("s_lshr_b32", s(stt), s(sj), 1)
    k.I("s_lshl_b32", s(stt), s(stt), 2)
    k.I("s_add_u32", s(stt), s(stt), s(st0))
    stp = Stamper(k, 4, sWS, swave)
    if os.environ.get("TICKWAVE", "0") != "0": stp.tick(0)
    k.I("s_waitcnt", "lgkmcnt(0)")
    srd(k, sWS, pWS, WS_SIZE)
    comp = k.newlabel("compute")
    k.I("s_cmp_lt_u32", s(swave), 4)
    k.I("s_cbranch_scc1", comp)
    vsave = k.vnext
    srd(k, sSp, pSp, 2048 * 4096)
    v16 = k.valloc(); vWo = k.valloc(2)
    k.I("v_lshlrev_b32", v(v16), 4, v(lane))
    k.I("v_lshrrev_b32", v(t0), 3, v(lane))
    k.I("v_lshlrev_b32", v(t0), 12, v(t0))
    k.I("v_lshrrev_b32", v(t1), 4, v(lane))
    k.I("v_and_b32", v(t2), 7, v(lane))
    k.I("v_xor_b32", v(t1), v(t1), v(t2))
    k.I("v_lshl_add_u32", v(vWo), v(t1), 4, v(t0))
    k.I("v_xor_b32", v(t1), 4, v(t1))
    k.I("v_lshl_add_u32", v(vWo + 1), v(t1), 4, v(t0))
    sZb = k.salloc(); sWb = k.salloc(); smZ = k.salloc(); smW = k.salloc()
    k.I("s_lshl_b32", s(st0), s(sft), 2)
    k.I("s_add_u32", s(st0), s(st0), s(sw3))
    k.I("s_mul_i32", s(sZb), s(st0), ZS)
    k.I("s_mul_i32", s(st1), s(skap), ZK)
    k.I("s_add_u32", s(sZb), s(sZb), s(st1))
    k.I("s_add_u32", s(sZb), s(sZb), hex(Z2_OFF))
    k.I("s_lshl_b32", s(smZ), s(sw3), 12)
    k.I("s_lshl_b32", s(st0), s(stt), 7)
    k.I("s_lshl_b32", s(st1), s(sw3), 5)
    k.I("s_add_u32", s(st0), s(st0), s(st1))
    k.I("s_lshl_b32", s(sWb), s(st0), 12)
    k.I("s_lshl_b32", s(st1), s(skap), 11)
    k.I("s_add_u32", s(sWb), s(sWb), s(st1))
    k.I("s_add_u32", s(smW), s(smZ), 16384)
    def issue(c):
        sl = (c % NS) * SLOT
        def zpart():
            for i in range(4):
                k.I("s_add_u32", s(soff), s(sZb), hex((4 * c + i) * 1024))
                k.I("s_add_u32", "m0", s(smZ), hex(sl + i * 1024))
                k.vm(("S", c), "buffer_load_dwordx4", v(v16), sr(sWS, 4), s(soff), mods="offen lds")
                if os.environ.get("DIAG5") and c == 0 and i in (0, 3):
                    k.I("s_waitcnt", "vmcnt(0)"); stp.tick(10 + (i > 0))
        def wpart():
            for i in range(4):
                k.I("s_add_u32", s(soff), s(sWb), hex(i * 8 * 4096 + c * 128))
                k.I("s_add_u32", "m0", s(smW), hex(sl + i * 1024))
                k.vm(("S", c), "buffer_load_dwordx4", v(vWo + (i & 1)), sr(sSp, 4), s(soff), mods="offen lds")
                if os.environ.get("DIAG5") and c == 0 and i in (0, 3):
                    k.I("s_waitcnt", "vmcnt(0)"); stp.tick(12 + (i > 0))
        if os.environ.get("DIAG5") == "2": wpart(); zpart()
        else: zpart(); wpart()
    NST = 16
    sZ1 = k.salloc()
    k.I("s_lshl_b32", s(st0), s(stt), 2)
    k.I("s_add_u32", s(st0), s(st0), s(sw3))
    k.I("s_mul_i32", s(sZ1), s(st0), 56 * 1024)
    k.I("s_lshl_b32", s(st1), s(sft), 13)
    k.I("s_add_u32", s(sZ1), s(sZ1), s(st1))
    k.I("s_add_u32", s(sZ1), s(sZ1), hex(Z1_OFF))
    smZ1 = k.salloc()
    k.I("s_lshl_b32", s(smZ1), s(sw3), 13)
    def issue_z1(i, tag):
        k.I("s_add_u32", s(soff), s(sZ1), hex(i * 1024))
        k.I("s_add_u32", "m0", s(smZ1), hex(Z1REG + i * 1024))
        k.vm(("S", tag), "buffer_load_dwordx4", v(v16), sr(sWS, 4), s(soff), mods="offen lds")
    LT = os.environ.get("TICKWAVE", "0") != "0"
    if LT: stp.tick(1)
    issue(0)
    if LT: stp.tick(2)
    issue(1)
    if LT: stp.tick(3)
    for c in range(NST):
        k.wait_vm(("S", c))
        if LT and c < 3: stp.tick(4 + 2 * c)
        k.I("s_barrier")
        if LT and c < 3: stp.tick(5 + 2 * c)
        if c == 0: issue(2); issue(3)
        elif c + 2 < NST and c >= 2:
            issue(c + 2)
            if 3 <= c < 11: issue_z1(c - 3, c + 2)
    srd(k, sWo, pWo, 896 * 896)
    vWd = k.valloc(); sWd = k.salloc(); smD = k.salloc()
    k.I("v_lshrrev_b32", v(t0), 3, v(lane))
    k.I("v_mul_u32_u24", v(t0), 896, v(t0))
    k.I("v_bfe_u32", v(t1), v(lane), 4, 1)
    k.I("v_lshlrev_b32", v(t1), 2, v(t1))
    k.I("v_and_b32", v(t2), 7, v(lane))
    k.I("v_xor_b32", v(t1), v(t1), v(t2))
    k.I("v_lshl_add_u32", v(vWd), v(t1), 4, v(t0))
    k.I("s_mul_i32", s(sWd), s(sw3), 224 * 896)
    k.I("s_lshl_b32", s(st1), s(sft), 7)
    k.I("s_add_u32", s(sWd), s(sWd), s(st1))
    k.I("s_mul_i32", s(smD), s(sw3), 224 * 128)
    k.I("s_barrier")
    for i in range(28):
        k.I("s_add_u32", s(soff), s(sWd), hex(i * 8 * 896))
        k.I("s_add_u32", "m0", s(smD), hex(i * 1024))
        k.I("buffer_load_dwordx4", v(vWd), sr(sWo, 4), s(soff), mods="offen lds")
    k.I("s_waitcnt", "vmcnt(0)")
    k.I("s_barrier")
    k.I("s_endpgm")
    k.L(comp)
    k.vnext = vsave; k.vmq = []; k.lgq = []
    srd(k, sB, pB, 4096)
    l31 = k.valloc(); hh = k.valloc()
    k.I("v_and_b32", v(l31), 31, v(lane))
    k.I("v_lshrrev_b32", v(hh), 5, v(lane))
    sfh = k.salloc(); sth = k.salloc(); sst = k.salloc(); sf32 = k.salloc()
    k.I("s_and_b32", s(sfh), s(swave), 1)
    k.I("s_lshr_b32", s(sth), s(swave), 1)
    k.I("s_lshl_b32", s(sst), s(stt), 2)
    k.I("s_lshl_b32", s(st0), s(sth), 1)
    k.I("s_add_u32", s(sst), s(sst), s(st0))
    k.I("s_lshl_b32", s(sf32), s(sft), 2)
    k.I("s_lshl_b32", s(st0), s(sfh), 1)
    k.I("s_add_u32", s(sf32), s(sf32), s(st0))
    if os.environ.get("PF3", "0") == "1":
        vT0 = k.valloc(); vd0 = k.valloc(2)
        k.I("s_lshl_b32", s(st0), s(sidx), 8)
        k.I("v_add_u32", v(vT0), s(st0), "v0")
        k.I("s_lshl_b32", s(st1), s(skap), 16)
        k.I("s_add_u32", s(st1), s(st1), hex(Z2_OFF))
        for i in range(2):
            k.I("v_add_u32", v(t0), 7168 * i, v(vT0))
            k.I("v_lshrrev_b32", v(t1), 9, v(t0))
            k.I("v_lshlrev_b32", v(t1), 17, v(t1))
            k.I("v_and_b32", v(t2), 511, v(t0))
            k.I("v_lshl_add_u32", v(t1), v(t2), 7, v(t1))
            k.vm("pf", "buffer_load_dword", v(vd0 + i), v(t1), sr(sWS, 4), s(st1), mods="offen")
    v16 = k.valloc()
    k.I("v_lshlrev_b32", v(v16), 4, v(lane))
    vB = k.vnext
    z1 = [[k.valloc(8, 4) for _ in range(2)] for _ in range(2)]
    rr = [k.valloc(2) for _ in range(2)]; bb = [k.valloc(2) for _ in range(2)]
    k.I("v_lshlrev_b32", v(t0), 2, v(l31))
    k.I("v_lshlrev_b32", v(t1), 1, v(l31))
    for ti in range(2):
        k.I("s_add_u32", s(st0), s(sst), ti)
        k.I("s_lshl_b32", s(soff), s(st0), 7)
        k.I("s_add_u32", s(soff), s(soff), hex(RH_OFF))
        k.vm("z1", "buffer_load_dword", v(rr[ti]), v(t0), sr(sWS, 4), s(soff), mods="offen")
        k.I("s_lshl_b32", s(soff), s(st0), 6)
        k.vm("z1", "buffer_load_ushort", v(bb[ti]), v(t1), sr(sB, 4), s(soff), mods="offen")
    if os.environ.get("PF2", "0") == "1":
        pp = k.salloc(2); sP = k.salloc(4); vT = k.valloc(); vd = k.valloc(2)
        k.I("s_load_dwordx2", sr(pp, 2), "s[0:1]", 56)
        k.I("s_lshl_b32", s(st0), s(sidx), 8)
        k.I("v_add_u32", v(vT), s(st0), "v0")
        k.I("v_lshlrev_b32", v(vT), 7, v(vT))
        k.I("s_waitcnt", "lgkmcnt(0)")
        srd(k, sP, pp, 896 * 896)
        k.vm("pf", "buffer_load_dword", v(vd), v(vT), sr(sP, 4), 0, mods="offen")
    stp.stamp(0)
    aZ = k.valloc(); aW = k.valloc(4)
    k.I("s_lshl_b32", s(st0), s(sfh), 13)
    k.I("v_add_u32", v(aZ), s(st0), v(v16))
    k.I("v_bfe_u32", v(t0), v(l31), 1, 3)
    for j in range(4):
        k.I("v_add_u32", v(t1), 2 * j, v(hh))
        k.I("v_xor_b32", v(t1), v(t1), v(t0))
        k.I("v_lshlrev_b32", v(t1), 4, v(t1))
        k.I("v_lshl_add_u32", v(aW + j), v(l31), 7, v(t1))
        k.I("s_lshl_b32", s(st0), s(sth), 13)
        k.I("s_add_u32", s(st0), s(st0), 16384)
        k.I("v_add_u32", v(aW + j), s(st0), v(aW + j))
    aZ2 = k.valloc(); aW2 = k.valloc(4)
    k.I("v_add_u32", v(aZ2), 65536, v(aZ))
    for j in range(4): k.I("v_add_u32", v(aW2 + j), 65536, v(aW + j))
    acc = [[k.valloc(16, 4) for _ in range(2)] for _ in range(2)]
    NB = 3
    zf = [[k.valloc(4) for _ in range(2)] for _ in range(NB)]
    wf = [[k.valloc(4) for _ in range(2)] for _ in range(NB)]
    def rl(ks):
        c, j = ks // 4, ks % 4
        b = ks % NB
        sl = (c % NS) * SLOT
        hi = sl >= 65536
        so = sl - (65536 if hi else 0)
        out = []
        for fi in range(2):
            out.append(lambda fi=fi: k.lg(("f", ks), "ds_read_b128", vr(zf[b][fi], 4), v(aZ2 if hi else aZ), mods=f"offset:{so + fi * 4096 + j * 1024}"))
        for ti in range(2):
            out.append(lambda ti=ti: k.lg(("f", ks), "ds_read_b128", vr(wf[b][ti], 4), v((aW2 if hi else aW) + j), mods=f"offset:{so + ti * 4096}"))
        return out
    k.I("s_barrier")
    if not os.environ.get("DIAG56"): stp.stamp(1)
    for f in rl(0) + rl(1): f()
    NKS = NST * 4
    for ks in range(NKS):
        c, j = ks // 4, ks % 4
        b = ks % NB
        k.wait_lg(("f", ks))
        mf = []
        for fi in range(2):
            for ti in range(2):
                mf.append(lambda fi=fi, ti=ti: k.I("v_mfma_f32_32x32x16_bf16", vr(acc[fi][ti], 16), vr(zf[b][fi], 4), vr(wf[b][ti], 4), 0 if ks == 0 else vr(acc[fi][ti], 16)))
        fl = rl(ks + 2) if ks + 2 < NKS else []
        if j == 2 and ks + 2 < NKS:
            k.I("s_barrier")
        interleave(k, mf, fl)
    k.I("s_barrier")
    if not os.environ.get("DIAG56"): stp.stamp(2)
    vz = k.valloc()
    k.I("s_lshl_b32", s(st0), s(sth), 14)
    k.I("s_lshl_b32", s(st1), s(sfh), 12)
    k.I("s_add_u32", s(st0), s(st0), s(st1))
    k.I("s_add_u32", s(st0), s(st0), Z1REG)
    k.I("v_add_u32", v(vz), s(st0), v(v16))
    for ti in range(2):
        for fi in range(2):
            for hf_ in range(2):
                k.lg(("z1", ti, fi), "ds_read_b128", vr(z1[fi][ti] + 4 * hf_, 4), v(vz), mods=f"offset:{ti * 8192 + fi * 2048 + hf_ * 1024}")
    k.wait_vm("z1")
    for ti in range(2):
        k.I("v_lshlrev_b32", v(bb[ti]), 16, v(bb[ti]))
        k.I("v_mul_f32", v(bb[ti]), v(bb[ti]), v(rr[ti]))
    k.I("s_cmp_eq_u32", s(skap), 0)
    k.I("s_cselect_b32", s(st0), "1.0", 0)
    for ti in range(2): k.I("v_mul_f32", v(bb[ti]), s(st0), v(bb[ti]))
    tp = [k.valloc(2) for _ in range(4)]
    P = [k.valloc(8, 4) for _ in range(2)]
    sU = k.salloc()
    k.I("s_mul_i32", s(sU), s(skap), U1_OFF - U0_OFF)
    k.I("s_add_u32", s(sU), s(sU), hex(U0_OFF))
    n = 0
    for ti in range(2):
        for fi in range(2):
            A = acc[fi][ti]; Zp = z1[fi][ti]; PP = P[n & 1]; n += 1
            for j in range(8):
                k.I("v_pk_fma_f32", vr(A + 2 * j, 2), vr(A + 2 * j, 2), vr(rr[ti], 2), vr(bb[ti], 2), mods="op_sel_hi:[1,0,0]")
            k.wait_lg(("z1", ti, fi))
            for j in range(8):
                T = tp[j % 4]
                k.I("v_lshlrev_b32", v(T), 16, v(Zp + j))
                k.I("v_and_b32", v(T + 1), "0xffff0000", v(Zp + j))
                k.I("v_pk_mul_f32", vr(A + 2 * j, 2), vr(A + 2 * j, 2), vr(T, 2))
            for j in range(8): k.I("v_cvt_pk_bf16_f32", v(PP + j), v(A + 2 * j), v(A + 2 * j + 1))
            k.I("s_add_u32", s(st0), s(sst), ti)
            k.I("s_mul_i32", s(soff), s(st0), 56 * 1024)
            k.I("s_add_u32", s(st0), s(sf32), fi)
            k.I("s_lshl_b32", s(st0), s(st0), 11)
            k.I("s_add_u32", s(soff), s(soff), s(st0))
            k.I("s_add_u32", s(soff), s(soff), s(sU))
            k.I("buffer_store_dwordx4", vr(PP, 4), v(v16), sr(sWS, 4), s(soff), mods="offen")
            k.I("buffer_store_dwordx4", vr(PP + 4, 4), v(v16), sr(sWS, 4), s(soff), mods="offen offset:1024")
    stp.stamp(3)
    k.vnext = vB
    srd(k, sOut, pOD, 2048 * 896)
    srd(k, sD, pOD + 2, 256)
    srh = k.salloc(); skh = k.salloc(); sstB = k.salloc()
    k.I("s_and_b32", s(srh), s(swave), 1)
    k.I("s_lshr_b32", s(skh), s(swave), 1)
    k.I("s_lshl_b32", s(sstB), s(stt), 2)
    k.I("s_lshl_b32", s(st0), s(skap), 1)
    k.I("s_add_u32", s(sstB), s(sstB), s(st0))
    k.I("s_add_u32", s(sstB), s(sstB), s(srh))
    hr = k.valloc(8, 4)
    k.I("s_mul_i32", s(soff), s(sstB), 28 * 1024)
    k.I("s_lshl_b32", s(st0), s(sft), 1)
    k.I("s_add_u32", s(st0), s(st0), s(skh))
    sntile = k.salloc()
    k.I("s_mov_b32", s(sntile), s(st0))
    k.I("s_lshl_b32", s(st0), s(st0), 11)
    k.I("s_add_u32", s(soff), s(soff), s(st0))
    k.I("s_add_u32", s(soff), s(soff), hex(H_OFF))
    k.I("s_waitcnt", "vmcnt(0)")
    k.vmq = []
    fl = k.valloc(2); vz0 = k.valloc(); one = k.valloc()
    k.I("s_mul_i32", s(st0), s(skap), 7)
    k.I("s_add_u32", s(st0), s(st0), s(sft))
    k.I("s_lshl_b32", s(st0), s(st0), 2)
    k.I("s_add_u32", s(st0), s(st0), s(swave))
    k.I("s_lshl_b32", s(st0), s(st0), 2)
    k.I("s_lshl_b32", s(st1), s(stt), 8)
    sFL = k.salloc()
    k.I("s_add_u32", s(sFL), s(st1), hex(FL_OFF))
    k.I("s_add_u32", s(st0), s(st0), s(sFL))
    k.I("v_mov_b32", v(vz0), 0)
    k.I("v_mov_b32", v(one), 1)
    k.I("s_mov_b64", "exec", 1)
    k.I("buffer_store_dword", v(one), v(vz0), sr(sWS, 4), s(st0), mods="offen sc0 sc1")
    k.I("s_mov_b64", "exec", -1)
    k.I("buffer_load_dwordx4", vr(hr, 4), v(v16), sr(sWS, 4), s(soff), mods="offen")
    k.I("buffer_load_dwordx4", vr(hr + 4, 4), v(v16), sr(sWS, 4), s(soff), mods="offen offset:1024")
    k.I("v_min_u32", v(vz0), 55, v(lane))
    k.I("v_lshlrev_b32", v(vz0), 2, v(vz0))
    vWb = [k.valloc(), k.valloc()]
    k.I("v_bfe_u32", v(t0), v(lane), 2, 2)
    k.I("v_lshl_add_u32", v(t0), v(hh), 2, v(t0))
    k.I("s_mul_i32", s(st0), s(skh), 448)
    k.I("v_add_u32", v(t0), s(st0), v(t0))
    k.I("v_lshlrev_b32", v(t0), 7, v(t0))
    k.I("v_bfe_u32", v(t1), v(lane), 4, 1)
    k.I("v_lshlrev_b32", v(t1), 1, v(t1))
    k.I("v_bfe_u32", v(t2), v(lane), 1, 1)
    k.I("v_add_u32", v(t1), v(t1), v(t2))
    k.I("v_bfe_u32", v(t2), v(lane), 3, 1)
    k.I("v_lshlrev_b32", v(t2), 2, v(t2))
    for n2 in range(2):
        k.I("v_add_u32", v(vWb[n2]), 4 * n2, v(t1))
        k.I("v_xor_b32", v(vWb[n2]), v(vWb[n2]), v(t2))
        k.I("v_lshl_add_u32", v(vWb[n2]), v(vWb[n2]), 4, v(t0))
    k.I("v_and_b32", v(t1), 1, v(lane))
    for n2 in range(2): k.I("v_lshl_add_u32", v(vWb[n2]), v(t1), 3, v(vWb[n2]))
    sU0 = k.salloc(); sU1 = k.salloc()
    k.I("s_mul_i32", s(sU0), s(sstB), 56 * 1024)
    k.I("s_mul_i32", s(st0), s(skh), 28 * 1024)
    k.I("s_add_u32", s(sU0), s(sU0), s(st0))
    k.I("s_add_u32", s(sU1), s(sU0), hex(U1_OFF))
    k.I("s_add_u32", s(sU0), s(sU0), hex(U0_OFF))
    accB = [k.valloc(16, 4) for _ in range(2)]
    NU = 12
    uf = [[k.valloc(4) for _ in range(2)] for _ in range(NU)]
    NBW = 3
    wfB = [[k.valloc(4) for _ in range(2)] for _ in range(NBW)]
    scount = k.salloc()
    k.I("s_mov_b32", s(scount), 0)
    poll = k.newlabel("poll"); pdone = k.newlabel("pdone")
    k.L(poll)
    k.I("buffer_load_dword", v(fl), v(vz0), sr(sWS, 4), s(sFL), mods="offen sc0 sc1")
    k.I("s_waitcnt", "vmcnt(0)")
    k.I("v_cmp_ne_u32", "vcc", 1, v(fl))
    k.I("s_add_u32", s(scount), s(scount), 1)
    k.I("s_cmp_eq_u64", "vcc", 0)
    k.I("s_cbranch_scc1", pdone)
    k.I("s_cmp_lt_u32", s(scount), 0x100000)
    k.I("s_cbranch_scc0", pdone)
    k.I("s_sleep", 1)
    k.I("s_branch", poll)
    k.L(pdone)
    k.vmq = []
    stp.stamp(4)
    def uload(j):
        for ar_, sU in enumerate((sU0, sU1)):
            k.I("s_add_u32", s(soff), s(sU), hex(j * 1024))
            k.vm(("u", j), "buffer_load_dwordx4", vr(uf[j % NU][ar_], 4), v(v16), sr(sWS, 4), s(soff), mods="offen sc1")
    def wread(j):
        out = []
        for n2 in range(2):
            for beta in range(2):
                out.append(lambda n2=n2, beta=beta: k.lg(("w", j), "ds_read_b64_tr_b16", vr(wfB[j % NBW][n2] + 2 * beta, 2), v(vWb[n2]), mods=f"offset:{(16 * j + 8 * beta) * 128}"))
        return out
    for j in range(NU): uload(j)
    k.I("s_barrier")
    for f in wread(0) + wread(1): f()
    for j in range(28):
        k.wait_vm(("u", j))
        k.wait_lg(("w", j))
        mf = []
        for ar_ in range(2):
            for n2 in range(2):
                mf.append(lambda ar_=ar_, n2=n2: k.I("v_mfma_f32_32x32x16_bf16", vr(accB[n2], 16), vr(wfB[j % NBW][n2], 4), vr(uf[j % NU][ar_], 4), 0 if (j == 0 and ar_ == 0) else vr(accB[n2], 16)))
        fl_ = wread(j + 2) if j + 2 < 28 else []
        interleave(k, mf, fl_)
        if j + NU < 28: uload(j + NU)
    stp.stamp(5)
    RED = 114688
    vr1 = k.valloc(); vr2 = k.valloc()
    k.I("s_lshl_b32", s(st0), s(srh), 13)
    k.I("s_add_u32", s(st0), s(st0), RED)
    k.I("v_add_u32", v(vr1), s(st0), v(v16))
    k.I("s_lshl_b32", s(st1), s(skh), 12)
    k.I("v_add_u32", v(vr2), s(st1), v(vr1))
    k.I("s_xor_b32", s(st1), s(st1), 4096)
    k.I("v_add_u32", v(vr1), s(st1), v(vr1))
    keep = k.valloc(16, 4)
    lab_a = k.newlabel("kh1"); lab_b = k.newlabel("khj")
    k.I("s_cmp_lg_u32", s(skh), 0)
    k.I("s_cbranch_scc1", lab_a)
    for q in range(4): k.I("ds_write_b128", v(vr1), vr(accB[1] + 4 * q, 4), mods=f"offset:{q * 1024}")
    for i in range(16): k.I("v_mov_b32", v(keep + i), v(accB[0] + i))
    k.I("s_branch", lab_b)
    k.L(lab_a)
    for q in range(4): k.I("ds_write_b128", v(vr1), vr(accB[0] + 4 * q, 4), mods=f"offset:{q * 1024}")
    for i in range(16): k.I("v_mov_b32", v(keep + i), v(accB[1] + i))
    k.L(lab_b)
    k.I("s_waitcnt", "lgkmcnt(0)")
    k.lgq = []
    k.I("s_barrier")
    oth = k.valloc(16, 4)
    for q in range(4): k.I("ds_read_b128", vr(oth + 4 * q, 4), v(vr2), mods=f"offset:{q * 1024}")
    tpB = [k.valloc(2) for _ in range(4)]
    for j in range(8):
        T = tpB[j % 4]
        k.I("v_lshlrev_b32", v(T), 16, v(hr + j))
        k.I("v_and_b32", v(T + 1), "0xffff0000", v(hr + j))
        k.I("v_pk_add_f32", vr(keep + 2 * j, 2), vr(keep + 2 * j, 2), vr(T, 2))
    k.I("s_waitcnt", "lgkmcnt(0)")
    for j in range(8): k.I("v_pk_add_f32", vr(keep + 2 * j, 2), vr(keep + 2 * j, 2), vr(oth + 2 * j, 2))
    PB = k.valloc(8, 4)
    for j in range(8): k.I("v_cvt_pk_bf16_f32", v(PB + j), v(keep + 2 * j), v(keep + 2 * j + 1))
    for kp in range(2):
        k.I("v_permlane32_swap_b32", v(PB + 4 * kp), v(PB + 4 * kp + 2))
        k.I("v_permlane32_swap_b32", v(PB + 4 * kp + 1), v(PB + 4 * kp + 3))
    vo = k.valloc()
    k.I("v_mul_u32_u24", v(vo), 896, v(l31))
    k.I("v_lshl_add_u32", v(vo), v(hh), 4, v(vo))
    k.I("s_mul_i32", s(soff), s(sstB), 32 * 896)
    k.I("s_lshl_b32", s(st0), s(sntile), 6)
    k.I("s_add_u32", s(soff), s(soff), s(st0))
    for kp in range(2):
        k.I("buffer_store_dwordx4", vr(PB + 4 * kp, 4), v(vo), sr(sOut, 4), s(soff), mods=f"offen offset:{32 * kp}")
    stp.stamp(6)
    k.I("s_endpgm")
    k.L(pfrole)
    vT2 = k.valloc()
    k.I("s_sub_u32", s(st0), s(sidx), 28)
    k.I("s_lshl_b32", s(st0), s(st0), 9)
    k.I("v_add_u32", v(vT2), s(st0), "v0")
    k.I("v_lshlrev_b32", v(vT2), 7, v(vT2))
    l2_prefetch(k, 56, 896 * 896, vT2, 2048, st0)
    k.L(R["done"])
    k.I("s_endpgm")
    k.lds = lds; k.threads = 512; k.grid = 256
    return k

def gen_k6(Stamper):
    k = Kernel("k6_wout_kernel")
    NS = 5; SLOT = 24576
    RED = 0
    lds = NS * SLOT
    R = common_start(k, 224)
    swave, st0, st1, soff, lane, t0, t1, t2 = (R[x] for x in ("swave", "st0", "st1", "soff", "lane", "t0", "t1", "t2"))
    pWo = k.salloc(2); pOut = k.salloc(2); pWS = k.salloc(2)
    k.I("s_load_dwordx2", sr(pWo, 2), "s[0:1]", 56)
    k.I("s_load_dwordx2", sr(pOut, 2), "s[0:1]", 64)
    k.I("s_load_dwordx2", sr(pWS, 2), "s[0:1]", 80)
    sWS = k.salloc(4); sWo = k.salloc(4); sOut = k.salloc(4)
    sj = k.salloc(); sidx = k.salloc(); srt = k.salloc(); snt = k.salloc(); sw3 = k.salloc()
    k.I("s_and_b32", s(sj), "s2", 7)
    k.I("s_lshr_b32", s(sidx), "s2", 3)
    k.I("s_and_b32", s(sw3), s(swave), 3)
    k.I("s_mul_i32", s(st0), s(sidx), 37)
    k.I("s_lshr_b32", s(st0), s(st0), 8)
    k.I("s_mul_i32", s(st1), s(st0), 7)
    k.I("s_sub_u32", s(snt), s(sidx), s(st1))
    k.I("s_lshl_b32", s(srt), s(sj), 2)
    k.I("s_add_u32", s(srt), s(srt), s(st0))
    stp = Stamper(k, 5, sWS, swave)
    comp = k.newlabel("compute")
    k.I("s_cmp_lt_u32", s(swave), 4)
    k.I("s_cbranch_scc1", comp)
    vsave = k.vnext
    v16 = k.valloc(); vWo = k.valloc()
    k.I("v_lshlrev_b32", v(v16), 4, v(lane))
    k.I("v_lshrrev_b32", v(t0), 3, v(lane))
    k.I("v_mul_u32_u24", v(t0), 896, v(t0))
    k.I("v_bfe_u32", v(t1), v(lane), 4, 1)
    k.I("v_lshlrev_b32", v(t1), 2, v(t1))
    k.I("v_and_b32", v(t2), 7, v(lane))
    k.I("v_xor_b32", v(t1), v(t1), v(t2))
    k.I("v_lshl_add_u32", v(vWo), v(t1), 4, v(t0))
    sUb = k.salloc(); sWb = k.salloc(); smU = k.salloc(); smW = k.salloc()
    k.I("s_lshr_b32", s(st0), s(sw3), 1)
    k.I("s_lshl_b32", s(st1), s(srt), 1)
    k.I("s_add_u32", s(st1), s(st1), s(st0))
    k.I("s_mul_i32", s(sUb), s(st1), 56 * 1024)
    k.I("s_and_b32", s(st1), s(sw3), 1)
    k.I("s_mul_i32", s(smU), s(st1), U1_OFF - U0_OFF)
    k.I("s_add_u32", s(sUb), s(sUb), s(smU))
    k.I("s_add_u32", s(sUb), s(sUb), hex(U0_OFF))
    k.I("s_lshl_b32", s(smU), s(st1), 13)
    k.I("s_lshl_b32", s(st0), s(st0), 12)
    k.I("s_add_u32", s(smU), s(smU), s(st0))
    k.I("s_mul_i32", s(sWb), s(sw3), 16 * 896)
    k.I("s_lshl_b32", s(st1), s(snt), 7)
    k.I("s_add_u32", s(sWb), s(sWb), s(st1))
    k.I("s_lshl_b32", s(smW), s(sw3), 11)
    k.I("s_add_u32", s(smW), s(smW), 16384)
    srot = k.salloc(); scp = k.salloc(); sa1 = k.salloc(); sa2 = k.salloc()
    k.I("s_lshl_b32", s(st0), s(snt), 1)
    k.I("s_and_b32", s(st1), s(srt), 3)
    k.I("s_mul_i32", s(st1), s(st1), 3)
    k.I("s_add_u32", s(srot), s(st0), s(st1))
    k.I("s_cmp_ge_u32", s(srot), 14)
    k.I("s_cselect_b32", s(st0), 14, 0)
    k.I("s_sub_u32", s(srot), s(srot), s(st0))
    if not rot_on(6): k.I("s_mov_b32", s(srot), 0)
    def issue(c):
        sl = (c % NS) * SLOT
        rot_index(k, scp, srot, c, 14)
        k.I("s_lshl_b32", s(sa1), s(scp), 12)
        k.I("s_add_u32", s(sa1), s(sa1), s(sUb))
        k.I("s_mul_i32", s(sa2), s(scp), 64 * 896)
        k.I("s_add_u32", s(sa2), s(sa2), s(sWb))
        for i in range(4):
            k.I("s_add_u32", s(soff), s(sa1), hex(i * 1024))
            k.I("s_add_u32", "m0", s(smU), hex(sl + i * 1024))
            k.vm(("S", c), "buffer_load_dwordx4", v(v16), sr(sWS, 4), s(soff), mods="offen lds")
        for i in range(2):
            k.I("s_add_u32", s(soff), s(sa2), hex(8 * i * 896))
            k.I("s_add_u32", "m0", s(smW), hex(sl + i * 1024))
            k.vm(("S", c), "buffer_load_dwordx4", v(vWo), sr(sWo, 4), s(soff), mods="offen lds")
    NST = 14
    k.I("s_waitcnt", "lgkmcnt(0)")
    srd(k, sWS, pWS, WS_SIZE)
    srd(k, sWo, pWo, 896 * 896)
    for c in range(3): issue(c)
    for c in range(NST):
        k.wait_vm(("S", c))
        k.I("s_barrier")
        if c == 0: issue(3); issue(4)
        elif c + 3 < NST and c >= 2: issue(c + 3)
    k.I("s_endpgm")
    k.L(comp)
    k.vnext = vsave; k.vmq = []; k.lgq = []
    l31 = k.valloc(); hh = k.valloc()
    k.I("v_and_b32", v(l31), 31, v(lane))
    k.I("v_lshrrev_b32", v(hh), 5, v(lane))
    srh = k.salloc(); snh = k.salloc(); sst = k.salloc(); sntile = k.salloc()
    k.I("s_and_b32", s(srh), s(swave), 1)
    k.I("s_lshr_b32", s(snh), s(swave), 1)
    k.I("s_lshl_b32", s(sst), s(srt), 1)
    k.I("s_add_u32", s(sst), s(sst), s(srh))
    k.I("s_lshl_b32", s(sntile), s(snt), 1)
    k.I("s_add_u32", s(sntile), s(sntile), s(snh))
    if os.environ.get("PF3", "0") == "1":
        vT0 = k.valloc(); vd0 = k.valloc(2)
        k.I("s_lshl_b32", s(st0), s(sidx), 8)
        k.I("v_add_u32", v(vT0), s(st0), "v0")
        k.I("v_mov_b32", v(t0), hex(U1_OFF - U0_OFF - 3584 * 128))
        k.I("v_cmp_le_u32", "vcc", 3584, v(vT0))
        k.I("v_cndmask_b32", v(t0), 0, v(t0), "vcc")
        k.I("v_lshl_add_u32", v(t0), v(vT0), 7, v(t0))
        k.I("s_mul_i32", s(st1), s(sj), 8 * 56 * 1024)
        k.I("s_add_u32", s(st1), s(st1), hex(U0_OFF))
        k.vm("pf", "buffer_load_dword", v(vd0), v(t0), sr(sWS, 4), s(st1), mods="offen")
    v16 = k.valloc()
    k.I("v_lshlrev_b32", v(v16), 4, v(lane))
    hr = k.valloc(8, 4)
    k.I("s_mul_i32", s(soff), s(sst), 28 * 1024)
    k.I("s_lshl_b32", s(st0), s(sntile), 11)
    k.I("s_add_u32", s(soff), s(soff), s(st0))
    k.I("s_add_u32", s(soff), s(soff), hex(H_OFF))
    k.I("s_waitcnt", "lgkmcnt(0)")
    srd(k, sWS, pWS, WS_SIZE)
    srd(k, sOut, pOut, 2048 * 896)
    k.vm("h", "buffer_load_dwordx4", vr(hr, 4), v(v16), sr(sWS, 4), s(soff), mods="offen")
    k.vm("h", "buffer_load_dwordx4", vr(hr + 4, 4), v(v16), sr(sWS, 4), s(soff), mods="offen offset:1024")
    stp.stamp(0)
    aU = k.valloc(); vW = k.valloc()
    k.I("s_lshl_b32", s(st0), s(srh), 12)
    k.I("v_add_u32", v(aU), s(st0), v(v16))
    k.I("v_bfe_u32", v(t0), v(lane), 2, 2)
    k.I("v_lshl_add_u32", v(t0), v(hh), 2, v(t0))
    k.I("v_lshlrev_b32", v(vW), 7, v(t0))
    k.I("v_add_u32", v(vW), 16384, v(vW))
    k.I("v_bfe_u32", v(t0), v(lane), 4, 1)
    k.I("v_lshlrev_b32", v(t0), 1, v(t0))
    k.I("v_bfe_u32", v(t1), v(lane), 1, 1)
    k.I("v_add_u32", v(t0), v(t0), v(t1))
    k.I("s_lshl_b32", s(st0), s(snh), 2)
    k.I("v_add_u32", v(t0), s(st0), v(t0))
    k.I("v_bfe_u32", v(t1), v(lane), 3, 1)
    k.I("v_lshlrev_b32", v(t1), 2, v(t1))
    k.I("v_xor_b32", v(t0), v(t0), v(t1))
    k.I("v_lshl_add_u32", v(vW), v(t0), 4, v(vW))
    k.I("v_and_b32", v(t0), 1, v(lane))
    k.I("v_lshl_add_u32", v(vW), v(t0), 3, v(vW))
    aU2 = k.valloc(); vW2 = k.valloc()
    k.I("v_add_u32", v(aU2), 3 * SLOT, v(aU))
    k.I("v_add_u32", v(vW2), 3 * SLOT, v(vW))
    acc = k.valloc(16, 4)
    NB = 3
    uf = [[k.valloc(4) for _ in range(2)] for _ in range(NB)]; wf = [k.valloc(4) for _ in range(NB)]
    def rl(ks):
        c, j = ks // 4, ks % 4
        b = ks % NB
        sl = (c % NS)
        hi = sl >= 3
        so = (sl - (3 if hi else 0)) * SLOT
        out = []
        for ar_ in range(2):
            out.append(lambda ar_=ar_: k.lg(("f", ks), "ds_read_b128", vr(uf[b][ar_], 4), v(aU2 if hi else aU), mods=f"offset:{so + ar_ * 8192 + j * 1024}"))
        for beta in range(2):
            o = so + (16 * j + 8 * beta) * 128
            out.append(lambda o=o, beta=beta: k.lg(("f", ks), "ds_read_b64_tr_b16", vr(wf[b] + 2 * beta, 2), v(vW2 if hi else vW), mods=f"offset:{o}"))
        return out
    k.I("s_barrier")
    stp.stamp(1)
    for f in rl(0) + rl(1): f()
    NKS = NST * 4
    for ks in range(NKS):
        c, j = ks // 4, ks % 4
        b = ks % NB
        k.wait_lg(("f", ks))
        mf = [lambda ar_=ar_: k.I("v_mfma_f32_32x32x16_bf16", vr(acc, 16), vr(wf[b], 4), vr(uf[b][ar_], 4), 0 if (ks == 0 and ar_ == 0) else vr(acc, 16)) for ar_ in range(2)]
        fl = rl(ks + 2) if ks + 2 < NKS else []
        if j == 2 and ks + 2 < NKS: k.I("s_barrier")
        interleave(k, mf, fl)
    stp.stamp(2)
    k.wait_vm("h")
    tp = [k.valloc(2) for _ in range(4)]
    for j in range(8):
        T = tp[j % 4]
        k.I("v_lshlrev_b32", v(T), 16, v(hr + j))
        k.I("v_and_b32", v(T + 1), "0xffff0000", v(hr + j))
        k.I("v_pk_add_f32", vr(acc + 2 * j, 2), vr(acc + 2 * j, 2), vr(T, 2))
    P = k.valloc(8, 4)
    for j in range(8): k.I("v_cvt_pk_bf16_f32", v(P + j), v(acc + 2 * j), v(acc + 2 * j + 1))
    for kp in range(2):
        k.I("v_permlane32_swap_b32", v(P + 4 * kp), v(P + 4 * kp + 2))
        k.I("v_permlane32_swap_b32", v(P + 4 * kp + 1), v(P + 4 * kp + 3))
    vo = k.valloc()
    k.I("v_mul_u32_u24", v(vo), 896, v(l31))
    k.I("v_lshl_add_u32", v(vo), v(hh), 4, v(vo))
    k.I("s_mul_i32", s(soff), s(sst), 32 * 896)
    k.I("s_lshl_b32", s(st0), s(sntile), 6)
    k.I("s_add_u32", s(soff), s(soff), s(st0))
    for kp in range(2):
        k.I("buffer_store_dwordx4", vr(P + 4 * kp, 4), v(vo), sr(sOut, 4), s(soff), mods=f"offen offset:{32 * kp}")
    stp.stamp(3)
    if os.environ.get("SPIN"):
        ka, ja, kb, jb = [int(x) for x in os.environ["SPIN"].split(",")]
        sa_ = k.salloc(2); sb_ = k.salloc(2); sn_ = k.salloc(2); sq_ = k.salloc(2)
        lab = k.newlabel("spin"); out_ = k.newlabel("spun")
        k.I("s_or_b32", s(st0), "s2", s(swave))
        k.I("s_cmp_lg_u32", s(st0), 0)
        k.I("s_cbranch_scc1", out_)
        k.I("s_mov_b32", s(st0), hex(STAMP_OFF + ka * 256 * 64 + ja * 8))
        k.I("s_load_dwordx2", sr(sa_, 2), sr(pWS, 2), s(st0))
        k.I("s_mov_b32", s(st1), hex(STAMP_OFF + max(kb, 0) * 256 * 64 + jb * 8))
        if kb >= 0: k.I("s_load_dwordx2", sr(sb_, 2), sr(pWS, 2), s(st1))
        else: k.I("s_memrealtime", sr(sb_, 2))
        k.I("s_memrealtime", sr(sn_, 2))
        k.I("s_waitcnt", "lgkmcnt(0)")
        k.I("s_sub_u32", s(sa_), s(sb_), s(sa_))
        k.I("s_min_u32", s(sa_), s(sa_), 20000)
        k.I("s_add_u32", s(sn_), s(sn_), s(sa_))
        k.L(lab)
        k.I("s_memrealtime", sr(sq_, 2))
        k.I("s_waitcnt", "lgkmcnt(0)")
        k.I("s_sub_u32", s(sq_), s(sq_), s(sn_))
        k.I("s_cmp_lt_i32", s(sq_), 0)
        k.I("s_cbranch_scc1", lab)
        k.L(out_)
    k.L(R["done"])
    k.I("s_endpgm")
    k.lds = lds; k.threads = 512; k.grid = 224
    return k

def rest(Stamper):
    if os.environ.get("MERGE56", "0") == "1":
        return [gen_k2(Stamper), gen_k3(Stamper), gen_k4(Stamper), gen_k56(Stamper)]
    return [gen_k2(Stamper), gen_k3(Stamper), (gen_k4b if os.environ.get('K4B', '1') == '1' else gen_k4)(Stamper), gen_k5(Stamper), gen_k6(Stamper)]
```

```python
import sys, os
sys.path.insert(0, os.path.dirname(__file__))
from asmlib import *
from layout import *

NAME = "sequential_preLN__sliding_block__mixer_gmlp__prompt"
STAMPS = os.environ.get("GEN_STAMPS", "0") == "1"
WS_SIZE = 0x10000000

def srd(k, dst, base, size):
    k.I("s_mov_b32", s(dst), s(base))
    k.I("s_and_b32", s(dst + 1), s(base + 1), "0xffff")
    k.I("s_mov_b32", s(dst + 2), hex(size) if isinstance(size, int) else size)
    k.I("s_mov_b32", s(dst + 3), "0x20000")

class Stamper:
    def __init__(self, k, kidx, sWS, swave):
        self.k, self.kidx, self.sWS, self.swave = k, kidx, sWS, swave
        if STAMPS:
            self.st = k.salloc(2); self.vt = k.valloc(2); self.vo = k.valloc(1); self.ex = k.salloc(2)
    def tick(self, i):
        if not STAMPS or os.environ.get("TICKS") != "1": return
        if not hasattr(self, "tk"): self.tk = self.k.salloc(32, 4)
        self.k.I("s_memtime", sr(self.tk + 2 * i, 2))
        self.nt = max(getattr(self, "nt", 0), i + 1)
    def dump_ticks(self):
        if not STAMPS or not hasattr(self, "tk"): return
        k = self.k
        k.I("s_waitcnt", "lgkmcnt(0)")
        k.lgq = []
        k.I("s_lshl_b32", s(self.ex), "s2", 7)
        k.I("s_add_u32", s(self.ex), s(self.ex), hex(TICK_OFF + self.kidx * 256 * 128))
        k.I("s_cmp_lg_u32", s(self.swave), int(os.environ.get("TICKWAVE", "0")))
        k.I("s_cselect_b32", s(self.ex), "0x7ffffff0", s(self.ex))
        k.I("s_mov_b64", sr(self.st, 2), "exec")
        k.I("s_mov_b64", "exec", 1)
        k.I("v_mov_b32", v(self.vo), 0)
        for i in range(16):
            k.I("v_mov_b32", v(self.vt), s(self.tk + 2 * i))
            k.I("v_mov_b32", v(self.vt + 1), s(self.tk + 2 * i + 1))
            k.I("buffer_store_dwordx2", vr(self.vt, 2), v(self.vo), sr(self.sWS, 4), s(self.ex), mods=f"offen offset:{8 * i}")
            k.I("s_nop", 1)
        k.I("s_mov_b64", "exec", sr(self.st, 2))
    def stamp(self, j):
        if not STAMPS: return
        k = self.k
        if os.environ.get("TICKS") == "2":
            k.I("s_memtime", sr(self.st, 2))
            k.I("s_lshl_b32", s(self.ex), "s2", 7)
            k.I("s_add_u32", s(self.ex), s(self.ex), hex(TICK_OFF + self.kidx * 256 * 128 + j * 8))
            k.I("s_cmp_lg_u32", s(self.swave), 0)
            k.I("s_cselect_b32", s(self.ex), "0x7ffffff0", s(self.ex))
            k.I("s_waitcnt", "lgkmcnt(0)")
            k.I("v_mov_b32", v(self.vt), s(self.st))
            k.I("v_mov_b32", v(self.vt + 1), s(self.st + 1))
            k.I("v_mov_b32", v(self.vo), 0)
            k.I("s_mov_b64", sr(self.st, 2), "exec")
            k.I("s_mov_b64", "exec", 1)
            k.I("buffer_store_dwordx2", vr(self.vt, 2), v(self.vo), sr(self.sWS, 4), s(self.ex), mods="offen")
            k.I("s_mov_b64", "exec", sr(self.st, 2))
            k.vmq.append("stamp")
        k.I("s_memrealtime", sr(self.st, 2))
        k.I("s_lshl_b32", s(self.ex), "s2", 6)
        k.I("s_add_u32", s(self.ex), s(self.ex), hex(STAMP_OFF + self.kidx * 256 * 64 + j * 8))
        k.I("s_cmp_lg_u32", s(self.swave), 0)
        k.I("s_cselect_b32", s(self.ex), "0x7ffffff0", s(self.ex))
        k.I("s_waitcnt", "lgkmcnt(0)")
        k.lgq = []
        k.I("v_mov_b32", v(self.vt), s(self.st))
        k.I("v_mov_b32", v(self.vt + 1), s(self.st + 1))
        k.I("v_mov_b32", v(self.vo), 0)
        k.I("s_mov_b64", sr(self.st, 2), "exec")
        k.I("s_mov_b64", "exec", 1)
        k.I("buffer_store_dwordx2", vr(self.vt, 2), v(self.vo), sr(self.sWS, 4), s(self.ex), mods="offen")
        k.I("s_mov_b64", "exec", sr(self.st, 2))
        k.vmq.append("stamp")

class DbgStamper:
    LAST = {0: 3, 1: 2, 2: 3, 3: 5, 4: 3, 5: 3}
    def __init__(self, k, kidx, sWS, swave):
        self.k, self.kidx, self.swave = k, kidx, swave
        self.st = k.salloc(2); self.vt = k.valloc(2); self.vo = k.valloc(1); self.ex = k.salloc(2)
        self.pd = k.salloc(2); self.sD = k.salloc(4)
        k.I("s_memrealtime", sr(self.st, 2))
        k.I("s_load_dwordx2", sr(self.pd, 2), "s[0:1]", 72)
        self.t0 = k.salloc(2)
        k.I("s_waitcnt", "lgkmcnt(0)")
        k.I("s_mov_b32", s(self.t0), s(self.st))
        k.I("s_sub_u32", s(self.pd), s(self.pd), 512 * kidx)
        k.I("s_subb_u32", s(self.pd + 1), s(self.pd + 1), 0)
        srd(k, self.sD, self.pd, 512 * 5 + 256)
    def tick(self, i): pass
    def dump_ticks(self): pass
    def stamp(self, j):
        if j != self.LAST[self.kidx]: return
        k = self.k
        k.I("s_memrealtime", sr(self.st, 2))
        k.I("s_or_b32", s(self.ex), "s2", s(self.swave))
        k.I("s_cmp_lg_u32", s(self.ex), 0)
        k.I("s_cselect_b32", s(self.ex), "0x7ffffff0", 8 * self.kidx)
        k.I("s_waitcnt", "lgkmcnt(0)")
        k.lgq = []
        k.I("v_mov_b32", v(self.vt), s(self.t0))
        k.I("v_mov_b32", v(self.vt + 1), s(self.st))
        k.I("v_mov_b32", v(self.vo), 0)
        k.I("s_mov_b64", sr(self.st, 2), "exec")
        k.I("s_mov_b64", "exec", 1)
        for tg in range(6):
            k.I("buffer_store_dwordx2", vr(self.vt, 2), v(self.vo), sr(self.sD, 4), s(self.ex), mods=f"offen offset:{512 * tg}")
            k.vmq.append("stamp")
        k.I("s_mov_b64", "exec", sr(self.st, 2))

if os.environ.get("GEN_DBG"): Stamper = DbgStamper

def gen_k1():
    k = Kernel("k1_qkv_kernel")
    k.snext = 4; k.vnext = 1
    WREG = 0; WCH = 12288; XRING = 7 * WCH; XSL = 4096; NXS = 4
    TBL = XRING + 4 * NXS * XSL
    CWT = TBL; RT = TBL + 512; NMT = TBL + 1024; SQT = TBL + 1536
    ONES = TBL + 2048
    lds = ONES + 1024
    done = k.newlabel("done")
    k.I("s_cmp_ge_u32", "s2", 256)
    k.I("s_cbranch_scc1", done)
    pX = k.salloc(4); pWS = k.salloc(2)
    k.I("s_load_dwordx4", sr(pX, 4), "s[0:1]", 0)
    k.I("s_load_dwordx2", sr(pWS, 2), "s[0:1]", 80)
    sX = k.salloc(4); sW = k.salloc(4); sWS = k.salloc(4)
    swave = k.salloc(); srb = k.salloc(); shd = k.salloc(); st0 = k.salloc(); st1 = k.salloc(); soff = k.salloc()
    lane = k.valloc(); l31 = k.valloc(); hh = k.valloc(); t0 = k.valloc(); t1 = k.valloc(); t2 = k.valloc()
    k.I("v_lshrrev_b32", v(t0), 6, "v0")
    k.I("v_and_b32", v(lane), 63, "v0")
    k.I("v_readfirstlane_b32", s(swave), v(t0))
    import kernels2
    kernels2.map_rb_hd(k, srb, shd, st0, st1)
    stp = Stamper(k, 0, sWS, swave)
    sw3 = k.salloc()
    k.I("s_and_b32", s(sw3), s(swave), 3)
    l15 = k.valloc()
    k.I("v_and_b32", v(l15), 15, v(lane))
    comp = k.newlabel("compute")
    k.I("s_cmp_lt_u32", s(swave), 4)
    k.I("s_cbranch_scc1", comp)
    vsave = k.vnext
    vXo = k.valloc(4)
    k.I("v_lshrrev_b32", v(t0), 3, v(lane))
    k.I("v_mul_u32_u24", v(t0), 896, v(t0))
    k.I("v_lshrrev_b32", v(t1), 4, v(lane))
    k.I("v_and_b32", v(t2), 7, v(lane))
    k.I("v_xor_b32", v(t1), v(t1), v(t2))
    k.I("v_lshl_add_u32", v(vXo), v(t1), 4, v(t0))
    k.I("v_xor_b32", v(t1), 4, v(t1))
    k.I("v_lshl_add_u32", v(vXo + 1), v(t1), 4, v(t0))
    k.I("v_add_u32", v(vXo + 1), 8 * 896, v(vXo + 1))
    k.I("v_add_u32", v(vXo + 2), 16 * 896, v(vXo))
    k.I("v_add_u32", v(vXo + 3), 16 * 896, v(vXo + 1))
    vWo = k.valloc(3)
    for b in range(3):
        k.I("v_add_u32", v(t0), 64 * b, v(lane))
        k.I("v_mul_u32_u24", v(t1), 171, v(t0))
        k.I("v_lshrrev_b32", v(t1), 11, v(t1))
        k.I("v_mul_u32_u24", v(t2), 12, v(t1))
        k.I("v_sub_u32", v(t0), v(t0), v(t2))
        k.I("v_mul_u32_u24", v(vWo + b), 2688, v(t1))
        k.I("v_lshrrev_b32", v(t2), 2, v(t0))
        k.I("v_mul_u32_u24", v(t2), 896, v(t2))
        k.I("v_and_b32", v(t0), 3, v(t0))
        k.I("v_lshl_add_u32", v(t2), v(t0), 4, v(t2))
        k.I("v_add_u32", v(vWo + b), v(vWo + b), v(t2))
        if os.environ.get("EXP_WCONT"):
            k.I("v_lshlrev_b32", v(vWo + b), 4, v(lane))
            k.I("v_add_u32", v(vWo + b), 1024 * b, v(vWo + b))
    sWb = k.salloc(); sm0 = k.salloc(); sXb = k.salloc(); sm0x = k.salloc()
    k.I("s_mul_i32", s(sWb), s(shd), 56)
    k.I("s_mul_i32", s(st0), s(sw3), 16 * 2688)
    k.I("s_add_u32", s(sWb), s(sWb), s(st0))
    k.I("s_mul_i32", s(sm0), s(sw3), 3 * 1024)
    k.I("s_lshl_b32", s(st0), s(srb), 7)
    k.I("s_lshl_b32", s(st1), s(sw3), 5)
    k.I("s_add_u32", s(st0), s(st0), s(st1))
    k.I("s_mul_i32", s(sXb), s(st0), 896)
    k.I("s_mul_i32", s(sm0x), s(sw3), NXS * XSL)
    k.I("s_add_u32", s(sm0x), s(sm0x), XRING)
    srot = k.salloc(); scp = k.salloc(); sa1 = k.salloc()
    k.I("s_lshl_b32", s(st0), s(srb), 1)
    k.I("s_add_u32", s(st0), s(st0), s(shd))
    k.I("s_mul_i32", s(st1), s(st0), 37)
    k.I("s_lshr_b32", s(st1), s(st1), 8)
    k.I("s_mul_i32", s(st1), s(st1), 7)
    k.I("s_sub_u32", s(srot), s(st0), s(st1))
    if not kernels2.rot_on(1): k.I("s_mov_b32", s(srot), 0)
    def wdma(c, b):
        if b == 0:
            kernels2.rot_index(k, scp, srot, c, 7)
            k.I("s_mul_i32", s(sa1), s(scp), 64 * 2688)
            k.I("s_add_u32", s(sa1), s(sa1), s(sWb))
        k.I("s_add_u32", "m0", s(sm0), hex(WREG + c * WCH + b * 1024))
        k.vm(("W", c), "buffer_load_dwordx4", v(vWo + b), sr(sW, 4), s(sa1), mods="offen lds")
    def xdma(c, j):
        if j == 0:
            kernels2.rot_index(k, scp, srot, c, 7)
            k.I("s_lshl_b32", s(soff), s(scp), 7)
            k.I("s_add_u32", s(soff), s(soff), s(sXb))
        k.I("s_add_u32", "m0", s(sm0x), hex((c % NXS) * XSL + j * 1024))
        k.vm(("X", c), "buffer_load_dwordx4", v(vXo + j), sr(sX, 4), s(soff), mods="offen lds")
    k.I("s_waitcnt", "lgkmcnt(0)")
    srd(k, sW, pX + 2, 448 * 2688)
    srd(k, sX, pX, 2048 * 896)
    for c in range(2):
        for b in range(3): wdma(c, b)
        for j in range(4): xdma(c, j)
    for b in range(3): wdma(2, b)
    LT = os.environ.get("TICKWAVE", "0") != "0"
    if LT: stp.tick(0)
    for c in range(7):
        k.wait_vm([("W", c), ("X", c)])
        if LT and c < 5: stp.tick(1 + 3 * c)
        k.I("s_barrier")
        if LT and c < 5: stp.tick(2 + 3 * c)
        if c + 2 <= 6:
            for j in range(4): xdma(c + 2, j)
        if c + 3 <= 6:
            for b in range(3): wdma(c + 3, b)
        if c == 4 and os.environ.get("PFK1", "0") == "g":
            import kernels2
            kernels2.mall_prefetch(k, 16, 448 * 896, 0, 4, 4, sw3, lane, st0, t0, t1)
            kernels2.mall_prefetch(k, 32, 448 * 3584, 0, 13, 4, sw3, lane, st0, t0, t1)
        if c == 4 and os.environ.get("PFK1", "0") == "g2":
            import kernels2
            kernels2.mall_prefetch(k, 16, 448 * 896, 0, 4, 4, sw3, lane, st0, t0, t1)
            kernels2.mall_prefetch(k, 32, 448 * 3584, 0, 13, 4, sw3, lane, st0, t0, t1)
            kernels2.mall_prefetch(k, 40, 2048 * 4096, 0, 64, 4, sw3, lane, st0, t0, t1)
        if c == 4 and os.environ.get("PFK1", "0") == "1":
            import kernels2
            vTp = k.valloc()
            k.I("s_lshr_b32", s(st0), "s2", 3)
            k.I("s_lshl_b32", s(st0), s(st0), 8)
            k.I("v_subrev_u32", v(vTp), 256, "v0")
            k.I("v_add_u32", v(vTp), s(st0), v(vTp))
            k.I("v_lshlrev_b32", v(vTp), 7, v(vTp))
            kernels2.l2_prefetch(k, 16, 448 * 896, vTp, 8192, st0)
            kernels2.l2_prefetch(k, 32, 448 * 3584, vTp, 8192, st0)
        if LT and c < 5: stp.tick(3 + 3 * c)
    vTp = k.valloc()
    k.I("s_lshr_b32", s(st0), "s2", 3)
    k.I("s_lshl_b32", s(st0), s(st0), 8)
    k.I("v_subrev_u32", v(vTp), 256, "v0")
    k.I("v_add_u32", v(vTp), s(st0), v(vTp))
    k.I("v_lshlrev_b32", v(vTp), 7, v(vTp))
    import kernels2
    k.I("s_barrier")
    if LT:
        srd(k, sWS, pWS, WS_SIZE)
        stp.dump_ticks()
    k.I("s_endpgm")
    k.L(comp)
    k.vnext = vsave; k.vmq = []; k.lgq = []
    vpf = k.valloc(); vpd = k.valloc(4)
    k.I("s_lshr_b32", s(st0), "s2", 3)
    k.I("s_lshl_b32", s(st0), s(st0), 8)
    k.I("v_add_u32", v(vpf), s(st0), "v0")
    k.I("v_lshlrev_b32", v(vpf), 7, v(vpf))
    if os.environ.get("K1OWNPF"):
        k.I("s_waitcnt", "lgkmcnt(0)")
        srd(k, sW, pX + 2, 448 * 2688)
        srd(k, sX, pX, 2048 * 896)
        k.I("buffer_load_dword", v(vpd), v(vpf), sr(sW, 4), 0, mods="offen")
        k.I("v_add_u32", v(vpf), 8192 * 128, v(vpf))
        k.I("buffer_load_dword", v(vpd + 1), v(vpf), sr(sW, 4), 0, mods="offen")
        k.I("s_and_b32", s(st0), "s2", 7)
        k.I("s_mul_i32", s(st0), s(st0), 256 * 896)
        k.I("v_subrev_u32", v(vpf), 9408 * 128, v(vpf))
        k.I("v_mov_b32", v(t0), hex(256 * 896))
        k.I("v_cmp_lt_u32", "vcc", v(vpf), v(t0))
        k.I("v_mov_b32", v(t1), "0x7fffff00")
        k.I("v_cndmask_b32", v(vpf), v(t1), v(vpf), "vcc")
        k.I("buffer_load_dword", v(vpd + 2), v(vpf), sr(sX, 4), s(st0), mods="offen")
    sidx1 = k.salloc()
    k.I("s_lshr_b32", s(sidx1), "s2", 3)
    import kernels2
    kernels2.code_prefetch(k, "k2_attn_kernel", sidx1, st0)
    if os.environ.get("PF2", "0") == "1":
        pp = k.salloc(2); sP = k.salloc(4); vT = k.valloc(); vd = k.valloc(8)
        k.I("s_lshr_b32", s(st0), "s2", 3)
        k.I("s_lshl_b32", s(st0), s(st0), 8)
        k.I("v_add_u32", v(vT), s(st0), "v0")
        k.I("v_lshlrev_b32", v(vT), 7, v(vT))
        k.I("s_getpc_b64", sr(pp, 2))
        k.I("s_and_b32", s(pp), s(pp), "0xffffff00")
        srd(k, sP, pp, "CODE_BYTES-4096")
        k.I("buffer_load_dword", v(vd), v(vT), sr(sP, 4), 0, mods="offen")
        for (ko, nbytes, n) in ((16, 448 * 896, 1), (32, 448 * 3584, 2)):
            k.I("s_load_dwordx2", sr(pp, 2), "s[0:1]", ko)
            k.I("s_waitcnt", "lgkmcnt(0)")
            srd(k, sP, pp, nbytes)
            for i in range(n):
                k.I("s_mov_b32", s(st0), hex(i * 8192 * 128))
                k.I("buffer_load_dword", v(vd + 1 + i + (0 if ko == 16 else 1)), v(vT), sr(sP, 4), s(st0), mods="offen")
        vG = k.valloc()
        k.I("s_lshl_b32", s(st0), "s2", 8)
        k.I("v_add_u32", v(vG), s(st0), "v0")
        k.I("v_lshlrev_b32", v(vG), 7, v(vG))
        for n_, (ko, nbytes) in enumerate(((40, 2048 * 4096), (56, 896 * 896))):
            k.I("s_load_dwordx2", sr(pp, 2), "s[0:1]", ko)
            k.I("s_waitcnt", "lgkmcnt(0)")
            srd(k, sP, pp, nbytes)
            k.I("buffer_load_dword", v(vd + 5 + n_), v(vG), sr(sP, 4), 0, mods="offen")
        srd(k, sP, pWS, 0x1C00000)
        k.I("v_lshlrev_b32", v(t0), 9, v(vT))
        k.I("buffer_load_dword", v(vd + 4), v(t0), sr(sP, 4), 0, mods="offen")
    sm0x = k.salloc()
    k.I("s_mul_i32", s(sm0x), s(swave), NXS * XSL)
    k.I("s_add_u32", s(sm0x), s(sm0x), XRING)
    aX = k.valloc(4); vW = k.valloc(); aG = k.valloc(4); vWj = k.valloc()
    gg = k.valloc()
    k.I("v_and_b32", v(l31), 31, "v0")
    k.I("v_bfe_u32", v(hh), "v0", 5, 1)
    k.I("v_lshrrev_b32", v(gg), 4, v(lane))
    k.I("v_bfe_u32", v(t0), v(l31), 1, 3)
    for j in range(4):
        k.I("v_add_u32", v(t1), 2 * j, v(hh))
        k.I("v_xor_b32", v(t1), v(t1), v(t0))
        k.I("v_lshlrev_b32", v(t1), 4, v(t1))
        k.I("v_lshl_add_u32", v(aX + j), v(l31), 7, v(t1))
        k.I("v_add_u32", v(aX + j), s(sm0x), v(aX + j))
    for rg in range(2):
        k.I("v_add_u32", v(t0), 16 * rg, v(l15))
        k.I("v_bfe_u32", v(t1), v(t0), 1, 3)
        for kk in range(2):
            k.I("v_add_u32", v(t2), 4 * kk, v(gg))
            k.I("v_xor_b32", v(t2), v(t2), v(t1))
            k.I("v_lshlrev_b32", v(t2), 4, v(t2))
            k.I("v_lshl_add_u32", v(aG + 2 * rg + kk), v(t0), 7, v(t2))
            k.I("v_add_u32", v(aG + 2 * rg + kk), s(sm0x), v(aG + 2 * rg + kk))
    k.I("v_bfe_u32", v(t0), "v0", 2, 2)
    k.I("v_lshl_add_u32", v(t1), v(hh), 3, v(t0))
    k.I("v_mul_u32_u24", v(t1), 192, v(t1))
    k.I("v_bfe_u32", v(t2), "v0", 4, 1)
    k.I("v_lshl_add_u32", v(t1), v(t2), 5, v(t1))
    k.I("v_and_b32", v(t2), 3, "v0")
    k.I("v_lshl_add_u32", v(vW), v(t2), 3, v(t1))
    k.I("v_lshl_add_u32", v(t0), v(gg), 3, v(t0))
    k.I("v_mul_u32_u24", v(t0), 192, v(t0))
    k.I("v_lshl_add_u32", v(vWj), v(t2), 3, v(t0))
    k.I("s_lshr_b32", s(st0), s(swave), 1)
    k.I("s_mul_i32", s(st0), s(st0), 32 * 192)
    k.I("s_and_b32", s(st1), s(swave), 1)
    k.I("s_mul_i32", s(st1), s(st1), 96)
    k.I("s_add_u32", s(st0), s(st0), s(st1))
    k.I("v_add_u32", v(vWj), s(st0), v(vWj))
    vW2 = k.valloc(); vWj2 = k.valloc()
    k.I("v_add_u32", v(vW2), 4 * WCH, v(vW))
    k.I("v_add_u32", v(vWj2), 4 * WCH, v(vWj))
    ones = k.valloc(4)
    vWq = k.valloc(); vInc = k.valloc()
    k.I("v_and_b32", v(t0), 19, v(lane))
    k.I("v_cmp_eq_u32", "vcc", 19, v(t0))
    k.I("v_mov_b32", v(t1), ONES)
    k.I("v_cndmask_b32", v(vWq), v(vW), v(t1), "vcc")
    k.I("v_mov_b32", v(t1), 16 * 192)
    k.I("v_cndmask_b32", v(vInc), v(t1), 0, "vcc")
    k.I("v_lshlrev_b32", v(t0), 4, v(lane))
    k.I("v_add_u32", v(t0), ONES, v(t0))
    for i in range(4): k.I("v_mov_b32", v(ones + i), "0x3f803f80")
    k.lg("z", "ds_write_b128", v(t0), vr(ones, 4))
    zz = k.valloc(2); vtb = k.valloc()
    k.I("v_mov_b32", v(zz), 0); k.I("v_mov_b32", v(zz + 1), 0)
    k.I("v_lshlrev_b32", v(vtb), 3, v(lane))
    k.I("v_add_u32", v(vtb), CWT, v(vtb))
    k.lg("z", "ds_write_b64", v(vtb), vr(zz, 2))
    accq = k.valloc(16, 4); acck = k.valloc(16, 4); accv = k.valloc(16, 4)
    NB = 3
    cacc = [k.valloc(4) for _ in range(3)]
    gacc = [k.valloc(4) for _ in range(2)]
    vtl_ = k.valloc(); vcwa = k.valloc(); vsqa = k.valloc(); vrow = k.valloc(); vh4 = k.valloc(); vh4w = k.valloc(); vl31 = k.valloc()
    k.I("v_lshlrev_b32", v(vtl_), 2, v(l15))
    k.I("v_add_u32", v(vtl_), TBL, v(vtl_))
    k.I("s_and_b32", s(st1), s(swave), 1)
    k.I("s_mul_i32", s(st1), s(st1), 192)
    k.I("v_add_u32", v(vcwa), s(st1), v(vtl_))
    k.I("s_lshl_b32", s(st0), s(swave), 7)
    k.I("v_add_u32", v(vsqa), s(st0), v(vtl_))
    k.I("v_add_u32", v(vsqa), SQT - TBL, v(vsqa))
    k.I("v_lshlrev_b32", v(vl31), 2, v(l31))
    k.I("v_add_u32", v(vl31), TBL, v(vl31))
    k.I("v_add_u32", v(vrow), s(st0), v(vl31))
    k.I("v_lshlrev_b32", v(vh4), 4, v(hh))
    k.I("v_add_u32", v(vh4), TBL, v(vh4))
    k.I("v_add_u32", v(vh4w), s(st0), v(vh4))
    vmark = k.vnext
    xf = [k.valloc(4) for _ in range(NB)]
    wf = [[k.valloc(4) for _ in range(3)] for _ in range(NB)]
    xs = [k.valloc(4) for _ in range(4)]
    wf2 = [k.valloc(4) for _ in range(3)]
    def read_list(ks):
        c, j = ks // 4, ks % 4
        b = ks % NB
        out = [lambda: k.lg(("f", ks), "ds_read_b128", vr(xf[b], 4), v(aX + j), mods=f"offset:{(c % NXS) * XSL}")]
        for beta in range(2):
            out.append(lambda beta=beta: k.lg(("f", ks), "ds_read_b64_tr_b16", vr(wf[b][0] + 2 * beta, 2), v(vWq), mods=f"offset:{beta * 4 * 192}"))
        out.append(lambda: k.I("v_add_u32", v(vWq), v(vInc), v(vWq)))
        for sg in range(1, 3):
            for beta in range(2):
                o = (c % 4) * WCH + (16 * j + 4 * beta) * 192 + 64 * sg
                base = vW if c < 4 else vW2
                out.append(lambda o=o, sg=sg, beta=beta, base=base: k.lg(("f", ks), "ds_read_b64_tr_b16", vr(wf[b][sg] + 2 * beta, 2), v(base), mods=f"offset:{o}"))
        return out
    def aux_reads(c):
        out = []
        for j in range(4):
            out.append(lambda j=j: k.lg(("g", c), "ds_read_b128", vr(xs[j], 4), v(aG + j), mods=f"offset:{(c % NXS) * XSL}"))
        for nt in range(3):
            for beta in range(2):
                o = (c % 4) * WCH + (4 * beta) * 192 + 32 * nt
                base = vWj if c < 4 else vWj2
                out.append(lambda o=o, nt=nt, beta=beta, base=base: k.lg(("cw", c), "ds_read_b64_tr_b16", vr(wf2[nt] + 2 * beta, 2), v(base), mods=f"offset:{o}"))
        return out
    k.I("s_waitcnt", "lgkmcnt(0)")
    srd(k, sWS, pWS, WS_SIZE)
    stp.stamp(0)
    k.wait_lg("z")
    k.I("s_barrier")
    stp.stamp(1)
    if os.environ.get("TICKWAVE", "0") != "0": stp.tick = lambda i: None
    stp.tick(0)
    m1 = k.salloc(2); m2 = k.salloc(2); m3 = k.salloc(2)
    k.I("v_and_b32", v(t0), 3, v(lane))
    k.I("v_cmp_eq_u32", sr(m1, 2), 1, v(t0))
    k.I("v_cmp_eq_u32", sr(m2, 2), 2, v(t0))
    k.I("v_cmp_eq_u32", sr(m3, 2), 3, v(t0))
    for f in read_list(0): f()
    for f in read_list(1): f()
    for ks in range(28):
        c, j = ks // 4, ks % 4
        b = ks % NB
        fill = []
        if ks + 2 < 28:
            fill += read_list(ks + 2)
        aux = []
        if j == 0: aux = aux_reads(c)[:4]
        if j == 1: aux = aux_reads(c)[4:]
        if os.environ.get("EXP_NOCOMP"):
            k.lgq = []
            if j == 1 and c < 6:
                k.I("s_barrier"); stp.tick(1 + c)
            continue
        k.wait_lg(("f", ks))
        mf = [
            lambda: k.I("v_mfma_f32_32x32x16_bf16", vr(accq, 16), vr(wf[b][0], 4), vr(xf[b], 4), 0 if ks == 0 else vr(accq, 16)),
            lambda: k.I("v_mfma_f32_32x32x16_bf16", vr(acck, 16), vr(wf[b][1], 4), vr(xf[b], 4), 0 if ks == 0 else vr(acck, 16)),
            lambda: k.I("v_mfma_f32_32x32x16_bf16", vr(accv, 16), vr(xf[b], 4), vr(wf[b][2], 4), 0 if ks == 0 else vr(accv, 16)),
        ]
        fl = fill + aux
        if ks == 27:
            vtl = vtl_;
            def fin1():
                k.I("s_mov_b32", "exec_lo", "0xffff")
                k.I("s_mov_b32", "exec_hi", 0)
                for nt in range(3):
                    k.lg("fin", "ds_add_f32", v(vcwa), v(cacc[nt]), mods=f"offset:{64 * nt}")
                k.I("s_mov_b64", "exec", -1)
            def fin2():
                for rg in range(2):
                    g_ = gacc[rg]
                    k.I("v_cndmask_b32", v(g_), v(g_), v(g_ + 1), sr(m1, 2))
                    k.I("v_cndmask_b32", v(g_), v(g_), v(g_ + 2), sr(m2, 2))
                    k.I("v_cndmask_b32", v(g_), v(g_), v(g_ + 3), sr(m3, 2))
                k.I("s_mov_b32", "exec_lo", "0x00f0000f")
                k.I("s_mov_b32", "exec_hi", "0xf0000f00")
                for rg in range(2):
                    k.lg("fin", "ds_write_b32", v(vsqa), v(gacc[rg]), mods=f"offset:{64 * rg}")
                k.I("s_mov_b64", "exec", -1)
            fl = [fin1, fin2]
        n = len(fl)
        cuts = [0, (n + 2) // 3, (2 * n + 2) // 3, n]
        for i in range(3):
            mf[i]()
            for f in fl[cuts[i]:cuts[i + 1]]: f()
        if j == 1 + (0 if c == 6 else 1):
            k.wait_lg(("g", c))
            for jj in range(4):
                k.I("v_mfma_f32_16x16x32_bf16", vr(gacc[jj >> 1], 4), vr(xs[jj], 4), vr(xs[jj], 4), 0 if (c == 0 and (jj & 1) == 0) else vr(gacc[jj >> 1], 4))
        if j == 2 + (0 if c == 6 else 1):
            k.wait_lg(("cw", c))
            for nt in range(3):
                k.I("v_mfma_f32_16x16x32_bf16", vr(cacc[nt], 4), vr(ones, 4), vr(wf2[nt], 4), 0 if c == 0 else vr(cacc[nt], 4))
        if j == 1 and c < 6:
            k.I("s_barrier")
            stp.tick(1 + c)
    stp.tick(13)
    stp.stamp(2)
    k.vnext = vmark
    sq = k.valloc(2); rl = k.valloc(2); nml = k.valloc(2); cwv = k.valloc(2)
    cwq = k.valloc(16, 4); cwk = k.valloc(16, 4); rv = k.valloc(16, 4); nv = k.valloc(16, 4)
    k.lg("sq", "ds_read_b32", v(sq), v(vrow), mods=f"offset:{SQT - TBL}")
    k.wait_lg("fin")
    k.I("s_barrier")
    for q in range(4):
        k.lg("cwq", "ds_read_b128", vr(cwq + 4 * q, 4), v(vh4), mods=f"offset:{CWT - TBL + 32 * q}")
    for q in range(4):
        k.lg("cwk", "ds_read_b128", vr(cwk + 4 * q, 4), v(vh4), mods=f"offset:{CWT - TBL + 128 + 32 * q}")
    k.lg("cwv", "ds_read_b32", v(cwv), v(vl31), mods=f"offset:{CWT - TBL + 256}")
    k.I("v_mov_b32", v(nml), v(accq + 12))
    k.I("v_mov_b32", v(nml + 1), v(accq + 12))
    k.I("v_permlane32_swap_b32", v(nml), v(nml + 1))
    k.I("v_mul_f32", v(nml), hex(f32(-1.0 / 448)), v(nml + 1))
    k.wait_lg("sq")
    k.I("v_mul_f32", v(sq), hex(f32(1.0 / 448)), v(sq))
    k.I("v_fma_f32", v(sq), f"-{v(nml)}", v(nml), v(sq))
    k.I("v_max_f32", v(sq), 0, v(sq))
    k.I("v_add_f32", v(sq), hex(f32(1e-5)), v(sq))
    k.I("v_rsq_f32", v(rl), v(sq))
    k.I("ds_write_b32", v(vrow), v(nml), mods=f"offset:{NMT - TBL}")
    k.I("ds_write_b32", v(vrow), v(rl), mods=f"offset:{RT - TBL}")
    k.lgq += ["w", "w"]
    for q in range(4):
        k.lg("rv", "ds_read_b128", vr(rv + 4 * q, 4), v(vh4w), mods=f"offset:{RT - TBL + 32 * q}")
        k.lg("rv", "ds_read_b128", vr(nv + 4 * q, 4), v(vh4w), mods=f"offset:{NMT - TBL + 32 * q}")
    vq = k.valloc(); vv_ = k.valloc()
    k.I("v_lshrrev_b32", v(t0), 4, v(l31))
    k.I("v_lshlrev_b32", v(vq), 10, v(t0))
    k.I("v_lshl_add_u32", v(vq), v(l15), 4, v(vq))
    k.I("v_lshl_add_u32", v(vq), v(hh), 9, v(vq))
    k.I("v_lshlrev_b32", v(vv_), 9, v(t0))
    k.I("v_lshl_add_u32", v(vv_), v(l15), 3, v(vv_))
    k.I("v_lshl_add_u32", v(vv_), v(hh), 7, v(vv_))
    sb = k.salloc()
    k.I("s_lshl_b32", s(sb), s(shd), 17)
    k.I("s_lshl_b32", s(st0), s(srb), 13)
    k.I("s_add_u32", s(sb), s(sb), s(st0))
    k.I("s_lshl_b32", s(st0), s(swave), 11)
    k.I("s_add_u32", s(sb), s(sb), s(st0))
    k.I("v_cmp_eq_u32", "vcc", 0, v(hh))
    pk = k.valloc(8, 4)
    for (acc, cw, off, tg) in ((accq, cwq, Q_OFF, "cwq"), (acck, cwk, K_OFF, "cwk")):
        k.wait_lg(tg)
        for j in range(8):
            k.I("v_pk_fma_f32", vr(acc + 2 * j, 2), vr(cw + 2 * j, 2), vr(nml, 2), vr(acc + 2 * j, 2), mods="op_sel_hi:[1,0,1]")
        for j in range(8):
            k.I("v_pk_mul_f32", vr(acc + 2 * j, 2), vr(acc + 2 * j, 2), vr(rl, 2), mods="op_sel_hi:[1,0]")
        for j in range(8):
            k.I("v_cvt_pk_bf16_f32", v(pk + j), v(acc + 2 * j), v(acc + 2 * j + 1))
        k.I("v_cndmask_b32", v(pk + 6), 0, v(pk + 6), "vcc")
        k.I("v_cndmask_b32", v(pk + 7), 0, v(pk + 7), "vcc")
        k.I("s_add_u32", s(soff), s(sb), hex(off))
        k.I("buffer_store_dwordx4", vr(pk, 4), v(vq), sr(sWS, 4), s(soff), mods="offen")
        k.I("buffer_store_dwordx4", vr(pk + 4, 4), v(vq), sr(sWS, 4), s(soff), mods="offen offset:256")
        pk = k.valloc(8, 4)
    k.I("s_waitcnt", "lgkmcnt(0)")
    k.lgq = []
    for j in range(8):
        k.I("v_pk_fma_f32", vr(accv + 2 * j, 2), vr(nv + 2 * j, 2), vr(cwv, 2), vr(accv + 2 * j, 2), mods="op_sel_hi:[1,0,1]")
    for j in range(8):
        k.I("v_pk_mul_f32", vr(accv + 2 * j, 2), vr(accv + 2 * j, 2), vr(rv + 2 * j, 2))
    for j in range(8):
        k.I("v_cvt_pk_bf16_f32", v(pk + j), v(accv + 2 * j), v(accv + 2 * j + 1))
    k.I("v_mov_b32", v(t0), "0x3f803f80")
    k.I("v_cmp_eq_u32", "vcc", 28, v(l31))
    k.I("v_cndmask_b32", v(t0), 0, v(t0), "vcc")
    k.I("v_cmp_gt_u32", "vcc", 28, v(l31))
    for j in range(8):
        k.I("v_cndmask_b32", v(pk + j), v(t0), v(pk + j), "vcc")
    k.I("s_add_u32", s(soff), s(sb), hex(V_OFF))
    for q in range(4):
        k.I("buffer_store_dwordx2", vr(pk + 2 * q, 2), v(vv_), sr(sWS, 4), s(soff), mods=f"offen offset:{(q >> 1) * 1024 + (q & 1) * 256}")
    stp.tick(15)
    stp.stamp(3)
    stp.dump_ticks()
    k.L(done)
    k.I("s_endpgm")
    k.lds = lds; k.threads = 512; k.grid = 256
    return k

import struct
def f32(x): return struct.unpack("<I", struct.pack("<f", x))[0]

def assemble(kernels):
    out = []
    hdr = open("cdna_kernels/" + NAME + ".s.ref").read().split("\n")
    for line in hdr:
        if line.startswith("; Override") or line.startswith("; grid=") or line.startswith("; @launch"): continue
        if not line.startswith(";"): break
        out.append(line)
    for k in kernels:
        out.append(f"; @launch kernel={k.name} grid=({k.grid},1,1) block=({k.threads},1,1) lds={k.lds}")
    out.append('.amdgcn_target "amdgcn-amd-amdhsa--gfx950"')
    out.append(".text")
    for k in kernels:
        n = k.fix_hazards()
        out.append(f".globl {k.name}")
        out.append(".p2align 8")
        out.append(f".type {k.name},@function")
        out.append(f"{k.name}:")
        out.append(k.render())
        out.append(f"{k.name}_end:")
        print(f"{k.name}: {len(k.ins)} instrs, hazard pads {n}, vgpr {k.vmax} agpr {k.amax} sgpr {k.smax} lds {k.lds}", file=sys.stderr)
    out.append("code_end:")
    out.append(f".set CODE_BYTES, code_end - {kernels[0].name}")
    out.append('.section .rodata,"a"')
    for i_, k in enumerate(kernels):
        out.append(".p2align 6")
        if i_ == 0 and os.environ.get("PFKD"): out.append("kd_base:")
        out.append(k.descriptor())
    return "\n".join(out) + "\n"

if __name__ == "__main__":
    import kernels2 as k2
    import k1c
    k1 = k1c.gen_k1c(Stamper) if os.environ.get('K1C', '1') == '1' else gen_k1()
    ks = [k1] + k2.rest(Stamper)
    path = sys.argv[1] if len(sys.argv) > 1 else "cdna_kernels/" + NAME + ".s"
    open(path, "w").write(assemble(ks))
```

```python
import os, struct, math
from asmlib import *
from layout import *
WS_SIZE = 0x10000000
def f32(x): return struct.unpack("<I", struct.pack("<f", x))[0]

def srd(k, dst, base, size):
    k.I("s_mov_b32", s(dst), s(base))
    k.I("s_and_b32", s(dst + 1), s(base + 1), "0xffff")
    k.I("s_mov_b32", s(dst + 2), hex(size) if isinstance(size, int) else size)
    k.I("s_mov_b32", s(dst + 3), "0x20000")

def gen_k2(Stamper):
    k = Kernel("k2_attn_kernel")
    k.snext = 4; k.vnext = 1
    KREG = 0; VREG = 24576
    lds = 49152
    done = k.newlabel("done")
    k.I("s_cmp_ge_u32", "s2", 256)
    k.I("s_cbranch_scc1", done)
    pWS = k.salloc(2); pPo = k.salloc(2); pPi = k.salloc(2)
    k.I("s_load_dwordx2", sr(pWS, 2), "s[0:1]", 80)
    k.I("s_load_dwordx2", sr(pPo, 2), "s[0:1]", 16)
    k.I("s_load_dwordx2", sr(pPi, 2), "s[0:1]", 32)
    sWS = k.salloc(4); sPo = k.salloc(4); sPi = k.salloc(4)
    swave = k.salloc(); srb = k.salloc(); shd = k.salloc(); st0 = k.salloc(); st1 = k.salloc(); soff = k.salloc()
    lane = k.valloc(); t0 = k.valloc(); t1 = k.valloc(); l15 = k.valloc(); gg = k.valloc()
    k.I("v_lshrrev_b32", v(t0), 6, "v0")
    k.I("v_and_b32", v(lane), 63, "v0")
    k.I("v_readfirstlane_b32", s(swave), v(t0))
    map_rb_hd(k, srb, shd, st0, st1)
    stp = Stamper(k, 1, sWS, swave)
    v16 = k.valloc()
    k.I("v_lshlrev_b32", v(v16), 4, v(lane))
    sb = k.salloc(); sm = k.salloc(); s16q = k.salloc()
    k.I("s_lshl_b32", s(sb), s(shd), 17)
    k.I("s_lshl_b32", s(st0), s(srb), 13)
    k.I("s_add_u32", s(sb), s(sb), s(st0))
    k.I("s_mul_i32", s(sm), s(swave), 3072)
    k.I("s_lshl_b32", s(s16q), s(srb), 3)
    k.I("s_add_u32", s(s16q), s(s16q), s(swave))
    k.I("s_waitcnt", "lgkmcnt(0)")
    srd(k, sWS, pWS, WS_SIZE)
    srd(k, sPo, pPo, 448 * 896)
    srd(k, sPi, pPi, 448 * 3584)
    qf = k.valloc(4)
    k.I("s_lshl_b32", s(st0), s(swave), 10)
    k.I("s_add_u32", s(st0), s(st0), s(sb))
    k.I("s_add_u32", s(soff), s(st0), hex(Q_OFF))
    k.vm("q", "buffer_load_dwordx4", vr(qf, 4), v(v16), sr(sWS, 4), s(soff), mods="offen")
    k.I("s_add_u32", s(st1), s(sb), s(sm))
    for (reg, off) in ((KREG, K_OFF), (VREG, V_OFF)):
        for i in range(3):
            k.I("s_add_u32", s(soff), s(st1), hex(off - 16384 + i * 1024))
            k.I("s_add_u32", "m0", s(sm), hex(reg + i * 1024))
            k.vm("k" if reg == KREG else "v", "buffer_load_dwordx4", v(v16), sr(sWS, 4), s(soff), mods="offen lds")
    sidx2 = k.salloc()
    k.I("s_lshr_b32", s(sidx2), "s2", 3)
    code_prefetch(k, "k3_wo_kernel", sidx2, st0)
    stp.stamp(0)
    k.I("v_and_b32", v(l15), 15, v(lane))
    k.I("v_lshrrev_b32", v(gg), 4, v(lane))
    M = [k.salloc(2) for _ in range(4)]
    k.I("v_lshlrev_b32", v(t0), 2, v(gg))
    for i in range(4):
        k.I("v_add_u32", v(t1), i, v(t0))
        k.I("v_cmp_gt_u32", sr(M[i], 2), v(t1), v(l15))
    aK = k.valloc(); aV = k.valloc()
    k.I("s_lshl_b32", s(st0), s(swave), 10)
    k.I("v_add_u32", v(aK), s(st0), v(v16))
    k.I("v_lshlrev_b32", v(aV), 3, v(lane))
    k.I("s_add_u32", s(st0), s(st0), VREG)
    k.I("v_add_u32", v(aV), s(st0), v(aV))
    S = k.valloc(68, 4)
    kf = [k.valloc(4) for _ in range(6)]
    neg = k.valloc()
    k.I("v_mov_b32", v(neg), hex(f32(-1e30)))
    k.wait_vm(["q", "k"])
    k.I("s_barrier")
    stp.stamp(1)
    NKF = 6
    for j in range(min(NKF, 17)):
        k.lg(("k", j), "ds_read_b128", vr(kf[j % NKF], 4), v(aK), mods=f"offset:{j * 1024}")
    for j in range(17):
        k.wait_lg(("k", j))
        k.I("v_mfma_f32_16x16x32_bf16", vr(S + 4 * j, 4), vr(kf[j % NKF], 4), vr(qf, 4), 0)
        if j + NKF < 17:
            k.lg(("k", j + NKF), "ds_read_b128", vr(kf[j % NKF], 4), v(aK), mods=f"offset:{(j + NKF) * 1024}")
    if os.environ.get("PFK2", "1") == "1":
        vd2 = k.valloc(2)
        k.I("s_lshl_b32", s(st0), s(sidx2), 3)
        k.I("s_add_u32", s(st0), s(st0), s(swave))
        k.I("s_mul_i32", s(st1), s(st0), 13 * 128)
        k.I("v_lshlrev_b32", v(t0), 7, v(lane))
        k.I("v_mov_b32", v(t1), "0x7fffff00")
        k.I("v_cmp_gt_u32", "vcc", 13, v(lane))
        k.I("v_cndmask_b32", v(t0), v(t1), v(t0), "vcc")
        k.vm("pf", "buffer_load_dword", v(vd2), v(t0), sr(sPo, 4), s(st1), mods="offen")
        k.I("s_mul_i32", s(st1), s(st0), 25)
        k.I("v_add_u32", v(t0), s(st1), v(lane))
        k.I("v_mul_u32_u24", v(t1), 37450, v(t0))
        k.I("v_lshrrev_b32", v(t1), 19, v(t1))
        k.I("v_mul_u32_u24", v(vd2 + 1), 14, v(t1))
        k.I("v_sub_u32", v(t0), v(t0), v(vd2 + 1))
        k.I("v_mul_u32_u24", v(t1), 3584, v(t1))
        k.I("v_lshl_add_u32", v(t1), v(t0), 7, v(t1))
        k.I("v_add_u32", v(vd2 + 1), 1792 - 896, v(t1))
        k.I("v_cmp_le_u32", "vcc", 7, v(t0))
        k.I("v_cndmask_b32", v(t1), v(t1), v(vd2 + 1), "vcc")
        k.I("v_mov_b32", v(t0), "0x7fffff00")
        k.I("v_cmp_gt_u32", "vcc", 25, v(lane))
        k.I("v_cndmask_b32", v(t1), v(t0), v(t1), "vcc")
        k.I("s_and_b32", s(st1), "s2", 1)
        k.I("s_mul_i32", s(st1), s(st1), 896)
        k.vm("pf", "buffer_load_dword", v(vd2 + 1), v(t1), sr(sPi, 4), s(st1), mods="offen")
    vf = k.valloc(9 * 2 * 4, 4)
    def vread(kp):
        for dt in range(2):
            for beta in range(2):
                tile = min(2 * kp + beta, 16)
                k.lg(("v", kp), "ds_read_b64", vr(vf + (kp * 2 + dt) * 4 + 2 * beta, 2), v(aV), mods=f"offset:{tile * 1024 + dt * 512}")
    for i in range(4):
        k.I("v_cndmask_b32", v(S + i), v(neg), v(S + i), sr(M[i], 2))
        k.I("v_cndmask_b32", v(S + 64 + i), v(S + 64 + i), v(neg), sr(M[i], 2))
    nofix = k.newlabel("nofix")
    k.I("s_cmp_ge_u32", s(s16q), 16)
    k.I("s_cbranch_scc1", nofix)
    k.I("s_sub_u32", s(st0), 16, s(s16q))
    for j in range(16):
        lab = k.newlabel("sk")
        k.I("s_cmp_le_u32", s(st0), j)
        k.I("s_cbranch_scc1", lab)
        for i in range(4): k.I("v_mov_b32", v(S + 4 * j + i), v(neg))
        k.L(lab)
    k.L(nofix)
    mx = k.valloc(4)
    for c in range(4):
        k.I("v_max3_f32", v(mx + c), v(S + c * 17), v(S + c * 17 + 1), v(S + c * 17 + 2))
    for r in range(7):
        for c in range(4):
            b = c * 17 + 3 + 2 * r
            k.I("v_max3_f32", v(mx + c), v(mx + c), v(S + b), v(S + b + 1))
    k.I("v_max3_f32", v(mx), v(mx), v(mx + 1), v(mx + 2))
    k.I("v_max_f32", v(mx), v(mx), v(mx + 3))
    for sw in ("v_permlane16_swap_b32", "v_permlane32_swap_b32"):
        k.I("v_mov_b32", v(mx + 1), v(mx))
        k.I(sw, v(mx), v(mx + 1))
        k.I("v_max_f32", v(mx), v(mx), v(mx + 1))
    cs = 28 ** -0.5 * math.log2(math.e)
    sc = k.salloc()
    k.I("s_mov_b32", s(sc), hex(f32(cs)))
    k.I("v_mul_f32", v(mx), hex(f32(-cs)), v(mx))
    k.wait_vm("v")
    k.I("s_barrier")
    for kp in range(4): vread(kp)
    P = k.valloc(36, 4)
    k.I("v_mov_b32", v(P + 34), 0); k.I("v_mov_b32", v(P + 35), 0)
    O = [k.valloc(4), k.valloc(4)]
    def softmax_tile(j):
        for i in range(4): k.I("v_fma_f32", v(S + 4 * j + i), v(S + 4 * j + i), s(sc), v(mx))
        for i in range(4): k.I("v_exp_f32", v(S + 4 * j + i), v(S + 4 * j + i))
    def pack_tile(j):
        k.I("v_cvt_pk_bf16_f32", v(P + 2 * j), v(S + 4 * j), v(S + 4 * j + 1))
        k.I("v_cvt_pk_bf16_f32", v(P + 2 * j + 1), v(S + 4 * j + 2), v(S + 4 * j + 3))
    for kp in range(9):
        tiles = [2 * kp, 2 * kp + 1] if kp < 8 else [16]
        for j in tiles: softmax_tile(j)
        for j in tiles: pack_tile(j)
        if kp == 1:
            for q in range(4, 7): vread(q)
        if kp == 4:
            for q in range(7, 9): vread(q)
        if kp >= 1:
            q = kp - 1
            k.wait_lg(("v", q))
            for dt in range(2):
                k.I("v_mfma_f32_16x16x32_bf16", vr(O[dt], 4), vr(vf + (q * 2 + dt) * 4, 4), vr(P + 4 * q, 4), 0 if q == 0 else vr(O[dt], 4))
    k.wait_lg(("v", 8))
    for dt in range(2):
        k.I("v_mfma_f32_16x16x32_bf16", vr(O[dt], 4), vr(vf + (8 * 2 + dt) * 4, 4), vr(P + 32, 4), vr(O[dt], 4))
    la = k.valloc(); lb = k.valloc()
    k.I("v_mov_b32", v(la), v(O[1])); k.I("v_mov_b32", v(lb), v(O[1]))
    k.I("v_permlane32_swap_b32", v(la), v(lb))
    k.I("v_mov_b32", v(la), v(lb))
    k.I("v_permlane16_swap_b32", v(la), v(lb))
    k.I("v_rcp_f32", v(lb), v(lb))
    for dt in range(2):
        for i in range(4): k.I("v_mul_f32", v(O[dt] + i), v(O[dt] + i), v(lb))
    pk = k.valloc(4)
    for dt in range(2):
        k.I("v_cvt_pk_bf16_f32", v(pk + 2 * dt), v(O[dt]), v(O[dt] + 1))
        k.I("v_cvt_pk_bf16_f32", v(pk + 2 * dt + 1), v(O[dt] + 2), v(O[dt] + 3))
    k.I("v_cmp_gt_u32", "vcc", 3, v(gg))
    k.I("v_cndmask_b32", v(pk + 2), 0, v(pk + 2), "vcc")
    k.I("v_cndmask_b32", v(pk + 3), 0, v(pk + 3), "vcc")
    vo = k.valloc()
    k.I("s_and_b32", s(st0), s(swave), 1)
    k.I("s_lshl_b32", s(st0), s(st0), 8)
    k.I("v_lshlrev_b32", v(vo), 4, v(l15))
    k.I("v_add_u32", v(vo), s(st0), v(vo))
    k.I("v_lshrrev_b32", v(t0), 1, v(gg))
    k.I("v_lshl_add_u32", v(vo), v(t0), 9, v(vo))
    k.I("v_and_b32", v(t0), 1, v(gg))
    k.I("v_lshl_add_u32", v(vo), v(t0), 3, v(vo))
    k.I("s_lshl_b32", s(st0), s(srb), 2)
    k.I("s_lshr_b32", s(st1), s(swave), 1)
    k.I("s_add_u32", s(st0), s(st0), s(st1))
    k.I("s_lshl_b32", s(st0), s(st0), 15)
    k.I("s_lshl_b32", s(st1), s(shd), 11)
    k.I("s_add_u32", s(st0), s(st0), s(st1))
    k.I("s_add_u32", s(soff), s(st0), hex(O_OFF))
    for dt in range(2):
        k.I("buffer_store_dwordx2", vr(pk + 2 * dt, 2), v(vo), sr(sWS, 4), s(soff), mods=f"offen offset:{dt * 1024}")
    stp.stamp(2)
    k.L(done)
    k.I("s_endpgm")
    k.lds = lds; k.threads = 512; k.grid = 256
    return k


def code_prefetch(k, nxt, sidx, tmp_s, tid="v0"):
    if os.environ.get("PFC", "1") != "1": return
    pp = k.salloc(2); sP = k.salloc(4); vT = k.valloc(); vd = k.valloc()
    lab = k.newlabel("pc")
    k.I("s_getpc_b64", sr(pp, 2))
    k.L(lab)
    k.I("s_add_u32", s(pp), s(pp), f"{nxt}-{lab}")
    k.I("s_addc_u32", s(pp + 1), s(pp + 1), 0)
    srd(k, sP, pp, f"{nxt}_end-{nxt}")
    k.I("s_lshl_b32", s(tmp_s), s(sidx), 8)
    k.I("v_add_u32", v(vT), s(tmp_s), tid)
    k.I("v_lshlrev_b32", v(vT), 7, v(vT))
    k.vm("pfc", "buffer_load_dword", v(vd), v(vT), sr(sP, 4), 0, mods="offen")

def l2_prefetch(k, kernarg_off, nbytes, vT128, nthreads, tmp_s):
    if os.environ.get("PFT", "1") != "1": return
    pp = k.salloc(2); sP = k.salloc(4)
    k.I("s_load_dwordx2", sr(pp, 2), "s[0:1]", kernarg_off)
    k.I("s_waitcnt", "lgkmcnt(0)")
    srd(k, sP, pp, nbytes)
    n = -(-nbytes // (128 * nthreads))
    for i in range(n):
        vd = k.valloc()
        k.I("s_mov_b32", s(tmp_s), hex(i * nthreads * 128))
        k.vm("pft", "buffer_load_dword", v(vd), v(vT128), sr(sP, 4), s(tmp_s), mods="offen")

def mall_prefetch(k, kernarg_off, nbytes, first, per, nw, swave, lane, tmp_s, tv0, tv1, flag="PFM"):
    if os.environ.get(flag, "1") != "1": return
    pp = k.salloc(2); sP = k.salloc(4); vd = k.valloc()
    k.I("s_load_dwordx2", sr(pp, 2), "s[0:1]", kernarg_off)
    k.I("s_mul_i32", s(tmp_s), "s2", nw)
    k.I("s_add_u32", s(tmp_s), s(tmp_s), s(swave))
    k.I("s_mul_i32", s(tmp_s), s(tmp_s), per)
    k.I("s_add_u32", s(tmp_s), s(tmp_s), first)
    k.I("s_lshl_b32", s(tmp_s), s(tmp_s), 7)
    k.I("v_lshlrev_b32", v(tv0), 7, v(lane))
    k.I("v_mov_b32", v(tv1), "0x7fffff00")
    k.I("v_cmp_gt_u32", "vcc", per, v(lane))
    k.I("v_cndmask_b32", v(tv0), v(tv1), v(tv0), "vcc")
    k.I("s_waitcnt", "lgkmcnt(0)")
    k.lgq = []
    srd(k, sP, pp, nbytes)
    k.vm("pfm", "buffer_load_dword", v(vd), v(tv0), sr(sP, 4), s(tmp_s), mods="offen")

def map_rb_hd(k, srb, shd, st0, st1):
    if os.environ.get("MAP48", "1") == "1":
        k.I("s_and_b32", s(st0), "s2", 7)
        k.I("s_lshr_b32", s(st1), "s2", 3)
        k.I("s_and_b32", s(shd), s(st1), 7)
        k.I("s_lshr_b32", s(st1), s(st1), 3)
        k.I("s_lshr_b32", s(srb), s(st0), 1)
        k.I("s_lshl_b32", s(srb), s(srb), 2)
        k.I("s_add_u32", s(srb), s(srb), s(st1))
        k.I("s_and_b32", s(st0), s(st0), 1)
        k.I("s_lshl_b32", s(st0), s(st0), 3)
        k.I("s_add_u32", s(shd), s(shd), s(st0))
    else:
        k.I("s_and_b32", s(st0), "s2", 7)
        k.I("s_lshr_b32", s(st1), "s2", 3)
        k.I("s_and_b32", s(shd), s(st1), 15)
        k.I("s_lshr_b32", s(st1), s(st1), 4)
        k.I("s_lshl_b32", s(srb), s(st0), 1)
        k.I("s_add_u32", s(srb), s(srb), s(st1))

def rot_index(k, dst, srot, c, n):
    k.I("s_add_u32", s(dst), s(srot), c)
    k.I("s_cmp_ge_u32", s(dst), n)
    k.I("s_cselect_b32", "s3", n, 0)
    k.I("s_sub_u32", s(dst), s(dst), "s3")

ROTS = os.environ.get("ROT", "1")
def rot_on(n): return str(n) in ROTS

def common_start(k, nwg):
    k.snext = 4; k.vnext = 1
    done = k.newlabel("done")
    k.I("s_cmp_ge_u32", "s2", nwg)
    k.I("s_cbranch_scc1", done)
    R = dict(done=done)
    R["swave"] = k.salloc(); R["st0"] = k.salloc(); R["st1"] = k.salloc(); R["soff"] = k.salloc()
    R["lane"] = k.valloc(); R["t0"] = k.valloc(); R["t1"] = k.valloc(); R["t2"] = k.valloc()
    k.I("v_lshrrev_b32", v(R["t0"]), 6, "v0")
    k.I("v_and_b32", v(R["lane"]), 63, "v0")
    k.I("v_readfirstlane_b32", s(R["swave"]), v(R["t0"]))
    return R

def interleave(k, mf, fl):
    n = len(fl); m = len(mf)
    cuts = [(i * n + m - 1) // m for i in range(m + 1)]
    cuts[-1] = n
    for i in range(m):
        mf[i]()
        for f in fl[cuts[i]:cuts[i + 1]]: f()

def stats_from_packed(k, P, n, accs, accq, tmp):
    for j in range(n):
        t = tmp[j % len(tmp)]
        k.I("v_lshlrev_b32", v(t), 16, v(P + j))
        k.I("v_and_b32", v(t + 1), "0xffff0000", v(P + j))
        if j == 0:
            k.I("v_pk_mul_f32", vr(accq, 2), vr(t, 2), vr(t, 2))
            k.I("v_mov_b32", v(accs), v(t)); k.I("v_mov_b32", v(accs + 1), v(t + 1))
        else:
            k.I("v_pk_add_f32", vr(accs, 2), vr(accs, 2), vr(t, 2))
            k.I("v_pk_fma_f32", vr(accq, 2), vr(t, 2), vr(t, 2), vr(accq, 2))
    k.I("v_add_f32", v(accs), v(accs), v(accs + 1))
    k.I("v_add_f32", v(accq), v(accq), v(accq + 1))
    for r_ in (accs, accq):
        k.I("v_mov_b32", v(r_ + 1), v(r_))
        k.I("v_permlane32_swap_b32", v(r_), v(r_ + 1))
        k.I("v_add_f32", v(r_), v(r_), v(r_ + 1))

def gen_k3(Stamper):
    k = Kernel("k3_wo_kernel")
    WREG = 0; OREG = 58368
    XT = OREG + 65536
    lds = XT + 8192
    R = common_start(k, 256)
    swave, st0, st1, soff, lane, t0, t1, t2 = (R[x] for x in ("swave", "st0", "st1", "soff", "lane", "t0", "t1", "t2"))
    pX = k.salloc(2); pWo = k.salloc(2); pWin = k.salloc(2); pWS = k.salloc(2)
    k.I("s_load_dwordx2", sr(pX, 2), "s[0:1]", 0)
    k.I("s_load_dwordx2", sr(pWo, 2), "s[0:1]", 16)
    k.I("s_load_dwordx2", sr(pWin, 2), "s[0:1]", 32)
    k.I("s_load_dwordx2", sr(pWS, 2), "s[0:1]", 80)
    sWS = k.salloc(4); sWo = k.salloc(4); sX = k.salloc(4)
    sj = k.salloc(); sidx = k.salloc(); srt = k.salloc(); snt = k.salloc(); sw3 = k.salloc()
    k.I("s_and_b32", s(sj), "s2", 7)
    k.I("s_lshr_b32", s(sidx), "s2", 3)
    k.I("s_and_b32", s(sw3), s(swave), 3)
    stp = Stamper(k, 2, sWS, swave)
    aux = k.newlabel("aux")
    k.I("s_cmp_ge_u32", s(sidx), 28)
    k.I("s_cbranch_scc1", aux)
    k.I("s_mul_i32", s(st0), s(sidx), 37)
    k.I("s_lshr_b32", s(st0), s(st0), 8)
    k.I("s_mul_i32", s(st1), s(st0), 7)
    k.I("s_sub_u32", s(snt), s(sidx), s(st1))
    k.I("s_lshl_b32", s(srt), s(sj), 2)
    k.I("s_add_u32", s(srt), s(srt), s(st0))
    comp = k.newlabel("compute")
    k.I("s_cmp_lt_u32", s(swave), 4)
    k.I("s_cbranch_scc1", comp)
    vsave = k.vnext
    v16 = k.valloc(); vWo = k.valloc()
    k.I("v_lshlrev_b32", v(v16), 4, v(lane))
    k.I("v_lshrrev_b32", v(t0), 3, v(lane))
    k.I("v_mul_u32_u24", v(t0), 896, v(t0))
    k.I("v_bfe_u32", v(t1), v(lane), 4, 1)
    k.I("v_lshlrev_b32", v(t1), 2, v(t1))
    k.I("v_and_b32", v(t2), 7, v(lane))
    k.I("v_xor_b32", v(t1), v(t1), v(t2))
    k.I("v_lshl_add_u32", v(vWo), v(t1), 4, v(t0))
    sOb = k.salloc(); sWb = k.salloc(); smO = k.salloc(); smW = k.salloc()
    k.I("s_lshl_b32", s(sOb), s(srt), 16)
    k.I("s_lshl_b32", s(st0), s(sw3), 10)
    k.I("s_add_u32", s(sOb), s(sOb), s(st0))
    k.I("s_add_u32", s(sOb), s(sOb), hex(O_OFF))
    k.I("s_add_u32", s(smO), s(st0), OREG)
    k.I("s_mul_i32", s(sWb), s(sw3), 8 * 896)
    k.I("s_lshl_b32", s(st1), s(snt), 7)
    k.I("s_add_u32", s(sWb), s(sWb), s(st1))
    k.I("s_add_u32", s(smW), s(st0), WREG)
    def issue(c):
        for r2 in range(2):
            k.I("s_add_u32", s(soff), s(sOb), hex(r2 * 32768 + c * 4096))
            k.I("s_add_u32", "m0", s(smO), hex(r2 * 32768 + c * 4096))
            k.vm(("S", c), "buffer_load_dwordx4", v(v16), sr(sWS, 4), s(soff), mods="offen lds")
        for i in range(2):
            k.I("s_add_u32", s(soff), s(sWb), hex((56 * c + 32 * i) * 896))
            k.I("s_add_u32", "m0", s(smW), hex((56 * c + 32 * i) * 128))
            k.vm(("S", c), "buffer_load_dwordx4", v(vWo), sr(sWo, 4), s(soff), mods="offen lds")
    k.I("s_waitcnt", "lgkmcnt(0)")
    srd(k, sWS, pWS, WS_SIZE)
    srd(k, sWo, pWo, 448 * 896)
    vXo = k.valloc(); sXb = k.salloc(); smX = k.salloc()
    k.I("v_lshrrev_b32", v(t0), 3, v(lane))
    k.I("v_and_b32", v(t1), 7, v(lane))
    k.I("v_xor_b32", v(t1), v(t1), v(t0))
    k.I("v_mul_u32_u24", v(t0), 896, v(t0))
    k.I("v_lshl_add_u32", v(vXo), v(t1), 4, v(t0))
    k.I("s_lshl_b32", s(st0), s(srt), 6)
    k.I("s_lshl_b32", s(st1), s(sw3), 4)
    k.I("s_add_u32", s(st0), s(st0), s(st1))
    k.I("s_mul_i32", s(sXb), s(st0), 896)
    k.I("s_lshl_b32", s(st1), s(snt), 7)
    k.I("s_add_u32", s(sXb), s(sXb), s(st1))
    k.I("s_lshl_b32", s(smX), s(sw3), 11)
    k.I("s_add_u32", s(smX), s(smX), XT)
    srd(k, sX, pX, 2048 * 896)
    LA = 3
    for c in range(LA): issue(c)
    for c in range(8):
        k.wait_vm(("S", c))
        k.I("s_barrier")
        if c + LA < 8: issue(c + LA)
        if c + LA == 7:
            for i in range(2):
                k.I("s_add_u32", s(soff), s(sXb), hex(i * 8 * 896))
                k.I("s_add_u32", "m0", s(smX), hex(i * 1024))
                k.vm(("S", 7), "buffer_load_dwordx4", v(vXo), sr(sX, 4), s(soff), mods="offen lds")
    k.I("s_endpgm")
    k.L(comp)
    k.vnext = vsave; k.vmq = []; k.lgq = []
    l31 = k.valloc(); hh = k.valloc()
    k.I("v_and_b32", v(l31), 31, v(lane))
    k.I("v_lshrrev_b32", v(hh), 5, v(lane))
    srh = k.salloc(); snh = k.salloc(); sst = k.salloc(); sntile = k.salloc()
    k.I("s_and_b32", s(srh), s(swave), 1)
    k.I("s_lshr_b32", s(snh), s(swave), 1)
    k.I("s_lshl_b32", s(sst), s(srt), 1)
    k.I("s_add_u32", s(sst), s(sst), s(srh))
    k.I("s_lshl_b32", s(sntile), s(snt), 1)
    k.I("s_add_u32", s(sntile), s(sntile), s(snh))
    xr = k.valloc(8, 4); vxa = k.valloc(4)
    k.I("s_lshl_b32", s(st0), s(srh), 5)
    k.I("v_add_u32", v(t0), s(st0), v(l31))
    k.I("v_and_b32", v(t1), 7, v(t0))
    k.I("v_lshlrev_b32", v(t0), 7, v(t0))
    k.I("v_lshl_add_u32", v(t0), v(hh), 3, v(t0))
    k.I("v_add_u32", v(t0), XT, v(t0))
    k.I("s_lshl_b32", s(st0), s(snh), 2)
    for q in range(4):
        k.I("s_add_u32", s(st1), s(st0), q)
        k.I("v_xor_b32", v(t2), s(st1), v(t1))
        k.I("v_lshl_add_u32", v(vxa + q), v(t2), 4, v(t0))
    k.I("s_waitcnt", "lgkmcnt(0)")
    srd(k, sWS, pWS, WS_SIZE)
    code_prefetch(k, "k4_win_kernel", sidx, st0)
    stp.stamp(0)
    aO = k.valloc(); vW = k.valloc()
    k.I("v_lshlrev_b32", v(aO), 4, v(lane))
    k.I("s_lshl_b32", s(st0), s(srh), 15)
    k.I("s_add_u32", s(st0), s(st0), OREG)
    k.I("v_add_u32", v(aO), s(st0), v(aO))
    k.I("v_bfe_u32", v(t0), v(lane), 2, 2)
    k.I("v_lshl_add_u32", v(t0), v(hh), 3, v(t0))
    k.I("v_lshlrev_b32", v(vW), 7, v(t0))
    k.I("v_bfe_u32", v(t0), v(lane), 4, 1)
    k.I("v_lshlrev_b32", v(t0), 1, v(t0))
    k.I("v_bfe_u32", v(t1), v(lane), 1, 1)
    k.I("v_add_u32", v(t0), v(t0), v(t1))
    k.I("s_lshl_b32", s(st0), s(snh), 2)
    k.I("v_add_u32", v(t0), s(st0), v(t0))
    k.I("v_bfe_u32", v(t1), v(lane), 3, 1)
    k.I("v_lshlrev_b32", v(t1), 2, v(t1))
    k.I("v_xor_b32", v(t0), v(t0), v(t1))
    k.I("v_lshl_add_u32", v(vW), v(t0), 4, v(vW))
    k.I("v_and_b32", v(t0), 1, v(lane))
    k.I("v_lshl_add_u32", v(vW), v(t0), 3, v(vW))
    acc = k.valloc(16, 4)
    NB = 3
    of = [k.valloc(4) for _ in range(NB)]; wf = [k.valloc(4) for _ in range(NB)]
    def rl(ks):
        b = ks % NB
        out = [lambda: k.lg(("f", ks), "ds_read_b128", vr(of[b], 4), v(aO), mods=f"offset:{ks * 1024}")]
        for beta in range(2):
            o = (28 * (ks >> 1) + 16 * (ks & 1) + 4 * beta) * 128
            out.append(lambda o=o, beta=beta: k.lg(("f", ks), "ds_read_b64_tr_b16", vr(wf[b] + 2 * beta, 2), v(vW), mods=f"offset:{o}"))
        return out
    k.I("s_barrier")
    stp.stamp(1)
    for f in rl(0) + rl(1): f()
    for ks in range(32):
        c, j = ks // 4, ks % 4
        b = ks % NB
        k.wait_lg(("f", ks))
        k.I("v_mfma_f32_32x32x16_bf16", vr(acc, 16), vr(wf[b], 4), vr(of[b], 4), 0 if ks == 0 else vr(acc, 16))
        if j == 1 and c < 7: k.I("s_barrier")
        if ks + 2 < 32 and not (j == 1 and False):
            pass
        nxt = ks + 2
        if nxt < 32:
            for f in rl(nxt): f()
    EOF_MARK = None
    stp.stamp(2)
    for q in range(4): k.I("ds_read_b64", vr(xr + 2 * q, 2), v(vxa + q))
    k.I("s_waitcnt", "lgkmcnt(0)")
    k.lgq = []
    tmp = [k.valloc(2) for _ in range(4)]
    for q in range(4):
        for d in range(2):
            t = tmp[(2 * q + d) % 4]
            k.I("v_lshlrev_b32", v(t), 16, v(xr + 2 * q + d))
            k.I("v_and_b32", v(t + 1), "0xffff0000", v(xr + 2 * q + d))
            k.I("v_pk_add_f32", vr(acc + 4 * q + 2 * d, 2), vr(acc + 4 * q + 2 * d, 2), vr(t, 2))
    P = k.valloc(8, 4)
    for j in range(8): k.I("v_cvt_pk_bf16_f32", v(P + j), v(acc + 2 * j), v(acc + 2 * j + 1))
    v16 = k.valloc()
    k.I("v_lshlrev_b32", v(v16), 4, v(lane))
    k.I("s_mul_i32", s(soff), s(sst), 28 * 1024)
    k.I("s_lshl_b32", s(st0), s(sntile), 11)
    k.I("s_add_u32", s(soff), s(soff), s(st0))
    k.I("s_add_u32", s(soff), s(soff), hex(H_OFF))
    k.I("buffer_store_dwordx4", vr(P, 4), v(v16), sr(sWS, 4), s(soff), mods="offen")
    k.I("buffer_store_dwordx4", vr(P + 4, 4), v(v16), sr(sWS, 4), s(soff), mods="offen offset:1024")
    accs = k.valloc(2); accq = k.valloc(2)
    stats_from_packed(k, P, 8, accs, accq, tmp)
    k.I("v_mov_b32", v(accs + 1), v(accq))
    vh = k.valloc()
    k.I("v_lshlrev_b32", v(vh), 3, v(l31))
    k.I("s_mul_i32", s(soff), s(sst), 32 * 112)
    k.I("s_lshl_b32", s(st0), s(sntile), 8)
    k.I("s_add_u32", s(soff), s(soff), s(st0))
    k.I("s_add_u32", s(soff), s(soff), hex(HS_OFF))
    k.I("s_mov_b32", "exec_hi", 0)
    k.I("buffer_store_dwordx2", vr(accs, 2), v(vh), sr(sWS, 4), s(soff), mods="offen")
    stp.stamp(3)
    k.I("s_endpgm")
    k.L(aux)
    k.vnext = vsave; k.vmq = []; k.lgq = []
    sa = k.salloc(); sWin = k.salloc(4)
    k.I("s_sub_u32", s(sa), s(sidx), 28)
    k.I("s_lshl_b32", s(sa), s(sa), 3)
    k.I("s_add_u32", s(sa), s(sa), s(sj))
    k.I("s_waitcnt", "lgkmcnt(0)")
    srd(k, sWS, pWS, WS_SIZE)
    ff = k.valloc(4)
    for i in range(4): k.I("v_mov_b32", v(ff + i), -1)
    k.I("v_lshlrev_b32", v(t1), 4, "v0")
    k.I("v_mov_b32", v(t2), "0x7fffff00")
    k.I("v_cmp_gt_u32", "vcc", 448, "v0")
    k.I("v_cndmask_b32", v(t1), v(t2), v(t1), "vcc")
    k.I("s_mul_i32", s(st0), s(sa), 7168)
    k.I("s_add_u32", s(st0), s(st0), hex(EX_OFF))
    k.I("buffer_store_dwordx4", vr(ff, 4), v(t1), sr(sWS, 4), s(st0), mods="offen")
    zf = k.valloc(4)
    for i in range(4): k.I("v_mov_b32", v(zf + i), 0)
    k.I("v_lshlrev_b32", v(t1), 4, "v0")
    k.I("v_mov_b32", v(t2), "0x7fffff00")
    k.I("v_cmp_gt_u32", "vcc", 32, "v0")
    k.I("v_cndmask_b32", v(t1), v(t2), v(t1), "vcc")
    k.I("s_lshl_b32", s(st0), s(sa), 9)
    k.I("s_add_u32", s(st0), s(st0), hex(FL_OFF))
    k.I("buffer_store_dwordx4", vr(zf, 4), v(t1), sr(sWS, 4), s(st0), mods="offen")
    srd(k, sWin, pWin, 448 * 3584)
    def win_prefetch():
        if os.environ.get("PFWIN", "k2") != "k3": return
        vTw = k.valloc(); vdw = k.valloc(7)
        k.I("s_sub_u32", s(st0), s(sidx), 28)
        k.I("s_lshl_b32", s(st0), s(st0), 9)
        k.I("v_add_u32", v(vTw), s(st0), "v0")
        k.I("v_lshlrev_b32", v(vTw), 7, v(vTw))
        for i in range(7):
            k.I("s_mov_b32", s(st0), hex(i * 2048 * 128))
            k.I("buffer_load_dword", v(vdw + i), v(vTw), sr(sWin, 4), s(st0), mods="offen")
    nocs = k.newlabel("nocs")
    k.I("s_cmp_ge_u32", s(sa), 28)
    k.I("s_cbranch_scc1", nocs)
    vg = k.valloc()
    k.I("v_lshrrev_b32", v(t0), 3, v(lane))
    k.I("v_mul_u32_u24", v(t0), 3584, v(t0))
    k.I("v_bfe_u32", v(t1), v(lane), 4, 1)
    k.I("v_lshlrev_b32", v(t1), 2, v(t1))
    k.I("v_and_b32", v(t2), 7, v(lane))
    k.I("v_xor_b32", v(t1), v(t1), v(t2))
    k.I("v_lshl_add_u32", v(vg), v(t1), 4, v(t0))
    sb = k.salloc(); sm = k.salloc()
    k.I("s_mul_i32", s(sb), s(swave), 56 * 3584)
    k.I("s_lshl_b32", s(st0), s(sa), 7)
    k.I("s_add_u32", s(sb), s(sb), s(st0))
    k.I("s_mul_i32", s(sm), s(swave), 56 * 128)
    for i in range(7):
        k.I("s_add_u32", s(soff), s(sb), hex(i * 8 * 3584))
        k.I("s_add_u32", "m0", s(sm), hex(i * 1024))
        k.I("buffer_load_dwordx4", v(vg), sr(sWin, 4), s(soff), mods="offen lds")
    win_prefetch()
    z = k.valloc(); TB = 57344
    k.I("v_mov_b32", v(z), 0)
    k.I("v_lshlrev_b32", v(t0), 2, v(lane))
    k.I("v_add_u32", v(t0), TB, v(t0))
    k.I("ds_write_b32", v(t0), v(z))
    gg = k.valloc(); vB = k.valloc(); ones = k.valloc(4)
    k.I("v_lshrrev_b32", v(gg), 4, v(lane))
    k.I("v_bfe_u32", v(t0), v(lane), 2, 2)
    k.I("v_lshl_add_u32", v(t0), v(gg), 3, v(t0))
    k.I("v_lshlrev_b32", v(vB), 7, v(t0))
    k.I("v_bfe_u32", v(t0), v(lane), 1, 1)
    k.I("s_lshl_b32", s(st0), s(sw3), 1)
    k.I("v_add_u32", v(t0), s(st0), v(t0))
    k.I("v_bfe_u32", v(t1), v(lane), 3, 1)
    k.I("v_lshlrev_b32", v(t1), 2, v(t1))
    k.I("v_xor_b32", v(t0), v(t0), v(t1))
    k.I("v_lshl_add_u32", v(vB), v(t0), 4, v(vB))
    k.I("v_and_b32", v(t0), 1, v(lane))
    k.I("v_lshl_add_u32", v(vB), v(t0), 3, v(vB))
    k.I("s_lshr_b32", s(st0), s(swave), 2)
    k.I("s_mul_i32", s(st0), s(st0), 224 * 128)
    k.I("v_add_u32", v(vB), s(st0), v(vB))
    for i in range(4): k.I("v_mov_b32", v(ones + i), "0x3f803f80")
    k.I("s_waitcnt", "vmcnt(7) lgkmcnt(0)" if os.environ.get("PFWIN", "k2") == "k3" else "vmcnt(0) lgkmcnt(0)")
    k.I("s_barrier")
    bf = [k.valloc(4) for _ in range(7)]
    for kk in range(7):
        for beta in range(2):
            k.I("ds_read_b64_tr_b16", vr(bf[kk] + 2 * beta, 2), v(vB), mods=f"offset:{(32 * kk + 4 * beta) * 128}")
    ca = k.valloc(4)
    k.I("s_waitcnt", "lgkmcnt(0)")
    for kk in range(7):
        k.I("v_mfma_f32_16x16x32_bf16", vr(ca, 4), vr(ones, 4), vr(bf[kk], 4), 0 if kk == 0 else vr(ca, 4))
    k.I("v_and_b32", v(t0), 15, v(lane))
    k.I("s_lshl_b32", s(st0), s(sw3), 6)
    k.I("s_add_u32", s(st0), s(st0), TB)
    k.I("v_lshlrev_b32", v(t0), 2, v(t0))
    k.I("v_add_u32", v(t0), s(st0), v(t0))
    k.I("s_mov_b32", "exec_lo", "0xffff")
    k.I("s_mov_b32", "exec_hi", 0)
    k.I("ds_add_f32", v(t0), v(ca))
    k.I("s_mov_b64", "exec", -1)
    k.I("s_waitcnt", "lgkmcnt(0)")
    k.I("s_barrier")
    k.I("s_cmp_lg_u32", s(swave), 0)
    k.I("s_cbranch_scc1", R["done"])
    k.I("v_lshlrev_b32", v(t0), 2, v(lane))
    k.I("v_add_u32", v(t1), TB, v(t0))
    k.I("ds_read_b32", v(z), v(t1))
    k.I("s_lshl_b32", s(st0), s(sa), 8)
    k.I("s_add_u32", s(st0), s(st0), hex(CW_OFF))
    k.I("s_waitcnt", "lgkmcnt(0)")
    k.I("buffer_store_dword", v(z), v(t0), sr(sWS, 4), s(st0), mods="offen")
    k.I("s_endpgm")
    k.L(nocs)
    win_prefetch()
    k.L(R["done"])
    k.I("s_endpgm")
    k.lds = lds; k.threads = 512; k.grid = 256
    return k


GELU_C0 = -2.0 * math.sqrt(2.0 / math.pi) * math.log2(math.e)
GELU_C1 = GELU_C0 * 0.044715

def gen_k4(Stamper):
    k = Kernel("k4_win_kernel")
    NS = 4; SLOT = 32768; TRB = NS * SLOT
    STB = TRB
    lds = TRB + 4096
    R = common_start(k, 256)
    swave, st0, st1, soff, lane, t0, t1, t2 = (R[x] for x in ("swave", "st0", "st1", "soff", "lane", "t0", "t1", "t2"))
    pWin = k.salloc(2); pWS = k.salloc(2)
    k.I("s_load_dwordx2", sr(pWin, 2), "s[0:1]", 32)
    k.I("s_load_dwordx2", sr(pWS, 2), "s[0:1]", 80)
    sWS = k.salloc(4); sWin = k.salloc(4)
    sj = k.salloc(); sidx = k.salloc(); srb = k.salloc(); sct = k.salloc(); sw3 = k.salloc()
    k.I("s_and_b32", s(sj), "s2", 7)
    k.I("s_lshr_b32", s(sidx), "s2", 3)
    k.I("s_and_b32", s(sw3), s(swave), 3)
    pfrole = k.newlabel("pfrole")
    k.I("s_cmp_ge_u32", s(sidx), 28)
    k.I("s_cbranch_scc1", pfrole)
    k.I("s_cmp_ge_u32", s(sidx), 14)
    k.I("s_cselect_b32", s(st0), 1, 0)
    k.I("s_mul_i32", s(st1), s(st0), 14)
    k.I("s_sub_u32", s(sct), s(sidx), s(st1))
    k.I("s_lshl_b32", s(srb), s(sj), 1)
    k.I("s_add_u32", s(srb), s(srb), s(st0))
    stp = Stamper(k, 3, sWS, swave)
    k.I("s_waitcnt", "lgkmcnt(0)")
    srd(k, sWS, pWS, WS_SIZE)
    comp = k.newlabel("compute")
    k.I("s_cmp_lt_u32", s(swave), 4)
    k.I("s_cbranch_scc1", comp)
    vsave = k.vnext
    srd(k, sWin, pWin, 448 * 3584)
    v16 = k.valloc(); vWo = k.valloc()
    k.I("v_lshlrev_b32", v(v16), 4, v(lane))
    k.I("v_lshrrev_b32", v(t0), 4, v(lane))
    k.I("v_lshlrev_b32", v(t1), 2, v(t0))
    k.I("v_and_b32", v(t2), 15, v(lane))
    k.I("v_xor_b32", v(t1), v(t1), v(t2))
    k.I("v_mul_u32_u24", v(vWo), 3584, v(t0))
    k.I("v_and_b32", v(t2), 7, v(t1))
    k.I("v_lshl_add_u32", v(vWo), v(t2), 4, v(vWo))
    k.I("v_add_u32", v(t2), 1792, v(vWo))
    k.I("v_cmp_gt_u32", "vcc", 8, v(t1))
    k.I("v_cndmask_b32", v(vWo), v(vWo), v(t2), "vcc")
    sHb = k.salloc(); sWb = k.salloc(); smH = k.salloc(); smW = k.salloc()
    k.I("s_lshl_b32", s(st0), s(srb), 2)
    k.I("s_add_u32", s(st0), s(st0), s(sw3))
    k.I("s_mul_i32", s(sHb), s(st0), 28 * 1024)
    k.I("s_add_u32", s(sHb), s(sHb), hex(H_OFF))
    k.I("s_lshl_b32", s(smH), s(sw3), 12)
    k.I("s_mul_i32", s(sWb), s(sw3), 16 * 3584)
    k.I("s_lshl_b32", s(st1), s(sct), 7)
    k.I("s_add_u32", s(sWb), s(sWb), s(st1))
    k.I("s_add_u32", s(smW), s(smH), 16384)
    def issue(c):
        sl = (c % NS) * SLOT
        for i in range(4):
            k.I("s_add_u32", s(soff), s(sHb), hex((4 * c + i) * 1024))
            k.I("s_add_u32", "m0", s(smH), hex(sl + i * 1024))
            k.vm(("S", c), "buffer_load_dwordx4", v(v16), sr(sWS, 4), s(soff), mods="offen lds")
        for i in range(4):
            k.I("s_add_u32", s(soff), s(sWb), hex((64 * c + 4 * i) * 3584))
            k.I("s_add_u32", "m0", s(smW), hex(sl + i * 1024))
            k.vm(("S", c), "buffer_load_dwordx4", v(vWo), sr(sWin, 4), s(soff), mods="offen lds")
    issue(0); issue(1)
    for c in range(7):
        k.wait_vm(("S", c))
        k.I("s_barrier")
        if c == 0: issue(2); issue(3)
        elif c + 2 < 7 and c >= 2: issue(c + 2)
    k.I("s_barrier")
    k.I("s_endpgm")
    k.L(comp)
    k.vnext = vsave; k.vmq = []; k.lgq = []
    l31 = k.valloc(); hh = k.valloc()
    k.I("v_and_b32", v(l31), 31, v(lane))
    k.I("v_lshrrev_b32", v(hh), 5, v(lane))
    srh = k.salloc(); sch = k.salloc(); sst = k.salloc()
    k.I("s_and_b32", s(srh), s(swave), 1)
    k.I("s_lshr_b32", s(sch), s(swave), 1)
    k.I("s_lshl_b32", s(sst), s(srb), 2)
    k.I("s_lshl_b32", s(st0), s(srh), 1)
    k.I("s_add_u32", s(sst), s(sst), s(st0))
    hs = [k.valloc(16, 4) for _ in range(2)]
    vh = k.valloc()
    k.I("v_mul_u32_u24", v(vh), 112, v(l31))
    k.I("v_lshl_add_u32", v(vh), v(hh), 6, v(vh))
    for t in range(2):
        k.I("s_add_u32", s(st0), s(sst), t)
        k.I("s_mul_i32", s(soff), s(st0), 32 * 112)
        k.I("s_add_u32", s(soff), s(soff), hex(HS_OFF))
        for i in range(4):
            k.vm("hs", "buffer_load_dwordx4", vr(hs[t] + 4 * i, 4), v(vh), sr(sWS, 4), s(soff), mods=f"offen offset:{16 * i}")
    cw = [k.valloc(16, 4) for _ in range(2)]
    vc = k.valloc()
    k.I("v_lshlrev_b32", v(vc), 4, v(hh))
    k.I("s_lshl_b32", s(st0), s(sct), 8)
    k.I("s_lshl_b32", s(st1), s(sch), 7)
    k.I("s_add_u32", s(st0), s(st0), s(st1))
    for z in range(2):
        k.I("s_add_u32", s(soff), s(st0), hex(CW_OFF + (896 * 4 if z == 0 else 0)))
        for q in range(4):
            k.vm("cw", "buffer_load_dwordx4", vr(cw[z] + 4 * q, 4), v(vc), sr(sWS, 4), s(soff), mods=f"offen offset:{32 * q}")
    if os.environ.get("PF2", "0") == "1":
        pp = k.salloc(2); sP = k.salloc(4); vT = k.valloc(); vd = k.valloc(2)
        k.I("s_load_dwordx2", sr(pp, 2), "s[0:1]", 40)
        k.I("s_lshl_b32", s(st0), s(sidx), 8)
        k.I("v_add_u32", v(vT), s(st0), "v0")
        k.I("s_waitcnt", "lgkmcnt(0)")
        srd(k, sP, pp, 2048 * 4096)
        k.I("s_lshr_b32", s(st0), s(sj), 1)
        k.I("s_lshl_b32", s(st0), s(st0), 21)
        k.I("s_and_b32", s(st1), s(sj), 1)
        k.I("s_lshl_b32", s(st1), s(st1), 11)
        k.I("s_add_u32", s(st0), s(st0), s(st1))
        for i in range(2):
            k.I("v_add_u32", v(t0), 7168 * i, v(vT))
            k.I("v_lshrrev_b32", v(t1), 4, v(t0))
            k.I("v_lshlrev_b32", v(t1), 12, v(t1))
            k.I("v_and_b32", v(t2), 15, v(t0))
            k.I("v_lshl_add_u32", v(t1), v(t2), 7, v(t1))
            if i == 1:
                k.I("v_mov_b32", v(t2), "0x7fffff00")
                k.I("v_cmp_gt_u32", "vcc", 8192, v(t0))
                k.I("v_cndmask_b32", v(t1), v(t2), v(t1), "vcc")
            k.vm("pf", "buffer_load_dword", v(vd + i), v(t1), sr(sP, 4), s(st0), mods="offen")
    code_prefetch(k, "k5_sp_kernel", sidx, st0)
    stp.stamp(0)
    aH = k.valloc(); vW = [k.valloc(), k.valloc()]
    k.I("v_lshlrev_b32", v(aH), 4, v(lane))
    k.I("s_lshl_b32", s(st0), s(srh), 13)
    k.I("v_add_u32", v(aH), s(st0), v(aH))
    k.I("v_bfe_u32", v(t0), v(lane), 2, 2)
    k.I("v_lshl_add_u32", v(t1), v(hh), 2, v(t0))
    k.I("v_lshlrev_b32", v(t1), 8, v(t1))
    k.I("v_add_u32", v(t1), 16384, v(t1))
    k.I("v_bfe_u32", v(t2), v(lane), 4, 1)
    k.I("v_lshlrev_b32", v(t2), 1, v(t2))
    k.I("v_bfe_u32", v(vW[0]), v(lane), 1, 1)
    k.I("v_add_u32", v(t2), v(t2), v(vW[0]))
    k.I("s_lshl_b32", s(st0), s(sch), 2)
    k.I("v_add_u32", v(t2), s(st0), v(t2))
    k.I("v_lshlrev_b32", v(t0), 2, v(t0))
    k.I("v_xor_b32", v(vW[0]), v(t2), v(t0))
    k.I("v_add_u32", v(t2), 8, v(t2))
    k.I("v_xor_b32", v(vW[1]), v(t2), v(t0))
    k.I("v_and_b32", v(t2), 1, v(lane))
    for z in range(2):
        k.I("v_lshl_add_u32", v(vW[z]), v(vW[z]), 4, v(t1))
        k.I("v_lshl_add_u32", v(vW[z]), v(t2), 3, v(vW[z]))
    aH2 = k.valloc(); vW2 = [k.valloc(), k.valloc()]
    k.I("v_add_u32", v(aH2), 65536, v(aH))
    for z in range(2): k.I("v_add_u32", v(vW2[z]), 65536, v(vW[z]))
    acc = [[k.valloc(16, 4) for _ in range(2)] for _ in range(2)]
    vmark = k.vnext
    NB = 3
    hf = [[k.valloc(4) for _ in range(2)] for _ in range(NB)]
    wf = [[k.valloc(4) for _ in range(2)] for _ in range(NB)]
    def rl(ks):
        c, j = ks // 4, ks % 4
        b = ks % NB
        sl = (c % NS) * SLOT
        hi = sl >= 65536
        so = sl - (65536 if hi else 0)
        out = []
        for t in range(2):
            out.append(lambda t=t: k.lg(("f", ks), "ds_read_b128", vr(hf[b][t], 4), v(aH2 if hi else aH), mods=f"offset:{so + t * 4096 + j * 1024}"))
        for z in range(2):
            for beta in range(2):
                o = so + (16 * j + 8 * beta) * 256
                out.append(lambda o=o, z=z, beta=beta: k.lg(("f", ks), "ds_read_b64_tr_b16", vr(wf[b][z] + 2 * beta, 2), v((vW2 if hi else vW)[z]), mods=f"offset:{o}"))
        return out
    k.I("s_barrier")
    stp.stamp(1)
    for f in rl(0) + rl(1): f()
    for ks in range(28):
        c, j = ks // 4, ks % 4
        b = ks % NB
        k.wait_lg(("f", ks))
        mf = []
        for z in range(2):
            for t in range(2):
                mf.append(lambda z=z, t=t: k.I("v_mfma_f32_32x32x16_bf16", vr(acc[z][t], 16), vr(wf[b][z], 4), vr(hf[b][t], 4), 0 if ks == 0 else vr(acc[z][t], 16)))
        if j == 2 and c < 6:
            pass
        fl = rl(ks + 2) if ks + 2 < 28 else []
        if j == 2 and ks + 2 < 28:
            k.I("s_barrier")
        interleave(k, mf, fl)
    stp.stamp(2)
    k.vnext = vmark
    k.wait_vm(["hs", "cw"])
    rr = [k.valloc(2) for _ in range(2)]; nm = [k.valloc(2) for _ in range(2)]
    c0r = [k.valloc(2) for _ in range(2)]; c1r = [k.valloc(2) for _ in range(2)]
    k.I("v_cmp_eq_u32", "vcc", 0, v(hh))
    for t in range(2):
        H = hs[t]
        for i in range(12, 16): k.I("v_cndmask_b32", v(H + i), 0, v(H + i), "vcc")
        for i in range(4): k.I("v_pk_add_f32", vr(H + 2 * i, 2), vr(H + 2 * i, 2), vr(H + 8 + 2 * i, 2))
        for i in range(2): k.I("v_pk_add_f32", vr(H + 2 * i, 2), vr(H + 2 * i, 2), vr(H + 4 + 2 * i, 2))
        k.I("v_pk_add_f32", vr(H, 2), vr(H, 2), vr(H + 2, 2))
        for e in range(2):
            k.I("v_mov_b32", v(H + 2), v(H + e))
            k.I("v_permlane32_swap_b32", v(H + e), v(H + 2))
            k.I("v_add_f32", v(H + e), v(H + e), v(H + 2))
        k.I("v_mul_f32", v(nm[t]), hex(f32(-1.0 / 448)), v(H))
        k.I("v_mul_f32", v(H + 1), hex(f32(1.0 / 448)), v(H + 1))
        k.I("v_fma_f32", v(H + 1), f"-{v(nm[t])}", v(nm[t]), v(H + 1))
        k.I("v_max_f32", v(H + 1), 0, v(H + 1))
        k.I("v_add_f32", v(H + 1), hex(f32(1e-5)), v(H + 1))
        k.I("v_rsq_f32", v(rr[t]), v(H + 1))
        k.I("v_mul_f32", v(c0r[t]), hex(f32(GELU_C0)), v(rr[t]))
        k.I("v_mul_f32", v(c1r[t]), v(rr[t]), v(rr[t]))
        k.I("v_mul_f32", v(c1r[t]), v(c1r[t]), v(rr[t]))
        k.I("v_mul_f32", v(c1r[t]), hex(f32(GELU_C1)), v(c1r[t]))
    norh = k.newlabel("norh")
    k.I("s_or_b32", s(st0), s(sct), s(sch))
    k.I("s_cmp_lg_u32", s(st0), 0)
    k.I("s_cbranch_scc1", norh)
    k.I("v_lshlrev_b32", v(t0), 2, v(l31))
    for t in range(2):
        k.I("s_add_u32", s(st0), s(sst), t)
        k.I("s_lshl_b32", s(st0), s(st0), 7)
        k.I("s_add_u32", s(st0), s(st0), hex(RH_OFF))
        k.I("buffer_store_dword", v(rr[t]), v(t0), sr(sWS, 4), s(st0), mods="offen")
    k.L(norh)
    tp = [k.valloc(2) for _ in range(4)]
    def gelu_tile(A, z, t):
        for j in range(8):
            k.I("v_pk_fma_f32", vr(A + 2 * j, 2), vr(cw[z] + 2 * j, 2), vr(nm[t], 2), vr(A + 2 * j, 2), mods="op_sel_hi:[1,0,1]")
        for j0 in range(0, 8, 4):
            for j in range(j0, j0 + 4):
                T = tp[j - j0]
                k.I("v_pk_mul_f32", vr(T, 2), vr(A + 2 * j, 2), vr(A + 2 * j, 2))
            for j in range(j0, j0 + 4):
                T = tp[j - j0]
                k.I("v_pk_fma_f32", vr(T, 2), vr(T, 2), vr(c1r[t], 2), vr(c0r[t], 2), mods="op_sel_hi:[1,0,0]")
            for j in range(j0, j0 + 4):
                T = tp[j - j0]
                k.I("v_pk_mul_f32", vr(T, 2), vr(T, 2), vr(A + 2 * j, 2))
            for j in range(j0, j0 + 4):
                T = tp[j - j0]
                k.I("v_exp_f32", v(T), v(T)); k.I("v_exp_f32", v(T + 1), v(T + 1))
            for j in range(j0, j0 + 4):
                T = tp[j - j0]
                k.I("v_pk_add_f32", vr(T, 2), vr(T, 2), "1.0", mods="op_sel_hi:[1,0]")
            for j in range(j0, j0 + 4):
                T = tp[j - j0]
                k.I("v_rcp_f32", v(T), v(T)); k.I("v_rcp_f32", v(T + 1), v(T + 1))
            for j in range(j0, j0 + 4):
                T = tp[j - j0]
                k.I("v_pk_mul_f32", vr(A + 2 * j, 2), vr(A + 2 * j, 2), vr(T, 2))
    accs = [k.valloc(2) for _ in range(2)]; accq = [k.valloc(2) for _ in range(2)]
    for t in range(2):
        A = acc[0][t]
        gelu_tile(A, 0, t)
        for j in range(8):
            k.I("v_pk_mul_f32", vr(A + 2 * j, 2), vr(A + 2 * j, 2), vr(rr[t], 2), mods="op_sel_hi:[1,0]")
        k.I("v_pk_add_f32", vr(accs[t], 2), vr(A, 2), vr(A + 2, 2))
        k.I("v_pk_mul_f32", vr(accq[t], 2), vr(A, 2), vr(A, 2))
        k.I("v_pk_fma_f32", vr(accq[t], 2), vr(A + 2, 2), vr(A + 2, 2), vr(accq[t], 2))
        for j in range(2, 8):
            k.I("v_pk_add_f32", vr(accs[t], 2), vr(accs[t], 2), vr(A + 2 * j, 2))
            k.I("v_pk_fma_f32", vr(accq[t], 2), vr(A + 2 * j, 2), vr(A + 2 * j, 2), vr(accq[t], 2))
        k.I("v_add_f32", v(accs[t]), v(accs[t]), v(accs[t] + 1))
        k.I("v_add_f32", v(accs[t] + 1), v(accq[t]), v(accq[t] + 1))
        for e in range(2):
            k.I("v_mov_b32", v(accq[t]), v(accs[t] + e))
            k.I("v_permlane32_swap_b32", v(accs[t] + e), v(accq[t]))
            k.I("v_add_f32", v(accs[t] + e), v(accs[t] + e), v(accq[t]))
    vs = k.valloc()
    k.I("v_lshlrev_b32", v(vs), 3, v(l31))
    k.I("s_lshl_b32", s(st0), s(srh), 9)
    k.I("s_add_u32", s(st0), s(st0), STB)
    k.I("v_add_u32", v(vs), s(st0), v(vs))
    k.I("s_lshl_b32", s(st0), s(sch), 10)
    k.I("v_add_u32", v(t0), s(st0), v(vs))
    for t in range(2):
        k.I("ds_write_b64", v(t0), vr(accs[t], 2), mods=f"offset:{t * 256}")
    k.I("s_waitcnt", "lgkmcnt(0)")
    k.I("s_barrier")
    pub = k.newlabel("nopub")
    k.I("s_cmp_lg_u32", s(sch), 0)
    k.I("s_cbranch_scc1", pub)
    oth = k.valloc(4)
    for t in range(2):
        k.I("ds_read_b64", vr(oth + 2 * t, 2), v(vs), mods=f"offset:{1024 + t * 256}")
    k.I("s_waitcnt", "lgkmcnt(0)")
    for t in range(2):
        k.I("v_pk_add_f32", vr(oth + 2 * t, 2), vr(oth + 2 * t, 2), vr(accs[t], 2))
        k.I("v_mov_b32", v(t1), "0x7fc00000")
        k.I("v_cmp_eq_u32", "vcc", -1, v(oth + 2 * t + 1))
        k.I("v_cndmask_b32", v(oth + 2 * t + 1), v(oth + 2 * t + 1), v(t1), "vcc")
    ve = k.valloc()
    k.I("v_mul_u32_u24", v(ve), 112, v(l31))
    k.I("s_mul_i32", s(soff), s(sst), 32 * 112)
    k.I("s_lshl_b32", s(st0), s(sct), 3)
    k.I("s_add_u32", s(soff), s(soff), s(st0))
    k.I("s_add_u32", s(soff), s(soff), hex(EX_OFF))
    k.I("s_mov_b32", "exec_hi", 0)
    for t in range(2):
        k.I("buffer_store_dwordx2", vr(oth + 2 * t, 2), v(ve), sr(sWS, 4), s(soff), mods=f"offen offset:{t * 32 * 112} sc0 sc1")
    k.I("s_mov_b64", "exec", -1)
    k.L(pub)
    stp.stamp(3)
    v16 = k.valloc()
    k.I("v_lshlrev_b32", v(v16), 4, v(lane))
    P = [k.valloc(8, 4) for _ in range(2)]
    sft = k.salloc()
    k.I("s_lshl_b32", s(sft), s(sct), 1)
    k.I("s_add_u32", s(sft), s(sft), s(sch))
    for t in range(2):
        A = acc[1][t]
        gelu_tile(A, 1, t)
        for j in range(8): k.I("v_cvt_pk_bf16_f32", v(P[t] + j), v(A + 2 * j), v(A + 2 * j + 1))
        k.I("s_add_u32", s(st0), s(sst), t)
        k.I("s_mul_i32", s(soff), s(st0), 56 * 1024)
        k.I("s_lshl_b32", s(st0), s(sft), 11)
        k.I("s_add_u32", s(soff), s(soff), s(st0))
        k.I("s_add_u32", s(soff), s(soff), hex(Z1_OFF))
        k.I("buffer_store_dwordx4", vr(P[t], 4), v(v16), sr(sWS, 4), s(soff), mods="offen")
        k.I("buffer_store_dwordx4", vr(P[t] + 4, 4), v(v16), sr(sWS, 4), s(soff), mods="offen offset:1024")
    stp.stamp(4)
    ex = hs
    k.I("v_mul_u32_u24", v(vh), 112, v(l31))
    k.I("v_lshl_add_u32", v(vh), v(hh), 6, v(vh))
    k.I("s_mul_i32", s(soff), s(sst), 32 * 112)
    k.I("s_add_u32", s(soff), s(soff), hex(EX_OFF))
    scount = k.salloc(); sbad = k.salloc(2)
    k.I("s_mov_b32", s(scount), 0)
    poll = k.newlabel("poll"); pdone = k.newlabel("pdone")
    k.L(poll)
    for t in range(2):
        for i in range(4):
            k.I("buffer_load_dwordx4", vr(ex[t] + 4 * i, 4), v(vh), sr(sWS, 4), s(soff), mods=f"offen offset:{t * 32 * 112 + 16 * i} sc0 sc1")
    k.I("s_waitcnt", "vmcnt(0)")
    k.I("v_cmp_eq_u32", "vcc", 0, v(hh))
    for t in range(2):
        for i in range(12, 16): k.I("v_cndmask_b32", v(ex[t] + i), 0, v(ex[t] + i), "vcc")
    k.I("v_max_u32", v(t0), v(ex[0] + 1), v(ex[0] + 3))
    for t in range(2):
        for i in range(8):
            if t == 0 and i < 2: continue
            k.I("v_max_u32", v(t0), v(t0), v(ex[t] + 2 * i + 1))
    k.I("v_cmp_eq_u32", "vcc", -1, v(t0))
    k.I("s_add_u32", s(scount), s(scount), 1)
    k.I("s_cmp_eq_u64", "vcc", 0)
    k.I("s_cbranch_scc1", pdone)
    k.I("s_cmp_lt_u32", s(scount), 0x40000)
    k.I("s_cbranch_scc0", pdone)
    k.I("s_sleep", 1)
    k.I("s_branch", poll)
    k.L(pdone)
    sc_ = [k.valloc(2) for _ in range(2)]; zm = [k.valloc(2) for _ in range(2)]
    for t in range(2):
        H = ex[t]
        for i in range(4): k.I("v_pk_add_f32", vr(H + 2 * i, 2), vr(H + 2 * i, 2), vr(H + 8 + 2 * i, 2))
        for i in range(2): k.I("v_pk_add_f32", vr(H + 2 * i, 2), vr(H + 2 * i, 2), vr(H + 4 + 2 * i, 2))
        k.I("v_pk_add_f32", vr(H, 2), vr(H, 2), vr(H + 2, 2))
        for e in range(2):
            k.I("v_mov_b32", v(H + 2), v(H + e))
            k.I("v_permlane32_swap_b32", v(H + e), v(H + 2))
            k.I("v_add_f32", v(H + e), v(H + e), v(H + 2))
        k.I("v_mul_f32", v(zm[t]), hex(f32(-1.0 / 896)), v(H))
        k.I("v_mul_f32", v(H + 1), hex(f32(1.0 / 896)), v(H + 1))
        k.I("v_fma_f32", v(H + 1), f"-{v(zm[t])}", v(zm[t]), v(H + 1))
        k.I("v_max_f32", v(H + 1), 0, v(H + 1))
        k.I("v_add_f32", v(H + 1), hex(f32(1e-5)), v(H + 1))
        k.I("v_rsq_f32", v(sc_[t]), v(H + 1))
        k.I("v_mul_f32", v(zm[t]), v(zm[t]), v(sc_[t]))
    TW = 0
    vt = k.valloc(); vtr = k.valloc()
    k.I("v_lshlrev_b32", v(vt), 6, v(l31))
    k.I("v_lshl_add_u32", v(vt), v(hh), 3, v(vt))
    k.I("s_lshl_b32", s(st0), s(swave), 12)
    k.I("v_add_u32", v(vt), s(st0), v(vt))
    for t in range(2):
        A = acc[0][t]
        for j in range(8):
            k.I("v_pk_fma_f32", vr(A + 2 * j, 2), vr(A + 2 * j, 2), vr(sc_[t], 2), vr(zm[t], 2), mods="op_sel_hi:[1,0,0]")
        for j in range(8): k.I("v_cvt_pk_bf16_f32", v(P[t] + j), v(A + 2 * j), v(A + 2 * j + 1))
        for q in range(4):
            k.I("ds_write_b64", v(vt), vr(P[t] + 2 * q, 2), mods=f"offset:{t * 2048 + 16 * q}")
    k.I("v_bfe_u32", v(t0), v(lane), 2, 2)
    k.I("v_lshl_add_u32", v(t0), v(hh), 3, v(t0))
    k.I("v_lshlrev_b32", v(vtr), 6, v(t0))
    k.I("v_bfe_u32", v(t0), v(lane), 4, 1)
    k.I("v_lshl_add_u32", v(vtr), v(t0), 5, v(vtr))
    k.I("v_and_b32", v(t0), 3, v(lane))
    k.I("v_lshl_add_u32", v(vtr), v(t0), 3, v(vtr))
    k.I("s_lshl_b32", s(st0), s(swave), 12)
    k.I("v_add_u32", v(vtr), s(st0), v(vtr))
    k.I("s_waitcnt", "lgkmcnt(0)")
    Z = cw[0]
    for ks in range(4):
        for beta in range(2):
            k.I("ds_read_b64_tr_b16", vr(Z + 4 * ks + 2 * beta, 2), v(vtr), mods=f"offset:{(16 * ks + 4 * beta) * 64}")
    k.I("s_mul_i32", s(soff), s(sft), ZS)
    k.I("s_lshr_b32", s(st0), s(sst), 5)
    k.I("s_mul_i32", s(st0), s(st0), ZK)
    k.I("s_add_u32", s(soff), s(soff), s(st0))
    k.I("s_and_b32", s(st0), s(sst), 31)
    k.I("s_lshl_b32", s(st0), s(st0), 11)
    k.I("s_add_u32", s(soff), s(soff), s(st0))
    k.I("s_add_u32", s(soff), s(soff), hex(Z2_OFF))
    for ks in range(4):
        k.I("s_waitcnt", f"lgkmcnt({6 - 2 * ks})")
        k.I("buffer_store_dwordx4", vr(Z + 4 * ks, 4), v(v16), sr(sWS, 4), s(soff), mods=f"offen offset:{ks * 1024}")
    stp.stamp(5)
    k.I("s_endpgm")
    k.L(pfrole)
    pp = k.salloc(2); sP = k.salloc(4); vT = k.valloc(); vd = k.valloc(4)
    k.I("s_load_dwordx2", sr(pp, 2), "s[0:1]", 40)
    k.I("s_sub_u32", s(st0), s(sidx), 28)
    k.I("s_lshl_b32", s(st0), s(st0), 9)
    k.I("v_add_u32", v(vT), s(st0), "v0")
    k.I("s_lshr_b32", s(st0), s(sj), 1)
    k.I("s_lshl_b32", s(st0), s(st0), 21)
    k.I("s_and_b32", s(st1), s(sj), 1)
    k.I("s_lshl_b32", s(st1), s(st1), 11)
    k.I("s_add_u32", s(st0), s(st0), s(st1))
    k.I("s_waitcnt", "lgkmcnt(0)")
    srd(k, sP, pp, 2048 * 4096)
    for i in range(4):
        k.I("v_add_u32", v(t0), 2048 * i, v(vT))
        k.I("v_lshrrev_b32", v(t1), 4, v(t0))
        k.I("v_lshlrev_b32", v(t1), 12, v(t1))
        k.I("v_and_b32", v(t2), 15, v(t0))
        k.I("v_lshl_add_u32", v(t1), v(t2), 7, v(t1))
        k.I("buffer_load_dword", v(vd + i), v(t1), sr(sP, 4), s(st0), mods="offen")
    k.L(R["done"])
    k.I("s_endpgm")
    k.lds = lds; k.threads = 512; k.grid = 256
    return k


def gen_k4b(Stamper):
    k = Kernel("k4_win_kernel")
    HREG = 0; WRING = 114688; WSL = 8192; NS = 5
    CWT = WRING + NS * WSL
    lds = CWT + 512
    R = common_start(k, 256)
    swave, st0, st1, soff, lane, t0, t1, t2 = (R[x] for x in ("swave", "st0", "st1", "soff", "lane", "t0", "t1", "t2"))
    pWin = k.salloc(2); pWS = k.salloc(2)
    k.I("s_load_dwordx2", sr(pWin, 2), "s[0:1]", 32)
    k.I("s_load_dwordx2", sr(pWS, 2), "s[0:1]", 80)
    sWS = k.salloc(4); sWin = k.salloc(4)
    sj = k.salloc(); sidx = k.salloc(); srb = k.salloc(); sct = k.salloc(); sw3 = k.salloc()
    k.I("s_and_b32", s(sj), "s2", 7)
    k.I("s_lshr_b32", s(sidx), "s2", 3)
    k.I("s_and_b32", s(sw3), s(swave), 3)
    pfrole = k.newlabel("pfrole")
    k.I("s_cmp_ge_u32", s(sidx), 28)
    k.I("s_cbranch_scc1", pfrole)
    k.I("s_mul_i32", s(st0), s(sidx), 37)
    k.I("s_lshr_b32", s(st0), s(st0), 8)
    k.I("s_mul_i32", s(st1), s(st0), 7)
    k.I("s_sub_u32", s(sct), s(sidx), s(st1))
    k.I("s_and_b32", s(st1), s(sj), 1)
    k.I("s_mul_i32", s(st1), s(st1), 7)
    k.I("s_add_u32", s(sct), s(sct), s(st1))
    k.I("s_lshr_b32", s(srb), s(sj), 1)
    k.I("s_lshl_b32", s(srb), s(srb), 2)
    k.I("s_add_u32", s(srb), s(srb), s(st0))
    stp = Stamper(k, 3, sWS, swave)
    sst = k.salloc()
    k.I("s_lshl_b32", s(sst), s(srb), 2)
    k.I("s_add_u32", s(sst), s(sst), s(sw3))
    comp = k.newlabel("compute")
    k.I("s_cmp_lt_u32", s(swave), 4)
    k.I("s_cbranch_scc1", comp)
    vsave = k.vnext
    v16 = k.valloc(); vWo = k.valloc()
    k.I("v_lshlrev_b32", v(v16), 4, v(lane))
    k.I("v_lshrrev_b32", v(t0), 3, v(lane))
    k.I("v_mul_u32_u24", v(t0), 3584, v(t0))
    k.I("v_bfe_u32", v(t1), v(lane), 4, 1)
    k.I("v_lshlrev_b32", v(t1), 2, v(t1))
    k.I("v_and_b32", v(t2), 7, v(lane))
    k.I("v_xor_b32", v(t1), v(t1), v(t2))
    k.I("v_lshl_add_u32", v(vWo), v(t1), 4, v(t0))
    sHb = k.salloc(); sWb = k.salloc(); smH = k.salloc(); smW = k.salloc()
    k.I("s_mul_i32", s(sHb), s(sst), 28 * 1024)
    k.I("s_add_u32", s(sHb), s(sHb), hex(H_OFF))
    k.I("s_mul_i32", s(smH), s(sw3), 28 * 1024)
    k.I("s_mul_i32", s(sWb), s(sw3), 16 * 3584)
    k.I("s_lshl_b32", s(st1), s(sct), 7)
    k.I("s_add_u32", s(sWb), s(sWb), s(st1))
    k.I("s_lshl_b32", s(smW), s(sw3), 11)
    k.I("s_add_u32", s(smW), s(smW), WRING)
    srot = k.salloc(); scp = k.salloc(); sa1 = k.salloc(); sa2 = k.salloc()
    k.I("s_lshl_b32", s(st0), s(srb), 1)
    k.I("s_add_u32", s(st0), s(st0), s(sct))
    k.I("s_mul_i32", s(st1), s(st0), 37)
    k.I("s_lshr_b32", s(st1), s(st1), 8)
    k.I("s_mul_i32", s(st1), s(st1), 7)
    k.I("s_sub_u32", s(srot), s(st0), s(st1))
    if not rot_on(4): k.I("s_mov_b32", s(srot), 0)
    def issue(c):
        cc = c % 7
        rot_index(k, scp, srot, cc, 7)
        if c < 7:
            k.I("s_lshl_b32", s(sa1), s(scp), 12)
            k.I("s_add_u32", s(sa1), s(sa1), s(sHb))
            for i in range(4):
                k.I("s_add_u32", s(soff), s(sa1), hex(i * 1024))
                k.I("s_add_u32", "m0", s(smH), hex(HREG + (4 * c + i) * 1024))
                k.vm(("S", c), "buffer_load_dwordx4", v(v16), sr(sWS, 4), s(soff), mods="offen lds")
        col = 1792 if c < 7 else 0
        k.I("s_mul_i32", s(sa2), s(scp), 64 * 3584)
        k.I("s_add_u32", s(sa2), s(sa2), s(sWb))
        for i in range(2):
            k.I("s_add_u32", s(soff), s(sa2), hex(8 * i * 3584 + col))
            k.I("s_add_u32", "m0", s(smW), hex((c % NS) * WSL + i * 1024))
            k.vm(("S", c), "buffer_load_dwordx4", v(vWo), sr(sWin, 4), s(soff), mods="offen lds")
    nocw = k.newlabel("nocw")
    k.I("s_waitcnt", "lgkmcnt(0)")
    srd(k, sWS, pWS, WS_SIZE)
    srd(k, sWin, pWin, 448 * 3584)
    issue(0)
    k.I("s_cmp_ge_u32", s(sw3), 2)
    k.I("s_cbranch_scc1", nocw)
    k.I("v_lshlrev_b32", v(t0), 2, v(lane))
    k.I("s_lshl_b32", s(st0), s(sct), 8)
    k.I("s_xor_b32", s(st1), s(sw3), 1)
    k.I("s_mul_i32", s(st1), s(st1), 896 * 4)
    k.I("s_add_u32", s(st0), s(st0), s(st1))
    k.I("s_add_u32", s(soff), s(st0), hex(CW_OFF))
    k.I("s_lshl_b32", s(st1), s(sw3), 8)
    k.I("s_add_u32", "m0", s(st1), CWT)
    k.I("buffer_load_dword", v(t0), sr(sWS, 4), s(soff), mods="offen lds")
    k.L(nocw)
    k.vmq.append(("S", 1))
    issue(1); issue(2)
    NST = 14
    for c in range(NST):
        if c == 0:
            k.I("s_waitcnt", "vmcnt(12)")
            k.vmq = k.vmq[6:]
        else:
            k.wait_vm(("S", c))
        k.I("s_barrier")
        if c == 0: issue(3); issue(4)
        elif c >= 2 and c + 3 < NST: issue(c + 3)
    k.I("s_endpgm")
    k.L(comp)
    k.vnext = vsave; k.vmq = []; k.lgq = []
    l31 = k.valloc(); hh = k.valloc()
    k.I("v_and_b32", v(l31), 31, v(lane))
    k.I("v_lshrrev_b32", v(hh), 5, v(lane))
    hs = k.valloc(16, 4); vh = k.valloc()
    k.I("v_lshlrev_b32", v(vh), 3, v(lane))
    k.I("s_mul_i32", s(soff), s(sst), 32 * 112)
    sEX = k.salloc()
    k.I("s_add_u32", s(sEX), s(soff), hex(EX_OFF))
    k.I("s_add_u32", s(soff), s(soff), hex(HS_OFF))
    k.I("s_waitcnt", "lgkmcnt(0)")
    srd(k, sWS, pWS, WS_SIZE)
    for i in range(7):
        k.vm("hs", "buffer_load_dwordx2", vr(hs + 2 * i, 2), v(vh), sr(sWS, 4), s(soff), mods=f"offen offset:{512 * i}")
    code_prefetch(k, "k5_sp_kernel", sidx, st0)
    stp.stamp(0)
    aH = k.valloc(); v16 = k.valloc(); vW = [k.valloc(), k.valloc()]
    k.I("v_lshlrev_b32", v(v16), 4, v(lane))
    k.I("s_mul_i32", s(st0), s(swave), 28 * 1024)
    k.I("v_add_u32", v(aH), s(st0), v(v16))
    k.I("v_bfe_u32", v(t0), v(lane), 2, 2)
    k.I("v_lshl_add_u32", v(t0), v(hh), 2, v(t0))
    k.I("v_lshlrev_b32", v(t0), 7, v(t0))
    k.I("v_add_u32", v(t0), WRING, v(t0))
    k.I("v_bfe_u32", v(t1), v(lane), 4, 1)
    k.I("v_lshlrev_b32", v(t1), 1, v(t1))
    k.I("v_bfe_u32", v(t2), v(lane), 1, 1)
    k.I("v_add_u32", v(t1), v(t1), v(t2))
    k.I("v_bfe_u32", v(t2), v(lane), 3, 1)
    k.I("v_lshlrev_b32", v(t2), 2, v(t2))
    for n2 in range(2):
        k.I("v_add_u32", v(vW[n2]), 4 * n2, v(t1))
        k.I("v_xor_b32", v(vW[n2]), v(vW[n2]), v(t2))
        k.I("v_lshl_add_u32", v(vW[n2]), v(vW[n2]), 4, v(t0))
    k.I("v_and_b32", v(t1), 1, v(lane))
    for n2 in range(2): k.I("v_lshl_add_u32", v(vW[n2]), v(t1), 3, v(vW[n2]))
    rr = k.valloc(2); nm = k.valloc(2); c0r = k.valloc(2); c1r = k.valloc(2)
    k.wait_vm("hs")
    H = hs
    for i in range(3): k.I("v_pk_add_f32", vr(H + 2 * i, 2), vr(H + 2 * i, 2), vr(H + 6 + 2 * i, 2))
    k.I("v_pk_add_f32", vr(H, 2), vr(H, 2), vr(H + 12, 2))
    k.I("v_pk_add_f32", vr(H + 2, 2), vr(H + 2, 2), vr(H + 4, 2))
    k.I("v_pk_add_f32", vr(H, 2), vr(H, 2), vr(H + 2, 2))
    for e in range(2):
        k.I("v_mov_b32", v(H + 2), v(H + e))
        k.I("v_permlane32_swap_b32", v(H + e), v(H + 2))
        k.I("v_add_f32", v(H + e), v(H + e), v(H + 2))
    k.I("v_mul_f32", v(nm), hex(f32(-1.0 / 448)), v(H))
    k.I("v_mul_f32", v(H + 1), hex(f32(1.0 / 448)), v(H + 1))
    k.I("v_fma_f32", v(H + 1), f"-{v(nm)}", v(nm), v(H + 1))
    k.I("v_max_f32", v(H + 1), 0, v(H + 1))
    k.I("v_add_f32", v(H + 1), hex(f32(1e-5)), v(H + 1))
    k.I("v_rsq_f32", v(rr), v(H + 1))
    k.I("v_mul_f32", v(c0r), hex(f32(GELU_C0)), v(rr))
    k.I("v_mul_f32", v(c1r), v(rr), v(rr))
    k.I("v_mul_f32", v(c1r), v(c1r), v(rr))
    k.I("v_mul_f32", v(c1r), hex(f32(GELU_C1)), v(c1r))
    norh = k.newlabel("norh")
    k.I("s_cmp_lg_u32", s(sct), 0)
    k.I("s_cbranch_scc1", norh)
    k.I("v_lshlrev_b32", v(t0), 2, v(l31))
    k.I("s_lshl_b32", s(st0), s(sst), 7)
    k.I("s_add_u32", s(st0), s(st0), hex(RH_OFF))
    k.I("buffer_store_dword", v(rr), v(t0), sr(sWS, 4), s(st0), mods="offen")
    k.L(norh)
    acc = [[k.valloc(16, 4) for _ in range(2)] for _ in range(2)]
    cwr = hs
    tp = [k.valloc(2) for _ in range(4)]
    NB = 3
    hf = [k.valloc(4) for _ in range(NB)]
    wf = [[k.valloc(4) for _ in range(2)] for _ in range(NB)]
    def rl(g):
        ks = g % 28; c = g // 4; j = g % 4
        b = g % NB
        out = [lambda: k.lg(("f", g), "ds_read_b128", vr(hf[b], 4), v(aH), mods=f"offset:{ks * 1024}")]
        for n2 in range(2):
            for beta in range(2):
                o = (c % NS) * WSL + (16 * j + 8 * beta) * 128
                out.append(lambda o=o, n2=n2, beta=beta: k.lg(("f", g), "ds_read_b64_tr_b16", vr(wf[b][n2] + 2 * beta, 2), v(vW[n2]), mods=f"offset:{o}"))
        return out
    vcw = k.valloc()
    k.I("v_lshlrev_b32", v(vcw), 4, v(hh))
    k.I("v_add_u32", v(vcw), CWT, v(vcw))
    def gelu_tile(A, z, n2):
        for q in range(4):
            k.lg("cw", "ds_read_b128", vr(cwr + 4 * q, 4), v(vcw), mods=f"offset:{z * 256 + n2 * 128 + 32 * q}")
        k.wait_lg("cw")
        for j in range(8):
            k.I("v_pk_fma_f32", vr(A + 2 * j, 2), vr(cwr + 2 * j, 2), vr(nm, 2), vr(A + 2 * j, 2), mods="op_sel_hi:[1,0,1]")
        for j0 in range(0, 8, 4):
            for j in range(j0, j0 + 4): k.I("v_pk_mul_f32", vr(tp[j - j0], 2), vr(A + 2 * j, 2), vr(A + 2 * j, 2))
            for j in range(j0, j0 + 4): k.I("v_pk_fma_f32", vr(tp[j - j0], 2), vr(tp[j - j0], 2), vr(c1r, 2), vr(c0r, 2), mods="op_sel_hi:[1,0,0]")
            for j in range(j0, j0 + 4): k.I("v_pk_mul_f32", vr(tp[j - j0], 2), vr(tp[j - j0], 2), vr(A + 2 * j, 2))
            for j in range(j0, j0 + 4):
                k.I("v_exp_f32", v(tp[j - j0]), v(tp[j - j0])); k.I("v_exp_f32", v(tp[j - j0] + 1), v(tp[j - j0] + 1))
            for j in range(j0, j0 + 4): k.I("v_pk_add_f32", vr(tp[j - j0], 2), vr(tp[j - j0], 2), "1.0", mods="op_sel_hi:[1,0]")
            for j in range(j0, j0 + 4):
                k.I("v_rcp_f32", v(tp[j - j0]), v(tp[j - j0])); k.I("v_rcp_f32", v(tp[j - j0] + 1), v(tp[j - j0] + 1))
            for j in range(j0, j0 + 4): k.I("v_pk_mul_f32", vr(A + 2 * j, 2), vr(A + 2 * j, 2), vr(tp[j - j0], 2))
    def mainloop(z):
        for g in range(28 * z, 28 * z + 28):
            ks = g % 28; j = g % 4; c = g // 4
            b = g % NB
            k.wait_lg(("f", g))
            mf = [lambda n2=n2: k.I("v_mfma_f32_32x32x16_bf16", vr(acc[z][n2], 16), vr(wf[b][n2], 4), vr(hf[b], 4), 0 if ks == 0 else vr(acc[z][n2], 16)) for n2 in range(2)]
            nxt = g + 2
            fl = rl(nxt) if nxt < 28 * z + 28 else []
            if j == 2 and c + 1 < NST: k.I("s_barrier")
            interleave(k, mf, fl)
    k.I("s_barrier")
    stp.stamp(1)
    for f in rl(0) + rl(1): f()
    mainloop(0)
    for f in rl(28) + rl(29): f()
    stp.stamp(2)
    accs = k.valloc(2); accq = k.valloc(2)
    for n2 in range(2):
        A = acc[0][n2]
        gelu_tile(A, 0, n2)
        for j in range(8):
            k.I("v_pk_mul_f32", vr(A + 2 * j, 2), vr(A + 2 * j, 2), vr(rr, 2), mods="op_sel_hi:[1,0]")
        for j in range(8):
            if n2 == 0 and j == 0:
                k.I("v_mov_b32", v(accs), v(A)); k.I("v_mov_b32", v(accs + 1), v(A + 1))
                k.I("v_pk_mul_f32", vr(accq, 2), vr(A, 2), vr(A, 2))
            else:
                k.I("v_pk_add_f32", vr(accs, 2), vr(accs, 2), vr(A + 2 * j, 2))
                k.I("v_pk_fma_f32", vr(accq, 2), vr(A + 2 * j, 2), vr(A + 2 * j, 2), vr(accq, 2))
    k.I("v_add_f32", v(accs), v(accs), v(accs + 1))
    k.I("v_add_f32", v(accs + 1), v(accq), v(accq + 1))
    for e in range(2):
        k.I("v_mov_b32", v(accq), v(accs + e))
        k.I("v_permlane32_swap_b32", v(accs + e), v(accq))
        k.I("v_add_f32", v(accs + e), v(accs + e), v(accq))
    k.I("v_mov_b32", v(t1), "0x7fc00000")
    k.I("v_cmp_eq_u32", "vcc", -1, v(accs + 1))
    k.I("v_cndmask_b32", v(accs + 1), v(accs + 1), v(t1), "vcc")
    ve = k.valloc()
    k.I("v_lshlrev_b32", v(ve), 3, v(l31))
    k.I("s_lshl_b32", s(st0), s(sct), 8)
    k.I("s_add_u32", s(soff), s(sEX), s(st0))
    k.I("s_mov_b32", "exec_hi", 0)
    k.I("buffer_store_dwordx2", vr(accs, 2), v(ve), sr(sWS, 4), s(soff), mods="offen sc0 sc1")
    k.I("s_mov_b64", "exec", -1)
    stp.stamp(3)
    mainloop(1)
    ex = k.valloc(16, 4)
    for i in range(7):
        k.I("buffer_load_dwordx2", vr(ex + 2 * i, 2), v(vh), sr(sWS, 4), s(sEX), mods=f"offen offset:{512 * i} sc0 sc1")
    P = [k.valloc(8, 4) for _ in range(2)]
    sft = k.salloc()
    k.I("s_lshl_b32", s(sft), s(sct), 1)
    for n2 in range(2):
        A = acc[1][n2]
        gelu_tile(A, 1, n2)
        for j in range(8): k.I("v_cvt_pk_bf16_f32", v(P[n2] + j), v(A + 2 * j), v(A + 2 * j + 1))
        k.I("s_mul_i32", s(soff), s(sst), 56 * 1024)
        k.I("s_add_u32", s(st0), s(sft), n2)
        k.I("s_lshl_b32", s(st0), s(st0), 11)
        k.I("s_add_u32", s(soff), s(soff), s(st0))
        k.I("s_add_u32", s(soff), s(soff), hex(Z1_OFF))
        k.I("buffer_store_dwordx4", vr(P[n2], 4), v(v16), sr(sWS, 4), s(soff), mods="offen")
        k.I("buffer_store_dwordx4", vr(P[n2] + 4, 4), v(v16), sr(sWS, 4), s(soff), mods="offen offset:1024")
    stp.stamp(4)
    scount = k.salloc()
    k.I("s_mov_b32", s(scount), 0)
    poll = k.newlabel("poll"); pdone = k.newlabel("pdone"); pchk = k.newlabel("pchk")
    k.I("s_waitcnt", "vmcnt(4)")
    k.I("s_branch", pchk)
    k.L(poll)
    for i in range(7):
        k.I("buffer_load_dwordx2", vr(ex + 2 * i, 2), v(vh), sr(sWS, 4), s(sEX), mods=f"offen offset:{512 * i} sc0 sc1")
    k.I("s_waitcnt", "vmcnt(0)")
    k.L(pchk)
    k.I("v_max_u32", v(t0), v(ex + 1), v(ex + 3))
    for i in range(2, 7): k.I("v_max_u32", v(t0), v(t0), v(ex + 2 * i + 1))
    k.I("v_cmp_eq_u32", "vcc", -1, v(t0))
    k.I("s_add_u32", s(scount), s(scount), 1)
    k.I("s_cmp_eq_u64", "vcc", 0)
    k.I("s_cbranch_scc1", pdone)
    k.I("s_cmp_lt_u32", s(scount), 0x40000)
    k.I("s_cbranch_scc0", pdone)
    k.I("s_sleep", 1)
    k.I("s_branch", poll)
    k.L(pdone)
    k.vmq = []
    sc_ = k.valloc(2); zm = k.valloc(2)
    H = ex
    for i in range(3): k.I("v_pk_add_f32", vr(H + 2 * i, 2), vr(H + 2 * i, 2), vr(H + 6 + 2 * i, 2))
    k.I("v_pk_add_f32", vr(H, 2), vr(H, 2), vr(H + 12, 2))
    k.I("v_pk_add_f32", vr(H + 2, 2), vr(H + 2, 2), vr(H + 4, 2))
    k.I("v_pk_add_f32", vr(H, 2), vr(H, 2), vr(H + 2, 2))
    for e in range(2):
        k.I("v_mov_b32", v(H + 2), v(H + e))
        k.I("v_permlane32_swap_b32", v(H + e), v(H + 2))
        k.I("v_add_f32", v(H + e), v(H + e), v(H + 2))
    k.I("v_mul_f32", v(zm), hex(f32(-1.0 / 896)), v(H))
    k.I("v_mul_f32", v(H + 1), hex(f32(1.0 / 896)), v(H + 1))
    k.I("v_fma_f32", v(H + 1), f"-{v(zm)}", v(zm), v(H + 1))
    k.I("v_max_f32", v(H + 1), 0, v(H + 1))
    k.I("v_add_f32", v(H + 1), hex(f32(1e-5)), v(H + 1))
    k.I("v_rsq_f32", v(sc_), v(H + 1))
    k.I("v_mul_f32", v(zm), v(zm), v(sc_))
    vt = k.valloc(); vtr = k.valloc()
    k.I("s_mul_i32", s(st0), s(swave), 28 * 1024)
    k.I("v_mul_u32_u24", v(vt), 136, v(l31))
    k.I("v_lshl_add_u32", v(vt), v(hh), 3, v(vt))
    k.I("v_add_u32", v(vt), s(st0), v(vt))
    for n2 in range(2):
        A = acc[0][n2]
        for j in range(8):
            k.I("v_pk_fma_f32", vr(A + 2 * j, 2), vr(A + 2 * j, 2), vr(sc_, 2), vr(zm, 2), mods="op_sel_hi:[1,0,0]")
        for j in range(8): k.I("v_cvt_pk_bf16_f32", v(P[n2] + j), v(A + 2 * j), v(A + 2 * j + 1))
        for q in range(4):
            k.I("ds_write_b64", v(vt), vr(P[n2] + 2 * q, 2), mods=f"offset:{64 * n2 + 16 * q}")
    k.I("v_bfe_u32", v(t0), v(lane), 2, 2)
    k.I("v_lshl_add_u32", v(t0), v(hh), 3, v(t0))
    k.I("v_mul_u32_u24", v(vtr), 136, v(t0))
    k.I("v_bfe_u32", v(t0), v(lane), 4, 1)
    k.I("v_lshl_add_u32", v(vtr), v(t0), 5, v(vtr))
    k.I("v_and_b32", v(t0), 3, v(lane))
    k.I("v_lshl_add_u32", v(vtr), v(t0), 3, v(vtr))
    k.I("v_add_u32", v(vtr), s(st0), v(vtr))
    k.I("s_waitcnt", "lgkmcnt(0)")
    Z = acc[1][0]
    for n2 in range(2):
        for ks in range(2):
            for beta in range(2):
                k.I("ds_read_b64_tr_b16", vr(Z + 8 * n2 + 4 * ks + 2 * beta, 2), v(vtr), mods=f"offset:{(16 * ks + 4 * beta) * 136 + 64 * n2}")
    k.I("s_lshr_b32", s(st0), s(sst), 5)
    k.I("s_mul_i32", s(st0), s(st0), ZK)
    k.I("s_and_b32", s(st1), s(sst), 31)
    k.I("s_lshl_b32", s(st1), s(st1), 11)
    k.I("s_add_u32", s(st0), s(st0), s(st1))
    k.I("s_add_u32", s(st0), s(st0), hex(Z2_OFF))
    for n2 in range(2):
        k.I("s_add_u32", s(st1), s(sft), n2)
        k.I("s_mul_i32", s(soff), s(st1), ZS)
        k.I("s_add_u32", s(soff), s(soff), s(st0))
        for ks in range(2):
            k.I("s_waitcnt", f"lgkmcnt({6 - 4 * n2 - 2 * ks})")
            k.I("buffer_store_dwordx4", vr(Z + 8 * n2 + 4 * ks, 4), v(v16), sr(sWS, 4), s(soff), mods=f"offen offset:{ks * 1024}")
    stp.stamp(5)
    k.I("s_endpgm")
    k.L(pfrole)
    if os.environ.get('K4PF', 'sparse') == 'dense':
        pp = k.salloc(2); sP = k.salloc(4); vT = k.valloc(); vd = k.valloc(32, 4)
        k.I("s_load_dwordx2", sr(pp, 2), "s[0:1]", 40)
        k.I("s_sub_u32", s(st0), s(sidx), 28)
        k.I("s_lshl_b32", s(st0), s(st0), 3)
        k.I("s_add_u32", s(st0), s(st0), s(swave))
        k.I("s_lshl_b32", s(st0), s(st0), 16)
        k.I("s_lshr_b32", s(st1), s(sj), 1)
        k.I("s_lshl_b32", s(st1), s(st1), 21)
        k.I("s_add_u32", s(st0), s(st0), s(st1))
        k.I("s_and_b32", s(st1), s(sj), 1)
        k.I("s_lshl_b32", s(st1), s(st1), 11)
        k.I("s_add_u32", s(st0), s(st0), s(st1))
        k.I("v_lshlrev_b32", v(vT), 4, v(lane))
        k.I("s_waitcnt", "lgkmcnt(0)")
        srd(k, sP, pp, 2048 * 4096)
        for i in range(16):
            k.I("s_add_u32", s(soff), s(st0), hex(i * 4096))
            for hf_ in range(2):
                k.I("buffer_load_dwordx4", vr(vd + 4 * ((2 * i + hf_) % 8), 4), v(vT), sr(sP, 4), s(soff), mods=f"offen offset:{hf_ * 1024}")
    else:
        pp = k.salloc(2); sP = k.salloc(4); vT = k.valloc(); vd = k.valloc(4)
        k.I("s_load_dwordx2", sr(pp, 2), "s[0:1]", 40)
        k.I("s_sub_u32", s(st0), s(sidx), 28)
        k.I("s_lshl_b32", s(st0), s(st0), 9)
        k.I("v_add_u32", v(vT), s(st0), "v0")
        k.I("s_lshr_b32", s(st0), s(sj), 1)
        k.I("s_lshl_b32", s(st0), s(st0), 21)
        k.I("s_and_b32", s(st1), s(sj), 1)
        k.I("s_lshl_b32", s(st1), s(st1), 11)
        k.I("s_add_u32", s(st0), s(st0), s(st1))
        k.I("s_waitcnt", "lgkmcnt(0)")
        srd(k, sP, pp, 2048 * 4096)
        for i in range(4):
            k.I("v_add_u32", v(t0), 2048 * i, v(vT))
            k.I("v_lshrrev_b32", v(t1), 4, v(t0))
            k.I("v_lshlrev_b32", v(t1), 12, v(t1))
            k.I("v_and_b32", v(t2), 15, v(t0))
            k.I("v_lshl_add_u32", v(t1), v(t2), 7, v(t1))
            k.I("buffer_load_dword", v(vd + i), v(t1), sr(sP, 4), s(st0), mods="offen")
    k.L(R["done"])
    k.I("s_endpgm")
    k.lds = lds; k.threads = 512; k.grid = 256
    return k

def gen_k5(Stamper):
    k = Kernel("k5_sp_kernel")
    NS = 4; SLOT = 32768
    Z1REG = NS * SLOT
    lds = Z1REG + 32768
    R = common_start(k, 256)
    swave, st0, st1, soff, lane, t0, t1, t2 = (R[x] for x in ("swave", "st0", "st1", "soff", "lane", "t0", "t1", "t2"))
    pSp = k.salloc(2); pB = k.salloc(2); pWS = k.salloc(2)
    k.I("s_load_dwordx2", sr(pSp, 2), "s[0:1]", 40)
    k.I("s_load_dwordx2", sr(pB, 2), "s[0:1]", 48)
    k.I("s_load_dwordx2", sr(pWS, 2), "s[0:1]", 80)
    sWS = k.salloc(4); sSp = k.salloc(4); sB = k.salloc(4)
    sj = k.salloc(); sidx = k.salloc(); stt = k.salloc(); sft = k.salloc(); skap = k.salloc(); sw3 = k.salloc()
    if os.environ.get("K5MAP") == "linear":
        k.I("s_mul_i32", s(sj), "s2", 2341)
        k.I("s_lshr_b32", s(sj), s(sj), 16)
        k.I("s_mul_i32", s(sidx), s(sj), 28)
        k.I("s_sub_u32", s(sidx), "s2", s(sidx))
    else:
        k.I("s_and_b32", s(sj), "s2", 7)
        k.I("s_lshr_b32", s(sidx), "s2", 3)
    pfrole = k.newlabel("pfrole")
    k.I("s_cmp_ge_u32", s(sidx), 28)
    k.I("s_cbranch_scc1", pfrole)
    k.I("s_and_b32", s(sw3), s(swave), 3)
    k.I("s_and_b32", s(skap), s(sj), 1)
    k.I("s_mul_i32", s(st0), s(sidx), 37)
    k.I("s_lshr_b32", s(st0), s(st0), 8)
    k.I("s_mul_i32", s(st1), s(st0), 7)
    k.I("s_sub_u32", s(sft), s(sidx), s(st1))
    k.I("s_lshr_b32", s(stt), s(sj), 1)
    k.I("s_lshl_b32", s(stt), s(stt), 2)
    k.I("s_add_u32", s(stt), s(stt), s(st0))
    stp = Stamper(k, 4, sWS, swave)
    if os.environ.get("TICKWAVE", "0") != "0": stp.tick(0)
    comp = k.newlabel("compute")
    k.I("s_cmp_lt_u32", s(swave), 4)
    k.I("s_cbranch_scc1", comp)
    vsave = k.vnext
    v16 = k.valloc(); vWo = k.valloc(2)
    k.I("v_lshlrev_b32", v(v16), 4, v(lane))
    k.I("v_lshrrev_b32", v(t0), 3, v(lane))
    k.I("v_lshlrev_b32", v(t0), 12, v(t0))
    k.I("v_lshrrev_b32", v(t1), 4, v(lane))
    k.I("v_and_b32", v(t2), 7, v(lane))
    k.I("v_xor_b32", v(t1), v(t1), v(t2))
    k.I("v_lshl_add_u32", v(vWo), v(t1), 4, v(t0))
    k.I("v_xor_b32", v(t1), 4, v(t1))
    k.I("v_lshl_add_u32", v(vWo + 1), v(t1), 4, v(t0))
    sZb = k.salloc(); sWb = k.salloc(); smZ = k.salloc(); smW = k.salloc()
    k.I("s_lshl_b32", s(st0), s(sft), 2)
    k.I("s_add_u32", s(st0), s(st0), s(sw3))
    k.I("s_mul_i32", s(sZb), s(st0), ZS)
    k.I("s_mul_i32", s(st1), s(skap), ZK)
    k.I("s_add_u32", s(sZb), s(sZb), s(st1))
    k.I("s_add_u32", s(sZb), s(sZb), hex(Z2_OFF))
    k.I("s_lshl_b32", s(smZ), s(sw3), 12)
    k.I("s_lshl_b32", s(st0), s(stt), 7)
    k.I("s_lshl_b32", s(st1), s(sw3), 5)
    k.I("s_add_u32", s(st0), s(st0), s(st1))
    k.I("s_lshl_b32", s(sWb), s(st0), 12)
    k.I("s_lshl_b32", s(st1), s(skap), 11)
    k.I("s_add_u32", s(sWb), s(sWb), s(st1))
    k.I("s_add_u32", s(smW), s(smZ), 16384)
    srot = k.salloc(); scp = k.salloc(); sa1 = k.salloc(); sa2 = k.salloc()
    k.I("s_lshl_b32", s(st0), s(sft), 1)
    k.I("s_mul_i32", s(st1), s(stt), 5)
    k.I("s_add_u32", s(srot), s(st0), s(st1))
    k.I("s_and_b32", s(srot), s(srot), 15)
    if not rot_on(5): k.I("s_mov_b32", s(srot), 0)
    def issue(c):
        sl = (c % NS) * SLOT
        k.I("s_add_u32", s(scp), s(srot), c)
        k.I("s_and_b32", s(scp), s(scp), 15)
        k.I("s_lshl_b32", s(sa1), s(scp), 12)
        k.I("s_add_u32", s(sa1), s(sa1), s(sZb))
        k.I("s_lshl_b32", s(sa2), s(scp), 7)
        k.I("s_add_u32", s(sa2), s(sa2), s(sWb))
        for i in range(4):
            k.I("s_add_u32", s(soff), s(sa1), hex(i * 1024))
            k.I("s_add_u32", "m0", s(smZ), hex(sl + i * 1024))
            k.vm(("S", c), "buffer_load_dwordx4", v(v16), sr(sWS, 4), s(soff), mods="offen lds")
        for i in range(4):
            k.I("s_add_u32", s(soff), s(sa2), hex(i * 8 * 4096))
            k.I("s_add_u32", "m0", s(smW), hex(sl + i * 1024))
            k.vm(("S", c), "buffer_load_dwordx4", v(vWo + (i & 1)), sr(sSp, 4), s(soff), mods="offen lds")
    NST = 16
    sZ1 = k.salloc()
    k.I("s_lshl_b32", s(st0), s(stt), 2)
    k.I("s_add_u32", s(st0), s(st0), s(sw3))
    k.I("s_mul_i32", s(sZ1), s(st0), 56 * 1024)
    k.I("s_lshl_b32", s(st1), s(sft), 13)
    k.I("s_add_u32", s(sZ1), s(sZ1), s(st1))
    k.I("s_add_u32", s(sZ1), s(sZ1), hex(Z1_OFF))
    smZ1 = k.salloc()
    k.I("s_lshl_b32", s(smZ1), s(sw3), 13)
    def issue_z1(i, tag):
        k.I("s_add_u32", s(soff), s(sZ1), hex(i * 1024))
        k.I("s_add_u32", "m0", s(smZ1), hex(Z1REG + i * 1024))
        k.vm(("S", tag), "buffer_load_dwordx4", v(v16), sr(sWS, 4), s(soff), mods="offen lds")
    LT = os.environ.get("TICKWAVE", "0") != "0"
    k.I("s_waitcnt", "lgkmcnt(0)")
    srd(k, sWS, pWS, WS_SIZE)
    srd(k, sSp, pSp, 2048 * 4096)
    if LT: stp.tick(1)
    issue(0)
    if LT: stp.tick(2)
    issue(1)
    if LT: stp.tick(3)
    for c in range(NST):
        k.wait_vm(("S", c))
        if LT and c < 3: stp.tick(4 + 2 * c)
        k.I("s_barrier")
        if LT and c < 3: stp.tick(5 + 2 * c)
        if c == 0: issue(2); issue(3)
        elif c + 2 < NST and c >= 2:
            issue(c + 2)
            if 3 <= c < 11: issue_z1(c - 3, c + 2)
    vT = k.valloc()
    k.I("s_lshl_b32", s(st0), s(sidx), 8)
    k.I("v_subrev_u32", v(vT), 256, "v0")
    k.I("v_add_u32", v(vT), s(st0), v(vT))
    k.I("v_lshlrev_b32", v(vT), 7, v(vT))
    if LT: stp.dump_ticks()
    k.I("s_endpgm")
    k.L(comp)
    k.vnext = vsave; k.vmq = []; k.lgq = []
    l31 = k.valloc(); hh = k.valloc()
    k.I("v_and_b32", v(l31), 31, v(lane))
    k.I("v_lshrrev_b32", v(hh), 5, v(lane))
    sfh = k.salloc(); sth = k.salloc(); sst = k.salloc(); sf32 = k.salloc()
    k.I("s_and_b32", s(sfh), s(swave), 1)
    k.I("s_lshr_b32", s(sth), s(swave), 1)
    k.I("s_lshl_b32", s(sst), s(stt), 2)
    k.I("s_lshl_b32", s(st0), s(sth), 1)
    k.I("s_add_u32", s(sst), s(sst), s(st0))
    k.I("s_lshl_b32", s(sf32), s(sft), 2)
    k.I("s_lshl_b32", s(st0), s(sfh), 1)
    k.I("s_add_u32", s(sf32), s(sf32), s(st0))
    if os.environ.get("PF3", "0") == "1":
        vT0 = k.valloc(); vd0 = k.valloc(2)
        k.I("s_lshl_b32", s(st0), s(sidx), 8)
        k.I("v_add_u32", v(vT0), s(st0), "v0")
        k.I("s_lshl_b32", s(st1), s(skap), 16)
        k.I("s_add_u32", s(st1), s(st1), hex(Z2_OFF))
        for i in range(2):
            k.I("v_add_u32", v(t0), 7168 * i, v(vT0))
            k.I("v_lshrrev_b32", v(t1), 9, v(t0))
            k.I("v_lshlrev_b32", v(t1), 17, v(t1))
            k.I("v_and_b32", v(t2), 511, v(t0))
            k.I("v_lshl_add_u32", v(t1), v(t2), 7, v(t1))
            k.vm("pf", "buffer_load_dword", v(vd0 + i), v(t1), sr(sWS, 4), s(st1), mods="offen")
    v16 = k.valloc()
    k.I("v_lshlrev_b32", v(v16), 4, v(lane))
    z1 = [[k.valloc(8, 4) for _ in range(2)] for _ in range(2)]
    rr = [k.valloc(2) for _ in range(2)]; bb = [k.valloc(2) for _ in range(2)]
    k.I("v_lshlrev_b32", v(t0), 2, v(l31))
    k.I("v_lshlrev_b32", v(t1), 1, v(l31))
    k.I("s_waitcnt", "lgkmcnt(0)")
    srd(k, sWS, pWS, WS_SIZE)
    srd(k, sB, pB, 4096)
    for ti in range(2):
        k.I("s_add_u32", s(st0), s(sst), ti)
        k.I("s_lshl_b32", s(soff), s(st0), 7)
        k.I("s_add_u32", s(soff), s(soff), hex(RH_OFF))
        k.vm("z1", "buffer_load_dword", v(rr[ti]), v(t0), sr(sWS, 4), s(soff), mods="offen")
        k.I("s_lshl_b32", s(soff), s(st0), 6)
        k.vm("z1", "buffer_load_ushort", v(bb[ti]), v(t1), sr(sB, 4), s(soff), mods="offen")
    if os.environ.get("PF2", "0") == "1":
        pp = k.salloc(2); sP = k.salloc(4); vT = k.valloc(); vd = k.valloc(2)
        k.I("s_load_dwordx2", sr(pp, 2), "s[0:1]", 56)
        k.I("s_lshl_b32", s(st0), s(sidx), 8)
        k.I("v_add_u32", v(vT), s(st0), "v0")
        k.I("v_lshlrev_b32", v(vT), 7, v(vT))
        k.I("s_waitcnt", "lgkmcnt(0)")
        srd(k, sP, pp, 896 * 896)
        k.vm("pf", "buffer_load_dword", v(vd), v(vT), sr(sP, 4), 0, mods="offen")
    code_prefetch(k, "k6_wout_kernel", sidx, st0)
    stp.stamp(0)
    aZ = k.valloc(); aW = k.valloc(4)
    k.I("s_lshl_b32", s(st0), s(sfh), 13)
    k.I("v_add_u32", v(aZ), s(st0), v(v16))
    k.I("v_bfe_u32", v(t0), v(l31), 1, 3)
    for j in range(4):
        k.I("v_add_u32", v(t1), 2 * j, v(hh))
        k.I("v_xor_b32", v(t1), v(t1), v(t0))
        k.I("v_lshlrev_b32", v(t1), 4, v(t1))
        k.I("v_lshl_add_u32", v(aW + j), v(l31), 7, v(t1))
        k.I("s_lshl_b32", s(st0), s(sth), 13)
        k.I("s_add_u32", s(st0), s(st0), 16384)
        k.I("v_add_u32", v(aW + j), s(st0), v(aW + j))
    aZ2 = k.valloc(); aW2 = k.valloc(4)
    k.I("v_add_u32", v(aZ2), 65536, v(aZ))
    for j in range(4): k.I("v_add_u32", v(aW2 + j), 65536, v(aW + j))
    acc = [[k.valloc(16, 4) for _ in range(2)] for _ in range(2)]
    NB = 3
    zf = [[k.valloc(4) for _ in range(2)] for _ in range(NB)]
    wf = [[k.valloc(4) for _ in range(2)] for _ in range(NB)]
    def rl(ks):
        c, j = ks // 4, ks % 4
        b = ks % NB
        sl = (c % NS) * SLOT
        hi = sl >= 65536
        so = sl - (65536 if hi else 0)
        out = []
        for fi in range(2):
            out.append(lambda fi=fi: k.lg(("f", ks), "ds_read_b128", vr(zf[b][fi], 4), v(aZ2 if hi else aZ), mods=f"offset:{so + fi * 4096 + j * 1024}"))
        for ti in range(2):
            out.append(lambda ti=ti: k.lg(("f", ks), "ds_read_b128", vr(wf[b][ti], 4), v((aW2 if hi else aW) + j), mods=f"offset:{so + ti * 4096}"))
        return out
    k.I("s_barrier")
    stp.stamp(1)
    for f in rl(0) + rl(1): f()
    NKS = NST * 4
    for ks in range(NKS):
        c, j = ks // 4, ks % 4
        b = ks % NB
        k.wait_lg(("f", ks))
        mf = []
        for fi in range(2):
            for ti in range(2):
                mf.append(lambda fi=fi, ti=ti: k.I("v_mfma_f32_32x32x16_bf16", vr(acc[fi][ti], 16), vr(zf[b][fi], 4), vr(wf[b][ti], 4), 0 if ks == 0 else vr(acc[fi][ti], 16)))
        fl = rl(ks + 2) if ks + 2 < NKS else []
        if j == 2 and ks + 2 < NKS:
            if not LT and c in (0, 13, 14): stp.tick({0: 0, 13: 1, 14: 2}[c])
            k.I("s_barrier")
        interleave(k, mf, fl)
    if not LT: stp.tick(3)
    stp.stamp(2)
    if not LT: stp.tick(4)
    if not LT: stp.tick(5)
    vz = k.valloc()
    k.I("s_lshl_b32", s(st0), s(sth), 14)
    k.I("s_lshl_b32", s(st1), s(sfh), 12)
    k.I("s_add_u32", s(st0), s(st0), s(st1))
    k.I("s_add_u32", s(st0), s(st0), Z1REG)
    k.I("v_add_u32", v(vz), s(st0), v(v16))
    for ti in range(2):
        for fi in range(2):
            for hf_ in range(2):
                k.lg(("z1", ti, fi), "ds_read_b128", vr(z1[fi][ti] + 4 * hf_, 4), v(vz), mods=f"offset:{ti * 8192 + fi * 2048 + hf_ * 1024}")
    k.wait_vm("z1")
    for ti in range(2):
        k.I("v_lshlrev_b32", v(bb[ti]), 16, v(bb[ti]))
        k.I("v_mul_f32", v(bb[ti]), v(bb[ti]), v(rr[ti]))
    k.I("s_cmp_eq_u32", s(skap), 0)
    k.I("s_cselect_b32", s(st0), "1.0", 0)
    for ti in range(2): k.I("v_mul_f32", v(bb[ti]), s(st0), v(bb[ti]))
    tp = [k.valloc(2) for _ in range(4)]
    P = [k.valloc(8, 4) for _ in range(2)]
    sU = k.salloc()
    k.I("s_mul_i32", s(sU), s(skap), U1_OFF - U0_OFF)
    k.I("s_add_u32", s(sU), s(sU), hex(U0_OFF))
    n = 0
    for ti in range(2):
        for fi in range(2):
            A = acc[fi][ti]; Zp = z1[fi][ti]; PP = P[n & 1]; n += 1
            for j in range(8):
                k.I("v_pk_fma_f32", vr(A + 2 * j, 2), vr(A + 2 * j, 2), vr(rr[ti], 2), vr(bb[ti], 2), mods="op_sel_hi:[1,0,0]")
            k.wait_lg(("z1", ti, fi))
            for j in range(8):
                T = tp[j % 4]
                k.I("v_lshlrev_b32", v(T), 16, v(Zp + j))
                k.I("v_and_b32", v(T + 1), "0xffff0000", v(Zp + j))
                k.I("v_pk_mul_f32", vr(A + 2 * j, 2), vr(A + 2 * j, 2), vr(T, 2))
            for j in range(8): k.I("v_cvt_pk_bf16_f32", v(PP + j), v(A + 2 * j), v(A + 2 * j + 1))
            k.I("s_add_u32", s(st0), s(sst), ti)
            k.I("s_mul_i32", s(soff), s(st0), 56 * 1024)
            k.I("s_add_u32", s(st0), s(sf32), fi)
            k.I("s_lshl_b32", s(st0), s(st0), 11)
            k.I("s_add_u32", s(soff), s(soff), s(st0))
            k.I("s_add_u32", s(soff), s(soff), s(sU))
            k.I("buffer_store_dwordx4", vr(PP, 4), v(v16), sr(sWS, 4), s(soff), mods="offen")
            k.I("buffer_store_dwordx4", vr(PP + 4, 4), v(v16), sr(sWS, 4), s(soff), mods="offen offset:1024")
            if not LT: stp.tick(5 + n)
    stp.stamp(3)
    if not LT: stp.tick(10)
    if not LT: stp.dump_ticks()
    k.I("s_endpgm")
    k.L(pfrole)
    vT2 = k.valloc()
    k.I("s_sub_u32", s(st0), s(sidx), 28)
    k.I("s_lshl_b32", s(st0), s(st0), 9)
    k.I("v_add_u32", v(vT2), s(st0), "v0")
    k.I("v_lshlrev_b32", v(vT2), 7, v(vT2))
    l2_prefetch(k, 56, 896 * 896, vT2, 2048, st0)
    k.L(R["done"])
    k.I("s_endpgm")
    k.lds = lds; k.threads = 512; k.grid = 256
    return k

def gen_k56(Stamper):
    k = Kernel("k5_sp_kernel")
    NS = 4; SLOT = 32768
    Z1REG = NS * SLOT
    lds = Z1REG + 32768
    R = common_start(k, 256)
    swave, st0, st1, soff, lane, t0, t1, t2 = (R[x] for x in ("swave", "st0", "st1", "soff", "lane", "t0", "t1", "t2"))
    pSp = k.salloc(2); pB = k.salloc(2); pWS = k.salloc(2)
    k.I("s_load_dwordx2", sr(pSp, 2), "s[0:1]", 40)
    k.I("s_load_dwordx2", sr(pB, 2), "s[0:1]", 48)
    k.I("s_load_dwordx2", sr(pWS, 2), "s[0:1]", 80)
    pWo = k.salloc(2); pOD = k.salloc(4)
    k.I("s_load_dwordx2", sr(pWo, 2), "s[0:1]", 56)
    k.I("s_load_dwordx4", sr(pOD, 4), "s[0:1]", 64)
    sWS = k.salloc(4); sSp = k.salloc(4); sB = k.salloc(4); sWo = k.salloc(4); sOut = k.salloc(4); sD = k.salloc(4)
    sj = k.salloc(); sidx = k.salloc(); stt = k.salloc(); sft = k.salloc(); skap = k.salloc(); sw3 = k.salloc()
    if os.environ.get("K5MAP") == "linear":
        k.I("s_mul_i32", s(sj), "s2", 2341)
        k.I("s_lshr_b32", s(sj), s(sj), 16)
        k.I("s_mul_i32", s(sidx), s(sj), 28)
        k.I("s_sub_u32", s(sidx), "s2", s(sidx))
    else:
        k.I("s_and_b32", s(sj), "s2", 7)
        k.I("s_lshr_b32", s(sidx), "s2", 3)
    pfrole = k.newlabel("pfrole")
    k.I("s_cmp_ge_u32", s(sidx), 28)
    k.I("s_cbranch_scc1", pfrole)
    k.I("s_and_b32", s(sw3), s(swave), 3)
    k.I("s_and_b32", s(skap), s(sj), 1)
    k.I("s_mul_i32", s(st0), s(sidx), 37)
    k.I("s_lshr_b32", s(st0), s(st0), 8)
    k.I("s_mul_i32", s(st1), s(st0), 7)
    k.I("s_sub_u32", s(sft), s(sidx), s(st1))
    k.I("s_lshr_b32", s(stt), s(sj), 1)
    k.I("s_lshl_b32", s(stt), s(stt), 2)
    k.I("s_add_u32", s(stt), s(stt), s(st0))
    stp = Stamper(k, 4, sWS, swave)
    if os.environ.get("TICKWAVE", "0") != "0": stp.tick(0)
    k.I("s_waitcnt", "lgkmcnt(0)")
    srd(k, sWS, pWS, WS_SIZE)
    comp = k.newlabel("compute")
    k.I("s_cmp_lt_u32", s(swave), 4)
    k.I("s_cbranch_scc1", comp)
    vsave = k.vnext
    srd(k, sSp, pSp, 2048 * 4096)
    v16 = k.valloc(); vWo = k.valloc(2)
    k.I("v_lshlrev_b32", v(v16), 4, v(lane))
    k.I("v_lshrrev_b32", v(t0), 3, v(lane))
    k.I("v_lshlrev_b32", v(t0), 12, v(t0))
    k.I("v_lshrrev_b32", v(t1), 4, v(lane))
    k.I("v_and_b32", v(t2), 7, v(lane))
    k.I("v_xor_b32", v(t1), v(t1), v(t2))
    k.I("v_lshl_add_u32", v(vWo), v(t1), 4, v(t0))
    k.I("v_xor_b32", v(t1), 4, v(t1))
    k.I("v_lshl_add_u32", v(vWo + 1), v(t1), 4, v(t0))
    sZb = k.salloc(); sWb = k.salloc(); smZ = k.salloc(); smW = k.salloc()
    k.I("s_lshl_b32", s(st0), s(sft), 2)
    k.I("s_add_u32", s(st0), s(st0), s(sw3))
    k.I("s_mul_i32", s(sZb), s(st0), ZS)
    k.I("s_mul_i32", s(st1), s(skap), ZK)
    k.I("s_add_u32", s(sZb), s(sZb), s(st1))
    k.I("s_add_u32", s(sZb), s(sZb), hex(Z2_OFF))
    k.I("s_lshl_b32", s(smZ), s(sw3), 12)
    k.I("s_lshl_b32", s(st0), s(stt), 7)
    k.I("s_lshl_b32", s(st1), s(sw3), 5)
    k.I("s_add_u32", s(st0), s(st0), s(st1))
    k.I("s_lshl_b32", s(sWb), s(st0), 12)
    k.I("s_lshl_b32", s(st1), s(skap), 11)
    k.I("s_add_u32", s(sWb), s(sWb), s(st1))
    k.I("s_add_u32", s(smW), s(smZ), 16384)
    def issue(c):
        sl = (c % NS) * SLOT
        def zpart():
            for i in range(4):
                k.I("s_add_u32", s(soff), s(sZb), hex((4 * c + i) * 1024))
                k.I("s_add_u32", "m0", s(smZ), hex(sl + i * 1024))
                k.vm(("S", c), "buffer_load_dwordx4", v(v16), sr(sWS, 4), s(soff), mods="offen lds")
                if os.environ.get("DIAG5") and c == 0 and i in (0, 3):
                    k.I("s_waitcnt", "vmcnt(0)"); stp.tick(10 + (i > 0))
        def wpart():
            for i in range(4):
                k.I("s_add_u32", s(soff), s(sWb), hex(i * 8 * 4096 + c * 128))
                k.I("s_add_u32", "m0", s(smW), hex(sl + i * 1024))
                k.vm(("S", c), "buffer_load_dwordx4", v(vWo + (i & 1)), sr(sSp, 4), s(soff), mods="offen lds")
                if os.environ.get("DIAG5") and c == 0 and i in (0, 3):
                    k.I("s_waitcnt", "vmcnt(0)"); stp.tick(12 + (i > 0))
        if os.environ.get("DIAG5") == "2": wpart(); zpart()
        else: zpart(); wpart()
    NST = 16
    sZ1 = k.salloc()
    k.I("s_lshl_b32", s(st0), s(stt), 2)
    k.I("s_add_u32", s(st0), s(st0), s(sw3))
    k.I("s_mul_i32", s(sZ1), s(st0), 56 * 1024)
    k.I("s_lshl_b32", s(st1), s(sft), 13)
    k.I("s_add_u32", s(sZ1), s(sZ1), s(st1))
    k.I("s_add_u32", s(sZ1), s(sZ1), hex(Z1_OFF))
    smZ1 = k.salloc()
    k.I("s_lshl_b32", s(smZ1), s(sw3), 13)
    def issue_z1(i, tag):
        k.I("s_add_u32", s(soff), s(sZ1), hex(i * 1024))
        k.I("s_add_u32", "m0", s(smZ1), hex(Z1REG + i * 1024))
        k.vm(("S", tag), "buffer_load_dwordx4", v(v16), sr(sWS, 4), s(soff), mods="offen lds")
    LT = os.environ.get("TICKWAVE", "0") != "0"
    if LT: stp.tick(1)
    issue(0)
    if LT: stp.tick(2)
    issue(1)
    if LT: stp.tick(3)
    for c in range(NST):
        k.wait_vm(("S", c))
        if LT and c < 3: stp.tick(4 + 2 * c)
        k.I("s_barrier")
        if LT and c < 3: stp.tick(5 + 2 * c)
        if c == 0: issue(2); issue(3)
        elif c + 2 < NST and c >= 2:
            issue(c + 2)
            if 3 <= c < 11: issue_z1(c - 3, c + 2)
    srd(k, sWo, pWo, 896 * 896)
    vWd = k.valloc(); sWd = k.salloc(); smD = k.salloc()
    k.I("v_lshrrev_b32", v(t0), 3, v(lane))
    k.I("v_mul_u32_u24", v(t0), 896, v(t0))
    k.I("v_bfe_u32", v(t1), v(lane), 4, 1)
    k.I("v_lshlrev_b32", v(t1), 2, v(t1))
    k.I("v_and_b32", v(t2), 7, v(lane))
    k.I("v_xor_b32", v(t1), v(t1), v(t2))
    k.I("v_lshl_add_u32", v(vWd), v(t1), 4, v(t0))
    k.I("s_mul_i32", s(sWd), s(sw3), 224 * 896)
    k.I("s_lshl_b32", s(st1), s(sft), 7)
    k.I("s_add_u32", s(sWd), s(sWd), s(st1))
    k.I("s_mul_i32", s(smD), s(sw3), 224 * 128)
    k.I("s_barrier")
    for i in range(28):
        k.I("s_add_u32", s(soff), s(sWd), hex(i * 8 * 896))
        k.I("s_add_u32", "m0", s(smD), hex(i * 1024))
        k.I("buffer_load_dwordx4", v(vWd), sr(sWo, 4), s(soff), mods="offen lds")
    k.I("s_waitcnt", "vmcnt(0)")
    k.I("s_barrier")
    k.I("s_endpgm")
    k.L(comp)
    k.vnext = vsave; k.vmq = []; k.lgq = []
    srd(k, sB, pB, 4096)
    l31 = k.valloc(); hh = k.valloc()
    k.I("v_and_b32", v(l31), 31, v(lane))
    k.I("v_lshrrev_b32", v(hh), 5, v(lane))
    sfh = k.salloc(); sth = k.salloc(); sst = k.salloc(); sf32 = k.salloc()
    k.I("s_and_b32", s(sfh), s(swave), 1)
    k.I("s_lshr_b32", s(sth), s(swave), 1)
    k.I("s_lshl_b32", s(sst), s(stt), 2)
    k.I("s_lshl_b32", s(st0), s(sth), 1)
    k.I("s_add_u32", s(sst), s(sst), s(st0))
    k.I("s_lshl_b32", s(sf32), s(sft), 2)
    k.I("s_lshl_b32", s(st0), s(sfh), 1)
    k.I("s_add_u32", s(sf32), s(sf32), s(st0))
    if os.environ.get("PF3", "0") == "1":
        vT0 = k.valloc(); vd0 = k.valloc(2)
        k.I("s_lshl_b32", s(st0), s(sidx), 8)
        k.I("v_add_u32", v(vT0), s(st0), "v0")
        k.I("s_lshl_b32", s(st1), s(skap), 16)
        k.I("s_add_u32", s(st1), s(st1), hex(Z2_OFF))
        for i in range(2):
            k.I("v_add_u32", v(t0), 7168 * i, v(vT0))
            k.I("v_lshrrev_b32", v(t1), 9, v(t0))
            k.I("v_lshlrev_b32", v(t1), 17, v(t1))
            k.I("v_and_b32", v(t2), 511, v(t0))
            k.I("v_lshl_add_u32", v(t1), v(t2), 7, v(t1))
            k.vm("pf", "buffer_load_dword", v(vd0 + i), v(t1), sr(sWS, 4), s(st1), mods="offen")
    v16 = k.valloc()
    k.I("v_lshlrev_b32", v(v16), 4, v(lane))
    vB = k.vnext
    z1 = [[k.valloc(8, 4) for _ in range(2)] for _ in range(2)]
    rr = [k.valloc(2) for _ in range(2)]; bb = [k.valloc(2) for _ in range(2)]
    k.I("v_lshlrev_b32", v(t0), 2, v(l31))
    k.I("v_lshlrev_b32", v(t1), 1, v(l31))
    for ti in range(2):
        k.I("s_add_u32", s(st0), s(sst), ti)
        k.I("s_lshl_b32", s(soff), s(st0), 7)
        k.I("s_add_u32", s(soff), s(soff), hex(RH_OFF))
        k.vm("z1", "buffer_load_dword", v(rr[ti]), v(t0), sr(sWS, 4), s(soff), mods="offen")
        k.I("s_lshl_b32", s(soff), s(st0), 6)
        k.vm("z1", "buffer_load_ushort", v(bb[ti]), v(t1), sr(sB, 4), s(soff), mods="offen")
    if os.environ.get("PF2", "0") == "1":
        pp = k.salloc(2); sP = k.salloc(4); vT = k.valloc(); vd = k.valloc(2)
        k.I("s_load_dwordx2", sr(pp, 2), "s[0:1]", 56)
        k.I("s_lshl_b32", s(st0), s(sidx), 8)
        k.I("v_add_u32", v(vT), s(st0), "v0")
        k.I("v_lshlrev_b32", v(vT), 7, v(vT))
        k.I("s_waitcnt", "lgkmcnt(0)")
        srd(k, sP, pp, 896 * 896)
        k.vm("pf", "buffer_load_dword", v(vd), v(vT), sr(sP, 4), 0, mods="offen")
    stp.stamp(0)
    aZ = k.valloc(); aW = k.valloc(4)
    k.I("s_lshl_b32", s(st0), s(sfh), 13)
    k.I("v_add_u32", v(aZ), s(st0), v(v16))
    k.I("v_bfe_u32", v(t0), v(l31), 1, 3)
    for j in range(4):
        k.I("v_add_u32", v(t1), 2 * j, v(hh))
        k.I("v_xor_b32", v(t1), v(t1), v(t0))
        k.I("v_lshlrev_b32", v(t1), 4, v(t1))
        k.I("v_lshl_add_u32", v(aW + j), v(l31), 7, v(t1))
        k.I("s_lshl_b32", s(st0), s(sth), 13)
        k.I("s_add_u32", s(st0), s(st0), 16384)
        k.I("v_add_u32", v(aW + j), s(st0), v(aW + j))
    aZ2 = k.valloc(); aW2 = k.valloc(4)
    k.I("v_add_u32", v(aZ2), 65536, v(aZ))
    for j in range(4): k.I("v_add_u32", v(aW2 + j), 65536, v(aW + j))
    acc = [[k.valloc(16, 4) for _ in range(2)] for _ in range(2)]
    NB = 3
    zf = [[k.valloc(4) for _ in range(2)] for _ in range(NB)]
    wf = [[k.valloc(4) for _ in range(2)] for _ in range(NB)]
    def rl(ks):
        c, j = ks // 4, ks % 4
        b = ks % NB
        sl = (c % NS) * SLOT
        hi = sl >= 65536
        so = sl - (65536 if hi else 0)
        out = []
        for fi in range(2):
            out.append(lambda fi=fi: k.lg(("f", ks), "ds_read_b128", vr(zf[b][fi], 4), v(aZ2 if hi else aZ), mods=f"offset:{so + fi * 4096 + j * 1024}"))
        for ti in range(2):
            out.append(lambda ti=ti: k.lg(("f", ks), "ds_read_b128", vr(wf[b][ti], 4), v((aW2 if hi else aW) + j), mods=f"offset:{so + ti * 4096}"))
        return out
    k.I("s_barrier")
    if not os.environ.get("DIAG56"): stp.stamp(1)
    for f in rl(0) + rl(1): f()
    NKS = NST * 4
    for ks in range(NKS):
        c, j = ks // 4, ks % 4
        b = ks % NB
        k.wait_lg(("f", ks))
        mf = []
        for fi in range(2):
            for ti in range(2):
                mf.append(lambda fi=fi, ti=ti: k.I("v_mfma_f32_32x32x16_bf16", vr(acc[fi][ti], 16), vr(zf[b][fi], 4), vr(wf[b][ti], 4), 0 if ks == 0 else vr(acc[fi][ti], 16)))
        fl = rl(ks + 2) if ks + 2 < NKS else []
        if j == 2 and ks + 2 < NKS:
            k.I("s_barrier")
        interleave(k, mf, fl)
    k.I("s_barrier")
    if not os.environ.get("DIAG56"): stp.stamp(2)
    vz = k.valloc()
    k.I("s_lshl_b32", s(st0), s(sth), 14)
    k.I("s_lshl_b32", s(st1), s(sfh), 12)
    k.I("s_add_u32", s(st0), s(st0), s(st1))
    k.I("s_add_u32", s(st0), s(st0), Z1REG)
    k.I("v_add_u32", v(vz), s(st0), v(v16))
    for ti in range(2):
        for fi in range(2):
            for hf_ in range(2):
                k.lg(("z1", ti, fi), "ds_read_b128", vr(z1[fi][ti] + 4 * hf_, 4), v(vz), mods=f"offset:{ti * 8192 + fi * 2048 + hf_ * 1024}")
    k.wait_vm("z1")
    for ti in range(2):
        k.I("v_lshlrev_b32", v(bb[ti]), 16, v(bb[ti]))
        k.I("v_mul_f32", v(bb[ti]), v(bb[ti]), v(rr[ti]))
    k.I("s_cmp_eq_u32", s(skap), 0)
    k.I("s_cselect_b32", s(st0), "1.0", 0)
    for ti in range(2): k.I("v_mul_f32", v(bb[ti]), s(st0), v(bb[ti]))
    tp = [k.valloc(2) for _ in range(4)]
    P = [k.valloc(8, 4) for _ in range(2)]
    sU = k.salloc()
    k.I("s_mul_i32", s(sU), s(skap), U1_OFF - U0_OFF)
    k.I("s_add_u32", s(sU), s(sU), hex(U0_OFF))
    n = 0
    for ti in range(2):
        for fi in range(2):
            A = acc[fi][ti]; Zp = z1[fi][ti]; PP = P[n & 1]; n += 1
            for j in range(8):
                k.I("v_pk_fma_f32", vr(A + 2 * j, 2), vr(A + 2 * j, 2), vr(rr[ti], 2), vr(bb[ti], 2), mods="op_sel_hi:[1,0,0]")
            k.wait_lg(("z1", ti, fi))
            for j in range(8):
                T = tp[j % 4]
                k.I("v_lshlrev_b32", v(T), 16, v(Zp + j))
                k.I("v_and_b32", v(T + 1), "0xffff0000", v(Zp + j))
                k.I("v_pk_mul_f32", vr(A + 2 * j, 2), vr(A + 2 * j, 2), vr(T, 2))
            for j in range(8): k.I("v_cvt_pk_bf16_f32", v(PP + j), v(A + 2 * j), v(A + 2 * j + 1))
            k.I("s_add_u32", s(st0), s(sst), ti)
            k.I("s_mul_i32", s(soff), s(st0), 56 * 1024)
            k.I("s_add_u32", s(st0), s(sf32), fi)
            k.I("s_lshl_b32", s(st0), s(st0), 11)
            k.I("s_add_u32", s(soff), s(soff), s(st0))
            k.I("s_add_u32", s(soff), s(soff), s(sU))
            k.I("buffer_store_dwordx4", vr(PP, 4), v(v16), sr(sWS, 4), s(soff), mods="offen")
            k.I("buffer_store_dwordx4", vr(PP + 4, 4), v(v16), sr(sWS, 4), s(soff), mods="offen offset:1024")
    stp.stamp(3)
    k.vnext = vB
    srd(k, sOut, pOD, 2048 * 896)
    srd(k, sD, pOD + 2, 256)
    srh = k.salloc(); skh = k.salloc(); sstB = k.salloc()
    k.I("s_and_b32", s(srh), s(swave), 1)
    k.I("s_lshr_b32", s(skh), s(swave), 1)
    k.I("s_lshl_b32", s(sstB), s(stt), 2)
    k.I("s_lshl_b32", s(st0), s(skap), 1)
    k.I("s_add_u32", s(sstB), s(sstB), s(st0))
    k.I("s_add_u32", s(sstB), s(sstB), s(srh))
    hr = k.valloc(8, 4)
    k.I("s_mul_i32", s(soff), s(sstB), 28 * 1024)
    k.I("s_lshl_b32", s(st0), s(sft), 1)
    k.I("s_add_u32", s(st0), s(st0), s(skh))
    sntile = k.salloc()
    k.I("s_mov_b32", s(sntile), s(st0))
    k.I("s_lshl_b32", s(st0), s(st0), 11)
    k.I("s_add_u32", s(soff), s(soff), s(st0))
    k.I("s_add_u32", s(soff), s(soff), hex(H_OFF))
    k.I("s_waitcnt", "vmcnt(0)")
    k.vmq = []
    fl = k.valloc(2); vz0 = k.valloc(); one = k.valloc()
    k.I("s_mul_i32", s(st0), s(skap), 7)
    k.I("s_add_u32", s(st0), s(st0), s(sft))
    k.I("s_lshl_b32", s(st0), s(st0), 2)
    k.I("s_add_u32", s(st0), s(st0), s(swave))
    k.I("s_lshl_b32", s(st0), s(st0), 2)
    k.I("s_lshl_b32", s(st1), s(stt), 8)
    sFL = k.salloc()
    k.I("s_add_u32", s(sFL), s(st1), hex(FL_OFF))
    k.I("s_add_u32", s(st0), s(st0), s(sFL))
    k.I("v_mov_b32", v(vz0), 0)
    k.I("v_mov_b32", v(one), 1)
    k.I("s_mov_b64", "exec", 1)
    k.I("buffer_store_dword", v(one), v(vz0), sr(sWS, 4), s(st0), mods="offen sc0 sc1")
    k.I("s_mov_b64", "exec", -1)
    k.I("buffer_load_dwordx4", vr(hr, 4), v(v16), sr(sWS, 4), s(soff), mods="offen")
    k.I("buffer_load_dwordx4", vr(hr + 4, 4), v(v16), sr(sWS, 4), s(soff), mods="offen offset:1024")
    k.I("v_min_u32", v(vz0), 55, v(lane))
    k.I("v_lshlrev_b32", v(vz0), 2, v(vz0))
    vWb = [k.valloc(), k.valloc()]
    k.I("v_bfe_u32", v(t0), v(lane), 2, 2)
    k.I("v_lshl_add_u32", v(t0), v(hh), 2, v(t0))
    k.I("s_mul_i32", s(st0), s(skh), 448)
    k.I("v_add_u32", v(t0), s(st0), v(t0))
    k.I("v_lshlrev_b32", v(t0), 7, v(t0))
    k.I("v_bfe_u32", v(t1), v(lane), 4, 1)
    k.I("v_lshlrev_b32", v(t1), 1, v(t1))
    k.I("v_bfe_u32", v(t2), v(lane), 1, 1)
    k.I("v_add_u32", v(t1), v(t1), v(t2))
    k.I("v_bfe_u32", v(t2), v(lane), 3, 1)
    k.I("v_lshlrev_b32", v(t2), 2, v(t2))
    for n2 in range(2):
        k.I("v_add_u32", v(vWb[n2]), 4 * n2, v(t1))
        k.I("v_xor_b32", v(vWb[n2]), v(vWb[n2]), v(t2))
        k.I("v_lshl_add_u32", v(vWb[n2]), v(vWb[n2]), 4, v(t0))
    k.I("v_and_b32", v(t1), 1, v(lane))
    for n2 in range(2): k.I("v_lshl_add_u32", v(vWb[n2]), v(t1), 3, v(vWb[n2]))
    sU0 = k.salloc(); sU1 = k.salloc()
    k.I("s_mul_i32", s(sU0), s(sstB), 56 * 1024)
    k.I("s_mul_i32", s(st0), s(skh), 28 * 1024)
    k.I("s_add_u32", s(sU0), s(sU0), s(st0))
    k.I("s_add_u32", s(sU1), s(sU0), hex(U1_OFF))
    k.I("s_add_u32", s(sU0), s(sU0), hex(U0_OFF))
    accB = [k.valloc(16, 4) for _ in range(2)]
    NU = 12
    uf = [[k.valloc(4) for _ in range(2)] for _ in range(NU)]
    NBW = 3
    wfB = [[k.valloc(4) for _ in range(2)] for _ in range(NBW)]
    scount = k.salloc()
    k.I("s_mov_b32", s(scount), 0)
    poll = k.newlabel("poll"); pdone = k.newlabel("pdone")
    k.L(poll)
    k.I("buffer_load_dword", v(fl), v(vz0), sr(sWS, 4), s(sFL), mods="offen sc0 sc1")
    k.I("s_waitcnt", "vmcnt(0)")
    k.I("v_cmp_ne_u32", "vcc", 1, v(fl))
    k.I("s_add_u32", s(scount), s(scount), 1)
    k.I("s_cmp_eq_u64", "vcc", 0)
    k.I("s_cbranch_scc1", pdone)
    k.I("s_cmp_lt_u32", s(scount), 0x100000)
    k.I("s_cbranch_scc0", pdone)
    k.I("s_sleep", 1)
    k.I("s_branch", poll)
    k.L(pdone)
    k.vmq = []
    stp.stamp(4)
    def uload(j):
        for ar_, sU in enumerate((sU0, sU1)):
            k.I("s_add_u32", s(soff), s(sU), hex(j * 1024))
            k.vm(("u", j), "buffer_load_dwordx4", vr(uf[j % NU][ar_], 4), v(v16), sr(sWS, 4), s(soff), mods="offen sc1")
    def wread(j):
        out = []
        for n2 in range(2):
            for beta in range(2):
                out.append(lambda n2=n2, beta=beta: k.lg(("w", j), "ds_read_b64_tr_b16", vr(wfB[j % NBW][n2] + 2 * beta, 2), v(vWb[n2]), mods=f"offset:{(16 * j + 8 * beta) * 128}"))
        return out
    for j in range(NU): uload(j)
    k.I("s_barrier")
    for f in wread(0) + wread(1): f()
    for j in range(28):
        k.wait_vm(("u", j))
        k.wait_lg(("w", j))
        mf = []
        for ar_ in range(2):
            for n2 in range(2):
                mf.append(lambda ar_=ar_, n2=n2: k.I("v_mfma_f32_32x32x16_bf16", vr(accB[n2], 16), vr(wfB[j % NBW][n2], 4), vr(uf[j % NU][ar_], 4), 0 if (j == 0 and ar_ == 0) else vr(accB[n2], 16)))
        fl_ = wread(j + 2) if j + 2 < 28 else []
        interleave(k, mf, fl_)
        if j + NU < 28: uload(j + NU)
    stp.stamp(5)
    RED = 114688
    vr1 = k.valloc(); vr2 = k.valloc()
    k.I("s_lshl_b32", s(st0), s(srh), 13)
    k.I("s_add_u32", s(st0), s(st0), RED)
    k.I("v_add_u32", v(vr1), s(st0), v(v16))
    k.I("s_lshl_b32", s(st1), s(skh), 12)
    k.I("v_add_u32", v(vr2), s(st1), v(vr1))
    k.I("s_xor_b32", s(st1), s(st1), 4096)
    k.I("v_add_u32", v(vr1), s(st1), v(vr1))
    keep = k.valloc(16, 4)
    lab_a = k.newlabel("kh1"); lab_b = k.newlabel("khj")
    k.I("s_cmp_lg_u32", s(skh), 0)
    k.I("s_cbranch_scc1", lab_a)
    for q in range(4): k.I("ds_write_b128", v(vr1), vr(accB[1] + 4 * q, 4), mods=f"offset:{q * 1024}")
    for i in range(16): k.I("v_mov_b32", v(keep + i), v(accB[0] + i))
    k.I("s_branch", lab_b)
    k.L(lab_a)
    for q in range(4): k.I("ds_write_b128", v(vr1), vr(accB[0] + 4 * q, 4), mods=f"offset:{q * 1024}")
    for i in range(16): k.I("v_mov_b32", v(keep + i), v(accB[1] + i))
    k.L(lab_b)
    k.I("s_waitcnt", "lgkmcnt(0)")
    k.lgq = []
    k.I("s_barrier")
    oth = k.valloc(16, 4)
    for q in range(4): k.I("ds_read_b128", vr(oth + 4 * q, 4), v(vr2), mods=f"offset:{q * 1024}")
    tpB = [k.valloc(2) for _ in range(4)]
    for j in range(8):
        T = tpB[j % 4]
        k.I("v_lshlrev_b32", v(T), 16, v(hr + j))
        k.I("v_and_b32", v(T + 1), "0xffff0000", v(hr + j))
        k.I("v_pk_add_f32", vr(keep + 2 * j, 2), vr(keep + 2 * j, 2), vr(T, 2))
    k.I("s_waitcnt", "lgkmcnt(0)")
    for j in range(8): k.I("v_pk_add_f32", vr(keep + 2 * j, 2), vr(keep + 2 * j, 2), vr(oth + 2 * j, 2))
    PB = k.valloc(8, 4)
    for j in range(8): k.I("v_cvt_pk_bf16_f32", v(PB + j), v(keep + 2 * j), v(keep + 2 * j + 1))
    for kp in range(2):
        k.I("v_permlane32_swap_b32", v(PB + 4 * kp), v(PB + 4 * kp + 2))
        k.I("v_permlane32_swap_b32", v(PB + 4 * kp + 1), v(PB + 4 * kp + 3))
    vo = k.valloc()
    k.I("v_mul_u32_u24", v(vo), 896, v(l31))
    k.I("v_lshl_add_u32", v(vo), v(hh), 4, v(vo))
    k.I("s_mul_i32", s(soff), s(sstB), 32 * 896)
    k.I("s_lshl_b32", s(st0), s(sntile), 6)
    k.I("s_add_u32", s(soff), s(soff), s(st0))
    for kp in range(2):
        k.I("buffer_store_dwordx4", vr(PB + 4 * kp, 4), v(vo), sr(sOut, 4), s(soff), mods=f"offen offset:{32 * kp}")
    stp.stamp(6)
    k.I("s_endpgm")
    k.L(pfrole)
    vT2 = k.valloc()
    k.I("s_sub_u32", s(st0), s(sidx), 28)
    k.I("s_lshl_b32", s(st0), s(st0), 9)
    k.I("v_add_u32", v(vT2), s(st0), "v0")
    k.I("v_lshlrev_b32", v(vT2), 7, v(vT2))
    l2_prefetch(k, 56, 896 * 896, vT2, 2048, st0)
    k.L(R["done"])
    k.I("s_endpgm")
    k.lds = lds; k.threads = 512; k.grid = 256
    return k

def gen_k6(Stamper):
    k = Kernel("k6_wout_kernel")
    NS = 5; SLOT = 24576
    RED = 0
    lds = NS * SLOT
    R = common_start(k, 224)
    swave, st0, st1, soff, lane, t0, t1, t2 = (R[x] for x in ("swave", "st0", "st1", "soff", "lane", "t0", "t1", "t2"))
    pWo = k.salloc(2); pOut = k.salloc(2); pWS = k.salloc(2)
    k.I("s_load_dwordx2", sr(pWo, 2), "s[0:1]", 56)
    k.I("s_load_dwordx2", sr(pOut, 2), "s[0:1]", 64)
    k.I("s_load_dwordx2", sr(pWS, 2), "s[0:1]", 80)
    sWS = k.salloc(4); sWo = k.salloc(4); sOut = k.salloc(4)
    sj = k.salloc(); sidx = k.salloc(); srt = k.salloc(); snt = k.salloc(); sw3 = k.salloc()
    k.I("s_and_b32", s(sj), "s2", 7)
    k.I("s_lshr_b32", s(sidx), "s2", 3)
    k.I("s_and_b32", s(sw3), s(swave), 3)
    k.I("s_mul_i32", s(st0), s(sidx), 37)
    k.I("s_lshr_b32", s(st0), s(st0), 8)
    k.I("s_mul_i32", s(st1), s(st0), 7)
    k.I("s_sub_u32", s(snt), s(sidx), s(st1))
    k.I("s_lshl_b32", s(srt), s(sj), 2)
    k.I("s_add_u32", s(srt), s(srt), s(st0))
    stp = Stamper(k, 5, sWS, swave)
    comp = k.newlabel("compute")
    k.I("s_cmp_lt_u32", s(swave), 4)
    k.I("s_cbranch_scc1", comp)
    vsave = k.vnext
    v16 = k.valloc(); vWo = k.valloc()
    k.I("v_lshlrev_b32", v(v16), 4, v(lane))
    k.I("v_lshrrev_b32", v(t0), 3, v(lane))
    k.I("v_mul_u32_u24", v(t0), 896, v(t0))
    k.I("v_bfe_u32", v(t1), v(lane), 4, 1)
    k.I("v_lshlrev_b32", v(t1), 2, v(t1))
    k.I("v_and_b32", v(t2), 7, v(lane))
    k.I("v_xor_b32", v(t1), v(t1), v(t2))
    k.I("v_lshl_add_u32", v(vWo), v(t1), 4, v(t0))
    sUb = k.salloc(); sWb = k.salloc(); smU = k.salloc(); smW = k.salloc()
    k.I("s_lshr_b32", s(st0), s(sw3), 1)
    k.I("s_lshl_b32", s(st1), s(srt), 1)
    k.I("s_add_u32", s(st1), s(st1), s(st0))
    k.I("s_mul_i32", s(sUb), s(st1), 56 * 1024)
    k.I("s_and_b32", s(st1), s(sw3), 1)
    k.I("s_mul_i32", s(smU), s(st1), U1_OFF - U0_OFF)
    k.I("s_add_u32", s(sUb), s(sUb), s(smU))
    k.I("s_add_u32", s(sUb), s(sUb), hex(U0_OFF))
    k.I("s_lshl_b32", s(smU), s(st1), 13)
    k.I("s_lshl_b32", s(st0), s(st0), 12)
    k.I("s_add_u32", s(smU), s(smU), s(st0))
    k.I("s_mul_i32", s(sWb), s(sw3), 16 * 896)
    k.I("s_lshl_b32", s(st1), s(snt), 7)
    k.I("s_add_u32", s(sWb), s(sWb), s(st1))
    k.I("s_lshl_b32", s(smW), s(sw3), 11)
    k.I("s_add_u32", s(smW), s(smW), 16384)
    srot = k.salloc(); scp = k.salloc(); sa1 = k.salloc(); sa2 = k.salloc()
    k.I("s_lshl_b32", s(st0), s(snt), 1)
    k.I("s_and_b32", s(st1), s(srt), 3)
    k.I("s_mul_i32", s(st1), s(st1), 3)
    k.I("s_add_u32", s(srot), s(st0), s(st1))
    k.I("s_cmp_ge_u32", s(srot), 14)
    k.I("s_cselect_b32", s(st0), 14, 0)
    k.I("s_sub_u32", s(srot), s(srot), s(st0))
    if not rot_on(6): k.I("s_mov_b32", s(srot), 0)
    def issue(c):
        sl = (c % NS) * SLOT
        rot_index(k, scp, srot, c, 14)
        k.I("s_lshl_b32", s(sa1), s(scp), 12)
        k.I("s_add_u32", s(sa1), s(sa1), s(sUb))
        k.I("s_mul_i32", s(sa2), s(scp), 64 * 896)
        k.I("s_add_u32", s(sa2), s(sa2), s(sWb))
        for i in range(4):
            k.I("s_add_u32", s(soff), s(sa1), hex(i * 1024))
            k.I("s_add_u32", "m0", s(smU), hex(sl + i * 1024))
            k.vm(("S", c), "buffer_load_dwordx4", v(v16), sr(sWS, 4), s(soff), mods="offen lds")
        for i in range(2):
            k.I("s_add_u32", s(soff), s(sa2), hex(8 * i * 896))
            k.I("s_add_u32", "m0", s(smW), hex(sl + i * 1024))
            k.vm(("S", c), "buffer_load_dwordx4", v(vWo), sr(sWo, 4), s(soff), mods="offen lds")
    NST = 14
    k.I("s_waitcnt", "lgkmcnt(0)")
    srd(k, sWS, pWS, WS_SIZE)
    srd(k, sWo, pWo, 896 * 896)
    for c in range(3): issue(c)
    for c in range(NST):
        k.wait_vm(("S", c))
        k.I("s_barrier")
        if c == 0: issue(3); issue(4)
        elif c + 3 < NST and c >= 2: issue(c + 3)
    k.I("s_endpgm")
    k.L(comp)
    k.vnext = vsave; k.vmq = []; k.lgq = []
    l31 = k.valloc(); hh = k.valloc()
    k.I("v_and_b32", v(l31), 31, v(lane))
    k.I("v_lshrrev_b32", v(hh), 5, v(lane))
    srh = k.salloc(); snh = k.salloc(); sst = k.salloc(); sntile = k.salloc()
    k.I("s_and_b32", s(srh), s(swave), 1)
    k.I("s_lshr_b32", s(snh), s(swave), 1)
    k.I("s_lshl_b32", s(sst), s(srt), 1)
    k.I("s_add_u32", s(sst), s(sst), s(srh))
    k.I("s_lshl_b32", s(sntile), s(snt), 1)
    k.I("s_add_u32", s(sntile), s(sntile), s(snh))
    if os.environ.get("PF3", "0") == "1":
        vT0 = k.valloc(); vd0 = k.valloc(2)
        k.I("s_lshl_b32", s(st0), s(sidx), 8)
        k.I("v_add_u32", v(vT0), s(st0), "v0")
        k.I("v_mov_b32", v(t0), hex(U1_OFF - U0_OFF - 3584 * 128))
        k.I("v_cmp_le_u32", "vcc", 3584, v(vT0))
        k.I("v_cndmask_b32", v(t0), 0, v(t0), "vcc")
        k.I("v_lshl_add_u32", v(t0), v(vT0), 7, v(t0))
        k.I("s_mul_i32", s(st1), s(sj), 8 * 56 * 1024)
        k.I("s_add_u32", s(st1), s(st1), hex(U0_OFF))
        k.vm("pf", "buffer_load_dword", v(vd0), v(t0), sr(sWS, 4), s(st1), mods="offen")
    v16 = k.valloc()
    k.I("v_lshlrev_b32", v(v16), 4, v(lane))
    hr = k.valloc(8, 4)
    k.I("s_mul_i32", s(soff), s(sst), 28 * 1024)
    k.I("s_lshl_b32", s(st0), s(sntile), 11)
    k.I("s_add_u32", s(soff), s(soff), s(st0))
    k.I("s_add_u32", s(soff), s(soff), hex(H_OFF))
    k.I("s_waitcnt", "lgkmcnt(0)")
    srd(k, sWS, pWS, WS_SIZE)
    srd(k, sOut, pOut, 2048 * 896)
    k.vm("h", "buffer_load_dwordx4", vr(hr, 4), v(v16), sr(sWS, 4), s(soff), mods="offen")
    k.vm("h", "buffer_load_dwordx4", vr(hr + 4, 4), v(v16), sr(sWS, 4), s(soff), mods="offen offset:1024")
    stp.stamp(0)
    aU = k.valloc(); vW = k.valloc()
    k.I("s_lshl_b32", s(st0), s(srh), 12)
    k.I("v_add_u32", v(aU), s(st0), v(v16))
    k.I("v_bfe_u32", v(t0), v(lane), 2, 2)
    k.I("v_lshl_add_u32", v(t0), v(hh), 2, v(t0))
    k.I("v_lshlrev_b32", v(vW), 7, v(t0))
    k.I("v_add_u32", v(vW), 16384, v(vW))
    k.I("v_bfe_u32", v(t0), v(lane), 4, 1)
    k.I("v_lshlrev_b32", v(t0), 1, v(t0))
    k.I("v_bfe_u32", v(t1), v(lane), 1, 1)
    k.I("v_add_u32", v(t0), v(t0), v(t1))
    k.I("s_lshl_b32", s(st0), s(snh), 2)
    k.I("v_add_u32", v(t0), s(st0), v(t0))
    k.I("v_bfe_u32", v(t1), v(lane), 3, 1)
    k.I("v_lshlrev_b32", v(t1), 2, v(t1))
    k.I("v_xor_b32", v(t0), v(t0), v(t1))
    k.I("v_lshl_add_u32", v(vW), v(t0), 4, v(vW))
    k.I("v_and_b32", v(t0), 1, v(lane))
    k.I("v_lshl_add_u32", v(vW), v(t0), 3, v(vW))
    aU2 = k.valloc(); vW2 = k.valloc()
    k.I("v_add_u32", v(aU2), 3 * SLOT, v(aU))
    k.I("v_add_u32", v(vW2), 3 * SLOT, v(vW))
    acc = k.valloc(16, 4)
    NB = 3
    uf = [[k.valloc(4) for _ in range(2)] for _ in range(NB)]; wf = [k.valloc(4) for _ in range(NB)]
    def rl(ks):
        c, j = ks // 4, ks % 4
        b = ks % NB
        sl = (c % NS)
        hi = sl >= 3
        so = (sl - (3 if hi else 0)) * SLOT
        out = []
        for ar_ in range(2):
            out.append(lambda ar_=ar_: k.lg(("f", ks), "ds_read_b128", vr(uf[b][ar_], 4), v(aU2 if hi else aU), mods=f"offset:{so + ar_ * 8192 + j * 1024}"))
        for beta in range(2):
            o = so + (16 * j + 8 * beta) * 128
            out.append(lambda o=o, beta=beta: k.lg(("f", ks), "ds_read_b64_tr_b16", vr(wf[b] + 2 * beta, 2), v(vW2 if hi else vW), mods=f"offset:{o}"))
        return out
    k.I("s_barrier")
    stp.stamp(1)
    for f in rl(0) + rl(1): f()
    NKS = NST * 4
    for ks in range(NKS):
        c, j = ks // 4, ks % 4
        b = ks % NB
        k.wait_lg(("f", ks))
        mf = [lambda ar_=ar_: k.I("v_mfma_f32_32x32x16_bf16", vr(acc, 16), vr(wf[b], 4), vr(uf[b][ar_], 4), 0 if (ks == 0 and ar_ == 0) else vr(acc, 16)) for ar_ in range(2)]
        fl = rl(ks + 2) if ks + 2 < NKS else []
        if j == 2 and ks + 2 < NKS: k.I("s_barrier")
        interleave(k, mf, fl)
    stp.stamp(2)
    k.wait_vm("h")
    tp = [k.valloc(2) for _ in range(4)]
    for j in range(8):
        T = tp[j % 4]
        k.I("v_lshlrev_b32", v(T), 16, v(hr + j))
        k.I("v_and_b32", v(T + 1), "0xffff0000", v(hr + j))
        k.I("v_pk_add_f32", vr(acc + 2 * j, 2), vr(acc + 2 * j, 2), vr(T, 2))
    P = k.valloc(8, 4)
    for j in range(8): k.I("v_cvt_pk_bf16_f32", v(P + j), v(acc + 2 * j), v(acc + 2 * j + 1))
    for kp in range(2):
        k.I("v_permlane32_swap_b32", v(P + 4 * kp), v(P + 4 * kp + 2))
        k.I("v_permlane32_swap_b32", v(P + 4 * kp + 1), v(P + 4 * kp + 3))
    vo = k.valloc()
    k.I("v_mul_u32_u24", v(vo), 896, v(l31))
    k.I("v_lshl_add_u32", v(vo), v(hh), 4, v(vo))
    k.I("s_mul_i32", s(soff), s(sst), 32 * 896)
    k.I("s_lshl_b32", s(st0), s(sntile), 6)
    k.I("s_add_u32", s(soff), s(soff), s(st0))
    for kp in range(2):
        k.I("buffer_store_dwordx4", vr(P + 4 * kp, 4), v(vo), sr(sOut, 4), s(soff), mods=f"offen offset:{32 * kp}")
    stp.stamp(3)
    if os.environ.get("SPIN"):
        ka, ja, kb, jb = [int(x) for x in os.environ["SPIN"].split(",")]
        sa_ = k.salloc(2); sb_ = k.salloc(2); sn_ = k.salloc(2); sq_ = k.salloc(2)
        lab = k.newlabel("spin"); out_ = k.newlabel("spun")
        k.I("s_or_b32", s(st0), "s2", s(swave))
        k.I("s_cmp_lg_u32", s(st0), 0)
        k.I("s_cbranch_scc1", out_)
        k.I("s_mov_b32", s(st0), hex(STAMP_OFF + ka * 256 * 64 + ja * 8))
        k.I("s_load_dwordx2", sr(sa_, 2), sr(pWS, 2), s(st0))
        k.I("s_mov_b32", s(st1), hex(STAMP_OFF + max(kb, 0) * 256 * 64 + jb * 8))
        if kb >= 0: k.I("s_load_dwordx2", sr(sb_, 2), sr(pWS, 2), s(st1))
        else: k.I("s_memrealtime", sr(sb_, 2))
        k.I("s_memrealtime", sr(sn_, 2))
        k.I("s_waitcnt", "lgkmcnt(0)")
        k.I("s_sub_u32", s(sa_), s(sb_), s(sa_))
        k.I("s_min_u32", s(sa_), s(sa_), 20000)
        k.I("s_add_u32", s(sn_), s(sn_), s(sa_))
        k.L(lab)
        k.I("s_memrealtime", sr(sq_, 2))
        k.I("s_waitcnt", "lgkmcnt(0)")
        k.I("s_sub_u32", s(sq_), s(sq_), s(sn_))
        k.I("s_cmp_lt_i32", s(sq_), 0)
        k.I("s_cbranch_scc1", lab)
        k.L(out_)
    k.L(R["done"])
    k.I("s_endpgm")
    k.lds = lds; k.threads = 512; k.grid = 224
    return k

def rest(Stamper):
    if os.environ.get("MERGE56", "0") == "1":
        return [gen_k2(Stamper), gen_k3(Stamper), gen_k4(Stamper), gen_k56(Stamper)]
    return [gen_k2(Stamper), gen_k3(Stamper), (gen_k4b if os.environ.get('K4B', '1') == '1' else gen_k4)(Stamper), gen_k5(Stamper), gen_k6(Stamper)]
```

```python
import os, struct
from asmlib import *
from layout import *
import kernels2
from kernels2 import srd, f32, WS_SIZE

def gen_k1c(Stamper):
    k = Kernel("k1_qkv_kernel")
    k.snext = 4; k.vnext = 1
    WREG = 0; WCH = 12288; XRING = 7 * WCH; XSL = 4096; NXS = 4
    TBL = XRING + 4 * NXS * XSL
    CWT = TBL; RT = TBL + 512; NMT = TBL + 1024; SQT = TBL + 1536
    ONES = TBL + 2048
    lds = ONES + 1024
    done = k.newlabel("done")
    k.I("s_cmp_ge_u32", "s2", 256)
    k.I("s_cbranch_scc1", done)
    pX = k.salloc(4); pWS = k.salloc(2)
    k.I("s_load_dwordx4", sr(pX, 4), "s[0:1]", 0)
    k.I("s_load_dwordx2", sr(pWS, 2), "s[0:1]", 80)
    sX = k.salloc(4); sW = k.salloc(4); sWS = k.salloc(4)
    swave = k.salloc(); srb = k.salloc(); sct = k.salloc(); st0 = k.salloc(); st1 = k.salloc(); soff = k.salloc()
    lane = k.valloc(); l31 = k.valloc(); hh = k.valloc(); t0 = k.valloc(); t1 = k.valloc(); t2 = k.valloc()
    k.I("v_lshrrev_b32", v(t0), 6, "v0")
    k.I("v_and_b32", v(lane), 63, "v0")
    k.I("v_readfirstlane_b32", s(swave), v(t0))
    kernels2.map_rb_hd(k, srb, sct, st0, st1)
    stp = Stamper(k, 0, sWS, swave)
    sw3 = k.salloc()
    k.I("s_and_b32", s(sw3), s(swave), 3)
    l15 = k.valloc()
    k.I("v_and_b32", v(l15), 15, v(lane))
    comp = k.newlabel("compute")
    k.I("s_cmp_lt_u32", s(swave), 4)
    k.I("s_cbranch_scc1", comp)
    vsave = k.vnext; ssave = k.snext
    if os.environ.get("PRIO_L"): k.I("s_setprio", int(os.environ["PRIO_L"]))
    vXo = k.valloc(4)
    k.I("v_lshrrev_b32", v(t0), 3, v(lane))
    k.I("v_mul_u32_u24", v(t0), 896, v(t0))
    k.I("v_lshrrev_b32", v(t1), 4, v(lane))
    k.I("v_and_b32", v(t2), 7, v(lane))
    k.I("v_xor_b32", v(t1), v(t1), v(t2))
    k.I("v_lshl_add_u32", v(vXo), v(t1), 4, v(t0))
    k.I("v_xor_b32", v(t1), 4, v(t1))
    k.I("v_lshl_add_u32", v(vXo + 1), v(t1), 4, v(t0))
    k.I("v_add_u32", v(vXo + 1), 8 * 896, v(vXo + 1))
    k.I("v_add_u32", v(vXo + 2), 16 * 896, v(vXo))
    k.I("v_add_u32", v(vXo + 3), 16 * 896, v(vXo + 1))
    vWo = k.valloc(3); oob = k.valloc()
    k.I("v_mov_b32", v(oob), "0x7fffff00")
    for b in range(3):
        k.I("v_add_u32", v(t0), 64 * b, v(lane))
        k.I("v_mul_u32_u24", v(t1), 171, v(t0))
        k.I("v_lshrrev_b32", v(t1), 11, v(t1))
        k.I("v_mul_u32_u24", v(t2), 12, v(t1))
        k.I("v_sub_u32", v(t0), v(t0), v(t2))
        k.I("v_mul_u32_u24", v(t1), 2688, v(t1))
        k.I("v_lshl_add_u32", v(t1), v(t0), 4, v(t1))
        k.I("v_cmp_gt_u32", "vcc", 11, v(t0))
        k.I("v_cndmask_b32", v(vWo + b), v(oob), v(t1), "vcc")
    sWb = k.salloc(); sm0 = k.salloc(); sXb = k.salloc(); sm0x = k.salloc()
    k.I("s_mul_i32", s(sWb), s(sct), 168)
    k.I("s_mul_i32", s(st0), s(sw3), 16 * 2688)
    k.I("s_add_u32", s(sWb), s(sWb), s(st0))
    k.I("s_mul_i32", s(sm0), s(sw3), 3 * 1024)
    k.I("s_lshl_b32", s(st0), s(srb), 7)
    k.I("s_lshl_b32", s(st1), s(sw3), 5)
    k.I("s_add_u32", s(st0), s(st0), s(st1))
    k.I("s_mul_i32", s(sXb), s(st0), 896)
    k.I("s_mul_i32", s(sm0x), s(sw3), NXS * XSL)
    k.I("s_add_u32", s(sm0x), s(sm0x), XRING)
    srot = k.salloc(); scp = k.salloc(); sa1 = k.salloc()
    k.I("s_lshl_b32", s(st0), s(srb), 1)
    if os.environ.get("ROTK1") == "rb": pass
    elif os.environ.get("ROTK1") == "ct": k.I("s_mov_b32", s(st0), s(sct))
    else: k.I("s_add_u32", s(st0), s(st0), s(sct))
    k.I("s_mul_i32", s(st1), s(st0), 37)
    k.I("s_lshr_b32", s(st1), s(st1), 8)
    k.I("s_mul_i32", s(st1), s(st1), 7)
    k.I("s_sub_u32", s(srot), s(st0), s(st1))
    if not kernels2.rot_on(1): k.I("s_mov_b32", s(srot), 0)
    def wdma(c, b):
        if b == 0:
            kernels2.rot_index(k, scp, srot, c, 7)
            k.I("s_mul_i32", s(sa1), s(scp), 64 * 2688)
            k.I("s_add_u32", s(sa1), s(sa1), s(sWb))
        k.I("s_add_u32", "m0", s(sm0), hex(WREG + c * WCH + b * 1024))
        k.vm(("W", c), "buffer_load_dwordx4", v(vWo + b), sr(sW, 4), s(sa1), mods="offen lds")
    def xdma(c, j):
        if j == 0:
            kernels2.rot_index(k, scp, srot, c, 7)
            k.I("s_lshl_b32", s(soff), s(scp), 7)
            k.I("s_add_u32", s(soff), s(soff), s(sXb))
        k.I("s_add_u32", "m0", s(sm0x), hex((c % NXS) * XSL + j * 1024))
        k.vm(("X", c), "buffer_load_dwordx4", v(vXo + j), sr(sX, 4), s(soff), mods="offen lds")
    k.I("s_waitcnt", "lgkmcnt(0)")
    srd(k, sW, pX + 2, 448 * 2688)
    srd(k, sX, pX, 2048 * 896)
    for c in range(2):
        for b in range(3): wdma(c, b)
        for j in range(4): xdma(c, j)
    for b in range(3): wdma(2, b)
    for c in range(7):
        k.wait_vm([("W", c), ("X", c)])
        k.I("s_barrier")
        if c + 2 <= 6:
            for j in range(4): xdma(c + 2, j)
        if c + 3 <= 6:
            for b in range(3): wdma(c + 3, b)
    k.I("s_barrier")
    k.I("s_endpgm")
    k.L(comp)
    if os.environ.get("PRIO_C"): k.I("s_setprio", int(os.environ["PRIO_C"]))
    k.vnext = vsave; k.vmq = []; k.lgq = []
    sidx1 = k.salloc()
    k.I("s_lshr_b32", s(sidx1), "s2", 3)
    kernels2.code_prefetch(k, "k2_attn_kernel", sidx1, st0)
    sm0x = k.salloc()
    k.I("s_mul_i32", s(sm0x), s(swave), NXS * XSL)
    k.I("s_add_u32", s(sm0x), s(sm0x), XRING)
    aX = k.valloc(4); vW = k.valloc(); aG = k.valloc(4); vWj = k.valloc(); gg = k.valloc()
    k.I("v_and_b32", v(l31), 31, "v0")
    k.I("v_bfe_u32", v(hh), "v0", 5, 1)
    k.I("v_lshrrev_b32", v(gg), 4, v(lane))
    k.I("v_bfe_u32", v(t0), v(l31), 1, 3)
    for j in range(4):
        k.I("v_add_u32", v(t1), 2 * j, v(hh))
        k.I("v_xor_b32", v(t1), v(t1), v(t0))
        k.I("v_lshlrev_b32", v(t1), 4, v(t1))
        k.I("v_lshl_add_u32", v(aX + j), v(l31), 7, v(t1))
        k.I("v_add_u32", v(aX + j), s(sm0x), v(aX + j))
    for rg in range(2):
        k.I("v_add_u32", v(t0), 16 * rg, v(l15))
        k.I("v_bfe_u32", v(t1), v(t0), 1, 3)
        for kk in range(2):
            k.I("v_add_u32", v(t2), 4 * kk, v(gg))
            k.I("v_xor_b32", v(t2), v(t2), v(t1))
            k.I("v_lshlrev_b32", v(t2), 4, v(t2))
            k.I("v_lshl_add_u32", v(aG + 2 * rg + kk), v(t0), 7, v(t2))
            k.I("v_add_u32", v(aG + 2 * rg + kk), s(sm0x), v(aG + 2 * rg + kk))
    k.I("v_bfe_u32", v(t0), "v0", 2, 2)
    k.I("v_lshl_add_u32", v(t1), v(hh), 3, v(t0))
    k.I("v_mul_u32_u24", v(t1), 192, v(t1))
    k.I("v_bfe_u32", v(t2), "v0", 4, 1)
    k.I("v_lshl_add_u32", v(t1), v(t2), 5, v(t1))
    k.I("v_and_b32", v(t2), 3, "v0")
    k.I("v_lshl_add_u32", v(vW), v(t2), 3, v(t1))
    k.I("v_lshl_add_u32", v(t0), v(gg), 3, v(t0))
    k.I("v_mul_u32_u24", v(t0), 192, v(t0))
    k.I("v_lshl_add_u32", v(vWj), v(t2), 3, v(t0))
    k.I("s_lshr_b32", s(st0), s(swave), 1)
    k.I("s_mul_i32", s(st0), s(st0), 32 * 192)
    k.I("s_and_b32", s(st1), s(swave), 1)
    k.I("s_mul_i32", s(st1), s(st1), 96)
    k.I("s_add_u32", s(st0), s(st0), s(st1))
    k.I("v_add_u32", v(vWj), s(st0), v(vWj))
    vW2 = k.valloc(); vWj2 = k.valloc()
    k.I("v_add_u32", v(vW2), 4 * WCH, v(vW))
    k.I("v_add_u32", v(vWj2), 4 * WCH, v(vWj))
    ones = k.valloc(4); vWq = k.valloc(); vInc = k.valloc()
    k.I("v_and_b32", v(t0), 19, v(lane))
    k.I("v_cmp_eq_u32", "vcc", 19, v(t0))
    k.I("v_mov_b32", v(t1), ONES)
    k.I("v_cndmask_b32", v(vWq), v(vW), v(t1), "vcc")
    k.I("v_mov_b32", v(t1), 16 * 192)
    k.I("v_cndmask_b32", v(vInc), v(t1), 0, "vcc")
    k.I("v_lshlrev_b32", v(t0), 4, v(lane))
    k.I("v_add_u32", v(t0), ONES, v(t0))
    for i in range(4): k.I("v_mov_b32", v(ones + i), "0x3f803f80")
    k.lg("z", "ds_write_b128", v(t0), vr(ones, 4))
    zz = k.valloc(2); vtb = k.valloc()
    k.I("v_mov_b32", v(zz), 0); k.I("v_mov_b32", v(zz + 1), 0)
    k.I("v_lshlrev_b32", v(vtb), 3, v(lane))
    k.I("v_add_u32", v(vtb), CWT, v(vtb))
    k.lg("z", "ds_write_b64", v(vtb), vr(zz, 2))
    acc = [k.valloc(16, 4) for _ in range(3)]
    NB = 3
    cacc = [k.valloc(4) for _ in range(3)]
    gacc = [k.valloc(4) for _ in range(2)]
    vtl_ = k.valloc(); vcwa = k.valloc(); vsqa = k.valloc(); vrow = k.valloc(); vh4 = k.valloc(); vh4w = k.valloc(); vl31 = k.valloc()
    k.I("v_lshlrev_b32", v(vtl_), 2, v(l15))
    k.I("v_add_u32", v(vtl_), TBL, v(vtl_))
    k.I("s_and_b32", s(st1), s(swave), 1)
    k.I("s_mul_i32", s(st1), s(st1), 192)
    k.I("v_add_u32", v(vcwa), s(st1), v(vtl_))
    k.I("s_lshl_b32", s(st0), s(swave), 7)
    k.I("v_add_u32", v(vsqa), s(st0), v(vtl_))
    k.I("v_add_u32", v(vsqa), SQT - TBL, v(vsqa))
    k.I("v_lshlrev_b32", v(vl31), 2, v(l31))
    k.I("v_add_u32", v(vl31), TBL, v(vl31))
    k.I("v_add_u32", v(vrow), s(st0), v(vl31))
    k.I("v_lshlrev_b32", v(vh4), 4, v(hh))
    k.I("v_add_u32", v(vh4), TBL, v(vh4))
    k.I("v_add_u32", v(vh4w), s(st0), v(vh4))
    vq = k.valloc(); vv_ = k.valloc()
    k.I("v_lshrrev_b32", v(t0), 4, v(l31))
    k.I("v_lshlrev_b32", v(vq), 10, v(t0))
    k.I("v_lshl_add_u32", v(vq), v(l15), 4, v(vq))
    k.I("v_lshl_add_u32", v(vq), v(hh), 9, v(vq))
    k.I("v_lshlrev_b32", v(vv_), 9, v(t0))
    k.I("v_lshl_add_u32", v(vv_), v(l15), 3, v(vv_))
    k.I("v_lshl_add_u32", v(vv_), v(hh), 7, v(vv_))
    sb = k.salloc()
    k.I("s_mul_i32", s(sb), s(sct), 3 * 131072)
    k.I("s_lshl_b32", s(st0), s(srb), 13)
    k.I("s_add_u32", s(sb), s(sb), s(st0))
    k.I("s_lshl_b32", s(st0), s(swave), 11)
    k.I("s_add_u32", s(sb), s(sb), s(st0))
    m1 = k.salloc(2); m2 = k.salloc(2); m3 = k.salloc(2)
    k.I("v_and_b32", v(t0), 3, v(lane))
    k.I("v_cmp_eq_u32", sr(m1, 2), 1, v(t0))
    k.I("v_cmp_eq_u32", sr(m2, 2), 2, v(t0))
    k.I("v_cmp_eq_u32", sr(m3, 2), 3, v(t0))
    k.I("s_waitcnt", "lgkmcnt(0)")
    k.lgq = []
    srd(k, sWS, pWS, WS_SIZE)
    stp.stamp(0)
    vmark = k.vnext
    labB = k.newlabel("varB"); labC = k.newlabel("varC")
    k.I("s_cmp_ge_u32", s(sct), 11)
    k.I("s_cbranch_scc1", labC)
    k.I("s_cmp_eq_u32", s(sct), 10)
    k.I("s_cbranch_scc1", labB)

    def variant(types):
        k.vnext = vmark; k.lgq = []; k.vmq = []
        xf = [k.valloc(4) for _ in range(NB)]
        wf = [[k.valloc(4) for _ in range(3)] for _ in range(NB)]
        xs = [k.valloc(4) for _ in range(4)]
        wf2 = [k.valloc(4) for _ in range(3)]
        def read_list(ks):
            c, j = ks // 4, ks % 4
            b = ks % NB
            out = [lambda: k.lg(("f", ks), "ds_read_b128", vr(xf[b], 4), v(aX + j), mods=f"offset:{(c % NXS) * XSL}")]
            for beta in range(2):
                out.append(lambda beta=beta: k.lg(("f", ks), "ds_read_b64_tr_b16", vr(wf[b][0] + 2 * beta, 2), v(vWq), mods=f"offset:{beta * 4 * 192}"))
            out.append(lambda: k.I("v_add_u32", v(vWq), v(vInc), v(vWq)))
            for sg in range(1, 3):
                for beta in range(2):
                    o = (c % 4) * WCH + (16 * j + 4 * beta) * 192 + 56 * sg
                    base = vW if c < 4 else vW2
                    out.append(lambda o=o, sg=sg, beta=beta, base=base: k.lg(("f", ks), "ds_read_b64_tr_b16", vr(wf[b][sg] + 2 * beta, 2), v(base), mods=f"offset:{o}"))
            return out
        def aux_reads(c):
            out = []
            for j in range(4):
                out.append(lambda j=j: k.lg(("g", c), "ds_read_b128", vr(xs[j], 4), v(aG + j), mods=f"offset:{(c % NXS) * XSL}"))
            for nt in range(3):
                for beta in range(2):
                    o = (c % 4) * WCH + (4 * beta) * 192 + 32 * nt
                    base = vWj if c < 4 else vWj2
                    out.append(lambda o=o, nt=nt, beta=beta, base=base: k.lg(("cw", c), "ds_read_b64_tr_b16", vr(wf2[nt] + 2 * beta, 2), v(base), mods=f"offset:{o}"))
            return out
        k.I("s_barrier")
        stp.stamp(1)
        for f in read_list(0): f()
        for f in read_list(1): f()
        for ks in range(28):
            c, j = ks // 4, ks % 4
            b = ks % NB
            fill = read_list(ks + 2) if ks + 2 < 28 else []
            aux = []
            if j == 0: aux = aux_reads(c)[:4]
            if j == 1: aux = aux_reads(c)[4:]
            k.wait_lg(("f", ks))
            mf = []
            for sg in range(3):
                A, B = (wf[b][sg], xf[b]) if types[sg] == "k" else (xf[b], wf[b][sg])
                mf.append(lambda sg=sg, A=A, B=B: k.I("v_mfma_f32_32x32x16_bf16", vr(acc[sg], 16), vr(A, 4), vr(B, 4), 0 if ks == 0 else vr(acc[sg], 16)))
            fl = fill + aux
            if ks == 27:
                def fin1():
                    k.I("s_mov_b32", "exec_lo", "0xffff")
                    k.I("s_mov_b32", "exec_hi", 0)
                    for nt in range(3):
                        k.lg("fin", "ds_add_f32", v(vcwa), v(cacc[nt]), mods=f"offset:{64 * nt}")
                    k.I("s_mov_b64", "exec", -1)
                def fin2():
                    for rg in range(2):
                        g_ = gacc[rg]
                        k.I("v_cndmask_b32", v(g_), v(g_), v(g_ + 1), sr(m1, 2))
                        k.I("v_cndmask_b32", v(g_), v(g_), v(g_ + 2), sr(m2, 2))
                        k.I("v_cndmask_b32", v(g_), v(g_), v(g_ + 3), sr(m3, 2))
                    k.I("s_mov_b32", "exec_lo", "0x00f0000f")
                    k.I("s_mov_b32", "exec_hi", "0xf0000f00")
                    for rg in range(2):
                        k.lg("fin", "ds_write_b32", v(vsqa), v(gacc[rg]), mods=f"offset:{64 * rg}")
                    k.I("s_mov_b64", "exec", -1)
                fl = [fin1, fin2]
            n = len(fl)
            cuts = [0, (n + 2) // 3, (2 * n + 2) // 3, n]
            for i in range(3):
                mf[i]()
                for f in fl[cuts[i]:cuts[i + 1]]: f()
            if j == 1 + (0 if c == 6 else 1):
                k.wait_lg(("g", c))
                for jj in range(4):
                    k.I("v_mfma_f32_16x16x32_bf16", vr(gacc[jj >> 1], 4), vr(xs[jj], 4), vr(xs[jj], 4), 0 if (c == 0 and (jj & 1) == 0) else vr(gacc[jj >> 1], 4))
            if j == 2 + (0 if c == 6 else 1):
                k.wait_lg(("cw", c))
                for nt in range(3):
                    k.I("v_mfma_f32_16x16x32_bf16", vr(cacc[nt], 4), vr(ones, 4), vr(wf2[nt], 4), 0 if c == 0 else vr(cacc[nt], 4))
            if j == 1 and c < 6:
                k.I("s_barrier")
        stp.stamp(2)
        k.vnext = vmark
        sq = k.valloc(2); rl = k.valloc(2); nml = k.valloc(2)
        cwb = [k.valloc(16, 4) for _ in range(3)]
        rv = k.valloc(16, 4); nv = k.valloc(16, 4)
        k.lg("sq", "ds_read_b32", v(sq), v(vrow), mods=f"offset:{SQT - TBL}")
        if types[0] == "v":
            k.I("s_mov_b32", "exec_lo", hex(1 << 28))
            k.I("s_mov_b32", "exec_hi", hex(1 << 28))
            for q in range(4):
                k.lg("ms", "ds_write_b128", v(vh4w), vr(acc[0] + 4 * q, 4), mods=f"offset:{NMT - TBL + 32 * q}")
            k.I("s_mov_b64", "exec", -1)
            k.lg("msr", "ds_read_b32", v(nml + 1), v(vrow), mods=f"offset:{NMT - TBL}")
        k.wait_lg("fin")
        k.I("s_barrier")
        for sg in range(3):
            if types[sg] == "k":
                for q in range(4):
                    k.lg(("cw", sg), "ds_read_b128", vr(cwb[sg] + 4 * q, 4), v(vh4), mods=f"offset:{CWT - TBL + 112 * sg + 32 * q}")
            else:
                k.lg(("cw", sg), "ds_read_b32", v(cwb[sg]), v(vl31), mods=f"offset:{CWT - TBL + 112 * sg}")
        if types[0] == "k":
            k.I("v_mov_b32", v(nml), v(acc[0] + 12))
            k.I("v_mov_b32", v(nml + 1), v(acc[0] + 12))
            k.I("v_permlane32_swap_b32", v(nml), v(nml + 1))
        else:
            k.wait_lg("msr")
        k.I("v_mul_f32", v(nml), hex(f32(-1.0 / 448)), v(nml + 1))
        k.wait_lg("sq")
        k.I("v_mul_f32", v(sq), hex(f32(1.0 / 448)), v(sq))
        k.I("v_fma_f32", v(sq), f"-{v(nml)}", v(nml), v(sq))
        k.I("v_max_f32", v(sq), 0, v(sq))
        k.I("v_add_f32", v(sq), hex(f32(1e-5)), v(sq))
        k.I("v_rsq_f32", v(rl), v(sq))
        if "v" in types:
            k.lg("w", "ds_write_b32", v(vrow), v(nml), mods=f"offset:{NMT - TBL}")
            k.lg("w", "ds_write_b32", v(vrow), v(rl), mods=f"offset:{RT - TBL}")
            for q in range(4):
                k.lg("rv", "ds_read_b128", vr(rv + 4 * q, 4), v(vh4w), mods=f"offset:{RT - TBL + 32 * q}")
                k.lg("rv", "ds_read_b128", vr(nv + 4 * q, 4), v(vh4w), mods=f"offset:{NMT - TBL + 32 * q}")
        mk = k.salloc(2); mv = k.salloc(2)
        k.I("v_cmp_eq_u32", sr(mk, 2), 0, v(hh))
        k.I("v_cmp_gt_u32", sr(mv, 2), 28, v(l31))
        padv = k.valloc()
        k.I("v_mov_b32", v(padv), "0x3f803f80")
        k.I("v_cmp_eq_u32", "vcc", 28, v(l31))
        k.I("v_cndmask_b32", v(padv), 0, v(padv), "vcc")
        pks = [k.valloc(8, 4) for _ in range(2)]
        for sg in range(3):
            A = acc[sg]; pk = pks[sg & 1]
            k.wait_lg(("cw", sg))
            if types[sg] == "k":
                for j in range(8):
                    k.I("v_pk_fma_f32", vr(A + 2 * j, 2), vr(cwb[sg] + 2 * j, 2), vr(nml, 2), vr(A + 2 * j, 2), mods="op_sel_hi:[1,0,1]")
                for j in range(8):
                    k.I("v_pk_mul_f32", vr(A + 2 * j, 2), vr(A + 2 * j, 2), vr(rl, 2), mods="op_sel_hi:[1,0]")
                for j in range(8):
                    k.I("v_cvt_pk_bf16_f32", v(pk + j), v(A + 2 * j), v(A + 2 * j + 1))
                k.I("v_cndmask_b32", v(pk + 6), 0, v(pk + 6), sr(mk, 2))
                k.I("v_cndmask_b32", v(pk + 7), 0, v(pk + 7), sr(mk, 2))
                k.I("s_add_u32", s(soff), s(sb), hex(sg * 131072))
                k.I("buffer_store_dwordx4", vr(pk, 4), v(vq), sr(sWS, 4), s(soff), mods="offen")
                k.I("buffer_store_dwordx4", vr(pk + 4, 4), v(vq), sr(sWS, 4), s(soff), mods="offen offset:256")
            else:
                k.wait_lg("rv")
                for j in range(8):
                    k.I("v_pk_fma_f32", vr(A + 2 * j, 2), vr(nv + 2 * j, 2), vr(cwb[sg], 2), vr(A + 2 * j, 2), mods="op_sel_hi:[1,0,1]")
                for j in range(8):
                    k.I("v_pk_mul_f32", vr(A + 2 * j, 2), vr(A + 2 * j, 2), vr(rv + 2 * j, 2))
                for j in range(8):
                    k.I("v_cvt_pk_bf16_f32", v(pk + j), v(A + 2 * j), v(A + 2 * j + 1))
                for j in range(8):
                    k.I("v_cndmask_b32", v(pk + j), v(padv), v(pk + j), sr(mv, 2))
                k.I("s_add_u32", s(soff), s(sb), hex(sg * 131072))
                for q in range(4):
                    k.I("buffer_store_dwordx2", vr(pk + 2 * q, 2), v(vv_), sr(sWS, 4), s(soff), mods=f"offen offset:{(q >> 1) * 1024 + (q & 1) * 256}")
        stp.stamp(3)
        k.I("s_endpgm")
    snext0 = k.snext
    variant("kkk")
    k.L(labB); k.snext = snext0
    variant("kkv")
    k.L(labC); k.snext = snext0
    variant("vvv")
    k.L(done)
    k.I("s_endpgm")
    k.lds = lds; k.threads = 512; k.grid = 256
    return k
```

```python
import os, struct, math
from asmlib import *
from layout import *
WS_SIZE = 0x10000000
def f32(x): return struct.unpack("<I", struct.pack("<f", x))[0]

def srd(k, dst, base, size):
    k.I("s_mov_b32", s(dst), s(base))
    k.I("s_and_b32", s(dst + 1), s(base + 1), "0xffff")
    k.I("s_mov_b32", s(dst + 2), hex(size) if isinstance(size, int) else size)
    k.I("s_mov_b32", s(dst + 3), "0x20000")

def gen_k2(Stamper):
    k = Kernel("k2_attn_kernel")
    k.snext = 4; k.vnext = 1
    KREG = 0; VREG = 24576
    lds = 49152
    done = k.newlabel("done")
    k.I("s_cmp_ge_u32", "s2", 256)
    k.I("s_cbranch_scc1", done)
    pWS = k.salloc(2); pPo = k.salloc(2); pPi = k.salloc(2)
    k.I("s_load_dwordx2", sr(pWS, 2), "s[0:1]", 80)
    k.I("s_load_dwordx2", sr(pPo, 2), "s[0:1]", 16)
    k.I("s_load_dwordx2", sr(pPi, 2), "s[0:1]", 32)
    sWS = k.salloc(4); sPo = k.salloc(4); sPi = k.salloc(4)
    swave = k.salloc(); srb = k.salloc(); shd = k.salloc(); st0 = k.salloc(); st1 = k.salloc(); soff = k.salloc()
    lane = k.valloc(); t0 = k.valloc(); t1 = k.valloc(); l15 = k.valloc(); gg = k.valloc()
    k.I("v_lshrrev_b32", v(t0), 6, "v0")
    k.I("v_and_b32", v(lane), 63, "v0")
    k.I("v_readfirstlane_b32", s(swave), v(t0))
    map_rb_hd(k, srb, shd, st0, st1)
    stp = Stamper(k, 1, sWS, swave)
    v16 = k.valloc()
    k.I("v_lshlrev_b32", v(v16), 4, v(lane))
    sb = k.salloc(); sm = k.salloc(); s16q = k.salloc()
    k.I("s_lshl_b32", s(sb), s(shd), 17)
    k.I("s_lshl_b32", s(st0), s(srb), 13)
    k.I("s_add_u32", s(sb), s(sb), s(st0))
    k.I("s_mul_i32", s(sm), s(swave), 3072)
    k.I("s_lshl_b32", s(s16q), s(srb), 3)
    k.I("s_add_u32", s(s16q), s(s16q), s(swave))
    k.I("s_waitcnt", "lgkmcnt(0)")
    srd(k, sWS, pWS, WS_SIZE)
    srd(k, sPo, pPo, 448 * 896)
    srd(k, sPi, pPi, 448 * 3584)
    qf = k.valloc(4)
    k.I("s_lshl_b32", s(st0), s(swave), 10)
    k.I("s_add_u32", s(st0), s(st0), s(sb))
    k.I("s_add_u32", s(soff), s(st0), hex(Q_OFF))
    k.vm("q", "buffer_load_dwordx4", vr(qf, 4), v(v16), sr(sWS, 4), s(soff), mods="offen")
    k.I("s_add_u32", s(st1), s(sb), s(sm))
    for (reg, off) in ((KREG, K_OFF), (VREG, V_OFF)):
        for i in range(3):
            k.I("s_add_u32", s(soff), s(st1), hex(off - 16384 + i * 1024))
            k.I("s_add_u32", "m0", s(sm), hex(reg + i * 1024))
            k.vm("k" if reg == KREG else "v", "buffer_load_dwordx4", v(v16), sr(sWS, 4), s(soff), mods="offen lds")
    sidx2 = k.salloc()
    k.I("s_lshr_b32", s(sidx2), "s2", 3)
    code_prefetch(k, "k3_wo_kernel", sidx2, st0)
    stp.stamp(0)
    k.I("v_and_b32", v(l15), 15, v(lane))
    k.I("v_lshrrev_b32", v(gg), 4, v(lane))
    M = [k.salloc(2) for _ in range(4)]
    k.I("v_lshlrev_b32", v(t0), 2, v(gg))
    for i in range(4):
        k.I("v_add_u32", v(t1), i, v(t0))
        k.I("v_cmp_gt_u32", sr(M[i], 2), v(t1), v(l15))
    aK = k.valloc(); aV = k.valloc()
    k.I("s_lshl_b32", s(st0), s(swave), 10)
    k.I("v_add_u32", v(aK), s(st0), v(v16))
    k.I("v_lshlrev_b32", v(aV), 3, v(lane))
    k.I("s_add_u32", s(st0), s(st0), VREG)
    k.I("v_add_u32", v(aV), s(st0), v(aV))
    S = k.valloc(68, 4)
    kf = [k.valloc(4) for _ in range(6)]
    neg = k.valloc()
    k.I("v_mov_b32", v(neg), hex(f32(-1e30)))
    k.wait_vm(["q", "k"])
    k.I("s_barrier")
    stp.stamp(1)
    NKF = 6
    for j in range(min(NKF, 17)):
        k.lg(("k", j), "ds_read_b128", vr(kf[j % NKF], 4), v(aK), mods=f"offset:{j * 1024}")
    for j in range(17):
        k.wait_lg(("k", j))
        k.I("v_mfma_f32_16x16x32_bf16", vr(S + 4 * j, 4), vr(kf[j % NKF], 4), vr(qf, 4), 0)
        if j + NKF < 17:
            k.lg(("k", j + NKF), "ds_read_b128", vr(kf[j % NKF], 4), v(aK), mods=f"offset:{(j + NKF) * 1024}")
    if os.environ.get("PFK2", "1") == "1":
        vd2 = k.valloc(2)
        k.I("s_lshl_b32", s(st0), s(sidx2), 3)
        k.I("s_add_u32", s(st0), s(st0), s(swave))
        k.I("s_mul_i32", s(st1), s(st0), 13 * 128)
        k.I("v_lshlrev_b32", v(t0), 7, v(lane))
        k.I("v_mov_b32", v(t1), "0x7fffff00")
        k.I("v_cmp_gt_u32", "vcc", 13, v(lane))
        k.I("v_cndmask_b32", v(t0), v(t1), v(t0), "vcc")
        k.vm("pf", "buffer_load_dword", v(vd2), v(t0), sr(sPo, 4), s(st1), mods="offen")
        k.I("s_mul_i32", s(st1), s(st0), 25)
        k.I("v_add_u32", v(t0), s(st1), v(lane))
        k.I("v_mul_u32_u24", v(t1), 37450, v(t0))
        k.I("v_lshrrev_b32", v(t1), 19, v(t1))
        k.I("v_mul_u32_u24", v(vd2 + 1), 14, v(t1))
        k.I("v_sub_u32", v(t0), v(t0), v(vd2 + 1))
        k.I("v_mul_u32_u24", v(t1), 3584, v(t1))
        k.I("v_lshl_add_u32", v(t1), v(t0), 7, v(t1))
        k.I("v_add_u32", v(vd2 + 1), 1792 - 896, v(t1))
        k.I("v_cmp_le_u32", "vcc", 7, v(t0))
        k.I("v_cndmask_b32", v(t1), v(t1), v(vd2 + 1), "vcc")
        k.I("v_mov_b32", v(t0), "0x7fffff00")
        k.I("v_cmp_gt_u32", "vcc", 25, v(lane))
        k.I("v_cndmask_b32", v(t1), v(t0), v(t1), "vcc")
        k.I("s_and_b32", s(st1), "s2", 1)
        k.I("s_mul_i32", s(st1), s(st1), 896)
        k.vm("pf", "buffer_load_dword", v(vd2 + 1), v(t1), sr(sPi, 4), s(st1), mods="offen")
    vf = k.valloc(9 * 2 * 4, 4)
    def vread(kp):
        for dt in range(2):
            for beta in range(2):
                tile = min(2 * kp + beta, 16)
                k.lg(("v", kp), "ds_read_b64", vr(vf + (kp * 2 + dt) * 4 + 2 * beta, 2), v(aV), mods=f"offset:{tile * 1024 + dt * 512}")
    for i in range(4):
        k.I("v_cndmask_b32", v(S + i), v(neg), v(S + i), sr(M[i], 2))
        k.I("v_cndmask_b32", v(S + 64 + i), v(S + 64 + i), v(neg), sr(M[i], 2))
    nofix = k.newlabel("nofix")
    k.I("s_cmp_ge_u32", s(s16q), 16)
    k.I("s_cbranch_scc1", nofix)
    k.I("s_sub_u32", s(st0), 16, s(s16q))
    for j in range(16):
        lab = k.newlabel("sk")
        k.I("s_cmp_le_u32", s(st0), j)
        k.I("s_cbranch_scc1", lab)
        for i in range(4): k.I("v_mov_b32", v(S + 4 * j + i), v(neg))
        k.L(lab)
    k.L(nofix)
    mx = k.valloc(4)
    for c in range(4):
        k.I("v_max3_f32", v(mx + c), v(S + c * 17), v(S + c * 17 + 1), v(S + c * 17 + 2))
    for r in range(7):
        for c in range(4):
            b = c * 17 + 3 + 2 * r
            k.I("v_max3_f32", v(mx + c), v(mx + c), v(S + b), v(S + b + 1))
    k.I("v_max3_f32", v(mx), v(mx), v(mx + 1), v(mx + 2))
    k.I("v_max_f32", v(mx), v(mx), v(mx + 3))
    for sw in ("v_permlane16_swap_b32", "v_permlane32_swap_b32"):
        k.I("v_mov_b32", v(mx + 1), v(mx))
        k.I(sw, v(mx), v(mx + 1))
        k.I("v_max_f32", v(mx), v(mx), v(mx + 1))
    cs = 28 ** -0.5 * math.log2(math.e)
    sc = k.salloc()
    k.I("s_mov_b32", s(sc), hex(f32(cs)))
    k.I("v_mul_f32", v(mx), hex(f32(-cs)), v(mx))
    k.wait_vm("v")
    k.I("s_barrier")
    for kp in range(4): vread(kp)
    P = k.valloc(36, 4)
    k.I("v_mov_b32", v(P + 34), 0); k.I("v_mov_b32", v(P + 35), 0)
    O = [k.valloc(4), k.valloc(4)]
    def softmax_tile(j):
        for i in range(4): k.I("v_fma_f32", v(S + 4 * j + i), v(S + 4 * j + i), s(sc), v(mx))
        for i in range(4): k.I("v_exp_f32", v(S + 4 * j + i), v(S + 4 * j + i))
    def pack_tile(j):
        k.I("v_cvt_pk_bf16_f32", v(P + 2 * j), v(S + 4 * j), v(S + 4 * j + 1))
        k.I("v_cvt_pk_bf16_f32", v(P + 2 * j + 1), v(S + 4 * j + 2), v(S + 4 * j + 3))
    for kp in range(9):
        tiles = [2 * kp, 2 * kp + 1] if kp < 8 else [16]
        for j in tiles: softmax_tile(j)
        for j in tiles: pack_tile(j)
        if kp == 1:
            for q in range(4, 7): vread(q)
        if kp == 4:
            for q in range(7, 9): vread(q)
        if kp >= 1:
            q = kp - 1
            k.wait_lg(("v", q))
            for dt in range(2):
                k.I("v_mfma_f32_16x16x32_bf16", vr(O[dt], 4), vr(vf + (q * 2 + dt) * 4, 4), vr(P + 4 * q, 4), 0 if q == 0 else vr(O[dt], 4))
    k.wait_lg(("v", 8))
    for dt in range(2):
        k.I("v_mfma_f32_16x16x32_bf16", vr(O[dt], 4), vr(vf + (8 * 2 + dt) * 4, 4), vr(P + 32, 4), vr(O[dt], 4))
    la = k.valloc(); lb = k.valloc()
    k.I("v_mov_b32", v(la), v(O[1])); k.I("v_mov_b32", v(lb), v(O[1]))
    k.I("v_permlane32_swap_b32", v(la), v(lb))
    k.I("v_mov_b32", v(la), v(lb))
    k.I("v_permlane16_swap_b32", v(la), v(lb))
    k.I("v_rcp_f32", v(lb), v(lb))
    for dt in range(2):
        for i in range(4): k.I("v_mul_f32", v(O[dt] + i), v(O[dt] + i), v(lb))
    pk = k.valloc(4)
    for dt in range(2):
        k.I("v_cvt_pk_bf16_f32", v(pk + 2 * dt), v(O[dt]), v(O[dt] + 1))
        k.I("v_cvt_pk_bf16_f32", v(pk + 2 * dt + 1), v(O[dt] + 2), v(O[dt] + 3))
    k.I("v_cmp_gt_u32", "vcc", 3, v(gg))
    k.I("v_cndmask_b32", v(pk + 2), 0, v(pk + 2), "vcc")
    k.I("v_cndmask_b32", v(pk + 3), 0, v(pk + 3), "vcc")
    vo = k.valloc()
    k.I("s_and_b32", s(st0), s(swave), 1)
    k.I("s_lshl_b32", s(st0), s(st0), 8)
    k.I("v_lshlrev_b32", v(vo), 4, v(l15))
    k.I("v_add_u32", v(vo), s(st0), v(vo))
    k.I("v_lshrrev_b32", v(t0), 1, v(gg))
    k.I("v_lshl_add_u32", v(vo), v(t0), 9, v(vo))
    k.I("v_and_b32", v(t0), 1, v(gg))
    k.I("v_lshl_add_u32", v(vo), v(t0), 3, v(vo))
    k.I("s_lshl_b32", s(st0), s(srb), 2)
    k.I("s_lshr_b32", s(st1), s(swave), 1)
    k.I("s_add_u32", s(st0), s(st0), s(st1))
    k.I("s_lshl_b32", s(st0), s(st0), 15)
    k.I("s_lshl_b32", s(st1), s(shd), 11)
    k.I("s_add_u32", s(st0), s(st0), s(st1))
    k.I("s_add_u32", s(soff), s(st0), hex(O_OFF))
    for dt in range(2):
        k.I("buffer_store_dwordx2", vr(pk + 2 * dt, 2), v(vo), sr(sWS, 4), s(soff), mods=f"offen offset:{dt * 1024}")
    stp.stamp(2)
    k.L(done)
    k.I("s_endpgm")
    k.lds = lds; k.threads = 512; k.grid = 256
    return k


def code_prefetch(k, nxt, sidx, tmp_s, tid="v0"):
    if os.environ.get("PFC", "1") != "1": return
    pp = k.salloc(2); sP = k.salloc(4); vT = k.valloc(); vd = k.valloc()
    lab = k.newlabel("pc")
    k.I("s_getpc_b64", sr(pp, 2))
    k.L(lab)
    k.I("s_add_u32", s(pp), s(pp), f"{nxt}-{lab}")
    k.I("s_addc_u32", s(pp + 1), s(pp + 1), 0)
    srd(k, sP, pp, f"{nxt}_end-{nxt}")
    k.I("s_lshl_b32", s(tmp_s), s(sidx), 8)
    k.I("v_add_u32", v(vT), s(tmp_s), tid)
    k.I("v_lshlrev_b32", v(vT), 7, v(vT))
    k.vm("pfc", "buffer_load_dword", v(vd), v(vT), sr(sP, 4), 0, mods="offen")

def l2_prefetch(k, kernarg_off, nbytes, vT128, nthreads, tmp_s):
    if os.environ.get("PFT", "1") != "1": return
    pp = k.salloc(2); sP = k.salloc(4)
    k.I("s_load_dwordx2", sr(pp, 2), "s[0:1]", kernarg_off)
    k.I("s_waitcnt", "lgkmcnt(0)")
    srd(k, sP, pp, nbytes)
    n = -(-nbytes // (128 * nthreads))
    for i in range(n):
        vd = k.valloc()
        k.I("s_mov_b32", s(tmp_s), hex(i * nthreads * 128))
        k.vm("pft", "buffer_load_dword", v(vd), v(vT128), sr(sP, 4), s(tmp_s), mods="offen")

def mall_prefetch(k, kernarg_off, nbytes, first, per, nw, swave, lane, tmp_s, tv0, tv1, flag="PFM"):
    if os.environ.get(flag, "1") != "1": return
    pp = k.salloc(2); sP = k.salloc(4); vd = k.valloc()
    k.I("s_load_dwordx2", sr(pp, 2), "s[0:1]", kernarg_off)
    k.I("s_mul_i32", s(tmp_s), "s2", nw)
    k.I("s_add_u32", s(tmp_s), s(tmp_s), s(swave))
    k.I("s_mul_i32", s(tmp_s), s(tmp_s), per)
    k.I("s_add_u32", s(tmp_s), s(tmp_s), first)
    k.I("s_lshl_b32", s(tmp_s), s(tmp_s), 7)
    k.I("v_lshlrev_b32", v(tv0), 7, v(lane))
    k.I("v_mov_b32", v(tv1), "0x7fffff00")
    k.I("v_cmp_gt_u32", "vcc", per, v(lane))
    k.I("v_cndmask_b32", v(tv0), v(tv1), v(tv0), "vcc")
    k.I("s_waitcnt", "lgkmcnt(0)")
    k.lgq = []
    srd(k, sP, pp, nbytes)
    k.vm("pfm", "buffer_load_dword", v(vd), v(tv0), sr(sP, 4), s(tmp_s), mods="offen")

def map_rb_hd(k, srb, shd, st0, st1):
    if os.environ.get("MAP48", "1") == "1":
        k.I("s_and_b32", s(st0), "s2", 7)
        k.I("s_lshr_b32", s(st1), "s2", 3)
        k.I("s_and_b32", s(shd), s(st1), 7)
        k.I("s_lshr_b32", s(st1), s(st1), 3)
        k.I("s_lshr_b32", s(srb), s(st0), 1)
        k.I("s_lshl_b32", s(srb), s(srb), 2)
        k.I("s_add_u32", s(srb), s(srb), s(st1))
        k.I("s_and_b32", s(st0), s(st0), 1)
        k.I("s_lshl_b32", s(st0), s(st0), 3)
        k.I("s_add_u32", s(shd), s(shd), s(st0))
    else:
        k.I("s_and_b32", s(st0), "s2", 7)
        k.I("s_lshr_b32", s(st1), "s2", 3)
        k.I("s_and_b32", s(shd), s(st1), 15)
        k.I("s_lshr_b32", s(st1), s(st1), 4)
        k.I("s_lshl_b32", s(srb), s(st0), 1)
        k.I("s_add_u32", s(srb), s(srb), s(st1))

def rot_index(k, dst, srot, c, n):
    k.I("s_add_u32", s(dst), s(srot), c)
    k.I("s_cmp_ge_u32", s(dst), n)
    k.I("s_cselect_b32", "s3", n, 0)
    k.I("s_sub_u32", s(dst), s(dst), "s3")

ROTS = os.environ.get("ROT", "1")
def rot_on(n): return str(n) in ROTS

def common_start(k, nwg):
    k.snext = 4; k.vnext = 1
    done = k.newlabel("done")
    k.I("s_cmp_ge_u32", "s2", nwg)
    k.I("s_cbranch_scc1", done)
    R = dict(done=done)
    R["swave"] = k.salloc(); R["st0"] = k.salloc(); R["st1"] = k.salloc(); R["soff"] = k.salloc()
    R["lane"] = k.valloc(); R["t0"] = k.valloc(); R["t1"] = k.valloc(); R["t2"] = k.valloc()
    k.I("v_lshrrev_b32", v(R["t0"]), 6, "v0")
    k.I("v_and_b32", v(R["lane"]), 63, "v0")
    k.I("v_readfirstlane_b32", s(R["swave"]), v(R["t0"]))
    return R

def interleave(k, mf, fl):
    n = len(fl); m = len(mf)
    cuts = [(i * n + m - 1) // m for i in range(m + 1)]
    cuts[-1] = n
    for i in range(m):
        mf[i]()
        for f in fl[cuts[i]:cuts[i + 1]]: f()

def stats_from_packed(k, P, n, accs, accq, tmp):
    for j in range(n):
        t = tmp[j % len(tmp)]
        k.I("v_lshlrev_b32", v(t), 16, v(P + j))
        k.I("v_and_b32", v(t + 1), "0xffff0000", v(P + j))
        if j == 0:
            k.I("v_pk_mul_f32", vr(accq, 2), vr(t, 2), vr(t, 2))
            k.I("v_mov_b32", v(accs), v(t)); k.I("v_mov_b32", v(accs + 1), v(t + 1))
        else:
            k.I("v_pk_add_f32", vr(accs, 2), vr(accs, 2), vr(t, 2))
            k.I("v_pk_fma_f32", vr(accq, 2), vr(t, 2), vr(t, 2), vr(accq, 2))
    k.I("v_add_f32", v(accs), v(accs), v(accs + 1))
    k.I("v_add_f32", v(accq), v(accq), v(accq + 1))
    for r_ in (accs, accq):
        k.I("v_mov_b32", v(r_ + 1), v(r_))
        k.I("v_permlane32_swap_b32", v(r_), v(r_ + 1))
        k.I("v_add_f32", v(r_), v(r_), v(r_ + 1))

def gen_k3(Stamper):
    k = Kernel("k3_wo_kernel")
    WREG = 0; OREG = 58368
    XT = OREG + 65536
    lds = XT + 8192
    R = common_start(k, 256)
    swave, st0, st1, soff, lane, t0, t1, t2 = (R[x] for x in ("swave", "st0", "st1", "soff", "lane", "t0", "t1", "t2"))
    pX = k.salloc(2); pWo = k.salloc(2); pWin = k.salloc(2); pWS = k.salloc(2)
    k.I("s_load_dwordx2", sr(pX, 2), "s[0:1]", 0)
    k.I("s_load_dwordx2", sr(pWo, 2), "s[0:1]", 16)
    k.I("s_load_dwordx2", sr(pWin, 2), "s[0:1]", 32)
    k.I("s_load_dwordx2", sr(pWS, 2), "s[0:1]", 80)
    sWS = k.salloc(4); sWo = k.salloc(4); sX = k.salloc(4)
    sj = k.salloc(); sidx = k.salloc(); srt = k.salloc(); snt = k.salloc(); sw3 = k.salloc()
    k.I("s_and_b32", s(sj), "s2", 7)
    k.I("s_lshr_b32", s(sidx), "s2", 3)
    k.I("s_and_b32", s(sw3), s(swave), 3)
    stp = Stamper(k, 2, sWS, swave)
    aux = k.newlabel("aux")
    k.I("s_cmp_ge_u32", s(sidx), 28)
    k.I("s_cbranch_scc1", aux)
    k.I("s_mul_i32", s(st0), s(sidx), 37)
    k.I("s_lshr_b32", s(st0), s(st0), 8)
    k.I("s_mul_i32", s(st1), s(st0), 7)
    k.I("s_sub_u32", s(snt), s(sidx), s(st1))
    k.I("s_lshl_b32", s(srt), s(sj), 2)
    k.I("s_add_u32", s(srt), s(srt), s(st0))
    comp = k.newlabel("compute")
    k.I("s_cmp_lt_u32", s(swave), 4)
    k.I("s_cbranch_scc1", comp)
    vsave = k.vnext
    if os.environ.get("PRIO_L"): k.I("s_setprio", int(os.environ["PRIO_L"]))
    v16 = k.valloc(); vWo = k.valloc()
    k.I("v_lshlrev_b32", v(v16), 4, v(lane))
    k.I("v_lshrrev_b32", v(t0), 3, v(lane))
    k.I("v_mul_u32_u24", v(t0), 896, v(t0))
    k.I("v_bfe_u32", v(t1), v(lane), 4, 1)
    k.I("v_lshlrev_b32", v(t1), 2, v(t1))
    k.I("v_and_b32", v(t2), 7, v(lane))
    k.I("v_xor_b32", v(t1), v(t1), v(t2))
    k.I("v_lshl_add_u32", v(vWo), v(t1), 4, v(t0))
    sOb = k.salloc(); sWb = k.salloc(); smO = k.salloc(); smW = k.salloc()
    k.I("s_lshl_b32", s(sOb), s(srt), 16)
    k.I("s_lshl_b32", s(st0), s(sw3), 10)
    k.I("s_add_u32", s(sOb), s(sOb), s(st0))
    k.I("s_add_u32", s(sOb), s(sOb), hex(O_OFF))
    k.I("s_add_u32", s(smO), s(st0), OREG)
    k.I("s_mul_i32", s(sWb), s(sw3), 8 * 896)
    k.I("s_lshl_b32", s(st1), s(snt), 7)
    k.I("s_add_u32", s(sWb), s(sWb), s(st1))
    k.I("s_add_u32", s(smW), s(st0), WREG)
    def issue(c):
        for r2 in range(2):
            k.I("s_add_u32", s(soff), s(sOb), hex(r2 * 32768 + c * 4096))
            k.I("s_add_u32", "m0", s(smO), hex(r2 * 32768 + c * 4096))
            k.vm(("S", c), "buffer_load_dwordx4", v(v16), sr(sWS, 4), s(soff), mods="offen lds")
        for i in range(2):
            k.I("s_add_u32", s(soff), s(sWb), hex((56 * c + 32 * i) * 896))
            k.I("s_add_u32", "m0", s(smW), hex((56 * c + 32 * i) * 128))
            k.vm(("S", c), "buffer_load_dwordx4", v(vWo), sr(sWo, 4), s(soff), mods="offen lds")
    k.I("s_waitcnt", "lgkmcnt(0)")
    srd(k, sWS, pWS, WS_SIZE)
    srd(k, sWo, pWo, 448 * 896)
    vXo = k.valloc(); sXb = k.salloc(); smX = k.salloc()
    k.I("v_lshrrev_b32", v(t0), 3, v(lane))
    k.I("v_and_b32", v(t1), 7, v(lane))
    k.I("v_xor_b32", v(t1), v(t1), v(t0))
    k.I("v_mul_u32_u24", v(t0), 896, v(t0))
    k.I("v_lshl_add_u32", v(vXo), v(t1), 4, v(t0))
    k.I("s_lshl_b32", s(st0), s(srt), 6)
    k.I("s_lshl_b32", s(st1), s(sw3), 4)
    k.I("s_add_u32", s(st0), s(st0), s(st1))
    k.I("s_mul_i32", s(sXb), s(st0), 896)
    k.I("s_lshl_b32", s(st1), s(snt), 7)
    k.I("s_add_u32", s(sXb), s(sXb), s(st1))
    k.I("s_lshl_b32", s(smX), s(sw3), 11)
    k.I("s_add_u32", s(smX), s(smX), XT)
    srd(k, sX, pX, 2048 * 896)
    LA = 3
    for c in range(LA): issue(c)
    for c in range(8):
        k.wait_vm(("S", c))
        k.I("s_barrier")
        if c + LA < 8: issue(c + LA)
        if c + LA == 7:
            for i in range(2):
                k.I("s_add_u32", s(soff), s(sXb), hex(i * 8 * 896))
                k.I("s_add_u32", "m0", s(smX), hex(i * 1024))
                k.vm(("S", 7), "buffer_load_dwordx4", v(vXo), sr(sX, 4), s(soff), mods="offen lds")
    k.I("s_endpgm")
    k.L(comp)
    if os.environ.get("PRIO_C"): k.I("s_setprio", int(os.environ["PRIO_C"]))
    k.vnext = vsave; k.vmq = []; k.lgq = []
    l31 = k.valloc(); hh = k.valloc()
    k.I("v_and_b32", v(l31), 31, v(lane))
    k.I("v_lshrrev_b32", v(hh), 5, v(lane))
    srh = k.salloc(); snh = k.salloc(); sst = k.salloc(); sntile = k.salloc()
    k.I("s_and_b32", s(srh), s(swave), 1)
    k.I("s_lshr_b32", s(snh), s(swave), 1)
    k.I("s_lshl_b32", s(sst), s(srt), 1)
    k.I("s_add_u32", s(sst), s(sst), s(srh))
    k.I("s_lshl_b32", s(sntile), s(snt), 1)
    k.I("s_add_u32", s(sntile), s(sntile), s(snh))
    xr = k.valloc(8, 4); vxa = k.valloc(4)
    k.I("s_lshl_b32", s(st0), s(srh), 5)
    k.I("v_add_u32", v(t0), s(st0), v(l31))
    k.I("v_and_b32", v(t1), 7, v(t0))
    k.I("v_lshlrev_b32", v(t0), 7, v(t0))
    k.I("v_lshl_add_u32", v(t0), v(hh), 3, v(t0))
    k.I("v_add_u32", v(t0), XT, v(t0))
    k.I("s_lshl_b32", s(st0), s(snh), 2)
    for q in range(4):
        k.I("s_add_u32", s(st1), s(st0), q)
        k.I("v_xor_b32", v(t2), s(st1), v(t1))
        k.I("v_lshl_add_u32", v(vxa + q), v(t2), 4, v(t0))
    k.I("s_waitcnt", "lgkmcnt(0)")
    srd(k, sWS, pWS, WS_SIZE)
    code_prefetch(k, "k4_win_kernel", sidx, st0)
    stp.stamp(0)
    aO = k.valloc(); vW = k.valloc()
    k.I("v_lshlrev_b32", v(aO), 4, v(lane))
    k.I("s_lshl_b32", s(st0), s(srh), 15)
    k.I("s_add_u32", s(st0), s(st0), OREG)
    k.I("v_add_u32", v(aO), s(st0), v(aO))
    k.I("v_bfe_u32", v(t0), v(lane), 2, 2)
    k.I("v_lshl_add_u32", v(t0), v(hh), 3, v(t0))
    k.I("v_lshlrev_b32", v(vW), 7, v(t0))
    k.I("v_bfe_u32", v(t0), v(lane), 4, 1)
    k.I("v_lshlrev_b32", v(t0), 1, v(t0))
    k.I("v_bfe_u32", v(t1), v(lane), 1, 1)
    k.I("v_add_u32", v(t0), v(t0), v(t1))
    k.I("s_lshl_b32", s(st0), s(snh), 2)
    k.I("v_add_u32", v(t0), s(st0), v(t0))
    k.I("v_bfe_u32", v(t1), v(lane), 3, 1)
    k.I("v_lshlrev_b32", v(t1), 2, v(t1))
    k.I("v_xor_b32", v(t0), v(t0), v(t1))
    k.I("v_lshl_add_u32", v(vW), v(t0), 4, v(vW))
    k.I("v_and_b32", v(t0), 1, v(lane))
    k.I("v_lshl_add_u32", v(vW), v(t0), 3, v(vW))
    acc = k.valloc(16, 4)
    NB = 3
    of = [k.valloc(4) for _ in range(NB)]; wf = [k.valloc(4) for _ in range(NB)]
    def rl(ks):
        b = ks % NB
        out = [lambda: k.lg(("f", ks), "ds_read_b128", vr(of[b], 4), v(aO), mods=f"offset:{ks * 1024}")]
        for beta in range(2):
            o = (28 * (ks >> 1) + 16 * (ks & 1) + 4 * beta) * 128
            out.append(lambda o=o, beta=beta: k.lg(("f", ks), "ds_read_b64_tr_b16", vr(wf[b] + 2 * beta, 2), v(vW), mods=f"offset:{o}"))
        return out
    k.I("s_barrier")
    stp.stamp(1)
    for f in rl(0) + rl(1): f()
    for ks in range(32):
        c, j = ks // 4, ks % 4
        b = ks % NB
        k.wait_lg(("f", ks))
        k.I("v_mfma_f32_32x32x16_bf16", vr(acc, 16), vr(wf[b], 4), vr(of[b], 4), 0 if ks == 0 else vr(acc, 16))
        if j == 1 and c < 7: k.I("s_barrier")
        if ks + 2 < 32 and not (j == 1 and False):
            pass
        nxt = ks + 2
        if nxt < 32:
            for f in rl(nxt): f()
    EOF_MARK = None
    stp.stamp(2)
    for q in range(4): k.I("ds_read_b64", vr(xr + 2 * q, 2), v(vxa + q))
    k.I("s_waitcnt", "lgkmcnt(0)")
    k.lgq = []
    tmp = [k.valloc(2) for _ in range(4)]
    for q in range(4):
        for d in range(2):
            t = tmp[(2 * q + d) % 4]
            k.I("v_lshlrev_b32", v(t), 16, v(xr + 2 * q + d))
            k.I("v_and_b32", v(t + 1), "0xffff0000", v(xr + 2 * q + d))
            k.I("v_pk_add_f32", vr(acc + 4 * q + 2 * d, 2), vr(acc + 4 * q + 2 * d, 2), vr(t, 2))
    P = k.valloc(8, 4)
    for j in range(8): k.I("v_cvt_pk_bf16_f32", v(P + j), v(acc + 2 * j), v(acc + 2 * j + 1))
    v16 = k.valloc()
    k.I("v_lshlrev_b32", v(v16), 4, v(lane))
    k.I("s_mul_i32", s(soff), s(sst), 28 * 1024)
    k.I("s_lshl_b32", s(st0), s(sntile), 11)
    k.I("s_add_u32", s(soff), s(soff), s(st0))
    k.I("s_add_u32", s(soff), s(soff), hex(H_OFF))
    k.I("buffer_store_dwordx4", vr(P, 4), v(v16), sr(sWS, 4), s(soff), mods="offen")
    k.I("buffer_store_dwordx4", vr(P + 4, 4), v(v16), sr(sWS, 4), s(soff), mods="offen offset:1024")
    accs = k.valloc(2); accq = k.valloc(2)
    stats_from_packed(k, P, 8, accs, accq, tmp)
    k.I("v_mov_b32", v(accs + 1), v(accq))
    vh = k.valloc()
    k.I("v_lshlrev_b32", v(vh), 3, v(l31))
    k.I("s_mul_i32", s(soff), s(sst), 32 * 112)
    k.I("s_lshl_b32", s(st0), s(sntile), 8)
    k.I("s_add_u32", s(soff), s(soff), s(st0))
    k.I("s_add_u32", s(soff), s(soff), hex(HS_OFF))
    k.I("s_mov_b32", "exec_hi", 0)
    k.I("buffer_store_dwordx2", vr(accs, 2), v(vh), sr(sWS, 4), s(soff), mods="offen")
    stp.stamp(3)
    k.I("s_endpgm")
    k.L(aux)
    k.vnext = vsave; k.vmq = []; k.lgq = []
    sa = k.salloc(); sWin = k.salloc(4)
    k.I("s_sub_u32", s(sa), s(sidx), 28)
    k.I("s_lshl_b32", s(sa), s(sa), 3)
    k.I("s_add_u32", s(sa), s(sa), s(sj))
    k.I("s_waitcnt", "lgkmcnt(0)")
    srd(k, sWS, pWS, WS_SIZE)
    ff = k.valloc(4)
    for i in range(4): k.I("v_mov_b32", v(ff + i), -1)
    k.I("v_lshlrev_b32", v(t1), 4, "v0")
    k.I("v_mov_b32", v(t2), "0x7fffff00")
    k.I("v_cmp_gt_u32", "vcc", 448, "v0")
    k.I("v_cndmask_b32", v(t1), v(t2), v(t1), "vcc")
    k.I("s_mul_i32", s(st0), s(sa), 7168)
    k.I("s_add_u32", s(st0), s(st0), hex(EX_OFF))
    if os.environ.get('K4V', 'b') != 'c':
        k.I("buffer_store_dwordx4", vr(ff, 4), v(t1), sr(sWS, 4), s(st0), mods="offen")
    else:
        k.I("s_mul_i32", s(st0), s(sa), 14336)
        k.I("s_add_u32", s(st0), s(st0), hex(EX2_OFF))
        k.I("buffer_store_dwordx4", vr(ff, 4), v(t1), sr(sWS, 4), s(st0), mods="offen")
        k.I("s_add_u32", s(st0), s(st0), 7168)
        k.I("buffer_store_dwordx4", vr(ff, 4), v(t1), sr(sWS, 4), s(st0), mods="offen")
    zf = k.valloc(4)
    for i in range(4): k.I("v_mov_b32", v(zf + i), 0)
    k.I("v_lshlrev_b32", v(t1), 4, "v0")
    k.I("v_mov_b32", v(t2), "0x7fffff00")
    k.I("v_cmp_gt_u32", "vcc", 32, "v0")
    k.I("v_cndmask_b32", v(t1), v(t2), v(t1), "vcc")
    k.I("s_lshl_b32", s(st0), s(sa), 9)
    k.I("s_add_u32", s(st0), s(st0), hex(FL_OFF))
    k.I("buffer_store_dwordx4", vr(zf, 4), v(t1), sr(sWS, 4), s(st0), mods="offen")
    srd(k, sWin, pWin, 448 * 3584)
    def win_prefetch():
        if os.environ.get("PFWIN", "k2") != "k3": return
        vTw = k.valloc(); vdw = k.valloc(7)
        k.I("s_sub_u32", s(st0), s(sidx), 28)
        k.I("s_lshl_b32", s(st0), s(st0), 9)
        k.I("v_add_u32", v(vTw), s(st0), "v0")
        k.I("v_lshlrev_b32", v(vTw), 7, v(vTw))
        for i in range(7):
            k.I("s_mov_b32", s(st0), hex(i * 2048 * 128))
            k.I("buffer_load_dword", v(vdw + i), v(vTw), sr(sWin, 4), s(st0), mods="offen")
    nocs = k.newlabel("nocs")
    k.I("s_cmp_ge_u32", s(sa), 28)
    k.I("s_cbranch_scc1", nocs)
    vg = k.valloc()
    k.I("v_lshrrev_b32", v(t0), 3, v(lane))
    k.I("v_mul_u32_u24", v(t0), 3584, v(t0))
    k.I("v_bfe_u32", v(t1), v(lane), 4, 1)
    k.I("v_lshlrev_b32", v(t1), 2, v(t1))
    k.I("v_and_b32", v(t2), 7, v(lane))
    k.I("v_xor_b32", v(t1), v(t1), v(t2))
    k.I("v_lshl_add_u32", v(vg), v(t1), 4, v(t0))
    sb = k.salloc(); sm = k.salloc()
    k.I("s_mul_i32", s(sb), s(swave), 56 * 3584)
    k.I("s_lshl_b32", s(st0), s(sa), 7)
    k.I("s_add_u32", s(sb), s(sb), s(st0))
    k.I("s_mul_i32", s(sm), s(swave), 56 * 128)
    for i in range(7):
        k.I("s_add_u32", s(soff), s(sb), hex(i * 8 * 3584))
        k.I("s_add_u32", "m0", s(sm), hex(i * 1024))
        k.I("buffer_load_dwordx4", v(vg), sr(sWin, 4), s(soff), mods="offen lds")
    win_prefetch()
    z = k.valloc(); TB = 57344
    k.I("v_mov_b32", v(z), 0)
    k.I("v_lshlrev_b32", v(t0), 2, v(lane))
    k.I("v_add_u32", v(t0), TB, v(t0))
    k.I("ds_write_b32", v(t0), v(z))
    gg = k.valloc(); vB = k.valloc(); ones = k.valloc(4)
    k.I("v_lshrrev_b32", v(gg), 4, v(lane))
    k.I("v_bfe_u32", v(t0), v(lane), 2, 2)
    k.I("v_lshl_add_u32", v(t0), v(gg), 3, v(t0))
    k.I("v_lshlrev_b32", v(vB), 7, v(t0))
    k.I("v_bfe_u32", v(t0), v(lane), 1, 1)
    k.I("s_lshl_b32", s(st0), s(sw3), 1)
    k.I("v_add_u32", v(t0), s(st0), v(t0))
    k.I("v_bfe_u32", v(t1), v(lane), 3, 1)
    k.I("v_lshlrev_b32", v(t1), 2, v(t1))
    k.I("v_xor_b32", v(t0), v(t0), v(t1))
    k.I("v_lshl_add_u32", v(vB), v(t0), 4, v(vB))
    k.I("v_and_b32", v(t0), 1, v(lane))
    k.I("v_lshl_add_u32", v(vB), v(t0), 3, v(vB))
    k.I("s_lshr_b32", s(st0), s(swave), 2)
    k.I("s_mul_i32", s(st0), s(st0), 224 * 128)
    k.I("v_add_u32", v(vB), s(st0), v(vB))
    for i in range(4): k.I("v_mov_b32", v(ones + i), "0x3f803f80")
    k.I("s_waitcnt", "vmcnt(7) lgkmcnt(0)" if os.environ.get("PFWIN", "k2") == "k3" else "vmcnt(0) lgkmcnt(0)")
    k.I("s_barrier")
    bf = [k.valloc(4) for _ in range(7)]
    for kk in range(7):
        for beta in range(2):
            k.I("ds_read_b64_tr_b16", vr(bf[kk] + 2 * beta, 2), v(vB), mods=f"offset:{(32 * kk + 4 * beta) * 128}")
    ca = k.valloc(4)
    k.I("s_waitcnt", "lgkmcnt(0)")
    for kk in range(7):
        k.I("v_mfma_f32_16x16x32_bf16", vr(ca, 4), vr(ones, 4), vr(bf[kk], 4), 0 if kk == 0 else vr(ca, 4))
    k.I("v_and_b32", v(t0), 15, v(lane))
    k.I("s_lshl_b32", s(st0), s(sw3), 6)
    k.I("s_add_u32", s(st0), s(st0), TB)
    k.I("v_lshlrev_b32", v(t0), 2, v(t0))
    k.I("v_add_u32", v(t0), s(st0), v(t0))
    k.I("s_mov_b32", "exec_lo", "0xffff")
    k.I("s_mov_b32", "exec_hi", 0)
    k.I("ds_add_f32", v(t0), v(ca))
    k.I("s_mov_b64", "exec", -1)
    k.I("s_waitcnt", "lgkmcnt(0)")
    k.I("s_barrier")
    k.I("s_cmp_lg_u32", s(swave), 0)
    k.I("s_cbranch_scc1", R["done"])
    k.I("v_lshlrev_b32", v(t0), 2, v(lane))
    k.I("v_add_u32", v(t1), TB, v(t0))
    k.I("ds_read_b32", v(z), v(t1))
    k.I("s_lshl_b32", s(st0), s(sa), 8)
    k.I("s_add_u32", s(st0), s(st0), hex(CW_OFF))
    k.I("s_waitcnt", "lgkmcnt(0)")
    k.I("buffer_store_dword", v(z), v(t0), sr(sWS, 4), s(st0), mods="offen")
    k.I("s_endpgm")
    k.L(nocs)
    win_prefetch()
    k.L(R["done"])
    k.I("s_endpgm")
    k.lds = lds; k.threads = 512; k.grid = 256
    return k


GELU_C0 = -2.0 * math.sqrt(2.0 / math.pi) * math.log2(math.e)
GELU_C1 = GELU_C0 * 0.044715

def gen_k4(Stamper):
    k = Kernel("k4_win_kernel")
    NS = 4; SLOT = 32768; TRB = NS * SLOT
    STB = TRB
    lds = TRB + 4096
    R = common_start(k, 256)
    swave, st0, st1, soff, lane, t0, t1, t2 = (R[x] for x in ("swave", "st0", "st1", "soff", "lane", "t0", "t1", "t2"))
    pWin = k.salloc(2); pWS = k.salloc(2)
    k.I("s_load_dwordx2", sr(pWin, 2), "s[0:1]", 32)
    k.I("s_load_dwordx2", sr(pWS, 2), "s[0:1]", 80)
    sWS = k.salloc(4); sWin = k.salloc(4)
    sj = k.salloc(); sidx = k.salloc(); srb = k.salloc(); sct = k.salloc(); sw3 = k.salloc()
    k.I("s_and_b32", s(sj), "s2", 7)
    k.I("s_lshr_b32", s(sidx), "s2", 3)
    k.I("s_and_b32", s(sw3), s(swave), 3)
    pfrole = k.newlabel("pfrole")
    k.I("s_cmp_ge_u32", s(sidx), 28)
    k.I("s_cbranch_scc1", pfrole)
    k.I("s_cmp_ge_u32", s(sidx), 14)
    k.I("s_cselect_b32", s(st0), 1, 0)
    k.I("s_mul_i32", s(st1), s(st0), 14)
    k.I("s_sub_u32", s(sct), s(sidx), s(st1))
    k.I("s_lshl_b32", s(srb), s(sj), 1)
    k.I("s_add_u32", s(srb), s(srb), s(st0))
    stp = Stamper(k, 3, sWS, swave)
    k.I("s_waitcnt", "lgkmcnt(0)")
    srd(k, sWS, pWS, WS_SIZE)
    comp = k.newlabel("compute")
    k.I("s_cmp_lt_u32", s(swave), 4)
    k.I("s_cbranch_scc1", comp)
    vsave = k.vnext
    if os.environ.get("PRIO_L"): k.I("s_setprio", int(os.environ["PRIO_L"]))
    srd(k, sWin, pWin, 448 * 3584)
    v16 = k.valloc(); vWo = k.valloc()
    k.I("v_lshlrev_b32", v(v16), 4, v(lane))
    k.I("v_lshrrev_b32", v(t0), 4, v(lane))
    k.I("v_lshlrev_b32", v(t1), 2, v(t0))
    k.I("v_and_b32", v(t2), 15, v(lane))
    k.I("v_xor_b32", v(t1), v(t1), v(t2))
    k.I("v_mul_u32_u24", v(vWo), 3584, v(t0))
    k.I("v_and_b32", v(t2), 7, v(t1))
    k.I("v_lshl_add_u32", v(vWo), v(t2), 4, v(vWo))
    k.I("v_add_u32", v(t2), 1792, v(vWo))
    k.I("v_cmp_gt_u32", "vcc", 8, v(t1))
    k.I("v_cndmask_b32", v(vWo), v(vWo), v(t2), "vcc")
    sHb = k.salloc(); sWb = k.salloc(); smH = k.salloc(); smW = k.salloc()
    k.I("s_lshl_b32", s(st0), s(srb), 2)
    k.I("s_add_u32", s(st0), s(st0), s(sw3))
    k.I("s_mul_i32", s(sHb), s(st0), 28 * 1024)
    k.I("s_add_u32", s(sHb), s(sHb), hex(H_OFF))
    k.I("s_lshl_b32", s(smH), s(sw3), 12)
    k.I("s_mul_i32", s(sWb), s(sw3), 16 * 3584)
    k.I("s_lshl_b32", s(st1), s(sct), 7)
    k.I("s_add_u32", s(sWb), s(sWb), s(st1))
    k.I("s_add_u32", s(smW), s(smH), 16384)
    def issue(c):
        sl = (c % NS) * SLOT
        for i in range(4):
            k.I("s_add_u32", s(soff), s(sHb), hex((4 * c + i) * 1024))
            k.I("s_add_u32", "m0", s(smH), hex(sl + i * 1024))
            k.vm(("S", c), "buffer_load_dwordx4", v(v16), sr(sWS, 4), s(soff), mods="offen lds")
        for i in range(4):
            k.I("s_add_u32", s(soff), s(sWb), hex((64 * c + 4 * i) * 3584))
            k.I("s_add_u32", "m0", s(smW), hex(sl + i * 1024))
            k.vm(("S", c), "buffer_load_dwordx4", v(vWo), sr(sWin, 4), s(soff), mods="offen lds")
    issue(0); issue(1)
    for c in range(7):
        k.wait_vm(("S", c))
        k.I("s_barrier")
        if c == 0: issue(2); issue(3)
        elif c + 2 < 7 and c >= 2: issue(c + 2)
    k.I("s_barrier")
    k.I("s_endpgm")
    k.L(comp)
    if os.environ.get("PRIO_C"): k.I("s_setprio", int(os.environ["PRIO_C"]))
    k.vnext = vsave; k.vmq = []; k.lgq = []
    l31 = k.valloc(); hh = k.valloc()
    k.I("v_and_b32", v(l31), 31, v(lane))
    k.I("v_lshrrev_b32", v(hh), 5, v(lane))
    srh = k.salloc(); sch = k.salloc(); sst = k.salloc()
    k.I("s_and_b32", s(srh), s(swave), 1)
    k.I("s_lshr_b32", s(sch), s(swave), 1)
    k.I("s_lshl_b32", s(sst), s(srb), 2)
    k.I("s_lshl_b32", s(st0), s(srh), 1)
    k.I("s_add_u32", s(sst), s(sst), s(st0))
    hs = [k.valloc(16, 4) for _ in range(2)]
    vh = k.valloc()
    k.I("v_mul_u32_u24", v(vh), 112, v(l31))
    k.I("v_lshl_add_u32", v(vh), v(hh), 6, v(vh))
    for t in range(2):
        k.I("s_add_u32", s(st0), s(sst), t)
        k.I("s_mul_i32", s(soff), s(st0), 32 * 112)
        k.I("s_add_u32", s(soff), s(soff), hex(HS_OFF))
        for i in range(4):
            k.vm("hs", "buffer_load_dwordx4", vr(hs[t] + 4 * i, 4), v(vh), sr(sWS, 4), s(soff), mods=f"offen offset:{16 * i}")
    cw = [k.valloc(16, 4) for _ in range(2)]
    vc = k.valloc()
    k.I("v_lshlrev_b32", v(vc), 4, v(hh))
    k.I("s_lshl_b32", s(st0), s(sct), 8)
    k.I("s_lshl_b32", s(st1), s(sch), 7)
    k.I("s_add_u32", s(st0), s(st0), s(st1))
    for z in range(2):
        k.I("s_add_u32", s(soff), s(st0), hex(CW_OFF + (896 * 4 if z == 0 else 0)))
        for q in range(4):
            k.vm("cw", "buffer_load_dwordx4", vr(cw[z] + 4 * q, 4), v(vc), sr(sWS, 4), s(soff), mods=f"offen offset:{32 * q}")
    if os.environ.get("PF2", "0") == "1":
        pp = k.salloc(2); sP = k.salloc(4); vT = k.valloc(); vd = k.valloc(2)
        k.I("s_load_dwordx2", sr(pp, 2), "s[0:1]", 40)
        k.I("s_lshl_b32", s(st0), s(sidx), 8)
        k.I("v_add_u32", v(vT), s(st0), "v0")
        k.I("s_waitcnt", "lgkmcnt(0)")
        srd(k, sP, pp, 2048 * 4096)
        k.I("s_lshr_b32", s(st0), s(sj), 1)
        k.I("s_lshl_b32", s(st0), s(st0), 21)
        k.I("s_and_b32", s(st1), s(sj), 1)
        k.I("s_lshl_b32", s(st1), s(st1), 11)
        k.I("s_add_u32", s(st0), s(st0), s(st1))
        for i in range(2):
            k.I("v_add_u32", v(t0), 7168 * i, v(vT))
            k.I("v_lshrrev_b32", v(t1), 4, v(t0))
            k.I("v_lshlrev_b32", v(t1), 12, v(t1))
            k.I("v_and_b32", v(t2), 15, v(t0))
            k.I("v_lshl_add_u32", v(t1), v(t2), 7, v(t1))
            if i == 1:
                k.I("v_mov_b32", v(t2), "0x7fffff00")
                k.I("v_cmp_gt_u32", "vcc", 8192, v(t0))
                k.I("v_cndmask_b32", v(t1), v(t2), v(t1), "vcc")
            k.vm("pf", "buffer_load_dword", v(vd + i), v(t1), sr(sP, 4), s(st0), mods="offen")
    code_prefetch(k, "k5_sp_kernel", sidx, st0)
    stp.stamp(0)
    aH = k.valloc(); vW = [k.valloc(), k.valloc()]
    k.I("v_lshlrev_b32", v(aH), 4, v(lane))
    k.I("s_lshl_b32", s(st0), s(srh), 13)
    k.I("v_add_u32", v(aH), s(st0), v(aH))
    k.I("v_bfe_u32", v(t0), v(lane), 2, 2)
    k.I("v_lshl_add_u32", v(t1), v(hh), 2, v(t0))
    k.I("v_lshlrev_b32", v(t1), 8, v(t1))
    k.I("v_add_u32", v(t1), 16384, v(t1))
    k.I("v_bfe_u32", v(t2), v(lane), 4, 1)
    k.I("v_lshlrev_b32", v(t2), 1, v(t2))
    k.I("v_bfe_u32", v(vW[0]), v(lane), 1, 1)
    k.I("v_add_u32", v(t2), v(t2), v(vW[0]))
    k.I("s_lshl_b32", s(st0), s(sch), 2)
    k.I("v_add_u32", v(t2), s(st0), v(t2))
    k.I("v_lshlrev_b32", v(t0), 2, v(t0))
    k.I("v_xor_b32", v(vW[0]), v(t2), v(t0))
    k.I("v_add_u32", v(t2), 8, v(t2))
    k.I("v_xor_b32", v(vW[1]), v(t2), v(t0))
    k.I("v_and_b32", v(t2), 1, v(lane))
    for z in range(2):
        k.I("v_lshl_add_u32", v(vW[z]), v(vW[z]), 4, v(t1))
        k.I("v_lshl_add_u32", v(vW[z]), v(t2), 3, v(vW[z]))
    aH2 = k.valloc(); vW2 = [k.valloc(), k.valloc()]
    k.I("v_add_u32", v(aH2), 65536, v(aH))
    for z in range(2): k.I("v_add_u32", v(vW2[z]), 65536, v(vW[z]))
    acc = [[k.valloc(16, 4) for _ in range(2)] for _ in range(2)]
    vmark = k.vnext
    NB = 3
    hf = [[k.valloc(4) for _ in range(2)] for _ in range(NB)]
    wf = [[k.valloc(4) for _ in range(2)] for _ in range(NB)]
    def rl(ks):
        c, j = ks // 4, ks % 4
        b = ks % NB
        sl = (c % NS) * SLOT
        hi = sl >= 65536
        so = sl - (65536 if hi else 0)
        out = []
        for t in range(2):
            out.append(lambda t=t: k.lg(("f", ks), "ds_read_b128", vr(hf[b][t], 4), v(aH2 if hi else aH), mods=f"offset:{so + t * 4096 + j * 1024}"))
        for z in range(2):
            for beta in range(2):
                o = so + (16 * j + 8 * beta) * 256
                out.append(lambda o=o, z=z, beta=beta: k.lg(("f", ks), "ds_read_b64_tr_b16", vr(wf[b][z] + 2 * beta, 2), v((vW2 if hi else vW)[z]), mods=f"offset:{o}"))
        return out
    k.I("s_barrier")
    stp.stamp(1)
    for f in rl(0) + rl(1): f()
    for ks in range(28):
        c, j = ks // 4, ks % 4
        b = ks % NB
        k.wait_lg(("f", ks))
        mf = []
        for z in range(2):
            for t in range(2):
                mf.append(lambda z=z, t=t: k.I("v_mfma_f32_32x32x16_bf16", vr(acc[z][t], 16), vr(wf[b][z], 4), vr(hf[b][t], 4), 0 if ks == 0 else vr(acc[z][t], 16)))
        if j == 2 and c < 6:
            pass
        fl = rl(ks + 2) if ks + 2 < 28 else []
        if j == 2 and ks + 2 < 28:
            k.I("s_barrier")
        interleave(k, mf, fl)
    stp.stamp(2)
    k.vnext = vmark
    k.wait_vm(["hs", "cw"])
    rr = [k.valloc(2) for _ in range(2)]; nm = [k.valloc(2) for _ in range(2)]
    c0r = [k.valloc(2) for _ in range(2)]; c1r = [k.valloc(2) for _ in range(2)]
    k.I("v_cmp_eq_u32", "vcc", 0, v(hh))
    for t in range(2):
        H = hs[t]
        for i in range(12, 16): k.I("v_cndmask_b32", v(H + i), 0, v(H + i), "vcc")
        for i in range(4): k.I("v_pk_add_f32", vr(H + 2 * i, 2), vr(H + 2 * i, 2), vr(H + 8 + 2 * i, 2))
        for i in range(2): k.I("v_pk_add_f32", vr(H + 2 * i, 2), vr(H + 2 * i, 2), vr(H + 4 + 2 * i, 2))
        k.I("v_pk_add_f32", vr(H, 2), vr(H, 2), vr(H + 2, 2))
        for e in range(2):
            k.I("v_mov_b32", v(H + 2), v(H + e))
            k.I("v_permlane32_swap_b32", v(H + e), v(H + 2))
            k.I("v_add_f32", v(H + e), v(H + e), v(H + 2))
        k.I("v_mul_f32", v(nm[t]), hex(f32(-1.0 / 448)), v(H))
        k.I("v_mul_f32", v(H + 1), hex(f32(1.0 / 448)), v(H + 1))
        k.I("v_fma_f32", v(H + 1), f"-{v(nm[t])}", v(nm[t]), v(H + 1))
        k.I("v_max_f32", v(H + 1), 0, v(H + 1))
        k.I("v_add_f32", v(H + 1), hex(f32(1e-5)), v(H + 1))
        k.I("v_rsq_f32", v(rr[t]), v(H + 1))
        k.I("v_mul_f32", v(c0r[t]), hex(f32(GELU_C0)), v(rr[t]))
        k.I("v_mul_f32", v(c1r[t]), v(rr[t]), v(rr[t]))
        k.I("v_mul_f32", v(c1r[t]), v(c1r[t]), v(rr[t]))
        k.I("v_mul_f32", v(c1r[t]), hex(f32(GELU_C1)), v(c1r[t]))
    norh = k.newlabel("norh")
    k.I("s_or_b32", s(st0), s(sct), s(sch))
    k.I("s_cmp_lg_u32", s(st0), 0)
    k.I("s_cbranch_scc1", norh)
    k.I("v_lshlrev_b32", v(t0), 2, v(l31))
    for t in range(2):
        k.I("s_add_u32", s(st0), s(sst), t)
        k.I("s_lshl_b32", s(st0), s(st0), 7)
        k.I("s_add_u32", s(st0), s(st0), hex(RH_OFF))
        k.I("buffer_store_dword", v(rr[t]), v(t0), sr(sWS, 4), s(st0), mods="offen")
    k.L(norh)
    tp = [k.valloc(2) for _ in range(4)]
    def gelu_tile(A, z, t):
        for j in range(8):
            k.I("v_pk_fma_f32", vr(A + 2 * j, 2), vr(cw[z] + 2 * j, 2), vr(nm[t], 2), vr(A + 2 * j, 2), mods="op_sel_hi:[1,0,1]")
        for j0 in range(0, 8, 4):
            for j in range(j0, j0 + 4):
                T = tp[j - j0]
                k.I("v_pk_mul_f32", vr(T, 2), vr(A + 2 * j, 2), vr(A + 2 * j, 2))
            for j in range(j0, j0 + 4):
                T = tp[j - j0]
                k.I("v_pk_fma_f32", vr(T, 2), vr(T, 2), vr(c1r[t], 2), vr(c0r[t], 2), mods="op_sel_hi:[1,0,0]")
            for j in range(j0, j0 + 4):
                T = tp[j - j0]
                k.I("v_pk_mul_f32", vr(T, 2), vr(T, 2), vr(A + 2 * j, 2))
            for j in range(j0, j0 + 4):
                T = tp[j - j0]
                k.I("v_exp_f32", v(T), v(T)); k.I("v_exp_f32", v(T + 1), v(T + 1))
            for j in range(j0, j0 + 4):
                T = tp[j - j0]
                k.I("v_pk_add_f32", vr(T, 2), vr(T, 2), "1.0", mods="op_sel_hi:[1,0]")
            for j in range(j0, j0 + 4):
                T = tp[j - j0]
                k.I("v_rcp_f32", v(T), v(T)); k.I("v_rcp_f32", v(T + 1), v(T + 1))
            for j in range(j0, j0 + 4):
                T = tp[j - j0]
                k.I("v_pk_mul_f32", vr(A + 2 * j, 2), vr(A + 2 * j, 2), vr(T, 2))
    accs = [k.valloc(2) for _ in range(2)]; accq = [k.valloc(2) for _ in range(2)]
    for t in range(2):
        A = acc[0][t]
        gelu_tile(A, 0, t)
        for j in range(8):
            k.I("v_pk_mul_f32", vr(A + 2 * j, 2), vr(A + 2 * j, 2), vr(rr[t], 2), mods="op_sel_hi:[1,0]")
        k.I("v_pk_add_f32", vr(accs[t], 2), vr(A, 2), vr(A + 2, 2))
        k.I("v_pk_mul_f32", vr(accq[t], 2), vr(A, 2), vr(A, 2))
        k.I("v_pk_fma_f32", vr(accq[t], 2), vr(A + 2, 2), vr(A + 2, 2), vr(accq[t], 2))
        for j in range(2, 8):
            k.I("v_pk_add_f32", vr(accs[t], 2), vr(accs[t], 2), vr(A + 2 * j, 2))
            k.I("v_pk_fma_f32", vr(accq[t], 2), vr(A + 2 * j, 2), vr(A + 2 * j, 2), vr(accq[t], 2))
        k.I("v_add_f32", v(accs[t]), v(accs[t]), v(accs[t] + 1))
        k.I("v_add_f32", v(accs[t] + 1), v(accq[t]), v(accq[t] + 1))
        for e in range(2):
            k.I("v_mov_b32", v(accq[t]), v(accs[t] + e))
            k.I("v_permlane32_swap_b32", v(accs[t] + e), v(accq[t]))
            k.I("v_add_f32", v(accs[t] + e), v(accs[t] + e), v(accq[t]))
    vs = k.valloc()
    k.I("v_lshlrev_b32", v(vs), 3, v(l31))
    k.I("s_lshl_b32", s(st0), s(srh), 9)
    k.I("s_add_u32", s(st0), s(st0), STB)
    k.I("v_add_u32", v(vs), s(st0), v(vs))
    k.I("s_lshl_b32", s(st0), s(sch), 10)
    k.I("v_add_u32", v(t0), s(st0), v(vs))
    for t in range(2):
        k.I("ds_write_b64", v(t0), vr(accs[t], 2), mods=f"offset:{t * 256}")
    k.I("s_waitcnt", "lgkmcnt(0)")
    k.I("s_barrier")
    pub = k.newlabel("nopub")
    k.I("s_cmp_lg_u32", s(sch), 0)
    k.I("s_cbranch_scc1", pub)
    oth = k.valloc(4)
    for t in range(2):
        k.I("ds_read_b64", vr(oth + 2 * t, 2), v(vs), mods=f"offset:{1024 + t * 256}")
    k.I("s_waitcnt", "lgkmcnt(0)")
    for t in range(2):
        k.I("v_pk_add_f32", vr(oth + 2 * t, 2), vr(oth + 2 * t, 2), vr(accs[t], 2))
        k.I("v_mov_b32", v(t1), "0x7fc00000")
        k.I("v_cmp_eq_u32", "vcc", -1, v(oth + 2 * t + 1))
        k.I("v_cndmask_b32", v(oth + 2 * t + 1), v(oth + 2 * t + 1), v(t1), "vcc")
    ve = k.valloc()
    k.I("v_mul_u32_u24", v(ve), 112, v(l31))
    k.I("s_mul_i32", s(soff), s(sst), 32 * 112)
    k.I("s_lshl_b32", s(st0), s(sct), 3)
    k.I("s_add_u32", s(soff), s(soff), s(st0))
    k.I("s_add_u32", s(soff), s(soff), hex(EX_OFF))
    k.I("s_mov_b32", "exec_hi", 0)
    for t in range(2):
        k.I("buffer_store_dwordx2", vr(oth + 2 * t, 2), v(ve), sr(sWS, 4), s(soff), mods=f"offen offset:{t * 32 * 112} sc0 sc1")
    k.I("s_mov_b64", "exec", -1)
    k.L(pub)
    stp.stamp(3)
    v16 = k.valloc()
    k.I("v_lshlrev_b32", v(v16), 4, v(lane))
    P = [k.valloc(8, 4) for _ in range(2)]
    sft = k.salloc()
    k.I("s_lshl_b32", s(sft), s(sct), 1)
    k.I("s_add_u32", s(sft), s(sft), s(sch))
    for t in range(2):
        A = acc[1][t]
        gelu_tile(A, 1, t)
        for j in range(8): k.I("v_cvt_pk_bf16_f32", v(P[t] + j), v(A + 2 * j), v(A + 2 * j + 1))
        k.I("s_add_u32", s(st0), s(sst), t)
        k.I("s_mul_i32", s(soff), s(st0), 56 * 1024)
        k.I("s_lshl_b32", s(st0), s(sft), 11)
        k.I("s_add_u32", s(soff), s(soff), s(st0))
        k.I("s_add_u32", s(soff), s(soff), hex(Z1_OFF))
        k.I("buffer_store_dwordx4", vr(P[t], 4), v(v16), sr(sWS, 4), s(soff), mods="offen")
        k.I("buffer_store_dwordx4", vr(P[t] + 4, 4), v(v16), sr(sWS, 4), s(soff), mods="offen offset:1024")
    stp.stamp(4)
    ex = hs
    k.I("v_mul_u32_u24", v(vh), 112, v(l31))
    k.I("v_lshl_add_u32", v(vh), v(hh), 6, v(vh))
    k.I("s_mul_i32", s(soff), s(sst), 32 * 112)
    k.I("s_add_u32", s(soff), s(soff), hex(EX_OFF))
    scount = k.salloc(); sbad = k.salloc(2)
    k.I("s_mov_b32", s(scount), 0)
    poll = k.newlabel("poll"); pdone = k.newlabel("pdone")
    k.L(poll)
    for t in range(2):
        for i in range(4):
            k.I("buffer_load_dwordx4", vr(ex[t] + 4 * i, 4), v(vh), sr(sWS, 4), s(soff), mods=f"offen offset:{t * 32 * 112 + 16 * i} sc0 sc1")
    k.I("s_waitcnt", "vmcnt(0)")
    k.I("v_cmp_eq_u32", "vcc", 0, v(hh))
    for t in range(2):
        for i in range(12, 16): k.I("v_cndmask_b32", v(ex[t] + i), 0, v(ex[t] + i), "vcc")
    k.I("v_max_u32", v(t0), v(ex[0] + 1), v(ex[0] + 3))
    for t in range(2):
        for i in range(8):
            if t == 0 and i < 2: continue
            k.I("v_max_u32", v(t0), v(t0), v(ex[t] + 2 * i + 1))
    k.I("v_cmp_eq_u32", "vcc", -1, v(t0))
    k.I("s_add_u32", s(scount), s(scount), 1)
    k.I("s_cmp_eq_u64", "vcc", 0)
    k.I("s_cbranch_scc1", pdone)
    k.I("s_cmp_lt_u32", s(scount), 0x40000)
    k.I("s_cbranch_scc0", pdone)
    k.I("s_sleep", 1)
    k.I("s_branch", poll)
    k.L(pdone)
    sc_ = [k.valloc(2) for _ in range(2)]; zm = [k.valloc(2) for _ in range(2)]
    for t in range(2):
        H = ex[t]
        for i in range(4): k.I("v_pk_add_f32", vr(H + 2 * i, 2), vr(H + 2 * i, 2), vr(H + 8 + 2 * i, 2))
        for i in range(2): k.I("v_pk_add_f32", vr(H + 2 * i, 2), vr(H + 2 * i, 2), vr(H + 4 + 2 * i, 2))
        k.I("v_pk_add_f32", vr(H, 2), vr(H, 2), vr(H + 2, 2))
        for e in range(2):
            k.I("v_mov_b32", v(H + 2), v(H + e))
            k.I("v_permlane32_swap_b32", v(H + e), v(H + 2))
            k.I("v_add_f32", v(H + e), v(H + e), v(H + 2))
        k.I("v_mul_f32", v(zm[t]), hex(f32(-1.0 / 896)), v(H))
        k.I("v_mul_f32", v(H + 1), hex(f32(1.0 / 896)), v(H + 1))
        k.I("v_fma_f32", v(H + 1), f"-{v(zm[t])}", v(zm[t]), v(H + 1))
        k.I("v_max_f32", v(H + 1), 0, v(H + 1))
        k.I("v_add_f32", v(H + 1), hex(f32(1e-5)), v(H + 1))
        k.I("v_rsq_f32", v(sc_[t]), v(H + 1))
        k.I("v_mul_f32", v(zm[t]), v(zm[t]), v(sc_[t]))
    TW = 0
    vt = k.valloc(); vtr = k.valloc()
    k.I("v_lshlrev_b32", v(vt), 6, v(l31))
    k.I("v_lshl_add_u32", v(vt), v(hh), 3, v(vt))
    k.I("s_lshl_b32", s(st0), s(swave), 12)
    k.I("v_add_u32", v(vt), s(st0), v(vt))
    for t in range(2):
        A = acc[0][t]
        for j in range(8):
            k.I("v_pk_fma_f32", vr(A + 2 * j, 2), vr(A + 2 * j, 2), vr(sc_[t], 2), vr(zm[t], 2), mods="op_sel_hi:[1,0,0]")
        for j in range(8): k.I("v_cvt_pk_bf16_f32", v(P[t] + j), v(A + 2 * j), v(A + 2 * j + 1))
        for q in range(4):
            k.I("ds_write_b64", v(vt), vr(P[t] + 2 * q, 2), mods=f"offset:{t * 2048 + 16 * q}")
    k.I("v_bfe_u32", v(t0), v(lane), 2, 2)
    k.I("v_lshl_add_u32", v(t0), v(hh), 3, v(t0))
    k.I("v_lshlrev_b32", v(vtr), 6, v(t0))
    k.I("v_bfe_u32", v(t0), v(lane), 4, 1)
    k.I("v_lshl_add_u32", v(vtr), v(t0), 5, v(vtr))
    k.I("v_and_b32", v(t0), 3, v(lane))
    k.I("v_lshl_add_u32", v(vtr), v(t0), 3, v(vtr))
    k.I("s_lshl_b32", s(st0), s(swave), 12)
    k.I("v_add_u32", v(vtr), s(st0), v(vtr))
    k.I("s_waitcnt", "lgkmcnt(0)")
    Z = cw[0]
    for ks in range(4):
        for beta in range(2):
            k.I("ds_read_b64_tr_b16", vr(Z + 4 * ks + 2 * beta, 2), v(vtr), mods=f"offset:{(16 * ks + 4 * beta) * 64}")
    k.I("s_mul_i32", s(soff), s(sft), ZS)
    k.I("s_lshr_b32", s(st0), s(sst), 5)
    k.I("s_mul_i32", s(st0), s(st0), ZK)
    k.I("s_add_u32", s(soff), s(soff), s(st0))
    k.I("s_and_b32", s(st0), s(sst), 31)
    k.I("s_lshl_b32", s(st0), s(st0), 11)
    k.I("s_add_u32", s(soff), s(soff), s(st0))
    k.I("s_add_u32", s(soff), s(soff), hex(Z2_OFF))
    for ks in range(4):
        k.I("s_waitcnt", f"lgkmcnt({6 - 2 * ks})")
        k.I("buffer_store_dwordx4", vr(Z + 4 * ks, 4), v(v16), sr(sWS, 4), s(soff), mods=f"offen offset:{ks * 1024}")
    stp.stamp(5)
    k.I("s_endpgm")
    k.L(pfrole)
    pp = k.salloc(2); sP = k.salloc(4); vT = k.valloc(); vd = k.valloc(4)
    k.I("s_load_dwordx2", sr(pp, 2), "s[0:1]", 40)
    k.I("s_sub_u32", s(st0), s(sidx), 28)
    k.I("s_lshl_b32", s(st0), s(st0), 9)
    k.I("v_add_u32", v(vT), s(st0), "v0")
    k.I("s_lshr_b32", s(st0), s(sj), 1)
    k.I("s_lshl_b32", s(st0), s(st0), 21)
    k.I("s_and_b32", s(st1), s(sj), 1)
    k.I("s_lshl_b32", s(st1), s(st1), 11)
    k.I("s_add_u32", s(st0), s(st0), s(st1))
    k.I("s_waitcnt", "lgkmcnt(0)")
    srd(k, sP, pp, 2048 * 4096)
    for i in range(4):
        k.I("v_add_u32", v(t0), 2048 * i, v(vT))
        k.I("v_lshrrev_b32", v(t1), 4, v(t0))
        k.I("v_lshlrev_b32", v(t1), 12, v(t1))
        k.I("v_and_b32", v(t2), 15, v(t0))
        k.I("v_lshl_add_u32", v(t1), v(t2), 7, v(t1))
        k.I("buffer_load_dword", v(vd + i), v(t1), sr(sP, 4), s(st0), mods="offen")
    k.L(R["done"])
    k.I("s_endpgm")
    k.lds = lds; k.threads = 512; k.grid = 256
    return k


def gen_k4b(Stamper):
    k = Kernel("k4_win_kernel")
    HREG = 0; WRING = 114688; WSL = 8192; NS = 5
    CWT = WRING + NS * WSL
    lds = CWT + 512
    R = common_start(k, 256)
    swave, st0, st1, soff, lane, t0, t1, t2 = (R[x] for x in ("swave", "st0", "st1", "soff", "lane", "t0", "t1", "t2"))
    pWin = k.salloc(2); pWS = k.salloc(2)
    k.I("s_load_dwordx2", sr(pWin, 2), "s[0:1]", 32)
    k.I("s_load_dwordx2", sr(pWS, 2), "s[0:1]", 80)
    sWS = k.salloc(4); sWin = k.salloc(4)
    sj = k.salloc(); sidx = k.salloc(); srb = k.salloc(); sct = k.salloc(); sw3 = k.salloc()
    k.I("s_and_b32", s(sj), "s2", 7)
    k.I("s_lshr_b32", s(sidx), "s2", 3)
    k.I("s_and_b32", s(sw3), s(swave), 3)
    pfrole = k.newlabel("pfrole")
    k.I("s_cmp_ge_u32", s(sidx), 28)
    k.I("s_cbranch_scc1", pfrole)
    k.I("s_mul_i32", s(st0), s(sidx), 37)
    k.I("s_lshr_b32", s(st0), s(st0), 8)
    k.I("s_mul_i32", s(st1), s(st0), 7)
    k.I("s_sub_u32", s(sct), s(sidx), s(st1))
    k.I("s_and_b32", s(st1), s(sj), 1)
    k.I("s_mul_i32", s(st1), s(st1), 7)
    k.I("s_add_u32", s(sct), s(sct), s(st1))
    k.I("s_lshr_b32", s(srb), s(sj), 1)
    k.I("s_lshl_b32", s(srb), s(srb), 2)
    k.I("s_add_u32", s(srb), s(srb), s(st0))
    stp = Stamper(k, 3, sWS, swave)
    sst = k.salloc()
    k.I("s_lshl_b32", s(sst), s(srb), 2)
    k.I("s_add_u32", s(sst), s(sst), s(sw3))
    comp = k.newlabel("compute")
    k.I("s_cmp_lt_u32", s(swave), 4)
    k.I("s_cbranch_scc1", comp)
    vsave = k.vnext
    if os.environ.get("PRIO_L"): k.I("s_setprio", int(os.environ["PRIO_L"]))
    v16 = k.valloc(); vWo = k.valloc()
    k.I("v_lshlrev_b32", v(v16), 4, v(lane))
    k.I("v_lshrrev_b32", v(t0), 3, v(lane))
    k.I("v_mul_u32_u24", v(t0), 3584, v(t0))
    k.I("v_bfe_u32", v(t1), v(lane), 4, 1)
    k.I("v_lshlrev_b32", v(t1), 2, v(t1))
    k.I("v_and_b32", v(t2), 7, v(lane))
    k.I("v_xor_b32", v(t1), v(t1), v(t2))
    k.I("v_lshl_add_u32", v(vWo), v(t1), 4, v(t0))
    sHb = k.salloc(); sWb = k.salloc(); smH = k.salloc(); smW = k.salloc()
    k.I("s_mul_i32", s(sHb), s(sst), 28 * 1024)
    k.I("s_add_u32", s(sHb), s(sHb), hex(H_OFF))
    k.I("s_mul_i32", s(smH), s(sw3), 28 * 1024)
    k.I("s_mul_i32", s(sWb), s(sw3), 16 * 3584)
    k.I("s_lshl_b32", s(st1), s(sct), 7)
    k.I("s_add_u32", s(sWb), s(sWb), s(st1))
    k.I("s_lshl_b32", s(smW), s(sw3), 11)
    k.I("s_add_u32", s(smW), s(smW), WRING)
    srot = k.salloc(); scp = k.salloc(); sa1 = k.salloc(); sa2 = k.salloc()
    k.I("s_lshl_b32", s(st0), s(srb), 1)
    k.I("s_add_u32", s(st0), s(st0), s(sct))
    k.I("s_mul_i32", s(st1), s(st0), 37)
    k.I("s_lshr_b32", s(st1), s(st1), 8)
    k.I("s_mul_i32", s(st1), s(st1), 7)
    k.I("s_sub_u32", s(srot), s(st0), s(st1))
    if not rot_on(4): k.I("s_mov_b32", s(srot), 0)
    def issue(c):
        cc = c % 7
        rot_index(k, scp, srot, cc, 7)
        if c < 7:
            k.I("s_lshl_b32", s(sa1), s(scp), 12)
            k.I("s_add_u32", s(sa1), s(sa1), s(sHb))
            for i in range(4):
                k.I("s_add_u32", s(soff), s(sa1), hex(i * 1024))
                k.I("s_add_u32", "m0", s(smH), hex(HREG + (4 * c + i) * 1024))
                k.vm(("S", c), "buffer_load_dwordx4", v(v16), sr(sWS, 4), s(soff), mods="offen lds")
        col = 1792 if c < 7 else 0
        k.I("s_mul_i32", s(sa2), s(scp), 64 * 3584)
        k.I("s_add_u32", s(sa2), s(sa2), s(sWb))
        for i in range(2):
            k.I("s_add_u32", s(soff), s(sa2), hex(8 * i * 3584 + col))
            k.I("s_add_u32", "m0", s(smW), hex((c % NS) * WSL + i * 1024))
            k.vm(("S", c), "buffer_load_dwordx4", v(vWo), sr(sWin, 4), s(soff), mods="offen lds")
    nocw = k.newlabel("nocw")
    k.I("s_waitcnt", "lgkmcnt(0)")
    srd(k, sWS, pWS, WS_SIZE)
    srd(k, sWin, pWin, 448 * 3584)
    issue(0)
    k.I("s_cmp_ge_u32", s(sw3), 2)
    k.I("s_cbranch_scc1", nocw)
    k.I("v_lshlrev_b32", v(t0), 2, v(lane))
    k.I("s_lshl_b32", s(st0), s(sct), 8)
    k.I("s_xor_b32", s(st1), s(sw3), 1)
    k.I("s_mul_i32", s(st1), s(st1), 896 * 4)
    k.I("s_add_u32", s(st0), s(st0), s(st1))
    k.I("s_add_u32", s(soff), s(st0), hex(CW_OFF))
    k.I("s_lshl_b32", s(st1), s(sw3), 8)
    k.I("s_add_u32", "m0", s(st1), CWT)
    k.I("buffer_load_dword", v(t0), sr(sWS, 4), s(soff), mods="offen lds")
    k.L(nocw)
    k.vmq.append(("S", 1))
    issue(1); issue(2)
    NST = 14
    for c in range(NST):
        if c == 0:
            k.I("s_waitcnt", "vmcnt(12)")
            k.vmq = k.vmq[6:]
        else:
            k.wait_vm(("S", c))
        k.I("s_barrier")
        if c == 0: issue(3); issue(4)
        elif c >= 2 and c + 3 < NST: issue(c + 3)
    k.I("s_endpgm")
    k.L(comp)
    if os.environ.get("PRIO_C"): k.I("s_setprio", int(os.environ["PRIO_C"]))
    k.vnext = vsave; k.vmq = []; k.lgq = []
    l31 = k.valloc(); hh = k.valloc()
    k.I("v_and_b32", v(l31), 31, v(lane))
    k.I("v_lshrrev_b32", v(hh), 5, v(lane))
    hs = k.valloc(16, 4); vh = k.valloc()
    k.I("v_lshlrev_b32", v(vh), 3, v(lane))
    k.I("s_mul_i32", s(soff), s(sst), 32 * 112)
    sEX = k.salloc()
    k.I("s_add_u32", s(sEX), s(soff), hex(EX_OFF))
    k.I("s_add_u32", s(soff), s(soff), hex(HS_OFF))
    k.I("s_waitcnt", "lgkmcnt(0)")
    srd(k, sWS, pWS, WS_SIZE)
    for i in range(7):
        k.vm("hs", "buffer_load_dwordx2", vr(hs + 2 * i, 2), v(vh), sr(sWS, 4), s(soff), mods=f"offen offset:{512 * i}")
    code_prefetch(k, "k5_sp_kernel", sidx, st0)
    stp.stamp(0)
    aH = k.valloc(); v16 = k.valloc(); vW = [k.valloc(), k.valloc()]
    k.I("v_lshlrev_b32", v(v16), 4, v(lane))
    k.I("s_mul_i32", s(st0), s(swave), 28 * 1024)
    k.I("v_add_u32", v(aH), s(st0), v(v16))
    k.I("v_bfe_u32", v(t0), v(lane), 2, 2)
    k.I("v_lshl_add_u32", v(t0), v(hh), 2, v(t0))
    k.I("v_lshlrev_b32", v(t0), 7, v(t0))
    k.I("v_add_u32", v(t0), WRING, v(t0))
    k.I("v_bfe_u32", v(t1), v(lane), 4, 1)
    k.I("v_lshlrev_b32", v(t1), 1, v(t1))
    k.I("v_bfe_u32", v(t2), v(lane), 1, 1)
    k.I("v_add_u32", v(t1), v(t1), v(t2))
    k.I("v_bfe_u32", v(t2), v(lane), 3, 1)
    k.I("v_lshlrev_b32", v(t2), 2, v(t2))
    for n2 in range(2):
        k.I("v_add_u32", v(vW[n2]), 4 * n2, v(t1))
        k.I("v_xor_b32", v(vW[n2]), v(vW[n2]), v(t2))
        k.I("v_lshl_add_u32", v(vW[n2]), v(vW[n2]), 4, v(t0))
    k.I("v_and_b32", v(t1), 1, v(lane))
    for n2 in range(2): k.I("v_lshl_add_u32", v(vW[n2]), v(t1), 3, v(vW[n2]))
    rr = k.valloc(2); nm = k.valloc(2); c0r = k.valloc(2); c1r = k.valloc(2)
    k.wait_vm("hs")
    H = hs
    for i in range(3): k.I("v_pk_add_f32", vr(H + 2 * i, 2), vr(H + 2 * i, 2), vr(H + 6 + 2 * i, 2))
    k.I("v_pk_add_f32", vr(H, 2), vr(H, 2), vr(H + 12, 2))
    k.I("v_pk_add_f32", vr(H + 2, 2), vr(H + 2, 2), vr(H + 4, 2))
    k.I("v_pk_add_f32", vr(H, 2), vr(H, 2), vr(H + 2, 2))
    for e in range(2):
        k.I("v_mov_b32", v(H + 2), v(H + e))
        k.I("v_permlane32_swap_b32", v(H + e), v(H + 2))
        k.I("v_add_f32", v(H + e), v(H + e), v(H + 2))
    k.I("v_mul_f32", v(nm), hex(f32(-1.0 / 448)), v(H))
    k.I("v_mul_f32", v(H + 1), hex(f32(1.0 / 448)), v(H + 1))
    k.I("v_fma_f32", v(H + 1), f"-{v(nm)}", v(nm), v(H + 1))
    k.I("v_max_f32", v(H + 1), 0, v(H + 1))
    k.I("v_add_f32", v(H + 1), hex(f32(1e-5)), v(H + 1))
    k.I("v_rsq_f32", v(rr), v(H + 1))
    k.I("v_mul_f32", v(c0r), hex(f32(GELU_C0)), v(rr))
    k.I("v_mul_f32", v(c1r), v(rr), v(rr))
    k.I("v_mul_f32", v(c1r), v(c1r), v(rr))
    k.I("v_mul_f32", v(c1r), hex(f32(GELU_C1)), v(c1r))
    norh = k.newlabel("norh")
    k.I("s_cmp_lg_u32", s(sct), 0)
    k.I("s_cbranch_scc1", norh)
    k.I("v_lshlrev_b32", v(t0), 2, v(l31))
    k.I("s_lshl_b32", s(st0), s(sst), 7)
    k.I("s_add_u32", s(st0), s(st0), hex(RH_OFF))
    k.I("buffer_store_dword", v(rr), v(t0), sr(sWS, 4), s(st0), mods="offen")
    k.L(norh)
    acc = [[k.valloc(16, 4) for _ in range(2)] for _ in range(2)]
    cwr = hs
    tp = [k.valloc(2) for _ in range(4)]
    NB = 3
    hf = [k.valloc(4) for _ in range(NB)]
    wf = [[k.valloc(4) for _ in range(2)] for _ in range(NB)]
    def rl(g):
        ks = g % 28; c = g // 4; j = g % 4
        b = g % NB
        out = [lambda: k.lg(("f", g), "ds_read_b128", vr(hf[b], 4), v(aH), mods=f"offset:{ks * 1024}")]
        for n2 in range(2):
            for beta in range(2):
                o = (c % NS) * WSL + (16 * j + 8 * beta) * 128
                out.append(lambda o=o, n2=n2, beta=beta: k.lg(("f", g), "ds_read_b64_tr_b16", vr(wf[b][n2] + 2 * beta, 2), v(vW[n2]), mods=f"offset:{o}"))
        return out
    vcw = k.valloc()
    k.I("v_lshlrev_b32", v(vcw), 4, v(hh))
    k.I("v_add_u32", v(vcw), CWT, v(vcw))
    def gelu_tile(A, z, n2):
        for q in range(4):
            k.lg("cw", "ds_read_b128", vr(cwr + 4 * q, 4), v(vcw), mods=f"offset:{z * 256 + n2 * 128 + 32 * q}")
        k.wait_lg("cw")
        for j in range(8):
            k.I("v_pk_fma_f32", vr(A + 2 * j, 2), vr(cwr + 2 * j, 2), vr(nm, 2), vr(A + 2 * j, 2), mods="op_sel_hi:[1,0,1]")
        for j0 in range(0, 8, 4):
            for j in range(j0, j0 + 4): k.I("v_pk_mul_f32", vr(tp[j - j0], 2), vr(A + 2 * j, 2), vr(A + 2 * j, 2))
            for j in range(j0, j0 + 4): k.I("v_pk_fma_f32", vr(tp[j - j0], 2), vr(tp[j - j0], 2), vr(c1r, 2), vr(c0r, 2), mods="op_sel_hi:[1,0,0]")
            for j in range(j0, j0 + 4): k.I("v_pk_mul_f32", vr(tp[j - j0], 2), vr(tp[j - j0], 2), vr(A + 2 * j, 2))
            for j in range(j0, j0 + 4):
                k.I("v_exp_f32", v(tp[j - j0]), v(tp[j - j0])); k.I("v_exp_f32", v(tp[j - j0] + 1), v(tp[j - j0] + 1))
            for j in range(j0, j0 + 4): k.I("v_pk_add_f32", vr(tp[j - j0], 2), vr(tp[j - j0], 2), "1.0", mods="op_sel_hi:[1,0]")
            for j in range(j0, j0 + 4):
                k.I("v_rcp_f32", v(tp[j - j0]), v(tp[j - j0])); k.I("v_rcp_f32", v(tp[j - j0] + 1), v(tp[j - j0] + 1))
            for j in range(j0, j0 + 4): k.I("v_pk_mul_f32", vr(A + 2 * j, 2), vr(A + 2 * j, 2), vr(tp[j - j0], 2))
    def mainloop(z):
        for g in range(28 * z, 28 * z + 28):
            ks = g % 28; j = g % 4; c = g // 4
            b = g % NB
            k.wait_lg(("f", g))
            mf = [lambda n2=n2: k.I("v_mfma_f32_32x32x16_bf16", vr(acc[z][n2], 16), vr(wf[b][n2], 4), vr(hf[b], 4), 0 if ks == 0 else vr(acc[z][n2], 16)) for n2 in range(2)]
            nxt = g + 2
            fl = rl(nxt) if nxt < 28 * z + 28 else []
            if j == 2 and c + 1 < NST: k.I("s_barrier")
            interleave(k, mf, fl)
    k.I("s_barrier")
    stp.stamp(1)
    for f in rl(0) + rl(1): f()
    mainloop(0)
    for f in rl(28) + rl(29): f()
    stp.stamp(2)
    accs = k.valloc(2); accq = k.valloc(2)
    for n2 in range(2):
        A = acc[0][n2]
        gelu_tile(A, 0, n2)
        for j in range(8):
            k.I("v_pk_mul_f32", vr(A + 2 * j, 2), vr(A + 2 * j, 2), vr(rr, 2), mods="op_sel_hi:[1,0]")
        for j in range(8):
            if n2 == 0 and j == 0:
                k.I("v_mov_b32", v(accs), v(A)); k.I("v_mov_b32", v(accs + 1), v(A + 1))
                k.I("v_pk_mul_f32", vr(accq, 2), vr(A, 2), vr(A, 2))
            else:
                k.I("v_pk_add_f32", vr(accs, 2), vr(accs, 2), vr(A + 2 * j, 2))
                k.I("v_pk_fma_f32", vr(accq, 2), vr(A + 2 * j, 2), vr(A + 2 * j, 2), vr(accq, 2))
    k.I("v_add_f32", v(accs), v(accs), v(accs + 1))
    k.I("v_add_f32", v(accs + 1), v(accq), v(accq + 1))
    for e in range(2):
        k.I("v_mov_b32", v(accq), v(accs + e))
        k.I("v_permlane32_swap_b32", v(accs + e), v(accq))
        k.I("v_add_f32", v(accs + e), v(accs + e), v(accq))
    k.I("v_mov_b32", v(t1), "0x7fc00000")
    k.I("v_cmp_eq_u32", "vcc", -1, v(accs + 1))
    k.I("v_cndmask_b32", v(accs + 1), v(accs + 1), v(t1), "vcc")
    ve = k.valloc()
    k.I("v_lshlrev_b32", v(ve), 3, v(l31))
    k.I("s_lshl_b32", s(st0), s(sct), 8)
    k.I("s_add_u32", s(soff), s(sEX), s(st0))
    k.I("s_mov_b32", "exec_hi", 0)
    k.I("buffer_store_dwordx2", vr(accs, 2), v(ve), sr(sWS, 4), s(soff), mods="offen sc0 sc1")
    k.I("s_mov_b64", "exec", -1)
    stp.stamp(3)
    mainloop(1)
    ex = k.valloc(16, 4)
    for i in range(7):
        k.I("buffer_load_dwordx2", vr(ex + 2 * i, 2), v(vh), sr(sWS, 4), s(sEX), mods=f"offen offset:{512 * i} sc0 sc1")
    P = [k.valloc(8, 4) for _ in range(2)]
    sft = k.salloc()
    k.I("s_lshl_b32", s(sft), s(sct), 1)
    for n2 in range(2):
        A = acc[1][n2]
        gelu_tile(A, 1, n2)
        for j in range(8): k.I("v_cvt_pk_bf16_f32", v(P[n2] + j), v(A + 2 * j), v(A + 2 * j + 1))
        k.I("s_mul_i32", s(soff), s(sst), 56 * 1024)
        k.I("s_add_u32", s(st0), s(sft), n2)
        k.I("s_lshl_b32", s(st0), s(st0), 11)
        k.I("s_add_u32", s(soff), s(soff), s(st0))
        k.I("s_add_u32", s(soff), s(soff), hex(Z1_OFF))
        k.I("buffer_store_dwordx4", vr(P[n2], 4), v(v16), sr(sWS, 4), s(soff), mods="offen")
        k.I("buffer_store_dwordx4", vr(P[n2] + 4, 4), v(v16), sr(sWS, 4), s(soff), mods="offen offset:1024")
    stp.stamp(4)
    scount = k.salloc()
    k.I("s_mov_b32", s(scount), 0)
    poll = k.newlabel("poll"); pdone = k.newlabel("pdone"); pchk = k.newlabel("pchk")
    k.I("s_waitcnt", "vmcnt(4)")
    k.I("s_branch", pchk)
    k.L(poll)
    for i in range(7):
        k.I("buffer_load_dwordx2", vr(ex + 2 * i, 2), v(vh), sr(sWS, 4), s(sEX), mods=f"offen offset:{512 * i} sc0 sc1")
    k.I("s_waitcnt", "vmcnt(0)")
    k.L(pchk)
    k.I("v_max_u32", v(t0), v(ex + 1), v(ex + 3))
    for i in range(2, 7): k.I("v_max_u32", v(t0), v(t0), v(ex + 2 * i + 1))
    k.I("v_cmp_eq_u32", "vcc", -1, v(t0))
    k.I("s_add_u32", s(scount), s(scount), 1)
    k.I("s_cmp_eq_u64", "vcc", 0)
    k.I("s_cbranch_scc1", pdone)
    k.I("s_cmp_lt_u32", s(scount), 0x40000)
    k.I("s_cbranch_scc0", pdone)
    k.I("s_sleep", 1)
    k.I("s_branch", poll)
    k.L(pdone)
    k.vmq = []
    sc_ = k.valloc(2); zm = k.valloc(2)
    H = ex
    for i in range(3): k.I("v_pk_add_f32", vr(H + 2 * i, 2), vr(H + 2 * i, 2), vr(H + 6 + 2 * i, 2))
    k.I("v_pk_add_f32", vr(H, 2), vr(H, 2), vr(H + 12, 2))
    k.I("v_pk_add_f32", vr(H + 2, 2), vr(H + 2, 2), vr(H + 4, 2))
    k.I("v_pk_add_f32", vr(H, 2), vr(H, 2), vr(H + 2, 2))
    for e in range(2):
        k.I("v_mov_b32", v(H + 2), v(H + e))
        k.I("v_permlane32_swap_b32", v(H + e), v(H + 2))
        k.I("v_add_f32", v(H + e), v(H + e), v(H + 2))
    k.I("v_mul_f32", v(zm), hex(f32(-1.0 / 896)), v(H))
    k.I("v_mul_f32", v(H + 1), hex(f32(1.0 / 896)), v(H + 1))
    k.I("v_fma_f32", v(H + 1), f"-{v(zm)}", v(zm), v(H + 1))
    k.I("v_max_f32", v(H + 1), 0, v(H + 1))
    k.I("v_add_f32", v(H + 1), hex(f32(1e-5)), v(H + 1))
    k.I("v_rsq_f32", v(sc_), v(H + 1))
    k.I("v_mul_f32", v(zm), v(zm), v(sc_))
    vt = k.valloc(); vtr = k.valloc()
    k.I("s_mul_i32", s(st0), s(swave), 28 * 1024)
    k.I("v_mul_u32_u24", v(vt), 136, v(l31))
    k.I("v_lshl_add_u32", v(vt), v(hh), 3, v(vt))
    k.I("v_add_u32", v(vt), s(st0), v(vt))
    for n2 in range(2):
        A = acc[0][n2]
        for j in range(8):
            k.I("v_pk_fma_f32", vr(A + 2 * j, 2), vr(A + 2 * j, 2), vr(sc_, 2), vr(zm, 2), mods="op_sel_hi:[1,0,0]")
        for j in range(8): k.I("v_cvt_pk_bf16_f32", v(P[n2] + j), v(A + 2 * j), v(A + 2 * j + 1))
        for q in range(4):
            k.I("ds_write_b64", v(vt), vr(P[n2] + 2 * q, 2), mods=f"offset:{64 * n2 + 16 * q}")
    k.I("v_bfe_u32", v(t0), v(lane), 2, 2)
    k.I("v_lshl_add_u32", v(t0), v(hh), 3, v(t0))
    k.I("v_mul_u32_u24", v(vtr), 136, v(t0))
    k.I("v_bfe_u32", v(t0), v(lane), 4, 1)
    k.I("v_lshl_add_u32", v(vtr), v(t0), 5, v(vtr))
    k.I("v_and_b32", v(t0), 3, v(lane))
    k.I("v_lshl_add_u32", v(vtr), v(t0), 3, v(vtr))
    k.I("v_add_u32", v(vtr), s(st0), v(vtr))
    k.I("s_waitcnt", "lgkmcnt(0)")
    Z = acc[1][0]
    for n2 in range(2):
        for ks in range(2):
            for beta in range(2):
                k.I("ds_read_b64_tr_b16", vr(Z + 8 * n2 + 4 * ks + 2 * beta, 2), v(vtr), mods=f"offset:{(16 * ks + 4 * beta) * 136 + 64 * n2}")
    k.I("s_lshr_b32", s(st0), s(sst), 5)
    k.I("s_mul_i32", s(st0), s(st0), ZK)
    k.I("s_and_b32", s(st1), s(sst), 31)
    k.I("s_lshl_b32", s(st1), s(st1), 11)
    k.I("s_add_u32", s(st0), s(st0), s(st1))
    k.I("s_add_u32", s(st0), s(st0), hex(Z2_OFF))
    for n2 in range(2):
        k.I("s_add_u32", s(st1), s(sft), n2)
        k.I("s_mul_i32", s(soff), s(st1), ZS)
        k.I("s_add_u32", s(soff), s(soff), s(st0))
        for ks in range(2):
            k.I("s_waitcnt", f"lgkmcnt({6 - 4 * n2 - 2 * ks})")
            k.I("buffer_store_dwordx4", vr(Z + 8 * n2 + 4 * ks, 4), v(v16), sr(sWS, 4), s(soff), mods=f"offen offset:{ks * 1024}")
    stp.stamp(5)
    k.I("s_endpgm")
    k.L(pfrole)
    if os.environ.get('K4PF', 'sparse') == 'dense':
        pp = k.salloc(2); sP = k.salloc(4); vT = k.valloc(); vd = k.valloc(32, 4)
        k.I("s_load_dwordx2", sr(pp, 2), "s[0:1]", 40)
        k.I("s_sub_u32", s(st0), s(sidx), 28)
        k.I("s_lshl_b32", s(st0), s(st0), 3)
        k.I("s_add_u32", s(st0), s(st0), s(swave))
        k.I("s_lshl_b32", s(st0), s(st0), 16)
        k.I("s_lshr_b32", s(st1), s(sj), 1)
        k.I("s_lshl_b32", s(st1), s(st1), 21)
        k.I("s_add_u32", s(st0), s(st0), s(st1))
        k.I("s_and_b32", s(st1), s(sj), 1)
        k.I("s_lshl_b32", s(st1), s(st1), 11)
        k.I("s_add_u32", s(st0), s(st0), s(st1))
        k.I("v_lshlrev_b32", v(vT), 4, v(lane))
        k.I("s_waitcnt", "lgkmcnt(0)")
        srd(k, sP, pp, 2048 * 4096)
        for i in range(16):
            k.I("s_add_u32", s(soff), s(st0), hex(i * 4096))
            for hf_ in range(2):
                k.I("buffer_load_dwordx4", vr(vd + 4 * ((2 * i + hf_) % 8), 4), v(vT), sr(sP, 4), s(soff), mods=f"offen offset:{hf_ * 1024}")
    else:
        pp = k.salloc(2); sP = k.salloc(4); vT = k.valloc(); vd = k.valloc(4)
        k.I("s_load_dwordx2", sr(pp, 2), "s[0:1]", 40)
        k.I("s_sub_u32", s(st0), s(sidx), 28)
        k.I("s_lshl_b32", s(st0), s(st0), 9)
        k.I("v_add_u32", v(vT), s(st0), "v0")
        k.I("s_lshr_b32", s(st0), s(sj), 1)
        k.I("s_lshl_b32", s(st0), s(st0), 21)
        k.I("s_and_b32", s(st1), s(sj), 1)
        k.I("s_lshl_b32", s(st1), s(st1), 11)
        k.I("s_add_u32", s(st0), s(st0), s(st1))
        k.I("s_waitcnt", "lgkmcnt(0)")
        srd(k, sP, pp, 2048 * 4096)
        for i in range(4):
            k.I("v_add_u32", v(t0), 2048 * i, v(vT))
            k.I("v_lshrrev_b32", v(t1), 4, v(t0))
            k.I("v_lshlrev_b32", v(t1), 12, v(t1))
            k.I("v_and_b32", v(t2), 15, v(t0))
            k.I("v_lshl_add_u32", v(t1), v(t2), 7, v(t1))
            k.I("buffer_load_dword", v(vd + i), v(t1), sr(sP, 4), s(st0), mods="offen")
    k.L(R["done"])
    k.I("s_endpgm")
    k.lds = lds; k.threads = 512; k.grid = 256
    return k

def gen_k4c(Stamper):
    k = Kernel("k4_win_kernel")
    HREG = 0; WRING = 114688; WSL = 8192; NS = 5
    CWT = WRING + NS * WSL
    lds = CWT + 512
    R = common_start(k, 256)
    swave, st0, st1, soff, lane, t0, t1, t2 = (R[x] for x in ("swave", "st0", "st1", "soff", "lane", "t0", "t1", "t2"))
    pWin = k.salloc(2); pWS = k.salloc(2)
    k.I("s_load_dwordx2", sr(pWin, 2), "s[0:1]", 32)
    k.I("s_load_dwordx2", sr(pWS, 2), "s[0:1]", 80)
    sWS = k.salloc(4); sWin = k.salloc(4)
    sj = k.salloc(); sidx = k.salloc(); srb = k.salloc(); sct = k.salloc(); sw3 = k.salloc()
    k.I("s_and_b32", s(sj), "s2", 7)
    k.I("s_lshr_b32", s(sidx), "s2", 3)
    k.I("s_and_b32", s(sw3), s(swave), 3)
    pfrole = k.newlabel("pfrole")
    k.I("s_cmp_ge_u32", s(sidx), 28)
    k.I("s_cbranch_scc1", pfrole)
    k.I("s_mul_i32", s(st0), s(sidx), 37)
    k.I("s_lshr_b32", s(st0), s(st0), 8)
    k.I("s_mul_i32", s(st1), s(st0), 7)
    k.I("s_sub_u32", s(sct), s(sidx), s(st1))
    k.I("s_and_b32", s(st1), s(sj), 1)
    k.I("s_mul_i32", s(st1), s(st1), 7)
    k.I("s_add_u32", s(sct), s(sct), s(st1))
    k.I("s_lshr_b32", s(srb), s(sj), 1)
    k.I("s_lshl_b32", s(srb), s(srb), 2)
    k.I("s_add_u32", s(srb), s(srb), s(st0))
    stp = Stamper(k, 3, sWS, swave)
    sst = k.salloc()
    k.I("s_lshl_b32", s(sst), s(srb), 2)
    k.I("s_add_u32", s(sst), s(sst), s(sw3))
    comp = k.newlabel("compute")
    k.I("s_cmp_lt_u32", s(swave), 8)
    k.I("s_cbranch_scc1", comp)
    vsave = k.vnext
    if os.environ.get("PRIO_L"): k.I("s_setprio", int(os.environ["PRIO_L"]))
    v16 = k.valloc(); vWo = k.valloc()
    k.I("v_lshlrev_b32", v(v16), 4, v(lane))
    k.I("v_lshrrev_b32", v(t0), 3, v(lane))
    k.I("v_mul_u32_u24", v(t0), 3584, v(t0))
    k.I("v_bfe_u32", v(t1), v(lane), 4, 1)
    k.I("v_lshlrev_b32", v(t1), 2, v(t1))
    k.I("v_and_b32", v(t2), 7, v(lane))
    k.I("v_xor_b32", v(t1), v(t1), v(t2))
    k.I("v_lshl_add_u32", v(vWo), v(t1), 4, v(t0))
    sHb = k.salloc(); sWb = k.salloc(); smH = k.salloc(); smW = k.salloc()
    k.I("s_mul_i32", s(sHb), s(sst), 28 * 1024)
    k.I("s_add_u32", s(sHb), s(sHb), hex(H_OFF))
    k.I("s_mul_i32", s(smH), s(sw3), 28 * 1024)
    k.I("s_mul_i32", s(sWb), s(sw3), 16 * 3584)
    k.I("s_lshl_b32", s(st1), s(sct), 7)
    k.I("s_add_u32", s(sWb), s(sWb), s(st1))
    k.I("s_lshl_b32", s(smW), s(sw3), 11)
    k.I("s_add_u32", s(smW), s(smW), WRING)
    srot = k.salloc(); scp = k.salloc(); sa1 = k.salloc(); sa2 = k.salloc()
    k.I("s_lshl_b32", s(st0), s(srb), 1)
    k.I("s_add_u32", s(st0), s(st0), s(sct))
    k.I("s_mul_i32", s(st1), s(st0), 37)
    k.I("s_lshr_b32", s(st1), s(st1), 8)
    k.I("s_mul_i32", s(st1), s(st1), 7)
    k.I("s_sub_u32", s(srot), s(st0), s(st1))
    if not rot_on(4): k.I("s_mov_b32", s(srot), 0)
    def issue(c):
        cc = c % 7
        rot_index(k, scp, srot, cc, 7)
        if c < 7:
            k.I("s_lshl_b32", s(sa1), s(scp), 12)
            k.I("s_add_u32", s(sa1), s(sa1), s(sHb))
            for i in range(4):
                k.I("s_add_u32", s(soff), s(sa1), hex(i * 1024))
                k.I("s_add_u32", "m0", s(smH), hex(HREG + (4 * c + i) * 1024))
                k.vm(("S", c), "buffer_load_dwordx4", v(v16), sr(sWS, 4), s(soff), mods="offen lds")
        col = 1792 if c < 7 else 0
        k.I("s_mul_i32", s(sa2), s(scp), 64 * 3584)
        k.I("s_add_u32", s(sa2), s(sa2), s(sWb))
        for i in range(2):
            k.I("s_add_u32", s(soff), s(sa2), hex(8 * i * 3584 + col))
            k.I("s_add_u32", "m0", s(smW), hex((c % NS) * WSL + i * 1024))
            k.vm(("S", c), "buffer_load_dwordx4", v(vWo), sr(sWin, 4), s(soff), mods="offen lds")
    nocw = k.newlabel("nocw")
    k.I("s_waitcnt", "lgkmcnt(0)")
    srd(k, sWS, pWS, WS_SIZE)
    srd(k, sWin, pWin, 448 * 3584)
    issue(0)
    k.I("s_cmp_ge_u32", s(sw3), 2)
    k.I("s_cbranch_scc1", nocw)
    k.I("v_lshlrev_b32", v(t0), 2, v(lane))
    k.I("s_lshl_b32", s(st0), s(sct), 8)
    k.I("s_xor_b32", s(st1), s(sw3), 1)
    k.I("s_mul_i32", s(st1), s(st1), 896 * 4)
    k.I("s_add_u32", s(st0), s(st0), s(st1))
    k.I("s_add_u32", s(soff), s(st0), hex(CW_OFF))
    k.I("s_lshl_b32", s(st1), s(sw3), 8)
    k.I("s_add_u32", "m0", s(st1), CWT)
    k.I("buffer_load_dword", v(t0), sr(sWS, 4), s(soff), mods="offen lds")
    k.L(nocw)
    k.vmq.append(("S", 1))
    issue(1); issue(2)
    NST = 14
    for c in range(NST):
        if c == 0:
            k.I("s_waitcnt", "vmcnt(12)")
            k.vmq = k.vmq[6:]
        else:
            k.wait_vm(("S", c))
        k.I("s_barrier")
        if c == 0: issue(3); issue(4)
        elif c >= 2 and c + 3 < NST: issue(c + 3)
    k.I("s_endpgm")
    k.L(comp)
    if os.environ.get("PRIO_C"): k.I("s_setprio", int(os.environ["PRIO_C"]))
    k.vnext = vsave; k.vmq = []; k.lgq = []
    l31 = k.valloc(); hh = k.valloc()
    k.I("v_and_b32", v(l31), 31, v(lane))
    k.I("v_lshrrev_b32", v(hh), 5, v(lane))
    sn2 = k.salloc()
    k.I("s_lshr_b32", s(sn2), s(swave), 2)
    hs = k.valloc(16, 4); vh = k.valloc()
    k.I("v_lshlrev_b32", v(vh), 3, v(lane))
    k.I("s_mul_i32", s(soff), s(sst), 32 * 112)
    sEX = k.salloc()
    k.I("s_lshl_b32", s(sEX), s(soff), 1)
    k.I("s_add_u32", s(sEX), s(sEX), hex(EX2_OFF))
    k.I("s_add_u32", s(soff), s(soff), hex(HS_OFF))
    k.I("s_waitcnt", "lgkmcnt(0)")
    srd(k, sWS, pWS, WS_SIZE)
    for i in range(7):
        k.vm("hs", "buffer_load_dwordx2", vr(hs + 2 * i, 2), v(vh), sr(sWS, 4), s(soff), mods=f"offen offset:{512 * i}")
    code_prefetch(k, "k5_sp_kernel", sidx, st0)
    stp.stamp(0)
    aH = k.valloc(); v16 = k.valloc(); vW = k.valloc()
    k.I("v_lshlrev_b32", v(v16), 4, v(lane))
    k.I("s_mul_i32", s(st0), s(sw3), 28 * 1024)
    k.I("v_add_u32", v(aH), s(st0), v(v16))
    k.I("v_bfe_u32", v(t0), v(lane), 2, 2)
    k.I("v_lshl_add_u32", v(t0), v(hh), 2, v(t0))
    k.I("v_lshlrev_b32", v(t0), 7, v(t0))
    k.I("v_add_u32", v(t0), WRING, v(t0))
    k.I("v_bfe_u32", v(t1), v(lane), 4, 1)
    k.I("v_lshlrev_b32", v(t1), 1, v(t1))
    k.I("v_bfe_u32", v(t2), v(lane), 1, 1)
    k.I("v_add_u32", v(t1), v(t1), v(t2))
    k.I("v_bfe_u32", v(t2), v(lane), 3, 1)
    k.I("v_lshlrev_b32", v(t2), 2, v(t2))
    k.I("s_lshl_b32", s(st0), s(sn2), 2)
    k.I("v_add_u32", v(vW), s(st0), v(t1))
    k.I("v_xor_b32", v(vW), v(vW), v(t2))
    k.I("v_lshl_add_u32", v(vW), v(vW), 4, v(t0))
    k.I("v_and_b32", v(t1), 1, v(lane))
    k.I("v_lshl_add_u32", v(vW), v(t1), 3, v(vW))
    rr = k.valloc(2); nm = k.valloc(2); c0r = k.valloc(2); c1r = k.valloc(2)
    k.wait_vm("hs")
    H = hs
    for i in range(3): k.I("v_pk_add_f32", vr(H + 2 * i, 2), vr(H + 2 * i, 2), vr(H + 6 + 2 * i, 2))
    k.I("v_pk_add_f32", vr(H, 2), vr(H, 2), vr(H + 12, 2))
    k.I("v_pk_add_f32", vr(H + 2, 2), vr(H + 2, 2), vr(H + 4, 2))
    k.I("v_pk_add_f32", vr(H, 2), vr(H, 2), vr(H + 2, 2))
    for e in range(2):
        k.I("v_mov_b32", v(H + 2), v(H + e))
        k.I("v_permlane32_swap_b32", v(H + e), v(H + 2))
        k.I("v_add_f32", v(H + e), v(H + e), v(H + 2))
    k.I("v_mul_f32", v(nm), hex(f32(-1.0 / 448)), v(H))
    k.I("v_mul_f32", v(H + 1), hex(f32(1.0 / 448)), v(H + 1))
    k.I("v_fma_f32", v(H + 1), f"-{v(nm)}", v(nm), v(H + 1))
    k.I("v_max_f32", v(H + 1), 0, v(H + 1))
    k.I("v_add_f32", v(H + 1), hex(f32(1e-5)), v(H + 1))
    k.I("v_rsq_f32", v(rr), v(H + 1))
    k.I("v_mul_f32", v(c0r), hex(f32(GELU_C0)), v(rr))
    k.I("v_mul_f32", v(c1r), v(rr), v(rr))
    k.I("v_mul_f32", v(c1r), v(c1r), v(rr))
    k.I("v_mul_f32", v(c1r), hex(f32(GELU_C1)), v(c1r))
    norh = k.newlabel("norh")
    k.I("s_or_b32", s(st0), s(sct), s(sn2))
    k.I("s_cmp_lg_u32", s(st0), 0)
    k.I("s_cbranch_scc1", norh)
    k.I("v_lshlrev_b32", v(t0), 2, v(l31))
    k.I("s_lshl_b32", s(st0), s(sst), 7)
    k.I("s_add_u32", s(st0), s(st0), hex(RH_OFF))
    k.I("buffer_store_dword", v(rr), v(t0), sr(sWS, 4), s(st0), mods="offen")
    k.L(norh)
    acc = [k.valloc(16, 4) for _ in range(2)]
    cwr = hs
    tp = [k.valloc(2) for _ in range(4)]
    NB = 3
    hf = [k.valloc(4) for _ in range(NB)]
    wf = [k.valloc(4) for _ in range(NB)]
    def rl(g):
        ks = g % 28; c = g // 4; j = g % 4
        b = g % NB
        out = [lambda: k.lg(("f", g), "ds_read_b128", vr(hf[b], 4), v(aH), mods=f"offset:{ks * 1024}")]
        for beta in range(2):
            o = (c % NS) * WSL + (16 * j + 8 * beta) * 128
            out.append(lambda o=o, beta=beta: k.lg(("f", g), "ds_read_b64_tr_b16", vr(wf[b] + 2 * beta, 2), v(vW), mods=f"offset:{o}"))
        return out
    vcw = k.valloc()
    k.I("v_lshlrev_b32", v(vcw), 4, v(hh))
    k.I("s_lshl_b32", s(st0), s(sn2), 7)
    k.I("s_add_u32", s(st0), s(st0), CWT)
    k.I("v_add_u32", v(vcw), s(st0), v(vcw))
    def gelu_tile(A, z):
        for q in range(4):
            k.lg("cw", "ds_read_b128", vr(cwr + 4 * q, 4), v(vcw), mods=f"offset:{z * 256 + 32 * q}")
        k.wait_lg("cw")
        for j in range(8):
            k.I("v_pk_fma_f32", vr(A + 2 * j, 2), vr(cwr + 2 * j, 2), vr(nm, 2), vr(A + 2 * j, 2), mods="op_sel_hi:[1,0,1]")
        for j0 in range(0, 8, 4):
            for j in range(j0, j0 + 4): k.I("v_pk_mul_f32", vr(tp[j - j0], 2), vr(A + 2 * j, 2), vr(A + 2 * j, 2))
            for j in range(j0, j0 + 4): k.I("v_pk_fma_f32", vr(tp[j - j0], 2), vr(tp[j - j0], 2), vr(c1r, 2), vr(c0r, 2), mods="op_sel_hi:[1,0,0]")
            for j in range(j0, j0 + 4): k.I("v_pk_mul_f32", vr(tp[j - j0], 2), vr(tp[j - j0], 2), vr(A + 2 * j, 2))
            for j in range(j0, j0 + 4):
                k.I("v_exp_f32", v(tp[j - j0]), v(tp[j - j0])); k.I("v_exp_f32", v(tp[j - j0] + 1), v(tp[j - j0] + 1))
            for j in range(j0, j0 + 4): k.I("v_pk_add_f32", vr(tp[j - j0], 2), vr(tp[j - j0], 2), "1.0", mods="op_sel_hi:[1,0]")
            for j in range(j0, j0 + 4):
                k.I("v_rcp_f32", v(tp[j - j0]), v(tp[j - j0])); k.I("v_rcp_f32", v(tp[j - j0] + 1), v(tp[j - j0] + 1))
            for j in range(j0, j0 + 4): k.I("v_pk_mul_f32", vr(A + 2 * j, 2), vr(A + 2 * j, 2), vr(tp[j - j0], 2))
    def mainloop(z):
        for g in range(28 * z, 28 * z + 28):
            ks = g % 28; j = g % 4; c = g // 4
            b = g % NB
            k.wait_lg(("f", g))
            mf = [lambda: k.I("v_mfma_f32_32x32x16_bf16", vr(acc[z], 16), vr(wf[b], 4), vr(hf[b], 4), 0 if ks == 0 else vr(acc[z], 16))]
            nxt = g + 2
            fl = rl(nxt) if nxt < 28 * z + 28 else []
            if j == 2 and c + 1 < NST: k.I("s_barrier")
            interleave(k, mf, fl)
    k.I("s_barrier")
    stp.stamp(1)
    for f in rl(0) + rl(1): f()
    mainloop(0)
    for f in rl(28) + rl(29): f()
    stp.stamp(2)
    accs = k.valloc(2); accq = k.valloc(2)
    A = acc[0]
    gelu_tile(A, 0)
    for j in range(8):
        k.I("v_pk_mul_f32", vr(A + 2 * j, 2), vr(A + 2 * j, 2), vr(rr, 2), mods="op_sel_hi:[1,0]")
    accs2 = k.valloc(2); accq2 = k.valloc(2)
    k.I("v_pk_add_f32", vr(accs, 2), vr(A, 2), vr(A + 2, 2))
    k.I("v_pk_add_f32", vr(accs2, 2), vr(A + 4, 2), vr(A + 6, 2))
    k.I("v_pk_mul_f32", vr(accq, 2), vr(A, 2), vr(A, 2))
    k.I("v_pk_mul_f32", vr(accq2, 2), vr(A + 2, 2), vr(A + 2, 2))
    for j in range(2, 8):
        tq = accq if j % 2 == 0 else accq2
        k.I("v_pk_fma_f32", vr(tq, 2), vr(A + 2 * j, 2), vr(A + 2 * j, 2), vr(tq, 2))
        if j >= 4:
            ts = accs if j % 2 == 0 else accs2
            k.I("v_pk_add_f32", vr(ts, 2), vr(ts, 2), vr(A + 2 * j, 2))
    k.I("v_pk_add_f32", vr(accs, 2), vr(accs, 2), vr(accs2, 2))
    k.I("v_pk_add_f32", vr(accq, 2), vr(accq, 2), vr(accq2, 2))
    k.I("v_add_f32", v(accs), v(accs), v(accs + 1))
    k.I("v_add_f32", v(accs + 1), v(accq), v(accq + 1))
    for e in range(2):
        k.I("v_mov_b32", v(accq), v(accs + e))
        k.I("v_permlane32_swap_b32", v(accs + e), v(accq))
        k.I("v_add_f32", v(accs + e), v(accs + e), v(accq))
    k.I("v_mov_b32", v(t1), "0x7fc00000")
    k.I("v_cmp_eq_u32", "vcc", -1, v(accs + 1))
    k.I("v_cndmask_b32", v(accs + 1), v(accs + 1), v(t1), "vcc")
    ve = k.valloc()
    k.I("v_lshlrev_b32", v(ve), 3, v(l31))
    k.I("s_lshl_b32", s(st0), s(sct), 1)
    k.I("s_add_u32", s(st0), s(st0), s(sn2))
    k.I("s_lshl_b32", s(st0), s(st0), 8)
    k.I("s_add_u32", s(soff), s(sEX), s(st0))
    k.I("s_mov_b32", "exec_hi", 0)
    k.I("buffer_store_dwordx2", vr(accs, 2), v(ve), sr(sWS, 4), s(soff), mods="offen sc0 sc1")
    k.I("s_mov_b64", "exec", -1)
    stp.stamp(3)
    mainloop(1)
    ex = k.valloc(28, 4); sEX2 = k.salloc()
    for i in range(14):
        if i == 8: k.I("s_add_u32", s(sEX2), s(sEX), 4096)
        k.I("buffer_load_dwordx2", vr(ex + 2 * i, 2), v(vh), sr(sWS, 4), s(sEX if i < 8 else sEX2), mods=f"offen offset:{512 * (i % 8)} sc0 sc1")
    P = k.valloc(8, 4)
    sft = k.salloc()
    k.I("s_lshl_b32", s(sft), s(sct), 1)
    k.I("s_add_u32", s(sft), s(sft), s(sn2))
    A = acc[1]
    gelu_tile(A, 1)
    for j in range(8): k.I("v_cvt_pk_bf16_f32", v(P + j), v(A + 2 * j), v(A + 2 * j + 1))
    k.I("s_mul_i32", s(soff), s(sst), 56 * 1024)
    k.I("s_lshl_b32", s(st0), s(sft), 11)
    k.I("s_add_u32", s(soff), s(soff), s(st0))
    k.I("s_add_u32", s(soff), s(soff), hex(Z1_OFF))
    k.I("buffer_store_dwordx4", vr(P, 4), v(v16), sr(sWS, 4), s(soff), mods="offen")
    k.I("buffer_store_dwordx4", vr(P + 4, 4), v(v16), sr(sWS, 4), s(soff), mods="offen offset:1024")
    stp.stamp(4)
    scount = k.salloc()
    k.I("s_mov_b32", s(scount), 0)
    poll = k.newlabel("poll"); pdone = k.newlabel("pdone"); pchk = k.newlabel("pchk")
    k.I("s_waitcnt", "vmcnt(2)")
    k.I("s_branch", pchk)
    k.L(poll)
    for i in range(14):
        if i == 8: k.I("s_add_u32", s(sEX2), s(sEX), 4096)
        k.I("buffer_load_dwordx2", vr(ex + 2 * i, 2), v(vh), sr(sWS, 4), s(sEX if i < 8 else sEX2), mods=f"offen offset:{512 * (i % 8)} sc0 sc1")
    k.I("s_waitcnt", "vmcnt(0)")
    k.L(pchk)
    k.I("v_max_u32", v(t0), v(ex + 1), v(ex + 3))
    for i in range(2, 14): k.I("v_max_u32", v(t0), v(t0), v(ex + 2 * i + 1))
    k.I("v_cmp_eq_u32", "vcc", -1, v(t0))
    k.I("s_add_u32", s(scount), s(scount), 1)
    k.I("s_cmp_eq_u64", "vcc", 0)
    k.I("s_cbranch_scc1", pdone)
    k.I("s_cmp_lt_u32", s(scount), 0x40000)
    k.I("s_cbranch_scc0", pdone)
    k.I("s_sleep", 1)
    k.I("s_branch", poll)
    k.L(pdone)
    k.vmq = []
    sc_ = k.valloc(2); zm = k.valloc(2)
    H = ex
    for i in range(7): k.I("v_pk_add_f32", vr(H + 2 * i, 2), vr(H + 2 * i, 2), vr(H + 14 + 2 * i, 2))
    for i in range(3): k.I("v_pk_add_f32", vr(H + 2 * i, 2), vr(H + 2 * i, 2), vr(H + 6 + 2 * i, 2))
    k.I("v_pk_add_f32", vr(H, 2), vr(H, 2), vr(H + 12, 2))
    k.I("v_pk_add_f32", vr(H + 2, 2), vr(H + 2, 2), vr(H + 4, 2))
    k.I("v_pk_add_f32", vr(H, 2), vr(H, 2), vr(H + 2, 2))
    for e in range(2):
        k.I("v_mov_b32", v(H + 2), v(H + e))
        k.I("v_permlane32_swap_b32", v(H + e), v(H + 2))
        k.I("v_add_f32", v(H + e), v(H + e), v(H + 2))
    k.I("v_mul_f32", v(zm), hex(f32(-1.0 / 896)), v(H))
    k.I("v_mul_f32", v(H + 1), hex(f32(1.0 / 896)), v(H + 1))
    k.I("v_fma_f32", v(H + 1), f"-{v(zm)}", v(zm), v(H + 1))
    k.I("v_max_f32", v(H + 1), 0, v(H + 1))
    k.I("v_add_f32", v(H + 1), hex(f32(1e-5)), v(H + 1))
    k.I("v_rsq_f32", v(sc_), v(H + 1))
    k.I("v_mul_f32", v(zm), v(zm), v(sc_))
    k.I("s_barrier")
    vt = k.valloc(); vtr = k.valloc()
    k.I("s_mul_i32", s(st0), s(swave), 2304)
    k.I("s_add_u32", s(st0), s(st0), WRING)
    k.I("v_mul_u32_u24", v(vt), 72, v(l31))
    k.I("v_lshl_add_u32", v(vt), v(hh), 3, v(vt))
    k.I("v_add_u32", v(vt), s(st0), v(vt))
    A = acc[0]
    for j in range(8):
        k.I("v_pk_fma_f32", vr(A + 2 * j, 2), vr(A + 2 * j, 2), vr(sc_, 2), vr(zm, 2), mods="op_sel_hi:[1,0,0]")
    for j in range(8): k.I("v_cvt_pk_bf16_f32", v(P + j), v(A + 2 * j), v(A + 2 * j + 1))
    for q in range(4):
        k.I("ds_write_b64", v(vt), vr(P + 2 * q, 2), mods=f"offset:{16 * q}")
    k.I("v_bfe_u32", v(t0), v(lane), 2, 2)
    k.I("v_lshl_add_u32", v(t0), v(hh), 3, v(t0))
    k.I("v_mul_u32_u24", v(vtr), 72, v(t0))
    k.I("v_bfe_u32", v(t0), v(lane), 4, 1)
    k.I("v_lshl_add_u32", v(vtr), v(t0), 5, v(vtr))
    k.I("v_and_b32", v(t0), 3, v(lane))
    k.I("v_lshl_add_u32", v(vtr), v(t0), 3, v(vtr))
    k.I("v_add_u32", v(vtr), s(st0), v(vtr))
    Z = acc[1]
    for ks in range(2):
        for beta in range(2):
            k.I("ds_read_b64_tr_b16", vr(Z + 4 * ks + 2 * beta, 2), v(vtr), mods=f"offset:{(16 * ks + 4 * beta) * 72}")
    k.I("s_lshr_b32", s(st0), s(sst), 5)
    k.I("s_mul_i32", s(st0), s(st0), ZK)
    k.I("s_and_b32", s(st1), s(sst), 31)
    k.I("s_lshl_b32", s(st1), s(st1), 11)
    k.I("s_add_u32", s(st0), s(st0), s(st1))
    k.I("s_add_u32", s(st0), s(st0), hex(Z2_OFF))
    k.I("s_mul_i32", s(soff), s(sft), ZS)
    k.I("s_add_u32", s(soff), s(soff), s(st0))
    for ks in range(2):
        k.I("s_waitcnt", f"lgkmcnt({2 - 2 * ks})")
        k.I("buffer_store_dwordx4", vr(Z + 4 * ks, 4), v(v16), sr(sWS, 4), s(soff), mods=f"offen offset:{ks * 1024}")
    stp.stamp(5)
    k.I("s_endpgm")
    k.L(pfrole)
    if os.environ.get('K4PF', 'sparse') == 'dense':
        pp = k.salloc(2); sP = k.salloc(4); vT = k.valloc(); vd = k.valloc(32, 4)
        k.I("s_load_dwordx2", sr(pp, 2), "s[0:1]", 40)
        k.I("s_sub_u32", s(st0), s(sidx), 28)
        k.I("s_lshl_b32", s(st0), s(st0), 3)
        k.I("s_add_u32", s(st0), s(st0), s(swave))
        k.I("s_lshl_b32", s(st0), s(st0), 16)
        k.I("s_lshr_b32", s(st1), s(sj), 1)
        k.I("s_lshl_b32", s(st1), s(st1), 21)
        k.I("s_add_u32", s(st0), s(st0), s(st1))
        k.I("s_and_b32", s(st1), s(sj), 1)
        k.I("s_lshl_b32", s(st1), s(st1), 11)
        k.I("s_add_u32", s(st0), s(st0), s(st1))
        k.I("v_lshlrev_b32", v(vT), 4, v(lane))
        k.I("s_waitcnt", "lgkmcnt(0)")
        srd(k, sP, pp, 2048 * 4096)
        for i in range(16):
            k.I("s_add_u32", s(soff), s(st0), hex(i * 4096))
            for hf_ in range(2):
                k.I("buffer_load_dwordx4", vr(vd + 4 * ((2 * i + hf_) % 8), 4), v(vT), sr(sP, 4), s(soff), mods=f"offen offset:{hf_ * 1024}")
    else:
        pp = k.salloc(2); sP = k.salloc(4); vT = k.valloc(); vd = k.valloc(4)
        k.I("s_load_dwordx2", sr(pp, 2), "s[0:1]", 40)
        k.I("s_sub_u32", s(st0), s(sidx), 28)
        k.I("s_lshl_b32", s(st0), s(st0), 9)
        k.I("v_add_u32", v(vT), s(st0), "v0")
        k.I("s_cmp_ge_u32", s(swave), 8)
        k.I("s_cbranch_scc1", R["done"])
        k.I("s_lshr_b32", s(st0), s(sj), 1)
        k.I("s_lshl_b32", s(st0), s(st0), 21)
        k.I("s_and_b32", s(st1), s(sj), 1)
        k.I("s_lshl_b32", s(st1), s(st1), 11)
        k.I("s_add_u32", s(st0), s(st0), s(st1))
        k.I("s_waitcnt", "lgkmcnt(0)")
        srd(k, sP, pp, 2048 * 4096)
        for i in range(4):
            k.I("v_add_u32", v(t0), 2048 * i, v(vT))
            k.I("v_lshrrev_b32", v(t1), 4, v(t0))
            k.I("v_lshlrev_b32", v(t1), 12, v(t1))
            k.I("v_and_b32", v(t2), 15, v(t0))
            k.I("v_lshl_add_u32", v(t1), v(t2), 7, v(t1))
            k.I("buffer_load_dword", v(vd + i), v(t1), sr(sP, 4), s(st0), mods="offen")
    k.L(R["done"])
    k.I("s_endpgm")
    k.lds = lds; k.threads = 768; k.grid = 256
    return k

def gen_k5(Stamper):
    k = Kernel("k5_sp_kernel")
    NS = 4; SLOT = 32768
    Z1REG = NS * SLOT
    lds = Z1REG + 32768
    R = common_start(k, 256)
    swave, st0, st1, soff, lane, t0, t1, t2 = (R[x] for x in ("swave", "st0", "st1", "soff", "lane", "t0", "t1", "t2"))
    pSp = k.salloc(2); pB = k.salloc(2); pWS = k.salloc(2)
    k.I("s_load_dwordx2", sr(pSp, 2), "s[0:1]", 40)
    k.I("s_load_dwordx2", sr(pB, 2), "s[0:1]", 48)
    k.I("s_load_dwordx2", sr(pWS, 2), "s[0:1]", 80)
    sWS = k.salloc(4); sSp = k.salloc(4); sB = k.salloc(4)
    sj = k.salloc(); sidx = k.salloc(); stt = k.salloc(); sft = k.salloc(); skap = k.salloc(); sw3 = k.salloc()
    if os.environ.get("K5MAP") == "linear":
        k.I("s_mul_i32", s(sj), "s2", 2341)
        k.I("s_lshr_b32", s(sj), s(sj), 16)
        k.I("s_mul_i32", s(sidx), s(sj), 28)
        k.I("s_sub_u32", s(sidx), "s2", s(sidx))
    else:
        k.I("s_and_b32", s(sj), "s2", 7)
        k.I("s_lshr_b32", s(sidx), "s2", 3)
    pfrole = k.newlabel("pfrole")
    k.I("s_cmp_ge_u32", s(sidx), 28)
    k.I("s_cbranch_scc1", pfrole)
    k.I("s_and_b32", s(sw3), s(swave), 3)
    k.I("s_and_b32", s(skap), s(sj), 1)
    k.I("s_mul_i32", s(st0), s(sidx), 37)
    k.I("s_lshr_b32", s(st0), s(st0), 8)
    k.I("s_mul_i32", s(st1), s(st0), 7)
    k.I("s_sub_u32", s(sft), s(sidx), s(st1))
    k.I("s_lshr_b32", s(stt), s(sj), 1)
    k.I("s_lshl_b32", s(stt), s(stt), 2)
    k.I("s_add_u32", s(stt), s(stt), s(st0))
    stp = Stamper(k, 4, sWS, swave)
    if os.environ.get("TICKWAVE", "0") != "0": stp.tick(0)
    comp = k.newlabel("compute")
    k.I("s_cmp_lt_u32", s(swave), 4)
    k.I("s_cbranch_scc1", comp)
    vsave = k.vnext
    if os.environ.get("PRIO_L"): k.I("s_setprio", int(os.environ["PRIO_L"]))
    v16 = k.valloc(); vWo = k.valloc(2)
    k.I("v_lshlrev_b32", v(v16), 4, v(lane))
    k.I("v_lshrrev_b32", v(t0), 3, v(lane))
    k.I("v_lshlrev_b32", v(t0), 12, v(t0))
    k.I("v_lshrrev_b32", v(t1), 4, v(lane))
    k.I("v_and_b32", v(t2), 7, v(lane))
    k.I("v_xor_b32", v(t1), v(t1), v(t2))
    k.I("v_lshl_add_u32", v(vWo), v(t1), 4, v(t0))
    k.I("v_xor_b32", v(t1), 4, v(t1))
    k.I("v_lshl_add_u32", v(vWo + 1), v(t1), 4, v(t0))
    sZb = k.salloc(); sWb = k.salloc(); smZ = k.salloc(); smW = k.salloc()
    k.I("s_lshl_b32", s(st0), s(sft), 2)
    k.I("s_add_u32", s(st0), s(st0), s(sw3))
    k.I("s_mul_i32", s(sZb), s(st0), ZS)
    k.I("s_mul_i32", s(st1), s(skap), ZK)
    k.I("s_add_u32", s(sZb), s(sZb), s(st1))
    k.I("s_add_u32", s(sZb), s(sZb), hex(Z2_OFF))
    k.I("s_lshl_b32", s(smZ), s(sw3), 12)
    k.I("s_lshl_b32", s(st0), s(stt), 7)
    k.I("s_lshl_b32", s(st1), s(sw3), 5)
    k.I("s_add_u32", s(st0), s(st0), s(st1))
    k.I("s_lshl_b32", s(sWb), s(st0), 12)
    k.I("s_lshl_b32", s(st1), s(skap), 11)
    k.I("s_add_u32", s(sWb), s(sWb), s(st1))
    k.I("s_add_u32", s(smW), s(smZ), 16384)
    srot = k.salloc(); scp = k.salloc(); sa1 = k.salloc(); sa2 = k.salloc()
    k.I("s_lshl_b32", s(st0), s(sft), 1)
    k.I("s_mul_i32", s(st1), s(stt), 5)
    k.I("s_add_u32", s(srot), s(st0), s(st1))
    k.I("s_and_b32", s(srot), s(srot), 15)
    if not rot_on(5): k.I("s_mov_b32", s(srot), 0)
    def issue(c):
        sl = (c % NS) * SLOT
        k.I("s_add_u32", s(scp), s(srot), c)
        k.I("s_and_b32", s(scp), s(scp), 15)
        k.I("s_lshl_b32", s(sa1), s(scp), 12)
        k.I("s_add_u32", s(sa1), s(sa1), s(sZb))
        k.I("s_lshl_b32", s(sa2), s(scp), 7)
        k.I("s_add_u32", s(sa2), s(sa2), s(sWb))
        for i in range(4):
            k.I("s_add_u32", s(soff), s(sa1), hex(i * 1024))
            k.I("s_add_u32", "m0", s(smZ), hex(sl + i * 1024))
            k.vm(("S", c), "buffer_load_dwordx4", v(v16), sr(sWS, 4), s(soff), mods="offen lds")
        for i in range(4):
            k.I("s_add_u32", s(soff), s(sa2), hex(i * 8 * 4096))
            k.I("s_add_u32", "m0", s(smW), hex(sl + i * 1024))
            k.vm(("S", c), "buffer_load_dwordx4", v(vWo + (i & 1)), sr(sSp, 4), s(soff), mods="offen lds")
    NST = 16
    sZ1 = k.salloc()
    k.I("s_lshl_b32", s(st0), s(stt), 2)
    k.I("s_add_u32", s(st0), s(st0), s(sw3))
    k.I("s_mul_i32", s(sZ1), s(st0), 56 * 1024)
    k.I("s_lshl_b32", s(st1), s(sft), 13)
    k.I("s_add_u32", s(sZ1), s(sZ1), s(st1))
    k.I("s_add_u32", s(sZ1), s(sZ1), hex(Z1_OFF))
    smZ1 = k.salloc()
    k.I("s_lshl_b32", s(smZ1), s(sw3), 13)
    def issue_z1(i, tag):
        k.I("s_add_u32", s(soff), s(sZ1), hex(i * 1024))
        k.I("s_add_u32", "m0", s(smZ1), hex(Z1REG + i * 1024))
        k.vm(("S", tag), "buffer_load_dwordx4", v(v16), sr(sWS, 4), s(soff), mods="offen lds")
    LT = os.environ.get("TICKWAVE", "0") != "0"
    k.I("s_waitcnt", "lgkmcnt(0)")
    srd(k, sWS, pWS, WS_SIZE)
    srd(k, sSp, pSp, 2048 * 4096)
    if LT: stp.tick(1)
    issue(0)
    if LT: stp.tick(2)
    issue(1)
    if LT: stp.tick(3)
    for c in range(NST):
        k.wait_vm(("S", c))
        if LT and c < 3: stp.tick(4 + 2 * c)
        k.I("s_barrier")
        if LT and c < 3: stp.tick(5 + 2 * c)
        if c == 0: issue(2); issue(3)
        elif c + 2 < NST and c >= 2:
            issue(c + 2)
            if 3 <= c < 11: issue_z1(c - 3, c + 2)
    vT = k.valloc()
    k.I("s_lshl_b32", s(st0), s(sidx), 8)
    k.I("v_subrev_u32", v(vT), 256, "v0")
    k.I("v_add_u32", v(vT), s(st0), v(vT))
    k.I("v_lshlrev_b32", v(vT), 7, v(vT))
    if LT: stp.dump_ticks()
    k.I("s_endpgm")
    k.L(comp)
    if os.environ.get("PRIO_C"): k.I("s_setprio", int(os.environ["PRIO_C"]))
    k.vnext = vsave; k.vmq = []; k.lgq = []
    l31 = k.valloc(); hh = k.valloc()
    k.I("v_and_b32", v(l31), 31, v(lane))
    k.I("v_lshrrev_b32", v(hh), 5, v(lane))
    sfh = k.salloc(); sth = k.salloc(); sst = k.salloc(); sf32 = k.salloc()
    k.I("s_and_b32", s(sfh), s(swave), 1)
    k.I("s_lshr_b32", s(sth), s(swave), 1)
    k.I("s_lshl_b32", s(sst), s(stt), 2)
    k.I("s_lshl_b32", s(st0), s(sth), 1)
    k.I("s_add_u32", s(sst), s(sst), s(st0))
    k.I("s_lshl_b32", s(sf32), s(sft), 2)
    k.I("s_lshl_b32", s(st0), s(sfh), 1)
    k.I("s_add_u32", s(sf32), s(sf32), s(st0))
    if os.environ.get("PF3", "0") == "1":
        vT0 = k.valloc(); vd0 = k.valloc(2)
        k.I("s_lshl_b32", s(st0), s(sidx), 8)
        k.I("v_add_u32", v(vT0), s(st0), "v0")
        k.I("s_lshl_b32", s(st1), s(skap), 16)
        k.I("s_add_u32", s(st1), s(st1), hex(Z2_OFF))
        for i in range(2):
            k.I("v_add_u32", v(t0), 7168 * i, v(vT0))
            k.I("v_lshrrev_b32", v(t1), 9, v(t0))
            k.I("v_lshlrev_b32", v(t1), 17, v(t1))
            k.I("v_and_b32", v(t2), 511, v(t0))
            k.I("v_lshl_add_u32", v(t1), v(t2), 7, v(t1))
            k.vm("pf", "buffer_load_dword", v(vd0 + i), v(t1), sr(sWS, 4), s(st1), mods="offen")
    v16 = k.valloc()
    k.I("v_lshlrev_b32", v(v16), 4, v(lane))
    z1 = [[k.valloc(8, 4) for _ in range(2)] for _ in range(2)]
    rr = [k.valloc(2) for _ in range(2)]; bb = [k.valloc(2) for _ in range(2)]
    k.I("v_lshlrev_b32", v(t0), 2, v(l31))
    k.I("v_lshlrev_b32", v(t1), 1, v(l31))
    k.I("s_waitcnt", "lgkmcnt(0)")
    srd(k, sWS, pWS, WS_SIZE)
    srd(k, sB, pB, 4096)
    for ti in range(2):
        k.I("s_add_u32", s(st0), s(sst), ti)
        k.I("s_lshl_b32", s(soff), s(st0), 7)
        k.I("s_add_u32", s(soff), s(soff), hex(RH_OFF))
        k.vm("z1", "buffer_load_dword", v(rr[ti]), v(t0), sr(sWS, 4), s(soff), mods="offen")
        k.I("s_lshl_b32", s(soff), s(st0), 6)
        k.vm("z1", "buffer_load_ushort", v(bb[ti]), v(t1), sr(sB, 4), s(soff), mods="offen")
    if os.environ.get("PF2", "0") == "1":
        pp = k.salloc(2); sP = k.salloc(4); vT = k.valloc(); vd = k.valloc(2)
        k.I("s_load_dwordx2", sr(pp, 2), "s[0:1]", 56)
        k.I("s_lshl_b32", s(st0), s(sidx), 8)
        k.I("v_add_u32", v(vT), s(st0), "v0")
        k.I("v_lshlrev_b32", v(vT), 7, v(vT))
        k.I("s_waitcnt", "lgkmcnt(0)")
        srd(k, sP, pp, 896 * 896)
        k.vm("pf", "buffer_load_dword", v(vd), v(vT), sr(sP, 4), 0, mods="offen")
    code_prefetch(k, "k6_wout_kernel", sidx, st0)
    stp.stamp(0)
    aZ = k.valloc(); aW = k.valloc(4)
    k.I("s_lshl_b32", s(st0), s(sfh), 13)
    k.I("v_add_u32", v(aZ), s(st0), v(v16))
    k.I("v_bfe_u32", v(t0), v(l31), 1, 3)
    for j in range(4):
        k.I("v_add_u32", v(t1), 2 * j, v(hh))
        k.I("v_xor_b32", v(t1), v(t1), v(t0))
        k.I("v_lshlrev_b32", v(t1), 4, v(t1))
        k.I("v_lshl_add_u32", v(aW + j), v(l31), 7, v(t1))
        k.I("s_lshl_b32", s(st0), s(sth), 13)
        k.I("s_add_u32", s(st0), s(st0), 16384)
        k.I("v_add_u32", v(aW + j), s(st0), v(aW + j))
    aZ2 = k.valloc(); aW2 = k.valloc(4)
    k.I("v_add_u32", v(aZ2), 65536, v(aZ))
    for j in range(4): k.I("v_add_u32", v(aW2 + j), 65536, v(aW + j))
    acc = [[k.valloc(16, 4) for _ in range(2)] for _ in range(2)]
    NB = 3
    zf = [[k.valloc(4) for _ in range(2)] for _ in range(NB)]
    wf = [[k.valloc(4) for _ in range(2)] for _ in range(NB)]
    def rl(ks):
        c, j = ks // 4, ks % 4
        b = ks % NB
        sl = (c % NS) * SLOT
        hi = sl >= 65536
        so = sl - (65536 if hi else 0)
        out = []
        for fi in range(2):
            out.append(lambda fi=fi: k.lg(("f", ks), "ds_read_b128", vr(zf[b][fi], 4), v(aZ2 if hi else aZ), mods=f"offset:{so + fi * 4096 + j * 1024}"))
        for ti in range(2):
            out.append(lambda ti=ti: k.lg(("f", ks), "ds_read_b128", vr(wf[b][ti], 4), v((aW2 if hi else aW) + j), mods=f"offset:{so + ti * 4096}"))
        return out
    k.I("s_barrier")
    stp.stamp(1)
    for f in rl(0) + rl(1): f()
    NKS = NST * 4
    for ks in range(NKS):
        c, j = ks // 4, ks % 4
        b = ks % NB
        k.wait_lg(("f", ks))
        mf = []
        for fi in range(2):
            for ti in range(2):
                if os.environ.get("EXP16"):
                    for hx in range(2):
                        r0 = acc[fi][ti] + 4 * (2 * (ks & 1) + hx)
                        mf.append(lambda fi=fi, ti=ti, r0=r0: k.I("v_mfma_f32_16x16x32_bf16", vr(r0, 4), vr(zf[b][fi], 4), vr(wf[b][ti], 4), 0 if ks < 2 else vr(r0, 4)))
                    continue
                mf.append(lambda fi=fi, ti=ti: k.I("v_mfma_f32_32x32x16_bf16", vr(acc[fi][ti], 16), vr(zf[b][fi], 4), vr(wf[b][ti], 4), 0 if ks == 0 else vr(acc[fi][ti], 16)))
        fl = rl(ks + 2) if ks + 2 < NKS else []
        if j == 2 and ks + 2 < NKS:
            if not LT and c in (0, 13, 14): stp.tick({0: 0, 13: 1, 14: 2}[c])
            k.I("s_barrier")
        interleave(k, mf, fl)
    if not LT: stp.tick(3)
    stp.stamp(2)
    if not LT: stp.tick(4)
    if not LT: stp.tick(5)
    vz = k.valloc()
    k.I("s_lshl_b32", s(st0), s(sth), 14)
    k.I("s_lshl_b32", s(st1), s(sfh), 12)
    k.I("s_add_u32", s(st0), s(st0), s(st1))
    k.I("s_add_u32", s(st0), s(st0), Z1REG)
    k.I("v_add_u32", v(vz), s(st0), v(v16))
    for ti in range(2):
        for fi in range(2):
            for hf_ in range(2):
                k.lg(("z1", ti, fi), "ds_read_b128", vr(z1[fi][ti] + 4 * hf_, 4), v(vz), mods=f"offset:{ti * 8192 + fi * 2048 + hf_ * 1024}")
    k.wait_vm("z1")
    for ti in range(2):
        k.I("v_lshlrev_b32", v(bb[ti]), 16, v(bb[ti]))
        k.I("v_mul_f32", v(bb[ti]), v(bb[ti]), v(rr[ti]))
    k.I("s_cmp_eq_u32", s(skap), 0)
    k.I("s_cselect_b32", s(st0), "1.0", 0)
    for ti in range(2): k.I("v_mul_f32", v(bb[ti]), s(st0), v(bb[ti]))
    tp = [k.valloc(2) for _ in range(4)]
    P = [k.valloc(8, 4) for _ in range(2)]
    sU = k.salloc()
    k.I("s_mul_i32", s(sU), s(skap), U1_OFF - U0_OFF)
    k.I("s_add_u32", s(sU), s(sU), hex(U0_OFF))
    n = 0
    for ti in range(2):
        for fi in range(2):
            A = acc[fi][ti]; Zp = z1[fi][ti]; PP = P[n & 1]; n += 1
            for j in range(8):
                k.I("v_pk_fma_f32", vr(A + 2 * j, 2), vr(A + 2 * j, 2), vr(rr[ti], 2), vr(bb[ti], 2), mods="op_sel_hi:[1,0,0]")
            k.wait_lg(("z1", ti, fi))
            for j in range(8):
                T = tp[j % 4]
                k.I("v_lshlrev_b32", v(T), 16, v(Zp + j))
                k.I("v_and_b32", v(T + 1), "0xffff0000", v(Zp + j))
                k.I("v_pk_mul_f32", vr(A + 2 * j, 2), vr(A + 2 * j, 2), vr(T, 2))
            for j in range(8): k.I("v_cvt_pk_bf16_f32", v(PP + j), v(A + 2 * j), v(A + 2 * j + 1))
            k.I("s_add_u32", s(st0), s(sst), ti)
            k.I("s_mul_i32", s(soff), s(st0), 56 * 1024)
            k.I("s_add_u32", s(st0), s(sf32), fi)
            k.I("s_lshl_b32", s(st0), s(st0), 11)
            k.I("s_add_u32", s(soff), s(soff), s(st0))
            k.I("s_add_u32", s(soff), s(soff), s(sU))
            k.I("buffer_store_dwordx4", vr(PP, 4), v(v16), sr(sWS, 4), s(soff), mods="offen")
            k.I("buffer_store_dwordx4", vr(PP + 4, 4), v(v16), sr(sWS, 4), s(soff), mods="offen offset:1024")
            if not LT: stp.tick(5 + n)
    stp.stamp(3)
    if not LT: stp.tick(10)
    if not LT: stp.dump_ticks()
    k.I("s_endpgm")
    k.L(pfrole)
    vT2 = k.valloc()
    k.I("s_sub_u32", s(st0), s(sidx), 28)
    k.I("s_lshl_b32", s(st0), s(st0), 9)
    k.I("v_add_u32", v(vT2), s(st0), "v0")
    k.I("v_lshlrev_b32", v(vT2), 7, v(vT2))
    l2_prefetch(k, 56, 896 * 896, vT2, 2048, st0)
    k.L(R["done"])
    k.I("s_endpgm")
    k.lds = lds; k.threads = 512; k.grid = 256
    return k

def gen_k56(Stamper):
    k = Kernel("k5_sp_kernel")
    NS = 4; SLOT = 32768
    Z1REG = NS * SLOT
    lds = Z1REG + 32768
    R = common_start(k, 256)
    swave, st0, st1, soff, lane, t0, t1, t2 = (R[x] for x in ("swave", "st0", "st1", "soff", "lane", "t0", "t1", "t2"))
    pSp = k.salloc(2); pB = k.salloc(2); pWS = k.salloc(2)
    k.I("s_load_dwordx2", sr(pSp, 2), "s[0:1]", 40)
    k.I("s_load_dwordx2", sr(pB, 2), "s[0:1]", 48)
    k.I("s_load_dwordx2", sr(pWS, 2), "s[0:1]", 80)
    pWo = k.salloc(2); pOD = k.salloc(4)
    k.I("s_load_dwordx2", sr(pWo, 2), "s[0:1]", 56)
    k.I("s_load_dwordx4", sr(pOD, 4), "s[0:1]", 64)
    sWS = k.salloc(4); sSp = k.salloc(4); sB = k.salloc(4); sWo = k.salloc(4); sOut = k.salloc(4); sD = k.salloc(4)
    sj = k.salloc(); sidx = k.salloc(); stt = k.salloc(); sft = k.salloc(); skap = k.salloc(); sw3 = k.salloc()
    if os.environ.get("K5MAP") == "linear":
        k.I("s_mul_i32", s(sj), "s2", 2341)
        k.I("s_lshr_b32", s(sj), s(sj), 16)
        k.I("s_mul_i32", s(sidx), s(sj), 28)
        k.I("s_sub_u32", s(sidx), "s2", s(sidx))
    else:
        k.I("s_and_b32", s(sj), "s2", 7)
        k.I("s_lshr_b32", s(sidx), "s2", 3)
    pfrole = k.newlabel("pfrole")
    k.I("s_cmp_ge_u32", s(sidx), 28)
    k.I("s_cbranch_scc1", pfrole)
    k.I("s_and_b32", s(sw3), s(swave), 3)
    k.I("s_and_b32", s(skap), s(sj), 1)
    k.I("s_mul_i32", s(st0), s(sidx), 37)
    k.I("s_lshr_b32", s(st0), s(st0), 8)
    k.I("s_mul_i32", s(st1), s(st0), 7)
    k.I("s_sub_u32", s(sft), s(sidx), s(st1))
    k.I("s_lshr_b32", s(stt), s(sj), 1)
    k.I("s_lshl_b32", s(stt), s(stt), 2)
    k.I("s_add_u32", s(stt), s(stt), s(st0))
    stp = Stamper(k, 4, sWS, swave)
    if os.environ.get("TICKWAVE", "0") != "0": stp.tick(0)
    k.I("s_waitcnt", "lgkmcnt(0)")
    srd(k, sWS, pWS, WS_SIZE)
    comp = k.newlabel("compute")
    k.I("s_cmp_lt_u32", s(swave), 4)
    k.I("s_cbranch_scc1", comp)
    vsave = k.vnext
    if os.environ.get("PRIO_L"): k.I("s_setprio", int(os.environ["PRIO_L"]))
    srd(k, sSp, pSp, 2048 * 4096)
    v16 = k.valloc(); vWo = k.valloc(2)
    k.I("v_lshlrev_b32", v(v16), 4, v(lane))
    k.I("v_lshrrev_b32", v(t0), 3, v(lane))
    k.I("v_lshlrev_b32", v(t0), 12, v(t0))
    k.I("v_lshrrev_b32", v(t1), 4, v(lane))
    k.I("v_and_b32", v(t2), 7, v(lane))
    k.I("v_xor_b32", v(t1), v(t1), v(t2))
    k.I("v_lshl_add_u32", v(vWo), v(t1), 4, v(t0))
    k.I("v_xor_b32", v(t1), 4, v(t1))
    k.I("v_lshl_add_u32", v(vWo + 1), v(t1), 4, v(t0))
    sZb = k.salloc(); sWb = k.salloc(); smZ = k.salloc(); smW = k.salloc()
    k.I("s_lshl_b32", s(st0), s(sft), 2)
    k.I("s_add_u32", s(st0), s(st0), s(sw3))
    k.I("s_mul_i32", s(sZb), s(st0), ZS)
    k.I("s_mul_i32", s(st1), s(skap), ZK)
    k.I("s_add_u32", s(sZb), s(sZb), s(st1))
    k.I("s_add_u32", s(sZb), s(sZb), hex(Z2_OFF))
    k.I("s_lshl_b32", s(smZ), s(sw3), 12)
    k.I("s_lshl_b32", s(st0), s(stt), 7)
    k.I("s_lshl_b32", s(st1), s(sw3), 5)
    k.I("s_add_u32", s(st0), s(st0), s(st1))
    k.I("s_lshl_b32", s(sWb), s(st0), 12)
    k.I("s_lshl_b32", s(st1), s(skap), 11)
    k.I("s_add_u32", s(sWb), s(sWb), s(st1))
    k.I("s_add_u32", s(smW), s(smZ), 16384)
    def issue(c):
        sl = (c % NS) * SLOT
        def zpart():
            for i in range(4):
                k.I("s_add_u32", s(soff), s(sZb), hex((4 * c + i) * 1024))
                k.I("s_add_u32", "m0", s(smZ), hex(sl + i * 1024))
                k.vm(("S", c), "buffer_load_dwordx4", v(v16), sr(sWS, 4), s(soff), mods="offen lds")
                if os.environ.get("DIAG5") and c == 0 and i in (0, 3):
                    k.I("s_waitcnt", "vmcnt(0)"); stp.tick(10 + (i > 0))
        def wpart():
            for i in range(4):
                k.I("s_add_u32", s(soff), s(sWb), hex(i * 8 * 4096 + c * 128))
                k.I("s_add_u32", "m0", s(smW), hex(sl + i * 1024))
                k.vm(("S", c), "buffer_load_dwordx4", v(vWo + (i & 1)), sr(sSp, 4), s(soff), mods="offen lds")
                if os.environ.get("DIAG5") and c == 0 and i in (0, 3):
                    k.I("s_waitcnt", "vmcnt(0)"); stp.tick(12 + (i > 0))
        if os.environ.get("DIAG5") == "2": wpart(); zpart()
        else: zpart(); wpart()
    NST = 16
    sZ1 = k.salloc()
    k.I("s_lshl_b32", s(st0), s(stt), 2)
    k.I("s_add_u32", s(st0), s(st0), s(sw3))
    k.I("s_mul_i32", s(sZ1), s(st0), 56 * 1024)
    k.I("s_lshl_b32", s(st1), s(sft), 13)
    k.I("s_add_u32", s(sZ1), s(sZ1), s(st1))
    k.I("s_add_u32", s(sZ1), s(sZ1), hex(Z1_OFF))
    smZ1 = k.salloc()
    k.I("s_lshl_b32", s(smZ1), s(sw3), 13)
    def issue_z1(i, tag):
        k.I("s_add_u32", s(soff), s(sZ1), hex(i * 1024))
        k.I("s_add_u32", "m0", s(smZ1), hex(Z1REG + i * 1024))
        k.vm(("S", tag), "buffer_load_dwordx4", v(v16), sr(sWS, 4), s(soff), mods="offen lds")
    LT = os.environ.get("TICKWAVE", "0") != "0"
    if LT: stp.tick(1)
    issue(0)
    if LT: stp.tick(2)
    issue(1)
    if LT: stp.tick(3)
    for c in range(NST):
        k.wait_vm(("S", c))
        if LT and c < 3: stp.tick(4 + 2 * c)
        k.I("s_barrier")
        if LT and c < 3: stp.tick(5 + 2 * c)
        if c == 0: issue(2); issue(3)
        elif c + 2 < NST and c >= 2:
            issue(c + 2)
            if 3 <= c < 11: issue_z1(c - 3, c + 2)
    srd(k, sWo, pWo, 896 * 896)
    vWd = k.valloc(); sWd = k.salloc(); smD = k.salloc()
    k.I("v_lshrrev_b32", v(t0), 3, v(lane))
    k.I("v_mul_u32_u24", v(t0), 896, v(t0))
    k.I("v_bfe_u32", v(t1), v(lane), 4, 1)
    k.I("v_lshlrev_b32", v(t1), 2, v(t1))
    k.I("v_and_b32", v(t2), 7, v(lane))
    k.I("v_xor_b32", v(t1), v(t1), v(t2))
    k.I("v_lshl_add_u32", v(vWd), v(t1), 4, v(t0))
    k.I("s_mul_i32", s(sWd), s(sw3), 224 * 896)
    k.I("s_lshl_b32", s(st1), s(sft), 7)
    k.I("s_add_u32", s(sWd), s(sWd), s(st1))
    k.I("s_mul_i32", s(smD), s(sw3), 224 * 128)
    k.I("s_barrier")
    for i in range(28):
        k.I("s_add_u32", s(soff), s(sWd), hex(i * 8 * 896))
        k.I("s_add_u32", "m0", s(smD), hex(i * 1024))
        k.I("buffer_load_dwordx4", v(vWd), sr(sWo, 4), s(soff), mods="offen lds")
    k.I("s_waitcnt", "vmcnt(0)")
    k.I("s_barrier")
    k.I("s_endpgm")
    k.L(comp)
    if os.environ.get("PRIO_C"): k.I("s_setprio", int(os.environ["PRIO_C"]))
    k.vnext = vsave; k.vmq = []; k.lgq = []
    srd(k, sB, pB, 4096)
    l31 = k.valloc(); hh = k.valloc()
    k.I("v_and_b32", v(l31), 31, v(lane))
    k.I("v_lshrrev_b32", v(hh), 5, v(lane))
    sfh = k.salloc(); sth = k.salloc(); sst = k.salloc(); sf32 = k.salloc()
    k.I("s_and_b32", s(sfh), s(swave), 1)
    k.I("s_lshr_b32", s(sth), s(swave), 1)
    k.I("s_lshl_b32", s(sst), s(stt), 2)
    k.I("s_lshl_b32", s(st0), s(sth), 1)
    k.I("s_add_u32", s(sst), s(sst), s(st0))
    k.I("s_lshl_b32", s(sf32), s(sft), 2)
    k.I("s_lshl_b32", s(st0), s(sfh), 1)
    k.I("s_add_u32", s(sf32), s(sf32), s(st0))
    if os.environ.get("PF3", "0") == "1":
        vT0 = k.valloc(); vd0 = k.valloc(2)
        k.I("s_lshl_b32", s(st0), s(sidx), 8)
        k.I("v_add_u32", v(vT0), s(st0), "v0")
        k.I("s_lshl_b32", s(st1), s(skap), 16)
        k.I("s_add_u32", s(st1), s(st1), hex(Z2_OFF))
        for i in range(2):
            k.I("v_add_u32", v(t0), 7168 * i, v(vT0))
            k.I("v_lshrrev_b32", v(t1), 9, v(t0))
            k.I("v_lshlrev_b32", v(t1), 17, v(t1))
            k.I("v_and_b32", v(t2), 511, v(t0))
            k.I("v_lshl_add_u32", v(t1), v(t2), 7, v(t1))
            k.vm("pf", "buffer_load_dword", v(vd0 + i), v(t1), sr(sWS, 4), s(st1), mods="offen")
    v16 = k.valloc()
    k.I("v_lshlrev_b32", v(v16), 4, v(lane))
    vB = k.vnext
    z1 = [[k.valloc(8, 4) for _ in range(2)] for _ in range(2)]
    rr = [k.valloc(2) for _ in range(2)]; bb = [k.valloc(2) for _ in range(2)]
    k.I("v_lshlrev_b32", v(t0), 2, v(l31))
    k.I("v_lshlrev_b32", v(t1), 1, v(l31))
    for ti in range(2):
        k.I("s_add_u32", s(st0), s(sst), ti)
        k.I("s_lshl_b32", s(soff), s(st0), 7)
        k.I("s_add_u32", s(soff), s(soff), hex(RH_OFF))
        k.vm("z1", "buffer_load_dword", v(rr[ti]), v(t0), sr(sWS, 4), s(soff), mods="offen")
        k.I("s_lshl_b32", s(soff), s(st0), 6)
        k.vm("z1", "buffer_load_ushort", v(bb[ti]), v(t1), sr(sB, 4), s(soff), mods="offen")
    if os.environ.get("PF2", "0") == "1":
        pp = k.salloc(2); sP = k.salloc(4); vT = k.valloc(); vd = k.valloc(2)
        k.I("s_load_dwordx2", sr(pp, 2), "s[0:1]", 56)
        k.I("s_lshl_b32", s(st0), s(sidx), 8)
        k.I("v_add_u32", v(vT), s(st0), "v0")
        k.I("v_lshlrev_b32", v(vT), 7, v(vT))
        k.I("s_waitcnt", "lgkmcnt(0)")
        srd(k, sP, pp, 896 * 896)
        k.vm("pf", "buffer_load_dword", v(vd), v(vT), sr(sP, 4), 0, mods="offen")
    stp.stamp(0)
    aZ = k.valloc(); aW = k.valloc(4)
    k.I("s_lshl_b32", s(st0), s(sfh), 13)
    k.I("v_add_u32", v(aZ), s(st0), v(v16))
    k.I("v_bfe_u32", v(t0), v(l31), 1, 3)
    for j in range(4):
        k.I("v_add_u32", v(t1), 2 * j, v(hh))
        k.I("v_xor_b32", v(t1), v(t1), v(t0))
        k.I("v_lshlrev_b32", v(t1), 4, v(t1))
        k.I("v_lshl_add_u32", v(aW + j), v(l31), 7, v(t1))
        k.I("s_lshl_b32", s(st0), s(sth), 13)
        k.I("s_add_u32", s(st0), s(st0), 16384)
        k.I("v_add_u32", v(aW + j), s(st0), v(aW + j))
    aZ2 = k.valloc(); aW2 = k.valloc(4)
    k.I("v_add_u32", v(aZ2), 65536, v(aZ))
    for j in range(4): k.I("v_add_u32", v(aW2 + j), 65536, v(aW + j))
    acc = [[k.valloc(16, 4) for _ in range(2)] for _ in range(2)]
    NB = 3
    zf = [[k.valloc(4) for _ in range(2)] for _ in range(NB)]
    wf = [[k.valloc(4) for _ in range(2)] for _ in range(NB)]
    def rl(ks):
        c, j = ks // 4, ks % 4
        b = ks % NB
        sl = (c % NS) * SLOT
        hi = sl >= 65536
        so = sl - (65536 if hi else 0)
        out = []
        for fi in range(2):
            out.append(lambda fi=fi: k.lg(("f", ks), "ds_read_b128", vr(zf[b][fi], 4), v(aZ2 if hi else aZ), mods=f"offset:{so + fi * 4096 + j * 1024}"))
        for ti in range(2):
            out.append(lambda ti=ti: k.lg(("f", ks), "ds_read_b128", vr(wf[b][ti], 4), v((aW2 if hi else aW) + j), mods=f"offset:{so + ti * 4096}"))
        return out
    k.I("s_barrier")
    if not os.environ.get("DIAG56"): stp.stamp(1)
    for f in rl(0) + rl(1): f()
    NKS = NST * 4
    for ks in range(NKS):
        c, j = ks // 4, ks % 4
        b = ks % NB
        k.wait_lg(("f", ks))
        mf = []
        for fi in range(2):
            for ti in range(2):
                mf.append(lambda fi=fi, ti=ti: k.I("v_mfma_f32_32x32x16_bf16", vr(acc[fi][ti], 16), vr(zf[b][fi], 4), vr(wf[b][ti], 4), 0 if ks == 0 else vr(acc[fi][ti], 16)))
        fl = rl(ks + 2) if ks + 2 < NKS else []
        if j == 2 and ks + 2 < NKS:
            k.I("s_barrier")
        interleave(k, mf, fl)
    k.I("s_barrier")
    if not os.environ.get("DIAG56"): stp.stamp(2)
    vz = k.valloc()
    k.I("s_lshl_b32", s(st0), s(sth), 14)
    k.I("s_lshl_b32", s(st1), s(sfh), 12)
    k.I("s_add_u32", s(st0), s(st0), s(st1))
    k.I("s_add_u32", s(st0), s(st0), Z1REG)
    k.I("v_add_u32", v(vz), s(st0), v(v16))
    for ti in range(2):
        for fi in range(2):
            for hf_ in range(2):
                k.lg(("z1", ti, fi), "ds_read_b128", vr(z1[fi][ti] + 4 * hf_, 4), v(vz), mods=f"offset:{ti * 8192 + fi * 2048 + hf_ * 1024}")
    k.wait_vm("z1")
    for ti in range(2):
        k.I("v_lshlrev_b32", v(bb[ti]), 16, v(bb[ti]))
        k.I("v_mul_f32", v(bb[ti]), v(bb[ti]), v(rr[ti]))
    k.I("s_cmp_eq_u32", s(skap), 0)
    k.I("s_cselect_b32", s(st0), "1.0", 0)
    for ti in range(2): k.I("v_mul_f32", v(bb[ti]), s(st0), v(bb[ti]))
    tp = [k.valloc(2) for _ in range(4)]
    P = [k.valloc(8, 4) for _ in range(2)]
    sU = k.salloc()
    k.I("s_mul_i32", s(sU), s(skap), U1_OFF - U0_OFF)
    k.I("s_add_u32", s(sU), s(sU), hex(U0_OFF))
    n = 0
    for ti in range(2):
        for fi in range(2):
            A = acc[fi][ti]; Zp = z1[fi][ti]; PP = P[n & 1]; n += 1
            for j in range(8):
                k.I("v_pk_fma_f32", vr(A + 2 * j, 2), vr(A + 2 * j, 2), vr(rr[ti], 2), vr(bb[ti], 2), mods="op_sel_hi:[1,0,0]")
            k.wait_lg(("z1", ti, fi))
            for j in range(8):
                T = tp[j % 4]
                k.I("v_lshlrev_b32", v(T), 16, v(Zp + j))
                k.I("v_and_b32", v(T + 1), "0xffff0000", v(Zp + j))
                k.I("v_pk_mul_f32", vr(A + 2 * j, 2), vr(A + 2 * j, 2), vr(T, 2))
            for j in range(8): k.I("v_cvt_pk_bf16_f32", v(PP + j), v(A + 2 * j), v(A + 2 * j + 1))
            k.I("s_add_u32", s(st0), s(sst), ti)
            k.I("s_mul_i32", s(soff), s(st0), 56 * 1024)
            k.I("s_add_u32", s(st0), s(sf32), fi)
            k.I("s_lshl_b32", s(st0), s(st0), 11)
            k.I("s_add_u32", s(soff), s(soff), s(st0))
            k.I("s_add_u32", s(soff), s(soff), s(sU))
            k.I("buffer_store_dwordx4", vr(PP, 4), v(v16), sr(sWS, 4), s(soff), mods="offen")
            k.I("buffer_store_dwordx4", vr(PP + 4, 4), v(v16), sr(sWS, 4), s(soff), mods="offen offset:1024")
    stp.stamp(3)
    k.vnext = vB
    srd(k, sOut, pOD, 2048 * 896)
    srd(k, sD, pOD + 2, 256)
    srh = k.salloc(); skh = k.salloc(); sstB = k.salloc()
    k.I("s_and_b32", s(srh), s(swave), 1)
    k.I("s_lshr_b32", s(skh), s(swave), 1)
    k.I("s_lshl_b32", s(sstB), s(stt), 2)
    k.I("s_lshl_b32", s(st0), s(skap), 1)
    k.I("s_add_u32", s(sstB), s(sstB), s(st0))
    k.I("s_add_u32", s(sstB), s(sstB), s(srh))
    hr = k.valloc(8, 4)
    k.I("s_mul_i32", s(soff), s(sstB), 28 * 1024)
    k.I("s_lshl_b32", s(st0), s(sft), 1)
    k.I("s_add_u32", s(st0), s(st0), s(skh))
    sntile = k.salloc()
    k.I("s_mov_b32", s(sntile), s(st0))
    k.I("s_lshl_b32", s(st0), s(st0), 11)
    k.I("s_add_u32", s(soff), s(soff), s(st0))
    k.I("s_add_u32", s(soff), s(soff), hex(H_OFF))
    k.I("s_waitcnt", "vmcnt(0)")
    k.vmq = []
    fl = k.valloc(2); vz0 = k.valloc(); one = k.valloc()
    k.I("s_mul_i32", s(st0), s(skap), 7)
    k.I("s_add_u32", s(st0), s(st0), s(sft))
    k.I("s_lshl_b32", s(st0), s(st0), 2)
    k.I("s_add_u32", s(st0), s(st0), s(swave))
    k.I("s_lshl_b32", s(st0), s(st0), 2)
    k.I("s_lshl_b32", s(st1), s(stt), 8)
    sFL = k.salloc()
    k.I("s_add_u32", s(sFL), s(st1), hex(FL_OFF))
    k.I("s_add_u32", s(st0), s(st0), s(sFL))
    k.I("v_mov_b32", v(vz0), 0)
    k.I("v_mov_b32", v(one), 1)
    k.I("s_mov_b64", "exec", 1)
    k.I("buffer_store_dword", v(one), v(vz0), sr(sWS, 4), s(st0), mods="offen sc0 sc1")
    k.I("s_mov_b64", "exec", -1)
    k.I("buffer_load_dwordx4", vr(hr, 4), v(v16), sr(sWS, 4), s(soff), mods="offen")
    k.I("buffer_load_dwordx4", vr(hr + 4, 4), v(v16), sr(sWS, 4), s(soff), mods="offen offset:1024")
    k.I("v_min_u32", v(vz0), 55, v(lane))
    k.I("v_lshlrev_b32", v(vz0), 2, v(vz0))
    vWb = [k.valloc(), k.valloc()]
    k.I("v_bfe_u32", v(t0), v(lane), 2, 2)
    k.I("v_lshl_add_u32", v(t0), v(hh), 2, v(t0))
    k.I("s_mul_i32", s(st0), s(skh), 448)
    k.I("v_add_u32", v(t0), s(st0), v(t0))
    k.I("v_lshlrev_b32", v(t0), 7, v(t0))
    k.I("v_bfe_u32", v(t1), v(lane), 4, 1)
    k.I("v_lshlrev_b32", v(t1), 1, v(t1))
    k.I("v_bfe_u32", v(t2), v(lane), 1, 1)
    k.I("v_add_u32", v(t1), v(t1), v(t2))
    k.I("v_bfe_u32", v(t2), v(lane), 3, 1)
    k.I("v_lshlrev_b32", v(t2), 2, v(t2))
    for n2 in range(2):
        k.I("v_add_u32", v(vWb[n2]), 4 * n2, v(t1))
        k.I("v_xor_b32", v(vWb[n2]), v(vWb[n2]), v(t2))
        k.I("v_lshl_add_u32", v(vWb[n2]), v(vWb[n2]), 4, v(t0))
    k.I("v_and_b32", v(t1), 1, v(lane))
    for n2 in range(2): k.I("v_lshl_add_u32", v(vWb[n2]), v(t1), 3, v(vWb[n2]))
    sU0 = k.salloc(); sU1 = k.salloc()
    k.I("s_mul_i32", s(sU0), s(sstB), 56 * 1024)
    k.I("s_mul_i32", s(st0), s(skh), 28 * 1024)
    k.I("s_add_u32", s(sU0), s(sU0), s(st0))
    k.I("s_add_u32", s(sU1), s(sU0), hex(U1_OFF))
    k.I("s_add_u32", s(sU0), s(sU0), hex(U0_OFF))
    accB = [k.valloc(16, 4) for _ in range(2)]
    NU = 12
    uf = [[k.valloc(4) for _ in range(2)] for _ in range(NU)]
    NBW = 3
    wfB = [[k.valloc(4) for _ in range(2)] for _ in range(NBW)]
    scount = k.salloc()
    k.I("s_mov_b32", s(scount), 0)
    poll = k.newlabel("poll"); pdone = k.newlabel("pdone")
    k.L(poll)
    k.I("buffer_load_dword", v(fl), v(vz0), sr(sWS, 4), s(sFL), mods="offen sc0 sc1")
    k.I("s_waitcnt", "vmcnt(0)")
    k.I("v_cmp_ne_u32", "vcc", 1, v(fl))
    k.I("s_add_u32", s(scount), s(scount), 1)
    k.I("s_cmp_eq_u64", "vcc", 0)
    k.I("s_cbranch_scc1", pdone)
    k.I("s_cmp_lt_u32", s(scount), 0x100000)
    k.I("s_cbranch_scc0", pdone)
    k.I("s_sleep", 1)
    k.I("s_branch", poll)
    k.L(pdone)
    k.vmq = []
    stp.stamp(4)
    def uload(j):
        for ar_, sU in enumerate((sU0, sU1)):
            k.I("s_add_u32", s(soff), s(sU), hex(j * 1024))
            k.vm(("u", j), "buffer_load_dwordx4", vr(uf[j % NU][ar_], 4), v(v16), sr(sWS, 4), s(soff), mods="offen sc1")
    def wread(j):
        out = []
        for n2 in range(2):
            for beta in range(2):
                out.append(lambda n2=n2, beta=beta: k.lg(("w", j), "ds_read_b64_tr_b16", vr(wfB[j % NBW][n2] + 2 * beta, 2), v(vWb[n2]), mods=f"offset:{(16 * j + 8 * beta) * 128}"))
        return out
    for j in range(NU): uload(j)
    k.I("s_barrier")
    for f in wread(0) + wread(1): f()
    for j in range(28):
        k.wait_vm(("u", j))
        k.wait_lg(("w", j))
        mf = []
        for ar_ in range(2):
            for n2 in range(2):
                mf.append(lambda ar_=ar_, n2=n2: k.I("v_mfma_f32_32x32x16_bf16", vr(accB[n2], 16), vr(wfB[j % NBW][n2], 4), vr(uf[j % NU][ar_], 4), 0 if (j == 0 and ar_ == 0) else vr(accB[n2], 16)))
        fl_ = wread(j + 2) if j + 2 < 28 else []
        interleave(k, mf, fl_)
        if j + NU < 28: uload(j + NU)
    stp.stamp(5)
    RED = 114688
    vr1 = k.valloc(); vr2 = k.valloc()
    k.I("s_lshl_b32", s(st0), s(srh), 13)
    k.I("s_add_u32", s(st0), s(st0), RED)
    k.I("v_add_u32", v(vr1), s(st0), v(v16))
    k.I("s_lshl_b32", s(st1), s(skh), 12)
    k.I("v_add_u32", v(vr2), s(st1), v(vr1))
    k.I("s_xor_b32", s(st1), s(st1), 4096)
    k.I("v_add_u32", v(vr1), s(st1), v(vr1))
    keep = k.valloc(16, 4)
    lab_a = k.newlabel("kh1"); lab_b = k.newlabel("khj")
    k.I("s_cmp_lg_u32", s(skh), 0)
    k.I("s_cbranch_scc1", lab_a)
    for q in range(4): k.I("ds_write_b128", v(vr1), vr(accB[1] + 4 * q, 4), mods=f"offset:{q * 1024}")
    for i in range(16): k.I("v_mov_b32", v(keep + i), v(accB[0] + i))
    k.I("s_branch", lab_b)
    k.L(lab_a)
    for q in range(4): k.I("ds_write_b128", v(vr1), vr(accB[0] + 4 * q, 4), mods=f"offset:{q * 1024}")
    for i in range(16): k.I("v_mov_b32", v(keep + i), v(accB[1] + i))
    k.L(lab_b)
    k.I("s_waitcnt", "lgkmcnt(0)")
    k.lgq = []
    k.I("s_barrier")
    oth = k.valloc(16, 4)
    for q in range(4): k.I("ds_read_b128", vr(oth + 4 * q, 4), v(vr2), mods=f"offset:{q * 1024}")
    tpB = [k.valloc(2) for _ in range(4)]
    for j in range(8):
        T = tpB[j % 4]
        k.I("v_lshlrev_b32", v(T), 16, v(hr + j))
        k.I("v_and_b32", v(T + 1), "0xffff0000", v(hr + j))
        k.I("v_pk_add_f32", vr(keep + 2 * j, 2), vr(keep + 2 * j, 2), vr(T, 2))
    k.I("s_waitcnt", "lgkmcnt(0)")
    for j in range(8): k.I("v_pk_add_f32", vr(keep + 2 * j, 2), vr(keep + 2 * j, 2), vr(oth + 2 * j, 2))
    PB = k.valloc(8, 4)
    for j in range(8): k.I("v_cvt_pk_bf16_f32", v(PB + j), v(keep + 2 * j), v(keep + 2 * j + 1))
    for kp in range(2):
        k.I("v_permlane32_swap_b32", v(PB + 4 * kp), v(PB + 4 * kp + 2))
        k.I("v_permlane32_swap_b32", v(PB + 4 * kp + 1), v(PB + 4 * kp + 3))
    vo = k.valloc()
    k.I("v_mul_u32_u24", v(vo), 896, v(l31))
    k.I("v_lshl_add_u32", v(vo), v(hh), 4, v(vo))
    k.I("s_mul_i32", s(soff), s(sstB), 32 * 896)
    k.I("s_lshl_b32", s(st0), s(sntile), 6)
    k.I("s_add_u32", s(soff), s(soff), s(st0))
    for kp in range(2):
        k.I("buffer_store_dwordx4", vr(PB + 4 * kp, 4), v(vo), sr(sOut, 4), s(soff), mods=f"offen offset:{32 * kp}")
    stp.stamp(6)
    k.I("s_endpgm")
    k.L(pfrole)
    vT2 = k.valloc()
    k.I("s_sub_u32", s(st0), s(sidx), 28)
    k.I("s_lshl_b32", s(st0), s(st0), 9)
    k.I("v_add_u32", v(vT2), s(st0), "v0")
    k.I("v_lshlrev_b32", v(vT2), 7, v(vT2))
    l2_prefetch(k, 56, 896 * 896, vT2, 2048, st0)
    k.L(R["done"])
    k.I("s_endpgm")
    k.lds = lds; k.threads = 512; k.grid = 256
    return k

def gen_k6(Stamper):
    k = Kernel("k6_wout_kernel")
    NS = 5; SLOT = 24576
    RED = 0
    lds = NS * SLOT
    R = common_start(k, 224)
    swave, st0, st1, soff, lane, t0, t1, t2 = (R[x] for x in ("swave", "st0", "st1", "soff", "lane", "t0", "t1", "t2"))
    pWo = k.salloc(2); pOut = k.salloc(2); pWS = k.salloc(2)
    k.I("s_load_dwordx2", sr(pWo, 2), "s[0:1]", 56)
    k.I("s_load_dwordx2", sr(pOut, 2), "s[0:1]", 64)
    k.I("s_load_dwordx2", sr(pWS, 2), "s[0:1]", 80)
    sWS = k.salloc(4); sWo = k.salloc(4); sOut = k.salloc(4)
    sj = k.salloc(); sidx = k.salloc(); srt = k.salloc(); snt = k.salloc(); sw3 = k.salloc()
    k.I("s_and_b32", s(sj), "s2", 7)
    k.I("s_lshr_b32", s(sidx), "s2", 3)
    k.I("s_and_b32", s(sw3), s(swave), 3)
    k.I("s_mul_i32", s(st0), s(sidx), 37)
    k.I("s_lshr_b32", s(st0), s(st0), 8)
    k.I("s_mul_i32", s(st1), s(st0), 7)
    k.I("s_sub_u32", s(snt), s(sidx), s(st1))
    k.I("s_lshl_b32", s(srt), s(sj), 2)
    k.I("s_add_u32", s(srt), s(srt), s(st0))
    stp = Stamper(k, 5, sWS, swave)
    comp = k.newlabel("compute")
    k.I("s_cmp_lt_u32", s(swave), 4)
    k.I("s_cbranch_scc1", comp)
    vsave = k.vnext
    if os.environ.get("PRIO_L"): k.I("s_setprio", int(os.environ["PRIO_L"]))
    v16 = k.valloc(); vWo = k.valloc()
    k.I("v_lshlrev_b32", v(v16), 4, v(lane))
    k.I("v_lshrrev_b32", v(t0), 3, v(lane))
    k.I("v_mul_u32_u24", v(t0), 896, v(t0))
    k.I("v_bfe_u32", v(t1), v(lane), 4, 1)
    k.I("v_lshlrev_b32", v(t1), 2, v(t1))
    k.I("v_and_b32", v(t2), 7, v(lane))
    k.I("v_xor_b32", v(t1), v(t1), v(t2))
    k.I("v_lshl_add_u32", v(vWo), v(t1), 4, v(t0))
    sUb = k.salloc(); sWb = k.salloc(); smU = k.salloc(); smW = k.salloc()
    k.I("s_lshr_b32", s(st0), s(sw3), 1)
    k.I("s_lshl_b32", s(st1), s(srt), 1)
    k.I("s_add_u32", s(st1), s(st1), s(st0))
    k.I("s_mul_i32", s(sUb), s(st1), 56 * 1024)
    k.I("s_and_b32", s(st1), s(sw3), 1)
    k.I("s_mul_i32", s(smU), s(st1), U1_OFF - U0_OFF)
    k.I("s_add_u32", s(sUb), s(sUb), s(smU))
    k.I("s_add_u32", s(sUb), s(sUb), hex(U0_OFF))
    k.I("s_lshl_b32", s(smU), s(st1), 13)
    k.I("s_lshl_b32", s(st0), s(st0), 12)
    k.I("s_add_u32", s(smU), s(smU), s(st0))
    k.I("s_mul_i32", s(sWb), s(sw3), 16 * 896)
    k.I("s_lshl_b32", s(st1), s(snt), 7)
    k.I("s_add_u32", s(sWb), s(sWb), s(st1))
    k.I("s_lshl_b32", s(smW), s(sw3), 11)
    k.I("s_add_u32", s(smW), s(smW), 16384)
    srot = k.salloc(); scp = k.salloc(); sa1 = k.salloc(); sa2 = k.salloc()
    k.I("s_lshl_b32", s(st0), s(snt), 1)
    k.I("s_and_b32", s(st1), s(srt), 3)
    k.I("s_mul_i32", s(st1), s(st1), 3)
    k.I("s_add_u32", s(srot), s(st0), s(st1))
    k.I("s_cmp_ge_u32", s(srot), 14)
    k.I("s_cselect_b32", s(st0), 14, 0)
    k.I("s_sub_u32", s(srot), s(srot), s(st0))
    if not rot_on(6): k.I("s_mov_b32", s(srot), 0)
    def issue(c):
        sl = (c % NS) * SLOT
        rot_index(k, scp, srot, c, 14)
        k.I("s_lshl_b32", s(sa1), s(scp), 12)
        k.I("s_add_u32", s(sa1), s(sa1), s(sUb))
        k.I("s_mul_i32", s(sa2), s(scp), 64 * 896)
        k.I("s_add_u32", s(sa2), s(sa2), s(sWb))
        for i in range(4):
            k.I("s_add_u32", s(soff), s(sa1), hex(i * 1024))
            k.I("s_add_u32", "m0", s(smU), hex(sl + i * 1024))
            k.vm(("S", c), "buffer_load_dwordx4", v(v16), sr(sWS, 4), s(soff), mods="offen lds")
        for i in range(2):
            k.I("s_add_u32", s(soff), s(sa2), hex(8 * i * 896))
            k.I("s_add_u32", "m0", s(smW), hex(sl + i * 1024))
            k.vm(("S", c), "buffer_load_dwordx4", v(vWo), sr(sWo, 4), s(soff), mods="offen lds")
    NST = 14
    k.I("s_waitcnt", "lgkmcnt(0)")
    srd(k, sWS, pWS, WS_SIZE)
    srd(k, sWo, pWo, 896 * 896)
    for c in range(3): issue(c)
    for c in range(NST):
        k.wait_vm(("S", c))
        k.I("s_barrier")
        if c == 0: issue(3); issue(4)
        elif c + 3 < NST and c >= 2: issue(c + 3)
    k.I("s_endpgm")
    k.L(comp)
    if os.environ.get("PRIO_C"): k.I("s_setprio", int(os.environ["PRIO_C"]))
    k.vnext = vsave; k.vmq = []; k.lgq = []
    l31 = k.valloc(); hh = k.valloc()
    k.I("v_and_b32", v(l31), 31, v(lane))
    k.I("v_lshrrev_b32", v(hh), 5, v(lane))
    srh = k.salloc(); snh = k.salloc(); sst = k.salloc(); sntile = k.salloc()
    k.I("s_and_b32", s(srh), s(swave), 1)
    k.I("s_lshr_b32", s(snh), s(swave), 1)
    k.I("s_lshl_b32", s(sst), s(srt), 1)
    k.I("s_add_u32", s(sst), s(sst), s(srh))
    k.I("s_lshl_b32", s(sntile), s(snt), 1)
    k.I("s_add_u32", s(sntile), s(sntile), s(snh))
    if os.environ.get("PF3", "0") == "1":
        vT0 = k.valloc(); vd0 = k.valloc(2)
        k.I("s_lshl_b32", s(st0), s(sidx), 8)
        k.I("v_add_u32", v(vT0), s(st0), "v0")
        k.I("v_mov_b32", v(t0), hex(U1_OFF - U0_OFF - 3584 * 128))
        k.I("v_cmp_le_u32", "vcc", 3584, v(vT0))
        k.I("v_cndmask_b32", v(t0), 0, v(t0), "vcc")
        k.I("v_lshl_add_u32", v(t0), v(vT0), 7, v(t0))
        k.I("s_mul_i32", s(st1), s(sj), 8 * 56 * 1024)
        k.I("s_add_u32", s(st1), s(st1), hex(U0_OFF))
        k.vm("pf", "buffer_load_dword", v(vd0), v(t0), sr(sWS, 4), s(st1), mods="offen")
    v16 = k.valloc()
    k.I("v_lshlrev_b32", v(v16), 4, v(lane))
    hr = k.valloc(8, 4)
    k.I("s_mul_i32", s(soff), s(sst), 28 * 1024)
    k.I("s_lshl_b32", s(st0), s(sntile), 11)
    k.I("s_add_u32", s(soff), s(soff), s(st0))
    k.I("s_add_u32", s(soff), s(soff), hex(H_OFF))
    k.I("s_waitcnt", "lgkmcnt(0)")
    srd(k, sWS, pWS, WS_SIZE)
    srd(k, sOut, pOut, 2048 * 896)
    k.vm("h", "buffer_load_dwordx4", vr(hr, 4), v(v16), sr(sWS, 4), s(soff), mods="offen")
    k.vm("h", "buffer_load_dwordx4", vr(hr + 4, 4), v(v16), sr(sWS, 4), s(soff), mods="offen offset:1024")
    stp.stamp(0)
    aU = k.valloc(); vW = k.valloc()
    k.I("s_lshl_b32", s(st0), s(srh), 12)
    k.I("v_add_u32", v(aU), s(st0), v(v16))
    k.I("v_bfe_u32", v(t0), v(lane), 2, 2)
    k.I("v_lshl_add_u32", v(t0), v(hh), 2, v(t0))
    k.I("v_lshlrev_b32", v(vW), 7, v(t0))
    k.I("v_add_u32", v(vW), 16384, v(vW))
    k.I("v_bfe_u32", v(t0), v(lane), 4, 1)
    k.I("v_lshlrev_b32", v(t0), 1, v(t0))
    k.I("v_bfe_u32", v(t1), v(lane), 1, 1)
    k.I("v_add_u32", v(t0), v(t0), v(t1))
    k.I("s_lshl_b32", s(st0), s(snh), 2)
    k.I("v_add_u32", v(t0), s(st0), v(t0))
    k.I("v_bfe_u32", v(t1), v(lane), 3, 1)
    k.I("v_lshlrev_b32", v(t1), 2, v(t1))
    k.I("v_xor_b32", v(t0), v(t0), v(t1))
    k.I("v_lshl_add_u32", v(vW), v(t0), 4, v(vW))
    k.I("v_and_b32", v(t0), 1, v(lane))
    k.I("v_lshl_add_u32", v(vW), v(t0), 3, v(vW))
    aU2 = k.valloc(); vW2 = k.valloc()
    k.I("v_add_u32", v(aU2), 3 * SLOT, v(aU))
    k.I("v_add_u32", v(vW2), 3 * SLOT, v(vW))
    acc = k.valloc(16, 4)
    NB = 3
    uf = [[k.valloc(4) for _ in range(2)] for _ in range(NB)]; wf = [k.valloc(4) for _ in range(NB)]
    def rl(ks):
        c, j = ks // 4, ks % 4
        b = ks % NB
        sl = (c % NS)
        hi = sl >= 3
        so = (sl - (3 if hi else 0)) * SLOT
        out = []
        for ar_ in range(2):
            out.append(lambda ar_=ar_: k.lg(("f", ks), "ds_read_b128", vr(uf[b][ar_], 4), v(aU2 if hi else aU), mods=f"offset:{so + ar_ * 8192 + j * 1024}"))
        for beta in range(2):
            o = so + (16 * j + 8 * beta) * 128
            out.append(lambda o=o, beta=beta: k.lg(("f", ks), "ds_read_b64_tr_b16", vr(wf[b] + 2 * beta, 2), v(vW2 if hi else vW), mods=f"offset:{o}"))
        return out
    k.I("s_barrier")
    stp.stamp(1)
    for f in rl(0) + rl(1): f()
    NKS = NST * 4
    for ks in range(NKS):
        c, j = ks // 4, ks % 4
        b = ks % NB
        k.wait_lg(("f", ks))
        mf = [lambda ar_=ar_: k.I("v_mfma_f32_32x32x16_bf16", vr(acc, 16), vr(wf[b], 4), vr(uf[b][ar_], 4), 0 if (ks == 0 and ar_ == 0) else vr(acc, 16)) for ar_ in range(2)]
        fl = rl(ks + 2) if ks + 2 < NKS else []
        if j == 2 and ks + 2 < NKS: k.I("s_barrier")
        interleave(k, mf, fl)
    stp.stamp(2)
    k.wait_vm("h")
    tp = [k.valloc(2) for _ in range(4)]
    for j in range(8):
        T = tp[j % 4]
        k.I("v_lshlrev_b32", v(T), 16, v(hr + j))
        k.I("v_and_b32", v(T + 1), "0xffff0000", v(hr + j))
        k.I("v_pk_add_f32", vr(acc + 2 * j, 2), vr(acc + 2 * j, 2), vr(T, 2))
    P = k.valloc(8, 4)
    for j in range(8): k.I("v_cvt_pk_bf16_f32", v(P + j), v(acc + 2 * j), v(acc + 2 * j + 1))
    for kp in range(2):
        k.I("v_permlane32_swap_b32", v(P + 4 * kp), v(P + 4 * kp + 2))
        k.I("v_permlane32_swap_b32", v(P + 4 * kp + 1), v(P + 4 * kp + 3))
    vo = k.valloc()
    k.I("v_mul_u32_u24", v(vo), 896, v(l31))
    k.I("v_lshl_add_u32", v(vo), v(hh), 4, v(vo))
    k.I("s_mul_i32", s(soff), s(sst), 32 * 896)
    k.I("s_lshl_b32", s(st0), s(sntile), 6)
    k.I("s_add_u32", s(soff), s(soff), s(st0))
    for kp in range(2):
        k.I("buffer_store_dwordx4", vr(P + 4 * kp, 4), v(vo), sr(sOut, 4), s(soff), mods=f"offen offset:{32 * kp}")
    stp.stamp(3)
    if os.environ.get("SPIN"):
        ka, ja, kb, jb = [int(x) for x in os.environ["SPIN"].split(",")]
        sa_ = k.salloc(2); sb_ = k.salloc(2); sn_ = k.salloc(2); sq_ = k.salloc(2)
        lab = k.newlabel("spin"); out_ = k.newlabel("spun")
        k.I("s_or_b32", s(st0), "s2", s(swave))
        k.I("s_cmp_lg_u32", s(st0), 0)
        k.I("s_cbranch_scc1", out_)
        k.I("s_mov_b32", s(st0), hex(STAMP_OFF + ka * 256 * 64 + ja * 8))
        k.I("s_load_dwordx2", sr(sa_, 2), sr(pWS, 2), s(st0))
        k.I("s_mov_b32", s(st1), hex(STAMP_OFF + max(kb, 0) * 256 * 64 + jb * 8))
        if kb >= 0: k.I("s_load_dwordx2", sr(sb_, 2), sr(pWS, 2), s(st1))
        else: k.I("s_memrealtime", sr(sb_, 2))
        k.I("s_memrealtime", sr(sn_, 2))
        k.I("s_waitcnt", "lgkmcnt(0)")
        k.I("s_sub_u32", s(sa_), s(sb_), s(sa_))
        k.I("s_min_u32", s(sa_), s(sa_), 20000)
        k.I("s_add_u32", s(sn_), s(sn_), s(sa_))
        k.L(lab)
        k.I("s_memrealtime", sr(sq_, 2))
        k.I("s_waitcnt", "lgkmcnt(0)")
        k.I("s_sub_u32", s(sq_), s(sq_), s(sn_))
        k.I("s_cmp_lt_i32", s(sq_), 0)
        k.I("s_cbranch_scc1", lab)
        k.L(out_)
    k.L(R["done"])
    k.I("s_endpgm")
    k.lds = lds; k.threads = 512; k.grid = 224
    return k

def rest(Stamper):
    if os.environ.get("MERGE56", "0") == "1":
        return [gen_k2(Stamper), gen_k3(Stamper), gen_k4(Stamper), gen_k56(Stamper)]
    return [gen_k2(Stamper), gen_k3(Stamper), {'b': gen_k4b, 'c': gen_k4c, '0': gen_k4}[os.environ.get('K4V', 'b')](Stamper), gen_k5(Stamper), gen_k6(Stamper)]
```

```python
import os, struct, math
from asmlib import *
from layout import *
WS_SIZE = 0x10000000
def f32(x): return struct.unpack("<I", struct.pack("<f", x))[0]

def srd(k, dst, base, size):
    k.I("s_mov_b32", s(dst), s(base))
    k.I("s_and_b32", s(dst + 1), s(base + 1), "0xffff")
    k.I("s_mov_b32", s(dst + 2), hex(size) if isinstance(size, int) else size)
    k.I("s_mov_b32", s(dst + 3), "0x20000")

def gen_k2(Stamper):
    k = Kernel("k2_attn_kernel")
    k.snext = 4; k.vnext = 1
    KREG = 0; VREG = 24576
    lds = 49152
    done = k.newlabel("done")
    k.I("s_cmp_ge_u32", "s2", 256)
    k.I("s_cbranch_scc1", done)
    pWS = k.salloc(2); pPo = k.salloc(2); pPi = k.salloc(2)
    k.I("s_load_dwordx2", sr(pWS, 2), "s[0:1]", 80)
    k.I("s_load_dwordx2", sr(pPo, 2), "s[0:1]", 16)
    k.I("s_load_dwordx2", sr(pPi, 2), "s[0:1]", 32)
    sWS = k.salloc(4); sPo = k.salloc(4); sPi = k.salloc(4)
    swave = k.salloc(); srb = k.salloc(); shd = k.salloc(); st0 = k.salloc(); st1 = k.salloc(); soff = k.salloc()
    lane = k.valloc(); t0 = k.valloc(); t1 = k.valloc(); l15 = k.valloc(); gg = k.valloc()
    k.I("v_lshrrev_b32", v(t0), 6, "v0")
    k.I("v_and_b32", v(lane), 63, "v0")
    k.I("v_readfirstlane_b32", s(swave), v(t0))
    map_rb_hd(k, srb, shd, st0, st1)
    stp = Stamper(k, 1, sWS, swave)
    v16 = k.valloc()
    k.I("v_lshlrev_b32", v(v16), 4, v(lane))
    sb = k.salloc(); sm = k.salloc(); s16q = k.salloc()
    k.I("s_lshl_b32", s(sb), s(shd), 17)
    k.I("s_lshl_b32", s(st0), s(srb), 13)
    k.I("s_add_u32", s(sb), s(sb), s(st0))
    k.I("s_mul_i32", s(sm), s(swave), 3072)
    k.I("s_lshl_b32", s(s16q), s(srb), 3)
    k.I("s_add_u32", s(s16q), s(s16q), s(swave))
    k.I("s_waitcnt", "lgkmcnt(0)")
    srd(k, sWS, pWS, WS_SIZE)
    srd(k, sPo, pPo, 448 * 896)
    srd(k, sPi, pPi, 448 * 3584)
    qf = k.valloc(4)
    k.I("s_lshl_b32", s(st0), s(swave), 10)
    k.I("s_add_u32", s(st0), s(st0), s(sb))
    k.I("s_add_u32", s(soff), s(st0), hex(Q_OFF))
    k.vm("q", "buffer_load_dwordx4", vr(qf, 4), v(v16), sr(sWS, 4), s(soff), mods="offen")
    k.I("s_add_u32", s(st1), s(sb), s(sm))
    for (reg, off) in ((KREG, K_OFF), (VREG, V_OFF)):
        for i in range(3):
            k.I("s_add_u32", s(soff), s(st1), hex(off - 16384 + i * 1024))
            k.I("s_add_u32", "m0", s(sm), hex(reg + i * 1024))
            k.vm("k" if reg == KREG else "v", "buffer_load_dwordx4", v(v16), sr(sWS, 4), s(soff), mods="offen lds")
    sidx2 = k.salloc()
    k.I("s_lshr_b32", s(sidx2), "s2", 3)
    code_prefetch(k, "k3_wo_kernel", sidx2, st0)
    stp.stamp(0)
    k.I("v_and_b32", v(l15), 15, v(lane))
    k.I("v_lshrrev_b32", v(gg), 4, v(lane))
    M = [k.salloc(2) for _ in range(4)]
    k.I("v_lshlrev_b32", v(t0), 2, v(gg))
    for i in range(4):
        k.I("v_add_u32", v(t1), i, v(t0))
        k.I("v_cmp_gt_u32", sr(M[i], 2), v(t1), v(l15))
    aK = k.valloc(); aV = k.valloc()
    k.I("s_lshl_b32", s(st0), s(swave), 10)
    k.I("v_add_u32", v(aK), s(st0), v(v16))
    k.I("v_lshlrev_b32", v(aV), 3, v(lane))
    k.I("s_add_u32", s(st0), s(st0), VREG)
    k.I("v_add_u32", v(aV), s(st0), v(aV))
    S = k.valloc(68, 4)
    kf = [k.valloc(4) for _ in range(6)]
    neg = k.valloc()
    k.I("v_mov_b32", v(neg), hex(f32(-1e30)))
    k.wait_vm(["q", "k"])
    k.I("s_barrier")
    stp.stamp(1)
    NKF = 6
    for j in range(min(NKF, 17)):
        k.lg(("k", j), "ds_read_b128", vr(kf[j % NKF], 4), v(aK), mods=f"offset:{j * 1024}")
    for j in range(17):
        k.wait_lg(("k", j))
        k.I("v_mfma_f32_16x16x32_bf16", vr(S + 4 * j, 4), vr(kf[j % NKF], 4), vr(qf, 4), 0)
        if j + NKF < 17:
            k.lg(("k", j + NKF), "ds_read_b128", vr(kf[j % NKF], 4), v(aK), mods=f"offset:{(j + NKF) * 1024}")
    if os.environ.get("PFK2", "1") == "1":
        vd2 = k.valloc(2)
        k.I("s_lshl_b32", s(st0), s(sidx2), 3)
        k.I("s_add_u32", s(st0), s(st0), s(swave))
        k.I("s_mul_i32", s(st1), s(st0), 13 * 128)
        k.I("v_lshlrev_b32", v(t0), 7, v(lane))
        k.I("v_mov_b32", v(t1), "0x7fffff00")
        k.I("v_cmp_gt_u32", "vcc", 13, v(lane))
        k.I("v_cndmask_b32", v(t0), v(t1), v(t0), "vcc")
        k.vm("pf", "buffer_load_dword", v(vd2), v(t0), sr(sPo, 4), s(st1), mods="offen")
        k.I("s_mul_i32", s(st1), s(st0), 25)
        k.I("v_add_u32", v(t0), s(st1), v(lane))
        k.I("v_mul_u32_u24", v(t1), 37450, v(t0))
        k.I("v_lshrrev_b32", v(t1), 19, v(t1))
        k.I("v_mul_u32_u24", v(vd2 + 1), 14, v(t1))
        k.I("v_sub_u32", v(t0), v(t0), v(vd2 + 1))
        k.I("v_mul_u32_u24", v(t1), 3584, v(t1))
        k.I("v_lshl_add_u32", v(t1), v(t0), 7, v(t1))
        k.I("v_add_u32", v(vd2 + 1), 1792 - 896, v(t1))
        k.I("v_cmp_le_u32", "vcc", 7, v(t0))
        k.I("v_cndmask_b32", v(t1), v(t1), v(vd2 + 1), "vcc")
        k.I("v_mov_b32", v(t0), "0x7fffff00")
        k.I("v_cmp_gt_u32", "vcc", 25, v(lane))
        k.I("v_cndmask_b32", v(t1), v(t0), v(t1), "vcc")
        k.I("s_and_b32", s(st1), "s2", 1)
        k.I("s_mul_i32", s(st1), s(st1), 896)
        k.vm("pf", "buffer_load_dword", v(vd2 + 1), v(t1), sr(sPi, 4), s(st1), mods="offen")
    vf = k.valloc(9 * 2 * 4, 4)
    def vread(kp):
        for dt in range(2):
            for beta in range(2):
                tile = min(2 * kp + beta, 16)
                k.lg(("v", kp), "ds_read_b64", vr(vf + (kp * 2 + dt) * 4 + 2 * beta, 2), v(aV), mods=f"offset:{tile * 1024 + dt * 512}")
    for i in range(4):
        k.I("v_cndmask_b32", v(S + i), v(neg), v(S + i), sr(M[i], 2))
        k.I("v_cndmask_b32", v(S + 64 + i), v(S + 64 + i), v(neg), sr(M[i], 2))
    nofix = k.newlabel("nofix")
    k.I("s_cmp_ge_u32", s(s16q), 16)
    k.I("s_cbranch_scc1", nofix)
    k.I("s_sub_u32", s(st0), 16, s(s16q))
    for j in range(16):
        lab = k.newlabel("sk")
        k.I("s_cmp_le_u32", s(st0), j)
        k.I("s_cbranch_scc1", lab)
        for i in range(4): k.I("v_mov_b32", v(S + 4 * j + i), v(neg))
        k.L(lab)
    k.L(nofix)
    mx = k.valloc(4)
    for c in range(4):
        k.I("v_max3_f32", v(mx + c), v(S + c * 17), v(S + c * 17 + 1), v(S + c * 17 + 2))
    for r in range(7):
        for c in range(4):
            b = c * 17 + 3 + 2 * r
            k.I("v_max3_f32", v(mx + c), v(mx + c), v(S + b), v(S + b + 1))
    k.I("v_max3_f32", v(mx), v(mx), v(mx + 1), v(mx + 2))
    k.I("v_max_f32", v(mx), v(mx), v(mx + 3))
    for sw in ("v_permlane16_swap_b32", "v_permlane32_swap_b32"):
        k.I("v_mov_b32", v(mx + 1), v(mx))
        k.I(sw, v(mx), v(mx + 1))
        k.I("v_max_f32", v(mx), v(mx), v(mx + 1))
    cs = 28 ** -0.5 * math.log2(math.e)
    sc = k.salloc()
    k.I("s_mov_b32", s(sc), hex(f32(cs)))
    k.I("v_mul_f32", v(mx), hex(f32(-cs)), v(mx))
    k.wait_vm("v")
    k.I("s_barrier")
    for kp in range(4): vread(kp)
    P = k.valloc(36, 4)
    k.I("v_mov_b32", v(P + 34), 0); k.I("v_mov_b32", v(P + 35), 0)
    O = [k.valloc(4), k.valloc(4)]
    def softmax_tile(j):
        for i in range(4): k.I("v_fma_f32", v(S + 4 * j + i), v(S + 4 * j + i), s(sc), v(mx))
        for i in range(4): k.I("v_exp_f32", v(S + 4 * j + i), v(S + 4 * j + i))
    def pack_tile(j):
        k.I("v_cvt_pk_bf16_f32", v(P + 2 * j), v(S + 4 * j), v(S + 4 * j + 1))
        k.I("v_cvt_pk_bf16_f32", v(P + 2 * j + 1), v(S + 4 * j + 2), v(S + 4 * j + 3))
    for kp in range(9):
        tiles = [2 * kp, 2 * kp + 1] if kp < 8 else [16]
        for j in tiles: softmax_tile(j)
        for j in tiles: pack_tile(j)
        if kp == 1:
            for q in range(4, 7): vread(q)
        if kp == 4:
            for q in range(7, 9): vread(q)
        if kp >= 1:
            q = kp - 1
            k.wait_lg(("v", q))
            for dt in range(2):
                k.I("v_mfma_f32_16x16x32_bf16", vr(O[dt], 4), vr(vf + (q * 2 + dt) * 4, 4), vr(P + 4 * q, 4), 0 if q == 0 else vr(O[dt], 4))
    k.wait_lg(("v", 8))
    for dt in range(2):
        k.I("v_mfma_f32_16x16x32_bf16", vr(O[dt], 4), vr(vf + (8 * 2 + dt) * 4, 4), vr(P + 32, 4), vr(O[dt], 4))
    la = k.valloc(); lb = k.valloc()
    k.I("v_mov_b32", v(la), v(O[1])); k.I("v_mov_b32", v(lb), v(O[1]))
    k.I("v_permlane32_swap_b32", v(la), v(lb))
    k.I("v_mov_b32", v(la), v(lb))
    k.I("v_permlane16_swap_b32", v(la), v(lb))
    k.I("v_rcp_f32", v(lb), v(lb))
    for dt in range(2):
        for i in range(4): k.I("v_mul_f32", v(O[dt] + i), v(O[dt] + i), v(lb))
    pk = k.valloc(4)
    for dt in range(2):
        k.I("v_cvt_pk_bf16_f32", v(pk + 2 * dt), v(O[dt]), v(O[dt] + 1))
        k.I("v_cvt_pk_bf16_f32", v(pk + 2 * dt + 1), v(O[dt] + 2), v(O[dt] + 3))
    k.I("v_cmp_gt_u32", "vcc", 3, v(gg))
    k.I("v_cndmask_b32", v(pk + 2), 0, v(pk + 2), "vcc")
    k.I("v_cndmask_b32", v(pk + 3), 0, v(pk + 3), "vcc")
    vo = k.valloc()
    k.I("s_and_b32", s(st0), s(swave), 1)
    k.I("s_lshl_b32", s(st0), s(st0), 8)
    k.I("v_lshlrev_b32", v(vo), 4, v(l15))
    k.I("v_add_u32", v(vo), s(st0), v(vo))
    k.I("v_lshrrev_b32", v(t0), 1, v(gg))
    k.I("v_lshl_add_u32", v(vo), v(t0), 9, v(vo))
    k.I("v_and_b32", v(t0), 1, v(gg))
    k.I("v_lshl_add_u32", v(vo), v(t0), 3, v(vo))
    k.I("s_lshl_b32", s(st0), s(srb), 2)
    k.I("s_lshr_b32", s(st1), s(swave), 1)
    k.I("s_add_u32", s(st0), s(st0), s(st1))
    k.I("s_lshl_b32", s(st0), s(st0), 15)
    k.I("s_lshl_b32", s(st1), s(shd), 11)
    k.I("s_add_u32", s(st0), s(st0), s(st1))
    k.I("s_add_u32", s(soff), s(st0), hex(O_OFF))
    for dt in range(2):
        k.I("buffer_store_dwordx2", vr(pk + 2 * dt, 2), v(vo), sr(sWS, 4), s(soff), mods=f"offen offset:{dt * 1024}")
    stp.stamp(2)
    k.L(done)
    k.I("s_endpgm")
    k.lds = lds; k.threads = 512; k.grid = 256
    return k


def code_prefetch(k, nxt, sidx, tmp_s, tid="v0"):
    if os.environ.get("PFC", "1") != "1": return
    pp = k.salloc(2); sP = k.salloc(4); vT = k.valloc(); vd = k.valloc()
    lab = k.newlabel("pc")
    k.I("s_getpc_b64", sr(pp, 2))
    k.L(lab)
    k.I("s_add_u32", s(pp), s(pp), f"{nxt}-{lab}")
    k.I("s_addc_u32", s(pp + 1), s(pp + 1), 0)
    srd(k, sP, pp, f"{nxt}_end-{nxt}")
    k.I("s_lshl_b32", s(tmp_s), s(sidx), 8)
    k.I("v_add_u32", v(vT), s(tmp_s), tid)
    k.I("v_lshlrev_b32", v(vT), 7, v(vT))
    k.vm("pfc", "buffer_load_dword", v(vd), v(vT), sr(sP, 4), 0, mods="offen")

def l2_prefetch(k, kernarg_off, nbytes, vT128, nthreads, tmp_s):
    if os.environ.get("PFT", "1") != "1": return
    pp = k.salloc(2); sP = k.salloc(4)
    k.I("s_load_dwordx2", sr(pp, 2), "s[0:1]", kernarg_off)
    k.I("s_waitcnt", "lgkmcnt(0)")
    srd(k, sP, pp, nbytes)
    n = -(-nbytes // (128 * nthreads))
    for i in range(n):
        vd = k.valloc()
        k.I("s_mov_b32", s(tmp_s), hex(i * nthreads * 128))
        k.vm("pft", "buffer_load_dword", v(vd), v(vT128), sr(sP, 4), s(tmp_s), mods="offen")

def mall_prefetch(k, kernarg_off, nbytes, first, per, nw, swave, lane, tmp_s, tv0, tv1, flag="PFM"):
    if os.environ.get(flag, "1") != "1": return
    pp = k.salloc(2); sP = k.salloc(4); vd = k.valloc()
    k.I("s_load_dwordx2", sr(pp, 2), "s[0:1]", kernarg_off)
    k.I("s_mul_i32", s(tmp_s), "s2", nw)
    k.I("s_add_u32", s(tmp_s), s(tmp_s), s(swave))
    k.I("s_mul_i32", s(tmp_s), s(tmp_s), per)
    k.I("s_add_u32", s(tmp_s), s(tmp_s), first)
    k.I("s_lshl_b32", s(tmp_s), s(tmp_s), 7)
    k.I("v_lshlrev_b32", v(tv0), 7, v(lane))
    k.I("v_mov_b32", v(tv1), "0x7fffff00")
    k.I("v_cmp_gt_u32", "vcc", per, v(lane))
    k.I("v_cndmask_b32", v(tv0), v(tv1), v(tv0), "vcc")
    k.I("s_waitcnt", "lgkmcnt(0)")
    k.lgq = []
    srd(k, sP, pp, nbytes)
    k.vm("pfm", "buffer_load_dword", v(vd), v(tv0), sr(sP, 4), s(tmp_s), mods="offen")

def map_rb_hd(k, srb, shd, st0, st1):
    if os.environ.get("MAP48", "1") == "1":
        k.I("s_and_b32", s(st0), "s2", 7)
        k.I("s_lshr_b32", s(st1), "s2", 3)
        k.I("s_and_b32", s(shd), s(st1), 7)
        k.I("s_lshr_b32", s(st1), s(st1), 3)
        k.I("s_lshr_b32", s(srb), s(st0), 1)
        k.I("s_lshl_b32", s(srb), s(srb), 2)
        k.I("s_add_u32", s(srb), s(srb), s(st1))
        k.I("s_and_b32", s(st0), s(st0), 1)
        k.I("s_lshl_b32", s(st0), s(st0), 3)
        k.I("s_add_u32", s(shd), s(shd), s(st0))
    else:
        k.I("s_and_b32", s(st0), "s2", 7)
        k.I("s_lshr_b32", s(st1), "s2", 3)
        k.I("s_and_b32", s(shd), s(st1), 15)
        k.I("s_lshr_b32", s(st1), s(st1), 4)
        k.I("s_lshl_b32", s(srb), s(st0), 1)
        k.I("s_add_u32", s(srb), s(srb), s(st1))

def rot_index(k, dst, srot, c, n):
    k.I("s_add_u32", s(dst), s(srot), c)
    k.I("s_cmp_ge_u32", s(dst), n)
    k.I("s_cselect_b32", "s3", n, 0)
    k.I("s_sub_u32", s(dst), s(dst), "s3")

ROTS = os.environ.get("ROT", "1")
def rot_on(n): return str(n) in ROTS

def common_start(k, nwg):
    k.snext = 4; k.vnext = 1
    done = k.newlabel("done")
    k.I("s_cmp_ge_u32", "s2", nwg)
    k.I("s_cbranch_scc1", done)
    R = dict(done=done)
    R["swave"] = k.salloc(); R["st0"] = k.salloc(); R["st1"] = k.salloc(); R["soff"] = k.salloc()
    R["lane"] = k.valloc(); R["t0"] = k.valloc(); R["t1"] = k.valloc(); R["t2"] = k.valloc()
    k.I("v_lshrrev_b32", v(R["t0"]), 6, "v0")
    k.I("v_and_b32", v(R["lane"]), 63, "v0")
    k.I("v_readfirstlane_b32", s(R["swave"]), v(R["t0"]))
    return R

def interleave(k, mf, fl):
    n = len(fl); m = len(mf)
    cuts = [(i * n + m - 1) // m for i in range(m + 1)]
    cuts[-1] = n
    for i in range(m):
        mf[i]()
        for f in fl[cuts[i]:cuts[i + 1]]: f()

def stats_from_packed(k, P, n, accs, accq, tmp):
    for j in range(n):
        t = tmp[j % len(tmp)]
        k.I("v_lshlrev_b32", v(t), 16, v(P + j))
        k.I("v_and_b32", v(t + 1), "0xffff0000", v(P + j))
        if j == 0:
            k.I("v_pk_mul_f32", vr(accq, 2), vr(t, 2), vr(t, 2))
            k.I("v_mov_b32", v(accs), v(t)); k.I("v_mov_b32", v(accs + 1), v(t + 1))
        else:
            k.I("v_pk_add_f32", vr(accs, 2), vr(accs, 2), vr(t, 2))
            k.I("v_pk_fma_f32", vr(accq, 2), vr(t, 2), vr(t, 2), vr(accq, 2))
    k.I("v_add_f32", v(accs), v(accs), v(accs + 1))
    k.I("v_add_f32", v(accq), v(accq), v(accq + 1))
    for r_ in (accs, accq):
        k.I("v_mov_b32", v(r_ + 1), v(r_))
        k.I("v_permlane32_swap_b32", v(r_), v(r_ + 1))
        k.I("v_add_f32", v(r_), v(r_), v(r_ + 1))

def gen_k3(Stamper):
    k = Kernel("k3_wo_kernel")
    WREG = 0; OREG = 58368
    XT = OREG + 65536
    lds = XT + 8192
    R = common_start(k, 256)
    swave, st0, st1, soff, lane, t0, t1, t2 = (R[x] for x in ("swave", "st0", "st1", "soff", "lane", "t0", "t1", "t2"))
    pX = k.salloc(2); pWo = k.salloc(2); pWin = k.salloc(2); pWS = k.salloc(2)
    k.I("s_load_dwordx2", sr(pX, 2), "s[0:1]", 0)
    k.I("s_load_dwordx2", sr(pWo, 2), "s[0:1]", 16)
    k.I("s_load_dwordx2", sr(pWin, 2), "s[0:1]", 32)
    k.I("s_load_dwordx2", sr(pWS, 2), "s[0:1]", 80)
    sWS = k.salloc(4); sWo = k.salloc(4); sX = k.salloc(4)
    sj = k.salloc(); sidx = k.salloc(); srt = k.salloc(); snt = k.salloc(); sw3 = k.salloc()
    k.I("s_and_b32", s(sj), "s2", 7)
    k.I("s_lshr_b32", s(sidx), "s2", 3)
    k.I("s_and_b32", s(sw3), s(swave), 3)
    stp = Stamper(k, 2, sWS, swave)
    aux = k.newlabel("aux")
    k.I("s_cmp_ge_u32", s(sidx), 28)
    k.I("s_cbranch_scc1", aux)
    k.I("s_mul_i32", s(st0), s(sidx), 37)
    k.I("s_lshr_b32", s(st0), s(st0), 8)
    k.I("s_mul_i32", s(st1), s(st0), 7)
    k.I("s_sub_u32", s(snt), s(sidx), s(st1))
    k.I("s_lshl_b32", s(srt), s(sj), 2)
    k.I("s_add_u32", s(srt), s(srt), s(st0))
    comp = k.newlabel("compute")
    k.I("s_cmp_lt_u32", s(swave), 4)
    k.I("s_cbranch_scc1", comp)
    vsave = k.vnext
    if os.environ.get("PRIO_L"): k.I("s_setprio", int(os.environ["PRIO_L"]))
    v16 = k.valloc(); vWo = k.valloc()
    k.I("v_lshlrev_b32", v(v16), 4, v(lane))
    k.I("v_lshrrev_b32", v(t0), 3, v(lane))
    k.I("v_mul_u32_u24", v(t0), 896, v(t0))
    k.I("v_bfe_u32", v(t1), v(lane), 4, 1)
    k.I("v_lshlrev_b32", v(t1), 2, v(t1))
    k.I("v_and_b32", v(t2), 7, v(lane))
    k.I("v_xor_b32", v(t1), v(t1), v(t2))
    k.I("v_lshl_add_u32", v(vWo), v(t1), 4, v(t0))
    sOb = k.salloc(); sWb = k.salloc(); smO = k.salloc(); smW = k.salloc()
    k.I("s_lshl_b32", s(sOb), s(srt), 16)
    k.I("s_lshl_b32", s(st0), s(sw3), 10)
    k.I("s_add_u32", s(sOb), s(sOb), s(st0))
    k.I("s_add_u32", s(sOb), s(sOb), hex(O_OFF))
    k.I("s_add_u32", s(smO), s(st0), OREG)
    k.I("s_mul_i32", s(sWb), s(sw3), 8 * 896)
    k.I("s_lshl_b32", s(st1), s(snt), 7)
    k.I("s_add_u32", s(sWb), s(sWb), s(st1))
    k.I("s_add_u32", s(smW), s(st0), WREG)
    def issue(c):
        for r2 in range(2):
            k.I("s_add_u32", s(soff), s(sOb), hex(r2 * 32768 + c * 4096))
            k.I("s_add_u32", "m0", s(smO), hex(r2 * 32768 + c * 4096))
            k.vm(("S", c), "buffer_load_dwordx4", v(v16), sr(sWS, 4), s(soff), mods="offen lds")
        for i in range(2):
            k.I("s_add_u32", s(soff), s(sWb), hex((56 * c + 32 * i) * 896))
            k.I("s_add_u32", "m0", s(smW), hex((56 * c + 32 * i) * 128))
            k.vm(("S", c), "buffer_load_dwordx4", v(vWo), sr(sWo, 4), s(soff), mods="offen lds")
    k.I("s_waitcnt", "lgkmcnt(0)")
    srd(k, sWS, pWS, WS_SIZE)
    srd(k, sWo, pWo, 448 * 896)
    vXo = k.valloc(); sXb = k.salloc(); smX = k.salloc()
    k.I("v_lshrrev_b32", v(t0), 3, v(lane))
    k.I("v_and_b32", v(t1), 7, v(lane))
    k.I("v_xor_b32", v(t1), v(t1), v(t0))
    k.I("v_mul_u32_u24", v(t0), 896, v(t0))
    k.I("v_lshl_add_u32", v(vXo), v(t1), 4, v(t0))
    k.I("s_lshl_b32", s(st0), s(srt), 6)
    k.I("s_lshl_b32", s(st1), s(sw3), 4)
    k.I("s_add_u32", s(st0), s(st0), s(st1))
    k.I("s_mul_i32", s(sXb), s(st0), 896)
    k.I("s_lshl_b32", s(st1), s(snt), 7)
    k.I("s_add_u32", s(sXb), s(sXb), s(st1))
    k.I("s_lshl_b32", s(smX), s(sw3), 11)
    k.I("s_add_u32", s(smX), s(smX), XT)
    srd(k, sX, pX, 2048 * 896)
    LA = int(os.environ.get('K3LA', '5'))
    for c in range(min(LA, 3)): issue(c)
    for c in range(8):
        k.wait_vm(("S", c))
        k.I("s_barrier")
        if c == 0:
            for cc in range(3, LA): issue(cc)
        if c + LA < 8: issue(c + LA)
        if c + LA == 7:
            for i in range(2):
                k.I("s_add_u32", s(soff), s(sXb), hex(i * 8 * 896))
                k.I("s_add_u32", "m0", s(smX), hex(i * 1024))
                k.vm(("S", 7), "buffer_load_dwordx4", v(vXo), sr(sX, 4), s(soff), mods="offen lds")
    k.I("s_endpgm")
    k.L(comp)
    if os.environ.get("PRIO_C"): k.I("s_setprio", int(os.environ["PRIO_C"]))
    k.vnext = vsave; k.vmq = []; k.lgq = []
    l31 = k.valloc(); hh = k.valloc()
    k.I("v_and_b32", v(l31), 31, v(lane))
    k.I("v_lshrrev_b32", v(hh), 5, v(lane))
    srh = k.salloc(); snh = k.salloc(); sst = k.salloc(); sntile = k.salloc()
    k.I("s_and_b32", s(srh), s(swave), 1)
    k.I("s_lshr_b32", s(snh), s(swave), 1)
    k.I("s_lshl_b32", s(sst), s(srt), 1)
    k.I("s_add_u32", s(sst), s(sst), s(srh))
    k.I("s_lshl_b32", s(sntile), s(snt), 1)
    k.I("s_add_u32", s(sntile), s(sntile), s(snh))
    xr = k.valloc(8, 4); vxa = k.valloc(4)
    k.I("s_lshl_b32", s(st0), s(srh), 5)
    k.I("v_add_u32", v(t0), s(st0), v(l31))
    k.I("v_and_b32", v(t1), 7, v(t0))
    k.I("v_lshlrev_b32", v(t0), 7, v(t0))
    k.I("v_lshl_add_u32", v(t0), v(hh), 3, v(t0))
    k.I("v_add_u32", v(t0), XT, v(t0))
    k.I("s_lshl_b32", s(st0), s(snh), 2)
    for q in range(4):
        k.I("s_add_u32", s(st1), s(st0), q)
        k.I("v_xor_b32", v(t2), s(st1), v(t1))
        k.I("v_lshl_add_u32", v(vxa + q), v(t2), 4, v(t0))
    k.I("s_waitcnt", "lgkmcnt(0)")
    srd(k, sWS, pWS, WS_SIZE)
    code_prefetch(k, "k4_win_kernel", sidx, st0)
    stp.stamp(0)
    aO = k.valloc(); vW = k.valloc()
    k.I("v_lshlrev_b32", v(aO), 4, v(lane))
    k.I("s_lshl_b32", s(st0), s(srh), 15)
    k.I("s_add_u32", s(st0), s(st0), OREG)
    k.I("v_add_u32", v(aO), s(st0), v(aO))
    k.I("v_bfe_u32", v(t0), v(lane), 2, 2)
    k.I("v_lshl_add_u32", v(t0), v(hh), 3, v(t0))
    k.I("v_lshlrev_b32", v(vW), 7, v(t0))
    k.I("v_bfe_u32", v(t0), v(lane), 4, 1)
    k.I("v_lshlrev_b32", v(t0), 1, v(t0))
    k.I("v_bfe_u32", v(t1), v(lane), 1, 1)
    k.I("v_add_u32", v(t0), v(t0), v(t1))
    k.I("s_lshl_b32", s(st0), s(snh), 2)
    k.I("v_add_u32", v(t0), s(st0), v(t0))
    k.I("v_bfe_u32", v(t1), v(lane), 3, 1)
    k.I("v_lshlrev_b32", v(t1), 2, v(t1))
    k.I("v_xor_b32", v(t0), v(t0), v(t1))
    k.I("v_lshl_add_u32", v(vW), v(t0), 4, v(vW))
    k.I("v_and_b32", v(t0), 1, v(lane))
    k.I("v_lshl_add_u32", v(vW), v(t0), 3, v(vW))
    acc = k.valloc(16, 4)
    NB = 3
    of = [k.valloc(4) for _ in range(NB)]; wf = [k.valloc(4) for _ in range(NB)]
    def rl(ks):
        b = ks % NB
        out = [lambda: k.lg(("f", ks), "ds_read_b128", vr(of[b], 4), v(aO), mods=f"offset:{ks * 1024}")]
        for beta in range(2):
            o = (28 * (ks >> 1) + 16 * (ks & 1) + 4 * beta) * 128
            out.append(lambda o=o, beta=beta: k.lg(("f", ks), "ds_read_b64_tr_b16", vr(wf[b] + 2 * beta, 2), v(vW), mods=f"offset:{o}"))
        return out
    k.I("s_barrier")
    stp.stamp(1)
    for f in rl(0) + rl(1): f()
    for ks in range(32):
        c, j = ks // 4, ks % 4
        b = ks % NB
        k.wait_lg(("f", ks))
        k.I("v_mfma_f32_32x32x16_bf16", vr(acc, 16), vr(wf[b], 4), vr(of[b], 4), 0 if ks == 0 else vr(acc, 16))
        if j == 1 and c < 7: k.I("s_barrier")
        if ks + 2 < 32 and not (j == 1 and False):
            pass
        nxt = ks + 2
        if nxt < 32:
            for f in rl(nxt): f()
    EOF_MARK = None
    stp.stamp(2)
    for q in range(4): k.I("ds_read_b64", vr(xr + 2 * q, 2), v(vxa + q))
    k.I("s_waitcnt", "lgkmcnt(0)")
    k.lgq = []
    tmp = [k.valloc(2) for _ in range(4)]
    for q in range(4):
        for d in range(2):
            t = tmp[(2 * q + d) % 4]
            k.I("v_lshlrev_b32", v(t), 16, v(xr + 2 * q + d))
            k.I("v_and_b32", v(t + 1), "0xffff0000", v(xr + 2 * q + d))
            k.I("v_pk_add_f32", vr(acc + 4 * q + 2 * d, 2), vr(acc + 4 * q + 2 * d, 2), vr(t, 2))
    P = k.valloc(8, 4)
    for j in range(8): k.I("v_cvt_pk_bf16_f32", v(P + j), v(acc + 2 * j), v(acc + 2 * j + 1))
    v16 = k.valloc()
    k.I("v_lshlrev_b32", v(v16), 4, v(lane))
    k.I("s_mul_i32", s(soff), s(sst), 28 * 1024)
    k.I("s_lshl_b32", s(st0), s(sntile), 11)
    k.I("s_add_u32", s(soff), s(soff), s(st0))
    k.I("s_add_u32", s(soff), s(soff), hex(H_OFF))
    k.I("buffer_store_dwordx4", vr(P, 4), v(v16), sr(sWS, 4), s(soff), mods="offen")
    k.I("buffer_store_dwordx4", vr(P + 4, 4), v(v16), sr(sWS, 4), s(soff), mods="offen offset:1024")
    accs = k.valloc(2); accq = k.valloc(2)
    stats_from_packed(k, P, 8, accs, accq, tmp)
    k.I("v_mov_b32", v(accs + 1), v(accq))
    vh = k.valloc()
    k.I("v_lshlrev_b32", v(vh), 3, v(l31))
    k.I("s_mul_i32", s(soff), s(sst), 32 * 112)
    k.I("s_lshl_b32", s(st0), s(sntile), 8)
    k.I("s_add_u32", s(soff), s(soff), s(st0))
    k.I("s_add_u32", s(soff), s(soff), hex(HS_OFF))
    k.I("s_mov_b32", "exec_hi", 0)
    k.I("buffer_store_dwordx2", vr(accs, 2), v(vh), sr(sWS, 4), s(soff), mods="offen")
    stp.stamp(3)
    k.I("s_endpgm")
    k.L(aux)
    k.vnext = vsave; k.vmq = []; k.lgq = []
    sa = k.salloc(); sWin = k.salloc(4)
    k.I("s_sub_u32", s(sa), s(sidx), 28)
    k.I("s_lshl_b32", s(sa), s(sa), 3)
    k.I("s_add_u32", s(sa), s(sa), s(sj))
    k.I("s_waitcnt", "lgkmcnt(0)")
    srd(k, sWS, pWS, WS_SIZE)
    ff = k.valloc(4)
    for i in range(4): k.I("v_mov_b32", v(ff + i), -1)
    k.I("v_lshlrev_b32", v(t1), 4, "v0")
    k.I("v_mov_b32", v(t2), "0x7fffff00")
    k.I("v_cmp_gt_u32", "vcc", 448, "v0")
    k.I("v_cndmask_b32", v(t1), v(t2), v(t1), "vcc")
    k.I("s_mul_i32", s(st0), s(sa), 7168)
    k.I("s_add_u32", s(st0), s(st0), hex(EX_OFF))
    if os.environ.get('K4V', 'b') != 'c':
        k.I("buffer_store_dwordx4", vr(ff, 4), v(t1), sr(sWS, 4), s(st0), mods="offen")
    else:
        k.I("s_mul_i32", s(st0), s(sa), 14336)
        k.I("s_add_u32", s(st0), s(st0), hex(EX2_OFF))
        k.I("buffer_store_dwordx4", vr(ff, 4), v(t1), sr(sWS, 4), s(st0), mods="offen")
        k.I("s_add_u32", s(st0), s(st0), 7168)
        k.I("buffer_store_dwordx4", vr(ff, 4), v(t1), sr(sWS, 4), s(st0), mods="offen")
    zf = k.valloc(4)
    for i in range(4): k.I("v_mov_b32", v(zf + i), 0)
    k.I("v_lshlrev_b32", v(t1), 4, "v0")
    k.I("v_mov_b32", v(t2), "0x7fffff00")
    k.I("v_cmp_gt_u32", "vcc", 32, "v0")
    k.I("v_cndmask_b32", v(t1), v(t2), v(t1), "vcc")
    k.I("s_lshl_b32", s(st0), s(sa), 9)
    k.I("s_add_u32", s(st0), s(st0), hex(FL_OFF))
    k.I("buffer_store_dwordx4", vr(zf, 4), v(t1), sr(sWS, 4), s(st0), mods="offen")
    srd(k, sWin, pWin, 448 * 3584)
    def win_prefetch():
        if os.environ.get("PFWIN", "k2") != "k3": return
        vTw = k.valloc(); vdw = k.valloc(7)
        k.I("s_sub_u32", s(st0), s(sidx), 28)
        k.I("s_lshl_b32", s(st0), s(st0), 9)
        k.I("v_add_u32", v(vTw), s(st0), "v0")
        k.I("v_lshlrev_b32", v(vTw), 7, v(vTw))
        for i in range(7):
            k.I("s_mov_b32", s(st0), hex(i * 2048 * 128))
            k.I("buffer_load_dword", v(vdw + i), v(vTw), sr(sWin, 4), s(st0), mods="offen")
    nocs = k.newlabel("nocs")
    k.I("s_cmp_ge_u32", s(sa), 28)
    k.I("s_cbranch_scc1", nocs)
    vg = k.valloc()
    k.I("v_lshrrev_b32", v(t0), 3, v(lane))
    k.I("v_mul_u32_u24", v(t0), 3584, v(t0))
    k.I("v_bfe_u32", v(t1), v(lane), 4, 1)
    k.I("v_lshlrev_b32", v(t1), 2, v(t1))
    k.I("v_and_b32", v(t2), 7, v(lane))
    k.I("v_xor_b32", v(t1), v(t1), v(t2))
    k.I("v_lshl_add_u32", v(vg), v(t1), 4, v(t0))
    sb = k.salloc(); sm = k.salloc()
    k.I("s_mul_i32", s(sb), s(swave), 56 * 3584)
    k.I("s_lshl_b32", s(st0), s(sa), 7)
    k.I("s_add_u32", s(sb), s(sb), s(st0))
    k.I("s_mul_i32", s(sm), s(swave), 56 * 128)
    for i in range(7):
        k.I("s_add_u32", s(soff), s(sb), hex(i * 8 * 3584))
        k.I("s_add_u32", "m0", s(sm), hex(i * 1024))
        k.I("buffer_load_dwordx4", v(vg), sr(sWin, 4), s(soff), mods="offen lds")
    win_prefetch()
    z = k.valloc(); TB = 57344
    k.I("v_mov_b32", v(z), 0)
    k.I("v_lshlrev_b32", v(t0), 2, v(lane))
    k.I("v_add_u32", v(t0), TB, v(t0))
    k.I("ds_write_b32", v(t0), v(z))
    gg = k.valloc(); vB = k.valloc(); ones = k.valloc(4)
    k.I("v_lshrrev_b32", v(gg), 4, v(lane))
    k.I("v_bfe_u32", v(t0), v(lane), 2, 2)
    k.I("v_lshl_add_u32", v(t0), v(gg), 3, v(t0))
    k.I("v_lshlrev_b32", v(vB), 7, v(t0))
    k.I("v_bfe_u32", v(t0), v(lane), 1, 1)
    k.I("s_lshl_b32", s(st0), s(sw3), 1)
    k.I("v_add_u32", v(t0), s(st0), v(t0))
    k.I("v_bfe_u32", v(t1), v(lane), 3, 1)
    k.I("v_lshlrev_b32", v(t1), 2, v(t1))
    k.I("v_xor_b32", v(t0), v(t0), v(t1))
    k.I("v_lshl_add_u32", v(vB), v(t0), 4, v(vB))
    k.I("v_and_b32", v(t0), 1, v(lane))
    k.I("v_lshl_add_u32", v(vB), v(t0), 3, v(vB))
    k.I("s_lshr_b32", s(st0), s(swave), 2)
    k.I("s_mul_i32", s(st0), s(st0), 224 * 128)
    k.I("v_add_u32", v(vB), s(st0), v(vB))
    for i in range(4): k.I("v_mov_b32", v(ones + i), "0x3f803f80")
    k.I("s_waitcnt", "vmcnt(7) lgkmcnt(0)" if os.environ.get("PFWIN", "k2") == "k3" else "vmcnt(0) lgkmcnt(0)")
    k.I("s_barrier")
    bf = [k.valloc(4) for _ in range(7)]
    for kk in range(7):
        for beta in range(2):
            k.I("ds_read_b64_tr_b16", vr(bf[kk] + 2 * beta, 2), v(vB), mods=f"offset:{(32 * kk + 4 * beta) * 128}")
    ca = k.valloc(4)
    k.I("s_waitcnt", "lgkmcnt(0)")
    for kk in range(7):
        k.I("v_mfma_f32_16x16x32_bf16", vr(ca, 4), vr(ones, 4), vr(bf[kk], 4), 0 if kk == 0 else vr(ca, 4))
    k.I("v_and_b32", v(t0), 15, v(lane))
    k.I("s_lshl_b32", s(st0), s(sw3), 6)
    k.I("s_add_u32", s(st0), s(st0), TB)
    k.I("v_lshlrev_b32", v(t0), 2, v(t0))
    k.I("v_add_u32", v(t0), s(st0), v(t0))
    k.I("s_mov_b32", "exec_lo", "0xffff")
    k.I("s_mov_b32", "exec_hi", 0)
    k.I("ds_add_f32", v(t0), v(ca))
    k.I("s_mov_b64", "exec", -1)
    k.I("s_waitcnt", "lgkmcnt(0)")
    k.I("s_barrier")
    k.I("s_cmp_lg_u32", s(swave), 0)
    k.I("s_cbranch_scc1", R["done"])
    k.I("v_lshlrev_b32", v(t0), 2, v(lane))
    k.I("v_add_u32", v(t1), TB, v(t0))
    k.I("ds_read_b32", v(z), v(t1))
    k.I("s_lshl_b32", s(st0), s(sa), 8)
    k.I("s_add_u32", s(st0), s(st0), hex(CW_OFF))
    k.I("s_waitcnt", "lgkmcnt(0)")
    k.I("buffer_store_dword", v(z), v(t0), sr(sWS, 4), s(st0), mods="offen")
    k.I("s_endpgm")
    k.L(nocs)
    win_prefetch()
    k.L(R["done"])
    k.I("s_endpgm")
    k.lds = lds; k.threads = 512; k.grid = 256
    return k


GELU_C0 = -2.0 * math.sqrt(2.0 / math.pi) * math.log2(math.e)
GELU_C1 = GELU_C0 * 0.044715

def gen_k4(Stamper):
    k = Kernel("k4_win_kernel")
    NS = 4; SLOT = 32768; TRB = NS * SLOT
    STB = TRB
    lds = TRB + 4096
    R = common_start(k, 256)
    swave, st0, st1, soff, lane, t0, t1, t2 = (R[x] for x in ("swave", "st0", "st1", "soff", "lane", "t0", "t1", "t2"))
    pWin = k.salloc(2); pWS = k.salloc(2)
    k.I("s_load_dwordx2", sr(pWin, 2), "s[0:1]", 32)
    k.I("s_load_dwordx2", sr(pWS, 2), "s[0:1]", 80)
    sWS = k.salloc(4); sWin = k.salloc(4)
    sj = k.salloc(); sidx = k.salloc(); srb = k.salloc(); sct = k.salloc(); sw3 = k.salloc()
    k.I("s_and_b32", s(sj), "s2", 7)
    k.I("s_lshr_b32", s(sidx), "s2", 3)
    k.I("s_and_b32", s(sw3), s(swave), 3)
    pfrole = k.newlabel("pfrole")
    k.I("s_cmp_ge_u32", s(sidx), 28)
    k.I("s_cbranch_scc1", pfrole)
    k.I("s_cmp_ge_u32", s(sidx), 14)
    k.I("s_cselect_b32", s(st0), 1, 0)
    k.I("s_mul_i32", s(st1), s(st0), 14)
    k.I("s_sub_u32", s(sct), s(sidx), s(st1))
    k.I("s_lshl_b32", s(srb), s(sj), 1)
    k.I("s_add_u32", s(srb), s(srb), s(st0))
    stp = Stamper(k, 3, sWS, swave)
    k.I("s_waitcnt", "lgkmcnt(0)")
    srd(k, sWS, pWS, WS_SIZE)
    comp = k.newlabel("compute")
    k.I("s_cmp_lt_u32", s(swave), 4)
    k.I("s_cbranch_scc1", comp)
    vsave = k.vnext
    if os.environ.get("PRIO_L"): k.I("s_setprio", int(os.environ["PRIO_L"]))
    srd(k, sWin, pWin, 448 * 3584)
    v16 = k.valloc(); vWo = k.valloc()
    k.I("v_lshlrev_b32", v(v16), 4, v(lane))
    k.I("v_lshrrev_b32", v(t0), 4, v(lane))
    k.I("v_lshlrev_b32", v(t1), 2, v(t0))
    k.I("v_and_b32", v(t2), 15, v(lane))
    k.I("v_xor_b32", v(t1), v(t1), v(t2))
    k.I("v_mul_u32_u24", v(vWo), 3584, v(t0))
    k.I("v_and_b32", v(t2), 7, v(t1))
    k.I("v_lshl_add_u32", v(vWo), v(t2), 4, v(vWo))
    k.I("v_add_u32", v(t2), 1792, v(vWo))
    k.I("v_cmp_gt_u32", "vcc", 8, v(t1))
    k.I("v_cndmask_b32", v(vWo), v(vWo), v(t2), "vcc")
    sHb = k.salloc(); sWb = k.salloc(); smH = k.salloc(); smW = k.salloc()
    k.I("s_lshl_b32", s(st0), s(srb), 2)
    k.I("s_add_u32", s(st0), s(st0), s(sw3))
    k.I("s_mul_i32", s(sHb), s(st0), 28 * 1024)
    k.I("s_add_u32", s(sHb), s(sHb), hex(H_OFF))
    k.I("s_lshl_b32", s(smH), s(sw3), 12)
    k.I("s_mul_i32", s(sWb), s(sw3), 16 * 3584)
    k.I("s_lshl_b32", s(st1), s(sct), 7)
    k.I("s_add_u32", s(sWb), s(sWb), s(st1))
    k.I("s_add_u32", s(smW), s(smH), 16384)
    def issue(c):
        sl = (c % NS) * SLOT
        for i in range(4):
            k.I("s_add_u32", s(soff), s(sHb), hex((4 * c + i) * 1024))
            k.I("s_add_u32", "m0", s(smH), hex(sl + i * 1024))
            k.vm(("S", c), "buffer_load_dwordx4", v(v16), sr(sWS, 4), s(soff), mods="offen lds")
        for i in range(4):
            k.I("s_add_u32", s(soff), s(sWb), hex((64 * c + 4 * i) * 3584))
            k.I("s_add_u32", "m0", s(smW), hex(sl + i * 1024))
            k.vm(("S", c), "buffer_load_dwordx4", v(vWo), sr(sWin, 4), s(soff), mods="offen lds")
    issue(0); issue(1)
    for c in range(7):
        k.wait_vm(("S", c))
        k.I("s_barrier")
        if c == 0: issue(2); issue(3)
        elif c + 2 < 7 and c >= 2: issue(c + 2)
    k.I("s_barrier")
    k.I("s_endpgm")
    k.L(comp)
    if os.environ.get("PRIO_C"): k.I("s_setprio", int(os.environ["PRIO_C"]))
    k.vnext = vsave; k.vmq = []; k.lgq = []
    l31 = k.valloc(); hh = k.valloc()
    k.I("v_and_b32", v(l31), 31, v(lane))
    k.I("v_lshrrev_b32", v(hh), 5, v(lane))
    srh = k.salloc(); sch = k.salloc(); sst = k.salloc()
    k.I("s_and_b32", s(srh), s(swave), 1)
    k.I("s_lshr_b32", s(sch), s(swave), 1)
    k.I("s_lshl_b32", s(sst), s(srb), 2)
    k.I("s_lshl_b32", s(st0), s(srh), 1)
    k.I("s_add_u32", s(sst), s(sst), s(st0))
    hs = [k.valloc(16, 4) for _ in range(2)]
    vh = k.valloc()
    k.I("v_mul_u32_u24", v(vh), 112, v(l31))
    k.I("v_lshl_add_u32", v(vh), v(hh), 6, v(vh))
    for t in range(2):
        k.I("s_add_u32", s(st0), s(sst), t)
        k.I("s_mul_i32", s(soff), s(st0), 32 * 112)
        k.I("s_add_u32", s(soff), s(soff), hex(HS_OFF))
        for i in range(4):
            k.vm("hs", "buffer_load_dwordx4", vr(hs[t] + 4 * i, 4), v(vh), sr(sWS, 4), s(soff), mods=f"offen offset:{16 * i}")
    cw = [k.valloc(16, 4) for _ in range(2)]
    vc = k.valloc()
    k.I("v_lshlrev_b32", v(vc), 4, v(hh))
    k.I("s_lshl_b32", s(st0), s(sct), 8)
    k.I("s_lshl_b32", s(st1), s(sch), 7)
    k.I("s_add_u32", s(st0), s(st0), s(st1))
    for z in range(2):
        k.I("s_add_u32", s(soff), s(st0), hex(CW_OFF + (896 * 4 if z == 0 else 0)))
        for q in range(4):
            k.vm("cw", "buffer_load_dwordx4", vr(cw[z] + 4 * q, 4), v(vc), sr(sWS, 4), s(soff), mods=f"offen offset:{32 * q}")
    if os.environ.get("PF2", "0") == "1":
        pp = k.salloc(2); sP = k.salloc(4); vT = k.valloc(); vd = k.valloc(2)
        k.I("s_load_dwordx2", sr(pp, 2), "s[0:1]", 40)
        k.I("s_lshl_b32", s(st0), s(sidx), 8)
        k.I("v_add_u32", v(vT), s(st0), "v0")
        k.I("s_waitcnt", "lgkmcnt(0)")
        srd(k, sP, pp, 2048 * 4096)
        k.I("s_lshr_b32", s(st0), s(sj), 1)
        k.I("s_lshl_b32", s(st0), s(st0), 21)
        k.I("s_and_b32", s(st1), s(sj), 1)
        k.I("s_lshl_b32", s(st1), s(st1), 11)
        k.I("s_add_u32", s(st0), s(st0), s(st1))
        for i in range(2):
            k.I("v_add_u32", v(t0), 7168 * i, v(vT))
            k.I("v_lshrrev_b32", v(t1), 4, v(t0))
            k.I("v_lshlrev_b32", v(t1), 12, v(t1))
            k.I("v_and_b32", v(t2), 15, v(t0))
            k.I("v_lshl_add_u32", v(t1), v(t2), 7, v(t1))
            if i == 1:
                k.I("v_mov_b32", v(t2), "0x7fffff00")
                k.I("v_cmp_gt_u32", "vcc", 8192, v(t0))
                k.I("v_cndmask_b32", v(t1), v(t2), v(t1), "vcc")
            k.vm("pf", "buffer_load_dword", v(vd + i), v(t1), sr(sP, 4), s(st0), mods="offen")
    code_prefetch(k, "k5_sp_kernel", sidx, st0)
    stp.stamp(0)
    aH = k.valloc(); vW = [k.valloc(), k.valloc()]
    k.I("v_lshlrev_b32", v(aH), 4, v(lane))
    k.I("s_lshl_b32", s(st0), s(srh), 13)
    k.I("v_add_u32", v(aH), s(st0), v(aH))
    k.I("v_bfe_u32", v(t0), v(lane), 2, 2)
    k.I("v_lshl_add_u32", v(t1), v(hh), 2, v(t0))
    k.I("v_lshlrev_b32", v(t1), 8, v(t1))
    k.I("v_add_u32", v(t1), 16384, v(t1))
    k.I("v_bfe_u32", v(t2), v(lane), 4, 1)
    k.I("v_lshlrev_b32", v(t2), 1, v(t2))
    k.I("v_bfe_u32", v(vW[0]), v(lane), 1, 1)
    k.I("v_add_u32", v(t2), v(t2), v(vW[0]))
    k.I("s_lshl_b32", s(st0), s(sch), 2)
    k.I("v_add_u32", v(t2), s(st0), v(t2))
    k.I("v_lshlrev_b32", v(t0), 2, v(t0))
    k.I("v_xor_b32", v(vW[0]), v(t2), v(t0))
    k.I("v_add_u32", v(t2), 8, v(t2))
    k.I("v_xor_b32", v(vW[1]), v(t2), v(t0))
    k.I("v_and_b32", v(t2), 1, v(lane))
    for z in range(2):
        k.I("v_lshl_add_u32", v(vW[z]), v(vW[z]), 4, v(t1))
        k.I("v_lshl_add_u32", v(vW[z]), v(t2), 3, v(vW[z]))
    aH2 = k.valloc(); vW2 = [k.valloc(), k.valloc()]
    k.I("v_add_u32", v(aH2), 65536, v(aH))
    for z in range(2): k.I("v_add_u32", v(vW2[z]), 65536, v(vW[z]))
    acc = [[k.valloc(16, 4) for _ in range(2)] for _ in range(2)]
    vmark = k.vnext
    NB = 3
    hf = [[k.valloc(4) for _ in range(2)] for _ in range(NB)]
    wf = [[k.valloc(4) for _ in range(2)] for _ in range(NB)]
    def rl(ks):
        c, j = ks // 4, ks % 4
        b = ks % NB
        sl = (c % NS) * SLOT
        hi = sl >= 65536
        so = sl - (65536 if hi else 0)
        out = []
        for t in range(2):
            out.append(lambda t=t: k.lg(("f", ks), "ds_read_b128", vr(hf[b][t], 4), v(aH2 if hi else aH), mods=f"offset:{so + t * 4096 + j * 1024}"))
        for z in range(2):
            for beta in range(2):
                o = so + (16 * j + 8 * beta) * 256
                out.append(lambda o=o, z=z, beta=beta: k.lg(("f", ks), "ds_read_b64_tr_b16", vr(wf[b][z] + 2 * beta, 2), v((vW2 if hi else vW)[z]), mods=f"offset:{o}"))
        return out
    k.I("s_barrier")
    stp.stamp(1)
    for f in rl(0) + rl(1): f()
    for ks in range(28):
        c, j = ks // 4, ks % 4
        b = ks % NB
        k.wait_lg(("f", ks))
        mf = []
        for z in range(2):
            for t in range(2):
                mf.append(lambda z=z, t=t: k.I("v_mfma_f32_32x32x16_bf16", vr(acc[z][t], 16), vr(wf[b][z], 4), vr(hf[b][t], 4), 0 if ks == 0 else vr(acc[z][t], 16)))
        if j == 2 and c < 6:
            pass
        fl = rl(ks + 2) if ks + 2 < 28 else []
        if j == 2 and ks + 2 < 28:
            k.I("s_barrier")
        interleave(k, mf, fl)
    stp.stamp(2)
    k.vnext = vmark
    k.wait_vm(["hs", "cw"])
    rr = [k.valloc(2) for _ in range(2)]; nm = [k.valloc(2) for _ in range(2)]
    c0r = [k.valloc(2) for _ in range(2)]; c1r = [k.valloc(2) for _ in range(2)]
    k.I("v_cmp_eq_u32", "vcc", 0, v(hh))
    for t in range(2):
        H = hs[t]
        for i in range(12, 16): k.I("v_cndmask_b32", v(H + i), 0, v(H + i), "vcc")
        for i in range(4): k.I("v_pk_add_f32", vr(H + 2 * i, 2), vr(H + 2 * i, 2), vr(H + 8 + 2 * i, 2))
        for i in range(2): k.I("v_pk_add_f32", vr(H + 2 * i, 2), vr(H + 2 * i, 2), vr(H + 4 + 2 * i, 2))
        k.I("v_pk_add_f32", vr(H, 2), vr(H, 2), vr(H + 2, 2))
        for e in range(2):
            k.I("v_mov_b32", v(H + 2), v(H + e))
            k.I("v_permlane32_swap_b32", v(H + e), v(H + 2))
            k.I("v_add_f32", v(H + e), v(H + e), v(H + 2))
        k.I("v_mul_f32", v(nm[t]), hex(f32(-1.0 / 448)), v(H))
        k.I("v_mul_f32", v(H + 1), hex(f32(1.0 / 448)), v(H + 1))
        k.I("v_fma_f32", v(H + 1), f"-{v(nm[t])}", v(nm[t]), v(H + 1))
        k.I("v_max_f32", v(H + 1), 0, v(H + 1))
        k.I("v_add_f32", v(H + 1), hex(f32(1e-5)), v(H + 1))
        k.I("v_rsq_f32", v(rr[t]), v(H + 1))
        k.I("v_mul_f32", v(c0r[t]), hex(f32(GELU_C0)), v(rr[t]))
        k.I("v_mul_f32", v(c1r[t]), v(rr[t]), v(rr[t]))
        k.I("v_mul_f32", v(c1r[t]), v(c1r[t]), v(rr[t]))
        k.I("v_mul_f32", v(c1r[t]), hex(f32(GELU_C1)), v(c1r[t]))
    norh = k.newlabel("norh")
    k.I("s_or_b32", s(st0), s(sct), s(sch))
    k.I("s_cmp_lg_u32", s(st0), 0)
    k.I("s_cbranch_scc1", norh)
    k.I("v_lshlrev_b32", v(t0), 2, v(l31))
    for t in range(2):
        k.I("s_add_u32", s(st0), s(sst), t)
        k.I("s_lshl_b32", s(st0), s(st0), 7)
        k.I("s_add_u32", s(st0), s(st0), hex(RH_OFF))
        k.I("buffer_store_dword", v(rr[t]), v(t0), sr(sWS, 4), s(st0), mods="offen")
    k.L(norh)
    tp = [k.valloc(2) for _ in range(4)]
    def gelu_tile(A, z, t):
        for j in range(8):
            k.I("v_pk_fma_f32", vr(A + 2 * j, 2), vr(cw[z] + 2 * j, 2), vr(nm[t], 2), vr(A + 2 * j, 2), mods="op_sel_hi:[1,0,1]")
        for j0 in range(0, 8, 4):
            for j in range(j0, j0 + 4):
                T = tp[j - j0]
                k.I("v_pk_mul_f32", vr(T, 2), vr(A + 2 * j, 2), vr(A + 2 * j, 2))
            for j in range(j0, j0 + 4):
                T = tp[j - j0]
                k.I("v_pk_fma_f32", vr(T, 2), vr(T, 2), vr(c1r[t], 2), vr(c0r[t], 2), mods="op_sel_hi:[1,0,0]")
            for j in range(j0, j0 + 4):
                T = tp[j - j0]
                k.I("v_pk_mul_f32", vr(T, 2), vr(T, 2), vr(A + 2 * j, 2))
            for j in range(j0, j0 + 4):
                T = tp[j - j0]
                k.I("v_exp_f32", v(T), v(T)); k.I("v_exp_f32", v(T + 1), v(T + 1))
            for j in range(j0, j0 + 4):
                T = tp[j - j0]
                k.I("v_pk_add_f32", vr(T, 2), vr(T, 2), "1.0", mods="op_sel_hi:[1,0]")
            for j in range(j0, j0 + 4):
                T = tp[j - j0]
                k.I("v_rcp_f32", v(T), v(T)); k.I("v_rcp_f32", v(T + 1), v(T + 1))
            for j in range(j0, j0 + 4):
                T = tp[j - j0]
                k.I("v_pk_mul_f32", vr(A + 2 * j, 2), vr(A + 2 * j, 2), vr(T, 2))
    accs = [k.valloc(2) for _ in range(2)]; accq = [k.valloc(2) for _ in range(2)]
    for t in range(2):
        A = acc[0][t]
        gelu_tile(A, 0, t)
        for j in range(8):
            k.I("v_pk_mul_f32", vr(A + 2 * j, 2), vr(A + 2 * j, 2), vr(rr[t], 2), mods="op_sel_hi:[1,0]")
        k.I("v_pk_add_f32", vr(accs[t], 2), vr(A, 2), vr(A + 2, 2))
        k.I("v_pk_mul_f32", vr(accq[t], 2), vr(A, 2), vr(A, 2))
        k.I("v_pk_fma_f32", vr(accq[t], 2), vr(A + 2, 2), vr(A + 2, 2), vr(accq[t], 2))
        for j in range(2, 8):
            k.I("v_pk_add_f32", vr(accs[t], 2), vr(accs[t], 2), vr(A + 2 * j, 2))
            k.I("v_pk_fma_f32", vr(accq[t], 2), vr(A + 2 * j, 2), vr(A + 2 * j, 2), vr(accq[t], 2))
        k.I("v_add_f32", v(accs[t]), v(accs[t]), v(accs[t] + 1))
        k.I("v_add_f32", v(accs[t] + 1), v(accq[t]), v(accq[t] + 1))
        for e in range(2):
            k.I("v_mov_b32", v(accq[t]), v(accs[t] + e))
            k.I("v_permlane32_swap_b32", v(accs[t] + e), v(accq[t]))
            k.I("v_add_f32", v(accs[t] + e), v(accs[t] + e), v(accq[t]))
    vs = k.valloc()
    k.I("v_lshlrev_b32", v(vs), 3, v(l31))
    k.I("s_lshl_b32", s(st0), s(srh), 9)
    k.I("s_add_u32", s(st0), s(st0), STB)
    k.I("v_add_u32", v(vs), s(st0), v(vs))
    k.I("s_lshl_b32", s(st0), s(sch), 10)
    k.I("v_add_u32", v(t0), s(st0), v(vs))
    for t in range(2):
        k.I("ds_write_b64", v(t0), vr(accs[t], 2), mods=f"offset:{t * 256}")
    k.I("s_waitcnt", "lgkmcnt(0)")
    k.I("s_barrier")
    pub = k.newlabel("nopub")
    k.I("s_cmp_lg_u32", s(sch), 0)
    k.I("s_cbranch_scc1", pub)
    oth = k.valloc(4)
    for t in range(2):
        k.I("ds_read_b64", vr(oth + 2 * t, 2), v(vs), mods=f"offset:{1024 + t * 256}")
    k.I("s_waitcnt", "lgkmcnt(0)")
    for t in range(2):
        k.I("v_pk_add_f32", vr(oth + 2 * t, 2), vr(oth + 2 * t, 2), vr(accs[t], 2))
        k.I("v_mov_b32", v(t1), "0x7fc00000")
        k.I("v_cmp_eq_u32", "vcc", -1, v(oth + 2 * t + 1))
        k.I("v_cndmask_b32", v(oth + 2 * t + 1), v(oth + 2 * t + 1), v(t1), "vcc")
    ve = k.valloc()
    k.I("v_mul_u32_u24", v(ve), 112, v(l31))
    k.I("s_mul_i32", s(soff), s(sst), 32 * 112)
    k.I("s_lshl_b32", s(st0), s(sct), 3)
    k.I("s_add_u32", s(soff), s(soff), s(st0))
    k.I("s_add_u32", s(soff), s(soff), hex(EX_OFF))
    k.I("s_mov_b32", "exec_hi", 0)
    for t in range(2):
        k.I("buffer_store_dwordx2", vr(oth + 2 * t, 2), v(ve), sr(sWS, 4), s(soff), mods=f"offen offset:{t * 32 * 112} sc0 sc1")
    k.I("s_mov_b64", "exec", -1)
    k.L(pub)
    stp.stamp(3)
    v16 = k.valloc()
    k.I("v_lshlrev_b32", v(v16), 4, v(lane))
    P = [k.valloc(8, 4) for _ in range(2)]
    sft = k.salloc()
    k.I("s_lshl_b32", s(sft), s(sct), 1)
    k.I("s_add_u32", s(sft), s(sft), s(sch))
    for t in range(2):
        A = acc[1][t]
        gelu_tile(A, 1, t)
        for j in range(8): k.I("v_cvt_pk_bf16_f32", v(P[t] + j), v(A + 2 * j), v(A + 2 * j + 1))
        k.I("s_add_u32", s(st0), s(sst), t)
        k.I("s_mul_i32", s(soff), s(st0), 56 * 1024)
        k.I("s_lshl_b32", s(st0), s(sft), 11)
        k.I("s_add_u32", s(soff), s(soff), s(st0))
        k.I("s_add_u32", s(soff), s(soff), hex(Z1_OFF))
        k.I("buffer_store_dwordx4", vr(P[t], 4), v(v16), sr(sWS, 4), s(soff), mods="offen")
        k.I("buffer_store_dwordx4", vr(P[t] + 4, 4), v(v16), sr(sWS, 4), s(soff), mods="offen offset:1024")
    stp.stamp(4)
    ex = hs
    k.I("v_mul_u32_u24", v(vh), 112, v(l31))
    k.I("v_lshl_add_u32", v(vh), v(hh), 6, v(vh))
    k.I("s_mul_i32", s(soff), s(sst), 32 * 112)
    k.I("s_add_u32", s(soff), s(soff), hex(EX_OFF))
    scount = k.salloc(); sbad = k.salloc(2)
    k.I("s_mov_b32", s(scount), 0)
    poll = k.newlabel("poll"); pdone = k.newlabel("pdone")
    k.L(poll)
    for t in range(2):
        for i in range(4):
            k.I("buffer_load_dwordx4", vr(ex[t] + 4 * i, 4), v(vh), sr(sWS, 4), s(soff), mods=f"offen offset:{t * 32 * 112 + 16 * i} sc0 sc1")
    k.I("s_waitcnt", "vmcnt(0)")
    k.I("v_cmp_eq_u32", "vcc", 0, v(hh))
    for t in range(2):
        for i in range(12, 16): k.I("v_cndmask_b32", v(ex[t] + i), 0, v(ex[t] + i), "vcc")
    k.I("v_max_u32", v(t0), v(ex[0] + 1), v(ex[0] + 3))
    for t in range(2):
        for i in range(8):
            if t == 0 and i < 2: continue
            k.I("v_max_u32", v(t0), v(t0), v(ex[t] + 2 * i + 1))
    k.I("v_cmp_eq_u32", "vcc", -1, v(t0))
    k.I("s_add_u32", s(scount), s(scount), 1)
    k.I("s_cmp_eq_u64", "vcc", 0)
    k.I("s_cbranch_scc1", pdone)
    k.I("s_cmp_lt_u32", s(scount), 0x40000)
    k.I("s_cbranch_scc0", pdone)
    k.I("s_sleep", 1)
    k.I("s_branch", poll)
    k.L(pdone)
    sc_ = [k.valloc(2) for _ in range(2)]; zm = [k.valloc(2) for _ in range(2)]
    for t in range(2):
        H = ex[t]
        for i in range(4): k.I("v_pk_add_f32", vr(H + 2 * i, 2), vr(H + 2 * i, 2), vr(H + 8 + 2 * i, 2))
        for i in range(2): k.I("v_pk_add_f32", vr(H + 2 * i, 2), vr(H + 2 * i, 2), vr(H + 4 + 2 * i, 2))
        k.I("v_pk_add_f32", vr(H, 2), vr(H, 2), vr(H + 2, 2))
        for e in range(2):
            k.I("v_mov_b32", v(H + 2), v(H + e))
            k.I("v_permlane32_swap_b32", v(H + e), v(H + 2))
            k.I("v_add_f32", v(H + e), v(H + e), v(H + 2))
        k.I("v_mul_f32", v(zm[t]), hex(f32(-1.0 / 896)), v(H))
        k.I("v_mul_f32", v(H + 1), hex(f32(1.0 / 896)), v(H + 1))
        k.I("v_fma_f32", v(H + 1), f"-{v(zm[t])}", v(zm[t]), v(H + 1))
        k.I("v_max_f32", v(H + 1), 0, v(H + 1))
        k.I("v_add_f32", v(H + 1), hex(f32(1e-5)), v(H + 1))
        k.I("v_rsq_f32", v(sc_[t]), v(H + 1))
        k.I("v_mul_f32", v(zm[t]), v(zm[t]), v(sc_[t]))
    TW = 0
    vt = k.valloc(); vtr = k.valloc()
    k.I("v_lshlrev_b32", v(vt), 6, v(l31))
    k.I("v_lshl_add_u32", v(vt), v(hh), 3, v(vt))
    k.I("s_lshl_b32", s(st0), s(swave), 12)
    k.I("v_add_u32", v(vt), s(st0), v(vt))
    for t in range(2):
        A = acc[0][t]
        for j in range(8):
            k.I("v_pk_fma_f32", vr(A + 2 * j, 2), vr(A + 2 * j, 2), vr(sc_[t], 2), vr(zm[t], 2), mods="op_sel_hi:[1,0,0]")
        for j in range(8): k.I("v_cvt_pk_bf16_f32", v(P[t] + j), v(A + 2 * j), v(A + 2 * j + 1))
        for q in range(4):
            k.I("ds_write_b64", v(vt), vr(P[t] + 2 * q, 2), mods=f"offset:{t * 2048 + 16 * q}")
    k.I("v_bfe_u32", v(t0), v(lane), 2, 2)
    k.I("v_lshl_add_u32", v(t0), v(hh), 3, v(t0))
    k.I("v_lshlrev_b32", v(vtr), 6, v(t0))
    k.I("v_bfe_u32", v(t0), v(lane), 4, 1)
    k.I("v_lshl_add_u32", v(vtr), v(t0), 5, v(vtr))
    k.I("v_and_b32", v(t0), 3, v(lane))
    k.I("v_lshl_add_u32", v(vtr), v(t0), 3, v(vtr))
    k.I("s_lshl_b32", s(st0), s(swave), 12)
    k.I("v_add_u32", v(vtr), s(st0), v(vtr))
    k.I("s_waitcnt", "lgkmcnt(0)")
    Z = cw[0]
    for ks in range(4):
        for beta in range(2):
            k.I("ds_read_b64_tr_b16", vr(Z + 4 * ks + 2 * beta, 2), v(vtr), mods=f"offset:{(16 * ks + 4 * beta) * 64}")
    k.I("s_mul_i32", s(soff), s(sft), ZS)
    k.I("s_lshr_b32", s(st0), s(sst), 5)
    k.I("s_mul_i32", s(st0), s(st0), ZK)
    k.I("s_add_u32", s(soff), s(soff), s(st0))
    k.I("s_and_b32", s(st0), s(sst), 31)
    k.I("s_lshl_b32", s(st0), s(st0), 11)
    k.I("s_add_u32", s(soff), s(soff), s(st0))
    k.I("s_add_u32", s(soff), s(soff), hex(Z2_OFF))
    for ks in range(4):
        k.I("s_waitcnt", f"lgkmcnt({6 - 2 * ks})")
        k.I("buffer_store_dwordx4", vr(Z + 4 * ks, 4), v(v16), sr(sWS, 4), s(soff), mods=f"offen offset:{ks * 1024}")
    stp.stamp(5)
    k.I("s_endpgm")
    k.L(pfrole)
    pp = k.salloc(2); sP = k.salloc(4); vT = k.valloc(); vd = k.valloc(4)
    k.I("s_load_dwordx2", sr(pp, 2), "s[0:1]", 40)
    k.I("s_sub_u32", s(st0), s(sidx), 28)
    k.I("s_lshl_b32", s(st0), s(st0), 9)
    k.I("v_add_u32", v(vT), s(st0), "v0")
    k.I("s_lshr_b32", s(st0), s(sj), 1)
    k.I("s_lshl_b32", s(st0), s(st0), 21)
    k.I("s_and_b32", s(st1), s(sj), 1)
    k.I("s_lshl_b32", s(st1), s(st1), 11)
    k.I("s_add_u32", s(st0), s(st0), s(st1))
    k.I("s_waitcnt", "lgkmcnt(0)")
    srd(k, sP, pp, 2048 * 4096)
    for i in range(4):
        k.I("v_add_u32", v(t0), 2048 * i, v(vT))
        k.I("v_lshrrev_b32", v(t1), 4, v(t0))
        k.I("v_lshlrev_b32", v(t1), 12, v(t1))
        k.I("v_and_b32", v(t2), 15, v(t0))
        k.I("v_lshl_add_u32", v(t1), v(t2), 7, v(t1))
        k.I("buffer_load_dword", v(vd + i), v(t1), sr(sP, 4), s(st0), mods="offen")
    k.L(R["done"])
    k.I("s_endpgm")
    k.lds = lds; k.threads = 512; k.grid = 256
    return k


def gen_k4b(Stamper):
    k = Kernel("k4_win_kernel")
    HREG = 0; WRING = 114688; WSL = 8192; NS = 5
    CWT = WRING + NS * WSL
    lds = CWT + 512
    R = common_start(k, 256)
    swave, st0, st1, soff, lane, t0, t1, t2 = (R[x] for x in ("swave", "st0", "st1", "soff", "lane", "t0", "t1", "t2"))
    pWin = k.salloc(2); pWS = k.salloc(2)
    k.I("s_load_dwordx2", sr(pWin, 2), "s[0:1]", 32)
    k.I("s_load_dwordx2", sr(pWS, 2), "s[0:1]", 80)
    sWS = k.salloc(4); sWin = k.salloc(4)
    sj = k.salloc(); sidx = k.salloc(); srb = k.salloc(); sct = k.salloc(); sw3 = k.salloc()
    k.I("s_and_b32", s(sj), "s2", 7)
    k.I("s_lshr_b32", s(sidx), "s2", 3)
    k.I("s_and_b32", s(sw3), s(swave), 3)
    pfrole = k.newlabel("pfrole")
    k.I("s_cmp_ge_u32", s(sidx), 28)
    k.I("s_cbranch_scc1", pfrole)
    k.I("s_mul_i32", s(st0), s(sidx), 37)
    k.I("s_lshr_b32", s(st0), s(st0), 8)
    k.I("s_mul_i32", s(st1), s(st0), 7)
    k.I("s_sub_u32", s(sct), s(sidx), s(st1))
    k.I("s_and_b32", s(st1), s(sj), 1)
    k.I("s_mul_i32", s(st1), s(st1), 7)
    k.I("s_add_u32", s(sct), s(sct), s(st1))
    k.I("s_lshr_b32", s(srb), s(sj), 1)
    k.I("s_lshl_b32", s(srb), s(srb), 2)
    k.I("s_add_u32", s(srb), s(srb), s(st0))
    stp = Stamper(k, 3, sWS, swave)
    sst = k.salloc()
    k.I("s_lshl_b32", s(sst), s(srb), 2)
    k.I("s_add_u32", s(sst), s(sst), s(sw3))
    comp = k.newlabel("compute")
    k.I("s_cmp_lt_u32", s(swave), 4)
    k.I("s_cbranch_scc1", comp)
    vsave = k.vnext
    if os.environ.get("PRIO_L"): k.I("s_setprio", int(os.environ["PRIO_L"]))
    v16 = k.valloc(); vWo = k.valloc()
    k.I("v_lshlrev_b32", v(v16), 4, v(lane))
    k.I("v_lshrrev_b32", v(t0), 3, v(lane))
    k.I("v_mul_u32_u24", v(t0), 3584, v(t0))
    k.I("v_bfe_u32", v(t1), v(lane), 4, 1)
    k.I("v_lshlrev_b32", v(t1), 2, v(t1))
    k.I("v_and_b32", v(t2), 7, v(lane))
    k.I("v_xor_b32", v(t1), v(t1), v(t2))
    k.I("v_lshl_add_u32", v(vWo), v(t1), 4, v(t0))
    sHb = k.salloc(); sWb = k.salloc(); smH = k.salloc(); smW = k.salloc()
    k.I("s_mul_i32", s(sHb), s(sst), 28 * 1024)
    k.I("s_add_u32", s(sHb), s(sHb), hex(H_OFF))
    k.I("s_mul_i32", s(smH), s(sw3), 28 * 1024)
    k.I("s_mul_i32", s(sWb), s(sw3), 16 * 3584)
    k.I("s_lshl_b32", s(st1), s(sct), 7)
    k.I("s_add_u32", s(sWb), s(sWb), s(st1))
    k.I("s_lshl_b32", s(smW), s(sw3), 11)
    k.I("s_add_u32", s(smW), s(smW), WRING)
    srot = k.salloc(); scp = k.salloc(); sa1 = k.salloc(); sa2 = k.salloc()
    k.I("s_lshl_b32", s(st0), s(srb), 1)
    k.I("s_add_u32", s(st0), s(st0), s(sct))
    k.I("s_mul_i32", s(st1), s(st0), 37)
    k.I("s_lshr_b32", s(st1), s(st1), 8)
    k.I("s_mul_i32", s(st1), s(st1), 7)
    k.I("s_sub_u32", s(srot), s(st0), s(st1))
    if not rot_on(4): k.I("s_mov_b32", s(srot), 0)
    def issue(c):
        cc = c % 7
        rot_index(k, scp, srot, cc, 7)
        if c < 7:
            k.I("s_lshl_b32", s(sa1), s(scp), 12)
            k.I("s_add_u32", s(sa1), s(sa1), s(sHb))
            for i in range(4):
                k.I("s_add_u32", s(soff), s(sa1), hex(i * 1024))
                k.I("s_add_u32", "m0", s(smH), hex(HREG + (4 * c + i) * 1024))
                k.vm(("S", c), "buffer_load_dwordx4", v(v16), sr(sWS, 4), s(soff), mods="offen lds")
        col = 1792 if c < 7 else 0
        k.I("s_mul_i32", s(sa2), s(scp), 64 * 3584)
        k.I("s_add_u32", s(sa2), s(sa2), s(sWb))
        for i in range(2):
            k.I("s_add_u32", s(soff), s(sa2), hex(8 * i * 3584 + col))
            k.I("s_add_u32", "m0", s(smW), hex((c % NS) * WSL + i * 1024))
            k.vm(("S", c), "buffer_load_dwordx4", v(vWo), sr(sWin, 4), s(soff), mods="offen lds")
    nocw = k.newlabel("nocw")
    k.I("s_waitcnt", "lgkmcnt(0)")
    srd(k, sWS, pWS, WS_SIZE)
    srd(k, sWin, pWin, 448 * 3584)
    issue(0)
    k.I("s_cmp_ge_u32", s(sw3), 2)
    k.I("s_cbranch_scc1", nocw)
    k.I("v_lshlrev_b32", v(t0), 2, v(lane))
    k.I("s_lshl_b32", s(st0), s(sct), 8)
    k.I("s_xor_b32", s(st1), s(sw3), 1)
    k.I("s_mul_i32", s(st1), s(st1), 896 * 4)
    k.I("s_add_u32", s(st0), s(st0), s(st1))
    k.I("s_add_u32", s(soff), s(st0), hex(CW_OFF))
    k.I("s_lshl_b32", s(st1), s(sw3), 8)
    k.I("s_add_u32", "m0", s(st1), CWT)
    k.I("buffer_load_dword", v(t0), sr(sWS, 4), s(soff), mods="offen lds")
    k.L(nocw)
    k.vmq.append(("S", 1))
    issue(1); issue(2)
    NST = 14
    for c in range(NST):
        if c == 0:
            k.I("s_waitcnt", "vmcnt(12)")
            k.vmq = k.vmq[6:]
        else:
            k.wait_vm(("S", c))
        k.I("s_barrier")
        if c == 0: issue(3); issue(4)
        elif c >= 2 and c + 3 < NST: issue(c + 3)
    k.I("s_endpgm")
    k.L(comp)
    if os.environ.get("PRIO_C"): k.I("s_setprio", int(os.environ["PRIO_C"]))
    k.vnext = vsave; k.vmq = []; k.lgq = []
    l31 = k.valloc(); hh = k.valloc()
    k.I("v_and_b32", v(l31), 31, v(lane))
    k.I("v_lshrrev_b32", v(hh), 5, v(lane))
    hs = k.valloc(16, 4); vh = k.valloc()
    k.I("v_lshlrev_b32", v(vh), 3, v(lane))
    k.I("s_mul_i32", s(soff), s(sst), 32 * 112)
    sEX = k.salloc()
    k.I("s_add_u32", s(sEX), s(soff), hex(EX_OFF))
    k.I("s_add_u32", s(soff), s(soff), hex(HS_OFF))
    k.I("s_waitcnt", "lgkmcnt(0)")
    srd(k, sWS, pWS, WS_SIZE)
    for i in range(7):
        k.vm("hs", "buffer_load_dwordx2", vr(hs + 2 * i, 2), v(vh), sr(sWS, 4), s(soff), mods=f"offen offset:{512 * i}")
    code_prefetch(k, "k5_sp_kernel", sidx, st0)
    stp.stamp(0)
    aH = k.valloc(); v16 = k.valloc(); vW = [k.valloc(), k.valloc()]
    k.I("v_lshlrev_b32", v(v16), 4, v(lane))
    k.I("s_mul_i32", s(st0), s(swave), 28 * 1024)
    k.I("v_add_u32", v(aH), s(st0), v(v16))
    k.I("v_bfe_u32", v(t0), v(lane), 2, 2)
    k.I("v_lshl_add_u32", v(t0), v(hh), 2, v(t0))
    k.I("v_lshlrev_b32", v(t0), 7, v(t0))
    k.I("v_add_u32", v(t0), WRING, v(t0))
    k.I("v_bfe_u32", v(t1), v(lane), 4, 1)
    k.I("v_lshlrev_b32", v(t1), 1, v(t1))
    k.I("v_bfe_u32", v(t2), v(lane), 1, 1)
    k.I("v_add_u32", v(t1), v(t1), v(t2))
    k.I("v_bfe_u32", v(t2), v(lane), 3, 1)
    k.I("v_lshlrev_b32", v(t2), 2, v(t2))
    for n2 in range(2):
        k.I("v_add_u32", v(vW[n2]), 4 * n2, v(t1))
        k.I("v_xor_b32", v(vW[n2]), v(vW[n2]), v(t2))
        k.I("v_lshl_add_u32", v(vW[n2]), v(vW[n2]), 4, v(t0))
    k.I("v_and_b32", v(t1), 1, v(lane))
    for n2 in range(2): k.I("v_lshl_add_u32", v(vW[n2]), v(t1), 3, v(vW[n2]))
    rr = k.valloc(2); nm = k.valloc(2); c0r = k.valloc(2); c1r = k.valloc(2)
    k.wait_vm("hs")
    H = hs
    for i in range(3): k.I("v_pk_add_f32", vr(H + 2 * i, 2), vr(H + 2 * i, 2), vr(H + 6 + 2 * i, 2))
    k.I("v_pk_add_f32", vr(H, 2), vr(H, 2), vr(H + 12, 2))
    k.I("v_pk_add_f32", vr(H + 2, 2), vr(H + 2, 2), vr(H + 4, 2))
    k.I("v_pk_add_f32", vr(H, 2), vr(H, 2), vr(H + 2, 2))
    for e in range(2):
        k.I("v_mov_b32", v(H + 2), v(H + e))
        k.I("v_permlane32_swap_b32", v(H + e), v(H + 2))
        k.I("v_add_f32", v(H + e), v(H + e), v(H + 2))
    k.I("v_mul_f32", v(nm), hex(f32(-1.0 / 448)), v(H))
    k.I("v_mul_f32", v(H + 1), hex(f32(1.0 / 448)), v(H + 1))
    k.I("v_fma_f32", v(H + 1), f"-{v(nm)}", v(nm), v(H + 1))
    k.I("v_max_f32", v(H + 1), 0, v(H + 1))
    k.I("v_add_f32", v(H + 1), hex(f32(1e-5)), v(H + 1))
    k.I("v_rsq_f32", v(rr), v(H + 1))
    k.I("v_mul_f32", v(c0r), hex(f32(GELU_C0)), v(rr))
    k.I("v_mul_f32", v(c1r), v(rr), v(rr))
    k.I("v_mul_f32", v(c1r), v(c1r), v(rr))
    k.I("v_mul_f32", v(c1r), hex(f32(GELU_C1)), v(c1r))
    norh = k.newlabel("norh")
    k.I("s_cmp_lg_u32", s(sct), 0)
    k.I("s_cbranch_scc1", norh)
    k.I("v_lshlrev_b32", v(t0), 2, v(l31))
    k.I("s_lshl_b32", s(st0), s(sst), 7)
    k.I("s_add_u32", s(st0), s(st0), hex(RH_OFF))
    k.I("buffer_store_dword", v(rr), v(t0), sr(sWS, 4), s(st0), mods="offen")
    k.L(norh)
    acc = [[k.valloc(16, 4) for _ in range(2)] for _ in range(2)]
    cwr = hs
    tp = [k.valloc(2) for _ in range(4)]
    NB = 3
    hf = [k.valloc(4) for _ in range(NB)]
    wf = [[k.valloc(4) for _ in range(2)] for _ in range(NB)]
    def rl(g):
        ks = g % 28; c = g // 4; j = g % 4
        b = g % NB
        out = [lambda: k.lg(("f", g), "ds_read_b128", vr(hf[b], 4), v(aH), mods=f"offset:{ks * 1024}")]
        for n2 in range(2):
            for beta in range(2):
                o = (c % NS) * WSL + (16 * j + 8 * beta) * 128
                out.append(lambda o=o, n2=n2, beta=beta: k.lg(("f", g), "ds_read_b64_tr_b16", vr(wf[b][n2] + 2 * beta, 2), v(vW[n2]), mods=f"offset:{o}"))
        return out
    vcw = k.valloc()
    k.I("v_lshlrev_b32", v(vcw), 4, v(hh))
    k.I("v_add_u32", v(vcw), CWT, v(vcw))
    def gelu_tile(A, z, n2):
        for q in range(4):
            k.lg("cw", "ds_read_b128", vr(cwr + 4 * q, 4), v(vcw), mods=f"offset:{z * 256 + n2 * 128 + 32 * q}")
        k.wait_lg("cw")
        for j in range(8):
            k.I("v_pk_fma_f32", vr(A + 2 * j, 2), vr(cwr + 2 * j, 2), vr(nm, 2), vr(A + 2 * j, 2), mods="op_sel_hi:[1,0,1]")
        for j0 in range(0, 8, 4):
            for j in range(j0, j0 + 4): k.I("v_pk_mul_f32", vr(tp[j - j0], 2), vr(A + 2 * j, 2), vr(A + 2 * j, 2))
            for j in range(j0, j0 + 4): k.I("v_pk_fma_f32", vr(tp[j - j0], 2), vr(tp[j - j0], 2), vr(c1r, 2), vr(c0r, 2), mods="op_sel_hi:[1,0,0]")
            for j in range(j0, j0 + 4): k.I("v_pk_mul_f32", vr(tp[j - j0], 2), vr(tp[j - j0], 2), vr(A + 2 * j, 2))
            for j in range(j0, j0 + 4):
                k.I("v_exp_f32", v(tp[j - j0]), v(tp[j - j0])); k.I("v_exp_f32", v(tp[j - j0] + 1), v(tp[j - j0] + 1))
            for j in range(j0, j0 + 4): k.I("v_pk_add_f32", vr(tp[j - j0], 2), vr(tp[j - j0], 2), "1.0", mods="op_sel_hi:[1,0]")
            for j in range(j0, j0 + 4):
                k.I("v_rcp_f32", v(tp[j - j0]), v(tp[j - j0])); k.I("v_rcp_f32", v(tp[j - j0] + 1), v(tp[j - j0] + 1))
            for j in range(j0, j0 + 4): k.I("v_pk_mul_f32", vr(A + 2 * j, 2), vr(A + 2 * j, 2), vr(tp[j - j0], 2))
    def mainloop(z):
        for g in range(28 * z, 28 * z + 28):
            ks = g % 28; j = g % 4; c = g // 4
            b = g % NB
            k.wait_lg(("f", g))
            mf = [lambda n2=n2: k.I("v_mfma_f32_32x32x16_bf16", vr(acc[z][n2], 16), vr(wf[b][n2], 4), vr(hf[b], 4), 0 if ks == 0 else vr(acc[z][n2], 16)) for n2 in range(2)]
            nxt = g + 2
            fl = rl(nxt) if nxt < 28 * z + 28 else []
            if j == 2 and c + 1 < NST: k.I("s_barrier")
            interleave(k, mf, fl)
    k.I("s_barrier")
    stp.stamp(1)
    for f in rl(0) + rl(1): f()
    mainloop(0)
    for f in rl(28) + rl(29): f()
    stp.stamp(2)
    accs = k.valloc(2); accq = k.valloc(2)
    for n2 in range(2):
        A = acc[0][n2]
        gelu_tile(A, 0, n2)
        for j in range(8):
            k.I("v_pk_mul_f32", vr(A + 2 * j, 2), vr(A + 2 * j, 2), vr(rr, 2), mods="op_sel_hi:[1,0]")
        for j in range(8):
            if n2 == 0 and j == 0:
                k.I("v_mov_b32", v(accs), v(A)); k.I("v_mov_b32", v(accs + 1), v(A + 1))
                k.I("v_pk_mul_f32", vr(accq, 2), vr(A, 2), vr(A, 2))
            else:
                k.I("v_pk_add_f32", vr(accs, 2), vr(accs, 2), vr(A + 2 * j, 2))
                k.I("v_pk_fma_f32", vr(accq, 2), vr(A + 2 * j, 2), vr(A + 2 * j, 2), vr(accq, 2))
    k.I("v_add_f32", v(accs), v(accs), v(accs + 1))
    k.I("v_add_f32", v(accs + 1), v(accq), v(accq + 1))
    for e in range(2):
        k.I("v_mov_b32", v(accq), v(accs + e))
        k.I("v_permlane32_swap_b32", v(accs + e), v(accq))
        k.I("v_add_f32", v(accs + e), v(accs + e), v(accq))
    k.I("v_mov_b32", v(t1), "0x7fc00000")
    k.I("v_cmp_eq_u32", "vcc", -1, v(accs + 1))
    k.I("v_cndmask_b32", v(accs + 1), v(accs + 1), v(t1), "vcc")
    ve = k.valloc()
    k.I("v_lshlrev_b32", v(ve), 3, v(l31))
    k.I("s_lshl_b32", s(st0), s(sct), 8)
    k.I("s_add_u32", s(soff), s(sEX), s(st0))
    k.I("s_mov_b32", "exec_hi", 0)
    k.I("buffer_store_dwordx2", vr(accs, 2), v(ve), sr(sWS, 4), s(soff), mods="offen sc0 sc1")
    k.I("s_mov_b64", "exec", -1)
    stp.stamp(3)
    mainloop(1)
    ex = k.valloc(16, 4)
    for i in range(7):
        k.I("buffer_load_dwordx2", vr(ex + 2 * i, 2), v(vh), sr(sWS, 4), s(sEX), mods=f"offen offset:{512 * i} sc0 sc1")
    P = [k.valloc(8, 4) for _ in range(2)]
    sft = k.salloc()
    k.I("s_lshl_b32", s(sft), s(sct), 1)
    for n2 in range(2):
        A = acc[1][n2]
        gelu_tile(A, 1, n2)
        for j in range(8): k.I("v_cvt_pk_bf16_f32", v(P[n2] + j), v(A + 2 * j), v(A + 2 * j + 1))
        k.I("s_mul_i32", s(soff), s(sst), 56 * 1024)
        k.I("s_add_u32", s(st0), s(sft), n2)
        k.I("s_lshl_b32", s(st0), s(st0), 11)
        k.I("s_add_u32", s(soff), s(soff), s(st0))
        k.I("s_add_u32", s(soff), s(soff), hex(Z1_OFF))
        k.I("buffer_store_dwordx4", vr(P[n2], 4), v(v16), sr(sWS, 4), s(soff), mods="offen")
        k.I("buffer_store_dwordx4", vr(P[n2] + 4, 4), v(v16), sr(sWS, 4), s(soff), mods="offen offset:1024")
    stp.stamp(4)
    scount = k.salloc()
    k.I("s_mov_b32", s(scount), 0)
    poll = k.newlabel("poll"); pdone = k.newlabel("pdone"); pchk = k.newlabel("pchk")
    k.I("s_waitcnt", "vmcnt(4)")
    k.I("s_branch", pchk)
    k.L(poll)
    for i in range(7):
        k.I("buffer_load_dwordx2", vr(ex + 2 * i, 2), v(vh), sr(sWS, 4), s(sEX), mods=f"offen offset:{512 * i} sc0 sc1")
    k.I("s_waitcnt", "vmcnt(0)")
    k.L(pchk)
    k.I("v_max_u32", v(t0), v(ex + 1), v(ex + 3))
    for i in range(2, 7): k.I("v_max_u32", v(t0), v(t0), v(ex + 2 * i + 1))
    k.I("v_cmp_eq_u32", "vcc", -1, v(t0))
    k.I("s_add_u32", s(scount), s(scount), 1)
    k.I("s_cmp_eq_u64", "vcc", 0)
    k.I("s_cbranch_scc1", pdone)
    k.I("s_cmp_lt_u32", s(scount), 0x40000)
    k.I("s_cbranch_scc0", pdone)
    k.I("s_sleep", 1)
    k.I("s_branch", poll)
    k.L(pdone)
    k.vmq = []
    sc_ = k.valloc(2); zm = k.valloc(2)
    H = ex
    for i in range(3): k.I("v_pk_add_f32", vr(H + 2 * i, 2), vr(H + 2 * i, 2), vr(H + 6 + 2 * i, 2))
    k.I("v_pk_add_f32", vr(H, 2), vr(H, 2), vr(H + 12, 2))
    k.I("v_pk_add_f32", vr(H + 2, 2), vr(H + 2, 2), vr(H + 4, 2))
    k.I("v_pk_add_f32", vr(H, 2), vr(H, 2), vr(H + 2, 2))
    for e in range(2):
        k.I("v_mov_b32", v(H + 2), v(H + e))
        k.I("v_permlane32_swap_b32", v(H + e), v(H + 2))
        k.I("v_add_f32", v(H + e), v(H + e), v(H + 2))
    k.I("v_mul_f32", v(zm), hex(f32(-1.0 / 896)), v(H))
    k.I("v_mul_f32", v(H + 1), hex(f32(1.0 / 896)), v(H + 1))
    k.I("v_fma_f32", v(H + 1), f"-{v(zm)}", v(zm), v(H + 1))
    k.I("v_max_f32", v(H + 1), 0, v(H + 1))
    k.I("v_add_f32", v(H + 1), hex(f32(1e-5)), v(H + 1))
    k.I("v_rsq_f32", v(sc_), v(H + 1))
    k.I("v_mul_f32", v(zm), v(zm), v(sc_))
    vt = k.valloc(); vtr = k.valloc()
    k.I("s_mul_i32", s(st0), s(swave), 28 * 1024)
    k.I("v_mul_u32_u24", v(vt), 136, v(l31))
    k.I("v_lshl_add_u32", v(vt), v(hh), 3, v(vt))
    k.I("v_add_u32", v(vt), s(st0), v(vt))
    for n2 in range(2):
        A = acc[0][n2]
        for j in range(8):
            k.I("v_pk_fma_f32", vr(A + 2 * j, 2), vr(A + 2 * j, 2), vr(sc_, 2), vr(zm, 2), mods="op_sel_hi:[1,0,0]")
        for j in range(8): k.I("v_cvt_pk_bf16_f32", v(P[n2] + j), v(A + 2 * j), v(A + 2 * j + 1))
        for q in range(4):
            k.I("ds_write_b64", v(vt), vr(P[n2] + 2 * q, 2), mods=f"offset:{64 * n2 + 16 * q}")
    k.I("v_bfe_u32", v(t0), v(lane), 2, 2)
    k.I("v_lshl_add_u32", v(t0), v(hh), 3, v(t0))
    k.I("v_mul_u32_u24", v(vtr), 136, v(t0))
    k.I("v_bfe_u32", v(t0), v(lane), 4, 1)
    k.I("v_lshl_add_u32", v(vtr), v(t0), 5, v(vtr))
    k.I("v_and_b32", v(t0), 3, v(lane))
    k.I("v_lshl_add_u32", v(vtr), v(t0), 3, v(vtr))
    k.I("v_add_u32", v(vtr), s(st0), v(vtr))
    k.I("s_waitcnt", "lgkmcnt(0)")
    Z = acc[1][0]
    for n2 in range(2):
        for ks in range(2):
            for beta in range(2):
                k.I("ds_read_b64_tr_b16", vr(Z + 8 * n2 + 4 * ks + 2 * beta, 2), v(vtr), mods=f"offset:{(16 * ks + 4 * beta) * 136 + 64 * n2}")
    k.I("s_lshr_b32", s(st0), s(sst), 5)
    k.I("s_mul_i32", s(st0), s(st0), ZK)
    k.I("s_and_b32", s(st1), s(sst), 31)
    k.I("s_lshl_b32", s(st1), s(st1), 11)
    k.I("s_add_u32", s(st0), s(st0), s(st1))
    k.I("s_add_u32", s(st0), s(st0), hex(Z2_OFF))
    for n2 in range(2):
        k.I("s_add_u32", s(st1), s(sft), n2)
        k.I("s_mul_i32", s(soff), s(st1), ZS)
        k.I("s_add_u32", s(soff), s(soff), s(st0))
        for ks in range(2):
            k.I("s_waitcnt", f"lgkmcnt({6 - 4 * n2 - 2 * ks})")
            k.I("buffer_store_dwordx4", vr(Z + 8 * n2 + 4 * ks, 4), v(v16), sr(sWS, 4), s(soff), mods=f"offen offset:{ks * 1024}")
    stp.stamp(5)
    k.I("s_endpgm")
    k.L(pfrole)
    if os.environ.get('K4PF', 'sparse') == 'dense':
        pp = k.salloc(2); sP = k.salloc(4); vT = k.valloc(); vd = k.valloc(32, 4)
        k.I("s_load_dwordx2", sr(pp, 2), "s[0:1]", 40)
        k.I("s_sub_u32", s(st0), s(sidx), 28)
        k.I("s_lshl_b32", s(st0), s(st0), 3)
        k.I("s_add_u32", s(st0), s(st0), s(swave))
        k.I("s_lshl_b32", s(st0), s(st0), 16)
        k.I("s_lshr_b32", s(st1), s(sj), 1)
        k.I("s_lshl_b32", s(st1), s(st1), 21)
        k.I("s_add_u32", s(st0), s(st0), s(st1))
        k.I("s_and_b32", s(st1), s(sj), 1)
        k.I("s_lshl_b32", s(st1), s(st1), 11)
        k.I("s_add_u32", s(st0), s(st0), s(st1))
        k.I("v_lshlrev_b32", v(vT), 4, v(lane))
        k.I("s_waitcnt", "lgkmcnt(0)")
        srd(k, sP, pp, 2048 * 4096)
        for i in range(16):
            k.I("s_add_u32", s(soff), s(st0), hex(i * 4096))
            for hf_ in range(2):
                k.I("buffer_load_dwordx4", vr(vd + 4 * ((2 * i + hf_) % 8), 4), v(vT), sr(sP, 4), s(soff), mods=f"offen offset:{hf_ * 1024}")
    else:
        pp = k.salloc(2); sP = k.salloc(4); vT = k.valloc(); vd = k.valloc(4)
        k.I("s_load_dwordx2", sr(pp, 2), "s[0:1]", 40)
        k.I("s_sub_u32", s(st0), s(sidx), 28)
        k.I("s_lshl_b32", s(st0), s(st0), 9)
        k.I("v_add_u32", v(vT), s(st0), "v0")
        k.I("s_lshr_b32", s(st0), s(sj), 1)
        k.I("s_lshl_b32", s(st0), s(st0), 21)
        k.I("s_and_b32", s(st1), s(sj), 1)
        k.I("s_lshl_b32", s(st1), s(st1), 11)
        k.I("s_add_u32", s(st0), s(st0), s(st1))
        k.I("s_waitcnt", "lgkmcnt(0)")
        srd(k, sP, pp, 2048 * 4096)
        for i in range(4):
            k.I("v_add_u32", v(t0), 2048 * i, v(vT))
            k.I("v_lshrrev_b32", v(t1), 4, v(t0))
            k.I("v_lshlrev_b32", v(t1), 12, v(t1))
            k.I("v_and_b32", v(t2), 15, v(t0))
            k.I("v_lshl_add_u32", v(t1), v(t2), 7, v(t1))
            k.I("buffer_load_dword", v(vd + i), v(t1), sr(sP, 4), s(st0), mods="offen")
    k.L(R["done"])
    k.I("s_endpgm")
    k.lds = lds; k.threads = 512; k.grid = 256
    return k

def gen_k4c(Stamper):
    k = Kernel("k4_win_kernel")
    HREG = 0; WRING = 114688; WSL = 8192; NS = 5
    CWT = WRING + NS * WSL
    lds = CWT + 512
    R = common_start(k, 256)
    swave, st0, st1, soff, lane, t0, t1, t2 = (R[x] for x in ("swave", "st0", "st1", "soff", "lane", "t0", "t1", "t2"))
    pWin = k.salloc(2); pWS = k.salloc(2)
    k.I("s_load_dwordx2", sr(pWin, 2), "s[0:1]", 32)
    k.I("s_load_dwordx2", sr(pWS, 2), "s[0:1]", 80)
    sWS = k.salloc(4); sWin = k.salloc(4)
    sj = k.salloc(); sidx = k.salloc(); srb = k.salloc(); sct = k.salloc(); sw3 = k.salloc()
    k.I("s_and_b32", s(sj), "s2", 7)
    k.I("s_lshr_b32", s(sidx), "s2", 3)
    k.I("s_and_b32", s(sw3), s(swave), 3)
    pfrole = k.newlabel("pfrole")
    k.I("s_cmp_ge_u32", s(sidx), 28)
    k.I("s_cbranch_scc1", pfrole)
    k.I("s_mul_i32", s(st0), s(sidx), 37)
    k.I("s_lshr_b32", s(st0), s(st0), 8)
    k.I("s_mul_i32", s(st1), s(st0), 7)
    k.I("s_sub_u32", s(sct), s(sidx), s(st1))
    k.I("s_and_b32", s(st1), s(sj), 1)
    k.I("s_mul_i32", s(st1), s(st1), 7)
    k.I("s_add_u32", s(sct), s(sct), s(st1))
    k.I("s_lshr_b32", s(srb), s(sj), 1)
    k.I("s_lshl_b32", s(srb), s(srb), 2)
    k.I("s_add_u32", s(srb), s(srb), s(st0))
    stp = Stamper(k, 3, sWS, swave)
    sst = k.salloc()
    k.I("s_lshl_b32", s(sst), s(srb), 2)
    k.I("s_add_u32", s(sst), s(sst), s(sw3))
    comp = k.newlabel("compute")
    k.I("s_cmp_lt_u32", s(swave), 8)
    k.I("s_cbranch_scc1", comp)
    vsave = k.vnext
    if os.environ.get("PRIO_L"): k.I("s_setprio", int(os.environ["PRIO_L"]))
    v16 = k.valloc(); vWo = k.valloc()
    k.I("v_lshlrev_b32", v(v16), 4, v(lane))
    k.I("v_lshrrev_b32", v(t0), 3, v(lane))
    k.I("v_mul_u32_u24", v(t0), 3584, v(t0))
    k.I("v_bfe_u32", v(t1), v(lane), 4, 1)
    k.I("v_lshlrev_b32", v(t1), 2, v(t1))
    k.I("v_and_b32", v(t2), 7, v(lane))
    k.I("v_xor_b32", v(t1), v(t1), v(t2))
    k.I("v_lshl_add_u32", v(vWo), v(t1), 4, v(t0))
    sHb = k.salloc(); sWb = k.salloc(); smH = k.salloc(); smW = k.salloc()
    k.I("s_mul_i32", s(sHb), s(sst), 28 * 1024)
    k.I("s_add_u32", s(sHb), s(sHb), hex(H_OFF))
    k.I("s_mul_i32", s(smH), s(sw3), 28 * 1024)
    k.I("s_mul_i32", s(sWb), s(sw3), 16 * 3584)
    k.I("s_lshl_b32", s(st1), s(sct), 7)
    k.I("s_add_u32", s(sWb), s(sWb), s(st1))
    k.I("s_lshl_b32", s(smW), s(sw3), 11)
    k.I("s_add_u32", s(smW), s(smW), WRING)
    srot = k.salloc(); scp = k.salloc(); sa1 = k.salloc(); sa2 = k.salloc()
    k.I("s_lshl_b32", s(st0), s(srb), 1)
    k.I("s_add_u32", s(st0), s(st0), s(sct))
    k.I("s_mul_i32", s(st1), s(st0), 37)
    k.I("s_lshr_b32", s(st1), s(st1), 8)
    k.I("s_mul_i32", s(st1), s(st1), 7)
    k.I("s_sub_u32", s(srot), s(st0), s(st1))
    if not rot_on(4): k.I("s_mov_b32", s(srot), 0)
    def issue(c):
        cc = c % 7
        rot_index(k, scp, srot, cc, 7)
        if c < 7:
            k.I("s_lshl_b32", s(sa1), s(scp), 12)
            k.I("s_add_u32", s(sa1), s(sa1), s(sHb))
            for i in range(4):
                k.I("s_add_u32", s(soff), s(sa1), hex(i * 1024))
                k.I("s_add_u32", "m0", s(smH), hex(HREG + (4 * c + i) * 1024))
                k.vm(("S", c), "buffer_load_dwordx4", v(v16), sr(sWS, 4), s(soff), mods="offen lds")
        col = 1792 if c < 7 else 0
        k.I("s_mul_i32", s(sa2), s(scp), 64 * 3584)
        k.I("s_add_u32", s(sa2), s(sa2), s(sWb))
        for i in range(2):
            k.I("s_add_u32", s(soff), s(sa2), hex(8 * i * 3584 + col))
            k.I("s_add_u32", "m0", s(smW), hex((c % NS) * WSL + i * 1024))
            k.vm(("S", c), "buffer_load_dwordx4", v(vWo), sr(sWin, 4), s(soff), mods="offen lds")
    nocw = k.newlabel("nocw")
    k.I("s_waitcnt", "lgkmcnt(0)")
    srd(k, sWS, pWS, WS_SIZE)
    srd(k, sWin, pWin, 448 * 3584)
    issue(0)
    k.I("s_cmp_ge_u32", s(sw3), 2)
    k.I("s_cbranch_scc1", nocw)
    k.I("v_lshlrev_b32", v(t0), 2, v(lane))
    k.I("s_lshl_b32", s(st0), s(sct), 8)
    k.I("s_xor_b32", s(st1), s(sw3), 1)
    k.I("s_mul_i32", s(st1), s(st1), 896 * 4)
    k.I("s_add_u32", s(st0), s(st0), s(st1))
    k.I("s_add_u32", s(soff), s(st0), hex(CW_OFF))
    k.I("s_lshl_b32", s(st1), s(sw3), 8)
    k.I("s_add_u32", "m0", s(st1), CWT)
    k.I("buffer_load_dword", v(t0), sr(sWS, 4), s(soff), mods="offen lds")
    k.L(nocw)
    k.vmq.append(("S", 1))
    issue(1); issue(2)
    NST = 14
    for c in range(NST):
        if c == 0:
            k.I("s_waitcnt", "vmcnt(12)")
            k.vmq = k.vmq[6:]
        else:
            k.wait_vm(("S", c))
        k.I("s_barrier")
        if c == 0: issue(3); issue(4)
        elif c >= 2 and c + 3 < NST: issue(c + 3)
    k.I("s_endpgm")
    k.L(comp)
    if os.environ.get("PRIO_C"): k.I("s_setprio", int(os.environ["PRIO_C"]))
    k.vnext = vsave; k.vmq = []; k.lgq = []
    l31 = k.valloc(); hh = k.valloc()
    k.I("v_and_b32", v(l31), 31, v(lane))
    k.I("v_lshrrev_b32", v(hh), 5, v(lane))
    sn2 = k.salloc()
    k.I("s_lshr_b32", s(sn2), s(swave), 2)
    hs = k.valloc(16, 4); vh = k.valloc()
    k.I("v_lshlrev_b32", v(vh), 3, v(lane))
    k.I("s_mul_i32", s(soff), s(sst), 32 * 112)
    sEX = k.salloc()
    k.I("s_lshl_b32", s(sEX), s(soff), 1)
    k.I("s_add_u32", s(sEX), s(sEX), hex(EX2_OFF))
    k.I("s_add_u32", s(soff), s(soff), hex(HS_OFF))
    k.I("s_waitcnt", "lgkmcnt(0)")
    srd(k, sWS, pWS, WS_SIZE)
    for i in range(7):
        k.vm("hs", "buffer_load_dwordx2", vr(hs + 2 * i, 2), v(vh), sr(sWS, 4), s(soff), mods=f"offen offset:{512 * i}")
    code_prefetch(k, "k5_sp_kernel", sidx, st0)
    stp.stamp(0)
    aH = k.valloc(); v16 = k.valloc(); vW = k.valloc()
    k.I("v_lshlrev_b32", v(v16), 4, v(lane))
    k.I("s_mul_i32", s(st0), s(sw3), 28 * 1024)
    k.I("v_add_u32", v(aH), s(st0), v(v16))
    k.I("v_bfe_u32", v(t0), v(lane), 2, 2)
    k.I("v_lshl_add_u32", v(t0), v(hh), 2, v(t0))
    k.I("v_lshlrev_b32", v(t0), 7, v(t0))
    k.I("v_add_u32", v(t0), WRING, v(t0))
    k.I("v_bfe_u32", v(t1), v(lane), 4, 1)
    k.I("v_lshlrev_b32", v(t1), 1, v(t1))
    k.I("v_bfe_u32", v(t2), v(lane), 1, 1)
    k.I("v_add_u32", v(t1), v(t1), v(t2))
    k.I("v_bfe_u32", v(t2), v(lane), 3, 1)
    k.I("v_lshlrev_b32", v(t2), 2, v(t2))
    k.I("s_lshl_b32", s(st0), s(sn2), 2)
    k.I("v_add_u32", v(vW), s(st0), v(t1))
    k.I("v_xor_b32", v(vW), v(vW), v(t2))
    k.I("v_lshl_add_u32", v(vW), v(vW), 4, v(t0))
    k.I("v_and_b32", v(t1), 1, v(lane))
    k.I("v_lshl_add_u32", v(vW), v(t1), 3, v(vW))
    rr = k.valloc(2); nm = k.valloc(2); c0r = k.valloc(2); c1r = k.valloc(2)
    k.wait_vm("hs")
    H = hs
    for i in range(3): k.I("v_pk_add_f32", vr(H + 2 * i, 2), vr(H + 2 * i, 2), vr(H + 6 + 2 * i, 2))
    k.I("v_pk_add_f32", vr(H, 2), vr(H, 2), vr(H + 12, 2))
    k.I("v_pk_add_f32", vr(H + 2, 2), vr(H + 2, 2), vr(H + 4, 2))
    k.I("v_pk_add_f32", vr(H, 2), vr(H, 2), vr(H + 2, 2))
    for e in range(2):
        k.I("v_mov_b32", v(H + 2), v(H + e))
        k.I("v_permlane32_swap_b32", v(H + e), v(H + 2))
        k.I("v_add_f32", v(H + e), v(H + e), v(H + 2))
    k.I("v_mul_f32", v(nm), hex(f32(-1.0 / 448)), v(H))
    k.I("v_mul_f32", v(H + 1), hex(f32(1.0 / 448)), v(H + 1))
    k.I("v_fma_f32", v(H + 1), f"-{v(nm)}", v(nm), v(H + 1))
    k.I("v_max_f32", v(H + 1), 0, v(H + 1))
    k.I("v_add_f32", v(H + 1), hex(f32(1e-5)), v(H + 1))
    k.I("v_rsq_f32", v(rr), v(H + 1))
    k.I("v_mul_f32", v(c0r), hex(f32(GELU_C0)), v(rr))
    k.I("v_mul_f32", v(c1r), v(rr), v(rr))
    k.I("v_mul_f32", v(c1r), v(c1r), v(rr))
    k.I("v_mul_f32", v(c1r), hex(f32(GELU_C1)), v(c1r))
    norh = k.newlabel("norh")
    k.I("s_or_b32", s(st0), s(sct), s(sn2))
    k.I("s_cmp_lg_u32", s(st0), 0)
    k.I("s_cbranch_scc1", norh)
    k.I("v_lshlrev_b32", v(t0), 2, v(l31))
    k.I("s_lshl_b32", s(st0), s(sst), 7)
    k.I("s_add_u32", s(st0), s(st0), hex(RH_OFF))
    k.I("buffer_store_dword", v(rr), v(t0), sr(sWS, 4), s(st0), mods="offen")
    k.L(norh)
    acc = [k.valloc(16, 4) for _ in range(2)]
    cwr = hs
    tp = [k.valloc(2) for _ in range(4)]
    NB = 3
    hf = [k.valloc(4) for _ in range(NB)]
    wf = [k.valloc(4) for _ in range(NB)]
    def rl(g):
        ks = g % 28; c = g // 4; j = g % 4
        b = g % NB
        out = [lambda: k.lg(("f", g), "ds_read_b128", vr(hf[b], 4), v(aH), mods=f"offset:{ks * 1024}")]
        for beta in range(2):
            o = (c % NS) * WSL + (16 * j + 8 * beta) * 128
            out.append(lambda o=o, beta=beta: k.lg(("f", g), "ds_read_b64_tr_b16", vr(wf[b] + 2 * beta, 2), v(vW), mods=f"offset:{o}"))
        return out
    vcw = k.valloc()
    k.I("v_lshlrev_b32", v(vcw), 4, v(hh))
    k.I("s_lshl_b32", s(st0), s(sn2), 7)
    k.I("s_add_u32", s(st0), s(st0), CWT)
    k.I("v_add_u32", v(vcw), s(st0), v(vcw))
    def gelu_tile(A, z):
        for q in range(4):
            k.lg("cw", "ds_read_b128", vr(cwr + 4 * q, 4), v(vcw), mods=f"offset:{z * 256 + 32 * q}")
        k.wait_lg("cw")
        for j in range(8):
            k.I("v_pk_fma_f32", vr(A + 2 * j, 2), vr(cwr + 2 * j, 2), vr(nm, 2), vr(A + 2 * j, 2), mods="op_sel_hi:[1,0,1]")
        for j0 in range(0, 8, 4):
            for j in range(j0, j0 + 4): k.I("v_pk_mul_f32", vr(tp[j - j0], 2), vr(A + 2 * j, 2), vr(A + 2 * j, 2))
            for j in range(j0, j0 + 4): k.I("v_pk_fma_f32", vr(tp[j - j0], 2), vr(tp[j - j0], 2), vr(c1r, 2), vr(c0r, 2), mods="op_sel_hi:[1,0,0]")
            for j in range(j0, j0 + 4): k.I("v_pk_mul_f32", vr(tp[j - j0], 2), vr(tp[j - j0], 2), vr(A + 2 * j, 2))
            for j in range(j0, j0 + 4):
                k.I("v_exp_f32", v(tp[j - j0]), v(tp[j - j0])); k.I("v_exp_f32", v(tp[j - j0] + 1), v(tp[j - j0] + 1))
            for j in range(j0, j0 + 4): k.I("v_pk_add_f32", vr(tp[j - j0], 2), vr(tp[j - j0], 2), "1.0", mods="op_sel_hi:[1,0]")
            for j in range(j0, j0 + 4):
                k.I("v_rcp_f32", v(tp[j - j0]), v(tp[j - j0])); k.I("v_rcp_f32", v(tp[j - j0] + 1), v(tp[j - j0] + 1))
            for j in range(j0, j0 + 4): k.I("v_pk_mul_f32", vr(A + 2 * j, 2), vr(A + 2 * j, 2), vr(tp[j - j0], 2))
    def mainloop(z):
        for g in range(28 * z, 28 * z + 28):
            ks = g % 28; j = g % 4; c = g // 4
            b = g % NB
            k.wait_lg(("f", g))
            mf = [lambda: k.I("v_mfma_f32_32x32x16_bf16", vr(acc[z], 16), vr(wf[b], 4), vr(hf[b], 4), 0 if ks == 0 else vr(acc[z], 16))]
            nxt = g + 2
            fl = rl(nxt) if nxt < 28 * z + 28 else []
            if j == 2 and c + 1 < NST: k.I("s_barrier")
            interleave(k, mf, fl)
    k.I("s_barrier")
    stp.stamp(1)
    for f in rl(0) + rl(1): f()
    mainloop(0)
    for f in rl(28) + rl(29): f()
    stp.stamp(2)
    accs = k.valloc(2); accq = k.valloc(2)
    A = acc[0]
    gelu_tile(A, 0)
    for j in range(8):
        k.I("v_pk_mul_f32", vr(A + 2 * j, 2), vr(A + 2 * j, 2), vr(rr, 2), mods="op_sel_hi:[1,0]")
    accs2 = k.valloc(2); accq2 = k.valloc(2)
    k.I("v_pk_add_f32", vr(accs, 2), vr(A, 2), vr(A + 2, 2))
    k.I("v_pk_add_f32", vr(accs2, 2), vr(A + 4, 2), vr(A + 6, 2))
    k.I("v_pk_mul_f32", vr(accq, 2), vr(A, 2), vr(A, 2))
    k.I("v_pk_mul_f32", vr(accq2, 2), vr(A + 2, 2), vr(A + 2, 2))
    for j in range(2, 8):
        tq = accq if j % 2 == 0 else accq2
        k.I("v_pk_fma_f32", vr(tq, 2), vr(A + 2 * j, 2), vr(A + 2 * j, 2), vr(tq, 2))
        if j >= 4:
            ts = accs if j % 2 == 0 else accs2
            k.I("v_pk_add_f32", vr(ts, 2), vr(ts, 2), vr(A + 2 * j, 2))
    k.I("v_pk_add_f32", vr(accs, 2), vr(accs, 2), vr(accs2, 2))
    k.I("v_pk_add_f32", vr(accq, 2), vr(accq, 2), vr(accq2, 2))
    k.I("v_add_f32", v(accs), v(accs), v(accs + 1))
    k.I("v_add_f32", v(accs + 1), v(accq), v(accq + 1))
    for e in range(2):
        k.I("v_mov_b32", v(accq), v(accs + e))
        k.I("v_permlane32_swap_b32", v(accs + e), v(accq))
        k.I("v_add_f32", v(accs + e), v(accs + e), v(accq))
    k.I("v_mov_b32", v(t1), "0x7fc00000")
    k.I("v_cmp_eq_u32", "vcc", -1, v(accs + 1))
    k.I("v_cndmask_b32", v(accs + 1), v(accs + 1), v(t1), "vcc")
    ve = k.valloc()
    k.I("v_lshlrev_b32", v(ve), 3, v(l31))
    k.I("s_lshl_b32", s(st0), s(sct), 1)
    k.I("s_add_u32", s(st0), s(st0), s(sn2))
    k.I("s_lshl_b32", s(st0), s(st0), 8)
    k.I("s_add_u32", s(soff), s(sEX), s(st0))
    k.I("s_mov_b32", "exec_hi", 0)
    k.I("buffer_store_dwordx2", vr(accs, 2), v(ve), sr(sWS, 4), s(soff), mods="offen sc0 sc1")
    k.I("s_mov_b64", "exec", -1)
    stp.stamp(3)
    mainloop(1)
    ex = k.valloc(28, 4); sEX2 = k.salloc()
    for i in range(14):
        if i == 8: k.I("s_add_u32", s(sEX2), s(sEX), 4096)
        k.I("buffer_load_dwordx2", vr(ex + 2 * i, 2), v(vh), sr(sWS, 4), s(sEX if i < 8 else sEX2), mods=f"offen offset:{512 * (i % 8)} sc0 sc1")
    P = k.valloc(8, 4)
    sft = k.salloc()
    k.I("s_lshl_b32", s(sft), s(sct), 1)
    k.I("s_add_u32", s(sft), s(sft), s(sn2))
    A = acc[1]
    gelu_tile(A, 1)
    for j in range(8): k.I("v_cvt_pk_bf16_f32", v(P + j), v(A + 2 * j), v(A + 2 * j + 1))
    k.I("s_mul_i32", s(soff), s(sst), 56 * 1024)
    k.I("s_lshl_b32", s(st0), s(sft), 11)
    k.I("s_add_u32", s(soff), s(soff), s(st0))
    k.I("s_add_u32", s(soff), s(soff), hex(Z1_OFF))
    k.I("buffer_store_dwordx4", vr(P, 4), v(v16), sr(sWS, 4), s(soff), mods="offen")
    k.I("buffer_store_dwordx4", vr(P + 4, 4), v(v16), sr(sWS, 4), s(soff), mods="offen offset:1024")
    stp.stamp(4)
    scount = k.salloc()
    k.I("s_mov_b32", s(scount), 0)
    poll = k.newlabel("poll"); pdone = k.newlabel("pdone"); pchk = k.newlabel("pchk")
    k.I("s_waitcnt", "vmcnt(2)")
    k.I("s_branch", pchk)
    k.L(poll)
    for i in range(14):
        if i == 8: k.I("s_add_u32", s(sEX2), s(sEX), 4096)
        k.I("buffer_load_dwordx2", vr(ex + 2 * i, 2), v(vh), sr(sWS, 4), s(sEX if i < 8 else sEX2), mods=f"offen offset:{512 * (i % 8)} sc0 sc1")
    k.I("s_waitcnt", "vmcnt(0)")
    k.L(pchk)
    k.I("v_max_u32", v(t0), v(ex + 1), v(ex + 3))
    for i in range(2, 14): k.I("v_max_u32", v(t0), v(t0), v(ex + 2 * i + 1))
    k.I("v_cmp_eq_u32", "vcc", -1, v(t0))
    k.I("s_add_u32", s(scount), s(scount), 1)
    k.I("s_cmp_eq_u64", "vcc", 0)
    k.I("s_cbranch_scc1", pdone)
    k.I("s_cmp_lt_u32", s(scount), 0x40000)
    k.I("s_cbranch_scc0", pdone)
    k.I("s_sleep", 1)
    k.I("s_branch", poll)
    k.L(pdone)
    k.vmq = []
    sc_ = k.valloc(2); zm = k.valloc(2)
    H = ex
    for i in range(7): k.I("v_pk_add_f32", vr(H + 2 * i, 2), vr(H + 2 * i, 2), vr(H + 14 + 2 * i, 2))
    for i in range(3): k.I("v_pk_add_f32", vr(H + 2 * i, 2), vr(H + 2 * i, 2), vr(H + 6 + 2 * i, 2))
    k.I("v_pk_add_f32", vr(H, 2), vr(H, 2), vr(H + 12, 2))
    k.I("v_pk_add_f32", vr(H + 2, 2), vr(H + 2, 2), vr(H + 4, 2))
    k.I("v_pk_add_f32", vr(H, 2), vr(H, 2), vr(H + 2, 2))
    for e in range(2):
        k.I("v_mov_b32", v(H + 2), v(H + e))
        k.I("v_permlane32_swap_b32", v(H + e), v(H + 2))
        k.I("v_add_f32", v(H + e), v(H + e), v(H + 2))
    k.I("v_mul_f32", v(zm), hex(f32(-1.0 / 896)), v(H))
    k.I("v_mul_f32", v(H + 1), hex(f32(1.0 / 896)), v(H + 1))
    k.I("v_fma_f32", v(H + 1), f"-{v(zm)}", v(zm), v(H + 1))
    k.I("v_max_f32", v(H + 1), 0, v(H + 1))
    k.I("v_add_f32", v(H + 1), hex(f32(1e-5)), v(H + 1))
    k.I("v_rsq_f32", v(sc_), v(H + 1))
    k.I("v_mul_f32", v(zm), v(zm), v(sc_))
    k.I("s_barrier")
    vt = k.valloc(); vtr = k.valloc()
    k.I("s_mul_i32", s(st0), s(swave), 2304)
    k.I("s_add_u32", s(st0), s(st0), WRING)
    k.I("v_mul_u32_u24", v(vt), 72, v(l31))
    k.I("v_lshl_add_u32", v(vt), v(hh), 3, v(vt))
    k.I("v_add_u32", v(vt), s(st0), v(vt))
    A = acc[0]
    for j in range(8):
        k.I("v_pk_fma_f32", vr(A + 2 * j, 2), vr(A + 2 * j, 2), vr(sc_, 2), vr(zm, 2), mods="op_sel_hi:[1,0,0]")
    for j in range(8): k.I("v_cvt_pk_bf16_f32", v(P + j), v(A + 2 * j), v(A + 2 * j + 1))
    for q in range(4):
        k.I("ds_write_b64", v(vt), vr(P + 2 * q, 2), mods=f"offset:{16 * q}")
    k.I("v_bfe_u32", v(t0), v(lane), 2, 2)
    k.I("v_lshl_add_u32", v(t0), v(hh), 3, v(t0))
    k.I("v_mul_u32_u24", v(vtr), 72, v(t0))
    k.I("v_bfe_u32", v(t0), v(lane), 4, 1)
    k.I("v_lshl_add_u32", v(vtr), v(t0), 5, v(vtr))
    k.I("v_and_b32", v(t0), 3, v(lane))
    k.I("v_lshl_add_u32", v(vtr), v(t0), 3, v(vtr))
    k.I("v_add_u32", v(vtr), s(st0), v(vtr))
    Z = acc[1]
    for ks in range(2):
        for beta in range(2):
            k.I("ds_read_b64_tr_b16", vr(Z + 4 * ks + 2 * beta, 2), v(vtr), mods=f"offset:{(16 * ks + 4 * beta) * 72}")
    k.I("s_lshr_b32", s(st0), s(sst), 5)
    k.I("s_mul_i32", s(st0), s(st0), ZK)
    k.I("s_and_b32", s(st1), s(sst), 31)
    k.I("s_lshl_b32", s(st1), s(st1), 11)
    k.I("s_add_u32", s(st0), s(st0), s(st1))
    k.I("s_add_u32", s(st0), s(st0), hex(Z2_OFF))
    k.I("s_mul_i32", s(soff), s(sft), ZS)
    k.I("s_add_u32", s(soff), s(soff), s(st0))
    for ks in range(2):
        k.I("s_waitcnt", f"lgkmcnt({2 - 2 * ks})")
        k.I("buffer_store_dwordx4", vr(Z + 4 * ks, 4), v(v16), sr(sWS, 4), s(soff), mods=f"offen offset:{ks * 1024}")
    stp.stamp(5)
    k.I("s_endpgm")
    k.L(pfrole)
    if os.environ.get('K4PF', 'sparse') == 'dense':
        pp = k.salloc(2); sP = k.salloc(4); vT = k.valloc(); vd = k.valloc(32, 4)
        k.I("s_load_dwordx2", sr(pp, 2), "s[0:1]", 40)
        k.I("s_sub_u32", s(st0), s(sidx), 28)
        k.I("s_lshl_b32", s(st0), s(st0), 3)
        k.I("s_add_u32", s(st0), s(st0), s(swave))
        k.I("s_lshl_b32", s(st0), s(st0), 16)
        k.I("s_lshr_b32", s(st1), s(sj), 1)
        k.I("s_lshl_b32", s(st1), s(st1), 21)
        k.I("s_add_u32", s(st0), s(st0), s(st1))
        k.I("s_and_b32", s(st1), s(sj), 1)
        k.I("s_lshl_b32", s(st1), s(st1), 11)
        k.I("s_add_u32", s(st0), s(st0), s(st1))
        k.I("v_lshlrev_b32", v(vT), 4, v(lane))
        k.I("s_waitcnt", "lgkmcnt(0)")
        srd(k, sP, pp, 2048 * 4096)
        for i in range(16):
            k.I("s_add_u32", s(soff), s(st0), hex(i * 4096))
            for hf_ in range(2):
                k.I("buffer_load_dwordx4", vr(vd + 4 * ((2 * i + hf_) % 8), 4), v(vT), sr(sP, 4), s(soff), mods=f"offen offset:{hf_ * 1024}")
    else:
        pp = k.salloc(2); sP = k.salloc(4); vT = k.valloc(); vd = k.valloc(4)
        k.I("s_load_dwordx2", sr(pp, 2), "s[0:1]", 40)
        k.I("s_sub_u32", s(st0), s(sidx), 28)
        k.I("s_lshl_b32", s(st0), s(st0), 9)
        k.I("v_add_u32", v(vT), s(st0), "v0")
        k.I("s_cmp_ge_u32", s(swave), 8)
        k.I("s_cbranch_scc1", R["done"])
        k.I("s_lshr_b32", s(st0), s(sj), 1)
        k.I("s_lshl_b32", s(st0), s(st0), 21)
        k.I("s_and_b32", s(st1), s(sj), 1)
        k.I("s_lshl_b32", s(st1), s(st1), 11)
        k.I("s_add_u32", s(st0), s(st0), s(st1))
        k.I("s_waitcnt", "lgkmcnt(0)")
        srd(k, sP, pp, 2048 * 4096)
        for i in range(4):
            k.I("v_add_u32", v(t0), 2048 * i, v(vT))
            k.I("v_lshrrev_b32", v(t1), 4, v(t0))
            k.I("v_lshlrev_b32", v(t1), 12, v(t1))
            k.I("v_and_b32", v(t2), 15, v(t0))
            k.I("v_lshl_add_u32", v(t1), v(t2), 7, v(t1))
            k.I("buffer_load_dword", v(vd + i), v(t1), sr(sP, 4), s(st0), mods="offen")
    k.L(R["done"])
    k.I("s_endpgm")
    k.lds = lds; k.threads = 768; k.grid = 256
    return k

def gen_k5(Stamper):
    k = Kernel("k5_sp_kernel")
    DEEP = os.environ.get("K5NS", "4") == "5"
    NS = 5 if DEEP else 4; SLOT = 32768
    Z1REG = None if DEEP else NS * SLOT
    lds = NS * SLOT if DEEP else Z1REG + 32768
    R = common_start(k, 256)
    swave, st0, st1, soff, lane, t0, t1, t2 = (R[x] for x in ("swave", "st0", "st1", "soff", "lane", "t0", "t1", "t2"))
    pSp = k.salloc(2); pB = k.salloc(2); pWS = k.salloc(2)
    k.I("s_load_dwordx2", sr(pSp, 2), "s[0:1]", 40)
    k.I("s_load_dwordx2", sr(pB, 2), "s[0:1]", 48)
    k.I("s_load_dwordx2", sr(pWS, 2), "s[0:1]", 80)
    sWS = k.salloc(4); sSp = k.salloc(4); sB = k.salloc(4)
    sj = k.salloc(); sidx = k.salloc(); stt = k.salloc(); sft = k.salloc(); skap = k.salloc(); sw3 = k.salloc()
    if os.environ.get("K5MAP") == "linear":
        k.I("s_mul_i32", s(sj), "s2", 2341)
        k.I("s_lshr_b32", s(sj), s(sj), 16)
        k.I("s_mul_i32", s(sidx), s(sj), 28)
        k.I("s_sub_u32", s(sidx), "s2", s(sidx))
    else:
        k.I("s_and_b32", s(sj), "s2", 7)
        k.I("s_lshr_b32", s(sidx), "s2", 3)
    pfrole = k.newlabel("pfrole")
    k.I("s_cmp_ge_u32", s(sidx), 28)
    k.I("s_cbranch_scc1", pfrole)
    k.I("s_and_b32", s(sw3), s(swave), 3)
    k.I("s_and_b32", s(skap), s(sj), 1)
    k.I("s_mul_i32", s(st0), s(sidx), 37)
    k.I("s_lshr_b32", s(st0), s(st0), 8)
    k.I("s_mul_i32", s(st1), s(st0), 7)
    k.I("s_sub_u32", s(sft), s(sidx), s(st1))
    k.I("s_lshr_b32", s(stt), s(sj), 1)
    k.I("s_lshl_b32", s(stt), s(stt), 2)
    k.I("s_add_u32", s(stt), s(stt), s(st0))
    stp = Stamper(k, 4, sWS, swave)
    if os.environ.get("TICKWAVE", "0") != "0": stp.tick(0)
    comp = k.newlabel("compute")
    k.I("s_cmp_lt_u32", s(swave), 4)
    k.I("s_cbranch_scc1", comp)
    vsave = k.vnext
    if os.environ.get("PRIO_L"): k.I("s_setprio", int(os.environ["PRIO_L"]))
    v16 = k.valloc(); vWo = k.valloc(2)
    k.I("v_lshlrev_b32", v(v16), 4, v(lane))
    k.I("v_lshrrev_b32", v(t0), 3, v(lane))
    k.I("v_lshlrev_b32", v(t0), 12, v(t0))
    k.I("v_lshrrev_b32", v(t1), 4, v(lane))
    k.I("v_and_b32", v(t2), 7, v(lane))
    k.I("v_xor_b32", v(t1), v(t1), v(t2))
    k.I("v_lshl_add_u32", v(vWo), v(t1), 4, v(t0))
    k.I("v_xor_b32", v(t1), 4, v(t1))
    k.I("v_lshl_add_u32", v(vWo + 1), v(t1), 4, v(t0))
    sZb = k.salloc(); sWb = k.salloc(); smZ = k.salloc(); smW = k.salloc()
    k.I("s_lshl_b32", s(st0), s(sft), 2)
    k.I("s_add_u32", s(st0), s(st0), s(sw3))
    k.I("s_mul_i32", s(sZb), s(st0), ZS)
    k.I("s_mul_i32", s(st1), s(skap), ZK)
    k.I("s_add_u32", s(sZb), s(sZb), s(st1))
    k.I("s_add_u32", s(sZb), s(sZb), hex(Z2_OFF))
    k.I("s_lshl_b32", s(smZ), s(sw3), 12)
    k.I("s_lshl_b32", s(st0), s(stt), 7)
    k.I("s_lshl_b32", s(st1), s(sw3), 5)
    k.I("s_add_u32", s(st0), s(st0), s(st1))
    k.I("s_lshl_b32", s(sWb), s(st0), 12)
    k.I("s_lshl_b32", s(st1), s(skap), 11)
    k.I("s_add_u32", s(sWb), s(sWb), s(st1))
    k.I("s_add_u32", s(smW), s(smZ), 16384)
    srot = k.salloc(); scp = k.salloc(); sa1 = k.salloc(); sa2 = k.salloc()
    k.I("s_lshl_b32", s(st0), s(sft), 1)
    k.I("s_mul_i32", s(st1), s(stt), 5)
    k.I("s_add_u32", s(srot), s(st0), s(st1))
    k.I("s_and_b32", s(srot), s(srot), 15)
    if not rot_on(5): k.I("s_mov_b32", s(srot), 0)
    def issue(c):
        sl = (c % NS) * SLOT
        k.I("s_add_u32", s(scp), s(srot), c)
        k.I("s_and_b32", s(scp), s(scp), 15)
        k.I("s_lshl_b32", s(sa1), s(scp), 12)
        k.I("s_add_u32", s(sa1), s(sa1), s(sZb))
        k.I("s_lshl_b32", s(sa2), s(scp), 7)
        k.I("s_add_u32", s(sa2), s(sa2), s(sWb))
        for i in range(4):
            k.I("s_add_u32", s(soff), s(sa1), hex(i * 1024))
            k.I("s_add_u32", "m0", s(smZ), hex(sl + i * 1024))
            k.vm(("S", c), "buffer_load_dwordx4", v(v16), sr(sWS, 4), s(soff), mods="offen lds")
        for i in range(4):
            k.I("s_add_u32", s(soff), s(sa2), hex(i * 8 * 4096))
            k.I("s_add_u32", "m0", s(smW), hex(sl + i * 1024))
            k.vm(("S", c), "buffer_load_dwordx4", v(vWo + (i & 1)), sr(sSp, 4), s(soff), mods="offen lds")
    NST = 16
    sZ1 = k.salloc()
    k.I("s_lshl_b32", s(st0), s(stt), 2)
    k.I("s_add_u32", s(st0), s(st0), s(sw3))
    k.I("s_mul_i32", s(sZ1), s(st0), 56 * 1024)
    k.I("s_lshl_b32", s(st1), s(sft), 13)
    k.I("s_add_u32", s(sZ1), s(sZ1), s(st1))
    k.I("s_add_u32", s(sZ1), s(sZ1), hex(Z1_OFF))
    smZ1 = k.salloc()
    k.I("s_lshl_b32", s(smZ1), s(sw3), 12 if DEEP else 13)
    def z1_lds(i):
        if DEEP: return ((16 + i // 4) % NS) * SLOT + (i % 4) * 1024
        return Z1REG + i * 1024
    def issue_z1(i, tag):
        k.I("s_add_u32", s(soff), s(sZ1), hex(i * 1024))
        k.I("s_add_u32", "m0", s(smZ1), hex(z1_lds(i)))
        k.vm(("S", tag), "buffer_load_dwordx4", v(v16), sr(sWS, 4), s(soff), mods="offen lds")
    LT = os.environ.get("TICKWAVE", "0") != "0"
    k.I("s_waitcnt", "lgkmcnt(0)")
    srd(k, sWS, pWS, WS_SIZE)
    srd(k, sSp, pSp, 2048 * 4096)
    if LT: stp.tick(1)
    issue(0)
    if LT: stp.tick(2)
    issue(1)
    if LT: stp.tick(3)
    for c in range(NST):
        k.wait_vm(("S", c))
        if LT and c < 3: stp.tick(4 + 2 * c)
        k.I("s_barrier")
        if LT and c < 3: stp.tick(5 + 2 * c)
        if DEEP:
            if c == 0: issue(2); issue(3); issue(4)
            elif c >= 2 and c + 3 < NST: issue(c + 3)
            elif c + 3 in (16, 17):
                for i in range(4): issue_z1(4 * (c + 3 - 16) + i, c + 3)
            continue
        if c == 0: issue(2); issue(3)
        elif c + 2 < NST and c >= 2:
            issue(c + 2)
            if 3 <= c < 11: issue_z1(c - 3, c + 2)
    if DEEP:
        k.wait_vm([("S", 16), ("S", 17)])
        k.I("s_barrier")
    vT = k.valloc()
    k.I("s_lshl_b32", s(st0), s(sidx), 8)
    k.I("v_subrev_u32", v(vT), 256, "v0")
    k.I("v_add_u32", v(vT), s(st0), v(vT))
    k.I("v_lshlrev_b32", v(vT), 7, v(vT))
    if LT: stp.dump_ticks()
    k.I("s_endpgm")
    k.L(comp)
    if os.environ.get("PRIO_C"): k.I("s_setprio", int(os.environ["PRIO_C"]))
    k.vnext = vsave; k.vmq = []; k.lgq = []
    l31 = k.valloc(); hh = k.valloc()
    k.I("v_and_b32", v(l31), 31, v(lane))
    k.I("v_lshrrev_b32", v(hh), 5, v(lane))
    sfh = k.salloc(); sth = k.salloc(); sst = k.salloc(); sf32 = k.salloc()
    k.I("s_and_b32", s(sfh), s(swave), 1)
    k.I("s_lshr_b32", s(sth), s(swave), 1)
    k.I("s_lshl_b32", s(sst), s(stt), 2)
    k.I("s_lshl_b32", s(st0), s(sth), 1)
    k.I("s_add_u32", s(sst), s(sst), s(st0))
    k.I("s_lshl_b32", s(sf32), s(sft), 2)
    k.I("s_lshl_b32", s(st0), s(sfh), 1)
    k.I("s_add_u32", s(sf32), s(sf32), s(st0))
    if os.environ.get("PF3", "0") == "1":
        vT0 = k.valloc(); vd0 = k.valloc(2)
        k.I("s_lshl_b32", s(st0), s(sidx), 8)
        k.I("v_add_u32", v(vT0), s(st0), "v0")
        k.I("s_lshl_b32", s(st1), s(skap), 16)
        k.I("s_add_u32", s(st1), s(st1), hex(Z2_OFF))
        for i in range(2):
            k.I("v_add_u32", v(t0), 7168 * i, v(vT0))
            k.I("v_lshrrev_b32", v(t1), 9, v(t0))
            k.I("v_lshlrev_b32", v(t1), 17, v(t1))
            k.I("v_and_b32", v(t2), 511, v(t0))
            k.I("v_lshl_add_u32", v(t1), v(t2), 7, v(t1))
            k.vm("pf", "buffer_load_dword", v(vd0 + i), v(t1), sr(sWS, 4), s(st1), mods="offen")
    v16 = k.valloc()
    k.I("v_lshlrev_b32", v(v16), 4, v(lane))
    z1 = [[k.valloc(8, 4) for _ in range(2)] for _ in range(2)]
    rr = [k.valloc(2) for _ in range(2)]; bb = [k.valloc(2) for _ in range(2)]
    k.I("v_lshlrev_b32", v(t0), 2, v(l31))
    k.I("v_lshlrev_b32", v(t1), 1, v(l31))
    k.I("s_waitcnt", "lgkmcnt(0)")
    srd(k, sWS, pWS, WS_SIZE)
    srd(k, sB, pB, 4096)
    for ti in range(2):
        k.I("s_add_u32", s(st0), s(sst), ti)
        k.I("s_lshl_b32", s(soff), s(st0), 7)
        k.I("s_add_u32", s(soff), s(soff), hex(RH_OFF))
        k.vm("z1", "buffer_load_dword", v(rr[ti]), v(t0), sr(sWS, 4), s(soff), mods="offen")
        k.I("s_lshl_b32", s(soff), s(st0), 6)
        k.vm("z1", "buffer_load_ushort", v(bb[ti]), v(t1), sr(sB, 4), s(soff), mods="offen")
    if os.environ.get("PF2", "0") == "1":
        pp = k.salloc(2); sP = k.salloc(4); vT = k.valloc(); vd = k.valloc(2)
        k.I("s_load_dwordx2", sr(pp, 2), "s[0:1]", 56)
        k.I("s_lshl_b32", s(st0), s(sidx), 8)
        k.I("v_add_u32", v(vT), s(st0), "v0")
        k.I("v_lshlrev_b32", v(vT), 7, v(vT))
        k.I("s_waitcnt", "lgkmcnt(0)")
        srd(k, sP, pp, 896 * 896)
        k.vm("pf", "buffer_load_dword", v(vd), v(vT), sr(sP, 4), 0, mods="offen")
    code_prefetch(k, "k6_wout_kernel", sidx, st0)
    stp.stamp(0)
    aZ = k.valloc(); aW = k.valloc(4)
    k.I("s_lshl_b32", s(st0), s(sfh), 13)
    k.I("v_add_u32", v(aZ), s(st0), v(v16))
    k.I("v_bfe_u32", v(t0), v(l31), 1, 3)
    for j in range(4):
        k.I("v_add_u32", v(t1), 2 * j, v(hh))
        k.I("v_xor_b32", v(t1), v(t1), v(t0))
        k.I("v_lshlrev_b32", v(t1), 4, v(t1))
        k.I("v_lshl_add_u32", v(aW + j), v(l31), 7, v(t1))
        k.I("s_lshl_b32", s(st0), s(sth), 13)
        k.I("s_add_u32", s(st0), s(st0), 16384)
        k.I("v_add_u32", v(aW + j), s(st0), v(aW + j))
    aZ2 = k.valloc(); aW2 = k.valloc(4)
    k.I("v_add_u32", v(aZ2), 65536, v(aZ))
    for j in range(4): k.I("v_add_u32", v(aW2 + j), 65536, v(aW + j))
    if DEEP:
        aZ3 = k.valloc(); aW3 = k.valloc(4)
        k.I("v_add_u32", v(aZ3), 131072, v(aZ))
        for j in range(4): k.I("v_add_u32", v(aW3 + j), 131072, v(aW + j))
    acc = [[k.valloc(16, 4) for _ in range(2)] for _ in range(2)]
    NB = 3
    zf = [[k.valloc(4) for _ in range(2)] for _ in range(NB)]
    wf = [[k.valloc(4) for _ in range(2)] for _ in range(NB)]
    def rl(ks):
        c, j = ks // 4, ks % 4
        b = ks % NB
        sl = (c % NS) * SLOT
        hi = sl // 65536
        so = sl - 65536 * hi
        bz = [aZ, aZ2, aZ3 if DEEP else None][hi]; bw = [aW, aW2, aW3 if DEEP else None][hi]
        out = []
        for fi in range(2):
            out.append(lambda fi=fi: k.lg(("f", ks), "ds_read_b128", vr(zf[b][fi], 4), v(bz), mods=f"offset:{so + fi * 4096 + j * 1024}"))
        for ti in range(2):
            out.append(lambda ti=ti: k.lg(("f", ks), "ds_read_b128", vr(wf[b][ti], 4), v(bw + j), mods=f"offset:{so + ti * 4096}"))
        return out
    k.I("s_barrier")
    stp.stamp(1)
    for f in rl(0) + rl(1): f()
    NKS = NST * 4
    for ks in range(NKS):
        c, j = ks // 4, ks % 4
        b = ks % NB
        k.wait_lg(("f", ks))
        mf = []
        for fi in range(2):
            for ti in range(2):
                if os.environ.get("EXP16"):
                    for hx in range(2):
                        r0 = acc[fi][ti] + 4 * (2 * (ks & 1) + hx)
                        mf.append(lambda fi=fi, ti=ti, r0=r0: k.I("v_mfma_f32_16x16x32_bf16", vr(r0, 4), vr(zf[b][fi], 4), vr(wf[b][ti], 4), 0 if ks < 2 else vr(r0, 4)))
                    continue
                mf.append(lambda fi=fi, ti=ti: k.I("v_mfma_f32_32x32x16_bf16", vr(acc[fi][ti], 16), vr(zf[b][fi], 4), vr(wf[b][ti], 4), 0 if ks == 0 else vr(acc[fi][ti], 16)))
        fl = rl(ks + 2) if ks + 2 < NKS else []
        if j == 2 and ks + 2 < NKS:
            if not LT and c in (0, 13, 14): stp.tick({0: 0, 13: 1, 14: 2}[c])
            k.I("s_barrier")
        interleave(k, mf, fl)
    if not LT: stp.tick(3)
    stp.stamp(2)
    if not LT: stp.tick(4)
    if not LT: stp.tick(5)
    vz = k.valloc()
    if DEEP:
        k.I("s_barrier")
        k.I("s_lshl_b32", s(st0), s(sth), 13)
        k.I("v_add_u32", v(vz), s(st0), v(v16))
        lab2 = k.newlabel("fh1"); lab3 = k.newlabel("fhj")
        vz2 = k.valloc()
        k.I("s_add_u32", s(st0), s(sfh), 1)
        k.I("s_lshl_b32", s(st0), s(st0), 15)
        k.I("v_add_u32", v(vz), s(st0), v(vz))
        for ti in range(2):
            for fi in range(2):
                for hf_ in range(2):
                    k.lg(("z1", ti, fi), "ds_read_b128", vr(z1[fi][ti] + 4 * hf_, 4), v(vz), mods=f"offset:{ti * 4096 + (2 * fi + hf_) * 1024}")
    else:
        k.I("s_lshl_b32", s(st0), s(sth), 14)
        k.I("s_lshl_b32", s(st1), s(sfh), 12)
        k.I("s_add_u32", s(st0), s(st0), s(st1))
        k.I("s_add_u32", s(st0), s(st0), Z1REG)
        k.I("v_add_u32", v(vz), s(st0), v(v16))
        for ti in range(2):
            for fi in range(2):
                for hf_ in range(2):
                    k.lg(("z1", ti, fi), "ds_read_b128", vr(z1[fi][ti] + 4 * hf_, 4), v(vz), mods=f"offset:{ti * 8192 + fi * 2048 + hf_ * 1024}")
    k.wait_vm("z1")
    for ti in range(2):
        k.I("v_lshlrev_b32", v(bb[ti]), 16, v(bb[ti]))
        k.I("v_mul_f32", v(bb[ti]), v(bb[ti]), v(rr[ti]))
    k.I("s_cmp_eq_u32", s(skap), 0)
    k.I("s_cselect_b32", s(st0), "1.0", 0)
    for ti in range(2): k.I("v_mul_f32", v(bb[ti]), s(st0), v(bb[ti]))
    tp = [k.valloc(2) for _ in range(4)]
    P = [k.valloc(8, 4) for _ in range(2)]
    sU = k.salloc()
    k.I("s_mul_i32", s(sU), s(skap), U1_OFF - U0_OFF)
    k.I("s_add_u32", s(sU), s(sU), hex(U0_OFF))
    n = 0
    for ti in range(2):
        for fi in range(2):
            A = acc[fi][ti]; Zp = z1[fi][ti]; PP = P[n & 1]; n += 1
            for j in range(8):
                k.I("v_pk_fma_f32", vr(A + 2 * j, 2), vr(A + 2 * j, 2), vr(rr[ti], 2), vr(bb[ti], 2), mods="op_sel_hi:[1,0,0]")
            k.wait_lg(("z1", ti, fi))
            for j in range(8):
                T = tp[j % 4]
                k.I("v_lshlrev_b32", v(T), 16, v(Zp + j))
                k.I("v_and_b32", v(T + 1), "0xffff0000", v(Zp + j))
                k.I("v_pk_mul_f32", vr(A + 2 * j, 2), vr(A + 2 * j, 2), vr(T, 2))
            for j in range(8): k.I("v_cvt_pk_bf16_f32", v(PP + j), v(A + 2 * j), v(A + 2 * j + 1))
            k.I("s_add_u32", s(st0), s(sst), ti)
            k.I("s_mul_i32", s(soff), s(st0), 56 * 1024)
            k.I("s_add_u32", s(st0), s(sf32), fi)
            k.I("s_lshl_b32", s(st0), s(st0), 11)
            k.I("s_add_u32", s(soff), s(soff), s(st0))
            k.I("s_add_u32", s(soff), s(soff), s(sU))
            k.I("buffer_store_dwordx4", vr(PP, 4), v(v16), sr(sWS, 4), s(soff), mods="offen")
            k.I("buffer_store_dwordx4", vr(PP + 4, 4), v(v16), sr(sWS, 4), s(soff), mods="offen offset:1024")
            if not LT: stp.tick(5 + n)
    stp.stamp(3)
    if not LT: stp.tick(10)
    if not LT: stp.dump_ticks()
    k.I("s_endpgm")
    k.L(pfrole)
    vT2 = k.valloc()
    k.I("s_sub_u32", s(st0), s(sidx), 28)
    k.I("s_lshl_b32", s(st0), s(st0), 9)
    k.I("v_add_u32", v(vT2), s(st0), "v0")
    k.I("v_lshlrev_b32", v(vT2), 7, v(vT2))
    l2_prefetch(k, 56, 896 * 896, vT2, 2048, st0)
    k.L(R["done"])
    k.I("s_endpgm")
    k.lds = lds; k.threads = 512; k.grid = 256
    return k

def gen_k56(Stamper):
    k = Kernel("k5_sp_kernel")
    NS = 4; SLOT = 32768
    Z1REG = NS * SLOT
    lds = Z1REG + 32768
    R = common_start(k, 256)
    swave, st0, st1, soff, lane, t0, t1, t2 = (R[x] for x in ("swave", "st0", "st1", "soff", "lane", "t0", "t1", "t2"))
    pSp = k.salloc(2); pB = k.salloc(2); pWS = k.salloc(2)
    k.I("s_load_dwordx2", sr(pSp, 2), "s[0:1]", 40)
    k.I("s_load_dwordx2", sr(pB, 2), "s[0:1]", 48)
    k.I("s_load_dwordx2", sr(pWS, 2), "s[0:1]", 80)
    pWo = k.salloc(2); pOD = k.salloc(4)
    k.I("s_load_dwordx2", sr(pWo, 2), "s[0:1]", 56)
    k.I("s_load_dwordx4", sr(pOD, 4), "s[0:1]", 64)
    sWS = k.salloc(4); sSp = k.salloc(4); sB = k.salloc(4); sWo = k.salloc(4); sOut = k.salloc(4); sD = k.salloc(4)
    sj = k.salloc(); sidx = k.salloc(); stt = k.salloc(); sft = k.salloc(); skap = k.salloc(); sw3 = k.salloc()
    if os.environ.get("K5MAP") == "linear":
        k.I("s_mul_i32", s(sj), "s2", 2341)
        k.I("s_lshr_b32", s(sj), s(sj), 16)
        k.I("s_mul_i32", s(sidx), s(sj), 28)
        k.I("s_sub_u32", s(sidx), "s2", s(sidx))
    else:
        k.I("s_and_b32", s(sj), "s2", 7)
        k.I("s_lshr_b32", s(sidx), "s2", 3)
    pfrole = k.newlabel("pfrole")
    k.I("s_cmp_ge_u32", s(sidx), 28)
    k.I("s_cbranch_scc1", pfrole)
    k.I("s_and_b32", s(sw3), s(swave), 3)
    k.I("s_and_b32", s(skap), s(sj), 1)
    k.I("s_mul_i32", s(st0), s(sidx), 37)
    k.I("s_lshr_b32", s(st0), s(st0), 8)
    k.I("s_mul_i32", s(st1), s(st0), 7)
    k.I("s_sub_u32", s(sft), s(sidx), s(st1))
    k.I("s_lshr_b32", s(stt), s(sj), 1)
    k.I("s_lshl_b32", s(stt), s(stt), 2)
    k.I("s_add_u32", s(stt), s(stt), s(st0))
    stp = Stamper(k, 4, sWS, swave)
    if os.environ.get("TICKWAVE", "0") != "0": stp.tick(0)
    k.I("s_waitcnt", "lgkmcnt(0)")
    srd(k, sWS, pWS, WS_SIZE)
    comp = k.newlabel("compute")
    k.I("s_cmp_lt_u32", s(swave), 4)
    k.I("s_cbranch_scc1", comp)
    vsave = k.vnext
    if os.environ.get("PRIO_L"): k.I("s_setprio", int(os.environ["PRIO_L"]))
    srd(k, sSp, pSp, 2048 * 4096)
    v16 = k.valloc(); vWo = k.valloc(2)
    k.I("v_lshlrev_b32", v(v16), 4, v(lane))
    k.I("v_lshrrev_b32", v(t0), 3, v(lane))
    k.I("v_lshlrev_b32", v(t0), 12, v(t0))
    k.I("v_lshrrev_b32", v(t1), 4, v(lane))
    k.I("v_and_b32", v(t2), 7, v(lane))
    k.I("v_xor_b32", v(t1), v(t1), v(t2))
    k.I("v_lshl_add_u32", v(vWo), v(t1), 4, v(t0))
    k.I("v_xor_b32", v(t1), 4, v(t1))
    k.I("v_lshl_add_u32", v(vWo + 1), v(t1), 4, v(t0))
    sZb = k.salloc(); sWb = k.salloc(); smZ = k.salloc(); smW = k.salloc()
    k.I("s_lshl_b32", s(st0), s(sft), 2)
    k.I("s_add_u32", s(st0), s(st0), s(sw3))
    k.I("s_mul_i32", s(sZb), s(st0), ZS)
    k.I("s_mul_i32", s(st1), s(skap), ZK)
    k.I("s_add_u32", s(sZb), s(sZb), s(st1))
    k.I("s_add_u32", s(sZb), s(sZb), hex(Z2_OFF))
    k.I("s_lshl_b32", s(smZ), s(sw3), 12)
    k.I("s_lshl_b32", s(st0), s(stt), 7)
    k.I("s_lshl_b32", s(st1), s(sw3), 5)
    k.I("s_add_u32", s(st0), s(st0), s(st1))
    k.I("s_lshl_b32", s(sWb), s(st0), 12)
    k.I("s_lshl_b32", s(st1), s(skap), 11)
    k.I("s_add_u32", s(sWb), s(sWb), s(st1))
    k.I("s_add_u32", s(smW), s(smZ), 16384)
    def issue(c):
        sl = (c % NS) * SLOT
        def zpart():
            for i in range(4):
                k.I("s_add_u32", s(soff), s(sZb), hex((4 * c + i) * 1024))
                k.I("s_add_u32", "m0", s(smZ), hex(sl + i * 1024))
                k.vm(("S", c), "buffer_load_dwordx4", v(v16), sr(sWS, 4), s(soff), mods="offen lds")
                if os.environ.get("DIAG5") and c == 0 and i in (0, 3):
                    k.I("s_waitcnt", "vmcnt(0)"); stp.tick(10 + (i > 0))
        def wpart():
            for i in range(4):
                k.I("s_add_u32", s(soff), s(sWb), hex(i * 8 * 4096 + c * 128))
                k.I("s_add_u32", "m0", s(smW), hex(sl + i * 1024))
                k.vm(("S", c), "buffer_load_dwordx4", v(vWo + (i & 1)), sr(sSp, 4), s(soff), mods="offen lds")
                if os.environ.get("DIAG5") and c == 0 and i in (0, 3):
                    k.I("s_waitcnt", "vmcnt(0)"); stp.tick(12 + (i > 0))
        if os.environ.get("DIAG5") == "2": wpart(); zpart()
        else: zpart(); wpart()
    NST = 16
    sZ1 = k.salloc()
    k.I("s_lshl_b32", s(st0), s(stt), 2)
    k.I("s_add_u32", s(st0), s(st0), s(sw3))
    k.I("s_mul_i32", s(sZ1), s(st0), 56 * 1024)
    k.I("s_lshl_b32", s(st1), s(sft), 13)
    k.I("s_add_u32", s(sZ1), s(sZ1), s(st1))
    k.I("s_add_u32", s(sZ1), s(sZ1), hex(Z1_OFF))
    smZ1 = k.salloc()
    k.I("s_lshl_b32", s(smZ1), s(sw3), 13)
    def issue_z1(i, tag):
        k.I("s_add_u32", s(soff), s(sZ1), hex(i * 1024))
        k.I("s_add_u32", "m0", s(smZ1), hex(Z1REG + i * 1024))
        k.vm(("S", tag), "buffer_load_dwordx4", v(v16), sr(sWS, 4), s(soff), mods="offen lds")
    LT = os.environ.get("TICKWAVE", "0") != "0"
    if LT: stp.tick(1)
    issue(0)
    if LT: stp.tick(2)
    issue(1)
    if LT: stp.tick(3)
    for c in range(NST):
        k.wait_vm(("S", c))
        if LT and c < 3: stp.tick(4 + 2 * c)
        k.I("s_barrier")
        if LT and c < 3: stp.tick(5 + 2 * c)
        if c == 0: issue(2); issue(3)
        elif c + 2 < NST and c >= 2:
            issue(c + 2)
            if 3 <= c < 11: issue_z1(c - 3, c + 2)
    srd(k, sWo, pWo, 896 * 896)
    vWd = k.valloc(); sWd = k.salloc(); smD = k.salloc()
    k.I("v_lshrrev_b32", v(t0), 3, v(lane))
    k.I("v_mul_u32_u24", v(t0), 896, v(t0))
    k.I("v_bfe_u32", v(t1), v(lane), 4, 1)
    k.I("v_lshlrev_b32", v(t1), 2, v(t1))
    k.I("v_and_b32", v(t2), 7, v(lane))
    k.I("v_xor_b32", v(t1), v(t1), v(t2))
    k.I("v_lshl_add_u32", v(vWd), v(t1), 4, v(t0))
    k.I("s_mul_i32", s(sWd), s(sw3), 224 * 896)
    k.I("s_lshl_b32", s(st1), s(sft), 7)
    k.I("s_add_u32", s(sWd), s(sWd), s(st1))
    k.I("s_mul_i32", s(smD), s(sw3), 224 * 128)
    k.I("s_barrier")
    for i in range(28):
        k.I("s_add_u32", s(soff), s(sWd), hex(i * 8 * 896))
        k.I("s_add_u32", "m0", s(smD), hex(i * 1024))
        k.I("buffer_load_dwordx4", v(vWd), sr(sWo, 4), s(soff), mods="offen lds")
    k.I("s_waitcnt", "vmcnt(0)")
    k.I("s_barrier")
    k.I("s_endpgm")
    k.L(comp)
    if os.environ.get("PRIO_C"): k.I("s_setprio", int(os.environ["PRIO_C"]))
    k.vnext = vsave; k.vmq = []; k.lgq = []
    srd(k, sB, pB, 4096)
    l31 = k.valloc(); hh = k.valloc()
    k.I("v_and_b32", v(l31), 31, v(lane))
    k.I("v_lshrrev_b32", v(hh), 5, v(lane))
    sfh = k.salloc(); sth = k.salloc(); sst = k.salloc(); sf32 = k.salloc()
    k.I("s_and_b32", s(sfh), s(swave), 1)
    k.I("s_lshr_b32", s(sth), s(swave), 1)
    k.I("s_lshl_b32", s(sst), s(stt), 2)
    k.I("s_lshl_b32", s(st0), s(sth), 1)
    k.I("s_add_u32", s(sst), s(sst), s(st0))
    k.I("s_lshl_b32", s(sf32), s(sft), 2)
    k.I("s_lshl_b32", s(st0), s(sfh), 1)
    k.I("s_add_u32", s(sf32), s(sf32), s(st0))
    if os.environ.get("PF3", "0") == "1":
        vT0 = k.valloc(); vd0 = k.valloc(2)
        k.I("s_lshl_b32", s(st0), s(sidx), 8)
        k.I("v_add_u32", v(vT0), s(st0), "v0")
        k.I("s_lshl_b32", s(st1), s(skap), 16)
        k.I("s_add_u32", s(st1), s(st1), hex(Z2_OFF))
        for i in range(2):
            k.I("v_add_u32", v(t0), 7168 * i, v(vT0))
            k.I("v_lshrrev_b32", v(t1), 9, v(t0))
            k.I("v_lshlrev_b32", v(t1), 17, v(t1))
            k.I("v_and_b32", v(t2), 511, v(t0))
            k.I("v_lshl_add_u32", v(t1), v(t2), 7, v(t1))
            k.vm("pf", "buffer_load_dword", v(vd0 + i), v(t1), sr(sWS, 4), s(st1), mods="offen")
    v16 = k.valloc()
    k.I("v_lshlrev_b32", v(v16), 4, v(lane))
    vB = k.vnext
    z1 = [[k.valloc(8, 4) for _ in range(2)] for _ in range(2)]
    rr = [k.valloc(2) for _ in range(2)]; bb = [k.valloc(2) for _ in range(2)]
    k.I("v_lshlrev_b32", v(t0), 2, v(l31))
    k.I("v_lshlrev_b32", v(t1), 1, v(l31))
    for ti in range(2):
        k.I("s_add_u32", s(st0), s(sst), ti)
        k.I("s_lshl_b32", s(soff), s(st0), 7)
        k.I("s_add_u32", s(soff), s(soff), hex(RH_OFF))
        k.vm("z1", "buffer_load_dword", v(rr[ti]), v(t0), sr(sWS, 4), s(soff), mods="offen")
        k.I("s_lshl_b32", s(soff), s(st0), 6)
        k.vm("z1", "buffer_load_ushort", v(bb[ti]), v(t1), sr(sB, 4), s(soff), mods="offen")
    if os.environ.get("PF2", "0") == "1":
        pp = k.salloc(2); sP = k.salloc(4); vT = k.valloc(); vd = k.valloc(2)
        k.I("s_load_dwordx2", sr(pp, 2), "s[0:1]", 56)
        k.I("s_lshl_b32", s(st0), s(sidx), 8)
        k.I("v_add_u32", v(vT), s(st0), "v0")
        k.I("v_lshlrev_b32", v(vT), 7, v(vT))
        k.I("s_waitcnt", "lgkmcnt(0)")
        srd(k, sP, pp, 896 * 896)
        k.vm("pf", "buffer_load_dword", v(vd), v(vT), sr(sP, 4), 0, mods="offen")
    stp.stamp(0)
    aZ = k.valloc(); aW = k.valloc(4)
    k.I("s_lshl_b32", s(st0), s(sfh), 13)
    k.I("v_add_u32", v(aZ), s(st0), v(v16))
    k.I("v_bfe_u32", v(t0), v(l31), 1, 3)
    for j in range(4):
        k.I("v_add_u32", v(t1), 2 * j, v(hh))
        k.I("v_xor_b32", v(t1), v(t1), v(t0))
        k.I("v_lshlrev_b32", v(t1), 4, v(t1))
        k.I("v_lshl_add_u32", v(aW + j), v(l31), 7, v(t1))
        k.I("s_lshl_b32", s(st0), s(sth), 13)
        k.I("s_add_u32", s(st0), s(st0), 16384)
        k.I("v_add_u32", v(aW + j), s(st0), v(aW + j))
    aZ2 = k.valloc(); aW2 = k.valloc(4)
    k.I("v_add_u32", v(aZ2), 65536, v(aZ))
    for j in range(4): k.I("v_add_u32", v(aW2 + j), 65536, v(aW + j))
    acc = [[k.valloc(16, 4) for _ in range(2)] for _ in range(2)]
    NB = 3
    zf = [[k.valloc(4) for _ in range(2)] for _ in range(NB)]
    wf = [[k.valloc(4) for _ in range(2)] for _ in range(NB)]
    def rl(ks):
        c, j = ks // 4, ks % 4
        b = ks % NB
        sl = (c % NS) * SLOT
        hi = sl >= 65536
        so = sl - (65536 if hi else 0)
        out = []
        for fi in range(2):
            out.append(lambda fi=fi: k.lg(("f", ks), "ds_read_b128", vr(zf[b][fi], 4), v(aZ2 if hi else aZ), mods=f"offset:{so + fi * 4096 + j * 1024}"))
        for ti in range(2):
            out.append(lambda ti=ti: k.lg(("f", ks), "ds_read_b128", vr(wf[b][ti], 4), v((aW2 if hi else aW) + j), mods=f"offset:{so + ti * 4096}"))
        return out
    k.I("s_barrier")
    if not os.environ.get("DIAG56"): stp.stamp(1)
    for f in rl(0) + rl(1): f()
    NKS = NST * 4
    for ks in range(NKS):
        c, j = ks // 4, ks % 4
        b = ks % NB
        k.wait_lg(("f", ks))
        mf = []
        for fi in range(2):
            for ti in range(2):
                mf.append(lambda fi=fi, ti=ti: k.I("v_mfma_f32_32x32x16_bf16", vr(acc[fi][ti], 16), vr(zf[b][fi], 4), vr(wf[b][ti], 4), 0 if ks == 0 else vr(acc[fi][ti], 16)))
        fl = rl(ks + 2) if ks + 2 < NKS else []
        if j == 2 and ks + 2 < NKS:
            k.I("s_barrier")
        interleave(k, mf, fl)
    k.I("s_barrier")
    if not os.environ.get("DIAG56"): stp.stamp(2)
    vz = k.valloc()
    k.I("s_lshl_b32", s(st0), s(sth), 14)
    k.I("s_lshl_b32", s(st1), s(sfh), 12)
    k.I("s_add_u32", s(st0), s(st0), s(st1))
    k.I("s_add_u32", s(st0), s(st0), Z1REG)
    k.I("v_add_u32", v(vz), s(st0), v(v16))
    for ti in range(2):
        for fi in range(2):
            for hf_ in range(2):
                k.lg(("z1", ti, fi), "ds_read_b128", vr(z1[fi][ti] + 4 * hf_, 4), v(vz), mods=f"offset:{ti * 8192 + fi * 2048 + hf_ * 1024}")
    k.wait_vm("z1")
    for ti in range(2):
        k.I("v_lshlrev_b32", v(bb[ti]), 16, v(bb[ti]))
        k.I("v_mul_f32", v(bb[ti]), v(bb[ti]), v(rr[ti]))
    k.I("s_cmp_eq_u32", s(skap), 0)
    k.I("s_cselect_b32", s(st0), "1.0", 0)
    for ti in range(2): k.I("v_mul_f32", v(bb[ti]), s(st0), v(bb[ti]))
    tp = [k.valloc(2) for _ in range(4)]
    P = [k.valloc(8, 4) for _ in range(2)]
    sU = k.salloc()
    k.I("s_mul_i32", s(sU), s(skap), U1_OFF - U0_OFF)
    k.I("s_add_u32", s(sU), s(sU), hex(U0_OFF))
    n = 0
    for ti in range(2):
        for fi in range(2):
            A = acc[fi][ti]; Zp = z1[fi][ti]; PP = P[n & 1]; n += 1
            for j in range(8):
                k.I("v_pk_fma_f32", vr(A + 2 * j, 2), vr(A + 2 * j, 2), vr(rr[ti], 2), vr(bb[ti], 2), mods="op_sel_hi:[1,0,0]")
            k.wait_lg(("z1", ti, fi))
            for j in range(8):
                T = tp[j % 4]
                k.I("v_lshlrev_b32", v(T), 16, v(Zp + j))
                k.I("v_and_b32", v(T + 1), "0xffff0000", v(Zp + j))
                k.I("v_pk_mul_f32", vr(A + 2 * j, 2), vr(A + 2 * j, 2), vr(T, 2))
            for j in range(8): k.I("v_cvt_pk_bf16_f32", v(PP + j), v(A + 2 * j), v(A + 2 * j + 1))
            k.I("s_add_u32", s(st0), s(sst), ti)
            k.I("s_mul_i32", s(soff), s(st0), 56 * 1024)
            k.I("s_add_u32", s(st0), s(sf32), fi)
            k.I("s_lshl_b32", s(st0), s(st0), 11)
            k.I("s_add_u32", s(soff), s(soff), s(st0))
            k.I("s_add_u32", s(soff), s(soff), s(sU))
            k.I("buffer_store_dwordx4", vr(PP, 4), v(v16), sr(sWS, 4), s(soff), mods="offen")
            k.I("buffer_store_dwordx4", vr(PP + 4, 4), v(v16), sr(sWS, 4), s(soff), mods="offen offset:1024")
    stp.stamp(3)
    k.vnext = vB
    srd(k, sOut, pOD, 2048 * 896)
    srd(k, sD, pOD + 2, 256)
    srh = k.salloc(); skh = k.salloc(); sstB = k.salloc()
    k.I("s_and_b32", s(srh), s(swave), 1)
    k.I("s_lshr_b32", s(skh), s(swave), 1)
    k.I("s_lshl_b32", s(sstB), s(stt), 2)
    k.I("s_lshl_b32", s(st0), s(skap), 1)
    k.I("s_add_u32", s(sstB), s(sstB), s(st0))
    k.I("s_add_u32", s(sstB), s(sstB), s(srh))
    hr = k.valloc(8, 4)
    k.I("s_mul_i32", s(soff), s(sstB), 28 * 1024)
    k.I("s_lshl_b32", s(st0), s(sft), 1)
    k.I("s_add_u32", s(st0), s(st0), s(skh))
    sntile = k.salloc()
    k.I("s_mov_b32", s(sntile), s(st0))
    k.I("s_lshl_b32", s(st0), s(st0), 11)
    k.I("s_add_u32", s(soff), s(soff), s(st0))
    k.I("s_add_u32", s(soff), s(soff), hex(H_OFF))
    k.I("s_waitcnt", "vmcnt(0)")
    k.vmq = []
    fl = k.valloc(2); vz0 = k.valloc(); one = k.valloc()
    k.I("s_mul_i32", s(st0), s(skap), 7)
    k.I("s_add_u32", s(st0), s(st0), s(sft))
    k.I("s_lshl_b32", s(st0), s(st0), 2)
    k.I("s_add_u32", s(st0), s(st0), s(swave))
    k.I("s_lshl_b32", s(st0), s(st0), 2)
    k.I("s_lshl_b32", s(st1), s(stt), 8)
    sFL = k.salloc()
    k.I("s_add_u32", s(sFL), s(st1), hex(FL_OFF))
    k.I("s_add_u32", s(st0), s(st0), s(sFL))
    k.I("v_mov_b32", v(vz0), 0)
    k.I("v_mov_b32", v(one), 1)
    k.I("s_mov_b64", "exec", 1)
    k.I("buffer_store_dword", v(one), v(vz0), sr(sWS, 4), s(st0), mods="offen sc0 sc1")
    k.I("s_mov_b64", "exec", -1)
    k.I("buffer_load_dwordx4", vr(hr, 4), v(v16), sr(sWS, 4), s(soff), mods="offen")
    k.I("buffer_load_dwordx4", vr(hr + 4, 4), v(v16), sr(sWS, 4), s(soff), mods="offen offset:1024")
    k.I("v_min_u32", v(vz0), 55, v(lane))
    k.I("v_lshlrev_b32", v(vz0), 2, v(vz0))
    vWb = [k.valloc(), k.valloc()]
    k.I("v_bfe_u32", v(t0), v(lane), 2, 2)
    k.I("v_lshl_add_u32", v(t0), v(hh), 2, v(t0))
    k.I("s_mul_i32", s(st0), s(skh), 448)
    k.I("v_add_u32", v(t0), s(st0), v(t0))
    k.I("v_lshlrev_b32", v(t0), 7, v(t0))
    k.I("v_bfe_u32", v(t1), v(lane), 4, 1)
    k.I("v_lshlrev_b32", v(t1), 1, v(t1))
    k.I("v_bfe_u32", v(t2), v(lane), 1, 1)
    k.I("v_add_u32", v(t1), v(t1), v(t2))
    k.I("v_bfe_u32", v(t2), v(lane), 3, 1)
    k.I("v_lshlrev_b32", v(t2), 2, v(t2))
    for n2 in range(2):
        k.I("v_add_u32", v(vWb[n2]), 4 * n2, v(t1))
        k.I("v_xor_b32", v(vWb[n2]), v(vWb[n2]), v(t2))
        k.I("v_lshl_add_u32", v(vWb[n2]), v(vWb[n2]), 4, v(t0))
    k.I("v_and_b32", v(t1), 1, v(lane))
    for n2 in range(2): k.I("v_lshl_add_u32", v(vWb[n2]), v(t1), 3, v(vWb[n2]))
    sU0 = k.salloc(); sU1 = k.salloc()
    k.I("s_mul_i32", s(sU0), s(sstB), 56 * 1024)
    k.I("s_mul_i32", s(st0), s(skh), 28 * 1024)
    k.I("s_add_u32", s(sU0), s(sU0), s(st0))
    k.I("s_add_u32", s(sU1), s(sU0), hex(U1_OFF))
    k.I("s_add_u32", s(sU0), s(sU0), hex(U0_OFF))
    accB = [k.valloc(16, 4) for _ in range(2)]
    NU = 12
    uf = [[k.valloc(4) for _ in range(2)] for _ in range(NU)]
    NBW = 3
    wfB = [[k.valloc(4) for _ in range(2)] for _ in range(NBW)]
    scount = k.salloc()
    k.I("s_mov_b32", s(scount), 0)
    poll = k.newlabel("poll"); pdone = k.newlabel("pdone")
    k.L(poll)
    k.I("buffer_load_dword", v(fl), v(vz0), sr(sWS, 4), s(sFL), mods="offen sc0 sc1")
    k.I("s_waitcnt", "vmcnt(0)")
    k.I("v_cmp_ne_u32", "vcc", 1, v(fl))
    k.I("s_add_u32", s(scount), s(scount), 1)
    k.I("s_cmp_eq_u64", "vcc", 0)
    k.I("s_cbranch_scc1", pdone)
    k.I("s_cmp_lt_u32", s(scount), 0x100000)
    k.I("s_cbranch_scc0", pdone)
    k.I("s_sleep", 1)
    k.I("s_branch", poll)
    k.L(pdone)
    k.vmq = []
    stp.stamp(4)
    def uload(j):
        for ar_, sU in enumerate((sU0, sU1)):
            k.I("s_add_u32", s(soff), s(sU), hex(j * 1024))
            k.vm(("u", j), "buffer_load_dwordx4", vr(uf[j % NU][ar_], 4), v(v16), sr(sWS, 4), s(soff), mods="offen sc1")
    def wread(j):
        out = []
        for n2 in range(2):
            for beta in range(2):
                out.append(lambda n2=n2, beta=beta: k.lg(("w", j), "ds_read_b64_tr_b16", vr(wfB[j % NBW][n2] + 2 * beta, 2), v(vWb[n2]), mods=f"offset:{(16 * j + 8 * beta) * 128}"))
        return out
    for j in range(NU): uload(j)
    k.I("s_barrier")
    for f in wread(0) + wread(1): f()
    for j in range(28):
        k.wait_vm(("u", j))
        k.wait_lg(("w", j))
        mf = []
        for ar_ in range(2):
            for n2 in range(2):
                mf.append(lambda ar_=ar_, n2=n2: k.I("v_mfma_f32_32x32x16_bf16", vr(accB[n2], 16), vr(wfB[j % NBW][n2], 4), vr(uf[j % NU][ar_], 4), 0 if (j == 0 and ar_ == 0) else vr(accB[n2], 16)))
        fl_ = wread(j + 2) if j + 2 < 28 else []
        interleave(k, mf, fl_)
        if j + NU < 28: uload(j + NU)
    stp.stamp(5)
    RED = 114688
    vr1 = k.valloc(); vr2 = k.valloc()
    k.I("s_lshl_b32", s(st0), s(srh), 13)
    k.I("s_add_u32", s(st0), s(st0), RED)
    k.I("v_add_u32", v(vr1), s(st0), v(v16))
    k.I("s_lshl_b32", s(st1), s(skh), 12)
    k.I("v_add_u32", v(vr2), s(st1), v(vr1))
    k.I("s_xor_b32", s(st1), s(st1), 4096)
    k.I("v_add_u32", v(vr1), s(st1), v(vr1))
    keep = k.valloc(16, 4)
    lab_a = k.newlabel("kh1"); lab_b = k.newlabel("khj")
    k.I("s_cmp_lg_u32", s(skh), 0)
    k.I("s_cbranch_scc1", lab_a)
    for q in range(4): k.I("ds_write_b128", v(vr1), vr(accB[1] + 4 * q, 4), mods=f"offset:{q * 1024}")
    for i in range(16): k.I("v_mov_b32", v(keep + i), v(accB[0] + i))
    k.I("s_branch", lab_b)
    k.L(lab_a)
    for q in range(4): k.I("ds_write_b128", v(vr1), vr(accB[0] + 4 * q, 4), mods=f"offset:{q * 1024}")
    for i in range(16): k.I("v_mov_b32", v(keep + i), v(accB[1] + i))
    k.L(lab_b)
    k.I("s_waitcnt", "lgkmcnt(0)")
    k.lgq = []
    k.I("s_barrier")
    oth = k.valloc(16, 4)
    for q in range(4): k.I("ds_read_b128", vr(oth + 4 * q, 4), v(vr2), mods=f"offset:{q * 1024}")
    tpB = [k.valloc(2) for _ in range(4)]
    for j in range(8):
        T = tpB[j % 4]
        k.I("v_lshlrev_b32", v(T), 16, v(hr + j))
        k.I("v_and_b32", v(T + 1), "0xffff0000", v(hr + j))
        k.I("v_pk_add_f32", vr(keep + 2 * j, 2), vr(keep + 2 * j, 2), vr(T, 2))
    k.I("s_waitcnt", "lgkmcnt(0)")
    for j in range(8): k.I("v_pk_add_f32", vr(keep + 2 * j, 2), vr(keep + 2 * j, 2), vr(oth + 2 * j, 2))
    PB = k.valloc(8, 4)
    for j in range(8): k.I("v_cvt_pk_bf16_f32", v(PB + j), v(keep + 2 * j), v(keep + 2 * j + 1))
    for kp in range(2):
        k.I("v_permlane32_swap_b32", v(PB + 4 * kp), v(PB + 4 * kp + 2))
        k.I("v_permlane32_swap_b32", v(PB + 4 * kp + 1), v(PB + 4 * kp + 3))
    vo = k.valloc()
    k.I("v_mul_u32_u24", v(vo), 896, v(l31))
    k.I("v_lshl_add_u32", v(vo), v(hh), 4, v(vo))
    k.I("s_mul_i32", s(soff), s(sstB), 32 * 896)
    k.I("s_lshl_b32", s(st0), s(sntile), 6)
    k.I("s_add_u32", s(soff), s(soff), s(st0))
    for kp in range(2):
        k.I("buffer_store_dwordx4", vr(PB + 4 * kp, 4), v(vo), sr(sOut, 4), s(soff), mods=f"offen offset:{32 * kp}")
    stp.stamp(6)
    k.I("s_endpgm")
    k.L(pfrole)
    vT2 = k.valloc()
    k.I("s_sub_u32", s(st0), s(sidx), 28)
    k.I("s_lshl_b32", s(st0), s(st0), 9)
    k.I("v_add_u32", v(vT2), s(st0), "v0")
    k.I("v_lshlrev_b32", v(vT2), 7, v(vT2))
    l2_prefetch(k, 56, 896 * 896, vT2, 2048, st0)
    k.L(R["done"])
    k.I("s_endpgm")
    k.lds = lds; k.threads = 512; k.grid = 256
    return k

def gen_k6(Stamper):
    k = Kernel("k6_wout_kernel")
    NS = int(os.environ.get('K6NS', '6')); SLOT = 24576
    RED = 0
    lds = NS * SLOT
    R = common_start(k, 224)
    swave, st0, st1, soff, lane, t0, t1, t2 = (R[x] for x in ("swave", "st0", "st1", "soff", "lane", "t0", "t1", "t2"))
    pWo = k.salloc(2); pOut = k.salloc(2); pWS = k.salloc(2)
    k.I("s_load_dwordx2", sr(pWo, 2), "s[0:1]", 56)
    k.I("s_load_dwordx2", sr(pOut, 2), "s[0:1]", 64)
    k.I("s_load_dwordx2", sr(pWS, 2), "s[0:1]", 80)
    sWS = k.salloc(4); sWo = k.salloc(4); sOut = k.salloc(4)
    sj = k.salloc(); sidx = k.salloc(); srt = k.salloc(); snt = k.salloc(); sw3 = k.salloc()
    k.I("s_and_b32", s(sj), "s2", 7)
    k.I("s_lshr_b32", s(sidx), "s2", 3)
    k.I("s_and_b32", s(sw3), s(swave), 3)
    k.I("s_mul_i32", s(st0), s(sidx), 37)
    k.I("s_lshr_b32", s(st0), s(st0), 8)
    k.I("s_mul_i32", s(st1), s(st0), 7)
    k.I("s_sub_u32", s(snt), s(sidx), s(st1))
    k.I("s_lshl_b32", s(srt), s(sj), 2)
    k.I("s_add_u32", s(srt), s(srt), s(st0))
    stp = Stamper(k, 5, sWS, swave)
    comp = k.newlabel("compute")
    k.I("s_cmp_lt_u32", s(swave), 4)
    k.I("s_cbranch_scc1", comp)
    vsave = k.vnext
    if os.environ.get("PRIO_L"): k.I("s_setprio", int(os.environ["PRIO_L"]))
    v16 = k.valloc(); vWo = k.valloc()
    k.I("v_lshlrev_b32", v(v16), 4, v(lane))
    k.I("v_lshrrev_b32", v(t0), 3, v(lane))
    k.I("v_mul_u32_u24", v(t0), 896, v(t0))
    k.I("v_bfe_u32", v(t1), v(lane), 4, 1)
    k.I("v_lshlrev_b32", v(t1), 2, v(t1))
    k.I("v_and_b32", v(t2), 7, v(lane))
    k.I("v_xor_b32", v(t1), v(t1), v(t2))
    k.I("v_lshl_add_u32", v(vWo), v(t1), 4, v(t0))
    sUb = k.salloc(); sWb = k.salloc(); smU = k.salloc(); smW = k.salloc()
    k.I("s_lshr_b32", s(st0), s(sw3), 1)
    k.I("s_lshl_b32", s(st1), s(srt), 1)
    k.I("s_add_u32", s(st1), s(st1), s(st0))
    k.I("s_mul_i32", s(sUb), s(st1), 56 * 1024)
    k.I("s_and_b32", s(st1), s(sw3), 1)
    k.I("s_mul_i32", s(smU), s(st1), U1_OFF - U0_OFF)
    k.I("s_add_u32", s(sUb), s(sUb), s(smU))
    k.I("s_add_u32", s(sUb), s(sUb), hex(U0_OFF))
    k.I("s_lshl_b32", s(smU), s(st1), 13)
    k.I("s_lshl_b32", s(st0), s(st0), 12)
    k.I("s_add_u32", s(smU), s(smU), s(st0))
    k.I("s_mul_i32", s(sWb), s(sw3), 16 * 896)
    k.I("s_lshl_b32", s(st1), s(snt), 7)
    k.I("s_add_u32", s(sWb), s(sWb), s(st1))
    k.I("s_lshl_b32", s(smW), s(sw3), 11)
    k.I("s_add_u32", s(smW), s(smW), 16384)
    srot = k.salloc(); scp = k.salloc(); sa1 = k.salloc(); sa2 = k.salloc()
    k.I("s_lshl_b32", s(st0), s(snt), 1)
    k.I("s_and_b32", s(st1), s(srt), 3)
    k.I("s_mul_i32", s(st1), s(st1), 3)
    k.I("s_add_u32", s(srot), s(st0), s(st1))
    k.I("s_cmp_ge_u32", s(srot), 14)
    k.I("s_cselect_b32", s(st0), 14, 0)
    k.I("s_sub_u32", s(srot), s(srot), s(st0))
    if not rot_on(6): k.I("s_mov_b32", s(srot), 0)
    def issue(c):
        sl = (c % NS) * SLOT
        rot_index(k, scp, srot, c, 14)
        k.I("s_lshl_b32", s(sa1), s(scp), 12)
        k.I("s_add_u32", s(sa1), s(sa1), s(sUb))
        k.I("s_mul_i32", s(sa2), s(scp), 64 * 896)
        k.I("s_add_u32", s(sa2), s(sa2), s(sWb))
        for i in range(4):
            k.I("s_add_u32", s(soff), s(sa1), hex(i * 1024))
            k.I("s_add_u32", "m0", s(smU), hex(sl + i * 1024))
            k.vm(("S", c), "buffer_load_dwordx4", v(v16), sr(sWS, 4), s(soff), mods="offen lds")
        for i in range(2):
            k.I("s_add_u32", s(soff), s(sa2), hex(8 * i * 896))
            k.I("s_add_u32", "m0", s(smW), hex(sl + i * 1024))
            k.vm(("S", c), "buffer_load_dwordx4", v(vWo), sr(sWo, 4), s(soff), mods="offen lds")
    NST = 14
    k.I("s_waitcnt", "lgkmcnt(0)")
    srd(k, sWS, pWS, WS_SIZE)
    srd(k, sWo, pWo, 896 * 896)
    for c in range(3): issue(c)
    for c in range(NST):
        k.wait_vm(("S", c))
        k.I("s_barrier")
        if c == 0:
            for cc in range(3, NS): issue(cc)
        elif c + NS - 2 < NST and c >= 2: issue(c + NS - 2)
    k.I("s_endpgm")
    k.L(comp)
    if os.environ.get("PRIO_C"): k.I("s_setprio", int(os.environ["PRIO_C"]))
    k.vnext = vsave; k.vmq = []; k.lgq = []
    l31 = k.valloc(); hh = k.valloc()
    k.I("v_and_b32", v(l31), 31, v(lane))
    k.I("v_lshrrev_b32", v(hh), 5, v(lane))
    srh = k.salloc(); snh = k.salloc(); sst = k.salloc(); sntile = k.salloc()
    k.I("s_and_b32", s(srh), s(swave), 1)
    k.I("s_lshr_b32", s(snh), s(swave), 1)
    k.I("s_lshl_b32", s(sst), s(srt), 1)
    k.I("s_add_u32", s(sst), s(sst), s(srh))
    k.I("s_lshl_b32", s(sntile), s(snt), 1)
    k.I("s_add_u32", s(sntile), s(sntile), s(snh))
    if os.environ.get("PF3", "0") == "1":
        vT0 = k.valloc(); vd0 = k.valloc(2)
        k.I("s_lshl_b32", s(st0), s(sidx), 8)
        k.I("v_add_u32", v(vT0), s(st0), "v0")
        k.I("v_mov_b32", v(t0), hex(U1_OFF - U0_OFF - 3584 * 128))
        k.I("v_cmp_le_u32", "vcc", 3584, v(vT0))
        k.I("v_cndmask_b32", v(t0), 0, v(t0), "vcc")
        k.I("v_lshl_add_u32", v(t0), v(vT0), 7, v(t0))
        k.I("s_mul_i32", s(st1), s(sj), 8 * 56 * 1024)
        k.I("s_add_u32", s(st1), s(st1), hex(U0_OFF))
        k.vm("pf", "buffer_load_dword", v(vd0), v(t0), sr(sWS, 4), s(st1), mods="offen")
    v16 = k.valloc()
    k.I("v_lshlrev_b32", v(v16), 4, v(lane))
    hr = k.valloc(8, 4)
    k.I("s_mul_i32", s(soff), s(sst), 28 * 1024)
    k.I("s_lshl_b32", s(st0), s(sntile), 11)
    k.I("s_add_u32", s(soff), s(soff), s(st0))
    k.I("s_add_u32", s(soff), s(soff), hex(H_OFF))
    k.I("s_waitcnt", "lgkmcnt(0)")
    srd(k, sWS, pWS, WS_SIZE)
    srd(k, sOut, pOut, 2048 * 896)
    k.vm("h", "buffer_load_dwordx4", vr(hr, 4), v(v16), sr(sWS, 4), s(soff), mods="offen")
    k.vm("h", "buffer_load_dwordx4", vr(hr + 4, 4), v(v16), sr(sWS, 4), s(soff), mods="offen offset:1024")
    stp.stamp(0)
    aU = k.valloc(); vW = k.valloc()
    k.I("s_lshl_b32", s(st0), s(srh), 12)
    k.I("v_add_u32", v(aU), s(st0), v(v16))
    k.I("v_bfe_u32", v(t0), v(lane), 2, 2)
    k.I("v_lshl_add_u32", v(t0), v(hh), 2, v(t0))
    k.I("v_lshlrev_b32", v(vW), 7, v(t0))
    k.I("v_add_u32", v(vW), 16384, v(vW))
    k.I("v_bfe_u32", v(t0), v(lane), 4, 1)
    k.I("v_lshlrev_b32", v(t0), 1, v(t0))
    k.I("v_bfe_u32", v(t1), v(lane), 1, 1)
    k.I("v_add_u32", v(t0), v(t0), v(t1))
    k.I("s_lshl_b32", s(st0), s(snh), 2)
    k.I("v_add_u32", v(t0), s(st0), v(t0))
    k.I("v_bfe_u32", v(t1), v(lane), 3, 1)
    k.I("v_lshlrev_b32", v(t1), 2, v(t1))
    k.I("v_xor_b32", v(t0), v(t0), v(t1))
    k.I("v_lshl_add_u32", v(vW), v(t0), 4, v(vW))
    k.I("v_and_b32", v(t0), 1, v(lane))
    k.I("v_lshl_add_u32", v(vW), v(t0), 3, v(vW))
    aU2 = k.valloc(); vW2 = k.valloc()
    k.I("v_add_u32", v(aU2), 3 * SLOT, v(aU))
    k.I("v_add_u32", v(vW2), 3 * SLOT, v(vW))
    acc = k.valloc(16, 4)
    NB = 3
    uf = [[k.valloc(4) for _ in range(2)] for _ in range(NB)]; wf = [k.valloc(4) for _ in range(NB)]
    def rl(ks):
        c, j = ks // 4, ks % 4
        b = ks % NB
        sl = (c % NS)
        hi = sl >= 3
        so = (sl - (3 if hi else 0)) * SLOT
        out = []
        for ar_ in range(2):
            out.append(lambda ar_=ar_: k.lg(("f", ks), "ds_read_b128", vr(uf[b][ar_], 4), v(aU2 if hi else aU), mods=f"offset:{so + ar_ * 8192 + j * 1024}"))
        for beta in range(2):
            o = so + (16 * j + 8 * beta) * 128
            out.append(lambda o=o, beta=beta: k.lg(("f", ks), "ds_read_b64_tr_b16", vr(wf[b] + 2 * beta, 2), v(vW2 if hi else vW), mods=f"offset:{o}"))
        return out
    k.I("s_barrier")
    stp.stamp(1)
    for f in rl(0) + rl(1): f()
    NKS = NST * 4
    for ks in range(NKS):
        c, j = ks // 4, ks % 4
        b = ks % NB
        k.wait_lg(("f", ks))
        mf = [lambda ar_=ar_: k.I("v_mfma_f32_32x32x16_bf16", vr(acc, 16), vr(wf[b], 4), vr(uf[b][ar_], 4), 0 if (ks == 0 and ar_ == 0) else vr(acc, 16)) for ar_ in range(2)]
        fl = rl(ks + 2) if ks + 2 < NKS else []
        if j == 2 and ks + 2 < NKS: k.I("s_barrier")
        interleave(k, mf, fl)
    stp.stamp(2)
    k.wait_vm("h")
    tp = [k.valloc(2) for _ in range(4)]
    for j in range(8):
        T = tp[j % 4]
        k.I("v_lshlrev_b32", v(T), 16, v(hr + j))
        k.I("v_and_b32", v(T + 1), "0xffff0000", v(hr + j))
        k.I("v_pk_add_f32", vr(acc + 2 * j, 2), vr(acc + 2 * j, 2), vr(T, 2))
    P = k.valloc(8, 4)
    for j in range(8): k.I("v_cvt_pk_bf16_f32", v(P + j), v(acc + 2 * j), v(acc + 2 * j + 1))
    for kp in range(2):
        k.I("v_permlane32_swap_b32", v(P + 4 * kp), v(P + 4 * kp + 2))
        k.I("v_permlane32_swap_b32", v(P + 4 * kp + 1), v(P + 4 * kp + 3))
    vo = k.valloc()
    k.I("v_mul_u32_u24", v(vo), 896, v(l31))
    k.I("v_lshl_add_u32", v(vo), v(hh), 4, v(vo))
    k.I("s_mul_i32", s(soff), s(sst), 32 * 896)
    k.I("s_lshl_b32", s(st0), s(sntile), 6)
    k.I("s_add_u32", s(soff), s(soff), s(st0))
    for kp in range(2):
        k.I("buffer_store_dwordx4", vr(P + 4 * kp, 4), v(vo), sr(sOut, 4), s(soff), mods=f"offen offset:{32 * kp}")
    stp.stamp(3)
    if os.environ.get("SPIN"):
        ka, ja, kb, jb = [int(x) for x in os.environ["SPIN"].split(",")]
        sa_ = k.salloc(2); sb_ = k.salloc(2); sn_ = k.salloc(2); sq_ = k.salloc(2)
        lab = k.newlabel("spin"); out_ = k.newlabel("spun")
        k.I("s_or_b32", s(st0), "s2", s(swave))
        k.I("s_cmp_lg_u32", s(st0), 0)
        k.I("s_cbranch_scc1", out_)
        k.I("s_mov_b32", s(st0), hex(STAMP_OFF + ka * 256 * 64 + ja * 8))
        k.I("s_load_dwordx2", sr(sa_, 2), sr(pWS, 2), s(st0))
        k.I("s_mov_b32", s(st1), hex(STAMP_OFF + max(kb, 0) * 256 * 64 + jb * 8))
        if kb >= 0: k.I("s_load_dwordx2", sr(sb_, 2), sr(pWS, 2), s(st1))
        else: k.I("s_memrealtime", sr(sb_, 2))
        k.I("s_memrealtime", sr(sn_, 2))
        k.I("s_waitcnt", "lgkmcnt(0)")
        k.I("s_sub_u32", s(sa_), s(sb_), s(sa_))
        k.I("s_min_u32", s(sa_), s(sa_), 20000)
        k.I("s_add_u32", s(sn_), s(sn_), s(sa_))
        k.L(lab)
        k.I("s_memrealtime", sr(sq_, 2))
        k.I("s_waitcnt", "lgkmcnt(0)")
        k.I("s_sub_u32", s(sq_), s(sq_), s(sn_))
        k.I("s_cmp_lt_i32", s(sq_), 0)
        k.I("s_cbranch_scc1", lab)
        k.L(out_)
    k.L(R["done"])
    k.I("s_endpgm")
    k.lds = lds; k.threads = 512; k.grid = 224
    return k

def rest(Stamper):
    if os.environ.get("MERGE56", "0") == "1":
        return [gen_k2(Stamper), gen_k3(Stamper), gen_k4(Stamper), gen_k56(Stamper)]
    return [gen_k2(Stamper), gen_k3(Stamper), {'b': gen_k4b, 'c': gen_k4c, '0': gen_k4}[os.environ.get('K4V', 'b')](Stamper), gen_k5(Stamper), gen_k6(Stamper)]
```

```python
import os, struct
from asmlib import *
from layout import *
import kernels2
from kernels2 import srd, f32, WS_SIZE

def gen_k1c(Stamper):
    k = Kernel("k1_qkv_kernel")
    k.snext = 4; k.vnext = 1
    WREG = 0; WCH = 12288; XRING = 7 * WCH; XSL = 4096; NXS = 4
    TBL = XRING + 4 * NXS * XSL
    CWT = TBL; RT = TBL + 512; NMT = TBL + 1024; SQT = TBL + 1536
    ONES = TBL + 2048
    lds = ONES + 1024
    done = k.newlabel("done")
    k.I("s_cmp_ge_u32", "s2", 256)
    k.I("s_cbranch_scc1", done)
    pX = k.salloc(4); pWS = k.salloc(2)
    k.I("s_load_dwordx4", sr(pX, 4), "s[0:1]", 0)
    k.I("s_load_dwordx2", sr(pWS, 2), "s[0:1]", 80)
    sX = k.salloc(4); sW = k.salloc(4); sWS = k.salloc(4)
    swave = k.salloc(); srb = k.salloc(); sct = k.salloc(); st0 = k.salloc(); st1 = k.salloc(); soff = k.salloc()
    lane = k.valloc(); l31 = k.valloc(); hh = k.valloc(); t0 = k.valloc(); t1 = k.valloc(); t2 = k.valloc()
    k.I("v_lshrrev_b32", v(t0), 6, "v0")
    k.I("v_and_b32", v(lane), 63, "v0")
    k.I("v_readfirstlane_b32", s(swave), v(t0))
    kernels2.map_rb_hd(k, srb, sct, st0, st1)
    stp = Stamper(k, 0, sWS, swave)
    sw3 = k.salloc()
    k.I("s_and_b32", s(sw3), s(swave), 3)
    l15 = k.valloc()
    k.I("v_and_b32", v(l15), 15, v(lane))
    comp = k.newlabel("compute")
    k.I("s_cmp_lt_u32", s(swave), 4)
    k.I("s_cbranch_scc1", comp)
    vsave = k.vnext; ssave = k.snext
    if os.environ.get("PRIO_L"): k.I("s_setprio", int(os.environ["PRIO_L"]))
    vXo = k.valloc(4)
    k.I("v_lshrrev_b32", v(t0), 3, v(lane))
    k.I("v_mul_u32_u24", v(t0), 896, v(t0))
    k.I("v_lshrrev_b32", v(t1), 4, v(lane))
    k.I("v_and_b32", v(t2), 7, v(lane))
    k.I("v_xor_b32", v(t1), v(t1), v(t2))
    k.I("v_lshl_add_u32", v(vXo), v(t1), 4, v(t0))
    k.I("v_xor_b32", v(t1), 4, v(t1))
    k.I("v_lshl_add_u32", v(vXo + 1), v(t1), 4, v(t0))
    k.I("v_add_u32", v(vXo + 1), 8 * 896, v(vXo + 1))
    k.I("v_add_u32", v(vXo + 2), 16 * 896, v(vXo))
    k.I("v_add_u32", v(vXo + 3), 16 * 896, v(vXo + 1))
    vWo = k.valloc(3); oob = k.valloc()
    k.I("v_mov_b32", v(oob), "0x7fffff00")
    for b in range(3):
        k.I("v_add_u32", v(t0), 64 * b, v(lane))
        k.I("v_mul_u32_u24", v(t1), 171, v(t0))
        k.I("v_lshrrev_b32", v(t1), 11, v(t1))
        k.I("v_mul_u32_u24", v(t2), 12, v(t1))
        k.I("v_sub_u32", v(t0), v(t0), v(t2))
        k.I("v_mul_u32_u24", v(t1), 2688, v(t1))
        k.I("v_lshl_add_u32", v(t1), v(t0), 4, v(t1))
        k.I("v_cmp_gt_u32", "vcc", 11, v(t0))
        k.I("v_cndmask_b32", v(vWo + b), v(oob), v(t1), "vcc")
    sWb = k.salloc(); sm0 = k.salloc(); sXb = k.salloc(); sm0x = k.salloc()
    k.I("s_mul_i32", s(sWb), s(sct), 168)
    k.I("s_mul_i32", s(st0), s(sw3), 16 * 2688)
    k.I("s_add_u32", s(sWb), s(sWb), s(st0))
    k.I("s_mul_i32", s(sm0), s(sw3), 3 * 1024)
    k.I("s_lshl_b32", s(st0), s(srb), 7)
    k.I("s_lshl_b32", s(st1), s(sw3), 5)
    k.I("s_add_u32", s(st0), s(st0), s(st1))
    k.I("s_mul_i32", s(sXb), s(st0), 896)
    k.I("s_mul_i32", s(sm0x), s(sw3), NXS * XSL)
    k.I("s_add_u32", s(sm0x), s(sm0x), XRING)
    srot = k.salloc(); scp = k.salloc(); sa1 = k.salloc()
    k.I("s_lshl_b32", s(st0), s(srb), 1)
    if os.environ.get("ROTK1") == "rb": pass
    elif os.environ.get("ROTK1") == "ct": k.I("s_mov_b32", s(st0), s(sct))
    else: k.I("s_add_u32", s(st0), s(st0), s(sct))
    k.I("s_mul_i32", s(st1), s(st0), 37)
    k.I("s_lshr_b32", s(st1), s(st1), 8)
    k.I("s_mul_i32", s(st1), s(st1), 7)
    k.I("s_sub_u32", s(srot), s(st0), s(st1))
    if not kernels2.rot_on(1): k.I("s_mov_b32", s(srot), 0)
    def wdma(c, b):
        if b == 0:
            kernels2.rot_index(k, scp, srot, c, 7)
            k.I("s_mul_i32", s(sa1), s(scp), 64 * 2688)
            k.I("s_add_u32", s(sa1), s(sa1), s(sWb))
        k.I("s_add_u32", "m0", s(sm0), hex(WREG + c * WCH + b * 1024))
        k.vm(("W", c), "buffer_load_dwordx4", v(vWo + b), sr(sW, 4), s(sa1), mods="offen lds")
    def xdma(c, j):
        if j == 0:
            kernels2.rot_index(k, scp, srot, c, 7)
            k.I("s_lshl_b32", s(soff), s(scp), 7)
            k.I("s_add_u32", s(soff), s(soff), s(sXb))
        k.I("s_add_u32", "m0", s(sm0x), hex((c % NXS) * XSL + j * 1024))
        k.vm(("X", c), "buffer_load_dwordx4", v(vXo + j), sr(sX, 4), s(soff), mods="offen lds")
    k.I("s_waitcnt", "lgkmcnt(0)")
    srd(k, sW, pX + 2, 448 * 2688)
    srd(k, sX, pX, 2048 * 896)
    for c in range(2):
        for b in range(3): wdma(c, b)
        for j in range(4): xdma(c, j)
    for b in range(3): wdma(2, b)
    for c in range(7):
        k.wait_vm([("W", c), ("X", c)])
        k.I("s_barrier")
        if c + 2 <= 6:
            for j in range(4): xdma(c + 2, j)
        if c + 3 <= 6:
            for b in range(3): wdma(c + 3, b)
    k.I("s_barrier")
    k.I("s_endpgm")
    k.L(comp)
    if os.environ.get("PRIO_C"): k.I("s_setprio", int(os.environ["PRIO_C"]))
    k.vnext = vsave; k.vmq = []; k.lgq = []
    sidx1 = k.salloc()
    k.I("s_lshr_b32", s(sidx1), "s2", 3)
    kernels2.code_prefetch(k, "k2_attn_kernel", sidx1, st0)
    sm0x = k.salloc()
    k.I("s_mul_i32", s(sm0x), s(swave), NXS * XSL)
    k.I("s_add_u32", s(sm0x), s(sm0x), XRING)
    aX = k.valloc(4); vW = k.valloc(); aG = k.valloc(4); vWj = k.valloc(); gg = k.valloc()
    k.I("v_and_b32", v(l31), 31, "v0")
    k.I("v_bfe_u32", v(hh), "v0", 5, 1)
    k.I("v_lshrrev_b32", v(gg), 4, v(lane))
    k.I("v_bfe_u32", v(t0), v(l31), 1, 3)
    for j in range(4):
        k.I("v_add_u32", v(t1), 2 * j, v(hh))
        k.I("v_xor_b32", v(t1), v(t1), v(t0))
        k.I("v_lshlrev_b32", v(t1), 4, v(t1))
        k.I("v_lshl_add_u32", v(aX + j), v(l31), 7, v(t1))
        k.I("v_add_u32", v(aX + j), s(sm0x), v(aX + j))
    for rg in range(2):
        k.I("v_add_u32", v(t0), 16 * rg, v(l15))
        k.I("v_bfe_u32", v(t1), v(t0), 1, 3)
        for kk in range(2):
            k.I("v_add_u32", v(t2), 4 * kk, v(gg))
            k.I("v_xor_b32", v(t2), v(t2), v(t1))
            k.I("v_lshlrev_b32", v(t2), 4, v(t2))
            k.I("v_lshl_add_u32", v(aG + 2 * rg + kk), v(t0), 7, v(t2))
            k.I("v_add_u32", v(aG + 2 * rg + kk), s(sm0x), v(aG + 2 * rg + kk))
    k.I("v_bfe_u32", v(t0), "v0", 2, 2)
    k.I("v_lshl_add_u32", v(t1), v(hh), 3, v(t0))
    k.I("v_mul_u32_u24", v(t1), 192, v(t1))
    k.I("v_bfe_u32", v(t2), "v0", 4, 1)
    k.I("v_lshl_add_u32", v(t1), v(t2), 5, v(t1))
    k.I("v_and_b32", v(t2), 3, "v0")
    k.I("v_lshl_add_u32", v(vW), v(t2), 3, v(t1))
    k.I("v_lshl_add_u32", v(t0), v(gg), 3, v(t0))
    k.I("v_mul_u32_u24", v(t0), 192, v(t0))
    k.I("v_lshl_add_u32", v(vWj), v(t2), 3, v(t0))
    k.I("s_lshr_b32", s(st0), s(swave), 1)
    k.I("s_mul_i32", s(st0), s(st0), 32 * 192)
    k.I("s_and_b32", s(st1), s(swave), 1)
    k.I("s_mul_i32", s(st1), s(st1), 96)
    k.I("s_add_u32", s(st0), s(st0), s(st1))
    k.I("v_add_u32", v(vWj), s(st0), v(vWj))
    vW2 = k.valloc(); vWj2 = k.valloc()
    k.I("v_add_u32", v(vW2), 4 * WCH, v(vW))
    k.I("v_add_u32", v(vWj2), 4 * WCH, v(vWj))
    ones = k.valloc(4); vWq = k.valloc(); vInc = k.valloc()
    k.I("v_and_b32", v(t0), 19, v(lane))
    k.I("v_cmp_eq_u32", "vcc", 19, v(t0))
    k.I("v_mov_b32", v(t1), ONES)
    k.I("v_cndmask_b32", v(vWq), v(vW), v(t1), "vcc")
    k.I("v_mov_b32", v(t1), 16 * 192)
    k.I("v_cndmask_b32", v(vInc), v(t1), 0, "vcc")
    k.I("v_lshlrev_b32", v(t0), 4, v(lane))
    k.I("v_add_u32", v(t0), ONES, v(t0))
    for i in range(4): k.I("v_mov_b32", v(ones + i), "0x3f803f80")
    k.lg("z", "ds_write_b128", v(t0), vr(ones, 4))
    zz = k.valloc(2); vtb = k.valloc()
    k.I("v_mov_b32", v(zz), 0); k.I("v_mov_b32", v(zz + 1), 0)
    k.I("v_lshlrev_b32", v(vtb), 3, v(lane))
    k.I("v_add_u32", v(vtb), CWT, v(vtb))
    k.lg("z", "ds_write_b64", v(vtb), vr(zz, 2))
    acc = [k.valloc(16, 4) for _ in range(3)]
    NB = 3
    cacc = [k.valloc(4) for _ in range(3)]
    gacc = [k.valloc(4) for _ in range(2)]
    vtl_ = k.valloc(); vcwa = k.valloc(); vsqa = k.valloc(); vrow = k.valloc(); vh4 = k.valloc(); vh4w = k.valloc(); vl31 = k.valloc()
    k.I("v_lshlrev_b32", v(vtl_), 2, v(l15))
    k.I("v_add_u32", v(vtl_), TBL, v(vtl_))
    k.I("s_and_b32", s(st1), s(swave), 1)
    k.I("s_mul_i32", s(st1), s(st1), 192)
    k.I("v_add_u32", v(vcwa), s(st1), v(vtl_))
    k.I("s_lshl_b32", s(st0), s(swave), 7)
    k.I("v_add_u32", v(vsqa), s(st0), v(vtl_))
    k.I("v_add_u32", v(vsqa), SQT - TBL, v(vsqa))
    k.I("v_lshlrev_b32", v(vl31), 2, v(l31))
    k.I("v_add_u32", v(vl31), TBL, v(vl31))
    k.I("v_add_u32", v(vrow), s(st0), v(vl31))
    k.I("v_lshlrev_b32", v(vh4), 4, v(hh))
    k.I("v_add_u32", v(vh4), TBL, v(vh4))
    k.I("v_add_u32", v(vh4w), s(st0), v(vh4))
    vq = k.valloc(); vv_ = k.valloc()
    k.I("v_lshrrev_b32", v(t0), 4, v(l31))
    k.I("v_lshlrev_b32", v(vq), 10, v(t0))
    k.I("v_lshl_add_u32", v(vq), v(l15), 4, v(vq))
    k.I("v_lshl_add_u32", v(vq), v(hh), 9, v(vq))
    k.I("v_lshlrev_b32", v(vv_), 9, v(t0))
    k.I("v_lshl_add_u32", v(vv_), v(l15), 3, v(vv_))
    k.I("v_lshl_add_u32", v(vv_), v(hh), 7, v(vv_))
    sb = k.salloc()
    k.I("s_mul_i32", s(sb), s(sct), 3 * 131072)
    k.I("s_lshl_b32", s(st0), s(srb), 13)
    k.I("s_add_u32", s(sb), s(sb), s(st0))
    k.I("s_lshl_b32", s(st0), s(swave), 11)
    k.I("s_add_u32", s(sb), s(sb), s(st0))
    m1 = k.salloc(2); m2 = k.salloc(2); m3 = k.salloc(2)
    k.I("v_and_b32", v(t0), 3, v(lane))
    k.I("v_cmp_eq_u32", sr(m1, 2), 1, v(t0))
    k.I("v_cmp_eq_u32", sr(m2, 2), 2, v(t0))
    k.I("v_cmp_eq_u32", sr(m3, 2), 3, v(t0))
    k.I("s_waitcnt", "lgkmcnt(0)")
    k.lgq = []
    srd(k, sWS, pWS, WS_SIZE)
    stp.stamp(0)
    vmark = k.vnext
    labB = k.newlabel("varB"); labC = k.newlabel("varC")
    k.I("s_cmp_ge_u32", s(sct), 11)
    k.I("s_cbranch_scc1", labC)
    k.I("s_cmp_eq_u32", s(sct), 10)
    k.I("s_cbranch_scc1", labB)

    def variant(types):
        k.vnext = vmark; k.lgq = []; k.vmq = []
        xf = [k.valloc(4) for _ in range(NB)]
        wf = [[k.valloc(4) for _ in range(3)] for _ in range(NB)]
        xs = [k.valloc(4) for _ in range(4)]
        wf2 = [k.valloc(4) for _ in range(3)]
        def read_list(ks):
            c, j = ks // 4, ks % 4
            b = ks % NB
            out = [lambda: k.lg(("f", ks), "ds_read_b128", vr(xf[b], 4), v(aX + j), mods=f"offset:{(c % NXS) * XSL}")]
            for beta in range(2):
                out.append(lambda beta=beta: k.lg(("f", ks), "ds_read_b64_tr_b16", vr(wf[b][0] + 2 * beta, 2), v(vWq), mods=f"offset:{beta * 4 * 192}"))
            out.append(lambda: k.I("v_add_u32", v(vWq), v(vInc), v(vWq)))
            for sg in range(1, 3):
                for beta in range(2):
                    o = (c % 4) * WCH + (16 * j + 4 * beta) * 192 + 56 * sg
                    base = vW if c < 4 else vW2
                    out.append(lambda o=o, sg=sg, beta=beta, base=base: k.lg(("f", ks), "ds_read_b64_tr_b16", vr(wf[b][sg] + 2 * beta, 2), v(base), mods=f"offset:{o}"))
            return out
        def aux_reads(c):
            out = []
            for j in range(4):
                out.append(lambda j=j: k.lg(("g", c), "ds_read_b128", vr(xs[j], 4), v(aG + j), mods=f"offset:{(c % NXS) * XSL}"))
            for nt in range(3):
                for beta in range(2):
                    o = (c % 4) * WCH + (4 * beta) * 192 + 32 * nt
                    base = vWj if c < 4 else vWj2
                    out.append(lambda o=o, nt=nt, beta=beta, base=base: k.lg(("cw", c), "ds_read_b64_tr_b16", vr(wf2[nt] + 2 * beta, 2), v(base), mods=f"offset:{o}"))
            return out
        k.I("s_barrier")
        stp.stamp(1)
        for f in read_list(0): f()
        for f in read_list(1): f()
        for ks in range(28):
            c, j = ks // 4, ks % 4
            b = ks % NB
            fill = read_list(ks + 2) if ks + 2 < 28 else []
            aux = []
            if j == 0: aux = aux_reads(c)[:4]
            if j == 1: aux = aux_reads(c)[4:]
            k.wait_lg(("f", ks))
            mf = []
            for sg in range(3):
                A, B = (wf[b][sg], xf[b]) if types[sg] == "k" else (xf[b], wf[b][sg])
                mf.append(lambda sg=sg, A=A, B=B: k.I("v_mfma_f32_32x32x16_bf16", vr(acc[sg], 16), vr(A, 4), vr(B, 4), 0 if ks == 0 else vr(acc[sg], 16)))
            fl = fill + aux
            if ks == 27:
                def fin1():
                    k.I("s_mov_b32", "exec_lo", "0xffff")
                    k.I("s_mov_b32", "exec_hi", 0)
                    for nt in range(3):
                        k.lg("fin", "ds_add_f32", v(vcwa), v(cacc[nt]), mods=f"offset:{64 * nt}")
                    k.I("s_mov_b64", "exec", -1)
                def fin2():
                    for rg in range(2):
                        g_ = gacc[rg]
                        k.I("v_cndmask_b32", v(g_), v(g_), v(g_ + 1), sr(m1, 2))
                        k.I("v_cndmask_b32", v(g_), v(g_), v(g_ + 2), sr(m2, 2))
                        k.I("v_cndmask_b32", v(g_), v(g_), v(g_ + 3), sr(m3, 2))
                    k.I("s_mov_b32", "exec_lo", "0x00f0000f")
                    k.I("s_mov_b32", "exec_hi", "0xf0000f00")
                    for rg in range(2):
                        k.lg("fin", "ds_write_b32", v(vsqa), v(gacc[rg]), mods=f"offset:{64 * rg}")
                    k.I("s_mov_b64", "exec", -1)
                fl = [fin1, fin2]
            n = len(fl)
            cuts = [0, (n + 2) // 3, (2 * n + 2) // 3, n]
            for i in range(3):
                mf[i]()
                for f in fl[cuts[i]:cuts[i + 1]]: f()
            if j == 1 + (0 if c == 6 else 1):
                k.wait_lg(("g", c))
                for jj in range(4):
                    k.I("v_mfma_f32_16x16x32_bf16", vr(gacc[jj >> 1], 4), vr(xs[jj], 4), vr(xs[jj], 4), 0 if (c == 0 and (jj & 1) == 0) else vr(gacc[jj >> 1], 4))
            if j == 2 + (0 if c == 6 else 1):
                k.wait_lg(("cw", c))
                for nt in range(3):
                    k.I("v_mfma_f32_16x16x32_bf16", vr(cacc[nt], 4), vr(ones, 4), vr(wf2[nt], 4), 0 if c == 0 else vr(cacc[nt], 4))
            if j == 1 and c < 6:
                k.I("s_barrier")
        stp.stamp(2)
        k.vnext = vmark
        sq = k.valloc(2); rl = k.valloc(2); nml = k.valloc(2)
        cwb = [k.valloc(16, 4) for _ in range(3)]
        rv = k.valloc(16, 4); nv = k.valloc(16, 4)
        k.lg("sq", "ds_read_b32", v(sq), v(vrow), mods=f"offset:{SQT - TBL}")
        if types[0] == "v":
            k.I("s_mov_b32", "exec_lo", hex(1 << 28))
            k.I("s_mov_b32", "exec_hi", hex(1 << 28))
            for q in range(4):
                k.lg("ms", "ds_write_b128", v(vh4w), vr(acc[0] + 4 * q, 4), mods=f"offset:{NMT - TBL + 32 * q}")
            k.I("s_mov_b64", "exec", -1)
            k.lg("msr", "ds_read_b32", v(nml + 1), v(vrow), mods=f"offset:{NMT - TBL}")
        k.wait_lg("fin")
        k.I("s_barrier")
        for sg in range(3):
            if types[sg] == "k":
                for q in range(4):
                    k.lg(("cw", sg), "ds_read_b128", vr(cwb[sg] + 4 * q, 4), v(vh4), mods=f"offset:{CWT - TBL + 112 * sg + 32 * q}")
            else:
                k.lg(("cw", sg), "ds_read_b32", v(cwb[sg]), v(vl31), mods=f"offset:{CWT - TBL + 112 * sg}")
        if types[0] == "k":
            k.I("v_mov_b32", v(nml), v(acc[0] + 12))
            k.I("v_mov_b32", v(nml + 1), v(acc[0] + 12))
            k.I("v_permlane32_swap_b32", v(nml), v(nml + 1))
        else:
            k.wait_lg("msr")
        k.I("v_mul_f32", v(nml), hex(f32(-1.0 / 448)), v(nml + 1))
        k.wait_lg("sq")
        k.I("v_mul_f32", v(sq), hex(f32(1.0 / 448)), v(sq))
        k.I("v_fma_f32", v(sq), f"-{v(nml)}", v(nml), v(sq))
        k.I("v_max_f32", v(sq), 0, v(sq))
        def rbf(r_):
            k.I("v_cvt_pk_bf16_f32", v(r_), v(r_), v(r_))
            k.I("v_lshlrev_b32", v(r_), 16, v(r_))
        rbf(nml); rbf(sq)
        k.I("v_add_f32", v(sq), hex(f32(1e-5)), v(sq))
        rbf(sq)
        k.I("v_sqrt_f32", v(sq), v(sq))
        rbf(sq)
        k.I("v_rcp_f32", v(rl), v(sq))
        if "v" in types:
            k.lg("w", "ds_write_b32", v(vrow), v(nml), mods=f"offset:{NMT - TBL}")
            k.lg("w", "ds_write_b32", v(vrow), v(rl), mods=f"offset:{RT - TBL}")
            for q in range(4):
                k.lg("rv", "ds_read_b128", vr(rv + 4 * q, 4), v(vh4w), mods=f"offset:{RT - TBL + 32 * q}")
                k.lg("rv", "ds_read_b128", vr(nv + 4 * q, 4), v(vh4w), mods=f"offset:{NMT - TBL + 32 * q}")
        mk = k.salloc(2); mv = k.salloc(2)
        k.I("v_cmp_eq_u32", sr(mk, 2), 0, v(hh))
        k.I("v_cmp_gt_u32", sr(mv, 2), 28, v(l31))
        padv = k.valloc()
        k.I("v_mov_b32", v(padv), "0x3f803f80")
        k.I("v_cmp_eq_u32", "vcc", 28, v(l31))
        k.I("v_cndmask_b32", v(padv), 0, v(padv), "vcc")
        pks = [k.valloc(8, 4) for _ in range(2)]
        for sg in range(3):
            A = acc[sg]; pk = pks[sg & 1]
            k.wait_lg(("cw", sg))
            if types[sg] == "k":
                for j in range(8):
                    k.I("v_pk_fma_f32", vr(A + 2 * j, 2), vr(cwb[sg] + 2 * j, 2), vr(nml, 2), vr(A + 2 * j, 2), mods="op_sel_hi:[1,0,1]")
                for j in range(8):
                    k.I("v_pk_mul_f32", vr(A + 2 * j, 2), vr(A + 2 * j, 2), vr(rl, 2), mods="op_sel_hi:[1,0]")
                for j in range(8):
                    k.I("v_cvt_pk_bf16_f32", v(pk + j), v(A + 2 * j), v(A + 2 * j + 1))
                k.I("v_cndmask_b32", v(pk + 6), 0, v(pk + 6), sr(mk, 2))
                k.I("v_cndmask_b32", v(pk + 7), 0, v(pk + 7), sr(mk, 2))
                k.I("s_add_u32", s(soff), s(sb), hex(sg * 131072))
                k.I("buffer_store_dwordx4", vr(pk, 4), v(vq), sr(sWS, 4), s(soff), mods="offen")
                k.I("buffer_store_dwordx4", vr(pk + 4, 4), v(vq), sr(sWS, 4), s(soff), mods="offen offset:256")
            else:
                k.wait_lg("rv")
                for j in range(8):
                    k.I("v_pk_fma_f32", vr(A + 2 * j, 2), vr(nv + 2 * j, 2), vr(cwb[sg], 2), vr(A + 2 * j, 2), mods="op_sel_hi:[1,0,1]")
                for j in range(8):
                    k.I("v_pk_mul_f32", vr(A + 2 * j, 2), vr(A + 2 * j, 2), vr(rv + 2 * j, 2))
                for j in range(8):
                    k.I("v_cvt_pk_bf16_f32", v(pk + j), v(A + 2 * j), v(A + 2 * j + 1))
                for j in range(8):
                    k.I("v_cndmask_b32", v(pk + j), v(padv), v(pk + j), sr(mv, 2))
                k.I("s_add_u32", s(soff), s(sb), hex(sg * 131072))
                for q in range(4):
                    k.I("buffer_store_dwordx2", vr(pk + 2 * q, 2), v(vv_), sr(sWS, 4), s(soff), mods=f"offen offset:{(q >> 1) * 1024 + (q & 1) * 256}")
        stp.stamp(3)
        k.I("s_endpgm")
    snext0 = k.snext
    variant("kkk")
    k.L(labB); k.snext = snext0
    variant("kkv")
    k.L(labC); k.snext = snext0
    variant("vvv")
    k.L(done)
    k.I("s_endpgm")
    k.lds = lds; k.threads = 512; k.grid = 256
    return k
```

```python
import os, struct, math
from asmlib import *
from layout import *
WS_SIZE = 0x10000000
K5X = os.environ.get('K5X', '0') == '1'
def f32(x): return struct.unpack("<I", struct.pack("<f", x))[0]

def srd(k, dst, base, size):
    k.I("s_mov_b32", s(dst), s(base))
    k.I("s_and_b32", s(dst + 1), s(base + 1), "0xffff")
    k.I("s_mov_b32", s(dst + 2), hex(size) if isinstance(size, int) else size)
    k.I("s_mov_b32", s(dst + 3), "0x20000")

def gen_k2(Stamper):
    k = Kernel("k2_attn_kernel")
    k.snext = 4; k.vnext = 1
    KREG = 0; VREG = 24576
    lds = 49152
    done = k.newlabel("done")
    k.I("s_cmp_ge_u32", "s2", 256)
    k.I("s_cbranch_scc1", done)
    pWS = k.salloc(2); pPo = k.salloc(2); pPi = k.salloc(2)
    k.I("s_load_dwordx2", sr(pWS, 2), "s[0:1]", 80)
    k.I("s_load_dwordx2", sr(pPo, 2), "s[0:1]", 16)
    k.I("s_load_dwordx2", sr(pPi, 2), "s[0:1]", 32)
    sWS = k.salloc(4); sPo = k.salloc(4); sPi = k.salloc(4)
    swave = k.salloc(); srb = k.salloc(); shd = k.salloc(); st0 = k.salloc(); st1 = k.salloc(); soff = k.salloc()
    lane = k.valloc(); t0 = k.valloc(); t1 = k.valloc(); l15 = k.valloc(); gg = k.valloc()
    k.I("v_lshrrev_b32", v(t0), 6, "v0")
    k.I("v_and_b32", v(lane), 63, "v0")
    k.I("v_readfirstlane_b32", s(swave), v(t0))
    map_rb_hd(k, srb, shd, st0, st1)
    stp = Stamper(k, 1, sWS, swave)
    v16 = k.valloc()
    k.I("v_lshlrev_b32", v(v16), 4, v(lane))
    sb = k.salloc(); sm = k.salloc(); s16q = k.salloc()
    k.I("s_lshl_b32", s(sb), s(shd), 17)
    k.I("s_lshl_b32", s(st0), s(srb), 13)
    k.I("s_add_u32", s(sb), s(sb), s(st0))
    k.I("s_mul_i32", s(sm), s(swave), 3072)
    k.I("s_lshl_b32", s(s16q), s(srb), 3)
    k.I("s_add_u32", s(s16q), s(s16q), s(swave))
    k.I("s_waitcnt", "lgkmcnt(0)")
    srd(k, sWS, pWS, WS_SIZE)
    srd(k, sPo, pPo, 448 * 896)
    srd(k, sPi, pPi, 448 * 3584)
    qf = k.valloc(4)
    k.I("s_lshl_b32", s(st0), s(swave), 10)
    k.I("s_add_u32", s(st0), s(st0), s(sb))
    k.I("s_add_u32", s(soff), s(st0), hex(Q_OFF))
    k.vm("q", "buffer_load_dwordx4", vr(qf, 4), v(v16), sr(sWS, 4), s(soff), mods="offen")
    k.I("s_add_u32", s(st1), s(sb), s(sm))
    for (reg, off) in ((KREG, K_OFF), (VREG, V_OFF)):
        for i in range(3):
            k.I("s_add_u32", s(soff), s(st1), hex(off - 16384 + i * 1024))
            k.I("s_add_u32", "m0", s(sm), hex(reg + i * 1024))
            k.vm("k" if reg == KREG else "v", "buffer_load_dwordx4", v(v16), sr(sWS, 4), s(soff), mods="offen lds")
    sidx2 = k.salloc()
    k.I("s_lshr_b32", s(sidx2), "s2", 3)
    code_prefetch(k, "k3_wo_kernel", sidx2, st0)
    stp.stamp(0)
    k.I("v_and_b32", v(l15), 15, v(lane))
    k.I("v_lshrrev_b32", v(gg), 4, v(lane))
    M = [k.salloc(2) for _ in range(4)]
    k.I("v_lshlrev_b32", v(t0), 2, v(gg))
    for i in range(4):
        k.I("v_add_u32", v(t1), i, v(t0))
        k.I("v_cmp_gt_u32", sr(M[i], 2), v(t1), v(l15))
    aK = k.valloc(); aV = k.valloc()
    k.I("s_lshl_b32", s(st0), s(swave), 10)
    k.I("v_add_u32", v(aK), s(st0), v(v16))
    k.I("v_lshlrev_b32", v(aV), 3, v(lane))
    k.I("s_add_u32", s(st0), s(st0), VREG)
    k.I("v_add_u32", v(aV), s(st0), v(aV))
    S = k.valloc(68, 4)
    kf = [k.valloc(4) for _ in range(6)]
    neg = k.valloc()
    k.I("v_mov_b32", v(neg), hex(f32(-1e30)))
    k.wait_vm(["q", "k"])
    k.I("s_barrier")
    stp.stamp(1)
    NKF = 6
    for j in range(min(NKF, 17)):
        k.lg(("k", j), "ds_read_b128", vr(kf[j % NKF], 4), v(aK), mods=f"offset:{j * 1024}")
    for j in range(17):
        k.wait_lg(("k", j))
        k.I("v_mfma_f32_16x16x32_bf16", vr(S + 4 * j, 4), vr(kf[j % NKF], 4), vr(qf, 4), 0)
        if j + NKF < 17:
            k.lg(("k", j + NKF), "ds_read_b128", vr(kf[j % NKF], 4), v(aK), mods=f"offset:{(j + NKF) * 1024}")
    if os.environ.get("PFK2", "1") == "1":
        vd2 = k.valloc(2)
        k.I("s_lshl_b32", s(st0), s(sidx2), 3)
        k.I("s_add_u32", s(st0), s(st0), s(swave))
        k.I("s_mul_i32", s(st1), s(st0), 13 * 128)
        k.I("v_lshlrev_b32", v(t0), 7, v(lane))
        k.I("v_mov_b32", v(t1), "0x7fffff00")
        k.I("v_cmp_gt_u32", "vcc", 13, v(lane))
        k.I("v_cndmask_b32", v(t0), v(t1), v(t0), "vcc")
        k.vm("pf", "buffer_load_dword", v(vd2), v(t0), sr(sPo, 4), s(st1), mods="offen")
        k.I("s_mul_i32", s(st1), s(st0), 25)
        k.I("v_add_u32", v(t0), s(st1), v(lane))
        k.I("v_mul_u32_u24", v(t1), 37450, v(t0))
        k.I("v_lshrrev_b32", v(t1), 19, v(t1))
        k.I("v_mul_u32_u24", v(vd2 + 1), 14, v(t1))
        k.I("v_sub_u32", v(t0), v(t0), v(vd2 + 1))
        k.I("v_mul_u32_u24", v(t1), 3584, v(t1))
        k.I("v_lshl_add_u32", v(t1), v(t0), 7, v(t1))
        k.I("v_add_u32", v(vd2 + 1), 1792 - 896, v(t1))
        k.I("v_cmp_le_u32", "vcc", 7, v(t0))
        k.I("v_cndmask_b32", v(t1), v(t1), v(vd2 + 1), "vcc")
        k.I("v_mov_b32", v(t0), "0x7fffff00")
        k.I("v_cmp_gt_u32", "vcc", 25, v(lane))
        k.I("v_cndmask_b32", v(t1), v(t0), v(t1), "vcc")
        k.I("s_and_b32", s(st1), "s2", 1)
        k.I("s_mul_i32", s(st1), s(st1), 896)
        k.vm("pf", "buffer_load_dword", v(vd2 + 1), v(t1), sr(sPi, 4), s(st1), mods="offen")
    vf = k.valloc(9 * 2 * 4, 4)
    def vread(kp):
        for dt in range(2):
            for beta in range(2):
                tile = min(2 * kp + beta, 16)
                k.lg(("v", kp), "ds_read_b64", vr(vf + (kp * 2 + dt) * 4 + 2 * beta, 2), v(aV), mods=f"offset:{tile * 1024 + dt * 512}")
    for i in range(4):
        k.I("v_cndmask_b32", v(S + i), v(neg), v(S + i), sr(M[i], 2))
        k.I("v_cndmask_b32", v(S + 64 + i), v(S + 64 + i), v(neg), sr(M[i], 2))
    nofix = k.newlabel("nofix")
    k.I("s_cmp_ge_u32", s(s16q), 16)
    k.I("s_cbranch_scc1", nofix)
    k.I("s_sub_u32", s(st0), 16, s(s16q))
    for j in range(16):
        lab = k.newlabel("sk")
        k.I("s_cmp_le_u32", s(st0), j)
        k.I("s_cbranch_scc1", lab)
        for i in range(4): k.I("v_mov_b32", v(S + 4 * j + i), v(neg))
        k.L(lab)
    k.L(nofix)
    mx = k.valloc(4)
    for c in range(4):
        k.I("v_max3_f32", v(mx + c), v(S + c * 17), v(S + c * 17 + 1), v(S + c * 17 + 2))
    for r in range(7):
        for c in range(4):
            b = c * 17 + 3 + 2 * r
            k.I("v_max3_f32", v(mx + c), v(mx + c), v(S + b), v(S + b + 1))
    k.I("v_max3_f32", v(mx), v(mx), v(mx + 1), v(mx + 2))
    k.I("v_max_f32", v(mx), v(mx), v(mx + 3))
    for sw in ("v_permlane16_swap_b32", "v_permlane32_swap_b32"):
        k.I("v_mov_b32", v(mx + 1), v(mx))
        k.I(sw, v(mx), v(mx + 1))
        k.I("v_max_f32", v(mx), v(mx), v(mx + 1))
    cs = 28 ** -0.5 * math.log2(math.e)
    sc = k.salloc()
    k.I("s_mov_b32", s(sc), hex(f32(cs)))
    k.I("v_mul_f32", v(mx), hex(f32(-cs)), v(mx))
    k.wait_vm("v")
    k.I("s_barrier")
    for kp in range(4): vread(kp)
    P = k.valloc(36, 4)
    k.I("v_mov_b32", v(P + 34), 0); k.I("v_mov_b32", v(P + 35), 0)
    O = [k.valloc(4), k.valloc(4)]
    def softmax_tile(j):
        for i in range(4): k.I("v_fma_f32", v(S + 4 * j + i), v(S + 4 * j + i), s(sc), v(mx))
        for i in range(4): k.I("v_exp_f32", v(S + 4 * j + i), v(S + 4 * j + i))
    def pack_tile(j):
        k.I("v_cvt_pk_bf16_f32", v(P + 2 * j), v(S + 4 * j), v(S + 4 * j + 1))
        k.I("v_cvt_pk_bf16_f32", v(P + 2 * j + 1), v(S + 4 * j + 2), v(S + 4 * j + 3))
    for kp in range(9):
        tiles = [2 * kp, 2 * kp + 1] if kp < 8 else [16]
        for j in tiles: softmax_tile(j)
        for j in tiles: pack_tile(j)
        if kp == 1:
            for q in range(4, 7): vread(q)
        if kp == 4:
            for q in range(7, 9): vread(q)
        if kp >= 1:
            q = kp - 1
            k.wait_lg(("v", q))
            for dt in range(2):
                k.I("v_mfma_f32_16x16x32_bf16", vr(O[dt], 4), vr(vf + (q * 2 + dt) * 4, 4), vr(P + 4 * q, 4), 0 if q == 0 else vr(O[dt], 4))
    k.wait_lg(("v", 8))
    for dt in range(2):
        k.I("v_mfma_f32_16x16x32_bf16", vr(O[dt], 4), vr(vf + (8 * 2 + dt) * 4, 4), vr(P + 32, 4), vr(O[dt], 4))
    la = k.valloc(); lb = k.valloc()
    k.I("v_mov_b32", v(la), v(O[1])); k.I("v_mov_b32", v(lb), v(O[1]))
    k.I("v_permlane32_swap_b32", v(la), v(lb))
    k.I("v_mov_b32", v(la), v(lb))
    k.I("v_permlane16_swap_b32", v(la), v(lb))
    k.I("v_rcp_f32", v(lb), v(lb))
    for dt in range(2):
        for i in range(4): k.I("v_mul_f32", v(O[dt] + i), v(O[dt] + i), v(lb))
    pk = k.valloc(4)
    for dt in range(2):
        k.I("v_cvt_pk_bf16_f32", v(pk + 2 * dt), v(O[dt]), v(O[dt] + 1))
        k.I("v_cvt_pk_bf16_f32", v(pk + 2 * dt + 1), v(O[dt] + 2), v(O[dt] + 3))
    k.I("v_cmp_gt_u32", "vcc", 3, v(gg))
    k.I("v_cndmask_b32", v(pk + 2), 0, v(pk + 2), "vcc")
    k.I("v_cndmask_b32", v(pk + 3), 0, v(pk + 3), "vcc")
    vo = k.valloc()
    k.I("s_and_b32", s(st0), s(swave), 1)
    k.I("s_lshl_b32", s(st0), s(st0), 8)
    k.I("v_lshlrev_b32", v(vo), 4, v(l15))
    k.I("v_add_u32", v(vo), s(st0), v(vo))
    k.I("v_lshrrev_b32", v(t0), 1, v(gg))
    k.I("v_lshl_add_u32", v(vo), v(t0), 9, v(vo))
    k.I("v_and_b32", v(t0), 1, v(gg))
    k.I("v_lshl_add_u32", v(vo), v(t0), 3, v(vo))
    k.I("s_lshl_b32", s(st0), s(srb), 2)
    k.I("s_lshr_b32", s(st1), s(swave), 1)
    k.I("s_add_u32", s(st0), s(st0), s(st1))
    k.I("s_lshl_b32", s(st0), s(st0), 15)
    k.I("s_lshl_b32", s(st1), s(shd), 11)
    k.I("s_add_u32", s(st0), s(st0), s(st1))
    k.I("s_add_u32", s(soff), s(st0), hex(O_OFF))
    for dt in range(2):
        k.I("buffer_store_dwordx2", vr(pk + 2 * dt, 2), v(vo), sr(sWS, 4), s(soff), mods=f"offen offset:{dt * 1024}")
    stp.stamp(2)
    k.L(done)
    k.I("s_endpgm")
    k.lds = lds; k.threads = 512; k.grid = 256
    return k


def code_prefetch(k, nxt, sidx, tmp_s, tid="v0"):
    if os.environ.get("PFC", "1") != "1": return
    pp = k.salloc(2); sP = k.salloc(4); vT = k.valloc(); vd = k.valloc()
    lab = k.newlabel("pc")
    k.I("s_getpc_b64", sr(pp, 2))
    k.L(lab)
    k.I("s_add_u32", s(pp), s(pp), f"{nxt}-{lab}")
    k.I("s_addc_u32", s(pp + 1), s(pp + 1), 0)
    srd(k, sP, pp, f"{nxt}_end-{nxt}")
    k.I("s_lshl_b32", s(tmp_s), s(sidx), 8)
    k.I("v_add_u32", v(vT), s(tmp_s), tid)
    k.I("v_lshlrev_b32", v(vT), 7, v(vT))
    k.vm("pfc", "buffer_load_dword", v(vd), v(vT), sr(sP, 4), 0, mods="offen")

def l2_prefetch(k, kernarg_off, nbytes, vT128, nthreads, tmp_s):
    if os.environ.get("PFT", "1") != "1": return
    pp = k.salloc(2); sP = k.salloc(4)
    k.I("s_load_dwordx2", sr(pp, 2), "s[0:1]", kernarg_off)
    k.I("s_waitcnt", "lgkmcnt(0)")
    srd(k, sP, pp, nbytes)
    n = -(-nbytes // (128 * nthreads))
    for i in range(n):
        vd = k.valloc()
        k.I("s_mov_b32", s(tmp_s), hex(i * nthreads * 128))
        k.vm("pft", "buffer_load_dword", v(vd), v(vT128), sr(sP, 4), s(tmp_s), mods="offen")

def mall_prefetch(k, kernarg_off, nbytes, first, per, nw, swave, lane, tmp_s, tv0, tv1, flag="PFM"):
    if os.environ.get(flag, "1") != "1": return
    pp = k.salloc(2); sP = k.salloc(4); vd = k.valloc()
    k.I("s_load_dwordx2", sr(pp, 2), "s[0:1]", kernarg_off)
    k.I("s_mul_i32", s(tmp_s), "s2", nw)
    k.I("s_add_u32", s(tmp_s), s(tmp_s), s(swave))
    k.I("s_mul_i32", s(tmp_s), s(tmp_s), per)
    k.I("s_add_u32", s(tmp_s), s(tmp_s), first)
    k.I("s_lshl_b32", s(tmp_s), s(tmp_s), 7)
    k.I("v_lshlrev_b32", v(tv0), 7, v(lane))
    k.I("v_mov_b32", v(tv1), "0x7fffff00")
    k.I("v_cmp_gt_u32", "vcc", per, v(lane))
    k.I("v_cndmask_b32", v(tv0), v(tv1), v(tv0), "vcc")
    k.I("s_waitcnt", "lgkmcnt(0)")
    k.lgq = []
    srd(k, sP, pp, nbytes)
    k.vm("pfm", "buffer_load_dword", v(vd), v(tv0), sr(sP, 4), s(tmp_s), mods="offen")

def map_rb_hd(k, srb, shd, st0, st1):
    if os.environ.get("MAP48", "1") == "1":
        k.I("s_and_b32", s(st0), "s2", 7)
        k.I("s_lshr_b32", s(st1), "s2", 3)
        k.I("s_and_b32", s(shd), s(st1), 7)
        k.I("s_lshr_b32", s(st1), s(st1), 3)
        k.I("s_lshr_b32", s(srb), s(st0), 1)
        k.I("s_lshl_b32", s(srb), s(srb), 2)
        k.I("s_add_u32", s(srb), s(srb), s(st1))
        k.I("s_and_b32", s(st0), s(st0), 1)
        k.I("s_lshl_b32", s(st0), s(st0), 3)
        k.I("s_add_u32", s(shd), s(shd), s(st0))
    else:
        k.I("s_and_b32", s(st0), "s2", 7)
        k.I("s_lshr_b32", s(st1), "s2", 3)
        k.I("s_and_b32", s(shd), s(st1), 15)
        k.I("s_lshr_b32", s(st1), s(st1), 4)
        k.I("s_lshl_b32", s(srb), s(st0), 1)
        k.I("s_add_u32", s(srb), s(srb), s(st1))

def rot_index(k, dst, srot, c, n):
    k.I("s_add_u32", s(dst), s(srot), c)
    k.I("s_cmp_ge_u32", s(dst), n)
    k.I("s_cselect_b32", "s3", n, 0)
    k.I("s_sub_u32", s(dst), s(dst), "s3")

ROTS = os.environ.get("ROT", "1")
def rot_on(n): return str(n) in ROTS

def common_start(k, nwg):
    k.snext = 4; k.vnext = 1
    done = k.newlabel("done")
    k.I("s_cmp_ge_u32", "s2", nwg)
    k.I("s_cbranch_scc1", done)
    R = dict(done=done)
    R["swave"] = k.salloc(); R["st0"] = k.salloc(); R["st1"] = k.salloc(); R["soff"] = k.salloc()
    R["lane"] = k.valloc(); R["t0"] = k.valloc(); R["t1"] = k.valloc(); R["t2"] = k.valloc()
    k.I("v_lshrrev_b32", v(R["t0"]), 6, "v0")
    k.I("v_and_b32", v(R["lane"]), 63, "v0")
    k.I("v_readfirstlane_b32", s(R["swave"]), v(R["t0"]))
    return R

def interleave(k, mf, fl):
    n = len(fl); m = len(mf)
    cuts = [(i * n + m - 1) // m for i in range(m + 1)]
    cuts[-1] = n
    for i in range(m):
        mf[i]()
        for f in fl[cuts[i]:cuts[i + 1]]: f()

def stats_from_packed(k, P, n, accs, accq, tmp):
    for j in range(n):
        t = tmp[j % len(tmp)]
        k.I("v_lshlrev_b32", v(t), 16, v(P + j))
        k.I("v_and_b32", v(t + 1), "0xffff0000", v(P + j))
        if j == 0:
            k.I("v_pk_mul_f32", vr(accq, 2), vr(t, 2), vr(t, 2))
            k.I("v_mov_b32", v(accs), v(t)); k.I("v_mov_b32", v(accs + 1), v(t + 1))
        else:
            k.I("v_pk_add_f32", vr(accs, 2), vr(accs, 2), vr(t, 2))
            k.I("v_pk_fma_f32", vr(accq, 2), vr(t, 2), vr(t, 2), vr(accq, 2))
    k.I("v_add_f32", v(accs), v(accs), v(accs + 1))
    k.I("v_add_f32", v(accq), v(accq), v(accq + 1))
    for r_ in (accs, accq):
        k.I("v_mov_b32", v(r_ + 1), v(r_))
        k.I("v_permlane32_swap_b32", v(r_), v(r_ + 1))
        k.I("v_add_f32", v(r_), v(r_), v(r_ + 1))

def gen_k3(Stamper):
    k = Kernel("k3_wo_kernel")
    WREG = 0; OREG = 58368
    XT = OREG + 65536
    lds = XT + 8192
    R = common_start(k, 256)
    swave, st0, st1, soff, lane, t0, t1, t2 = (R[x] for x in ("swave", "st0", "st1", "soff", "lane", "t0", "t1", "t2"))
    pX = k.salloc(2); pWo = k.salloc(2); pWin = k.salloc(2); pWS = k.salloc(2)
    k.I("s_load_dwordx2", sr(pX, 2), "s[0:1]", 0)
    k.I("s_load_dwordx2", sr(pWo, 2), "s[0:1]", 16)
    k.I("s_load_dwordx2", sr(pWin, 2), "s[0:1]", 32)
    k.I("s_load_dwordx2", sr(pWS, 2), "s[0:1]", 80)
    sWS = k.salloc(4); sWo = k.salloc(4); sX = k.salloc(4)
    sj = k.salloc(); sidx = k.salloc(); srt = k.salloc(); snt = k.salloc(); sw3 = k.salloc()
    k.I("s_and_b32", s(sj), "s2", 7)
    k.I("s_lshr_b32", s(sidx), "s2", 3)
    k.I("s_and_b32", s(sw3), s(swave), 3)
    stp = Stamper(k, 2, sWS, swave)
    aux = k.newlabel("aux")
    k.I("s_cmp_ge_u32", s(sidx), 28)
    k.I("s_cbranch_scc1", aux)
    k.I("s_mul_i32", s(st0), s(sidx), 37)
    k.I("s_lshr_b32", s(st0), s(st0), 8)
    k.I("s_mul_i32", s(st1), s(st0), 7)
    k.I("s_sub_u32", s(snt), s(sidx), s(st1))
    k.I("s_lshl_b32", s(srt), s(sj), 2)
    k.I("s_add_u32", s(srt), s(srt), s(st0))
    comp = k.newlabel("compute")
    k.I("s_cmp_lt_u32", s(swave), 4)
    k.I("s_cbranch_scc1", comp)
    vsave = k.vnext
    if os.environ.get("PRIO_L"): k.I("s_setprio", int(os.environ["PRIO_L"]))
    v16 = k.valloc(); vWo = k.valloc()
    k.I("v_lshlrev_b32", v(v16), 4, v(lane))
    k.I("v_lshrrev_b32", v(t0), 3, v(lane))
    k.I("v_mul_u32_u24", v(t0), 896, v(t0))
    k.I("v_bfe_u32", v(t1), v(lane), 4, 1)
    k.I("v_lshlrev_b32", v(t1), 2, v(t1))
    k.I("v_and_b32", v(t2), 7, v(lane))
    k.I("v_xor_b32", v(t1), v(t1), v(t2))
    k.I("v_lshl_add_u32", v(vWo), v(t1), 4, v(t0))
    sOb = k.salloc(); sWb = k.salloc(); smO = k.salloc(); smW = k.salloc()
    k.I("s_lshl_b32", s(sOb), s(srt), 16)
    k.I("s_lshl_b32", s(st0), s(sw3), 10)
    k.I("s_add_u32", s(sOb), s(sOb), s(st0))
    k.I("s_add_u32", s(sOb), s(sOb), hex(O_OFF))
    k.I("s_add_u32", s(smO), s(st0), OREG)
    k.I("s_mul_i32", s(sWb), s(sw3), 8 * 896)
    k.I("s_lshl_b32", s(st1), s(snt), 7)
    k.I("s_add_u32", s(sWb), s(sWb), s(st1))
    k.I("s_add_u32", s(smW), s(st0), WREG)
    def issue(c):
        for r2 in range(2):
            k.I("s_add_u32", s(soff), s(sOb), hex(r2 * 32768 + c * 4096))
            k.I("s_add_u32", "m0", s(smO), hex(r2 * 32768 + c * 4096))
            k.vm(("S", c), "buffer_load_dwordx4", v(v16), sr(sWS, 4), s(soff), mods="offen lds")
        for i in range(2):
            k.I("s_add_u32", s(soff), s(sWb), hex((56 * c + 32 * i) * 896))
            k.I("s_add_u32", "m0", s(smW), hex((56 * c + 32 * i) * 128))
            k.vm(("S", c), "buffer_load_dwordx4", v(vWo), sr(sWo, 4), s(soff), mods="offen lds")
    k.I("s_waitcnt", "lgkmcnt(0)")
    srd(k, sWS, pWS, WS_SIZE)
    srd(k, sWo, pWo, 448 * 896)
    vXo = k.valloc(); sXb = k.salloc(); smX = k.salloc()
    k.I("v_lshrrev_b32", v(t0), 3, v(lane))
    k.I("v_and_b32", v(t1), 7, v(lane))
    k.I("v_xor_b32", v(t1), v(t1), v(t0))
    k.I("v_mul_u32_u24", v(t0), 896, v(t0))
    k.I("v_lshl_add_u32", v(vXo), v(t1), 4, v(t0))
    k.I("s_lshl_b32", s(st0), s(srt), 6)
    k.I("s_lshl_b32", s(st1), s(sw3), 4)
    k.I("s_add_u32", s(st0), s(st0), s(st1))
    k.I("s_mul_i32", s(sXb), s(st0), 896)
    k.I("s_lshl_b32", s(st1), s(snt), 7)
    k.I("s_add_u32", s(sXb), s(sXb), s(st1))
    k.I("s_lshl_b32", s(smX), s(sw3), 11)
    k.I("s_add_u32", s(smX), s(smX), XT)
    srd(k, sX, pX, 2048 * 896)
    LA = int(os.environ.get('K3LA', '5'))
    for c in range(min(LA, 3)): issue(c)
    for c in range(8):
        k.wait_vm(("S", c))
        k.I("s_barrier")
        if c == 0:
            for cc in range(3, LA): issue(cc)
        if c + LA < 8: issue(c + LA)
        if c + LA == 7:
            for i in range(2):
                k.I("s_add_u32", s(soff), s(sXb), hex(i * 8 * 896))
                k.I("s_add_u32", "m0", s(smX), hex(i * 1024))
                k.vm(("S", 7), "buffer_load_dwordx4", v(vXo), sr(sX, 4), s(soff), mods="offen lds")
    k.I("s_endpgm")
    k.L(comp)
    if os.environ.get("PRIO_C"): k.I("s_setprio", int(os.environ["PRIO_C"]))
    k.vnext = vsave; k.vmq = []; k.lgq = []
    l31 = k.valloc(); hh = k.valloc()
    k.I("v_and_b32", v(l31), 31, v(lane))
    k.I("v_lshrrev_b32", v(hh), 5, v(lane))
    srh = k.salloc(); snh = k.salloc(); sst = k.salloc(); sntile = k.salloc()
    k.I("s_and_b32", s(srh), s(swave), 1)
    k.I("s_lshr_b32", s(snh), s(swave), 1)
    k.I("s_lshl_b32", s(sst), s(srt), 1)
    k.I("s_add_u32", s(sst), s(sst), s(srh))
    k.I("s_lshl_b32", s(sntile), s(snt), 1)
    k.I("s_add_u32", s(sntile), s(sntile), s(snh))
    xr = k.valloc(8, 4); vxa = k.valloc(4)
    k.I("s_lshl_b32", s(st0), s(srh), 5)
    k.I("v_add_u32", v(t0), s(st0), v(l31))
    k.I("v_and_b32", v(t1), 7, v(t0))
    k.I("v_lshlrev_b32", v(t0), 7, v(t0))
    k.I("v_lshl_add_u32", v(t0), v(hh), 3, v(t0))
    k.I("v_add_u32", v(t0), XT, v(t0))
    k.I("s_lshl_b32", s(st0), s(snh), 2)
    for q in range(4):
        k.I("s_add_u32", s(st1), s(st0), q)
        k.I("v_xor_b32", v(t2), s(st1), v(t1))
        k.I("v_lshl_add_u32", v(vxa + q), v(t2), 4, v(t0))
    k.I("s_waitcnt", "lgkmcnt(0)")
    srd(k, sWS, pWS, WS_SIZE)
    code_prefetch(k, "k4_win_kernel", sidx, st0)
    stp.stamp(0)
    aO = k.valloc(); vW = k.valloc()
    k.I("v_lshlrev_b32", v(aO), 4, v(lane))
    k.I("s_lshl_b32", s(st0), s(srh), 15)
    k.I("s_add_u32", s(st0), s(st0), OREG)
    k.I("v_add_u32", v(aO), s(st0), v(aO))
    k.I("v_bfe_u32", v(t0), v(lane), 2, 2)
    k.I("v_lshl_add_u32", v(t0), v(hh), 3, v(t0))
    k.I("v_lshlrev_b32", v(vW), 7, v(t0))
    k.I("v_bfe_u32", v(t0), v(lane), 4, 1)
    k.I("v_lshlrev_b32", v(t0), 1, v(t0))
    k.I("v_bfe_u32", v(t1), v(lane), 1, 1)
    k.I("v_add_u32", v(t0), v(t0), v(t1))
    k.I("s_lshl_b32", s(st0), s(snh), 2)
    k.I("v_add_u32", v(t0), s(st0), v(t0))
    k.I("v_bfe_u32", v(t1), v(lane), 3, 1)
    k.I("v_lshlrev_b32", v(t1), 2, v(t1))
    k.I("v_xor_b32", v(t0), v(t0), v(t1))
    k.I("v_lshl_add_u32", v(vW), v(t0), 4, v(vW))
    k.I("v_and_b32", v(t0), 1, v(lane))
    k.I("v_lshl_add_u32", v(vW), v(t0), 3, v(vW))
    acc = k.valloc(16, 4)
    NB = 3
    of = [k.valloc(4) for _ in range(NB)]; wf = [k.valloc(4) for _ in range(NB)]
    def rl(ks):
        b = ks % NB
        out = [lambda: k.lg(("f", ks), "ds_read_b128", vr(of[b], 4), v(aO), mods=f"offset:{ks * 1024}")]
        for beta in range(2):
            o = (28 * (ks >> 1) + 16 * (ks & 1) + 4 * beta) * 128
            out.append(lambda o=o, beta=beta: k.lg(("f", ks), "ds_read_b64_tr_b16", vr(wf[b] + 2 * beta, 2), v(vW), mods=f"offset:{o}"))
        return out
    k.I("s_barrier")
    stp.stamp(1)
    for f in rl(0) + rl(1): f()
    for ks in range(32):
        c, j = ks // 4, ks % 4
        b = ks % NB
        k.wait_lg(("f", ks))
        k.I("v_mfma_f32_32x32x16_bf16", vr(acc, 16), vr(wf[b], 4), vr(of[b], 4), 0 if ks == 0 else vr(acc, 16))
        if j == 1 and c < 7: k.I("s_barrier")
        if ks + 2 < 32 and not (j == 1 and False):
            pass
        nxt = ks + 2
        if nxt < 32:
            for f in rl(nxt): f()
    EOF_MARK = None
    stp.stamp(2)
    for q in range(4): k.I("ds_read_b64", vr(xr + 2 * q, 2), v(vxa + q))
    k.I("s_waitcnt", "lgkmcnt(0)")
    k.lgq = []
    tmp = [k.valloc(2) for _ in range(4)]
    for q in range(4):
        for d in range(2):
            t = tmp[(2 * q + d) % 4]
            k.I("v_lshlrev_b32", v(t), 16, v(xr + 2 * q + d))
            k.I("v_and_b32", v(t + 1), "0xffff0000", v(xr + 2 * q + d))
            k.I("v_pk_add_f32", vr(acc + 4 * q + 2 * d, 2), vr(acc + 4 * q + 2 * d, 2), vr(t, 2))
    P = k.valloc(8, 4)
    for j in range(8): k.I("v_cvt_pk_bf16_f32", v(P + j), v(acc + 2 * j), v(acc + 2 * j + 1))
    v16 = k.valloc()
    k.I("v_lshlrev_b32", v(v16), 4, v(lane))
    k.I("s_mul_i32", s(soff), s(sst), 28 * 1024)
    k.I("s_lshl_b32", s(st0), s(sntile), 11)
    k.I("s_add_u32", s(soff), s(soff), s(st0))
    k.I("s_add_u32", s(soff), s(soff), hex(H_OFF))
    k.I("buffer_store_dwordx4", vr(P, 4), v(v16), sr(sWS, 4), s(soff), mods="offen")
    k.I("buffer_store_dwordx4", vr(P + 4, 4), v(v16), sr(sWS, 4), s(soff), mods="offen offset:1024")
    accs = k.valloc(2); accq = k.valloc(2)
    stats_from_packed(k, P, 8, accs, accq, tmp)
    k.I("v_mov_b32", v(accs + 1), v(accq))
    vh = k.valloc()
    k.I("v_lshlrev_b32", v(vh), 3, v(l31))
    k.I("s_mul_i32", s(soff), s(sst), 32 * 112)
    k.I("s_lshl_b32", s(st0), s(sntile), 8)
    k.I("s_add_u32", s(soff), s(soff), s(st0))
    k.I("s_add_u32", s(soff), s(soff), hex(HS_OFF))
    k.I("s_mov_b32", "exec_hi", 0)
    k.I("buffer_store_dwordx2", vr(accs, 2), v(vh), sr(sWS, 4), s(soff), mods="offen")
    stp.stamp(3)
    k.I("s_endpgm")
    k.L(aux)
    k.vnext = vsave; k.vmq = []; k.lgq = []
    sa = k.salloc(); sWin = k.salloc(4)
    k.I("s_sub_u32", s(sa), s(sidx), 28)
    k.I("s_lshl_b32", s(sa), s(sa), 3)
    k.I("s_add_u32", s(sa), s(sa), s(sj))
    k.I("s_waitcnt", "lgkmcnt(0)")
    srd(k, sWS, pWS, WS_SIZE)
    ff = k.valloc(4)
    for i in range(4): k.I("v_mov_b32", v(ff + i), -1)
    k.I("v_lshlrev_b32", v(t1), 4, "v0")
    k.I("v_mov_b32", v(t2), "0x7fffff00")
    k.I("v_cmp_gt_u32", "vcc", 448, "v0")
    k.I("v_cndmask_b32", v(t1), v(t2), v(t1), "vcc")
    k.I("s_mul_i32", s(st0), s(sa), 7168)
    k.I("s_add_u32", s(st0), s(st0), hex(EX_OFF))
    if os.environ.get('K4V', 'b') != 'c':
        k.I("buffer_store_dwordx4", vr(ff, 4), v(t1), sr(sWS, 4), s(st0), mods="offen")
    else:
        k.I("s_mul_i32", s(st0), s(sa), 14336)
        k.I("s_add_u32", s(st0), s(st0), hex(EX2_OFF))
        k.I("buffer_store_dwordx4", vr(ff, 4), v(t1), sr(sWS, 4), s(st0), mods="offen")
        k.I("s_add_u32", s(st0), s(st0), 7168)
        k.I("buffer_store_dwordx4", vr(ff, 4), v(t1), sr(sWS, 4), s(st0), mods="offen")
    zf = k.valloc(4)
    for i in range(4): k.I("v_mov_b32", v(zf + i), 0)
    k.I("v_lshlrev_b32", v(t1), 4, "v0")
    k.I("v_mov_b32", v(t2), "0x7fffff00")
    k.I("v_cmp_gt_u32", "vcc", 32, "v0")
    k.I("v_cndmask_b32", v(t1), v(t2), v(t1), "vcc")
    k.I("s_lshl_b32", s(st0), s(sa), 9)
    k.I("s_add_u32", s(st0), s(st0), hex(FL_OFF))
    k.I("buffer_store_dwordx4", vr(zf, 4), v(t1), sr(sWS, 4), s(st0), mods="offen")
    srd(k, sWin, pWin, 448 * 3584)
    def win_prefetch():
        if os.environ.get("PFWIN", "k2") != "k3": return
        vTw = k.valloc(); vdw = k.valloc(7)
        k.I("s_sub_u32", s(st0), s(sidx), 28)
        k.I("s_lshl_b32", s(st0), s(st0), 9)
        k.I("v_add_u32", v(vTw), s(st0), "v0")
        k.I("v_lshlrev_b32", v(vTw), 7, v(vTw))
        for i in range(7):
            k.I("s_mov_b32", s(st0), hex(i * 2048 * 128))
            k.I("buffer_load_dword", v(vdw + i), v(vTw), sr(sWin, 4), s(st0), mods="offen")
    nocs = k.newlabel("nocs")
    k.I("s_cmp_ge_u32", s(sa), 28)
    k.I("s_cbranch_scc1", nocs)
    vg = k.valloc()
    k.I("v_lshrrev_b32", v(t0), 3, v(lane))
    k.I("v_mul_u32_u24", v(t0), 3584, v(t0))
    k.I("v_bfe_u32", v(t1), v(lane), 4, 1)
    k.I("v_lshlrev_b32", v(t1), 2, v(t1))
    k.I("v_and_b32", v(t2), 7, v(lane))
    k.I("v_xor_b32", v(t1), v(t1), v(t2))
    k.I("v_lshl_add_u32", v(vg), v(t1), 4, v(t0))
    sb = k.salloc(); sm = k.salloc()
    k.I("s_mul_i32", s(sb), s(swave), 56 * 3584)
    k.I("s_lshl_b32", s(st0), s(sa), 7)
    k.I("s_add_u32", s(sb), s(sb), s(st0))
    k.I("s_mul_i32", s(sm), s(swave), 56 * 128)
    for i in range(7):
        k.I("s_add_u32", s(soff), s(sb), hex(i * 8 * 3584))
        k.I("s_add_u32", "m0", s(sm), hex(i * 1024))
        k.I("buffer_load_dwordx4", v(vg), sr(sWin, 4), s(soff), mods="offen lds")
    win_prefetch()
    z = k.valloc(); TB = 57344
    k.I("v_mov_b32", v(z), 0)
    k.I("v_lshlrev_b32", v(t0), 2, v(lane))
    k.I("v_add_u32", v(t0), TB, v(t0))
    k.I("ds_write_b32", v(t0), v(z))
    gg = k.valloc(); vB = k.valloc(); ones = k.valloc(4)
    k.I("v_lshrrev_b32", v(gg), 4, v(lane))
    k.I("v_bfe_u32", v(t0), v(lane), 2, 2)
    k.I("v_lshl_add_u32", v(t0), v(gg), 3, v(t0))
    k.I("v_lshlrev_b32", v(vB), 7, v(t0))
    k.I("v_bfe_u32", v(t0), v(lane), 1, 1)
    k.I("s_lshl_b32", s(st0), s(sw3), 1)
    k.I("v_add_u32", v(t0), s(st0), v(t0))
    k.I("v_bfe_u32", v(t1), v(lane), 3, 1)
    k.I("v_lshlrev_b32", v(t1), 2, v(t1))
    k.I("v_xor_b32", v(t0), v(t0), v(t1))
    k.I("v_lshl_add_u32", v(vB), v(t0), 4, v(vB))
    k.I("v_and_b32", v(t0), 1, v(lane))
    k.I("v_lshl_add_u32", v(vB), v(t0), 3, v(vB))
    k.I("s_lshr_b32", s(st0), s(swave), 2)
    k.I("s_mul_i32", s(st0), s(st0), 224 * 128)
    k.I("v_add_u32", v(vB), s(st0), v(vB))
    for i in range(4): k.I("v_mov_b32", v(ones + i), "0x3f803f80")
    k.I("s_waitcnt", "vmcnt(7) lgkmcnt(0)" if os.environ.get("PFWIN", "k2") == "k3" else "vmcnt(0) lgkmcnt(0)")
    k.I("s_barrier")
    bf = [k.valloc(4) for _ in range(7)]
    for kk in range(7):
        for beta in range(2):
            k.I("ds_read_b64_tr_b16", vr(bf[kk] + 2 * beta, 2), v(vB), mods=f"offset:{(32 * kk + 4 * beta) * 128}")
    ca = k.valloc(4)
    k.I("s_waitcnt", "lgkmcnt(0)")
    for kk in range(7):
        k.I("v_mfma_f32_16x16x32_bf16", vr(ca, 4), vr(ones, 4), vr(bf[kk], 4), 0 if kk == 0 else vr(ca, 4))
    k.I("v_and_b32", v(t0), 15, v(lane))
    k.I("s_lshl_b32", s(st0), s(sw3), 6)
    k.I("s_add_u32", s(st0), s(st0), TB)
    k.I("v_lshlrev_b32", v(t0), 2, v(t0))
    k.I("v_add_u32", v(t0), s(st0), v(t0))
    k.I("s_mov_b32", "exec_lo", "0xffff")
    k.I("s_mov_b32", "exec_hi", 0)
    k.I("ds_add_f32", v(t0), v(ca))
    k.I("s_mov_b64", "exec", -1)
    k.I("s_waitcnt", "lgkmcnt(0)")
    k.I("s_barrier")
    k.I("s_cmp_lg_u32", s(swave), 0)
    k.I("s_cbranch_scc1", R["done"])
    k.I("v_lshlrev_b32", v(t0), 2, v(lane))
    k.I("v_add_u32", v(t1), TB, v(t0))
    k.I("ds_read_b32", v(z), v(t1))
    k.I("s_lshl_b32", s(st0), s(sa), 8)
    k.I("s_add_u32", s(st0), s(st0), hex(CW_OFF))
    k.I("s_waitcnt", "lgkmcnt(0)")
    k.I("buffer_store_dword", v(z), v(t0), sr(sWS, 4), s(st0), mods="offen")
    k.I("s_endpgm")
    k.L(nocs)
    win_prefetch()
    k.L(R["done"])
    k.I("s_endpgm")
    k.lds = lds; k.threads = 512; k.grid = 256
    return k


GELU_C0 = -2.0 * math.sqrt(2.0 / math.pi) * math.log2(math.e)
GELU_C1 = GELU_C0 * 0.044715

def gen_k4(Stamper):
    k = Kernel("k4_win_kernel")
    NS = 4; SLOT = 32768; TRB = NS * SLOT
    STB = TRB
    lds = TRB + 4096
    R = common_start(k, 256)
    swave, st0, st1, soff, lane, t0, t1, t2 = (R[x] for x in ("swave", "st0", "st1", "soff", "lane", "t0", "t1", "t2"))
    pWin = k.salloc(2); pWS = k.salloc(2)
    k.I("s_load_dwordx2", sr(pWin, 2), "s[0:1]", 32)
    k.I("s_load_dwordx2", sr(pWS, 2), "s[0:1]", 80)
    sWS = k.salloc(4); sWin = k.salloc(4)
    sj = k.salloc(); sidx = k.salloc(); srb = k.salloc(); sct = k.salloc(); sw3 = k.salloc()
    k.I("s_and_b32", s(sj), "s2", 7)
    k.I("s_lshr_b32", s(sidx), "s2", 3)
    k.I("s_and_b32", s(sw3), s(swave), 3)
    pfrole = k.newlabel("pfrole")
    k.I("s_cmp_ge_u32", s(sidx), 28)
    k.I("s_cbranch_scc1", pfrole)
    k.I("s_cmp_ge_u32", s(sidx), 14)
    k.I("s_cselect_b32", s(st0), 1, 0)
    k.I("s_mul_i32", s(st1), s(st0), 14)
    k.I("s_sub_u32", s(sct), s(sidx), s(st1))
    k.I("s_lshl_b32", s(srb), s(sj), 1)
    k.I("s_add_u32", s(srb), s(srb), s(st0))
    stp = Stamper(k, 3, sWS, swave)
    k.I("s_waitcnt", "lgkmcnt(0)")
    srd(k, sWS, pWS, WS_SIZE)
    comp = k.newlabel("compute")
    k.I("s_cmp_lt_u32", s(swave), 4)
    k.I("s_cbranch_scc1", comp)
    vsave = k.vnext
    if os.environ.get("PRIO_L"): k.I("s_setprio", int(os.environ["PRIO_L"]))
    srd(k, sWin, pWin, 448 * 3584)
    v16 = k.valloc(); vWo = k.valloc()
    k.I("v_lshlrev_b32", v(v16), 4, v(lane))
    k.I("v_lshrrev_b32", v(t0), 4, v(lane))
    k.I("v_lshlrev_b32", v(t1), 2, v(t0))
    k.I("v_and_b32", v(t2), 15, v(lane))
    k.I("v_xor_b32", v(t1), v(t1), v(t2))
    k.I("v_mul_u32_u24", v(vWo), 3584, v(t0))
    k.I("v_and_b32", v(t2), 7, v(t1))
    k.I("v_lshl_add_u32", v(vWo), v(t2), 4, v(vWo))
    k.I("v_add_u32", v(t2), 1792, v(vWo))
    k.I("v_cmp_gt_u32", "vcc", 8, v(t1))
    k.I("v_cndmask_b32", v(vWo), v(vWo), v(t2), "vcc")
    sHb = k.salloc(); sWb = k.salloc(); smH = k.salloc(); smW = k.salloc()
    k.I("s_lshl_b32", s(st0), s(srb), 2)
    k.I("s_add_u32", s(st0), s(st0), s(sw3))
    k.I("s_mul_i32", s(sHb), s(st0), 28 * 1024)
    k.I("s_add_u32", s(sHb), s(sHb), hex(H_OFF))
    k.I("s_lshl_b32", s(smH), s(sw3), 12)
    k.I("s_mul_i32", s(sWb), s(sw3), 16 * 3584)
    k.I("s_lshl_b32", s(st1), s(sct), 7)
    k.I("s_add_u32", s(sWb), s(sWb), s(st1))
    k.I("s_add_u32", s(smW), s(smH), 16384)
    def issue(c):
        sl = (c % NS) * SLOT
        for i in range(4):
            k.I("s_add_u32", s(soff), s(sHb), hex((4 * c + i) * 1024))
            k.I("s_add_u32", "m0", s(smH), hex(sl + i * 1024))
            k.vm(("S", c), "buffer_load_dwordx4", v(v16), sr(sWS, 4), s(soff), mods="offen lds")
        for i in range(4):
            k.I("s_add_u32", s(soff), s(sWb), hex((64 * c + 4 * i) * 3584))
            k.I("s_add_u32", "m0", s(smW), hex(sl + i * 1024))
            k.vm(("S", c), "buffer_load_dwordx4", v(vWo), sr(sWin, 4), s(soff), mods="offen lds")
    issue(0); issue(1)
    for c in range(7):
        k.wait_vm(("S", c))
        k.I("s_barrier")
        if c == 0: issue(2); issue(3)
        elif c + 2 < 7 and c >= 2: issue(c + 2)
    k.I("s_barrier")
    k.I("s_endpgm")
    k.L(comp)
    if os.environ.get("PRIO_C"): k.I("s_setprio", int(os.environ["PRIO_C"]))
    k.vnext = vsave; k.vmq = []; k.lgq = []
    l31 = k.valloc(); hh = k.valloc()
    k.I("v_and_b32", v(l31), 31, v(lane))
    k.I("v_lshrrev_b32", v(hh), 5, v(lane))
    srh = k.salloc(); sch = k.salloc(); sst = k.salloc()
    k.I("s_and_b32", s(srh), s(swave), 1)
    k.I("s_lshr_b32", s(sch), s(swave), 1)
    k.I("s_lshl_b32", s(sst), s(srb), 2)
    k.I("s_lshl_b32", s(st0), s(srh), 1)
    k.I("s_add_u32", s(sst), s(sst), s(st0))
    hs = [k.valloc(16, 4) for _ in range(2)]
    vh = k.valloc()
    k.I("v_mul_u32_u24", v(vh), 112, v(l31))
    k.I("v_lshl_add_u32", v(vh), v(hh), 6, v(vh))
    for t in range(2):
        k.I("s_add_u32", s(st0), s(sst), t)
        k.I("s_mul_i32", s(soff), s(st0), 32 * 112)
        k.I("s_add_u32", s(soff), s(soff), hex(HS_OFF))
        for i in range(4):
            k.vm("hs", "buffer_load_dwordx4", vr(hs[t] + 4 * i, 4), v(vh), sr(sWS, 4), s(soff), mods=f"offen offset:{16 * i}")
    cw = [k.valloc(16, 4) for _ in range(2)]
    vc = k.valloc()
    k.I("v_lshlrev_b32", v(vc), 4, v(hh))
    k.I("s_lshl_b32", s(st0), s(sct), 8)
    k.I("s_lshl_b32", s(st1), s(sch), 7)
    k.I("s_add_u32", s(st0), s(st0), s(st1))
    for z in range(2):
        k.I("s_add_u32", s(soff), s(st0), hex(CW_OFF + (896 * 4 if z == 0 else 0)))
        for q in range(4):
            k.vm("cw", "buffer_load_dwordx4", vr(cw[z] + 4 * q, 4), v(vc), sr(sWS, 4), s(soff), mods=f"offen offset:{32 * q}")
    if os.environ.get("PF2", "0") == "1":
        pp = k.salloc(2); sP = k.salloc(4); vT = k.valloc(); vd = k.valloc(2)
        k.I("s_load_dwordx2", sr(pp, 2), "s[0:1]", 40)
        k.I("s_lshl_b32", s(st0), s(sidx), 8)
        k.I("v_add_u32", v(vT), s(st0), "v0")
        k.I("s_waitcnt", "lgkmcnt(0)")
        srd(k, sP, pp, 2048 * 4096)
        k.I("s_lshr_b32", s(st0), s(sj), 1)
        k.I("s_lshl_b32", s(st0), s(st0), 21)
        k.I("s_and_b32", s(st1), s(sj), 1)
        k.I("s_lshl_b32", s(st1), s(st1), 11)
        k.I("s_add_u32", s(st0), s(st0), s(st1))
        for i in range(2):
            k.I("v_add_u32", v(t0), 7168 * i, v(vT))
            k.I("v_lshrrev_b32", v(t1), 4, v(t0))
            k.I("v_lshlrev_b32", v(t1), 12, v(t1))
            k.I("v_and_b32", v(t2), 15, v(t0))
            k.I("v_lshl_add_u32", v(t1), v(t2), 7, v(t1))
            if i == 1:
                k.I("v_mov_b32", v(t2), "0x7fffff00")
                k.I("v_cmp_gt_u32", "vcc", 8192, v(t0))
                k.I("v_cndmask_b32", v(t1), v(t2), v(t1), "vcc")
            k.vm("pf", "buffer_load_dword", v(vd + i), v(t1), sr(sP, 4), s(st0), mods="offen")
    code_prefetch(k, "k5_sp_kernel", sidx, st0)
    stp.stamp(0)
    aH = k.valloc(); vW = [k.valloc(), k.valloc()]
    k.I("v_lshlrev_b32", v(aH), 4, v(lane))
    k.I("s_lshl_b32", s(st0), s(srh), 13)
    k.I("v_add_u32", v(aH), s(st0), v(aH))
    k.I("v_bfe_u32", v(t0), v(lane), 2, 2)
    k.I("v_lshl_add_u32", v(t1), v(hh), 2, v(t0))
    k.I("v_lshlrev_b32", v(t1), 8, v(t1))
    k.I("v_add_u32", v(t1), 16384, v(t1))
    k.I("v_bfe_u32", v(t2), v(lane), 4, 1)
    k.I("v_lshlrev_b32", v(t2), 1, v(t2))
    k.I("v_bfe_u32", v(vW[0]), v(lane), 1, 1)
    k.I("v_add_u32", v(t2), v(t2), v(vW[0]))
    k.I("s_lshl_b32", s(st0), s(sch), 2)
    k.I("v_add_u32", v(t2), s(st0), v(t2))
    k.I("v_lshlrev_b32", v(t0), 2, v(t0))
    k.I("v_xor_b32", v(vW[0]), v(t2), v(t0))
    k.I("v_add_u32", v(t2), 8, v(t2))
    k.I("v_xor_b32", v(vW[1]), v(t2), v(t0))
    k.I("v_and_b32", v(t2), 1, v(lane))
    for z in range(2):
        k.I("v_lshl_add_u32", v(vW[z]), v(vW[z]), 4, v(t1))
        k.I("v_lshl_add_u32", v(vW[z]), v(t2), 3, v(vW[z]))
    aH2 = k.valloc(); vW2 = [k.valloc(), k.valloc()]
    k.I("v_add_u32", v(aH2), 65536, v(aH))
    for z in range(2): k.I("v_add_u32", v(vW2[z]), 65536, v(vW[z]))
    acc = [[k.valloc(16, 4) for _ in range(2)] for _ in range(2)]
    vmark = k.vnext
    NB = 3
    hf = [[k.valloc(4) for _ in range(2)] for _ in range(NB)]
    wf = [[k.valloc(4) for _ in range(2)] for _ in range(NB)]
    def rl(ks):
        c, j = ks // 4, ks % 4
        b = ks % NB
        sl = (c % NS) * SLOT
        hi = sl >= 65536
        so = sl - (65536 if hi else 0)
        out = []
        for t in range(2):
            out.append(lambda t=t: k.lg(("f", ks), "ds_read_b128", vr(hf[b][t], 4), v(aH2 if hi else aH), mods=f"offset:{so + t * 4096 + j * 1024}"))
        for z in range(2):
            for beta in range(2):
                o = so + (16 * j + 8 * beta) * 256
                out.append(lambda o=o, z=z, beta=beta: k.lg(("f", ks), "ds_read_b64_tr_b16", vr(wf[b][z] + 2 * beta, 2), v((vW2 if hi else vW)[z]), mods=f"offset:{o}"))
        return out
    k.I("s_barrier")
    stp.stamp(1)
    for f in rl(0) + rl(1): f()
    for ks in range(28):
        c, j = ks // 4, ks % 4
        b = ks % NB
        k.wait_lg(("f", ks))
        mf = []
        for z in range(2):
            for t in range(2):
                mf.append(lambda z=z, t=t: k.I("v_mfma_f32_32x32x16_bf16", vr(acc[z][t], 16), vr(wf[b][z], 4), vr(hf[b][t], 4), 0 if ks == 0 else vr(acc[z][t], 16)))
        if j == 2 and c < 6:
            pass
        fl = rl(ks + 2) if ks + 2 < 28 else []
        if j == 2 and ks + 2 < 28:
            k.I("s_barrier")
        interleave(k, mf, fl)
    stp.stamp(2)
    k.vnext = vmark
    k.wait_vm(["hs", "cw"])
    rr = [k.valloc(2) for _ in range(2)]; nm = [k.valloc(2) for _ in range(2)]
    c0r = [k.valloc(2) for _ in range(2)]; c1r = [k.valloc(2) for _ in range(2)]
    k.I("v_cmp_eq_u32", "vcc", 0, v(hh))
    for t in range(2):
        H = hs[t]
        for i in range(12, 16): k.I("v_cndmask_b32", v(H + i), 0, v(H + i), "vcc")
        for i in range(4): k.I("v_pk_add_f32", vr(H + 2 * i, 2), vr(H + 2 * i, 2), vr(H + 8 + 2 * i, 2))
        for i in range(2): k.I("v_pk_add_f32", vr(H + 2 * i, 2), vr(H + 2 * i, 2), vr(H + 4 + 2 * i, 2))
        k.I("v_pk_add_f32", vr(H, 2), vr(H, 2), vr(H + 2, 2))
        for e in range(2):
            k.I("v_mov_b32", v(H + 2), v(H + e))
            k.I("v_permlane32_swap_b32", v(H + e), v(H + 2))
            k.I("v_add_f32", v(H + e), v(H + e), v(H + 2))
        k.I("v_mul_f32", v(nm[t]), hex(f32(-1.0 / 448)), v(H))
        k.I("v_mul_f32", v(H + 1), hex(f32(1.0 / 448)), v(H + 1))
        k.I("v_fma_f32", v(H + 1), f"-{v(nm[t])}", v(nm[t]), v(H + 1))
        k.I("v_max_f32", v(H + 1), 0, v(H + 1))
        k.I("v_add_f32", v(H + 1), hex(f32(1e-5)), v(H + 1))
        k.I("v_rsq_f32", v(rr[t]), v(H + 1))
        k.I("v_mul_f32", v(c0r[t]), hex(f32(GELU_C0)), v(rr[t]))
        k.I("v_mul_f32", v(c1r[t]), v(rr[t]), v(rr[t]))
        k.I("v_mul_f32", v(c1r[t]), v(c1r[t]), v(rr[t]))
        k.I("v_mul_f32", v(c1r[t]), hex(f32(GELU_C1)), v(c1r[t]))
    norh = k.newlabel("norh")
    k.I("s_or_b32", s(st0), s(sct), s(sch))
    k.I("s_cmp_lg_u32", s(st0), 0)
    k.I("s_cbranch_scc1", norh)
    k.I("v_lshlrev_b32", v(t0), 2, v(l31))
    for t in range(2):
        k.I("s_add_u32", s(st0), s(sst), t)
        k.I("s_lshl_b32", s(st0), s(st0), 7)
        k.I("s_add_u32", s(st0), s(st0), hex(RH_OFF))
        k.I("buffer_store_dword", v(rr[t]), v(t0), sr(sWS, 4), s(st0), mods="offen")
    k.L(norh)
    tp = [k.valloc(2) for _ in range(4)]
    def gelu_tile(A, z, t):
        for j in range(8):
            k.I("v_pk_fma_f32", vr(A + 2 * j, 2), vr(cw[z] + 2 * j, 2), vr(nm[t], 2), vr(A + 2 * j, 2), mods="op_sel_hi:[1,0,1]")
        for j0 in range(0, 8, 4):
            for j in range(j0, j0 + 4):
                T = tp[j - j0]
                k.I("v_pk_mul_f32", vr(T, 2), vr(A + 2 * j, 2), vr(A + 2 * j, 2))
            for j in range(j0, j0 + 4):
                T = tp[j - j0]
                k.I("v_pk_fma_f32", vr(T, 2), vr(T, 2), vr(c1r[t], 2), vr(c0r[t], 2), mods="op_sel_hi:[1,0,0]")
            for j in range(j0, j0 + 4):
                T = tp[j - j0]
                k.I("v_pk_mul_f32", vr(T, 2), vr(T, 2), vr(A + 2 * j, 2))
            for j in range(j0, j0 + 4):
                T = tp[j - j0]
                k.I("v_exp_f32", v(T), v(T)); k.I("v_exp_f32", v(T + 1), v(T + 1))
            for j in range(j0, j0 + 4):
                T = tp[j - j0]
                k.I("v_pk_add_f32", vr(T, 2), vr(T, 2), "1.0", mods="op_sel_hi:[1,0]")
            for j in range(j0, j0 + 4):
                T = tp[j - j0]
                k.I("v_rcp_f32", v(T), v(T)); k.I("v_rcp_f32", v(T + 1), v(T + 1))
            for j in range(j0, j0 + 4):
                T = tp[j - j0]
                k.I("v_pk_mul_f32", vr(A + 2 * j, 2), vr(A + 2 * j, 2), vr(T, 2))
    accs = [k.valloc(2) for _ in range(2)]; accq = [k.valloc(2) for _ in range(2)]
    for t in range(2):
        A = acc[0][t]
        gelu_tile(A, 0, t)
        for j in range(8):
            k.I("v_pk_mul_f32", vr(A + 2 * j, 2), vr(A + 2 * j, 2), vr(rr[t], 2), mods="op_sel_hi:[1,0]")
        k.I("v_pk_add_f32", vr(accs[t], 2), vr(A, 2), vr(A + 2, 2))
        k.I("v_pk_mul_f32", vr(accq[t], 2), vr(A, 2), vr(A, 2))
        k.I("v_pk_fma_f32", vr(accq[t], 2), vr(A + 2, 2), vr(A + 2, 2), vr(accq[t], 2))
        for j in range(2, 8):
            k.I("v_pk_add_f32", vr(accs[t], 2), vr(accs[t], 2), vr(A + 2 * j, 2))
            k.I("v_pk_fma_f32", vr(accq[t], 2), vr(A + 2 * j, 2), vr(A + 2 * j, 2), vr(accq[t], 2))
        k.I("v_add_f32", v(accs[t]), v(accs[t]), v(accs[t] + 1))
        k.I("v_add_f32", v(accs[t] + 1), v(accq[t]), v(accq[t] + 1))
        for e in range(2):
            k.I("v_mov_b32", v(accq[t]), v(accs[t] + e))
            k.I("v_permlane32_swap_b32", v(accs[t] + e), v(accq[t]))
            k.I("v_add_f32", v(accs[t] + e), v(accs[t] + e), v(accq[t]))
    vs = k.valloc()
    k.I("v_lshlrev_b32", v(vs), 3, v(l31))
    k.I("s_lshl_b32", s(st0), s(srh), 9)
    k.I("s_add_u32", s(st0), s(st0), STB)
    k.I("v_add_u32", v(vs), s(st0), v(vs))
    k.I("s_lshl_b32", s(st0), s(sch), 10)
    k.I("v_add_u32", v(t0), s(st0), v(vs))
    for t in range(2):
        k.I("ds_write_b64", v(t0), vr(accs[t], 2), mods=f"offset:{t * 256}")
    k.I("s_waitcnt", "lgkmcnt(0)")
    k.I("s_barrier")
    pub = k.newlabel("nopub")
    k.I("s_cmp_lg_u32", s(sch), 0)
    k.I("s_cbranch_scc1", pub)
    oth = k.valloc(4)
    for t in range(2):
        k.I("ds_read_b64", vr(oth + 2 * t, 2), v(vs), mods=f"offset:{1024 + t * 256}")
    k.I("s_waitcnt", "lgkmcnt(0)")
    for t in range(2):
        k.I("v_pk_add_f32", vr(oth + 2 * t, 2), vr(oth + 2 * t, 2), vr(accs[t], 2))
        k.I("v_mov_b32", v(t1), "0x7fc00000")
        k.I("v_cmp_eq_u32", "vcc", -1, v(oth + 2 * t + 1))
        k.I("v_cndmask_b32", v(oth + 2 * t + 1), v(oth + 2 * t + 1), v(t1), "vcc")
    ve = k.valloc()
    k.I("v_mul_u32_u24", v(ve), 112, v(l31))
    k.I("s_mul_i32", s(soff), s(sst), 32 * 112)
    k.I("s_lshl_b32", s(st0), s(sct), 3)
    k.I("s_add_u32", s(soff), s(soff), s(st0))
    k.I("s_add_u32", s(soff), s(soff), hex(EX_OFF))
    k.I("s_mov_b32", "exec_hi", 0)
    for t in range(2):
        k.I("buffer_store_dwordx2", vr(oth + 2 * t, 2), v(ve), sr(sWS, 4), s(soff), mods=f"offen offset:{t * 32 * 112} sc0 sc1")
    k.I("s_mov_b64", "exec", -1)
    k.L(pub)
    stp.stamp(3)
    v16 = k.valloc()
    k.I("v_lshlrev_b32", v(v16), 4, v(lane))
    P = [k.valloc(8, 4) for _ in range(2)]
    sft = k.salloc()
    k.I("s_lshl_b32", s(sft), s(sct), 1)
    k.I("s_add_u32", s(sft), s(sft), s(sch))
    for t in range(2):
        A = acc[1][t]
        gelu_tile(A, 1, t)
        for j in range(8): k.I("v_cvt_pk_bf16_f32", v(P[t] + j), v(A + 2 * j), v(A + 2 * j + 1))
        k.I("s_add_u32", s(st0), s(sst), t)
        k.I("s_mul_i32", s(soff), s(st0), 56 * 1024)
        k.I("s_lshl_b32", s(st0), s(sft), 11)
        k.I("s_add_u32", s(soff), s(soff), s(st0))
        k.I("s_add_u32", s(soff), s(soff), hex(Z1_OFF))
        k.I("buffer_store_dwordx4", vr(P[t], 4), v(v16), sr(sWS, 4), s(soff), mods="offen")
        k.I("buffer_store_dwordx4", vr(P[t] + 4, 4), v(v16), sr(sWS, 4), s(soff), mods="offen offset:1024")
    stp.stamp(4)
    ex = hs
    k.I("v_mul_u32_u24", v(vh), 112, v(l31))
    k.I("v_lshl_add_u32", v(vh), v(hh), 6, v(vh))
    k.I("s_mul_i32", s(soff), s(sst), 32 * 112)
    k.I("s_add_u32", s(soff), s(soff), hex(EX_OFF))
    scount = k.salloc(); sbad = k.salloc(2)
    k.I("s_mov_b32", s(scount), 0)
    poll = k.newlabel("poll"); pdone = k.newlabel("pdone")
    k.L(poll)
    for t in range(2):
        for i in range(4):
            k.I("buffer_load_dwordx4", vr(ex[t] + 4 * i, 4), v(vh), sr(sWS, 4), s(soff), mods=f"offen offset:{t * 32 * 112 + 16 * i} sc0 sc1")
    k.I("s_waitcnt", "vmcnt(0)")
    k.I("v_cmp_eq_u32", "vcc", 0, v(hh))
    for t in range(2):
        for i in range(12, 16): k.I("v_cndmask_b32", v(ex[t] + i), 0, v(ex[t] + i), "vcc")
    k.I("v_max_u32", v(t0), v(ex[0] + 1), v(ex[0] + 3))
    for t in range(2):
        for i in range(8):
            if t == 0 and i < 2: continue
            k.I("v_max_u32", v(t0), v(t0), v(ex[t] + 2 * i + 1))
    k.I("v_cmp_eq_u32", "vcc", -1, v(t0))
    k.I("s_add_u32", s(scount), s(scount), 1)
    k.I("s_cmp_eq_u64", "vcc", 0)
    k.I("s_cbranch_scc1", pdone)
    k.I("s_cmp_lt_u32", s(scount), 0x40000)
    k.I("s_cbranch_scc0", pdone)
    k.I("s_sleep", 1)
    k.I("s_branch", poll)
    k.L(pdone)
    sc_ = [k.valloc(2) for _ in range(2)]; zm = [k.valloc(2) for _ in range(2)]
    for t in range(2):
        H = ex[t]
        for i in range(4): k.I("v_pk_add_f32", vr(H + 2 * i, 2), vr(H + 2 * i, 2), vr(H + 8 + 2 * i, 2))
        for i in range(2): k.I("v_pk_add_f32", vr(H + 2 * i, 2), vr(H + 2 * i, 2), vr(H + 4 + 2 * i, 2))
        k.I("v_pk_add_f32", vr(H, 2), vr(H, 2), vr(H + 2, 2))
        for e in range(2):
            k.I("v_mov_b32", v(H + 2), v(H + e))
            k.I("v_permlane32_swap_b32", v(H + e), v(H + 2))
            k.I("v_add_f32", v(H + e), v(H + e), v(H + 2))
        k.I("v_mul_f32", v(zm[t]), hex(f32(-1.0 / 896)), v(H))
        k.I("v_mul_f32", v(H + 1), hex(f32(1.0 / 896)), v(H + 1))
        k.I("v_fma_f32", v(H + 1), f"-{v(zm[t])}", v(zm[t]), v(H + 1))
        k.I("v_max_f32", v(H + 1), 0, v(H + 1))
        k.I("v_add_f32", v(H + 1), hex(f32(1e-5)), v(H + 1))
        k.I("v_rsq_f32", v(sc_[t]), v(H + 1))
        k.I("v_mul_f32", v(zm[t]), v(zm[t]), v(sc_[t]))
    TW = 0
    vt = k.valloc(); vtr = k.valloc()
    k.I("v_lshlrev_b32", v(vt), 6, v(l31))
    k.I("v_lshl_add_u32", v(vt), v(hh), 3, v(vt))
    k.I("s_lshl_b32", s(st0), s(swave), 12)
    k.I("v_add_u32", v(vt), s(st0), v(vt))
    for t in range(2):
        A = acc[0][t]
        for j in range(8):
            k.I("v_pk_fma_f32", vr(A + 2 * j, 2), vr(A + 2 * j, 2), vr(sc_[t], 2), vr(zm[t], 2), mods="op_sel_hi:[1,0,0]")
        for j in range(8): k.I("v_cvt_pk_bf16_f32", v(P[t] + j), v(A + 2 * j), v(A + 2 * j + 1))
        for q in range(4):
            k.I("ds_write_b64", v(vt), vr(P[t] + 2 * q, 2), mods=f"offset:{t * 2048 + 16 * q}")
    k.I("v_bfe_u32", v(t0), v(lane), 2, 2)
    k.I("v_lshl_add_u32", v(t0), v(hh), 3, v(t0))
    k.I("v_lshlrev_b32", v(vtr), 6, v(t0))
    k.I("v_bfe_u32", v(t0), v(lane), 4, 1)
    k.I("v_lshl_add_u32", v(vtr), v(t0), 5, v(vtr))
    k.I("v_and_b32", v(t0), 3, v(lane))
    k.I("v_lshl_add_u32", v(vtr), v(t0), 3, v(vtr))
    k.I("s_lshl_b32", s(st0), s(swave), 12)
    k.I("v_add_u32", v(vtr), s(st0), v(vtr))
    k.I("s_waitcnt", "lgkmcnt(0)")
    Z = cw[0]
    for ks in range(4):
        for beta in range(2):
            k.I("ds_read_b64_tr_b16", vr(Z + 4 * ks + 2 * beta, 2), v(vtr), mods=f"offset:{(16 * ks + 4 * beta) * 64}")
    k.I("s_mul_i32", s(soff), s(sft), ZS)
    k.I("s_lshr_b32", s(st0), s(sst), 5)
    k.I("s_mul_i32", s(st0), s(st0), ZK)
    k.I("s_add_u32", s(soff), s(soff), s(st0))
    k.I("s_and_b32", s(st0), s(sst), 31)
    k.I("s_lshl_b32", s(st0), s(st0), 11)
    k.I("s_add_u32", s(soff), s(soff), s(st0))
    k.I("s_add_u32", s(soff), s(soff), hex(Z2_OFF))
    for ks in range(4):
        k.I("s_waitcnt", f"lgkmcnt({6 - 2 * ks})")
        k.I("buffer_store_dwordx4", vr(Z + 4 * ks, 4), v(v16), sr(sWS, 4), s(soff), mods=f"offen offset:{ks * 1024}")
    stp.stamp(5)
    k.I("s_endpgm")
    k.L(pfrole)
    pp = k.salloc(2); sP = k.salloc(4); vT = k.valloc(); vd = k.valloc(4)
    k.I("s_load_dwordx2", sr(pp, 2), "s[0:1]", 40)
    k.I("s_sub_u32", s(st0), s(sidx), 28)
    k.I("s_lshl_b32", s(st0), s(st0), 9)
    k.I("v_add_u32", v(vT), s(st0), "v0")
    k.I("s_lshr_b32", s(st0), s(sj), 1)
    k.I("s_lshl_b32", s(st0), s(st0), 21)
    k.I("s_and_b32", s(st1), s(sj), 1)
    k.I("s_lshl_b32", s(st1), s(st1), 11)
    k.I("s_add_u32", s(st0), s(st0), s(st1))
    k.I("s_waitcnt", "lgkmcnt(0)")
    srd(k, sP, pp, 2048 * 4096)
    for i in range(4):
        k.I("v_add_u32", v(t0), 2048 * i, v(vT))
        k.I("v_lshrrev_b32", v(t1), 4, v(t0))
        k.I("v_lshlrev_b32", v(t1), 12, v(t1))
        k.I("v_and_b32", v(t2), 15, v(t0))
        k.I("v_lshl_add_u32", v(t1), v(t2), 7, v(t1))
        k.I("buffer_load_dword", v(vd + i), v(t1), sr(sP, 4), s(st0), mods="offen")
    k.L(R["done"])
    k.I("s_endpgm")
    k.lds = lds; k.threads = 512; k.grid = 256
    return k


def gen_k4b(Stamper):
    k = Kernel("k4_win_kernel")
    HREG = 0; WRING = 114688; WSL = 8192; NS = 5
    CWT = WRING + NS * WSL
    lds = CWT + 512
    R = common_start(k, 256)
    swave, st0, st1, soff, lane, t0, t1, t2 = (R[x] for x in ("swave", "st0", "st1", "soff", "lane", "t0", "t1", "t2"))
    pWin = k.salloc(2); pWS = k.salloc(2)
    k.I("s_load_dwordx2", sr(pWin, 2), "s[0:1]", 32)
    k.I("s_load_dwordx2", sr(pWS, 2), "s[0:1]", 80)
    sWS = k.salloc(4); sWin = k.salloc(4)
    sj = k.salloc(); sidx = k.salloc(); srb = k.salloc(); sct = k.salloc(); sw3 = k.salloc()
    k.I("s_and_b32", s(sj), "s2", 7)
    k.I("s_lshr_b32", s(sidx), "s2", 3)
    k.I("s_and_b32", s(sw3), s(swave), 3)
    pfrole = k.newlabel("pfrole")
    k.I("s_cmp_ge_u32", s(sidx), 28)
    k.I("s_cbranch_scc1", pfrole)
    k.I("s_mul_i32", s(st0), s(sidx), 37)
    k.I("s_lshr_b32", s(st0), s(st0), 8)
    k.I("s_mul_i32", s(st1), s(st0), 7)
    k.I("s_sub_u32", s(sct), s(sidx), s(st1))
    k.I("s_and_b32", s(st1), s(sj), 1)
    k.I("s_mul_i32", s(st1), s(st1), 7)
    k.I("s_add_u32", s(sct), s(sct), s(st1))
    k.I("s_lshr_b32", s(srb), s(sj), 1)
    k.I("s_lshl_b32", s(srb), s(srb), 2)
    k.I("s_add_u32", s(srb), s(srb), s(st0))
    stp = Stamper(k, 3, sWS, swave)
    sst = k.salloc()
    k.I("s_lshl_b32", s(sst), s(srb), 2)
    k.I("s_add_u32", s(sst), s(sst), s(sw3))
    comp = k.newlabel("compute")
    k.I("s_cmp_lt_u32", s(swave), 4)
    k.I("s_cbranch_scc1", comp)
    vsave = k.vnext
    if os.environ.get("PRIO_L"): k.I("s_setprio", int(os.environ["PRIO_L"]))
    v16 = k.valloc(); vWo = k.valloc()
    k.I("v_lshlrev_b32", v(v16), 4, v(lane))
    k.I("v_lshrrev_b32", v(t0), 3, v(lane))
    k.I("v_mul_u32_u24", v(t0), 3584, v(t0))
    k.I("v_bfe_u32", v(t1), v(lane), 4, 1)
    k.I("v_lshlrev_b32", v(t1), 2, v(t1))
    k.I("v_and_b32", v(t2), 7, v(lane))
    k.I("v_xor_b32", v(t1), v(t1), v(t2))
    k.I("v_lshl_add_u32", v(vWo), v(t1), 4, v(t0))
    sHb = k.salloc(); sWb = k.salloc(); smH = k.salloc(); smW = k.salloc()
    k.I("s_mul_i32", s(sHb), s(sst), 28 * 1024)
    k.I("s_add_u32", s(sHb), s(sHb), hex(H_OFF))
    k.I("s_mul_i32", s(smH), s(sw3), 28 * 1024)
    k.I("s_mul_i32", s(sWb), s(sw3), 16 * 3584)
    k.I("s_lshl_b32", s(st1), s(sct), 7)
    k.I("s_add_u32", s(sWb), s(sWb), s(st1))
    k.I("s_lshl_b32", s(smW), s(sw3), 11)
    k.I("s_add_u32", s(smW), s(smW), WRING)
    srot = k.salloc(); scp = k.salloc(); sa1 = k.salloc(); sa2 = k.salloc()
    k.I("s_lshl_b32", s(st0), s(srb), 1)
    k.I("s_add_u32", s(st0), s(st0), s(sct))
    k.I("s_mul_i32", s(st1), s(st0), 37)
    k.I("s_lshr_b32", s(st1), s(st1), 8)
    k.I("s_mul_i32", s(st1), s(st1), 7)
    k.I("s_sub_u32", s(srot), s(st0), s(st1))
    if not rot_on(4): k.I("s_mov_b32", s(srot), 0)
    def issue(c):
        cc = c % 7
        rot_index(k, scp, srot, cc, 7)
        if c < 7:
            k.I("s_lshl_b32", s(sa1), s(scp), 12)
            k.I("s_add_u32", s(sa1), s(sa1), s(sHb))
            for i in range(4):
                k.I("s_add_u32", s(soff), s(sa1), hex(i * 1024))
                k.I("s_add_u32", "m0", s(smH), hex(HREG + (4 * c + i) * 1024))
                k.vm(("S", c), "buffer_load_dwordx4", v(v16), sr(sWS, 4), s(soff), mods="offen lds")
        col = 1792 if c < 7 else 0
        k.I("s_mul_i32", s(sa2), s(scp), 64 * 3584)
        k.I("s_add_u32", s(sa2), s(sa2), s(sWb))
        for i in range(2):
            k.I("s_add_u32", s(soff), s(sa2), hex(8 * i * 3584 + col))
            k.I("s_add_u32", "m0", s(smW), hex((c % NS) * WSL + i * 1024))
            k.vm(("S", c), "buffer_load_dwordx4", v(vWo), sr(sWin, 4), s(soff), mods="offen lds")
    nocw = k.newlabel("nocw")
    k.I("s_waitcnt", "lgkmcnt(0)")
    srd(k, sWS, pWS, WS_SIZE)
    srd(k, sWin, pWin, 448 * 3584)
    issue(0)
    k.I("s_cmp_ge_u32", s(sw3), 2)
    k.I("s_cbranch_scc1", nocw)
    k.I("v_lshlrev_b32", v(t0), 2, v(lane))
    k.I("s_lshl_b32", s(st0), s(sct), 8)
    k.I("s_xor_b32", s(st1), s(sw3), 1)
    k.I("s_mul_i32", s(st1), s(st1), 896 * 4)
    k.I("s_add_u32", s(st0), s(st0), s(st1))
    k.I("s_add_u32", s(soff), s(st0), hex(CW_OFF))
    k.I("s_lshl_b32", s(st1), s(sw3), 8)
    k.I("s_add_u32", "m0", s(st1), CWT)
    k.I("buffer_load_dword", v(t0), sr(sWS, 4), s(soff), mods="offen lds")
    k.L(nocw)
    k.vmq.append(("S", 1))
    issue(1); issue(2)
    NST = 14
    for c in range(NST):
        if c == 0:
            k.I("s_waitcnt", "vmcnt(12)")
            k.vmq = k.vmq[6:]
        else:
            k.wait_vm(("S", c))
        k.I("s_barrier")
        if c == 0: issue(3); issue(4)
        elif c >= 2 and c + 3 < NST: issue(c + 3)
    k.I("s_endpgm")
    k.L(comp)
    if os.environ.get("PRIO_C"): k.I("s_setprio", int(os.environ["PRIO_C"]))
    k.vnext = vsave; k.vmq = []; k.lgq = []
    l31 = k.valloc(); hh = k.valloc()
    k.I("v_and_b32", v(l31), 31, v(lane))
    k.I("v_lshrrev_b32", v(hh), 5, v(lane))
    hs = k.valloc(16, 4); vh = k.valloc()
    k.I("v_lshlrev_b32", v(vh), 3, v(lane))
    k.I("s_mul_i32", s(soff), s(sst), 32 * 112)
    sEX = k.salloc()
    k.I("s_add_u32", s(sEX), s(soff), hex(EX_OFF))
    k.I("s_add_u32", s(soff), s(soff), hex(HS_OFF))
    k.I("s_waitcnt", "lgkmcnt(0)")
    srd(k, sWS, pWS, WS_SIZE)
    for i in range(7):
        k.vm("hs", "buffer_load_dwordx2", vr(hs + 2 * i, 2), v(vh), sr(sWS, 4), s(soff), mods=f"offen offset:{512 * i}")
    code_prefetch(k, "k5_sp_kernel", sidx, st0)
    stp.stamp(0)
    aH = k.valloc(); v16 = k.valloc(); vW = [k.valloc(), k.valloc()]
    k.I("v_lshlrev_b32", v(v16), 4, v(lane))
    k.I("s_mul_i32", s(st0), s(swave), 28 * 1024)
    k.I("v_add_u32", v(aH), s(st0), v(v16))
    k.I("v_bfe_u32", v(t0), v(lane), 2, 2)
    k.I("v_lshl_add_u32", v(t0), v(hh), 2, v(t0))
    k.I("v_lshlrev_b32", v(t0), 7, v(t0))
    k.I("v_add_u32", v(t0), WRING, v(t0))
    k.I("v_bfe_u32", v(t1), v(lane), 4, 1)
    k.I("v_lshlrev_b32", v(t1), 1, v(t1))
    k.I("v_bfe_u32", v(t2), v(lane), 1, 1)
    k.I("v_add_u32", v(t1), v(t1), v(t2))
    k.I("v_bfe_u32", v(t2), v(lane), 3, 1)
    k.I("v_lshlrev_b32", v(t2), 2, v(t2))
    for n2 in range(2):
        k.I("v_add_u32", v(vW[n2]), 4 * n2, v(t1))
        k.I("v_xor_b32", v(vW[n2]), v(vW[n2]), v(t2))
        k.I("v_lshl_add_u32", v(vW[n2]), v(vW[n2]), 4, v(t0))
    k.I("v_and_b32", v(t1), 1, v(lane))
    for n2 in range(2): k.I("v_lshl_add_u32", v(vW[n2]), v(t1), 3, v(vW[n2]))
    rr = k.valloc(2); nm = k.valloc(2); c0r = k.valloc(2); c1r = k.valloc(2)
    k.wait_vm("hs")
    H = hs
    for i in range(3): k.I("v_pk_add_f32", vr(H + 2 * i, 2), vr(H + 2 * i, 2), vr(H + 6 + 2 * i, 2))
    k.I("v_pk_add_f32", vr(H, 2), vr(H, 2), vr(H + 12, 2))
    k.I("v_pk_add_f32", vr(H + 2, 2), vr(H + 2, 2), vr(H + 4, 2))
    k.I("v_pk_add_f32", vr(H, 2), vr(H, 2), vr(H + 2, 2))
    for e in range(2):
        k.I("v_mov_b32", v(H + 2), v(H + e))
        k.I("v_permlane32_swap_b32", v(H + e), v(H + 2))
        k.I("v_add_f32", v(H + e), v(H + e), v(H + 2))
    k.I("v_mul_f32", v(nm), hex(f32(-1.0 / 448)), v(H))
    k.I("v_mul_f32", v(H + 1), hex(f32(1.0 / 448)), v(H + 1))
    k.I("v_fma_f32", v(H + 1), f"-{v(nm)}", v(nm), v(H + 1))
    k.I("v_max_f32", v(H + 1), 0, v(H + 1))
    k.I("v_add_f32", v(H + 1), hex(f32(1e-5)), v(H + 1))
    k.I("v_rsq_f32", v(rr), v(H + 1))
    k.I("v_mul_f32", v(c0r), hex(f32(GELU_C0)), v(rr))
    k.I("v_mul_f32", v(c1r), v(rr), v(rr))
    k.I("v_mul_f32", v(c1r), v(c1r), v(rr))
    k.I("v_mul_f32", v(c1r), hex(f32(GELU_C1)), v(c1r))
    norh = k.newlabel("norh")
    k.I("s_cmp_lg_u32", s(sct), 0)
    k.I("s_cbranch_scc1", norh)
    k.I("v_lshlrev_b32", v(t0), 2, v(l31))
    k.I("s_lshl_b32", s(st0), s(sst), 7)
    k.I("s_add_u32", s(st0), s(st0), hex(RH_OFF))
    k.I("buffer_store_dword", v(rr), v(t0), sr(sWS, 4), s(st0), mods="offen")
    k.L(norh)
    acc = [[k.valloc(16, 4) for _ in range(2)] for _ in range(2)]
    cwr = hs
    tp = [k.valloc(2) for _ in range(4)]
    NB = 3
    hf = [k.valloc(4) for _ in range(NB)]
    wf = [[k.valloc(4) for _ in range(2)] for _ in range(NB)]
    def rl(g):
        ks = g % 28; c = g // 4; j = g % 4
        b = g % NB
        out = [lambda: k.lg(("f", g), "ds_read_b128", vr(hf[b], 4), v(aH), mods=f"offset:{ks * 1024}")]
        for n2 in range(2):
            for beta in range(2):
                o = (c % NS) * WSL + (16 * j + 8 * beta) * 128
                out.append(lambda o=o, n2=n2, beta=beta: k.lg(("f", g), "ds_read_b64_tr_b16", vr(wf[b][n2] + 2 * beta, 2), v(vW[n2]), mods=f"offset:{o}"))
        return out
    vcw = k.valloc()
    k.I("v_lshlrev_b32", v(vcw), 4, v(hh))
    k.I("v_add_u32", v(vcw), CWT, v(vcw))
    def gelu_tile(A, z, n2):
        for q in range(4):
            k.lg("cw", "ds_read_b128", vr(cwr + 4 * q, 4), v(vcw), mods=f"offset:{z * 256 + n2 * 128 + 32 * q}")
        k.wait_lg("cw")
        for j in range(8):
            k.I("v_pk_fma_f32", vr(A + 2 * j, 2), vr(cwr + 2 * j, 2), vr(nm, 2), vr(A + 2 * j, 2), mods="op_sel_hi:[1,0,1]")
        for j0 in range(0, 8, 4):
            for j in range(j0, j0 + 4): k.I("v_pk_mul_f32", vr(tp[j - j0], 2), vr(A + 2 * j, 2), vr(A + 2 * j, 2))
            for j in range(j0, j0 + 4): k.I("v_pk_fma_f32", vr(tp[j - j0], 2), vr(tp[j - j0], 2), vr(c1r, 2), vr(c0r, 2), mods="op_sel_hi:[1,0,0]")
            for j in range(j0, j0 + 4): k.I("v_pk_mul_f32", vr(tp[j - j0], 2), vr(tp[j - j0], 2), vr(A + 2 * j, 2))
            for j in range(j0, j0 + 4):
                k.I("v_exp_f32", v(tp[j - j0]), v(tp[j - j0])); k.I("v_exp_f32", v(tp[j - j0] + 1), v(tp[j - j0] + 1))
            for j in range(j0, j0 + 4): k.I("v_pk_add_f32", vr(tp[j - j0], 2), vr(tp[j - j0], 2), "1.0", mods="op_sel_hi:[1,0]")
            for j in range(j0, j0 + 4):
                k.I("v_rcp_f32", v(tp[j - j0]), v(tp[j - j0])); k.I("v_rcp_f32", v(tp[j - j0] + 1), v(tp[j - j0] + 1))
            for j in range(j0, j0 + 4): k.I("v_pk_mul_f32", vr(A + 2 * j, 2), vr(A + 2 * j, 2), vr(tp[j - j0], 2))
    def mainloop(z):
        for g in range(28 * z, 28 * z + 28):
            ks = g % 28; j = g % 4; c = g // 4
            b = g % NB
            k.wait_lg(("f", g))
            mf = [lambda n2=n2: k.I("v_mfma_f32_32x32x16_bf16", vr(acc[z][n2], 16), vr(wf[b][n2], 4), vr(hf[b], 4), 0 if ks == 0 else vr(acc[z][n2], 16)) for n2 in range(2)]
            nxt = g + 2
            fl = rl(nxt) if nxt < 28 * z + 28 else []
            if j == 2 and c + 1 < NST: k.I("s_barrier")
            interleave(k, mf, fl)
    k.I("s_barrier")
    stp.stamp(1)
    for f in rl(0) + rl(1): f()
    mainloop(0)
    for f in rl(28) + rl(29): f()
    stp.stamp(2)
    accs = k.valloc(2); accq = k.valloc(2)
    for n2 in range(2):
        A = acc[0][n2]
        gelu_tile(A, 0, n2)
        for j in range(8):
            k.I("v_pk_mul_f32", vr(A + 2 * j, 2), vr(A + 2 * j, 2), vr(rr, 2), mods="op_sel_hi:[1,0]")
        for j in range(8):
            if n2 == 0 and j == 0:
                k.I("v_mov_b32", v(accs), v(A)); k.I("v_mov_b32", v(accs + 1), v(A + 1))
                k.I("v_pk_mul_f32", vr(accq, 2), vr(A, 2), vr(A, 2))
            else:
                k.I("v_pk_add_f32", vr(accs, 2), vr(accs, 2), vr(A + 2 * j, 2))
                k.I("v_pk_fma_f32", vr(accq, 2), vr(A + 2 * j, 2), vr(A + 2 * j, 2), vr(accq, 2))
    k.I("v_add_f32", v(accs), v(accs), v(accs + 1))
    k.I("v_add_f32", v(accs + 1), v(accq), v(accq + 1))
    for e in range(2):
        k.I("v_mov_b32", v(accq), v(accs + e))
        k.I("v_permlane32_swap_b32", v(accs + e), v(accq))
        k.I("v_add_f32", v(accs + e), v(accs + e), v(accq))
    k.I("v_mov_b32", v(t1), "0x7fc00000")
    k.I("v_cmp_eq_u32", "vcc", -1, v(accs + 1))
    k.I("v_cndmask_b32", v(accs + 1), v(accs + 1), v(t1), "vcc")
    ve = k.valloc()
    k.I("v_lshlrev_b32", v(ve), 3, v(l31))
    k.I("s_lshl_b32", s(st0), s(sct), 8)
    k.I("s_add_u32", s(soff), s(sEX), s(st0))
    k.I("s_mov_b32", "exec_hi", 0)
    k.I("buffer_store_dwordx2", vr(accs, 2), v(ve), sr(sWS, 4), s(soff), mods="offen sc0 sc1")
    k.I("s_mov_b64", "exec", -1)
    stp.stamp(3)
    mainloop(1)
    ex = k.valloc(16, 4)
    for i in range(7):
        k.I("buffer_load_dwordx2", vr(ex + 2 * i, 2), v(vh), sr(sWS, 4), s(sEX), mods=f"offen offset:{512 * i} sc0 sc1")
    P = [k.valloc(8, 4) for _ in range(2)]
    sft = k.salloc()
    k.I("s_lshl_b32", s(sft), s(sct), 1)
    for n2 in range(2):
        A = acc[1][n2]
        gelu_tile(A, 1, n2)
        for j in range(8): k.I("v_cvt_pk_bf16_f32", v(P[n2] + j), v(A + 2 * j), v(A + 2 * j + 1))
        k.I("s_mul_i32", s(soff), s(sst), 56 * 1024)
        k.I("s_add_u32", s(st0), s(sft), n2)
        k.I("s_lshl_b32", s(st0), s(st0), 11)
        k.I("s_add_u32", s(soff), s(soff), s(st0))
        k.I("s_add_u32", s(soff), s(soff), hex(Z1_OFF))
        k.I("buffer_store_dwordx4", vr(P[n2], 4), v(v16), sr(sWS, 4), s(soff), mods="offen")
        k.I("buffer_store_dwordx4", vr(P[n2] + 4, 4), v(v16), sr(sWS, 4), s(soff), mods="offen offset:1024")
    stp.stamp(4)
    scount = k.salloc()
    k.I("s_mov_b32", s(scount), 0)
    poll = k.newlabel("poll"); pdone = k.newlabel("pdone"); pchk = k.newlabel("pchk")
    k.I("s_waitcnt", "vmcnt(4)")
    k.I("s_branch", pchk)
    k.L(poll)
    for i in range(7):
        k.I("buffer_load_dwordx2", vr(ex + 2 * i, 2), v(vh), sr(sWS, 4), s(sEX), mods=f"offen offset:{512 * i} sc0 sc1")
    k.I("s_waitcnt", "vmcnt(0)")
    k.L(pchk)
    k.I("v_max_u32", v(t0), v(ex + 1), v(ex + 3))
    for i in range(2, 7): k.I("v_max_u32", v(t0), v(t0), v(ex + 2 * i + 1))
    k.I("v_cmp_eq_u32", "vcc", -1, v(t0))
    k.I("s_add_u32", s(scount), s(scount), 1)
    k.I("s_cmp_eq_u64", "vcc", 0)
    k.I("s_cbranch_scc1", pdone)
    k.I("s_cmp_lt_u32", s(scount), 0x40000)
    k.I("s_cbranch_scc0", pdone)
    k.I("s_sleep", 1)
    k.I("s_branch", poll)
    k.L(pdone)
    k.vmq = []
    sc_ = k.valloc(2); zm = k.valloc(2)
    H = ex
    for i in range(3): k.I("v_pk_add_f32", vr(H + 2 * i, 2), vr(H + 2 * i, 2), vr(H + 6 + 2 * i, 2))
    k.I("v_pk_add_f32", vr(H, 2), vr(H, 2), vr(H + 12, 2))
    k.I("v_pk_add_f32", vr(H + 2, 2), vr(H + 2, 2), vr(H + 4, 2))
    k.I("v_pk_add_f32", vr(H, 2), vr(H, 2), vr(H + 2, 2))
    for e in range(2):
        k.I("v_mov_b32", v(H + 2), v(H + e))
        k.I("v_permlane32_swap_b32", v(H + e), v(H + 2))
        k.I("v_add_f32", v(H + e), v(H + e), v(H + 2))
    k.I("v_mul_f32", v(zm), hex(f32(-1.0 / 896)), v(H))
    k.I("v_mul_f32", v(H + 1), hex(f32(1.0 / 896)), v(H + 1))
    k.I("v_fma_f32", v(H + 1), f"-{v(zm)}", v(zm), v(H + 1))
    k.I("v_max_f32", v(H + 1), 0, v(H + 1))
    k.I("v_add_f32", v(H + 1), hex(f32(1e-5)), v(H + 1))
    k.I("v_rsq_f32", v(sc_), v(H + 1))
    k.I("v_mul_f32", v(zm), v(zm), v(sc_))
    vt = k.valloc(); vtr = k.valloc()
    k.I("s_mul_i32", s(st0), s(swave), 28 * 1024)
    k.I("v_mul_u32_u24", v(vt), 136, v(l31))
    k.I("v_lshl_add_u32", v(vt), v(hh), 3, v(vt))
    k.I("v_add_u32", v(vt), s(st0), v(vt))
    for n2 in range(2):
        A = acc[0][n2]
        for j in range(8):
            k.I("v_pk_fma_f32", vr(A + 2 * j, 2), vr(A + 2 * j, 2), vr(sc_, 2), vr(zm, 2), mods="op_sel_hi:[1,0,0]")
        for j in range(8): k.I("v_cvt_pk_bf16_f32", v(P[n2] + j), v(A + 2 * j), v(A + 2 * j + 1))
        for q in range(4):
            k.I("ds_write_b64", v(vt), vr(P[n2] + 2 * q, 2), mods=f"offset:{64 * n2 + 16 * q}")
    if K5X:
        k.I("v_bfe_u32", v(t0), v(lane), 2, 2)
        k.I("v_lshrrev_b32", v(t1), 4, v(lane))
        k.I("v_lshl_add_u32", v(t0), v(t1), 3, v(t0))
        k.I("v_mul_u32_u24", v(vtr), 136, v(t0))
        k.I("v_and_b32", v(t0), 3, v(lane))
        k.I("v_lshl_add_u32", v(vtr), v(t0), 3, v(vtr))
        k.I("v_add_u32", v(vtr), s(st0), v(vtr))
        k.I("s_waitcnt", "lgkmcnt(0)")
        Z = acc[1][0]
        for ft_ in range(4):
            for beta in range(2):
                k.I("ds_read_b64_tr_b16", vr(Z + 4 * ft_ + 2 * beta, 2), v(vtr), mods=f"offset:{4 * beta * 136 + 32 * ft_}")
        k.I("s_lshr_b32", s(st0), s(sst), 5)
        k.I("s_mul_i32", s(st0), s(st0), ZK16)
        k.I("s_and_b32", s(st1), s(sst), 31)
        k.I("s_lshl_b32", s(st1), s(st1), 10)
        k.I("s_add_u32", s(st0), s(st0), s(st1))
        k.I("s_add_u32", s(st0), s(st0), hex(Z2_OFF))
        k.I("s_lshl_b32", s(st1), s(sct), 2)
        k.I("s_mul_i32", s(st1), s(st1), ZS16)
        k.I("s_add_u32", s(st0), s(st0), s(st1))
        for ft_ in range(4):
            k.I("s_add_u32", s(soff), s(st0), hex(ft_ * ZS16))
            k.I("s_waitcnt", f"lgkmcnt({6 - 2 * ft_})")
            k.I("buffer_store_dwordx4", vr(Z + 4 * ft_, 4), v(v16), sr(sWS, 4), s(soff), mods="offen")
    else:
        k.I("v_bfe_u32", v(t0), v(lane), 2, 2)
        k.I("v_lshl_add_u32", v(t0), v(hh), 3, v(t0))
        k.I("v_mul_u32_u24", v(vtr), 136, v(t0))
        k.I("v_bfe_u32", v(t0), v(lane), 4, 1)
        k.I("v_lshl_add_u32", v(vtr), v(t0), 5, v(vtr))
        k.I("v_and_b32", v(t0), 3, v(lane))
        k.I("v_lshl_add_u32", v(vtr), v(t0), 3, v(vtr))
        k.I("v_add_u32", v(vtr), s(st0), v(vtr))
        k.I("s_waitcnt", "lgkmcnt(0)")
        Z = acc[1][0]
        for n2 in range(2):
            for ks in range(2):
                for beta in range(2):
                    k.I("ds_read_b64_tr_b16", vr(Z + 8 * n2 + 4 * ks + 2 * beta, 2), v(vtr), mods=f"offset:{(16 * ks + 4 * beta) * 136 + 64 * n2}")
        k.I("s_lshr_b32", s(st0), s(sst), 5)
        k.I("s_mul_i32", s(st0), s(st0), ZK)
        k.I("s_and_b32", s(st1), s(sst), 31)
        k.I("s_lshl_b32", s(st1), s(st1), 11)
        k.I("s_add_u32", s(st0), s(st0), s(st1))
        k.I("s_add_u32", s(st0), s(st0), hex(Z2_OFF))
        for n2 in range(2):
            k.I("s_add_u32", s(st1), s(sft), n2)
            k.I("s_mul_i32", s(soff), s(st1), ZS)
            k.I("s_add_u32", s(soff), s(soff), s(st0))
            for ks in range(2):
                k.I("s_waitcnt", f"lgkmcnt({6 - 4 * n2 - 2 * ks})")
                k.I("buffer_store_dwordx4", vr(Z + 8 * n2 + 4 * ks, 4), v(v16), sr(sWS, 4), s(soff), mods=f"offen offset:{ks * 1024}")
    stp.stamp(5)
    k.I("s_endpgm")
    k.L(pfrole)
    if os.environ.get('K4PF', 'sparse') == 'dense':
        pp = k.salloc(2); sP = k.salloc(4); vT = k.valloc(); vd = k.valloc(32, 4)
        k.I("s_load_dwordx2", sr(pp, 2), "s[0:1]", 40)
        k.I("s_sub_u32", s(st0), s(sidx), 28)
        k.I("s_lshl_b32", s(st0), s(st0), 3)
        k.I("s_add_u32", s(st0), s(st0), s(swave))
        k.I("s_lshl_b32", s(st0), s(st0), 16)
        k.I("s_lshr_b32", s(st1), s(sj), 1)
        k.I("s_lshl_b32", s(st1), s(st1), 21)
        k.I("s_add_u32", s(st0), s(st0), s(st1))
        k.I("s_and_b32", s(st1), s(sj), 1)
        k.I("s_lshl_b32", s(st1), s(st1), 11)
        k.I("s_add_u32", s(st0), s(st0), s(st1))
        k.I("v_lshlrev_b32", v(vT), 4, v(lane))
        k.I("s_waitcnt", "lgkmcnt(0)")
        srd(k, sP, pp, 2048 * 4096)
        for i in range(16):
            k.I("s_add_u32", s(soff), s(st0), hex(i * 4096))
            for hf_ in range(2):
                k.I("buffer_load_dwordx4", vr(vd + 4 * ((2 * i + hf_) % 8), 4), v(vT), sr(sP, 4), s(soff), mods=f"offen offset:{hf_ * 1024}")
    else:
        pp = k.salloc(2); sP = k.salloc(4); vT = k.valloc(); vd = k.valloc(4)
        k.I("s_load_dwordx2", sr(pp, 2), "s[0:1]", 40)
        k.I("s_sub_u32", s(st0), s(sidx), 28)
        k.I("s_lshl_b32", s(st0), s(st0), 9)
        k.I("v_add_u32", v(vT), s(st0), "v0")
        k.I("s_lshr_b32", s(st0), s(sj), 1)
        k.I("s_lshl_b32", s(st0), s(st0), 21)
        k.I("s_and_b32", s(st1), s(sj), 1)
        k.I("s_lshl_b32", s(st1), s(st1), 11)
        k.I("s_add_u32", s(st0), s(st0), s(st1))
        k.I("s_waitcnt", "lgkmcnt(0)")
        srd(k, sP, pp, 2048 * 4096)
        for i in range(4):
            k.I("v_add_u32", v(t0), 2048 * i, v(vT))
            k.I("v_lshrrev_b32", v(t1), 4, v(t0))
            k.I("v_lshlrev_b32", v(t1), 12, v(t1))
            k.I("v_and_b32", v(t2), 15, v(t0))
            k.I("v_lshl_add_u32", v(t1), v(t2), 7, v(t1))
            k.I("buffer_load_dword", v(vd + i), v(t1), sr(sP, 4), s(st0), mods="offen")
    k.L(R["done"])
    k.I("s_endpgm")
    k.lds = lds; k.threads = 512; k.grid = 256
    return k

def gen_k4c(Stamper):
    k = Kernel("k4_win_kernel")
    HREG = 0; WRING = 114688; WSL = 8192; NS = 5
    CWT = WRING + NS * WSL
    lds = CWT + 512
    R = common_start(k, 256)
    swave, st0, st1, soff, lane, t0, t1, t2 = (R[x] for x in ("swave", "st0", "st1", "soff", "lane", "t0", "t1", "t2"))
    pWin = k.salloc(2); pWS = k.salloc(2)
    k.I("s_load_dwordx2", sr(pWin, 2), "s[0:1]", 32)
    k.I("s_load_dwordx2", sr(pWS, 2), "s[0:1]", 80)
    sWS = k.salloc(4); sWin = k.salloc(4)
    sj = k.salloc(); sidx = k.salloc(); srb = k.salloc(); sct = k.salloc(); sw3 = k.salloc()
    k.I("s_and_b32", s(sj), "s2", 7)
    k.I("s_lshr_b32", s(sidx), "s2", 3)
    k.I("s_and_b32", s(sw3), s(swave), 3)
    pfrole = k.newlabel("pfrole")
    k.I("s_cmp_ge_u32", s(sidx), 28)
    k.I("s_cbranch_scc1", pfrole)
    k.I("s_mul_i32", s(st0), s(sidx), 37)
    k.I("s_lshr_b32", s(st0), s(st0), 8)
    k.I("s_mul_i32", s(st1), s(st0), 7)
    k.I("s_sub_u32", s(sct), s(sidx), s(st1))
    k.I("s_and_b32", s(st1), s(sj), 1)
    k.I("s_mul_i32", s(st1), s(st1), 7)
    k.I("s_add_u32", s(sct), s(sct), s(st1))
    k.I("s_lshr_b32", s(srb), s(sj), 1)
    k.I("s_lshl_b32", s(srb), s(srb), 2)
    k.I("s_add_u32", s(srb), s(srb), s(st0))
    stp = Stamper(k, 3, sWS, swave)
    sst = k.salloc()
    k.I("s_lshl_b32", s(sst), s(srb), 2)
    k.I("s_add_u32", s(sst), s(sst), s(sw3))
    comp = k.newlabel("compute")
    k.I("s_cmp_lt_u32", s(swave), 8)
    k.I("s_cbranch_scc1", comp)
    vsave = k.vnext
    if os.environ.get("PRIO_L"): k.I("s_setprio", int(os.environ["PRIO_L"]))
    v16 = k.valloc(); vWo = k.valloc()
    k.I("v_lshlrev_b32", v(v16), 4, v(lane))
    k.I("v_lshrrev_b32", v(t0), 3, v(lane))
    k.I("v_mul_u32_u24", v(t0), 3584, v(t0))
    k.I("v_bfe_u32", v(t1), v(lane), 4, 1)
    k.I("v_lshlrev_b32", v(t1), 2, v(t1))
    k.I("v_and_b32", v(t2), 7, v(lane))
    k.I("v_xor_b32", v(t1), v(t1), v(t2))
    k.I("v_lshl_add_u32", v(vWo), v(t1), 4, v(t0))
    sHb = k.salloc(); sWb = k.salloc(); smH = k.salloc(); smW = k.salloc()
    k.I("s_mul_i32", s(sHb), s(sst), 28 * 1024)
    k.I("s_add_u32", s(sHb), s(sHb), hex(H_OFF))
    k.I("s_mul_i32", s(smH), s(sw3), 28 * 1024)
    k.I("s_mul_i32", s(sWb), s(sw3), 16 * 3584)
    k.I("s_lshl_b32", s(st1), s(sct), 7)
    k.I("s_add_u32", s(sWb), s(sWb), s(st1))
    k.I("s_lshl_b32", s(smW), s(sw3), 11)
    k.I("s_add_u32", s(smW), s(smW), WRING)
    srot = k.salloc(); scp = k.salloc(); sa1 = k.salloc(); sa2 = k.salloc()
    k.I("s_lshl_b32", s(st0), s(srb), 1)
    k.I("s_add_u32", s(st0), s(st0), s(sct))
    k.I("s_mul_i32", s(st1), s(st0), 37)
    k.I("s_lshr_b32", s(st1), s(st1), 8)
    k.I("s_mul_i32", s(st1), s(st1), 7)
    k.I("s_sub_u32", s(srot), s(st0), s(st1))
    if not rot_on(4): k.I("s_mov_b32", s(srot), 0)
    def issue(c):
        cc = c % 7
        rot_index(k, scp, srot, cc, 7)
        if c < 7:
            k.I("s_lshl_b32", s(sa1), s(scp), 12)
            k.I("s_add_u32", s(sa1), s(sa1), s(sHb))
            for i in range(4):
                k.I("s_add_u32", s(soff), s(sa1), hex(i * 1024))
                k.I("s_add_u32", "m0", s(smH), hex(HREG + (4 * c + i) * 1024))
                k.vm(("S", c), "buffer_load_dwordx4", v(v16), sr(sWS, 4), s(soff), mods="offen lds")
        col = 1792 if c < 7 else 0
        k.I("s_mul_i32", s(sa2), s(scp), 64 * 3584)
        k.I("s_add_u32", s(sa2), s(sa2), s(sWb))
        for i in range(2):
            k.I("s_add_u32", s(soff), s(sa2), hex(8 * i * 3584 + col))
            k.I("s_add_u32", "m0", s(smW), hex((c % NS) * WSL + i * 1024))
            k.vm(("S", c), "buffer_load_dwordx4", v(vWo), sr(sWin, 4), s(soff), mods="offen lds")
    nocw = k.newlabel("nocw")
    k.I("s_waitcnt", "lgkmcnt(0)")
    srd(k, sWS, pWS, WS_SIZE)
    srd(k, sWin, pWin, 448 * 3584)
    issue(0)
    k.I("s_cmp_ge_u32", s(sw3), 2)
    k.I("s_cbranch_scc1", nocw)
    k.I("v_lshlrev_b32", v(t0), 2, v(lane))
    k.I("s_lshl_b32", s(st0), s(sct), 8)
    k.I("s_xor_b32", s(st1), s(sw3), 1)
    k.I("s_mul_i32", s(st1), s(st1), 896 * 4)
    k.I("s_add_u32", s(st0), s(st0), s(st1))
    k.I("s_add_u32", s(soff), s(st0), hex(CW_OFF))
    k.I("s_lshl_b32", s(st1), s(sw3), 8)
    k.I("s_add_u32", "m0", s(st1), CWT)
    k.I("buffer_load_dword", v(t0), sr(sWS, 4), s(soff), mods="offen lds")
    k.L(nocw)
    k.vmq.append(("S", 1))
    issue(1); issue(2)
    NST = 14
    for c in range(NST):
        if c == 0:
            k.I("s_waitcnt", "vmcnt(12)")
            k.vmq = k.vmq[6:]
        else:
            k.wait_vm(("S", c))
        k.I("s_barrier")
        if c == 0: issue(3); issue(4)
        elif c >= 2 and c + 3 < NST: issue(c + 3)
    k.I("s_endpgm")
    k.L(comp)
    if os.environ.get("PRIO_C"): k.I("s_setprio", int(os.environ["PRIO_C"]))
    k.vnext = vsave; k.vmq = []; k.lgq = []
    l31 = k.valloc(); hh = k.valloc()
    k.I("v_and_b32", v(l31), 31, v(lane))
    k.I("v_lshrrev_b32", v(hh), 5, v(lane))
    sn2 = k.salloc()
    k.I("s_lshr_b32", s(sn2), s(swave), 2)
    hs = k.valloc(16, 4); vh = k.valloc()
    k.I("v_lshlrev_b32", v(vh), 3, v(lane))
    k.I("s_mul_i32", s(soff), s(sst), 32 * 112)
    sEX = k.salloc()
    k.I("s_lshl_b32", s(sEX), s(soff), 1)
    k.I("s_add_u32", s(sEX), s(sEX), hex(EX2_OFF))
    k.I("s_add_u32", s(soff), s(soff), hex(HS_OFF))
    k.I("s_waitcnt", "lgkmcnt(0)")
    srd(k, sWS, pWS, WS_SIZE)
    for i in range(7):
        k.vm("hs", "buffer_load_dwordx2", vr(hs + 2 * i, 2), v(vh), sr(sWS, 4), s(soff), mods=f"offen offset:{512 * i}")
    code_prefetch(k, "k5_sp_kernel", sidx, st0)
    stp.stamp(0)
    aH = k.valloc(); v16 = k.valloc(); vW = k.valloc()
    k.I("v_lshlrev_b32", v(v16), 4, v(lane))
    k.I("s_mul_i32", s(st0), s(sw3), 28 * 1024)
    k.I("v_add_u32", v(aH), s(st0), v(v16))
    k.I("v_bfe_u32", v(t0), v(lane), 2, 2)
    k.I("v_lshl_add_u32", v(t0), v(hh), 2, v(t0))
    k.I("v_lshlrev_b32", v(t0), 7, v(t0))
    k.I("v_add_u32", v(t0), WRING, v(t0))
    k.I("v_bfe_u32", v(t1), v(lane), 4, 1)
    k.I("v_lshlrev_b32", v(t1), 1, v(t1))
    k.I("v_bfe_u32", v(t2), v(lane), 1, 1)
    k.I("v_add_u32", v(t1), v(t1), v(t2))
    k.I("v_bfe_u32", v(t2), v(lane), 3, 1)
    k.I("v_lshlrev_b32", v(t2), 2, v(t2))
    k.I("s_lshl_b32", s(st0), s(sn2), 2)
    k.I("v_add_u32", v(vW), s(st0), v(t1))
    k.I("v_xor_b32", v(vW), v(vW), v(t2))
    k.I("v_lshl_add_u32", v(vW), v(vW), 4, v(t0))
    k.I("v_and_b32", v(t1), 1, v(lane))
    k.I("v_lshl_add_u32", v(vW), v(t1), 3, v(vW))
    rr = k.valloc(2); nm = k.valloc(2); c0r = k.valloc(2); c1r = k.valloc(2)
    k.wait_vm("hs")
    H = hs
    for i in range(3): k.I("v_pk_add_f32", vr(H + 2 * i, 2), vr(H + 2 * i, 2), vr(H + 6 + 2 * i, 2))
    k.I("v_pk_add_f32", vr(H, 2), vr(H, 2), vr(H + 12, 2))
    k.I("v_pk_add_f32", vr(H + 2, 2), vr(H + 2, 2), vr(H + 4, 2))
    k.I("v_pk_add_f32", vr(H, 2), vr(H, 2), vr(H + 2, 2))
    for e in range(2):
        k.I("v_mov_b32", v(H + 2), v(H + e))
        k.I("v_permlane32_swap_b32", v(H + e), v(H + 2))
        k.I("v_add_f32", v(H + e), v(H + e), v(H + 2))
    k.I("v_mul_f32", v(nm), hex(f32(-1.0 / 448)), v(H))
    k.I("v_mul_f32", v(H + 1), hex(f32(1.0 / 448)), v(H + 1))
    k.I("v_fma_f32", v(H + 1), f"-{v(nm)}", v(nm), v(H + 1))
    k.I("v_max_f32", v(H + 1), 0, v(H + 1))
    k.I("v_add_f32", v(H + 1), hex(f32(1e-5)), v(H + 1))
    k.I("v_rsq_f32", v(rr), v(H + 1))
    k.I("v_mul_f32", v(c0r), hex(f32(GELU_C0)), v(rr))
    k.I("v_mul_f32", v(c1r), v(rr), v(rr))
    k.I("v_mul_f32", v(c1r), v(c1r), v(rr))
    k.I("v_mul_f32", v(c1r), hex(f32(GELU_C1)), v(c1r))
    norh = k.newlabel("norh")
    k.I("s_or_b32", s(st0), s(sct), s(sn2))
    k.I("s_cmp_lg_u32", s(st0), 0)
    k.I("s_cbranch_scc1", norh)
    k.I("v_lshlrev_b32", v(t0), 2, v(l31))
    k.I("s_lshl_b32", s(st0), s(sst), 7)
    k.I("s_add_u32", s(st0), s(st0), hex(RH_OFF))
    k.I("buffer_store_dword", v(rr), v(t0), sr(sWS, 4), s(st0), mods="offen")
    k.L(norh)
    acc = [k.valloc(16, 4) for _ in range(2)]
    cwr = hs
    tp = [k.valloc(2) for _ in range(4)]
    NB = 3
    hf = [k.valloc(4) for _ in range(NB)]
    wf = [k.valloc(4) for _ in range(NB)]
    def rl(g):
        ks = g % 28; c = g // 4; j = g % 4
        b = g % NB
        out = [lambda: k.lg(("f", g), "ds_read_b128", vr(hf[b], 4), v(aH), mods=f"offset:{ks * 1024}")]
        for beta in range(2):
            o = (c % NS) * WSL + (16 * j + 8 * beta) * 128
            out.append(lambda o=o, beta=beta: k.lg(("f", g), "ds_read_b64_tr_b16", vr(wf[b] + 2 * beta, 2), v(vW), mods=f"offset:{o}"))
        return out
    vcw = k.valloc()
    k.I("v_lshlrev_b32", v(vcw), 4, v(hh))
    k.I("s_lshl_b32", s(st0), s(sn2), 7)
    k.I("s_add_u32", s(st0), s(st0), CWT)
    k.I("v_add_u32", v(vcw), s(st0), v(vcw))
    def gelu_tile(A, z):
        for q in range(4):
            k.lg("cw", "ds_read_b128", vr(cwr + 4 * q, 4), v(vcw), mods=f"offset:{z * 256 + 32 * q}")
        k.wait_lg("cw")
        for j in range(8):
            k.I("v_pk_fma_f32", vr(A + 2 * j, 2), vr(cwr + 2 * j, 2), vr(nm, 2), vr(A + 2 * j, 2), mods="op_sel_hi:[1,0,1]")
        for j0 in range(0, 8, 4):
            for j in range(j0, j0 + 4): k.I("v_pk_mul_f32", vr(tp[j - j0], 2), vr(A + 2 * j, 2), vr(A + 2 * j, 2))
            for j in range(j0, j0 + 4): k.I("v_pk_fma_f32", vr(tp[j - j0], 2), vr(tp[j - j0], 2), vr(c1r, 2), vr(c0r, 2), mods="op_sel_hi:[1,0,0]")
            for j in range(j0, j0 + 4): k.I("v_pk_mul_f32", vr(tp[j - j0], 2), vr(tp[j - j0], 2), vr(A + 2 * j, 2))
            for j in range(j0, j0 + 4):
                k.I("v_exp_f32", v(tp[j - j0]), v(tp[j - j0])); k.I("v_exp_f32", v(tp[j - j0] + 1), v(tp[j - j0] + 1))
            for j in range(j0, j0 + 4): k.I("v_pk_add_f32", vr(tp[j - j0], 2), vr(tp[j - j0], 2), "1.0", mods="op_sel_hi:[1,0]")
            for j in range(j0, j0 + 4):
                k.I("v_rcp_f32", v(tp[j - j0]), v(tp[j - j0])); k.I("v_rcp_f32", v(tp[j - j0] + 1), v(tp[j - j0] + 1))
            for j in range(j0, j0 + 4): k.I("v_pk_mul_f32", vr(A + 2 * j, 2), vr(A + 2 * j, 2), vr(tp[j - j0], 2))
    def mainloop(z):
        for g in range(28 * z, 28 * z + 28):
            ks = g % 28; j = g % 4; c = g // 4
            b = g % NB
            k.wait_lg(("f", g))
            mf = [lambda: k.I("v_mfma_f32_32x32x16_bf16", vr(acc[z], 16), vr(wf[b], 4), vr(hf[b], 4), 0 if ks == 0 else vr(acc[z], 16))]
            nxt = g + 2
            fl = rl(nxt) if nxt < 28 * z + 28 else []
            if j == 2 and c + 1 < NST: k.I("s_barrier")
            interleave(k, mf, fl)
    k.I("s_barrier")
    stp.stamp(1)
    for f in rl(0) + rl(1): f()
    mainloop(0)
    for f in rl(28) + rl(29): f()
    stp.stamp(2)
    accs = k.valloc(2); accq = k.valloc(2)
    A = acc[0]
    gelu_tile(A, 0)
    for j in range(8):
        k.I("v_pk_mul_f32", vr(A + 2 * j, 2), vr(A + 2 * j, 2), vr(rr, 2), mods="op_sel_hi:[1,0]")
    accs2 = k.valloc(2); accq2 = k.valloc(2)
    k.I("v_pk_add_f32", vr(accs, 2), vr(A, 2), vr(A + 2, 2))
    k.I("v_pk_add_f32", vr(accs2, 2), vr(A + 4, 2), vr(A + 6, 2))
    k.I("v_pk_mul_f32", vr(accq, 2), vr(A, 2), vr(A, 2))
    k.I("v_pk_mul_f32", vr(accq2, 2), vr(A + 2, 2), vr(A + 2, 2))
    for j in range(2, 8):
        tq = accq if j % 2 == 0 else accq2
        k.I("v_pk_fma_f32", vr(tq, 2), vr(A + 2 * j, 2), vr(A + 2 * j, 2), vr(tq, 2))
        if j >= 4:
            ts = accs if j % 2 == 0 else accs2
            k.I("v_pk_add_f32", vr(ts, 2), vr(ts, 2), vr(A + 2 * j, 2))
    k.I("v_pk_add_f32", vr(accs, 2), vr(accs, 2), vr(accs2, 2))
    k.I("v_pk_add_f32", vr(accq, 2), vr(accq, 2), vr(accq2, 2))
    k.I("v_add_f32", v(accs), v(accs), v(accs + 1))
    k.I("v_add_f32", v(accs + 1), v(accq), v(accq + 1))
    for e in range(2):
        k.I("v_mov_b32", v(accq), v(accs + e))
        k.I("v_permlane32_swap_b32", v(accs + e), v(accq))
        k.I("v_add_f32", v(accs + e), v(accs + e), v(accq))
    k.I("v_mov_b32", v(t1), "0x7fc00000")
    k.I("v_cmp_eq_u32", "vcc", -1, v(accs + 1))
    k.I("v_cndmask_b32", v(accs + 1), v(accs + 1), v(t1), "vcc")
    ve = k.valloc()
    k.I("v_lshlrev_b32", v(ve), 3, v(l31))
    k.I("s_lshl_b32", s(st0), s(sct), 1)
    k.I("s_add_u32", s(st0), s(st0), s(sn2))
    k.I("s_lshl_b32", s(st0), s(st0), 8)
    k.I("s_add_u32", s(soff), s(sEX), s(st0))
    k.I("s_mov_b32", "exec_hi", 0)
    k.I("buffer_store_dwordx2", vr(accs, 2), v(ve), sr(sWS, 4), s(soff), mods="offen sc0 sc1")
    k.I("s_mov_b64", "exec", -1)
    stp.stamp(3)
    mainloop(1)
    ex = k.valloc(28, 4); sEX2 = k.salloc()
    for i in range(14):
        if i == 8: k.I("s_add_u32", s(sEX2), s(sEX), 4096)
        k.I("buffer_load_dwordx2", vr(ex + 2 * i, 2), v(vh), sr(sWS, 4), s(sEX if i < 8 else sEX2), mods=f"offen offset:{512 * (i % 8)} sc0 sc1")
    P = k.valloc(8, 4)
    sft = k.salloc()
    k.I("s_lshl_b32", s(sft), s(sct), 1)
    k.I("s_add_u32", s(sft), s(sft), s(sn2))
    A = acc[1]
    gelu_tile(A, 1)
    for j in range(8): k.I("v_cvt_pk_bf16_f32", v(P + j), v(A + 2 * j), v(A + 2 * j + 1))
    k.I("s_mul_i32", s(soff), s(sst), 56 * 1024)
    k.I("s_lshl_b32", s(st0), s(sft), 11)
    k.I("s_add_u32", s(soff), s(soff), s(st0))
    k.I("s_add_u32", s(soff), s(soff), hex(Z1_OFF))
    k.I("buffer_store_dwordx4", vr(P, 4), v(v16), sr(sWS, 4), s(soff), mods="offen")
    k.I("buffer_store_dwordx4", vr(P + 4, 4), v(v16), sr(sWS, 4), s(soff), mods="offen offset:1024")
    stp.stamp(4)
    scount = k.salloc()
    k.I("s_mov_b32", s(scount), 0)
    poll = k.newlabel("poll"); pdone = k.newlabel("pdone"); pchk = k.newlabel("pchk")
    k.I("s_waitcnt", "vmcnt(2)")
    k.I("s_branch", pchk)
    k.L(poll)
    for i in range(14):
        if i == 8: k.I("s_add_u32", s(sEX2), s(sEX), 4096)
        k.I("buffer_load_dwordx2", vr(ex + 2 * i, 2), v(vh), sr(sWS, 4), s(sEX if i < 8 else sEX2), mods=f"offen offset:{512 * (i % 8)} sc0 sc1")
    k.I("s_waitcnt", "vmcnt(0)")
    k.L(pchk)
    k.I("v_max_u32", v(t0), v(ex + 1), v(ex + 3))
    for i in range(2, 14): k.I("v_max_u32", v(t0), v(t0), v(ex + 2 * i + 1))
    k.I("v_cmp_eq_u32", "vcc", -1, v(t0))
    k.I("s_add_u32", s(scount), s(scount), 1)
    k.I("s_cmp_eq_u64", "vcc", 0)
    k.I("s_cbranch_scc1", pdone)
    k.I("s_cmp_lt_u32", s(scount), 0x40000)
    k.I("s_cbranch_scc0", pdone)
    k.I("s_sleep", 1)
    k.I("s_branch", poll)
    k.L(pdone)
    k.vmq = []
    sc_ = k.valloc(2); zm = k.valloc(2)
    H = ex
    for i in range(7): k.I("v_pk_add_f32", vr(H + 2 * i, 2), vr(H + 2 * i, 2), vr(H + 14 + 2 * i, 2))
    for i in range(3): k.I("v_pk_add_f32", vr(H + 2 * i, 2), vr(H + 2 * i, 2), vr(H + 6 + 2 * i, 2))
    k.I("v_pk_add_f32", vr(H, 2), vr(H, 2), vr(H + 12, 2))
    k.I("v_pk_add_f32", vr(H + 2, 2), vr(H + 2, 2), vr(H + 4, 2))
    k.I("v_pk_add_f32", vr(H, 2), vr(H, 2), vr(H + 2, 2))
    for e in range(2):
        k.I("v_mov_b32", v(H + 2), v(H + e))
        k.I("v_permlane32_swap_b32", v(H + e), v(H + 2))
        k.I("v_add_f32", v(H + e), v(H + e), v(H + 2))
    k.I("v_mul_f32", v(zm), hex(f32(-1.0 / 896)), v(H))
    k.I("v_mul_f32", v(H + 1), hex(f32(1.0 / 896)), v(H + 1))
    k.I("v_fma_f32", v(H + 1), f"-{v(zm)}", v(zm), v(H + 1))
    k.I("v_max_f32", v(H + 1), 0, v(H + 1))
    k.I("v_add_f32", v(H + 1), hex(f32(1e-5)), v(H + 1))
    k.I("v_rsq_f32", v(sc_), v(H + 1))
    k.I("v_mul_f32", v(zm), v(zm), v(sc_))
    k.I("s_barrier")
    vt = k.valloc(); vtr = k.valloc()
    k.I("s_mul_i32", s(st0), s(swave), 2304)
    k.I("s_add_u32", s(st0), s(st0), WRING)
    k.I("v_mul_u32_u24", v(vt), 72, v(l31))
    k.I("v_lshl_add_u32", v(vt), v(hh), 3, v(vt))
    k.I("v_add_u32", v(vt), s(st0), v(vt))
    A = acc[0]
    for j in range(8):
        k.I("v_pk_fma_f32", vr(A + 2 * j, 2), vr(A + 2 * j, 2), vr(sc_, 2), vr(zm, 2), mods="op_sel_hi:[1,0,0]")
    for j in range(8): k.I("v_cvt_pk_bf16_f32", v(P + j), v(A + 2 * j), v(A + 2 * j + 1))
    for q in range(4):
        k.I("ds_write_b64", v(vt), vr(P + 2 * q, 2), mods=f"offset:{16 * q}")
    k.I("v_bfe_u32", v(t0), v(lane), 2, 2)
    k.I("v_lshl_add_u32", v(t0), v(hh), 3, v(t0))
    k.I("v_mul_u32_u24", v(vtr), 72, v(t0))
    k.I("v_bfe_u32", v(t0), v(lane), 4, 1)
    k.I("v_lshl_add_u32", v(vtr), v(t0), 5, v(vtr))
    k.I("v_and_b32", v(t0), 3, v(lane))
    k.I("v_lshl_add_u32", v(vtr), v(t0), 3, v(vtr))
    k.I("v_add_u32", v(vtr), s(st0), v(vtr))
    Z = acc[1]
    for ks in range(2):
        for beta in range(2):
            k.I("ds_read_b64_tr_b16", vr(Z + 4 * ks + 2 * beta, 2), v(vtr), mods=f"offset:{(16 * ks + 4 * beta) * 72}")
    k.I("s_lshr_b32", s(st0), s(sst), 5)
    k.I("s_mul_i32", s(st0), s(st0), ZK)
    k.I("s_and_b32", s(st1), s(sst), 31)
    k.I("s_lshl_b32", s(st1), s(st1), 11)
    k.I("s_add_u32", s(st0), s(st0), s(st1))
    k.I("s_add_u32", s(st0), s(st0), hex(Z2_OFF))
    k.I("s_mul_i32", s(soff), s(sft), ZS)
    k.I("s_add_u32", s(soff), s(soff), s(st0))
    for ks in range(2):
        k.I("s_waitcnt", f"lgkmcnt({2 - 2 * ks})")
        k.I("buffer_store_dwordx4", vr(Z + 4 * ks, 4), v(v16), sr(sWS, 4), s(soff), mods=f"offen offset:{ks * 1024}")
    stp.stamp(5)
    k.I("s_endpgm")
    k.L(pfrole)
    if os.environ.get('K4PF', 'sparse') == 'dense':
        pp = k.salloc(2); sP = k.salloc(4); vT = k.valloc(); vd = k.valloc(32, 4)
        k.I("s_load_dwordx2", sr(pp, 2), "s[0:1]", 40)
        k.I("s_sub_u32", s(st0), s(sidx), 28)
        k.I("s_lshl_b32", s(st0), s(st0), 3)
        k.I("s_add_u32", s(st0), s(st0), s(swave))
        k.I("s_lshl_b32", s(st0), s(st0), 16)
        k.I("s_lshr_b32", s(st1), s(sj), 1)
        k.I("s_lshl_b32", s(st1), s(st1), 21)
        k.I("s_add_u32", s(st0), s(st0), s(st1))
        k.I("s_and_b32", s(st1), s(sj), 1)
        k.I("s_lshl_b32", s(st1), s(st1), 11)
        k.I("s_add_u32", s(st0), s(st0), s(st1))
        k.I("v_lshlrev_b32", v(vT), 4, v(lane))
        k.I("s_waitcnt", "lgkmcnt(0)")
        srd(k, sP, pp, 2048 * 4096)
        for i in range(16):
            k.I("s_add_u32", s(soff), s(st0), hex(i * 4096))
            for hf_ in range(2):
                k.I("buffer_load_dwordx4", vr(vd + 4 * ((2 * i + hf_) % 8), 4), v(vT), sr(sP, 4), s(soff), mods=f"offen offset:{hf_ * 1024}")
    else:
        pp = k.salloc(2); sP = k.salloc(4); vT = k.valloc(); vd = k.valloc(4)
        k.I("s_load_dwordx2", sr(pp, 2), "s[0:1]", 40)
        k.I("s_sub_u32", s(st0), s(sidx), 28)
        k.I("s_lshl_b32", s(st0), s(st0), 9)
        k.I("v_add_u32", v(vT), s(st0), "v0")
        k.I("s_cmp_ge_u32", s(swave), 8)
        k.I("s_cbranch_scc1", R["done"])
        k.I("s_lshr_b32", s(st0), s(sj), 1)
        k.I("s_lshl_b32", s(st0), s(st0), 21)
        k.I("s_and_b32", s(st1), s(sj), 1)
        k.I("s_lshl_b32", s(st1), s(st1), 11)
        k.I("s_add_u32", s(st0), s(st0), s(st1))
        k.I("s_waitcnt", "lgkmcnt(0)")
        srd(k, sP, pp, 2048 * 4096)
        for i in range(4):
            k.I("v_add_u32", v(t0), 2048 * i, v(vT))
            k.I("v_lshrrev_b32", v(t1), 4, v(t0))
            k.I("v_lshlrev_b32", v(t1), 12, v(t1))
            k.I("v_and_b32", v(t2), 15, v(t0))
            k.I("v_lshl_add_u32", v(t1), v(t2), 7, v(t1))
            k.I("buffer_load_dword", v(vd + i), v(t1), sr(sP, 4), s(st0), mods="offen")
    k.L(R["done"])
    k.I("s_endpgm")
    k.lds = lds; k.threads = 768; k.grid = 256
    return k

def gen_k5(Stamper):
    k = Kernel("k5_sp_kernel")
    DEEP = os.environ.get("K5NS", "4") == "5"
    NS = 5 if DEEP else 4; SLOT = 32768
    Z1REG = None if DEEP else NS * SLOT
    lds = NS * SLOT if DEEP else Z1REG + 32768
    R = common_start(k, 256)
    swave, st0, st1, soff, lane, t0, t1, t2 = (R[x] for x in ("swave", "st0", "st1", "soff", "lane", "t0", "t1", "t2"))
    pSp = k.salloc(2); pB = k.salloc(2); pWS = k.salloc(2)
    k.I("s_load_dwordx2", sr(pSp, 2), "s[0:1]", 40)
    k.I("s_load_dwordx2", sr(pB, 2), "s[0:1]", 48)
    k.I("s_load_dwordx2", sr(pWS, 2), "s[0:1]", 80)
    sWS = k.salloc(4); sSp = k.salloc(4); sB = k.salloc(4)
    sj = k.salloc(); sidx = k.salloc(); stt = k.salloc(); sft = k.salloc(); skap = k.salloc(); sw3 = k.salloc()
    if os.environ.get("K5MAP") == "linear":
        k.I("s_mul_i32", s(sj), "s2", 2341)
        k.I("s_lshr_b32", s(sj), s(sj), 16)
        k.I("s_mul_i32", s(sidx), s(sj), 28)
        k.I("s_sub_u32", s(sidx), "s2", s(sidx))
    else:
        k.I("s_and_b32", s(sj), "s2", 7)
        k.I("s_lshr_b32", s(sidx), "s2", 3)
    pfrole = k.newlabel("pfrole")
    k.I("s_cmp_ge_u32", s(sidx), 28)
    k.I("s_cbranch_scc1", pfrole)
    k.I("s_and_b32", s(sw3), s(swave), 3)
    k.I("s_and_b32", s(skap), s(sj), 1)
    k.I("s_mul_i32", s(st0), s(sidx), 37)
    k.I("s_lshr_b32", s(st0), s(st0), 8)
    k.I("s_mul_i32", s(st1), s(st0), 7)
    k.I("s_sub_u32", s(sft), s(sidx), s(st1))
    k.I("s_lshr_b32", s(stt), s(sj), 1)
    k.I("s_lshl_b32", s(stt), s(stt), 2)
    k.I("s_add_u32", s(stt), s(stt), s(st0))
    stp = Stamper(k, 4, sWS, swave)
    if os.environ.get("TICKWAVE", "0") != "0": stp.tick(0)
    comp = k.newlabel("compute")
    k.I("s_cmp_lt_u32", s(swave), 4)
    k.I("s_cbranch_scc1", comp)
    vsave = k.vnext
    if os.environ.get("PRIO_L"): k.I("s_setprio", int(os.environ["PRIO_L"]))
    v16 = k.valloc(); vWo = k.valloc(2)
    k.I("v_lshlrev_b32", v(v16), 4, v(lane))
    k.I("v_lshrrev_b32", v(t0), 3, v(lane))
    k.I("v_lshlrev_b32", v(t0), 12, v(t0))
    k.I("v_lshrrev_b32", v(t1), 4, v(lane))
    k.I("v_and_b32", v(t2), 7, v(lane))
    k.I("v_xor_b32", v(t1), v(t1), v(t2))
    k.I("v_lshl_add_u32", v(vWo), v(t1), 4, v(t0))
    k.I("v_xor_b32", v(t1), 4, v(t1))
    k.I("v_lshl_add_u32", v(vWo + 1), v(t1), 4, v(t0))
    sZb = k.salloc(); sWb = k.salloc(); smZ = k.salloc(); smW = k.salloc()
    k.I("s_lshl_b32", s(st0), s(sft), 2)
    k.I("s_add_u32", s(st0), s(st0), s(sw3))
    k.I("s_mul_i32", s(sZb), s(st0), ZS)
    k.I("s_mul_i32", s(st1), s(skap), ZK)
    k.I("s_add_u32", s(sZb), s(sZb), s(st1))
    k.I("s_add_u32", s(sZb), s(sZb), hex(Z2_OFF))
    k.I("s_lshl_b32", s(smZ), s(sw3), 12)
    k.I("s_lshl_b32", s(st0), s(stt), 7)
    k.I("s_lshl_b32", s(st1), s(sw3), 5)
    k.I("s_add_u32", s(st0), s(st0), s(st1))
    k.I("s_lshl_b32", s(sWb), s(st0), 12)
    k.I("s_lshl_b32", s(st1), s(skap), 11)
    k.I("s_add_u32", s(sWb), s(sWb), s(st1))
    k.I("s_add_u32", s(smW), s(smZ), 16384)
    srot = k.salloc(); scp = k.salloc(); sa1 = k.salloc(); sa2 = k.salloc()
    k.I("s_lshl_b32", s(st0), s(sft), 1)
    k.I("s_mul_i32", s(st1), s(stt), 5)
    k.I("s_add_u32", s(srot), s(st0), s(st1))
    k.I("s_and_b32", s(srot), s(srot), 15)
    if not rot_on(5): k.I("s_mov_b32", s(srot), 0)
    def issue(c):
        sl = (c % NS) * SLOT
        k.I("s_add_u32", s(scp), s(srot), c)
        k.I("s_and_b32", s(scp), s(scp), 15)
        k.I("s_lshl_b32", s(sa1), s(scp), 12)
        k.I("s_add_u32", s(sa1), s(sa1), s(sZb))
        k.I("s_lshl_b32", s(sa2), s(scp), 7)
        k.I("s_add_u32", s(sa2), s(sa2), s(sWb))
        for i in range(4):
            k.I("s_add_u32", s(soff), s(sa1), hex(i * 1024))
            k.I("s_add_u32", "m0", s(smZ), hex(sl + i * 1024))
            k.vm(("S", c), "buffer_load_dwordx4", v(v16), sr(sWS, 4), s(soff), mods="offen lds")
        for i in range(4):
            k.I("s_add_u32", s(soff), s(sa2), hex(i * 8 * 4096))
            k.I("s_add_u32", "m0", s(smW), hex(sl + i * 1024))
            k.vm(("S", c), "buffer_load_dwordx4", v(vWo + (i & 1)), sr(sSp, 4), s(soff), mods="offen lds")
    NST = 16
    sZ1 = k.salloc()
    k.I("s_lshl_b32", s(st0), s(stt), 2)
    k.I("s_add_u32", s(st0), s(st0), s(sw3))
    k.I("s_mul_i32", s(sZ1), s(st0), 56 * 1024)
    k.I("s_lshl_b32", s(st1), s(sft), 13)
    k.I("s_add_u32", s(sZ1), s(sZ1), s(st1))
    k.I("s_add_u32", s(sZ1), s(sZ1), hex(Z1_OFF))
    smZ1 = k.salloc()
    k.I("s_lshl_b32", s(smZ1), s(sw3), 12 if DEEP else 13)
    def z1_lds(i):
        if DEEP: return ((16 + i // 4) % NS) * SLOT + (i % 4) * 1024
        return Z1REG + i * 1024
    def issue_z1(i, tag):
        k.I("s_add_u32", s(soff), s(sZ1), hex(i * 1024))
        k.I("s_add_u32", "m0", s(smZ1), hex(z1_lds(i)))
        k.vm(("S", tag), "buffer_load_dwordx4", v(v16), sr(sWS, 4), s(soff), mods="offen lds")
    LT = os.environ.get("TICKWAVE", "0") != "0"
    k.I("s_waitcnt", "lgkmcnt(0)")
    srd(k, sWS, pWS, WS_SIZE)
    srd(k, sSp, pSp, 2048 * 4096)
    if LT: stp.tick(1)
    issue(0)
    if LT: stp.tick(2)
    issue(1)
    if LT: stp.tick(3)
    for c in range(NST):
        k.wait_vm(("S", c))
        if LT and c < 3: stp.tick(4 + 2 * c)
        k.I("s_barrier")
        if LT and c < 3: stp.tick(5 + 2 * c)
        if DEEP:
            if c == 0: issue(2); issue(3); issue(4)
            elif c >= 2 and c + 3 < NST: issue(c + 3)
            elif c + 3 in (16, 17):
                for i in range(4): issue_z1(4 * (c + 3 - 16) + i, c + 3)
            continue
        if c == 0: issue(2); issue(3)
        elif c + 2 < NST and c >= 2:
            issue(c + 2)
            if 3 <= c < 11: issue_z1(c - 3, c + 2)
    if DEEP:
        k.wait_vm([("S", 16), ("S", 17)])
        k.I("s_barrier")
    vT = k.valloc()
    k.I("s_lshl_b32", s(st0), s(sidx), 8)
    k.I("v_subrev_u32", v(vT), 256, "v0")
    k.I("v_add_u32", v(vT), s(st0), v(vT))
    k.I("v_lshlrev_b32", v(vT), 7, v(vT))
    if LT: stp.dump_ticks()
    k.I("s_endpgm")
    k.L(comp)
    if os.environ.get("PRIO_C"): k.I("s_setprio", int(os.environ["PRIO_C"]))
    k.vnext = vsave; k.vmq = []; k.lgq = []
    l31 = k.valloc(); hh = k.valloc()
    k.I("v_and_b32", v(l31), 31, v(lane))
    k.I("v_lshrrev_b32", v(hh), 5, v(lane))
    sfh = k.salloc(); sth = k.salloc(); sst = k.salloc(); sf32 = k.salloc()
    k.I("s_and_b32", s(sfh), s(swave), 1)
    k.I("s_lshr_b32", s(sth), s(swave), 1)
    k.I("s_lshl_b32", s(sst), s(stt), 2)
    k.I("s_lshl_b32", s(st0), s(sth), 1)
    k.I("s_add_u32", s(sst), s(sst), s(st0))
    k.I("s_lshl_b32", s(sf32), s(sft), 2)
    k.I("s_lshl_b32", s(st0), s(sfh), 1)
    k.I("s_add_u32", s(sf32), s(sf32), s(st0))
    if os.environ.get("PF3", "0") == "1":
        vT0 = k.valloc(); vd0 = k.valloc(2)
        k.I("s_lshl_b32", s(st0), s(sidx), 8)
        k.I("v_add_u32", v(vT0), s(st0), "v0")
        k.I("s_lshl_b32", s(st1), s(skap), 16)
        k.I("s_add_u32", s(st1), s(st1), hex(Z2_OFF))
        for i in range(2):
            k.I("v_add_u32", v(t0), 7168 * i, v(vT0))
            k.I("v_lshrrev_b32", v(t1), 9, v(t0))
            k.I("v_lshlrev_b32", v(t1), 17, v(t1))
            k.I("v_and_b32", v(t2), 511, v(t0))
            k.I("v_lshl_add_u32", v(t1), v(t2), 7, v(t1))
            k.vm("pf", "buffer_load_dword", v(vd0 + i), v(t1), sr(sWS, 4), s(st1), mods="offen")
    v16 = k.valloc()
    k.I("v_lshlrev_b32", v(v16), 4, v(lane))
    z1 = [[k.valloc(8, 4) for _ in range(2)] for _ in range(2)]
    rr = [k.valloc(2) for _ in range(2)]; bb = [k.valloc(2) for _ in range(2)]
    k.I("v_lshlrev_b32", v(t0), 2, v(l31))
    k.I("v_lshlrev_b32", v(t1), 1, v(l31))
    k.I("s_waitcnt", "lgkmcnt(0)")
    srd(k, sWS, pWS, WS_SIZE)
    srd(k, sB, pB, 4096)
    for ti in range(2):
        k.I("s_add_u32", s(st0), s(sst), ti)
        k.I("s_lshl_b32", s(soff), s(st0), 7)
        k.I("s_add_u32", s(soff), s(soff), hex(RH_OFF))
        k.vm("z1", "buffer_load_dword", v(rr[ti]), v(t0), sr(sWS, 4), s(soff), mods="offen")
        k.I("s_lshl_b32", s(soff), s(st0), 6)
        k.vm("z1", "buffer_load_ushort", v(bb[ti]), v(t1), sr(sB, 4), s(soff), mods="offen")
    if os.environ.get("PF2", "0") == "1":
        pp = k.salloc(2); sP = k.salloc(4); vT = k.valloc(); vd = k.valloc(2)
        k.I("s_load_dwordx2", sr(pp, 2), "s[0:1]", 56)
        k.I("s_lshl_b32", s(st0), s(sidx), 8)
        k.I("v_add_u32", v(vT), s(st0), "v0")
        k.I("v_lshlrev_b32", v(vT), 7, v(vT))
        k.I("s_waitcnt", "lgkmcnt(0)")
        srd(k, sP, pp, 896 * 896)
        k.vm("pf", "buffer_load_dword", v(vd), v(vT), sr(sP, 4), 0, mods="offen")
    code_prefetch(k, "k6_wout_kernel", sidx, st0)
    stp.stamp(0)
    aZ = k.valloc(); aW = k.valloc(4)
    k.I("s_lshl_b32", s(st0), s(sfh), 13)
    k.I("v_add_u32", v(aZ), s(st0), v(v16))
    k.I("v_bfe_u32", v(t0), v(l31), 1, 3)
    for j in range(4):
        k.I("v_add_u32", v(t1), 2 * j, v(hh))
        k.I("v_xor_b32", v(t1), v(t1), v(t0))
        k.I("v_lshlrev_b32", v(t1), 4, v(t1))
        k.I("v_lshl_add_u32", v(aW + j), v(l31), 7, v(t1))
        k.I("s_lshl_b32", s(st0), s(sth), 13)
        k.I("s_add_u32", s(st0), s(st0), 16384)
        k.I("v_add_u32", v(aW + j), s(st0), v(aW + j))
    aZ2 = k.valloc(); aW2 = k.valloc(4)
    k.I("v_add_u32", v(aZ2), 65536, v(aZ))
    for j in range(4): k.I("v_add_u32", v(aW2 + j), 65536, v(aW + j))
    if DEEP:
        aZ3 = k.valloc(); aW3 = k.valloc(4)
        k.I("v_add_u32", v(aZ3), 131072, v(aZ))
        for j in range(4): k.I("v_add_u32", v(aW3 + j), 131072, v(aW + j))
    acc = [[k.valloc(16, 4) for _ in range(2)] for _ in range(2)]
    NB = 3
    zf = [[k.valloc(4) for _ in range(2)] for _ in range(NB)]
    wf = [[k.valloc(4) for _ in range(2)] for _ in range(NB)]
    def rl(ks):
        c, j = ks // 4, ks % 4
        b = ks % NB
        sl = (c % NS) * SLOT
        hi = sl // 65536
        so = sl - 65536 * hi
        bz = [aZ, aZ2, aZ3 if DEEP else None][hi]; bw = [aW, aW2, aW3 if DEEP else None][hi]
        out = []
        for fi in range(2):
            out.append(lambda fi=fi: k.lg(("f", ks), "ds_read_b128", vr(zf[b][fi], 4), v(bz), mods=f"offset:{so + fi * 4096 + j * 1024}"))
        for ti in range(2):
            out.append(lambda ti=ti: k.lg(("f", ks), "ds_read_b128", vr(wf[b][ti], 4), v(bw + j), mods=f"offset:{so + ti * 4096}"))
        return out
    k.I("s_barrier")
    stp.stamp(1)
    for f in rl(0) + rl(1): f()
    NKS = NST * 4
    for ks in range(NKS):
        c, j = ks // 4, ks % 4
        b = ks % NB
        k.wait_lg(("f", ks))
        mf = []
        for fi in range(2):
            for ti in range(2):
                if os.environ.get("EXP16"):
                    for hx in range(2):
                        r0 = acc[fi][ti] + 4 * (2 * (ks & 1) + hx)
                        mf.append(lambda fi=fi, ti=ti, r0=r0: k.I("v_mfma_f32_16x16x32_bf16", vr(r0, 4), vr(zf[b][fi], 4), vr(wf[b][ti], 4), 0 if ks < 2 else vr(r0, 4)))
                    continue
                mf.append(lambda fi=fi, ti=ti: k.I("v_mfma_f32_32x32x16_bf16", vr(acc[fi][ti], 16), vr(zf[b][fi], 4), vr(wf[b][ti], 4), 0 if ks == 0 else vr(acc[fi][ti], 16)))
        fl = rl(ks + 2) if ks + 2 < NKS else []
        if j == 2 and ks + 2 < NKS:
            if not LT and c in (0, 13, 14): stp.tick({0: 0, 13: 1, 14: 2}[c])
            k.I("s_barrier")
        interleave(k, mf, fl)
    if not LT: stp.tick(3)
    stp.stamp(2)
    if not LT: stp.tick(4)
    if not LT: stp.tick(5)
    vz = k.valloc()
    if DEEP:
        k.I("s_barrier")
        k.I("s_lshl_b32", s(st0), s(sth), 13)
        k.I("v_add_u32", v(vz), s(st0), v(v16))
        lab2 = k.newlabel("fh1"); lab3 = k.newlabel("fhj")
        vz2 = k.valloc()
        k.I("s_add_u32", s(st0), s(sfh), 1)
        k.I("s_lshl_b32", s(st0), s(st0), 15)
        k.I("v_add_u32", v(vz), s(st0), v(vz))
        for ti in range(2):
            for fi in range(2):
                for hf_ in range(2):
                    k.lg(("z1", ti, fi), "ds_read_b128", vr(z1[fi][ti] + 4 * hf_, 4), v(vz), mods=f"offset:{ti * 4096 + (2 * fi + hf_) * 1024}")
    else:
        k.I("s_lshl_b32", s(st0), s(sth), 14)
        k.I("s_lshl_b32", s(st1), s(sfh), 12)
        k.I("s_add_u32", s(st0), s(st0), s(st1))
        k.I("s_add_u32", s(st0), s(st0), Z1REG)
        k.I("v_add_u32", v(vz), s(st0), v(v16))
        for ti in range(2):
            for fi in range(2):
                for hf_ in range(2):
                    k.lg(("z1", ti, fi), "ds_read_b128", vr(z1[fi][ti] + 4 * hf_, 4), v(vz), mods=f"offset:{ti * 8192 + fi * 2048 + hf_ * 1024}")
    k.wait_vm("z1")
    for ti in range(2):
        k.I("v_lshlrev_b32", v(bb[ti]), 16, v(bb[ti]))
        k.I("v_mul_f32", v(bb[ti]), v(bb[ti]), v(rr[ti]))
    k.I("s_cmp_eq_u32", s(skap), 0)
    k.I("s_cselect_b32", s(st0), "1.0", 0)
    for ti in range(2): k.I("v_mul_f32", v(bb[ti]), s(st0), v(bb[ti]))
    tp = [k.valloc(2) for _ in range(4)]
    P = [k.valloc(8, 4) for _ in range(2)]
    sU = k.salloc()
    k.I("s_mul_i32", s(sU), s(skap), U1_OFF - U0_OFF)
    k.I("s_add_u32", s(sU), s(sU), hex(U0_OFF))
    n = 0
    for ti in range(2):
        for fi in range(2):
            A = acc[fi][ti]; Zp = z1[fi][ti]; PP = P[n & 1]; n += 1
            for j in range(8):
                k.I("v_pk_fma_f32", vr(A + 2 * j, 2), vr(A + 2 * j, 2), vr(rr[ti], 2), vr(bb[ti], 2), mods="op_sel_hi:[1,0,0]")
            k.wait_lg(("z1", ti, fi))
            for j in range(8):
                T = tp[j % 4]
                k.I("v_lshlrev_b32", v(T), 16, v(Zp + j))
                k.I("v_and_b32", v(T + 1), "0xffff0000", v(Zp + j))
                k.I("v_pk_mul_f32", vr(A + 2 * j, 2), vr(A + 2 * j, 2), vr(T, 2))
            for j in range(8): k.I("v_cvt_pk_bf16_f32", v(PP + j), v(A + 2 * j), v(A + 2 * j + 1))
            k.I("s_add_u32", s(st0), s(sst), ti)
            k.I("s_mul_i32", s(soff), s(st0), 56 * 1024)
            k.I("s_add_u32", s(st0), s(sf32), fi)
            k.I("s_lshl_b32", s(st0), s(st0), 11)
            k.I("s_add_u32", s(soff), s(soff), s(st0))
            k.I("s_add_u32", s(soff), s(soff), s(sU))
            k.I("buffer_store_dwordx4", vr(PP, 4), v(v16), sr(sWS, 4), s(soff), mods="offen")
            k.I("buffer_store_dwordx4", vr(PP + 4, 4), v(v16), sr(sWS, 4), s(soff), mods="offen offset:1024")
            if not LT: stp.tick(5 + n)
    stp.stamp(3)
    if not LT: stp.tick(10)
    if not LT: stp.dump_ticks()
    k.I("s_endpgm")
    k.L(pfrole)
    vT2 = k.valloc()
    k.I("s_sub_u32", s(st0), s(sidx), 28)
    k.I("s_lshl_b32", s(st0), s(st0), 9)
    k.I("v_add_u32", v(vT2), s(st0), "v0")
    k.I("v_lshlrev_b32", v(vT2), 7, v(vT2))
    l2_prefetch(k, 56, 896 * 896, vT2, 2048, st0)
    k.L(R["done"])
    k.I("s_endpgm")
    k.lds = lds; k.threads = 512; k.grid = 256
    return k

def gen_k5x(Stamper):
    k = Kernel("k5_sp_kernel")
    DEEP = False
    NS = 5 if DEEP else 4; SLOT = 32768
    Z1REG = None if DEEP else NS * SLOT
    lds = NS * SLOT if DEEP else Z1REG + 32768
    R = common_start(k, 256)
    swave, st0, st1, soff, lane, t0, t1, t2 = (R[x] for x in ("swave", "st0", "st1", "soff", "lane", "t0", "t1", "t2"))
    pSp = k.salloc(2); pB = k.salloc(2); pWS = k.salloc(2)
    k.I("s_load_dwordx2", sr(pSp, 2), "s[0:1]", 40)
    k.I("s_load_dwordx2", sr(pB, 2), "s[0:1]", 48)
    k.I("s_load_dwordx2", sr(pWS, 2), "s[0:1]", 80)
    sWS = k.salloc(4); sSp = k.salloc(4); sB = k.salloc(4)
    sj = k.salloc(); sidx = k.salloc(); stt = k.salloc(); sft = k.salloc(); skap = k.salloc(); sw3 = k.salloc()
    if os.environ.get("K5MAP") == "linear":
        k.I("s_mul_i32", s(sj), "s2", 2341)
        k.I("s_lshr_b32", s(sj), s(sj), 16)
        k.I("s_mul_i32", s(sidx), s(sj), 28)
        k.I("s_sub_u32", s(sidx), "s2", s(sidx))
    else:
        k.I("s_and_b32", s(sj), "s2", 7)
        k.I("s_lshr_b32", s(sidx), "s2", 3)
    pfrole = k.newlabel("pfrole")
    k.I("s_cmp_ge_u32", s(sidx), 28)
    k.I("s_cbranch_scc1", pfrole)
    k.I("s_and_b32", s(sw3), s(swave), 3)
    k.I("s_and_b32", s(skap), s(sj), 1)
    k.I("s_mul_i32", s(st0), s(sidx), 37)
    k.I("s_lshr_b32", s(st0), s(st0), 8)
    k.I("s_mul_i32", s(st1), s(st0), 7)
    k.I("s_sub_u32", s(sft), s(sidx), s(st1))
    k.I("s_lshr_b32", s(stt), s(sj), 1)
    k.I("s_lshl_b32", s(stt), s(stt), 2)
    k.I("s_add_u32", s(stt), s(stt), s(st0))
    stp = Stamper(k, 4, sWS, swave)
    if os.environ.get("TICKWAVE", "0") != "0": stp.tick(0)
    comp = k.newlabel("compute")
    k.I("s_cmp_lt_u32", s(swave), 4)
    k.I("s_cbranch_scc1", comp)
    vsave = k.vnext
    if os.environ.get("PRIO_L"): k.I("s_setprio", int(os.environ["PRIO_L"]))
    v16 = k.valloc(); vWo = k.valloc(2)
    k.I("v_lshlrev_b32", v(v16), 4, v(lane))
    k.I("v_lshrrev_b32", v(t0), 3, v(lane))
    k.I("v_lshlrev_b32", v(t0), 12, v(t0))
    k.I("v_lshrrev_b32", v(t1), 4, v(lane))
    k.I("v_and_b32", v(t2), 7, v(lane))
    k.I("v_xor_b32", v(t1), v(t1), v(t2))
    k.I("v_lshl_add_u32", v(vWo), v(t1), 4, v(t0))
    k.I("v_xor_b32", v(t1), 4, v(t1))
    k.I("v_lshl_add_u32", v(vWo + 1), v(t1), 4, v(t0))
    sZb = k.salloc(); sWb = k.salloc(); smZ = k.salloc(); smW = k.salloc()
    k.I("s_lshl_b32", s(st0), s(sft), 3)
    k.I("s_lshl_b32", s(st1), s(sw3), 1)
    k.I("s_add_u32", s(st0), s(st0), s(st1))
    k.I("s_mul_i32", s(sZb), s(st0), ZS16)
    k.I("s_mul_i32", s(st1), s(skap), ZK16)
    k.I("s_add_u32", s(sZb), s(sZb), s(st1))
    k.I("s_add_u32", s(sZb), s(sZb), hex(Z2_OFF))
    k.I("s_lshl_b32", s(smZ), s(sw3), 12)
    k.I("s_lshl_b32", s(st0), s(stt), 7)
    k.I("s_lshl_b32", s(st1), s(sw3), 5)
    k.I("s_add_u32", s(st0), s(st0), s(st1))
    k.I("s_lshl_b32", s(sWb), s(st0), 12)
    k.I("s_lshl_b32", s(st1), s(skap), 11)
    k.I("s_add_u32", s(sWb), s(sWb), s(st1))
    k.I("s_add_u32", s(smW), s(smZ), 16384)
    srot = k.salloc(); scp = k.salloc(); sa1 = k.salloc(); sa2 = k.salloc()
    k.I("s_lshl_b32", s(st0), s(sft), 1)
    k.I("s_mul_i32", s(st1), s(stt), 5)
    k.I("s_add_u32", s(srot), s(st0), s(st1))
    k.I("s_and_b32", s(srot), s(srot), 15)
    if not rot_on(5): k.I("s_mov_b32", s(srot), 0)
    def issue(c):
        sl = (c % NS) * SLOT
        k.I("s_add_u32", s(scp), s(srot), c)
        k.I("s_and_b32", s(scp), s(scp), 15)
        k.I("s_lshl_b32", s(sa1), s(scp), 11)
        k.I("s_add_u32", s(sa1), s(sa1), s(sZb))
        k.I("s_lshl_b32", s(sa2), s(scp), 7)
        k.I("s_add_u32", s(sa2), s(sa2), s(sWb))
        for i in range(4):
            k.I("s_add_u32", s(soff), s(sa1), hex((i >> 1) * ZS16 + (i & 1) * 1024))
            k.I("s_add_u32", "m0", s(smZ), hex(sl + i * 1024))
            k.vm(("S", c), "buffer_load_dwordx4", v(v16), sr(sWS, 4), s(soff), mods="offen lds")
        for i in range(4):
            k.I("s_add_u32", s(soff), s(sa2), hex(i * 8 * 4096))
            k.I("s_add_u32", "m0", s(smW), hex(sl + i * 1024))
            k.vm(("S", c), "buffer_load_dwordx4", v(vWo + (i & 1)), sr(sSp, 4), s(soff), mods="offen lds")
    NST = 16
    sZ1 = k.salloc()
    k.I("s_lshl_b32", s(st0), s(stt), 2)
    k.I("s_add_u32", s(st0), s(st0), s(sw3))
    k.I("s_mul_i32", s(sZ1), s(st0), 56 * 1024)
    k.I("s_lshl_b32", s(st1), s(sft), 13)
    k.I("s_add_u32", s(sZ1), s(sZ1), s(st1))
    k.I("s_add_u32", s(sZ1), s(sZ1), hex(Z1_OFF))
    smZ1 = k.salloc()
    k.I("s_lshl_b32", s(smZ1), s(sw3), 12 if DEEP else 13)
    def z1_lds(i):
        if DEEP: return ((16 + i // 4) % NS) * SLOT + (i % 4) * 1024
        return Z1REG + i * 1024
    def issue_z1(i, tag):
        k.I("s_add_u32", s(soff), s(sZ1), hex(i * 1024))
        k.I("s_add_u32", "m0", s(smZ1), hex(z1_lds(i)))
        k.vm(("S", tag), "buffer_load_dwordx4", v(v16), sr(sWS, 4), s(soff), mods="offen lds")
    LT = os.environ.get("TICKWAVE", "0") != "0"
    k.I("s_waitcnt", "lgkmcnt(0)")
    srd(k, sWS, pWS, WS_SIZE)
    srd(k, sSp, pSp, 2048 * 4096)
    if LT: stp.tick(1)
    issue(0)
    if LT: stp.tick(2)
    issue(1)
    if LT: stp.tick(3)
    for c in range(NST):
        k.wait_vm(("S", c))
        if LT and c < 3: stp.tick(4 + 2 * c)
        k.I("s_barrier")
        if LT and c < 3: stp.tick(5 + 2 * c)
        if DEEP:
            if c == 0: issue(2); issue(3); issue(4)
            elif c >= 2 and c + 3 < NST: issue(c + 3)
            elif c + 3 in (16, 17):
                for i in range(4): issue_z1(4 * (c + 3 - 16) + i, c + 3)
            continue
        if c == 0: issue(2); issue(3)
        elif c + 2 < NST and c >= 2:
            issue(c + 2)
            if 3 <= c < 11: issue_z1(c - 3, c + 2)
    if DEEP:
        k.wait_vm([("S", 16), ("S", 17)])
        k.I("s_barrier")
    vT = k.valloc()
    k.I("s_lshl_b32", s(st0), s(sidx), 8)
    k.I("v_subrev_u32", v(vT), 256, "v0")
    k.I("v_add_u32", v(vT), s(st0), v(vT))
    k.I("v_lshlrev_b32", v(vT), 7, v(vT))
    if LT: stp.dump_ticks()
    k.I("s_endpgm")
    k.L(comp)
    if os.environ.get("PRIO_C"): k.I("s_setprio", int(os.environ["PRIO_C"]))
    k.vnext = vsave; k.vmq = []; k.lgq = []
    l31 = k.valloc(); hh = k.valloc()
    k.I("v_and_b32", v(l31), 31, v(lane))
    k.I("v_lshrrev_b32", v(hh), 5, v(lane))
    sfh = k.salloc(); sth = k.salloc(); sst = k.salloc(); sf32 = k.salloc()
    k.I("s_and_b32", s(sfh), s(swave), 1)
    k.I("s_lshr_b32", s(sth), s(swave), 1)
    k.I("s_lshl_b32", s(sst), s(stt), 2)
    k.I("s_lshl_b32", s(st0), s(sth), 1)
    k.I("s_add_u32", s(sst), s(sst), s(st0))
    k.I("s_lshl_b32", s(sf32), s(sft), 2)
    k.I("s_lshl_b32", s(st0), s(sfh), 1)
    k.I("s_add_u32", s(sf32), s(sf32), s(st0))
    if os.environ.get("PF3", "0") == "1":
        vT0 = k.valloc(); vd0 = k.valloc(2)
        k.I("s_lshl_b32", s(st0), s(sidx), 8)
        k.I("v_add_u32", v(vT0), s(st0), "v0")
        k.I("s_lshl_b32", s(st1), s(skap), 16)
        k.I("s_add_u32", s(st1), s(st1), hex(Z2_OFF))
        for i in range(2):
            k.I("v_add_u32", v(t0), 7168 * i, v(vT0))
            k.I("v_lshrrev_b32", v(t1), 9, v(t0))
            k.I("v_lshlrev_b32", v(t1), 17, v(t1))
            k.I("v_and_b32", v(t2), 511, v(t0))
            k.I("v_lshl_add_u32", v(t1), v(t2), 7, v(t1))
            k.vm("pf", "buffer_load_dword", v(vd0 + i), v(t1), sr(sWS, 4), s(st1), mods="offen")
    v16 = k.valloc(); l15 = k.valloc(); gg = k.valloc()
    k.I("v_lshlrev_b32", v(v16), 4, v(lane))
    k.I("v_and_b32", v(l15), 15, v(lane))
    k.I("v_lshrrev_b32", v(gg), 4, v(lane))
    rr = [k.valloc(2) for _ in range(4)]; bb = [k.valloc(2) for _ in range(4)]
    k.I("v_lshlrev_b32", v(t0), 2, v(l15))
    k.I("v_lshlrev_b32", v(t1), 1, v(l15))
    k.I("s_lshl_b32", s(st0), s(sst), 5)
    k.I("s_waitcnt", "lgkmcnt(0)")
    srd(k, sWS, pWS, WS_SIZE)
    srd(k, sB, pB, 4096)
    for ti in range(4):
        k.I("s_add_u32", s(st1), s(st0), 16 * ti)
        k.I("s_lshl_b32", s(soff), s(st1), 2)
        k.I("s_add_u32", s(soff), s(soff), hex(RH_OFF))
        k.vm("z1", "buffer_load_dword", v(rr[ti]), v(t0), sr(sWS, 4), s(soff), mods="offen")
        k.I("s_lshl_b32", s(soff), s(st1), 1)
        k.vm("z1", "buffer_load_ushort", v(bb[ti]), v(t1), sr(sB, 4), s(soff), mods="offen")
    code_prefetch(k, "k6_wout_kernel", sidx, st0)
    stp.stamp(0)
    aZ = k.valloc(); aW = k.valloc(2)
    k.I("s_lshl_b32", s(st0), s(sfh), 13)
    k.I("v_add_u32", v(aZ), s(st0), v(v16))
    k.I("v_lshrrev_b32", v(t0), 1, v(l15))
    for b_ in range(2):
        k.I("v_add_u32", v(t1), 4 * b_, v(gg))
        k.I("v_xor_b32", v(t1), v(t1), v(t0))
        k.I("v_lshlrev_b32", v(t1), 4, v(t1))
        k.I("v_lshl_add_u32", v(aW + b_), v(l15), 7, v(t1))
        k.I("s_lshl_b32", s(st0), s(sth), 13)
        k.I("s_add_u32", s(st0), s(st0), 16384)
        k.I("v_add_u32", v(aW + b_), s(st0), v(aW + b_))
    aZ2 = k.valloc(); aW2 = k.valloc(2)
    k.I("v_add_u32", v(aZ2), 65536, v(aZ))
    for j in range(2): k.I("v_add_u32", v(aW2 + j), 65536, v(aW + j))
    acc = [[k.valloc(4) for _ in range(4)] for _ in range(4)]
    NB = 2
    vfr = k.vnext
    zf = [[k.valloc(4) for _ in range(4)] for _ in range(NB)]
    wf = [[k.valloc(4) for _ in range(4)] for _ in range(NB)]
    def rl(kk):
        c, b_ = kk // 2, kk % 2
        bs = kk % NB
        sl = (c % NS) * SLOT
        hi = sl >= 65536
        so = sl - (65536 if hi else 0)
        out = []
        for i in range(4):
            out.append(lambda i=i: k.lg(("f", kk), "ds_read_b128", vr(zf[bs][i], 4), v(aZ2 if hi else aZ), mods=f"offset:{so + i * 2048 + b_ * 1024}"))
            out.append(lambda i=i: k.lg(("f", kk), "ds_read_b128", vr(wf[bs][i], 4), v((aW2 if hi else aW) + b_), mods=f"offset:{so + i * 2048}"))
        return out
    k.I("s_barrier")
    stp.stamp(1)
    for f in rl(0): f()
    NKK = NST * 2
    for kk in range(NKK):
        c, b_ = kk // 2, kk % 2
        bs = kk % NB
        if b_ == 1 and kk + 1 < NKK: k.I("s_barrier")
        k.wait_lg(("f", kk))
        mf = []
        for fi in range(4):
            for ti in range(4):
                mf.append(lambda fi=fi, ti=ti: k.I("v_mfma_f32_16x16x32_bf16", vr(acc[fi][ti], 4), vr(zf[bs][fi], 4), vr(wf[bs][ti], 4), 0 if kk == 0 else vr(acc[fi][ti], 4)))
        fl = rl(kk + 1) if kk + 1 < NKK else []
        for i, m_ in enumerate(mf):
            m_()
            if i % 2 == 1 and fl: fl.pop(0)()
    stp.stamp(2)
    k.vnext = vfr
    z1 = [[k.valloc(2) for _ in range(4)] for _ in range(4)]
    vz = k.valloc()
    k.I("v_and_b32", v(t0), 1, v(gg))
    k.I("v_lshlrev_b32", v(vz), 9, v(t0))
    k.I("v_lshl_add_u32", v(vz), v(l15), 4, v(vz))
    k.I("v_lshrrev_b32", v(t0), 1, v(gg))
    k.I("v_lshl_add_u32", v(vz), v(t0), 3, v(vz))
    vu = k.valloc()
    k.I("v_mov_b32", v(vu), v(vz))
    k.I("s_lshl_b32", s(st0), s(sth), 14)
    k.I("s_lshl_b32", s(st1), s(sfh), 12)
    k.I("s_add_u32", s(st0), s(st0), s(st1))
    k.I("s_add_u32", s(st0), s(st0), Z1REG)
    k.I("v_add_u32", v(vz), s(st0), v(vz))
    for ti in range(4):
        for fi in range(4):
            o = (ti >> 1) * 8192 + (ti & 1) * 256 + fi * 1024
            k.lg(("z1", ti), "ds_read_b64", vr(z1[fi][ti], 2), v(vz), mods=f"offset:{o}")
    k.wait_vm("z1")
    for ti in range(4):
        k.I("v_lshlrev_b32", v(bb[ti]), 16, v(bb[ti]))
        k.I("v_mul_f32", v(bb[ti]), v(bb[ti]), v(rr[ti]))
    k.I("s_cmp_eq_u32", s(skap), 0)
    k.I("s_cselect_b32", s(st0), "1.0", 0)
    for ti in range(4): k.I("v_mul_f32", v(bb[ti]), s(st0), v(bb[ti]))
    tp = [k.valloc(4) for _ in range(4)]
    PP = [k.valloc(2) for _ in range(8)]
    sU = k.salloc(); sUf = k.salloc()
    k.I("s_mul_i32", s(sU), s(skap), U1_OFF - U0_OFF)
    k.I("s_add_u32", s(sU), s(sU), hex(U0_OFF))
    k.I("s_lshl_b32", s(st0), s(sf32), 11)
    k.I("s_add_u32", s(sU), s(sU), s(st0))
    n = 0
    for ti in range(4):
        k.wait_lg(("z1", ti))
        k.I("s_add_u32", s(st0), s(sst), ti >> 1)
        k.I("s_mul_i32", s(sUf), s(st0), 56 * 1024)
        k.I("s_add_u32", s(sUf), s(sUf), s(sU))
        for fi in range(4):
            A = acc[fi][ti]
            k.I("v_pk_fma_f32", vr(A, 2), vr(A, 2), vr(rr[ti], 2), vr(bb[ti], 2), mods="op_sel_hi:[1,0,0]")
            k.I("v_pk_fma_f32", vr(A + 2, 2), vr(A + 2, 2), vr(rr[ti], 2), vr(bb[ti], 2), mods="op_sel_hi:[1,0,0]")
            T = tp[fi]; Zp = z1[fi][ti]
            k.I("v_lshlrev_b32", v(T), 16, v(Zp))
            k.I("v_and_b32", v(T + 1), "0xffff0000", v(Zp))
            k.I("v_lshlrev_b32", v(T + 2), 16, v(Zp + 1))
            k.I("v_and_b32", v(T + 3), "0xffff0000", v(Zp + 1))
        for fi in range(4):
            A = acc[fi][ti]; T = tp[fi]
            k.I("v_pk_mul_f32", vr(A, 2), vr(A, 2), vr(T, 2))
            k.I("v_pk_mul_f32", vr(A + 2, 2), vr(A + 2, 2), vr(T + 2, 2))
        for fi in range(4):
            A = acc[fi][ti]; P_ = PP[n % 8]; n += 1
            k.I("v_cvt_pk_bf16_f32", v(P_), v(A), v(A + 1))
            k.I("v_cvt_pk_bf16_f32", v(P_ + 1), v(A + 2), v(A + 3))
            k.I("buffer_store_dwordx2", vr(P_, 2), v(vu), sr(sWS, 4), s(sUf), mods=f"offen offset:{(ti & 1) * 256 + fi * 1024}")
    stp.stamp(3)
    if not LT: stp.tick(10)
    if not LT: stp.dump_ticks()
    k.I("s_endpgm")
    k.L(pfrole)
    vT2 = k.valloc()
    k.I("s_sub_u32", s(st0), s(sidx), 28)
    k.I("s_lshl_b32", s(st0), s(st0), 9)
    k.I("v_add_u32", v(vT2), s(st0), "v0")
    k.I("v_lshlrev_b32", v(vT2), 7, v(vT2))
    l2_prefetch(k, 56, 896 * 896, vT2, 2048, st0)
    k.L(R["done"])
    k.I("s_endpgm")
    k.lds = lds; k.threads = 512; k.grid = 256
    return k

def gen_k56(Stamper):
    k = Kernel("k5_sp_kernel")
    NS = 4; SLOT = 32768
    Z1REG = NS * SLOT
    lds = Z1REG + 32768
    R = common_start(k, 256)
    swave, st0, st1, soff, lane, t0, t1, t2 = (R[x] for x in ("swave", "st0", "st1", "soff", "lane", "t0", "t1", "t2"))
    pSp = k.salloc(2); pB = k.salloc(2); pWS = k.salloc(2)
    k.I("s_load_dwordx2", sr(pSp, 2), "s[0:1]", 40)
    k.I("s_load_dwordx2", sr(pB, 2), "s[0:1]", 48)
    k.I("s_load_dwordx2", sr(pWS, 2), "s[0:1]", 80)
    pWo = k.salloc(2); pOD = k.salloc(4)
    k.I("s_load_dwordx2", sr(pWo, 2), "s[0:1]", 56)
    k.I("s_load_dwordx4", sr(pOD, 4), "s[0:1]", 64)
    sWS = k.salloc(4); sSp = k.salloc(4); sB = k.salloc(4); sWo = k.salloc(4); sOut = k.salloc(4); sD = k.salloc(4)
    sj = k.salloc(); sidx = k.salloc(); stt = k.salloc(); sft = k.salloc(); skap = k.salloc(); sw3 = k.salloc()
    if os.environ.get("K5MAP") == "linear":
        k.I("s_mul_i32", s(sj), "s2", 2341)
        k.I("s_lshr_b32", s(sj), s(sj), 16)
        k.I("s_mul_i32", s(sidx), s(sj), 28)
        k.I("s_sub_u32", s(sidx), "s2", s(sidx))
    else:
        k.I("s_and_b32", s(sj), "s2", 7)
        k.I("s_lshr_b32", s(sidx), "s2", 3)
    pfrole = k.newlabel("pfrole")
    k.I("s_cmp_ge_u32", s(sidx), 28)
    k.I("s_cbranch_scc1", pfrole)
    k.I("s_and_b32", s(sw3), s(swave), 3)
    k.I("s_and_b32", s(skap), s(sj), 1)
    k.I("s_mul_i32", s(st0), s(sidx), 37)
    k.I("s_lshr_b32", s(st0), s(st0), 8)
    k.I("s_mul_i32", s(st1), s(st0), 7)
    k.I("s_sub_u32", s(sft), s(sidx), s(st1))
    k.I("s_lshr_b32", s(stt), s(sj), 1)
    k.I("s_lshl_b32", s(stt), s(stt), 2)
    k.I("s_add_u32", s(stt), s(stt), s(st0))
    stp = Stamper(k, 4, sWS, swave)
    if os.environ.get("TICKWAVE", "0") != "0": stp.tick(0)
    k.I("s_waitcnt", "lgkmcnt(0)")
    srd(k, sWS, pWS, WS_SIZE)
    comp = k.newlabel("compute")
    k.I("s_cmp_lt_u32", s(swave), 4)
    k.I("s_cbranch_scc1", comp)
    vsave = k.vnext
    if os.environ.get("PRIO_L"): k.I("s_setprio", int(os.environ["PRIO_L"]))
    srd(k, sSp, pSp, 2048 * 4096)
    v16 = k.valloc(); vWo = k.valloc(2)
    k.I("v_lshlrev_b32", v(v16), 4, v(lane))
    k.I("v_lshrrev_b32", v(t0), 3, v(lane))
    k.I("v_lshlrev_b32", v(t0), 12, v(t0))
    k.I("v_lshrrev_b32", v(t1), 4, v(lane))
    k.I("v_and_b32", v(t2), 7, v(lane))
    k.I("v_xor_b32", v(t1), v(t1), v(t2))
    k.I("v_lshl_add_u32", v(vWo), v(t1), 4, v(t0))
    k.I("v_xor_b32", v(t1), 4, v(t1))
    k.I("v_lshl_add_u32", v(vWo + 1), v(t1), 4, v(t0))
    sZb = k.salloc(); sWb = k.salloc(); smZ = k.salloc(); smW = k.salloc()
    k.I("s_lshl_b32", s(st0), s(sft), 2)
    k.I("s_add_u32", s(st0), s(st0), s(sw3))
    k.I("s_mul_i32", s(sZb), s(st0), ZS)
    k.I("s_mul_i32", s(st1), s(skap), ZK)
    k.I("s_add_u32", s(sZb), s(sZb), s(st1))
    k.I("s_add_u32", s(sZb), s(sZb), hex(Z2_OFF))
    k.I("s_lshl_b32", s(smZ), s(sw3), 12)
    k.I("s_lshl_b32", s(st0), s(stt), 7)
    k.I("s_lshl_b32", s(st1), s(sw3), 5)
    k.I("s_add_u32", s(st0), s(st0), s(st1))
    k.I("s_lshl_b32", s(sWb), s(st0), 12)
    k.I("s_lshl_b32", s(st1), s(skap), 11)
    k.I("s_add_u32", s(sWb), s(sWb), s(st1))
    k.I("s_add_u32", s(smW), s(smZ), 16384)
    def issue(c):
        sl = (c % NS) * SLOT
        def zpart():
            for i in range(4):
                k.I("s_add_u32", s(soff), s(sZb), hex((4 * c + i) * 1024))
                k.I("s_add_u32", "m0", s(smZ), hex(sl + i * 1024))
                k.vm(("S", c), "buffer_load_dwordx4", v(v16), sr(sWS, 4), s(soff), mods="offen lds")
                if os.environ.get("DIAG5") and c == 0 and i in (0, 3):
                    k.I("s_waitcnt", "vmcnt(0)"); stp.tick(10 + (i > 0))
        def wpart():
            for i in range(4):
                k.I("s_add_u32", s(soff), s(sWb), hex(i * 8 * 4096 + c * 128))
                k.I("s_add_u32", "m0", s(smW), hex(sl + i * 1024))
                k.vm(("S", c), "buffer_load_dwordx4", v(vWo + (i & 1)), sr(sSp, 4), s(soff), mods="offen lds")
                if os.environ.get("DIAG5") and c == 0 and i in (0, 3):
                    k.I("s_waitcnt", "vmcnt(0)"); stp.tick(12 + (i > 0))
        if os.environ.get("DIAG5") == "2": wpart(); zpart()
        else: zpart(); wpart()
    NST = 16
    sZ1 = k.salloc()
    k.I("s_lshl_b32", s(st0), s(stt), 2)
    k.I("s_add_u32", s(st0), s(st0), s(sw3))
    k.I("s_mul_i32", s(sZ1), s(st0), 56 * 1024)
    k.I("s_lshl_b32", s(st1), s(sft), 13)
    k.I("s_add_u32", s(sZ1), s(sZ1), s(st1))
    k.I("s_add_u32", s(sZ1), s(sZ1), hex(Z1_OFF))
    smZ1 = k.salloc()
    k.I("s_lshl_b32", s(smZ1), s(sw3), 13)
    def issue_z1(i, tag):
        k.I("s_add_u32", s(soff), s(sZ1), hex(i * 1024))
        k.I("s_add_u32", "m0", s(smZ1), hex(Z1REG + i * 1024))
        k.vm(("S", tag), "buffer_load_dwordx4", v(v16), sr(sWS, 4), s(soff), mods="offen lds")
    LT = os.environ.get("TICKWAVE", "0") != "0"
    if LT: stp.tick(1)
    issue(0)
    if LT: stp.tick(2)
    issue(1)
    if LT: stp.tick(3)
    for c in range(NST):
        k.wait_vm(("S", c))
        if LT and c < 3: stp.tick(4 + 2 * c)
        k.I("s_barrier")
        if LT and c < 3: stp.tick(5 + 2 * c)
        if c == 0: issue(2); issue(3)
        elif c + 2 < NST and c >= 2:
            issue(c + 2)
            if 3 <= c < 11: issue_z1(c - 3, c + 2)
    srd(k, sWo, pWo, 896 * 896)
    vWd = k.valloc(); sWd = k.salloc(); smD = k.salloc()
    k.I("v_lshrrev_b32", v(t0), 3, v(lane))
    k.I("v_mul_u32_u24", v(t0), 896, v(t0))
    k.I("v_bfe_u32", v(t1), v(lane), 4, 1)
    k.I("v_lshlrev_b32", v(t1), 2, v(t1))
    k.I("v_and_b32", v(t2), 7, v(lane))
    k.I("v_xor_b32", v(t1), v(t1), v(t2))
    k.I("v_lshl_add_u32", v(vWd), v(t1), 4, v(t0))
    k.I("s_mul_i32", s(sWd), s(sw3), 224 * 896)
    k.I("s_lshl_b32", s(st1), s(sft), 7)
    k.I("s_add_u32", s(sWd), s(sWd), s(st1))
    k.I("s_mul_i32", s(smD), s(sw3), 224 * 128)
    k.I("s_barrier")
    for i in range(28):
        k.I("s_add_u32", s(soff), s(sWd), hex(i * 8 * 896))
        k.I("s_add_u32", "m0", s(smD), hex(i * 1024))
        k.I("buffer_load_dwordx4", v(vWd), sr(sWo, 4), s(soff), mods="offen lds")
    k.I("s_waitcnt", "vmcnt(0)")
    k.I("s_barrier")
    k.I("s_endpgm")
    k.L(comp)
    if os.environ.get("PRIO_C"): k.I("s_setprio", int(os.environ["PRIO_C"]))
    k.vnext = vsave; k.vmq = []; k.lgq = []
    srd(k, sB, pB, 4096)
    l31 = k.valloc(); hh = k.valloc()
    k.I("v_and_b32", v(l31), 31, v(lane))
    k.I("v_lshrrev_b32", v(hh), 5, v(lane))
    sfh = k.salloc(); sth = k.salloc(); sst = k.salloc(); sf32 = k.salloc()
    k.I("s_and_b32", s(sfh), s(swave), 1)
    k.I("s_lshr_b32", s(sth), s(swave), 1)
    k.I("s_lshl_b32", s(sst), s(stt), 2)
    k.I("s_lshl_b32", s(st0), s(sth), 1)
    k.I("s_add_u32", s(sst), s(sst), s(st0))
    k.I("s_lshl_b32", s(sf32), s(sft), 2)
    k.I("s_lshl_b32", s(st0), s(sfh), 1)
    k.I("s_add_u32", s(sf32), s(sf32), s(st0))
    if os.environ.get("PF3", "0") == "1":
        vT0 = k.valloc(); vd0 = k.valloc(2)
        k.I("s_lshl_b32", s(st0), s(sidx), 8)
        k.I("v_add_u32", v(vT0), s(st0), "v0")
        k.I("s_lshl_b32", s(st1), s(skap), 16)
        k.I("s_add_u32", s(st1), s(st1), hex(Z2_OFF))
        for i in range(2):
            k.I("v_add_u32", v(t0), 7168 * i, v(vT0))
            k.I("v_lshrrev_b32", v(t1), 9, v(t0))
            k.I("v_lshlrev_b32", v(t1), 17, v(t1))
            k.I("v_and_b32", v(t2), 511, v(t0))
            k.I("v_lshl_add_u32", v(t1), v(t2), 7, v(t1))
            k.vm("pf", "buffer_load_dword", v(vd0 + i), v(t1), sr(sWS, 4), s(st1), mods="offen")
    v16 = k.valloc()
    k.I("v_lshlrev_b32", v(v16), 4, v(lane))
    vB = k.vnext
    z1 = [[k.valloc(8, 4) for _ in range(2)] for _ in range(2)]
    rr = [k.valloc(2) for _ in range(2)]; bb = [k.valloc(2) for _ in range(2)]
    k.I("v_lshlrev_b32", v(t0), 2, v(l31))
    k.I("v_lshlrev_b32", v(t1), 1, v(l31))
    for ti in range(2):
        k.I("s_add_u32", s(st0), s(sst), ti)
        k.I("s_lshl_b32", s(soff), s(st0), 7)
        k.I("s_add_u32", s(soff), s(soff), hex(RH_OFF))
        k.vm("z1", "buffer_load_dword", v(rr[ti]), v(t0), sr(sWS, 4), s(soff), mods="offen")
        k.I("s_lshl_b32", s(soff), s(st0), 6)
        k.vm("z1", "buffer_load_ushort", v(bb[ti]), v(t1), sr(sB, 4), s(soff), mods="offen")
    if os.environ.get("PF2", "0") == "1":
        pp = k.salloc(2); sP = k.salloc(4); vT = k.valloc(); vd = k.valloc(2)
        k.I("s_load_dwordx2", sr(pp, 2), "s[0:1]", 56)
        k.I("s_lshl_b32", s(st0), s(sidx), 8)
        k.I("v_add_u32", v(vT), s(st0), "v0")
        k.I("v_lshlrev_b32", v(vT), 7, v(vT))
        k.I("s_waitcnt", "lgkmcnt(0)")
        srd(k, sP, pp, 896 * 896)
        k.vm("pf", "buffer_load_dword", v(vd), v(vT), sr(sP, 4), 0, mods="offen")
    stp.stamp(0)
    aZ = k.valloc(); aW = k.valloc(4)
    k.I("s_lshl_b32", s(st0), s(sfh), 13)
    k.I("v_add_u32", v(aZ), s(st0), v(v16))
    k.I("v_bfe_u32", v(t0), v(l31), 1, 3)
    for j in range(4):
        k.I("v_add_u32", v(t1), 2 * j, v(hh))
        k.I("v_xor_b32", v(t1), v(t1), v(t0))
        k.I("v_lshlrev_b32", v(t1), 4, v(t1))
        k.I("v_lshl_add_u32", v(aW + j), v(l31), 7, v(t1))
        k.I("s_lshl_b32", s(st0), s(sth), 13)
        k.I("s_add_u32", s(st0), s(st0), 16384)
        k.I("v_add_u32", v(aW + j), s(st0), v(aW + j))
    aZ2 = k.valloc(); aW2 = k.valloc(4)
    k.I("v_add_u32", v(aZ2), 65536, v(aZ))
    for j in range(4): k.I("v_add_u32", v(aW2 + j), 65536, v(aW + j))
    acc = [[k.valloc(16, 4) for _ in range(2)] for _ in range(2)]
    NB = 3
    zf = [[k.valloc(4) for _ in range(2)] for _ in range(NB)]
    wf = [[k.valloc(4) for _ in range(2)] for _ in range(NB)]
    def rl(ks):
        c, j = ks // 4, ks % 4
        b = ks % NB
        sl = (c % NS) * SLOT
        hi = sl >= 65536
        so = sl - (65536 if hi else 0)
        out = []
        for fi in range(2):
            out.append(lambda fi=fi: k.lg(("f", ks), "ds_read_b128", vr(zf[b][fi], 4), v(aZ2 if hi else aZ), mods=f"offset:{so + fi * 4096 + j * 1024}"))
        for ti in range(2):
            out.append(lambda ti=ti: k.lg(("f", ks), "ds_read_b128", vr(wf[b][ti], 4), v((aW2 if hi else aW) + j), mods=f"offset:{so + ti * 4096}"))
        return out
    k.I("s_barrier")
    if not os.environ.get("DIAG56"): stp.stamp(1)
    for f in rl(0) + rl(1): f()
    NKS = NST * 4
    for ks in range(NKS):
        c, j = ks // 4, ks % 4
        b = ks % NB
        k.wait_lg(("f", ks))
        mf = []
        for fi in range(2):
            for ti in range(2):
                mf.append(lambda fi=fi, ti=ti: k.I("v_mfma_f32_32x32x16_bf16", vr(acc[fi][ti], 16), vr(zf[b][fi], 4), vr(wf[b][ti], 4), 0 if ks == 0 else vr(acc[fi][ti], 16)))
        fl = rl(ks + 2) if ks + 2 < NKS else []
        if j == 2 and ks + 2 < NKS:
            k.I("s_barrier")
        interleave(k, mf, fl)
    k.I("s_barrier")
    if not os.environ.get("DIAG56"): stp.stamp(2)
    vz = k.valloc()
    k.I("s_lshl_b32", s(st0), s(sth), 14)
    k.I("s_lshl_b32", s(st1), s(sfh), 12)
    k.I("s_add_u32", s(st0), s(st0), s(st1))
    k.I("s_add_u32", s(st0), s(st0), Z1REG)
    k.I("v_add_u32", v(vz), s(st0), v(v16))
    for ti in range(2):
        for fi in range(2):
            for hf_ in range(2):
                k.lg(("z1", ti, fi), "ds_read_b128", vr(z1[fi][ti] + 4 * hf_, 4), v(vz), mods=f"offset:{ti * 8192 + fi * 2048 + hf_ * 1024}")
    k.wait_vm("z1")
    for ti in range(2):
        k.I("v_lshlrev_b32", v(bb[ti]), 16, v(bb[ti]))
        k.I("v_mul_f32", v(bb[ti]), v(bb[ti]), v(rr[ti]))
    k.I("s_cmp_eq_u32", s(skap), 0)
    k.I("s_cselect_b32", s(st0), "1.0", 0)
    for ti in range(2): k.I("v_mul_f32", v(bb[ti]), s(st0), v(bb[ti]))
    tp = [k.valloc(2) for _ in range(4)]
    P = [k.valloc(8, 4) for _ in range(2)]
    sU = k.salloc()
    k.I("s_mul_i32", s(sU), s(skap), U1_OFF - U0_OFF)
    k.I("s_add_u32", s(sU), s(sU), hex(U0_OFF))
    n = 0
    for ti in range(2):
        for fi in range(2):
            A = acc[fi][ti]; Zp = z1[fi][ti]; PP = P[n & 1]; n += 1
            for j in range(8):
                k.I("v_pk_fma_f32", vr(A + 2 * j, 2), vr(A + 2 * j, 2), vr(rr[ti], 2), vr(bb[ti], 2), mods="op_sel_hi:[1,0,0]")
            k.wait_lg(("z1", ti, fi))
            for j in range(8):
                T = tp[j % 4]
                k.I("v_lshlrev_b32", v(T), 16, v(Zp + j))
                k.I("v_and_b32", v(T + 1), "0xffff0000", v(Zp + j))
                k.I("v_pk_mul_f32", vr(A + 2 * j, 2), vr(A + 2 * j, 2), vr(T, 2))
            for j in range(8): k.I("v_cvt_pk_bf16_f32", v(PP + j), v(A + 2 * j), v(A + 2 * j + 1))
            k.I("s_add_u32", s(st0), s(sst), ti)
            k.I("s_mul_i32", s(soff), s(st0), 56 * 1024)
            k.I("s_add_u32", s(st0), s(sf32), fi)
            k.I("s_lshl_b32", s(st0), s(st0), 11)
            k.I("s_add_u32", s(soff), s(soff), s(st0))
            k.I("s_add_u32", s(soff), s(soff), s(sU))
            k.I("buffer_store_dwordx4", vr(PP, 4), v(v16), sr(sWS, 4), s(soff), mods="offen")
            k.I("buffer_store_dwordx4", vr(PP + 4, 4), v(v16), sr(sWS, 4), s(soff), mods="offen offset:1024")
    stp.stamp(3)
    k.vnext = vB
    srd(k, sOut, pOD, 2048 * 896)
    srd(k, sD, pOD + 2, 256)
    srh = k.salloc(); skh = k.salloc(); sstB = k.salloc()
    k.I("s_and_b32", s(srh), s(swave), 1)
    k.I("s_lshr_b32", s(skh), s(swave), 1)
    k.I("s_lshl_b32", s(sstB), s(stt), 2)
    k.I("s_lshl_b32", s(st0), s(skap), 1)
    k.I("s_add_u32", s(sstB), s(sstB), s(st0))
    k.I("s_add_u32", s(sstB), s(sstB), s(srh))
    hr = k.valloc(8, 4)
    k.I("s_mul_i32", s(soff), s(sstB), 28 * 1024)
    k.I("s_lshl_b32", s(st0), s(sft), 1)
    k.I("s_add_u32", s(st0), s(st0), s(skh))
    sntile = k.salloc()
    k.I("s_mov_b32", s(sntile), s(st0))
    k.I("s_lshl_b32", s(st0), s(st0), 11)
    k.I("s_add_u32", s(soff), s(soff), s(st0))
    k.I("s_add_u32", s(soff), s(soff), hex(H_OFF))
    k.I("s_waitcnt", "vmcnt(0)")
    k.vmq = []
    fl = k.valloc(2); vz0 = k.valloc(); one = k.valloc()
    k.I("s_mul_i32", s(st0), s(skap), 7)
    k.I("s_add_u32", s(st0), s(st0), s(sft))
    k.I("s_lshl_b32", s(st0), s(st0), 2)
    k.I("s_add_u32", s(st0), s(st0), s(swave))
    k.I("s_lshl_b32", s(st0), s(st0), 2)
    k.I("s_lshl_b32", s(st1), s(stt), 8)
    sFL = k.salloc()
    k.I("s_add_u32", s(sFL), s(st1), hex(FL_OFF))
    k.I("s_add_u32", s(st0), s(st0), s(sFL))
    k.I("v_mov_b32", v(vz0), 0)
    k.I("v_mov_b32", v(one), 1)
    k.I("s_mov_b64", "exec", 1)
    k.I("buffer_store_dword", v(one), v(vz0), sr(sWS, 4), s(st0), mods="offen sc0 sc1")
    k.I("s_mov_b64", "exec", -1)
    k.I("buffer_load_dwordx4", vr(hr, 4), v(v16), sr(sWS, 4), s(soff), mods="offen")
    k.I("buffer_load_dwordx4", vr(hr + 4, 4), v(v16), sr(sWS, 4), s(soff), mods="offen offset:1024")
    k.I("v_min_u32", v(vz0), 55, v(lane))
    k.I("v_lshlrev_b32", v(vz0), 2, v(vz0))
    vWb = [k.valloc(), k.valloc()]
    k.I("v_bfe_u32", v(t0), v(lane), 2, 2)
    k.I("v_lshl_add_u32", v(t0), v(hh), 2, v(t0))
    k.I("s_mul_i32", s(st0), s(skh), 448)
    k.I("v_add_u32", v(t0), s(st0), v(t0))
    k.I("v_lshlrev_b32", v(t0), 7, v(t0))
    k.I("v_bfe_u32", v(t1), v(lane), 4, 1)
    k.I("v_lshlrev_b32", v(t1), 1, v(t1))
    k.I("v_bfe_u32", v(t2), v(lane), 1, 1)
    k.I("v_add_u32", v(t1), v(t1), v(t2))
    k.I("v_bfe_u32", v(t2), v(lane), 3, 1)
    k.I("v_lshlrev_b32", v(t2), 2, v(t2))
    for n2 in range(2):
        k.I("v_add_u32", v(vWb[n2]), 4 * n2, v(t1))
        k.I("v_xor_b32", v(vWb[n2]), v(vWb[n2]), v(t2))
        k.I("v_lshl_add_u32", v(vWb[n2]), v(vWb[n2]), 4, v(t0))
    k.I("v_and_b32", v(t1), 1, v(lane))
    for n2 in range(2): k.I("v_lshl_add_u32", v(vWb[n2]), v(t1), 3, v(vWb[n2]))
    sU0 = k.salloc(); sU1 = k.salloc()
    k.I("s_mul_i32", s(sU0), s(sstB), 56 * 1024)
    k.I("s_mul_i32", s(st0), s(skh), 28 * 1024)
    k.I("s_add_u32", s(sU0), s(sU0), s(st0))
    k.I("s_add_u32", s(sU1), s(sU0), hex(U1_OFF))
    k.I("s_add_u32", s(sU0), s(sU0), hex(U0_OFF))
    accB = [k.valloc(16, 4) for _ in range(2)]
    NU = 12
    uf = [[k.valloc(4) for _ in range(2)] for _ in range(NU)]
    NBW = 3
    wfB = [[k.valloc(4) for _ in range(2)] for _ in range(NBW)]
    scount = k.salloc()
    k.I("s_mov_b32", s(scount), 0)
    poll = k.newlabel("poll"); pdone = k.newlabel("pdone")
    k.L(poll)
    k.I("buffer_load_dword", v(fl), v(vz0), sr(sWS, 4), s(sFL), mods="offen sc0 sc1")
    k.I("s_waitcnt", "vmcnt(0)")
    k.I("v_cmp_ne_u32", "vcc", 1, v(fl))
    k.I("s_add_u32", s(scount), s(scount), 1)
    k.I("s_cmp_eq_u64", "vcc", 0)
    k.I("s_cbranch_scc1", pdone)
    k.I("s_cmp_lt_u32", s(scount), 0x100000)
    k.I("s_cbranch_scc0", pdone)
    k.I("s_sleep", 1)
    k.I("s_branch", poll)
    k.L(pdone)
    k.vmq = []
    stp.stamp(4)
    def uload(j):
        for ar_, sU in enumerate((sU0, sU1)):
            k.I("s_add_u32", s(soff), s(sU), hex(j * 1024))
            k.vm(("u", j), "buffer_load_dwordx4", vr(uf[j % NU][ar_], 4), v(v16), sr(sWS, 4), s(soff), mods="offen sc1")
    def wread(j):
        out = []
        for n2 in range(2):
            for beta in range(2):
                out.append(lambda n2=n2, beta=beta: k.lg(("w", j), "ds_read_b64_tr_b16", vr(wfB[j % NBW][n2] + 2 * beta, 2), v(vWb[n2]), mods=f"offset:{(16 * j + 8 * beta) * 128}"))
        return out
    for j in range(NU): uload(j)
    k.I("s_barrier")
    for f in wread(0) + wread(1): f()
    for j in range(28):
        k.wait_vm(("u", j))
        k.wait_lg(("w", j))
        mf = []
        for ar_ in range(2):
            for n2 in range(2):
                mf.append(lambda ar_=ar_, n2=n2: k.I("v_mfma_f32_32x32x16_bf16", vr(accB[n2], 16), vr(wfB[j % NBW][n2], 4), vr(uf[j % NU][ar_], 4), 0 if (j == 0 and ar_ == 0) else vr(accB[n2], 16)))
        fl_ = wread(j + 2) if j + 2 < 28 else []
        interleave(k, mf, fl_)
        if j + NU < 28: uload(j + NU)
    stp.stamp(5)
    RED = 114688
    vr1 = k.valloc(); vr2 = k.valloc()
    k.I("s_lshl_b32", s(st0), s(srh), 13)
    k.I("s_add_u32", s(st0), s(st0), RED)
    k.I("v_add_u32", v(vr1), s(st0), v(v16))
    k.I("s_lshl_b32", s(st1), s(skh), 12)
    k.I("v_add_u32", v(vr2), s(st1), v(vr1))
    k.I("s_xor_b32", s(st1), s(st1), 4096)
    k.I("v_add_u32", v(vr1), s(st1), v(vr1))
    keep = k.valloc(16, 4)
    lab_a = k.newlabel("kh1"); lab_b = k.newlabel("khj")
    k.I("s_cmp_lg_u32", s(skh), 0)
    k.I("s_cbranch_scc1", lab_a)
    for q in range(4): k.I("ds_write_b128", v(vr1), vr(accB[1] + 4 * q, 4), mods=f"offset:{q * 1024}")
    for i in range(16): k.I("v_mov_b32", v(keep + i), v(accB[0] + i))
    k.I("s_branch", lab_b)
    k.L(lab_a)
    for q in range(4): k.I("ds_write_b128", v(vr1), vr(accB[0] + 4 * q, 4), mods=f"offset:{q * 1024}")
    for i in range(16): k.I("v_mov_b32", v(keep + i), v(accB[1] + i))
    k.L(lab_b)
    k.I("s_waitcnt", "lgkmcnt(0)")
    k.lgq = []
    k.I("s_barrier")
    oth = k.valloc(16, 4)
    for q in range(4): k.I("ds_read_b128", vr(oth + 4 * q, 4), v(vr2), mods=f"offset:{q * 1024}")
    tpB = [k.valloc(2) for _ in range(4)]
    for j in range(8):
        T = tpB[j % 4]
        k.I("v_lshlrev_b32", v(T), 16, v(hr + j))
        k.I("v_and_b32", v(T + 1), "0xffff0000", v(hr + j))
        k.I("v_pk_add_f32", vr(keep + 2 * j, 2), vr(keep + 2 * j, 2), vr(T, 2))
    k.I("s_waitcnt", "lgkmcnt(0)")
    for j in range(8): k.I("v_pk_add_f32", vr(keep + 2 * j, 2), vr(keep + 2 * j, 2), vr(oth + 2 * j, 2))
    PB = k.valloc(8, 4)
    for j in range(8): k.I("v_cvt_pk_bf16_f32", v(PB + j), v(keep + 2 * j), v(keep + 2 * j + 1))
    for kp in range(2):
        k.I("v_permlane32_swap_b32", v(PB + 4 * kp), v(PB + 4 * kp + 2))
        k.I("v_permlane32_swap_b32", v(PB + 4 * kp + 1), v(PB + 4 * kp + 3))
    vo = k.valloc()
    k.I("v_mul_u32_u24", v(vo), 896, v(l31))
    k.I("v_lshl_add_u32", v(vo), v(hh), 4, v(vo))
    k.I("s_mul_i32", s(soff), s(sstB), 32 * 896)
    k.I("s_lshl_b32", s(st0), s(sntile), 6)
    k.I("s_add_u32", s(soff), s(soff), s(st0))
    for kp in range(2):
        k.I("buffer_store_dwordx4", vr(PB + 4 * kp, 4), v(vo), sr(sOut, 4), s(soff), mods=f"offen offset:{32 * kp}")
    stp.stamp(6)
    k.I("s_endpgm")
    k.L(pfrole)
    vT2 = k.valloc()
    k.I("s_sub_u32", s(st0), s(sidx), 28)
    k.I("s_lshl_b32", s(st0), s(st0), 9)
    k.I("v_add_u32", v(vT2), s(st0), "v0")
    k.I("v_lshlrev_b32", v(vT2), 7, v(vT2))
    l2_prefetch(k, 56, 896 * 896, vT2, 2048, st0)
    k.L(R["done"])
    k.I("s_endpgm")
    k.lds = lds; k.threads = 512; k.grid = 256
    return k

def gen_k6(Stamper):
    k = Kernel("k6_wout_kernel")
    NS = int(os.environ.get('K6NS', '6')); SLOT = 24576
    RED = 0
    lds = NS * SLOT
    R = common_start(k, 224)
    swave, st0, st1, soff, lane, t0, t1, t2 = (R[x] for x in ("swave", "st0", "st1", "soff", "lane", "t0", "t1", "t2"))
    pWo = k.salloc(2); pOut = k.salloc(2); pWS = k.salloc(2)
    k.I("s_load_dwordx2", sr(pWo, 2), "s[0:1]", 56)
    k.I("s_load_dwordx2", sr(pOut, 2), "s[0:1]", 64)
    k.I("s_load_dwordx2", sr(pWS, 2), "s[0:1]", 80)
    sWS = k.salloc(4); sWo = k.salloc(4); sOut = k.salloc(4)
    sj = k.salloc(); sidx = k.salloc(); srt = k.salloc(); snt = k.salloc(); sw3 = k.salloc()
    k.I("s_and_b32", s(sj), "s2", 7)
    k.I("s_lshr_b32", s(sidx), "s2", 3)
    k.I("s_and_b32", s(sw3), s(swave), 3)
    k.I("s_mul_i32", s(st0), s(sidx), 37)
    k.I("s_lshr_b32", s(st0), s(st0), 8)
    k.I("s_mul_i32", s(st1), s(st0), 7)
    k.I("s_sub_u32", s(snt), s(sidx), s(st1))
    k.I("s_lshl_b32", s(srt), s(sj), 2)
    k.I("s_add_u32", s(srt), s(srt), s(st0))
    stp = Stamper(k, 5, sWS, swave)
    comp = k.newlabel("compute")
    k.I("s_cmp_lt_u32", s(swave), 4)
    k.I("s_cbranch_scc1", comp)
    vsave = k.vnext
    if os.environ.get("PRIO_L"): k.I("s_setprio", int(os.environ["PRIO_L"]))
    v16 = k.valloc(); vWo = k.valloc()
    k.I("v_lshlrev_b32", v(v16), 4, v(lane))
    k.I("v_lshrrev_b32", v(t0), 3, v(lane))
    k.I("v_mul_u32_u24", v(t0), 896, v(t0))
    k.I("v_bfe_u32", v(t1), v(lane), 4, 1)
    k.I("v_lshlrev_b32", v(t1), 2, v(t1))
    k.I("v_and_b32", v(t2), 7, v(lane))
    k.I("v_xor_b32", v(t1), v(t1), v(t2))
    k.I("v_lshl_add_u32", v(vWo), v(t1), 4, v(t0))
    sUb = k.salloc(); sWb = k.salloc(); smU = k.salloc(); smW = k.salloc()
    k.I("s_lshr_b32", s(st0), s(sw3), 1)
    k.I("s_lshl_b32", s(st1), s(srt), 1)
    k.I("s_add_u32", s(st1), s(st1), s(st0))
    k.I("s_mul_i32", s(sUb), s(st1), 56 * 1024)
    k.I("s_and_b32", s(st1), s(sw3), 1)
    k.I("s_mul_i32", s(smU), s(st1), U1_OFF - U0_OFF)
    k.I("s_add_u32", s(sUb), s(sUb), s(smU))
    k.I("s_add_u32", s(sUb), s(sUb), hex(U0_OFF))
    k.I("s_lshl_b32", s(smU), s(st1), 13)
    k.I("s_lshl_b32", s(st0), s(st0), 12)
    k.I("s_add_u32", s(smU), s(smU), s(st0))
    k.I("s_mul_i32", s(sWb), s(sw3), 16 * 896)
    k.I("s_lshl_b32", s(st1), s(snt), 7)
    k.I("s_add_u32", s(sWb), s(sWb), s(st1))
    k.I("s_lshl_b32", s(smW), s(sw3), 11)
    k.I("s_add_u32", s(smW), s(smW), 16384)
    srot = k.salloc(); scp = k.salloc(); sa1 = k.salloc(); sa2 = k.salloc()
    k.I("s_lshl_b32", s(st0), s(snt), 1)
    k.I("s_and_b32", s(st1), s(srt), 3)
    k.I("s_mul_i32", s(st1), s(st1), 3)
    k.I("s_add_u32", s(srot), s(st0), s(st1))
    k.I("s_cmp_ge_u32", s(srot), 14)
    k.I("s_cselect_b32", s(st0), 14, 0)
    k.I("s_sub_u32", s(srot), s(srot), s(st0))
    if not rot_on(6): k.I("s_mov_b32", s(srot), 0)
    def issue(c):
        sl = (c % NS) * SLOT
        rot_index(k, scp, srot, c, 14)
        k.I("s_lshl_b32", s(sa1), s(scp), 12)
        k.I("s_add_u32", s(sa1), s(sa1), s(sUb))
        k.I("s_mul_i32", s(sa2), s(scp), 64 * 896)
        k.I("s_add_u32", s(sa2), s(sa2), s(sWb))
        for i in range(4):
            k.I("s_add_u32", s(soff), s(sa1), hex(i * 1024))
            k.I("s_add_u32", "m0", s(smU), hex(sl + i * 1024))
            k.vm(("S", c), "buffer_load_dwordx4", v(v16), sr(sWS, 4), s(soff), mods="offen lds")
        for i in range(2):
            k.I("s_add_u32", s(soff), s(sa2), hex(8 * i * 896))
            k.I("s_add_u32", "m0", s(smW), hex(sl + i * 1024))
            k.vm(("S", c), "buffer_load_dwordx4", v(vWo), sr(sWo, 4), s(soff), mods="offen lds")
    NST = 14
    k.I("s_waitcnt", "lgkmcnt(0)")
    srd(k, sWS, pWS, WS_SIZE)
    srd(k, sWo, pWo, 896 * 896)
    for c in range(3): issue(c)
    for c in range(NST):
        k.wait_vm(("S", c))
        k.I("s_barrier")
        if c == 0:
            for cc in range(3, NS): issue(cc)
        elif c + NS - 2 < NST and c >= 2: issue(c + NS - 2)
    k.I("s_endpgm")
    k.L(comp)
    if os.environ.get("PRIO_C"): k.I("s_setprio", int(os.environ["PRIO_C"]))
    k.vnext = vsave; k.vmq = []; k.lgq = []
    l31 = k.valloc(); hh = k.valloc()
    k.I("v_and_b32", v(l31), 31, v(lane))
    k.I("v_lshrrev_b32", v(hh), 5, v(lane))
    srh = k.salloc(); snh = k.salloc(); sst = k.salloc(); sntile = k.salloc()
    k.I("s_and_b32", s(srh), s(swave), 1)
    k.I("s_lshr_b32", s(snh), s(swave), 1)
    k.I("s_lshl_b32", s(sst), s(srt), 1)
    k.I("s_add_u32", s(sst), s(sst), s(srh))
    k.I("s_lshl_b32", s(sntile), s(snt), 1)
    k.I("s_add_u32", s(sntile), s(sntile), s(snh))
    if os.environ.get("PF3", "0") == "1":
        vT0 = k.valloc(); vd0 = k.valloc(2)
        k.I("s_lshl_b32", s(st0), s(sidx), 8)
        k.I("v_add_u32", v(vT0), s(st0), "v0")
        k.I("v_mov_b32", v(t0), hex(U1_OFF - U0_OFF - 3584 * 128))
        k.I("v_cmp_le_u32", "vcc", 3584, v(vT0))
        k.I("v_cndmask_b32", v(t0), 0, v(t0), "vcc")
        k.I("v_lshl_add_u32", v(t0), v(vT0), 7, v(t0))
        k.I("s_mul_i32", s(st1), s(sj), 8 * 56 * 1024)
        k.I("s_add_u32", s(st1), s(st1), hex(U0_OFF))
        k.vm("pf", "buffer_load_dword", v(vd0), v(t0), sr(sWS, 4), s(st1), mods="offen")
    v16 = k.valloc()
    k.I("v_lshlrev_b32", v(v16), 4, v(lane))
    hr = k.valloc(8, 4)
    k.I("s_mul_i32", s(soff), s(sst), 28 * 1024)
    k.I("s_lshl_b32", s(st0), s(sntile), 11)
    k.I("s_add_u32", s(soff), s(soff), s(st0))
    k.I("s_add_u32", s(soff), s(soff), hex(H_OFF))
    k.I("s_waitcnt", "lgkmcnt(0)")
    srd(k, sWS, pWS, WS_SIZE)
    srd(k, sOut, pOut, 2048 * 896)
    k.vm("h", "buffer_load_dwordx4", vr(hr, 4), v(v16), sr(sWS, 4), s(soff), mods="offen")
    k.vm("h", "buffer_load_dwordx4", vr(hr + 4, 4), v(v16), sr(sWS, 4), s(soff), mods="offen offset:1024")
    stp.stamp(0)
    aU = k.valloc(); vW = k.valloc()
    k.I("s_lshl_b32", s(st0), s(srh), 12)
    k.I("v_add_u32", v(aU), s(st0), v(v16))
    k.I("v_bfe_u32", v(t0), v(lane), 2, 2)
    k.I("v_lshl_add_u32", v(t0), v(hh), 2, v(t0))
    k.I("v_lshlrev_b32", v(vW), 7, v(t0))
    k.I("v_add_u32", v(vW), 16384, v(vW))
    k.I("v_bfe_u32", v(t0), v(lane), 4, 1)
    k.I("v_lshlrev_b32", v(t0), 1, v(t0))
    k.I("v_bfe_u32", v(t1), v(lane), 1, 1)
    k.I("v_add_u32", v(t0), v(t0), v(t1))
    k.I("s_lshl_b32", s(st0), s(snh), 2)
    k.I("v_add_u32", v(t0), s(st0), v(t0))
    k.I("v_bfe_u32", v(t1), v(lane), 3, 1)
    k.I("v_lshlrev_b32", v(t1), 2, v(t1))
    k.I("v_xor_b32", v(t0), v(t0), v(t1))
    k.I("v_lshl_add_u32", v(vW), v(t0), 4, v(vW))
    k.I("v_and_b32", v(t0), 1, v(lane))
    k.I("v_lshl_add_u32", v(vW), v(t0), 3, v(vW))
    aU2 = k.valloc(); vW2 = k.valloc()
    k.I("v_add_u32", v(aU2), 3 * SLOT, v(aU))
    k.I("v_add_u32", v(vW2), 3 * SLOT, v(vW))
    acc = k.valloc(16, 4)
    NB = 3
    uf = [[k.valloc(4) for _ in range(2)] for _ in range(NB)]; wf = [k.valloc(4) for _ in range(NB)]
    def rl(ks):
        c, j = ks // 4, ks % 4
        b = ks % NB
        sl = (c % NS)
        hi = sl >= 3
        so = (sl - (3 if hi else 0)) * SLOT
        out = []
        for ar_ in range(2):
            out.append(lambda ar_=ar_: k.lg(("f", ks), "ds_read_b128", vr(uf[b][ar_], 4), v(aU2 if hi else aU), mods=f"offset:{so + ar_ * 8192 + j * 1024}"))
        for beta in range(2):
            o = so + (16 * j + 8 * beta) * 128
            out.append(lambda o=o, beta=beta: k.lg(("f", ks), "ds_read_b64_tr_b16", vr(wf[b] + 2 * beta, 2), v(vW2 if hi else vW), mods=f"offset:{o}"))
        return out
    k.I("s_barrier")
    stp.stamp(1)
    for f in rl(0) + rl(1): f()
    NKS = NST * 4
    for ks in range(NKS):
        c, j = ks // 4, ks % 4
        b = ks % NB
        k.wait_lg(("f", ks))
        mf = [lambda ar_=ar_: k.I("v_mfma_f32_32x32x16_bf16", vr(acc, 16), vr(wf[b], 4), vr(uf[b][ar_], 4), 0 if (ks == 0 and ar_ == 0) else vr(acc, 16)) for ar_ in range(2)]
        fl = rl(ks + 2) if ks + 2 < NKS else []
        if j == 2 and ks + 2 < NKS: k.I("s_barrier")
        interleave(k, mf, fl)
    stp.stamp(2)
    k.wait_vm("h")
    tp = [k.valloc(2) for _ in range(4)]
    for j in range(8):
        T = tp[j % 4]
        k.I("v_lshlrev_b32", v(T), 16, v(hr + j))
        k.I("v_and_b32", v(T + 1), "0xffff0000", v(hr + j))
        k.I("v_pk_add_f32", vr(acc + 2 * j, 2), vr(acc + 2 * j, 2), vr(T, 2))
    P = k.valloc(8, 4)
    for j in range(8): k.I("v_cvt_pk_bf16_f32", v(P + j), v(acc + 2 * j), v(acc + 2 * j + 1))
    for kp in range(2):
        k.I("v_permlane32_swap_b32", v(P + 4 * kp), v(P + 4 * kp + 2))
        k.I("v_permlane32_swap_b32", v(P + 4 * kp + 1), v(P + 4 * kp + 3))
    vo = k.valloc()
    k.I("v_mul_u32_u24", v(vo), 896, v(l31))
    k.I("v_lshl_add_u32", v(vo), v(hh), 4, v(vo))
    k.I("s_mul_i32", s(soff), s(sst), 32 * 896)
    k.I("s_lshl_b32", s(st0), s(sntile), 6)
    k.I("s_add_u32", s(soff), s(soff), s(st0))
    for kp in range(2):
        k.I("buffer_store_dwordx4", vr(P + 4 * kp, 4), v(vo), sr(sOut, 4), s(soff), mods=f"offen offset:{32 * kp}")
    stp.stamp(3)
    if os.environ.get("SPIN"):
        ka, ja, kb, jb = [int(x) for x in os.environ["SPIN"].split(",")]
        sa_ = k.salloc(2); sb_ = k.salloc(2); sn_ = k.salloc(2); sq_ = k.salloc(2)
        lab = k.newlabel("spin"); out_ = k.newlabel("spun")
        k.I("s_or_b32", s(st0), "s2", s(swave))
        k.I("s_cmp_lg_u32", s(st0), 0)
        k.I("s_cbranch_scc1", out_)
        k.I("s_mov_b32", s(st0), hex(STAMP_OFF + ka * 256 * 64 + ja * 8))
        k.I("s_load_dwordx2", sr(sa_, 2), sr(pWS, 2), s(st0))
        k.I("s_mov_b32", s(st1), hex(STAMP_OFF + max(kb, 0) * 256 * 64 + jb * 8))
        if kb >= 0: k.I("s_load_dwordx2", sr(sb_, 2), sr(pWS, 2), s(st1))
        else: k.I("s_memrealtime", sr(sb_, 2))
        k.I("s_memrealtime", sr(sn_, 2))
        k.I("s_waitcnt", "lgkmcnt(0)")
        k.I("s_sub_u32", s(sa_), s(sb_), s(sa_))
        k.I("s_min_u32", s(sa_), s(sa_), 20000)
        k.I("s_add_u32", s(sn_), s(sn_), s(sa_))
        k.L(lab)
        k.I("s_memrealtime", sr(sq_, 2))
        k.I("s_waitcnt", "lgkmcnt(0)")
        k.I("s_sub_u32", s(sq_), s(sq_), s(sn_))
        k.I("s_cmp_lt_i32", s(sq_), 0)
        k.I("s_cbranch_scc1", lab)
        k.L(out_)
    k.L(R["done"])
    k.I("s_endpgm")
    k.lds = lds; k.threads = 512; k.grid = 224
    return k

def rest(Stamper):
    if os.environ.get("MERGE56", "0") == "1":
        return [gen_k2(Stamper), gen_k3(Stamper), gen_k4(Stamper), gen_k56(Stamper)]
    return [gen_k2(Stamper), gen_k3(Stamper), {'b': gen_k4b, 'c': gen_k4c, '0': gen_k4}[os.environ.get('K4V', 'b')](Stamper), (gen_k5x if K5X else gen_k5)(Stamper), gen_k6(Stamper)]
```

```python
Q_OFF = 0x000000
K_OFF = 0x200000
V_OFF = 0x400000
O_OFF = 0x600000
H_OFF = 0x800000
HS_OFF = 0xA00000
CW_OFF = 0xA40000
EX_OFF = 0xA50000
FL_OFF = 0xA90000
RH_OFF = 0xAC0000
Z1_OFF = 0xB00000
Z2_OFF = 0xF00000
U0_OFF = 0x1300000
U1_OFF = 0x1700000
EX2_OFF = 0x1B80000
STAMP_OFF = 0x1B00000
STAMP_BYTES = 8 * 256 * 8 * 8
TICK_OFF = 0x1B40000
TICK_BYTES = 8 * 256 * 128
WS_USED = 0x1C00000

import os
Z2_PAD = int(os.environ.get("Z2PAD", "1"))
ZK = 65536 + (1280 if Z2_PAD else 0)
ZS = 2 * ZK + (768 if Z2_PAD else 0)

ZK16 = 32768 + 1280
ZS16 = 2 * ZK16 + 768
```

```python
import os, struct
from asmlib import *
from layout import *
import kernels2
from kernels2 import srd, f32, WS_SIZE

def gen_k1c(Stamper):
    k = Kernel("k1_qkv_kernel")
    k.snext = 4; k.vnext = 1
    WREG = 0; WCH = 12288; XRING = 7 * WCH; XSL = 4096; NXS = 4
    TBL = XRING + 4 * NXS * XSL
    CWT = TBL; RT = TBL + 512; NMT = TBL + 1024; SQT = TBL + 1536
    ONES = TBL + 2048
    lds = ONES + 1024
    done = k.newlabel("done")
    k.I("s_cmp_ge_u32", "s2", 256)
    k.I("s_cbranch_scc1", done)
    pX = k.salloc(4); pWS = k.salloc(2)
    k.I("s_load_dwordx4", sr(pX, 4), "s[0:1]", 0)
    k.I("s_load_dwordx2", sr(pWS, 2), "s[0:1]", 80)
    sX = k.salloc(4); sW = k.salloc(4); sWS = k.salloc(4)
    swave = k.salloc(); srb = k.salloc(); sct = k.salloc(); st0 = k.salloc(); st1 = k.salloc(); soff = k.salloc()
    lane = k.valloc(); l31 = k.valloc(); hh = k.valloc(); t0 = k.valloc(); t1 = k.valloc(); t2 = k.valloc()
    k.I("v_lshrrev_b32", v(t0), 6, "v0")
    k.I("v_and_b32", v(lane), 63, "v0")
    k.I("v_readfirstlane_b32", s(swave), v(t0))
    kernels2.map_rb_hd(k, srb, sct, st0, st1)
    stp = Stamper(k, 0, sWS, swave)
    sw3 = k.salloc()
    k.I("s_and_b32", s(sw3), s(swave), 3)
    l15 = k.valloc()
    k.I("v_and_b32", v(l15), 15, v(lane))
    comp = k.newlabel("compute")
    k.I("s_cmp_lt_u32", s(swave), 4)
    k.I("s_cbranch_scc1", comp)
    vsave = k.vnext; ssave = k.snext
    if os.environ.get("PRIO_L"): k.I("s_setprio", int(os.environ["PRIO_L"]))
    vXo = k.valloc(4)
    k.I("v_lshrrev_b32", v(t0), 3, v(lane))
    k.I("v_mul_u32_u24", v(t0), 896, v(t0))
    k.I("v_lshrrev_b32", v(t1), 4, v(lane))
    k.I("v_and_b32", v(t2), 7, v(lane))
    k.I("v_xor_b32", v(t1), v(t1), v(t2))
    k.I("v_lshl_add_u32", v(vXo), v(t1), 4, v(t0))
    k.I("v_xor_b32", v(t1), 4, v(t1))
    k.I("v_lshl_add_u32", v(vXo + 1), v(t1), 4, v(t0))
    k.I("v_add_u32", v(vXo + 1), 8 * 896, v(vXo + 1))
    k.I("v_add_u32", v(vXo + 2), 16 * 896, v(vXo))
    k.I("v_add_u32", v(vXo + 3), 16 * 896, v(vXo + 1))
    vWo = k.valloc(3); oob = k.valloc()
    k.I("v_mov_b32", v(oob), "0x7fffff00")
    for b in range(3):
        k.I("v_add_u32", v(t0), 64 * b, v(lane))
        k.I("v_mul_u32_u24", v(t1), 171, v(t0))
        k.I("v_lshrrev_b32", v(t1), 11, v(t1))
        k.I("v_mul_u32_u24", v(t2), 12, v(t1))
        k.I("v_sub_u32", v(t0), v(t0), v(t2))
        k.I("v_mul_u32_u24", v(t1), 2688, v(t1))
        k.I("v_lshl_add_u32", v(t1), v(t0), 4, v(t1))
        k.I("v_cmp_gt_u32", "vcc", 11, v(t0))
        k.I("v_cndmask_b32", v(vWo + b), v(oob), v(t1), "vcc")
    sWb = k.salloc(); sm0 = k.salloc(); sXb = k.salloc(); sm0x = k.salloc()
    k.I("s_mul_i32", s(sWb), s(sct), 168)
    k.I("s_mul_i32", s(st0), s(sw3), 16 * 2688)
    k.I("s_add_u32", s(sWb), s(sWb), s(st0))
    k.I("s_mul_i32", s(sm0), s(sw3), 3 * 1024)
    k.I("s_lshl_b32", s(st0), s(srb), 7)
    k.I("s_lshl_b32", s(st1), s(sw3), 5)
    k.I("s_add_u32", s(st0), s(st0), s(st1))
    k.I("s_mul_i32", s(sXb), s(st0), 896)
    k.I("s_mul_i32", s(sm0x), s(sw3), NXS * XSL)
    k.I("s_add_u32", s(sm0x), s(sm0x), XRING)
    srot = k.salloc(); scp = k.salloc(); sa1 = k.salloc()
    k.I("s_lshl_b32", s(st0), s(srb), 1)
    if os.environ.get("ROTK1") == "rb": pass
    elif os.environ.get("ROTK1") == "ct": k.I("s_mov_b32", s(st0), s(sct))
    else: k.I("s_add_u32", s(st0), s(st0), s(sct))
    k.I("s_mul_i32", s(st1), s(st0), 37)
    k.I("s_lshr_b32", s(st1), s(st1), 8)
    k.I("s_mul_i32", s(st1), s(st1), 7)
    k.I("s_sub_u32", s(srot), s(st0), s(st1))
    if not kernels2.rot_on(1): k.I("s_mov_b32", s(srot), 0)
    def wdma(c, b):
        if b == 0:
            kernels2.rot_index(k, scp, srot, c, 7)
            k.I("s_mul_i32", s(sa1), s(scp), 64 * 2688)
            k.I("s_add_u32", s(sa1), s(sa1), s(sWb))
        k.I("s_add_u32", "m0", s(sm0), hex(WREG + c * WCH + b * 1024))
        k.vm(("W", c), "buffer_load_dwordx4", v(vWo + b), sr(sW, 4), s(sa1), mods="offen lds")
    def xdma(c, j):
        if j == 0:
            kernels2.rot_index(k, scp, srot, c, 7)
            k.I("s_lshl_b32", s(soff), s(scp), 7)
            k.I("s_add_u32", s(soff), s(soff), s(sXb))
        k.I("s_add_u32", "m0", s(sm0x), hex((c % NXS) * XSL + j * 1024))
        k.vm(("X", c), "buffer_load_dwordx4", v(vXo + j), sr(sX, 4), s(soff), mods="offen lds")
    k.I("s_waitcnt", "lgkmcnt(0)")
    srd(k, sW, pX + 2, 448 * 2688)
    srd(k, sX, pX, 2048 * 896)
    for c in range(2):
        for b in range(3): wdma(c, b)
        for j in range(4): xdma(c, j)
    for b in range(3): wdma(2, b)
    for c in range(7):
        k.wait_vm([("W", c), ("X", c)])
        k.I("s_barrier")
        if c + 2 <= 6:
            for j in range(4): xdma(c + 2, j)
        if c + 3 <= 6:
            for b in range(3): wdma(c + 3, b)
    k.I("s_barrier")
    k.I("s_endpgm")
    k.L(comp)
    if os.environ.get("PRIO_C"): k.I("s_setprio", int(os.environ["PRIO_C"]))
    k.vnext = vsave; k.vmq = []; k.lgq = []
    sidx1 = k.salloc()
    k.I("s_lshr_b32", s(sidx1), "s2", 3)
    kernels2.code_prefetch(k, "k2_attn_kernel", sidx1, st0)
    if os.environ.get("PFKD"):
        pp = k.salloc(2); sP = k.salloc(4); vk = k.valloc(); vkd = k.valloc()
        k.I("s_getpc_b64", sr(pp, 2))
        k.I("s_add_u32", s(pp), s(pp), "kd_base@rel32@lo+4")
        k.I("s_addc_u32", s(pp + 1), s(pp + 1), "kd_base@rel32@hi+12")
        srd(k, sP, pp, 64 * 16)
        k.I("v_lshlrev_b32", v(vk), 6, v(lane))
        k.vm("pfc", "buffer_load_dword", v(vkd), v(vk), sr(sP, 4), 0, mods="offen")
    sm0x = k.salloc()
    k.I("s_mul_i32", s(sm0x), s(swave), NXS * XSL)
    k.I("s_add_u32", s(sm0x), s(sm0x), XRING)
    aX = k.valloc(4); vW = k.valloc(); aG = k.valloc(4); vWj = k.valloc(); gg = k.valloc()
    k.I("v_and_b32", v(l31), 31, "v0")
    k.I("v_bfe_u32", v(hh), "v0", 5, 1)
    k.I("v_lshrrev_b32", v(gg), 4, v(lane))
    k.I("v_bfe_u32", v(t0), v(l31), 1, 3)
    for j in range(4):
        k.I("v_add_u32", v(t1), 2 * j, v(hh))
        k.I("v_xor_b32", v(t1), v(t1), v(t0))
        k.I("v_lshlrev_b32", v(t1), 4, v(t1))
        k.I("v_lshl_add_u32", v(aX + j), v(l31), 7, v(t1))
        k.I("v_add_u32", v(aX + j), s(sm0x), v(aX + j))
    for rg in range(2):
        k.I("v_add_u32", v(t0), 16 * rg, v(l15))
        k.I("v_bfe_u32", v(t1), v(t0), 1, 3)
        for kk in range(2):
            k.I("v_add_u32", v(t2), 4 * kk, v(gg))
            k.I("v_xor_b32", v(t2), v(t2), v(t1))
            k.I("v_lshlrev_b32", v(t2), 4, v(t2))
            k.I("v_lshl_add_u32", v(aG + 2 * rg + kk), v(t0), 7, v(t2))
            k.I("v_add_u32", v(aG + 2 * rg + kk), s(sm0x), v(aG + 2 * rg + kk))
    k.I("v_bfe_u32", v(t0), "v0", 2, 2)
    k.I("v_lshl_add_u32", v(t1), v(hh), 3, v(t0))
    k.I("v_mul_u32_u24", v(t1), 192, v(t1))
    k.I("v_bfe_u32", v(t2), "v0", 4, 1)
    k.I("v_lshl_add_u32", v(t1), v(t2), 5, v(t1))
    k.I("v_and_b32", v(t2), 3, "v0")
    k.I("v_lshl_add_u32", v(vW), v(t2), 3, v(t1))
    k.I("v_lshl_add_u32", v(t0), v(gg), 3, v(t0))
    k.I("v_mul_u32_u24", v(t0), 192, v(t0))
    k.I("v_lshl_add_u32", v(vWj), v(t2), 3, v(t0))
    k.I("s_lshr_b32", s(st0), s(swave), 1)
    k.I("s_mul_i32", s(st0), s(st0), 32 * 192)
    k.I("s_and_b32", s(st1), s(swave), 1)
    k.I("s_mul_i32", s(st1), s(st1), 96)
    k.I("s_add_u32", s(st0), s(st0), s(st1))
    k.I("v_add_u32", v(vWj), s(st0), v(vWj))
    vW2 = k.valloc(); vWj2 = k.valloc()
    k.I("v_add_u32", v(vW2), 4 * WCH, v(vW))
    k.I("v_add_u32", v(vWj2), 4 * WCH, v(vWj))
    ones = k.valloc(4); vWq = k.valloc(); vInc = k.valloc()
    k.I("v_and_b32", v(t0), 19, v(lane))
    k.I("v_cmp_eq_u32", "vcc", 19, v(t0))
    k.I("v_mov_b32", v(t1), ONES)
    k.I("v_cndmask_b32", v(vWq), v(vW), v(t1), "vcc")
    k.I("v_mov_b32", v(t1), 16 * 192)
    k.I("v_cndmask_b32", v(vInc), v(t1), 0, "vcc")
    k.I("v_lshlrev_b32", v(t0), 4, v(lane))
    k.I("v_add_u32", v(t0), ONES, v(t0))
    for i in range(4): k.I("v_mov_b32", v(ones + i), "0x3f803f80")
    k.lg("z", "ds_write_b128", v(t0), vr(ones, 4))
    zz = k.valloc(2); vtb = k.valloc()
    k.I("v_mov_b32", v(zz), 0); k.I("v_mov_b32", v(zz + 1), 0)
    k.I("v_lshlrev_b32", v(vtb), 3, v(lane))
    k.I("v_add_u32", v(vtb), CWT, v(vtb))
    k.lg("z", "ds_write_b64", v(vtb), vr(zz, 2))
    acc = [k.valloc(16, 4) for _ in range(3)]
    NB = 3
    cacc = [k.valloc(4) for _ in range(3)]
    gacc = [k.valloc(4) for _ in range(2)]
    vtl_ = k.valloc(); vcwa = k.valloc(); vsqa = k.valloc(); vrow = k.valloc(); vh4 = k.valloc(); vh4w = k.valloc(); vl31 = k.valloc()
    k.I("v_lshlrev_b32", v(vtl_), 2, v(l15))
    k.I("v_add_u32", v(vtl_), TBL, v(vtl_))
    k.I("s_and_b32", s(st1), s(swave), 1)
    k.I("s_mul_i32", s(st1), s(st1), 192)
    k.I("v_add_u32", v(vcwa), s(st1), v(vtl_))
    k.I("s_lshl_b32", s(st0), s(swave), 7)
    k.I("v_add_u32", v(vsqa), s(st0), v(vtl_))
    k.I("v_add_u32", v(vsqa), SQT - TBL, v(vsqa))
    k.I("v_lshlrev_b32", v(vl31), 2, v(l31))
    k.I("v_add_u32", v(vl31), TBL, v(vl31))
    k.I("v_add_u32", v(vrow), s(st0), v(vl31))
    k.I("v_lshlrev_b32", v(vh4), 4, v(hh))
    k.I("v_add_u32", v(vh4), TBL, v(vh4))
    k.I("v_add_u32", v(vh4w), s(st0), v(vh4))
    vq = k.valloc(); vv_ = k.valloc()
    k.I("v_lshrrev_b32", v(t0), 4, v(l31))
    k.I("v_lshlrev_b32", v(vq), 10, v(t0))
    k.I("v_lshl_add_u32", v(vq), v(l15), 4, v(vq))
    k.I("v_lshl_add_u32", v(vq), v(hh), 9, v(vq))
    k.I("v_lshlrev_b32", v(vv_), 9, v(t0))
    k.I("v_lshl_add_u32", v(vv_), v(l15), 3, v(vv_))
    k.I("v_lshl_add_u32", v(vv_), v(hh), 7, v(vv_))
    sb = k.salloc()
    k.I("s_mul_i32", s(sb), s(sct), 3 * 131072)
    k.I("s_lshl_b32", s(st0), s(srb), 13)
    k.I("s_add_u32", s(sb), s(sb), s(st0))
    k.I("s_lshl_b32", s(st0), s(swave), 11)
    k.I("s_add_u32", s(sb), s(sb), s(st0))
    m1 = k.salloc(2); m2 = k.salloc(2); m3 = k.salloc(2)
    k.I("v_and_b32", v(t0), 3, v(lane))
    k.I("v_cmp_eq_u32", sr(m1, 2), 1, v(t0))
    k.I("v_cmp_eq_u32", sr(m2, 2), 2, v(t0))
    k.I("v_cmp_eq_u32", sr(m3, 2), 3, v(t0))
    k.I("s_waitcnt", "lgkmcnt(0)")
    k.lgq = []
    srd(k, sWS, pWS, WS_SIZE)
    stp.stamp(0)
    vmark = k.vnext
    labB = k.newlabel("varB"); labC = k.newlabel("varC")
    k.I("s_cmp_ge_u32", s(sct), 11)
    k.I("s_cbranch_scc1", labC)
    k.I("s_cmp_eq_u32", s(sct), 10)
    k.I("s_cbranch_scc1", labB)

    def variant(types):
        k.vnext = vmark; k.lgq = []; k.vmq = []
        xf = [k.valloc(4) for _ in range(NB)]
        wf = [[k.valloc(4) for _ in range(3)] for _ in range(NB)]
        xs = [k.valloc(4) for _ in range(4)]
        wf2 = [k.valloc(4) for _ in range(3)]
        def read_list(ks):
            c, j = ks // 4, ks % 4
            b = ks % NB
            out = [lambda: k.lg(("f", ks), "ds_read_b128", vr(xf[b], 4), v(aX + j), mods=f"offset:{(c % NXS) * XSL}")]
            for beta in range(2):
                out.append(lambda beta=beta: k.lg(("f", ks), "ds_read_b64_tr_b16", vr(wf[b][0] + 2 * beta, 2), v(vWq), mods=f"offset:{beta * 4 * 192}"))
            out.append(lambda: k.I("v_add_u32", v(vWq), v(vInc), v(vWq)))
            for sg in range(1, 3):
                for beta in range(2):
                    o = (c % 4) * WCH + (16 * j + 4 * beta) * 192 + 56 * sg
                    base = vW if c < 4 else vW2
                    out.append(lambda o=o, sg=sg, beta=beta, base=base: k.lg(("f", ks), "ds_read_b64_tr_b16", vr(wf[b][sg] + 2 * beta, 2), v(base), mods=f"offset:{o}"))
            return out
        def aux_reads(c):
            out = []
            for j in range(4):
                out.append(lambda j=j: k.lg(("g", c), "ds_read_b128", vr(xs[j], 4), v(aG + j), mods=f"offset:{(c % NXS) * XSL}"))
            for nt in range(3):
                for beta in range(2):
                    o = (c % 4) * WCH + (4 * beta) * 192 + 32 * nt
                    base = vWj if c < 4 else vWj2
                    out.append(lambda o=o, nt=nt, beta=beta, base=base: k.lg(("cw", c), "ds_read_b64_tr_b16", vr(wf2[nt] + 2 * beta, 2), v(base), mods=f"offset:{o}"))
            return out
        k.I("s_barrier")
        stp.stamp(1)
        for f in read_list(0): f()
        for f in read_list(1): f()
        for ks in range(28):
            c, j = ks // 4, ks % 4
            b = ks % NB
            fill = read_list(ks + 2) if ks + 2 < 28 else []
            aux = []
            if j == 0: aux = aux_reads(c)[:4]
            if j == 1: aux = aux_reads(c)[4:]
            k.wait_lg(("f", ks))
            mf = []
            for sg in range(3):
                A, B = (wf[b][sg], xf[b]) if types[sg] == "k" else (xf[b], wf[b][sg])
                mf.append(lambda sg=sg, A=A, B=B: k.I("v_mfma_f32_32x32x16_bf16", vr(acc[sg], 16), vr(A, 4), vr(B, 4), 0 if ks == 0 else vr(acc[sg], 16)))
            fl = fill + aux
            if ks == 27:
                def fin1():
                    k.I("s_mov_b32", "exec_lo", "0xffff")
                    k.I("s_mov_b32", "exec_hi", 0)
                    for nt in range(3):
                        k.lg("fin", "ds_add_f32", v(vcwa), v(cacc[nt]), mods=f"offset:{64 * nt}")
                    k.I("s_mov_b64", "exec", -1)
                def fin2():
                    for rg in range(2):
                        g_ = gacc[rg]
                        k.I("v_cndmask_b32", v(g_), v(g_), v(g_ + 1), sr(m1, 2))
                        k.I("v_cndmask_b32", v(g_), v(g_), v(g_ + 2), sr(m2, 2))
                        k.I("v_cndmask_b32", v(g_), v(g_), v(g_ + 3), sr(m3, 2))
                    k.I("s_mov_b32", "exec_lo", "0x00f0000f")
                    k.I("s_mov_b32", "exec_hi", "0xf0000f00")
                    for rg in range(2):
                        k.lg("fin", "ds_write_b32", v(vsqa), v(gacc[rg]), mods=f"offset:{64 * rg}")
                    k.I("s_mov_b64", "exec", -1)
                fl = [fin1, fin2]
            n = len(fl)
            cuts = [0, (n + 2) // 3, (2 * n + 2) // 3, n]
            for i in range(3):
                mf[i]()
                for f in fl[cuts[i]:cuts[i + 1]]: f()
            if j == 1 + (0 if c == 6 else 1):
                k.wait_lg(("g", c))
                for jj in range(4):
                    k.I("v_mfma_f32_16x16x32_bf16", vr(gacc[jj >> 1], 4), vr(xs[jj], 4), vr(xs[jj], 4), 0 if (c == 0 and (jj & 1) == 0) else vr(gacc[jj >> 1], 4))
            if j == 2 + (0 if c == 6 else 1):
                k.wait_lg(("cw", c))
                for nt in range(3):
                    k.I("v_mfma_f32_16x16x32_bf16", vr(cacc[nt], 4), vr(ones, 4), vr(wf2[nt], 4), 0 if c == 0 else vr(cacc[nt], 4))
            if j == 1 and c < 6:
                k.I("s_barrier")
        stp.stamp(2)
        k.vnext = vmark
        sq = k.valloc(2); rl = k.valloc(2); nml = k.valloc(2)
        cwb = [k.valloc(16, 4) for _ in range(3)]
        rv = k.valloc(16, 4); nv = k.valloc(16, 4)
        k.lg("sq", "ds_read_b32", v(sq), v(vrow), mods=f"offset:{SQT - TBL}")
        if types[0] == "v":
            k.I("s_mov_b32", "exec_lo", hex(1 << 28))
            k.I("s_mov_b32", "exec_hi", hex(1 << 28))
            for q in range(4):
                k.lg("ms", "ds_write_b128", v(vh4w), vr(acc[0] + 4 * q, 4), mods=f"offset:{NMT - TBL + 32 * q}")
            k.I("s_mov_b64", "exec", -1)
            k.lg("msr", "ds_read_b32", v(nml + 1), v(vrow), mods=f"offset:{NMT - TBL}")
        k.wait_lg("fin")
        k.I("s_barrier")
        for sg in range(3):
            if types[sg] == "k":
                for q in range(4):
                    k.lg(("cw", sg), "ds_read_b128", vr(cwb[sg] + 4 * q, 4), v(vh4), mods=f"offset:{CWT - TBL + 112 * sg + 32 * q}")
            else:
                k.lg(("cw", sg), "ds_read_b32", v(cwb[sg]), v(vl31), mods=f"offset:{CWT - TBL + 112 * sg}")
        if types[0] == "k":
            k.I("v_mov_b32", v(nml), v(acc[0] + 12))
            k.I("v_mov_b32", v(nml + 1), v(acc[0] + 12))
            k.I("v_permlane32_swap_b32", v(nml), v(nml + 1))
        else:
            k.wait_lg("msr")
        k.I("v_mul_f32", v(nml), hex(f32(-1.0 / 448)), v(nml + 1))
        k.wait_lg("sq")
        k.I("v_mul_f32", v(sq), hex(f32(1.0 / 448)), v(sq))
        k.I("v_fma_f32", v(sq), f"-{v(nml)}", v(nml), v(sq))
        k.I("v_max_f32", v(sq), 0, v(sq))
        def rbf(r_):
            k.I("v_cvt_pk_bf16_f32", v(r_), v(r_), v(r_))
            k.I("v_lshlrev_b32", v(r_), 16, v(r_))
        rbf(nml); rbf(sq)
        k.I("v_add_f32", v(sq), hex(f32(1e-5)), v(sq))
        rbf(sq)
        k.I("v_sqrt_f32", v(sq), v(sq))
        rbf(sq)
        k.I("v_rcp_f32", v(rl), v(sq))
        if "v" in types:
            k.lg("w", "ds_write_b32", v(vrow), v(nml), mods=f"offset:{NMT - TBL}")
            k.lg("w", "ds_write_b32", v(vrow), v(rl), mods=f"offset:{RT - TBL}")
            for q in range(4):
                k.lg("rv", "ds_read_b128", vr(rv + 4 * q, 4), v(vh4w), mods=f"offset:{RT - TBL + 32 * q}")
                k.lg("rv", "ds_read_b128", vr(nv + 4 * q, 4), v(vh4w), mods=f"offset:{NMT - TBL + 32 * q}")
        mk = k.salloc(2); mv = k.salloc(2)
        k.I("v_cmp_eq_u32", sr(mk, 2), 0, v(hh))
        k.I("v_cmp_gt_u32", sr(mv, 2), 28, v(l31))
        padv = k.valloc()
        k.I("v_mov_b32", v(padv), "0x3f803f80")
        k.I("v_cmp_eq_u32", "vcc", 28, v(l31))
        k.I("v_cndmask_b32", v(padv), 0, v(padv), "vcc")
        pks = [k.valloc(8, 4) for _ in range(2)]
        for sg in range(3):
            A = acc[sg]; pk = pks[sg & 1]
            k.wait_lg(("cw", sg))
            if types[sg] == "k":
                for j in range(8):
                    k.I("v_pk_fma_f32", vr(A + 2 * j, 2), vr(cwb[sg] + 2 * j, 2), vr(nml, 2), vr(A + 2 * j, 2), mods="op_sel_hi:[1,0,1]")
                for j in range(8):
                    k.I("v_pk_mul_f32", vr(A + 2 * j, 2), vr(A + 2 * j, 2), vr(rl, 2), mods="op_sel_hi:[1,0]")
                for j in range(8):
                    k.I("v_cvt_pk_bf16_f32", v(pk + j), v(A + 2 * j), v(A + 2 * j + 1))
                k.I("v_cndmask_b32", v(pk + 6), 0, v(pk + 6), sr(mk, 2))
                k.I("v_cndmask_b32", v(pk + 7), 0, v(pk + 7), sr(mk, 2))
                k.I("s_add_u32", s(soff), s(sb), hex(sg * 131072))
                k.I("buffer_store_dwordx4", vr(pk, 4), v(vq), sr(sWS, 4), s(soff), mods="offen")
                k.I("buffer_store_dwordx4", vr(pk + 4, 4), v(vq), sr(sWS, 4), s(soff), mods="offen offset:256")
            else:
                k.wait_lg("rv")
                for j in range(8):
                    k.I("v_pk_fma_f32", vr(A + 2 * j, 2), vr(nv + 2 * j, 2), vr(cwb[sg], 2), vr(A + 2 * j, 2), mods="op_sel_hi:[1,0,1]")
                for j in range(8):
                    k.I("v_pk_mul_f32", vr(A + 2 * j, 2), vr(A + 2 * j, 2), vr(rv + 2 * j, 2))
                for j in range(8):
                    k.I("v_cvt_pk_bf16_f32", v(pk + j), v(A + 2 * j), v(A + 2 * j + 1))
                for j in range(8):
                    k.I("v_cndmask_b32", v(pk + j), v(padv), v(pk + j), sr(mv, 2))
                k.I("s_add_u32", s(soff), s(sb), hex(sg * 131072))
                for q in range(4):
                    k.I("buffer_store_dwordx2", vr(pk + 2 * q, 2), v(vv_), sr(sWS, 4), s(soff), mods=f"offen offset:{(q >> 1) * 1024 + (q & 1) * 256}")
        stp.stamp(3)
        k.I("s_endpgm")
    snext0 = k.snext
    variant("kkk")
    k.L(labB); k.snext = snext0
    variant("kkv")
    k.L(labC); k.snext = snext0
    variant("vvv")
    k.L(done)
    k.I("s_endpgm")
    k.lds = lds; k.threads = 512; k.grid = 256
    return k
```
